```python
import torch

def _softmax(x, axis=-1):
    return torch.softmax(x, dim=axis)
def _gelu(x):
    return torch.nn.functional.gelu(x, approximate="tanh")
def _silu(x):
    return torch.nn.functional.silu(x)
def _sigmoid(x):
    return torch.sigmoid(x)
def _layernorm(x, axis=-1, eps=1e-5):
    m = x.mean(dim=axis, keepdim=True)
    v = x.var(dim=axis, keepdim=True, unbiased=False)
    return (x - m) / torch.sqrt(v + eps)
def _scatter_add(tgt, idx, src, axis=0):
    return tgt.clone().index_add_(axis, idx, src)
def _segment_sum(src, seg, n):
    out = torch.zeros((n,) + src.shape[1:], dtype=src.dtype)
    return out.index_add_(0, seg, src)
def _pad(x, pw):
    flat = tuple(v for pair in reversed(pw) for v in pair)
    return torch.nn.functional.pad(x, flat)

kernel_name = 'interleave_layers__mha_block__glu_gated_bilinear__prompt'

def setup_inputs():

    _w = (lambda a: (lambda t: t.to(torch.bfloat16) if t.is_floating_point() else t)(torch.as_tensor(a)))
    def _A_setup():
        B, S, D, H = 1, 2048, 512, 32
        return {
            "x": _w((lambda *s: torch.randn(*s, dtype=torch.bfloat16) * 0.05)(B, S, D)),
            "wqkv": _w((lambda *s: torch.randn(*s, dtype=torch.bfloat16) * 0.05)(D, 3 * D)),
            "wo": _w((lambda *s: torch.randn(*s, dtype=torch.bfloat16) * 0.05)(D, D)),
        }
    _A_in = _A_setup()

    def _B_setup():
        B, S, D, F = 1, 2048, 512, 1792
        return {
            "x": _w((lambda *s: torch.randn(*s, dtype=torch.bfloat16) * 0.05)(B, S, D)),
            "w_gate": _w((lambda *s: torch.randn(*s, dtype=torch.bfloat16) * 0.4)(D, F) * (D ** -0.5)),
            "w_up": _w((lambda *s: torch.randn(*s, dtype=torch.bfloat16) * 0.4)(D, F) * (D ** -0.5)),
            "w_down": _w((lambda *s: torch.randn(*s, dtype=torch.bfloat16) * 0.4)(F, D) * (F ** -0.5)),
        }
    _B_in = _B_setup()

    return {
        "A_x": _A_in["x"],
        "A_wqkv": _A_in["wqkv"],
        "A_wo": _A_in["wo"],
        "B_x": _B_in["x"],
        "B_w_gate": _B_in["w_gate"],
        "B_w_up": _B_in["w_up"],
        "B_w_down": _B_in["w_down"],
    }

def reference(A_x, A_wqkv, A_wo, B_x, B_w_gate, B_w_up, B_w_down):
    def _A_ref(x, wqkv, wo):
        B, S, D = x.shape
        H = 32
        Dh = D // H
        qkv = (lambda x, *d: x.permute(*d))((x @ wqkv).reshape(B, S, 3, H, Dh), 2, 0, 3, 1, 4)
        q, k, v = qkv[0], qkv[1], qkv[2]
        scores = torch.einsum("bhqd,bhkd->bhqk", q, k) * (Dh ** -0.5)
        p = _softmax(scores, axis=-1)
        o = torch.einsum("bhqk,bhkd->bhqd", p, v)
        return (lambda x, *d: x.permute(*d))(o, 0, 2, 1, 3).reshape(B, S, D) @ wo

    def _B_ref(x, w_gate, w_up, w_down):
        g = torch.einsum("bsd,df->bsf", x, w_gate)
        u = torch.einsum("bsd,df->bsf", x, w_up)
        h = g * u
        return torch.einsum("bsf,fd->bsd", h, w_down)

    x = A_x
    x = x + _A_ref(_layernorm(x, axis=-1), A_wqkv, A_wo)
    x = x + _B_ref(_layernorm(x, axis=-1), B_w_gate, B_w_up, B_w_down)
    x = x + _A_ref(_layernorm(x, axis=-1), A_wqkv, A_wo)
    x = x + _B_ref(_layernorm(x, axis=-1), B_w_gate, B_w_up, B_w_down)
    return x
```

```python
import re

REG = re.compile(r'^(-?)(?:abs\()?([vas])(?:(\d+)|\[(\d+):(\d+)\])\)?$')

def regs_of(op):
    op = op.strip()
    m = REG.match(op)
    if m:
        t = m.group(2)
        if m.group(3) is not None:
            return {(t, int(m.group(3)))}
        return {(t, i) for i in range(int(m.group(4)), int(m.group(5)) + 1)}
    if op in ('vcc', 'vcc_lo', 'vcc_hi'):
        return {('x', 'vcc')}
    if op in ('exec', 'exec_lo', 'exec_hi'):
        return {('x', 'exec')}
    if op == 'm0':
        return {('x', 'm0')}
    return set()

TRANS = ('v_exp_f32', 'v_log_f32', 'v_rcp_f32', 'v_rsq_f32', 'v_sqrt_f32', 'v_sin_f32', 'v_cos_f32', 'v_rcp_iflag_f32')

class Ins:
    __slots__ = ('text', 'mn', 'ops', 'kind', 'w', 'r', 'A', 'B', 'C', 'D', 'passes', 'label', 'target', 'data', 'nopn', 'dpp')
    def __init__(self, text):
        self.text = text
        self.label = None
        self.target = None
        self.kind = 'other'
        self.w = set(); self.r = set()
        self.A = self.B = self.C = self.D = set()
        self.passes = 0
        self.data = set()
        self.nopn = 0
        self.dpp = False
        t = text.split(';')[0].strip()
        if not t or t.startswith('.'):
            self.kind = 'meta'; self.mn = ''; self.ops = []
            return
        if t.endswith(':'):
            self.kind = 'label'; self.label = t[:-1]; self.mn = ''; self.ops = []
            return
        parts = t.split(None, 1)
        mn = parts[0]
        self.mn = mn
        rest = parts[1] if len(parts) > 1 else ''
        ops = []
        depth = 0; cur = ''
        for ch in rest:
            if ch in '[(': depth += 1
            if ch in '])': depth -= 1
            if ch == ',' and depth == 0:
                ops.append(cur.strip()); cur = ''
            else:
                cur += ch
        if cur.strip(): ops.append(cur.strip())
        mods = ''
        if ops:
            last = ops[-1].split(None, 1)
            if len(last) > 1 and not ops[-1].startswith('hwreg'):
                ops[-1] = last[0]; mods = last[1]
        self.ops = ops
        R = [regs_of(o) for o in ops]
        U = lambda xs: set().union(*xs) if xs else set()
        if mn.startswith('v_mfma') or mn.startswith('v_smfmac'):
            self.kind = 'mfma'
            self.D = R[0]; self.A = R[1]; self.B = R[2]
            if mn.startswith('v_smfmac'):
                self.C = R[0]; self.B = R[2] | R[3]
            else:
                self.C = R[3]
            self.passes = 8 if '32x32' in mn else 4
            self.w = self.D; self.r = self.A | self.B | self.C
        elif mn.startswith('v_'):
            self.kind = 'valu'
            if 'dpp' in mn or 'row_' in mods or 'quad_perm' in mods: self.dpp = True
            if mn.startswith('v_cmp'):
                self.w = R[0]; self.r = U(R[1:])
            elif mn.startswith('v_permlane') and 'swap' in mn:
                self.w = R[0] | R[1]; self.r = R[0] | R[1]
            elif mn.startswith(('v_add_co', 'v_sub_co', 'v_addc_co', 'v_subb_co', 'v_subrev_co')):
                self.w = R[0] | R[1]; self.r = U(R[2:])
            elif mn.startswith(('v_fmac', 'v_dot2c', 'v_writelane')):
                self.w = R[0]; self.r = U(R)
            elif mn == 'v_nop':
                pass
            else:
                self.w = R[0]; self.r = U(R[1:])
        elif mn.startswith('ds_'):
            self.kind = 'ds'
            if mn.startswith(('ds_read', 'ds_bpermute', 'ds_permute', 'ds_swizzle')) or '_rtn' in mn:
                self.w = R[0]; self.r = U(R[1:])
            else:
                self.r = U(R)
        elif mn.startswith(('buffer_', 'global_')):
            self.kind = 'vmem'
            islds = ' lds' in (' ' + mods) or '_lds_' in mn
            if mn in ('buffer_wbl2', 'buffer_inv'):
                pass
            elif 'load' in mn:
                if islds:
                    self.r = U(R) | {('x', 'm0')}
                else:
                    self.w = R[0]; self.r = U(R[1:])
            elif 'store' in mn:
                self.r = U(R)
                if mn.endswith(('x3', 'x4')):
                    self.data = R[0] if mn.startswith('buffer') else R[1]
            elif 'atomic' in mn:
                self.r = U(R)
                if 'sc0' in mods: self.w = R[0]
        elif mn.startswith('s_'):
            self.kind = 'salu'
            if mn == 's_nop':
                self.nopn = int(ops[0], 0)
            elif mn in ('s_branch',) or mn.startswith('s_cbranch'):
                self.kind = 'branch'; self.target = ops[0]
                if 'vcc' in mn: self.r = {('x', 'vcc')}
            elif mn in ('s_waitcnt', 's_barrier', 's_endpgm', 's_sleep', 's_setprio', 's_setpc_b64'):
                self.r = U(R)
            elif mn.startswith('s_cmp') or mn.startswith('s_bitcmp'):
                self.r = U(R)
            elif 'saveexec' in mn:
                self.w = R[0] | {('x', 'exec')}; self.r = U(R[1:])
            else:
                self.w = R[0]; self.r = U(R[1:])
    def states(self):
        if self.kind in ('meta', 'label'): return 0
        if self.mn == 's_nop': return self.nopn + 1
        return 1

def base(mn): return re.sub(r'_e(32|64)$', '', mn)
def isv(s): return {x for x in s if x[0] in 'va'}
def iss(s): return {x for x in s if x[0] == 's' or x == ('x', 'vcc')}

def need(p, c):
    n = 0
    if p.kind == 'valu':
        wv = isv(p.w); ws = iss(p.w)
        isdot = p.mn.startswith('v_dot')
        if c.kind == 'mfma' and wv & c.r: n = max(n, 3 if isdot else 2)
        if c.kind == 'valu':
            if base(p.mn) in TRANS and base(c.mn) not in TRANS and wv & c.r: n = max(n, 1)
            if c.mn.startswith(('v_readlane', 'v_readfirstlane')) and wv & c.r: n = max(n, 1)
            if c.mn.startswith('v_permlane') and wv & c.r: n = max(n, 2)
            if c.dpp and wv & c.r: n = max(n, 2)
            if ws & c.r:
                n = max(n, 4 if c.mn.startswith(('v_readlane', 'v_writelane', 'v_div_fmas')) else 2)
            if isdot and (wv & (c.r | c.w)):
                if c.mn == p.mn:
                    srcs = set().union(*[regs_of(o) for o in c.ops[1:3]])
                    if wv & srcs: n = max(n, 3)
                else:
                    n = max(n, 3)
            if 'sdwa' in p.mn and wv & (c.r | c.w): n = max(n, 1)
        if isdot and c.kind in ('ds', 'vmem') and wv & c.r: n = max(n, 3)
        if c.kind == 'vmem' and ws & c.r: n = max(n, 5)
        if c.kind in ('salu', 'branch') and ws & c.r: n = max(n, 1)
    elif p.kind == 'mfma':
        P = p.passes
        if c.kind == 'mfma':
            if p.D & (c.A | c.B): n = max(n, P + 4)
            if p.D & c.C:
                if not (p.D == c.C and c.passes == P): n = max(n, P + 2)
            elif p.D & c.D:
                n = max(n, P + 2) if p.D != c.D else n
        elif c.kind in ('valu', 'ds', 'vmem'):
            if p.D & (c.r | c.w): n = max(n, P + 4)
            if c.kind == 'valu' and p.C & c.w: n = max(n, P - 1)
    elif p.kind == 'vmem':
        if p.data:
            if c.kind in ('valu', 'mfma') and p.data & c.w: n = max(n, 2)
            elif p.data & c.w: n = max(n, 1)
    elif p.kind == 'salu':
        if ('x', 'm0') in p.w and c.kind == 'vmem' and ('x', 'm0') in c.r: n = max(n, 1)
    return n

MAXLOOK = 20

class Asm:
    def __init__(self):
        self.L = []
        self.vm_issued = 0; self.vm_done = 0
        self.lg_issued = 0; self.lg_done = 0
        self.uid = 0
    def __call__(self, text):
        for line in text.split('\n'):
            line = line.strip()
            if line: self.L.append(Ins(line))
    e = __call__
    def label(self, name): self.L.append(Ins(name + ':'))
    def newlabel(self, p='L'):
        self.uid += 1
        return f'{p}_{self.uid}'
    def vm(self, text):
        self(text); self.vm_issued += 1; return self.vm_issued
    def lg(self, text):
        self(text); self.lg_issued += 1; return self.lg_issued
    def wait(self, vm=None, lg=None):
        parts = []
        if vm is not None and vm > self.vm_done:
            n = min(self.vm_issued - vm, 62)
            parts.append(f'vmcnt({n})'); self.vm_done = self.vm_issued - n
        if lg is not None and lg > self.lg_done:
            n = min(self.lg_issued - lg, 14)
            parts.append(f'lgkmcnt({n})'); self.lg_done = self.lg_issued - n
        if parts: self('s_waitcnt ' + ' '.join(parts))
    def wait_all(self, vm=True, lg=True):
        parts = []
        if vm: parts.append('vmcnt(0)'); self.vm_done = self.vm_issued
        if lg: parts.append('lgkmcnt(0)'); self.lg_done = self.lg_issued
        self('s_waitcnt ' + ' '.join(parts))
    @staticmethod
    def _lookback(L, start, d0, c, fwd):
        short = 0
        stack = [(start, d0, False)]
        seen = set()
        while stack:
            j, d, viabr = stack.pop()
            while j >= 0 and d < MAXLOOK:
                if (j, d) in seen: break
                seen.add((j, d))
                p = L[j]
                if p.kind == 'label':
                    for b in fwd.get(p.label, []): stack.append((b, d, True))
                    j -= 1; continue
                if p.kind == 'meta':
                    j -= 1; continue
                if p.mn in ('s_endpgm', 's_setpc_b64', 's_branch') and not viabr: break
                viabr = False
                nd = need(p, c)
                if nd - d > short: short = nd - d
                d += p.states()
                j -= 1
        return short
    @staticmethod
    def _nops(k):
        o = []
        while k > 0:
            m = min(k, 16); o.append(Ins(f's_nop {m-1}')); k -= m
        return o
    def fix(self, verbose=False):
        total = 0
        out = []; fwd = {}
        for c in self.L:
            if c.kind not in ('meta', 'label'):
                sh = self._lookback(out, len(out) - 1, 0, c, fwd)
                if sh > 0:
                    total += sh
                    if verbose: print('nop', sh, 'before', c.text)
                    out.extend(self._nops(sh))
            out.append(c)
            if c.kind == 'branch': fwd.setdefault(c.target, []).append(len(out) - 1)
        again = True
        while again:
            again = False
            labels = {x.label: i for i, x in enumerate(out) if x.kind == 'label'}
            fwd = {}
            for i, x in enumerate(out):
                if x.kind == 'branch' and x.target in labels and labels[x.target] > i:
                    fwd.setdefault(x.target, []).append(i)
            for b, x in enumerate(out):
                if x.kind == 'branch' and x.target in labels and labels[x.target] < b:
                    d = 1; sh = 0
                    j = labels[x.target]
                    while j < len(out) and d < MAXLOOK:
                        c = out[j]
                        if c.kind not in ('meta', 'label'):
                            sh = max(sh, self._lookback(out, b - 1, d, c, fwd))
                            d += c.states()
                            if c.mn in ('s_branch', 's_endpgm'): break
                        j += 1
                    if sh > 0:
                        total += sh
                        if verbose: print('loop nop', sh, 'before', x.text)
                        out[b:b] = self._nops(sh)
                        again = True
                        break
        self.L = out
        return total
    def text(self):
        o = []
        for x in self.L:
            o.append(x.text if x.kind == 'label' or x.text.startswith('.') else '    ' + x.text)
        return '\n'.join(o)
```

```python
import sys, math
from asmlib import Asm

NAME = "interleave_layers__mha_block__glu_gated_bilinear__prompt"
KB = 1024
WQ = 0;                    WQ_STR = 100 * KB
WO = WQ + 16 * WQ_STR;     WO_STR = 64 * KB
WU = WO + 8 * WO_STR;      WU_STR = 232 * KB
WD = WU + 16 * WU_STR;     WD_STR = 224 * KB
XF0 = 8 * KB * KB
def XF(i): return XF0 + i * 2 * KB * KB
SX0 = XF0 + 8 * KB * KB
def SX(i): return SX0 + i * 512 * KB
QF = SX0 + 2 * KB * KB
KF = QF + 2 * KB * KB
VF = KF + 2 * KB * KB
OF = VF + 2 * KB * KB
HF = OF + 2 * KB * KB
WS_END = HF + 7 * KB * KB
assert WD + 8 * WD_STR <= XF0
LOG2E = 1.4426950408889634
def f2u(x):
    import struct
    return struct.unpack('<I', struct.pack('<f', x))[0]

sWS = 4
sAUX = 8
sW, sG, sC = 12, 13, 14
sW1K = 15
sT0, sT1, sT2, sT3 = 16, 17, 18, 19
sX = 20
sRS = 21
sRB = 22
def srd(b): return f"s[{b}:{b+3}]"
def vr(b, n=4): return f"v[{b}:{b+n-1}]"
def ar(b, n=4): return f"a[{b}:{b+n-1}]"

def prologue(k, name, nwg, aux=None):
    k(f".globl {name}\n.p2align 8\n.type {name},@function")
    k.label(name)
    k(f"s_cmp_ge_u32 s2, {nwg}")
    k(f"s_cbranch_scc1 {name}_end")
    k(f"s_load_dwordx2 s[{sWS}:{sWS+1}], s[0:1], 72")
    if aux is not None:
        k(f"s_load_dwordx2 s[{sAUX}:{sAUX+1}], s[0:1], {aux[0]}")
    k("v_lshrrev_b32 v2, 6, v0")
    k("v_and_b32 v1, 63, v0")
    k(f"v_readfirstlane_b32 s{sW}, v2")
    k("v_lshlrev_b32 v1, 4, v1")
    k(f"s_and_b32 s{sG}, s2, 7")
    k(f"s_lshr_b32 s{sC}, s2, 3")
    k(f"s_lshl_b32 s{sW1K}, s{sW}, 10")
    k("s_waitcnt lgkmcnt(0)")
    k(f"s_and_b32 s{sWS+1}, s{sWS+1}, 0xffff")
    k(f"s_mov_b32 s{sWS+2}, 0x10000000")
    k(f"s_mov_b32 s{sWS+3}, 0x20000")
    if aux is not None:
        k(f"s_and_b32 s{sAUX+1}, s{sAUX+1}, 0xffff")
        k(f"s_mov_b32 s{sAUX+2}, {aux[1]}")
        k(f"s_mov_b32 s{sAUX+3}, 0x20000")

def epilogue(k, name):
    k.label(name + "_end")
    k("s_endpgm")

class Ring:
    def __init__(self, k, nslots, total, vsrc, base=0):
        self.k = k; self.N = nslots; self.total = total; self.vsrc = vsrc; self.base = base
        assert nslots % 4 == 0
        self.issued = 0; self.freed = 0; self.visible = 0
        self.tick = {}
    def can_issue(self):
        return self.issued < self.total and self.issued + 4 <= self.freed + self.N
    def issue(self):
        k = self.k
        assert self.can_issue()
        slot = self.issued % self.N
        k(f"s_add_u32 m0, s{sW1K}, {self.base + slot*KB}")
        if self.issued: k(f"s_add_u32 s{sRS}, s{sRS}, 4096")
        self.tick[self.issued // 4] = k.vm(f"buffer_load_dwordx4 v{self.vsrc}, {srd(sWS)}, s{sRS} offen lds")
        self.issued += 4
    def sync(self, consumed, need):
        k = self.k
        need = min(need, self.total)
        q = (need - 1) // 4
        assert q * 4 < self.issued, (need, self.issued)
        k.wait(vm=self.tick[q])
        k("s_barrier")
        self.visible = (q + 1) * 4
        self.freed = (consumed // 4) * 4
    def addr(self, b):
        return self.base + (b % self.N) * KB

def set_lds_bases(k, vb, extra_s=None):
    if extra_s is None:
        k(f"v_mov_b32 v{vb}, v1")
    else:
        k(f"v_add_u32 v{vb}, s{extra_s}, v1")
    k(f"v_add_u32 v{vb+1}, 0x10000, v{vb}")
    k(f"v_add_u32 v{vb+2}, 0x20000, v{vb}")

def gemm(k, ring, ops, vb, wbuf, syncs, D=4, NB=6, filler=None):
    M = len(ops)
    tl = {}
    def rd(m):
        o = ops[m]
        assert o['b'] < ring.visible, (m, o['b'], ring.visible)
        a = ring.addr(o['b'])
        tl[m] = k.lg(f"ds_read_b128 {ar(wbuf + 4*(m % NB))}, v{vb + (a >> 16)} offset:{a & 0xffff}")
    sl = sorted(syncs)
    def do_sync(m):
        nxt = [s for s in sl if s > m]
        last = (nxt[0] if nxt else M) - 1 + D
        last = min(last, M - 1)
        need = max(o['bmax'] for o in ops[:last+1]) + 1
        consumed = ops[m]['bmin'] if m < M else ring.total
        ring.sync(consumed, need)
    nread = 0
    for m in range(M):
        if m in syncs: do_sync(m)
        while nread < min(m + D, M) and nread <= m + D and ops[nread]['b'] < ring.visible and nread - m < D:
            rd(nread); nread += 1
        o = ops[m]
        k.wait(vm=o.get('xt'), lg=tl[m])
        w = ar(wbuf + 4*(m % NB))
        c = '0' if o['first'] else o['acc']
        A, B = (o['x'], w) if o['swap'] else (w, o['x'])
        k(f"v_mfma_f32_32x32x16_bf16 {o['acc']}, {A}, {B}, {c}")
        if nread < M and nread == m + D and ops[nread]['b'] < ring.visible:
            rd(nread); nread += 1
        if ring.can_issue(): ring.issue()
        if filler: filler(m)

def load_x(k, xreg, n, is_a=True):
    t = []
    for i in range(n):
        r = ar(xreg + 4*i) if is_a else vr(xreg + 4*i)
        t.append(k.vm(f"buffer_load_dwordx4 {r}, v1, {srd(sWS)}, s{sX} offen offset:{(i & 3) * KB}"))
        if (i & 3) == 3 and i != n - 1: k(f"s_add_u32 s{sX}, s{sX}, 4096")
    return t

def load_stats(k, sx, vt, vaddr):
    k(f"v_lshrrev_b32 v{vaddr}, 1, v1")
    k(f"s_lshl_b32 s{sT0}, s{sRB}, 13")
    k(f"s_add_u32 s{sT0}, s{sT0}, {sx}")
    k(f"s_add_u32 s{sT1}, s{sT0}, 4096")
    t = None
    for i in range(16):
        s = sT0 if i < 8 else sT1
        t = k.vm(f"buffer_load_dwordx2 {vr(vt+2*i, 2)}, v{vaddr}, {srd(sWS)}, s{s} offen offset:{(i & 7) * 512}")
    return t

def fin_stats(k, vt, vext, vrstd):
    ins = []
    n = 16
    while n > 1:
        h = n // 2
        for i in range(h):
            ins.append(f"v_add_f32 v{vt+2*i}, v{vt+2*i}, v{vt+2*(i+h)}")
            ins.append(f"v_add_f32 v{vt+2*i+1}, v{vt+2*i+1}, v{vt+2*(i+h)+1}")
        n = h
    a, b, c, d = vt, vt+1, vt+2, vt+3
    ins += [f"v_mov_b32 v{c}, v{a}", f"v_mov_b32 v{d}, v{b}",
            f"v_permlane32_swap_b32 v{a}, v{c}", f"v_permlane32_swap_b32 v{b}, v{d}",
            f"v_add_f32 v{a}, v{a}, v{c}", f"v_add_f32 v{b}, v{b}, v{d}",
            f"v_mul_f32 v{a}, {hex(f2u(-1.0/512))}, v{a}",
            f"v_mul_f32 v{b}, {hex(f2u(1.0/512))}, v{b}",
            f"v_fma_f32 v{b}, -v{a}, v{a}, v{b}",
            f"v_max_f32 v{b}, 0, v{b}",
            f"v_add_f32 v{b}, {hex(f2u(1e-5))}, v{b}",
            f"v_rsq_f32 v{vrstd}, v{b}",
            f"v_cvt_pk_bf16_f32 v{vext}, v{a}, v{a}",
            f"v_and_b32 v{c}, 0xffff0000, v{vext}",
            f"v_sub_f32 v{c}, v{a}, v{c}",
            f"v_cvt_pk_bf16_f32 v{vext+1}, v{c}, 0",
            f"v_mov_b32 v{vext+2}, 0", f"v_mov_b32 v{vext+3}, 0"]
    return ins

def kd(name, vgpr, accum):
    return f""".p2align 6
.amdhsa_kernel {name}
  .amdhsa_next_free_vgpr {vgpr}
  .amdhsa_next_free_sgpr 96
  .amdhsa_accum_offset {accum}
  .amdhsa_group_segment_fixed_size 0
  .amdhsa_kernarg_size 80
  .amdhsa_user_sgpr_count 2
  .amdhsa_user_sgpr_kernarg_segment_ptr 1
  .amdhsa_system_sgpr_workgroup_id_x 1
.end_amdhsa_kernel"""

def k_pack(name):
    k = Asm()
    prologue(k, name, 232)
    k("s_load_dwordx2 s[24:25], s[0:1], 8")
    k("s_load_dwordx2 s[26:27], s[0:1], 16")
    k("s_load_dwordx2 s[28:29], s[0:1], 32")
    k("s_load_dwordx2 s[30:31], s[0:1], 40")
    k("s_load_dwordx2 s[32:33], s[0:1], 48")
    k("s_waitcnt lgkmcnt(0)")
    u = 's2'
    k(f"s_cmp_lt_u32 {u}, 48\ns_cbranch_scc1 {name}_q")
    k(f"s_cmp_lt_u32 {u}, 160\ns_cbranch_scc1 {name}_u")
    k(f"s_cmp_lt_u32 {u}, 176\ns_cbranch_scc1 {name}_o")
    k(f"s_sub_u32 s50, {u}, 176\ns_lshl_b32 s50, s50, 2\ns_add_u32 s50, s50, s{sW}")
    k("s_mul_i32 s51, s50, 4682\ns_lshr_b32 s51, s51, 16")
    k("s_mul_i32 s52, s51, 14\ns_sub_u32 s52, s50, s52")
    k("s_lshl_b32 s53, s51, 6")
    k("s_add_u32 s40, s32, s53\ns_addc_u32 s41, s33, 0\ns_mov_b32 s42, s40\ns_mov_b32 s43, s41")
    k("s_mov_b32 s44, 1024")
    k("s_lshl_b32 s45, s52, 7")
    k("s_cmp_ge_u32 s52, 7\ns_cselect_b32 s54, 1, 0")
    k("s_mul_i32 s55, s54, 7\ns_sub_u32 s55, s52, s55")
    k("s_lshl_b32 s55, s55, 15")
    k("s_and_b32 s56, s51, 1\ns_xor_b32 s56, s56, s54")
    k("s_lshl_b32 s54, s54, 1\ns_add_u32 s56, s56, s54\ns_lshl_b32 s56, s56, 10")
    k(f"s_lshr_b32 s57, s51, 1\ns_mul_i32 s57, s57, {WD_STR}")
    k(f"s_add_u32 s46, s57, s55\ns_add_u32 s46, s46, s56\ns_add_u32 s46, s46, {WD}")
    k("s_mov_b32 s47, 4096\ns_mov_b32 s48, -1")
    k(f"s_branch {name}_go")
    k.label(f"{name}_o")
    k(f"s_sub_u32 s51, {u}, 160")
    k("s_lshl_b32 s53, s51, 6")
    k("s_add_u32 s40, s26, s53\ns_addc_u32 s41, s27, 0\ns_mov_b32 s42, s40\ns_mov_b32 s43, s41")
    k("s_mov_b32 s44, 1024")
    k(f"s_lshl_b32 s45, s{sW}, 7")
    k(f"s_lshr_b32 s54, s{sW}, 1")
    k(f"s_and_b32 s55, s{sW}, 1\ns_lshl_b32 s55, s55, 15")
    k("s_and_b32 s56, s51, 1\ns_xor_b32 s56, s56, s54")
    k("s_lshl_b32 s54, s54, 1\ns_add_u32 s56, s56, s54\ns_lshl_b32 s56, s56, 10")
    k(f"s_lshr_b32 s57, s51, 1\ns_mul_i32 s57, s57, {WO_STR}")
    k(f"s_add_u32 s46, s57, s55\ns_add_u32 s46, s46, s56\ns_add_u32 s46, s46, {WO}")
    k("s_mov_b32 s47, 4096\ns_mov_b32 s48, -1")
    k(f"s_branch {name}_go")
    k.label(f"{name}_u")
    k(f"s_sub_u32 s51, {u}, 48")
    k("s_lshl_b32 s53, s51, 5")
    k("s_add_u32 s40, s28, s53\ns_addc_u32 s41, s29, 0")
    k("s_add_u32 s42, s30, s53\ns_addc_u32 s43, s31, 0\ns_sub_u32 s42, s42, 32\ns_subb_u32 s43, s43, 0")
    k("s_mov_b32 s44, 3584")
    k(f"s_lshl_b32 s45, s{sW}, 7")
    k("s_mul_i32 s52, s51, 9363\ns_lshr_b32 s52, s52, 16")
    k("s_mul_i32 s54, s52, 7\ns_sub_u32 s54, s51, s54")
    k(f"s_mul_i32 s57, s52, {WU_STR}\ns_add_u32 s57, s57, {WU}")
    k("s_lshl_b32 s55, s54, 10\ns_add_u32 s57, s57, s55")
    k("s_cmp_lt_u32 s54, 4")
    k(f"s_cselect_b32 s47, 4, 3\ns_cselect_b32 s55, 0, {128*KB}\ns_lshl_b32 s47, s47, 10")
    k("s_add_u32 s57, s57, s55")
    k(f"s_branch {name}_ext")
    k.label(f"{name}_q")
    k(f"s_mul_i32 s52, {u}, 21846\ns_lshr_b32 s52, s52, 16")
    k(f"s_mul_i32 s54, s52, 3\ns_sub_u32 s54, {u}, s54")
    k("s_lshl_b32 s53, s52, 6\ns_lshl_b32 s55, s54, 10\ns_add_u32 s53, s53, s55")
    k("s_add_u32 s40, s24, s53\ns_addc_u32 s41, s25, 0\ns_mov_b32 s42, s40\ns_mov_b32 s43, s41")
    k("s_mov_b32 s44, 3072")
    k(f"s_lshl_b32 s45, s{sW}, 7")
    k(f"s_mul_i32 s57, s52, {WQ_STR}\ns_add_u32 s57, s57, s55\ns_add_u32 s57, s57, {WQ}")
    k("s_mov_b32 s47, 3072")
    k.label(f"{name}_ext")
    k("s_lshl_b32 s55, s47, 5\ns_add_u32 s48, s57, s55")
    k(f"s_lshl_b32 s55, s47, 3\ns_mul_i32 s55, s55, s{sW}\ns_add_u32 s46, s57, s55")
    k.label(f"{name}_go")
    k("v_and_b32 v2, 63, v0\nv_lshrrev_b32 v3, 2, v2\nv_add_u32 v3, s45, v3\nv_mul_lo_u32 v3, v3, s44")
    k("v_and_b32 v4, 3, v2\nv_lshlrev_b32 v4, 4, v4\nv_add_u32 v3, v3, v4")
    k("s_lshl_b32 s58, s44, 4")
    k(f"s_lshl_b32 s59, s{sW}, 13")
    k("s_mov_b32 s60, 0x33333333\ns_mov_b32 s61, 0x33333333\ns_mov_b32 s62, 0xcccccccc\ns_mov_b32 s63, 0xcccccccc")
    for i in range(8):
        k(f"s_add_u32 m0, s59, {i*KB}")
        k("s_mov_b64 exec, s[60:61]")
        k.vm("global_load_lds_dwordx4 v3, s[40:41]")
        k("s_mov_b64 exec, s[62:63]")
        k.vm("global_load_lds_dwordx4 v3, s[42:43]")
        k("s_mov_b64 exec, -1")
        k("v_add_u32 v3, s58, v3")
    k("v_lshrrev_b32 v4, 5, v2\nv_lshlrev_b32 v4, 9, v4")
    k("v_bfe_u32 v5, v2, 2, 2\nv_lshlrev_b32 v5, 6, v5\nv_add_u32 v4, v4, v5")
    k("v_bfe_u32 v5, v2, 4, 1\nv_lshlrev_b32 v5, 5, v5\nv_add_u32 v4, v4, v5")
    k("v_and_b32 v5, 1, v2\nv_lshlrev_b32 v5, 4, v5\nv_add_u32 v4, v4, v5")
    k("v_bfe_u32 v5, v2, 1, 1\nv_lshlrev_b32 v5, 3, v5\nv_add_u32 v4, v4, v5")
    k("v_add_u32 v4, s59, v4")
    k.wait_all()
    for i in range(8):
        k.lg(f"ds_read_b64_tr_b16 {vr(16+4*i,2)}, v4 offset:{i*KB}")
        k.lg(f"ds_read_b64_tr_b16 {vr(18+4*i,2)}, v4 offset:{i*KB+256}")
    k.wait_all()
    for i in range(8):
        k.vm(f"buffer_store_dwordx4 {vr(16+4*i)}, v1, {srd(sWS)}, s46 offen")
        k("s_add_u32 s46, s46, s47")
    k(f"s_cmp_eq_u32 s48, -1\ns_cbranch_scc1 {name}_done")
    k("v_mov_b32 v8, 0\nv_mov_b32 v9, 0\nv_mov_b32 v10, 0x3f803f80")
    for i in range(32):
        k(f"v_dot2c_f32_bf16 v{8 + (i & 1)}, v10, v{16+i}")
    k("v_add_f32 v8, v8, v9")
    k(f"v_lshlrev_b32 v5, 2, v0")
    k("s_barrier")
    k.lg("ds_write_b32 v5, v8")
    k.wait_all(vm=False)
    k("s_barrier")
    k(f"s_cmp_lg_u32 s{sW}, 0\ns_cbranch_scc1 {name}_done")
    k("v_and_b32 v5, 31, v0\nv_lshlrev_b32 v5, 2, v5")
    for i in range(8):
        k.lg(f"ds_read_b32 v{50+i}, v5 offset:{i*128}")
    k.wait_all(vm=False)
    for i in range(1, 8): k(f"v_add_f32 v50, v50, v{50+i}")
    k("v_cvt_pk_bf16_f32 v61, v50, 0")
    k("v_lshlrev_b32 v51, 16, v61")
    k("v_sub_f32 v52, v50, v51")
    k("v_cvt_pk_bf16_f32 v60, v51, v52")
    k("v_mov_b32 v62, 0\nv_mov_b32 v63, 0")
    k("v_cmp_gt_u32 vcc, 32, v0")
    k("v_cndmask_b32 v60, 0, v60, vcc\nv_cndmask_b32 v61, 0, v61, vcc")
    k.vm(f"buffer_store_dwordx4 {vr(60)}, v1, {srd(sWS)}, s48 offen")
    k.label(f"{name}_done")
    k("s_waitcnt vmcnt(0)")
    epilogue(k, name)
    return k, kd(name, 64, 64), (232, 32*KB)

def k_xpack(name):
    k = Asm()
    prologue(k, name, 16, aux=(0, 2*KB*KB))
    k(f"s_lshl_b32 s{sRB}, s2, 2\ns_add_u32 s{sRB}, s{sRB}, s{sW}")
    k("v_and_b32 v2, 31, v0\nv_lshlrev_b32 v2, 10, v2\nv_bfe_u32 v3, v0, 5, 1\nv_lshlrev_b32 v3, 4, v3\nv_add_u32 v2, v2, v3")
    k(f"s_lshl_b32 s{sT0}, s{sRB}, 15")
    for i in range(32):
        k.vm(f"buffer_load_dwordx4 {vr(16+4*i)}, v2, {srd(sAUX)}, s{sT0} offen offset:{i*32}")
    k.wait_all()
    k(f"s_add_u32 s{sX}, s{sT0}, {XF(0)}")
    for i in range(32):
        k.vm(f"buffer_store_dwordx4 {vr(16+4*i)}, v1, {srd(sWS)}, s{sX} offen offset:{(i&3)*KB}")
        if (i & 3) == 3: k(f"s_add_u32 s{sX}, s{sX}, 4096")
    k("v_mov_b32 v10, 0x3f803f80")
    k("v_lshrrev_b32 v4, 1, v1")
    k(f"s_lshl_b32 s{sT0}, s{sRB}, 13\ns_add_u32 s{sT0}, s{sT0}, {SX(0)}")
    for cb in range(16):
        k(f"v_mov_b32 v{150+2*cb}, 0\nv_mov_b32 v{151+2*cb}, 0")
        for j in range(8):
            k(f"v_dot2c_f32_bf16 v{150+2*cb}, v10, v{16+8*cb+j}")
            k(f"v_dot2c_f32_bf16 v{151+2*cb}, v{16+8*cb+j}, v{16+8*cb+j}")
        k.vm(f"buffer_store_dwordx2 {vr(150+2*cb,2)}, v4, {srd(sWS)}, s{sT0} offen")
        k(f"s_add_u32 s{sT0}, s{sT0}, 512")
    k.wait_all()
    epilogue(k, name)
    return k, kd(name, 192, 192), (16, 0)

def mkops(seq):
    return seq

def k_qkv(name, xi):
    k = Asm()
    prologue(k, name, 256)
    aX, aW = 0, 128
    vACC, vST, vEXT, vRS, vB, vSRC, vT = 16, 64, 96, 100, 4, 7, 104
    k(f"s_lshr_b32 s{sT0}, s{sC}, 4\ns_lshl_b32 s{sT0}, s{sT0}, 2\ns_lshl_b32 s{sRB}, s{sG}, 3")
    k(f"s_add_u32 s{sRB}, s{sRB}, s{sT0}\ns_add_u32 s{sRB}, s{sRB}, s{sW}")
    k(f"s_and_b32 s23, s{sC}, 15")
    k(f"s_mul_i32 s{sRS}, s23, {WQ_STR}\ns_add_u32 s{sRS}, s{sRS}, {WQ}")
    k(f"s_lshl_b32 s{sX}, s{sRB}, 15\ns_add_u32 s{sX}, s{sX}, {XF(xi)}")
    k(f"v_add_u32 v{vSRC}, s{sW1K}, v1")
    set_lds_bases(k, vB)
    ring = Ring(k, 100, 100, vSRC)
    for i in range(7): ring.issue()
    xt = load_x(k, aX, 32)
    while ring.can_issue(): ring.issue()
    st = load_stats(k, SX(xi), vST, 8)
    ops = []
    for ks in range(33):
        for t in range(3):
            b = ks*3 + t
            ops.append(dict(b=b, bmin=b, bmax=b, x=(ar(aX+4*ks) if ks < 32 else vr(vEXT)), xt=(xt[ks] if ks < 32 else None),
                            acc=vr(vACC+16*t, 16), swap=(t == 2), first=(ks == 0)))
    fin = fin_stats(k, vST, vEXT, vRS)
    fin += [f"v_cvt_pk_bf16_f32 v{vT}, v{vRS}, 0", f"v_lshlrev_b32 v{vT+1}, 16, v{vT}", f"v_sub_f32 v{vT+2}, v{vRS}, v{vT+1}",
            f"v_cvt_pk_bf16_f32 v{vT}, v{vT+1}, v{vT+2}", f"v_mov_b32 v{vT+1}, 0", f"v_mov_b32 v{vT+2}, 0", f"v_mov_b32 v{vT+3}, 0",
            f"v_cmp_gt_u32 vcc, 512, v1", f"v_mov_b32 v{vT+4}, 0x3f803f80", f"v_cndmask_b32 v{vT+4}, 0, v{vT+4}, vcc",
            f"v_mov_b32 v{vT+5}, 0", f"v_mov_b32 v{vT+6}, 0", f"v_mov_b32 v{vT+7}, 0"]
    state = dict(i=0)
    def filler(m):
        if m >= 60:
            if state['i'] == 0: k.wait(vm=st)
            for _ in range(3):
                if state['i'] < len(fin): k(fin[state['i']]); state['i'] += 1
    gemm(k, ring, ops, vB, aW, {0, 18, 48}, filler=filler)
    assert state['i'] == len(fin)
    vR = 64
    k(f"v_mfma_f32_32x32x16_bf16 {vr(vR,16)}, {vr(vT)}, {vr(vT+4)}, 0")
    k(f"v_mul_f32 v{vRS+1}, {hex(f2u(0.25*LOG2E))}, v{vRS}")
    k(f"s_lshl_b32 s{sT0}, s23, 17\ns_lshl_b32 s{sT1}, s{sRB}, 10\ns_add_u32 s{sT0}, s{sT0}, s{sT1}")
    for t, (dst, sc) in enumerate(((QF, vRS+1), (KF, vRS))):
        a = vACC + 16*t
        for half in range(2):
            p = 112 + 8*t + 4*half
            for j in range(4):
                r = a + 8*half + 2*j
                k(f"v_mul_f32 v{r}, v{r}, v{sc}\nv_mul_f32 v{r+1}, v{r+1}, v{sc}")
                k(f"v_cvt_pk_bf16_f32 v{p+j}, v{r}, v{r+1}")
            k(f"s_add_u32 s{sT2}, s{sT0}, {dst + half*64*KB}")
            k.vm(f"buffer_store_dwordx4 {vr(p)}, v1, {srd(sWS)}, s{sT2} offen")
    k("v_bfe_u32 v8, v0, 4, 1\nv_lshlrev_b32 v8, 16, v8\nv_and_b32 v9, 15, v0\nv_lshlrev_b32 v9, 4, v9\nv_add_u32 v8, v8, v9")
    k("v_bfe_u32 v9, v0, 5, 1\nv_lshlrev_b32 v9, 8, v9\nv_add_u32 v8, v8, v9")
    k(f"s_add_u32 s{sT2}, s{sT0}, {VF}")
    a = vACC + 32
    for u in range(2):
        p = 128 + 4*u
        for j in range(4):
            r = a + 8*u + 2*j; q = vR + 8*u + 2*j
            k(f"v_mul_f32 v{r}, v{r}, v{q}\nv_mul_f32 v{r+1}, v{r+1}, v{q+1}")
            k(f"v_cvt_pk_bf16_f32 v{p+j}, v{r}, v{r+1}")
        k.vm(f"buffer_store_dwordx4 {vr(p)}, v8, {srd(sWS)}, s{sT2} offen offset:{u*512}")
    k.wait_all()
    epilogue(k, name)
    return k, kd(name, 512, 256), (256, 100*KB)

def k_att(name):
    k = Asm()
    prologue(k, name, 256)
    aO, aQ, aKV = 0, 128, 160
    NS = 4
    vS = [16 + 16*i for i in range(NS)]
    vK, vV, vIDX = 2, 3, 7
    k("v_and_b32 v4, 0x33, v0\nv_bfe_u32 v5, v0, 2, 1\nv_lshlrev_b32 v5, 3, v5\nv_or_b32 v4, v4, v5")
    k(f"v_bfe_u32 v5, v0, 3, 1\nv_lshlrev_b32 v5, 2, v5\nv_or_b32 v4, v4, v5\nv_lshlrev_b32 v{vK}, 4, v4")
    k(f"v_and_b32 v4, 15, v0\nv_bfe_u32 v5, v0, 5, 1\nv_lshlrev_b32 v5, 4, v5\nv_add_u32 v4, v4, v5\nv_lshlrev_b32 v{vV}, 4, v4")
    k(f"v_mov_b32 v{vIDX}, 0xdddddddd")
    k("s_mov_b32 s30, 0xffff\ns_mov_b32 s31, 0xffff")
    k(f"s_lshl_b32 s{sT0}, s{sC}, 16")
    k(f"s_lshl_b32 s{sT1}, s{sW}, 14\ns_add_u32 s{sT1}, s{sT1}, s{sT0}")
    k(f"s_add_u32 s24, s{sT1}, {KF}\ns_add_u32 s25, s{sT1}, {VF}")
    k("v_and_b32 v4, 27, v0\nv_cmp_eq_u32 vcc, 16, v4\nv_mov_b32 v5, 0x3f803f80\nv_cndmask_b32 v5, 0, v5, vcc")
    for b in range(4):
        for j in range(8): k(f"v_accvgpr_write_b32 a{aKV+12*b+4+j}, v5")
    K = lambda t: ar(aKV + 12*(t % 4))
    V = lambda t, u: ar(aKV + 12*(t % 4) + 4 + 4*u)
    kt = {}; vt = {}
    def ldK(t):
        kt[t] = k.vm(f"buffer_load_dwordx4 {K(t)}, v{vK}, {srd(sWS)}, s24 offen offset:{(t & 3)*KB}")
        if (t & 3) == 3: k("s_add_u32 s24, s24, 4096")
    def ldV(t):
        k("s_mov_b64 exec, s[30:31]")
        k.vm(f"buffer_load_dwordx4 {V(t,0)}, v{vV}, {srd(sWS)}, s25 offen offset:{(t & 3)*KB}")
        vt[t] = k.vm(f"buffer_load_dwordx4 {V(t,1)}, v{vV}, {srd(sWS)}, s25 offen offset:{(t & 3)*KB+512}")
        k("s_mov_b64 exec, -1")
        if (t & 3) == 3: k("s_add_u32 s25, s25, 4096")
    ldK(0)
    qt = {}
    k(f"s_lshl_b32 s{sT2}, s{sG}, 13\ns_add_u32 s{sT2}, s{sT2}, s{sT0}\ns_add_u32 s{sT2}, s{sT2}, {QF}")
    for s in range(8):
        k(f"s_lshl_b32 s{sT3}, s{sW}, 1\ns_add_u32 s{sT3}, s{sT3}, {s}\ns_and_b32 s{sT3}, s{sT3}, 7\ns_lshl_b32 s{sT3}, s{sT3}, 10\ns_add_u32 s{sT3}, s{sT3}, s{sT2}")
        qt[s] = k.vm(f"buffer_load_dwordx4 {ar(aQ+4*s)}, v1, {srd(sWS)}, s{sT3} offen")
    ldV(0)
    for t in (1, 2): ldK(t); ldV(t)
    for i in range(128): k(f"v_accvgpr_write_b32 a{aO+i}, 0")
    steps = [(t, q) for t in range(16) for q in range(8)]
    n = len(steps)
    LA = NS - 1
    def qk(i):
        t, q = steps[i]
        k.wait(vm=max(kt[t], qt[q]) if t == 0 else kt[t])
        k(f"v_mfma_f32_32x32x16_bf16 {vr(vS[i % NS],16)}, {K(t)}, {ar(aQ+4*q)}, 0")
    def pv(i, u):
        t, q = steps[i]
        k.wait(vm=vt[t])
        k(f"v_smfmac_f32_32x32x32_bf16 {ar(aO+16*q,16)}, {V(t,u)}, {vr(vS[i % NS]+8*u,8)}, v{vIDX}")
    for i in range(LA): qk(i)
    for i, (t, q) in enumerate(steps):
        s = vS[i % NS]
        for e in range(16):
            if e == 2 and i > 0: pv(i-1, 1)
            if e == 6 and i + LA < n: qk(i + LA)
            if e == 10: pv(i, 0)
            if q == 1 and t + 3 < 16:
                if e == 13: ldK(t + 3)
                if e == 14: ldV(t + 3)
            k(f"v_exp_f32 v{s+e}, v{s+e}")
    pv(n-1, 1)
    R = 2304
    for j in range(1, 4):
        k(f"s_add_u32 s{sT0}, s{sW}, {j}\ns_and_b32 s{sT0}, s{sT0}, 3\ns_mul_i32 s{sT0}, s{sT0}, {6*R}\ns_add_u32 s{sT0}, s{sT0}, {(j-1)*R}")
        k(f"v_add_u32 v{8+j}, s{sT0}, v1")
        k(f"v_lshrrev_b32 v12, 2, v1\nv_add_u32 v{12+j}, s{sT0}, v12")
    for s in range(2, 8):
        j = s >> 1; z = s & 1
        k.lg(f"ds_write_b128 v{8+j}, {ar(aO+16*s)} offset:{z*3*R}")
        k.lg(f"ds_write_b128 v{8+j}, {ar(aO+16*s+4)} offset:{z*3*R+1024}")
        k.lg(f"ds_write_b32 v{12+j}, a{aO+16*s+8} offset:{z*3*R+2048}")
    for z in range(2):
        for i in range(9): k(f"v_accvgpr_read_b32 v{16+16*z+i}, a{aO+16*z+i}")
    k(f"s_mul_i32 s{sT0}, s{sW}, {6*R}")
    k(f"v_add_u32 v8, s{sT0}, v1\nv_add_u32 v12, s{sT0}, v12")
    k.wait_all(vm=False)
    k("s_barrier")
    for z in range(2):
        for j in range(3):
            b = 48 + (z*3 + j)*12
            k.lg(f"ds_read_b128 {vr(b)}, v8 offset:{(z*3+j)*R}")
            k.lg(f"ds_read_b128 {vr(b+4)}, v8 offset:{(z*3+j)*R+1024}")
            k.lg(f"ds_read_b32 v{b+8}, v12 offset:{(z*3+j)*R+2048}")
    k.wait_all(vm=False)
    k(f"s_lshl_b32 s{sT0}, s{sG}, 3\ns_lshl_b32 s{sT1}, s{sW}, 1\ns_add_u32 s{sT0}, s{sT0}, s{sT1}\ns_lshl_b32 s{sT0}, s{sT0}, 5")
    k(f"s_add_u32 s{sT0}, s{sT0}, s{sC}\ns_lshl_b32 s{sT0}, s{sT0}, 10\ns_add_u32 s{sT0}, s{sT0}, {OF}")
    for z in range(2):
        o = 16 + 16*z
        for j in range(3):
            b = 48 + (z*3 + j)*12
            for i in (8, 0, 1, 2, 3, 4, 5, 6, 7): k(f"v_add_f32 v{o+i}, v{o+i}, v{b+i}")
        k(f"v_rcp_f32 v{o+9}, v{o+8}")
        for j in range(4):
            k(f"v_mul_f32 v{o+2*j}, v{o+2*j}, v{o+9}\nv_mul_f32 v{o+2*j+1}, v{o+2*j+1}, v{o+9}")
            k(f"v_cvt_pk_bf16_f32 v{o+12+j}, v{o+2*j}, v{o+2*j+1}")
        k.vm(f"buffer_store_dwordx4 {vr(o+12)}, v1, {srd(sWS)}, s{sT0} offen")
        k(f"s_add_u32 s{sT0}, s{sT0}, {32*KB}")
    k.wait_all()
    epilogue(k, name)
    return k, kd(name, 512, 256), (256, 24*R)

def k_proj(name, nk, src, wbase, wstr, xi, final):
    k = Asm()
    prologue(k, name, 256, aux=(56, 2*KB*KB) if final else None)
    h = nk // 2
    aX, aW = 0, 224
    vACC, vB, vSRC, vRES = 16, 4, 7, 48
    k(f"s_lshr_b32 s{sT0}, s{sC}, 3\ns_lshl_b32 s{sT0}, s{sT0}, 1\ns_lshl_b32 s{sRB}, s{sG}, 3\ns_add_u32 s{sRB}, s{sRB}, s{sT0}")
    k(f"s_and_b32 s{sT1}, s{sW}, 1\ns_add_u32 s{sRB}, s{sRB}, s{sT1}")
    k(f"s_and_b32 s23, s{sC}, 7")
    k(f"s_lshr_b32 s26, s{sW}, 1")
    k(f"s_mul_i32 s{sRS}, s23, {wstr}\ns_add_u32 s{sRS}, s{sRS}, {wbase}")
    k(f"s_mul_i32 s{sX}, s{sRB}, {nk*KB}\ns_mul_i32 s{sT0}, s26, {h*KB}\ns_add_u32 s{sX}, s{sX}, s{sT0}\ns_add_u32 s{sX}, s{sX}, {src}")
    k(f"v_add_u32 v{vSRC}, s{sW1K}, v1")
    k(f"s_lshl_b32 s{sT0}, s26, 11")
    set_lds_bases(k, vB, sT0)
    NSL = min(2*nk, 140)
    ring = Ring(k, NSL, 2*nk, vSRC)
    for i in range(8): ring.issue()
    xt = load_x(k, aX, 16)
    if h > 16:
        for i in range(8): ring.issue()
        k(f"s_add_u32 s{sX}, s{sX}, 4096")
        xt += load_x(k, aX + 64, h - 16)
    while ring.can_issue(): ring.issue()
    k(f"s_lshl_b32 s27, s{sRB}, 5\ns_lshl_b32 s{sT0}, s23, 2\ns_add_u32 s27, s27, s{sT0}\ns_lshl_b32 s{sT0}, s26, 1\ns_add_u32 s27, s27, s{sT0}\ns_lshl_b32 s27, s27, 10")
    k(f"s_add_u32 s{sT1}, s27, {XF(xi)}")
    k.vm(f"buffer_load_dwordx4 {vr(vRES)}, v1, {srd(sWS)}, s{sT1} offen")
    rt = k.vm(f"buffer_load_dwordx4 {vr(vRES+4)}, v1, {srd(sWS)}, s{sT1} offen offset:1024")
    ops = []
    for s in range(h):
        for a in range(2):
            ops.append(dict(b=4*s + a, bmin=4*s, bmax=4*s+3, x=ar(aX+4*s), xt=xt[s], acc=vr(vACC+16*a,16), swap=False, first=(s == 0)))
    syncs = {0, 10} if h == 16 else {0, 10, 24, 44, 64, 84}
    gemm(k, ring, ops, vB, aW, syncs)
    SC = NSL * KB
    k(f"s_xor_b32 s{sT0}, s{sW}, 2\ns_lshl_b32 s{sT0}, s{sT0}, 12\ns_add_u32 s{sT0}, s{sT0}, {SC}")
    k(f"v_add_u32 v8, s{sT0}, v1")
    k(f"s_lshl_b32 s{sT0}, s{sW}, 12\ns_add_u32 s{sT0}, s{sT0}, {SC}")
    k(f"v_add_u32 v9, s{sT0}, v1")
    for j in range(4): k.lg(f"ds_write_b128 v8, {vr(vACC+16+4*j)} offset:{j*KB}")
    k.wait(vm=rt)
    for j in range(8):
        k(f"v_lshlrev_b32 v10, 16, v{vRES+j}\nv_and_b32 v11, 0xffff0000, v{vRES+j}")
        k(f"v_add_f32 v{vACC+2*j}, v{vACC+2*j}, v10\nv_add_f32 v{vACC+2*j+1}, v{vACC+2*j+1}, v11")
    k.wait_all(vm=False)
    k("s_barrier")
    for j in range(4): k.lg(f"ds_read_b128 {vr(64+4*j)}, v9 offset:{j*KB}")
    k.wait_all(vm=False)
    for i in range(16): k(f"v_add_f32 v{vACC+i}, v{vACC+i}, v{64+i}")
    for j in range(8): k(f"v_cvt_pk_bf16_f32 v{80+j}, v{vACC+2*j}, v{vACC+2*j+1}")
    if final:
        k("v_and_b32 v8, 31, v0\nv_lshlrev_b32 v8, 10, v8\nv_bfe_u32 v9, v0, 5, 1\nv_lshlrev_b32 v9, 4, v9\nv_add_u32 v8, v8, v9")
        k(f"s_lshl_b32 s{sT0}, s{sRB}, 15\ns_lshl_b32 s{sT1}, s23, 7\ns_add_u32 s{sT0}, s{sT0}, s{sT1}\ns_lshl_b32 s{sT1}, s26, 6\ns_add_u32 s{sT0}, s{sT0}, s{sT1}")
        k.vm(f"buffer_store_dwordx4 {vr(80)}, v8, {srd(sAUX)}, s{sT0} offen")
        k.vm(f"buffer_store_dwordx4 {vr(84)}, v8, {srd(sAUX)}, s{sT0} offen offset:32")
    else:
        k(f"s_add_u32 s{sT1}, s27, {XF(xi+1)}")
        k.vm(f"buffer_store_dwordx4 {vr(80)}, v1, {srd(sWS)}, s{sT1} offen")
        k.vm(f"buffer_store_dwordx4 {vr(84)}, v1, {srd(sWS)}, s{sT1} offen offset:1024")
        k(f"v_add_f32 v10, v{vACC}, v{vACC+1}\nv_mul_f32 v11, v{vACC}, v{vACC}\nv_fmac_f32 v11, v{vACC+1}, v{vACC+1}")
        for i in range(2, 16):
            k(f"v_add_f32 v10, v10, v{vACC+i}\nv_fmac_f32 v11, v{vACC+i}, v{vACC+i}")
        k(f"s_lshr_b32 s{sT1}, s27, 2\ns_add_u32 s{sT1}, s{sT1}, {SX(xi+1)}")
        k("v_lshrrev_b32 v8, 1, v1")
        k.vm(f"buffer_store_dwordx2 v[10:11], v8, {srd(sWS)}, s{sT1} offen")
    k.wait_all()
    epilogue(k, name)
    return k, kd(name, 512, 256), (256, SC + 16*KB)

def k_up(name, xi):
    k = Asm()
    prologue(k, name, 256)
    aX, aW = 0, 128
    vACC, vST, vEXT, vRS, vB, vSRC = 16, 128, 160, 164, 4, 7
    k(f"s_lshr_b32 s{sT0}, s{sC}, 4\ns_lshl_b32 s{sT0}, s{sT0}, 2\ns_lshl_b32 s{sRB}, s{sG}, 3")
    k(f"s_add_u32 s{sRB}, s{sRB}, s{sT0}\ns_add_u32 s{sRB}, s{sRB}, s{sW}")
    k(f"s_and_b32 s23, s{sC}, 15")
    k(f"s_mul_i32 s{sRS}, s23, {WU_STR}\ns_add_u32 s{sRS}, s{sRS}, {WU}")
    k(f"s_lshl_b32 s{sX}, s{sRB}, 15\ns_add_u32 s{sX}, s{sX}, {XF(xi)}")
    k(f"v_add_u32 v{vSRC}, s{sW1K}, v1")
    set_lds_bases(k, vB)
    ring = Ring(k, 156, 232, vSRC)
    for i in range(9): ring.issue()
    xt = load_x(k, aX, 32)
    while ring.can_issue(): ring.issue()
    st = load_stats(k, SX(xi), vST, 8)
    ops = []
    b = 0
    for (t0, nt) in ((0, 4), (4, 3)):
        for ks in range(33):
            for t in range(t0, t0+nt):
                ops.append(dict(b=b, bmin=b, bmax=b, x=(ar(aX+4*ks) if ks < 32 else vr(vEXT)), xt=(xt[ks] if ks < 32 else None),
                                acc=vr(vACC+16*t, 16), swap=False, first=(ks == 0)))
                b += 1
    fin = fin_stats(k, vST, vEXT, vRS) + [f"v_mul_f32 v{vRS}, v{vRS}, v{vRS}"]
    k(f"s_mul_i32 s27, s{sRB}, 112\ns_mul_i32 s{sT2}, s23, 7\ns_add_u32 s27, s27, s{sT2}\ns_lshl_b32 s27, s27, 10\ns_add_u32 s27, s27, {HF}")
    k(f"s_add_u32 s28, s27, 4096")
    def epi(t):
        a = vACC + 16*t; p = 168 + 4*t
        o = []
        for j in range(4):
            o += [f"v_mul_f32 v{a+2*j}, v{a+2*j}, v{vRS}", f"v_mul_f32 v{a+2*j+1}, v{a+2*j+1}, v{vRS}",
                  f"v_mul_f32 v{a+2*j}, v{a+2*j}, v{a+8+2*j}", f"v_mul_f32 v{a+2*j+1}, v{a+2*j+1}, v{a+9+2*j}",
                  f"v_cvt_pk_bf16_f32 v{p+j}, v{a+2*j}, v{a+2*j+1}"]
        o.append(f"buffer_store_dwordx4 {vr(p)}, v1, {srd(sWS)}, s{27 + (t >> 2)} offen offset:{(t & 3)*KB}")
        return o
    epiA = sum((epi(t) for t in range(4)), [])
    state = dict(i=0, j=0)
    def put(x):
        if x.startswith('buffer'): k.vm(x)
        else: k(x)
    def filler(m):
        if 80 <= m < 128:
            if state['i'] == 0: k.wait(vm=st)
            for _ in range(2):
                if state['i'] < len(fin): k(fin[state['i']]); state['i'] += 1
        if m >= 140:
            for _ in range(2):
                if state['j'] < len(epiA): put(epiA[state['j']]); state['j'] += 1
    gemm(k, ring, ops, vB, aW, {0, 24, 64, 104, 144, 184}, filler=filler)
    assert state['i'] == len(fin) and state['j'] == len(epiA)
    for t in range(4, 7):
        for x in epi(t): put(x)
    k.wait_all()
    epilogue(k, name)
    return k, kd(name, 512, 256), (256, 156*KB)

def build(extra_dummy=0):
    ks = []
    ks.append(("pack_kernel", k_pack("pack_kernel")))
    ks.append(("xpack_kernel", k_xpack("xpack_kernel")))
    att = None
    for L in range(2):
        ks.append((f"qkv{L}_kernel", k_qkv(f"qkv{L}_kernel", 2*L)))
        if att is None:
            att = k_att("att_kernel"); ks.append(("att_kernel", att))
        else:
            ks.append(("att_kernel", None))
        ks.append((f"wo{L}_kernel", k_proj(f"wo{L}_kernel", 32, OF, WO, WO_STR, 2*L, False)))
        ks.append((f"up{L}_kernel", k_up(f"up{L}_kernel", 2*L+1)))
        ks.append((f"dn{L}_kernel", k_proj(f"dn{L}_kernel", 112, HF, WD, WD_STR, 2*L+1, L == 1)))
    geo = {}
    head = []; body = []; kds = []
    for n, x in ks:
        if x is not None:
            kk, d, g = x
            nn = kk.fix()
            geo[n] = g
            body.append(kk.text()); kds.append(d)
            print(f"{n}: {len(kk.L)} lines, {nn} nop states", file=sys.stderr)
        head.append(f"; @launch kernel={n} grid=({geo[n][0]},1,1) block=(256,1,1) lds={geo[n][1]}")
    out = "\n".join(head) + '\n.amdgcn_target "amdgcn-amd-amdhsa--gfx950"\n.text\n' + "\n".join(body) + '\n.section .rodata,"a"\n' + "\n".join(kds) + "\n"
    return out

if __name__ == "__main__":
    open(sys.argv[1], "w").write(build())
```

```python
import sys, struct
from asmlib import Asm

NAME = "interleave_layers__mha_block__glu_gated_bilinear__prompt"
KB = 1024; MB = KB * KB
LOG2E = 1.4426950408889634
def f2u(x): return struct.unpack('<I', struct.pack('<f', x))[0]
def srd(b): return f"s[{b}:{b+3}]"
def vr(b, n=4): return f"v[{b}:{b+n-1}]"
def ar(b, n=4): return f"a[{b}:{b+n-1}]"

WQ = 0;                    WQ_STR = 100 * KB
WO = WQ + 16 * WQ_STR;     WO_STR = 64 * KB
WU = WO + 8 * WO_STR;      WU_STR = 232 * KB
WD = WU + 16 * WU_STR
FL = 7 * MB + 640 * KB
assert WD + 16 * 112 * KB <= FL
EP = FL
XID = FL + 1 * KB
def FLOC(L, p): return FL + 4 * KB + ((L + 1) * 6 + p) * 8 * KB
FKV0 = FL + 4 * KB + 18 * 8 * KB
def FKV(L): return FKV0 + L * 64 * KB
FPK = FKV0 + 128 * KB
assert FPK + 16 * KB <= 8 * MB
XF = 8 * MB
SX = 10 * MB
QF = 11 * MB
OF = 13 * MB
HF = 15 * MB
def KF(L): return 22 * MB + L * 4 * MB
def VF(L): return 24 * MB + L * 4 * MB
TS = 200 * MB

STAMP = False
PRE = 8
TOUCH_AT = 76; TOUCH_STEP = 16; TOUCH_KB = 192
RING = 148
CHK_AT = 24
P2_AT = 6
TACT_AT = 100

sC4, sC3 = 2, 3
sWS, sAUX = 4, 8
sW, sG, sC, sW1K = 12, 13, 14, 15
sT0, sT1, sT2, sT3 = 16, 17, 18, 19
sX, sRS, sRB = 20, 21, 22
sA, sB, sCc, sD, sE = 23, 24, 25, 26, 27
sS0, sS1 = 28, 29
sMSK, sTAG, sMODE, sXCC = 30, 32, 34, 35
sSEG = 36
sX2 = 39
sSPIN, sF = 40, 41
STS = list(range(44, 56, 2)) + list(range(64, 96, 2)) + [56, 58, 60, 62]
sWG = 101
sDST = 100
vL16, vSRC, vB = 1, 2, 3
aWD, aWB = 0, 224

class G:
    nst = 0
    names = []
    ph = ''
SKIP = ''
ATT_MARKS = ()
GEMM_MARKS = {}
def mark(k, nm='x'):
    import re
    nm = G.ph + '_' + nm
    if SKIP and re.match(SKIP, nm): return
    if STAMP:
        G.names.append(nm)
        k(f"s_memtime s[{STS[G.nst]}:{STS[G.nst]+1}]")
        G.nst += 1

class Ring:
    def __init__(self, k, segs):
        self.k = k; self.N = RING
        self.total = sum(n for _, n in segs)
        self.starts = {}
        b = 0
        for s, n in segs:
            assert n % 4 == 0
            self.starts[b] = s; b += n
        self.issued = 0; self.freed = 0; self.visible = 0
        self.limit = None
        self.tick = {}
    def can_issue(self):
        if self.limit is not None and self.issued + 4 > self.limit: return False
        return self.issued < self.total and self.issued + 4 <= self.freed + self.N
    def issue(self):
        k = self.k
        assert self.can_issue()
        slot = self.issued % self.N
        k(f"s_add_u32 m0, s{sW1K}, {slot*KB}")
        if self.issued in self.starts: k(f"s_mov_b32 s{sRS}, s{self.starts[self.issued]}")
        else: k(f"s_add_u32 s{sRS}, s{sRS}, 4096")
        self.tick[self.issued // 4] = k.vm(f"buffer_load_dwordx4 v{vSRC}, {srd(sWS)}, s{sRS} offen sc1 lds")
        self.issued += 4
    def issue_n(self, n):
        for _ in range(n):
            if self.can_issue(): self.issue()
    def sync(self, consumed, need):
        k = self.k
        need = min(need, self.total)
        if need > self.visible:
            q = (need - 1) // 4
            assert q * 4 < self.issued, (need, self.issued)
            k.wait(vm=self.tick[q])
        k("s_barrier")
        q = self.visible // 4
        while q in self.tick and self.tick[q] <= k.vm_done: q += 1
        self.visible = q * 4
        assert self.visible >= need
        self.freed = max(self.freed, (consumed // 4) * 4)
    def addr(self, b): return (b % self.N) * KB

def set_lds_bases(k, extra_s=None):
    if extra_s is None: k(f"v_mov_b32 v{vB}, v{vL16}")
    else: k(f"v_add_u32 v{vB}, s{extra_s}, v{vL16}")
    k(f"v_add_u32 v{vB+1}, 0x10000, v{vB}")
    k(f"v_add_u32 v{vB+2}, 0x20000, v{vB}")

class XLoader:
    def __init__(self, k, total, reg, src):
        self.k = k; self.total = total; self.reg = reg; self.src = src; self.n = 0; self.t = []
        self.hold = total
    def issue_n(self, n):
        k = self.k
        for _ in range(n):
            i = self.n
            if i >= min(self.total, self.hold): return
            s_, imm = self.src(i)
            self.t.append(k.vm(f"buffer_load_dwordx4 {self.reg(i)}, v{vL16}, {srd(sWS)}, s{s_} offen offset:{imm} sc1"))
            self.n += 1
def lin_src(k):
    def f(i):
        if i and (i & 3) == 0: k(f"s_add_u32 s{sX}, s{sX}, 4096")
        return sX, (i & 3) * KB
    return f

class Gemm:
    def __init__(self, k, ring, ops, syncs, D=4, NB=6, stop_issue=None):
        self.k = k; self.ring = ring; self.ops = ops; self.syncs = sorted(syncs)
        self.D = D; self.NB = NB; self.tl = {}; self.nread = 0
        self.stop = stop_issue if stop_issue is not None else len(ops)
    def rd(self):
        k = self.k; m = self.nread; o = self.ops[m]
        assert o['bmax'] < self.ring.visible, (m, o['b'], self.ring.visible)
        a = self.ring.addr(o['b'])
        self.tl[m] = k.lg(f"ds_read_b128 {ar(aWB + 4*(m % self.NB))}, v{vB + (a >> 16)} offset:{a & 0xffff}")
        self.nread += 1
    def need_until(self, m):
        M = len(self.ops)
        nxt = [s for s in self.syncs if s > m]
        last = min((nxt[0] if nxt else M) - 1 + self.D, M - 1)
        return max(o['bmax'] for o in self.ops[:last+1]) + 1
    def start(self):
        self.ring.sync(self.ops[0]['bmin'], self.need_until(0))
        while self.nread < min(self.D, len(self.ops)): self.rd()
    def run(self, xq, n0=6, filler=None, misc=(), both=False):
        k = self.k; M = len(self.ops)
        misc = list(misc)
        xq.issue_n(n0)
        ring_ok = lambda m: m < self.stop and self.ring.can_issue()
        for m in range(M):
            if m in self.syncs and m > 0:
                self.ring.sync(self.ops[m]['bmin'], self.need_until(m))
            o = self.ops[m]
            xt = None
            if o.get('xi') is not None:
                while xq.n <= o['xi']: xq.issue_n(1)
                xt = xq.t[o['xi']]
            k.wait(vm=xt, lg=self.tl[m])
            w = ar(aWB + 4*(m % self.NB))
            c = '0' if o['first'] else o['acc']
            A, B = (o['x'], w) if o['swap'] else (w, o['x'])
            k(f"v_mfma_f32_32x32x16_bf16 {o['acc']}, {A}, {B}, {c}")
            if m == 0: mark(k, 'm0')
            if m in GEMM_MARKS.get(G.ph, ()): mark(k, f'm{m}')
            if self.nread < M: self.rd()
            if m % 2 == 0:
                if xq.n < xq.total: xq.issue_n(1)
                elif misc: misc.pop(0)()
                elif ring_ok(m): self.ring.issue()
            elif both and ring_ok(m): self.ring.issue()
            if filler: filler(m)
        assert not misc

def stats_emitters(k, vt, vaddr, res):
    k(f"v_lshrrev_b32 v{vaddr}, 1, v{vL16}")
    k(f"s_lshl_b32 s{sS0}, s{sRB}, 13\ns_add_u32 s{sS0}, s{sS0}, {SX}\ns_add_u32 s{sS1}, s{sS0}, 4096")
    def mk(j):
        def f():
            for i in (2*j, 2*j+1):
                s_ = sS0 if i < 8 else sS1
                res['t'] = k.vm(f"buffer_load_dwordx2 {vr(vt+2*i, 2)}, v{vaddr}, {srd(sWS)}, s{s_} offen offset:{(i & 7) * 512} sc1")
        return f
    return [mk(j) for j in range(8)]

def fin_stats(vt, vext, vrstd):
    ins = []
    n = 16
    while n > 1:
        h = n // 2
        for i in range(h):
            ins.append(f"v_add_f32 v{vt+2*i}, v{vt+2*i}, v{vt+2*(i+h)}")
            ins.append(f"v_add_f32 v{vt+2*i+1}, v{vt+2*i+1}, v{vt+2*(i+h)+1}")
        n = h
    a, b, c, d = vt, vt+1, vt+2, vt+3
    ins += [f"v_mov_b32 v{c}, v{a}", f"v_mov_b32 v{d}, v{b}",
            f"v_permlane32_swap_b32 v{a}, v{c}", f"v_permlane32_swap_b32 v{b}, v{d}",
            f"v_add_f32 v{a}, v{a}, v{c}", f"v_add_f32 v{b}, v{b}, v{d}",
            f"v_mul_f32 v{a}, {hex(f2u(-1.0/512))}, v{a}",
            f"v_mul_f32 v{b}, {hex(f2u(1.0/512))}, v{b}",
            f"v_fma_f32 v{b}, -v{a}, v{a}, v{b}",
            f"v_max_f32 v{b}, 0, v{b}",
            f"v_add_f32 v{b}, {hex(f2u(1e-5))}, v{b}",
            f"v_rsq_f32 v{vrstd}, v{b}",
            f"v_cvt_pk_bf16_f32 v{vext}, v{a}, v{a}",
            f"v_and_b32 v{c}, 0xffff0000, v{vext}",
            f"v_sub_f32 v{c}, v{a}, v{c}",
            f"v_cvt_pk_bf16_f32 v{vext+1}, v{c}, 0",
            f"v_mov_b32 v{vext+2}, 0", f"v_mov_b32 v{vext+3}, 0"]
    return ins

def poll(k, vaddr, vpd):
    l = k.newlabel('poll')
    k(f"s_mov_b32 s{sSPIN}, 0x40000")
    k.label(l)
    k(f"s_sub_u32 s{sSPIN}, s{sSPIN}, 1")
    k("s_cbranch_scc1 L_abort")
    k.vm(f"buffer_load_dwordx2 {vr(vpd,2)}, v{vaddr}, {srd(sWS)}, s{sF} offen sc1")
    k.wait_all(lg=False)
    k(f"v_cmp_eq_u64 vcc, s[{sTAG}:{sTAG+1}], {vr(vpd,2)}")
    k("s_cmp_eq_u64 vcc, -1")
    k(f"s_cbranch_scc0 {l}")
class APoll:
    def __init__(self, k, loads, cmp):
        self.k = k; self.loads = loads; self.cmp = cmp
    def issue(self):
        for x in self.loads: self.t = self.k.vm(x)
    def check(self):
        k = self.k
        l = k.newlabel('ap'); ok = k.newlabel('apok')
        k.wait(vm=self.t)
        k(f"s_mov_b32 s{sSPIN}, 0x40000")
        k.label(l)
        k(self.cmp)
        k("s_cmp_eq_u64 vcc, -1")
        k(f"s_cbranch_scc1 {ok}")
        k(f"s_sub_u32 s{sSPIN}, s{sSPIN}, 1")
        k("s_cbranch_scc1 L_abort")
        for x in self.loads: k(x)
        k("s_waitcnt vmcnt(0)")
        k(f"s_branch {l}")
        k.label(ok)
def apoll1(k, vaddr, vpd, soff):
    return APoll(k, [f"buffer_load_dwordx2 {vr(vpd,2)}, v{vaddr}, {srd(sWS)}, s{soff} offen sc1"],
                 f"v_cmp_eq_u64 vcc, s[{sTAG}:{sTAG+1}], {vr(vpd,2)}")
def poll16(k):
    k("v_and_b32 v13, 15, v0\nv_lshlrev_b32 v13, 3, v13")
    poll(k, 13, 14)

def publish_local(k, last_store, force_global=False):
    k(f"v_mov_b32 v13, 0\nv_mov_b32 v14, s{sTAG}\nv_mov_b32 v15, s{sTAG+1}")
    k.wait(vm=last_store)
    k("s_mov_b64 exec, 1")
    if force_global:
        k.vm(f"buffer_store_dwordx2 v[14:15], v13, {srd(sWS)}, s{sF} offen sc1")
    else:
        slow = k.newlabel('slow'); join = k.newlabel('join')
        k(f"s_cmp_eq_u32 s{sMODE}, 0")
        k(f"s_cbranch_scc1 {slow}")
        k(f"buffer_store_dwordx2 v[14:15], v13, {srd(sWS)}, s{sF} offen")
        k(f"s_branch {join}")
        k.label(slow)
        k("buffer_wbl2 sc1")
        k("s_waitcnt vmcnt(0)")
        k(f"buffer_store_dwordx2 v[14:15], v13, {srd(sWS)}, s{sF} offen sc1")
        k.label(join)
        k.vm_issued += 1
    k("s_mov_b64 exec, -1")
def publish_8(k, last_store, shift):
    k(f"v_lshlrev_b32 v13, {shift}, v{vL16}\nv_mov_b32 v14, s{sTAG}\nv_mov_b32 v15, s{sTAG+1}")
    k.wait(vm=last_store)
    k("s_mov_b64 exec, 0xff")
    k.vm(f"buffer_store_dwordx2 v[14:15], v13, {srd(sWS)}, s{sF} offen sc1")
    k("s_mov_b64 exec, -1")

def rb_128(k):
    k(f"s_lshl_b32 s{sT0}, s{sC4}, 2\ns_lshl_b32 s{sRB}, s{sG}, 3\ns_add_u32 s{sRB}, s{sRB}, s{sT0}\ns_add_u32 s{sRB}, s{sRB}, s{sW}")

def store_x(k, acc, pk, L, p, sc=""):
    k(f"s_add_u32 s{sT1}, s{sDST}, {XF}")
    k.vm(f"buffer_store_dwordx4 {vr(pk)}, v{vL16}, {srd(sWS)}, s{sT1} offen{sc}")
    k.vm(f"buffer_store_dwordx4 {vr(pk+4)}, v{vL16}, {srd(sWS)}, s{sT1} offen offset:1024{sc}")
    k(f"v_add_f32 v10, v{acc}, v{acc+1}\nv_mul_f32 v11, v{acc}, v{acc}\nv_add_f32 v8, v{acc+2}, v{acc+3}\nv_mul_f32 v9, v{acc+1}, v{acc+1}")
    k(f"v_fmac_f32 v11, v{acc+2}, v{acc+2}\nv_fmac_f32 v9, v{acc+3}, v{acc+3}")
    for i in range(4, 16, 2):
        k(f"v_add_f32 v10, v10, v{acc+i}\nv_fmac_f32 v11, v{acc+i}, v{acc+i}\nv_add_f32 v8, v8, v{acc+i+1}\nv_fmac_f32 v9, v{acc+i+1}, v{acc+i+1}")
    k("v_add_f32 v10, v10, v8\nv_add_f32 v11, v11, v9")
    k(f"s_lshr_b32 s{sT1}, s{sDST}, 2\ns_add_u32 s{sT1}, s{sT1}, {SX}")
    k(f"v_lshrrev_b32 v12, 1, v{vL16}")
    ts = k.vm(f"buffer_store_dwordx2 v[10:11], v12, {srd(sWS)}, s{sT1} offen{sc}")
    k(f"s_lshr_b32 s{sF}, s{sDST}, 8\ns_add_u32 s{sF}, s{sF}, {FLOC(L, p)}")
    publish_local(k, ts, force_global=bool(sc))

def rowmajor_addr(k, va, s_out):
    k(f"v_and_b32 v{va}, 31, v0\nv_lshlrev_b32 v{va}, 10, v{va}\nv_bfe_u32 v{va+1}, v0, 5, 1\nv_lshlrev_b32 v{va+1}, 4, v{va+1}\nv_add_u32 v{va}, v{va}, v{va+1}")
    k(f"s_and_b32 s{s_out}, s{sDST}, 0xffff8000\ns_bfe_u32 s{sT3}, s{sDST}, 0x5000a\ns_lshl_b32 s{sT3}, s{sT3}, 5\ns_add_u32 s{s_out}, s{s_out}, s{sT3}")

sU = 96
def pack_decode(k):
    nm = "pk"; u = f"s{sU}"
    k(f"s_lshl_b32 {u}, s{sG}, 5\ns_add_u32 {u}, {u}, s{sC}\ns_min_u32 s83, {u}, 231")
    u = "s83"
    k(f"s_cmp_lt_u32 {u}, 48\ns_cbranch_scc1 {nm}_q")
    k(f"s_cmp_lt_u32 {u}, 160\ns_cbranch_scc1 {nm}_u")
    k(f"s_cmp_lt_u32 {u}, 176\ns_cbranch_scc1 {nm}_o")
    k(f"s_sub_u32 s84, {u}, 176\ns_lshl_b32 s84, s84, 2\ns_add_u32 s84, s84, s{sW}")
    k("s_and_b32 s85, s84, 15\ns_lshr_b32 s86, s84, 4")
    k("s_lshl_b32 s87, s85, 6")
    k("s_add_u32 s74, s72, s87\ns_addc_u32 s75, s73, 0\ns_mov_b32 s76, s74\ns_mov_b32 s77, s75")
    k("s_mov_b32 s78, 1024\ns_lshl_b32 s79, s86, 7")
    k(f"s_mul_i32 s80, s85, 14\ns_add_u32 s80, s80, s86\ns_lshl_b32 s80, s80, 13\ns_add_u32 s80, s80, {WD}\ns_mov_b32 s81, 1024\ns_mov_b32 s82, -1")
    k(f"s_branch {nm}_go")
    k.label(f"{nm}_o")
    k(f"s_sub_u32 s85, {u}, 160\ns_lshl_b32 s87, s85, 6")
    k("s_add_u32 s74, s66, s87\ns_addc_u32 s75, s67, 0\ns_mov_b32 s76, s74\ns_mov_b32 s77, s75")
    k(f"s_mov_b32 s78, 1024\ns_lshl_b32 s79, s{sW}, 7")
    k(f"s_lshr_b32 s88, s{sW}, 1\ns_and_b32 s89, s{sW}, 1\ns_lshl_b32 s89, s89, 15")
    k("s_and_b32 s90, s85, 1\ns_xor_b32 s90, s90, s88\ns_lshl_b32 s88, s88, 1\ns_add_u32 s90, s90, s88\ns_lshl_b32 s90, s90, 10")
    k(f"s_lshr_b32 s91, s85, 1\ns_mul_i32 s91, s91, {WO_STR}")
    k(f"s_add_u32 s80, s91, s89\ns_add_u32 s80, s80, s90\ns_add_u32 s80, s80, {WO}")
    k("s_mov_b32 s81, 4096\ns_mov_b32 s82, -1")
    k(f"s_branch {nm}_go")
    k.label(f"{nm}_u")
    k(f"s_sub_u32 s85, {u}, 48\ns_lshl_b32 s87, s85, 5")
    k("s_add_u32 s74, s68, s87\ns_addc_u32 s75, s69, 0")
    k("s_add_u32 s76, s70, s87\ns_addc_u32 s77, s71, 0\ns_sub_u32 s76, s76, 32\ns_subb_u32 s77, s77, 0")
    k(f"s_mov_b32 s78, 3584\ns_lshl_b32 s79, s{sW}, 7")
    k("s_mul_i32 s86, s85, 9363\ns_lshr_b32 s86, s86, 16\ns_mul_i32 s88, s86, 7\ns_sub_u32 s88, s85, s88")
    k(f"s_mul_i32 s91, s86, {WU_STR}\ns_add_u32 s91, s91, {WU}\ns_lshl_b32 s89, s88, 10\ns_add_u32 s91, s91, s89")
    k(f"s_cmp_lt_u32 s88, 4\ns_cselect_b32 s81, 4, 3\ns_cselect_b32 s89, 0, {128*KB}\ns_lshl_b32 s81, s81, 10\ns_add_u32 s91, s91, s89")
    k(f"s_branch {nm}_ext")
    k.label(f"{nm}_q")
    k(f"s_and_b32 s86, {u}, 15\ns_lshr_b32 s88, {u}, 4")
    k("s_lshl_b32 s87, s86, 6\ns_lshl_b32 s89, s88, 10\ns_add_u32 s87, s87, s89")
    k("s_add_u32 s74, s64, s87\ns_addc_u32 s75, s65, 0\ns_mov_b32 s76, s74\ns_mov_b32 s77, s75")
    k(f"s_mov_b32 s78, 3072\ns_lshl_b32 s79, s{sW}, 7")
    k(f"s_sub_u32 s89, s89, 1024\ns_cmp_eq_u32 s88, 0\ns_cselect_b32 s89, {66*KB}, s89\ns_cselect_b32 s81, 1, 2\ns_lshl_b32 s81, s81, 10")
    k(f"s_mul_i32 s91, s86, {WQ_STR}\ns_add_u32 s91, s91, s89\ns_add_u32 s91, s91, {WQ}")
    k.label(f"{nm}_ext")
    k("s_lshl_b32 s89, s81, 5\ns_add_u32 s82, s91, s89")
    k(f"s_lshl_b32 s89, s81, 3\ns_mul_i32 s89, s89, s{sW}\ns_add_u32 s80, s91, s89")
    k.label(f"{nm}_go")
    k("v_bfe_u32 v248, v0, 2, 4\nv_add_u32 v248, s79, v248\nv_mul_lo_u32 v248, v248, s78")
    k("v_and_b32 v249, 3, v0\nv_lshlrev_b32 v249, 4, v249\nv_add_u32 v248, v248, v249")
    k("v_and_b32 v249, 63, v0\nv_add_u32 v249, s79, v249\nv_mul_lo_u32 v249, v249, s78")
    k("s_lshl_b32 s83, s78, 4\ns_lshl_b32 s85, s78, 6")
    k("s_mov_b32 s86, 0x33333333\ns_mov_b32 s87, 0x33333333\ns_mov_b32 s88, 0xcccccccc\ns_mov_b32 s89, 0xcccccccc")
def pack_touch(k):
    k.vm("global_load_dword v250, v249, s[74:75]")
    k.vm("global_load_dword v250, v249, s[76:77] offset:32")
    k("v_add_u32 v249, s85, v249")
    k.vm("global_load_dword v250, v249, s[74:75]")
    k.vm("global_load_dword v250, v249, s[76:77] offset:32")
def pack_issue(k, i, sbase):
    k(f"s_add_u32 m0, s{sbase}, {i*KB}")
    k("s_mov_b64 exec, s[86:87]")
    k.vm("global_load_lds_dwordx4 v248, s[74:75]")
    k("s_mov_b64 exec, s[88:89]")
    t = k.vm("global_load_lds_dwordx4 v248, s[76:77]")
    k("s_mov_b64 exec, -1")
    k("v_add_u32 v248, s83, v248")
    return t
def tr_addr(k, v, t):
    k(f"v_bfe_u32 v{v}, v0, 5, 1\nv_lshlrev_b32 v{v}, 9, v{v}")
    k(f"v_bfe_u32 v{t}, v0, 2, 2\nv_lshlrev_b32 v{t}, 6, v{t}\nv_add_u32 v{v}, v{v}, v{t}")
    k(f"v_bfe_u32 v{t}, v0, 4, 1\nv_lshlrev_b32 v{t}, 5, v{t}\nv_add_u32 v{v}, v{v}, v{t}")
    k(f"v_and_b32 v{t}, 1, v0\nv_lshlrev_b32 v{t}, 4, v{t}\nv_add_u32 v{v}, v{v}, v{t}")
    k(f"v_bfe_u32 v{t}, v0, 1, 1\nv_lshlrev_b32 v{t}, 3, v{t}\nv_add_u32 v{v}, v{v}, v{t}")
def ext_frag(src, dst, t0, t1):
    return [f"v_cvt_pk_bf16_f32 v{dst+1}, v{src}, 0", f"v_lshlrev_b32 v{t0}, 16, v{dst+1}", f"v_sub_f32 v{t1}, v{src}, v{t0}",
            f"v_cvt_pk_bf16_f32 v{dst}, v{t0}, v{t1}", f"v_mov_b32 v{dst+2}, 0", f"v_mov_b32 v{dst+3}, 0",
            f"v_cndmask_b32 v{dst}, 0, v{dst}, vcc", f"v_cndmask_b32 v{dst+1}, 0, v{dst+1}, vcc"]
def pack_finish(k, vtr, sbase, tlast):
    nm = "pk"
    k.wait(vm=tlast)
    k(f"s_cmp_ge_u32 s{sU}, 232\ns_cbranch_scc1 {nm}_flag")
    k(f"v_add_u32 v10, s{sbase}, v{vtr}")
    for i in range(8):
        k(f"ds_read_b64_tr_b16 {vr(16+4*i,2)}, v10 offset:{i*KB}")
        k(f"ds_read_b64_tr_b16 {vr(18+4*i,2)}, v10 offset:{i*KB+256}")
    k("s_waitcnt lgkmcnt(0)")
    for i in range(8):
        k(f"buffer_store_dwordx4 {vr(16+4*i)}, v{vL16}, {srd(sWS)}, s80 offen sc1")
        k("s_add_u32 s80, s80, s81")
    k(f"s_cmp_eq_u32 s82, -1\ns_cbranch_scc1 {nm}_flag")
    k("v_mov_b32 v8, 0\nv_mov_b32 v9, 0\nv_mov_b32 v10, 0x3f803f80")
    for i in range(32): k(f"v_dot2c_f32_bf16 v{8 + (i & 1)}, v10, v{16+i}")
    k("v_add_f32 v8, v8, v9")
    k(f"v_lshlrev_b32 v11, 2, v0")
    k(f"ds_write_b32 v11, v8 offset:{8*KB}\ns_waitcnt lgkmcnt(0)\ns_barrier")
    k(f"s_cmp_lg_u32 s{sW}, 0\ns_cbranch_scc1 {nm}_flag")
    k(f"v_and_b32 v11, 31, v0\nv_lshlrev_b32 v11, 2, v11")
    for i in range(8): k(f"ds_read_b32 v{50+i}, v11 offset:{8*KB + i*128}")
    k("s_waitcnt lgkmcnt(0)")
    for i in range(1, 8): k(f"v_add_f32 v50, v50, v{50+i}")
    k("v_cmp_gt_u32 vcc, 32, v0")
    for x in ext_frag(50, 60, 51, 52): k(x)
    k(f"buffer_store_dwordx4 {vr(60)}, v{vL16}, {srd(sWS)}, s82 offen sc1")
    k.label(f"{nm}_flag")
    return None
def pack_publish(k):
    l = k.newlabel('pkp')
    k(f"s_cmp_lg_u32 s{sW}, 0\ns_cbranch_scc1 {l}")
    k(f"s_lshl_b32 s{sF}, s{sU}, 3\ns_add_u32 s{sF}, s{sF}, {FPK}")
    publish_8(k, None, 7)
    k.vm_issued -= 1
    k.label(l)

def qkv_consts(vT, vRS, vR):
    return [f"v_cvt_pk_bf16_f32 v{vT}, v{vRS}, 0", f"v_lshlrev_b32 v{vT+1}, 16, v{vT}", f"v_sub_f32 v{vT+2}, v{vRS}, v{vT+1}",
            f"v_cvt_pk_bf16_f32 v{vT}, v{vT+1}, v{vT+2}", f"v_mov_b32 v{vT+1}, 0", f"v_mov_b32 v{vT+2}, 0", f"v_mov_b32 v{vT+3}, 0",
            f"v_cmp_gt_u32 vcc, 512, v{vL16}", f"v_mov_b32 v{vT+4}, 0x3f803f80", f"v_cndmask_b32 v{vT+4}, 0, v{vT+4}, vcc",
            f"v_mov_b32 v{vT+5}, 0", f"v_mov_b32 v{vT+6}, 0", f"v_mov_b32 v{vT+7}, 0",
            f"v_mul_f32 v{vRS+1}, {hex(f2u(0.25*LOG2E))}, v{vRS}",
            "v_bfe_u32 v12, v0, 4, 1", "v_lshlrev_b32 v12, 16, v12", "v_and_b32 v13, 15, v0", "v_lshlrev_b32 v13, 4, v13", "v_add_u32 v12, v12, v13",
            "v_bfe_u32 v13, v0, 5, 1", "v_lshlrev_b32 v13, 8, v13", "v_add_u32 v12, v12, v13",
            f"v_mfma_f32_32x32x16_bf16 {vr(vR,16)}, {vr(vT)}, {vr(vT+4)}, 0"]
def qk_tile(a, dst, sc, fl, p0):
    o = []
    for half in range(2):
        p = p0 + 4*half
        for j in range(4):
            r = a + 8*half + 2*j
            o += [f"v_mul_f32 v{r}, v{r}, v{sc}", f"v_mul_f32 v{r+1}, v{r+1}, v{sc}", f"v_cvt_pk_bf16_f32 v{p+j}, v{r}, v{r+1}"]
        o += [f"s_add_u32 s{sT2}, s{sB}, {dst + half*64*KB}", f"buffer_store_dwordx4 {vr(p)}, v{vL16}, {srd(sWS)}, s{sT2} offen{fl}"]
    return o
def v_tile(a, L, vR, p0):
    o = [f"s_add_u32 s{sT2}, s{sB}, {VF(L)}"]
    for u in range(2):
        p = p0 + 4*u
        for j in range(4):
            r = a + 8*u + 2*j; q = vR + 8*u + 2*j
            o += [f"v_mul_f32 v{r}, v{r}, v{q}", f"v_mul_f32 v{r+1}, v{r+1}, v{q+1}", f"v_cvt_pk_bf16_f32 v{p+j}, v{r}, v{r+1}"]
        o.append(f"buffer_store_dwordx4 {vr(p)}, v12, {srd(sWS)}, s{sT2} offen offset:{u*512} sc1")
    return o
def qkv_flags(k, L, tkv, tq):
    k(f"s_lshl_b32 s{sF}, s{sA}, 6\ns_add_u32 s{sF}, s{sF}, s{sRB}\ns_lshl_b32 s{sF}, s{sF}, 3\ns_add_u32 s{sF}, s{sF}, {FKV(L)}")
    k(f"s_lshr_b32 s{sD}, s{sRB}, 3\ns_lshl_b32 s{sD}, s{sD}, 4\ns_add_u32 s{sD}, s{sD}, s{sA}\ns_lshl_b32 s{sD}, s{sD}, 3\ns_and_b32 s{sT1}, s{sRB}, 7\ns_add_u32 s{sD}, s{sD}, s{sT1}\ns_lshl_b32 s{sD}, s{sD}, 3\ns_add_u32 s{sD}, s{sD}, {FLOC(L,5)}")
    publish_8(k, tkv, 9)
    k(f"s_mov_b32 s{sF}, s{sD}")
    publish_local(k, tq, force_global=(L == 0))

Q0_ROT = True
Q0_UP = 4
Q0_TOUCH = 2
def ph_qkv0(k, late):
    vX, vACC, vST, vEXT, vRS, vT, vR = 16, 144, 192, 8, 6, 224, 232
    vXA, vWA, vXR, vTR, vTW, vCS, vCW, vONE = 10, 12, 196, 200, 202, 204, 208, 220
    sXS, sWR, sXL, sWL = 60, 56, sD, sE
    k(f"s_lshr_b32 s{sRB}, s{sG}, 1\ns_lshl_b32 s{sRB}, s{sRB}, 2\ns_add_u32 s{sRB}, s{sRB}, s{sC3}\ns_lshl_b32 s{sRB}, s{sRB}, 2\ns_add_u32 s{sRB}, s{sRB}, s{sW}")
    k(f"s_and_b32 s{sA}, s{sG}, 1\ns_lshl_b32 s{sA}, s{sA}, 3\ns_and_b32 s{sT0}, s{sC}, 7\ns_add_u32 s{sA}, s{sA}, s{sT0}")
    k(f"v_bfe_u32 v{vXA}, v0, 3, 3\nv_lshlrev_b32 v{vXA}, 10, v{vXA}\nv_and_b32 v13, 7, v0\nv_bfe_u32 v14, v0, 4, 2\nv_xor_b32 v13, v13, v14")
    k(f"v_lshlrev_b32 v13, 4, v13\nv_add_u32 v{vXA}, v{vXA}, v13\nv_xor_b32 v{vXA+1}, 64, v{vXA}")
    k(f"v_bfe_u32 v{vWA}, v0, 2, 4\nv_mul_u32_u24 v{vWA}, 3072, v{vWA}\nv_and_b32 v13, 3, v0\nv_lshlrev_b32 v13, 4, v13\nv_add_u32 v{vWA}, v{vWA}, v13")
    k(f"s_lshl_b32 s{sX}, s{sRB}, 15")
    k(f"s_mul_i32 s{sX2}, s{sW}, 49152\ns_lshl_b32 s{sT0}, s{sA}, 6\ns_add_u32 s{sX2}, s{sX2}, s{sT0}")
    k(f"s_lshl_b32 s{sXL}, s{sW}, 14\ns_add_u32 s{sXL}, s{sXL}, {96*KB}\ns_mul_i32 s{sWL}, s{sW}, 3072")
    k("s_waitcnt lgkmcnt(0)")
    k(f"s_mov_b32 s{sWR}, s64\ns_and_b32 s{sWR+1}, s65, 0xffff\ns_mov_b32 s{sWR+2}, {512*3072}\ns_mov_b32 s{sWR+3}, 0x20000")
    k(f"s_and_b32 s{sXS+1}, s{sXS+1}, 0xffff\ns_mov_b32 s{sXS+2}, {2*MB}\ns_mov_b32 s{sXS+3}, 0x20000")
    ct = {}; cn = {j: 0 for j in range(8)}
    k(f"s_lshl_b32 s{sCc}, s{sC3}, 1\ns_add_u32 s{sCc}, s{sCc}, s{sC}")
    def rot(j):
        k(f"s_add_u32 s{sT3}, s{sCc}, {j}\ns_and_b32 s{sT3}, s{sT3}, {7 if Q0_ROT else 0}")
        if not Q0_ROT: k(f"s_mov_b32 s{sT3}, {j}")
        k(f"s_lshl_b32 s{sS0}, s{sT3}, 7\ns_add_u32 s{sS0}, s{sS0}, s{sX}")
        k(f"s_mul_i32 s{sS1}, s{sT3}, {4*49152}\ns_add_u32 s{sS1}, s{sS1}, s{sX2}")
    def ldW(j, t):
        k(f"s_add_u32 m0, s{sWL}, {(12*j + t)*KB}\ns_add_u32 s{sT2}, s{sS1}, {((t+1) % 3)*1024}")
        ct[j] = k.vm(f"buffer_load_dwordx4 v{vWA}, {srd(sWR)}, s{sT2} offen lds"); cn[j] += 1
    def ldX(j, i):
        if i == 0: rot(j)
        k(f"s_add_u32 m0, s{sXL}, {(j & 3)*4*KB + i*KB}\ns_add_u32 s{sT2}, s{sS0}, {i*8192}")
        ct[j] = k.vm(f"buffer_load_dwordx4 v{vXA + (i & 1)}, {srd(sXS)}, s{sT2} offen lds"); cn[j] += 1
    def chunk_loads(j):
        return [lambda i=i: ldX(j, i) for i in range(4)] + [lambda t=t: ldW(j, t) for t in range(3)]
    for f in chunk_loads(0): f()
    late(k)
    for j in range(1, Q0_UP):
        for f in chunk_loads(j): f()
    pack_decode(k)
    k(f"v_and_b32 v13, 31, v0\nv_bfe_u32 v14, v0, 1, 3\nv_bfe_u32 v15, v0, 5, 1\nv_xor_b32 v14, v14, v15\nv_lshlrev_b32 v14, 4, v14\nv_lshl_add_u32 v13, v13, 7, v14")
    for e in range(4):
        k(f"v_xor_b32 v{vXR+e}, {e*32}, v13\nv_add_u32 v{vXR+e}, s{sXL}, v{vXR+e}")
    tr_addr(k, vTR, 13)
    k(f"v_add_u32 v{vTR+1}, {48*KB}, v{vTR}\nv_add_u32 v{vTW}, s{sWL}, v{vTR}\nv_add_u32 v{vTW+1}, {48*KB}, v{vTW}")
    k(f"v_mov_b32 v{vONE}, 0x3f803f80")
    for r in list(range(vST, vST+4)) + list(range(vCS, vCS+3)): k(f"v_mov_b32 v{r}, 0")
    def reads(j):
        o = []
        for e in range(4):
            o.append(f"ds_read_b128 {vr(vX + 16*j + 4*e)}, v{vXR+e} offset:{(j & 3)*4*KB}")
        for t in range(3):
            off = (12*(j & 3) + t)*KB
            o.append(f"ds_read_b64_tr_b16 {vr(vCW+4*t,2)}, v{vTW + (j >> 2)} offset:{off}")
            o.append(f"ds_read_b64_tr_b16 {vr(vCW+4*t+2,2)}, v{vTW + (j >> 2)} offset:{off+256}")
        for b in range(12):
            off = (12*(j & 3) + b)*KB; r = 48*(j & 1) + 4*b
            o.append(f"ds_read_b64_tr_b16 {ar(r,2)}, v{vTR + (j >> 2)} offset:{off}")
            o.append(f"ds_read_b64_tr_b16 {ar(r+2,2)}, v{vTR + (j >> 2)} offset:{off+256}")
        return o
    def dots(j):
        for i in range(16):
            r = vX + 16*j + i
            k(f"v_dot2c_f32_bf16 v{vST + 2*(i & 1)}, v{vONE}, v{r}\nv_dot2c_f32_bf16 v{vST + 1 + 2*(i & 1)}, v{r}, v{r}")
        for i in range(4):
            for t in range(3): k(f"v_dot2c_f32_bf16 v{vCS+t}, v{vONE}, v{vCW+4*t+i}")
    def xid():
        k(f"s_add_u32 s{sTAG}, s{sTAG}, 0x7f4a7c15\ns_addc_u32 s{sTAG+1}, s{sTAG+1}, 0x9e3779b9")
        k(f"s_lshl_b32 s{sF}, s{sU}, 3\ns_add_u32 s{sF}, s{sF}, {XID}")
        k(f"s_xor_b32 s{sT0}, s{sTAG}, s{sXCC}\nv_mov_b32 v14, s{sT0}\nv_mov_b32 v15, s{sTAG+1}\nv_mov_b32 v13, 0")
        k("s_mov_b64 exec, 1")
        k.vm(f"buffer_store_dwordx2 v[14:15], v13, {srd(sWS)}, s{sF} offen sc1")
        k("s_mov_b64 exec, -1")
    side = []
    tpk = [None]
    k.wait(vm=ct[0]); k("s_barrier")
    mark(k, 'd0')
    rl = reads(0)
    for x in rl[:10]: t10 = k.lg(x)
    for x in rl[10:]: k.lg(x)
    k.wait(lg=t10)
    dots(0)
    for j in range(8):
        if j + Q0_UP < 8: side += chunk_loads(j + Q0_UP)
        if j == Q0_TOUCH: side.append(lambda: pack_touch(k))
        if j == 1: side.append(xid)
        if j == 5: side += [lambda i=i: tpk.__setitem__(0, pack_issue(k, i, sXL)) for i in range(8)]
        k.wait_all(vm=False)
        rl = []
        if j < 7:
            assert cn[j+1] == 7
            k.wait(vm=ct[j+1]); k("s_barrier")
            rl = reads(j + 1)
        t10 = None; nr = 0
        for b in range(12):
            ks = 4*j + b // 3; t = b % 3
            acc = vr(vACC + 16*t, 16); w = ar(48*(j & 1) + 4*b); x = vr(vX + 4*ks)
            A, B = (x, w) if t == 1 else (w, x)
            k(f"v_mfma_f32_32x32x16_bf16 {acc}, {A}, {B}, {'0' if ks == 0 else acc}")
            if ks == 0 and t == 0: mark(k, 'm0')
            for _ in range(3):
                if rl:
                    t_ = k.lg(rl.pop(0)); nr += 1
                    if nr == 10: t10 = t_
            if side: side.pop(0)()
        if j < 7:
            assert not rl
            k.wait(lg=t10)
            dots(j + 1)
    while side: side.pop(0)()
    mark(k, 'loop')
    for t in range(3):
        k(f"v_mov_b32 v{vCW+t}, v{vCS+t}\nv_permlane32_swap_b32 v{vCS+t}, v{vCW+t}\nv_add_f32 v{vCS+t}, v{vCS+t}, v{vCW+t}")
    k(f"v_lshlrev_b32 v13, 2, v0\nv_lshrrev_b32 v14, 2, v{vL16}")
    for t in range(3): k.lg(f"ds_write_b32 v13, v{vCS+t} offset:{t*KB}")
    k(f"v_add_f32 v{vST}, v{vST}, v{vST+2}\nv_add_f32 v{vST+1}, v{vST+1}, v{vST+3}")
    k.wait_all(vm=False)
    k("s_barrier")
    for t in range(3):
        for w_ in range(4): k.lg(f"ds_read_b32 v{vCW+4*t+w_}, v14 offset:{t*KB + w_*256}")
    for x in fin_stats(vST, vEXT, vRS)[30:] + qkv_consts(vT, vRS, vR): k(x)
    k.wait_all(vm=False)
    for t in range(3):
        c = vCW + 4*t
        k(f"v_add_f32 v{c}, v{c}, v{c+1}\nv_add_f32 v{c+2}, v{c+2}, v{c+3}\nv_add_f32 v{vCS}, v{c}, v{c+2}")
        for x in ext_frag(vCS, c, vCS+1, vCS+2): k(x)
        acc = vr(vACC + 16*t, 16)
        A, B = (vr(vEXT), vr(c)) if t == 1 else (vr(c), vr(vEXT))
        k(f"v_mfma_f32_32x32x16_bf16 {acc}, {A}, {B}, {acc}")
    k(f"s_lshl_b32 s{sB}, s{sA}, 17\ns_lshl_b32 s{sT1}, s{sRB}, 10\ns_add_u32 s{sB}, s{sB}, s{sT1}")
    k(f"s_mov_b32 s84, s{sXL}")
    t_ = None
    for x in qk_tile(vACC, KF(0), vRS, " sc1", vX) + v_tile(vACC+16, 0, vR, vX+8) + qk_tile(vACC+32, QF, vRS+1, " sc1", vX+16):
        if x.startswith('buffer'): t_ = k.vm(x)
        else: k(x)
    qkv_flags(k, 0, t_, t_)
    mark(k, 'end')
    tp = pack_finish(k, vTR, 84, tpk[0])
    mark(k, 'pk')
    return tp

def ph_qkv(k, L, ring, b0):
    vX, vACC, vST, vEXT, vRS, vT, vR = 16, 144, 192, 8, 6, 224, 232
    rb_128(k)
    k(f"s_and_b32 s{sA}, s{sC}, 15")
    k(f"s_lshl_b32 s{sX}, s{sRB}, 15\ns_add_u32 s{sX}, s{sX}, {XF}")
    set_lds_bases(k)
    ops = []
    b = b0
    for tiles in ((0, 1), (2,)):
        for ks in range(33):
            for t in tiles:
                ops.append(dict(b=b, bmin=b, bmax=b, xi=(ks if ks < 32 else None), x=(vr(vX+4*ks) if ks < 32 else vr(vEXT)),
                                acc=vr(vACC+16*t, 16), swap=(t == 1), first=(ks == 0)))
                b += 1
    xq = XLoader(k, 32, lambda i: vr(vX+4*i), lin_src(k))
    res = {}
    se = stats_emitters(k, vST, 12, res)
    k(f"s_lshl_b32 s{sB}, s{sA}, 17\ns_lshl_b32 s{sT1}, s{sRB}, 10\ns_add_u32 s{sB}, s{sB}, s{sT1}")
    k(f"s_lshl_b32 s{sF}, s{sRB}, 7\ns_add_u32 s{sF}, s{sF}, {FLOC(L-1, 4)}")
    g = Gemm(k, ring, ops, {0})
    g.start()
    poll16(k)
    xq.issue_n(6)
    for e in se: e()
    fin = fin_stats(vST, vEXT, vRS) + qkv_consts(vT, vRS, vR)
    epi = qk_tile(vACC, KF(L), vRS, " sc1", vST) + v_tile(vACC+16, L, vR, vST+16)
    st = dict(i=0, j=0, t=None)
    def put(x):
        if x.startswith('buffer'): st['t'] = k.vm(x)
        else: k(x)
    def filler(m):
        if 30 <= m < 64:
            if st['i'] == 0: k.wait(vm=res['t'])
            for _ in range(3):
                if st['i'] < len(fin): k(fin[st['i']]); st['i'] += 1
        if m >= 70:
            for _ in range(3):
                if st['j'] < len(epi): put(epi[st['j']]); st['j'] += 1
    g.run(xq, n0=0, filler=filler)
    assert st['i'] == len(fin) and st['j'] == len(epi)
    tkv = st['t']
    for x in qk_tile(vACC + 32, QF, vRS + 1, "", vST+8): put(x)
    qkv_flags(k, L, tkv, st['t'])
    mark(k, 'end')

def ph_att(k, L, ring):
    vO, vS0, vKV, aQ = 16, 144, 208, aWB
    NS = 4
    vS = [vS0 + 16*i for i in range(NS)]
    vK, vV, vIDX, vL128 = 6, 7, 8, 9
    sK, sV, sHD = sB, sCc, sE
    k("v_and_b32 v10, 0x33, v0\nv_bfe_u32 v11, v0, 2, 1\nv_lshlrev_b32 v11, 3, v11\nv_or_b32 v10, v10, v11")
    k(f"v_bfe_u32 v11, v0, 3, 1\nv_lshlrev_b32 v11, 2, v11\nv_or_b32 v10, v10, v11\nv_lshlrev_b32 v{vK}, 4, v10")
    k(f"v_and_b32 v10, 15, v0\nv_bfe_u32 v11, v0, 5, 1\nv_lshlrev_b32 v11, 4, v11\nv_add_u32 v10, v10, v11\nv_lshlrev_b32 v{vV}, 4, v10")
    k(f"v_mov_b32 v{vIDX}, 0xdddddddd\nv_lshlrev_b32 v{vL128}, 3, v{vL16}")
    k(f"s_lshl_b32 s{sHD}, s{sC}, 16")
    k("v_and_b32 v10, 27, v0\nv_cmp_eq_u32 vcc, 16, v10\nv_mov_b32 v11, 0x3f803f80\nv_cndmask_b32 v11, 0, v11, vcc")
    for b in range(4):
        for j in range(8): k(f"v_mov_b32 v{vKV+12*b+4+j}, v11")
    for i in range(128): k(f"v_mov_b32 v{vO+i}, 0")
    k(f"s_lshr_b32 s{sT0}, s{sC}, 1\ns_lshl_b32 s{sT0}, s{sT0}, 9")
    k(f"s_lshl_b32 s{sT2}, s{sG}, 13\ns_add_u32 s{sD}, s{sT0}, s{sT2}\ns_add_u32 s{sD}, s{sD}, {FKV(L)}")
    k(f"s_lshl_b32 s{sT2}, s{sG}, 6\ns_lshl_b32 s{sT3}, s{sW}, 4\ns_add_u32 s{sT3}, s{sT3}, s{sT2}\ns_add_u32 s{sT3}, s{sT3}, s{sD}")
    k(f"s_lshl_b32 s{sT2}, s{sG}, 10\ns_lshr_b32 s{sT0}, s{sT0}, 3\ns_add_u32 s{sT2}, s{sT2}, s{sT0}\ns_add_u32 s{sT2}, s{sT2}, {FLOC(L,5)}")
    k(f"v_and_b32 v12, 1, v0\nv_lshlrev_b32 v12, 3, v12\nv_add_u32 v12, s{sT3}, v12")
    k(f"v_and_b32 v13, 7, v0\nv_lshlrev_b32 v13, 3, v13\nv_add_u32 v13, s{sT2}, v13")
    k(f"v_cmp_gt_u32 vcc, 512, v{vL16}\nv_cndmask_b32 v13, v13, v12, vcc\ns_mov_b32 s{sF}, 0")
    k(f"v_bfe_u32 v10, v0, 1, 3\nv_lshlrev_b32 v10, 6, v10\nv_and_b32 v12, 1, v0\nv_lshlrev_b32 v12, 3, v12\nv_add_u32 v12, v10, v12")
    k(f"s_lshl_b32 s{sT3}, s{sW}, 4\ns_add_u32 s{sD}, s{sD}, s{sT3}")
    poll(k, 13, 14)
    K = lambda t: vr(vKV + 12*(t % 4))
    V = lambda t, u: vr(vKV + 12*(t % 4) + 4 + 4*u)
    kt = {}; vt = {}
    def ldK(t):
        if (t & 1) == 0:
            k(f"s_add_u32 s{sK}, s{sG}, {t >> 1}\ns_and_b32 s{sK}, s{sK}, 7\ns_lshl_b32 s{sK}, s{sK}, 2\ns_add_u32 s{sK}, s{sK}, s{sW}\ns_lshl_b32 s{sK}, s{sK}, 11")
            k(f"s_add_u32 s{sK}, s{sK}, s{sHD}\ns_add_u32 s{sV}, s{sK}, {VF(L)}\ns_add_u32 s{sK}, s{sK}, {KF(L)}")
        kt[t] = k.vm(f"buffer_load_dwordx4 {K(t)}, v{vK}, {srd(sWS)}, s{sK} offen offset:{(t & 1)*KB} sc1")
    def ldV(t):
        k(f"s_mov_b64 exec, s[{sMSK}:{sMSK+1}]")
        k.vm(f"buffer_load_dwordx4 {V(t,0)}, v{vV}, {srd(sWS)}, s{sV} offen offset:{(t & 1)*KB} sc1")
        vt[t] = k.vm(f"buffer_load_dwordx4 {V(t,1)}, v{vV}, {srd(sWS)}, s{sV} offen offset:{(t & 1)*KB+512} sc1")
        k("s_mov_b64 exec, -1")
    ldK(0)
    qt = {}
    k(f"s_lshl_b32 s{sT2}, s{sG}, 13\ns_add_u32 s{sT2}, s{sT2}, s{sHD}\ns_add_u32 s{sT2}, s{sT2}, {QF}")
    for s in range(8):
        k(f"s_lshl_b32 s{sT3}, s{sW}, 1\ns_add_u32 s{sT3}, s{sT3}, {s}\ns_and_b32 s{sT3}, s{sT3}, 7\ns_lshl_b32 s{sT3}, s{sT3}, 10\ns_add_u32 s{sT3}, s{sT3}, s{sT2}")
        qt[s] = k.vm(f"buffer_load_dwordx4 {ar(aQ+4*s)}, v{vL16}, {srd(sWS)}, s{sT3} offen sc1")
        if s == 2: ldV(0)
    ldK(1); ldV(1)
    steps = [(t, q) for t in range(15) for q in range(8)] + [(15, q) for q in (2, 3, 4, 5, 6, 7, 0, 1)]
    n = len(steps)
    LA = NS - 1
    def qk(i):
        t, q = steps[i]
        k.wait(vm=max(kt[t], qt[q]) if t == 0 else kt[t])
        k(f"v_mfma_f32_32x32x16_bf16 {vr(vS[i % NS],16)}, {K(t)}, {ar(aQ+4*q)}, 0")
    def pv(i, u):
        t, q = steps[i]
        k.wait(vm=vt[t])
        k(f"v_smfmac_f32_32x32x32_bf16 {vr(vO+16*q,16)}, {V(t,u)}, {vr(vS[i % NS]+8*u,8)}, v{vIDX}")
    for i in range(LA): qk(i)
    mark(k, 'm0')
    ring.limit = 104
    jobs = {}
    def job(i, e, f): jobs.setdefault((i, e), []).append(f)
    ap2 = apoll1(k, 12, 10, sD)
    job(P2_AT - 4, 4, ap2.issue)
    job(P2_AT, 13, ap2.check)
    job(P2_AT, 14, lambda: (ldK(2), ldV(2)))
    job(P2_AT + 1, 13, lambda: (ldK(3), ldV(3)))
    for t in range(1, 13):
        job(8*t + 1, 13, lambda t=t: ldK(t + 3)); job(8*t + 1, 14, lambda t=t: ldV(t + 3))
    job(2, 12, lambda: k("s_barrier"))
    if L == 0: job(2, 13, lambda: pack_publish(k))
    r0 = CHK_AT + 1 if L == 0 else 10
    if L == 0:
        apk = APoll(k, [f"buffer_load_dwordx4 {ar(0)}, v{vL16}, {srd(sWS)}, s{sX} offen sc1",
                        f"buffer_load_dwordx4 {ar(4)}, v{vL16}, {srd(sWS)}, s{sX} offen offset:1024 sc1",
                        f"buffer_load_dwordx2 v[14:15], v13, {srd(sWS)}, s{sX2} offen sc1"],
                    "\n".join([f"s_mov_b64 s[{sT2}:{sT3}], -1"] + sum(([f"v_accvgpr_read_b32 v10, a{2*j}", f"v_accvgpr_read_b32 v11, a{2*j+1}",
                        f"v_cmp_eq_u64 vcc, s[{sTAG}:{sTAG+1}], v[10:11]", f"s_and_b64 s[{sT2}:{sT3}], s[{sT2}:{sT3}], vcc"] for j in range(4)), [])
                        + [f"s_mov_b64 vcc, s[{sT2}:{sT3}]"]))
        def chk0():
            k(f"s_lshl_b32 s{sX}, s{sG}, 11\ns_add_u32 s{sX}, s{sX}, {FPK}")
            k(f"v_and_b32 v13, 31, v0\nv_lshlrev_b32 v13, 3, v13\ns_lshl_b32 s{sX2}, s{sG}, 8\ns_add_u32 s{sX2}, s{sX2}, {XID}")
            apk.issue()
        job(CHK_AT - 6, 12, chk0)
        def chk():
            apk.check()
            k(f"s_xor_b32 s{sT2}, s{sTAG}, s{sXCC}\ns_mov_b32 s{sT3}, s{sTAG+1}")
            k(f"v_cmp_eq_u64 vcc, s[{sT2}:{sT3}], v[14:15]")
            k(f"s_cmp_eq_u64 vcc, -1\ns_cselect_b32 s{sMODE}, 1, 0")
            k(f"s_and_b32 s{sT2}, s{sC}, 7\ns_lshl_b32 s{sT2}, s{sT2}, 1\ns_lshr_b32 s{sT3}, s{sW}, 1\ns_add_u32 s{sT2}, s{sT2}, s{sT3}")
            k(f"s_mul_i32 s{sT3}, s{sW}, {28*KB}\ns_add_u32 s{sT3}, s{sT3}, {WD}")
            k(f"s_mul_i32 s{sX}, s{sT2}, {112*KB}\ns_add_u32 s{sX}, s{sX}, s{sT3}")
            k(f"s_xor_b32 s{sT2}, s{sT2}, 1\ns_mul_i32 s{sX2}, s{sT2}, {112*KB}\ns_add_u32 s{sX2}, s{sX2}, s{sT3}")
        job(CHK_AT, 12, chk)
        def wsrc(i):
            s_ = sX if i < 28 else sX2
            j = i % 28
            if j and (j & 3) == 0: k(f"s_add_u32 s{s_}, s{s_}, 4096")
            return s_, (j & 3) * KB
        wq = XLoader(k, 56, lambda i: ar(aWD + 8*(i % 28) + 4*(i // 28)), wsrc)
        for i in range(56): job(CHK_AT + 2 + i, 4, lambda: wq.issue_n(1))
    i = r0; cnt = 0
    while cnt < 26:
        if steps[i][1] in (3, 5, 7): job(i, 13, ring.issue); cnt += 1
        i += 1
    def tch(j):
        def f():
            per = TOUCH_KB * KB // 8
            k(f"s_lshl_b32 s{sT2}, s{sC4}, 2\ns_add_u32 s{sT2}, s{sT2}, s{sW}\ns_mul_i32 s{sT2}, s{sT2}, {per}")
            k(f"s_add_u32 s{sT2}, s{sT2}, s{sSEG+1}\ns_add_u32 s{sT2}, s{sT2}, {40*KB + j*8192}")
            k.vm(f"buffer_load_dword v5, v{vL128}, {srd(sWS)}, s{sT2} offen sc1")
        return f
    for j in range(-(-TOUCH_KB // 64)): job(TOUCH_AT + j*TOUCH_STEP, 12, tch(j))
    def tact():
        rb_128(k)
        k(f"s_and_b32 s{sT2}, s{sC}, 15\ns_mul_i32 s{sT2}, s{sT2}, 7\ns_mul_i32 s{sT3}, s{sRB}, 112\ns_add_u32 s{sT2}, s{sT2}, s{sT3}\ns_lshl_b32 s{sT2}, s{sT2}, 10\ns_add_u32 s{sT2}, s{sT2}, {HF}")
        k(f"v_min_u32 v13, {55*128}, v{vL128}")
        k.vm(f"buffer_load_dword v5, v13, {srd(sWS)}, s{sT2} offen sc1")
        k(f"s_lshl_b32 s{sT0}, s{sG}, 3\ns_lshl_b32 s{sT1}, s{sW}, 1\ns_add_u32 s{sT0}, s{sT0}, s{sT1}\ns_lshl_b32 s{sT0}, s{sT0}, 5")
        k(f"s_add_u32 s{sT0}, s{sT0}, s{sC}\ns_lshl_b32 s{sT0}, s{sT0}, 10\ns_add_u32 s{sA}, s{sT0}, {OF}")
        k(f"v_and_b32 v13, 0x380, v{vL128}\nv_and_b32 v14, 8, v0\nv_lshlrev_b32 v14, 12, v14\nv_add_u32 v13, v13, v14")
        k.vm(f"buffer_load_dword v5, v13, {srd(sWS)}, s{sA} offen sc1")
        k(f"s_lshr_b32 s{sT1}, s{sDST}, 2\ns_add_u32 s{sT1}, s{sT1}, {SX}\nv_and_b32 v13, 0x180, v{vL128}")
        k.vm(f"buffer_load_dword v5, v13, {srd(sWS)}, s{sT1} offen sc1")
        k(f"s_add_u32 s{sT1}, s{sDST}, {XF}\nv_and_b32 v13, 0x780, v{vL128}")
        k.vm(f"buffer_load_dword v5, v13, {srd(sWS)}, s{sT1} offen sc1")
    job(TACT_AT, 12, tact)
    R = 2304; SC = 104 * KB
    vWA, vWL, vIN = 10, 13, vKV
    def red_setup():
        for j in range(1, 4):
            k(f"s_add_u32 s{sT0}, s{sW}, {j}\ns_and_b32 s{sT0}, s{sT0}, 3\ns_mul_i32 s{sT0}, s{sT0}, {6*R}\ns_add_u32 s{sT0}, s{sT0}, {SC + (j-1)*R}")
            k(f"v_add_u32 v{vWA+j-1}, s{sT0}, v{vL16}")
            k(f"v_lshrrev_b32 v{vWL+j-1}, 2, v{vL16}\nv_add_u32 v{vWL+j-1}, s{sT0}, v{vWL+j-1}")
    job(118, 12, red_setup)
    def red_write(s):
        j = s >> 1; z = s & 1
        k.lg(f"ds_write_b128 v{vWA+j-1}, {vr(vO+16*s)} offset:{z*3*R}")
        k.lg(f"ds_write_b128 v{vWA+j-1}, {vr(vO+16*s+4)} offset:{z*3*R+1024}")
        k.lg(f"ds_write_b32 v{vWL+j-1}, v{vO+16*s+8} offset:{z*3*R+2048}")
    for i in range(120, 126):
        job(i + 1, 15, lambda s=steps[i][1]: red_write(s))
    tl = []
    def red_read():
        k(f"s_mul_i32 s{sT0}, s{sW}, {6*R}\ns_add_u32 s{sT0}, s{sT0}, {SC}")
        k(f"v_add_u32 v{vK}, s{sT0}, v{vL16}\nv_lshrrev_b32 v{vV}, 2, v{vL16}\nv_add_u32 v{vV}, s{sT0}, v{vV}")
        k.wait_all(vm=False)
        k("s_barrier")
        for z in range(2):
            for j in range(3):
                b = vO + 32 + (z*3 + j)*16
                k.lg(f"ds_read_b128 {vr(b)}, v{vK} offset:{(z*3+j)*R}")
                k.lg(f"ds_read_b128 {vr(b+4)}, v{vK} offset:{(z*3+j)*R+1024}")
                tl.append(k.lg(f"ds_read_b32 v{b+8}, v{vV} offset:{(z*3+j)*R+2048}"))
    job(127, 9, red_read)
    for i, (t, q) in enumerate(steps):
        s = vS[i % NS]
        if i in ATT_MARKS: mark(k, f's{i}')
        for e in range(16):
            if e == 2 and i > 0: pv(i-1, 1)
            if e == 6 and i + LA < n: qk(i + LA)
            if e == 10: pv(i, 0)
            for f in jobs.pop((i, e), []): f()
            k(f"v_exp_f32 v{s+e}, v{s+e}")
    pv(n-1, 1)
    assert not jobs, jobs.keys()
    assert ring.issued == 104
    mark(k, 'loop')
    for z in range(2):
        o = vO + 16*z
        for j in range(3):
            b = vO + 32 + (z*3 + j)*16
            k.wait(lg=tl[z*3+j])
            if j == 0: continue
            b0 = vO + 32 + z*3*16
            for i in range(9): k(f"v_add_f32 v{b0+i}, v{b0+i}, v{b+i}")
    for z in range(2):
        o = vO + 16*z; b0 = vO + 32 + z*3*16
        for i in (8, 0, 1, 2, 3, 4, 5, 6, 7): k(f"v_add_f32 v{o+i}, v{o+i}, v{b0+i}")
        k(f"v_rcp_f32 v{o+9}, v{o+8}")
        for j in range(4):
            k(f"v_mul_f32 v{o+2*j}, v{o+2*j}, v{o+9}\nv_mul_f32 v{o+2*j+1}, v{o+2*j+1}, v{o+9}")
            k(f"v_cvt_pk_bf16_f32 v{o+12+j}, v{o+2*j}, v{o+2*j+1}")
        ts = k.vm(f"buffer_store_dwordx4 {vr(o+12)}, v{vL16}, {srd(sWS)}, s{sA} offen")
        k(f"s_add_u32 s{sA}, s{sA}, {32*KB}")
    k(f"s_lshl_b32 s{sF}, s{sG}, 2\ns_add_u32 s{sF}, s{sF}, s{sW}\ns_lshl_b32 s{sF}, s{sF}, 5\ns_add_u32 s{sF}, s{sF}, s{sC}\ns_lshl_b32 s{sF}, s{sF}, 3\ns_add_u32 s{sF}, s{sF}, {FLOC(L,0)}")
    publish_local(k, ts)
    ring.limit = 144

def load_res(k, v):
    k(f"s_add_u32 s{sT1}, s{sDST}, {XF}")
    k.vm(f"buffer_load_dwordx4 {vr(v)}, v{vL16}, {srd(sWS)}, s{sT1} offen sc1")
    return k.vm(f"buffer_load_dwordx4 {vr(v+4)}, v{vL16}, {srd(sWS)}, s{sT1} offen offset:1024 sc1")
def add_res(k, acc, v):
    for j in range(8):
        k(f"v_lshlrev_b32 v10, 16, v{v+j}\nv_and_b32 v11, 0xffff0000, v{v+j}")
        k(f"v_add_f32 v{acc+2*j}, v{acc+2*j}, v10\nv_add_f32 v{acc+2*j+1}, v{acc+2*j+1}, v11")

def ph_wo(k, L, ring):
    vX, vACC, vRES, vIN, vPK = 16, 80, 112, 120, 136
    k(f"s_lshr_b32 s{sRB}, s{sDST}, 15\ns_lshr_b32 s{sD}, s{sW}, 1")
    k(f"s_lshl_b32 s{sX}, s{sRB}, 15\ns_lshl_b32 s{sT0}, s{sD}, 14\ns_add_u32 s{sX}, s{sX}, s{sT0}\ns_add_u32 s{sX}, s{sX}, {OF}")
    k(f"s_lshl_b32 s{sT0}, s{sD}, 11")
    set_lds_bases(k, sT0)
    ops = []
    for s in range(16):
        for a in range(2):
            ops.append(dict(b=4*s + a, bmin=4*s, bmax=4*s + 3, xi=s, x=vr(vX+4*s), acc=vr(vACC+16*a,16), swap=False, first=(s == 0)))
    g = Gemm(k, ring, ops, {0}, stop_issue=0)
    if L == 0:
        rowmajor_addr(k, 8, sT0)
        k.vm(f"buffer_load_dwordx4 {vr(vRES)}, v8, {srd(60)}, s{sT0} offen")
        k.vm(f"buffer_load_dwordx4 {vr(vRES+4)}, v8, {srd(60)}, s{sT0} offen offset:32")
    else:
        load_res(k, vRES)
    g.start()
    ring.issue_n(PRE)
    k(f"s_and_b32 s{sF}, s{sRB}, 0xfe\ns_add_u32 s{sF}, s{sF}, s{sD}\ns_lshl_b32 s{sF}, s{sF}, 7\ns_add_u32 s{sF}, s{sF}, {FLOC(L,0)}")
    SC = 144 * KB
    k(f"s_xor_b32 s{sT0}, s{sW}, 2\ns_lshl_b32 s{sT0}, s{sT0}, 12\ns_add_u32 s{sT0}, s{sT0}, {SC}\nv_add_u32 v6, s{sT0}, v{vL16}")
    k(f"s_lshl_b32 s{sT0}, s{sW}, 12\ns_add_u32 s{sT0}, s{sT0}, {SC}\nv_add_u32 v7, s{sT0}, v{vL16}")
    poll16(k)
    xq = XLoader(k, 16, lambda i: vr(vX+4*i), lin_src(k))
    g.run(xq, n0=8)
    for j in range(4): k.lg(f"ds_write_b128 v6, {vr(vACC+16+4*j)} offset:{j*KB}")
    add_res(k, vACC, vRES)
    k.wait_all(vm=False)
    k("s_barrier")
    for j in range(4): k.lg(f"ds_read_b128 {vr(vIN+4*j)}, v7 offset:{j*KB}")
    k.wait_all(vm=False)
    for i in range(16): k(f"v_add_f32 v{vACC+i}, v{vACC+i}, v{vIN+i}")
    for j in range(8): k(f"v_cvt_pk_bf16_f32 v{vPK+j}, v{vACC+2*j}, v{vACC+2*j+1}")
    store_x(k, vACC, vPK, L, 1)
    ring.limit = None
    mark(k, 'end')

def ph_up(k, L, ring, b0):
    vX, vACC, vST, vEXT, vRS = 16, 144, 208, 8, 6
    sH0, sH1 = sD, sE
    rb_128(k)
    k(f"s_and_b32 s{sA}, s{sC}, 15")
    k(f"s_lshl_b32 s{sX}, s{sRB}, 15\ns_add_u32 s{sX}, s{sX}, {XF}")
    set_lds_bases(k)
    ops = []
    b = b0
    for (t0, nt) in ((0, 4), (4, 3)):
        for ks in range(33):
            for t in range(t0, t0+nt):
                ops.append(dict(b=b, bmin=b, bmax=b, xi=(ks if ks < 32 else None), x=(vr(vX+4*ks) if ks < 32 else vr(vEXT)),
                                acc=vr(vACC+16*t, 16), swap=False, first=(ks == 0)))
                b += 1
    g = Gemm(k, ring, ops, {0, 32, 64, 96, 128, 160, 192}, stop_issue=214)
    g.start()
    ring.issue_n(PRE)
    res = {}
    se = stats_emitters(k, vST, 12, res)
    k(f"s_mul_i32 s{sH0}, s{sRB}, 112\ns_mul_i32 s{sT2}, s{sA}, 7\ns_add_u32 s{sH0}, s{sH0}, s{sT2}\ns_lshl_b32 s{sH0}, s{sH0}, 10\ns_add_u32 s{sH0}, s{sH0}, {HF}")
    k(f"s_add_u32 s{sH1}, s{sH0}, 4096")
    k(f"s_lshl_b32 s{sF}, s{sRB}, 7\ns_add_u32 s{sF}, s{sF}, {FLOC(L,1)}")
    poll16(k)
    xq = XLoader(k, 32, lambda i: vr(vX+4*i), lin_src(k))
    fin = fin_stats(vST, vEXT, vRS) + [f"v_mul_f32 v{vRS}, v{vRS}, v{vRS}"]
    def epi(t):
        a = vACC + 16*t
        o = []
        for j in range(4):
            o += [f"v_mul_f32 v{a+2*j}, v{a+2*j}, v{vRS}", f"v_mul_f32 v{a+2*j+1}, v{a+2*j+1}, v{vRS}",
                  f"v_mul_f32 v{a+2*j}, v{a+2*j}, v{a+8+2*j}", f"v_mul_f32 v{a+2*j+1}, v{a+2*j+1}, v{a+9+2*j}",
                  f"v_cvt_pk_bf16_f32 v{a+8+j}, v{a+2*j}, v{a+2*j+1}"]
        o.append(f"buffer_store_dwordx4 {vr(a+8)}, v{vL16}, {srd(sWS)}, s{sH0 + (t >> 2)} offen offset:{(t & 3)*KB}")
        return o
    epiA = sum((epi(t) for t in range(4)), [])
    st = dict(i=0, j=0, t=None)
    def put(x):
        if x.startswith('buffer'): st['t'] = k.vm(x)
        else: k(x)
    def filler(m):
        if 96 <= m < 128:
            if st['i'] == 0: k.wait(vm=res['t'])
            for _ in range(2):
                if st['i'] < len(fin): k(fin[st['i']]); st['i'] += 1
        if m >= 138:
            for _ in range(2):
                if st['j'] < len(epiA): put(epiA[st['j']]); st['j'] += 1
        if m == 205:
            assert st['j'] == len(epiA)
            k(f"s_lshl_b32 s{sF}, s{sRB}, 4\ns_add_u32 s{sF}, s{sF}, s{sA}\ns_lshl_b32 s{sF}, s{sF}, 3\ns_add_u32 s{sF}, s{sF}, {FLOC(L,2)}")
            publish_local(k, st['t'])
    g.run(xq, filler=filler, misc=se)
    assert st['i'] == len(fin)
    for t in range(4, 7):
        for x in epi(t): put(x)
    k(f"s_add_u32 s{sF}, s{sF}, {FLOC(L,3) - FLOC(L,2)}")
    tB = st['t']
    mark(k, 'end')
    return tB

def ph_down(k, L, ring, tB):
    vX, NX, vACC, vRES, vPK = 16, 32, 144, 208, 216
    final = L == 1
    k(f"s_lshr_b32 s{sRB}, s{sDST}, 15")
    k(f"s_mul_i32 s{sT0}, s{sW}, {28*KB}\ns_add_u32 s{sT0}, s{sT0}, {HF}")
    k(f"s_mul_i32 s{sX}, s{sRB}, {112*KB}\ns_add_u32 s{sX}, s{sX}, s{sT0}")
    k(f"s_xor_b32 s{sT1}, s{sRB}, 1\ns_mul_i32 s{sX2}, s{sT1}, {112*KB}\ns_add_u32 s{sX2}, s{sX2}, s{sT0}")
    order = [7*c + t for c in range(4) for t in range(4)] + [7*c + t for c in range(4) for t in range(4, 7)]
    cur = {sX: 0, sX2: 0}
    def src(i):
        s_ = sX if (i & 1) == 0 else sX2
        r = order[i >> 1]
        base = 7*(r // 7) + (0 if r % 7 < 4 else 4)
        if cur[s_] != base:
            d = (base - cur[s_]) * KB
            k(f"s_add_u32 s{s_}, s{s_}, {d}" if d > 0 else f"s_sub_u32 s{s_}, s{s_}, {-d}")
            cur[s_] = base
        return s_, (r - base) * KB
    xq = XLoader(k, 56, lambda i: vr(vX + 4*(i % NX)), src)
    k(f"v_and_b32 v12, 3, v0\nv_lshlrev_b32 v12, 3, v12\nv_and_b32 v7, 4, v0\nv_lshlrev_b32 v7, 5, v7\nv_add_u32 v12, v12, v7")
    k(f"s_and_b32 s{sD}, s{sRB}, 0xfe\ns_lshl_b32 s{sD}, s{sD}, 7\ns_lshl_b32 s{sT0}, s{sW}, 5\ns_add_u32 s{sD}, s{sD}, s{sT0}")
    publish_local(k, tB)
    k(f"s_add_u32 s{sF}, s{sD}, {FLOC(L,2)}")
    poll(k, 12, 14)
    xq.hold = 32
    xq.issue_n(10)
    rt = load_res(k, vRES)
    SC = 100 * KB
    for a in range(1, 4):
        k(f"s_xor_b32 s{sT0}, s{sW}, {a}\ns_mul_i32 s{sT0}, s{sT0}, {12*KB}\ns_add_u32 s{sT0}, s{sT0}, {SC + (a-1)*4*KB}\nv_add_u32 v{5+a}, s{sT0}, v{vL16}")
    k(f"s_mul_i32 s{sT0}, s{sW}, {12*KB}\ns_add_u32 s{sT0}, s{sT0}, {SC}\nv_add_u32 v9, s{sT0}, v{vL16}")
    m = 0
    for s in range(28):
        r = order[s]
        if s == 5:
            k(f"s_add_u32 s{sF}, s{sD}, {FLOC(L,3)}")
            apb = apoll1(k, 12, 14, sF)
            apb.issue()
        if s == 10:
            apb.check()
            xq.hold = 56
        if s == 4: k("s_barrier")
        for a in (3, 2, 1, 0):
            xi = 2*s + (a & 1)
            while xq.n <= xi: xq.issue_n(1)
            k.wait(vm=xq.t[xi])
            acc = vr(vACC + 16*a, 16)
            k(f"v_mfma_f32_32x32x16_bf16 {acc}, {ar(aWD + 8*r + 4*(a >> 1))}, {vr(vX + 4*(xi % NX))}, {'0' if s == 0 else acc}")
            if m == 0: mark(k, 'm0')
            if m in GEMM_MARKS.get(G.ph, ()): mark(k, f'm{m}')
            if m % 2 == 0 and xq.n < 2*s + NX - 2: xq.issue_n(1)
            m += 1
    for a in (3, 2, 1):
        for j in range(4): k.lg(f"ds_write_b128 v{5+a}, {vr(vACC+16*a+4*j)} offset:{j*KB}")
    k.wait(vm=rt)
    add_res(k, vACC, vRES)
    k.wait_all(vm=False)
    k("s_barrier")
    tl = []
    for a in range(3):
        for j in range(4): t_ = k.lg(f"ds_read_b128 {vr(vX+16*a+4*j)}, v9 offset:{a*4*KB + j*KB}")
        tl.append(t_)
    for a in range(3):
        k.wait(lg=tl[a])
        for i in range(16): k(f"v_add_f32 v{vACC+i}, v{vACC+i}, v{vX+16*a+i}")
    for j in range(8): k(f"v_cvt_pk_bf16_f32 v{vPK+j}, v{vACC+2*j}, v{vACC+2*j+1}")
    if final:
        rowmajor_addr(k, 8, sT0)
        k.vm(f"buffer_store_dwordx4 {vr(vPK)}, v8, {srd(sAUX)}, s{sT0} offen")
        k.vm(f"buffer_store_dwordx4 {vr(vPK+4)}, v8, {srd(sAUX)}, s{sT0} offen offset:32")
    else:
        store_x(k, vACC, vPK, L, 4)
    mark(k, 'end')

def k_main(name):
    k = Asm()
    G.nst = 0
    k(f".globl {name}\n.p2align 8\n.type {name},@function")
    k.label(name)
    if STAMP: k("s_memrealtime s[42:43]")
    mark(k, 'start')
    k("s_cmp_ge_u32 s2, 256")
    k("s_cbranch_scc1 L_abort")
    k(f"s_load_dwordx2 s[{sWS}:{sWS+1}], s[0:1], 72")
    k(f"s_load_dwordx2 s[{sAUX}:{sAUX+1}], s[0:1], 56")
    k("s_load_dwordx2 s[60:61], s[0:1], 0\ns_load_dwordx4 s[64:67], s[0:1], 8\ns_load_dwordx4 s[68:71], s[0:1], 32\ns_load_dwordx2 s[72:73], s[0:1], 48")
    k("v_lshrrev_b32 v2, 6, v0")
    k(f"v_and_b32 v{vL16}, 63, v0")
    k(f"v_readfirstlane_b32 s{sW}, v2")
    k(f"v_lshlrev_b32 v{vL16}, 4, v{vL16}")
    k(f"s_mov_b32 s{sWG}, s2\ns_and_b32 s{sG}, s2, 7\ns_lshr_b32 s{sC}, s2, 3\ns_lshl_b32 s{sW1K}, s{sW}, 10")
    k(f"s_lshr_b32 s{sC4}, s{sC}, 4\ns_lshr_b32 s{sC3}, s{sC}, 3")
    k(f"s_getreg_b32 s{sXCC}, hwreg(HW_REG_XCC_ID, 0, 4)")
    k(f"v_add_u32 v{vSRC}, s{sW1K}, v{vL16}")
    k(f"s_mov_b32 s{sMSK}, 0xffff\ns_mov_b32 s{sMSK+1}, 0xffff\ns_mov_b32 s{sMODE}, 0")
    k(f"s_and_b32 s{sT0}, s{sC}, 7\ns_mul_i32 s{sSEG}, s{sT0}, {WO_STR}\ns_add_u32 s{sSEG}, s{sSEG}, {WO}")
    k(f"s_lshl_b32 s{sT1}, s{sG}, 2\ns_add_u32 s{sT1}, s{sT1}, s{sC3}\ns_lshl_b32 s{sT1}, s{sT1}, 1\ns_and_b32 s{sT2}, s{sW}, 1\ns_add_u32 s{sT1}, s{sT1}, s{sT2}")
    k(f"s_lshl_b32 s{sT1}, s{sT1}, 5\ns_lshl_b32 s{sT0}, s{sT0}, 2\ns_add_u32 s{sT1}, s{sT1}, s{sT0}\ns_and_b32 s{sT2}, s{sW}, 2\ns_add_u32 s{sT1}, s{sT1}, s{sT2}\ns_lshl_b32 s{sDST}, s{sT1}, 10")
    k(f"s_and_b32 s{sT0}, s{sC}, 15\ns_mul_i32 s{sSEG+1}, s{sT0}, {WU_STR}\ns_add_u32 s{sSEG+1}, s{sSEG+1}, {WU}")
    k(f"s_mul_i32 s{sSEG+2}, s{sT0}, {WQ_STR}\ns_add_u32 s{sSEG+2}, s{sSEG+2}, {WQ}")
    def late(k):
        k(f"s_add_u32 s{sT0}, s{sWS}, {EP}\ns_addc_u32 s{sT1}, s{sWS+1}, 0")
        k(f"s_load_dwordx2 s[{sTAG}:{sTAG+1}], s[{sT0}:{sT1}], 0")
        k(f"s_and_b32 s{sWS+1}, s{sWS+1}, 0xffff\ns_mov_b32 s{sWS+2}, 0x10000000\ns_mov_b32 s{sWS+3}, 0x20000")
        k(f"s_and_b32 s{sAUX+1}, s{sAUX+1}, 0xffff\ns_mov_b32 s{sAUX+2}, {2*MB}\ns_mov_b32 s{sAUX+3}, 0x20000")
    G.ph = 'qkv0'; ph_qkv0(k, late)
    for L in range(2):
        ring = Ring(k, [(sSEG, 64), (sSEG+1, 232)] + ([(sSEG+2, 100)] if L == 0 else []))
        G.ph = f'att{L}'; ph_att(k, L, ring)
        G.ph = f'wo{L}'; ph_wo(k, L, ring)
        G.ph = f'up{L}'; tB = ph_up(k, L, ring, 64)
        assert ring.issued == ring.total, (ring.issued, ring.total)
        G.ph = f'dn{L}'; ph_down(k, L, ring, tB)
        G.ph = 'qkv1'
        if L == 0: ph_qkv(k, 1, ring, 296)
    k(f"s_add_u32 s{sT0}, s{sWG}, s{sW}\ns_cmp_lg_u32 s{sT0}, 0\ns_cbranch_scc1 L_fin")
    k(f"s_mov_b32 s{sF}, {EP}")
    publish_local(k, None, force_global=True)
    k.label("L_fin")
    if STAMP:
        k("s_waitcnt vmcnt(0)")
        G.ph = ''; mark(k, 'fin')
        k("s_memrealtime s[98:99]\ns_waitcnt lgkmcnt(0)")
        vals = [42, 98, sMODE] + STS[:G.nst]
        for i, s_ in enumerate(vals): k(f"v_mov_b32 v{16+i}, s{s_}")
        k(f"s_lshl_b32 s{sT0}, s{sWG}, 2\ns_add_u32 s{sT0}, s{sT0}, s{sW}\ns_lshl_b32 s{sT0}, s{sT0}, 7\ns_add_u32 s{sT0}, s{sT0}, {TS}")
        k("v_mov_b32 v4, 0\ns_mov_b64 exec, 1")
        for j in range(8): k(f"buffer_store_dwordx4 {vr(16+4*j)}, v4, {srd(sWS)}, s{sT0} offen offset:{16*j}")
    k("s_waitcnt vmcnt(0)")
    k.label("L_abort")
    k("s_endpgm")
    return k

def build():
    name = NAME + "_kernel"
    k = k_main(name)
    nn = k.fix()
    print(f"{len(k.L)} lines, {nn} nop states", file=sys.stderr)
    return f"""; stamps: {','.join(G.names)}
; @launch grid=(256,1,1) block=(256,1,1) lds={160*KB}
.amdgcn_target "amdgcn-amd-amdhsa--gfx950"
.text
{k.text()}
.section .rodata,"a"
.p2align 6
.amdhsa_kernel {name}
  .amdhsa_next_free_vgpr 512
  .amdhsa_next_free_sgpr 102
  .amdhsa_accum_offset 256
  .amdhsa_group_segment_fixed_size 0
  .amdhsa_kernarg_size 80
  .amdhsa_user_sgpr_count 2
  .amdhsa_user_sgpr_kernarg_segment_ptr 1
  .amdhsa_system_sgpr_workgroup_id_x 1
.end_amdhsa_kernel
"""

if __name__ == "__main__":
    for a in sys.argv[2:]:
        kk_, vv_ = a.split('=', 1)
        globals()[kk_] = eval(vv_)
    open(sys.argv[1], "w").write(build())
```

```python
import sys, struct
from asmlib import Asm

NAME = "interleave_layers__mha_block__glu_gated_bilinear__prompt"
KB = 1024; MB = KB * KB
LOG2E = 1.4426950408889634
def f2u(x): return struct.unpack('<I', struct.pack('<f', x))[0]
def srd(b): return f"s[{b}:{b+3}]"
def vr(b, n=4): return f"v[{b}:{b+n-1}]"
def ar(b, n=4): return f"a[{b}:{b+n-1}]"

WQ = 0;                    WQ_STR = 100 * KB
WO = WQ + 16 * WQ_STR;     WO_STR = 64 * KB
WU = WO + 8 * WO_STR;      WU_STR = 232 * KB
WD = WU + 16 * WU_STR
FL = 7 * MB + 640 * KB
assert WD + 16 * 112 * KB <= FL
EP = FL
XID = FL + 1 * KB
def FLOC(L, p): return FL + 4 * KB + ((L + 1) * 6 + p) * 8 * KB
FKV0 = FL + 4 * KB + 18 * 8 * KB
def FKV(L): return FKV0 + L * 64 * KB
FPK = FKV0 + 128 * KB
assert FPK + 16 * KB <= 8 * MB
XF = 8 * MB
HF = 10 * MB
QF = HF
SX = 17 * MB
def KVF(L): return 18 * MB + L * 4 * MB
WS_PAGES = 13
TS = 200 * MB
DUMP = 0x7ff00000

STAMP = False
DBG = None
PRE = 8
PRE_WO = 8
CODE_TOUCH = True
WD_SLOTS = (2, 4, 6)
TOUCH_AT = (98, 68); TOUCH_STEP = 16; TOUCH_KBS = (64, 128)
RING = 148
PUB_AT = 5; CHK_GAP = 20
P2_AT = 6
TACT_AT = 102

sC4, sC3 = 2, 3
sWS, sAUX = 4, 8
sW, sG, sC, sW1K = 12, 13, 14, 15
sT0, sT1, sT2, sT3 = 16, 17, 18, 19
sX, sRS, sRB = 20, 21, 22
sA, sB, sCc, sD, sE = 23, 24, 25, 26, 27
sS0, sS1 = 28, 29
sMSK, sTAG, sMODE, sXCC = 30, 32, 34, 35
sSEG = 36
sX2 = 39
sSPIN, sF = 40, 41
STS = list(range(44, 56, 2)) + [92, 94] + list(range(78, 92, 2)) + [56, 58, 60, 62]
sWG = 101
sW4K = 97
sPC, sCT = 74, 77
sDST = 100
vL16, vSRC, vB = 1, 2, 3
aWD, aWB = 0, 224

class G:
    nst = 0
    names = []
    ph = ''
SKIP = ''
ATT_MARKS = ()
GEMM_MARKS = {}
def mark(k, nm='x'):
    import re
    nm = G.ph + '_' + nm
    if SKIP and re.match(SKIP, nm): return
    if STAMP:
        G.names.append(nm)
        k(f"s_memtime s[{STS[G.nst]}:{STS[G.nst]+1}]")
        G.nst += 1

class Ring:
    def __init__(self, k, segs):
        self.k = k; self.N = RING
        self.total = sum(n for _, n in segs)
        self.starts = {}
        b = 0
        for s, n in segs:
            assert n % 4 == 0
            self.starts[b] = s; b += n
        self.issued = 0; self.freed = 0; self.visible = 0
        self.limit = None
        self.tick = {}
    def can_issue(self):
        if self.limit is not None and self.issued + 4 > self.limit: return False
        return self.issued < self.total and self.issued + 4 <= self.freed + self.N
    def issue(self):
        k = self.k
        assert self.can_issue()
        slot = self.issued % self.N
        k(f"s_add_u32 m0, s{sW1K}, {slot*KB}")
        if self.issued in self.starts: k(f"s_mov_b32 s{sRS}, s{self.starts[self.issued]}")
        else: k(f"s_add_u32 s{sRS}, s{sRS}, 4096")
        self.tick[self.issued // 4] = k.vm(f"buffer_load_dwordx4 v{vSRC}, {srd(sWS)}, s{sRS} offen sc1 lds")
        self.issued += 4
    def issue16(self):
        k = self.k
        b = self.issued; slot = b % self.N
        assert slot + 16 <= self.N and b + 16 <= min(self.limit or 1 << 30, self.freed + self.N)
        assert not any(x in self.starts for x in range(b + 1, b + 16))
        k(f"s_add_u32 m0, s{sW4K}, {slot*KB}")
        if b in self.starts: k(f"s_add_u32 s{sRS}, s{self.starts[b]}, s{sW4K}")
        else: k(f"s_add_u32 s{sRS}, s{sRS}, 16384")
        for i in range(4):
            t = k.vm(f"buffer_load_dwordx4 v{vL16}, {srd(sWS)}, s{sRS} offen offset:{i*KB} sc1 lds")
        for q in range(4): self.tick[b // 4 + q] = t
        self.issued += 16
    def end16(self):
        self.k(f"s_sub_u32 s{sRS}, s{sRS}, s{sW4K}\ns_add_u32 s{sRS}, s{sRS}, 12288")
    def issue_n(self, n):
        for _ in range(n):
            if self.can_issue(): self.issue()
    def sync(self, consumed, need):
        k = self.k
        need = min(need, self.total)
        if need > self.visible:
            q = (need - 1) // 4
            assert q * 4 < self.issued, (need, self.issued)
            k.wait(vm=self.tick[q])
        k("s_barrier")
        q = self.visible // 4
        while q in self.tick and self.tick[q] <= k.vm_done: q += 1
        self.visible = q * 4
        assert self.visible >= need
        self.freed = max(self.freed, (consumed // 4) * 4)
    def addr(self, b): return (b % self.N) * KB

def set_lds_bases(k, extra_s=None):
    if extra_s is None: k(f"v_mov_b32 v{vB}, v{vL16}")
    else: k(f"v_add_u32 v{vB}, s{extra_s}, v{vL16}")
    k(f"v_add_u32 v{vB+1}, 0x10000, v{vB}")
    k(f"v_add_u32 v{vB+2}, 0x20000, v{vB}")

class XLoader:
    def __init__(self, k, total, reg, src):
        self.k = k; self.total = total; self.reg = reg; self.src = src; self.n = 0; self.t = []
        self.hold = total
    def issue_n(self, n):
        k = self.k
        for _ in range(n):
            i = self.n
            if i >= min(self.total, self.hold): return
            s_, imm = self.src(i)
            self.t.append(k.vm(f"buffer_load_dwordx4 {self.reg(i)}, v{vL16}, {srd(sWS)}, s{s_} offen offset:{imm} sc1"))
            self.n += 1
def lin_src(k):
    def f(i):
        if i and (i & 3) == 0: k(f"s_add_u32 s{sX}, s{sX}, 4096")
        return sX, (i & 3) * KB
    return f

class Gemm:
    def __init__(self, k, ring, ops, syncs, D=4, NB=8, stop_issue=None):
        self.k = k; self.ring = ring; self.ops = ops; self.syncs = sorted(syncs)
        assert all(x % 2 == 0 for x in syncs)
        self.D = D; self.NB = NB; self.tl = {}; self.nread = 0
        self.stop = stop_issue if stop_issue is not None else len(ops)
    def rd(self):
        k = self.k; m = self.nread; o = self.ops[m]
        assert o['bmax'] < self.ring.visible, (m, o['b'], self.ring.visible)
        a = self.ring.addr(o['b'])
        self.tl[m] = k.lg(f"ds_read_b128 {ar(aWB + 4*(m % self.NB))}, v{vB + (a >> 16)} offset:{a & 0xffff}")
        self.nread += 1
    def need_until(self, m):
        M = len(self.ops)
        nxt = [s for s in self.syncs if s > m]
        last = min((nxt[0] if nxt else M) - 1 + self.D, M - 1)
        return max(o['bmax'] for o in self.ops[:last+1]) + 1
    def start(self):
        self.ring.sync(self.ops[0]['bmin'], self.need_until(0))
        while self.nread < min(self.D, len(self.ops)): self.rd()
    def run(self, xq, n0=6, look=10, filler=None, misc=(), misc_from=0):
        k = self.k; M = len(self.ops)
        misc = list(misc)
        xq.issue_n(n0)
        cur = 0
        for m in range(M):
            if m in self.syncs and m > 0:
                self.ring.sync(self.ops[m]['bmin'], self.need_until(m))
            o = self.ops[m]
            xt = None
            if m % 2 == 0:
                xs = [p['xi'] for p in self.ops[m:m+2] if p.get('xi') is not None]
                if xs:
                    cur = max(cur, max(xs))
                    while xq.n <= max(xs): xq.issue_n(1)
                    xt = xq.t[max(xs)]
                k.wait(vm=xt, lg=self.tl[min(m + 1, M - 1)])
            w = ar(aWB + 4*(m % self.NB))
            c = o.get('c0', '0') if o['first'] else o['acc']
            A, B = (o['x'], w) if o['swap'] else (w, o['x'])
            k(f"v_mfma_f32_32x32x16_bf16 {o['acc']}, {A}, {B}, {c}")
            if m == 0: mark(k, 'm0')
            if m in GEMM_MARKS.get(G.ph, ()): mark(k, f'm{m}')
            if m % 2 == 0:
                for _ in range(2):
                    if self.nread < M: self.rd()
            else:
                rok = m < self.stop and self.ring.can_issue()
                if xq.n < xq.total and (xq.n - cur < look or not (rok or (misc and m >= misc_from))): xq.issue_n(1)
                elif misc and m >= misc_from: misc.pop(0)()
                elif rok: self.ring.issue()
            if filler: filler(m)
        assert not misc

def stats_emitters(k, vt, vaddr, res):
    k(f"v_lshrrev_b32 v{vaddr}, 1, v{vL16}")
    k(f"s_lshl_b32 s{sS0}, s{sRB}, 13\ns_add_u32 s{sS0}, s{sS0}, {SX}\ns_add_u32 s{sS1}, s{sS0}, 4096")
    def mk(j):
        def f():
            for i in range(4*j, 4*j+4):
                s_ = sS0 if i < 8 else sS1
                res['t'] = k.vm(f"buffer_load_dwordx2 {vr(vt+2*i, 2)}, v{vaddr}, {srd(sWS)}, s{s_} offen offset:{(i & 7) * 512} sc1")
        return f
    return [mk(j) for j in range(4)]

def fin_stats(vt, vext, vrstd):
    ins = []
    n = 16
    while n > 1:
        h = n // 2
        for i in range(h):
            ins.append(f"v_add_f32 v{vt+2*i}, v{vt+2*i}, v{vt+2*(i+h)}")
            ins.append(f"v_add_f32 v{vt+2*i+1}, v{vt+2*i+1}, v{vt+2*(i+h)+1}")
        n = h
    a, b, c, d = vt, vt+1, vt+2, vt+3
    ins += [f"v_mov_b32 v{c}, v{a}", f"v_mov_b32 v{d}, v{b}",
            f"v_permlane32_swap_b32 v{a}, v{c}", f"v_permlane32_swap_b32 v{b}, v{d}",
            f"v_add_f32 v{a}, v{a}, v{c}", f"v_add_f32 v{b}, v{b}, v{d}",
            f"v_mul_f32 v{a}, {hex(f2u(-1.0/512))}, v{a}",
            f"v_mul_f32 v{b}, {hex(f2u(1.0/512))}, v{b}",
            f"v_fma_f32 v{b}, -v{a}, v{a}, v{b}",
            f"v_max_f32 v{b}, 0, v{b}",
            f"v_add_f32 v{b}, {hex(f2u(1e-5))}, v{b}",
            f"v_rsq_f32 v{vrstd}, v{b}",
            f"v_cvt_pk_bf16_f32 v{vext}, v{a}, v{a}",
            f"v_and_b32 v{c}, 0xffff0000, v{vext}",
            f"v_sub_f32 v{c}, v{a}, v{c}",
            f"v_cvt_pk_bf16_f32 v{vext+1}, v{c}, 0",
            f"v_mov_b32 v{vext+2}, v{vext}", f"v_mov_b32 v{vext+3}, v{vext+1}"]
    return ins

def poll(k, vaddr, vpd):
    l = k.newlabel('poll')
    k(f"s_mov_b32 s{sSPIN}, 0x40000")
    k.label(l)
    k(f"s_sub_u32 s{sSPIN}, s{sSPIN}, 1")
    k("s_cbranch_scc1 L_abort")
    k.vm(f"buffer_load_dwordx2 {vr(vpd,2)}, v{vaddr}, {srd(sWS)}, s{sF} offen sc1")
    k.wait_all(lg=False)
    k(f"v_cmp_eq_u64 vcc, s[{sTAG}:{sTAG+1}], {vr(vpd,2)}")
    k("s_cmp_eq_u64 vcc, -1")
    k(f"s_cbranch_scc0 {l}")
class APoll:
    def __init__(self, k, loads, cmp):
        self.k = k; self.loads = loads; self.cmp = cmp
    def issue(self):
        for x in self.loads: self.t = self.k.vm(x)
    def check(self):
        k = self.k
        l = k.newlabel('ap'); ok = k.newlabel('apok')
        k.wait(vm=self.t)
        k(f"s_mov_b32 s{sSPIN}, 0x40000")
        k.label(l)
        k(self.cmp)
        k("s_cmp_eq_u64 vcc, -1")
        k(f"s_cbranch_scc1 {ok}")
        k(f"s_sub_u32 s{sSPIN}, s{sSPIN}, 1")
        k("s_cbranch_scc1 L_abort")
        for x in self.loads: k(x)
        k("s_waitcnt vmcnt(0)")
        k(f"s_branch {l}")
        k.label(ok)
def apoll1(k, vaddr, vpd, soff):
    return APoll(k, [f"buffer_load_dwordx2 {vr(vpd,2)}, v{vaddr}, {srd(sWS)}, s{soff} offen sc1"],
                 f"v_cmp_eq_u64 vcc, s[{sTAG}:{sTAG+1}], {vr(vpd,2)}")
def poll16(k):
    k("v_and_b32 v13, 15, v0\nv_lshlrev_b32 v13, 3, v13")
    poll(k, 13, 14)

def publish_local(k, last_store, force_global=False):
    k(f"v_mov_b32 v13, 0\nv_mov_b32 v14, s{sTAG}\nv_mov_b32 v15, s{sTAG+1}")
    k.wait(vm=last_store)
    k("s_mov_b64 exec, 1")
    if force_global:
        k.vm(f"buffer_store_dwordx2 v[14:15], v13, {srd(sWS)}, s{sF} offen sc1")
    else:
        slow = k.newlabel('slow'); join = k.newlabel('join')
        k(f"s_cmp_eq_u32 s{sMODE}, 0")
        k(f"s_cbranch_scc1 {slow}")
        k(f"buffer_store_dwordx2 v[14:15], v13, {srd(sWS)}, s{sF} offen")
        k(f"s_branch {join}")
        k.label(slow)
        k("buffer_wbl2 sc1")
        k("s_waitcnt vmcnt(0)")
        k(f"buffer_store_dwordx2 v[14:15], v13, {srd(sWS)}, s{sF} offen sc1")
        k.label(join)
        k.vm_issued += 1
    k("s_mov_b64 exec, -1")
def publish_8(k, last_store, shift):
    k(f"v_lshlrev_b32 v13, {shift}, v{vL16}\nv_mov_b32 v14, s{sTAG}\nv_mov_b32 v15, s{sTAG+1}")
    k.wait(vm=last_store)
    k("s_mov_b64 exec, 0xff")
    k.vm(f"buffer_store_dwordx2 v[14:15], v13, {srd(sWS)}, s{sF} offen sc1")
    k("s_mov_b64 exec, -1")

def rb_128(k):
    k(f"s_lshl_b32 s{sT0}, s{sC4}, 2\ns_lshl_b32 s{sRB}, s{sG}, 3\ns_add_u32 s{sRB}, s{sRB}, s{sT0}\ns_add_u32 s{sRB}, s{sRB}, s{sW}")

def store_x(k, acc, pk, L, p, sc=""):
    k(f"s_add_u32 s{sT1}, s{sDST}, {XF}")
    k.vm(f"buffer_store_dwordx4 {vr(pk)}, v{vL16}, {srd(sWS)}, s{sT1} offen{sc}")
    k.vm(f"buffer_store_dwordx4 {vr(pk+4)}, v{vL16}, {srd(sWS)}, s{sT1} offen offset:1024{sc}")
    k(f"v_add_f32 v10, v{acc}, v{acc+1}\nv_mul_f32 v11, v{acc}, v{acc}\nv_add_f32 v8, v{acc+2}, v{acc+3}\nv_mul_f32 v9, v{acc+1}, v{acc+1}")
    k(f"v_fmac_f32 v11, v{acc+2}, v{acc+2}\nv_fmac_f32 v9, v{acc+3}, v{acc+3}")
    for i in range(4, 16, 2):
        k(f"v_add_f32 v10, v10, v{acc+i}\nv_fmac_f32 v11, v{acc+i}, v{acc+i}\nv_add_f32 v8, v8, v{acc+i+1}\nv_fmac_f32 v9, v{acc+i+1}, v{acc+i+1}")
    k("v_add_f32 v10, v10, v8\nv_add_f32 v11, v11, v9")
    k(f"s_lshr_b32 s{sT1}, s{sDST}, 2\ns_add_u32 s{sT1}, s{sT1}, {SX}")
    k(f"v_lshrrev_b32 v12, 1, v{vL16}")
    ts = k.vm(f"buffer_store_dwordx2 v[10:11], v12, {srd(sWS)}, s{sT1} offen{sc}")
    k(f"s_lshr_b32 s{sF}, s{sDST}, 8\ns_add_u32 s{sF}, s{sF}, {FLOC(L, p)}")
    publish_local(k, ts, force_global=bool(sc))

def rowmajor_addr(k, va, s_out):
    k(f"v_and_b32 v{va}, 31, v0\nv_lshlrev_b32 v{va}, 10, v{va}\nv_bfe_u32 v{va+1}, v0, 5, 1\nv_lshlrev_b32 v{va+1}, 4, v{va+1}\nv_add_u32 v{va}, v{va}, v{va+1}")
    k(f"s_and_b32 s{s_out}, s{sDST}, 0xffff8000\ns_bfe_u32 s{sT3}, s{sDST}, 0x5000a\ns_lshl_b32 s{sT3}, s{sT3}, 5\ns_add_u32 s{s_out}, s{s_out}, s{sT3}")

sU = 96
def pack_decode(k):
    nm = "pk"; u = f"s{sU}"
    k(f"s_min_u32 s83, {u}, 231")
    u = "s83"
    k(f"s_and_b32 s90, s{sW}, 1\ns_lshr_b32 s91, s{sW}, 1")
    k(f"s_cmp_lt_u32 {u}, 48\ns_cbranch_scc1 {nm}_q")
    k(f"s_cmp_lt_u32 {u}, 160\ns_cbranch_scc1 {nm}_u")
    k(f"s_cmp_lt_u32 {u}, 176\ns_cbranch_scc1 {nm}_o")
    k(f"s_sub_u32 s84, {u}, 176\ns_lshl_b32 s84, s84, 2\ns_add_u32 s84, s84, s{sW}")
    k("s_and_b32 s85, s84, 15\ns_lshr_b32 s86, s84, 4")
    k("s_lshl_b32 s87, s85, 6")
    k("s_add_u32 s74, s72, s87\ns_addc_u32 s75, s73, 0\ns_mov_b32 s76, s74\ns_mov_b32 s77, s75")
    k("s_mov_b32 s78, 1024\ns_lshl_b32 s79, s86, 7")
    k(f"s_mul_i32 s80, s85, 14\ns_add_u32 s80, s80, s86\ns_lshl_b32 s80, s80, 13\ns_add_u32 s80, s80, {WD}\ns_mov_b32 s81, 1024\ns_mov_b32 s82, {DUMP}")
    k(f"s_branch {nm}_go")
    k.label(f"{nm}_o")
    k(f"s_sub_u32 s85, {u}, 160\ns_lshr_b32 s88, s85, 3\ns_and_b32 s85, s85, 7")
    k("s_lshl_b32 s87, s85, 1\ns_add_u32 s87, s87, s90\ns_lshl_b32 s87, s87, 6")
    k("s_add_u32 s74, s66, s87\ns_addc_u32 s75, s67, 0\ns_mov_b32 s76, s74\ns_mov_b32 s77, s75")
    k("s_mov_b32 s78, 1024\ns_lshl_b32 s79, s88, 1\ns_add_u32 s79, s79, s91\ns_lshl_b32 s79, s79, 7")
    k("s_lshl_b32 s89, s91, 15\ns_xor_b32 s90, s90, s88\ns_lshl_b32 s88, s88, 1\ns_add_u32 s90, s90, s88\ns_lshl_b32 s90, s90, 10")
    k(f"s_mul_i32 s80, s85, {WO_STR}\ns_add_u32 s80, s80, s89\ns_add_u32 s80, s80, s90\ns_add_u32 s80, s80, {WO}")
    k(f"s_mov_b32 s81, 4096\ns_mov_b32 s82, {DUMP}")
    k(f"s_branch {nm}_go")
    k.label(f"{nm}_u")
    k(f"s_sub_u32 s85, {u}, 48\ns_mul_i32 s84, s85, 2341\ns_lshr_b32 s84, s84, 16\ns_mul_i32 s86, s84, 28\ns_sub_u32 s85, s85, s86")
    k(f"s_lshl_b32 s85, s85, 2\ns_add_u32 s85, s85, s{sW}\ns_lshl_b32 s87, s85, 5")
    k("s_add_u32 s74, s68, s87\ns_addc_u32 s75, s69, 0")
    k("s_add_u32 s76, s70, s87\ns_addc_u32 s77, s71, 0\ns_sub_u32 s76, s76, 32\ns_subb_u32 s77, s77, 0")
    k("s_mov_b32 s78, 3584")
    k("s_mul_i32 s86, s85, 9363\ns_lshr_b32 s86, s86, 16\ns_mul_i32 s88, s86, 7\ns_sub_u32 s88, s85, s88")
    k(f"s_mul_i32 s91, s86, {WU_STR}\ns_add_u32 s91, s91, {WU}\ns_lshl_b32 s89, s88, 10\ns_add_u32 s91, s91, s89")
    k(f"s_cmp_lt_u32 s88, 4\ns_cselect_b32 s81, 4, 3\ns_cselect_b32 s89, 0, {128*KB}\ns_lshl_b32 s81, s81, 10\ns_add_u32 s91, s91, s89")
    k(f"s_branch {nm}_ext")
    k.label(f"{nm}_q")
    k(f"s_cmp_ge_u32 {u}, 24\ns_cselect_b32 s84, 2, 0\ns_cselect_b32 s86, 24, 0\ns_add_u32 s84, s84, s91\ns_sub_u32 s85, {u}, s86")
    k("s_lshl_b32 s85, s85, 1\ns_add_u32 s85, s85, s90\ns_and_b32 s86, s85, 15\ns_lshr_b32 s88, s85, 4")
    k("s_lshl_b32 s87, s85, 6\ns_lshl_b32 s89, s88, 10")
    k("s_add_u32 s74, s64, s87\ns_addc_u32 s75, s65, 0\ns_mov_b32 s76, s74\ns_mov_b32 s77, s75")
    k("s_mov_b32 s78, 3072")
    k(f"s_sub_u32 s89, s89, 1024\ns_cmp_eq_u32 s88, 0\ns_cselect_b32 s89, {66*KB}, s89\ns_cselect_b32 s81, 1, 2\ns_lshl_b32 s81, s81, 10")
    k(f"s_mul_i32 s91, s86, {WQ_STR}\ns_add_u32 s91, s91, s89\ns_add_u32 s91, s91, {WQ}")
    k.label(f"{nm}_ext")
    k("s_lshl_b32 s79, s84, 7")
    k("s_lshl_b32 s89, s81, 5\ns_add_u32 s82, s91, s89\ns_lshr_b32 s89, s84, 1\ns_lshl_b32 s89, s89, 9\ns_add_u32 s82, s82, s89")
    k("s_and_b32 s89, s84, 1\ns_lshl_b32 s89, s89, 3\ns_add_u32 s82, s82, s89")
    k("s_lshl_b32 s89, s81, 3\ns_mul_i32 s89, s89, s84\ns_add_u32 s80, s91, s89")
    k.label(f"{nm}_go")
    k(f"s_cmp_ge_u32 s{sU}, 232\ns_cselect_b32 s80, {DUMP}, s80")
    k("v_bfe_u32 v4, v0, 2, 4\nv_add_u32 v4, s79, v4\nv_mul_lo_u32 v4, v4, s78")
    k("v_and_b32 v13, 3, v0\nv_lshlrev_b32 v13, 4, v13\nv_add_u32 v4, v4, v13")
    k(f"s_lshl_b32 s83, s78, 4\ns_lshl_b32 s84, s{sW}, 14\ns_add_u32 s84, s84, {96*KB}")
    k("s_mov_b32 s86, 0x33333333\ns_mov_b32 s87, 0x33333333\ns_mov_b32 s88, 0xcccccccc\ns_mov_b32 s89, 0xcccccccc")
def pack_issue(k, i, sbase):
    k(f"s_add_u32 m0, s{sbase}, {i*KB}")
    k("s_mov_b64 exec, s[86:87]")
    k.vm("global_load_lds_dwordx4 v4, s[74:75]")
    k("s_mov_b64 exec, s[88:89]")
    t = k.vm("global_load_lds_dwordx4 v4, s[76:77]")
    k("s_mov_b64 exec, -1")
    k("v_add_u32 v4, s83, v4")
    return t
def tr_addr(k, v, t):
    k(f"v_bfe_u32 v{v}, v0, 5, 1\nv_lshlrev_b32 v{v}, 9, v{v}")
    k(f"v_bfe_u32 v{t}, v0, 2, 2\nv_lshlrev_b32 v{t}, 6, v{t}\nv_add_u32 v{v}, v{v}, v{t}")
    k(f"v_bfe_u32 v{t}, v0, 4, 1\nv_lshlrev_b32 v{t}, 5, v{t}\nv_add_u32 v{v}, v{v}, v{t}")
    k(f"v_and_b32 v{t}, 1, v0\nv_lshlrev_b32 v{t}, 4, v{t}\nv_add_u32 v{v}, v{v}, v{t}")
    k(f"v_bfe_u32 v{t}, v0, 1, 1\nv_lshlrev_b32 v{t}, 3, v{t}\nv_add_u32 v{v}, v{v}, v{t}")
def ext_pair(src, dst, t0):
    return [f"v_mov_b32 v{t0}, v{src}", f"v_permlane32_swap_b32 v{src}, v{t0}", f"v_add_f32 v{src}, v{src}, v{t0}",
            f"v_cvt_pk_bf16_f32 v{dst+1}, v{src}, 0", f"v_lshlrev_b32 v{t0}, 16, v{dst+1}", f"v_sub_f32 v{src}, v{src}, v{t0}",
            f"v_cvt_pk_bf16_f32 v{dst}, v{t0}, v{src}"]
class Pack:
    def __init__(self, k): self.k = k
    def issue(self, i): self.d = pack_issue(self.k, i, 84)
    def reads(self):
        k = self.k
        k.wait(vm=self.d)
        for i in range(8):
            k.lg(f"ds_read_b64_tr_b16 {ar(160+4*i,2)}, v255 offset:{i*KB}")
            k.lg(f"ds_read_b64_tr_b16 {ar(162+4*i,2)}, v255 offset:{i*KB+256}")
        k.wait_all(vm=False)
        for i in range(8):
            k(f"v_mfma_f32_32x32x16_bf16 {ar(196,16)}, {ar(192)}, {ar(160+4*i)}, {'0' if i == 0 else ar(196,16)}")
    def stores(self):
        k = self.k
        for i in range(8):
            k.vm(f"buffer_store_dwordx4 {ar(160+4*i)}, v{vL16}, {srd(sWS)}, s80 offen sc1")
            k("s_add_u32 s80, s80, s81")
        k("v_accvgpr_read_b32 v13, a196")
        k("v_cvt_pk_bf16_f32 v15, v13, 0\nv_lshlrev_b32 v14, 16, v15\nv_sub_f32 v13, v13, v14\nv_cvt_pk_bf16_f32 v14, v14, v13")
        k("s_mov_b32 exec_hi, 0")
        self.s = k.vm(f"buffer_store_dwordx2 v[14:15], v{vL16}, {srd(sWS)}, s82 offen sc1")
        k("s_mov_b64 exec, -1")
    def pub(self):
        k = self.k
        k.wait(vm=self.s)
        k("s_barrier")
        pack_publish(k)
def pack_publish(k):
    l = k.newlabel('pkp')
    k(f"s_cmp_lg_u32 s{sW}, 0\ns_cbranch_scc1 {l}")
    k(f"s_lshl_b32 s{sF}, s{sU}, 3\ns_add_u32 s{sF}, s{sF}, {FPK}")
    publish_8(k, None, 7)
    k.vm_issued -= 1
    k.label(l)

def qkv_consts(vT, vRS, vR):
    return [f"v_cvt_pk_bf16_f32 v{vT}, v{vRS}, 0", f"v_lshlrev_b32 v{vT+1}, 16, v{vT}", f"v_sub_f32 v{vT+2}, v{vRS}, v{vT+1}",
            f"v_cvt_pk_bf16_f32 v{vT}, v{vT+1}, v{vT+2}", f"v_mov_b32 v{vT+1}, 0", f"v_mov_b32 v{vT+2}, 0", f"v_mov_b32 v{vT+3}, 0",
            f"v_cmp_gt_u32 vcc, 512, v{vL16}", f"v_mov_b32 v{vT+4}, 0x3f803f80", f"v_cndmask_b32 v{vT+4}, 0, v{vT+4}, vcc",
            f"v_mov_b32 v{vT+5}, 0", f"v_mov_b32 v{vT+6}, 0", f"v_mov_b32 v{vT+7}, 0",
            f"v_mul_f32 v{vRS+1}, {hex(f2u(0.25*LOG2E))}, v{vRS}",
            "v_bfe_u32 v12, v0, 4, 1", "v_lshlrev_b32 v12, 17, v12", "v_and_b32 v13, 15, v0", "v_lshlrev_b32 v13, 4, v13", "v_add_u32 v12, v12, v13",
            "v_bfe_u32 v13, v0, 5, 1", "v_lshlrev_b32 v13, 8, v13", "v_add_u32 v12, v12, v13",
            f"v_mfma_f32_32x32x16_bf16 {vr(vR,16)}, {vr(vT)}, {vr(vT+4)}, 0"]
def qk_tile(a, dst, sc, fl, p0):
    o = []
    sb, hs = (sB, KB) if dst == QF else (sCc, 128*KB)
    for half in range(2):
        p = p0 + 4*half
        for j in range(4):
            r = a + 8*half + 2*j
            o += [f"v_mul_f32 v{r}, v{r}, v{sc}", f"v_mul_f32 v{r+1}, v{r+1}, v{sc}", f"v_cvt_pk_bf16_f32 v{p+j}, v{r}, v{r+1}"]
        o += [f"s_add_u32 s{sT2}, s{sb}, {dst + half*hs}", f"buffer_store_dwordx4 {vr(p)}, v{vL16}, {srd(sWS)}, s{sT2} offen{fl}"]
    return o
def v_tile(a, L, vR, p0):
    o = [f"s_add_u32 s{sT2}, s{sCc}, {KVF(L) + KB}"]
    for u in range(2):
        p = p0 + 4*u
        for j in range(4):
            r = a + 8*u + 2*j; q = vR + 8*u + 2*j
            o += [f"v_mul_f32 v{r}, v{r}, v{q}", f"v_mul_f32 v{r+1}, v{r+1}, v{q+1}", f"v_cvt_pk_bf16_f32 v{p+j}, v{r}, v{r+1}"]
        o.append(f"buffer_store_dwordx4 {vr(p)}, v12, {srd(sWS)}, s{sT2} offen offset:{u*512} sc1")
    return o
def kv_flag(k, L, tkv):
    k(f"s_lshl_b32 s{sF}, s{sA}, 6\ns_add_u32 s{sF}, s{sF}, s{sRB}\ns_lshl_b32 s{sF}, s{sF}, 3\ns_add_u32 s{sF}, s{sF}, {FKV(L)}")
    publish_8(k, tkv, 9)
def q_flag(k, L, tq):
    k(f"s_lshr_b32 s{sF}, s{sRB}, 3\ns_lshl_b32 s{sF}, s{sF}, 4\ns_add_u32 s{sF}, s{sF}, s{sA}\ns_lshl_b32 s{sF}, s{sF}, 3\ns_and_b32 s{sT1}, s{sRB}, 7\ns_add_u32 s{sF}, s{sF}, s{sT1}\ns_lshl_b32 s{sF}, s{sF}, 3\ns_add_u32 s{sF}, s{sF}, {FLOC(L,5)}")
    publish_local(k, tq, force_global=(L == 0))

WARM = True
LIN_AT = 3
LIN_U = True
Q0_ROT = True
Q0_MARKS = False
Q0_MARKJ = ()
Q0_SCHED = ((2, 3), (4, 5), (6,), (7,), (), (), (), ())
LATE_AT = 1
Q0_UP = 2
PK_AT = (5, 5, 5, 5, 6, 6, 6, 6)
def ph_qkv0(k, late):
    vX, vACC, vST, vEXT, vRS, vT, vR = 16, 144, 192, 8, 6, 224, 232
    vXA, vWA, vXR, vTR, vTW, vCS, vCW, vONE = 10, 12, 196, 200, 202, 204, 208, 220
    sXS, sWR, sXL, sWL = 60, 56, sD, sE
    k(f"s_lshr_b32 s{sRB}, s{sG}, 1\ns_lshl_b32 s{sRB}, s{sRB}, 2\ns_add_u32 s{sRB}, s{sRB}, s{sC3}\ns_lshl_b32 s{sRB}, s{sRB}, 2\ns_add_u32 s{sRB}, s{sRB}, s{sW}")
    k(f"s_and_b32 s{sA}, s{sG}, 1\ns_lshl_b32 s{sA}, s{sA}, 3\ns_and_b32 s{sT0}, s{sC}, 7\ns_add_u32 s{sA}, s{sA}, s{sT0}")
    k(f"v_bfe_u32 v{vXA}, v0, 3, 3\nv_lshlrev_b32 v{vXA}, 10, v{vXA}\nv_and_b32 v13, 7, v0\nv_bfe_u32 v14, v0, 4, 2\nv_xor_b32 v13, v13, v14")
    k(f"v_lshlrev_b32 v13, 4, v13\nv_add_u32 v{vXA}, v{vXA}, v13\nv_xor_b32 v{vXA+1}, 64, v{vXA}")
    k(f"v_bfe_u32 v{vWA}, v0, 2, 4\nv_mul_u32_u24 v{vWA}, 3072, v{vWA}\nv_and_b32 v13, 3, v0\nv_lshlrev_b32 v13, 4, v13\nv_add_u32 v{vWA}, v{vWA}, v13")
    k(f"s_lshl_b32 s{sX}, s{sRB}, 15")
    k(f"s_mul_i32 s{sX2}, s{sW}, 49152\ns_lshl_b32 s{sT0}, s{sA}, 6\ns_add_u32 s{sX2}, s{sX2}, s{sT0}")
    k(f"s_lshl_b32 s{sXL}, s{sW}, 14\ns_add_u32 s{sXL}, s{sXL}, {96*KB}\ns_mul_i32 s{sWL}, s{sW}, 3072")
    k("s_waitcnt lgkmcnt(0)")
    if Q0_MARKS: mark(k, 'karg')
    k(f"s_mov_b32 s{sWR}, s64\ns_and_b32 s{sWR+1}, s65, 0xffff\ns_mov_b32 s{sWR+2}, {512*3072}\ns_mov_b32 s{sWR+3}, 0x20000")
    k(f"s_and_b32 s{sXS+1}, s{sXS+1}, 0xffff\ns_mov_b32 s{sXS+2}, {2*MB}\ns_mov_b32 s{sXS+3}, 0x20000")
    ct = {}; cn = {j: 0 for j in range(8)}
    k(f"s_lshl_b32 s{sCc}, s{sC3}, 1\ns_add_u32 s{sCc}, s{sCc}, s{sC}")
    def rot(j):
        k(f"s_add_u32 s{sT3}, s{sCc}, {j}\ns_and_b32 s{sT3}, s{sT3}, {7 if Q0_ROT else 0}")
        if not Q0_ROT: k(f"s_mov_b32 s{sT3}, {j}")
        k(f"s_lshl_b32 s{sS0}, s{sT3}, 7\ns_add_u32 s{sS0}, s{sS0}, s{sX}")
        k(f"s_mul_i32 s{sS1}, s{sT3}, {4*49152}\ns_add_u32 s{sS1}, s{sS1}, s{sX2}")
    def ldW(j, t):
        k(f"s_add_u32 m0, s{sWL}, {(12*j + t)*KB}\ns_add_u32 s{sT2}, s{sS1}, {((t+1) % 3)*1024}")
        ct[j] = k.vm(f"buffer_load_dwordx4 v{vWA}, {srd(sWR)}, s{sT2} offen lds"); cn[j] += 1
    def ldX(j, i):
        if i == 0: rot(j)
        k(f"s_add_u32 m0, s{sXL}, {(j & 3)*4*KB + i*KB}\ns_add_u32 s{sT2}, s{sS0}, {i*8192}")
        ct[j] = k.vm(f"buffer_load_dwordx4 v{vXA + (i & 1)}, {srd(sXS)}, s{sT2} offen lds"); cn[j] += 1
    def chunk_loads(j):
        return [lambda i=i: ldX(j, i) for i in range(4)] + [lambda t=t: ldW(j, t) for t in range(3)]
    for j in range(Q0_UP):
        for f in chunk_loads(j): f()
        if j + 1 == LATE_AT: late(k)
    pack_decode(k)
    k(f"s_cmp_eq_u32 s{sW}, 0\ns_cselect_b64 s[90:91], s[68:69], s[70:71]")
    k(f"s_cmp_eq_u32 s{sW}, 2\ns_cselect_b64 s[90:91], s[72:73], s[90:91]")
    k(f"s_cmp_eq_u32 s{sW}, 3\ns_cselect_b64 s[90:91], s[66:67], s[90:91]\ns_cselect_b32 s{sT0}, 16, 56")
    k(f"s_mul_i32 s{sT1}, s{sT0}, s{sU}\ns_sub_u32 s{sT0}, s{sT0}, 1")
    k(f"v_and_b32 v254, 63, v0\nv_min_u32 v254, s{sT0}, v254\nv_add_u32 v254, s{sT1}, v254\nv_lshlrev_b32 v254, 7, v254")
    pk = G.pk = Pack(k)
    k(f"v_and_b32 v13, 31, v0\nv_bfe_u32 v14, v0, 1, 3\nv_bfe_u32 v15, v0, 5, 1\nv_xor_b32 v14, v14, v15\nv_lshlrev_b32 v14, 4, v14\nv_lshl_add_u32 v13, v13, 7, v14")
    for e in range(4):
        k(f"v_xor_b32 v{vXR+e}, {e*32}, v13\nv_add_u32 v{vXR+e}, s{sXL}, v{vXR+e}")
    tr_addr(k, vTR, 13)
    k(f"v_add_u32 v{vTR+1}, {48*KB}, v{vTR}\nv_add_u32 v{vTW}, s{sWL}, v{vTR}\nv_add_u32 v{vTW+1}, {48*KB}, v{vTW}")
    k(f"v_mov_b32 v{vONE}, 0x3f803f80\nv_add_u32 v255, s84, v{vTR}")
    for r in range(192, 196): k(f"v_accvgpr_write_b32 a{r}, v{vONE}")
    for r in list(range(vST, vST+4)) + list(range(vCS, vCS+3)): k(f"v_mov_b32 v{r}, 0")
    def reads(j):
        o = []
        for e in range(4):
            o.append(f"ds_read_b128 {vr(vX + 16*j + 4*e)}, v{vXR+e} offset:{(j & 3)*4*KB}")
        for t in range(3):
            off = (12*(j & 3) + t)*KB
            o.append(f"ds_read_b64_tr_b16 {vr(vCW+4*t,2)}, v{vTW + (j >> 2)} offset:{off}")
            o.append(f"ds_read_b64_tr_b16 {vr(vCW+4*t+2,2)}, v{vTW + (j >> 2)} offset:{off+256}")
        for b in range(12):
            off = (12*(j & 3) + b)*KB; r = 48*(j & 1) + 4*b
            o.append(f"ds_read_b64_tr_b16 {ar(r,2)}, v{vTR + (j >> 2)} offset:{off}")
            o.append(f"ds_read_b64_tr_b16 {ar(r+2,2)}, v{vTR + (j >> 2)} offset:{off+256}")
        return o
    def dots(j):
        for i in range(16):
            r = vX + 16*j + i
            k(f"v_dot2c_f32_bf16 v{vST + 2*(i & 1)}, v{vONE}, v{r}\nv_dot2c_f32_bf16 v{vST + 1 + 2*(i & 1)}, v{r}, v{r}")
        for i in range(4):
            for t in range(3): k(f"v_dot2c_f32_bf16 v{vCS+t}, v{vONE}, v{vCW+4*t+i}")
    def xid():
        k(f"s_add_u32 s{sTAG}, s{sTAG}, 0x7f4a7c15\ns_addc_u32 s{sTAG+1}, s{sTAG+1}, 0x9e3779b9")
        k(f"s_lshl_b32 s{sF}, s{sU}, 3\ns_add_u32 s{sF}, s{sF}, {XID}")
        k(f"s_xor_b32 s{sT0}, s{sTAG}, s{sXCC}\nv_mov_b32 v14, s{sT0}\nv_mov_b32 v15, s{sTAG+1}\nv_mov_b32 v13, 0")
        k("s_mov_b64 exec, 1")
        k.vm(f"buffer_store_dwordx2 v[14:15], v13, {srd(sWS)}, s{sF} offen sc1")
        k("s_mov_b64 exec, -1")
    def lin_touch():
        k.vm("global_load_dword v5, v254, s[90:91]")
    side = []
    tpk = [None]
    if Q0_MARKS: mark(k, 'iss')
    k.wait(vm=ct[0])
    if Q0_MARKS: mark(k, 'w0')
    k("s_barrier")
    mark(k, 'd0')
    rl = reads(0)
    for x in rl[:10]: t10 = k.lg(x)
    for x in rl[10:]: k.lg(x)
    k.wait(lg=t10)
    dots(0)
    for j in range(8):
        for c_ in Q0_SCHED[j]:
            assert c_ - 4 <= j
            side += chunk_loads(c_)
        if j == 1: side.append(xid)
        side += [lambda i=i: pk.issue(i) for i in range(8) if PK_AT[i] == j]
        if j == LIN_AT: side.append(lin_touch)
        k.wait_all(vm=False)
        rl = []
        if j < 7:
            assert cn[j+1] == 7
            k.wait(vm=ct[j+1]); k("s_barrier")
            if j in Q0_MARKJ: mark(k, f'c{j+1}')
            rl = reads(j + 1)
        t10 = None; nr = 0
        for b in range(12):
            ks = 4*j + b // 3; t = b % 3
            acc = vr(vACC + 16*t, 16); w = ar(48*(j & 1) + 4*b); x = vr(vX + 4*ks)
            A, B = (x, w) if t == 1 else (w, x)
            k(f"v_mfma_f32_32x32x16_bf16 {acc}, {A}, {B}, {'0' if ks == 0 else acc}")
            if ks == 0 and t == 0: mark(k, 'm0')
            for _ in range(3):
                if rl:
                    t_ = k.lg(rl.pop(0)); nr += 1
                    if nr == 10: t10 = t_
            if side: side.pop(0)()
            if len(side) > 11 - b: side.pop(0)()
        if j < 7:
            assert not rl
            k.wait(lg=t10)
            dots(j + 1)
    while side: side.pop(0)()
    mark(k, 'loop')
    k(f"s_lshr_b32 s{sT0}, s{sW}, 1\ns_lshl_b32 s{sT0}, s{sT0}, 9\ns_and_b32 s{sT1}, s{sW}, 1\ns_lshl_b32 s{sT1}, s{sT1}, 3\ns_add_u32 s{sT0}, s{sT0}, s{sT1}")
    k(f"v_and_b32 v13, 0x1f0, v{vL16}\nv_add_u32 v13, s{sT0}, v13")
    for t in range(3):
        for x in ext_pair(vCS+t, vCW+2*t, 14): k(x)
        k.lg(f"ds_write_b64 v13, {vr(vCW+2*t,2)} offset:{t*KB}")
    k(f"v_add_f32 v{vST}, v{vST}, v{vST+2}\nv_add_f32 v{vST+1}, v{vST+1}, v{vST+3}")
    fin = fin_stats(vST, vEXT, vRS)[30:] + qkv_consts(vT, vRS, vR)
    for x in fin[:18]: k(x)
    k.wait_all(vm=False)
    k("s_barrier")
    for t in range(3): k.lg(f"ds_read_b128 {vr(vCW+4*t)}, v{vL16} offset:{t*KB}")
    for x in fin[18:]: k(x)
    k.wait_all(vm=False)
    for t in range(3):
        c = vCW + 4*t
        acc = vr(vACC + 16*t, 16)
        A, B = (vr(vEXT), vr(c)) if t == 1 else (vr(c), vr(vEXT))
        k(f"v_mfma_f32_32x32x16_bf16 {acc}, {A}, {B}, {acc}")
    k(f"s_lshl_b32 s{sCc}, s{sA}, 18\ns_lshl_b32 s{sT1}, s{sRB}, 11\ns_add_u32 s{sCc}, s{sCc}, s{sT1}")
    k(f"s_mul_i32 s{sB}, s{sRB}, {112*KB}\ns_lshl_b32 s{sT1}, s{sA}, 11\ns_add_u32 s{sB}, s{sB}, s{sT1}")
    t_ = None
    for x in qk_tile(vACC, KVF(0), vRS, " sc1", vX) + v_tile(vACC+16, 0, vR, vX+8) + qk_tile(vACC+32, QF, vRS+1, " sc1", vX+16):
        if x.startswith('buffer'): t_ = k.vm(x)
        else: k(x)
    mark(k, 'st')
    return t_, t_

def ph_qkv(k, L, ring, b0):
    vX, vACC, vST, vEXT, vRS, vT, vR = 16, 144, 192, 8, 6, 224, 232
    rb_128(k)
    k(f"s_and_b32 s{sA}, s{sC}, 15")
    k(f"s_lshl_b32 s{sX}, s{sRB}, 15\ns_add_u32 s{sX}, s{sX}, {XF}")
    set_lds_bases(k)
    ops = []
    b = b0
    for tiles in ((0, 1), (2,)):
        for ks in range(33):
            for t in tiles:
                ops.append(dict(b=b, bmin=b, bmax=b, xi=(ks if ks < 32 else None), x=(vr(vX+4*ks) if ks < 32 else vr(vEXT)),
                                acc=vr(vACC+16*t, 16), swap=(t == 1), first=(ks == 0)))
                b += 1
    xq = XLoader(k, 32, lambda i: vr(vX+4*i), lin_src(k))
    res = {}
    se = stats_emitters(k, vST, 12, res)
    k(f"s_lshl_b32 s{sCc}, s{sA}, 18\ns_lshl_b32 s{sT1}, s{sRB}, 11\ns_add_u32 s{sCc}, s{sCc}, s{sT1}")
    k(f"s_mul_i32 s{sB}, s{sRB}, {112*KB}\ns_lshl_b32 s{sT1}, s{sA}, 11\ns_add_u32 s{sB}, s{sB}, s{sT1}")
    k(f"s_lshl_b32 s{sF}, s{sRB}, 7\ns_add_u32 s{sF}, s{sF}, {FLOC(L-1, 4)}")
    g = Gemm(k, ring, ops, {0})
    g.start()
    poll16(k)
    xq.issue_n(6)
    for e in se: e()
    fin = fin_stats(vST, vEXT, vRS) + qkv_consts(vT, vRS, vR)
    epi = qk_tile(vACC, KVF(L), vRS, " sc1", vST) + v_tile(vACC+16, L, vR, vST+16)
    st = dict(i=0, j=0, t=None)
    def put(x):
        if x.startswith('buffer'): st['t'] = k.vm(x)
        else: k(x)
    def filler(m):
        if 30 <= m < 64:
            if st['i'] == 0: k.wait(vm=res['t'])
            for _ in range(3):
                if st['i'] < len(fin): k(fin[st['i']]); st['i'] += 1
        if m >= 70:
            for _ in range(3):
                if st['j'] < len(epi): put(epi[st['j']]); st['j'] += 1
    g.run(xq, n0=0, filler=filler)
    assert st['i'] == len(fin) and st['j'] == len(epi)
    tkv = st['t']
    for x in qk_tile(vACC + 32, QF, vRS + 1, "", vST+8): put(x)
    mark(k, 'st')
    return tkv, st['t']

def code_touch(k, vd, skip=0):
    if not CODE_TOUCH: return
    k(f"s_getpc_b64 s[{sPC}:{sPC+1}]\ns_add_u32 s{sPC}, s{sPC}, s{sCT}\ns_addc_u32 s{sPC+1}, s{sPC+1}, 0")
    k.vm(f"global_load_dword v{vd}, v{vL16}, s[{sPC}:{sPC+1}] offset:{skip}")

def ph_att(k, L, ring, tkv, tq):
    if L: kv_flag(k, L, tkv)
    vO, vS0, vKV, aQ = 16, 144, 208, aWB
    NS = 4
    vS = [vS0 + 16*i for i in range(NS)]
    vK, vV, vIDX, vL128 = 6, 7, 8, 9
    sK, sHD = sB, sE
    k(f"s_lshl_b32 s{sHD}, s{sC}, 16")
    k(f"s_lshl_b32 s{sT0}, s{sC}, 17\ns_add_u32 s{sT0}, s{sT0}, s{sW4K}\ns_add_u32 s{sT0}, s{sT0}, {KVF(L)}")
    k("v_and_b32 v10, 0x33, v0\nv_bfe_u32 v11, v0, 2, 1\nv_lshlrev_b32 v11, 3, v11\nv_or_b32 v10, v10, v11")
    k(f"v_bfe_u32 v11, v0, 3, 1\nv_lshlrev_b32 v11, 2, v11\nv_or_b32 v10, v10, v11\nv_lshl_add_u32 v{vK}, v10, 4, s{sT0}")
    k(f"v_and_b32 v10, 15, v0\nv_bfe_u32 v11, v0, 5, 1\nv_lshlrev_b32 v11, 4, v11\nv_add_u32 v10, v10, v11\nv_lshl_add_u32 v{vV}, v10, 4, s{sT0}")
    k(f"v_mov_b32 v{vIDX}, 0xdddddddd\nv_lshlrev_b32 v{vL128}, 3, v{vL16}")
    k(f"s_lshl_b32 s{sK}, s{sG}, 14")
    k("v_and_b32 v10, 27, v0\nv_cmp_eq_u32 vcc, 16, v10\nv_mov_b32 v11, 0x3f803f80\nv_cndmask_b32 v11, 0, v11, vcc")
    k("v_mov_b32 v144, v11")
    k(f"s_lshr_b32 s{sT0}, s{sC}, 1\ns_lshl_b32 s{sT0}, s{sT0}, 9")
    k(f"s_lshl_b32 s{sT2}, s{sG}, 13\ns_add_u32 s{sD}, s{sT0}, s{sT2}\ns_add_u32 s{sD}, s{sD}, {FKV(L)}")
    k(f"s_lshl_b32 s{sT2}, s{sG}, 6\ns_lshl_b32 s{sT3}, s{sW}, 4\ns_add_u32 s{sT3}, s{sT3}, s{sT2}\ns_add_u32 s{sT3}, s{sT3}, s{sD}")
    k(f"s_lshl_b32 s{sT2}, s{sG}, 10\ns_lshr_b32 s{sT0}, s{sT0}, 3\ns_add_u32 s{sT2}, s{sT2}, s{sT0}\ns_add_u32 s{sT2}, s{sT2}, {FLOC(L,5)}")
    k(f"v_and_b32 v12, 1, v0\nv_lshlrev_b32 v12, 3, v12\nv_add_u32 v12, s{sT3}, v12")
    k(f"v_and_b32 v11, 7, v0\nv_lshlrev_b32 v11, 3, v11\nv_add_u32 v11, s{sT2}, v11")
    k(f"v_cmp_gt_u32 vcc, 512, v{vL16}\nv_cndmask_b32 v11, v11, v12, vcc")
    k(f"v_bfe_u32 v10, v0, 1, 3\nv_lshlrev_b32 v10, 6, v10\nv_and_b32 v12, 1, v0\nv_lshlrev_b32 v12, 3, v12\nv_add_u32 v12, v10, v12")
    k(f"s_lshl_b32 s{sT3}, s{sW}, 4\ns_add_u32 s{sD}, s{sD}, s{sT3}")
    k(f"s_mul_i32 s{sT2}, s{sG}, {8*112*KB}\ns_lshl_b32 s{sT3}, s{sC}, 10\ns_add_u32 s{sT2}, s{sT2}, s{sT3}\ns_add_u32 s{sT2}, s{sT2}, {QF}")
    sQ = list(range(64, 72))
    for p in range(4):
        k(f"s_xor_b32 s{sT3}, s{sW}, {p}\ns_mul_i32 s{sT3}, s{sT3}, {2*112*KB}\ns_add_u32 s{sQ[2*p]}, s{sT3}, s{sT2}\ns_add_u32 s{sQ[2*p+1]}, s{sQ[2*p]}, {112*KB}")
    sTH, sTW, sFO = 72, 73, 76
    k(f"s_lshl_b32 s{sT3}, s{sU}, 2\ns_add_u32 s{sT3}, s{sT3}, s{sW}")
    k(f"s_mul_i32 s{sTH}, s{sT3}, {7*KB}\ns_add_u32 s{sTH}, s{sTH}, {HF}")
    k(f"s_lshl_b32 s{sT0}, s{sT3}, 11\ns_add_u32 s{sT0}, s{sT0}, {XF}\ns_lshl_b32 s{sT1}, s{sT3}, 9\ns_add_u32 s{sT1}, s{sT1}, {SX}")
    k(f"v_and_b32 v3, 0x780, v{vL128}\nv_add_u32 v3, s{sT0}, v3\nv_and_b32 v4, 0x180, v{vL128}\nv_add_u32 v4, s{sT1}, v4\nv_cndmask_b32 v3, v4, v3, vcc")
    k(f"s_lshl_b32 s{sTW}, s{sC4}, 2\ns_add_u32 s{sTW}, s{sTW}, s{sW}\ns_mul_i32 s{sTW}, s{sTW}, {TOUCH_KBS[L] * KB // 8}")
    k(f"s_add_u32 s{sTW}, s{sTW}, s{sSEG+1}\ns_add_u32 s{sTW}, s{sTW}, {32*KB}")
    k(f"s_and_b32 s{sCT}, s{sT3}, 31\ns_lshl_b32 s{sCT}, s{sCT}, 10")
    k(f"s_lshl_b32 s{sFO}, s{sG}, 2\ns_add_u32 s{sFO}, s{sFO}, s{sW}\ns_lshl_b32 s{sFO}, s{sFO}, 5\ns_add_u32 s{sFO}, s{sFO}, s{sC}\ns_lshl_b32 s{sFO}, s{sFO}, 3\ns_add_u32 s{sFO}, s{sFO}, {FLOC(L,0)}")
    for i in range(48, 128): k(f"v_mov_b32 v{vO+i}, 0")
    mark(k, 'pre')
    if L == 0: kv_flag(k, L, tkv)
    q_flag(k, L, tq)
    mark(k, 'flag')
    if L == 0: G.pk.reads()
    for b in range(4):
        for j in range(8): k(f"v_mov_b32 v{vKV+12*b+4+j}, v144")
    k(f"s_mov_b32 s{sF}, 0")
    poll(k, 11, 14)
    mark(k, 'poll')
    K = lambda t: vr(vKV + 12*(t % 4))
    V = lambda t, u: vr(vKV + 12*(t % 4) + 4 + 4*u)
    kt = {}; vt = {}
    def ldK(t):
        if t and (t & 1) == 0: k(f"s_add_u32 s{sK}, s{sK}, 0x4000\ns_and_b32 s{sK}, s{sK}, 0x1ffff")
        kt[t] = k.vm(f"buffer_load_dwordx4 {K(t)}, v{vK}, {srd(sWS)}, s{sK} offen offset:{(t & 1)*2*KB} sc1")
    def ldV(t):
        k(f"s_mov_b64 exec, s[{sMSK}:{sMSK+1}]")
        k.vm(f"buffer_load_dwordx4 {V(t,0)}, v{vV}, {srd(sWS)}, s{sK} offen offset:{(t & 1)*2*KB+KB} sc1")
        vt[t] = k.vm(f"buffer_load_dwordx4 {V(t,1)}, v{vV}, {srd(sWS)}, s{sK} offen offset:{(t & 1)*2*KB+KB+512} sc1")
        k("s_mov_b64 exec, -1")
    def ldKV(t):
        ldK(t); ldV(t); kt[t] = vt[t]
    ldK(0)
    qt = {}
    for s in range(8):
        qt[s] = k.vm(f"buffer_load_dwordx4 {ar(aQ+4*s)}, v{vL16}, {srd(sWS)}, s{sQ[s]} offen sc1")
        if s == 2: ldV(0)
    ldKV(1)
    ap2 = apoll1(k, 12, 10, sD)
    if L == 0: G.pk.stores()
    for i in range(48): k(f"v_mov_b32 v{vO+i}, 0")
    steps = [(t, q) for t in range(15) for q in range(8)] + [(15, q) for q in (2, 3, 4, 5, 6, 7, 0, 1)]
    n = len(steps)
    LA = NS - 1
    def qk(i):
        t, q = steps[i]
        k.wait(vm=max(kt[t], qt[q]) if t == 0 else kt[t])
        k(f"v_mfma_f32_32x32x16_bf16 {vr(vS[i % NS],16)}, {K(t)}, {ar(aQ+4*q)}, 0")
    def pv(i, u):
        t, q = steps[i]
        k.wait(vm=vt[t])
        k(f"v_smfmac_f32_32x32x32_bf16 {vr(vO+16*q,16)}, {V(t,u)}, {vr(vS[i % NS]+8*u,8)}, v{vIDX}")
    for i in range(LA): qk(i)
    mark(k, 'm0')
    ring.limit = 96
    jobs = {}
    def job(i, f, e=10): jobs.setdefault((i, e), []).append(f)
    job(0, lambda: code_touch(k, 5))
    job(P2_AT - 4, ap2.issue)
    job(P2_AT, lambda: (ap2.check(), ldKV(2), ldKV(3)))
    for t in range(1, 13): job(8*t, lambda t=t: ldKV(t + 3))
    if L == 0:
        job(PUB_AT, G.pk.pub)
        CHK_AT = PUB_AT + CHK_GAP
        apk = APoll(k, [f"buffer_load_dwordx4 {ar(0)}, v{vL16}, {srd(sWS)}, s{sX} offen sc1",
                        f"buffer_load_dwordx4 {ar(4)}, v{vL16}, {srd(sWS)}, s{sX} offen offset:1024 sc1",
                        f"buffer_load_dwordx2 v[14:15], v13, {srd(sWS)}, s{sX2} offen sc1"],
                    "\n".join([f"s_mov_b64 s[{sT2}:{sT3}], -1"] + sum(([f"v_accvgpr_read_b32 v10, a{2*j}", f"v_accvgpr_read_b32 v11, a{2*j+1}",
                        f"v_cmp_eq_u64 vcc, s[{sTAG}:{sTAG+1}], v[10:11]", f"s_and_b64 s[{sT2}:{sT3}], s[{sT2}:{sT3}], vcc"] for j in range(4)), [])
                        + [f"s_mov_b64 vcc, s[{sT2}:{sT3}]"]))
        def chk0():
            k(f"s_lshl_b32 s{sX}, s{sG}, 11\ns_add_u32 s{sX}, s{sX}, {FPK}")
            k(f"v_and_b32 v13, 31, v0\nv_lshlrev_b32 v13, 3, v13\ns_lshl_b32 s{sX2}, s{sG}, 8\ns_add_u32 s{sX2}, s{sX2}, {XID}")
            apk.issue()
        job(CHK_AT - 6, chk0)
        def chk():
            apk.check()
            k(f"s_xor_b32 s{sT2}, s{sTAG}, s{sXCC}\ns_mov_b32 s{sT3}, s{sTAG+1}")
            k(f"v_cmp_eq_u64 vcc, s[{sT2}:{sT3}], v[14:15]")
            k(f"s_cmp_eq_u64 vcc, -1\ns_cselect_b32 s{sMODE}, 1, 0")
            k(f"s_and_b32 s{sT2}, s{sC}, 7\ns_lshl_b32 s{sT2}, s{sT2}, 1\ns_lshr_b32 s{sT3}, s{sW}, 1\ns_add_u32 s{sT2}, s{sT2}, s{sT3}")
            k(f"s_mul_i32 s{sT3}, s{sW}, {28*KB}\ns_add_u32 s{sT3}, s{sT3}, {WD}")
            k(f"s_mul_i32 s{sX}, s{sT2}, {112*KB}\ns_add_u32 s{sX}, s{sX}, s{sT3}")
            k(f"s_xor_b32 s{sT2}, s{sT2}, 1\ns_mul_i32 s{sX2}, s{sT2}, {112*KB}\ns_add_u32 s{sX2}, s{sX2}, s{sT3}")
        job(CHK_AT, chk)
        def wsrc(i):
            s_ = sX if i < 28 else sX2
            j = i % 28
            if j and (j & 3) == 0: k(f"s_add_u32 s{s_}, s{s_}, 4096")
            return s_, (j & 3) * KB
        wq = XLoader(k, 56, lambda i: ar(aWD + 8*(i % 28) + 4*(i // 28)), wsrc)
        slots = [i for i in range(CHK_AT + 1, 112) if i % 8 in WD_SLOTS]
        work = [lambda: wq.issue_n(4)] * 14
        rw = [ring.issue16] * 6
        seq = []
        while work or rw:
            if work: seq.append(work.pop(0))
            if work: seq.append(work.pop(0))
            if rw: seq.append(rw.pop(0))
        assert len(seq) <= len(slots), (len(seq), len(slots))
        for i, f in zip(slots, seq): job(i, f)
    else:
        job(2, lambda: k("s_barrier"))
        for j in range(6): job(12 + 8*j, ring.issue16)
    def tch(j):
        def f():
            if j: k(f"s_add_u32 s{sTW}, s{sTW}, 8192")
            k.vm(f"buffer_load_dword v5, v{vL128}, {srd(sWS)}, s{sTW} offen sc1")
        return f
    for j in range(-(-TOUCH_KBS[L] // 64)): job(TOUCH_AT[L] + j*TOUCH_STEP, tch(j))
    job(TACT_AT, lambda: k.vm(f"buffer_load_dword v5, v{vL128}, {srd(sWS)}, s{sTH} offen sc1"))
    def tact():
        k.vm(f"buffer_load_dword v5, v3, {srd(sWS)}, 0 offen sc1")
        code_touch(k, 5)
    job(TACT_AT + 4, tact)
    SC = 96 * KB
    vWA = 10
    def red_setup():
        k(f"s_lshl_b32 s{sT0}, s{sW}, 14\nv_add_u32 v13, s{sT0}, v{vL16}")
        for j in range(1, 4):
            k(f"v_xor_b32 v{vWA+j-1}, {j << 14}, v13\nv_add_u32 v{vWA+j-1}, {SC}, v{vWA+j-1}")
        k(f"v_add_u32 v13, {SC}, v13")
    job(118, red_setup)
    def red_write(s):
        j = s >> 1; z = s & 1
        k.lg(f"ds_write_b128 v{vWA+j-1}, {vr(vO+16*s)} offset:{(z*3+j-1)*2*KB}")
        k.lg(f"ds_write_b128 v{vWA+j-1}, {vr(vO+16*s+4)} offset:{(z*3+j-1)*2*KB+KB}")
        k.lg(f"ds_write_b32 v{vWA+j-1}, v{vO+16*s+8} offset:{(12+z)*KB+(j-1)*4}")
    for i in range(120, 126):
        job(i + 2, lambda s=steps[i][1]: red_write(s), e=2)
    tl = []
    def red_read():
        k.wait_all()
        k("s_barrier")
        for z in range(2):
            k.lg(f"ds_read_b128 {vr(vO+32+48*z+8)}, v13 offset:{(12+z)*KB}")
            for j in range(3):
                b = vO + 32 + (z*3 + j)*16
                k.lg(f"ds_read_b128 {vr(b)}, v13 offset:{(z*3+j)*2*KB}")
                tl.append(k.lg(f"ds_read_b128 {vr(b+4)}, v13 offset:{(z*3+j)*2*KB+KB}"))
    job(127, red_read)
    for i, (t, q) in enumerate(steps):
        s = vS[i % NS]
        if i in ATT_MARKS: mark(k, f's{i}')
        for e in range(16):
            if e == 2 and i > 0: pv(i-1, 1)
            if e == 6 and i + LA < n: qk(i + LA)
            if e == 10: pv(i, 0)
            for f in jobs.pop((i, e), []): f()
            k(f"v_exp_f32 v{s+e}, v{s+e}")
    pv(n-1, 1)
    assert not jobs, jobs.keys()
    assert ring.issued == 96
    mark(k, 'loop')
    for z in range(2):
        o = vO + 16*z; l = vO + 32 + 48*z + 8
        k.wait(lg=tl[z*3])
        k(f"v_add_f32 v{l}, v{l}, v{l+1}\nv_add_f32 v{o+8}, v{o+8}, v{l+2}\nv_add_f32 v{o+8}, v{o+8}, v{l}\nv_rcp_f32 v{o+9}, v{o+8}")
        for j in range(3):
            b = vO + 32 + (z*3 + j)*16
            k.wait(lg=tl[z*3+j])
            for i in range(8): k(f"v_add_f32 v{o+i}, v{o+i}, v{b+i}")
        for j in range(4):
            k(f"v_mul_f32 v{o+2*j}, v{o+2*j}, v{o+9}\nv_mul_f32 v{o+2*j+1}, v{o+2*j+1}, v{o+9}")
            k(f"v_cvt_pk_bf16_f32 v{o+12+j}, v{o+2*j}, v{o+2*j+1}")
        ts = k.vm(f"buffer_store_dwordx4 {vr(o+12)}, v{vL16}, {srd(sWS)}, s{sQ[z]} offen")
    k(f"s_mov_b32 s{sF}, s{sFO}")
    ring.end16()
    ring.limit = 144
    return ts

def load_res(k, v):
    k(f"s_add_u32 s{sT1}, s{sDST}, {XF}")
    k.vm(f"buffer_load_dwordx4 {vr(v)}, v{vL16}, {srd(sWS)}, s{sT1} offen sc1")
    return k.vm(f"buffer_load_dwordx4 {vr(v+4)}, v{vL16}, {srd(sWS)}, s{sT1} offen offset:1024 sc1")
def add_res(k, acc, v):
    for j in range(8):
        k(f"v_lshlrev_b32 v10, 16, v{v+j}\nv_and_b32 v11, 0xffff0000, v{v+j}")
        k(f"v_add_f32 v{acc+2*j}, v{acc+2*j}, v10\nv_add_f32 v{acc+2*j+1}, v{acc+2*j+1}, v11")

def ph_wo(k, L, ring, tO):
    k.label(f'L_wo{L}')
    vX, vACC, vRES, vIN, vPK = 16, 80, 112, 120, 136
    k(f"s_lshr_b32 s{sRB}, s{sDST}, 15\ns_lshr_b32 s{sD}, s{sW}, 1")
    k(f"s_mul_i32 s{sX}, s{sRB}, {112*KB}\ns_lshl_b32 s{sT0}, s{sD}, 14\ns_add_u32 s{sX}, s{sX}, s{sT0}\ns_add_u32 s{sX}, s{sX}, {HF}")
    k(f"s_lshl_b32 s{sT0}, s{sD}, 11")
    set_lds_bases(k, sT0)
    ops = []
    for s in range(16):
        for a in range(2):
            ops.append(dict(b=4*s + a, bmin=4*s, bmax=4*s + 3, xi=s, x=vr(vX+4*s), acc=vr(vACC+16*a,16), swap=False, first=(s == 0)))
    g = Gemm(k, ring, ops, {0}, stop_issue=0)
    if L == 0:
        rowmajor_addr(k, 8, sT0)
        k.vm(f"buffer_load_dwordx4 {vr(vRES)}, v8, {srd(60)}, s{sT0} offen")
        k.vm(f"buffer_load_dwordx4 {vr(vRES+4)}, v8, {srd(60)}, s{sT0} offen offset:32")
    else:
        load_res(k, vRES)
    publish_local(k, tO)
    g.start()
    ring.issue_n(PRE_WO)
    k(f"s_and_b32 s{sF}, s{sRB}, 0xfe\ns_add_u32 s{sF}, s{sF}, s{sD}\ns_lshl_b32 s{sF}, s{sF}, 7\ns_add_u32 s{sF}, s{sF}, {FLOC(L,0)}")
    SC = 144 * KB
    k(f"s_xor_b32 s{sT0}, s{sW}, 2\ns_lshl_b32 s{sT0}, s{sT0}, 12\ns_add_u32 s{sT0}, s{sT0}, {SC}\nv_add_u32 v6, s{sT0}, v{vL16}")
    k(f"s_lshl_b32 s{sT0}, s{sW}, 12\ns_add_u32 s{sT0}, s{sT0}, {SC}\nv_add_u32 v7, s{sT0}, v{vL16}")
    poll16(k)
    xq = XLoader(k, 16, lambda i: vr(vX+4*i), lin_src(k))
    g.run(xq, n0=8)
    for j in range(4): k.lg(f"ds_write_b128 v6, {vr(vACC+16+4*j)} offset:{j*KB}")
    add_res(k, vACC, vRES)
    k.wait_all(vm=False)
    k("s_barrier")
    for j in range(4): k.lg(f"ds_read_b128 {vr(vIN+4*j)}, v7 offset:{j*KB}")
    k.wait_all(vm=False)
    for i in range(16): k(f"v_add_f32 v{vACC+i}, v{vACC+i}, v{vIN+i}")
    for j in range(8): k(f"v_cvt_pk_bf16_f32 v{vPK+j}, v{vACC+2*j}, v{vACC+2*j+1}")
    store_x(k, vACC, vPK, L, 1)
    ring.limit = None
    mark(k, 'end')

def ph_up(k, L, ring, b0):
    vX, vACC, vST, vEXT, vRS = 16, 144, 208, 8, 6
    sH0, sH1 = sD, sE
    rb_128(k)
    k(f"s_and_b32 s{sA}, s{sC}, 15")
    k(f"s_lshl_b32 s{sX}, s{sRB}, 15\ns_add_u32 s{sX}, s{sX}, {XF}")
    set_lds_bases(k)
    ops = []
    b = b0
    for (t0, nt) in ((0, 4), (4, 3)):
        for ks in range(33):
            for t in range(t0, t0+nt):
                ops.append(dict(b=b, bmin=b, bmax=b, xi=(ks if ks < 32 else None), x=(vr(vX+4*ks) if ks < 32 else vr(vEXT)),
                                acc=vr(vACC+16*t, 16), swap=False, first=(ks == 0)))
                b += 1
    g = Gemm(k, ring, ops, {0, 32, 64, 96, 128, 160, 192}, stop_issue=214)
    g.start()
    ring.issue_n(PRE)
    res = {}
    se = stats_emitters(k, vST, 12, res)
    k(f"s_mul_i32 s{sH0}, s{sRB}, 112\ns_mul_i32 s{sT2}, s{sA}, 7\ns_add_u32 s{sH0}, s{sH0}, s{sT2}\ns_lshl_b32 s{sH0}, s{sH0}, 10\ns_add_u32 s{sH0}, s{sH0}, {HF}")
    k(f"s_add_u32 s{sH1}, s{sH0}, 4096")
    k(f"s_lshl_b32 s{sF}, s{sRB}, 7\ns_add_u32 s{sF}, s{sF}, {FLOC(L,1)}")
    poll16(k)
    xq = XLoader(k, 32, lambda i: vr(vX+4*i), lin_src(k))
    fin = fin_stats(vST, vEXT, vRS) + [f"v_mul_f32 v{vRS}, v{vRS}, v{vRS}"]
    def epi(t):
        a = vACC + 16*t
        o = []
        for j in range(4):
            o += [f"v_mul_f32 v{a+2*j}, v{a+2*j}, v{vRS}", f"v_mul_f32 v{a+2*j+1}, v{a+2*j+1}, v{vRS}",
                  f"v_mul_f32 v{a+2*j}, v{a+2*j}, v{a+8+2*j}", f"v_mul_f32 v{a+2*j+1}, v{a+2*j+1}, v{a+9+2*j}",
                  f"v_cvt_pk_bf16_f32 v{a+8+j}, v{a+2*j}, v{a+2*j+1}"]
        o.append(f"buffer_store_dwordx4 {vr(a+8)}, v{vL16}, {srd(sWS)}, s{sH0 + (t >> 2)} offen offset:{(t & 3)*KB}")
        return o
    epiA = sum((epi(t) for t in range(4)), [])
    st = dict(i=0, j=0, t=None)
    def put(x):
        if x.startswith('buffer'): st['t'] = k.vm(x)
        else: k(x)
    def filler(m):
        if 96 <= m < 128:
            if st['i'] == 0: k.wait(vm=res['t'])
            for _ in range(2):
                if st['i'] < len(fin): k(fin[st['i']]); st['i'] += 1
        if m >= 138:
            for _ in range(2):
                if st['j'] < len(epiA): put(epiA[st['j']]); st['j'] += 1
        if m == 150: code_touch(k, 7)
        if m == 205:
            assert st['j'] == len(epiA)
            k(f"s_lshl_b32 s{sF}, s{sRB}, 4\ns_add_u32 s{sF}, s{sF}, s{sA}\ns_lshl_b32 s{sF}, s{sF}, 3\ns_add_u32 s{sF}, s{sF}, {FLOC(L,2)}")
            publish_local(k, st['t'])
    g.run(xq, filler=filler, misc=se, misc_from=40)
    assert st['i'] == len(fin)
    for t in range(4, 7):
        for x in epi(t): put(x)
    k(f"s_add_u32 s{sF}, s{sF}, {FLOC(L,3) - FLOC(L,2)}")
    tB = st['t']
    mark(k, 'end')
    return tB

def ph_down(k, L, ring, tB):
    vX, NX, vACC, vRES, vPK = 16, 32, 144, 208, 216
    final = L == 1
    k(f"s_lshr_b32 s{sRB}, s{sDST}, 15")
    k(f"s_mul_i32 s{sT0}, s{sW}, {28*KB}\ns_add_u32 s{sT0}, s{sT0}, {HF}")
    k(f"s_mul_i32 s{sX}, s{sRB}, {112*KB}\ns_add_u32 s{sX}, s{sX}, s{sT0}")
    k(f"s_xor_b32 s{sT1}, s{sRB}, 1\ns_mul_i32 s{sX2}, s{sT1}, {112*KB}\ns_add_u32 s{sX2}, s{sX2}, s{sT0}")
    order = [7*c + t for c in range(4) for t in range(4)] + [7*c + t for c in range(4) for t in range(4, 7)]
    cur = {sX: 0, sX2: 0}
    def src(i):
        s_ = sX if (i & 1) == 0 else sX2
        r = order[i >> 1]
        base = 7*(r // 7) + (0 if r % 7 < 4 else 4)
        if cur[s_] != base:
            d = (base - cur[s_]) * KB
            k(f"s_add_u32 s{s_}, s{s_}, {d}" if d > 0 else f"s_sub_u32 s{s_}, s{s_}, {-d}")
            cur[s_] = base
        return s_, (r - base) * KB
    xq = XLoader(k, 56, lambda i: vr(vX + 4*(i % NX)), src)
    k(f"v_and_b32 v12, 3, v0\nv_lshlrev_b32 v12, 3, v12\nv_and_b32 v7, 4, v0\nv_lshlrev_b32 v7, 5, v7\nv_add_u32 v12, v12, v7")
    k(f"s_and_b32 s{sD}, s{sRB}, 0xfe\ns_lshl_b32 s{sD}, s{sD}, 7\ns_lshl_b32 s{sT0}, s{sW}, 5\ns_add_u32 s{sD}, s{sD}, s{sT0}")
    publish_local(k, tB)
    k(f"s_add_u32 s{sF}, s{sD}, {FLOC(L,2)}")
    poll(k, 12, 14)
    xq.hold = 32
    xq.issue_n(10)
    rt = load_res(k, vRES)
    SC = 100 * KB
    for a in range(1, 4):
        k(f"s_xor_b32 s{sT0}, s{sW}, {a}\ns_mul_i32 s{sT0}, s{sT0}, {12*KB}\ns_add_u32 s{sT0}, s{sT0}, {SC + (a-1)*4*KB}\nv_add_u32 v{5+a}, s{sT0}, v{vL16}")
    k(f"s_mul_i32 s{sT0}, s{sW}, {12*KB}\ns_add_u32 s{sT0}, s{sT0}, {SC}\nv_add_u32 v9, s{sT0}, v{vL16}")
    m = 0
    for s in range(28):
        r = order[s]
        if s == 5:
            k(f"s_add_u32 s{sF}, s{sD}, {FLOC(L,3)}")
            apb = apoll1(k, 12, 14, sF)
            apb.issue()
        if s == 10:
            apb.check()
            xq.hold = 56
        if s == 4: k("s_barrier")
        for a in (3, 2, 1, 0):
            xi = 2*s + (a & 1)
            while xq.n <= xi: xq.issue_n(1)
            k.wait(vm=xq.t[xi])
            acc = vr(vACC + 16*a, 16)
            k(f"v_mfma_f32_32x32x16_bf16 {acc}, {ar(aWD + 8*r + 4*(a >> 1))}, {vr(vX + 4*(xi % NX))}, {'0' if s == 0 else acc}")
            if m == 0: mark(k, 'm0')
            if m in GEMM_MARKS.get(G.ph, ()): mark(k, f'm{m}')
            if m % 2 == 0 and xq.n < 2*s + NX - 2: xq.issue_n(1)
            m += 1
    for a in (3, 2, 1):
        for j in range(4): k.lg(f"ds_write_b128 v{5+a}, {vr(vACC+16*a+4*j)} offset:{j*KB}")
    k.wait(vm=rt)
    add_res(k, vACC, vRES)
    k.wait_all(vm=False)
    k("s_barrier")
    tl = []
    for a in range(3):
        for j in range(4): t_ = k.lg(f"ds_read_b128 {vr(vX+16*a+4*j)}, v9 offset:{a*4*KB + j*KB}")
        tl.append(t_)
    for a in range(3):
        k.wait(lg=tl[a])
        for i in range(16): k(f"v_add_f32 v{vACC+i}, v{vACC+i}, v{vX+16*a+i}")
    for j in range(8): k(f"v_cvt_pk_bf16_f32 v{vPK+j}, v{vACC+2*j}, v{vACC+2*j+1}")
    if final:
        rowmajor_addr(k, 8, sT0)
        k.vm(f"buffer_store_dwordx4 {vr(vPK)}, v8, {srd(sAUX)}, s{sT0} offen")
        k.vm(f"buffer_store_dwordx4 {vr(vPK+4)}, v8, {srd(sAUX)}, s{sT0} offen offset:32")
    else:
        store_x(k, vACC, vPK, L, 4)
    mark(k, 'end')

def k_main(name):
    k = Asm()
    G.nst = 0
    k(f".globl {name}\n.p2align 8\n.type {name},@function")
    k.label(name)
    if STAMP: k("s_memrealtime s[42:43]")
    mark(k, 'start')
    k("s_cmp_ge_u32 s2, 256")
    k("s_cbranch_scc1 L_abort")
    k(f"s_load_dwordx2 s[{sWS}:{sWS+1}], s[0:1], 72")
    k(f"s_load_dwordx2 s[{sAUX}:{sAUX+1}], s[0:1], 56")
    k("s_load_dwordx2 s[60:61], s[0:1], 0\ns_load_dwordx4 s[64:67], s[0:1], 8\ns_load_dwordx4 s[68:71], s[0:1], 32\ns_load_dwordx2 s[72:73], s[0:1], 48")
    k("v_lshrrev_b32 v2, 6, v0")
    k(f"v_and_b32 v{vL16}, 63, v0")
    k(f"v_readfirstlane_b32 s{sW}, v2")
    k(f"v_lshlrev_b32 v{vL16}, 4, v{vL16}")
    k(f"s_mov_b32 s{sWG}, s2\ns_and_b32 s{sG}, s2, 7\ns_lshr_b32 s{sC}, s2, 3\ns_lshl_b32 s{sW1K}, s{sW}, 10")
    k(f"s_lshr_b32 s{sC4}, s{sC}, 4\ns_lshr_b32 s{sC3}, s{sC}, 3")
    k(f"s_lshl_b32 s{sU}, s{sG}, 5\ns_add_u32 s{sU}, s{sU}, s{sC}")
    k(f"s_lshl_b32 s{sW4K}, s{sW}, 12")
    k(f"s_getreg_b32 s{sXCC}, hwreg(HW_REG_XCC_ID, 0, 4)")
    k(f"v_add_u32 v{vSRC}, s{sW1K}, v{vL16}")
    k(f"s_mov_b32 s{sMSK}, 0xffff\ns_mov_b32 s{sMSK+1}, 0xffff\ns_mov_b32 s{sMODE}, 0")
    k(f"s_and_b32 s{sT0}, s{sC}, 7\ns_mul_i32 s{sSEG}, s{sT0}, {WO_STR}\ns_add_u32 s{sSEG}, s{sSEG}, {WO}")
    k(f"s_lshl_b32 s{sT1}, s{sG}, 2\ns_add_u32 s{sT1}, s{sT1}, s{sC3}\ns_lshl_b32 s{sT1}, s{sT1}, 1\ns_and_b32 s{sT2}, s{sW}, 1\ns_add_u32 s{sT1}, s{sT1}, s{sT2}")
    k(f"s_lshl_b32 s{sT1}, s{sT1}, 5\ns_lshl_b32 s{sT0}, s{sT0}, 2\ns_add_u32 s{sT1}, s{sT1}, s{sT0}\ns_and_b32 s{sT2}, s{sW}, 2\ns_add_u32 s{sT1}, s{sT1}, s{sT2}\ns_lshl_b32 s{sDST}, s{sT1}, 10")
    k(f"s_and_b32 s{sT0}, s{sC}, 15\ns_mul_i32 s{sSEG+1}, s{sT0}, {WU_STR}\ns_add_u32 s{sSEG+1}, s{sSEG+1}, {WU}")
    k(f"s_mul_i32 s{sSEG+2}, s{sT0}, {WQ_STR}\ns_add_u32 s{sSEG+2}, s{sSEG+2}, {WQ}")
    def late(k):
        k(f"s_add_u32 s{sT0}, s{sWS}, {EP}\ns_addc_u32 s{sT1}, s{sWS+1}, 0")
        k(f"s_load_dwordx2 s[{sTAG}:{sTAG+1}], s[{sT0}:{sT1}], 0")
        k(f"s_and_b32 s{sWS+1}, s{sWS+1}, 0xffff\ns_mov_b32 s{sWS+2}, 0x10000000\ns_mov_b32 s{sWS+3}, 0x20000")
        k(f"s_and_b32 s{sAUX+1}, s{sAUX+1}, 0xffff\ns_mov_b32 s{sAUX+2}, {2*MB}\ns_mov_b32 s{sAUX+3}, 0x20000")
        if WARM:
            k(f"v_and_b32 v244, 63, v0\nv_min_u32 v245, {WS_PAGES-1}, v244\nv_lshlrev_b32 v245, 21, v245")
            k.vm(f"buffer_load_dword v5, v245, {srd(sWS)}, 0 offen")
            k("v_mov_b32 v245, 0")
            k.vm(f"buffer_load_dword v5, v245, {srd(sAUX)}, 0 offen")
            for p in (66, 68, 70, 72):
                k.vm(f"global_load_dword v5, v245, s[{p}:{p+1}]")
            k(f"s_getpc_b64 s[{sT0}:{sT1}]")
            k.label("L_pc")
            k(f"s_lshl_b32 s{sT2}, s{sC}, 2\ns_add_u32 s{sT2}, s{sT2}, s{sW}\ns_mul_i32 s{sT2}, s{sT2}, 640")
            k(f"v_min_u32 v245, 4, v244\nv_lshlrev_b32 v245, 7, v245\nv_add_u32 v245, s{sT2}, v245\nv_min_u32 v245, L_abort-L_pc, v245")
            k.vm(f"global_load_dword v5, v245, s[{sT0}:{sT1}]")
    G.ph = 'qkv0'; tk = ph_qkv0(k, late)
    for L in range(2):
        ring = Ring(k, [(sSEG, 64), (sSEG+1, 232)] + ([(sSEG+2, 100)] if L == 0 else []))
        G.ph = f'att{L}'; tO = ph_att(k, L, ring, *tk)
        G.ph = f'wo{L}'; ph_wo(k, L, ring, tO)
        G.ph = f'up{L}'; tB = ph_up(k, L, ring, 64)
        assert ring.issued == ring.total, (ring.issued, ring.total)
        G.ph = f'dn{L}'; ph_down(k, L, ring, tB)
        G.ph = 'qkv1'
        if L == 0: tk = ph_qkv(k, 1, ring, 296)
    k(f"s_add_u32 s{sT0}, s{sWG}, s{sW}\ns_cmp_lg_u32 s{sT0}, 0\ns_cbranch_scc1 L_fin")
    k(f"s_mov_b32 s{sF}, {EP}")
    publish_local(k, None, force_global=True)
    k.label("L_fin")
    if STAMP:
        k("s_waitcnt vmcnt(0)")
        G.ph = ''; mark(k, 'fin')
        k("s_memrealtime s[98:99]\ns_waitcnt lgkmcnt(0)")
        vals = [42, 98, sMODE] + STS[:G.nst]
        for i, s_ in enumerate(vals): k(f"v_mov_b32 v{16+i}, s{s_}")
        k(f"s_lshl_b32 s{sT0}, s{sWG}, 2\ns_add_u32 s{sT0}, s{sT0}, s{sW}\ns_lshl_b32 s{sT0}, s{sT0}, 7\ns_add_u32 s{sT0}, s{sT0}, {TS}")
        k("v_mov_b32 v4, 0\ns_mov_b64 exec, 1")
        for j in range(8): k(f"buffer_store_dwordx4 {vr(16+4*j)}, v4, {srd(sWS)}, s{sT0} offen offset:{16*j}")
        if DBG is not None:
            k(f"s_lshl_b32 s{sT0}, s{sWG}, 2\ns_add_u32 s{sT0}, s{sT0}, s{sW}\ns_cmp_lg_u32 s{sT0}, {DBG}\ns_cbranch_scc1 L_nodbg")
            k("s_load_dwordx2 s[64:65], s[0:1], 64\ns_waitcnt lgkmcnt(0)")
            for i in range(16): k(f"v_sub_u32 v{64+i}, v{20+i}, v19")
            for j in range(4): k(f"global_store_dwordx4 v4, {vr(64+4*j)}, s[64:65] offset:{16*j}")
            k.label("L_nodbg")
    k("s_waitcnt vmcnt(0)")
    k.label("L_abort")
    k("s_endpgm")
    k(".fill 8448, 4, 0xbf800000")
    return k

def build():
    name = NAME + "_kernel"
    k = k_main(name)
    nn = k.fix()
    print(f"{len(k.L)} lines, {nn} nop states", file=sys.stderr)
    return f"""; stamps: {','.join(G.names)}
; @launch grid=(256,1,1) block=(256,1,1) lds={160*KB}
.amdgcn_target "amdgcn-amd-amdhsa--gfx950"
.text
{k.text()}
.section .rodata,"a"
.p2align 6
.amdhsa_kernel {name}
  .amdhsa_next_free_vgpr 512
  .amdhsa_next_free_sgpr 102
  .amdhsa_accum_offset 256
  .amdhsa_group_segment_fixed_size 0
  .amdhsa_kernarg_size 80
  .amdhsa_user_sgpr_count 2
  .amdhsa_user_sgpr_kernarg_segment_ptr 1
  .amdhsa_system_sgpr_workgroup_id_x 1
.end_amdhsa_kernel
"""

if __name__ == "__main__":
    for a in sys.argv[2:]:
        kk_, vv_ = a.split('=', 1)
        globals()[kk_] = eval(vv_)
    open(sys.argv[1], "w").write(build())
```

```python
import sys, struct
from asmlib import Asm

NAME = "interleave_layers__mha_block__glu_gated_bilinear__prompt"
KB = 1024; MB = KB * KB
LOG2E = 1.4426950408889634
def f2u(x): return struct.unpack('<I', struct.pack('<f', x))[0]
def srd(b): return f"s[{b}:{b+3}]"
def vr(b, n=4): return f"v[{b}:{b+n-1}]"
def ar(b, n=4): return f"a[{b}:{b+n-1}]"

WQ = 0;                    WQ_STR = 100 * KB
WO = WQ + 16 * WQ_STR;     WO_STR = 64 * KB
WU = WO + 8 * WO_STR;      WU_STR = 232 * KB
WD = WU + 16 * WU_STR
FL = 7 * MB + 640 * KB
assert WD + 16 * 112 * KB <= FL
EP = FL
XID = FL + 1 * KB
def FLOC(L, p): return FL + 4 * KB + (L * 9 + p) * 8 * KB
FKV0 = FL + 4 * KB + 18 * 8 * KB
def FKV(L): return FKV0 + L * 32 * KB
FPK = FKV0 + 64 * KB
assert FPK + 32 * KB <= 8 * MB
XF = 8 * MB
HF = 10 * MB
QF = HF
SX = 17 * MB
def KVF(L): return 18 * MB + L * 4 * MB
WS_PAGES = 13
TS = 27 * MB
DUMP = 0x7ff00000

STAMP = False
WB_MASK = None; OUT_SC = ''; DN_WR = 2; DN_WGAP = 2
QW_LATE = False; QW_UP = 0; QW_TOUCH = (72, 100); QW_N1 = 4
PK_Q0 = False; PK_RD = 1; PK_ST = 3; CHK_Q0 = 15
WO_STOP = 26; WO_R0 = 8; WO_N0 = 10; ST_PRE = 2; PPOLL = 0; KV_PF = (0, 0); PK_EARLY = False
FL_TOUCH = False
SPLIT_ST = True
FINE = False
UP_EPI = 3; UP_PUB = (138, 196); DN_POLL = (158, 216); DN_CHK = (170, 228); UP_LOOK = 8; UP_SYNCS = {0, 32, 64, 96, 128, 160, 192}; UP_SKIP = (0, 0); UP_STOP = 216
DN_PUBB = 4; DN_BAR = 14; DN_POLLB = 9; DN_CHKB = 12; DN_R = 4; DN_R0 = 12
FLAG_TOUCH = False
WSOFF = 0
SLEEP1 = (0, 0); SLEEP2 = 0; SLEEP3 = 0
DBG = None
PRE = 4; PRE2 = 4
PRE_WO = 4; PRE_WO2 = 4
CODE_TOUCH = True
WD_SLOTS = (1, 3, 5, 7)
TOUCH_AT = (98, 68); TOUCH_STEP = 16; TOUCH_KBS = (64, 128)
RING = 144
PK_T0 = 1; PK_GAP = 6; PK_GAP2 = 7; CHK_GAP = 24
P2_AT = 6
TACT_AT = 102

sC4, sC3 = 2, 3
sWS, sAUX = 4, 8
sW, sG, sC, sW1K = 12, 13, 14, 15
sT0, sT1, sT2, sT3 = 16, 17, 18, 19
sX, sRS, sRB = 20, 21, 22
sA, sB, sCc, sD, sE = 23, 24, 25, 26, 27
sS0, sS1 = 28, 21
sMSK, sTAG, sMODE, sXCC = 30, 32, 34, 35
sSEG = 36
sX2 = 39
sSPIN, sF = 40, 41
STS = list(range(44, 56, 2)) + [92, 94, 56, 58, 74, 76, 80, 82, 86, 88, 60, 62]
sWG = 101
sW4K = 97
sSD = 29
sPC, sCT = 90, 85
sDST = 100
vL16, vSRC, vB = 1, 2, 3
aWD, aWB = 0, 224

class G:
    nst = 0
    names = []
    ph = ''
SKIP = ''
ATT_MARKS = ()
GEMM_MARKS = {}
def mark(k, nm='x'):
    import re
    nm = G.ph + '_' + nm
    if SKIP and re.match(SKIP, nm): return
    if '_f_' in nm and not FINE: return
    if STAMP:
        G.names.append(nm)
        k(f"s_memtime s[{STS[G.nst]}:{STS[G.nst]+1}]")
        G.nst += 1

class Ring:
    def __init__(self, k, segs):
        self.k = k; self.N = RING
        self.total = sum(n for _, n in segs)
        self.starts = {}
        b = 0
        for s, n in segs:
            assert n % 4 == 0
            self.starts[b] = s; b += n
        self.issued = 0; self.freed = 0; self.visible = 0
        self.limit = None
        self.tick = {}
    def can_issue(self):
        if self.limit is not None and self.issued + 4 > self.limit: return False
        return self.issued < self.total and self.issued + 4 <= self.freed + self.N
    def issue(self):
        k = self.k
        assert self.can_issue()
        slot = self.issued % self.N
        k(f"s_add_u32 m0, s{sW1K}, {slot*KB}")
        if self.issued in self.starts: k(f"s_mov_b32 s{sRS}, s{self.starts[self.issued]}")
        else: k(f"s_add_u32 s{sRS}, s{sRS}, 4096")
        self.tick[self.issued // 4] = k.vm(f"buffer_load_dwordx4 v{vSRC}, {srd(sWS)}, s{sRS} offen sc1 lds")
        self.issued += 4
    def issue16(self):
        k = self.k
        b = self.issued; slot = b % self.N
        assert slot + 16 <= self.N and b + 16 <= min(self.limit or 1 << 30, self.freed + self.N)
        assert not any(x in self.starts for x in range(b + 1, b + 16))
        k(f"s_add_u32 m0, s{sW4K}, {slot*KB}")
        if b in self.starts: k(f"s_add_u32 s{sRS}, s{self.starts[b]}, s{sW4K}")
        else: k(f"s_add_u32 s{sRS}, s{sRS}, 16384")
        for i in range(4):
            t = k.vm(f"buffer_load_dwordx4 v{vL16}, {srd(sWS)}, s{sRS} offen offset:{i*KB} sc1 lds")
        for q in range(4): self.tick[b // 4 + q] = t
        self.issued += 16
    def end16(self):
        self.k(f"s_sub_u32 s{sRS}, s{sRS}, s{sW4K}\ns_add_u32 s{sRS}, s{sRS}, 12288")
    def issue_n(self, n):
        for _ in range(n):
            if self.can_issue(): self.issue()
    def sync(self, consumed, need):
        k = self.k
        need = min(need, self.total)
        if need > self.visible:
            q = (need - 1) // 4
            assert q * 4 < self.issued, (need, self.issued)
            k.wait(vm=self.tick[q])
        k("s_barrier")
        q = self.visible // 4
        while q in self.tick and self.tick[q] <= k.vm_done: q += 1
        self.visible = q * 4
        assert self.visible >= need
        self.freed = max(self.freed, (consumed // 4) * 4)
    def addr(self, b): return (b % self.N) * KB

def set_lds_bases(k, extra_s=None):
    if extra_s is None: k(f"v_mov_b32 v{vB}, v{vL16}")
    else: k(f"v_add_u32 v{vB}, s{extra_s}, v{vL16}")
    k(f"v_add_u32 v{vB+1}, 0x10000, v{vB}")
    k(f"v_add_u32 v{vB+2}, 0x20000, v{vB}")

class XLoader:
    def __init__(self, k, total, reg, src):
        self.k = k; self.total = total; self.reg = reg; self.src = src; self.n = 0; self.t = []
        self.hold = total
    def issue_n(self, n):
        k = self.k
        for _ in range(n):
            i = self.n
            if i >= min(self.total, self.hold): return
            s_, imm = self.src(i)
            self.t.append(k.vm(f"buffer_load_dwordx4 {self.reg(i)}, v{vL16}, {srd(sWS)}, s{s_} offen offset:{imm} sc1"))
            self.n += 1
def lin_src(k):
    def f(i):
        if i and (i & 3) == 0: k(f"s_add_u32 s{sX}, s{sX}, 4096")
        return sX, (i & 3) * KB
    return f

class Gemm:
    def __init__(self, k, ring, ops, syncs, D=4, NB=8, stop_issue=None):
        self.k = k; self.ring = ring; self.ops = ops; self.syncs = sorted(syncs)
        assert all(x % 2 == 0 for x in syncs)
        self.D = D; self.NB = NB; self.tl = {}; self.nread = 0
        self.stop = stop_issue if stop_issue is not None else len(ops)
    def rd(self):
        k = self.k; m = self.nread; o = self.ops[m]
        assert o['bmax'] < self.ring.visible, (m, o['b'], self.ring.visible)
        a = self.ring.addr(o['b'])
        self.tl[m] = k.lg(f"ds_read_b128 {ar(aWB + 4*(m % self.NB))}, v{vB + (a >> 16)} offset:{a & 0xffff}")
        self.nread += 1
    def need_until(self, m):
        M = len(self.ops)
        nxt = [s for s in self.syncs if s > m]
        last = min((nxt[0] if nxt else M) - 1 + self.D, M - 1)
        return max(o['bmax'] for o in self.ops[:last+1]) + 1
    def start(self):
        self.ring.sync(self.ops[0]['bmin'], self.need_until(0))
        while self.nread < min(self.D, len(self.ops)): self.rd()
    def run(self, xq, n0=6, look=10, filler=None, misc=(), misc_from=0, skip=0):
        k = self.k; M = len(self.ops)
        misc = list(misc)
        xq.issue_n(n0)
        cur = 0
        for m in range(M):
            if m in self.syncs and m > 0:
                self.ring.sync(self.ops[m]['bmin'], self.need_until(m))
            o = self.ops[m]
            xt = None
            if m % 2 == 0:
                xs = [p['xi'] for p in self.ops[m:m+2] if p.get('xi') is not None]
                if xs:
                    cur = max(cur, max(xs))
                    while xq.n <= max(xs): xq.issue_n(1)
                    xt = xq.t[max(xs)]
                k.wait(vm=xt, lg=self.tl[min(m + 1, M - 1)])
            w = ar(aWB + 4*(m % self.NB))
            c = o.get('c0', '0') if o['first'] else o['acc']
            A, B = (o['x'], w) if o['swap'] else (w, o['x'])
            k(f"v_mfma_f32_32x32x16_bf16 {o['acc']}, {A}, {B}, {c}")
            if m == 0: mark(k, 'm0')
            if m in GEMM_MARKS.get(G.ph, ()): mark(k, f'm{m}')
            if m % 2 == 0:
                for _ in range(2):
                    if self.nread < M: self.rd()
            elif not (skip and m % skip == skip - 1):
                rok = m < self.stop and self.ring.can_issue()
                if xq.n < xq.total and (xq.n - cur < look or not (rok or (misc and m >= misc_from))): xq.issue_n(1)
                elif misc and m >= misc_from: misc.pop(0)()
                elif rok: self.ring.issue()
            if filler: filler(m)
        assert not misc

def stats_emitters(k, vt, res):
    k(f"s_lshl_b32 s{sS0}, s{sRB}, 12\ns_add_u32 s{sS0}, s{sS0}, {SX}")
    def mk(i):
        def f(): res['t'] = k.vm(f"buffer_load_dwordx4 {vr(vt+4*i)}, v{vL16}, {srd(sWS)}, s{sS0} offen offset:{i*KB} sc1")
        return f
    return [mk(i) for i in range(4)]

NTREE = 14
def fin_stats(vt, vext, vrstd):
    ins = []
    n = 8
    while n > 1:
        h = n // 2
        for i in range(h):
            ins.append(f"v_add_f32 v{vt+2*i}, v{vt+2*i}, v{vt+2*(i+h)}")
            ins.append(f"v_add_f32 v{vt+2*i+1}, v{vt+2*i+1}, v{vt+2*(i+h)+1}")
        n = h
    a, b, c, d = vt, vt+1, vt+2, vt+3
    ins += [f"v_mov_b32 v{c}, v{a}", f"v_mov_b32 v{d}, v{b}",
            f"v_permlane32_swap_b32 v{a}, v{c}", f"v_permlane32_swap_b32 v{b}, v{d}",
            f"v_add_f32 v{a}, v{a}, v{c}", f"v_add_f32 v{b}, v{b}, v{d}",
            f"v_mul_f32 v{a}, {hex(f2u(-1.0/512))}, v{a}",
            f"v_mul_f32 v{b}, {hex(f2u(1.0/512))}, v{b}",
            f"v_fma_f32 v{b}, -v{a}, v{a}, v{b}",
            f"v_max_f32 v{b}, 0, v{b}",
            f"v_add_f32 v{b}, {hex(f2u(1e-5))}, v{b}",
            f"v_rsq_f32 v{vrstd}, v{b}",
            f"v_cvt_pk_bf16_f32 v{vext}, v{a}, v{a}",
            f"v_and_b32 v{c}, 0xffff0000, v{vext}",
            f"v_sub_f32 v{c}, v{a}, v{c}",
            f"v_cvt_pk_bf16_f32 v{vext+1}, v{c}, 0",
            f"v_mov_b32 v{vext+2}, v{vext}", f"v_mov_b32 v{vext+3}, v{vext+1}"]
    return ins

def poll(k, vaddr, vpd, sleep=0):
    l = k.newlabel('poll')
    k(f"s_mov_b32 s{sSPIN}, 0x40000")
    k.label(l)
    k(f"s_sub_u32 s{sSPIN}, s{sSPIN}, 1")
    k("s_cbranch_scc1 L_abort")
    if sleep: k(f"s_sleep {sleep}")
    k.vm(f"buffer_load_dwordx2 {vr(vpd,2)}, v{vaddr}, {srd(sWS)}, s{sF} offen sc1")
    k.wait_all(lg=False)
    k(f"v_cmp_eq_u64 vcc, s[{sTAG}:{sTAG+1}], {vr(vpd,2)}")
    k("s_cmp_eq_u64 vcc, -1")
    k(f"s_cbranch_scc0 {l}")
class APoll:
    def __init__(self, k, loads, cmp, sleep=0):
        self.k = k; self.loads = loads; self.cmp = cmp; self.sleep = sleep
    def issue(self):
        for x in self.loads: self.t = self.k.vm(x)
    def check(self):
        k = self.k
        l = k.newlabel('ap'); ok = k.newlabel('apok')
        k.wait(vm=self.t)
        k(f"s_mov_b32 s{sSPIN}, 0x40000")
        k.label(l)
        k(self.cmp)
        k("s_cmp_eq_u64 vcc, -1")
        k(f"s_cbranch_scc1 {ok}")
        k(f"s_sub_u32 s{sSPIN}, s{sSPIN}, 1")
        k("s_cbranch_scc1 L_abort")
        if self.sleep: k(f"s_sleep {self.sleep}")
        for x in self.loads: k(x)
        k("s_waitcnt vmcnt(0)")
        k(f"s_branch {l}")
        k.label(ok)
def apoll1(k, vaddr, vpd, soff, sleep=0):
    return APoll(k, [f"buffer_load_dwordx2 {vr(vpd,2)}, v{vaddr}, {srd(sWS)}, s{soff} offen sc1"],
                 f"v_cmp_eq_u64 vcc, s[{sTAG}:{sTAG+1}], {vr(vpd,2)}", sleep)
def ppoll(k, vaddr, vd, n=3):
    l = k.newlabel('pp'); ok = k.newlabel('ppok')
    ld = lambda i: f"buffer_load_dwordx2 {vr(vd+2*i,2)}, v{vaddr}, {srd(sWS)}, s{sF} offen sc1"
    k(f"s_mov_b32 s{sSPIN}, 0x20000")
    for i in range(n - 1):
        k(ld(i)); k(f"s_nop {PPOLL}")
    k.label(l)
    for i in range(n):
        k(ld((i + n - 1) % n))
        k(f"s_waitcnt vmcnt({n-1})")
        k(f"v_cmp_eq_u64 vcc, s[{sTAG}:{sTAG+1}], {vr(vd+2*i,2)}")
        k("s_cmp_eq_u64 vcc, -1")
        k(f"s_cbranch_scc1 {ok}")
    k(f"s_sub_u32 s{sSPIN}, s{sSPIN}, 1")
    k(f"s_cbranch_scc0 {l}")
    k("s_branch L_abort")
    k.label(ok)
    k.vm_done = k.vm_issued
def poll16(k):
    k("v_and_b32 v13, 15, v0\nv_lshlrev_b32 v13, 3, v13")
    if PPOLL: ppoll(k, 13, 248)
    else: poll(k, 13, 14)

def publish_local(k, last_store, force_global=False):
    k(f"v_mov_b32 v13, 0\nv_mov_b32 v14, s{sTAG}\nv_mov_b32 v15, s{sTAG+1}")
    k.wait(vm=last_store)
    k("s_mov_b64 exec, 1")
    if force_global:
        k.vm(f"buffer_store_dwordx2 v[14:15], v13, {srd(sWS)}, s{sF} offen sc1")
    else:
        slow = k.newlabel('slow'); join = k.newlabel('join')
        k(f"s_cmp_eq_u32 s{sMODE}, 0")
        k(f"s_cbranch_scc1 {slow}")
        k(f"buffer_store_dwordx2 v[14:15], v13, {srd(sWS)}, s{sF} offen")
        k(f"s_branch {join}")
        k.label(slow)
        k("buffer_wbl2 sc1")
        k("s_waitcnt vmcnt(0)")
        k(f"buffer_store_dwordx2 v[14:15], v13, {srd(sWS)}, s{sF} offen sc1")
        k.label(join)
        k.vm_issued += 1
    k("s_mov_b64 exec, -1")
def publish_wg(k, last_store, xid=False, barrier=True):
    l = k.newlabel('pw')
    k(f"v_mov_b32 v13, 0\nv_mov_b32 v14, s{sTAG}\nv_mov_b32 v15, s{sTAG+1}")
    k.wait(vm=last_store)
    if barrier: k("s_barrier")
    k(f"s_cmp_lg_u32 s{sW}, 0\ns_cbranch_scc1 {l}")
    k("s_mov_b64 exec, 1")
    if xid:
        k(f"v_xor_b32 v12, s{sXCC}, v14\nv_mov_b32 v13, v15")
        k(f"buffer_store_dwordx4 v[12:15], v{vL16}, {srd(sWS)}, s{sF} offen sc1")
    else:
        k(f"buffer_store_dwordx2 v[14:15], v13, {srd(sWS)}, s{sF} offen sc1")
    k("s_mov_b64 exec, -1")
    k.label(l)

def rb_128(k):
    k(f"s_lshl_b32 s{sT0}, s{sC4}, 2\ns_lshl_b32 s{sRB}, s{sG}, 3\ns_add_u32 s{sRB}, s{sRB}, s{sT0}\ns_add_u32 s{sRB}, s{sRB}, s{sW}")

def store_x(k, acc, pk, L, p, ring=None):
    k(f"s_add_u32 s{sT1}, s{sDST}, {XF}")
    k.vm(f"buffer_store_dwordx4 {vr(pk)}, v{vL16}, {srd(sWS)}, s{sT1} offen")
    td = k.vm(f"buffer_store_dwordx4 {vr(pk+4)}, v{vL16}, {srd(sWS)}, s{sT1} offen offset:1024")
    k(f"v_add_f32 v10, v{acc}, v{acc+1}\nv_mul_f32 v11, v{acc}, v{acc}\nv_add_f32 v8, v{acc+2}, v{acc+3}\nv_mul_f32 v9, v{acc+1}, v{acc+1}")
    k(f"v_fmac_f32 v11, v{acc+2}, v{acc+2}\nv_fmac_f32 v9, v{acc+3}, v{acc+3}")
    for i in range(4, 16, 2):
        k(f"v_add_f32 v10, v10, v{acc+i}\nv_fmac_f32 v11, v{acc+i}, v{acc+i}\nv_add_f32 v8, v8, v{acc+i+1}\nv_fmac_f32 v9, v{acc+i+1}, v{acc+i+1}")
        if ring and i in (4, 10): ring.issue_n(ST_PRE)
    k("v_add_f32 v10, v10, v8\nv_add_f32 v11, v11, v9\nv_mov_b32 v8, v10\nv_mov_b32 v9, v11")
    k("v_permlane32_swap_b32 v10, v8\nv_permlane32_swap_b32 v11, v9\nv_add_f32 v10, v10, v8\nv_add_f32 v11, v11, v9")
    k("s_mov_b32 exec_hi, 0")
    ts = k.vm(f"buffer_store_dwordx2 v[10:11], v{vL16}, {srd(sWS)}, s{sSD} offen")
    k("s_mov_b64 exec, -1")
    k(f"s_lshr_b32 s{sF}, s{sDST}, 8\ns_add_u32 s{sF}, s{sF}, {FLOC(L, p)}")
    if SPLIT_ST:
        publish_local(k, td)
        k(f"s_add_u32 s{sF}, s{sF}, {FLOC(L, 6 if p == 1 else 7) - FLOC(L, p)}")
    return ts
def stats_poll(k, delta):
    if not SPLIT_ST: return []
    k(f"s_add_u32 s{sF}, s{sF}, {delta}")
    ap = apoll1(k, 13, 14, sF)
    return ap

def rowmajor_addr(k, va, s_out):
    k(f"v_and_b32 v{va}, 31, v0\nv_lshlrev_b32 v{va}, 10, v{va}\nv_bfe_u32 v{va+1}, v0, 5, 1\nv_lshlrev_b32 v{va+1}, 4, v{va+1}\nv_add_u32 v{va}, v{va}, v{va+1}")
    k(f"s_and_b32 s{s_out}, s{sDST}, 0xffff8000\ns_bfe_u32 s{sT3}, s{sDST}, 0x5000a\ns_lshl_b32 s{sT3}, s{sT3}, 5\ns_add_u32 s{s_out}, s{s_out}, s{sT3}")

sU = 96
def pack_decode(k):
    nm = "pk"; u = f"s{sU}"
    k(f"s_min_u32 s83, {u}, 231")
    u = "s83"
    k(f"s_and_b32 s90, s{sW}, 1\ns_lshr_b32 s91, s{sW}, 1")
    k(f"s_cmp_lt_u32 {u}, 48\ns_cbranch_scc1 {nm}_q")
    k(f"s_cmp_lt_u32 {u}, 160\ns_cbranch_scc1 {nm}_u")
    k(f"s_cmp_lt_u32 {u}, 176\ns_cbranch_scc1 {nm}_o")
    k(f"s_sub_u32 s84, {u}, 176\ns_lshl_b32 s84, s84, 2\ns_add_u32 s84, s84, s{sW}")
    k("s_and_b32 s85, s84, 15\ns_lshr_b32 s86, s84, 4")
    k("s_lshl_b32 s87, s85, 6")
    k("s_add_u32 s74, s72, s87\ns_addc_u32 s75, s73, 0\ns_mov_b32 s76, s74\ns_mov_b32 s77, s75")
    k("s_mov_b32 s78, 1024\ns_lshl_b32 s79, s86, 7")
    k(f"s_mul_i32 s80, s85, 14\ns_add_u32 s80, s80, s86\ns_lshl_b32 s80, s80, 13\ns_add_u32 s80, s80, {WD}\ns_mov_b32 s81, 1024\ns_mov_b32 s82, {DUMP}")
    k(f"s_branch {nm}_go")
    k.label(f"{nm}_o")
    k(f"s_sub_u32 s85, {u}, 160\ns_lshr_b32 s88, s85, 3\ns_and_b32 s85, s85, 7")
    k("s_lshl_b32 s87, s85, 1\ns_add_u32 s87, s87, s90\ns_lshl_b32 s87, s87, 6")
    k("s_add_u32 s74, s66, s87\ns_addc_u32 s75, s67, 0\ns_mov_b32 s76, s74\ns_mov_b32 s77, s75")
    k("s_mov_b32 s78, 1024\ns_lshl_b32 s79, s88, 1\ns_add_u32 s79, s79, s91\ns_lshl_b32 s79, s79, 7")
    k("s_lshl_b32 s89, s91, 15\ns_xor_b32 s90, s90, s88\ns_lshl_b32 s88, s88, 1\ns_add_u32 s90, s90, s88\ns_lshl_b32 s90, s90, 10")
    k(f"s_mul_i32 s80, s85, {WO_STR}\ns_add_u32 s80, s80, s89\ns_add_u32 s80, s80, s90\ns_add_u32 s80, s80, {WO}")
    k(f"s_mov_b32 s81, 4096\ns_mov_b32 s82, {DUMP}")
    k(f"s_branch {nm}_go")
    k.label(f"{nm}_u")
    k(f"s_sub_u32 s85, {u}, 48\ns_mul_i32 s84, s85, 2341\ns_lshr_b32 s84, s84, 16\ns_mul_i32 s86, s84, 28\ns_sub_u32 s85, s85, s86")
    k(f"s_lshl_b32 s85, s85, 2\ns_add_u32 s85, s85, s{sW}\ns_lshl_b32 s87, s85, 5")
    k("s_add_u32 s74, s68, s87\ns_addc_u32 s75, s69, 0")
    k("s_add_u32 s76, s70, s87\ns_addc_u32 s77, s71, 0\ns_sub_u32 s76, s76, 32\ns_subb_u32 s77, s77, 0")
    k("s_mov_b32 s78, 3584")
    k("s_mul_i32 s86, s85, 9363\ns_lshr_b32 s86, s86, 16\ns_mul_i32 s88, s86, 7\ns_sub_u32 s88, s85, s88")
    k(f"s_mul_i32 s91, s86, {WU_STR}\ns_add_u32 s91, s91, {WU}\ns_lshl_b32 s89, s88, 10\ns_add_u32 s91, s91, s89")
    k(f"s_cmp_lt_u32 s88, 5\ns_cselect_b32 s89, 3, 5\ns_lshl_b32 s89, s89, 15")
    k(f"s_cmp_lt_u32 s88, 3\ns_cselect_b32 s81, 3, 2\ns_cselect_b32 s89, 0, s89\ns_lshl_b32 s81, s81, 10\ns_add_u32 s91, s91, s89")
    k(f"s_branch {nm}_ext")
    k.label(f"{nm}_q")
    k(f"s_cmp_ge_u32 {u}, 24\ns_cselect_b32 s84, 2, 0\ns_cselect_b32 s86, 24, 0\ns_add_u32 s84, s84, s91\ns_sub_u32 s85, {u}, s86")
    k("s_lshl_b32 s85, s85, 1\ns_add_u32 s85, s85, s90\ns_and_b32 s86, s85, 15\ns_lshr_b32 s88, s85, 4")
    k("s_lshl_b32 s87, s85, 6\ns_lshl_b32 s89, s88, 10")
    k("s_add_u32 s74, s64, s87\ns_addc_u32 s75, s65, 0\ns_mov_b32 s76, s74\ns_mov_b32 s77, s75")
    k("s_mov_b32 s78, 3072")
    k(f"s_sub_u32 s89, s89, 1024\ns_cmp_eq_u32 s88, 0\ns_cselect_b32 s89, {66*KB}, s89\ns_cselect_b32 s81, 1, 2\ns_lshl_b32 s81, s81, 10")
    k(f"s_mul_i32 s91, s86, {WQ_STR}\ns_add_u32 s91, s91, s89\ns_add_u32 s91, s91, {WQ}")
    k.label(f"{nm}_ext")
    k("s_lshl_b32 s79, s84, 7")
    k("s_lshl_b32 s89, s81, 5\ns_add_u32 s82, s91, s89\ns_lshr_b32 s89, s84, 1\ns_lshl_b32 s89, s89, 9\ns_add_u32 s82, s82, s89")
    k("s_and_b32 s89, s84, 1\ns_lshl_b32 s89, s89, 3\ns_add_u32 s82, s82, s89")
    k("s_lshl_b32 s89, s81, 3\ns_mul_i32 s89, s89, s84\ns_add_u32 s80, s91, s89")
    k.label(f"{nm}_go")
    k(f"s_cmp_ge_u32 s{sU}, 232\ns_cselect_b32 s80, {DUMP}, s80")
    k("v_bfe_u32 v4, v0, 2, 4\nv_add_u32 v4, s79, v4\nv_mul_lo_u32 v4, v4, s78")
    k("v_and_b32 v13, 3, v0\nv_lshlrev_b32 v13, 4, v13\nv_add_u32 v4, v4, v13")
    k(f"s_lshl_b32 s83, s78, 4")
    if PK_Q0: k(f"s_lshl_b32 s84, s{sW}, 13\ns_add_u32 s84, s84, {64*KB}")
    else: k(f"s_lshl_b32 s84, s{sW}, 14\ns_add_u32 s84, s84, {96*KB}")
    k("s_mov_b32 s86, 0x33333333\ns_mov_b32 s87, 0x33333333\ns_mov_b32 s88, 0xcccccccc\ns_mov_b32 s89, 0xcccccccc")
def pack_issue(k, i, sbase):
    k(f"s_add_u32 m0, s{sbase}, {i*KB}")
    k("s_mov_b64 exec, s[86:87]")
    k.vm("global_load_lds_dwordx4 v4, s[74:75]")
    k("s_mov_b64 exec, s[88:89]")
    t = k.vm("global_load_lds_dwordx4 v4, s[76:77]")
    k("s_mov_b64 exec, -1")
    k("v_add_u32 v4, s83, v4")
    return t
def tr_addr(k, v, t):
    k(f"v_bfe_u32 v{v}, v0, 5, 1\nv_lshlrev_b32 v{v}, 9, v{v}")
    k(f"v_bfe_u32 v{t}, v0, 2, 2\nv_lshlrev_b32 v{t}, 6, v{t}\nv_add_u32 v{v}, v{v}, v{t}")
    k(f"v_bfe_u32 v{t}, v0, 4, 1\nv_lshlrev_b32 v{t}, 5, v{t}\nv_add_u32 v{v}, v{v}, v{t}")
    k(f"v_and_b32 v{t}, 1, v0\nv_lshlrev_b32 v{t}, 4, v{t}\nv_add_u32 v{v}, v{v}, v{t}")
    k(f"v_bfe_u32 v{t}, v0, 1, 1\nv_lshlrev_b32 v{t}, 3, v{t}\nv_add_u32 v{v}, v{v}, v{t}")
def ext_pair(src, dst, t0):
    return [f"v_mov_b32 v{t0}, v{src}", f"v_permlane32_swap_b32 v{src}, v{t0}", f"v_add_f32 v{src}, v{src}, v{t0}",
            f"v_cvt_pk_bf16_f32 v{dst+1}, v{src}, 0", f"v_lshlrev_b32 v{t0}, 16, v{dst+1}", f"v_sub_f32 v{src}, v{src}, v{t0}",
            f"v_cvt_pk_bf16_f32 v{dst}, v{t0}, v{src}"]
class Pack:
    def __init__(self, k): self.k = k; self.r = {}
    def issue(self, *ii):
        for i in ii: self.d = pack_issue(self.k, i, 84)
    def reads(self, *ii):
        k = self.k
        if ii[0] == 0:
            k("v_accvgpr_read_b32 v4, a212")
            k.wait(vm=self.d)
        for i in ii:
            k.lg(f"ds_read_b64_tr_b16 {ar(160+4*i,2)}, v4 offset:{i*KB}")
            self.r[i] = k.lg(f"ds_read_b64_tr_b16 {ar(162+4*i,2)}, v4 offset:{i*KB+256}")
    def csum(self, i):
        self.k.wait(lg=self.r[i])
        self.k(f"v_mfma_f32_32x32x16_bf16 {ar(196,16)}, {ar(192)}, {ar(160+4*i)}, {'0' if i == 0 else ar(196,16)}")
    def stores(self, *ii):
        k = self.k
        k.wait(lg=self.r[ii[-1]])
        for i in ii:
            k.vm(f"buffer_store_dwordx4 {ar(160+4*i)}, v{vL16}, {srd(sWS)}, s80 offen sc1")
            k("s_add_u32 s80, s80, s81")
    def ext(self):
        k = self.k
        k("v_accvgpr_read_b32 v13, a196")
        k("v_cvt_pk_bf16_f32 v15, v13, 0\nv_lshlrev_b32 v14, 16, v15\nv_sub_f32 v13, v13, v14\nv_cvt_pk_bf16_f32 v14, v14, v13")
        k("s_mov_b32 exec_hi, 0")
        self.s = k.vm(f"buffer_store_dwordx2 v[14:15], v{vL16}, {srd(sWS)}, s82 offen sc1")
        k("s_mov_b64 exec, -1")
    def pub(self):
        k = self.k
        k(f"s_lshl_b32 s{sF}, s{sU}, 7\ns_add_u32 s{sF}, s{sF}, {FPK}")
        publish_wg(k, self.s, xid=True)
    def schedule(self, job):
        t = PK_T0
        if not PK_EARLY:
            for i in range(4): job(t + i, lambda i=i: self.issue(2*i, 2*i+1))
            t += 4 + PK_GAP
        job(t, lambda: self.reads(0, 1, 2, 3)); job(t + 1, lambda: self.reads(4, 5, 6, 7))
        for i in range(4):
            job(t + 2 + i, lambda i=i: self.stores(2*i, 2*i+1))
            job(t + 1 + i, lambda i=i: self.csum(2*i), e=14)
            job(t + 2 + i, lambda i=i: self.csum(2*i+1), e=0)
        job(t + 6, self.ext)
        job(t + 6 + PK_GAP2, self.pub)
        return t + 6 + PK_GAP2
def qkv_consts(vT, vRS, vR):
    return [f"v_cvt_pk_bf16_f32 v{vT}, v{vRS}, 0", f"v_lshlrev_b32 v{vT+1}, 16, v{vT}", f"v_sub_f32 v{vT+2}, v{vRS}, v{vT+1}",
            f"v_cvt_pk_bf16_f32 v{vT}, v{vT+1}, v{vT+2}", f"v_mov_b32 v{vT+1}, 0", f"v_mov_b32 v{vT+2}, 0", f"v_mov_b32 v{vT+3}, 0",
            f"v_cmp_gt_u32 vcc, 512, v{vL16}", f"v_mov_b32 v{vT+4}, 0x3f803f80", f"v_cndmask_b32 v{vT+4}, 0, v{vT+4}, vcc",
            f"v_mov_b32 v{vT+5}, 0", f"v_mov_b32 v{vT+6}, 0", f"v_mov_b32 v{vT+7}, 0",
            f"v_mul_f32 v{vRS+1}, {hex(f2u(0.25*LOG2E))}, v{vRS}",
            "v_bfe_u32 v12, v0, 4, 1", "v_lshlrev_b32 v12, 17, v12", "v_and_b32 v13, 15, v0", "v_lshlrev_b32 v13, 4, v13", "v_add_u32 v12, v12, v13",
            "v_bfe_u32 v13, v0, 5, 1", "v_lshlrev_b32 v13, 8, v13", "v_add_u32 v12, v12, v13",
            f"v_mfma_f32_32x32x16_bf16 {vr(vR,16)}, {vr(vT)}, {vr(vT+4)}, 0"]
def qk_tile(a, dst, sc, fl, p0):
    o = []
    sb, hs = (sB, KB) if dst == QF else (sCc, 128*KB)
    for half in range(2):
        p = p0 + 4*half
        for j in range(4):
            r = a + 8*half + 2*j
            o += [f"v_mul_f32 v{r}, v{r}, v{sc}", f"v_mul_f32 v{r+1}, v{r+1}, v{sc}", f"v_cvt_pk_bf16_f32 v{p+j}, v{r}, v{r+1}"]
        o += [f"s_add_u32 s{sT2}, s{sb}, {dst + half*hs}", f"buffer_store_dwordx4 {vr(p)}, v{vL16}, {srd(sWS)}, s{sT2} offen{fl}"]
    return o
def v_tile(a, L, vR, p0):
    o = [f"s_add_u32 s{sT2}, s{sCc}, {KVF(L) + KB}"]
    for u in range(2):
        p = p0 + 4*u
        for j in range(4):
            r = a + 8*u + 2*j; q = vR + 8*u + 2*j
            o += [f"v_mul_f32 v{r}, v{r}, v{q}", f"v_mul_f32 v{r+1}, v{r+1}, v{q+1}", f"v_cvt_pk_bf16_f32 v{p+j}, v{r}, v{r+1}"]
        o.append(f"buffer_store_dwordx4 {vr(p)}, v12, {srd(sWS)}, s{sT2} offen offset:{u*512} sc1")
    return o
def kv_flag(k, L, tkv):
    k(f"s_lshl_b32 s{sF}, s{sA}, 4\ns_lshr_b32 s{sT1}, s{sRB}, 2\ns_add_u32 s{sF}, s{sF}, s{sT1}\ns_lshl_b32 s{sF}, s{sF}, 7\ns_add_u32 s{sF}, s{sF}, {FKV(L)}")
    publish_wg(k, tkv)
def q_flag(k, L, tq):
    k(f"s_lshr_b32 s{sF}, s{sRB}, 3\ns_lshl_b32 s{sF}, s{sF}, 4\ns_add_u32 s{sF}, s{sF}, s{sA}\ns_lshl_b32 s{sF}, s{sF}, 3\ns_and_b32 s{sT1}, s{sRB}, 7\ns_add_u32 s{sF}, s{sF}, s{sT1}\ns_lshl_b32 s{sF}, s{sF}, 3\ns_add_u32 s{sF}, s{sF}, {FLOC(L-1,5)}")
    publish_local(k, tq, force_global=(L == 0))

WARM = True
LIN_AT = 3
LIN_U = True
Q0_ROT = True
Q0_MARKS = False
Q0_MARKJ = ()
Q0_SCHED = ((2, 3), (4, 5), (6,), (7,), (), (), (), ())
LATE_AT = 1
Q0_UP = 2
PK_AT = (5, 5, 5, 5, 6, 6, 6, 6)
def ph_qkv0(k, late):
    vX, vACC, vST, vEXT, vRS, vT, vR = 16, 144, 192, 8, 6, 224, 232
    vXA, vWA, vXR, vTR, vTW, vCS, vCW, vONE = 10, 12, 196, 200, 202, 204, 208, 220
    sXS, sWR, sXL, sWL = 60, 56, sD, sE
    k(f"s_lshr_b32 s{sRB}, s{sG}, 1\ns_lshl_b32 s{sRB}, s{sRB}, 2\ns_add_u32 s{sRB}, s{sRB}, s{sC3}\ns_lshl_b32 s{sRB}, s{sRB}, 2\ns_add_u32 s{sRB}, s{sRB}, s{sW}")
    k(f"s_and_b32 s{sA}, s{sG}, 1\ns_lshl_b32 s{sA}, s{sA}, 3\ns_and_b32 s{sT0}, s{sC}, 7\ns_add_u32 s{sA}, s{sA}, s{sT0}")
    k(f"v_bfe_u32 v{vXA}, v0, 3, 3\nv_lshlrev_b32 v{vXA}, 10, v{vXA}\nv_and_b32 v13, 7, v0\nv_bfe_u32 v14, v0, 4, 2\nv_xor_b32 v13, v13, v14")
    k(f"v_lshlrev_b32 v13, 4, v13\nv_add_u32 v{vXA}, v{vXA}, v13\nv_xor_b32 v{vXA+1}, 64, v{vXA}")
    k(f"v_bfe_u32 v{vWA}, v0, 2, 4\nv_mul_u32_u24 v{vWA}, 3072, v{vWA}\nv_and_b32 v13, 3, v0\nv_lshlrev_b32 v13, 4, v13\nv_add_u32 v{vWA}, v{vWA}, v13")
    k(f"s_lshl_b32 s{sX}, s{sRB}, 15")
    k(f"s_mul_i32 s{sX2}, s{sW}, 49152\ns_lshl_b32 s{sT0}, s{sA}, 6\ns_add_u32 s{sX2}, s{sX2}, s{sT0}")
    k(f"s_lshl_b32 s{sXL}, s{sW}, 14\ns_add_u32 s{sXL}, s{sXL}, {96*KB}\ns_mul_i32 s{sWL}, s{sW}, 3072")
    k("s_waitcnt lgkmcnt(0)")
    if Q0_MARKS: mark(k, 'karg')
    k(f"s_mov_b32 s{sWR}, s64\ns_and_b32 s{sWR+1}, s65, 0xffff\ns_mov_b32 s{sWR+2}, {512*3072}\ns_mov_b32 s{sWR+3}, 0x20000")
    k(f"s_and_b32 s{sXS+1}, s{sXS+1}, 0xffff\ns_mov_b32 s{sXS+2}, {2*MB}\ns_mov_b32 s{sXS+3}, 0x20000")
    ct = {}; cn = {j: 0 for j in range(8)}
    k(f"s_lshl_b32 s{sCc}, s{sC3}, 1\ns_add_u32 s{sCc}, s{sCc}, s{sC}")
    def rot(j):
        k(f"s_add_u32 s{sT3}, s{sCc}, {j}\ns_and_b32 s{sT3}, s{sT3}, {7 if Q0_ROT else 0}")
        if not Q0_ROT: k(f"s_mov_b32 s{sT3}, {j}")
        k(f"s_lshl_b32 s{sS0}, s{sT3}, 7\ns_add_u32 s{sS0}, s{sS0}, s{sX}")
        k(f"s_mul_i32 s{sS1}, s{sT3}, {4*49152}\ns_add_u32 s{sS1}, s{sS1}, s{sX2}")
    def ldW(j, t):
        k(f"s_add_u32 m0, s{sWL}, {(12*j + t)*KB}\ns_add_u32 s{sT2}, s{sS1}, {((t+1) % 3)*1024}")
        ct[j] = k.vm(f"buffer_load_dwordx4 v{vWA}, {srd(sWR)}, s{sT2} offen lds"); cn[j] += 1
    def ldX(j, i):
        if i == 0: rot(j)
        k(f"s_add_u32 m0, s{sXL}, {(j & 3)*4*KB + i*KB}\ns_add_u32 s{sT2}, s{sS0}, {i*8192}")
        ct[j] = k.vm(f"buffer_load_dwordx4 v{vXA + (i & 1)}, {srd(sXS)}, s{sT2} offen lds"); cn[j] += 1
    def chunk_loads(j):
        return [lambda i=i: ldX(j, i) for i in range(4)] + [lambda t=t: ldW(j, t) for t in range(3)]
    for j in range(Q0_UP):
        for f in chunk_loads(j): f()
        if j + 1 == LATE_AT: late(k)
    pack_decode(k)
    k(f"s_cmp_eq_u32 s{sW}, 0\ns_cselect_b64 s[90:91], s[68:69], s[70:71]")
    k(f"s_cmp_eq_u32 s{sW}, 2\ns_cselect_b64 s[90:91], s[72:73], s[90:91]")
    k(f"s_cmp_eq_u32 s{sW}, 3\ns_cselect_b64 s[90:91], s[66:67], s[90:91]\ns_cselect_b32 s{sT0}, 16, 56")
    k(f"s_mul_i32 s{sT1}, s{sT0}, s{sU}\ns_sub_u32 s{sT0}, s{sT0}, 1")
    k(f"v_and_b32 v254, 63, v0\nv_min_u32 v254, s{sT0}, v254\nv_add_u32 v254, s{sT1}, v254\nv_lshlrev_b32 v254, 7, v254")
    pk = G.pk = Pack(k)
    if PK_Q0: pk.issue(*range(8))
    k(f"v_and_b32 v13, 31, v0\nv_bfe_u32 v14, v0, 1, 3\nv_bfe_u32 v15, v0, 5, 1\nv_xor_b32 v14, v14, v15\nv_lshlrev_b32 v14, 4, v14\nv_lshl_add_u32 v13, v13, 7, v14")
    for e in range(4):
        k(f"v_xor_b32 v{vXR+e}, {e*32}, v13\nv_add_u32 v{vXR+e}, s{sXL}, v{vXR+e}")
    tr_addr(k, vTR, 13)
    k(f"v_add_u32 v{vTR+1}, {48*KB}, v{vTR}\nv_add_u32 v{vTW}, s{sWL}, v{vTR}\nv_add_u32 v{vTW+1}, {48*KB}, v{vTW}")
    k(f"v_mov_b32 v{vONE}, 0x3f803f80\nv_add_u32 v255, s84, v{vTR}\nv_accvgpr_write_b32 a212, v255")
    for r in range(192, 196): k(f"v_accvgpr_write_b32 a{r}, v{vONE}")
    for r in list(range(vST, vST+4)) + list(range(vCS, vCS+3)): k(f"v_mov_b32 v{r}, 0")
    def reads(j):
        o = []
        for e in range(4):
            o.append(f"ds_read_b128 {vr(vX + 16*j + 4*e)}, v{vXR+e} offset:{(j & 3)*4*KB}")
        for t in range(3):
            off = (12*(j & 3) + t)*KB
            o.append(f"ds_read_b64_tr_b16 {vr(vCW+4*t,2)}, v{vTW + (j >> 2)} offset:{off}")
            o.append(f"ds_read_b64_tr_b16 {vr(vCW+4*t+2,2)}, v{vTW + (j >> 2)} offset:{off+256}")
        for b in range(12):
            off = (12*(j & 3) + b)*KB; r = 48*(j & 1) + 4*b
            o.append(f"ds_read_b64_tr_b16 {ar(r,2)}, v{vTR + (j >> 2)} offset:{off}")
            o.append(f"ds_read_b64_tr_b16 {ar(r+2,2)}, v{vTR + (j >> 2)} offset:{off+256}")
        return o
    def dots(j):
        for i in range(16):
            r = vX + 16*j + i
            k(f"v_dot2c_f32_bf16 v{vST + 2*(i & 1)}, v{vONE}, v{r}\nv_dot2c_f32_bf16 v{vST + 1 + 2*(i & 1)}, v{r}, v{r}")
        for i in range(4):
            for t in range(3): k(f"v_dot2c_f32_bf16 v{vCS+t}, v{vONE}, v{vCW+4*t+i}")
    def xid():
        k(f"s_add_u32 s{sTAG}, s{sTAG}, 0x7f4a7c15\ns_addc_u32 s{sTAG+1}, s{sTAG+1}, 0x9e3779b9")
        k("v_mov_b32 v13, 0")
        k("s_mov_b64 exec, 1")
        if FLAG_TOUCH:
            k(f"s_lshl_b32 s{sF}, s{sA}, 4\ns_lshr_b32 s{sT1}, s{sRB}, 2\ns_add_u32 s{sF}, s{sF}, s{sT1}\ns_lshl_b32 s{sF}, s{sF}, 7\ns_add_u32 s{sF}, s{sF}, {FKV(0)}")
            k.vm(f"buffer_load_dword v5, v13, {srd(sWS)}, s{sF} offen sc1")
            k(f"s_lshl_b32 s{sF}, s{sU}, 7\ns_add_u32 s{sF}, s{sF}, {FPK}")
            k.vm(f"buffer_load_dword v5, v13, {srd(sWS)}, s{sF} offen sc1")
        k("s_mov_b64 exec, -1")
    def lin_touch():
        k.vm("global_load_dword v5, v254, s[90:91]")
    side = []
    tpk = [None]
    if Q0_MARKS: mark(k, 'iss')
    k.wait(vm=ct[0])
    if Q0_MARKS: mark(k, 'w0')
    k("s_barrier")
    mark(k, 'd0')
    rl = reads(0)
    for x in rl[:10]: t10 = k.lg(x)
    for x in rl[10:]: k.lg(x)
    k.wait(lg=t10)
    dots(0)
    for j in range(8):
        for c_ in Q0_SCHED[j]:
            assert c_ - 4 <= j
            side += chunk_loads(c_)
        if j == 1: side.append(xid)
        if PK_EARLY: side += [lambda i=i: pk.issue(i) for i in range(8) if PK_AT[i] == j]
        if j == LIN_AT and not PK_Q0: side.append(lin_touch)
        if PK_Q0:
            assert all(c_ < 5 or j > PK_RD for c_ in Q0_SCHED[j])
            if j == PK_RD: side += [lambda i=i: pk.reads(2*i, 2*i+1) for i in range(4)]
            if j == PK_ST: side += [lambda i=i: (pk.stores(i), pk.csum(i)) for i in range(4)]
            if j == PK_ST + 1: side += [lambda i=i: (pk.stores(i), pk.csum(i)) for i in range(4, 8)]
            if j == PK_ST + 2: side.append(pk.ext)
        k.wait_all(vm=False)
        rl = []
        if j < 7:
            assert cn[j+1] == 7
            k.wait(vm=ct[j+1]); k("s_barrier")
            if j in Q0_MARKJ: mark(k, f'c{j+1}')
            rl = reads(j + 1)
        t10 = None; nr = 0
        if j == 7:
            tail = f"s_lshr_b32 s{sT0}, s{sW}, 1\ns_lshl_b32 s{sT0}, s{sT0}, 9\ns_and_b32 s{sT1}, s{sW}, 1\ns_lshl_b32 s{sT1}, s{sT1}, 3\ns_add_u32 s{sT0}, s{sT0}, s{sT1}".split('\n')
            tail += [f"v_and_b32 v13, 0x1f0, v{vL16}", f"v_add_u32 v13, s{sT0}, v13"]
            for t in range(3): tail += ext_pair(vCS+t, vCW+2*t, 14) + [f"ds_write_b64 v13, {vr(vCW+2*t,2)} offset:{t*KB}"]
            fin = fin_stats(vST, vEXT, vRS)[NTREE:] + qkv_consts(vT, vRS, vR)
            tail += [f"v_add_f32 v{vST}, v{vST}, v{vST+2}", f"v_add_f32 v{vST+1}, v{vST+1}, v{vST+3}"] + fin[:18]
            tail += ["s_waitcnt lgkmcnt(0)", "s_barrier"] + [f"ds_read_b128 {vr(vCW+4*t)}, v{vL16} offset:{t*KB}" for t in range(3)] + fin[18:]
            tail += f"s_lshl_b32 s{sCc}, s{sA}, 18\ns_lshl_b32 s{sT1}, s{sRB}, 11\ns_add_u32 s{sCc}, s{sCc}, s{sT1}".split('\n')
            tail += f"s_mul_i32 s{sB}, s{sRB}, {112*KB}\ns_lshl_b32 s{sT1}, s{sA}, 11\ns_add_u32 s{sB}, s{sB}, s{sT1}".split('\n')
            assert not side
            n_ = -(-len(tail) // 12)
            side = [lambda c=tail[i:i+n_]: [k(x) for x in c] for i in range(0, len(tail), n_)]
        for b in range(12):
            ks = 4*j + b // 3; t = b % 3
            acc = vr(vACC + 16*t, 16); w = ar(48*(j & 1) + 4*b); x = vr(vX + 4*ks)
            A, B = (x, w) if t == 1 else (w, x)
            k(f"v_mfma_f32_32x32x16_bf16 {acc}, {A}, {B}, {'0' if ks == 0 else acc}")
            if ks == 0 and t == 0: mark(k, 'm0')
            for _ in range(3):
                if rl:
                    t_ = k.lg(rl.pop(0)); nr += 1
                    if nr == 10: t10 = t_
            if side: side.pop(0)()
            if len(side) > 11 - b: side.pop(0)()
        if j < 7:
            assert not rl
            k.wait(lg=t10)
            dots(j + 1)
    while side: side.pop(0)()
    mark(k, 'loop')
    k.wait_all(vm=False)
    for t in range(3):
        c = vCW + 4*t
        acc = vr(vACC + 16*t, 16)
        A, B = (vr(vEXT), vr(c)) if t == 1 else (vr(c), vr(vEXT))
        k(f"v_mfma_f32_32x32x16_bf16 {acc}, {A}, {B}, {acc}")
    t_ = None
    for x in qk_tile(vACC, KVF(0), vRS, " sc1", vX) + v_tile(vACC+16, 0, vR, vX+8) + qk_tile(vACC+32, QF, vRS+1, " sc1", vX+16):
        if x.startswith('buffer'): t_ = k.vm(x)
        else: k(x)
    mark(k, 'st')
    return t_, t_

def ph_qkv(k, L, ring, b0):
    vX, vACC, vST, vEXT, vRS, vT, vR = 16, 144, 192, 8, 6, 224, 232
    rb_128(k)
    k(f"s_and_b32 s{sA}, s{sC}, 15")
    k(f"s_lshl_b32 s{sX}, s{sRB}, 15\ns_add_u32 s{sX}, s{sX}, {XF}")
    set_lds_bases(k)
    ops = []
    b = b0
    for tiles in ((0, 1), (2,)):
        for ks in range(33):
            for t in tiles:
                ops.append(dict(b=b, bmin=b, bmax=b, xi=(ks if ks < 32 else None), x=(vr(vX+4*ks) if ks < 32 else vr(vEXT)),
                                acc=vr(vACC+16*t, 16), swap=(t == 1), first=(ks == 0)))
                b += 1
    xq = XLoader(k, 32, lambda i: vr(vX+4*i), lin_src(k))
    res = {}
    se = stats_emitters(k, vST, res)
    k(f"s_lshl_b32 s{sCc}, s{sA}, 18\ns_lshl_b32 s{sT1}, s{sRB}, 11\ns_add_u32 s{sCc}, s{sCc}, s{sT1}")
    k(f"s_mul_i32 s{sB}, s{sRB}, {112*KB}\ns_lshl_b32 s{sT1}, s{sA}, 11\ns_add_u32 s{sB}, s{sB}, s{sT1}")
    g = Gemm(k, ring, ops, {0, 24, 60} if QW_LATE else {0})
    g.start()
    ring.issue_n(4)
    publish_local(k, G.tx)
    ring.issue_n(4)
    k(f"s_lshl_b32 s{sF}, s{sRB}, 7\ns_add_u32 s{sF}, s{sF}, {FLOC(L-1, 8)}")
    poll16(k)
    aps = stats_poll(k, FLOC(L-1,7) - FLOC(L-1,8))
    fin = fin_stats(vST, vEXT, vRS) + qkv_consts(vT, vRS, vR)
    epi = qk_tile(vACC, KVF(L), vRS, " sc1", vST) + v_tile(vACC+16, L, vR, vST+16)
    st = dict(i=0, j=0, t=None)
    def put(x):
        if x.startswith('buffer'): st['t'] = k.vm(x)
        else: k(x)
    def filler(m):
        if aps and m == 4: aps.issue()
        if m == 22:
            if aps: aps.check()
            for e in se: e()
        if 44 <= m < 64:
            if st['i'] == 0: k.wait(vm=res['t'])
            for _ in range(3):
                if st['i'] < len(fin): k(fin[st['i']]); st['i'] += 1
        if m >= 68:
            for _ in range(4):
                if st['j'] < len(epi): put(epi[st['j']]); st['j'] += 1
    g.run(xq, n0=8, filler=filler)
    assert st['i'] == len(fin) and st['j'] == len(epi)
    tkv = st['t']
    for x in qk_tile(vACC + 32, QF, vRS + 1, "", vST+8): put(x)
    mark(k, 'st')
    return tkv, st['t']

def code_touch(k, vd, skip=0):
    if not CODE_TOUCH: return
    k(f"s_getpc_b64 s[{sPC}:{sPC+1}]\ns_add_u32 s{sPC}, s{sPC}, s{sCT}\ns_addc_u32 s{sPC+1}, s{sPC+1}, 0")
    k.vm(f"global_load_dword v{vd}, v{vL16}, s[{sPC}:{sPC+1}] offset:{skip}")

def flag_touch(k, L, va, vd):
    if not FL_TOUCH: return
    k(f"v_bfe_u32 v{va}, v0, 3, 3\nv_lshlrev_b32 v{va}, 6, v{va}\nv_and_or_b32 v{va}, v0, 7, v{va}\nv_lshlrev_b32 v{va}, 7, v{va}")
    k(f"s_lshl_b32 s{sT3}, s{sG}, 10\ns_add_u32 s{sT3}, s{sT3}, {FLOC(L,0)}")
    k.vm(f"buffer_load_dword v{vd}, v{va}, {srd(sWS)}, s{sT3} offen sc1")

def ph_att(k, L, ring, tkv, tq):
    vO, vS0, vKV, aQ = 16, 144, 208, aWB
    NS = 4
    vS = [vS0 + 16*i for i in range(NS)]
    vK, vV, vIDX, vL128 = 6, 7, 8, 9
    sK, sHD = sB, sE
    k(f"s_lshl_b32 s{sHD}, s{sC}, 16")
    k(f"s_lshl_b32 s{sT0}, s{sC}, 17\ns_add_u32 s{sT0}, s{sT0}, s{sW4K}\ns_add_u32 s{sT0}, s{sT0}, {KVF(L)}")
    k("v_and_b32 v10, 0x33, v0\nv_bfe_u32 v11, v0, 2, 1\nv_lshlrev_b32 v11, 3, v11\nv_or_b32 v10, v10, v11")
    k(f"v_bfe_u32 v11, v0, 3, 1\nv_lshlrev_b32 v11, 2, v11\nv_or_b32 v10, v10, v11\nv_lshl_add_u32 v{vK}, v10, 4, s{sT0}")
    k(f"v_and_b32 v10, 15, v0\nv_bfe_u32 v11, v0, 5, 1\nv_lshlrev_b32 v11, 4, v11\nv_add_u32 v10, v10, v11\nv_lshl_add_u32 v{vV}, v10, 4, s{sT0}")
    k(f"v_mov_b32 v{vIDX}, 0xdddddddd\nv_lshlrev_b32 v{vL128}, 3, v{vL16}")
    k(f"s_lshl_b32 s{sK}, s{sG}, 14")
    k("v_and_b32 v10, 27, v0\nv_cmp_eq_u32 vcc, 16, v10\nv_mov_b32 v11, 0x3f803f80\nv_cndmask_b32 v11, 0, v11, vcc")
    k("v_mov_b32 v144, v11")
    k(f"s_lshr_b32 s{sT0}, s{sC}, 1\ns_lshl_b32 s{sD}, s{sT0}, 11\ns_add_u32 s{sD}, s{sD}, {FKV(L)}")
    k(f"s_lshl_b32 s{sT3}, s{sG}, 8\ns_add_u32 s{sT3}, s{sT3}, s{sD}")
    if L == 0:
        k(f"v_and_b32 v11, 1, v0\nv_lshlrev_b32 v11, 7, v11\nv_add_u32 v11, s{sT3}, v11")
        k(f"v_cmp_gt_u32 vcc, 512, v{vL16}")
    k(f"s_lshr_b32 s{sT1}, s{sW}, 1\ns_lshl_b32 s{sT1}, s{sT1}, 7\ns_add_u32 s{sD}, s{sD}, s{sT1}")
    if L:
        k(f"s_add_u32 s{sT3}, s{sT3}, s{sT1}")
        k(f"s_lshl_b32 s{sT2}, s{sG}, 10\ns_lshl_b32 s{sT0}, s{sT0}, 6\ns_add_u32 s{sT2}, s{sT2}, s{sT0}\ns_add_u32 s{sT2}, s{sT2}, {FLOC(L-1,5)}")
        k(f"v_mov_b32 v12, s{sT3}\nv_and_b32 v11, 7, v0\nv_lshlrev_b32 v11, 3, v11\nv_add_u32 v11, s{sT2}, v11")
        k(f"v_cmp_gt_u32 vcc, 512, v{vL16}\nv_cndmask_b32 v11, v11, v12, vcc")
    k(f"v_and_b32 v12, 7, v0\nv_lshlrev_b32 v12, 8, v12")
    k(f"s_mul_i32 s{sT2}, s{sG}, {8*112*KB}\ns_lshl_b32 s{sT3}, s{sC}, 10\ns_add_u32 s{sT2}, s{sT2}, s{sT3}\ns_add_u32 s{sT2}, s{sT2}, {QF}")
    sQ = list(range(64, 72))
    for p in range(4):
        k(f"s_xor_b32 s{sT3}, s{sW}, {p}\ns_mul_i32 s{sT3}, s{sT3}, {2*112*KB}\ns_add_u32 s{sQ[2*p]}, s{sT3}, s{sT2}\ns_add_u32 s{sQ[2*p+1]}, s{sQ[2*p]}, {112*KB}")
    sTH, sTW, sFO = 72, 73, 79
    k(f"s_lshl_b32 s{sT3}, s{sU}, 2\ns_add_u32 s{sT3}, s{sT3}, s{sW}")
    k(f"s_mul_i32 s{sTH}, s{sT3}, {7*KB}\ns_add_u32 s{sTH}, s{sTH}, {HF}")
    k(f"s_lshl_b32 s{sT0}, s{sT3}, 11\ns_add_u32 s{sT0}, s{sT0}, {XF}\ns_lshl_b32 s{sT1}, s{sT3}, 8\ns_add_u32 s{sT1}, s{sT1}, {SX}")
    k(f"v_and_b32 v3, 0x780, v{vL128}\nv_add_u32 v3, s{sT0}, v3\nv_and_b32 v13, 0x80, v{vL128}\nv_add_u32 v13, s{sT1}, v13\nv_cndmask_b32 v3, v13, v3, vcc")
    k(f"s_lshl_b32 s{sTW}, s{sC4}, 2\ns_add_u32 s{sTW}, s{sTW}, s{sW}\ns_mul_i32 s{sTW}, s{sTW}, {TOUCH_KBS[L] * KB // 8}")
    k(f"s_add_u32 s{sTW}, s{sTW}, s{sSEG+1}\ns_add_u32 s{sTW}, s{sTW}, {32*KB}")
    k(f"s_and_b32 s{sCT}, s{sT3}, 31\ns_lshl_b32 s{sCT}, s{sCT}, 10")
    k(f"s_lshl_b32 s{sFO}, s{sG}, 2\ns_add_u32 s{sFO}, s{sFO}, s{sW}\ns_lshl_b32 s{sFO}, s{sFO}, 5\ns_add_u32 s{sFO}, s{sFO}, s{sC}\ns_lshl_b32 s{sFO}, s{sFO}, 3\ns_add_u32 s{sFO}, s{sFO}, {FLOC(L,0)}")
    if L == 0:
        for i in range(48, 128): k(f"v_mov_b32 v{vO+i}, 0")
    mark(k, 'pre')
    if L: q_flag(k, L, tq)
    kv_flag(k, L, tkv)
    if L == 0 and PK_Q0:
        k(f"s_lshl_b32 s{sF}, s{sU}, 7\ns_add_u32 s{sF}, s{sF}, {FPK}\nv_mov_b32 v145, v12")
        publish_wg(k, None, xid=True, barrier=False)
        k("v_mov_b32 v12, v145")
    mark(k, 'flag')
    if L:
        for i in range(48, 128): k(f"v_mov_b32 v{vO+i}, 0")
    if L == 0 and LIN_AT == 'flag': k.vm("global_load_dword v5, v254, s[90:91]")
    for b in range(4):
        for j in range(8): k(f"v_mov_b32 v{vKV+12*b+4+j}, v144")
    k(f"s_mov_b32 s{sF}, 0")
    poll(k, 11, 14, sleep=SLEEP1[L])
    mark(k, 'poll')
    K = lambda t: vr(vKV + 12*(t % 4))
    V = lambda t, u: vr(vKV + 12*(t % 4) + 4 + 4*u)
    kt = {}; vt = {}
    def ldK(t):
        if t and (t & 1) == 0: k(f"s_add_u32 s{sK}, s{sK}, 0x4000\ns_and_b32 s{sK}, s{sK}, 0x1ffff")
        kt[t] = k.vm(f"buffer_load_dwordx4 {K(t)}, v{vK}, {srd(sWS)}, s{sK} offen offset:{(t & 1)*2*KB} sc1")
    def ldV(t):
        k(f"s_mov_b64 exec, s[{sMSK}:{sMSK+1}]")
        k.vm(f"buffer_load_dwordx4 {V(t,0)}, v{vV}, {srd(sWS)}, s{sK} offen offset:{(t & 1)*2*KB+KB} sc1")
        vt[t] = k.vm(f"buffer_load_dwordx4 {V(t,1)}, v{vV}, {srd(sWS)}, s{sK} offen offset:{(t & 1)*2*KB+KB+512} sc1")
        k("s_mov_b64 exec, -1")
    def ldKV(t):
        ldK(t); ldV(t); kt[t] = vt[t]
    ldK(0)
    qt = {}
    for s in range(8):
        qt[s] = k.vm(f"buffer_load_dwordx4 {ar(aQ+4*s)}, v{vL16}, {srd(sWS)}, s{sQ[s]} offen sc1")
        if s == 2: ldV(0)
    ldKV(1)
    ap2 = apoll1(k, 12, 10, sD, sleep=SLEEP2)
    for i in range(48): k(f"v_mov_b32 v{vO+i}, 0")
    steps = [(t, q) for t in range(15) for q in range(8)] + [(15, q) for q in (2, 3, 4, 5, 6, 7, 0, 1)]
    n = len(steps)
    LA = NS - 1
    def qk(i):
        t, q = steps[i]
        k.wait(vm=max(kt[t], qt[q]) if t == 0 else kt[t])
        k(f"v_mfma_f32_32x32x16_bf16 {vr(vS[i % NS],16)}, {K(t)}, {ar(aQ+4*q)}, 0")
    def pv(i, u):
        t, q = steps[i]
        k.wait(vm=vt[t])
        k(f"v_smfmac_f32_32x32x32_bf16 {vr(vO+16*q,16)}, {V(t,u)}, {vr(vS[i % NS]+8*u,8)}, v{vIDX}")
    for i in range(LA): qk(i)
    mark(k, 'm0')
    ring.limit = 96
    jobs = {}
    def job(i, f, e=10): jobs.setdefault((i, e), []).append(f)
    job(0, lambda: code_touch(k, 5))
    job(P2_AT - 4, ap2.issue)
    job(P2_AT, lambda: (ap2.check(), ldKV(2), ldKV(3)))
    for t in range(1, 13): job(8*t, lambda t=t: ldKV(t + 3))
    def kvpf(j):
        def f():
            k(f"s_add_u32 s{sT0}, s{sG}, {2*j}\nv_bfe_u32 v13, v0, 5, 1\nv_add_u32 v13, s{sT0}, v13\nv_and_b32 v13, 7, v13\nv_lshlrev_b32 v13, 14, v13")
            k(f"v_and_b32 v14, 0xf80, v{vL128}\nv_add_u32 v13, v13, v14")
            k(f"s_lshl_b32 s{sT0}, s{sC}, 17\ns_add_u32 s{sT0}, s{sT0}, s{sW4K}\ns_add_u32 s{sT0}, s{sT0}, {KVF(L)}")
            k.vm(f"buffer_load_dword v5, v13, {srd(sWS)}, s{sT0} offen sc1")
        return f
    if KV_PF[L]:
        for j in (2, 3): job(KV_PF[L] + 8*(j-2), kvpf(j))
    if L == 0:
        CHK_AT = CHK_Q0 if PK_Q0 else G.pk.schedule(job) + CHK_GAP
        apk = APoll(k, [f"buffer_load_dwordx2 v[10:11], v{vL128}, {srd(sWS)}, s{sX} offen offset:8 sc1"],
                    f"v_cmp_eq_u64 vcc, s[{sTAG}:{sTAG+1}], v[10:11]", sleep=SLEEP3)
        def chk0():
            k(f"s_lshl_b32 s{sX}, s{sW}, 13\ns_add_u32 s{sX}, s{sX}, {FPK}")
            apk.issue()
        job(CHK_AT - 6, chk0)
        xt_ = {}
        def mode():
            k.wait(vm=xt_['t'])
            k(f"s_xor_b32 s{sT2}, s{sTAG}, s{sXCC}\ns_mov_b32 s{sT3}, s{sTAG+1}")
            k(f"v_cmp_eq_u64 vcc, s[{sT2}:{sT3}], v[14:15]")
            k(f"s_cmp_eq_u64 vcc, -1\ns_cselect_b32 s{sMODE}, 1, 0")
        job(CHK_AT + 17, mode)
        def chk():
            apk.check()
            k("s_barrier")
            k(f"v_and_b32 v13, 0xf80, v{vL128}\ns_lshl_b32 s{sX2}, s{sG}, 12\ns_add_u32 s{sX2}, s{sX2}, {FPK}")
            xt_['t'] = k.vm(f"buffer_load_dwordx2 v[14:15], v13, {srd(sWS)}, s{sX2} offen sc1")
            k(f"s_and_b32 s{sT2}, s{sC}, 7\ns_lshl_b32 s{sT2}, s{sT2}, 1\ns_lshr_b32 s{sT3}, s{sW}, 1\ns_add_u32 s{sT2}, s{sT2}, s{sT3}")
            k(f"s_mul_i32 s{sT3}, s{sW}, {28*KB}\ns_add_u32 s{sT3}, s{sT3}, {WD}")
            k(f"s_mul_i32 s{sX}, s{sT2}, {112*KB}\ns_add_u32 s{sX}, s{sX}, s{sT3}")
            k(f"s_xor_b32 s{sT2}, s{sT2}, 1\ns_mul_i32 s{sX2}, s{sT2}, {112*KB}\ns_add_u32 s{sX2}, s{sX2}, s{sT3}")
        job(CHK_AT, chk)
        def wsrc(i):
            s_ = sX if i < 28 else sX2
            j = i % 28
            if j and (j & 3) == 0: k(f"s_add_u32 s{s_}, s{s_}, 4096")
            return s_, (j & 3) * KB
        wq = XLoader(k, 56, lambda i: ar(aWD + 8*(i % 28) + 4*(i // 28)), wsrc)
        slots = [i for i in range(CHK_AT + 1, 112) if i % 8 in WD_SLOTS]
        work = [lambda: wq.issue_n(4)] * 14
        rw = [ring.issue16] * 6
        seq = []
        while work or rw:
            if work: seq.append(work.pop(0))
            if work: seq.append(work.pop(0))
            if rw: seq.append(rw.pop(0))
        assert len(seq) <= len(slots), (len(seq), len(slots))
        for i, f in zip(slots, seq): job(i, f)
    else:
        for j in range(6): job(12 + 8*j, ring.issue16)
    def tch(j):
        def f():
            if j: k(f"s_add_u32 s{sTW}, s{sTW}, 8192")
            k.vm(f"buffer_load_dword v5, v{vL128}, {srd(sWS)}, s{sTW} offen sc1")
        return f
    for j in range(-(-TOUCH_KBS[L] // 64)): job(TOUCH_AT[L] + j*TOUCH_STEP, tch(j))
    job(TACT_AT, lambda: k.vm(f"buffer_load_dword v5, v{vL128}, {srd(sWS)}, s{sTH} offen sc1"))
    def tact():
        k.vm(f"buffer_load_dword v5, v3, {srd(sWS)}, 0 offen sc1")
        code_touch(k, 5)
    job(TACT_AT + 4, tact)
    job(TACT_AT + 8, lambda: flag_touch(k, L, 4, 5))
    SC = 96 * KB
    vWA = 10
    def red_setup():
        k(f"s_lshl_b32 s{sT0}, s{sW}, 14\nv_add_u32 v13, s{sT0}, v{vL16}")
        for j in range(1, 4):
            k(f"v_xor_b32 v{vWA+j-1}, {j << 14}, v13\nv_add_u32 v{vWA+j-1}, {SC}, v{vWA+j-1}")
        k(f"v_add_u32 v13, {SC}, v13")
    job(118, red_setup)
    def red_write(s):
        j = s >> 1; z = s & 1
        k.lg(f"ds_write_b128 v{vWA+j-1}, {vr(vO+16*s)} offset:{(z*3+j-1)*2*KB}")
        k.lg(f"ds_write_b128 v{vWA+j-1}, {vr(vO+16*s+4)} offset:{(z*3+j-1)*2*KB+KB}")
        k.lg(f"ds_write_b32 v{vWA+j-1}, v{vO+16*s+8} offset:{(12+z)*KB+(j-1)*4}")
    for i in range(120, 126):
        job(i + 2, lambda s=steps[i][1]: red_write(s), e=2)
    tl = []
    def red_read():
        k.wait_all()
        k("s_barrier")
        for z in range(2):
            k.lg(f"ds_read_b128 {vr(vO+32+48*z+8)}, v13 offset:{(12+z)*KB}")
            for j in range(3):
                b = vO + 32 + (z*3 + j)*16
                k.lg(f"ds_read_b128 {vr(b)}, v13 offset:{(z*3+j)*2*KB}")
                tl.append(k.lg(f"ds_read_b128 {vr(b+4)}, v13 offset:{(z*3+j)*2*KB+KB}"))
    job(127, red_read)
    for i, (t, q) in enumerate(steps):
        s = vS[i % NS]
        if i in ATT_MARKS: mark(k, f's{i}')
        for e in range(16):
            if e == 2 and i > 0: pv(i-1, 1)
            if e == 6 and i + LA < n: qk(i + LA)
            if e == 10: pv(i, 0)
            for f in jobs.pop((i, e), []): f()
            k(f"v_exp_f32 v{s+e}, v{s+e}")
    pv(n-1, 1)
    assert not jobs, jobs.keys()
    assert ring.issued == 96
    mark(k, 'loop')
    for z in range(2):
        o = vO + 16*z; l = vO + 32 + 48*z + 8
        k.wait(lg=tl[z*3])
        k(f"v_add_f32 v{l}, v{l}, v{l+1}\nv_add_f32 v{o+8}, v{o+8}, v{l+2}\nv_add_f32 v{o+8}, v{o+8}, v{l}\nv_rcp_f32 v{o+9}, v{o+8}")
        for j in range(3):
            b = vO + 32 + (z*3 + j)*16
            k.wait(lg=tl[z*3+j])
            for i in range(8): k(f"v_add_f32 v{o+i}, v{o+i}, v{b+i}")
        for j in range(4):
            k(f"v_mul_f32 v{o+2*j}, v{o+2*j}, v{o+9}\nv_mul_f32 v{o+2*j+1}, v{o+2*j+1}, v{o+9}")
            k(f"v_cvt_pk_bf16_f32 v{o+12+j}, v{o+2*j}, v{o+2*j+1}")
        ts = k.vm(f"buffer_store_dwordx4 {vr(o+12)}, v{vL16}, {srd(sWS)}, s{sQ[z]} offen")
    mark(k, 'f_st')
    k(f"s_mov_b32 s{sF}, s{sFO}")
    ring.end16()
    ring.limit = 144
    return ts

def load_res(k, v):
    k(f"s_add_u32 s{sT1}, s{sDST}, {XF}")
    k.vm(f"buffer_load_dwordx4 {vr(v)}, v{vL16}, {srd(sWS)}, s{sT1} offen sc1")
    return k.vm(f"buffer_load_dwordx4 {vr(v+4)}, v{vL16}, {srd(sWS)}, s{sT1} offen offset:1024 sc1")
def add_res(k, acc, v):
    for j in range(8):
        k(f"v_lshlrev_b32 v10, 16, v{v+j}\nv_and_b32 v11, 0xffff0000, v{v+j}")
        k(f"v_add_f32 v{acc+2*j}, v{acc+2*j}, v10\nv_add_f32 v{acc+2*j+1}, v{acc+2*j+1}, v11")

def ph_wo(k, L, ring, tO):
    k.label(f'L_wo{L}')
    vX, vACC, vRES, vSUM, vPK = 16, 80, 112, 120, 136
    k(f"s_lshr_b32 s{sRB}, s{sDST}, 15\ns_lshr_b32 s{sD}, s{sW}, 1")
    k(f"s_mul_i32 s{sX}, s{sRB}, {112*KB}\ns_lshl_b32 s{sT0}, s{sD}, 14\ns_add_u32 s{sX}, s{sX}, s{sT0}\ns_add_u32 s{sX}, s{sX}, {HF}")
    k(f"s_lshl_b32 s{sT0}, s{sD}, 11")
    set_lds_bases(k, sT0)
    seq = []
    for s in range(16):
        seq.append((s, 1))
        if s < 16 - WO_R0: seq.append((s, 0))
    nf = len(seq)
    seq += [(s, 0) for s in range(16 - WO_R0, 16)]
    ops = [dict(b=4*s + a, bmin=0, bmax=63, xi=s, x=vr(vX+4*s), acc=vr(vACC+16*a,16), swap=False, first=(s == 0)) for s, a in seq]
    g = Gemm(k, ring, ops, {0}, stop_issue=WO_STOP)
    if L == 0:
        rowmajor_addr(k, 8, sT0)
        k.vm(f"buffer_load_dwordx4 {vr(vRES)}, v8, {srd(60)}, s{sT0} offen")
        k.vm(f"buffer_load_dwordx4 {vr(vRES+4)}, v8, {srd(60)}, s{sT0} offen offset:32")
    else:
        load_res(k, vRES)
    g.start()
    mark(k, 'f_bar')
    ring.issue_n(PRE_WO)
    publish_local(k, tO)
    mark(k, 'f_pub')
    ring.issue_n(PRE_WO2)
    k(f"s_and_b32 s{sF}, s{sRB}, 0xfe\ns_add_u32 s{sF}, s{sF}, s{sD}\ns_lshl_b32 s{sF}, s{sF}, 7\ns_add_u32 s{sF}, s{sF}, {FLOC(L,0)}")
    SC = 144 * KB
    k(f"s_xor_b32 s{sT0}, s{sW}, 2\ns_lshl_b32 s{sT0}, s{sT0}, 12\ns_add_u32 s{sT0}, s{sT0}, {SC}\nv_add_u32 v6, s{sT0}, v{vL16}")
    k(f"s_lshl_b32 s{sT0}, s{sW}, 12\ns_add_u32 s{sT0}, s{sT0}, {SC}\nv_add_u32 v7, s{sT0}, v{vL16}")
    poll16(k)
    mark(k, 'f_poll')
    xq = XLoader(k, 16, lambda i: vr(vX+4*i), lin_src(k))
    xq.issue_n(WO_N0)
    for x in res_unpack(vSUM, vRES): k(x)
    st = {}
    def xchg(step):
        if step == 0:
            while g.nread < 32: g.rd()
            for j in range(4): k.lg(f"ds_write_b128 v6, {vr(vACC+16+4*j)} offset:{j*KB}")
        elif step == 1:
            k.wait_all(vm=False)
            ring.limit = None
            ring.sync(64, 0)
            for j in range(4): st['t'] = k.lg(f"ds_read_b128 {vr(vACC+16+4*j)}, v7 offset:{j*KB}")
        st['n'] = step + 1
    def filler(m):
        if m == max(nf + 1, 25): xchg(0)
        if m == max(nf + 4, 28): xchg(1)
    g.run(xq, n0=0, look=16, filler=filler)
    for step in range(st.get('n', 0), 2): xchg(step)
    k.wait(lg=st['t'])
    for i in range(16): k(f"v_add_f32 v{vSUM+i}, v{vSUM+i}, v{vACC+16+i}")
    for j in range(8):
        k(f"v_add_f32 v{vACC+2*j}, v{vACC+2*j}, v{vSUM+2*j}\nv_add_f32 v{vACC+2*j+1}, v{vACC+2*j+1}, v{vSUM+2*j+1}")
        k(f"v_cvt_pk_bf16_f32 v{vPK+j}, v{vACC+2*j}, v{vACC+2*j+1}")
    ts = store_x(k, vACC, vPK, L, 1, ring)
    mark(k, 'end')
    return ts

PASSES = ((0, 3), (3, 2), (5, 2))
def ph_up(k, L, ring, b0, tprev):
    vX, vACC, vST, vEXT, vRS = 16, 144, 224, 8, 6
    sH0, sH1 = sD, sE
    rb_128(k)
    k(f"s_and_b32 s{sA}, s{sC}, 15")
    k(f"s_lshl_b32 s{sX}, s{sRB}, 15\ns_add_u32 s{sX}, s{sX}, {XF}")
    set_lds_bases(k)
    ops = []
    b = b0
    for (t0, nt) in PASSES:
        for ks in range(33):
            for t in range(t0, t0+nt):
                ops.append(dict(b=b, bmin=b, bmax=b, xi=(ks if ks < 32 else None), x=(vr(vX+4*ks) if ks < 32 else vr(vEXT)),
                                acc=vr(vACC+16*t, 16), swap=False, first=(ks == 0)))
                b += 1
    g = Gemm(k, ring, ops, UP_SYNCS, stop_issue=UP_STOP)
    g.start()
    mark(k, 'f_bar')
    ring.issue_n(PRE)
    publish_local(k, tprev)
    mark(k, 'f_pub')
    ring.issue_n(PRE2)
    res = {}
    se = stats_emitters(k, vST, res)
    k(f"s_mul_i32 s{sH0}, s{sRB}, 112\ns_mul_i32 s{sT2}, s{sA}, 7\ns_add_u32 s{sH0}, s{sH0}, s{sT2}\ns_lshl_b32 s{sH0}, s{sH0}, 10\ns_add_u32 s{sH0}, s{sH0}, {HF}")
    k(f"s_add_u32 s{sH1}, s{sH0}, 4096")
    k(f"s_lshl_b32 s{sF}, s{sRB}, 7\ns_add_u32 s{sF}, s{sF}, {FLOC(L,1)}")
    poll16(k)
    mark(k, 'f_poll')
    aps = stats_poll(k, FLOC(L,6) - FLOC(L,1))
    xq = XLoader(k, 32, lambda i: vr(vX+4*i), lin_src(k))
    fin = fin_stats(vST, vEXT, vRS) + [f"v_mul_f32 v{vRS}, v{vRS}, v{vRS}"]
    def epi(t):
        a = vACC + 16*t
        o = []
        for j in range(4):
            o += [f"v_mul_f32 v{a+2*j}, v{a+2*j}, v{vRS}", f"v_mul_f32 v{a+2*j+1}, v{a+2*j+1}, v{vRS}",
                  f"v_mul_f32 v{a+2*j}, v{a+2*j}, v{a+8+2*j}", f"v_mul_f32 v{a+2*j+1}, v{a+2*j+1}, v{a+9+2*j}",
                  f"v_cvt_pk_bf16_f32 v{a+8+j}, v{a+2*j}, v{a+2*j+1}"]
        o.append(f"buffer_store_dwordx4 {vr(a+8)}, v{vL16}, {srd(sWS)}, s{sH0 + (t >> 2)} offen offset:{(t & 3)*KB}")
        return o
    st = dict(i=0, t=None); q = []
    def put(x):
        if x.startswith('buffer'): st['t'] = k.vm(x)
        else: k(x)
    dn = Down(k, L)
    def filler(m):
        if aps and m == 12: aps.issue()
        if aps and m == 30: aps.check()
        if 70 <= m < 96:
            if st['i'] == 0: k.wait(vm=res['t'])
            for _ in range(2):
                if st['i'] < len(fin): k(fin[st['i']]); st['i'] += 1
        if m == 102: q.extend(sum((epi(t) for t in range(0, 3)), []))
        if m == 168: q.extend(sum((epi(t) for t in range(3, 5)), []))
        for _ in range(UP_EPI):
            if q: put(q.pop(0))
        if m == 146: code_touch(k, 7)
        if m in UP_PUB:
            assert not q
            if m == UP_PUB[0]:
                k(f"s_lshl_b32 s{sF}, s{sRB}, 4\ns_add_u32 s{sF}, s{sF}, s{sA}\ns_lshl_b32 s{sF}, s{sF}, 3\ns_add_u32 s{sF}, s{sF}, {FLOC(L,2)}")
            publish_local(k, st['t'])
            k(f"s_add_u32 s{sF}, s{sF}, {8*KB}")
            if m == UP_PUB[1]: dn.xq.hold = 20
        if UP_PUB[0] < m and dn.setup:
            for _ in range(3):
                if dn.setup: k(dn.setup.pop(0))
        if m in DN_POLL: dn.ap.issue()
        if m in DN_CHK:
            dn.ap.check()
            k(f"s_add_u32 s{dn.sFl}, s{dn.sFl}, {8*KB}")
        if m > DN_CHK[0] and m % 2 and not (ring.can_issue() and m < UP_STOP): dn.xq.issue_n(1)
    g.run(xq, look=UP_LOOK, filler=filler, misc=se, misc_from=32, skip=UP_SKIP[L])
    assert st['i'] == len(fin) and not dn.setup and ring.issued == ring.total
    dn.xq.hold = 36
    for t in range(5, 7):
        for i, x in enumerate(epi(t)):
            put(x)
            if i in (4, 14): dn.xq.issue_n(1)
    mark(k, 'end')
    dn.tB = st['t']
    return dn

class Down:
    NX = 36
    def __init__(self, k, L):
        self.k = k; self.L = L
        sXa, sXb, sFl = sB, sX2, sCc
        self.sFl = sFl
        self.setup = (f"s_lshr_b32 s{sT0}, s{sDST}, 15\ns_mul_i32 s{sT1}, s{sW}, {28*KB}\ns_add_u32 s{sT1}, s{sT1}, {HF}\n"
                      f"s_mul_i32 s{sXa}, s{sT0}, {112*KB}\ns_add_u32 s{sXa}, s{sXa}, s{sT1}\n"
                      f"s_xor_b32 s{sT2}, s{sT0}, 1\ns_mul_i32 s{sXb}, s{sT2}, {112*KB}\ns_add_u32 s{sXb}, s{sXb}, s{sT1}\n"
                      f"v_and_b32 v12, 3, v0\nv_lshlrev_b32 v12, 3, v12\nv_and_b32 v13, 4, v0\nv_lshl_add_u32 v12, v13, 5, v12\n"
                      f"s_and_b32 s{sFl}, s{sT0}, 0xfe\ns_lshl_b32 s{sFl}, s{sFl}, 7\ns_lshl_b32 s{sT1}, s{sW}, 5\ns_add_u32 s{sFl}, s{sFl}, s{sT1}\n"
                      f"s_add_u32 s{sFl}, s{sFl}, {FLOC(L,2)}").split('\n')
        self.order = order = [7*c + t for t0, nt in PASSES for c in range(4) for t in range(t0, t0+nt)]
        cur = {sXa: 0, sXb: 0}
        def src(i):
            s_ = sXa if (i & 1) == 0 else sXb
            r = order[i >> 1]
            if not 0 <= r - cur[s_] < 4:
                d = (r - cur[s_]) * KB
                k(f"s_add_u32 s{s_}, s{s_}, {d}" if d > 0 else f"s_sub_u32 s{s_}, s{s_}, {-d}")
                cur[s_] = r
            return s_, (r - cur[s_]) * KB
        self.xr = lambda i: vr(144 + 4*(i % 36) if (i % 36) < 20 else 80 + 4*((i % 36) - 20))
        self.xq = XLoader(k, 56, self.xr, src)
        self.xq.hold = 12
        self.ap = apoll1(k, 12, 14, sFl)

def res_unpack(dst, v):
    o = []
    for j in range(8): o += [f"v_lshlrev_b32 v{dst+2*j}, 16, v{v+j}", f"v_and_b32 v{dst+2*j+1}, 0xffff0000, v{v+j}"]
    return o

def ph_down(k, L, ring, dn):
    vACC, vRES, vPK, vSUM = 16, 240, 240, 224
    final = L == 1
    xq = dn.xq; order = dn.order; NX = dn.NX
    xq.hold = 40
    SC = 108 * KB
    side = []
    for a in range(1, 4):
        side += f"s_xor_b32 s{sT0}, s{sW}, {a}\ns_mul_i32 s{sT0}, s{sT0}, {12*KB}\ns_add_u32 s{sT0}, s{sT0}, {SC + (a-1)*4*KB}\nv_add_u32 v{5+a}, s{sT0}, v{vL16}".split('\n')
    side += f"s_mul_i32 s{sT0}, s{sW}, {12*KB}\ns_add_u32 s{sT0}, s{sT0}, {SC}\nv_add_u32 v9, s{sT0}, v{vL16}".split('\n')
    R, R0 = DN_R, DN_R0
    seq = []
    for s in range(28 - R):
        seq += [(s, a) for a in (3, 2, 1)]
        if s < 28 - R0: seq.append((s, 0))
    seq += [(s, a) for a in (3, 2, 1) for s in range(28 - R, 28)] + [(s, 0) for s in range(28 - R0, 28)]
    lo = [min(2*s_ + (a_ & 1) for s_, a_ in seq[m:]) for m in range(112)]
    wr = []; rt = None; tail = None; res = None; wb = False
    for m, (s, a) in enumerate(seq):
        r = order[s]
        if m == 4*DN_PUBB: publish_local(k, dn.tB)
        if m == 4*DN_BAR:
            ring.limit = None
            ring.sync(296, 0)
        if m == 4*DN_POLLB:
            apb = dn.ap
            apb.issue()
            rt = load_res(k, vRES)
        if m == 4*DN_CHKB:
            apb.check()
            xq.hold = 56
            xq.issue_n(min(3, lo[m] + NX - xq.n))
        xi = 2*s + (a & 1)
        while xq.n <= xi:
            assert xq.n < xq.hold and xq.n < lo[m] + NX
            xq.issue_n(1)
        k.wait(vm=xq.t[xi])
        acc = vr(vACC + 16*a, 16)
        k(f"v_mfma_f32_32x32x16_bf16 {acc}, {ar(aWD + 8*r + 4*(a >> 1))}, {dn.xr(xi)}, {'0' if s == 0 else acc}")
        if m == 0: mark(k, 'm0')
        if m in GEMM_MARKS.get(G.ph, ()): mark(k, f'm{m}')
        if m % 2 == 0 and xq.n < min(lo[m] + NX, xq.total, xq.hold): xq.issue_n(1)
        elif m > 4*DN_CHKB + 8:
            if res is None:
                k.wait(vm=rt); res = True
                side += res_unpack(vSUM, vRES)
            for _ in range(4):
                if side: k(side.pop(0))
        if final and WB_MASK is not None and xq.n == xq.total and k.vm_done == k.vm_issued and not wb:
            wb = True; l_ = k.newlabel('wb')
            k(f"s_lshl_b32 s{sT1}, s{sC}, 2\ns_add_u32 s{sT1}, s{sT1}, s{sW}\ns_and_b32 s{sT1}, s{sT1}, {WB_MASK}\ns_cbranch_scc1 {l_}")
            print('wbl2 at', m, file=sys.stderr)
            k("buffer_wbl2 sc1")
            k.label(l_)
        if wr and wr[0][0] <= m:
            assert not side
            for _ in range(min(DN_WR, len(wr))):
                if wr[0][0] <= m: k.lg(wr.pop(0)[1])
            if wr and DN_WR == 1: wr[0] = (max(wr[0][0], m + DN_WGAP), wr[0][1])
            if not wr and a == 0: tail = min(m + 2, 111)
        if s == 27 and a:
            wr += [(m + 2, f"ds_write_b128 v{5+a}, {vr(vACC+16*a+4*j)} offset:{j*KB}") for j in range(4)]
        if tail == m:
            k.wait_all(vm=False)
            k("s_barrier")
            tl = []
            for b in range(3):
                for j in range(4): t_ = k.lg(f"ds_read_b128 {vr(vACC+16+16*b+4*j)}, v9 offset:{b*4*KB + j*KB}")
                tl.append(t_)
            adds = []
            for b in range(3): adds += [(tl[b], f"v_add_f32 v{vSUM+i}, v{vSUM+i}, v{vACC+16+16*b+i}") for i in range(16)]
        elif tail is not None and m > tail + 1:
            for _ in range(6):
                if adds:
                    t_, x = adds.pop(0); k.wait(lg=t_); k(x)
    assert not side and not wr and tail is not None and tail < 112
    for t_, x in adds:
        k.wait(lg=t_); k(x)
    if final: rowmajor_addr(k, 6, sT0)
    for j in range(8):
        k(f"v_add_f32 v{vACC+2*j}, v{vACC+2*j}, v{vSUM+2*j}\nv_add_f32 v{vACC+2*j+1}, v{vACC+2*j+1}, v{vSUM+2*j+1}")
        k(f"v_cvt_pk_bf16_f32 v{vPK+j}, v{vACC+2*j}, v{vACC+2*j+1}")
    if final:
        k.vm(f"buffer_store_dwordx4 {vr(vPK)}, v6, {srd(sAUX)}, s{sT0} offen{OUT_SC}")
        k.vm(f"buffer_store_dwordx4 {vr(vPK+4)}, v6, {srd(sAUX)}, s{sT0} offen offset:32{OUT_SC}")
    else:
        G.tx = store_x(k, vACC, vPK, L, 8, ring)
    mark(k, 'end')

def k_main(name):
    k = Asm()
    G.nst = 0
    k(f".globl {name}\n.p2align 8\n.type {name},@function")
    k.label(name)
    if STAMP: k("s_memrealtime s[42:43]")
    mark(k, 'start')
    k("s_cmp_ge_u32 s2, 256")
    k("s_cbranch_scc1 L_abort")
    k(f"s_load_dwordx2 s[{sWS}:{sWS+1}], s[0:1], 72")
    k(f"s_load_dwordx2 s[{sAUX}:{sAUX+1}], s[0:1], 56")
    k("s_load_dwordx2 s[60:61], s[0:1], 0\ns_load_dwordx4 s[64:67], s[0:1], 8\ns_load_dwordx4 s[68:71], s[0:1], 32\ns_load_dwordx2 s[72:73], s[0:1], 48")
    k("v_lshrrev_b32 v2, 6, v0")
    k(f"v_and_b32 v{vL16}, 63, v0")
    k(f"v_readfirstlane_b32 s{sW}, v2")
    k(f"v_lshlrev_b32 v{vL16}, 4, v{vL16}")
    k(f"s_mov_b32 s{sWG}, s2\ns_and_b32 s{sG}, s2, 7\ns_lshr_b32 s{sC}, s2, 3\ns_lshl_b32 s{sW1K}, s{sW}, 10")
    k(f"s_lshr_b32 s{sC4}, s{sC}, 4\ns_lshr_b32 s{sC3}, s{sC}, 3")
    k(f"s_lshl_b32 s{sU}, s{sG}, 5\ns_add_u32 s{sU}, s{sU}, s{sC}")
    k(f"s_lshl_b32 s{sW4K}, s{sW}, 12")
    k(f"s_getreg_b32 s{sXCC}, hwreg(HW_REG_XCC_ID, 0, 4)")
    k(f"v_add_u32 v{vSRC}, s{sW1K}, v{vL16}")
    k(f"s_mov_b32 s{sMSK}, 0xffff\ns_mov_b32 s{sMSK+1}, 0xffff\ns_mov_b32 s{sMODE}, 0")
    k(f"s_and_b32 s{sT0}, s{sC}, 7\ns_mul_i32 s{sSEG}, s{sT0}, {WO_STR}\ns_add_u32 s{sSEG}, s{sSEG}, {WO}")
    k(f"s_lshl_b32 s{sT1}, s{sG}, 2\ns_add_u32 s{sT1}, s{sT1}, s{sC3}\ns_lshl_b32 s{sT1}, s{sT1}, 1\ns_and_b32 s{sT2}, s{sW}, 1\ns_add_u32 s{sT1}, s{sT1}, s{sT2}")
    k(f"s_lshl_b32 s{sT1}, s{sT1}, 5\ns_lshl_b32 s{sT0}, s{sT0}, 2\ns_add_u32 s{sT1}, s{sT1}, s{sT0}\ns_and_b32 s{sT2}, s{sW}, 2\ns_add_u32 s{sT1}, s{sT1}, s{sT2}\ns_lshl_b32 s{sDST}, s{sT1}, 10")
    k(f"s_lshr_b32 s{sSD}, s{sDST}, 12\ns_lshl_b32 s{sSD}, s{sSD}, 9\ns_lshl_b32 s{sT2}, s{sT2}, 2\ns_add_u32 s{sSD}, s{sSD}, s{sT2}\ns_add_u32 s{sSD}, s{sSD}, {SX}")
    k(f"s_and_b32 s{sT0}, s{sC}, 15\ns_mul_i32 s{sSEG+1}, s{sT0}, {WU_STR}\ns_add_u32 s{sSEG+1}, s{sSEG+1}, {WU}")
    k(f"s_mul_i32 s{sSEG+2}, s{sT0}, {WQ_STR}\ns_add_u32 s{sSEG+2}, s{sSEG+2}, {WQ}")
    def late(k):
        if WSOFF: k(f"s_add_u32 s{sWS}, s{sWS}, {WSOFF}\ns_addc_u32 s{sWS+1}, s{sWS+1}, 0")
        k(f"s_add_u32 s{sT0}, s{sWS}, {EP}\ns_addc_u32 s{sT1}, s{sWS+1}, 0")
        k(f"s_load_dwordx2 s[{sTAG}:{sTAG+1}], s[{sT0}:{sT1}], 0")
        k(f"s_and_b32 s{sWS+1}, s{sWS+1}, 0xffff\ns_mov_b32 s{sWS+2}, {0x10000000 - WSOFF}\ns_mov_b32 s{sWS+3}, 0x20000")
        k(f"s_and_b32 s{sAUX+1}, s{sAUX+1}, 0xffff\ns_mov_b32 s{sAUX+2}, {2*MB}\ns_mov_b32 s{sAUX+3}, 0x20000")
        if WARM:
            k(f"v_and_b32 v244, 63, v0\nv_min_u32 v245, {WS_PAGES-1}, v244\nv_lshlrev_b32 v245, 21, v245")
            k.vm(f"buffer_load_dword v5, v245, {srd(sWS)}, 0 offen")
            k("v_mov_b32 v245, 0")
            k.vm(f"buffer_load_dword v5, v245, {srd(sAUX)}, 0 offen")
            for p in (66, 68, 70, 72):
                k.vm(f"global_load_dword v5, v245, s[{p}:{p+1}]")
            k(f"s_getpc_b64 s[{sT0}:{sT1}]")
            k.label("L_pc")
            k(f"s_lshl_b32 s{sT2}, s{sC}, 2\ns_add_u32 s{sT2}, s{sT2}, s{sW}\ns_mul_i32 s{sT2}, s{sT2}, 640")
            k(f"v_min_u32 v245, 4, v244\nv_lshlrev_b32 v245, 7, v245\nv_add_u32 v245, s{sT2}, v245\nv_min_u32 v245, L_abort-L_pc, v245")
            k.vm(f"global_load_dword v5, v245, s[{sT0}:{sT1}]")
    G.ph = 'qkv0'; tk = ph_qkv0(k, late)
    for L in range(2):
        ring = Ring(k, [(sSEG, 64), (sSEG+1, 232)] + ([(sSEG+2, 100)] if L == 0 else []))
        G.ph = f'att{L}'; tO = ph_att(k, L, ring, *tk)
        G.ph = f'wo{L}'; tx = ph_wo(k, L, ring, tO)
        G.ph = f'up{L}'; tB = ph_up(k, L, ring, 64, tx)
        G.ph = f'dn{L}'; ph_down(k, L, ring, tB)
        G.ph = 'qkv1'
        if L == 0: tk = ph_qkv(k, 1, ring, 296)
    k(f"s_add_u32 s{sT0}, s{sWG}, s{sW}\ns_cmp_lg_u32 s{sT0}, 0\ns_cbranch_scc1 L_fin")
    k(f"s_mov_b32 s{sF}, {EP}")
    publish_local(k, None, force_global=True)
    k.label("L_fin")
    if STAMP:
        k("s_waitcnt vmcnt(0)")
        G.ph = ''; mark(k, 'fin')
        k("s_memrealtime s[98:99]\ns_waitcnt lgkmcnt(0)")
        vals = [42, 98, sMODE] + STS[:G.nst]
        for i, s_ in enumerate(vals): k(f"v_mov_b32 v{16+i}, s{s_}")
        k(f"s_lshl_b32 s{sT0}, s{sWG}, 2\ns_add_u32 s{sT0}, s{sT0}, s{sW}\ns_lshl_b32 s{sT0}, s{sT0}, 7\ns_add_u32 s{sT0}, s{sT0}, {TS}")
        k("v_mov_b32 v4, 0\ns_mov_b64 exec, 1")
        for j in range(8): k(f"buffer_store_dwordx4 {vr(16+4*j)}, v4, {srd(sWS)}, s{sT0} offen offset:{16*j}")
        if DBG is not None:
            k(f"s_lshl_b32 s{sT0}, s{sWG}, 2\ns_add_u32 s{sT0}, s{sT0}, s{sW}\ns_cmp_lg_u32 s{sT0}, {DBG}\ns_cbranch_scc1 L_nodbg")
            k("s_load_dwordx2 s[64:65], s[0:1], 64\ns_waitcnt lgkmcnt(0)")
            for i in range(16): k(f"v_sub_u32 v{64+i}, v{20+i}, v19")
            for j in range(4): k(f"global_store_dwordx4 v4, {vr(64+4*j)}, s[64:65] offset:{16*j}")
            k.label("L_nodbg")
    k("s_waitcnt vmcnt(0)")
    k.label("L_abort")
    k("s_endpgm")
    k(".fill 8448, 4, 0xbf800000")
    return k

def build():
    name = NAME + "_kernel"
    k = k_main(name)
    nn = k.fix()
    print(f"{len(k.L)} lines, {nn} nop states", file=sys.stderr)
    return f"""; stamps: {','.join(G.names)}
; @launch grid=(256,1,1) block=(256,1,1) lds={160*KB}
.amdgcn_target "amdgcn-amd-amdhsa--gfx950"
.text
{k.text()}
.section .rodata,"a"
.p2align 6
.amdhsa_kernel {name}
  .amdhsa_next_free_vgpr 512
  .amdhsa_next_free_sgpr 102
  .amdhsa_accum_offset 256
  .amdhsa_group_segment_fixed_size 0
  .amdhsa_kernarg_size 80
  .amdhsa_user_sgpr_count 2
  .amdhsa_user_sgpr_kernarg_segment_ptr 1
  .amdhsa_system_sgpr_workgroup_id_x 1
.end_amdhsa_kernel
"""

if __name__ == "__main__":
    for a in sys.argv[2:]:
        kk_, vv_ = a.split('=', 1)
        globals()[kk_] = eval(vv_)
    open(sys.argv[1], "w").write(build())
```

```python
import sys, struct
from asmlib import Asm

NAME = "interleave_layers__mha_block__glu_gated_bilinear__prompt"
KB = 1024; MB = KB * KB
LOG2E = 1.4426950408889634
def f2u(x): return struct.unpack('<I', struct.pack('<f', x))[0]
def srd(b): return f"s[{b}:{b+3}]"
def vr(b, n=4): return f"v[{b}:{b+n-1}]"
def ar(b, n=4): return f"a[{b}:{b+n-1}]"

WQ = 0;                    WQ_STR = 100 * KB
WO = WQ + 16 * WQ_STR;     WO_STR = 64 * KB
WU = WO + 8 * WO_STR;      WU_STR = 232 * KB
WD = WU + 16 * WU_STR
FL = 7 * MB + 640 * KB
assert WD + 16 * 112 * KB <= FL
EP = FL
XID = FL + 1 * KB
def FLOC(L, p): return FL + 4 * KB + (L * 9 + p) * 8 * KB
FKV0 = FL + 4 * KB + 18 * 8 * KB
def FKV(L): return FKV0 + L * 32 * KB
FPK = FKV0 + 64 * KB
assert FPK + 32 * KB <= 8 * MB
XF = 8 * MB
HF = 10 * MB
QF = HF
SX = 17 * MB
def KVF(L): return 18 * MB + L * 4 * MB
WS_PAGES = 13
TS = 27 * MB
DUMP = 0x7ff00000

STAMP = False
FORCE_FB = False
WB_MASK = None; OUT_SC = ''; DN_WR = 1; DN_WGAP = 2
QW_LATE = False; QW_UP = 0; QW_TOUCH = (72, 100); QW_N1 = 4
PK_Q0 = False; PK_RD = 1; PK_ST = 3; CHK_Q0 = 15
WO_STOP = 26; WO_R0 = 8; WO_N0 = 10; ST_PRE = 2; PPOLL = 0; KV_PF = (0, 0); PK_EARLY = False
FL_TOUCH = False
SPLIT_ST = True
FINE = False
UP_EPI = 3; UP_PUB = (138, 196); DN_POLL = (158, 216); DN_CHK = (170, 228); UP_LOOK = 8; UP_SYNCS = {0, 32, 64, 96, 128, 160, 192}; UP_SKIP = (0, 0); UP_STOP = 216
DN_PUBB = 4; DN_BAR = 14; DN_POLLB = 7; DN_CHKB = 12; DN_R = 8; DN_R0 = 12
FLAG_TOUCH = False
WSOFF = 0
SLEEP1 = (0, 0); SLEEP2 = 0; SLEEP3 = 0
DBG = None
PRE = 4; PRE2 = 4
PRE_WO = 4; PRE_WO2 = 4
CODE_TOUCH = True
WD_SLOTS = (1, 3, 5, 7)
TOUCH_AT = (98, 68); TOUCH_STEP = 16; TOUCH_KBS = (64, 128)
RING = 144
PK_T0 = 1; PK_GAP = 6; PK_GAP2 = 7; CHK_GAP = 24
P2_AT = 6
TACT_AT = 102

sC4, sC3 = 2, 3
sWS, sAUX = 4, 8
sW, sG, sC, sW1K = 12, 13, 14, 15
sT0, sT1, sT2, sT3 = 16, 17, 18, 19
sX, sRS, sRB = 20, 21, 22
sA, sB, sCc, sD, sE = 23, 24, 25, 26, 27
sS0, sS1 = 28, 21
sMSK, sTAG, sMODE, sXCC = 30, 32, 34, 35
sSEG = 36
sX2 = 39
sSPIN, sF = 40, 41
STS = list(range(44, 56, 2)) + [92, 94, 56, 58, 74, 76, 80, 82, 86, 88, 60, 62]
sWG = 101
sW4K = 97
sSD = 29
sPC, sCT = 90, 85
sDST = 100
vL16, vSRC, vB = 1, 2, 3
aWD, aWB = 0, 224

class G:
    nst = 0
    names = []
    far = []
    ph = ''
SKIP = ''
ATT_MARKS = ()
GEMM_MARKS = {}
def mark(k, nm='x'):
    import re
    nm = G.ph + '_' + nm
    if SKIP and re.match(SKIP, nm): return
    if '_f_' in nm and not FINE: return
    if STAMP:
        G.names.append(nm)
        k(f"s_memtime s[{STS[G.nst]}:{STS[G.nst]+1}]")
        G.nst += 1

class Ring:
    def __init__(self, k, segs):
        self.k = k; self.N = RING
        self.total = sum(n for _, n in segs)
        self.starts = {}
        b = 0
        for s, n in segs:
            assert n % 4 == 0
            self.starts[b] = s; b += n
        self.issued = 0; self.freed = 0; self.visible = 0
        self.limit = None
        self.tick = {}
    def can_issue(self):
        if self.limit is not None and self.issued + 4 > self.limit: return False
        return self.issued < self.total and self.issued + 4 <= self.freed + self.N
    def issue(self):
        k = self.k
        assert self.can_issue()
        slot = self.issued % self.N
        k(f"s_add_u32 m0, s{sW1K}, {slot*KB}")
        if self.issued in self.starts: k(f"s_mov_b32 s{sRS}, s{self.starts[self.issued]}")
        else: k(f"s_add_u32 s{sRS}, s{sRS}, 4096")
        self.tick[self.issued // 4] = k.vm(f"buffer_load_dwordx4 v{vSRC}, {srd(sWS)}, s{sRS} offen sc1 lds")
        self.issued += 4
    def issue16(self):
        k = self.k
        b = self.issued; slot = b % self.N
        assert slot + 16 <= self.N and b + 16 <= min(self.limit or 1 << 30, self.freed + self.N)
        assert not any(x in self.starts for x in range(b + 1, b + 16))
        k(f"s_add_u32 m0, s{sW4K}, {slot*KB}")
        if b in self.starts: k(f"s_add_u32 s{sRS}, s{self.starts[b]}, s{sW4K}")
        else: k(f"s_add_u32 s{sRS}, s{sRS}, 16384")
        for i in range(4):
            t = k.vm(f"buffer_load_dwordx4 v{vL16}, {srd(sWS)}, s{sRS} offen offset:{i*KB} sc1 lds")
        for q in range(4): self.tick[b // 4 + q] = t
        self.issued += 16
    def end16(self):
        self.k(f"s_sub_u32 s{sRS}, s{sRS}, s{sW4K}\ns_add_u32 s{sRS}, s{sRS}, 12288")
    def issue_n(self, n):
        for _ in range(n):
            if self.can_issue(): self.issue()
    def sync(self, consumed, need):
        k = self.k
        need = min(need, self.total)
        if need > self.visible:
            q = (need - 1) // 4
            assert q * 4 < self.issued, (need, self.issued)
            k.wait(vm=self.tick[q])
        k("s_barrier")
        q = self.visible // 4
        while q in self.tick and self.tick[q] <= k.vm_done: q += 1
        self.visible = q * 4
        assert self.visible >= need
        self.freed = max(self.freed, (consumed // 4) * 4)
    def addr(self, b): return (b % self.N) * KB

def set_lds_bases(k, extra_s=None):
    if extra_s is None: k(f"v_mov_b32 v{vB}, v{vL16}")
    else: k(f"v_add_u32 v{vB}, s{extra_s}, v{vL16}")
    k(f"v_add_u32 v{vB+1}, 0x10000, v{vB}")
    k(f"v_add_u32 v{vB+2}, 0x20000, v{vB}")

class XLoader:
    def __init__(self, k, total, reg, src):
        self.k = k; self.total = total; self.reg = reg; self.src = src; self.n = 0; self.t = []
        self.hold = total
    def issue_n(self, n):
        k = self.k
        for _ in range(n):
            i = self.n
            if i >= min(self.total, self.hold): return
            s_, imm = self.src(i)
            self.t.append(k.vm(f"buffer_load_dwordx4 {self.reg(i)}, v{vL16}, {srd(sWS)}, s{s_} offen offset:{imm} sc1"))
            self.n += 1
def lin_src(k):
    def f(i):
        if i and (i & 3) == 0: k(f"s_add_u32 s{sX}, s{sX}, 4096")
        return sX, (i & 3) * KB
    return f

class Gemm:
    def __init__(self, k, ring, ops, syncs, D=4, NB=8, stop_issue=None):
        self.k = k; self.ring = ring; self.ops = ops; self.syncs = sorted(syncs)
        assert all(x % 2 == 0 for x in syncs)
        self.D = D; self.NB = NB; self.tl = {}; self.nread = 0
        self.stop = stop_issue if stop_issue is not None else len(ops)
    def rd(self):
        k = self.k; m = self.nread; o = self.ops[m]
        assert o['bmax'] < self.ring.visible, (m, o['b'], self.ring.visible)
        a = self.ring.addr(o['b'])
        self.tl[m] = k.lg(f"ds_read_b128 {ar(aWB + 4*(m % self.NB))}, v{vB + (a >> 16)} offset:{a & 0xffff}")
        self.nread += 1
    def need_until(self, m):
        M = len(self.ops)
        nxt = [s for s in self.syncs if s > m]
        last = min((nxt[0] if nxt else M) - 1 + self.D, M - 1)
        return max(o['bmax'] for o in self.ops[:last+1]) + 1
    def start(self):
        self.ring.sync(self.ops[0]['bmin'], self.need_until(0))
        while self.nread < min(self.D, len(self.ops)): self.rd()
    def run(self, xq, n0=6, look=10, filler=None, misc=(), misc_from=0, skip=0):
        k = self.k; M = len(self.ops)
        misc = list(misc)
        xq.issue_n(n0)
        cur = 0
        for m in range(M):
            if m in self.syncs and m > 0:
                self.ring.sync(self.ops[m]['bmin'], self.need_until(m))
            o = self.ops[m]
            xt = None
            if m % 2 == 0:
                xs = [p['xi'] for p in self.ops[m:m+2] if p.get('xi') is not None]
                if xs:
                    cur = max(cur, max(xs))
                    while xq.n <= max(xs): xq.issue_n(1)
                    xt = xq.t[max(xs)]
                k.wait(vm=xt, lg=self.tl[min(m + 1, M - 1)])
            w = ar(aWB + 4*(m % self.NB))
            c = o.get('c0', '0') if o['first'] else o['acc']
            A, B = (o['x'], w) if o['swap'] else (w, o['x'])
            k(f"v_mfma_f32_32x32x16_bf16 {o['acc']}, {A}, {B}, {c}")
            if m == 0: mark(k, 'm0')
            if m in GEMM_MARKS.get(G.ph, ()): mark(k, f'm{m}')
            if m % 2 == 0:
                for _ in range(2):
                    if self.nread < M: self.rd()
            elif not (skip and m % skip == skip - 1):
                rok = m < self.stop and self.ring.can_issue()
                if xq.n < xq.total and (xq.n - cur < look or not (rok or (misc and m >= misc_from))): xq.issue_n(1)
                elif misc and m >= misc_from: misc.pop(0)()
                elif rok: self.ring.issue()
            if filler: filler(m)
        assert not misc

def stats_emitters(k, vt, res):
    k(f"s_lshl_b32 s{sS0}, s{sRB}, 12\ns_add_u32 s{sS0}, s{sS0}, {SX}")
    def mk(i):
        def f(): res['t'] = k.vm(f"buffer_load_dwordx4 {vr(vt+4*i)}, v{vL16}, {srd(sWS)}, s{sS0} offen offset:{i*KB} sc1")
        return f
    return [mk(i) for i in range(4)]

NTREE = 14
def fin_stats(vt, vext, vrstd):
    ins = []
    n = 8
    while n > 1:
        h = n // 2
        for i in range(h):
            ins.append(f"v_add_f32 v{vt+2*i}, v{vt+2*i}, v{vt+2*(i+h)}")
            ins.append(f"v_add_f32 v{vt+2*i+1}, v{vt+2*i+1}, v{vt+2*(i+h)+1}")
        n = h
    a, b, c, d = vt, vt+1, vt+2, vt+3
    ins += [f"v_mov_b32 v{c}, v{a}", f"v_mov_b32 v{d}, v{b}",
            f"v_permlane32_swap_b32 v{a}, v{c}", f"v_permlane32_swap_b32 v{b}, v{d}",
            f"v_add_f32 v{a}, v{a}, v{c}", f"v_add_f32 v{b}, v{b}, v{d}",
            f"v_mul_f32 v{a}, {hex(f2u(-1.0/512))}, v{a}",
            f"v_mul_f32 v{b}, {hex(f2u(1.0/512))}, v{b}",
            f"v_fma_f32 v{b}, -v{a}, v{a}, v{b}",
            f"v_max_f32 v{b}, 0, v{b}",
            f"v_add_f32 v{b}, {hex(f2u(1e-5))}, v{b}",
            f"v_rsq_f32 v{vrstd}, v{b}",
            f"v_cvt_pk_bf16_f32 v{vext}, v{a}, v{a}",
            f"v_and_b32 v{c}, 0xffff0000, v{vext}",
            f"v_sub_f32 v{c}, v{a}, v{c}",
            f"v_cvt_pk_bf16_f32 v{vext+1}, v{c}, 0",
            f"v_mov_b32 v{vext+2}, v{vext}", f"v_mov_b32 v{vext+3}, v{vext+1}"]
    return ins

def poll(k, vaddr, vpd, sleep=0):
    l = k.newlabel('poll')
    k(f"s_mov_b32 s{sSPIN}, 0x40000")
    k.label(l)
    k.vm(f"buffer_load_dwordx2 {vr(vpd,2)}, v{vaddr}, {srd(sWS)}, s{sF} offen sc1")
    k(f"s_sub_u32 s{sSPIN}, s{sSPIN}, 1")
    k("s_cbranch_scc1 L_abort")
    k.wait_all(lg=False)
    k(f"v_cmp_ne_u64 vcc, s[{sTAG}:{sTAG+1}], {vr(vpd,2)}")
    k(f"s_cbranch_vccnz {l}")
class APoll:
    def __init__(self, k, loads, cmp, sleep=0):
        self.k = k; self.loads = loads; self.cmp = cmp; self.sleep = sleep
    def issue(self):
        for x in self.loads: self.t = self.k.vm(x)
    def check(self):
        k = self.k
        l = k.newlabel('ap'); ok = k.newlabel('apok')
        k.wait(vm=self.t)
        k(self.cmp)
        k(f"s_cbranch_vccnz {l}")
        k.label(ok)
        G.far += [f"{l}:", f"s_mov_b32 s{sSPIN}, 0x40000", f"{l}_l:"] + list(self.loads) + [
            f"s_sub_u32 s{sSPIN}, s{sSPIN}, 1", "s_cbranch_scc1 L_abort", "s_waitcnt vmcnt(0)", self.cmp,
            f"s_cbranch_vccnz {l}_l", f"s_branch {ok}"]
def apoll1(k, vaddr, vpd, soff, sleep=0):
    return APoll(k, [f"buffer_load_dwordx2 {vr(vpd,2)}, v{vaddr}, {srd(sWS)}, s{soff} offen sc1"],
                 f"v_cmp_ne_u64 vcc, s[{sTAG}:{sTAG+1}], {vr(vpd,2)}", sleep)
def poll16(k):
    k("v_and_b32 v13, 15, v0\nv_lshlrev_b32 v13, 3, v13")
    poll(k, 13, 14)

def publish_local(k, last_store, force_global=False):
    k(f"v_mov_b32 v14, s{sTAG}\nv_mov_b32 v15, s{sTAG+1}")
    if force_global:
        k.wait(vm=last_store)
        k.vm(f"buffer_store_dwordx2 v[14:15], off, {srd(sWS)}, s{sF} sc1")
        return
    slow = k.newlabel('slow'); join = k.newlabel('join')
    k(f"s_cmp_eq_u32 s{sMODE}, 0")
    k(f"s_cbranch_scc1 {slow}")
    k.wait(vm=last_store)
    k.vm(f"buffer_store_dwordx2 v[14:15], off, {srd(sWS)}, s{sF}")
    k.label(join)
    G.far += [f"{slow}:", "s_waitcnt vmcnt(0)", "buffer_wbl2 sc1", "s_waitcnt vmcnt(0)",
              f"buffer_store_dwordx2 v[14:15], off, {srd(sWS)}, s{sF} sc1", f"s_branch {join}"]
def publish_wg(k, last_store, xid=False, barrier=True):
    l = k.newlabel('pw')
    k(f"v_mov_b32 v13, 0\nv_mov_b32 v14, s{sTAG}\nv_mov_b32 v15, s{sTAG+1}")
    k.wait(vm=last_store)
    if barrier: k("s_barrier")
    k(f"s_cmp_lg_u32 s{sW}, 0\ns_cbranch_scc1 {l}")
    k("s_mov_b64 exec, 1")
    if xid:
        k(f"v_xor_b32 v12, s{sXCC}, v14\nv_mov_b32 v13, v15")
        k(f"buffer_store_dwordx4 v[12:15], v{vL16}, {srd(sWS)}, s{sF} offen sc1")
    else:
        k(f"buffer_store_dwordx2 v[14:15], v13, {srd(sWS)}, s{sF} offen sc1")
    k("s_mov_b64 exec, -1")
    k.label(l)

def rb_128(k):
    k(f"s_lshl_b32 s{sT0}, s{sC4}, 2\ns_lshl_b32 s{sRB}, s{sG}, 3\ns_add_u32 s{sRB}, s{sRB}, s{sT0}\ns_add_u32 s{sRB}, s{sRB}, s{sW}")

def store_x(k, acc, pk, L, p, ring=None):
    k(f"s_add_u32 s{sT1}, s{sDST}, {XF}")
    k.vm(f"buffer_store_dwordx4 {vr(pk)}, v{vL16}, {srd(sWS)}, s{sT1} offen")
    td = k.vm(f"buffer_store_dwordx4 {vr(pk+4)}, v{vL16}, {srd(sWS)}, s{sT1} offen offset:1024")
    k(f"v_add_f32 v10, v{acc}, v{acc+1}\nv_mul_f32 v11, v{acc}, v{acc}\nv_add_f32 v8, v{acc+2}, v{acc+3}\nv_mul_f32 v9, v{acc+1}, v{acc+1}")
    k(f"v_fmac_f32 v11, v{acc+2}, v{acc+2}\nv_fmac_f32 v9, v{acc+3}, v{acc+3}")
    for i in range(4, 16, 2):
        k(f"v_add_f32 v10, v10, v{acc+i}\nv_fmac_f32 v11, v{acc+i}, v{acc+i}\nv_add_f32 v8, v8, v{acc+i+1}\nv_fmac_f32 v9, v{acc+i+1}, v{acc+i+1}")
        if ring and i in (4, 10): ring.issue_n(ST_PRE)
    k("v_add_f32 v10, v10, v8\nv_add_f32 v11, v11, v9\nv_mov_b32 v8, v10\nv_mov_b32 v9, v11")
    k("v_permlane32_swap_b32 v10, v8\nv_permlane32_swap_b32 v11, v9\nv_add_f32 v10, v10, v8\nv_add_f32 v11, v11, v9")
    k("s_mov_b32 exec_hi, 0")
    ts = k.vm(f"buffer_store_dwordx2 v[10:11], v{vL16}, {srd(sWS)}, s{sSD} offen")
    k("s_mov_b64 exec, -1")
    k(f"s_lshr_b32 s{sF}, s{sDST}, 8\ns_add_u32 s{sF}, s{sF}, {FLOC(L, p)}")
    if SPLIT_ST:
        publish_local(k, td)
        k(f"s_add_u32 s{sF}, s{sF}, {FLOC(L, 6 if p == 1 else 7) - FLOC(L, p)}")
    return ts
def stats_poll(k, delta):
    if not SPLIT_ST: return []
    k(f"s_add_u32 s{sF}, s{sF}, {delta}")
    ap = apoll1(k, 13, 14, sF)
    return ap

def rowmajor_addr(k, va, s_out):
    k(f"v_and_b32 v{va}, 31, v0\nv_lshlrev_b32 v{va}, 10, v{va}\nv_bfe_u32 v{va+1}, v0, 5, 1\nv_lshlrev_b32 v{va+1}, 4, v{va+1}\nv_add_u32 v{va}, v{va}, v{va+1}")
    k(f"s_and_b32 s{s_out}, s{sDST}, 0xffff8000\ns_bfe_u32 s{sT3}, s{sDST}, 0x5000a\ns_lshl_b32 s{sT3}, s{sT3}, 5\ns_add_u32 s{s_out}, s{s_out}, s{sT3}")

sU = 96
def pack_decode(k):
    nm = "pk"; u = f"s{sU}"
    k(f"s_min_u32 s83, {u}, 231")
    u = "s83"
    k(f"s_and_b32 s90, s{sW}, 1\ns_lshr_b32 s91, s{sW}, 1")
    k(f"s_cmp_lt_u32 {u}, 48\ns_cbranch_scc1 {nm}_q")
    k(f"s_cmp_lt_u32 {u}, 160\ns_cbranch_scc1 {nm}_u")
    k(f"s_cmp_lt_u32 {u}, 176\ns_cbranch_scc1 {nm}_o")
    k(f"s_sub_u32 s84, {u}, 176\ns_lshl_b32 s84, s84, 2\ns_add_u32 s84, s84, s{sW}")
    k("s_and_b32 s85, s84, 15\ns_lshr_b32 s86, s84, 4")
    k("s_lshl_b32 s87, s85, 6")
    k("s_add_u32 s74, s72, s87\ns_addc_u32 s75, s73, 0\ns_mov_b32 s76, s74\ns_mov_b32 s77, s75")
    k("s_mov_b32 s78, 1024\ns_lshl_b32 s79, s86, 7")
    k(f"s_mul_i32 s80, s85, 14\ns_add_u32 s80, s80, s86\ns_lshl_b32 s80, s80, 13\ns_add_u32 s80, s80, {WD}\ns_mov_b32 s81, 1024\ns_mov_b32 s82, {DUMP}")
    k(f"s_branch {nm}_go")
    k.label(f"{nm}_o")
    k(f"s_sub_u32 s85, {u}, 160\ns_lshr_b32 s88, s85, 3\ns_and_b32 s85, s85, 7")
    k("s_lshl_b32 s87, s85, 1\ns_add_u32 s87, s87, s90\ns_lshl_b32 s87, s87, 6")
    k("s_add_u32 s74, s66, s87\ns_addc_u32 s75, s67, 0\ns_mov_b32 s76, s74\ns_mov_b32 s77, s75")
    k("s_mov_b32 s78, 1024\ns_lshl_b32 s79, s88, 1\ns_add_u32 s79, s79, s91\ns_lshl_b32 s79, s79, 7")
    k("s_lshl_b32 s89, s91, 15\ns_xor_b32 s90, s90, s88\ns_lshl_b32 s88, s88, 1\ns_add_u32 s90, s90, s88\ns_lshl_b32 s90, s90, 10")
    k(f"s_mul_i32 s80, s85, {WO_STR}\ns_add_u32 s80, s80, s89\ns_add_u32 s80, s80, s90\ns_add_u32 s80, s80, {WO}")
    k(f"s_mov_b32 s81, 4096\ns_mov_b32 s82, {DUMP}")
    k(f"s_branch {nm}_go")
    k.label(f"{nm}_u")
    k(f"s_sub_u32 s85, {u}, 48\ns_mul_i32 s84, s85, 2341\ns_lshr_b32 s84, s84, 16\ns_mul_i32 s86, s84, 28\ns_sub_u32 s85, s85, s86")
    k(f"s_lshl_b32 s85, s85, 2\ns_add_u32 s85, s85, s{sW}\ns_lshl_b32 s87, s85, 5")
    k("s_add_u32 s74, s68, s87\ns_addc_u32 s75, s69, 0")
    k("s_add_u32 s76, s70, s87\ns_addc_u32 s77, s71, 0\ns_sub_u32 s76, s76, 32\ns_subb_u32 s77, s77, 0")
    k("s_mov_b32 s78, 3584")
    k("s_mul_i32 s86, s85, 9363\ns_lshr_b32 s86, s86, 16\ns_mul_i32 s88, s86, 7\ns_sub_u32 s88, s85, s88")
    k(f"s_mul_i32 s91, s86, {WU_STR}\ns_add_u32 s91, s91, {WU}\ns_lshl_b32 s89, s88, 10\ns_add_u32 s91, s91, s89")
    k(f"s_cmp_lt_u32 s88, 5\ns_cselect_b32 s89, 3, 5\ns_lshl_b32 s89, s89, 15")
    k(f"s_cmp_lt_u32 s88, 3\ns_cselect_b32 s81, 3, 2\ns_cselect_b32 s89, 0, s89\ns_lshl_b32 s81, s81, 10\ns_add_u32 s91, s91, s89")
    k(f"s_branch {nm}_ext")
    k.label(f"{nm}_q")
    k(f"s_cmp_ge_u32 {u}, 24\ns_cselect_b32 s84, 2, 0\ns_cselect_b32 s86, 24, 0\ns_add_u32 s84, s84, s91\ns_sub_u32 s85, {u}, s86")
    k("s_lshl_b32 s85, s85, 1\ns_add_u32 s85, s85, s90\ns_and_b32 s86, s85, 15\ns_lshr_b32 s88, s85, 4")
    k("s_lshl_b32 s87, s85, 6\ns_lshl_b32 s89, s88, 10")
    k("s_add_u32 s74, s64, s87\ns_addc_u32 s75, s65, 0\ns_mov_b32 s76, s74\ns_mov_b32 s77, s75")
    k("s_mov_b32 s78, 3072")
    k(f"s_sub_u32 s89, s89, 1024\ns_cmp_eq_u32 s88, 0\ns_cselect_b32 s89, {66*KB}, s89\ns_cselect_b32 s81, 1, 2\ns_lshl_b32 s81, s81, 10")
    k(f"s_mul_i32 s91, s86, {WQ_STR}\ns_add_u32 s91, s91, s89\ns_add_u32 s91, s91, {WQ}")
    k.label(f"{nm}_ext")
    k("s_lshl_b32 s79, s84, 7")
    k("s_lshl_b32 s89, s81, 5\ns_add_u32 s82, s91, s89\ns_lshr_b32 s89, s84, 1\ns_lshl_b32 s89, s89, 9\ns_add_u32 s82, s82, s89")
    k("s_and_b32 s89, s84, 1\ns_lshl_b32 s89, s89, 3\ns_add_u32 s82, s82, s89")
    k("s_lshl_b32 s89, s81, 3\ns_mul_i32 s89, s89, s84\ns_add_u32 s80, s91, s89")
    k.label(f"{nm}_go")
    k(f"s_cmp_ge_u32 s{sU}, 232\ns_cselect_b32 s80, {DUMP}, s80")
    k("v_bfe_u32 v4, v0, 2, 4\nv_add_u32 v4, s79, v4\nv_mul_lo_u32 v4, v4, s78")
    k("v_and_b32 v13, 3, v0\nv_lshlrev_b32 v13, 4, v13\nv_add_u32 v4, v4, v13")
    k(f"s_lshl_b32 s83, s78, 4")
    if PK_Q0: k(f"s_lshl_b32 s84, s{sW}, 13\ns_add_u32 s84, s84, {64*KB}")
    else: k(f"s_lshl_b32 s84, s{sW}, 14\ns_add_u32 s84, s84, {96*KB}")
    k("s_mov_b32 s86, 0x33333333\ns_mov_b32 s87, 0x33333333\ns_mov_b32 s88, 0xcccccccc\ns_mov_b32 s89, 0xcccccccc")
def pack_issue(k, i, sbase):
    k(f"s_add_u32 m0, s{sbase}, {i*KB}")
    k("s_mov_b64 exec, s[86:87]")
    k.vm("global_load_lds_dwordx4 v4, s[74:75]")
    k("s_mov_b64 exec, s[88:89]")
    t = k.vm("global_load_lds_dwordx4 v4, s[76:77]")
    k("s_mov_b64 exec, -1")
    k("v_add_u32 v4, s83, v4")
    return t
def tr_addr(k, v, t):
    k(f"v_bfe_u32 v{v}, v0, 5, 1\nv_lshlrev_b32 v{v}, 9, v{v}")
    k(f"v_bfe_u32 v{t}, v0, 2, 2\nv_lshlrev_b32 v{t}, 6, v{t}\nv_add_u32 v{v}, v{v}, v{t}")
    k(f"v_bfe_u32 v{t}, v0, 4, 1\nv_lshlrev_b32 v{t}, 5, v{t}\nv_add_u32 v{v}, v{v}, v{t}")
    k(f"v_and_b32 v{t}, 1, v0\nv_lshlrev_b32 v{t}, 4, v{t}\nv_add_u32 v{v}, v{v}, v{t}")
    k(f"v_bfe_u32 v{t}, v0, 1, 1\nv_lshlrev_b32 v{t}, 3, v{t}\nv_add_u32 v{v}, v{v}, v{t}")
def ext_pair(src, dst, t0):
    return [f"v_mov_b32 v{t0}, v{src}", f"v_permlane32_swap_b32 v{src}, v{t0}", f"v_add_f32 v{src}, v{src}, v{t0}",
            f"v_cvt_pk_bf16_f32 v{dst+1}, v{src}, 0", f"v_lshlrev_b32 v{t0}, 16, v{dst+1}", f"v_sub_f32 v{src}, v{src}, v{t0}",
            f"v_cvt_pk_bf16_f32 v{dst}, v{t0}, v{src}"]
class Pack:
    def __init__(self, k): self.k = k; self.r = {}
    def issue(self, *ii):
        for i in ii: self.d = pack_issue(self.k, i, 84)
    def reads(self, *ii):
        k = self.k
        if ii[0] == 0:
            k("v_accvgpr_read_b32 v4, a212")
            k.wait(vm=self.d)
        for i in ii:
            k.lg(f"ds_read_b64_tr_b16 {ar(160+4*i,2)}, v4 offset:{i*KB}")
            self.r[i] = k.lg(f"ds_read_b64_tr_b16 {ar(162+4*i,2)}, v4 offset:{i*KB+256}")
    def csum(self, i):
        self.k.wait(lg=self.r[i])
        self.k(f"v_mfma_f32_32x32x16_bf16 {ar(196,16)}, {ar(192)}, {ar(160+4*i)}, {'0' if i == 0 else ar(196,16)}")
    def stores(self, *ii):
        k = self.k
        k.wait(lg=self.r[ii[-1]])
        for i in ii:
            k.vm(f"buffer_store_dwordx4 {ar(160+4*i)}, v{vL16}, {srd(sWS)}, s80 offen sc1")
            k("s_add_u32 s80, s80, s81")
    def ext(self):
        k = self.k
        k("v_accvgpr_read_b32 v13, a196")
        k("v_cvt_pk_bf16_f32 v15, v13, 0\nv_lshlrev_b32 v14, 16, v15\nv_sub_f32 v13, v13, v14\nv_cvt_pk_bf16_f32 v14, v14, v13")
        k("s_mov_b32 exec_hi, 0")
        self.s = k.vm(f"buffer_store_dwordx2 v[14:15], v{vL16}, {srd(sWS)}, s82 offen sc1")
        k("s_mov_b64 exec, -1")
    def pub(self):
        k = self.k
        k(f"s_lshl_b32 s{sF}, s{sU}, 7\ns_add_u32 s{sF}, s{sF}, {FPK}")
        publish_wg(k, self.s, xid=True)
    def schedule(self, job):
        t = PK_T0
        if not PK_EARLY:
            for i in range(4): job(t + i, lambda i=i: self.issue(2*i, 2*i+1))
            t += 4 + PK_GAP
        job(t, lambda: self.reads(0, 1, 2, 3)); job(t + 1, lambda: self.reads(4, 5, 6, 7))
        for i in range(4):
            job(t + 2 + i, lambda i=i: self.stores(2*i, 2*i+1))
            job(t + 1 + i, lambda i=i: self.csum(2*i), e=14)
            job(t + 2 + i, lambda i=i: self.csum(2*i+1), e=0)
        job(t + 6, self.ext)
        job(t + 6 + PK_GAP2, self.pub)
        return t + 6 + PK_GAP2
def qkv_consts(vT, vRS, vR):
    return [f"v_cvt_pk_bf16_f32 v{vT}, v{vRS}, 0", f"v_lshlrev_b32 v{vT+1}, 16, v{vT}", f"v_sub_f32 v{vT+2}, v{vRS}, v{vT+1}",
            f"v_cvt_pk_bf16_f32 v{vT}, v{vT+1}, v{vT+2}", f"v_mov_b32 v{vT+1}, 0", f"v_mov_b32 v{vT+2}, 0", f"v_mov_b32 v{vT+3}, 0",
            f"v_cmp_gt_u32 vcc, 512, v{vL16}", f"v_mov_b32 v{vT+4}, 0x3f803f80", f"v_cndmask_b32 v{vT+4}, 0, v{vT+4}, vcc",
            f"v_mov_b32 v{vT+5}, 0", f"v_mov_b32 v{vT+6}, 0", f"v_mov_b32 v{vT+7}, 0",
            f"v_mul_f32 v{vRS+1}, {hex(f2u(0.25*LOG2E))}, v{vRS}",
            "v_bfe_u32 v12, v0, 4, 1", "v_lshlrev_b32 v12, 17, v12", "v_and_b32 v13, 15, v0", "v_lshlrev_b32 v13, 4, v13", "v_add_u32 v12, v12, v13",
            "v_bfe_u32 v13, v0, 5, 1", "v_lshlrev_b32 v13, 8, v13", "v_add_u32 v12, v12, v13",
            f"v_mfma_f32_32x32x16_bf16 {vr(vR,16)}, {vr(vT)}, {vr(vT+4)}, 0"]
def qk_tile(a, dst, sc, fl, p0):
    o = []
    sb, hs = (sB, KB) if dst == QF else (sCc, 128*KB)
    for half in range(2):
        p = p0 + 4*half
        for j in range(4):
            r = a + 8*half + 2*j
            o += [f"v_mul_f32 v{r}, v{r}, v{sc}", f"v_mul_f32 v{r+1}, v{r+1}, v{sc}", f"v_cvt_pk_bf16_f32 v{p+j}, v{r}, v{r+1}"]
        o += [f"s_add_u32 s{sT2}, s{sb}, {dst + half*hs}", f"buffer_store_dwordx4 {vr(p)}, v{vL16}, {srd(sWS)}, s{sT2} offen{fl}"]
    return o
def v_tile(a, L, vR, p0):
    o = [f"s_add_u32 s{sT2}, s{sCc}, {KVF(L) + KB}"]
    for u in range(2):
        p = p0 + 4*u
        for j in range(4):
            r = a + 8*u + 2*j; q = vR + 8*u + 2*j
            o += [f"v_mul_f32 v{r}, v{r}, v{q}", f"v_mul_f32 v{r+1}, v{r+1}, v{q+1}", f"v_cvt_pk_bf16_f32 v{p+j}, v{r}, v{r+1}"]
        o.append(f"buffer_store_dwordx4 {vr(p)}, v12, {srd(sWS)}, s{sT2} offen offset:{u*512} sc1")
    return o
def kv_flag(k, L, tkv):
    k(f"s_lshl_b32 s{sF}, s{sA}, 4\ns_lshr_b32 s{sT1}, s{sRB}, 2\ns_add_u32 s{sF}, s{sF}, s{sT1}\ns_lshl_b32 s{sF}, s{sF}, 7\ns_add_u32 s{sF}, s{sF}, {FKV(L)}")
    publish_wg(k, tkv)
def q_flag(k, L, tq):
    k(f"s_lshr_b32 s{sF}, s{sRB}, 3\ns_lshl_b32 s{sF}, s{sF}, 4\ns_add_u32 s{sF}, s{sF}, s{sA}\ns_lshl_b32 s{sF}, s{sF}, 3\ns_and_b32 s{sT1}, s{sRB}, 7\ns_add_u32 s{sF}, s{sF}, s{sT1}\ns_lshl_b32 s{sF}, s{sF}, 3\ns_add_u32 s{sF}, s{sF}, {FLOC(L-1,5)}")
    publish_local(k, tq, force_global=(L == 0))

WARM = True
LIN_AT = 3
LIN_U = True
Q0_ROT = True
Q0_MARKS = False
Q0_MARKJ = ()
Q0_SCHED = ((2, 3), (4, 5), (6,), (7,), (), (), (), ())
LATE_AT = 1
Q0_UP = 2
PK_AT = (5, 5, 5, 5, 6, 6, 6, 6)
def ph_qkv0(k, late):
    vX, vACC, vST, vEXT, vRS, vT, vR = 16, 144, 192, 8, 6, 224, 232
    vXA, vWA, vXR, vTR, vTW, vCS, vCW, vONE = 10, 12, 196, 200, 202, 204, 208, 220
    sXS, sWR, sXL, sWL = 60, 56, sD, sE
    k(f"s_lshr_b32 s{sRB}, s{sG}, 1\ns_lshl_b32 s{sRB}, s{sRB}, 2\ns_add_u32 s{sRB}, s{sRB}, s{sC3}\ns_lshl_b32 s{sRB}, s{sRB}, 2\ns_add_u32 s{sRB}, s{sRB}, s{sW}")
    k(f"s_and_b32 s{sA}, s{sG}, 1\ns_lshl_b32 s{sA}, s{sA}, 3\ns_and_b32 s{sT0}, s{sC}, 7\ns_add_u32 s{sA}, s{sA}, s{sT0}")
    k(f"v_bfe_u32 v{vXA}, v0, 3, 3\nv_lshlrev_b32 v{vXA}, 10, v{vXA}\nv_and_b32 v13, 7, v0\nv_bfe_u32 v14, v0, 4, 2\nv_xor_b32 v13, v13, v14")
    k(f"v_lshlrev_b32 v13, 4, v13\nv_add_u32 v{vXA}, v{vXA}, v13\nv_xor_b32 v{vXA+1}, 64, v{vXA}")
    k(f"v_bfe_u32 v{vWA}, v0, 2, 4\nv_mul_u32_u24 v{vWA}, 3072, v{vWA}\nv_and_b32 v13, 3, v0\nv_lshlrev_b32 v13, 4, v13\nv_add_u32 v{vWA}, v{vWA}, v13")
    k(f"s_lshl_b32 s{sX}, s{sRB}, 15")
    k(f"s_mul_i32 s{sX2}, s{sW}, 49152\ns_lshl_b32 s{sT0}, s{sA}, 6\ns_add_u32 s{sX2}, s{sX2}, s{sT0}")
    k(f"s_lshl_b32 s{sXL}, s{sW}, 14\ns_add_u32 s{sXL}, s{sXL}, {96*KB}\ns_mul_i32 s{sWL}, s{sW}, 3072")
    k("s_waitcnt lgkmcnt(0)")
    if Q0_MARKS: mark(k, 'karg')
    k(f"s_mov_b32 s{sWR}, s64\ns_and_b32 s{sWR+1}, s65, 0xffff\ns_mov_b32 s{sWR+2}, {512*3072}\ns_mov_b32 s{sWR+3}, 0x20000")
    k(f"s_and_b32 s{sXS+1}, s{sXS+1}, 0xffff\ns_mov_b32 s{sXS+2}, {2*MB}\ns_mov_b32 s{sXS+3}, 0x20000")
    ct = {}; cn = {j: 0 for j in range(8)}
    k(f"s_lshl_b32 s{sCc}, s{sC3}, 1\ns_add_u32 s{sCc}, s{sCc}, s{sC}")
    def rot(j):
        k(f"s_add_u32 s{sT3}, s{sCc}, {j}\ns_and_b32 s{sT3}, s{sT3}, {7 if Q0_ROT else 0}")
        if not Q0_ROT: k(f"s_mov_b32 s{sT3}, {j}")
        k(f"s_lshl_b32 s{sS0}, s{sT3}, 7\ns_add_u32 s{sS0}, s{sS0}, s{sX}")
        k(f"s_mul_i32 s{sS1}, s{sT3}, {4*49152}\ns_add_u32 s{sS1}, s{sS1}, s{sX2}")
    def ldW(j, t):
        k(f"s_add_u32 m0, s{sWL}, {(12*j + t)*KB}\ns_add_u32 s{sT2}, s{sS1}, {((t+1) % 3)*1024}")
        ct[j] = k.vm(f"buffer_load_dwordx4 v{vWA}, {srd(sWR)}, s{sT2} offen lds"); cn[j] += 1
    def ldX(j, i):
        if i == 0: rot(j)
        k(f"s_add_u32 m0, s{sXL}, {(j & 3)*4*KB + i*KB}\ns_add_u32 s{sT2}, s{sS0}, {i*8192}")
        ct[j] = k.vm(f"buffer_load_dwordx4 v{vXA + (i & 1)}, {srd(sXS)}, s{sT2} offen lds"); cn[j] += 1
    def chunk_loads(j):
        return [lambda i=i: ldX(j, i) for i in range(4)] + [lambda t=t: ldW(j, t) for t in range(3)]
    for j in range(Q0_UP):
        for f in chunk_loads(j): f()
        if j + 1 == LATE_AT: late(k)
    pack_decode(k)
    k(f"s_cmp_eq_u32 s{sW}, 0\ns_cselect_b64 s[90:91], s[68:69], s[70:71]")
    k(f"s_cmp_eq_u32 s{sW}, 2\ns_cselect_b64 s[90:91], s[72:73], s[90:91]")
    k(f"s_cmp_eq_u32 s{sW}, 3\ns_cselect_b64 s[90:91], s[66:67], s[90:91]\ns_cselect_b32 s{sT0}, 16, 56")
    k(f"s_mul_i32 s{sT1}, s{sT0}, s{sU}\ns_sub_u32 s{sT0}, s{sT0}, 1")
    k(f"v_and_b32 v254, 63, v0\nv_min_u32 v254, s{sT0}, v254\nv_add_u32 v254, s{sT1}, v254\nv_lshlrev_b32 v254, 7, v254")
    pk = G.pk = Pack(k)
    if PK_Q0: pk.issue(*range(8))
    k(f"v_and_b32 v13, 31, v0\nv_bfe_u32 v14, v0, 1, 3\nv_bfe_u32 v15, v0, 5, 1\nv_xor_b32 v14, v14, v15\nv_lshlrev_b32 v14, 4, v14\nv_lshl_add_u32 v13, v13, 7, v14")
    for e in range(4):
        k(f"v_xor_b32 v{vXR+e}, {e*32}, v13\nv_add_u32 v{vXR+e}, s{sXL}, v{vXR+e}")
    tr_addr(k, vTR, 13)
    k(f"v_add_u32 v{vTR+1}, {48*KB}, v{vTR}\nv_add_u32 v{vTW}, s{sWL}, v{vTR}\nv_add_u32 v{vTW+1}, {48*KB}, v{vTW}")
    k(f"v_mov_b32 v{vONE}, 0x3f803f80\nv_add_u32 v255, s84, v{vTR}\nv_accvgpr_write_b32 a212, v255")
    for r in range(192, 196): k(f"v_accvgpr_write_b32 a{r}, v{vONE}")
    for r in list(range(vST, vST+4)) + list(range(vCS, vCS+3)): k(f"v_mov_b32 v{r}, 0")
    def reads(j):
        o = []
        for e in range(4):
            o.append(f"ds_read_b128 {vr(vX + 16*j + 4*e)}, v{vXR+e} offset:{(j & 3)*4*KB}")
        for t in range(3):
            off = (12*(j & 3) + t)*KB
            o.append(f"ds_read_b64_tr_b16 {vr(vCW+4*t,2)}, v{vTW + (j >> 2)} offset:{off}")
            o.append(f"ds_read_b64_tr_b16 {vr(vCW+4*t+2,2)}, v{vTW + (j >> 2)} offset:{off+256}")
        for b in range(12):
            off = (12*(j & 3) + b)*KB; r = 48*(j & 1) + 4*b
            o.append(f"ds_read_b64_tr_b16 {ar(r,2)}, v{vTR + (j >> 2)} offset:{off}")
            o.append(f"ds_read_b64_tr_b16 {ar(r+2,2)}, v{vTR + (j >> 2)} offset:{off+256}")
        return o
    def dots(j):
        for i in range(16):
            r = vX + 16*j + i
            k(f"v_dot2c_f32_bf16 v{vST + 2*(i & 1)}, v{vONE}, v{r}\nv_dot2c_f32_bf16 v{vST + 1 + 2*(i & 1)}, v{r}, v{r}")
        for i in range(4):
            for t in range(3): k(f"v_dot2c_f32_bf16 v{vCS+t}, v{vONE}, v{vCW+4*t+i}")
    def xid():
        k(f"s_add_u32 s{sTAG}, s{sTAG}, 0x7f4a7c15\ns_addc_u32 s{sTAG+1}, s{sTAG+1}, 0x9e3779b9")
        k("v_mov_b32 v13, 0")
        k("s_mov_b64 exec, 1")
        if FLAG_TOUCH:
            k(f"s_lshl_b32 s{sF}, s{sA}, 4\ns_lshr_b32 s{sT1}, s{sRB}, 2\ns_add_u32 s{sF}, s{sF}, s{sT1}\ns_lshl_b32 s{sF}, s{sF}, 7\ns_add_u32 s{sF}, s{sF}, {FKV(0)}")
            k.vm(f"buffer_load_dword v5, v13, {srd(sWS)}, s{sF} offen sc1")
            k(f"s_lshl_b32 s{sF}, s{sU}, 7\ns_add_u32 s{sF}, s{sF}, {FPK}")
            k.vm(f"buffer_load_dword v5, v13, {srd(sWS)}, s{sF} offen sc1")
        k("s_mov_b64 exec, -1")
    def lin_touch():
        k.vm("global_load_dword v5, v254, s[90:91]")
    side = []
    tpk = [None]
    if Q0_MARKS: mark(k, 'iss')
    k.wait(vm=ct[0])
    if Q0_MARKS: mark(k, 'w0')
    k("s_barrier")
    mark(k, 'd0')
    rl = reads(0)
    for x in rl[:10]: t10 = k.lg(x)
    for x in rl[10:]: k.lg(x)
    k.wait(lg=t10)
    dots(0)
    for j in range(8):
        for c_ in Q0_SCHED[j]:
            assert c_ - 4 <= j
            side += chunk_loads(c_)
        if j == 1: side.append(xid)
        if PK_EARLY: side += [lambda i=i: pk.issue(i) for i in range(8) if PK_AT[i] == j]
        if j == LIN_AT and not PK_Q0: side.append(lin_touch)
        if PK_Q0:
            assert all(c_ < 5 or j > PK_RD for c_ in Q0_SCHED[j])
            if j == PK_RD: side += [lambda i=i: pk.reads(2*i, 2*i+1) for i in range(4)]
            if j == PK_ST: side += [lambda i=i: (pk.stores(i), pk.csum(i)) for i in range(4)]
            if j == PK_ST + 1: side += [lambda i=i: (pk.stores(i), pk.csum(i)) for i in range(4, 8)]
            if j == PK_ST + 2: side.append(pk.ext)
        k.wait_all(vm=False)
        rl = []
        if j < 7:
            assert cn[j+1] == 7
            k.wait(vm=ct[j+1]); k("s_barrier")
            if j in Q0_MARKJ: mark(k, f'c{j+1}')
            rl = reads(j + 1)
        t10 = None; nr = 0
        if j == 7:
            tail = f"s_lshr_b32 s{sT0}, s{sW}, 1\ns_lshl_b32 s{sT0}, s{sT0}, 9\ns_and_b32 s{sT1}, s{sW}, 1\ns_lshl_b32 s{sT1}, s{sT1}, 3\ns_add_u32 s{sT0}, s{sT0}, s{sT1}".split('\n')
            tail += [f"v_and_b32 v13, 0x1f0, v{vL16}", f"v_add_u32 v13, s{sT0}, v13"]
            for t in range(3): tail += ext_pair(vCS+t, vCW+2*t, 14) + [f"ds_write_b64 v13, {vr(vCW+2*t,2)} offset:{t*KB}"]
            fin = fin_stats(vST, vEXT, vRS)[NTREE:] + qkv_consts(vT, vRS, vR)
            tail += [f"v_add_f32 v{vST}, v{vST}, v{vST+2}", f"v_add_f32 v{vST+1}, v{vST+1}, v{vST+3}"] + fin[:18]
            tail += ["s_waitcnt lgkmcnt(0)", "s_barrier"] + [f"ds_read_b128 {vr(vCW+4*t)}, v{vL16} offset:{t*KB}" for t in range(3)] + fin[18:]
            tail += f"s_lshl_b32 s{sCc}, s{sA}, 18\ns_lshl_b32 s{sT1}, s{sRB}, 11\ns_add_u32 s{sCc}, s{sCc}, s{sT1}".split('\n')
            tail += f"s_mul_i32 s{sB}, s{sRB}, {112*KB}\ns_lshl_b32 s{sT1}, s{sA}, 11\ns_add_u32 s{sB}, s{sB}, s{sT1}".split('\n')
            assert not side
            n_ = -(-len(tail) // 12)
            side = [lambda c=tail[i:i+n_]: [k(x) for x in c] for i in range(0, len(tail), n_)]
        for b in range(12):
            ks = 4*j + b // 3; t = b % 3
            acc = vr(vACC + 16*t, 16); w = ar(48*(j & 1) + 4*b); x = vr(vX + 4*ks)
            A, B = (x, w) if t == 1 else (w, x)
            k(f"v_mfma_f32_32x32x16_bf16 {acc}, {A}, {B}, {'0' if ks == 0 else acc}")
            if ks == 0 and t == 0: mark(k, 'm0')
            for _ in range(3):
                if rl:
                    t_ = k.lg(rl.pop(0)); nr += 1
                    if nr == 10: t10 = t_
            if side: side.pop(0)()
            if len(side) > 11 - b: side.pop(0)()
        if j < 7:
            assert not rl
            k.wait(lg=t10)
            dots(j + 1)
    while side: side.pop(0)()
    mark(k, 'loop')
    k.wait_all(vm=False)
    for t in range(3):
        c = vCW + 4*t
        acc = vr(vACC + 16*t, 16)
        A, B = (vr(vEXT), vr(c)) if t == 1 else (vr(c), vr(vEXT))
        k(f"v_mfma_f32_32x32x16_bf16 {acc}, {A}, {B}, {acc}")
    t_ = None
    for x in qk_tile(vACC, KVF(0), vRS, " sc1", vX) + v_tile(vACC+16, 0, vR, vX+8) + qk_tile(vACC+32, QF, vRS+1, " sc1", vX+16):
        if x.startswith('buffer'): t_ = k.vm(x)
        else: k(x)
    mark(k, 'st')
    return t_, t_

def ph_qkv(k, L, ring, b0):
    vX, vACC, vST, vEXT, vRS, vT, vR = 16, 144, 192, 8, 6, 224, 232
    rb_128(k)
    k(f"s_and_b32 s{sA}, s{sC}, 15")
    k(f"s_lshl_b32 s{sX}, s{sRB}, 15\ns_add_u32 s{sX}, s{sX}, {XF}")
    set_lds_bases(k)
    ops = []
    b = b0
    for tiles in ((0, 1), (2,)):
        for ks in range(33):
            for t in tiles:
                ops.append(dict(b=b, bmin=b, bmax=b, xi=(ks if ks < 32 else None), x=(vr(vX+4*ks) if ks < 32 else vr(vEXT)),
                                acc=vr(vACC+16*t, 16), swap=(t == 1), first=(ks == 0)))
                b += 1
    xq = XLoader(k, 32, lambda i: vr(vX+4*i), lin_src(k))
    res = {}
    se = stats_emitters(k, vST, res)
    k(f"s_lshl_b32 s{sCc}, s{sA}, 18\ns_lshl_b32 s{sT1}, s{sRB}, 11\ns_add_u32 s{sCc}, s{sCc}, s{sT1}")
    k(f"s_mul_i32 s{sB}, s{sRB}, {112*KB}\ns_lshl_b32 s{sT1}, s{sA}, 11\ns_add_u32 s{sB}, s{sB}, s{sT1}")
    g = Gemm(k, ring, ops, {0, 24, 60} if QW_LATE else {0})
    g.start()
    ring.issue_n(4)
    publish_local(k, G.tx)
    ring.issue_n(4)
    k(f"s_lshl_b32 s{sF}, s{sRB}, 7\ns_add_u32 s{sF}, s{sF}, {FLOC(L-1, 8)}")
    poll16(k)
    aps = stats_poll(k, FLOC(L-1,7) - FLOC(L-1,8))
    fin = fin_stats(vST, vEXT, vRS) + qkv_consts(vT, vRS, vR)
    epi = qk_tile(vACC, KVF(L), vRS, " sc1", vST) + v_tile(vACC+16, L, vR, vST+16)
    st = dict(i=0, j=0, t=None)
    def put(x):
        if x.startswith('buffer'): st['t'] = k.vm(x)
        else: k(x)
    def filler(m):
        if aps and m == 4: aps.issue()
        if m == 22:
            if aps: aps.check()
            for e in se: e()
        if 44 <= m < 64:
            if st['i'] == 0: k.wait(vm=res['t'])
            for _ in range(3):
                if st['i'] < len(fin): k(fin[st['i']]); st['i'] += 1
        if m >= 68:
            for _ in range(4):
                if st['j'] < len(epi): put(epi[st['j']]); st['j'] += 1
    g.run(xq, n0=8, filler=filler)
    assert st['i'] == len(fin) and st['j'] == len(epi)
    tkv = st['t']
    for x in qk_tile(vACC + 32, QF, vRS + 1, "", vST+8): put(x)
    mark(k, 'st')
    return tkv, st['t']

def code_touch(k, vd, skip=0):
    if not CODE_TOUCH: return
    k(f"s_getpc_b64 s[{sPC}:{sPC+1}]\ns_add_u32 s{sPC}, s{sPC}, s{sCT}\ns_addc_u32 s{sPC+1}, s{sPC+1}, 0")
    k.vm(f"global_load_dword v{vd}, v{vL16}, s[{sPC}:{sPC+1}] offset:{skip}")

def flag_touch(k, L, va, vd):
    if not FL_TOUCH: return
    k(f"v_bfe_u32 v{va}, v0, 3, 3\nv_lshlrev_b32 v{va}, 6, v{va}\nv_and_or_b32 v{va}, v0, 7, v{va}\nv_lshlrev_b32 v{va}, 7, v{va}")
    k(f"s_lshl_b32 s{sT3}, s{sG}, 10\ns_add_u32 s{sT3}, s{sT3}, {FLOC(L,0)}")
    k.vm(f"buffer_load_dword v{vd}, v{va}, {srd(sWS)}, s{sT3} offen sc1")

def ph_att(k, L, ring, tkv, tq):
    vO, vS0, vKV, aQ = 16, 144, 208, aWB
    NS = 4
    vS = [vS0 + 16*i for i in range(NS)]
    vK, vV, vIDX, vL128 = 6, 7, 8, 9
    sK, sHD = sB, sE
    k(f"s_lshl_b32 s{sHD}, s{sC}, 16")
    k(f"s_lshl_b32 s{sT0}, s{sC}, 17\ns_add_u32 s{sT0}, s{sT0}, s{sW4K}\ns_add_u32 s{sT0}, s{sT0}, {KVF(L)}")
    k("v_and_b32 v10, 0x33, v0\nv_bfe_u32 v11, v0, 2, 1\nv_lshlrev_b32 v11, 3, v11\nv_or_b32 v10, v10, v11")
    k(f"v_bfe_u32 v11, v0, 3, 1\nv_lshlrev_b32 v11, 2, v11\nv_or_b32 v10, v10, v11\nv_lshl_add_u32 v{vK}, v10, 4, s{sT0}")
    k(f"v_and_b32 v10, 15, v0\nv_bfe_u32 v11, v0, 5, 1\nv_lshlrev_b32 v11, 4, v11\nv_add_u32 v10, v10, v11\nv_lshl_add_u32 v{vV}, v10, 4, s{sT0}")
    k(f"v_mov_b32 v{vIDX}, 0xdddddddd\nv_lshlrev_b32 v{vL128}, 3, v{vL16}")
    k(f"s_lshl_b32 s{sK}, s{sG}, 14")
    k("v_and_b32 v10, 27, v0\nv_cmp_eq_u32 vcc, 16, v10\nv_mov_b32 v11, 0x3f803f80\nv_cndmask_b32 v11, 0, v11, vcc")
    k("v_mov_b32 v144, v11")
    k(f"s_lshr_b32 s{sT0}, s{sC}, 1\ns_lshl_b32 s{sD}, s{sT0}, 11\ns_add_u32 s{sD}, s{sD}, {FKV(L)}")
    k(f"s_lshl_b32 s{sT3}, s{sG}, 8\ns_add_u32 s{sT3}, s{sT3}, s{sD}")
    if L == 0:
        k(f"v_and_b32 v11, 1, v0\nv_lshlrev_b32 v11, 7, v11\nv_add_u32 v11, s{sT3}, v11")
        k(f"v_cmp_gt_u32 vcc, 512, v{vL16}")
    k(f"s_lshr_b32 s{sT1}, s{sW}, 1\ns_lshl_b32 s{sT1}, s{sT1}, 7\ns_add_u32 s{sD}, s{sD}, s{sT1}")
    if L:
        k(f"s_add_u32 s{sT3}, s{sT3}, s{sT1}")
        k(f"s_lshl_b32 s{sT2}, s{sG}, 10\ns_lshl_b32 s{sT0}, s{sT0}, 6\ns_add_u32 s{sT2}, s{sT2}, s{sT0}\ns_add_u32 s{sT2}, s{sT2}, {FLOC(L-1,5)}")
        k(f"v_mov_b32 v12, s{sT3}\nv_and_b32 v11, 7, v0\nv_lshlrev_b32 v11, 3, v11\nv_add_u32 v11, s{sT2}, v11")
        k(f"v_cmp_gt_u32 vcc, 512, v{vL16}\nv_cndmask_b32 v11, v11, v12, vcc")
    k(f"v_and_b32 v12, 7, v0\nv_lshlrev_b32 v12, 8, v12")
    k(f"s_mul_i32 s{sT2}, s{sG}, {8*112*KB}\ns_lshl_b32 s{sT3}, s{sC}, 10\ns_add_u32 s{sT2}, s{sT2}, s{sT3}\ns_add_u32 s{sT2}, s{sT2}, {QF}")
    sQ = list(range(64, 72))
    for p in range(4):
        k(f"s_xor_b32 s{sT3}, s{sW}, {p}\ns_mul_i32 s{sT3}, s{sT3}, {2*112*KB}\ns_add_u32 s{sQ[2*p]}, s{sT3}, s{sT2}\ns_add_u32 s{sQ[2*p+1]}, s{sQ[2*p]}, {112*KB}")
    sTH, sTW, sFO = 72, 73, 79
    k(f"s_lshl_b32 s{sT3}, s{sU}, 2\ns_add_u32 s{sT3}, s{sT3}, s{sW}")
    k(f"s_mul_i32 s{sTH}, s{sT3}, {7*KB}\ns_add_u32 s{sTH}, s{sTH}, {HF}")
    k(f"s_lshl_b32 s{sT0}, s{sT3}, 11\ns_add_u32 s{sT0}, s{sT0}, {XF}\ns_lshl_b32 s{sT1}, s{sT3}, 8\ns_add_u32 s{sT1}, s{sT1}, {SX}")
    k(f"v_and_b32 v3, 0x780, v{vL128}\nv_add_u32 v3, s{sT0}, v3\nv_and_b32 v13, 0x80, v{vL128}\nv_add_u32 v13, s{sT1}, v13\nv_cndmask_b32 v3, v13, v3, vcc")
    k(f"s_lshl_b32 s{sTW}, s{sC4}, 2\ns_add_u32 s{sTW}, s{sTW}, s{sW}\ns_mul_i32 s{sTW}, s{sTW}, {TOUCH_KBS[L] * KB // 8}")
    k(f"s_add_u32 s{sTW}, s{sTW}, s{sSEG+1}\ns_add_u32 s{sTW}, s{sTW}, {32*KB}")
    k(f"s_and_b32 s{sCT}, s{sT3}, 31\ns_lshl_b32 s{sCT}, s{sCT}, 10")
    k(f"s_lshl_b32 s{sFO}, s{sG}, 2\ns_add_u32 s{sFO}, s{sFO}, s{sW}\ns_lshl_b32 s{sFO}, s{sFO}, 5\ns_add_u32 s{sFO}, s{sFO}, s{sC}\ns_lshl_b32 s{sFO}, s{sFO}, 3\ns_add_u32 s{sFO}, s{sFO}, {FLOC(L,0)}")
    if L == 0:
        for i in range(48, 128): k(f"v_mov_b32 v{vO+i}, 0")
    mark(k, 'pre')
    if L: q_flag(k, L, tq)
    kv_flag(k, L, tkv)
    if L == 0 and PK_Q0:
        k(f"s_lshl_b32 s{sF}, s{sU}, 7\ns_add_u32 s{sF}, s{sF}, {FPK}\nv_mov_b32 v145, v12")
        publish_wg(k, None, xid=True, barrier=False)
        k("v_mov_b32 v12, v145")
    mark(k, 'flag')
    if L:
        for i in range(48, 128): k(f"v_mov_b32 v{vO+i}, 0")
    if L == 0 and LIN_AT == 'flag': k.vm("global_load_dword v5, v254, s[90:91]")
    for b in range(4):
        for j in range(8): k(f"v_mov_b32 v{vKV+12*b+4+j}, v144")
    k(f"s_mov_b32 s{sF}, 0")
    poll(k, 11, 14, sleep=SLEEP1[L])
    mark(k, 'poll')
    K = lambda t: vr(vKV + 12*(t % 4))
    V = lambda t, u: vr(vKV + 12*(t % 4) + 4 + 4*u)
    kt = {}; vt = {}
    def ldK(t):
        if t and (t & 1) == 0: k(f"s_add_u32 s{sK}, s{sK}, 0x4000\ns_and_b32 s{sK}, s{sK}, 0x1ffff")
        kt[t] = k.vm(f"buffer_load_dwordx4 {K(t)}, v{vK}, {srd(sWS)}, s{sK} offen offset:{(t & 1)*2*KB} sc1")
    def ldV(t):
        k(f"s_mov_b64 exec, s[{sMSK}:{sMSK+1}]")
        k.vm(f"buffer_load_dwordx4 {V(t,0)}, v{vV}, {srd(sWS)}, s{sK} offen offset:{(t & 1)*2*KB+KB} sc1")
        vt[t] = k.vm(f"buffer_load_dwordx4 {V(t,1)}, v{vV}, {srd(sWS)}, s{sK} offen offset:{(t & 1)*2*KB+KB+512} sc1")
        k("s_mov_b64 exec, -1")
    def ldKV(t):
        ldK(t); ldV(t); kt[t] = vt[t]
    ldK(0)
    qt = {}
    for s in range(8):
        qt[s] = k.vm(f"buffer_load_dwordx4 {ar(aQ+4*s)}, v{vL16}, {srd(sWS)}, s{sQ[s]} offen sc1")
        if s == 2: ldV(0)
    ldKV(1)
    ap2 = apoll1(k, 12, 10, sD, sleep=SLEEP2)
    for i in range(48): k(f"v_mov_b32 v{vO+i}, 0")
    steps = [(t, q) for t in range(15) for q in range(8)] + [(15, q) for q in (2, 3, 4, 5, 6, 7, 0, 1)]
    n = len(steps)
    LA = NS - 1
    def qk(i):
        t, q = steps[i]
        k.wait(vm=max(kt[t], qt[q]) if t == 0 else kt[t])
        k(f"v_mfma_f32_32x32x16_bf16 {vr(vS[i % NS],16)}, {K(t)}, {ar(aQ+4*q)}, 0")
    def pv(i, u):
        t, q = steps[i]
        k.wait(vm=vt[t])
        k(f"v_smfmac_f32_32x32x32_bf16 {vr(vO+16*q,16)}, {V(t,u)}, {vr(vS[i % NS]+8*u,8)}, v{vIDX}")
    for i in range(LA): qk(i)
    mark(k, 'm0')
    ring.limit = 96
    jobs = {}
    def job(i, f, e=10): jobs.setdefault((i, e), []).append(f)
    job(0, lambda: code_touch(k, 5))
    job(P2_AT - 4, ap2.issue)
    job(P2_AT, lambda: (ap2.check(), ldKV(2), ldKV(3)))
    for t in range(1, 13): job(8*t, lambda t=t: ldKV(t + 3))
    def kvpf(j):
        def f():
            k(f"s_add_u32 s{sT0}, s{sG}, {2*j}\nv_bfe_u32 v13, v0, 5, 1\nv_add_u32 v13, s{sT0}, v13\nv_and_b32 v13, 7, v13\nv_lshlrev_b32 v13, 14, v13")
            k(f"v_and_b32 v14, 0xf80, v{vL128}\nv_add_u32 v13, v13, v14")
            k(f"s_lshl_b32 s{sT0}, s{sC}, 17\ns_add_u32 s{sT0}, s{sT0}, s{sW4K}\ns_add_u32 s{sT0}, s{sT0}, {KVF(L)}")
            k.vm(f"buffer_load_dword v5, v13, {srd(sWS)}, s{sT0} offen sc1")
        return f
    if KV_PF[L]:
        for j in (2, 3): job(KV_PF[L] + 8*(j-2), kvpf(j))
    if L == 0:
        CHK_AT = CHK_Q0 if PK_Q0 else G.pk.schedule(job) + CHK_GAP
        apk = APoll(k, [f"buffer_load_dwordx2 v[10:11], v{vL128}, {srd(sWS)}, s{sX} offen offset:8 sc1"],
                    f"v_cmp_ne_u64 vcc, s[{sTAG}:{sTAG+1}], v[10:11]", sleep=SLEEP3)
        def chk0():
            k(f"s_lshl_b32 s{sX}, s{sW}, 13\ns_add_u32 s{sX}, s{sX}, {FPK}")
            apk.issue()
        job(CHK_AT - 6, chk0)
        xt_ = {}
        def mode():
            k.wait(vm=xt_['t'])
            k(f"s_xor_b32 s{sT2}, s{sTAG}, s{sXCC}\ns_mov_b32 s{sT3}, s{sTAG+1}")
            k(f"v_cmp_eq_u64 vcc, s[{sT2}:{sT3}], v[14:15]")
            k(f"s_cmp_eq_u64 vcc, -1\ns_cselect_b32 s{sMODE}, 1, 0")
        job(CHK_AT + 17, mode)
        def chk():
            apk.check()
            k("s_barrier")
            k(f"v_and_b32 v13, 0xf80, v{vL128}\ns_lshl_b32 s{sX2}, s{sG}, 12\ns_add_u32 s{sX2}, s{sX2}, {FPK}")
            xt_['t'] = k.vm(f"buffer_load_dwordx2 v[14:15], v13, {srd(sWS)}, s{sX2} offen sc1")
            k(f"s_and_b32 s{sT2}, s{sC}, 7\ns_lshl_b32 s{sT2}, s{sT2}, 1\ns_lshr_b32 s{sT3}, s{sW}, 1\ns_add_u32 s{sT2}, s{sT2}, s{sT3}")
            k(f"s_mul_i32 s{sT3}, s{sW}, {28*KB}\ns_add_u32 s{sT3}, s{sT3}, {WD}")
            k(f"s_mul_i32 s{sX}, s{sT2}, {112*KB}\ns_add_u32 s{sX}, s{sX}, s{sT3}")
            k(f"s_xor_b32 s{sT2}, s{sT2}, 1\ns_mul_i32 s{sX2}, s{sT2}, {112*KB}\ns_add_u32 s{sX2}, s{sX2}, s{sT3}")
        job(CHK_AT, chk)
        def wsrc(i):
            s_ = sX if i < 28 else sX2
            j = i % 28
            if j and (j & 3) == 0: k(f"s_add_u32 s{s_}, s{s_}, 4096")
            return s_, (j & 3) * KB
        wq = XLoader(k, 56, lambda i: ar(aWD + 8*(i % 28) + 4*(i // 28)), wsrc)
        slots = [i for i in range(CHK_AT + 1, 112) if i % 8 in WD_SLOTS]
        work = [lambda: wq.issue_n(4)] * 14
        rw = [ring.issue16] * 6
        seq = []
        while work or rw:
            if work: seq.append(work.pop(0))
            if work: seq.append(work.pop(0))
            if rw: seq.append(rw.pop(0))
        assert len(seq) <= len(slots), (len(seq), len(slots))
        for i, f in zip(slots, seq): job(i, f)
    else:
        for j in range(6): job(12 + 8*j, ring.issue16)
    def tch(j):
        def f():
            if j: k(f"s_add_u32 s{sTW}, s{sTW}, 8192")
            k.vm(f"buffer_load_dword v5, v{vL128}, {srd(sWS)}, s{sTW} offen sc1")
        return f
    for j in range(-(-TOUCH_KBS[L] // 64)): job(TOUCH_AT[L] + j*TOUCH_STEP, tch(j))
    job(TACT_AT, lambda: k.vm(f"buffer_load_dword v5, v{vL128}, {srd(sWS)}, s{sTH} offen sc1"))
    def tact():
        k.vm(f"buffer_load_dword v5, v3, {srd(sWS)}, 0 offen sc1")
        code_touch(k, 5)
    job(TACT_AT + 4, tact)
    job(TACT_AT + 8, lambda: flag_touch(k, L, 4, 5))
    SC = 96 * KB
    vWA = 10
    def red_setup():
        k(f"s_lshl_b32 s{sT0}, s{sW}, 14\nv_add_u32 v13, s{sT0}, v{vL16}")
        for j in range(1, 4):
            k(f"v_xor_b32 v{vWA+j-1}, {j << 14}, v13\nv_add_u32 v{vWA+j-1}, {SC}, v{vWA+j-1}")
        k(f"v_add_u32 v13, {SC}, v13")
    job(118, red_setup)
    def red_write(s):
        j = s >> 1; z = s & 1
        k.lg(f"ds_write_b128 v{vWA+j-1}, {vr(vO+16*s)} offset:{(z*3+j-1)*2*KB}")
        k.lg(f"ds_write_b128 v{vWA+j-1}, {vr(vO+16*s+4)} offset:{(z*3+j-1)*2*KB+KB}")
        k.lg(f"ds_write_b32 v{vWA+j-1}, v{vO+16*s+8} offset:{(12+z)*KB+(j-1)*4}")
    for i in range(120, 126):
        job(i + 2, lambda s=steps[i][1]: red_write(s), e=2)
    tl = []
    def red_read():
        k.wait_all()
        k("s_barrier")
        for z in range(2):
            k.lg(f"ds_read_b128 {vr(vO+32+48*z+8)}, v13 offset:{(12+z)*KB}")
            for j in range(3):
                b = vO + 32 + (z*3 + j)*16
                k.lg(f"ds_read_b128 {vr(b)}, v13 offset:{(z*3+j)*2*KB}")
                tl.append(k.lg(f"ds_read_b128 {vr(b+4)}, v13 offset:{(z*3+j)*2*KB+KB}"))
    job(127, red_read)
    for i, (t, q) in enumerate(steps):
        s = vS[i % NS]
        if i in ATT_MARKS: mark(k, f's{i}')
        for e in range(16):
            if e == 2 and i > 0: pv(i-1, 1)
            if e == 6 and i + LA < n: qk(i + LA)
            if e == 10: pv(i, 0)
            for f in jobs.pop((i, e), []): f()
            k(f"v_exp_f32 v{s+e}, v{s+e}")
    pv(n-1, 1)
    assert not jobs, jobs.keys()
    assert ring.issued == 96
    mark(k, 'loop')
    for z in range(2):
        o = vO + 16*z; l = vO + 32 + 48*z + 8
        k.wait(lg=tl[z*3])
        k(f"v_add_f32 v{l}, v{l}, v{l+1}\nv_add_f32 v{o+8}, v{o+8}, v{l+2}\nv_add_f32 v{o+8}, v{o+8}, v{l}\nv_rcp_f32 v{o+9}, v{o+8}")
        for j in range(3):
            b = vO + 32 + (z*3 + j)*16
            k.wait(lg=tl[z*3+j])
            for i in range(8): k(f"v_add_f32 v{o+i}, v{o+i}, v{b+i}")
        for j in range(4):
            k(f"v_mul_f32 v{o+2*j}, v{o+2*j}, v{o+9}\nv_mul_f32 v{o+2*j+1}, v{o+2*j+1}, v{o+9}")
            k(f"v_cvt_pk_bf16_f32 v{o+12+j}, v{o+2*j}, v{o+2*j+1}")
        ts = k.vm(f"buffer_store_dwordx4 {vr(o+12)}, v{vL16}, {srd(sWS)}, s{sQ[z]} offen")
    mark(k, 'f_st')
    fb = k.newlabel('fb'); back = k.newlabel('fbret')
    LO, HI = f2u(2.0**-60), f2u(2.0**60)
    for z in range(2):
        o = vO + 16*z
        k(f"v_add_f32 v{o}, v{o}, v{o+1}\nv_add_f32 v{o+2}, v{o+2}, v{o+3}\nv_add_f32 v{o+4}, v{o+4}, v{o+5}\nv_add_f32 v{o+6}, v{o+6}, v{o+7}")
        k(f"v_add_f32 v{o}, v{o}, v{o+2}\nv_add_f32 v{o+4}, v{o+4}, v{o+6}\nv_add_f32 v{o}, v{o}, v{o+4}")
        k(f"v_fma_f32 v{o+8}, v{o}, 0, v{o+8}\nv_subrev_u32 v{o+8}, {hex(LO)}, v{o+8}")
    k(f"v_max_u32 v{vO+8}, v{vO+8}, v{vO+24}")
    k(f"v_cmp_lt_u32 vcc, {hex(0 if FORCE_FB else HI - LO)}, v{vO+8}")
    k(f"s_cbranch_vccnz {fb}")
    k.label(back)
    F = [f"{fb}:", "s_waitcnt vmcnt(0)",
         f"v_subrev_u32 v{vK}, s{sW4K}, v{vK}", f"v_subrev_u32 v{vV}, s{sW4K}, v{vV}"]
    S, C, M = vS0, vS0 + 16, vS0 + 32
    for z in range(2):
        o = vO + 16*z; Q = ar(aQ + 4*z)
        F += [f"v_mov_b32 v{M}, 0xff800000", f"s_mov_b32 s{sK}, 0", f"{fb}_a{z}:",
              f"buffer_load_dwordx4 {K(0)}, v{vK}, {srd(sWS)}, s{sK} offen sc1", "s_waitcnt vmcnt(0)",
              f"v_mfma_f32_32x32x16_bf16 {vr(S,16)}, {K(0)}, {Q}, 0"]
        F += [f"v_max3_f32 v{M}, v{M}, v{S+2*i}, v{S+2*i+1}" for i in range(8)]
        F += [f"s_add_u32 s{sK}, s{sK}, 2048", f"s_cmp_lt_u32 s{sK}, {64*2048}", f"s_cbranch_scc1 {fb}_a{z}",
              f"v_mov_b32 v{M+1}, v{M}", f"v_permlane32_swap_b32 v{M}, v{M+1}", f"v_max_f32 v{M}, v{M}, v{M+1}"]
        F += [f"v_sub_f32 v{C+i}, 0, v{M}" for i in range(16)] + [f"v_mov_b32 v{o+i}, 0" for i in range(16)]
        F += [f"s_mov_b32 s{sK}, 0", f"{fb}_b{z}:",
              f"buffer_load_dwordx4 {K(0)}, v{vK}, {srd(sWS)}, s{sK} offen sc1",
              f"s_mov_b64 exec, s[{sMSK}:{sMSK+1}]",
              f"buffer_load_dwordx4 {V(0,0)}, v{vV}, {srd(sWS)}, s{sK} offen offset:{KB} sc1",
              f"buffer_load_dwordx4 {V(0,1)}, v{vV}, {srd(sWS)}, s{sK} offen offset:{KB+512} sc1",
              "s_mov_b64 exec, -1", "s_waitcnt vmcnt(0)",
              f"v_mfma_f32_32x32x16_bf16 {vr(S,16)}, {K(0)}, {Q}, {vr(C,16)}"]
        F += [f"v_exp_f32 v{S+i}, v{S+i}" for i in range(16)]
        F += [f"v_smfmac_f32_32x32x32_bf16 {vr(o,16)}, {V(0,u)}, {vr(S+8*u,8)}, v{vIDX}" for u in range(2)]
        F += ["s_nop 15", f"s_add_u32 s{sK}, s{sK}, 2048", f"s_cmp_lt_u32 s{sK}, {64*2048}", f"s_cbranch_scc1 {fb}_b{z}",
              f"v_rcp_f32 v{o+9}, v{o+8}"]
        for j in range(4):
            F += [f"v_mul_f32 v{o+2*j}, v{o+2*j}, v{o+9}", f"v_mul_f32 v{o+2*j+1}, v{o+2*j+1}, v{o+9}", f"v_cvt_pk_bf16_f32 v{o+12+j}, v{o+2*j}, v{o+2*j+1}"]
        F += [f"buffer_store_dwordx4 {vr(o+12)}, v{vL16}, {srd(sWS)}, s{sQ[z]} offen"]
    F += ["s_waitcnt vmcnt(0)", f"s_branch {back}"]
    G.far += F
    k(f"s_mov_b32 s{sF}, s{sFO}")
    ring.end16()
    ring.limit = 144
    return ts

def load_res(k, v):
    k(f"s_add_u32 s{sT1}, s{sDST}, {XF}")
    k.vm(f"buffer_load_dwordx4 {vr(v)}, v{vL16}, {srd(sWS)}, s{sT1} offen sc1")
    return k.vm(f"buffer_load_dwordx4 {vr(v+4)}, v{vL16}, {srd(sWS)}, s{sT1} offen offset:1024 sc1")
def add_res(k, acc, v):
    for j in range(8):
        k(f"v_lshlrev_b32 v10, 16, v{v+j}\nv_and_b32 v11, 0xffff0000, v{v+j}")
        k(f"v_add_f32 v{acc+2*j}, v{acc+2*j}, v10\nv_add_f32 v{acc+2*j+1}, v{acc+2*j+1}, v11")

def ph_wo(k, L, ring, tO):
    k.label(f'L_wo{L}')
    vX, vACC, vRES, vSUM, vPK = 16, 80, 112, 120, 136
    k(f"s_lshr_b32 s{sRB}, s{sDST}, 15\ns_lshr_b32 s{sD}, s{sW}, 1")
    k(f"s_mul_i32 s{sX}, s{sRB}, {112*KB}\ns_lshl_b32 s{sT0}, s{sD}, 14\ns_add_u32 s{sX}, s{sX}, s{sT0}\ns_add_u32 s{sX}, s{sX}, {HF}")
    k(f"s_lshl_b32 s{sT0}, s{sD}, 11")
    set_lds_bases(k, sT0)
    seq = []
    for s in range(16):
        seq.append((s, 1))
        if s < 16 - WO_R0: seq.append((s, 0))
    nf = len(seq)
    seq += [(s, 0) for s in range(16 - WO_R0, 16)]
    ops = [dict(b=4*s + a, bmin=0, bmax=63, xi=s, x=vr(vX+4*s), acc=vr(vACC+16*a,16), swap=False, first=(s == 0)) for s, a in seq]
    g = Gemm(k, ring, ops, {0}, stop_issue=WO_STOP)
    if L == 0:
        rowmajor_addr(k, 8, sT0)
        k.vm(f"buffer_load_dwordx4 {vr(vRES)}, v8, {srd(60)}, s{sT0} offen")
        k.vm(f"buffer_load_dwordx4 {vr(vRES+4)}, v8, {srd(60)}, s{sT0} offen offset:32")
    else:
        load_res(k, vRES)
    g.start()
    mark(k, 'f_bar')
    ring.issue_n(PRE_WO)
    publish_local(k, tO)
    mark(k, 'f_pub')
    ring.issue_n(PRE_WO2)
    k(f"s_and_b32 s{sF}, s{sRB}, 0xfe\ns_add_u32 s{sF}, s{sF}, s{sD}\ns_lshl_b32 s{sF}, s{sF}, 7\ns_add_u32 s{sF}, s{sF}, {FLOC(L,0)}")
    SC = 144 * KB
    k(f"s_xor_b32 s{sT0}, s{sW}, 2\ns_lshl_b32 s{sT0}, s{sT0}, 12\ns_add_u32 s{sT0}, s{sT0}, {SC}\nv_add_u32 v6, s{sT0}, v{vL16}")
    k(f"s_lshl_b32 s{sT0}, s{sW}, 12\ns_add_u32 s{sT0}, s{sT0}, {SC}\nv_add_u32 v7, s{sT0}, v{vL16}")
    poll16(k)
    mark(k, 'f_poll')
    xq = XLoader(k, 16, lambda i: vr(vX+4*i), lin_src(k))
    xq.issue_n(WO_N0)
    for x in res_unpack(vSUM, vRES): k(x)
    st = {}
    def xchg(step):
        if step == 0:
            while g.nread < 32: g.rd()
            for j in range(4): k.lg(f"ds_write_b128 v6, {vr(vACC+16+4*j)} offset:{j*KB}")
        elif step == 1:
            k.wait_all(vm=False)
            ring.limit = None
            ring.sync(64, 0)
            for j in range(4): st['t'] = k.lg(f"ds_read_b128 {vr(vACC+16+4*j)}, v7 offset:{j*KB}")
        st['n'] = step + 1
    def filler(m):
        if m == max(nf + 1, 25): xchg(0)
        if m == max(nf + 4, 28): xchg(1)
    g.run(xq, n0=0, look=16, filler=filler)
    for step in range(st.get('n', 0), 2): xchg(step)
    k.wait(lg=st['t'])
    for i in range(16): k(f"v_add_f32 v{vSUM+i}, v{vSUM+i}, v{vACC+16+i}")
    for j in range(8):
        k(f"v_add_f32 v{vACC+2*j}, v{vACC+2*j}, v{vSUM+2*j}\nv_add_f32 v{vACC+2*j+1}, v{vACC+2*j+1}, v{vSUM+2*j+1}")
        k(f"v_cvt_pk_bf16_f32 v{vPK+j}, v{vACC+2*j}, v{vACC+2*j+1}")
    ts = store_x(k, vACC, vPK, L, 1, ring)
    mark(k, 'end')
    return ts

PASSES = ((0, 3), (3, 2), (5, 2))
def ph_up(k, L, ring, b0, tprev):
    vX, vACC, vST, vEXT, vRS = 16, 144, 224, 8, 6
    sH0, sH1 = sD, sE
    rb_128(k)
    k(f"s_and_b32 s{sA}, s{sC}, 15")
    k(f"s_lshl_b32 s{sX}, s{sRB}, 15\ns_add_u32 s{sX}, s{sX}, {XF}")
    set_lds_bases(k)
    ops = []
    b = b0
    for (t0, nt) in PASSES:
        for ks in range(33):
            for t in range(t0, t0+nt):
                ops.append(dict(b=b, bmin=b, bmax=b, xi=(ks if ks < 32 else None), x=(vr(vX+4*ks) if ks < 32 else vr(vEXT)),
                                acc=vr(vACC+16*t, 16), swap=False, first=(ks == 0)))
                b += 1
    g = Gemm(k, ring, ops, UP_SYNCS, stop_issue=UP_STOP)
    g.start()
    mark(k, 'f_bar')
    ring.issue_n(PRE)
    publish_local(k, tprev)
    mark(k, 'f_pub')
    ring.issue_n(PRE2)
    res = {}
    se = stats_emitters(k, vST, res)
    k(f"s_mul_i32 s{sH0}, s{sRB}, 112\ns_mul_i32 s{sT2}, s{sA}, 7\ns_add_u32 s{sH0}, s{sH0}, s{sT2}\ns_lshl_b32 s{sH0}, s{sH0}, 10\ns_add_u32 s{sH0}, s{sH0}, {HF}")
    k(f"s_add_u32 s{sH1}, s{sH0}, 4096")
    k(f"s_lshl_b32 s{sF}, s{sRB}, 7\ns_add_u32 s{sF}, s{sF}, {FLOC(L,1)}")
    poll16(k)
    mark(k, 'f_poll')
    aps = stats_poll(k, FLOC(L,6) - FLOC(L,1))
    xq = XLoader(k, 32, lambda i: vr(vX+4*i), lin_src(k))
    fin = fin_stats(vST, vEXT, vRS) + [f"v_mul_f32 v{vRS}, v{vRS}, v{vRS}"]
    def epi(t):
        a = vACC + 16*t
        o = []
        for j in range(4):
            o += [f"v_mul_f32 v{a+2*j}, v{a+2*j}, v{vRS}", f"v_mul_f32 v{a+2*j+1}, v{a+2*j+1}, v{vRS}",
                  f"v_mul_f32 v{a+2*j}, v{a+2*j}, v{a+8+2*j}", f"v_mul_f32 v{a+2*j+1}, v{a+2*j+1}, v{a+9+2*j}",
                  f"v_cvt_pk_bf16_f32 v{a+8+j}, v{a+2*j}, v{a+2*j+1}"]
        o.append(f"buffer_store_dwordx4 {vr(a+8)}, v{vL16}, {srd(sWS)}, s{sH0 + (t >> 2)} offen offset:{(t & 3)*KB}")
        return o
    st = dict(i=0, t=None); q = []
    def put(x):
        if x.startswith('buffer'): st['t'] = k.vm(x)
        else: k(x)
    dn = Down(k, L)
    def filler(m):
        if aps and m == 12: aps.issue()
        if aps and m == 30: aps.check()
        if 70 <= m < 96:
            if st['i'] == 0: k.wait(vm=res['t'])
            for _ in range(2):
                if st['i'] < len(fin): k(fin[st['i']]); st['i'] += 1
        if m == 102: q.extend(sum((epi(t) for t in range(0, 3)), []))
        if m == 168: q.extend(sum((epi(t) for t in range(3, 5)), []))
        for _ in range(UP_EPI):
            if q: put(q.pop(0))
        if m == 146: code_touch(k, 7)
        if m in UP_PUB:
            assert not q
            if m == UP_PUB[0]:
                k(f"s_lshl_b32 s{sF}, s{sRB}, 4\ns_add_u32 s{sF}, s{sF}, s{sA}\ns_lshl_b32 s{sF}, s{sF}, 3\ns_add_u32 s{sF}, s{sF}, {FLOC(L,2)}")
            publish_local(k, st['t'])
            k(f"s_add_u32 s{sF}, s{sF}, {8*KB}")
            if m == UP_PUB[1]: dn.xq.hold = 20
        if UP_PUB[0] < m and dn.setup:
            for _ in range(3):
                if dn.setup: k(dn.setup.pop(0))
        if m in DN_POLL: dn.ap.issue()
        if m in DN_CHK:
            dn.ap.check()
            k(f"s_add_u32 s{dn.sFl}, s{dn.sFl}, {8*KB}")
        if m > DN_CHK[0] and m % 2 and not (ring.can_issue() and m < UP_STOP): dn.xq.issue_n(1)
    g.run(xq, look=UP_LOOK, filler=filler, misc=se, misc_from=32, skip=UP_SKIP[L])
    assert st['i'] == len(fin) and not dn.setup and ring.issued == ring.total
    dn.xq.hold = 36
    for t in range(5, 7):
        for i, x in enumerate(epi(t)):
            put(x)
            if i in (4, 14): dn.xq.issue_n(1)
    mark(k, 'end')
    dn.tB = st['t']
    return dn

class Down:
    NX = 36
    def __init__(self, k, L):
        self.k = k; self.L = L
        sXa, sXb, sFl = sB, sX2, sCc
        self.sFl = sFl
        self.setup = (f"s_lshr_b32 s{sT0}, s{sDST}, 15\ns_mul_i32 s{sT1}, s{sW}, {28*KB}\ns_add_u32 s{sT1}, s{sT1}, {HF}\n"
                      f"s_mul_i32 s{sXa}, s{sT0}, {112*KB}\ns_add_u32 s{sXa}, s{sXa}, s{sT1}\n"
                      f"s_xor_b32 s{sT2}, s{sT0}, 1\ns_mul_i32 s{sXb}, s{sT2}, {112*KB}\ns_add_u32 s{sXb}, s{sXb}, s{sT1}\n"
                      f"v_and_b32 v12, 3, v0\nv_lshlrev_b32 v12, 3, v12\nv_and_b32 v13, 4, v0\nv_lshl_add_u32 v12, v13, 5, v12\n"
                      f"s_and_b32 s{sFl}, s{sT0}, 0xfe\ns_lshl_b32 s{sFl}, s{sFl}, 7\ns_lshl_b32 s{sT1}, s{sW}, 5\ns_add_u32 s{sFl}, s{sFl}, s{sT1}\n"
                      f"s_add_u32 s{sFl}, s{sFl}, {FLOC(L,2)}").split('\n')
        self.order = order = [7*c + t for t0, nt in PASSES for c in range(4) for t in range(t0, t0+nt)]
        cur = {sXa: 0, sXb: 0}
        def src(i):
            s_ = sXa if (i & 1) == 0 else sXb
            r = order[i >> 1]
            if not 0 <= r - cur[s_] < 4:
                d = (r - cur[s_]) * KB
                k(f"s_add_u32 s{s_}, s{s_}, {d}" if d > 0 else f"s_sub_u32 s{s_}, s{s_}, {-d}")
                cur[s_] = r
            return s_, (r - cur[s_]) * KB
        self.xr = lambda i: vr(144 + 4*(i % 36) if (i % 36) < 20 else 80 + 4*((i % 36) - 20))
        self.xq = XLoader(k, 56, self.xr, src)
        self.xq.hold = 12
        self.ap = apoll1(k, 12, 14, sFl)

def res_unpack(dst, v):
    o = []
    for j in range(8): o += [f"v_lshlrev_b32 v{dst+2*j}, 16, v{v+j}", f"v_and_b32 v{dst+2*j+1}, 0xffff0000, v{v+j}"]
    return o

def ph_down(k, L, ring, dn):
    vACC, vRES, vPK, vSUM = 16, 240, 240, 224
    final = L == 1
    xq = dn.xq; order = dn.order; NX = dn.NX
    xq.hold = 40
    SC = 108 * KB
    side = []
    for a in range(1, 4):
        side += f"s_xor_b32 s{sT0}, s{sW}, {a}\ns_mul_i32 s{sT0}, s{sT0}, {12*KB}\ns_add_u32 s{sT0}, s{sT0}, {SC + (a-1)*4*KB}\nv_add_u32 v{5+a}, s{sT0}, v{vL16}".split('\n')
    side += f"s_mul_i32 s{sT0}, s{sW}, {12*KB}\ns_add_u32 s{sT0}, s{sT0}, {SC}\nv_add_u32 v9, s{sT0}, v{vL16}".split('\n')
    R, R0 = DN_R, DN_R0
    seq = []
    for s in range(28 - R):
        seq += [(s, a) for a in (3, 2, 1)]
        if s < 28 - R0: seq.append((s, 0))
    seq += [(s, a) for a in (3, 2, 1) for s in range(28 - R, 28)] + [(s, 0) for s in range(28 - R0, 28)]
    lo = [min(2*s_ + (a_ & 1) for s_, a_ in seq[m:]) for m in range(112)]
    wr = []; rt = None; tail = None; res = None; wb = False
    for m, (s, a) in enumerate(seq):
        r = order[s]
        if m == 4*DN_PUBB: publish_local(k, dn.tB)
        if m == 4*DN_BAR:
            ring.limit = None
            ring.sync(296, 0)
        if m == 4*DN_POLLB:
            apb = dn.ap
            apb.issue()
            rt = load_res(k, vRES)
        if m == 4*DN_CHKB:
            apb.check()
            xq.hold = 56
            xq.issue_n(min(3, lo[m] + NX - xq.n))
        xi = 2*s + (a & 1)
        while xq.n <= xi:
            assert xq.n < xq.hold and xq.n < lo[m] + NX
            xq.issue_n(1)
        k.wait(vm=xq.t[xi])
        acc = vr(vACC + 16*a, 16)
        k(f"v_mfma_f32_32x32x16_bf16 {acc}, {ar(aWD + 8*r + 4*(a >> 1))}, {dn.xr(xi)}, {'0' if s == 0 else acc}")
        if m == 0: mark(k, 'm0')
        if m in GEMM_MARKS.get(G.ph, ()): mark(k, f'm{m}')
        if m % 2 == 0 and xq.n < min(lo[m] + NX, xq.total, xq.hold): xq.issue_n(1)
        elif m > 4*DN_CHKB + 8:
            if res is None:
                k.wait(vm=rt); res = True
                side += res_unpack(vSUM, vRES)
            for _ in range(4):
                if side: k(side.pop(0))
        if final and WB_MASK is not None and xq.n == xq.total and k.vm_done == k.vm_issued and not wb:
            wb = True; l_ = k.newlabel('wb')
            k(f"s_lshl_b32 s{sT1}, s{sC}, 2\ns_add_u32 s{sT1}, s{sT1}, s{sW}\ns_and_b32 s{sT1}, s{sT1}, {WB_MASK}\ns_cbranch_scc1 {l_}")
            print('wbl2 at', m, file=sys.stderr)
            k("buffer_wbl2 sc1")
            k.label(l_)
        if wr and wr[0][0] <= m:
            assert not side
            for _ in range(min(DN_WR, len(wr))):
                if wr[0][0] <= m: k.lg(wr.pop(0)[1])
            if wr and DN_WR == 1: wr[0] = (max(wr[0][0], m + DN_WGAP), wr[0][1])
            if not wr and a == 0: tail = min(m + 2, 111)
        if s == 27 and a:
            wr += [(m + 2, f"ds_write_b128 v{5+a}, {vr(vACC+16*a+4*j)} offset:{j*KB}") for j in range(4)]
        if tail == m:
            k.wait_all(vm=False)
            k("s_barrier")
            tl = []
            for b in range(3):
                for j in range(4): t_ = k.lg(f"ds_read_b128 {vr(vACC+16+16*b+4*j)}, v9 offset:{b*4*KB + j*KB}")
                tl.append(t_)
            adds = []
            for b in range(3): adds += [(tl[b], f"v_add_f32 v{vSUM+i}, v{vSUM+i}, v{vACC+16+16*b+i}") for i in range(16)]
        elif tail is not None and m > tail + 1:
            for _ in range(6):
                if adds:
                    t_, x = adds.pop(0); k.wait(lg=t_); k(x)
    assert not side and not wr and tail is not None and tail < 112
    for t_, x in adds:
        k.wait(lg=t_); k(x)
    if final: rowmajor_addr(k, 6, sT0)
    for j in range(8):
        k(f"v_add_f32 v{vACC+2*j}, v{vACC+2*j}, v{vSUM+2*j}\nv_add_f32 v{vACC+2*j+1}, v{vACC+2*j+1}, v{vSUM+2*j+1}")
        k(f"v_cvt_pk_bf16_f32 v{vPK+j}, v{vACC+2*j}, v{vACC+2*j+1}")
    if final:
        k.vm(f"buffer_store_dwordx4 {vr(vPK)}, v6, {srd(sAUX)}, s{sT0} offen{OUT_SC}")
        k.vm(f"buffer_store_dwordx4 {vr(vPK+4)}, v6, {srd(sAUX)}, s{sT0} offen offset:32{OUT_SC}")
    else:
        G.tx = store_x(k, vACC, vPK, L, 8, ring)
    mark(k, 'end')

def k_main(name):
    k = Asm()
    G.nst = 0
    k(f".globl {name}\n.p2align 8\n.type {name},@function")
    k.label(name)
    if STAMP: k("s_memrealtime s[42:43]")
    mark(k, 'start')
    k("s_cmp_ge_u32 s2, 256")
    k("s_cbranch_scc1 L_abort")
    k(f"s_load_dwordx2 s[{sWS}:{sWS+1}], s[0:1], 72")
    k(f"s_load_dwordx2 s[{sAUX}:{sAUX+1}], s[0:1], 56")
    k("s_load_dwordx2 s[60:61], s[0:1], 0\ns_load_dwordx4 s[64:67], s[0:1], 8\ns_load_dwordx4 s[68:71], s[0:1], 32\ns_load_dwordx2 s[72:73], s[0:1], 48")
    k("v_lshrrev_b32 v2, 6, v0")
    k(f"v_and_b32 v{vL16}, 63, v0")
    k(f"v_readfirstlane_b32 s{sW}, v2")
    k(f"v_lshlrev_b32 v{vL16}, 4, v{vL16}")
    k(f"s_mov_b32 s{sWG}, s2\ns_and_b32 s{sG}, s2, 7\ns_lshr_b32 s{sC}, s2, 3\ns_lshl_b32 s{sW1K}, s{sW}, 10")
    k(f"s_lshr_b32 s{sC4}, s{sC}, 4\ns_lshr_b32 s{sC3}, s{sC}, 3")
    k(f"s_lshl_b32 s{sU}, s{sG}, 5\ns_add_u32 s{sU}, s{sU}, s{sC}")
    k(f"s_lshl_b32 s{sW4K}, s{sW}, 12")
    k(f"s_getreg_b32 s{sXCC}, hwreg(HW_REG_XCC_ID, 0, 4)")
    k(f"v_add_u32 v{vSRC}, s{sW1K}, v{vL16}")
    k(f"s_mov_b32 s{sMSK}, 0xffff\ns_mov_b32 s{sMSK+1}, 0xffff\ns_mov_b32 s{sMODE}, 0")
    k(f"s_and_b32 s{sT0}, s{sC}, 7\ns_mul_i32 s{sSEG}, s{sT0}, {WO_STR}\ns_add_u32 s{sSEG}, s{sSEG}, {WO}")
    k(f"s_lshl_b32 s{sT1}, s{sG}, 2\ns_add_u32 s{sT1}, s{sT1}, s{sC3}\ns_lshl_b32 s{sT1}, s{sT1}, 1\ns_and_b32 s{sT2}, s{sW}, 1\ns_add_u32 s{sT1}, s{sT1}, s{sT2}")
    k(f"s_lshl_b32 s{sT1}, s{sT1}, 5\ns_lshl_b32 s{sT0}, s{sT0}, 2\ns_add_u32 s{sT1}, s{sT1}, s{sT0}\ns_and_b32 s{sT2}, s{sW}, 2\ns_add_u32 s{sT1}, s{sT1}, s{sT2}\ns_lshl_b32 s{sDST}, s{sT1}, 10")
    k(f"s_lshr_b32 s{sSD}, s{sDST}, 12\ns_lshl_b32 s{sSD}, s{sSD}, 9\ns_lshl_b32 s{sT2}, s{sT2}, 2\ns_add_u32 s{sSD}, s{sSD}, s{sT2}\ns_add_u32 s{sSD}, s{sSD}, {SX}")
    k(f"s_and_b32 s{sT0}, s{sC}, 15\ns_mul_i32 s{sSEG+1}, s{sT0}, {WU_STR}\ns_add_u32 s{sSEG+1}, s{sSEG+1}, {WU}")
    k(f"s_mul_i32 s{sSEG+2}, s{sT0}, {WQ_STR}\ns_add_u32 s{sSEG+2}, s{sSEG+2}, {WQ}")
    def late(k):
        if WSOFF: k(f"s_add_u32 s{sWS}, s{sWS}, {WSOFF}\ns_addc_u32 s{sWS+1}, s{sWS+1}, 0")
        k(f"s_add_u32 s{sT0}, s{sWS}, {EP}\ns_addc_u32 s{sT1}, s{sWS+1}, 0")
        k(f"s_load_dwordx2 s[{sTAG}:{sTAG+1}], s[{sT0}:{sT1}], 0")
        k(f"s_and_b32 s{sWS+1}, s{sWS+1}, 0xffff\ns_mov_b32 s{sWS+2}, {0x10000000 - WSOFF}\ns_mov_b32 s{sWS+3}, 0x20000")
        k(f"s_and_b32 s{sAUX+1}, s{sAUX+1}, 0xffff\ns_mov_b32 s{sAUX+2}, {2*MB}\ns_mov_b32 s{sAUX+3}, 0x20000")
        if WARM:
            k(f"v_and_b32 v244, 63, v0\nv_min_u32 v245, {WS_PAGES-1}, v244\nv_lshlrev_b32 v245, 21, v245")
            k.vm(f"buffer_load_dword v5, v245, {srd(sWS)}, 0 offen")
            k("v_mov_b32 v245, 0")
            k.vm(f"buffer_load_dword v5, v245, {srd(sAUX)}, 0 offen")
            for p in (66, 68, 70, 72):
                k.vm(f"global_load_dword v5, v245, s[{p}:{p+1}]")
            k(f"s_getpc_b64 s[{sT0}:{sT1}]")
            k.label("L_pc")
            k(f"s_lshl_b32 s{sT2}, s{sC}, 2\ns_add_u32 s{sT2}, s{sT2}, s{sW}\ns_mul_i32 s{sT2}, s{sT2}, 640")
            k(f"v_min_u32 v245, 4, v244\nv_lshlrev_b32 v245, 7, v245\nv_add_u32 v245, s{sT2}, v245\nv_min_u32 v245, L_abort-L_pc, v245")
            k.vm(f"global_load_dword v5, v245, s[{sT0}:{sT1}]")
    G.ph = 'qkv0'; tk = ph_qkv0(k, late)
    for L in range(2):
        ring = Ring(k, [(sSEG, 64), (sSEG+1, 232)] + ([(sSEG+2, 100)] if L == 0 else []))
        G.ph = f'att{L}'; tO = ph_att(k, L, ring, *tk)
        G.ph = f'wo{L}'; tx = ph_wo(k, L, ring, tO)
        G.ph = f'up{L}'; tB = ph_up(k, L, ring, 64, tx)
        G.ph = f'dn{L}'; ph_down(k, L, ring, tB)
        G.ph = 'qkv1'
        if L == 0: tk = ph_qkv(k, 1, ring, 296)
    k(f"s_add_u32 s{sT0}, s{sWG}, s{sW}\ns_cmp_lg_u32 s{sT0}, 0\ns_cbranch_scc1 L_fin")
    k(f"s_mov_b32 s{sF}, {EP}")
    publish_local(k, None, force_global=True)
    k.label("L_fin")
    if STAMP:
        k("s_waitcnt vmcnt(0)")
        G.ph = ''; mark(k, 'fin')
        k("s_memrealtime s[98:99]\ns_waitcnt lgkmcnt(0)")
        vals = [42, 98, sMODE] + STS[:G.nst]
        for i, s_ in enumerate(vals): k(f"v_mov_b32 v{16+i}, s{s_}")
        k(f"s_lshl_b32 s{sT0}, s{sWG}, 2\ns_add_u32 s{sT0}, s{sT0}, s{sW}\ns_lshl_b32 s{sT0}, s{sT0}, 7\ns_add_u32 s{sT0}, s{sT0}, {TS}")
        k("v_mov_b32 v4, 0\ns_mov_b64 exec, 1")
        for j in range(8): k(f"buffer_store_dwordx4 {vr(16+4*j)}, v4, {srd(sWS)}, s{sT0} offen offset:{16*j}")
        if DBG is not None:
            k(f"s_lshl_b32 s{sT0}, s{sWG}, 2\ns_add_u32 s{sT0}, s{sT0}, s{sW}\ns_cmp_lg_u32 s{sT0}, {DBG}\ns_cbranch_scc1 L_nodbg")
            k("s_load_dwordx2 s[64:65], s[0:1], 64\ns_waitcnt lgkmcnt(0)")
            for i in range(16): k(f"v_sub_u32 v{64+i}, v{20+i}, v19")
            for j in range(4): k(f"global_store_dwordx4 v4, {vr(64+4*j)}, s[64:65] offset:{16*j}")
            k.label("L_nodbg")
    k("s_waitcnt vmcnt(0)")
    k.label("L_abort")
    k("s_endpgm")
    for x in G.far:
        if x.endswith(':'): k.label(x[:-1])
        else: k(x)
    k(".fill 8448, 4, 0xbf800000")
    return k

def build():
    name = NAME + "_kernel"
    k = k_main(name)
    nn = k.fix()
    print(f"{len(k.L)} lines, {nn} nop states", file=sys.stderr)
    return f"""; stamps: {','.join(G.names)}
; @launch grid=(256,1,1) block=(256,1,1) lds={160*KB}
.amdgcn_target "amdgcn-amd-amdhsa--gfx950"
.text
{k.text()}
.section .rodata,"a"
.p2align 6
.amdhsa_kernel {name}
  .amdhsa_next_free_vgpr 512
  .amdhsa_next_free_sgpr 102
  .amdhsa_accum_offset 256
  .amdhsa_group_segment_fixed_size 0
  .amdhsa_kernarg_size 80
  .amdhsa_user_sgpr_count 2
  .amdhsa_user_sgpr_kernarg_segment_ptr 1
  .amdhsa_system_sgpr_workgroup_id_x 1
.end_amdhsa_kernel
"""

if __name__ == "__main__":
    for a in sys.argv[2:]:
        kk_, vv_ = a.split('=', 1)
        globals()[kk_] = eval(vv_)
    open(sys.argv[1], "w").write(build())
```

```python
import sys, struct
from asmlib import Asm

NAME = "interleave_layers__mha_block__glu_gated_bilinear__prompt"
KB = 1024; MB = KB * KB
LOG2E = 1.4426950408889634
def f2u(x): return struct.unpack('<I', struct.pack('<f', x))[0]
def srd(b): return f"s[{b}:{b+3}]"
def vr(b, n=4): return f"v[{b}:{b+n-1}]"
def ar(b, n=4): return f"a[{b}:{b+n-1}]"

WQ = 0;                    WQ_STR = 100 * KB
WO = WQ + 16 * WQ_STR;     WO_STR = 64 * KB
WU = WO + 8 * WO_STR;      WU_STR = 232 * KB
WD = WU + 16 * WU_STR
FL = 7 * MB + 640 * KB
assert WD + 16 * 112 * KB <= FL
EP = FL
XID = FL + 1 * KB
def FLOC(L, p): return FL + 4 * KB + (L * 9 + p) * 8 * KB
FKV0 = FL + 4 * KB + 18 * 8 * KB
def FKV(L): return FKV0 + L * 32 * KB
FPK = FKV0 + 64 * KB
assert FPK + 32 * KB <= 8 * MB
XF = 8 * MB
HF = 10 * MB
QF = HF
SX = 17 * MB
def KVF(L): return 18 * MB + L * 4 * MB
WS_PAGES = 13
TS = 27 * MB
DUMP = 0x7ff00000

STAMP = False
OUT_T = False
ATT_NT = 2
PK_WIN2 = False; PK_SP = 0
WARM_AT = 1
RT = False
DN_CHK2 = 4
CT_AT = 92
FORCE_FB = False
WB_MASK = None; OUT_SC = ''; DN_WR = 1; DN_WGAP = 2
QW_LATE = False; QW_UP = 64; QW_TOUCH = (72, 100); QW_N1 = 4
PK_Q0 = False; PK_RD = 1; PK_ST = 3; CHK_Q0 = 15
WO_STOP = 26; WO_R0 = 8; WO_N0 = 10; ST_PRE = 2; PPOLL = 0; KV_PF = (0, 0); PK_EARLY = True
FL_TOUCH = False
SPLIT_ST = True
FINE = False
UP_EPI = 2; UP_PUB = (154, 206); DN_POLL = (172, 226); DN_CHK = (186,); UP_LOOK = 8; UP_SYNCS = {0, 48, 80, 112, 144, 176, 200}; UP_SKIP = (0, 0); UP_STOP = 222
DN_PUBB = 4; DN_BAR = 14; DN_POLLB = 7; DN_CHKB = 12; DN_R = 8; DN_R0 = 12
FLAG_TOUCH = False
WSOFF = 0
SLEEP1 = (0, 0); SLEEP2 = 0; SLEEP3 = 0
DBG = None
PRE = 4; PRE2 = 4
PRE_WO = 4; PRE_WO2 = 4
CODE_TOUCH = True
WD_SLOTS = (2, 4, 6)
TOUCH_AT = (98, 68); TOUCH_STEP = 16; TOUCH_KBS = (64, 128)
RING = 144
PK_T0 = 7; PK_GAP = 6; PK_GAP2 = 11; CHK_GAP = 18
P2_AT = 6
TACT_AT = 102

sC4, sC3 = 2, 3
sWS, sAUX = 4, 8
sW, sG, sC, sW1K = 12, 13, 14, 15
sT0, sT1, sT2, sT3 = 16, 17, 18, 19
sX, sRS, sRB = 20, 21, 22
sA, sB, sCc, sD, sE = 23, 24, 25, 26, 27
sS0, sS1 = 28, 21
sMSK, sTAG, sMODE, sXCC = 30, 32, 34, 35
sSEG = 36
sX2 = 39
sSPIN, sF = 40, 41
STS = list(range(44, 56, 2)) + [92, 94, 56, 58, 74, 76, 80, 82, 86, 88, 60, 62]
sWG = 101
sW4K = 97
sSD = 29
sPC, sCT = 90, 85
sDST = 100
vL16, vSRC, vB = 1, 2, 3
aWD, aWB = 0, 224

class G:
    nst = 0
    names = []
    far = []
    ph = ''
SKIP = ''
ATT_MARKS = ()
GEMM_MARKS = {}
def mark(k, nm='x'):
    import re
    nm = G.ph + '_' + nm
    if SKIP and re.match(SKIP, nm): return
    if '_f_' in nm and not FINE: return
    if STAMP:
        G.names.append(nm)
        k(f"s_mem{'real' if RT else ''}time s[{STS[G.nst]}:{STS[G.nst]+1}]")
        G.nst += 1

class Ring:
    def __init__(self, k, segs):
        self.k = k; self.N = RING
        self.total = sum(n for _, n in segs)
        self.starts = {}
        b = 0
        for s, n in segs:
            assert n % 4 == 0
            self.starts[b] = s; b += n
        self.issued = 0; self.freed = 0; self.visible = 0
        self.limit = None
        self.tick = {}
    def can_issue(self):
        if self.limit is not None and self.issued + 4 > self.limit: return False
        return self.issued < self.total and self.issued + 4 <= self.freed + self.N
    def issue(self):
        k = self.k
        assert self.can_issue()
        slot = self.issued % self.N
        k(f"s_add_u32 m0, s{sW1K}, {slot*KB}")
        if self.issued in self.starts: k(f"s_mov_b32 s{sRS}, s{self.starts[self.issued]}")
        else: k(f"s_add_u32 s{sRS}, s{sRS}, 4096")
        self.tick[self.issued // 4] = k.vm(f"buffer_load_dwordx4 v{vSRC}, {srd(sWS)}, s{sRS} offen sc1 lds")
        self.issued += 4
    def issue16(self):
        k = self.k
        b = self.issued; slot = b % self.N
        assert slot + 16 <= self.N and b + 16 <= min(self.limit or 1 << 30, self.freed + self.N)
        assert not any(x in self.starts for x in range(b + 1, b + 16))
        k(f"s_add_u32 m0, s{sW4K}, {slot*KB}")
        if b in self.starts: k(f"s_add_u32 s{sRS}, s{self.starts[b]}, s{sW4K}")
        else: k(f"s_add_u32 s{sRS}, s{sRS}, 16384")
        for i in range(4):
            t = k.vm(f"buffer_load_dwordx4 v{vL16}, {srd(sWS)}, s{sRS} offen offset:{i*KB} sc1 lds")
        for q in range(4): self.tick[b // 4 + q] = t
        self.issued += 16
    def end16(self):
        self.k(f"s_sub_u32 s{sRS}, s{sRS}, s{sW4K}\ns_add_u32 s{sRS}, s{sRS}, 12288")
    def issue_n(self, n):
        for _ in range(n):
            if self.can_issue(): self.issue()
    def sync(self, consumed, need):
        k = self.k
        need = min(need, self.total)
        if need > self.visible:
            q = (need - 1) // 4
            assert q * 4 < self.issued, (need, self.issued)
            k.wait(vm=self.tick[q])
        k("s_barrier")
        q = self.visible // 4
        while q in self.tick and self.tick[q] <= k.vm_done: q += 1
        self.visible = q * 4
        assert self.visible >= need
        self.freed = max(self.freed, (consumed // 4) * 4)
    def addr(self, b): return (b % self.N) * KB

def set_lds_bases(k, extra_s=None):
    if extra_s is None: k(f"v_mov_b32 v{vB}, v{vL16}")
    else: k(f"v_add_u32 v{vB}, s{extra_s}, v{vL16}")
    k(f"v_add_u32 v{vB+1}, 0x10000, v{vB}")
    k(f"v_add_u32 v{vB+2}, 0x20000, v{vB}")

class XLoader:
    def __init__(self, k, total, reg, src):
        self.k = k; self.total = total; self.reg = reg; self.src = src; self.n = 0; self.t = []
        self.hold = total
    def issue_n(self, n):
        k = self.k
        for _ in range(n):
            i = self.n
            if i >= min(self.total, self.hold): return
            s_, imm = self.src(i)
            self.t.append(k.vm(f"buffer_load_dwordx4 {self.reg(i)}, v{vL16}, {srd(sWS)}, s{s_} offen offset:{imm} sc1"))
            self.n += 1
def lin_src(k):
    def f(i):
        if i and (i & 3) == 0: k(f"s_add_u32 s{sX}, s{sX}, 4096")
        return sX, (i & 3) * KB
    return f

class Gemm:
    def __init__(self, k, ring, ops, syncs, D=4, NB=8, stop_issue=None):
        self.k = k; self.ring = ring; self.ops = ops; self.syncs = sorted(syncs)
        assert all(x % 2 == 0 for x in syncs)
        self.D = D; self.NB = NB; self.tl = {}; self.nread = 0
        self.stop = stop_issue if stop_issue is not None else len(ops)
    def rd(self):
        k = self.k; m = self.nread; o = self.ops[m]
        assert o['bmax'] < self.ring.visible, (m, o['b'], self.ring.visible)
        a = self.ring.addr(o['b'])
        self.tl[m] = k.lg(f"ds_read_b128 {ar(aWB + 4*(m % self.NB))}, v{vB + (a >> 16)} offset:{a & 0xffff}")
        self.nread += 1
    def need_until(self, m):
        M = len(self.ops)
        nxt = [s for s in self.syncs if s > m]
        last = min((nxt[0] if nxt else M) - 1 + self.D, M - 1)
        return max(o['bmax'] for o in self.ops[:last+1]) + 1
    def start(self):
        self.ring.sync(self.ops[0]['bmin'], self.need_until(0))
        while self.nread < min(self.D, len(self.ops)): self.rd()
    def run(self, xq, n0=6, look=10, filler=None, misc=(), misc_from=0, skip=0):
        k = self.k; M = len(self.ops)
        misc = list(misc)
        xq.issue_n(n0)
        cur = 0
        for m in range(M):
            if m in self.syncs and m > 0:
                self.ring.sync(self.ops[m]['bmin'], self.need_until(m))
            o = self.ops[m]
            xt = None
            if m % 2 == 0:
                xs = [p['xi'] for p in self.ops[m:m+2] if p.get('xi') is not None]
                if xs:
                    cur = max(cur, max(xs))
                    while xq.n <= max(xs): xq.issue_n(1)
                    xt = xq.t[max(xs)]
                k.wait(vm=xt, lg=self.tl[min(m + 1, M - 1)])
            w = ar(aWB + 4*(m % self.NB))
            c = o.get('c0', '0') if o['first'] else o['acc']
            A, B = (o['x'], w) if o['swap'] else (w, o['x'])
            k(f"v_mfma_f32_32x32x16_bf16 {o['acc']}, {A}, {B}, {c}")
            if m == 0: mark(k, 'm0')
            if m in GEMM_MARKS.get(G.ph, ()): mark(k, f'm{m}')
            if m % 2 == 0:
                for _ in range(2):
                    if self.nread < M: self.rd()
            elif not (skip and m % skip == skip - 1):
                rok = m < self.stop and self.ring.can_issue()
                if xq.n < xq.total and (xq.n - cur < look or not (rok or (misc and m >= misc_from))): xq.issue_n(1)
                elif misc and m >= misc_from: misc.pop(0)()
                elif rok: self.ring.issue()
            if filler: filler(m)
        assert not misc

def stats_emitters(k, vt, res):
    k(f"s_lshl_b32 s{sS0}, s{sRB}, 12\ns_add_u32 s{sS0}, s{sS0}, {SX}")
    def mk(i):
        def f(): res['t'] = k.vm(f"buffer_load_dwordx4 {vr(vt+4*i)}, v{vL16}, {srd(sWS)}, s{sS0} offen offset:{i*KB} sc1")
        return f
    return [mk(i) for i in range(4)]

NTREE = 14
def fin_stats(vt, vext, vrstd):
    ins = []
    n = 8
    while n > 1:
        h = n // 2
        for i in range(h):
            ins.append(f"v_add_f32 v{vt+2*i}, v{vt+2*i}, v{vt+2*(i+h)}")
            ins.append(f"v_add_f32 v{vt+2*i+1}, v{vt+2*i+1}, v{vt+2*(i+h)+1}")
        n = h
    a, b, c, d = vt, vt+1, vt+2, vt+3
    ins += [f"v_mov_b32 v{c}, v{a}", f"v_mov_b32 v{d}, v{b}",
            f"v_permlane32_swap_b32 v{a}, v{c}", f"v_permlane32_swap_b32 v{b}, v{d}",
            f"v_add_f32 v{a}, v{a}, v{c}", f"v_add_f32 v{b}, v{b}, v{d}",
            f"v_mul_f32 v{a}, {hex(f2u(-1.0/512))}, v{a}",
            f"v_mul_f32 v{b}, {hex(f2u(1.0/512))}, v{b}",
            f"v_fma_f32 v{b}, -v{a}, v{a}, v{b}",
            f"v_max_f32 v{b}, 0, v{b}",
            f"v_add_f32 v{b}, {hex(f2u(1e-5))}, v{b}",
            f"v_rsq_f32 v{vrstd}, v{b}",
            f"v_cvt_pk_bf16_f32 v{vext}, v{a}, v{a}",
            f"v_and_b32 v{c}, 0xffff0000, v{vext}",
            f"v_sub_f32 v{c}, v{a}, v{c}",
            f"v_cvt_pk_bf16_f32 v{vext+1}, v{c}, 0",
            f"v_mov_b32 v{vext+2}, v{vext}", f"v_mov_b32 v{vext+3}, v{vext+1}"]
    return ins

def poll(k, vaddr, vpd, sleep=0):
    l = k.newlabel('poll')
    k(f"s_mov_b32 s{sSPIN}, 0x40000")
    k.label(l)
    k.vm(f"buffer_load_dwordx2 {vr(vpd,2)}, v{vaddr}, {srd(sWS)}, s{sF} offen sc1")
    k(f"s_sub_u32 s{sSPIN}, s{sSPIN}, 1")
    k("s_cbranch_scc1 L_abort")
    k.wait_all(lg=False)
    k(f"v_cmp_ne_u64 vcc, s[{sTAG}:{sTAG+1}], {vr(vpd,2)}")
    k(f"s_cbranch_vccnz {l}")
class APoll:
    def __init__(self, k, loads, cmp, sleep=0):
        self.k = k; self.loads = loads; self.cmp = cmp; self.sleep = sleep
    def issue(self):
        for x in self.loads: self.t = self.k.vm(x)
    def check(self):
        k = self.k
        l = k.newlabel('ap'); ok = k.newlabel('apok')
        k.wait(vm=self.t)
        k(self.cmp)
        k(f"s_cbranch_vccnz {l}")
        k.label(ok)
        G.far += [f"{l}:", f"s_mov_b32 s{sSPIN}, 0x40000", f"{l}_l:"] + list(self.loads) + [
            f"s_sub_u32 s{sSPIN}, s{sSPIN}, 1", "s_cbranch_scc1 L_abort", "s_waitcnt vmcnt(0)", self.cmp,
            f"s_cbranch_vccnz {l}_l", f"s_branch {ok}"]
def apoll1(k, vaddr, vpd, soff, sleep=0):
    return APoll(k, [f"buffer_load_dwordx2 {vr(vpd,2)}, v{vaddr}, {srd(sWS)}, s{soff} offen sc1"],
                 f"v_cmp_ne_u64 vcc, s[{sTAG}:{sTAG+1}], {vr(vpd,2)}", sleep)
def poll16(k):
    k("v_and_b32 v13, 15, v0\nv_lshlrev_b32 v13, 3, v13")
    poll(k, 13, 14)

def publish_local(k, last_store, force_global=False):
    k(f"v_mov_b32 v14, s{sTAG}\nv_mov_b32 v15, s{sTAG+1}")
    if force_global:
        k.wait(vm=last_store)
        k.vm(f"buffer_store_dwordx2 v[14:15], off, {srd(sWS)}, s{sF} sc1")
        return
    slow = k.newlabel('slow'); join = k.newlabel('join')
    k(f"s_cmp_eq_u32 s{sMODE}, 0")
    k(f"s_cbranch_scc1 {slow}")
    k.wait(vm=last_store)
    k.vm(f"buffer_store_dwordx2 v[14:15], off, {srd(sWS)}, s{sF}")
    k.label(join)
    G.far += [f"{slow}:", "s_waitcnt vmcnt(0)", "buffer_wbl2 sc1", "s_waitcnt vmcnt(0)",
              f"buffer_store_dwordx2 v[14:15], off, {srd(sWS)}, s{sF} sc1", f"s_branch {join}"]
def publish_wg(k, last_store, xid=False, barrier=True):
    l = k.newlabel('pw')
    k(f"v_mov_b32 v13, 0\nv_mov_b32 v14, s{sTAG}\nv_mov_b32 v15, s{sTAG+1}")
    k.wait(vm=last_store)
    if barrier: k("s_barrier")
    k(f"s_cmp_lg_u32 s{sW}, 0\ns_cbranch_scc1 {l}")
    k("s_mov_b64 exec, 1")
    if xid:
        k(f"v_xor_b32 v12, s{sXCC}, v14\nv_mov_b32 v13, v15")
        k(f"buffer_store_dwordx4 v[12:15], v{vL16}, {srd(sWS)}, s{sF} offen sc1")
    else:
        k(f"buffer_store_dwordx2 v[14:15], v13, {srd(sWS)}, s{sF} offen sc1")
    k("s_mov_b64 exec, -1")
    k.label(l)

def rb_128(k):
    k(f"s_lshl_b32 s{sT0}, s{sC4}, 2\ns_lshl_b32 s{sRB}, s{sG}, 3\ns_add_u32 s{sRB}, s{sRB}, s{sT0}\ns_add_u32 s{sRB}, s{sRB}, s{sW}")

def store_x(k, acc, pk, L, p, ring=None):
    k(f"s_add_u32 s{sT1}, s{sDST}, {XF}")
    k.vm(f"buffer_store_dwordx4 {vr(pk)}, v{vL16}, {srd(sWS)}, s{sT1} offen")
    td = k.vm(f"buffer_store_dwordx4 {vr(pk+4)}, v{vL16}, {srd(sWS)}, s{sT1} offen offset:1024")
    k(f"v_add_f32 v10, v{acc}, v{acc+1}\nv_mul_f32 v11, v{acc}, v{acc}\nv_add_f32 v8, v{acc+2}, v{acc+3}\nv_mul_f32 v9, v{acc+1}, v{acc+1}")
    k(f"v_fmac_f32 v11, v{acc+2}, v{acc+2}\nv_fmac_f32 v9, v{acc+3}, v{acc+3}")
    for i in range(4, 16, 2):
        k(f"v_add_f32 v10, v10, v{acc+i}\nv_fmac_f32 v11, v{acc+i}, v{acc+i}\nv_add_f32 v8, v8, v{acc+i+1}\nv_fmac_f32 v9, v{acc+i+1}, v{acc+i+1}")
        if ring and i in (4, 10): ring.issue_n(ST_PRE)
    k("v_add_f32 v10, v10, v8\nv_add_f32 v11, v11, v9\nv_mov_b32 v8, v10\nv_mov_b32 v9, v11")
    k("v_permlane32_swap_b32 v10, v8\nv_permlane32_swap_b32 v11, v9\nv_add_f32 v10, v10, v8\nv_add_f32 v11, v11, v9")
    k("s_mov_b32 exec_hi, 0")
    ts = k.vm(f"buffer_store_dwordx2 v[10:11], v{vL16}, {srd(sWS)}, s{sSD} offen")
    k("s_mov_b64 exec, -1")
    k(f"s_lshr_b32 s{sF}, s{sDST}, 8\ns_add_u32 s{sF}, s{sF}, {FLOC(L, p)}")
    if SPLIT_ST:
        publish_local(k, td)
        k(f"s_add_u32 s{sF}, s{sF}, {FLOC(L, 6 if p == 1 else 7) - FLOC(L, p)}")
    return ts
def stats_poll(k, delta):
    if not SPLIT_ST: return []
    k(f"s_add_u32 s{sF}, s{sF}, {delta}")
    ap = apoll1(k, 13, 14, sF)
    return ap

def rowmajor_addr(k, va, s_out):
    k(f"v_and_b32 v{va}, 31, v0\nv_lshlrev_b32 v{va}, 10, v{va}\nv_bfe_u32 v{va+1}, v0, 5, 1\nv_lshlrev_b32 v{va+1}, 4, v{va+1}\nv_add_u32 v{va}, v{va}, v{va+1}")
    k(f"s_and_b32 s{s_out}, s{sDST}, 0xffff8000\ns_bfe_u32 s{sT3}, s{sDST}, 0x5000a\ns_lshl_b32 s{sT3}, s{sT3}, 5\ns_add_u32 s{s_out}, s{s_out}, s{sT3}")

sU = 96
def pack_decode(k):
    nm = "pk"; u = f"s{sU}"
    k(f"s_min_u32 s83, {u}, 231")
    u = "s83"
    k(f"s_and_b32 s90, s{sW}, 1\ns_lshr_b32 s91, s{sW}, 1")
    k(f"s_cmp_lt_u32 {u}, 48\ns_cbranch_scc1 {nm}_q")
    k(f"s_cmp_lt_u32 {u}, 160\ns_cbranch_scc1 {nm}_u")
    k(f"s_cmp_lt_u32 {u}, 176\ns_cbranch_scc1 {nm}_o")
    k(f"s_sub_u32 s84, {u}, 176\ns_lshl_b32 s84, s84, 2\ns_add_u32 s84, s84, s{sW}")
    k("s_and_b32 s85, s84, 15\ns_lshr_b32 s86, s84, 4")
    k("s_lshl_b32 s87, s85, 6")
    k("s_add_u32 s74, s72, s87\ns_addc_u32 s75, s73, 0\ns_mov_b32 s76, s74\ns_mov_b32 s77, s75")
    k("s_mov_b32 s78, 1024\ns_lshl_b32 s79, s86, 7")
    k(f"s_mul_i32 s80, s85, 14\ns_add_u32 s80, s80, s86\ns_lshl_b32 s80, s80, 13\ns_add_u32 s80, s80, {WD}\ns_mov_b32 s81, 1024\ns_mov_b32 s82, {DUMP}")
    k(f"s_branch {nm}_go")
    k.label(f"{nm}_o")
    k(f"s_sub_u32 s85, {u}, 160\ns_lshr_b32 s88, s85, 3\ns_and_b32 s85, s85, 7")
    k("s_lshl_b32 s87, s85, 1\ns_add_u32 s87, s87, s90\ns_lshl_b32 s87, s87, 6")
    k("s_add_u32 s74, s66, s87\ns_addc_u32 s75, s67, 0\ns_mov_b32 s76, s74\ns_mov_b32 s77, s75")
    k("s_mov_b32 s78, 1024\ns_lshl_b32 s79, s88, 1\ns_add_u32 s79, s79, s91\ns_lshl_b32 s79, s79, 7")
    k("s_lshl_b32 s89, s91, 15\ns_xor_b32 s90, s90, s88\ns_lshl_b32 s88, s88, 1\ns_add_u32 s90, s90, s88\ns_lshl_b32 s90, s90, 10")
    k(f"s_mul_i32 s80, s85, {WO_STR}\ns_add_u32 s80, s80, s89\ns_add_u32 s80, s80, s90\ns_add_u32 s80, s80, {WO}")
    k(f"s_mov_b32 s81, 4096\ns_mov_b32 s82, {DUMP}")
    k(f"s_branch {nm}_go")
    k.label(f"{nm}_u")
    k(f"s_sub_u32 s85, {u}, 48\ns_mul_i32 s84, s85, 2341\ns_lshr_b32 s84, s84, 16\ns_mul_i32 s86, s84, 28\ns_sub_u32 s85, s85, s86")
    k(f"s_lshl_b32 s85, s85, 2\ns_add_u32 s85, s85, s{sW}\ns_lshl_b32 s87, s85, 5")
    k("s_add_u32 s74, s68, s87\ns_addc_u32 s75, s69, 0")
    k("s_add_u32 s76, s70, s87\ns_addc_u32 s77, s71, 0\ns_sub_u32 s76, s76, 32\ns_subb_u32 s77, s77, 0")
    k("s_mov_b32 s78, 3584")
    k("s_mul_i32 s86, s85, 9363\ns_lshr_b32 s86, s86, 16\ns_mul_i32 s88, s86, 7\ns_sub_u32 s88, s85, s88")
    k(f"s_mul_i32 s91, s86, {WU_STR}\ns_add_u32 s91, s91, {WU}\ns_lshl_b32 s89, s88, 10\ns_add_u32 s91, s91, s89")
    k(f"s_cmp_lt_u32 s88, 5\ns_cselect_b32 s89, 3, 5\ns_lshl_b32 s89, s89, 15")
    k(f"s_cmp_lt_u32 s88, 3\ns_cselect_b32 s81, 3, 2\ns_cselect_b32 s89, 0, s89\ns_lshl_b32 s81, s81, 10\ns_add_u32 s91, s91, s89")
    k(f"s_branch {nm}_ext")
    k.label(f"{nm}_q")
    k(f"s_cmp_ge_u32 {u}, 24\ns_cselect_b32 s84, 2, 0\ns_cselect_b32 s86, 24, 0\ns_add_u32 s84, s84, s91\ns_sub_u32 s85, {u}, s86")
    k("s_lshl_b32 s85, s85, 1\ns_add_u32 s85, s85, s90\ns_and_b32 s86, s85, 15\ns_lshr_b32 s88, s85, 4")
    k("s_lshl_b32 s87, s85, 6\ns_lshl_b32 s89, s88, 10")
    k("s_add_u32 s74, s64, s87\ns_addc_u32 s75, s65, 0\ns_mov_b32 s76, s74\ns_mov_b32 s77, s75")
    k("s_mov_b32 s78, 3072")
    k(f"s_sub_u32 s89, s89, 1024\ns_cmp_eq_u32 s88, 0\ns_cselect_b32 s89, {66*KB}, s89\ns_cselect_b32 s81, 1, 2\ns_lshl_b32 s81, s81, 10")
    k(f"s_mul_i32 s91, s86, {WQ_STR}\ns_add_u32 s91, s91, s89\ns_add_u32 s91, s91, {WQ}")
    k.label(f"{nm}_ext")
    k("s_lshl_b32 s79, s84, 7")
    k("s_lshl_b32 s89, s81, 5\ns_add_u32 s82, s91, s89\ns_lshr_b32 s89, s84, 1\ns_lshl_b32 s89, s89, 9\ns_add_u32 s82, s82, s89")
    k("s_and_b32 s89, s84, 1\ns_lshl_b32 s89, s89, 3\ns_add_u32 s82, s82, s89")
    k("s_lshl_b32 s89, s81, 3\ns_mul_i32 s89, s89, s84\ns_add_u32 s80, s91, s89")
    k.label(f"{nm}_go")
    k(f"s_cmp_ge_u32 s{sU}, 232\ns_cselect_b32 s80, {DUMP}, s80")
    k("v_bfe_u32 v4, v0, 2, 4\nv_add_u32 v4, s79, v4\nv_mul_lo_u32 v4, v4, s78")
    k("v_and_b32 v13, 3, v0\nv_lshlrev_b32 v13, 4, v13\nv_add_u32 v4, v4, v13")
    k(f"s_lshl_b32 s83, s78, 4")
    if PK_Q0: k(f"s_lshl_b32 s84, s{sW}, 13\ns_add_u32 s84, s84, {64*KB}")
    elif PK_EARLY: k(f"s_lshl_b32 s84, s{sW}, 13\ns_add_u32 s84, s84, {4*KB}")
    else: k(f"s_lshl_b32 s84, s{sW}, 14\ns_add_u32 s84, s84, {96*KB}")
    k("s_mov_b32 s86, s83\ns_mov_b32 s87, 0")
    k("v_and_b32 v13, 2, v0\nv_cmp_eq_u32 vcc, 0, v13")
    k("v_mov_b32 v14, s76\nv_mov_b32 v13, s74\nv_cndmask_b32 v14, v14, v13, vcc\nv_mov_b32 v15, s77\nv_mov_b32 v13, s75\nv_cndmask_b32 v15, v15, v13, vcc")
    k("v_add_co_u32 v4, vcc, v4, v14\nv_addc_co_u32 v5, vcc, 0, v15, vcc")
def pack_issue(k, i, sbase):
    k(f"s_add_u32 m0, s{sbase}, {i*KB}")
    if i: k("v_lshl_add_u64 v[4:5], v[4:5], 0, s[86:87]")
    return k.vm("global_load_lds_dwordx4 v[4:5], off")
def tr_addr(k, v, t):
    k(f"v_bfe_u32 v{v}, v0, 5, 1\nv_lshlrev_b32 v{v}, 9, v{v}")
    k(f"v_bfe_u32 v{t}, v0, 2, 2\nv_lshlrev_b32 v{t}, 6, v{t}\nv_add_u32 v{v}, v{v}, v{t}")
    k(f"v_bfe_u32 v{t}, v0, 4, 1\nv_lshlrev_b32 v{t}, 5, v{t}\nv_add_u32 v{v}, v{v}, v{t}")
    k(f"v_and_b32 v{t}, 1, v0\nv_lshlrev_b32 v{t}, 4, v{t}\nv_add_u32 v{v}, v{v}, v{t}")
    k(f"v_bfe_u32 v{t}, v0, 1, 1\nv_lshlrev_b32 v{t}, 3, v{t}\nv_add_u32 v{v}, v{v}, v{t}")
def ext_pair(src, dst, t0):
    return [f"v_mov_b32 v{t0}, v{src}", f"v_permlane32_swap_b32 v{src}, v{t0}", f"v_add_f32 v{src}, v{src}, v{t0}",
            f"v_cvt_pk_bf16_f32 v{dst+1}, v{src}, 0", f"v_lshlrev_b32 v{t0}, 16, v{dst+1}", f"v_sub_f32 v{src}, v{src}, v{t0}",
            f"v_cvt_pk_bf16_f32 v{dst}, v{t0}, v{src}"]
class Pack:
    def __init__(self, k): self.k = k; self.r = {}
    def issue(self, *ii):
        for i in ii: self.d = pack_issue(self.k, i, 84)
    def reads(self, *ii):
        k = self.k
        if ii[0] == 0:
            k("v_accvgpr_read_b32 v4, a212")
            k.wait(vm=self.d)
        for i in ii:
            k.lg(f"ds_read_b64_tr_b16 {ar(160+4*i,2)}, v4 offset:{i*KB}")
            self.r[i] = k.lg(f"ds_read_b64_tr_b16 {ar(162+4*i,2)}, v4 offset:{i*KB+256}")
    def csum(self, i):
        self.k.wait(lg=self.r[i])
        self.k(f"v_mfma_f32_32x32x16_bf16 {ar(196,16)}, {ar(192)}, {ar(160+4*i)}, {'0' if i == 0 else ar(196,16)}")
    def stores(self, *ii):
        k = self.k
        k.wait(lg=self.r[ii[-1]])
        for i in ii:
            k.vm(f"buffer_store_dwordx4 {ar(160+4*i)}, v{vL16}, {srd(sWS)}, s80 offen sc1")
            k("s_add_u32 s80, s80, s81")
    def ext(self):
        k = self.k
        k("v_accvgpr_read_b32 v13, a196")
        k("v_cvt_pk_bf16_f32 v15, v13, 0\nv_lshlrev_b32 v14, 16, v15\nv_sub_f32 v13, v13, v14\nv_cvt_pk_bf16_f32 v14, v14, v13")
        k("s_mov_b32 exec_hi, 0")
        self.s = k.vm(f"buffer_store_dwordx2 v[14:15], v{vL16}, {srd(sWS)}, s82 offen sc1")
        k("s_mov_b64 exec, -1")
    def pub(self):
        k = self.k
        k(f"s_lshl_b32 s{sF}, s{sU}, 7\ns_add_u32 s{sF}, s{sF}, {FPK}")
        publish_wg(k, self.s, xid=True)
    def schedule(self, job):
        t = PK_T0
        if not PK_EARLY:
            for i in range(4): job(t + i, lambda i=i: self.issue(2*i, 2*i+1))
            t += 4 + PK_GAP
        if PK_WIN2:
            job(t, self.pub)
            return t
        if PK_EARLY and PK_SP:
            for i in range(8): job(t + PK_SP*i, lambda i=i: self.stores(i))
            job(t + 8*PK_SP, self.ext)
            job(t + 8*PK_SP + PK_GAP2, self.pub)
            return t + 8*PK_SP + PK_GAP2
        if PK_EARLY:
            for i in range(4): job(t + i, lambda i=i: self.stores(2*i, 2*i+1))
            job(t + 4, self.ext)
            job(t + 4 + PK_GAP2, self.pub)
            return t + 4 + PK_GAP2
        job(t, lambda: self.reads(0, 1, 2, 3)); job(t + 1, lambda: self.reads(4, 5, 6, 7))
        for i in range(4):
            job(t + 2 + i, lambda i=i: self.stores(2*i, 2*i+1))
            job(t + 1 + i, lambda i=i: self.csum(2*i), e=14)
            job(t + 2 + i, lambda i=i: self.csum(2*i+1), e=0)
        job(t + 6, self.ext)
        job(t + 6 + PK_GAP2, self.pub)
        return t + 6 + PK_GAP2
def qkv_consts(vT, vRS, vR):
    return [f"v_cvt_pk_bf16_f32 v{vT}, v{vRS}, 0", f"v_lshlrev_b32 v{vT+1}, 16, v{vT}", f"v_sub_f32 v{vT+2}, v{vRS}, v{vT+1}",
            f"v_cvt_pk_bf16_f32 v{vT}, v{vT+1}, v{vT+2}", f"v_mov_b32 v{vT+1}, 0", f"v_mov_b32 v{vT+2}, 0", f"v_mov_b32 v{vT+3}, 0",
            f"v_cmp_gt_u32 vcc, 512, v{vL16}", f"v_mov_b32 v{vT+4}, 0x3f803f80", f"v_cndmask_b32 v{vT+4}, 0, v{vT+4}, vcc",
            f"v_mov_b32 v{vT+5}, 0", f"v_mov_b32 v{vT+6}, 0", f"v_mov_b32 v{vT+7}, 0",
            f"v_mul_f32 v{vRS+1}, {hex(f2u(0.25*LOG2E))}, v{vRS}",
            "v_bfe_u32 v12, v0, 4, 1", "v_lshlrev_b32 v12, 17, v12", "v_and_b32 v13, 15, v0", "v_lshlrev_b32 v13, 4, v13", "v_add_u32 v12, v12, v13",
            "v_bfe_u32 v13, v0, 5, 1", "v_lshlrev_b32 v13, 8, v13", "v_add_u32 v12, v12, v13",
            f"v_mfma_f32_32x32x16_bf16 {vr(vR,16)}, {vr(vT)}, {vr(vT+4)}, 0"]
def qk_tile(a, dst, sc, fl, p0):
    o = []
    sb, hs = (sB, KB) if dst == QF else (sCc, 128*KB)
    for half in range(2):
        p = p0 + 4*half
        for j in range(4):
            r = a + 8*half + 2*j
            o += [f"v_mul_f32 v{r}, v{r}, v{sc}", f"v_mul_f32 v{r+1}, v{r+1}, v{sc}", f"v_cvt_pk_bf16_f32 v{p+j}, v{r}, v{r+1}"]
        o += [f"s_add_u32 s{sT2}, s{sb}, {dst + half*hs}", f"buffer_store_dwordx4 {vr(p)}, v{vL16}, {srd(sWS)}, s{sT2} offen{fl}"]
    return o
def v_tile(a, L, vR, p0):
    o = [f"s_add_u32 s{sT2}, s{sCc}, {KVF(L) + KB}"]
    for u in range(2):
        p = p0 + 4*u
        for j in range(4):
            r = a + 8*u + 2*j; q = vR + 8*u + 2*j
            o += [f"v_mul_f32 v{r}, v{r}, v{q}", f"v_mul_f32 v{r+1}, v{r+1}, v{q+1}", f"v_cvt_pk_bf16_f32 v{p+j}, v{r}, v{r+1}"]
        o.append(f"buffer_store_dwordx4 {vr(p)}, v12, {srd(sWS)}, s{sT2} offen offset:{u*512} sc1")
    return o
def kv_flag(k, L, tkv):
    k(f"s_lshl_b32 s{sF}, s{sA}, 4\ns_lshr_b32 s{sT1}, s{sRB}, 2\ns_add_u32 s{sF}, s{sF}, s{sT1}\ns_lshl_b32 s{sF}, s{sF}, 7\ns_add_u32 s{sF}, s{sF}, {FKV(L)}")
    publish_wg(k, tkv)
def q_flag(k, L, tq):
    k(f"s_lshr_b32 s{sF}, s{sRB}, 3\ns_lshl_b32 s{sF}, s{sF}, 4\ns_add_u32 s{sF}, s{sF}, s{sA}\ns_lshl_b32 s{sF}, s{sF}, 3\ns_and_b32 s{sT1}, s{sRB}, 7\ns_add_u32 s{sF}, s{sF}, s{sT1}\ns_lshl_b32 s{sF}, s{sF}, 3\ns_add_u32 s{sF}, s{sF}, {FLOC(L-1,5)}")
    publish_local(k, tq, force_global=(L == 0))

WARM = True
LIN_AT = 99
LIN_U = True
Q0_ROT = True
Q0_MARKS = False
Q0_MARKJ = ()
Q0_SCHED = ((3, 4), (5,), (6,), (7,), (), (), (), ())
LATE_AT = 1
Q0_UP = 3
PK_AT = (3, 3, 4, 4, 5, 5, 6, 6)
def ph_qkv0(k, late):
    vX, vACC, vST, vEXT, vRS, vT, vR = 16, 144, 192, 8, 6, 224, 232
    vXA, vWA, vXR, vTR, vTW, vCS, vCW, vONE = 10, 12, 196, 200, 202, 204, 208, 220
    sXS, sWR, sXL, sWL = 60, 56, sD, sE
    k(f"s_lshr_b32 s{sRB}, s{sG}, 1\ns_lshl_b32 s{sRB}, s{sRB}, 2\ns_add_u32 s{sRB}, s{sRB}, s{sC3}\ns_lshl_b32 s{sRB}, s{sRB}, 2\ns_add_u32 s{sRB}, s{sRB}, s{sW}")
    k(f"s_and_b32 s{sA}, s{sG}, 1\ns_lshl_b32 s{sA}, s{sA}, 3\ns_and_b32 s{sT0}, s{sC}, 7\ns_add_u32 s{sA}, s{sA}, s{sT0}")
    k(f"v_bfe_u32 v{vXA}, v0, 3, 3\nv_lshlrev_b32 v{vXA}, 10, v{vXA}\nv_and_b32 v13, 7, v0\nv_bfe_u32 v14, v0, 4, 2\nv_xor_b32 v13, v13, v14")
    k(f"v_lshlrev_b32 v13, 4, v13\nv_add_u32 v{vXA}, v{vXA}, v13\nv_xor_b32 v{vXA+1}, 64, v{vXA}")
    k(f"v_bfe_u32 v{vWA}, v0, 2, 4\nv_mul_u32_u24 v{vWA}, 3072, v{vWA}\nv_and_b32 v13, 3, v0\nv_lshlrev_b32 v13, 4, v13\nv_add_u32 v{vWA}, v{vWA}, v13")
    k(f"s_lshl_b32 s{sX}, s{sRB}, 15")
    k(f"s_mul_i32 s{sX2}, s{sW}, 49152\ns_lshl_b32 s{sT0}, s{sA}, 6\ns_add_u32 s{sX2}, s{sX2}, s{sT0}")
    k(f"s_lshl_b32 s{sXL}, s{sW}, 14\ns_add_u32 s{sXL}, s{sXL}, {96*KB}\ns_mul_i32 s{sWL}, s{sW}, 3072")
    k("s_waitcnt lgkmcnt(0)")
    if Q0_MARKS: mark(k, 'karg')
    k(f"s_mov_b32 s{sWR}, s64\ns_and_b32 s{sWR+1}, s65, 0xffff\ns_mov_b32 s{sWR+2}, {512*3072}\ns_mov_b32 s{sWR+3}, 0x20000")
    k(f"s_and_b32 s{sXS+1}, s{sXS+1}, 0xffff\ns_mov_b32 s{sXS+2}, {2*MB}\ns_mov_b32 s{sXS+3}, 0x20000")
    ct = {}; cn = {j: 0 for j in range(8)}
    k(f"s_lshl_b32 s{sCc}, s{sC3}, 1\ns_add_u32 s{sCc}, s{sCc}, s{sC}")
    def rot(j):
        k(f"s_add_u32 s{sT3}, s{sCc}, {j}\ns_and_b32 s{sT3}, s{sT3}, {7 if Q0_ROT else 0}")
        if not Q0_ROT: k(f"s_mov_b32 s{sT3}, {j}")
        k(f"s_lshl_b32 s{sS0}, s{sT3}, 7\ns_add_u32 s{sS0}, s{sS0}, s{sX}")
        k(f"s_mul_i32 s{sS1}, s{sT3}, {4*49152}\ns_add_u32 s{sS1}, s{sS1}, s{sX2}")
    def ldW(j, t):
        k(f"s_add_u32 m0, s{sWL}, {(12*j + t)*KB}\ns_add_u32 s{sT2}, s{sS1}, {((t+1) % 3)*1024}")
        ct[j] = k.vm(f"buffer_load_dwordx4 v{vWA}, {srd(sWR)}, s{sT2} offen lds"); cn[j] += 1
    def ldX(j, i):
        if i == 0: rot(j)
        k(f"s_add_u32 m0, s{sXL}, {(j & 3)*4*KB + i*KB}\ns_add_u32 s{sT2}, s{sS0}, {i*8192}")
        ct[j] = k.vm(f"buffer_load_dwordx4 v{vXA + (i & 1)}, {srd(sXS)}, s{sT2} offen lds"); cn[j] += 1
    def chunk_loads(j):
        return [lambda i=i: ldX(j, i) for i in range(4)] + [lambda t=t: ldW(j, t) for t in range(3)]
    for f in chunk_loads(0): f()
    if Q0_MARKS: mark(k, 'up0')
    late(k)
    pack_decode(k)
    k(f"s_cmp_eq_u32 s{sW}, 0\ns_cselect_b64 s[90:91], s[68:69], s[70:71]")
    k(f"s_cmp_eq_u32 s{sW}, 2\ns_cselect_b64 s[90:91], s[72:73], s[90:91]")
    k(f"s_cmp_eq_u32 s{sW}, 3\ns_cselect_b64 s[90:91], s[66:67], s[90:91]\ns_cselect_b32 s{sT0}, 16, 56")
    k(f"s_mul_i32 s{sT1}, s{sT0}, s{sU}\ns_sub_u32 s{sT0}, s{sT0}, 1")
    k(f"v_and_b32 v254, 63, v0\nv_min_u32 v254, s{sT0}, v254\nv_add_u32 v254, s{sT1}, v254\nv_lshlrev_b32 v254, 7, v254")
    pk = G.pk = Pack(k)
    k(f"s_and_b32 s{sT0}, s{sC}, 7\ns_and_b32 s{sT1}, s{sC}, 15")
    k("v_and_b32 v13, 15, v0\nv_min_u32 v14, 13, v13")
    k(f"s_lshr_b32 s{sT2}, s{sT0}, 1\ns_add_u32 s{sT2}, s{sT2}, 176\nv_lshl_add_u32 v252, v14, 2, s{sT2}")
    k(f"s_mul_i32 s{sT2}, s{sT1}, 7\ns_add_u32 s{sT3}, s{sT2}, 6\ns_lshr_b32 s{sT2}, s{sT2}, 2\ns_lshr_b32 s{sT3}, s{sT3}, 2")
    k(f"v_lshrrev_b32 v14, 2, v13\nv_add_u32 v14, s{sT2}, v14\nv_min_u32 v14, s{sT3}, v14\nv_and_b32 v15, 3, v13\nv_mul_u32_u24 v15, 28, v15")
    k("v_add3_u32 v14, v14, v15, 48")
    k("v_and_b32 v15, 16, v0\nv_cmp_ne_u32 vcc, 0, v15\nv_cndmask_b32 v252, v252, v14, vcc")
    k(f"s_add_u32 s{sT0}, s{sT0}, 160\nv_and_b32 v14, 1, v13\nv_lshl_add_u32 v251, v14, 3, s{sT0}")
    k(f"s_lshr_b32 s{sT1}, s{sT1}, 1\nv_mul_u32_u24 v14, 24, v14\nv_lshrrev_b32 v15, 1, v13\nv_min_u32 v15, 2, v15\nv_lshlrev_b32 v15, 3, v15")
    k(f"v_add3_u32 v14, v14, v15, s{sT1}")
    k("v_cndmask_b32 v251, v251, v14, vcc")
    k(f"v_cmp_gt_u32 vcc, 512, v{vL16}\nv_cndmask_b32 v252, v251, v252, vcc\nv_lshlrev_b32 v252, 7, v252\nv_accvgpr_write_b32 a213, v252")
    if WARM:
        k("s_getpc_b64 s[88:89]")
        k(f"s_lshl_b32 s{sT0}, s{sC}, 1\ns_add_u32 s{sT0}, s{sT0}, s{sW}\ns_and_b32 s{sT0}, s{sT0}, 63\ns_lshl_b32 s{sT0}, s{sT0}, 10")
        k(f"v_add_u32 v245, s{sT0}, v{vL16}")
        k(f"v_min_u32 v244, {(WS_PAGES-1)*16}, v{vL16}\nv_lshlrev_b32 v244, 17, v244")
        k(f"s_cmp_eq_u32 s{sW}, 1\ns_cselect_b64 s[88:89], s[{sAUX}:{sAUX+1}], s[88:89]")
        k(f"s_cmp_eq_u32 s{sW}, 0\ns_cselect_b64 s[88:89], s[{sWS}:{sWS+1}], s[88:89]\ns_cselect_b64 vcc, -1, 0")
        k("v_cndmask_b32 v245, v245, v244, vcc")
    if PK_Q0: pk.issue(*range(8))
    k(f"v_and_b32 v13, 31, v0\nv_bfe_u32 v14, v0, 1, 3\nv_bfe_u32 v15, v0, 5, 1\nv_xor_b32 v14, v14, v15\nv_lshlrev_b32 v14, 4, v14\nv_lshl_add_u32 v13, v13, 7, v14")
    for e in range(4):
        k(f"v_xor_b32 v{vXR+e}, {e*32}, v13\nv_add_u32 v{vXR+e}, s{sXL}, v{vXR+e}")
    tr_addr(k, vTR, 13)
    k(f"v_add_u32 v{vTR+1}, {48*KB}, v{vTR}\nv_add_u32 v{vTW}, s{sWL}, v{vTR}\nv_add_u32 v{vTW+1}, {48*KB}, v{vTW}")
    k(f"v_mov_b32 v{vONE}, 0x3f803f80\nv_add_u32 v255, s84, v{vTR}\nv_accvgpr_write_b32 a212, v255")
    for r in range(192, 196): k(f"v_accvgpr_write_b32 a{r}, v{vONE}")
    for r in list(range(vST, vST+4)) + list(range(vCS, vCS+3)): k(f"v_mov_b32 v{r}, 0")
    def reads(j):
        o = []
        for e in range(4):
            o.append(f"ds_read_b128 {vr(vX + 16*j + 4*e)}, v{vXR+e} offset:{(j & 3)*4*KB}")
        for t in range(3):
            off = (12*(j & 3) + t)*KB
            o.append(f"ds_read_b64_tr_b16 {vr(vCW+4*t,2)}, v{vTW + (j >> 2)} offset:{off}")
            o.append(f"ds_read_b64_tr_b16 {vr(vCW+4*t+2,2)}, v{vTW + (j >> 2)} offset:{off+256}")
        for b in range(12):
            off = (12*(j & 3) + b)*KB; r = 48*(j & 1) + 4*b
            o.append(f"ds_read_b64_tr_b16 {ar(r,2)}, v{vTR + (j >> 2)} offset:{off}")
            o.append(f"ds_read_b64_tr_b16 {ar(r+2,2)}, v{vTR + (j >> 2)} offset:{off+256}")
        return o
    def dots(j):
        for i in range(16):
            r = vX + 16*j + i
            k(f"v_dot2c_f32_bf16 v{vST + 2*(i & 1)}, v{vONE}, v{r}\nv_dot2c_f32_bf16 v{vST + 1 + 2*(i & 1)}, v{r}, v{r}")
        for i in range(4):
            for t in range(3): k(f"v_dot2c_f32_bf16 v{vCS+t}, v{vONE}, v{vCW+4*t+i}")
    def xid():
        k(f"s_add_u32 s{sTAG}, s{sTAG}, 0x7f4a7c15\ns_addc_u32 s{sTAG+1}, s{sTAG+1}, 0x9e3779b9")
        k("v_mov_b32 v13, 0")
        k("s_mov_b64 exec, 1")
        if FLAG_TOUCH:
            k(f"s_lshl_b32 s{sF}, s{sA}, 4\ns_lshr_b32 s{sT1}, s{sRB}, 2\ns_add_u32 s{sF}, s{sF}, s{sT1}\ns_lshl_b32 s{sF}, s{sF}, 7\ns_add_u32 s{sF}, s{sF}, {FKV(0)}")
            k.vm(f"buffer_load_dword v5, v13, {srd(sWS)}, s{sF} offen sc1")
            k(f"s_lshl_b32 s{sF}, s{sU}, 7\ns_add_u32 s{sF}, s{sF}, {FPK}")
            k.vm(f"buffer_load_dword v5, v13, {srd(sWS)}, s{sF} offen sc1")
        k("s_mov_b64 exec, -1")
    def lin_touch():
        k.vm("global_load_dword v253, v254, s[90:91]")
    side = []
    if Q0_MARKS: mark(k, 'alu')
    if WARM and WARM_AT == 0: k.vm(f"global_load_dword v253, v245, s[88:89]")
    for j in range(1, Q0_UP):
        for f in chunk_loads(j): f()
    if WARM and WARM_AT == 1: k.vm(f"global_load_dword v253, v245, s[88:89]")
    if Q0_MARKS: mark(k, 'iss')
    k.wait(vm=ct[0])
    if Q0_MARKS: mark(k, 'w0')
    k("s_barrier")
    mark(k, 'd0')
    rl = reads(0)
    for x in rl[:10]: t10 = k.lg(x)
    for x in rl[10:]: k.lg(x)
    k.wait(lg=t10)
    dots(0)
    for j in range(8):
        for c_ in Q0_SCHED[j]:
            assert c_ - 4 <= j
            side += chunk_loads(c_)
        if j == 1: side.append(xid)
        if WARM and WARM_AT == j + 2: side.append(lambda: k.vm(f"global_load_dword v253, v245, s[88:89]"))
        if PK_EARLY: side += [lambda i=i: pk.issue(i) for i in range(8) if PK_AT[i] == j]
        if j == LIN_AT and not PK_Q0: side.append(lin_touch)
        if PK_Q0:
            assert all(c_ < 5 or j > PK_RD for c_ in Q0_SCHED[j])
            if j == PK_RD: side += [lambda i=i: pk.reads(2*i, 2*i+1) for i in range(4)]
            if j == PK_ST: side += [lambda i=i: (pk.stores(i), pk.csum(i)) for i in range(4)]
            if j == PK_ST + 1: side += [lambda i=i: (pk.stores(i), pk.csum(i)) for i in range(4, 8)]
            if j == PK_ST + 2: side.append(pk.ext)
        k.wait_all(vm=False)
        rl = []
        if j < 7:
            assert cn[j+1] == 7
            k.wait(vm=ct[j+1]); k("s_barrier")
            if j in Q0_MARKJ: mark(k, f'c{j+1}')
            rl = reads(j + 1)
        t10 = None; nr = 0
        if j == 7:
            tail = f"s_lshr_b32 s{sT0}, s{sW}, 1\ns_lshl_b32 s{sT0}, s{sT0}, 9\ns_and_b32 s{sT1}, s{sW}, 1\ns_lshl_b32 s{sT1}, s{sT1}, 3\ns_add_u32 s{sT0}, s{sT0}, s{sT1}".split('\n')
            tail += [f"v_and_b32 v13, 0x1f0, v{vL16}", f"v_add_u32 v13, s{sT0}, v13"]
            for t in range(3): tail += ext_pair(vCS+t, vCW+2*t, 14) + [f"ds_write_b64 v13, {vr(vCW+2*t,2)} offset:{t*KB}"]
            fin = fin_stats(vST, vEXT, vRS)[NTREE:] + qkv_consts(vT, vRS, vR)
            tail += [f"v_add_f32 v{vST}, v{vST}, v{vST+2}", f"v_add_f32 v{vST+1}, v{vST+1}, v{vST+3}"] + fin[:18]
            tail += ["s_waitcnt lgkmcnt(0)", "s_barrier"] + [f"ds_read_b128 {vr(vCW+4*t)}, v{vL16} offset:{t*KB}" for t in range(3)] + fin[18:]
            tail += f"s_lshl_b32 s{sCc}, s{sA}, 18\ns_lshl_b32 s{sT1}, s{sRB}, 11\ns_add_u32 s{sCc}, s{sCc}, s{sT1}".split('\n')
            tail += f"s_mul_i32 s{sB}, s{sRB}, {112*KB}\ns_lshl_b32 s{sT1}, s{sA}, 11\ns_add_u32 s{sB}, s{sB}, s{sT1}".split('\n')
            assert not side
            n_ = -(-len(tail) // 12)
            side = [lambda c=tail[i:i+n_]: [k(x) for x in c] for i in range(0, len(tail), n_)]
        for b in range(12):
            ks = 4*j + b // 3; t = b % 3
            acc = vr(vACC + 16*t, 16); w = ar(48*(j & 1) + 4*b); x = vr(vX + 4*ks)
            A, B = (x, w) if t == 1 else (w, x)
            k(f"v_mfma_f32_32x32x16_bf16 {acc}, {A}, {B}, {'0' if ks == 0 else acc}")
            if ks == 0 and t == 0: mark(k, 'm0')
            for _ in range(3):
                if rl:
                    t_ = k.lg(rl.pop(0)); nr += 1
                    if nr == 10: t10 = t_
            if side: side.pop(0)()
            if len(side) > 11 - b: side.pop(0)()
        if j < 7:
            assert not rl
            k.wait(lg=t10)
            dots(j + 1)
    while side: side.pop(0)()
    mark(k, 'loop')
    k.wait_all(vm=False)
    for t in range(3):
        c = vCW + 4*t
        acc = vr(vACC + 16*t, 16)
        A, B = (vr(vEXT), vr(c)) if t == 1 else (vr(c), vr(vEXT))
        k(f"v_mfma_f32_32x32x16_bf16 {acc}, {A}, {B}, {acc}")
    t_ = None
    for x in qk_tile(vACC, KVF(0), vRS, " sc1", vX) + v_tile(vACC+16, 0, vR, vX+8) + qk_tile(vACC+32, QF, vRS+1, " sc1", vX+16):
        if x.startswith('buffer'): t_ = k.vm(x)
        else: k(x)
    mark(k, 'st')
    return t_, t_

def ph_qkv(k, L, ring, b0):
    vX, vACC, vST, vEXT, vRS, vT, vR = 16, 144, 192, 8, 6, 224, 232
    rb_128(k)
    k(f"s_and_b32 s{sA}, s{sC}, 15")
    k(f"s_lshl_b32 s{sX}, s{sRB}, 15\ns_add_u32 s{sX}, s{sX}, {XF}")
    set_lds_bases(k)
    ops = []
    b = b0
    for tiles in ((0, 1), (2,)):
        for ks in range(33):
            for t in tiles:
                ops.append(dict(b=b, bmin=b, bmax=b, xi=(ks if ks < 32 else None), x=(vr(vX+4*ks) if ks < 32 else vr(vEXT)),
                                acc=vr(vACC+16*t, 16), swap=(t == 1), first=(ks == 0)))
                b += 1
    xq = XLoader(k, 32, lambda i: vr(vX+4*i), lin_src(k))
    res = {}
    se = stats_emitters(k, vST, res)
    k(f"s_lshl_b32 s{sCc}, s{sA}, 18\ns_lshl_b32 s{sT1}, s{sRB}, 11\ns_add_u32 s{sCc}, s{sCc}, s{sT1}")
    k(f"s_mul_i32 s{sB}, s{sRB}, {112*KB}\ns_lshl_b32 s{sT1}, s{sA}, 11\ns_add_u32 s{sB}, s{sB}, s{sT1}")
    assert ring.issued == ring.total
    g = Gemm(k, ring, ops, {0})
    g.start()
    ring.issue_n(4)
    publish_local(k, G.tx)
    ring.issue_n(4)
    k(f"s_lshl_b32 s{sF}, s{sRB}, 7\ns_add_u32 s{sF}, s{sF}, {FLOC(L-1, 8)}")
    poll16(k)
    aps = stats_poll(k, FLOC(L-1,7) - FLOC(L-1,8))
    fin = fin_stats(vST, vEXT, vRS) + qkv_consts(vT, vRS, vR)
    epi = qk_tile(vACC, KVF(L), vRS, " sc1", vST) + v_tile(vACC+16, L, vR, vST+16)
    st = dict(i=0, j=0, t=None)
    def put(x):
        if x.startswith('buffer'): st['t'] = k.vm(x)
        else: k(x)
    def filler(m):
        if aps and m == 4: aps.issue()
        if m == 22:
            if aps: aps.check()
            for e in se: e()
        if 44 <= m < 64:
            if st['i'] == 0: k.wait(vm=res['t'])
            for _ in range(3):
                if st['i'] < len(fin): k(fin[st['i']]); st['i'] += 1
        if m >= 68:
            for _ in range(4):
                if st['j'] < len(epi): put(epi[st['j']]); st['j'] += 1
    g.run(xq, n0=8, filler=filler)
    assert st['i'] == len(fin) and st['j'] == len(epi)
    tkv = st['t']
    for x in qk_tile(vACC + 32, QF, vRS + 1, "", vST+8): put(x)
    mark(k, 'st')
    return tkv, st['t']

def code_touch(k, vd, skip=0):
    if not CODE_TOUCH: return
    k(f"s_getpc_b64 s[{sPC}:{sPC+1}]\ns_add_u32 s{sPC}, s{sPC}, s{sCT}\ns_addc_u32 s{sPC+1}, s{sPC+1}, 0")
    k.vm(f"global_load_dword v{vd}, v{vL16}, s[{sPC}:{sPC+1}] offset:{skip}")

def flag_touch(k, L, va, vd):
    if not FL_TOUCH: return
    k(f"v_bfe_u32 v{va}, v0, 3, 3\nv_lshlrev_b32 v{va}, 6, v{va}\nv_and_or_b32 v{va}, v0, 7, v{va}\nv_lshlrev_b32 v{va}, 7, v{va}")
    k(f"s_lshl_b32 s{sT3}, s{sG}, 10\ns_add_u32 s{sT3}, s{sT3}, {FLOC(L,0)}")
    k.vm(f"buffer_load_dword v{vd}, v{va}, {srd(sWS)}, s{sT3} offen sc1")

def ph_att(k, L, ring, tkv, tq):
    vO, vS0, vKV, aQ = 16, 144, 208, aWB
    NS = 4
    vS = [vS0 + 16*i for i in range(NS)]
    vK, vV, vIDX, vL128 = 6, 7, 8, 9
    sK, sHD = sB, sE
    k(f"s_lshl_b32 s{sHD}, s{sC}, 16")
    k(f"s_lshl_b32 s{sT0}, s{sC}, 17\ns_add_u32 s{sT0}, s{sT0}, s{sW4K}\ns_add_u32 s{sT0}, s{sT0}, {KVF(L)}")
    k("v_and_b32 v10, 0x33, v0\nv_bfe_u32 v11, v0, 2, 1\nv_lshlrev_b32 v11, 3, v11\nv_or_b32 v10, v10, v11")
    k(f"v_bfe_u32 v11, v0, 3, 1\nv_lshlrev_b32 v11, 2, v11\nv_or_b32 v10, v10, v11\nv_lshl_add_u32 v{vK}, v10, 4, s{sT0}")
    k(f"v_and_b32 v10, 15, v0\nv_bfe_u32 v11, v0, 5, 1\nv_lshlrev_b32 v11, 4, v11\nv_add_u32 v10, v10, v11\nv_lshl_add_u32 v{vV}, v10, 4, s{sT0}")
    k(f"v_mov_b32 v{vIDX}, 0xdddddddd\nv_lshlrev_b32 v{vL128}, 3, v{vL16}")
    k(f"s_lshl_b32 s{sK}, s{sG}, 14")
    k("v_and_b32 v10, 27, v0\nv_cmp_eq_u32 vcc, 16, v10\nv_mov_b32 v11, 0x3f803f80\nv_cndmask_b32 v11, 0, v11, vcc")
    k("v_mov_b32 v144, v11")
    k(f"s_lshr_b32 s{sT0}, s{sC}, 1\ns_lshl_b32 s{sD}, s{sT0}, 11\ns_add_u32 s{sD}, s{sD}, {FKV(L)}")
    k(f"s_lshl_b32 s{sT3}, s{sG}, 8\ns_add_u32 s{sT3}, s{sT3}, s{sD}")
    if L == 0:
        k(f"v_and_b32 v11, 1, v0\nv_lshlrev_b32 v11, 7, v11\nv_add_u32 v11, s{sT3}, v11")
        k(f"v_cmp_gt_u32 vcc, 512, v{vL16}")
    k(f"s_lshr_b32 s{sT1}, s{sW}, 1\ns_lshl_b32 s{sT1}, s{sT1}, 7\ns_add_u32 s{sD}, s{sD}, s{sT1}")
    if L:
        k(f"s_add_u32 s{sT3}, s{sT3}, s{sT1}")
        k(f"s_lshl_b32 s{sT2}, s{sG}, 10\ns_lshl_b32 s{sT0}, s{sT0}, 6\ns_add_u32 s{sT2}, s{sT2}, s{sT0}\ns_add_u32 s{sT2}, s{sT2}, {FLOC(L-1,5)}")
        k(f"v_mov_b32 v12, s{sT3}\nv_and_b32 v11, 7, v0\nv_lshlrev_b32 v11, 3, v11\nv_add_u32 v11, s{sT2}, v11")
        k(f"v_cmp_gt_u32 vcc, 512, v{vL16}\nv_cndmask_b32 v11, v11, v12, vcc")
    k(f"v_and_b32 v12, 7, v0\nv_lshlrev_b32 v12, 8, v12")
    k(f"s_mul_i32 s{sT2}, s{sG}, {8*112*KB}\ns_lshl_b32 s{sT3}, s{sC}, 10\ns_add_u32 s{sT2}, s{sT2}, s{sT3}\ns_add_u32 s{sT2}, s{sT2}, {QF}")
    sQ = list(range(64, 72))
    for p in range(4):
        k(f"s_xor_b32 s{sT3}, s{sW}, {p}\ns_mul_i32 s{sT3}, s{sT3}, {2*112*KB}\ns_add_u32 s{sQ[2*p]}, s{sT3}, s{sT2}\ns_add_u32 s{sQ[2*p+1]}, s{sQ[2*p]}, {112*KB}")
    sTH, sTW, sFO = 72, 73, 79
    k(f"s_lshl_b32 s{sT3}, s{sU}, 2\ns_add_u32 s{sT3}, s{sT3}, s{sW}")
    k(f"s_mul_i32 s{sTH}, s{sT3}, {7*KB}\ns_add_u32 s{sTH}, s{sTH}, {HF}")
    k(f"s_lshl_b32 s{sT0}, s{sT3}, 11\ns_add_u32 s{sT0}, s{sT0}, {XF}\ns_lshl_b32 s{sT1}, s{sT3}, 8\ns_add_u32 s{sT1}, s{sT1}, {SX}")
    k(f"v_and_b32 v3, 0x780, v{vL128}\nv_add_u32 v3, s{sT0}, v3\nv_and_b32 v13, 0x80, v{vL128}\nv_add_u32 v13, s{sT1}, v13\nv_cndmask_b32 v3, v13, v3, vcc")
    k(f"s_lshl_b32 s{sTW}, s{sC4}, 2\ns_add_u32 s{sTW}, s{sTW}, s{sW}\ns_mul_i32 s{sTW}, s{sTW}, {TOUCH_KBS[L] * KB // 8}")
    k(f"s_add_u32 s{sTW}, s{sTW}, s{sSEG+1}\ns_add_u32 s{sTW}, s{sTW}, {32*KB}")
    k(f"s_and_b32 s{sCT}, s{sT3}, 31\ns_lshl_b32 s{sCT}, s{sCT}, 10")
    k(f"s_lshl_b32 s{sFO}, s{sG}, 2\ns_add_u32 s{sFO}, s{sFO}, s{sW}\ns_lshl_b32 s{sFO}, s{sFO}, 5\ns_add_u32 s{sFO}, s{sFO}, s{sC}\ns_lshl_b32 s{sFO}, s{sFO}, 3\ns_add_u32 s{sFO}, s{sFO}, {FLOC(L,0)}")
    if L == 0:
        for i in range(48, 128): k(f"v_mov_b32 v{vO+i}, 0")
    mark(k, 'pre')
    if L: q_flag(k, L, tq)
    kv_flag(k, L, tkv)
    if L == 0 and PK_Q0:
        k(f"s_lshl_b32 s{sF}, s{sU}, 7\ns_add_u32 s{sF}, s{sF}, {FPK}\nv_mov_b32 v145, v12")
        publish_wg(k, None, xid=True, barrier=False)
        k("v_mov_b32 v12, v145")
    mark(k, 'flag')
    if L == 0 and PK_EARLY:
        G.pk.reads(*range(8))
        for i in range(8): G.pk.csum(i)
        if PK_WIN2:
            G.pk.stores(*range(8)); G.pk.ext()
    if L:
        for i in range(48, 128): k(f"v_mov_b32 v{vO+i}, 0")
    if L == 0 and LIN_AT == 'flag': k.vm("global_load_dword v253, v254, s[90:91]")
    for b in range(4):
        for j in range(8): k(f"v_mov_b32 v{vKV+12*b+4+j}, v144")
    k(f"s_mov_b32 s{sF}, 0")
    poll(k, 11, 14, sleep=SLEEP1[L])
    mark(k, 'poll')
    K = lambda t: vr(vKV + 12*(t % 4))
    V = lambda t, u: vr(vKV + 12*(t % 4) + 4 + 4*u)
    kt = {}; vt = {}
    def ldK(t):
        if t and (t & 1) == 0: k(f"s_add_u32 s{sK}, s{sK}, 0x4000\ns_and_b32 s{sK}, s{sK}, 0x1ffff")
        kt[t] = k.vm(f"buffer_load_dwordx4 {K(t)}, v{vK}, {srd(sWS)}, s{sK} offen offset:{(t & 1)*2*KB} sc1")
    def ldV(t):
        k(f"s_mov_b64 exec, s[{sMSK}:{sMSK+1}]")
        k.vm(f"buffer_load_dwordx4 {V(t,0)}, v{vV}, {srd(sWS)}, s{sK} offen offset:{(t & 1)*2*KB+KB} sc1")
        vt[t] = k.vm(f"buffer_load_dwordx4 {V(t,1)}, v{vV}, {srd(sWS)}, s{sK} offen offset:{(t & 1)*2*KB+KB+512} sc1")
        k("s_mov_b64 exec, -1")
    def ldKV(t):
        ldK(t); ldV(t); kt[t] = vt[t]
    ldK(0)
    qt = {}
    for s in range(8):
        qt[s] = k.vm(f"buffer_load_dwordx4 {ar(aQ+4*s)}, v{vL16}, {srd(sWS)}, s{sQ[s]} offen sc1")
        if s == 2: ldV(0)
    ldKV(1)
    ap2 = apoll1(k, 12, 10, sD, sleep=SLEEP2)
    for i in range(48): k(f"v_mov_b32 v{vO+i}, 0")
    NT = ATT_NT
    steps = [(t, q) for t in range(16 - NT) for q in range(8)] + [(t, q) for q in range(2, 8) for t in range(16 - NT, 16)] + [(t, q) for q in range(2) for t in range(16 - NT, 16)]
    n = len(steps)
    LA = NS - 1
    def qk(i):
        t, q = steps[i]
        k.wait(vm=max(kt[t], qt[q]) if t == 0 else kt[t])
        k(f"v_mfma_f32_32x32x16_bf16 {vr(vS[i % NS],16)}, {K(t)}, {ar(aQ+4*q)}, 0")
    def pv(i, u):
        t, q = steps[i]
        k.wait(vm=vt[t])
        k(f"v_smfmac_f32_32x32x32_bf16 {vr(vO+16*q,16)}, {V(t,u)}, {vr(vS[i % NS]+8*u,8)}, v{vIDX}")
    for i in range(LA): qk(i)
    mark(k, 'm0')
    ring.limit = 96
    jobs = {}
    def job(i, f, e=10): jobs.setdefault((i, e), []).append(f)
    job(0, lambda: code_touch(k, 10))
    job(P2_AT - 4, ap2.issue)
    job(P2_AT, lambda: (ap2.check(), ldKV(2), ldKV(3)))
    for t in range(1, 13): job(8*t, lambda t=t: ldKV(t + 3))
    def kvpf(j):
        def f():
            k(f"s_add_u32 s{sT0}, s{sG}, {2*j}\nv_bfe_u32 v13, v0, 5, 1\nv_add_u32 v13, s{sT0}, v13\nv_and_b32 v13, 7, v13\nv_lshlrev_b32 v13, 14, v13")
            k(f"v_and_b32 v14, 0xf80, v{vL128}\nv_add_u32 v13, v13, v14")
            k(f"s_lshl_b32 s{sT0}, s{sC}, 17\ns_add_u32 s{sT0}, s{sT0}, s{sW4K}\ns_add_u32 s{sT0}, s{sT0}, {KVF(L)}")
            k.vm(f"buffer_load_dword v5, v13, {srd(sWS)}, s{sT0} offen sc1")
        return f
    if KV_PF[L]:
        for j in (2, 3): job(KV_PF[L] + 8*(j-2), kvpf(j))
    if L == 0:
        CHK_AT = CHK_Q0 if PK_Q0 else G.pk.schedule(job) + CHK_GAP
        apk = APoll(k, [f"buffer_load_dwordx2 v[10:11], v12, {srd(sWS)}, s{sX} offen offset:8 sc1"],
                    f"v_cmp_ne_u64 vcc, s[{sTAG}:{sTAG+1}], v[10:11]")
        def chk0():
            k(f"v_accvgpr_read_b32 v12, a213\ns_mov_b32 s{sX}, {FPK}")
            apk.issue()
        job(CHK_AT - 6, chk0)
        apx = APoll(k, [f"buffer_load_dwordx4 v[12:15], v11, {srd(sWS)}, s{sCc} offen sc1"],
                    f"v_cmp_ne_u64 vcc, s[{sTAG}:{sTAG+1}], v[14:15]")
        def mode0():
            k(f"v_and_b32 v11, 0xf80, v{vL128}\ns_lshl_b32 s{sCc}, s{sG}, 12\ns_add_u32 s{sCc}, s{sCc}, {FPK}")
            apx.issue()
        def mode():
            apx.check()
            k(f"s_xor_b32 s{sT2}, s{sTAG}, s{sXCC}")
            k(f"v_cmp_ne_u32 vcc, s{sT2}, v12")
            k(f"s_cmp_eq_u64 vcc, 0\ns_cselect_b32 s{sMODE}, 1, 0")
        job(81, mode0); job(95, mode)
        def chk():
            apk.check()
            k(f"s_and_b32 s{sT2}, s{sC}, 7\ns_lshl_b32 s{sT2}, s{sT2}, 1\ns_lshr_b32 s{sT3}, s{sW}, 1\ns_add_u32 s{sT2}, s{sT2}, s{sT3}")
            k(f"s_mul_i32 s{sT3}, s{sW}, {28*KB}\ns_add_u32 s{sT3}, s{sT3}, {WD}")
            k(f"s_mul_i32 s{sX}, s{sT2}, {112*KB}\ns_add_u32 s{sX}, s{sX}, s{sT3}")
            k(f"s_xor_b32 s{sT2}, s{sT2}, 1\ns_mul_i32 s{sX2}, s{sT2}, {112*KB}\ns_add_u32 s{sX2}, s{sX2}, s{sT3}")
        job(CHK_AT, chk)
        def wsrc(i):
            s_ = sX if i < 28 else sX2
            j = i % 28
            if j and (j & 3) == 0: k(f"s_add_u32 s{s_}, s{s_}, 4096")
            return s_, (j & 3) * KB
        wq = XLoader(k, 56, lambda i: ar(aWD + 8*(i % 28) + 4*(i // 28)), wsrc)
        slots = [i for i in range(CHK_AT + 1, 112) if i % 8 in WD_SLOTS]
        work = [lambda: wq.issue_n(4)] * 14
        rw = [ring.issue16] * 6
        seq = []
        while work or rw:
            if work: seq.append(work.pop(0))
            if work: seq.append(work.pop(0))
            if rw: seq.append(rw.pop(0))
        assert len(seq) <= len(slots), (len(seq), len(slots))
        for i, f in zip(slots, seq): job(i, f)
    else:
        for j in range(6): job(12 + 8*j, ring.issue16)
    def tch(j):
        def f():
            if j: k(f"s_add_u32 s{sTW}, s{sTW}, 8192")
            k.vm(f"buffer_load_dword v5, v{vL128}, {srd(sWS)}, s{sTW} offen sc1")
        return f
    for j in range(-(-TOUCH_KBS[L] // 64)): job(TOUCH_AT[L] + j*TOUCH_STEP, tch(j))
    job(TACT_AT, lambda: k.vm(f"buffer_load_dword v5, v{vL128}, {srd(sWS)}, s{sTH} offen sc1"))
    def tact():
        k.vm(f"buffer_load_dword v5, v3, {srd(sWS)}, 0 offen sc1")
    job(TACT_AT + 4, tact)
    job(CT_AT, lambda: code_touch(k, 5))
    job(TACT_AT + 8, lambda: flag_touch(k, L, 4, 5))
    SC = 96 * KB
    vWA = 10
    def red_setup():
        k(f"s_lshl_b32 s{sT0}, s{sW}, 14\nv_add_u32 v13, s{sT0}, v{vL16}")
        for j in range(1, 4):
            k(f"v_xor_b32 v{vWA+j-1}, {j << 14}, v13\nv_add_u32 v{vWA+j-1}, {SC}, v{vWA+j-1}")
        k(f"v_add_u32 v13, {SC}, v13")
    job(126 - 8*NT, red_setup)
    def red_write(s, part):
        j = s >> 1; z = s & 1
        if part == 0:
            k.lg(f"ds_write_b128 v{vWA+j-1}, {vr(vO+16*s)} offset:{(z*3+j-1)*2*KB}")
            k.lg(f"ds_write_b32 v{vWA+j-1}, v{vO+16*s+8} offset:{(12+z)*KB+(j-1)*4}")
        if part == 1 or NT == 1:
            k.lg(f"ds_write_b128 v{vWA+j-1}, {vr(vO+16*s+4)} offset:{(z*3+j-1)*2*KB+KB}")
    for i in range(128):
        if steps[i][0] == 15 and steps[i][1] >= 2:
            job(i + 2, lambda s=steps[i][1]: red_write(s, 0), e=2)
            if NT > 1: job(i + 2, lambda s=steps[i][1]: red_write(s, 1))
    tl = []
    def red_read(zz):
        if zz[0] == 0:
            k.wait_all()
            k("s_barrier")
        for z in zz:
            k.lg(f"ds_read_b128 {vr(vO+32+48*z+8)}, v13 offset:{(12+z)*KB}")
            for j in range(3):
                b = vO + 32 + (z*3 + j)*16
                k.lg(f"ds_read_b128 {vr(b)}, v13 offset:{(z*3+j)*2*KB}")
                tl.append(k.lg(f"ds_read_b128 {vr(b+4)}, v13 offset:{(z*3+j)*2*KB+KB}"))
    if NT == 1: job(127, lambda: red_read((0, 1)))
    else:
        job(126, lambda: red_read((0,))); job(127, lambda: red_read((1,)), e=2)
    for i, (t, q) in enumerate(steps):
        s = vS[i % NS]
        if i in ATT_MARKS: mark(k, f's{i}')
        for e in range(16):
            if e == 2 and i > 0: pv(i-1, 1)
            if e == 6 and i + LA < n: qk(i + LA)
            if e == 10: pv(i, 0)
            for f in jobs.pop((i, e), []): f()
            k(f"v_exp_f32 v{s+e}, v{s+e}")
    pv(n-1, 1)
    assert not jobs, jobs.keys()
    assert ring.issued == 96
    mark(k, 'loop')
    for z in range(2):
        o = vO + 16*z; l = vO + 32 + 48*z + 8
        k.wait(lg=tl[z*3])
        k(f"v_add_f32 v{l}, v{l}, v{l+1}\nv_add_f32 v{o+8}, v{o+8}, v{l+2}\nv_add_f32 v{o+8}, v{o+8}, v{l}\nv_rcp_f32 v{o+9}, v{o+8}")
        for j in range(3):
            b = vO + 32 + (z*3 + j)*16
            k.wait(lg=tl[z*3+j])
            for i in range(8): k(f"v_add_f32 v{o+i}, v{o+i}, v{b+i}")
        for j in range(4):
            k(f"v_mul_f32 v{o+2*j}, v{o+2*j}, v{o+9}\nv_mul_f32 v{o+2*j+1}, v{o+2*j+1}, v{o+9}")
            k(f"v_cvt_pk_bf16_f32 v{o+12+j}, v{o+2*j}, v{o+2*j+1}")
        ts = k.vm(f"buffer_store_dwordx4 {vr(o+12)}, v{vL16}, {srd(sWS)}, s{sQ[z]} offen")
    mark(k, 'f_st')
    fb = k.newlabel('fb'); back = k.newlabel('fbret')
    LO, HI = f2u(2.0**-60), f2u(2.0**60)
    for z in range(2):
        o = vO + 16*z
        k(f"v_add_f32 v{o}, v{o}, v{o+1}\nv_add_f32 v{o+2}, v{o+2}, v{o+3}\nv_add_f32 v{o+4}, v{o+4}, v{o+5}\nv_add_f32 v{o+6}, v{o+6}, v{o+7}")
        k(f"v_add_f32 v{o}, v{o}, v{o+2}\nv_add_f32 v{o+4}, v{o+4}, v{o+6}\nv_add_f32 v{o}, v{o}, v{o+4}")
        k(f"v_fma_f32 v{o+8}, v{o}, 0, v{o+8}\nv_subrev_u32 v{o+8}, {hex(LO)}, v{o+8}")
    k(f"v_max_u32 v{vO+8}, v{vO+8}, v{vO+24}")
    k(f"v_cmp_lt_u32 vcc, {hex(0 if FORCE_FB else HI - LO)}, v{vO+8}")
    k(f"s_cbranch_vccnz {fb}")
    k.label(back)
    F = [f"{fb}:", "s_waitcnt vmcnt(0)",
         f"v_subrev_u32 v{vK}, s{sW4K}, v{vK}", f"v_subrev_u32 v{vV}, s{sW4K}, v{vV}"]
    S, C, M = vS0, vS0 + 16, vS0 + 32
    for z in range(2):
        o = vO + 16*z; Q = ar(aQ + 4*z)
        F += [f"v_mov_b32 v{M}, 0xff800000", f"s_mov_b32 s{sK}, 0", f"{fb}_a{z}:",
              f"buffer_load_dwordx4 {K(0)}, v{vK}, {srd(sWS)}, s{sK} offen sc1", "s_waitcnt vmcnt(0)",
              f"v_mfma_f32_32x32x16_bf16 {vr(S,16)}, {K(0)}, {Q}, 0"]
        F += [f"v_max3_f32 v{M}, v{M}, v{S+2*i}, v{S+2*i+1}" for i in range(8)]
        F += [f"s_add_u32 s{sK}, s{sK}, 2048", f"s_cmp_lt_u32 s{sK}, {64*2048}", f"s_cbranch_scc1 {fb}_a{z}",
              f"v_mov_b32 v{M+1}, v{M}", f"v_permlane32_swap_b32 v{M}, v{M+1}", f"v_max_f32 v{M}, v{M}, v{M+1}"]
        F += [f"v_sub_f32 v{C+i}, 0, v{M}" for i in range(16)] + [f"v_mov_b32 v{o+i}, 0" for i in range(16)]
        F += [f"s_mov_b32 s{sK}, 0", f"{fb}_b{z}:",
              f"buffer_load_dwordx4 {K(0)}, v{vK}, {srd(sWS)}, s{sK} offen sc1",
              f"s_mov_b64 exec, s[{sMSK}:{sMSK+1}]",
              f"buffer_load_dwordx4 {V(0,0)}, v{vV}, {srd(sWS)}, s{sK} offen offset:{KB} sc1",
              f"buffer_load_dwordx4 {V(0,1)}, v{vV}, {srd(sWS)}, s{sK} offen offset:{KB+512} sc1",
              "s_mov_b64 exec, -1", "s_waitcnt vmcnt(0)",
              f"v_mfma_f32_32x32x16_bf16 {vr(S,16)}, {K(0)}, {Q}, {vr(C,16)}"]
        F += [f"v_exp_f32 v{S+i}, v{S+i}" for i in range(16)]
        F += [f"v_smfmac_f32_32x32x32_bf16 {vr(o,16)}, {V(0,u)}, {vr(S+8*u,8)}, v{vIDX}" for u in range(2)]
        F += ["s_nop 15", f"s_add_u32 s{sK}, s{sK}, 2048", f"s_cmp_lt_u32 s{sK}, {64*2048}", f"s_cbranch_scc1 {fb}_b{z}",
              f"v_rcp_f32 v{o+9}, v{o+8}"]
        for j in range(4):
            F += [f"v_mul_f32 v{o+2*j}, v{o+2*j}, v{o+9}", f"v_mul_f32 v{o+2*j+1}, v{o+2*j+1}, v{o+9}", f"v_cvt_pk_bf16_f32 v{o+12+j}, v{o+2*j}, v{o+2*j+1}"]
        F += [f"buffer_store_dwordx4 {vr(o+12)}, v{vL16}, {srd(sWS)}, s{sQ[z]} offen"]
    F += ["s_waitcnt vmcnt(0)", f"s_branch {back}"]
    G.far += F
    k(f"s_mov_b32 s{sF}, s{sFO}")
    ring.end16()
    ring.limit = 144
    return ts

def load_res(k, v):
    k(f"s_add_u32 s{sT1}, s{sDST}, {XF}")
    k.vm(f"buffer_load_dwordx4 {vr(v)}, v{vL16}, {srd(sWS)}, s{sT1} offen sc1")
    return k.vm(f"buffer_load_dwordx4 {vr(v+4)}, v{vL16}, {srd(sWS)}, s{sT1} offen offset:1024 sc1")
def add_res(k, acc, v):
    for j in range(8):
        k(f"v_lshlrev_b32 v10, 16, v{v+j}\nv_and_b32 v11, 0xffff0000, v{v+j}")
        k(f"v_add_f32 v{acc+2*j}, v{acc+2*j}, v10\nv_add_f32 v{acc+2*j+1}, v{acc+2*j+1}, v11")

def ph_wo(k, L, ring, tO):
    k.label(f'L_wo{L}')
    vX, vACC, vRES, vSUM, vPK = 16, 80, 112, 120, 136
    k(f"s_lshr_b32 s{sRB}, s{sDST}, 15\ns_lshr_b32 s{sD}, s{sW}, 1")
    k(f"s_mul_i32 s{sX}, s{sRB}, {112*KB}\ns_lshl_b32 s{sT0}, s{sD}, 14\ns_add_u32 s{sX}, s{sX}, s{sT0}\ns_add_u32 s{sX}, s{sX}, {HF}")
    k(f"s_lshl_b32 s{sT0}, s{sD}, 11")
    set_lds_bases(k, sT0)
    seq = []
    for s in range(16):
        seq.append((s, 1))
        if s < 16 - WO_R0: seq.append((s, 0))
    nf = len(seq)
    seq += [(s, 0) for s in range(16 - WO_R0, 16)]
    ops = [dict(b=4*s + a, bmin=0, bmax=63, xi=s, x=vr(vX+4*s), acc=vr(vACC+16*a,16), swap=False, first=(s == 0)) for s, a in seq]
    g = Gemm(k, ring, ops, {0}, stop_issue=WO_STOP)
    if L == 0:
        rowmajor_addr(k, 8, sT0)
        k.vm(f"buffer_load_dwordx4 {vr(vRES)}, v8, {srd(60)}, s{sT0} offen")
        k.vm(f"buffer_load_dwordx4 {vr(vRES+4)}, v8, {srd(60)}, s{sT0} offen offset:32")
    else:
        load_res(k, vRES)
    g.start()
    mark(k, 'f_bar')
    ring.issue_n(PRE_WO)
    publish_local(k, tO)
    mark(k, 'f_pub')
    ring.issue_n(PRE_WO2)
    k(f"s_and_b32 s{sF}, s{sRB}, 0xfe\ns_add_u32 s{sF}, s{sF}, s{sD}\ns_lshl_b32 s{sF}, s{sF}, 7\ns_add_u32 s{sF}, s{sF}, {FLOC(L,0)}")
    SC = 144 * KB
    k(f"s_xor_b32 s{sT0}, s{sW}, 2\ns_lshl_b32 s{sT0}, s{sT0}, 12\ns_add_u32 s{sT0}, s{sT0}, {SC}\nv_add_u32 v6, s{sT0}, v{vL16}")
    k(f"s_lshl_b32 s{sT0}, s{sW}, 12\ns_add_u32 s{sT0}, s{sT0}, {SC}\nv_add_u32 v7, s{sT0}, v{vL16}")
    poll16(k)
    mark(k, 'f_poll')
    xq = XLoader(k, 16, lambda i: vr(vX+4*i), lin_src(k))
    xq.issue_n(WO_N0)
    for x in res_unpack(vSUM, vRES): k(x)
    st = {}
    def xchg(step):
        if step == 0:
            while g.nread < 32: g.rd()
            for j in range(4): k.lg(f"ds_write_b128 v6, {vr(vACC+16+4*j)} offset:{j*KB}")
        elif step == 1:
            k.wait_all(vm=False)
            ring.limit = None
            ring.sync(64, 0)
            for j in range(4): st['t'] = k.lg(f"ds_read_b128 {vr(vACC+16+4*j)}, v7 offset:{j*KB}")
        st['n'] = step + 1
    def filler(m):
        if m == max(nf + 1, 25): xchg(0)
        if m == max(nf + 4, 28): xchg(1)
    g.run(xq, n0=0, look=16, filler=filler)
    for step in range(st.get('n', 0), 2): xchg(step)
    k.wait(lg=st['t'])
    for i in range(16): k(f"v_add_f32 v{vSUM+i}, v{vSUM+i}, v{vACC+16+i}")
    for j in range(8):
        k(f"v_add_f32 v{vACC+2*j}, v{vACC+2*j}, v{vSUM+2*j}\nv_add_f32 v{vACC+2*j+1}, v{vACC+2*j+1}, v{vSUM+2*j+1}")
        k(f"v_cvt_pk_bf16_f32 v{vPK+j}, v{vACC+2*j}, v{vACC+2*j+1}")
    ts = store_x(k, vACC, vPK, L, 1, ring)
    mark(k, 'end')
    return ts

PASSES = ((0, 3), (3, 2), (5, 2))
def ph_up(k, L, ring, b0, tprev):
    vX, vACC, vST, vEXT, vRS = 16, 144, 224, 8, 6
    sH0, sH1 = sD, sE
    rb_128(k)
    k(f"s_and_b32 s{sA}, s{sC}, 15")
    k(f"s_lshl_b32 s{sX}, s{sRB}, 15\ns_add_u32 s{sX}, s{sX}, {XF}")
    set_lds_bases(k)
    ops = []
    b = b0
    for (t0, nt) in PASSES:
        for ks in range(33):
            for t in range(t0, t0+nt):
                ops.append(dict(b=b, bmin=b, bmax=b, xi=(ks if ks < 32 else None), x=(vr(vX+4*ks) if ks < 32 else vr(vEXT)),
                                acc=vr(vACC+16*t, 16), swap=False, first=(ks == 0)))
                b += 1
    g = Gemm(k, ring, ops, UP_SYNCS, stop_issue=UP_STOP)
    g.start()
    mark(k, 'f_bar')
    ring.issue_n(PRE)
    publish_local(k, tprev)
    mark(k, 'f_pub')
    ring.issue_n(PRE2)
    res = {}
    se = stats_emitters(k, vST, res)
    k(f"s_mul_i32 s{sH0}, s{sRB}, 112\ns_mul_i32 s{sT2}, s{sA}, 7\ns_add_u32 s{sH0}, s{sH0}, s{sT2}\ns_lshl_b32 s{sH0}, s{sH0}, 10\ns_add_u32 s{sH0}, s{sH0}, {HF}")
    k(f"s_add_u32 s{sH1}, s{sH0}, 4096")
    k(f"s_lshl_b32 s{sF}, s{sRB}, 7\ns_add_u32 s{sF}, s{sF}, {FLOC(L,1)}")
    poll16(k)
    mark(k, 'f_poll')
    aps = stats_poll(k, FLOC(L,6) - FLOC(L,1))
    xq = XLoader(k, 32, lambda i: vr(vX+4*i), lin_src(k))
    fin = fin_stats(vST, vEXT, vRS) + [f"v_mul_f32 v{vRS}, v{vRS}, v{vRS}"]
    def epi(t):
        a = vACC + 16*t
        o = []
        for j in range(4):
            o += [f"v_mul_f32 v{a+2*j}, v{a+2*j}, v{vRS}", f"v_mul_f32 v{a+2*j+1}, v{a+2*j+1}, v{vRS}",
                  f"v_mul_f32 v{a+2*j}, v{a+2*j}, v{a+8+2*j}", f"v_mul_f32 v{a+2*j+1}, v{a+2*j+1}, v{a+9+2*j}",
                  f"v_cvt_pk_bf16_f32 v{a+8+j}, v{a+2*j}, v{a+2*j+1}"]
        o.append(f"buffer_store_dwordx4 {vr(a+8)}, v{vL16}, {srd(sWS)}, s{sH0 + (t >> 2)} offen offset:{(t & 3)*KB}")
        return o
    st = dict(i=0, t=None); q = []
    def put(x):
        if x.startswith('buffer'): st['t'] = k.vm(x)
        else: k(x)
    dn = Down(k, L)
    def filler(m):
        if aps and m == 12: aps.issue()
        if aps and m == 30: aps.check()
        if 70 <= m < 96:
            if st['i'] == 0: k.wait(vm=res['t'])
            for _ in range(2):
                if st['i'] < len(fin): k(fin[st['i']]); st['i'] += 1
        if m == 102: q.extend(sum((epi(t) for t in range(0, 3)), []))
        if m == 168: q.extend(sum((epi(t) for t in range(3, 5)), []))
        for _ in range(UP_EPI):
            if q: put(q.pop(0))
        if m == 146: code_touch(k, 7)
        if m in UP_PUB:
            assert not q
            if m == UP_PUB[0]:
                k(f"s_lshl_b32 s{sF}, s{sRB}, 4\ns_add_u32 s{sF}, s{sF}, s{sA}\ns_lshl_b32 s{sF}, s{sF}, 3\ns_add_u32 s{sF}, s{sF}, {FLOC(L,2)}")
            publish_local(k, st['t'])
            k(f"s_add_u32 s{sF}, s{sF}, {8*KB}")
            if m == UP_PUB[1]: dn.xq.hold = 20
        if UP_PUB[0] < m and dn.setup:
            for _ in range(3):
                if dn.setup: k(dn.setup.pop(0))
        if m in DN_POLL: dn.ap.issue()
        if m in DN_CHK:
            dn.ap.check()
            k(f"s_add_u32 s{dn.sFl}, s{dn.sFl}, {8*KB}")
        if m > DN_CHK[0] and m % 2 and not (ring.can_issue() and m < UP_STOP): dn.xq.issue_n(1)
    if L == 0: ring.limit = 296 + QW_UP
    g.run(xq, look=UP_LOOK, filler=filler, misc=se, misc_from=32, skip=UP_SKIP[L])
    assert st['i'] == len(fin) and not dn.setup and ring.issued == min(ring.total, 296 + QW_UP)
    dn.xq.hold = 36 if len(DN_CHK) > 1 else 24
    for t in range(5, 7):
        for i, x in enumerate(epi(t)):
            put(x)
            if i in (4, 14): dn.xq.issue_n(1)
    mark(k, 'end')
    dn.tB = st['t']
    return dn

class Down:
    NX = 36
    def __init__(self, k, L):
        self.k = k; self.L = L
        sXa, sXb, sFl = sB, sX2, sCc
        self.sFl = sFl
        self.setup = (f"s_lshr_b32 s{sT0}, s{sDST}, 15\ns_mul_i32 s{sT1}, s{sW}, {28*KB}\ns_add_u32 s{sT1}, s{sT1}, {HF}\n"
                      f"s_mul_i32 s{sXa}, s{sT0}, {112*KB}\ns_add_u32 s{sXa}, s{sXa}, s{sT1}\n"
                      f"s_xor_b32 s{sT2}, s{sT0}, 1\ns_mul_i32 s{sXb}, s{sT2}, {112*KB}\ns_add_u32 s{sXb}, s{sXb}, s{sT1}\n"
                      f"v_and_b32 v12, 3, v0\nv_lshlrev_b32 v12, 3, v12\nv_and_b32 v13, 4, v0\nv_lshl_add_u32 v12, v13, 5, v12\n"
                      f"s_and_b32 s{sFl}, s{sT0}, 0xfe\ns_lshl_b32 s{sFl}, s{sFl}, 7\ns_lshl_b32 s{sT1}, s{sW}, 5\ns_add_u32 s{sFl}, s{sFl}, s{sT1}\n"
                      f"s_add_u32 s{sFl}, s{sFl}, {FLOC(L,2)}").split('\n')
        self.order = order = [7*c + t for t0, nt in PASSES for c in range(4) for t in range(t0, t0+nt)]
        cur = {sXa: 0, sXb: 0}
        def src(i):
            s_ = sXa if (i & 1) == 0 else sXb
            r = order[i >> 1]
            if not 0 <= r - cur[s_] < 4:
                d = (r - cur[s_]) * KB
                k(f"s_add_u32 s{s_}, s{s_}, {d}" if d > 0 else f"s_sub_u32 s{s_}, s{s_}, {-d}")
                cur[s_] = r
            return s_, (r - cur[s_]) * KB
        self.xr = lambda i: vr(144 + 4*(i % 36) if (i % 36) < 20 else 80 + 4*((i % 36) - 20))
        self.xq = XLoader(k, 56, self.xr, src)
        self.xq.hold = 12
        self.ap = apoll1(k, 12, 14, sFl)

def res_unpack(dst, v):
    o = []
    for j in range(8): o += [f"v_lshlrev_b32 v{dst+2*j}, 16, v{v+j}", f"v_and_b32 v{dst+2*j+1}, 0xffff0000, v{v+j}"]
    return o

def ph_down(k, L, ring, dn):
    vACC, vRES, vPK, vSUM = 16, 240, 240, 224
    final = L == 1
    xq = dn.xq; order = dn.order; NX = dn.NX
    if len(DN_CHK) > 1: xq.hold = 40
    SC = 108 * KB
    side = []
    for a in range(1, 4):
        side += f"s_xor_b32 s{sT0}, s{sW}, {a}\ns_mul_i32 s{sT0}, s{sT0}, {12*KB}\ns_add_u32 s{sT0}, s{sT0}, {SC + (a-1)*4*KB}\nv_add_u32 v{5+a}, s{sT0}, v{vL16}".split('\n')
    side += f"s_mul_i32 s{sT0}, s{sW}, {12*KB}\ns_add_u32 s{sT0}, s{sT0}, {SC}\nv_add_u32 v9, s{sT0}, v{vL16}".split('\n')
    if final and OUT_T:
        side += (f"s_and_b32 s{sT0}, s{sW}, 1\ns_mul_i32 s{sT0}, s{sT0}, {32*144}\ns_lshr_b32 s{sT2}, s{sW}, 1\ns_lshl_b32 s{sT2}, s{sT2}, 6\ns_add_u32 s{sT0}, s{sT0}, s{sT2}\n"
                 f"v_and_b32 v10, 31, v0\nv_mul_u32_u24 v10, 144, v10\nv_bfe_u32 v11, v0, 5, 1\nv_lshl_add_u32 v10, v11, 4, v10\nv_add_u32 v10, s{sT0}, v10\n"
                 f"s_mul_i32 s{sT0}, s{sW}, {16*144}\nv_bfe_u32 v13, v0, 3, 3\nv_mul_u32_u24 v11, 144, v13\nv_and_b32 v5, 7, v0\nv_lshl_add_u32 v11, v5, 4, v11\nv_add_u32 v11, s{sT0}, v11\n"
                 f"v_lshlrev_b32 v13, 10, v13\nv_lshl_add_u32 v13, v5, 4, v13\n"
                 f"s_and_b32 s{sT0}, s{sDST}, 0xffff0000\ns_lshl_b32 s{sT2}, s{sW}, 14\ns_add_u32 s{sT0}, s{sT0}, s{sT2}\n"
                 f"s_and_b32 s{sT2}, s{sC}, 7\ns_lshl_b32 s{sT2}, s{sT2}, 7\ns_add_u32 s{sT0}, s{sT0}, s{sT2}\ns_add_u32 s{sT2}, s{sT0}, 8192").split('\n')
    R, R0 = DN_R, DN_R0
    seq = []
    for s in range(28 - R):
        seq += [(s, a) for a in (3, 2, 1)]
        if s < 28 - R0: seq.append((s, 0))
    seq += [(s, a) for a in (3, 2, 1) for s in range(28 - R, 28)] + [(s, 0) for s in range(28 - R0, 28)]
    lo = [min(2*s_ + (a_ & 1) for s_, a_ in seq[m:]) for m in range(112)]
    wr = []; rt = None; tail = None; res = None; wb = False
    for m, (s, a) in enumerate(seq):
        r = order[s]
        if len(DN_CHK) == 1 and m == DN_CHK2:
            dn.ap.check()
            k(f"s_add_u32 s{dn.sFl}, s{dn.sFl}, {8*KB}")
            xq.hold = 40
        if m == 4*DN_PUBB: publish_local(k, dn.tB)
        if m == 4*DN_BAR:
            ring.limit = None
            ring.sync(296, 0)
        if m == 4*DN_POLLB:
            apb = dn.ap
            apb.issue()
            rt = load_res(k, vRES)
        if m == 4*DN_CHKB:
            apb.check()
            xq.hold = 56
            xq.issue_n(min(3, lo[m] + NX - xq.n))
        xi = 2*s + (a & 1)
        while xq.n <= xi:
            assert xq.n < xq.hold and xq.n < lo[m] + NX
            xq.issue_n(1)
        k.wait(vm=xq.t[xi])
        acc = vr(vACC + 16*a, 16)
        k(f"v_mfma_f32_32x32x16_bf16 {acc}, {ar(aWD + 8*r + 4*(a >> 1))}, {dn.xr(xi)}, {'0' if s == 0 else acc}")
        if m == 0: mark(k, 'm0')
        if m in GEMM_MARKS.get(G.ph, ()): mark(k, f'm{m}')
        if m % 2 == 0 and xq.n < min(lo[m] + NX, xq.total, xq.hold): xq.issue_n(1)
        elif m % 2 == 0 and xq.n == xq.total and ring.can_issue(): ring.issue()
        elif m > 4*DN_CHKB + 8:
            if res is None:
                k.wait(vm=rt); res = True
                side += res_unpack(vSUM, vRES)
            for _ in range(4):
                if side: k(side.pop(0))
        if final and WB_MASK is not None and xq.n == xq.total and k.vm_done == k.vm_issued and not wb:
            wb = True; l_ = k.newlabel('wb')
            k(f"s_lshl_b32 s{sT1}, s{sC}, 2\ns_add_u32 s{sT1}, s{sT1}, s{sW}\ns_and_b32 s{sT1}, s{sT1}, {WB_MASK}\ns_cbranch_scc1 {l_}")
            print('wbl2 at', m, file=sys.stderr)
            k("buffer_wbl2 sc1")
            k.label(l_)
        if wr and wr[0][0] <= m:
            assert not side
            for _ in range(min(DN_WR, len(wr))):
                if wr[0][0] <= m: k.lg(wr.pop(0)[1])
            if wr and DN_WR == 1: wr[0] = (max(wr[0][0], m + DN_WGAP), wr[0][1])
            if not wr and a == 0: tail = min(m + 2, 111)
        if s == 27 and a:
            wr += [(m + 2, f"ds_write_b128 v{5+a}, {vr(vACC+16*a+4*j)} offset:{j*KB}") for j in range(4)]
        if tail == m:
            k.wait_all(vm=False)
            k("s_barrier")
            tl = []
            for b in range(3):
                for j in range(4): t_ = k.lg(f"ds_read_b128 {vr(vACC+16+16*b+4*j)}, v9 offset:{b*4*KB + j*KB}")
                tl.append(t_)
            adds = []
            for b in range(3): adds += [(tl[b], f"v_add_f32 v{vSUM+i}, v{vSUM+i}, v{vACC+16+16*b+i}") for i in range(16)]
        elif tail is not None and m > tail + 1:
            for _ in range(6):
                if adds:
                    t_, x = adds.pop(0); k.wait(lg=t_); k(x)
    assert not side and not wr and tail is not None and tail < 112
    for t_, x in adds:
        k.wait(lg=t_); k(x)
    if final and not OUT_T: rowmajor_addr(k, 6, sT0)
    for j in range(8):
        k(f"v_add_f32 v{vACC+2*j}, v{vACC+2*j}, v{vSUM+2*j}\nv_add_f32 v{vACC+2*j+1}, v{vACC+2*j+1}, v{vSUM+2*j+1}")
        k(f"v_cvt_pk_bf16_f32 v{vPK+j}, v{vACC+2*j}, v{vACC+2*j+1}")
        if final and OUT_T and j in (3, 7): k.lg(f"ds_write_b128 v10, {vr(vPK+j-3)} offset:{(j >> 2)*32}")
    if final and OUT_T:
        k.wait_all(vm=False)
        k("s_barrier")
        t0 = k.lg(f"ds_read_b128 {vr(vPK)}, v11")
        t1 = k.lg(f"ds_read_b128 {vr(vPK+4)}, v11 offset:{8*144}")
        k.wait(lg=t0)
        k.vm(f"buffer_store_dwordx4 {vr(vPK)}, v13, {srd(sAUX)}, s{sT0} offen{OUT_SC}")
        k.wait(lg=t1)
        k.vm(f"buffer_store_dwordx4 {vr(vPK+4)}, v13, {srd(sAUX)}, s{sT2} offen{OUT_SC}")
    elif final:
        k.vm(f"buffer_store_dwordx4 {vr(vPK)}, v6, {srd(sAUX)}, s{sT0} offen{OUT_SC}")
        k.vm(f"buffer_store_dwordx4 {vr(vPK+4)}, v6, {srd(sAUX)}, s{sT0} offen offset:32{OUT_SC}")
    else:
        G.tx = store_x(k, vACC, vPK, L, 8, ring)
    mark(k, 'end')

def k_main(name):
    k = Asm()
    G.nst = 0
    k(f".globl {name}\n.p2align 8\n.type {name},@function")
    k.label(name)
    if STAMP: k("s_memrealtime s[42:43]")
    mark(k, 'start')
    k("s_cmp_ge_u32 s2, 256")
    k("s_cbranch_scc1 L_abort")
    k(f"s_load_dwordx2 s[{sWS}:{sWS+1}], s[0:1], 72")
    k(f"s_load_dwordx2 s[{sAUX}:{sAUX+1}], s[0:1], 56")
    k("s_load_dwordx2 s[60:61], s[0:1], 0\ns_load_dwordx4 s[64:67], s[0:1], 8\ns_load_dwordx4 s[68:71], s[0:1], 32\ns_load_dwordx2 s[72:73], s[0:1], 48")
    k("v_lshrrev_b32 v2, 6, v0")
    k(f"v_and_b32 v{vL16}, 63, v0")
    k(f"v_readfirstlane_b32 s{sW}, v2")
    k(f"v_lshlrev_b32 v{vL16}, 4, v{vL16}")
    k(f"s_mov_b32 s{sWG}, s2\ns_and_b32 s{sG}, s2, 7\ns_lshr_b32 s{sC}, s2, 3\ns_lshl_b32 s{sW1K}, s{sW}, 10")
    k(f"s_lshr_b32 s{sC4}, s{sC}, 4\ns_lshr_b32 s{sC3}, s{sC}, 3")
    k(f"s_lshl_b32 s{sU}, s{sG}, 5\ns_add_u32 s{sU}, s{sU}, s{sC}")
    k(f"s_lshl_b32 s{sW4K}, s{sW}, 12")
    k(f"s_getreg_b32 s{sXCC}, hwreg(HW_REG_XCC_ID, 0, 4)")
    k(f"v_add_u32 v{vSRC}, s{sW1K}, v{vL16}")
    k(f"s_mov_b32 s{sMSK}, 0xffff\ns_mov_b32 s{sMSK+1}, 0xffff\ns_mov_b32 s{sMODE}, 0")
    k(f"s_and_b32 s{sT0}, s{sC}, 7\ns_mul_i32 s{sSEG}, s{sT0}, {WO_STR}\ns_add_u32 s{sSEG}, s{sSEG}, {WO}")
    k(f"s_lshl_b32 s{sT1}, s{sG}, 2\ns_add_u32 s{sT1}, s{sT1}, s{sC3}\ns_lshl_b32 s{sT1}, s{sT1}, 1\ns_and_b32 s{sT2}, s{sW}, 1\ns_add_u32 s{sT1}, s{sT1}, s{sT2}")
    k(f"s_lshl_b32 s{sT1}, s{sT1}, 5\ns_lshl_b32 s{sT0}, s{sT0}, 2\ns_add_u32 s{sT1}, s{sT1}, s{sT0}\ns_and_b32 s{sT2}, s{sW}, 2\ns_add_u32 s{sT1}, s{sT1}, s{sT2}\ns_lshl_b32 s{sDST}, s{sT1}, 10")
    k(f"s_lshr_b32 s{sSD}, s{sDST}, 12\ns_lshl_b32 s{sSD}, s{sSD}, 9\ns_lshl_b32 s{sT2}, s{sT2}, 2\ns_add_u32 s{sSD}, s{sSD}, s{sT2}\ns_add_u32 s{sSD}, s{sSD}, {SX}")
    k(f"s_and_b32 s{sT0}, s{sC}, 15\ns_mul_i32 s{sSEG+1}, s{sT0}, {WU_STR}\ns_add_u32 s{sSEG+1}, s{sSEG+1}, {WU}")
    k(f"s_mul_i32 s{sSEG+2}, s{sT0}, {WQ_STR}\ns_add_u32 s{sSEG+2}, s{sSEG+2}, {WQ}")
    def late(k):
        if WSOFF: k(f"s_add_u32 s{sWS}, s{sWS}, {WSOFF}\ns_addc_u32 s{sWS+1}, s{sWS+1}, 0")
        k(f"s_add_u32 s{sT0}, s{sWS}, {EP}\ns_addc_u32 s{sT1}, s{sWS+1}, 0")
        k(f"s_load_dwordx2 s[{sTAG}:{sTAG+1}], s[{sT0}:{sT1}], 0")
        k(f"s_and_b32 s{sWS+1}, s{sWS+1}, 0xffff\ns_mov_b32 s{sWS+2}, {0x10000000 - WSOFF}\ns_mov_b32 s{sWS+3}, 0x20000")
        k(f"s_and_b32 s{sAUX+1}, s{sAUX+1}, 0xffff\ns_mov_b32 s{sAUX+2}, {2*MB}\ns_mov_b32 s{sAUX+3}, 0x20000")
    G.ph = 'qkv0'; tk = ph_qkv0(k, late)
    for L in range(2):
        ring = Ring(k, [(sSEG, 64), (sSEG+1, 232)] + ([(sSEG+2, 100)] if L == 0 else []))
        G.ph = f'att{L}'; tO = ph_att(k, L, ring, *tk)
        G.ph = f'wo{L}'; tx = ph_wo(k, L, ring, tO)
        G.ph = f'up{L}'; tB = ph_up(k, L, ring, 64, tx)
        G.ph = f'dn{L}'; ph_down(k, L, ring, tB)
        G.ph = 'qkv1'
        if L == 0: tk = ph_qkv(k, 1, ring, 296)
    k(f"s_add_u32 s{sT0}, s{sWG}, s{sW}\ns_cmp_lg_u32 s{sT0}, 0\ns_cbranch_scc1 L_fin")
    k(f"s_mov_b32 s{sF}, {EP}")
    publish_local(k, None, force_global=True)
    k.label("L_fin")
    if STAMP:
        k("s_waitcnt vmcnt(0)")
        G.ph = ''; mark(k, 'fin')
        k("s_memrealtime s[98:99]\ns_waitcnt lgkmcnt(0)")
        vals = [42, 98, sMODE] + STS[:G.nst]
        for i, s_ in enumerate(vals): k(f"v_mov_b32 v{16+i}, s{s_}")
        k(f"s_lshl_b32 s{sT0}, s{sWG}, 2\ns_add_u32 s{sT0}, s{sT0}, s{sW}\ns_lshl_b32 s{sT0}, s{sT0}, 7\ns_add_u32 s{sT0}, s{sT0}, {TS}")
        k("v_mov_b32 v4, 0\ns_mov_b64 exec, 1")
        for j in range(8): k(f"buffer_store_dwordx4 {vr(16+4*j)}, v4, {srd(sWS)}, s{sT0} offen offset:{16*j}")
        if DBG is not None:
            k(f"s_lshl_b32 s{sT0}, s{sWG}, 2\ns_add_u32 s{sT0}, s{sT0}, s{sW}\ns_cmp_lg_u32 s{sT0}, {DBG}\ns_cbranch_scc1 L_nodbg")
            k("s_load_dwordx2 s[64:65], s[0:1], 64\ns_waitcnt lgkmcnt(0)")
            for i in range(16): k(f"v_sub_u32 v{64+i}, v{20+i}, v19")
            for j in range(4): k(f"global_store_dwordx4 v4, {vr(64+4*j)}, s[64:65] offset:{16*j}")
            k.label("L_nodbg")
    k("s_waitcnt vmcnt(0)")
    k.label("L_abort")
    k("s_endpgm")
    for x in G.far:
        if x.endswith(':'): k.label(x[:-1])
        else: k(x)
    k(".fill 8448, 4, 0xbf800000")
    return k

def build():
    name = NAME + "_kernel"
    k = k_main(name)
    nn = k.fix()
    print(f"{len(k.L)} lines, {nn} nop states", file=sys.stderr)
    return f"""; stamps: {','.join(G.names)}
; @launch grid=(256,1,1) block=(256,1,1) lds={160*KB}
.amdgcn_target "amdgcn-amd-amdhsa--gfx950"
.text
{k.text()}
.section .rodata,"a"
.p2align 6
.amdhsa_kernel {name}
  .amdhsa_next_free_vgpr 512
  .amdhsa_next_free_sgpr 102
  .amdhsa_accum_offset 256
  .amdhsa_group_segment_fixed_size 0
  .amdhsa_kernarg_size 80
  .amdhsa_user_sgpr_count 2
  .amdhsa_user_sgpr_kernarg_segment_ptr 1
  .amdhsa_system_sgpr_workgroup_id_x 1
.end_amdhsa_kernel
"""

if __name__ == "__main__":
    for a in sys.argv[2:]:
        kk_, vv_ = a.split('=', 1)
        globals()[kk_] = eval(vv_)
    open(sys.argv[1], "w").write(build())
```

```python
import sys, struct
from asmlib import Asm

NAME = "interleave_layers__mha_block__glu_gated_bilinear__prompt"
KB = 1024; MB = KB * KB
LOG2E = 1.4426950408889634
def f2u(x): return struct.unpack('<I', struct.pack('<f', x))[0]
def srd(b): return f"s[{b}:{b+3}]"
def vr(b, n=4): return f"v[{b}:{b+n-1}]"
def ar(b, n=4): return f"a[{b}:{b+n-1}]"

WQ = 0;                    WQ_STR = 100 * KB
WO = WQ + 16 * WQ_STR;     WO_STR = 64 * KB
WU = WO + 8 * WO_STR;      WU_STR = 232 * KB
WD = WU + 16 * WU_STR
FL = 7 * MB + 640 * KB
assert WD + 16 * 112 * KB <= FL
EP = FL
XID = FL + 1 * KB
def FLOC(L, p): return FL + 4 * KB + (L * 9 + p) * 8 * KB
FKV0 = FL + 4 * KB + 18 * 8 * KB
def FKV(L): return FKV0 + L * 32 * KB
FPK = FKV0 + 64 * KB
assert FPK + 32 * KB <= 8 * MB
XF = 8 * MB
HF = 10 * MB
QF = HF
SX = 17 * MB
def KVF(L): return 18 * MB + L * 4 * MB
WS_PAGES = 13
TS = 27 * MB
DUMP = 0x7ff00000

STAMP = False
PADTO = 0
OUT_T = False
ATT_NT = 2
PK_WIN2 = False; PK_SP = 0
WARM_AT = 1
RT = False
DN_CHK2 = 4
CT_AT = 92
FORCE_FB = False
WB_MASK = None; OUT_SC = ''; DN_WR = 1; DN_WGAP = 2
QW_LATE = False; QW_UP = 64; QW_TOUCH = (72, 100); QW_N1 = 4
PK_Q0 = False; PK_RD = 1; PK_ST = 3; CHK_Q0 = 15
WO_STOP = 26; WO_R0 = 8; WO_N0 = 10; ST_PRE = 2; PPOLL = 0; KV_PF = (0, 0); PK_EARLY = True
FL_TOUCH = False
SPLIT_ST = True
FINE = False
UP_EPI = 2; UP_PUB = (154, 206); DN_POLL = (172, 226); DN_CHK = (186,); UP_LOOK = 8; UP_SYNCS = {0, 48, 80, 112, 144, 176, 200}; UP_SKIP = (0, 0); UP_STOP = 222
DN_PUBB = 4; DN_BAR = 14; DN_POLLB = 7; DN_CHKB = 12; DN_R = 8; DN_R0 = 12
FLAG_TOUCH = False
WSOFF = 0
SLEEP1 = (0, 0); SLEEP2 = 0; SLEEP3 = 0
DBG = None
PRE = 4; PRE2 = 4
PRE_WO = 4; PRE_WO2 = 4
CODE_TOUCH = True
WD_SLOTS = (2, 4, 6)
TOUCH_AT = (98, 68); TOUCH_STEP = 16; TOUCH_KBS = (64, 128)
RING = 144
PK_T0 = 7; PK_GAP = 6; PK_GAP2 = 11; CHK_GAP = 18
P2_AT = 6
TACT_AT = 102

sC4, sC3 = 2, 3
sWS, sAUX = 4, 8
sW, sG, sC, sW1K = 12, 13, 14, 15
sT0, sT1, sT2, sT3 = 16, 17, 18, 19
sX, sRS, sRB = 20, 21, 22
sA, sB, sCc, sD, sE = 23, 24, 25, 26, 27
sS0, sS1 = 28, 21
sMSK, sTAG, sMODE, sXCC = 30, 32, 34, 35
sSEG = 36
sX2 = 39
sSPIN, sF = 40, 41
STS = list(range(44, 56, 2)) + [92, 94, 56, 58, 74, 76, 80, 82, 86, 88, 60, 62]
sWG = 101
sW4K = 97
sSD = 29
sPC, sCT = 90, 85
sDST = 100
vL16, vSRC, vB = 1, 2, 3
aWD, aWB = 0, 224

class G:
    nst = 0
    names = []
    far = []
    ph = ''
SKIP = ''
ATT_MARKS = ()
GEMM_MARKS = {}
def mark(k, nm='x'):
    import re
    nm = G.ph + '_' + nm
    if SKIP and re.match(SKIP, nm): return
    if '_f_' in nm and not FINE: return
    if STAMP:
        G.names.append(nm)
        k(f"s_mem{'real' if RT else ''}time s[{STS[G.nst]}:{STS[G.nst]+1}]")
        G.nst += 1

class Ring:
    def __init__(self, k, segs):
        self.k = k; self.N = RING
        self.total = sum(n for _, n in segs)
        self.starts = {}
        b = 0
        for s, n in segs:
            assert n % 4 == 0
            self.starts[b] = s; b += n
        self.issued = 0; self.freed = 0; self.visible = 0
        self.limit = None
        self.tick = {}
    def can_issue(self):
        if self.limit is not None and self.issued + 4 > self.limit: return False
        return self.issued < self.total and self.issued + 4 <= self.freed + self.N
    def issue(self):
        k = self.k
        assert self.can_issue()
        slot = self.issued % self.N
        k(f"s_add_u32 m0, s{sW1K}, {slot*KB}")
        if self.issued in self.starts: k(f"s_mov_b32 s{sRS}, s{self.starts[self.issued]}")
        else: k(f"s_add_u32 s{sRS}, s{sRS}, 4096")
        self.tick[self.issued // 4] = k.vm(f"buffer_load_dwordx4 v{vSRC}, {srd(sWS)}, s{sRS} offen sc1 lds")
        self.issued += 4
    def issue16(self):
        k = self.k
        b = self.issued; slot = b % self.N
        assert slot + 16 <= self.N and b + 16 <= min(self.limit or 1 << 30, self.freed + self.N)
        assert not any(x in self.starts for x in range(b + 1, b + 16))
        k(f"s_add_u32 m0, s{sW4K}, {slot*KB}")
        if b in self.starts: k(f"s_add_u32 s{sRS}, s{self.starts[b]}, s{sW4K}")
        else: k(f"s_add_u32 s{sRS}, s{sRS}, 16384")
        for i in range(4):
            t = k.vm(f"buffer_load_dwordx4 v{vL16}, {srd(sWS)}, s{sRS} offen offset:{i*KB} sc1 lds")
        for q in range(4): self.tick[b // 4 + q] = t
        self.issued += 16
    def end16(self):
        self.k(f"s_sub_u32 s{sRS}, s{sRS}, s{sW4K}\ns_add_u32 s{sRS}, s{sRS}, 12288")
    def issue_n(self, n):
        for _ in range(n):
            if self.can_issue(): self.issue()
    def sync(self, consumed, need):
        k = self.k
        need = min(need, self.total)
        if need > self.visible:
            q = (need - 1) // 4
            assert q * 4 < self.issued, (need, self.issued)
            k.wait(vm=self.tick[q])
        k("s_barrier")
        q = self.visible // 4
        while q in self.tick and self.tick[q] <= k.vm_done: q += 1
        self.visible = q * 4
        assert self.visible >= need
        self.freed = max(self.freed, (consumed // 4) * 4)
    def addr(self, b): return (b % self.N) * KB

def set_lds_bases(k, extra_s=None):
    if extra_s is None: k(f"v_mov_b32 v{vB}, v{vL16}")
    else: k(f"v_add_u32 v{vB}, s{extra_s}, v{vL16}")
    k(f"v_add_u32 v{vB+1}, 0x10000, v{vB}")
    k(f"v_add_u32 v{vB+2}, 0x20000, v{vB}")

class XLoader:
    def __init__(self, k, total, reg, src):
        self.k = k; self.total = total; self.reg = reg; self.src = src; self.n = 0; self.t = []
        self.hold = total
    def issue_n(self, n):
        k = self.k
        for _ in range(n):
            i = self.n
            if i >= min(self.total, self.hold): return
            s_, imm = self.src(i)
            self.t.append(k.vm(f"buffer_load_dwordx4 {self.reg(i)}, v{vL16}, {srd(sWS)}, s{s_} offen offset:{imm} sc1"))
            self.n += 1
def lin_src(k):
    def f(i):
        if i and (i & 3) == 0: k(f"s_add_u32 s{sX}, s{sX}, 4096")
        return sX, (i & 3) * KB
    return f

class Gemm:
    def __init__(self, k, ring, ops, syncs, D=4, NB=8, stop_issue=None):
        self.k = k; self.ring = ring; self.ops = ops; self.syncs = sorted(syncs)
        assert all(x % 2 == 0 for x in syncs)
        self.D = D; self.NB = NB; self.tl = {}; self.nread = 0
        self.stop = stop_issue if stop_issue is not None else len(ops)
    def rd(self):
        k = self.k; m = self.nread; o = self.ops[m]
        assert o['bmax'] < self.ring.visible, (m, o['b'], self.ring.visible)
        a = self.ring.addr(o['b'])
        self.tl[m] = k.lg(f"ds_read_b128 {ar(aWB + 4*(m % self.NB))}, v{vB + (a >> 16)} offset:{a & 0xffff}")
        self.nread += 1
    def need_until(self, m):
        M = len(self.ops)
        nxt = [s for s in self.syncs if s > m]
        last = min((nxt[0] if nxt else M) - 1 + self.D, M - 1)
        return max(o['bmax'] for o in self.ops[:last+1]) + 1
    def start(self):
        self.ring.sync(self.ops[0]['bmin'], self.need_until(0))
        while self.nread < min(self.D, len(self.ops)): self.rd()
    def run(self, xq, n0=6, look=10, filler=None, misc=(), misc_from=0, skip=0):
        k = self.k; M = len(self.ops)
        misc = list(misc)
        xq.issue_n(n0)
        cur = 0
        for m in range(M):
            if m in self.syncs and m > 0:
                self.ring.sync(self.ops[m]['bmin'], self.need_until(m))
            o = self.ops[m]
            xt = None
            if m % 2 == 0:
                xs = [p['xi'] for p in self.ops[m:m+2] if p.get('xi') is not None]
                if xs:
                    cur = max(cur, max(xs))
                    while xq.n <= max(xs): xq.issue_n(1)
                    xt = xq.t[max(xs)]
                k.wait(vm=xt, lg=self.tl[min(m + 1, M - 1)])
            w = ar(aWB + 4*(m % self.NB))
            c = o.get('c0', '0') if o['first'] else o['acc']
            A, B = (o['x'], w) if o['swap'] else (w, o['x'])
            k(f"v_mfma_f32_32x32x16_bf16 {o['acc']}, {A}, {B}, {c}")
            if m == 0: mark(k, 'm0')
            if m in GEMM_MARKS.get(G.ph, ()): mark(k, f'm{m}')
            if m % 2 == 0:
                for _ in range(2):
                    if self.nread < M: self.rd()
            elif not (skip and m % skip == skip - 1):
                rok = m < self.stop and self.ring.can_issue()
                if xq.n < xq.total and (xq.n - cur < look or not (rok or (misc and m >= misc_from))): xq.issue_n(1)
                elif misc and m >= misc_from: misc.pop(0)()
                elif rok: self.ring.issue()
            if filler: filler(m)
        assert not misc

def stats_emitters(k, vt, res):
    k(f"s_lshl_b32 s{sS0}, s{sRB}, 12\ns_add_u32 s{sS0}, s{sS0}, {SX}")
    def mk(i):
        def f(): res['t'] = k.vm(f"buffer_load_dwordx4 {vr(vt+4*i)}, v{vL16}, {srd(sWS)}, s{sS0} offen offset:{i*KB} sc1")
        return f
    return [mk(i) for i in range(4)]

NTREE = 14
def fin_stats(vt, vext, vrstd):
    ins = []
    n = 8
    while n > 1:
        h = n // 2
        for i in range(h):
            ins.append(f"v_add_f32 v{vt+2*i}, v{vt+2*i}, v{vt+2*(i+h)}")
            ins.append(f"v_add_f32 v{vt+2*i+1}, v{vt+2*i+1}, v{vt+2*(i+h)+1}")
        n = h
    a, b, c, d = vt, vt+1, vt+2, vt+3
    ins += [f"v_mov_b32 v{c}, v{a}", f"v_mov_b32 v{d}, v{b}",
            f"v_permlane32_swap_b32 v{a}, v{c}", f"v_permlane32_swap_b32 v{b}, v{d}",
            f"v_add_f32 v{a}, v{a}, v{c}", f"v_add_f32 v{b}, v{b}, v{d}",
            f"v_mul_f32 v{a}, {hex(f2u(-1.0/512))}, v{a}",
            f"v_mul_f32 v{b}, {hex(f2u(1.0/512))}, v{b}",
            f"v_fma_f32 v{b}, -v{a}, v{a}, v{b}",
            f"v_max_f32 v{b}, 0, v{b}",
            f"v_add_f32 v{b}, {hex(f2u(1e-5))}, v{b}",
            f"v_rsq_f32 v{vrstd}, v{b}",
            f"v_cvt_pk_bf16_f32 v{vext}, v{a}, v{a}",
            f"v_and_b32 v{c}, 0xffff0000, v{vext}",
            f"v_sub_f32 v{c}, v{a}, v{c}",
            f"v_cvt_pk_bf16_f32 v{vext+1}, v{c}, 0",
            f"v_mov_b32 v{vext+2}, v{vext}", f"v_mov_b32 v{vext+3}, v{vext+1}"]
    return ins

def poll(k, vaddr, vpd, sleep=0):
    l = k.newlabel('poll')
    k(f"s_mov_b32 s{sSPIN}, 0x40000")
    k.label(l)
    k.vm(f"buffer_load_dwordx2 {vr(vpd,2)}, v{vaddr}, {srd(sWS)}, s{sF} offen sc1")
    k(f"s_sub_u32 s{sSPIN}, s{sSPIN}, 1")
    k("s_cbranch_scc1 L_abort")
    k.wait_all(lg=False)
    k(f"v_cmp_ne_u64 vcc, s[{sTAG}:{sTAG+1}], {vr(vpd,2)}")
    k(f"s_cbranch_vccnz {l}")
class APoll:
    def __init__(self, k, loads, cmp, sleep=0):
        self.k = k; self.loads = loads; self.cmp = cmp; self.sleep = sleep
    def issue(self):
        for x in self.loads: self.t = self.k.vm(x)
    def check(self):
        k = self.k
        l = k.newlabel('ap'); ok = k.newlabel('apok')
        k.wait(vm=self.t)
        k(self.cmp)
        k(f"s_cbranch_vccnz {l}")
        k.label(ok)
        G.far += [f"{l}:", f"s_mov_b32 s{sSPIN}, 0x40000", f"{l}_l:"] + list(self.loads) + [
            f"s_sub_u32 s{sSPIN}, s{sSPIN}, 1", "s_cbranch_scc1 L_abort", "s_waitcnt vmcnt(0)", self.cmp,
            f"s_cbranch_vccnz {l}_l", f"s_branch {ok}"]
def apoll1(k, vaddr, vpd, soff, sleep=0):
    return APoll(k, [f"buffer_load_dwordx2 {vr(vpd,2)}, v{vaddr}, {srd(sWS)}, s{soff} offen sc1"],
                 f"v_cmp_ne_u64 vcc, s[{sTAG}:{sTAG+1}], {vr(vpd,2)}", sleep)
def poll16(k):
    k("v_and_b32 v13, 15, v0\nv_lshlrev_b32 v13, 3, v13")
    poll(k, 13, 14)

def publish_local(k, last_store, force_global=False):
    k(f"v_mov_b32 v14, s{sTAG}\nv_mov_b32 v15, s{sTAG+1}")
    if force_global:
        k.wait(vm=last_store)
        k.vm(f"buffer_store_dwordx2 v[14:15], off, {srd(sWS)}, s{sF} sc1")
        return
    slow = k.newlabel('slow'); join = k.newlabel('join')
    k(f"s_cmp_eq_u32 s{sMODE}, 0")
    k(f"s_cbranch_scc1 {slow}")
    k.wait(vm=last_store)
    k.vm(f"buffer_store_dwordx2 v[14:15], off, {srd(sWS)}, s{sF}")
    k.label(join)
    G.far += [f"{slow}:", "s_waitcnt vmcnt(0)", "buffer_wbl2 sc1", "s_waitcnt vmcnt(0)",
              f"buffer_store_dwordx2 v[14:15], off, {srd(sWS)}, s{sF} sc1", f"s_branch {join}"]
def publish_wg(k, last_store, xid=False, barrier=True):
    l = k.newlabel('pw')
    k(f"v_mov_b32 v13, 0\nv_mov_b32 v14, s{sTAG}\nv_mov_b32 v15, s{sTAG+1}")
    k.wait(vm=last_store)
    if barrier: k("s_barrier")
    k(f"s_cmp_lg_u32 s{sW}, 0\ns_cbranch_scc1 {l}")
    k("s_mov_b64 exec, 1")
    if xid:
        k(f"v_xor_b32 v12, s{sXCC}, v14\nv_mov_b32 v13, v15")
        k(f"buffer_store_dwordx4 v[12:15], v{vL16}, {srd(sWS)}, s{sF} offen sc1")
    else:
        k(f"buffer_store_dwordx2 v[14:15], v13, {srd(sWS)}, s{sF} offen sc1")
    k("s_mov_b64 exec, -1")
    k.label(l)

def rb_128(k):
    k(f"s_lshl_b32 s{sT0}, s{sC4}, 2\ns_lshl_b32 s{sRB}, s{sG}, 3\ns_add_u32 s{sRB}, s{sRB}, s{sT0}\ns_add_u32 s{sRB}, s{sRB}, s{sW}")

def store_x(k, acc, pk, L, p, ring=None):
    k(f"s_add_u32 s{sT1}, s{sDST}, {XF}")
    k.vm(f"buffer_store_dwordx4 {vr(pk)}, v{vL16}, {srd(sWS)}, s{sT1} offen")
    td = k.vm(f"buffer_store_dwordx4 {vr(pk+4)}, v{vL16}, {srd(sWS)}, s{sT1} offen offset:1024")
    k(f"v_add_f32 v10, v{acc}, v{acc+1}\nv_mul_f32 v11, v{acc}, v{acc}\nv_add_f32 v8, v{acc+2}, v{acc+3}\nv_mul_f32 v9, v{acc+1}, v{acc+1}")
    k(f"v_fmac_f32 v11, v{acc+2}, v{acc+2}\nv_fmac_f32 v9, v{acc+3}, v{acc+3}")
    for i in range(4, 16, 2):
        k(f"v_add_f32 v10, v10, v{acc+i}\nv_fmac_f32 v11, v{acc+i}, v{acc+i}\nv_add_f32 v8, v8, v{acc+i+1}\nv_fmac_f32 v9, v{acc+i+1}, v{acc+i+1}")
        if ring and i in (4, 10): ring.issue_n(ST_PRE)
    k("v_add_f32 v10, v10, v8\nv_add_f32 v11, v11, v9\nv_mov_b32 v8, v10\nv_mov_b32 v9, v11")
    k("v_permlane32_swap_b32 v10, v8\nv_permlane32_swap_b32 v11, v9\nv_add_f32 v10, v10, v8\nv_add_f32 v11, v11, v9")
    k("s_mov_b32 exec_hi, 0")
    ts = k.vm(f"buffer_store_dwordx2 v[10:11], v{vL16}, {srd(sWS)}, s{sSD} offen")
    k("s_mov_b64 exec, -1")
    k(f"s_lshr_b32 s{sF}, s{sDST}, 8\ns_add_u32 s{sF}, s{sF}, {FLOC(L, p)}")
    if SPLIT_ST:
        publish_local(k, td)
        k(f"s_add_u32 s{sF}, s{sF}, {FLOC(L, 6 if p == 1 else 7) - FLOC(L, p)}")
    return ts
def stats_poll(k, delta):
    if not SPLIT_ST: return []
    k(f"s_add_u32 s{sF}, s{sF}, {delta}")
    ap = apoll1(k, 13, 14, sF)
    return ap

def rowmajor_addr(k, va, s_out):
    k(f"v_and_b32 v{va}, 31, v0\nv_lshlrev_b32 v{va}, 10, v{va}\nv_bfe_u32 v{va+1}, v0, 5, 1\nv_lshlrev_b32 v{va+1}, 4, v{va+1}\nv_add_u32 v{va}, v{va}, v{va+1}")
    k(f"s_and_b32 s{s_out}, s{sDST}, 0xffff8000\ns_bfe_u32 s{sT3}, s{sDST}, 0x5000a\ns_lshl_b32 s{sT3}, s{sT3}, 5\ns_add_u32 s{s_out}, s{s_out}, s{sT3}")

sU = 96
def pack_decode(k):
    nm = "pk"; u = f"s{sU}"
    k(f"s_min_u32 s83, {u}, 231")
    u = "s83"
    k(f"s_and_b32 s90, s{sW}, 1\ns_lshr_b32 s91, s{sW}, 1")
    k(f"s_cmp_lt_u32 {u}, 48\ns_cbranch_scc1 {nm}_q")
    k(f"s_cmp_lt_u32 {u}, 160\ns_cbranch_scc1 {nm}_u")
    k(f"s_cmp_lt_u32 {u}, 176\ns_cbranch_scc1 {nm}_o")
    k(f"s_sub_u32 s84, {u}, 176\ns_lshl_b32 s84, s84, 2\ns_add_u32 s84, s84, s{sW}")
    k("s_and_b32 s85, s84, 15\ns_lshr_b32 s86, s84, 4")
    k("s_lshl_b32 s87, s85, 6")
    k("s_add_u32 s74, s72, s87\ns_addc_u32 s75, s73, 0\ns_mov_b32 s76, s74\ns_mov_b32 s77, s75")
    k("s_mov_b32 s78, 1024\ns_lshl_b32 s79, s86, 7")
    k(f"s_mul_i32 s80, s85, 14\ns_add_u32 s80, s80, s86\ns_lshl_b32 s80, s80, 13\ns_add_u32 s80, s80, {WD}\ns_mov_b32 s81, 1024\ns_mov_b32 s82, {DUMP}")
    k(f"s_branch {nm}_go")
    k.label(f"{nm}_o")
    k(f"s_sub_u32 s85, {u}, 160\ns_lshr_b32 s88, s85, 3\ns_and_b32 s85, s85, 7")
    k("s_lshl_b32 s87, s85, 1\ns_add_u32 s87, s87, s90\ns_lshl_b32 s87, s87, 6")
    k("s_add_u32 s74, s66, s87\ns_addc_u32 s75, s67, 0\ns_mov_b32 s76, s74\ns_mov_b32 s77, s75")
    k("s_mov_b32 s78, 1024\ns_lshl_b32 s79, s88, 1\ns_add_u32 s79, s79, s91\ns_lshl_b32 s79, s79, 7")
    k("s_lshl_b32 s89, s91, 15\ns_xor_b32 s90, s90, s88\ns_lshl_b32 s88, s88, 1\ns_add_u32 s90, s90, s88\ns_lshl_b32 s90, s90, 10")
    k(f"s_mul_i32 s80, s85, {WO_STR}\ns_add_u32 s80, s80, s89\ns_add_u32 s80, s80, s90\ns_add_u32 s80, s80, {WO}")
    k(f"s_mov_b32 s81, 4096\ns_mov_b32 s82, {DUMP}")
    k(f"s_branch {nm}_go")
    k.label(f"{nm}_u")
    k(f"s_sub_u32 s85, {u}, 48\ns_mul_i32 s84, s85, 2341\ns_lshr_b32 s84, s84, 16\ns_mul_i32 s86, s84, 28\ns_sub_u32 s85, s85, s86")
    k(f"s_lshl_b32 s85, s85, 2\ns_add_u32 s85, s85, s{sW}\ns_lshl_b32 s87, s85, 5")
    k("s_add_u32 s74, s68, s87\ns_addc_u32 s75, s69, 0")
    k("s_add_u32 s76, s70, s87\ns_addc_u32 s77, s71, 0\ns_sub_u32 s76, s76, 32\ns_subb_u32 s77, s77, 0")
    k("s_mov_b32 s78, 3584")
    k("s_mul_i32 s86, s85, 9363\ns_lshr_b32 s86, s86, 16\ns_mul_i32 s88, s86, 7\ns_sub_u32 s88, s85, s88")
    k(f"s_mul_i32 s91, s86, {WU_STR}\ns_add_u32 s91, s91, {WU}\ns_lshl_b32 s89, s88, 10\ns_add_u32 s91, s91, s89")
    k(f"s_cmp_lt_u32 s88, 5\ns_cselect_b32 s89, 3, 5\ns_lshl_b32 s89, s89, 15")
    k(f"s_cmp_lt_u32 s88, 3\ns_cselect_b32 s81, 3, 2\ns_cselect_b32 s89, 0, s89\ns_lshl_b32 s81, s81, 10\ns_add_u32 s91, s91, s89")
    k(f"s_branch {nm}_ext")
    k.label(f"{nm}_q")
    k(f"s_cmp_ge_u32 {u}, 24\ns_cselect_b32 s84, 2, 0\ns_cselect_b32 s86, 24, 0\ns_add_u32 s84, s84, s91\ns_sub_u32 s85, {u}, s86")
    k("s_lshl_b32 s85, s85, 1\ns_add_u32 s85, s85, s90\ns_and_b32 s86, s85, 15\ns_lshr_b32 s88, s85, 4")
    k("s_lshl_b32 s87, s85, 6\ns_lshl_b32 s89, s88, 10")
    k("s_add_u32 s74, s64, s87\ns_addc_u32 s75, s65, 0\ns_mov_b32 s76, s74\ns_mov_b32 s77, s75")
    k("s_mov_b32 s78, 3072")
    k(f"s_sub_u32 s89, s89, 1024\ns_cmp_eq_u32 s88, 0\ns_cselect_b32 s89, {66*KB}, s89\ns_cselect_b32 s81, 1, 2\ns_lshl_b32 s81, s81, 10")
    k(f"s_mul_i32 s91, s86, {WQ_STR}\ns_add_u32 s91, s91, s89\ns_add_u32 s91, s91, {WQ}")
    k.label(f"{nm}_ext")
    k("s_lshl_b32 s79, s84, 7")
    k("s_lshl_b32 s89, s81, 5\ns_add_u32 s82, s91, s89\ns_lshr_b32 s89, s84, 1\ns_lshl_b32 s89, s89, 9\ns_add_u32 s82, s82, s89")
    k("s_and_b32 s89, s84, 1\ns_lshl_b32 s89, s89, 3\ns_add_u32 s82, s82, s89")
    k("s_lshl_b32 s89, s81, 3\ns_mul_i32 s89, s89, s84\ns_add_u32 s80, s91, s89")
    k.label(f"{nm}_go")
    k(f"s_cmp_ge_u32 s{sU}, 232\ns_cselect_b32 s80, {DUMP}, s80")
    k("v_bfe_u32 v4, v0, 2, 4\nv_add_u32 v4, s79, v4\nv_mul_lo_u32 v4, v4, s78")
    k("v_and_b32 v13, 3, v0\nv_lshlrev_b32 v13, 4, v13\nv_add_u32 v4, v4, v13")
    k(f"s_lshl_b32 s83, s78, 4")
    if PK_Q0: k(f"s_lshl_b32 s84, s{sW}, 13\ns_add_u32 s84, s84, {64*KB}")
    elif PK_EARLY: k(f"s_lshl_b32 s84, s{sW}, 13\ns_add_u32 s84, s84, {4*KB}")
    else: k(f"s_lshl_b32 s84, s{sW}, 14\ns_add_u32 s84, s84, {96*KB}")
    k("s_mov_b32 s86, s83\ns_mov_b32 s87, 0")
    k("v_and_b32 v13, 2, v0\nv_cmp_eq_u32 vcc, 0, v13")
    k("v_mov_b32 v14, s76\nv_mov_b32 v13, s74\nv_cndmask_b32 v14, v14, v13, vcc\nv_mov_b32 v15, s77\nv_mov_b32 v13, s75\nv_cndmask_b32 v15, v15, v13, vcc")
    k("v_add_co_u32 v4, vcc, v4, v14\nv_addc_co_u32 v5, vcc, 0, v15, vcc")
def pack_issue(k, i, sbase):
    k(f"s_add_u32 m0, s{sbase}, {i*KB}")
    if i: k("v_lshl_add_u64 v[4:5], v[4:5], 0, s[86:87]")
    return k.vm("global_load_lds_dwordx4 v[4:5], off")
def tr_addr(k, v, t):
    k(f"v_bfe_u32 v{v}, v0, 5, 1\nv_lshlrev_b32 v{v}, 9, v{v}")
    k(f"v_bfe_u32 v{t}, v0, 2, 2\nv_lshlrev_b32 v{t}, 6, v{t}\nv_add_u32 v{v}, v{v}, v{t}")
    k(f"v_bfe_u32 v{t}, v0, 4, 1\nv_lshlrev_b32 v{t}, 5, v{t}\nv_add_u32 v{v}, v{v}, v{t}")
    k(f"v_and_b32 v{t}, 1, v0\nv_lshlrev_b32 v{t}, 4, v{t}\nv_add_u32 v{v}, v{v}, v{t}")
    k(f"v_bfe_u32 v{t}, v0, 1, 1\nv_lshlrev_b32 v{t}, 3, v{t}\nv_add_u32 v{v}, v{v}, v{t}")
def ext_pair(src, dst, t0):
    return [f"v_mov_b32 v{t0}, v{src}", f"v_permlane32_swap_b32 v{src}, v{t0}", f"v_add_f32 v{src}, v{src}, v{t0}",
            f"v_cvt_pk_bf16_f32 v{dst+1}, v{src}, 0", f"v_lshlrev_b32 v{t0}, 16, v{dst+1}", f"v_sub_f32 v{src}, v{src}, v{t0}",
            f"v_cvt_pk_bf16_f32 v{dst}, v{t0}, v{src}"]
class Pack:
    def __init__(self, k): self.k = k; self.r = {}
    def issue(self, *ii):
        for i in ii: self.d = pack_issue(self.k, i, 84)
    def reads(self, *ii):
        k = self.k
        if ii[0] == 0:
            k("v_accvgpr_read_b32 v4, a212")
            k.wait(vm=self.d)
        for i in ii:
            k.lg(f"ds_read_b64_tr_b16 {ar(160+4*i,2)}, v4 offset:{i*KB}")
            self.r[i] = k.lg(f"ds_read_b64_tr_b16 {ar(162+4*i,2)}, v4 offset:{i*KB+256}")
    def csum(self, i):
        self.k.wait(lg=self.r[i])
        self.k(f"v_mfma_f32_32x32x16_bf16 {ar(196,16)}, {ar(192)}, {ar(160+4*i)}, {'0' if i == 0 else ar(196,16)}")
    def stores(self, *ii):
        k = self.k
        k.wait(lg=self.r[ii[-1]])
        for i in ii:
            k.vm(f"buffer_store_dwordx4 {ar(160+4*i)}, v{vL16}, {srd(sWS)}, s80 offen sc1")
            k("s_add_u32 s80, s80, s81")
    def ext(self):
        k = self.k
        k("v_accvgpr_read_b32 v13, a196")
        k("v_cvt_pk_bf16_f32 v15, v13, 0\nv_lshlrev_b32 v14, 16, v15\nv_sub_f32 v13, v13, v14\nv_cvt_pk_bf16_f32 v14, v14, v13")
        k("s_mov_b32 exec_hi, 0")
        self.s = k.vm(f"buffer_store_dwordx2 v[14:15], v{vL16}, {srd(sWS)}, s82 offen sc1")
        k("s_mov_b64 exec, -1")
    def pub(self):
        k = self.k
        k(f"s_lshl_b32 s{sF}, s{sU}, 7\ns_add_u32 s{sF}, s{sF}, {FPK}")
        publish_wg(k, self.s, xid=True)
    def schedule(self, job):
        t = PK_T0
        if not PK_EARLY:
            for i in range(4): job(t + i, lambda i=i: self.issue(2*i, 2*i+1))
            t += 4 + PK_GAP
        if PK_WIN2:
            job(t, self.pub)
            return t
        if PK_EARLY and PK_SP:
            for i in range(8): job(t + PK_SP*i, lambda i=i: self.stores(i))
            job(t + 8*PK_SP, self.ext)
            job(t + 8*PK_SP + PK_GAP2, self.pub)
            return t + 8*PK_SP + PK_GAP2
        if PK_EARLY:
            for i in range(4): job(t + i, lambda i=i: self.stores(2*i, 2*i+1))
            job(t + 4, self.ext)
            job(t + 4 + PK_GAP2, self.pub)
            return t + 4 + PK_GAP2
        job(t, lambda: self.reads(0, 1, 2, 3)); job(t + 1, lambda: self.reads(4, 5, 6, 7))
        for i in range(4):
            job(t + 2 + i, lambda i=i: self.stores(2*i, 2*i+1))
            job(t + 1 + i, lambda i=i: self.csum(2*i), e=14)
            job(t + 2 + i, lambda i=i: self.csum(2*i+1), e=0)
        job(t + 6, self.ext)
        job(t + 6 + PK_GAP2, self.pub)
        return t + 6 + PK_GAP2
def qkv_consts(vT, vRS, vR):
    return [f"v_cvt_pk_bf16_f32 v{vT}, v{vRS}, 0", f"v_lshlrev_b32 v{vT+1}, 16, v{vT}", f"v_sub_f32 v{vT+2}, v{vRS}, v{vT+1}",
            f"v_cvt_pk_bf16_f32 v{vT}, v{vT+1}, v{vT+2}", f"v_mov_b32 v{vT+1}, 0", f"v_mov_b32 v{vT+2}, 0", f"v_mov_b32 v{vT+3}, 0",
            f"v_cmp_gt_u32 vcc, 512, v{vL16}", f"v_mov_b32 v{vT+4}, 0x3f803f80", f"v_cndmask_b32 v{vT+4}, 0, v{vT+4}, vcc",
            f"v_mov_b32 v{vT+5}, 0", f"v_mov_b32 v{vT+6}, 0", f"v_mov_b32 v{vT+7}, 0",
            f"v_mul_f32 v{vRS+1}, {hex(f2u(0.25*LOG2E))}, v{vRS}",
            "v_bfe_u32 v12, v0, 4, 1", "v_lshlrev_b32 v12, 17, v12", "v_and_b32 v13, 15, v0", "v_lshlrev_b32 v13, 4, v13", "v_add_u32 v12, v12, v13",
            "v_bfe_u32 v13, v0, 5, 1", "v_lshlrev_b32 v13, 8, v13", "v_add_u32 v12, v12, v13",
            f"v_mfma_f32_32x32x16_bf16 {vr(vR,16)}, {vr(vT)}, {vr(vT+4)}, 0"]
def qk_tile(a, dst, sc, fl, p0):
    o = []
    sb, hs = (sB, KB) if dst == QF else (sCc, 128*KB)
    for half in range(2):
        p = p0 + 4*half
        for j in range(4):
            r = a + 8*half + 2*j
            o += [f"v_mul_f32 v{r}, v{r}, v{sc}", f"v_mul_f32 v{r+1}, v{r+1}, v{sc}", f"v_cvt_pk_bf16_f32 v{p+j}, v{r}, v{r+1}"]
        o += [f"s_add_u32 s{sT2}, s{sb}, {dst + half*hs}", f"buffer_store_dwordx4 {vr(p)}, v{vL16}, {srd(sWS)}, s{sT2} offen{fl}"]
    return o
def v_tile(a, L, vR, p0):
    o = [f"s_add_u32 s{sT2}, s{sCc}, {KVF(L) + KB}"]
    for u in range(2):
        p = p0 + 4*u
        for j in range(4):
            r = a + 8*u + 2*j; q = vR + 8*u + 2*j
            o += [f"v_mul_f32 v{r}, v{r}, v{q}", f"v_mul_f32 v{r+1}, v{r+1}, v{q+1}", f"v_cvt_pk_bf16_f32 v{p+j}, v{r}, v{r+1}"]
        o.append(f"buffer_store_dwordx4 {vr(p)}, v12, {srd(sWS)}, s{sT2} offen offset:{u*512} sc1")
    return o
def kv_flag(k, L, tkv):
    k(f"s_lshl_b32 s{sF}, s{sA}, 4\ns_lshr_b32 s{sT1}, s{sRB}, 2\ns_add_u32 s{sF}, s{sF}, s{sT1}\ns_lshl_b32 s{sF}, s{sF}, 7\ns_add_u32 s{sF}, s{sF}, {FKV(L)}")
    publish_wg(k, tkv)
def q_flag(k, L, tq):
    k(f"s_lshr_b32 s{sF}, s{sRB}, 3\ns_lshl_b32 s{sF}, s{sF}, 4\ns_add_u32 s{sF}, s{sF}, s{sA}\ns_lshl_b32 s{sF}, s{sF}, 3\ns_and_b32 s{sT1}, s{sRB}, 7\ns_add_u32 s{sF}, s{sF}, s{sT1}\ns_lshl_b32 s{sF}, s{sF}, 3\ns_add_u32 s{sF}, s{sF}, {FLOC(L-1,5)}")
    publish_local(k, tq, force_global=(L == 0))

WARM = True
LIN_AT = 99
LIN_U = True
Q0_ROT = True
Q0_MARKS = False
Q0_MARKJ = ()
Q0_SCHED = ((3, 4), (5,), (6,), (7,), (), (), (), ())
LATE_AT = 1
Q0_UP = 3
PK_AT = (3, 3, 4, 4, 5, 5, 6, 6)
def ph_qkv0(k, late):
    vX, vACC, vST, vEXT, vRS, vT, vR = 16, 144, 192, 8, 6, 224, 232
    vXA, vWA, vXR, vTR, vTW, vCS, vCW, vONE = 10, 12, 196, 200, 202, 204, 208, 220
    sXS, sWR, sXL, sWL = 60, 56, sD, sE
    k(f"s_lshr_b32 s{sRB}, s{sG}, 1\ns_lshl_b32 s{sRB}, s{sRB}, 2\ns_add_u32 s{sRB}, s{sRB}, s{sC3}\ns_lshl_b32 s{sRB}, s{sRB}, 2\ns_add_u32 s{sRB}, s{sRB}, s{sW}")
    k(f"s_and_b32 s{sA}, s{sG}, 1\ns_lshl_b32 s{sA}, s{sA}, 3\ns_and_b32 s{sT0}, s{sC}, 7\ns_add_u32 s{sA}, s{sA}, s{sT0}")
    k(f"v_bfe_u32 v{vXA}, v0, 3, 3\nv_lshlrev_b32 v{vXA}, 10, v{vXA}\nv_and_b32 v13, 7, v0\nv_bfe_u32 v14, v0, 4, 2\nv_xor_b32 v13, v13, v14")
    k(f"v_lshlrev_b32 v13, 4, v13\nv_add_u32 v{vXA}, v{vXA}, v13\nv_xor_b32 v{vXA+1}, 64, v{vXA}")
    k(f"v_bfe_u32 v{vWA}, v0, 2, 4\nv_mul_u32_u24 v{vWA}, 3072, v{vWA}\nv_and_b32 v13, 3, v0\nv_lshlrev_b32 v13, 4, v13\nv_add_u32 v{vWA}, v{vWA}, v13")
    k(f"s_lshl_b32 s{sX}, s{sRB}, 15")
    k(f"s_mul_i32 s{sX2}, s{sW}, 49152\ns_lshl_b32 s{sT0}, s{sA}, 6\ns_add_u32 s{sX2}, s{sX2}, s{sT0}")
    k(f"s_lshl_b32 s{sXL}, s{sW}, 14\ns_add_u32 s{sXL}, s{sXL}, {96*KB}\ns_mul_i32 s{sWL}, s{sW}, 3072")
    k("s_waitcnt lgkmcnt(0)")
    if Q0_MARKS: mark(k, 'karg')
    k(f"s_mov_b32 s{sWR}, s64\ns_and_b32 s{sWR+1}, s65, 0xffff\ns_mov_b32 s{sWR+2}, {512*3072}\ns_mov_b32 s{sWR+3}, 0x20000")
    k(f"s_and_b32 s{sXS+1}, s{sXS+1}, 0xffff\ns_mov_b32 s{sXS+2}, {2*MB}\ns_mov_b32 s{sXS+3}, 0x20000")
    ct = {}; cn = {j: 0 for j in range(8)}
    k(f"s_lshl_b32 s{sCc}, s{sC3}, 1\ns_add_u32 s{sCc}, s{sCc}, s{sC}")
    def rot(j):
        k(f"s_add_u32 s{sT3}, s{sCc}, {j}\ns_and_b32 s{sT3}, s{sT3}, {7 if Q0_ROT else 0}")
        if not Q0_ROT: k(f"s_mov_b32 s{sT3}, {j}")
        k(f"s_lshl_b32 s{sS0}, s{sT3}, 7\ns_add_u32 s{sS0}, s{sS0}, s{sX}")
        k(f"s_mul_i32 s{sS1}, s{sT3}, {4*49152}\ns_add_u32 s{sS1}, s{sS1}, s{sX2}")
    def ldW(j, t):
        k(f"s_add_u32 m0, s{sWL}, {(12*j + t)*KB}\ns_add_u32 s{sT2}, s{sS1}, {((t+1) % 3)*1024}")
        ct[j] = k.vm(f"buffer_load_dwordx4 v{vWA}, {srd(sWR)}, s{sT2} offen lds"); cn[j] += 1
    def ldX(j, i):
        if i == 0: rot(j)
        k(f"s_add_u32 m0, s{sXL}, {(j & 3)*4*KB + i*KB}\ns_add_u32 s{sT2}, s{sS0}, {i*8192}")
        ct[j] = k.vm(f"buffer_load_dwordx4 v{vXA + (i & 1)}, {srd(sXS)}, s{sT2} offen lds"); cn[j] += 1
    def chunk_loads(j):
        return [lambda i=i: ldX(j, i) for i in range(4)] + [lambda t=t: ldW(j, t) for t in range(3)]
    for f in chunk_loads(0): f()
    if Q0_MARKS: mark(k, 'up0')
    late(k)
    pack_decode(k)
    k(f"s_cmp_eq_u32 s{sW}, 0\ns_cselect_b64 s[90:91], s[68:69], s[70:71]")
    k(f"s_cmp_eq_u32 s{sW}, 2\ns_cselect_b64 s[90:91], s[72:73], s[90:91]")
    k(f"s_cmp_eq_u32 s{sW}, 3\ns_cselect_b64 s[90:91], s[66:67], s[90:91]\ns_cselect_b32 s{sT0}, 16, 56")
    k(f"s_mul_i32 s{sT1}, s{sT0}, s{sU}\ns_sub_u32 s{sT0}, s{sT0}, 1")
    k(f"v_and_b32 v254, 63, v0\nv_min_u32 v254, s{sT0}, v254\nv_add_u32 v254, s{sT1}, v254\nv_lshlrev_b32 v254, 7, v254")
    pk = G.pk = Pack(k)
    k(f"s_and_b32 s{sT0}, s{sC}, 7\ns_and_b32 s{sT1}, s{sC}, 15")
    k("v_and_b32 v13, 15, v0\nv_min_u32 v14, 13, v13")
    k(f"s_lshr_b32 s{sT2}, s{sT0}, 1\ns_add_u32 s{sT2}, s{sT2}, 176\nv_lshl_add_u32 v252, v14, 2, s{sT2}")
    k(f"s_mul_i32 s{sT2}, s{sT1}, 7\ns_add_u32 s{sT3}, s{sT2}, 6\ns_lshr_b32 s{sT2}, s{sT2}, 2\ns_lshr_b32 s{sT3}, s{sT3}, 2")
    k(f"v_lshrrev_b32 v14, 2, v13\nv_add_u32 v14, s{sT2}, v14\nv_min_u32 v14, s{sT3}, v14\nv_and_b32 v15, 3, v13\nv_mul_u32_u24 v15, 28, v15")
    k("v_add3_u32 v14, v14, v15, 48")
    k("v_and_b32 v15, 16, v0\nv_cmp_ne_u32 vcc, 0, v15\nv_cndmask_b32 v252, v252, v14, vcc")
    k(f"s_add_u32 s{sT0}, s{sT0}, 160\nv_and_b32 v14, 1, v13\nv_lshl_add_u32 v251, v14, 3, s{sT0}")
    k(f"s_lshr_b32 s{sT1}, s{sT1}, 1\nv_mul_u32_u24 v14, 24, v14\nv_lshrrev_b32 v15, 1, v13\nv_min_u32 v15, 2, v15\nv_lshlrev_b32 v15, 3, v15")
    k(f"v_add3_u32 v14, v14, v15, s{sT1}")
    k("v_cndmask_b32 v251, v251, v14, vcc")
    k(f"v_cmp_gt_u32 vcc, 512, v{vL16}\nv_cndmask_b32 v252, v251, v252, vcc\nv_lshlrev_b32 v252, 7, v252\nv_accvgpr_write_b32 a213, v252")
    if WARM:
        k("s_getpc_b64 s[88:89]")
        k(f"s_lshl_b32 s{sT0}, s{sC}, 1\ns_add_u32 s{sT0}, s{sT0}, s{sW}\ns_and_b32 s{sT0}, s{sT0}, 63\ns_lshl_b32 s{sT0}, s{sT0}, 10")
        k(f"v_add_u32 v245, s{sT0}, v{vL16}")
        k(f"v_min_u32 v244, {(WS_PAGES-1)*16}, v{vL16}\nv_lshlrev_b32 v244, 17, v244")
        k(f"s_cmp_eq_u32 s{sW}, 1\ns_cselect_b64 s[88:89], s[{sAUX}:{sAUX+1}], s[88:89]")
        k(f"s_cmp_eq_u32 s{sW}, 0\ns_cselect_b64 s[88:89], s[{sWS}:{sWS+1}], s[88:89]\ns_cselect_b64 vcc, -1, 0")
        k("v_cndmask_b32 v245, v245, v244, vcc")
    if PK_Q0: pk.issue(*range(8))
    k(f"v_and_b32 v13, 31, v0\nv_bfe_u32 v14, v0, 1, 3\nv_bfe_u32 v15, v0, 5, 1\nv_xor_b32 v14, v14, v15\nv_lshlrev_b32 v14, 4, v14\nv_lshl_add_u32 v13, v13, 7, v14")
    for e in range(4):
        k(f"v_xor_b32 v{vXR+e}, {e*32}, v13\nv_add_u32 v{vXR+e}, s{sXL}, v{vXR+e}")
    tr_addr(k, vTR, 13)
    k(f"v_add_u32 v{vTR+1}, {48*KB}, v{vTR}\nv_add_u32 v{vTW}, s{sWL}, v{vTR}\nv_add_u32 v{vTW+1}, {48*KB}, v{vTW}")
    k(f"v_mov_b32 v{vONE}, 0x3f803f80\nv_add_u32 v255, s84, v{vTR}\nv_accvgpr_write_b32 a212, v255")
    for r in range(192, 196): k(f"v_accvgpr_write_b32 a{r}, v{vONE}")
    for r in list(range(vST, vST+4)) + list(range(vCS, vCS+3)): k(f"v_mov_b32 v{r}, 0")
    def reads(j):
        o = []
        for e in range(4):
            o.append(f"ds_read_b128 {vr(vX + 16*j + 4*e)}, v{vXR+e} offset:{(j & 3)*4*KB}")
        for t in range(3):
            off = (12*(j & 3) + t)*KB
            o.append(f"ds_read_b64_tr_b16 {vr(vCW+4*t,2)}, v{vTW + (j >> 2)} offset:{off}")
            o.append(f"ds_read_b64_tr_b16 {vr(vCW+4*t+2,2)}, v{vTW + (j >> 2)} offset:{off+256}")
        for b in range(12):
            off = (12*(j & 3) + b)*KB; r = 48*(j & 1) + 4*b
            o.append(f"ds_read_b64_tr_b16 {ar(r,2)}, v{vTR + (j >> 2)} offset:{off}")
            o.append(f"ds_read_b64_tr_b16 {ar(r+2,2)}, v{vTR + (j >> 2)} offset:{off+256}")
        return o
    def dots(j):
        for i in range(16):
            r = vX + 16*j + i
            k(f"v_dot2c_f32_bf16 v{vST + 2*(i & 1)}, v{vONE}, v{r}\nv_dot2c_f32_bf16 v{vST + 1 + 2*(i & 1)}, v{r}, v{r}")
        for i in range(4):
            for t in range(3): k(f"v_dot2c_f32_bf16 v{vCS+t}, v{vONE}, v{vCW+4*t+i}")
    def xid():
        k(f"s_add_u32 s{sTAG}, s{sTAG}, 0x7f4a7c15\ns_addc_u32 s{sTAG+1}, s{sTAG+1}, 0x9e3779b9")
        k("v_mov_b32 v13, 0")
        k("s_mov_b64 exec, 1")
        if FLAG_TOUCH:
            k(f"s_lshl_b32 s{sF}, s{sA}, 4\ns_lshr_b32 s{sT1}, s{sRB}, 2\ns_add_u32 s{sF}, s{sF}, s{sT1}\ns_lshl_b32 s{sF}, s{sF}, 7\ns_add_u32 s{sF}, s{sF}, {FKV(0)}")
            k.vm(f"buffer_load_dword v5, v13, {srd(sWS)}, s{sF} offen sc1")
            k(f"s_lshl_b32 s{sF}, s{sU}, 7\ns_add_u32 s{sF}, s{sF}, {FPK}")
            k.vm(f"buffer_load_dword v5, v13, {srd(sWS)}, s{sF} offen sc1")
        k("s_mov_b64 exec, -1")
    def lin_touch():
        k.vm("global_load_dword v253, v254, s[90:91]")
    side = []
    if Q0_MARKS: mark(k, 'alu')
    if WARM and WARM_AT == 0: k.vm(f"global_load_dword v253, v245, s[88:89]")
    for j in range(1, Q0_UP):
        for f in chunk_loads(j): f()
    if WARM and WARM_AT == 1: k.vm(f"global_load_dword v253, v245, s[88:89]")
    if Q0_MARKS: mark(k, 'iss')
    k.wait(vm=ct[0])
    if Q0_MARKS: mark(k, 'w0')
    k("s_barrier")
    mark(k, 'd0')
    rl = reads(0)
    for x in rl[:10]: t10 = k.lg(x)
    for x in rl[10:]: k.lg(x)
    k.wait(lg=t10)
    dots(0)
    for j in range(8):
        for c_ in Q0_SCHED[j]:
            assert c_ - 4 <= j
            side += chunk_loads(c_)
        if j == 1: side.append(xid)
        if WARM and WARM_AT == j + 2: side.append(lambda: k.vm(f"global_load_dword v253, v245, s[88:89]"))
        if PK_EARLY: side += [lambda i=i: pk.issue(i) for i in range(8) if PK_AT[i] == j]
        if j == LIN_AT and not PK_Q0: side.append(lin_touch)
        if PK_Q0:
            assert all(c_ < 5 or j > PK_RD for c_ in Q0_SCHED[j])
            if j == PK_RD: side += [lambda i=i: pk.reads(2*i, 2*i+1) for i in range(4)]
            if j == PK_ST: side += [lambda i=i: (pk.stores(i), pk.csum(i)) for i in range(4)]
            if j == PK_ST + 1: side += [lambda i=i: (pk.stores(i), pk.csum(i)) for i in range(4, 8)]
            if j == PK_ST + 2: side.append(pk.ext)
        k.wait_all(vm=False)
        rl = []
        if j < 7:
            assert cn[j+1] == 7
            k.wait(vm=ct[j+1]); k("s_barrier")
            if j in Q0_MARKJ: mark(k, f'c{j+1}')
            rl = reads(j + 1)
        t10 = None; nr = 0
        if j == 7:
            tail = f"s_lshr_b32 s{sT0}, s{sW}, 1\ns_lshl_b32 s{sT0}, s{sT0}, 9\ns_and_b32 s{sT1}, s{sW}, 1\ns_lshl_b32 s{sT1}, s{sT1}, 3\ns_add_u32 s{sT0}, s{sT0}, s{sT1}".split('\n')
            tail += [f"v_and_b32 v13, 0x1f0, v{vL16}", f"v_add_u32 v13, s{sT0}, v13"]
            for t in range(3): tail += ext_pair(vCS+t, vCW+2*t, 14) + [f"ds_write_b64 v13, {vr(vCW+2*t,2)} offset:{t*KB}"]
            fin = fin_stats(vST, vEXT, vRS)[NTREE:] + qkv_consts(vT, vRS, vR)
            tail += [f"v_add_f32 v{vST}, v{vST}, v{vST+2}", f"v_add_f32 v{vST+1}, v{vST+1}, v{vST+3}"] + fin[:18]
            tail += ["s_waitcnt lgkmcnt(0)", "s_barrier"] + [f"ds_read_b128 {vr(vCW+4*t)}, v{vL16} offset:{t*KB}" for t in range(3)] + fin[18:]
            tail += f"s_lshl_b32 s{sCc}, s{sA}, 18\ns_lshl_b32 s{sT1}, s{sRB}, 11\ns_add_u32 s{sCc}, s{sCc}, s{sT1}".split('\n')
            tail += f"s_mul_i32 s{sB}, s{sRB}, {112*KB}\ns_lshl_b32 s{sT1}, s{sA}, 11\ns_add_u32 s{sB}, s{sB}, s{sT1}".split('\n')
            assert not side
            n_ = -(-len(tail) // 12)
            side = [lambda c=tail[i:i+n_]: [k(x) for x in c] for i in range(0, len(tail), n_)]
        for b in range(12):
            ks = 4*j + b // 3; t = b % 3
            acc = vr(vACC + 16*t, 16); w = ar(48*(j & 1) + 4*b); x = vr(vX + 4*ks)
            A, B = (x, w) if t == 1 else (w, x)
            k(f"v_mfma_f32_32x32x16_bf16 {acc}, {A}, {B}, {'0' if ks == 0 else acc}")
            if ks == 0 and t == 0: mark(k, 'm0')
            for _ in range(3):
                if rl:
                    t_ = k.lg(rl.pop(0)); nr += 1
                    if nr == 10: t10 = t_
            if side: side.pop(0)()
            if len(side) > 11 - b: side.pop(0)()
        if j < 7:
            assert not rl
            k.wait(lg=t10)
            dots(j + 1)
    while side: side.pop(0)()
    mark(k, 'loop')
    k.wait_all(vm=False)
    for t in range(3):
        c = vCW + 4*t
        acc = vr(vACC + 16*t, 16)
        A, B = (vr(vEXT), vr(c)) if t == 1 else (vr(c), vr(vEXT))
        k(f"v_mfma_f32_32x32x16_bf16 {acc}, {A}, {B}, {acc}")
    t_ = None
    for x in qk_tile(vACC, KVF(0), vRS, " sc1", vX) + v_tile(vACC+16, 0, vR, vX+8) + qk_tile(vACC+32, QF, vRS+1, " sc1", vX+16):
        if x.startswith('buffer'): t_ = k.vm(x)
        else: k(x)
    mark(k, 'st')
    return t_, t_

def ph_qkv(k, L, ring, b0):
    vX, vACC, vST, vEXT, vRS, vT, vR = 16, 144, 192, 8, 6, 224, 232
    rb_128(k)
    k(f"s_and_b32 s{sA}, s{sC}, 15")
    k(f"s_lshl_b32 s{sX}, s{sRB}, 15\ns_add_u32 s{sX}, s{sX}, {XF}")
    set_lds_bases(k)
    ops = []
    b = b0
    for tiles in ((0, 1), (2,)):
        for ks in range(33):
            for t in tiles:
                ops.append(dict(b=b, bmin=b, bmax=b, xi=(ks if ks < 32 else None), x=(vr(vX+4*ks) if ks < 32 else vr(vEXT)),
                                acc=vr(vACC+16*t, 16), swap=(t == 1), first=(ks == 0)))
                b += 1
    xq = XLoader(k, 32, lambda i: vr(vX+4*i), lin_src(k))
    res = {}
    se = stats_emitters(k, vST, res)
    k(f"s_lshl_b32 s{sCc}, s{sA}, 18\ns_lshl_b32 s{sT1}, s{sRB}, 11\ns_add_u32 s{sCc}, s{sCc}, s{sT1}")
    k(f"s_mul_i32 s{sB}, s{sRB}, {112*KB}\ns_lshl_b32 s{sT1}, s{sA}, 11\ns_add_u32 s{sB}, s{sB}, s{sT1}")
    assert ring.issued == ring.total
    g = Gemm(k, ring, ops, {0})
    g.start()
    ring.issue_n(4)
    publish_local(k, G.tx)
    ring.issue_n(4)
    k(f"s_lshl_b32 s{sF}, s{sRB}, 7\ns_add_u32 s{sF}, s{sF}, {FLOC(L-1, 8)}")
    poll16(k)
    aps = stats_poll(k, FLOC(L-1,7) - FLOC(L-1,8))
    fin = fin_stats(vST, vEXT, vRS) + qkv_consts(vT, vRS, vR)
    epi = qk_tile(vACC, KVF(L), vRS, " sc1", vST) + v_tile(vACC+16, L, vR, vST+16)
    st = dict(i=0, j=0, t=None)
    def put(x):
        if x.startswith('buffer'): st['t'] = k.vm(x)
        else: k(x)
    def filler(m):
        if aps and m == 4: aps.issue()
        if m == 22:
            if aps: aps.check()
            for e in se: e()
        if 44 <= m < 64:
            if st['i'] == 0: k.wait(vm=res['t'])
            for _ in range(3):
                if st['i'] < len(fin): k(fin[st['i']]); st['i'] += 1
        if m >= 68:
            for _ in range(4):
                if st['j'] < len(epi): put(epi[st['j']]); st['j'] += 1
    g.run(xq, n0=8, filler=filler)
    assert st['i'] == len(fin) and st['j'] == len(epi)
    tkv = st['t']
    for x in qk_tile(vACC + 32, QF, vRS + 1, "", vST+8): put(x)
    mark(k, 'st')
    return tkv, st['t']

def code_touch(k, vd, skip=0):
    if not CODE_TOUCH: return
    k(f"s_getpc_b64 s[{sPC}:{sPC+1}]\ns_add_u32 s{sPC}, s{sPC}, s{sCT}\ns_addc_u32 s{sPC+1}, s{sPC+1}, 0")
    k.vm(f"global_load_dword v{vd}, v{vL16}, s[{sPC}:{sPC+1}] offset:{skip}")

def flag_touch(k, L, va, vd):
    if not FL_TOUCH: return
    k(f"v_bfe_u32 v{va}, v0, 3, 3\nv_lshlrev_b32 v{va}, 6, v{va}\nv_and_or_b32 v{va}, v0, 7, v{va}\nv_lshlrev_b32 v{va}, 7, v{va}")
    k(f"s_lshl_b32 s{sT3}, s{sG}, 10\ns_add_u32 s{sT3}, s{sT3}, {FLOC(L,0)}")
    k.vm(f"buffer_load_dword v{vd}, v{va}, {srd(sWS)}, s{sT3} offen sc1")

def ph_att(k, L, ring, tkv, tq):
    vO, vS0, vKV, aQ = 16, 144, 208, aWB
    NS = 4
    vS = [vS0 + 16*i for i in range(NS)]
    vK, vV, vIDX, vL128 = 6, 7, 8, 9
    sK, sHD = sB, sE
    k(f"s_lshl_b32 s{sHD}, s{sC}, 16")
    k(f"s_lshl_b32 s{sT0}, s{sC}, 17\ns_add_u32 s{sT0}, s{sT0}, s{sW4K}\ns_add_u32 s{sT0}, s{sT0}, {KVF(L)}")
    k("v_and_b32 v10, 0x33, v0\nv_bfe_u32 v11, v0, 2, 1\nv_lshlrev_b32 v11, 3, v11\nv_or_b32 v10, v10, v11")
    k(f"v_bfe_u32 v11, v0, 3, 1\nv_lshlrev_b32 v11, 2, v11\nv_or_b32 v10, v10, v11\nv_lshl_add_u32 v{vK}, v10, 4, s{sT0}")
    k(f"v_and_b32 v10, 15, v0\nv_bfe_u32 v11, v0, 5, 1\nv_lshlrev_b32 v11, 4, v11\nv_add_u32 v10, v10, v11\nv_lshl_add_u32 v{vV}, v10, 4, s{sT0}")
    k(f"v_mov_b32 v{vIDX}, 0xdddddddd\nv_lshlrev_b32 v{vL128}, 3, v{vL16}")
    k(f"s_lshl_b32 s{sK}, s{sG}, 14")
    k("v_and_b32 v10, 27, v0\nv_cmp_eq_u32 vcc, 16, v10\nv_mov_b32 v11, 0x3f803f80\nv_cndmask_b32 v11, 0, v11, vcc")
    k("v_mov_b32 v144, v11")
    k(f"s_lshr_b32 s{sT0}, s{sC}, 1\ns_lshl_b32 s{sD}, s{sT0}, 11\ns_add_u32 s{sD}, s{sD}, {FKV(L)}")
    k(f"s_lshl_b32 s{sT3}, s{sG}, 8\ns_add_u32 s{sT3}, s{sT3}, s{sD}")
    if L == 0:
        k(f"v_and_b32 v11, 1, v0\nv_lshlrev_b32 v11, 7, v11\nv_add_u32 v11, s{sT3}, v11")
        k(f"v_cmp_gt_u32 vcc, 512, v{vL16}")
    k(f"s_lshr_b32 s{sT1}, s{sW}, 1\ns_lshl_b32 s{sT1}, s{sT1}, 7\ns_add_u32 s{sD}, s{sD}, s{sT1}")
    if L:
        k(f"s_add_u32 s{sT3}, s{sT3}, s{sT1}")
        k(f"s_lshl_b32 s{sT2}, s{sG}, 10\ns_lshl_b32 s{sT0}, s{sT0}, 6\ns_add_u32 s{sT2}, s{sT2}, s{sT0}\ns_add_u32 s{sT2}, s{sT2}, {FLOC(L-1,5)}")
        k(f"v_mov_b32 v12, s{sT3}\nv_and_b32 v11, 7, v0\nv_lshlrev_b32 v11, 3, v11\nv_add_u32 v11, s{sT2}, v11")
        k(f"v_cmp_gt_u32 vcc, 512, v{vL16}\nv_cndmask_b32 v11, v11, v12, vcc")
    k(f"v_and_b32 v12, 7, v0\nv_lshlrev_b32 v12, 8, v12")
    k(f"s_mul_i32 s{sT2}, s{sG}, {8*112*KB}\ns_lshl_b32 s{sT3}, s{sC}, 10\ns_add_u32 s{sT2}, s{sT2}, s{sT3}\ns_add_u32 s{sT2}, s{sT2}, {QF}")
    sQ = list(range(64, 72))
    for p in range(4):
        k(f"s_xor_b32 s{sT3}, s{sW}, {p}\ns_mul_i32 s{sT3}, s{sT3}, {2*112*KB}\ns_add_u32 s{sQ[2*p]}, s{sT3}, s{sT2}\ns_add_u32 s{sQ[2*p+1]}, s{sQ[2*p]}, {112*KB}")
    sTH, sTW, sFO = 72, 73, 79
    k(f"s_lshl_b32 s{sT3}, s{sU}, 2\ns_add_u32 s{sT3}, s{sT3}, s{sW}")
    k(f"s_mul_i32 s{sTH}, s{sT3}, {7*KB}\ns_add_u32 s{sTH}, s{sTH}, {HF}")
    k(f"s_lshl_b32 s{sT0}, s{sT3}, 11\ns_add_u32 s{sT0}, s{sT0}, {XF}\ns_lshl_b32 s{sT1}, s{sT3}, 8\ns_add_u32 s{sT1}, s{sT1}, {SX}")
    k(f"v_and_b32 v3, 0x780, v{vL128}\nv_add_u32 v3, s{sT0}, v3\nv_and_b32 v13, 0x80, v{vL128}\nv_add_u32 v13, s{sT1}, v13\nv_cndmask_b32 v3, v13, v3, vcc")
    k(f"s_lshl_b32 s{sTW}, s{sC4}, 2\ns_add_u32 s{sTW}, s{sTW}, s{sW}\ns_mul_i32 s{sTW}, s{sTW}, {TOUCH_KBS[L] * KB // 8}")
    k(f"s_add_u32 s{sTW}, s{sTW}, s{sSEG+1}\ns_add_u32 s{sTW}, s{sTW}, {32*KB}")
    k(f"s_and_b32 s{sCT}, s{sT3}, 31\ns_lshl_b32 s{sCT}, s{sCT}, 10")
    k(f"s_lshl_b32 s{sFO}, s{sG}, 2\ns_add_u32 s{sFO}, s{sFO}, s{sW}\ns_lshl_b32 s{sFO}, s{sFO}, 5\ns_add_u32 s{sFO}, s{sFO}, s{sC}\ns_lshl_b32 s{sFO}, s{sFO}, 3\ns_add_u32 s{sFO}, s{sFO}, {FLOC(L,0)}")
    if L == 0:
        for i in range(48, 128): k(f"v_mov_b32 v{vO+i}, 0")
    mark(k, 'pre')
    if L: q_flag(k, L, tq)
    kv_flag(k, L, tkv)
    if L == 0 and PK_Q0:
        k(f"s_lshl_b32 s{sF}, s{sU}, 7\ns_add_u32 s{sF}, s{sF}, {FPK}\nv_mov_b32 v145, v12")
        publish_wg(k, None, xid=True, barrier=False)
        k("v_mov_b32 v12, v145")
    mark(k, 'flag')
    if L == 0 and PK_EARLY:
        G.pk.reads(*range(8))
        for i in range(8): G.pk.csum(i)
        if PK_WIN2:
            G.pk.stores(*range(8)); G.pk.ext()
    if L:
        for i in range(48, 128): k(f"v_mov_b32 v{vO+i}, 0")
    if L == 0 and LIN_AT == 'flag': k.vm("global_load_dword v253, v254, s[90:91]")
    for b in range(4):
        for j in range(8): k(f"v_mov_b32 v{vKV+12*b+4+j}, v144")
    k(f"s_mov_b32 s{sF}, 0")
    poll(k, 11, 14, sleep=SLEEP1[L])
    mark(k, 'poll')
    K = lambda t: vr(vKV + 12*(t % 4))
    V = lambda t, u: vr(vKV + 12*(t % 4) + 4 + 4*u)
    kt = {}; vt = {}
    def ldK(t):
        if t and (t & 1) == 0: k(f"s_add_u32 s{sK}, s{sK}, 0x4000\ns_and_b32 s{sK}, s{sK}, 0x1ffff")
        kt[t] = k.vm(f"buffer_load_dwordx4 {K(t)}, v{vK}, {srd(sWS)}, s{sK} offen offset:{(t & 1)*2*KB} sc1")
    def ldV(t):
        k(f"s_mov_b64 exec, s[{sMSK}:{sMSK+1}]")
        k.vm(f"buffer_load_dwordx4 {V(t,0)}, v{vV}, {srd(sWS)}, s{sK} offen offset:{(t & 1)*2*KB+KB} sc1")
        vt[t] = k.vm(f"buffer_load_dwordx4 {V(t,1)}, v{vV}, {srd(sWS)}, s{sK} offen offset:{(t & 1)*2*KB+KB+512} sc1")
        k("s_mov_b64 exec, -1")
    def ldKV(t):
        ldK(t); ldV(t); kt[t] = vt[t]
    ldK(0)
    qt = {}
    for s in range(8):
        qt[s] = k.vm(f"buffer_load_dwordx4 {ar(aQ+4*s)}, v{vL16}, {srd(sWS)}, s{sQ[s]} offen sc1")
        if s == 2: ldV(0)
    ldKV(1)
    ap2 = apoll1(k, 12, 10, sD, sleep=SLEEP2)
    for i in range(48): k(f"v_mov_b32 v{vO+i}, 0")
    NT = ATT_NT
    steps = [(t, q) for t in range(16 - NT) for q in range(8)] + [(t, q) for q in range(2, 8) for t in range(16 - NT, 16)] + [(t, q) for q in range(2) for t in range(16 - NT, 16)]
    n = len(steps)
    LA = NS - 1
    def qk(i):
        t, q = steps[i]
        k.wait(vm=max(kt[t], qt[q]) if t == 0 else kt[t])
        k(f"v_mfma_f32_32x32x16_bf16 {vr(vS[i % NS],16)}, {K(t)}, {ar(aQ+4*q)}, 0")
    def pv(i, u):
        t, q = steps[i]
        k.wait(vm=vt[t])
        k(f"v_smfmac_f32_32x32x32_bf16 {vr(vO+16*q,16)}, {V(t,u)}, {vr(vS[i % NS]+8*u,8)}, v{vIDX}")
    for i in range(LA): qk(i)
    mark(k, 'm0')
    ring.limit = 96
    jobs = {}
    def job(i, f, e=10): jobs.setdefault((i, e), []).append(f)
    job(0, lambda: code_touch(k, 10))
    job(P2_AT - 4, ap2.issue)
    job(P2_AT, lambda: (ap2.check(), ldKV(2), ldKV(3)))
    for t in range(1, 13): job(8*t, lambda t=t: ldKV(t + 3))
    def kvpf(j):
        def f():
            k(f"s_add_u32 s{sT0}, s{sG}, {2*j}\nv_bfe_u32 v13, v0, 5, 1\nv_add_u32 v13, s{sT0}, v13\nv_and_b32 v13, 7, v13\nv_lshlrev_b32 v13, 14, v13")
            k(f"v_and_b32 v14, 0xf80, v{vL128}\nv_add_u32 v13, v13, v14")
            k(f"s_lshl_b32 s{sT0}, s{sC}, 17\ns_add_u32 s{sT0}, s{sT0}, s{sW4K}\ns_add_u32 s{sT0}, s{sT0}, {KVF(L)}")
            k.vm(f"buffer_load_dword v5, v13, {srd(sWS)}, s{sT0} offen sc1")
        return f
    if KV_PF[L]:
        for j in (2, 3): job(KV_PF[L] + 8*(j-2), kvpf(j))
    if L == 0:
        CHK_AT = CHK_Q0 if PK_Q0 else G.pk.schedule(job) + CHK_GAP
        apk = APoll(k, [f"buffer_load_dwordx2 v[10:11], v12, {srd(sWS)}, s{sX} offen offset:8 sc1"],
                    f"v_cmp_ne_u64 vcc, s[{sTAG}:{sTAG+1}], v[10:11]")
        def chk0():
            k(f"v_accvgpr_read_b32 v12, a213\ns_mov_b32 s{sX}, {FPK}")
            apk.issue()
        job(CHK_AT - 6, chk0)
        apx = APoll(k, [f"buffer_load_dwordx4 v[12:15], v11, {srd(sWS)}, s{sCc} offen sc1"],
                    f"v_cmp_ne_u64 vcc, s[{sTAG}:{sTAG+1}], v[14:15]")
        def mode0():
            k(f"v_and_b32 v11, 0xf80, v{vL128}\ns_lshl_b32 s{sCc}, s{sG}, 12\ns_add_u32 s{sCc}, s{sCc}, {FPK}")
            apx.issue()
        def mode():
            apx.check()
            k(f"s_xor_b32 s{sT2}, s{sTAG}, s{sXCC}")
            k(f"v_cmp_ne_u32 vcc, s{sT2}, v12")
            k(f"s_cmp_eq_u64 vcc, 0\ns_cselect_b32 s{sMODE}, 1, 0")
        job(81, mode0); job(95, mode)
        def chk():
            apk.check()
            k(f"s_and_b32 s{sT2}, s{sC}, 7\ns_lshl_b32 s{sT2}, s{sT2}, 1\ns_lshr_b32 s{sT3}, s{sW}, 1\ns_add_u32 s{sT2}, s{sT2}, s{sT3}")
            k(f"s_mul_i32 s{sT3}, s{sW}, {28*KB}\ns_add_u32 s{sT3}, s{sT3}, {WD}")
            k(f"s_mul_i32 s{sX}, s{sT2}, {112*KB}\ns_add_u32 s{sX}, s{sX}, s{sT3}")
            k(f"s_xor_b32 s{sT2}, s{sT2}, 1\ns_mul_i32 s{sX2}, s{sT2}, {112*KB}\ns_add_u32 s{sX2}, s{sX2}, s{sT3}")
        job(CHK_AT, chk)
        def wsrc(i):
            s_ = sX if i < 28 else sX2
            j = i % 28
            if j and (j & 3) == 0: k(f"s_add_u32 s{s_}, s{s_}, 4096")
            return s_, (j & 3) * KB
        wq = XLoader(k, 56, lambda i: ar(aWD + 8*(i % 28) + 4*(i // 28)), wsrc)
        slots = [i for i in range(CHK_AT + 1, 112) if i % 8 in WD_SLOTS]
        work = [lambda: wq.issue_n(4)] * 14
        rw = [ring.issue16] * 6
        seq = []
        while work or rw:
            if work: seq.append(work.pop(0))
            if work: seq.append(work.pop(0))
            if rw: seq.append(rw.pop(0))
        assert len(seq) <= len(slots), (len(seq), len(slots))
        for i, f in zip(slots, seq): job(i, f)
    else:
        for j in range(6): job(12 + 8*j, ring.issue16)
    def tch(j):
        def f():
            if j: k(f"s_add_u32 s{sTW}, s{sTW}, 8192")
            k.vm(f"buffer_load_dword v5, v{vL128}, {srd(sWS)}, s{sTW} offen sc1")
        return f
    for j in range(-(-TOUCH_KBS[L] // 64)): job(TOUCH_AT[L] + j*TOUCH_STEP, tch(j))
    job(TACT_AT, lambda: k.vm(f"buffer_load_dword v5, v{vL128}, {srd(sWS)}, s{sTH} offen sc1"))
    def tact():
        k.vm(f"buffer_load_dword v5, v3, {srd(sWS)}, 0 offen sc1")
    job(TACT_AT + 4, tact)
    job(CT_AT, lambda: code_touch(k, 5))
    job(TACT_AT + 8, lambda: flag_touch(k, L, 4, 5))
    SC = 96 * KB
    vWA = 10
    def red_setup():
        k(f"s_lshl_b32 s{sT0}, s{sW}, 14\nv_add_u32 v13, s{sT0}, v{vL16}")
        for j in range(1, 4):
            k(f"v_xor_b32 v{vWA+j-1}, {j << 14}, v13\nv_add_u32 v{vWA+j-1}, {SC}, v{vWA+j-1}")
        k(f"v_add_u32 v13, {SC}, v13")
    job(126 - 8*NT, red_setup)
    def red_write(s, part):
        j = s >> 1; z = s & 1
        if part == 0:
            k.lg(f"ds_write_b128 v{vWA+j-1}, {vr(vO+16*s)} offset:{(z*3+j-1)*2*KB}")
            k.lg(f"ds_write_b32 v{vWA+j-1}, v{vO+16*s+8} offset:{(12+z)*KB+(j-1)*4}")
        if part == 1 or NT == 1:
            k.lg(f"ds_write_b128 v{vWA+j-1}, {vr(vO+16*s+4)} offset:{(z*3+j-1)*2*KB+KB}")
    for i in range(128):
        if steps[i][0] == 15 and steps[i][1] >= 2:
            job(i + 2, lambda s=steps[i][1]: red_write(s, 0), e=2)
            if NT > 1: job(i + 2, lambda s=steps[i][1]: red_write(s, 1))
    tl = []
    def red_read(zz):
        if zz[0] == 0:
            k.wait_all()
            k("s_barrier")
        for z in zz:
            k.lg(f"ds_read_b128 {vr(vO+32+48*z+8)}, v13 offset:{(12+z)*KB}")
            for j in range(3):
                b = vO + 32 + (z*3 + j)*16
                k.lg(f"ds_read_b128 {vr(b)}, v13 offset:{(z*3+j)*2*KB}")
                tl.append(k.lg(f"ds_read_b128 {vr(b+4)}, v13 offset:{(z*3+j)*2*KB+KB}"))
    if NT == 1: job(127, lambda: red_read((0, 1)))
    else:
        job(126, lambda: red_read((0,))); job(127, lambda: red_read((1,)), e=2)
    for i, (t, q) in enumerate(steps):
        s = vS[i % NS]
        if i in ATT_MARKS: mark(k, f's{i}')
        for e in range(16):
            if e == 2 and i > 0: pv(i-1, 1)
            if e == 6 and i + LA < n: qk(i + LA)
            if e == 10: pv(i, 0)
            for f in jobs.pop((i, e), []): f()
            k(f"v_exp_f32 v{s+e}, v{s+e}")
    pv(n-1, 1)
    assert not jobs, jobs.keys()
    assert ring.issued == 96
    mark(k, 'loop')
    for z in range(2):
        o = vO + 16*z; l = vO + 32 + 48*z + 8
        k.wait(lg=tl[z*3])
        k(f"v_add_f32 v{l}, v{l}, v{l+1}\nv_add_f32 v{o+8}, v{o+8}, v{l+2}\nv_add_f32 v{o+8}, v{o+8}, v{l}\nv_rcp_f32 v{o+9}, v{o+8}")
        for j in range(3):
            b = vO + 32 + (z*3 + j)*16
            k.wait(lg=tl[z*3+j])
            for i in range(8): k(f"v_add_f32 v{o+i}, v{o+i}, v{b+i}")
        for j in range(4):
            k(f"v_mul_f32 v{o+2*j}, v{o+2*j}, v{o+9}\nv_mul_f32 v{o+2*j+1}, v{o+2*j+1}, v{o+9}")
            k(f"v_cvt_pk_bf16_f32 v{o+12+j}, v{o+2*j}, v{o+2*j+1}")
        ts = k.vm(f"buffer_store_dwordx4 {vr(o+12)}, v{vL16}, {srd(sWS)}, s{sQ[z]} offen")
    mark(k, 'f_st')
    fb = k.newlabel('fb'); back = k.newlabel('fbret')
    LO, HI = f2u(2.0**-60), f2u(2.0**60)
    for z in range(2):
        o = vO + 16*z
        k(f"v_add_f32 v{o}, v{o}, v{o+1}\nv_add_f32 v{o+2}, v{o+2}, v{o+3}\nv_add_f32 v{o+4}, v{o+4}, v{o+5}\nv_add_f32 v{o+6}, v{o+6}, v{o+7}")
        k(f"v_add_f32 v{o}, v{o}, v{o+2}\nv_add_f32 v{o+4}, v{o+4}, v{o+6}\nv_add_f32 v{o}, v{o}, v{o+4}")
        k(f"v_fma_f32 v{o+8}, v{o}, 0, v{o+8}\nv_subrev_u32 v{o+8}, {hex(LO)}, v{o+8}")
    k(f"v_max_u32 v{vO+8}, v{vO+8}, v{vO+24}")
    k(f"v_cmp_lt_u32 vcc, {hex(0 if FORCE_FB else HI - LO)}, v{vO+8}")
    k(f"s_cbranch_vccnz {fb}")
    k.label(back)
    F = [f"{fb}:", "s_waitcnt vmcnt(0)",
         f"v_subrev_u32 v{vK}, s{sW4K}, v{vK}", f"v_subrev_u32 v{vV}, s{sW4K}, v{vV}"]
    S, C, M = vS0, vS0 + 16, vS0 + 32
    for z in range(2):
        o = vO + 16*z; Q = ar(aQ + 4*z)
        F += [f"v_mov_b32 v{M}, 0xff800000", f"s_mov_b32 s{sK}, 0", f"{fb}_a{z}:",
              f"buffer_load_dwordx4 {K(0)}, v{vK}, {srd(sWS)}, s{sK} offen sc1", "s_waitcnt vmcnt(0)",
              f"v_mfma_f32_32x32x16_bf16 {vr(S,16)}, {K(0)}, {Q}, 0"]
        F += [f"v_max3_f32 v{M}, v{M}, v{S+2*i}, v{S+2*i+1}" for i in range(8)]
        F += [f"s_add_u32 s{sK}, s{sK}, 2048", f"s_cmp_lt_u32 s{sK}, {64*2048}", f"s_cbranch_scc1 {fb}_a{z}",
              f"v_mov_b32 v{M+1}, v{M}", f"v_permlane32_swap_b32 v{M}, v{M+1}", f"v_max_f32 v{M}, v{M}, v{M+1}"]
        F += [f"v_sub_f32 v{C+i}, 0, v{M}" for i in range(16)] + [f"v_mov_b32 v{o+i}, 0" for i in range(16)]
        F += [f"s_mov_b32 s{sK}, 0", f"{fb}_b{z}:",
              f"buffer_load_dwordx4 {K(0)}, v{vK}, {srd(sWS)}, s{sK} offen sc1",
              f"s_mov_b64 exec, s[{sMSK}:{sMSK+1}]",
              f"buffer_load_dwordx4 {V(0,0)}, v{vV}, {srd(sWS)}, s{sK} offen offset:{KB} sc1",
              f"buffer_load_dwordx4 {V(0,1)}, v{vV}, {srd(sWS)}, s{sK} offen offset:{KB+512} sc1",
              "s_mov_b64 exec, -1", "s_waitcnt vmcnt(0)",
              f"v_mfma_f32_32x32x16_bf16 {vr(S,16)}, {K(0)}, {Q}, {vr(C,16)}"]
        F += [f"v_exp_f32 v{S+i}, v{S+i}" for i in range(16)]
        F += [f"v_smfmac_f32_32x32x32_bf16 {vr(o,16)}, {V(0,u)}, {vr(S+8*u,8)}, v{vIDX}" for u in range(2)]
        F += ["s_nop 15", f"s_add_u32 s{sK}, s{sK}, 2048", f"s_cmp_lt_u32 s{sK}, {64*2048}", f"s_cbranch_scc1 {fb}_b{z}",
              f"v_rcp_f32 v{o+9}, v{o+8}"]
        for j in range(4):
            F += [f"v_mul_f32 v{o+2*j}, v{o+2*j}, v{o+9}", f"v_mul_f32 v{o+2*j+1}, v{o+2*j+1}, v{o+9}", f"v_cvt_pk_bf16_f32 v{o+12+j}, v{o+2*j}, v{o+2*j+1}"]
        F += [f"buffer_store_dwordx4 {vr(o+12)}, v{vL16}, {srd(sWS)}, s{sQ[z]} offen"]
    F += ["s_waitcnt vmcnt(0)", f"s_branch {back}"]
    G.far += F
    k(f"s_mov_b32 s{sF}, s{sFO}")
    ring.end16()
    ring.limit = 144
    return ts

def load_res(k, v):
    k(f"s_add_u32 s{sT1}, s{sDST}, {XF}")
    k.vm(f"buffer_load_dwordx4 {vr(v)}, v{vL16}, {srd(sWS)}, s{sT1} offen sc1")
    return k.vm(f"buffer_load_dwordx4 {vr(v+4)}, v{vL16}, {srd(sWS)}, s{sT1} offen offset:1024 sc1")
def add_res(k, acc, v):
    for j in range(8):
        k(f"v_lshlrev_b32 v10, 16, v{v+j}\nv_and_b32 v11, 0xffff0000, v{v+j}")
        k(f"v_add_f32 v{acc+2*j}, v{acc+2*j}, v10\nv_add_f32 v{acc+2*j+1}, v{acc+2*j+1}, v11")

def ph_wo(k, L, ring, tO):
    k.label(f'L_wo{L}')
    vX, vACC, vRES, vSUM, vPK = 16, 80, 112, 120, 136
    k(f"s_lshr_b32 s{sRB}, s{sDST}, 15\ns_lshr_b32 s{sD}, s{sW}, 1")
    k(f"s_mul_i32 s{sX}, s{sRB}, {112*KB}\ns_lshl_b32 s{sT0}, s{sD}, 14\ns_add_u32 s{sX}, s{sX}, s{sT0}\ns_add_u32 s{sX}, s{sX}, {HF}")
    k(f"s_lshl_b32 s{sT0}, s{sD}, 11")
    set_lds_bases(k, sT0)
    seq = []
    for s in range(16):
        seq.append((s, 1))
        if s < 16 - WO_R0: seq.append((s, 0))
    nf = len(seq)
    seq += [(s, 0) for s in range(16 - WO_R0, 16)]
    ops = [dict(b=4*s + a, bmin=0, bmax=63, xi=s, x=vr(vX+4*s), acc=vr(vACC+16*a,16), swap=False, first=(s == 0)) for s, a in seq]
    g = Gemm(k, ring, ops, {0}, stop_issue=WO_STOP)
    if L == 0:
        rowmajor_addr(k, 8, sT0)
        k.vm(f"buffer_load_dwordx4 {vr(vRES)}, v8, {srd(60)}, s{sT0} offen")
        k.vm(f"buffer_load_dwordx4 {vr(vRES+4)}, v8, {srd(60)}, s{sT0} offen offset:32")
    else:
        load_res(k, vRES)
    g.start()
    mark(k, 'f_bar')
    ring.issue_n(PRE_WO)
    publish_local(k, tO)
    mark(k, 'f_pub')
    ring.issue_n(PRE_WO2)
    k(f"s_and_b32 s{sF}, s{sRB}, 0xfe\ns_add_u32 s{sF}, s{sF}, s{sD}\ns_lshl_b32 s{sF}, s{sF}, 7\ns_add_u32 s{sF}, s{sF}, {FLOC(L,0)}")
    SC = 144 * KB
    k(f"s_xor_b32 s{sT0}, s{sW}, 2\ns_lshl_b32 s{sT0}, s{sT0}, 12\ns_add_u32 s{sT0}, s{sT0}, {SC}\nv_add_u32 v6, s{sT0}, v{vL16}")
    k(f"s_lshl_b32 s{sT0}, s{sW}, 12\ns_add_u32 s{sT0}, s{sT0}, {SC}\nv_add_u32 v7, s{sT0}, v{vL16}")
    poll16(k)
    mark(k, 'f_poll')
    xq = XLoader(k, 16, lambda i: vr(vX+4*i), lin_src(k))
    xq.issue_n(WO_N0)
    for x in res_unpack(vSUM, vRES): k(x)
    st = {}
    def xchg(step):
        if step == 0:
            while g.nread < 32: g.rd()
            for j in range(4): k.lg(f"ds_write_b128 v6, {vr(vACC+16+4*j)} offset:{j*KB}")
        elif step == 1:
            k.wait_all(vm=False)
            ring.limit = None
            ring.sync(64, 0)
            for j in range(4): st['t'] = k.lg(f"ds_read_b128 {vr(vACC+16+4*j)}, v7 offset:{j*KB}")
        st['n'] = step + 1
    def filler(m):
        if m == max(nf + 1, 25): xchg(0)
        if m == max(nf + 4, 28): xchg(1)
    g.run(xq, n0=0, look=16, filler=filler)
    for step in range(st.get('n', 0), 2): xchg(step)
    k.wait(lg=st['t'])
    for i in range(16): k(f"v_add_f32 v{vSUM+i}, v{vSUM+i}, v{vACC+16+i}")
    for j in range(8):
        k(f"v_add_f32 v{vACC+2*j}, v{vACC+2*j}, v{vSUM+2*j}\nv_add_f32 v{vACC+2*j+1}, v{vACC+2*j+1}, v{vSUM+2*j+1}")
        k(f"v_cvt_pk_bf16_f32 v{vPK+j}, v{vACC+2*j}, v{vACC+2*j+1}")
    ts = store_x(k, vACC, vPK, L, 1, ring)
    mark(k, 'end')
    return ts

PASSES = ((0, 3), (3, 2), (5, 2))
def ph_up(k, L, ring, b0, tprev):
    vX, vACC, vST, vEXT, vRS = 16, 144, 224, 8, 6
    sH0, sH1 = sD, sE
    rb_128(k)
    k(f"s_and_b32 s{sA}, s{sC}, 15")
    k(f"s_lshl_b32 s{sX}, s{sRB}, 15\ns_add_u32 s{sX}, s{sX}, {XF}")
    set_lds_bases(k)
    ops = []
    b = b0
    for (t0, nt) in PASSES:
        for ks in range(33):
            for t in range(t0, t0+nt):
                ops.append(dict(b=b, bmin=b, bmax=b, xi=(ks if ks < 32 else None), x=(vr(vX+4*ks) if ks < 32 else vr(vEXT)),
                                acc=vr(vACC+16*t, 16), swap=False, first=(ks == 0)))
                b += 1
    g = Gemm(k, ring, ops, UP_SYNCS, stop_issue=UP_STOP)
    g.start()
    mark(k, 'f_bar')
    ring.issue_n(PRE)
    publish_local(k, tprev)
    mark(k, 'f_pub')
    ring.issue_n(PRE2)
    res = {}
    se = stats_emitters(k, vST, res)
    k(f"s_mul_i32 s{sH0}, s{sRB}, 112\ns_mul_i32 s{sT2}, s{sA}, 7\ns_add_u32 s{sH0}, s{sH0}, s{sT2}\ns_lshl_b32 s{sH0}, s{sH0}, 10\ns_add_u32 s{sH0}, s{sH0}, {HF}")
    k(f"s_add_u32 s{sH1}, s{sH0}, 4096")
    k(f"s_lshl_b32 s{sF}, s{sRB}, 7\ns_add_u32 s{sF}, s{sF}, {FLOC(L,1)}")
    poll16(k)
    mark(k, 'f_poll')
    aps = stats_poll(k, FLOC(L,6) - FLOC(L,1))
    xq = XLoader(k, 32, lambda i: vr(vX+4*i), lin_src(k))
    fin = fin_stats(vST, vEXT, vRS) + [f"v_mul_f32 v{vRS}, v{vRS}, v{vRS}"]
    def epi(t):
        a = vACC + 16*t
        o = []
        for j in range(4):
            o += [f"v_mul_f32 v{a+2*j}, v{a+2*j}, v{vRS}", f"v_mul_f32 v{a+2*j+1}, v{a+2*j+1}, v{vRS}",
                  f"v_mul_f32 v{a+2*j}, v{a+2*j}, v{a+8+2*j}", f"v_mul_f32 v{a+2*j+1}, v{a+2*j+1}, v{a+9+2*j}",
                  f"v_cvt_pk_bf16_f32 v{a+8+j}, v{a+2*j}, v{a+2*j+1}"]
        o.append(f"buffer_store_dwordx4 {vr(a+8)}, v{vL16}, {srd(sWS)}, s{sH0 + (t >> 2)} offen offset:{(t & 3)*KB}")
        return o
    st = dict(i=0, t=None); q = []
    def put(x):
        if x.startswith('buffer'): st['t'] = k.vm(x)
        else: k(x)
    dn = Down(k, L)
    def filler(m):
        if aps and m == 12: aps.issue()
        if aps and m == 30: aps.check()
        if 70 <= m < 96:
            if st['i'] == 0: k.wait(vm=res['t'])
            for _ in range(2):
                if st['i'] < len(fin): k(fin[st['i']]); st['i'] += 1
        if m == 102: q.extend(sum((epi(t) for t in range(0, 3)), []))
        if m == 168: q.extend(sum((epi(t) for t in range(3, 5)), []))
        for _ in range(UP_EPI):
            if q: put(q.pop(0))
        if m == 146: code_touch(k, 7)
        if m in UP_PUB:
            assert not q
            if m == UP_PUB[0]:
                k(f"s_lshl_b32 s{sF}, s{sRB}, 4\ns_add_u32 s{sF}, s{sF}, s{sA}\ns_lshl_b32 s{sF}, s{sF}, 3\ns_add_u32 s{sF}, s{sF}, {FLOC(L,2)}")
            publish_local(k, st['t'])
            k(f"s_add_u32 s{sF}, s{sF}, {8*KB}")
            if m == UP_PUB[1]: dn.xq.hold = 20
        if UP_PUB[0] < m and dn.setup:
            for _ in range(3):
                if dn.setup: k(dn.setup.pop(0))
        if m in DN_POLL: dn.ap.issue()
        if m in DN_CHK:
            dn.ap.check()
            k(f"s_add_u32 s{dn.sFl}, s{dn.sFl}, {8*KB}")
        if m > DN_CHK[0] and m % 2 and not (ring.can_issue() and m < UP_STOP): dn.xq.issue_n(1)
    if L == 0: ring.limit = 296 + QW_UP
    g.run(xq, look=UP_LOOK, filler=filler, misc=se, misc_from=32, skip=UP_SKIP[L])
    assert st['i'] == len(fin) and not dn.setup and ring.issued == min(ring.total, 296 + QW_UP)
    dn.xq.hold = 36 if len(DN_CHK) > 1 else 24
    for t in range(5, 7):
        for i, x in enumerate(epi(t)):
            put(x)
            if i in (4, 14): dn.xq.issue_n(1)
    mark(k, 'end')
    dn.tB = st['t']
    return dn

class Down:
    NX = 36
    def __init__(self, k, L):
        self.k = k; self.L = L
        sXa, sXb, sFl = sB, sX2, sCc
        self.sFl = sFl
        self.setup = (f"s_lshr_b32 s{sT0}, s{sDST}, 15\ns_mul_i32 s{sT1}, s{sW}, {28*KB}\ns_add_u32 s{sT1}, s{sT1}, {HF}\n"
                      f"s_mul_i32 s{sXa}, s{sT0}, {112*KB}\ns_add_u32 s{sXa}, s{sXa}, s{sT1}\n"
                      f"s_xor_b32 s{sT2}, s{sT0}, 1\ns_mul_i32 s{sXb}, s{sT2}, {112*KB}\ns_add_u32 s{sXb}, s{sXb}, s{sT1}\n"
                      f"v_and_b32 v12, 3, v0\nv_lshlrev_b32 v12, 3, v12\nv_and_b32 v13, 4, v0\nv_lshl_add_u32 v12, v13, 5, v12\n"
                      f"s_and_b32 s{sFl}, s{sT0}, 0xfe\ns_lshl_b32 s{sFl}, s{sFl}, 7\ns_lshl_b32 s{sT1}, s{sW}, 5\ns_add_u32 s{sFl}, s{sFl}, s{sT1}\n"
                      f"s_add_u32 s{sFl}, s{sFl}, {FLOC(L,2)}").split('\n')
        self.order = order = [7*c + t for t0, nt in PASSES for c in range(4) for t in range(t0, t0+nt)]
        cur = {sXa: 0, sXb: 0}
        def src(i):
            s_ = sXa if (i & 1) == 0 else sXb
            r = order[i >> 1]
            if not 0 <= r - cur[s_] < 4:
                d = (r - cur[s_]) * KB
                k(f"s_add_u32 s{s_}, s{s_}, {d}" if d > 0 else f"s_sub_u32 s{s_}, s{s_}, {-d}")
                cur[s_] = r
            return s_, (r - cur[s_]) * KB
        self.xr = lambda i: vr(144 + 4*(i % 36) if (i % 36) < 20 else 80 + 4*((i % 36) - 20))
        self.xq = XLoader(k, 56, self.xr, src)
        self.xq.hold = 12
        self.ap = apoll1(k, 12, 14, sFl)

def res_unpack(dst, v):
    o = []
    for j in range(8): o += [f"v_lshlrev_b32 v{dst+2*j}, 16, v{v+j}", f"v_and_b32 v{dst+2*j+1}, 0xffff0000, v{v+j}"]
    return o

def ph_down(k, L, ring, dn):
    vACC, vRES, vPK, vSUM = 16, 240, 240, 224
    final = L == 1
    xq = dn.xq; order = dn.order; NX = dn.NX
    if len(DN_CHK) > 1: xq.hold = 40
    SC = 108 * KB
    side = []
    for a in range(1, 4):
        side += f"s_xor_b32 s{sT0}, s{sW}, {a}\ns_mul_i32 s{sT0}, s{sT0}, {12*KB}\ns_add_u32 s{sT0}, s{sT0}, {SC + (a-1)*4*KB}\nv_add_u32 v{5+a}, s{sT0}, v{vL16}".split('\n')
    side += f"s_mul_i32 s{sT0}, s{sW}, {12*KB}\ns_add_u32 s{sT0}, s{sT0}, {SC}\nv_add_u32 v9, s{sT0}, v{vL16}".split('\n')
    if final and OUT_T:
        side += (f"s_and_b32 s{sT0}, s{sW}, 1\ns_mul_i32 s{sT0}, s{sT0}, {32*144}\ns_lshr_b32 s{sT2}, s{sW}, 1\ns_lshl_b32 s{sT2}, s{sT2}, 6\ns_add_u32 s{sT0}, s{sT0}, s{sT2}\n"
                 f"v_and_b32 v10, 31, v0\nv_mul_u32_u24 v10, 144, v10\nv_bfe_u32 v11, v0, 5, 1\nv_lshl_add_u32 v10, v11, 4, v10\nv_add_u32 v10, s{sT0}, v10\n"
                 f"s_mul_i32 s{sT0}, s{sW}, {16*144}\nv_bfe_u32 v13, v0, 3, 3\nv_mul_u32_u24 v11, 144, v13\nv_and_b32 v5, 7, v0\nv_lshl_add_u32 v11, v5, 4, v11\nv_add_u32 v11, s{sT0}, v11\n"
                 f"v_lshlrev_b32 v13, 10, v13\nv_lshl_add_u32 v13, v5, 4, v13\n"
                 f"s_and_b32 s{sT0}, s{sDST}, 0xffff0000\ns_lshl_b32 s{sT2}, s{sW}, 14\ns_add_u32 s{sT0}, s{sT0}, s{sT2}\n"
                 f"s_and_b32 s{sT2}, s{sC}, 7\ns_lshl_b32 s{sT2}, s{sT2}, 7\ns_add_u32 s{sT0}, s{sT0}, s{sT2}\ns_add_u32 s{sT2}, s{sT0}, 8192").split('\n')
    R, R0 = DN_R, DN_R0
    seq = []
    for s in range(28 - R):
        seq += [(s, a) for a in (3, 2, 1)]
        if s < 28 - R0: seq.append((s, 0))
    seq += [(s, a) for a in (3, 2, 1) for s in range(28 - R, 28)] + [(s, 0) for s in range(28 - R0, 28)]
    lo = [min(2*s_ + (a_ & 1) for s_, a_ in seq[m:]) for m in range(112)]
    wr = []; rt = None; tail = None; res = None; wb = False
    for m, (s, a) in enumerate(seq):
        r = order[s]
        if len(DN_CHK) == 1 and m == DN_CHK2:
            dn.ap.check()
            k(f"s_add_u32 s{dn.sFl}, s{dn.sFl}, {8*KB}")
            xq.hold = 40
        if m == 4*DN_PUBB: publish_local(k, dn.tB)
        if m == 4*DN_BAR:
            ring.limit = None
            ring.sync(296, 0)
        if m == 4*DN_POLLB:
            apb = dn.ap
            apb.issue()
            rt = load_res(k, vRES)
        if m == 4*DN_CHKB:
            apb.check()
            xq.hold = 56
            xq.issue_n(min(3, lo[m] + NX - xq.n))
        xi = 2*s + (a & 1)
        while xq.n <= xi:
            assert xq.n < xq.hold and xq.n < lo[m] + NX
            xq.issue_n(1)
        k.wait(vm=xq.t[xi])
        acc = vr(vACC + 16*a, 16)
        k(f"v_mfma_f32_32x32x16_bf16 {acc}, {ar(aWD + 8*r + 4*(a >> 1))}, {dn.xr(xi)}, {'0' if s == 0 else acc}")
        if m == 0: mark(k, 'm0')
        if m in GEMM_MARKS.get(G.ph, ()): mark(k, f'm{m}')
        if m % 2 == 0 and xq.n < min(lo[m] + NX, xq.total, xq.hold): xq.issue_n(1)
        elif m % 2 == 0 and xq.n == xq.total and ring.can_issue(): ring.issue()
        elif m > 4*DN_CHKB + 8:
            if res is None:
                k.wait(vm=rt); res = True
                side += res_unpack(vSUM, vRES)
            for _ in range(4):
                if side: k(side.pop(0))
        if final and WB_MASK is not None and xq.n == xq.total and k.vm_done == k.vm_issued and not wb:
            wb = True; l_ = k.newlabel('wb')
            k(f"s_lshl_b32 s{sT1}, s{sC}, 2\ns_add_u32 s{sT1}, s{sT1}, s{sW}\ns_and_b32 s{sT1}, s{sT1}, {WB_MASK}\ns_cbranch_scc1 {l_}")
            print('wbl2 at', m, file=sys.stderr)
            k("buffer_wbl2 sc1")
            k.label(l_)
        if wr and wr[0][0] <= m:
            assert not side
            for _ in range(min(DN_WR, len(wr))):
                if wr[0][0] <= m: k.lg(wr.pop(0)[1])
            if wr and DN_WR == 1: wr[0] = (max(wr[0][0], m + DN_WGAP), wr[0][1])
            if not wr and a == 0: tail = min(m + 2, 111)
        if s == 27 and a:
            wr += [(m + 2, f"ds_write_b128 v{5+a}, {vr(vACC+16*a+4*j)} offset:{j*KB}") for j in range(4)]
        if tail == m:
            k.wait_all(vm=False)
            k("s_barrier")
            tl = []
            for b in range(3):
                for j in range(4): t_ = k.lg(f"ds_read_b128 {vr(vACC+16+16*b+4*j)}, v9 offset:{b*4*KB + j*KB}")
                tl.append(t_)
            adds = []
            for b in range(3): adds += [(tl[b], f"v_add_f32 v{vSUM+i}, v{vSUM+i}, v{vACC+16+16*b+i}") for i in range(16)]
        elif tail is not None and m > tail + 1:
            for _ in range(6):
                if adds:
                    t_, x = adds.pop(0); k.wait(lg=t_); k(x)
    assert not side and not wr and tail is not None and tail < 112
    for t_, x in adds:
        k.wait(lg=t_); k(x)
    if final and not OUT_T: rowmajor_addr(k, 6, sT0)
    for j in range(8):
        k(f"v_add_f32 v{vACC+2*j}, v{vACC+2*j}, v{vSUM+2*j}\nv_add_f32 v{vACC+2*j+1}, v{vACC+2*j+1}, v{vSUM+2*j+1}")
        k(f"v_cvt_pk_bf16_f32 v{vPK+j}, v{vACC+2*j}, v{vACC+2*j+1}")
        if final and OUT_T and j in (3, 7): k.lg(f"ds_write_b128 v10, {vr(vPK+j-3)} offset:{(j >> 2)*32}")
    if final and OUT_T:
        k.wait_all(vm=False)
        k("s_barrier")
        t0 = k.lg(f"ds_read_b128 {vr(vPK)}, v11")
        t1 = k.lg(f"ds_read_b128 {vr(vPK+4)}, v11 offset:{8*144}")
        k.wait(lg=t0)
        k.vm(f"buffer_store_dwordx4 {vr(vPK)}, v13, {srd(sAUX)}, s{sT0} offen{OUT_SC}")
        k.wait(lg=t1)
        k.vm(f"buffer_store_dwordx4 {vr(vPK+4)}, v13, {srd(sAUX)}, s{sT2} offen{OUT_SC}")
    elif final:
        k.vm(f"buffer_store_dwordx4 {vr(vPK)}, v6, {srd(sAUX)}, s{sT0} offen{OUT_SC}")
        k.vm(f"buffer_store_dwordx4 {vr(vPK+4)}, v6, {srd(sAUX)}, s{sT0} offen offset:32{OUT_SC}")
    else:
        G.tx = store_x(k, vACC, vPK, L, 8, ring)
    mark(k, 'end')

def k_main(name):
    k = Asm()
    G.nst = 0
    k(f".globl {name}\n.p2align 8\n.type {name},@function")
    k.label(name)
    if STAMP or PADTO: k("s_memrealtime s[42:43]")
    mark(k, 'start')
    k("s_cmp_ge_u32 s2, 256")
    k("s_cbranch_scc1 L_abort")
    k(f"s_load_dwordx2 s[{sWS}:{sWS+1}], s[0:1], 72")
    k(f"s_load_dwordx2 s[{sAUX}:{sAUX+1}], s[0:1], 56")
    k("s_load_dwordx2 s[60:61], s[0:1], 0\ns_load_dwordx4 s[64:67], s[0:1], 8\ns_load_dwordx4 s[68:71], s[0:1], 32\ns_load_dwordx2 s[72:73], s[0:1], 48")
    k("v_lshrrev_b32 v2, 6, v0")
    k(f"v_and_b32 v{vL16}, 63, v0")
    k(f"v_readfirstlane_b32 s{sW}, v2")
    k(f"v_lshlrev_b32 v{vL16}, 4, v{vL16}")
    k(f"s_mov_b32 s{sWG}, s2\ns_and_b32 s{sG}, s2, 7\ns_lshr_b32 s{sC}, s2, 3\ns_lshl_b32 s{sW1K}, s{sW}, 10")
    k(f"s_lshr_b32 s{sC4}, s{sC}, 4\ns_lshr_b32 s{sC3}, s{sC}, 3")
    k(f"s_lshl_b32 s{sU}, s{sG}, 5\ns_add_u32 s{sU}, s{sU}, s{sC}")
    k(f"s_lshl_b32 s{sW4K}, s{sW}, 12")
    k(f"s_getreg_b32 s{sXCC}, hwreg(HW_REG_XCC_ID, 0, 4)")
    k(f"v_add_u32 v{vSRC}, s{sW1K}, v{vL16}")
    k(f"s_mov_b32 s{sMSK}, 0xffff\ns_mov_b32 s{sMSK+1}, 0xffff\ns_mov_b32 s{sMODE}, 0")
    k(f"s_and_b32 s{sT0}, s{sC}, 7\ns_mul_i32 s{sSEG}, s{sT0}, {WO_STR}\ns_add_u32 s{sSEG}, s{sSEG}, {WO}")
    k(f"s_lshl_b32 s{sT1}, s{sG}, 2\ns_add_u32 s{sT1}, s{sT1}, s{sC3}\ns_lshl_b32 s{sT1}, s{sT1}, 1\ns_and_b32 s{sT2}, s{sW}, 1\ns_add_u32 s{sT1}, s{sT1}, s{sT2}")
    k(f"s_lshl_b32 s{sT1}, s{sT1}, 5\ns_lshl_b32 s{sT0}, s{sT0}, 2\ns_add_u32 s{sT1}, s{sT1}, s{sT0}\ns_and_b32 s{sT2}, s{sW}, 2\ns_add_u32 s{sT1}, s{sT1}, s{sT2}\ns_lshl_b32 s{sDST}, s{sT1}, 10")
    k(f"s_lshr_b32 s{sSD}, s{sDST}, 12\ns_lshl_b32 s{sSD}, s{sSD}, 9\ns_lshl_b32 s{sT2}, s{sT2}, 2\ns_add_u32 s{sSD}, s{sSD}, s{sT2}\ns_add_u32 s{sSD}, s{sSD}, {SX}")
    k(f"s_and_b32 s{sT0}, s{sC}, 15\ns_mul_i32 s{sSEG+1}, s{sT0}, {WU_STR}\ns_add_u32 s{sSEG+1}, s{sSEG+1}, {WU}")
    k(f"s_mul_i32 s{sSEG+2}, s{sT0}, {WQ_STR}\ns_add_u32 s{sSEG+2}, s{sSEG+2}, {WQ}")
    def late(k):
        if WSOFF: k(f"s_add_u32 s{sWS}, s{sWS}, {WSOFF}\ns_addc_u32 s{sWS+1}, s{sWS+1}, 0")
        k(f"s_add_u32 s{sT0}, s{sWS}, {EP}\ns_addc_u32 s{sT1}, s{sWS+1}, 0")
        k(f"s_load_dwordx2 s[{sTAG}:{sTAG+1}], s[{sT0}:{sT1}], 0")
        k(f"s_and_b32 s{sWS+1}, s{sWS+1}, 0xffff\ns_mov_b32 s{sWS+2}, {0x10000000 - WSOFF}\ns_mov_b32 s{sWS+3}, 0x20000")
        k(f"s_and_b32 s{sAUX+1}, s{sAUX+1}, 0xffff\ns_mov_b32 s{sAUX+2}, {2*MB}\ns_mov_b32 s{sAUX+3}, 0x20000")
    G.ph = 'qkv0'; tk = ph_qkv0(k, late)
    for L in range(2):
        ring = Ring(k, [(sSEG, 64), (sSEG+1, 232)] + ([(sSEG+2, 100)] if L == 0 else []))
        G.ph = f'att{L}'; tO = ph_att(k, L, ring, *tk)
        G.ph = f'wo{L}'; tx = ph_wo(k, L, ring, tO)
        G.ph = f'up{L}'; tB = ph_up(k, L, ring, 64, tx)
        G.ph = f'dn{L}'; ph_down(k, L, ring, tB)
        G.ph = 'qkv1'
        if L == 0: tk = ph_qkv(k, 1, ring, 296)
    k(f"s_add_u32 s{sT0}, s{sWG}, s{sW}\ns_cmp_lg_u32 s{sT0}, 0\ns_cbranch_scc1 L_fin")
    k(f"s_mov_b32 s{sF}, {EP}")
    publish_local(k, None, force_global=True)
    k.label("L_fin")
    if PADTO:
        k("s_waitcnt vmcnt(0)")
        k.label("L_pad")
        k(f"s_memrealtime s[98:99]\ns_waitcnt lgkmcnt(0)\ns_sub_u32 s98, s98, s42\ns_cmp_lt_u32 s98, {PADTO}\ns_cbranch_scc1 L_pad")
    if STAMP:
        k("s_waitcnt vmcnt(0)")
        G.ph = ''; mark(k, 'fin')
        k("s_memrealtime s[98:99]\ns_waitcnt lgkmcnt(0)")
        vals = [42, 98, sMODE] + STS[:G.nst]
        for i, s_ in enumerate(vals): k(f"v_mov_b32 v{16+i}, s{s_}")
        k(f"s_lshl_b32 s{sT0}, s{sWG}, 2\ns_add_u32 s{sT0}, s{sT0}, s{sW}\ns_lshl_b32 s{sT0}, s{sT0}, 7\ns_add_u32 s{sT0}, s{sT0}, {TS}")
        k("v_mov_b32 v4, 0\ns_mov_b64 exec, 1")
        for j in range(8): k(f"buffer_store_dwordx4 {vr(16+4*j)}, v4, {srd(sWS)}, s{sT0} offen offset:{16*j}")
        if DBG is not None:
            k(f"s_lshl_b32 s{sT0}, s{sWG}, 2\ns_add_u32 s{sT0}, s{sT0}, s{sW}\ns_cmp_lg_u32 s{sT0}, {DBG}\ns_cbranch_scc1 L_nodbg")
            k("s_load_dwordx2 s[64:65], s[0:1], 64\ns_waitcnt lgkmcnt(0)")
            for i in range(16): k(f"v_sub_u32 v{64+i}, v{20+i}, v19")
            for j in range(4): k(f"global_store_dwordx4 v4, {vr(64+4*j)}, s[64:65] offset:{16*j}")
            k.label("L_nodbg")
    k("s_waitcnt vmcnt(0)")
    k.label("L_abort")
    k("s_endpgm")
    for x in G.far:
        if x.endswith(':'): k.label(x[:-1])
        else: k(x)
    k(".fill 8448, 4, 0xbf800000")
    return k

def build():
    name = NAME + "_kernel"
    k = k_main(name)
    nn = k.fix()
    print(f"{len(k.L)} lines, {nn} nop states", file=sys.stderr)
    return f"""; stamps: {','.join(G.names)}
; @launch grid=(256,1,1) block=(256,1,1) lds={160*KB}
.amdgcn_target "amdgcn-amd-amdhsa--gfx950"
.text
{k.text()}
.section .rodata,"a"
.p2align 6
.amdhsa_kernel {name}
  .amdhsa_next_free_vgpr 512
  .amdhsa_next_free_sgpr 102
  .amdhsa_accum_offset 256
  .amdhsa_group_segment_fixed_size 0
  .amdhsa_kernarg_size 80
  .amdhsa_user_sgpr_count 2
  .amdhsa_user_sgpr_kernarg_segment_ptr 1
  .amdhsa_system_sgpr_workgroup_id_x 1
.end_amdhsa_kernel
"""

if __name__ == "__main__":
    for a in sys.argv[2:]:
        kk_, vv_ = a.split('=', 1)
        globals()[kk_] = eval(vv_)
    open(sys.argv[1], "w").write(build())
```

```python
import sys, struct
from asmlib import Asm

NAME = "interleave_layers__mha_block__glu_gated_bilinear__prompt"
KB = 1024; MB = KB * KB
LOG2E = 1.4426950408889634
def f2u(x): return struct.unpack('<I', struct.pack('<f', x))[0]
def srd(b): return f"s[{b}:{b+3}]"
def vr(b, n=4): return f"v[{b}:{b+n-1}]"
def ar(b, n=4): return f"a[{b}:{b+n-1}]"

WQ = 0;                    WQ_STR = 100 * KB
WO = WQ + 16 * WQ_STR;     WO_STR = 64 * KB
WU = WO + 8 * WO_STR;      WU_STR = 232 * KB
WD = WU + 16 * WU_STR
FL = 7 * MB + 640 * KB
assert WD + 16 * 112 * KB <= FL
EP = FL
XID = FL + 1 * KB
def FLOC(L, p): return FL + 4 * KB + (L * 9 + p) * 8 * KB
FKV0 = FL + 4 * KB + 18 * 8 * KB
def FKV(L): return FKV0 + L * 32 * KB
FPK = FKV0 + 64 * KB
assert FPK + 32 * KB <= 8 * MB
XF = 8 * MB
HF = 10 * MB
QF = HF
SX = 17 * MB
def KVF(L): return 18 * MB + L * 4 * MB
WS_PAGES = 13
TS = 27 * MB
DUMP = 0x7ff00000

STAMP = False
PADTO = 0; PADMIN = False
OUT_T = False
ATT_NT = 2
PK_WIN2 = False; PK_SP = 0
WARM_AT = 1
RT = False
DN_CHK2 = 4
CT_AT = 92
FORCE_FB = False
WB_MASK = None; OUT_SC = ''; DN_WR = 1; DN_WGAP = 2
QW_LATE = False; QW_UP = 64; QW_TOUCH = (72, 100); QW_N1 = 4
PK_Q0 = False; PK_RD = 1; PK_ST = 3; CHK_Q0 = 15
WO_STOP = 26; WO_R0 = 8; WO_N0 = 10; ST_PRE = 2; PPOLL = 0; KV_PF = (0, 0); PK_EARLY = True
FL_TOUCH = False
SPLIT_ST = True
FINE = False
UP_EPI = 2; UP_PUB = (154, 206); DN_POLL = (172, 226); DN_CHK = (186,); UP_LOOK = 8; UP_SYNCS = {0, 48, 80, 112, 144, 176, 200}; UP_SKIP = (0, 0); UP_STOP = 222
DN_PUBB = 4; DN_BAR = 14; DN_POLLB = 7; DN_CHKB = 12; DN_R = 8; DN_R0 = 12
FLAG_TOUCH = False
WSOFF = 0
SLEEP1 = (0, 0); SLEEP2 = 0; SLEEP3 = 0
DBG = None
PRE = 4; PRE2 = 4
PRE_WO = 4; PRE_WO2 = 4
CODE_TOUCH = True
WD_SLOTS = (2, 4, 6)
TOUCH_AT = (98, 68); TOUCH_STEP = 16; TOUCH_KBS = (64, 128)
RING = 144
PK_T0 = 7; PK_GAP = 6; PK_GAP2 = 11; CHK_GAP = 18
P2_AT = 6
TACT_AT = 102

sC4, sC3 = 2, 3
sWS, sAUX = 4, 8
sW, sG, sC, sW1K = 12, 13, 14, 15
sT0, sT1, sT2, sT3 = 16, 17, 18, 19
sX, sRS, sRB = 20, 21, 22
sA, sB, sCc, sD, sE = 23, 24, 25, 26, 27
sS0, sS1 = 28, 21
sMSK, sTAG, sMODE, sXCC = 30, 32, 34, 35
sSEG = 36
sX2 = 39
sSPIN, sF = 40, 41
STS = list(range(44, 56, 2)) + [92, 94, 56, 58, 74, 76, 80, 82, 86, 88, 60, 62]
sWG = 101
sW4K = 97
sSD = 29
sPC, sCT = 90, 85
sDST = 100
vL16, vSRC, vB = 1, 2, 3
aWD, aWB = 0, 224

class G:
    nst = 0
    names = []
    far = []
    ph = ''
SKIP = ''
ATT_MARKS = ()
GEMM_MARKS = {}
def mark(k, nm='x'):
    import re
    nm = G.ph + '_' + nm
    if SKIP and re.match(SKIP, nm): return
    if '_f_' in nm and not FINE: return
    if STAMP:
        G.names.append(nm)
        k(f"s_mem{'real' if RT else ''}time s[{STS[G.nst]}:{STS[G.nst]+1}]")
        G.nst += 1

class Ring:
    def __init__(self, k, segs):
        self.k = k; self.N = RING
        self.total = sum(n for _, n in segs)
        self.starts = {}
        b = 0
        for s, n in segs:
            assert n % 4 == 0
            self.starts[b] = s; b += n
        self.issued = 0; self.freed = 0; self.visible = 0
        self.limit = None
        self.tick = {}
    def can_issue(self):
        if self.limit is not None and self.issued + 4 > self.limit: return False
        return self.issued < self.total and self.issued + 4 <= self.freed + self.N
    def issue(self):
        k = self.k
        assert self.can_issue()
        slot = self.issued % self.N
        k(f"s_add_u32 m0, s{sW1K}, {slot*KB}")
        if self.issued in self.starts: k(f"s_mov_b32 s{sRS}, s{self.starts[self.issued]}")
        else: k(f"s_add_u32 s{sRS}, s{sRS}, 4096")
        self.tick[self.issued // 4] = k.vm(f"buffer_load_dwordx4 v{vSRC}, {srd(sWS)}, s{sRS} offen sc1 lds")
        self.issued += 4
    def issue16(self):
        k = self.k
        b = self.issued; slot = b % self.N
        assert slot + 16 <= self.N and b + 16 <= min(self.limit or 1 << 30, self.freed + self.N)
        assert not any(x in self.starts for x in range(b + 1, b + 16))
        k(f"s_add_u32 m0, s{sW4K}, {slot*KB}")
        if b in self.starts: k(f"s_add_u32 s{sRS}, s{self.starts[b]}, s{sW4K}")
        else: k(f"s_add_u32 s{sRS}, s{sRS}, 16384")
        for i in range(4):
            t = k.vm(f"buffer_load_dwordx4 v{vL16}, {srd(sWS)}, s{sRS} offen offset:{i*KB} sc1 lds")
        for q in range(4): self.tick[b // 4 + q] = t
        self.issued += 16
    def end16(self):
        self.k(f"s_sub_u32 s{sRS}, s{sRS}, s{sW4K}\ns_add_u32 s{sRS}, s{sRS}, 12288")
    def issue_n(self, n):
        for _ in range(n):
            if self.can_issue(): self.issue()
    def sync(self, consumed, need):
        k = self.k
        need = min(need, self.total)
        if need > self.visible:
            q = (need - 1) // 4
            assert q * 4 < self.issued, (need, self.issued)
            k.wait(vm=self.tick[q])
        k("s_barrier")
        q = self.visible // 4
        while q in self.tick and self.tick[q] <= k.vm_done: q += 1
        self.visible = q * 4
        assert self.visible >= need
        self.freed = max(self.freed, (consumed // 4) * 4)
    def addr(self, b): return (b % self.N) * KB

def set_lds_bases(k, extra_s=None):
    if extra_s is None: k(f"v_mov_b32 v{vB}, v{vL16}")
    else: k(f"v_add_u32 v{vB}, s{extra_s}, v{vL16}")
    k(f"v_add_u32 v{vB+1}, 0x10000, v{vB}")
    k(f"v_add_u32 v{vB+2}, 0x20000, v{vB}")

class XLoader:
    def __init__(self, k, total, reg, src):
        self.k = k; self.total = total; self.reg = reg; self.src = src; self.n = 0; self.t = []
        self.hold = total
    def issue_n(self, n):
        k = self.k
        for _ in range(n):
            i = self.n
            if i >= min(self.total, self.hold): return
            s_, imm = self.src(i)
            self.t.append(k.vm(f"buffer_load_dwordx4 {self.reg(i)}, v{vL16}, {srd(sWS)}, s{s_} offen offset:{imm} sc1"))
            self.n += 1
def lin_src(k):
    def f(i):
        if i and (i & 3) == 0: k(f"s_add_u32 s{sX}, s{sX}, 4096")
        return sX, (i & 3) * KB
    return f

class Gemm:
    def __init__(self, k, ring, ops, syncs, D=4, NB=8, stop_issue=None):
        self.k = k; self.ring = ring; self.ops = ops; self.syncs = sorted(syncs)
        assert all(x % 2 == 0 for x in syncs)
        self.D = D; self.NB = NB; self.tl = {}; self.nread = 0
        self.stop = stop_issue if stop_issue is not None else len(ops)
    def rd(self):
        k = self.k; m = self.nread; o = self.ops[m]
        assert o['bmax'] < self.ring.visible, (m, o['b'], self.ring.visible)
        a = self.ring.addr(o['b'])
        self.tl[m] = k.lg(f"ds_read_b128 {ar(aWB + 4*(m % self.NB))}, v{vB + (a >> 16)} offset:{a & 0xffff}")
        self.nread += 1
    def need_until(self, m):
        M = len(self.ops)
        nxt = [s for s in self.syncs if s > m]
        last = min((nxt[0] if nxt else M) - 1 + self.D, M - 1)
        return max(o['bmax'] for o in self.ops[:last+1]) + 1
    def start(self):
        self.ring.sync(self.ops[0]['bmin'], self.need_until(0))
        while self.nread < min(self.D, len(self.ops)): self.rd()
    def run(self, xq, n0=6, look=10, filler=None, misc=(), misc_from=0, skip=0):
        k = self.k; M = len(self.ops)
        misc = list(misc)
        xq.issue_n(n0)
        cur = 0
        for m in range(M):
            if m in self.syncs and m > 0:
                self.ring.sync(self.ops[m]['bmin'], self.need_until(m))
            o = self.ops[m]
            xt = None
            if m % 2 == 0:
                xs = [p['xi'] for p in self.ops[m:m+2] if p.get('xi') is not None]
                if xs:
                    cur = max(cur, max(xs))
                    while xq.n <= max(xs): xq.issue_n(1)
                    xt = xq.t[max(xs)]
                k.wait(vm=xt, lg=self.tl[min(m + 1, M - 1)])
            w = ar(aWB + 4*(m % self.NB))
            c = o.get('c0', '0') if o['first'] else o['acc']
            A, B = (o['x'], w) if o['swap'] else (w, o['x'])
            k(f"v_mfma_f32_32x32x16_bf16 {o['acc']}, {A}, {B}, {c}")
            if m == 0: mark(k, 'm0')
            if m in GEMM_MARKS.get(G.ph, ()): mark(k, f'm{m}')
            if m % 2 == 0:
                for _ in range(2):
                    if self.nread < M: self.rd()
            elif not (skip and m % skip == skip - 1):
                rok = m < self.stop and self.ring.can_issue()
                if xq.n < xq.total and (xq.n - cur < look or not (rok or (misc and m >= misc_from))): xq.issue_n(1)
                elif misc and m >= misc_from: misc.pop(0)()
                elif rok: self.ring.issue()
            if filler: filler(m)
        assert not misc

def stats_emitters(k, vt, res):
    k(f"s_lshl_b32 s{sS0}, s{sRB}, 12\ns_add_u32 s{sS0}, s{sS0}, {SX}")
    def mk(i):
        def f(): res['t'] = k.vm(f"buffer_load_dwordx4 {vr(vt+4*i)}, v{vL16}, {srd(sWS)}, s{sS0} offen offset:{i*KB} sc1")
        return f
    return [mk(i) for i in range(4)]

NTREE = 14
def fin_stats(vt, vext, vrstd):
    ins = []
    n = 8
    while n > 1:
        h = n // 2
        for i in range(h):
            ins.append(f"v_add_f32 v{vt+2*i}, v{vt+2*i}, v{vt+2*(i+h)}")
            ins.append(f"v_add_f32 v{vt+2*i+1}, v{vt+2*i+1}, v{vt+2*(i+h)+1}")
        n = h
    a, b, c, d = vt, vt+1, vt+2, vt+3
    ins += [f"v_mov_b32 v{c}, v{a}", f"v_mov_b32 v{d}, v{b}",
            f"v_permlane32_swap_b32 v{a}, v{c}", f"v_permlane32_swap_b32 v{b}, v{d}",
            f"v_add_f32 v{a}, v{a}, v{c}", f"v_add_f32 v{b}, v{b}, v{d}",
            f"v_mul_f32 v{a}, {hex(f2u(-1.0/512))}, v{a}",
            f"v_mul_f32 v{b}, {hex(f2u(1.0/512))}, v{b}",
            f"v_fma_f32 v{b}, -v{a}, v{a}, v{b}",
            f"v_max_f32 v{b}, 0, v{b}",
            f"v_add_f32 v{b}, {hex(f2u(1e-5))}, v{b}",
            f"v_rsq_f32 v{vrstd}, v{b}",
            f"v_cvt_pk_bf16_f32 v{vext}, v{a}, v{a}",
            f"v_and_b32 v{c}, 0xffff0000, v{vext}",
            f"v_sub_f32 v{c}, v{a}, v{c}",
            f"v_cvt_pk_bf16_f32 v{vext+1}, v{c}, 0",
            f"v_mov_b32 v{vext+2}, v{vext}", f"v_mov_b32 v{vext+3}, v{vext+1}"]
    return ins

def poll(k, vaddr, vpd, sleep=0):
    l = k.newlabel('poll')
    k(f"s_mov_b32 s{sSPIN}, 0x40000")
    k.label(l)
    k.vm(f"buffer_load_dwordx2 {vr(vpd,2)}, v{vaddr}, {srd(sWS)}, s{sF} offen sc1")
    k(f"s_sub_u32 s{sSPIN}, s{sSPIN}, 1")
    k("s_cbranch_scc1 L_abort")
    k.wait_all(lg=False)
    k(f"v_cmp_ne_u64 vcc, s[{sTAG}:{sTAG+1}], {vr(vpd,2)}")
    k(f"s_cbranch_vccnz {l}")
class APoll:
    def __init__(self, k, loads, cmp, sleep=0):
        self.k = k; self.loads = loads; self.cmp = cmp; self.sleep = sleep
    def issue(self):
        for x in self.loads: self.t = self.k.vm(x)
    def check(self):
        k = self.k
        l = k.newlabel('ap'); ok = k.newlabel('apok')
        k.wait(vm=self.t)
        k(self.cmp)
        k(f"s_cbranch_vccnz {l}")
        k.label(ok)
        G.far += [f"{l}:", f"s_mov_b32 s{sSPIN}, 0x40000", f"{l}_l:"] + list(self.loads) + [
            f"s_sub_u32 s{sSPIN}, s{sSPIN}, 1", "s_cbranch_scc1 L_abort", "s_waitcnt vmcnt(0)", self.cmp,
            f"s_cbranch_vccnz {l}_l", f"s_branch {ok}"]
def apoll1(k, vaddr, vpd, soff, sleep=0):
    return APoll(k, [f"buffer_load_dwordx2 {vr(vpd,2)}, v{vaddr}, {srd(sWS)}, s{soff} offen sc1"],
                 f"v_cmp_ne_u64 vcc, s[{sTAG}:{sTAG+1}], {vr(vpd,2)}", sleep)
def poll16(k):
    k("v_and_b32 v13, 15, v0\nv_lshlrev_b32 v13, 3, v13")
    poll(k, 13, 14)

def publish_local(k, last_store, force_global=False):
    k(f"v_mov_b32 v14, s{sTAG}\nv_mov_b32 v15, s{sTAG+1}")
    if force_global:
        k.wait(vm=last_store)
        k.vm(f"buffer_store_dwordx2 v[14:15], off, {srd(sWS)}, s{sF} sc1")
        return
    slow = k.newlabel('slow'); join = k.newlabel('join')
    k(f"s_cmp_eq_u32 s{sMODE}, 0")
    k(f"s_cbranch_scc1 {slow}")
    k.wait(vm=last_store)
    k.vm(f"buffer_store_dwordx2 v[14:15], off, {srd(sWS)}, s{sF}")
    k.label(join)
    G.far += [f"{slow}:", "s_waitcnt vmcnt(0)", "buffer_wbl2 sc1", "s_waitcnt vmcnt(0)",
              f"buffer_store_dwordx2 v[14:15], off, {srd(sWS)}, s{sF} sc1", f"s_branch {join}"]
def publish_wg(k, last_store, xid=False, barrier=True):
    l = k.newlabel('pw')
    k(f"v_mov_b32 v13, 0\nv_mov_b32 v14, s{sTAG}\nv_mov_b32 v15, s{sTAG+1}")
    k.wait(vm=last_store)
    if barrier: k("s_barrier")
    k(f"s_cmp_lg_u32 s{sW}, 0\ns_cbranch_scc1 {l}")
    k("s_mov_b64 exec, 1")
    if xid:
        k(f"v_xor_b32 v12, s{sXCC}, v14\nv_mov_b32 v13, v15")
        k(f"buffer_store_dwordx4 v[12:15], v{vL16}, {srd(sWS)}, s{sF} offen sc1")
    else:
        k(f"buffer_store_dwordx2 v[14:15], v13, {srd(sWS)}, s{sF} offen sc1")
    k("s_mov_b64 exec, -1")
    k.label(l)

def rb_128(k):
    k(f"s_lshl_b32 s{sT0}, s{sC4}, 2\ns_lshl_b32 s{sRB}, s{sG}, 3\ns_add_u32 s{sRB}, s{sRB}, s{sT0}\ns_add_u32 s{sRB}, s{sRB}, s{sW}")

def store_x(k, acc, pk, L, p, ring=None):
    k(f"s_add_u32 s{sT1}, s{sDST}, {XF}")
    k.vm(f"buffer_store_dwordx4 {vr(pk)}, v{vL16}, {srd(sWS)}, s{sT1} offen")
    td = k.vm(f"buffer_store_dwordx4 {vr(pk+4)}, v{vL16}, {srd(sWS)}, s{sT1} offen offset:1024")
    k(f"v_add_f32 v10, v{acc}, v{acc+1}\nv_mul_f32 v11, v{acc}, v{acc}\nv_add_f32 v8, v{acc+2}, v{acc+3}\nv_mul_f32 v9, v{acc+1}, v{acc+1}")
    k(f"v_fmac_f32 v11, v{acc+2}, v{acc+2}\nv_fmac_f32 v9, v{acc+3}, v{acc+3}")
    for i in range(4, 16, 2):
        k(f"v_add_f32 v10, v10, v{acc+i}\nv_fmac_f32 v11, v{acc+i}, v{acc+i}\nv_add_f32 v8, v8, v{acc+i+1}\nv_fmac_f32 v9, v{acc+i+1}, v{acc+i+1}")
        if ring and i in (4, 10): ring.issue_n(ST_PRE)
    k("v_add_f32 v10, v10, v8\nv_add_f32 v11, v11, v9\nv_mov_b32 v8, v10\nv_mov_b32 v9, v11")
    k("v_permlane32_swap_b32 v10, v8\nv_permlane32_swap_b32 v11, v9\nv_add_f32 v10, v10, v8\nv_add_f32 v11, v11, v9")
    k("s_mov_b32 exec_hi, 0")
    ts = k.vm(f"buffer_store_dwordx2 v[10:11], v{vL16}, {srd(sWS)}, s{sSD} offen")
    k("s_mov_b64 exec, -1")
    k(f"s_lshr_b32 s{sF}, s{sDST}, 8\ns_add_u32 s{sF}, s{sF}, {FLOC(L, p)}")
    if SPLIT_ST:
        publish_local(k, td)
        k(f"s_add_u32 s{sF}, s{sF}, {FLOC(L, 6 if p == 1 else 7) - FLOC(L, p)}")
    return ts
def stats_poll(k, delta):
    if not SPLIT_ST: return []
    k(f"s_add_u32 s{sF}, s{sF}, {delta}")
    ap = apoll1(k, 13, 14, sF)
    return ap

def rowmajor_addr(k, va, s_out):
    k(f"v_and_b32 v{va}, 31, v0\nv_lshlrev_b32 v{va}, 10, v{va}\nv_bfe_u32 v{va+1}, v0, 5, 1\nv_lshlrev_b32 v{va+1}, 4, v{va+1}\nv_add_u32 v{va}, v{va}, v{va+1}")
    k(f"s_and_b32 s{s_out}, s{sDST}, 0xffff8000\ns_bfe_u32 s{sT3}, s{sDST}, 0x5000a\ns_lshl_b32 s{sT3}, s{sT3}, 5\ns_add_u32 s{s_out}, s{s_out}, s{sT3}")

sU = 96
def pack_decode(k):
    nm = "pk"; u = f"s{sU}"
    k(f"s_min_u32 s83, {u}, 231")
    u = "s83"
    k(f"s_and_b32 s90, s{sW}, 1\ns_lshr_b32 s91, s{sW}, 1")
    k(f"s_cmp_lt_u32 {u}, 48\ns_cbranch_scc1 {nm}_q")
    k(f"s_cmp_lt_u32 {u}, 160\ns_cbranch_scc1 {nm}_u")
    k(f"s_cmp_lt_u32 {u}, 176\ns_cbranch_scc1 {nm}_o")
    k(f"s_sub_u32 s84, {u}, 176\ns_lshl_b32 s84, s84, 2\ns_add_u32 s84, s84, s{sW}")
    k("s_and_b32 s85, s84, 15\ns_lshr_b32 s86, s84, 4")
    k("s_lshl_b32 s87, s85, 6")
    k("s_add_u32 s74, s72, s87\ns_addc_u32 s75, s73, 0\ns_mov_b32 s76, s74\ns_mov_b32 s77, s75")
    k("s_mov_b32 s78, 1024\ns_lshl_b32 s79, s86, 7")
    k(f"s_mul_i32 s80, s85, 14\ns_add_u32 s80, s80, s86\ns_lshl_b32 s80, s80, 13\ns_add_u32 s80, s80, {WD}\ns_mov_b32 s81, 1024\ns_mov_b32 s82, {DUMP}")
    k(f"s_branch {nm}_go")
    k.label(f"{nm}_o")
    k(f"s_sub_u32 s85, {u}, 160\ns_lshr_b32 s88, s85, 3\ns_and_b32 s85, s85, 7")
    k("s_lshl_b32 s87, s85, 1\ns_add_u32 s87, s87, s90\ns_lshl_b32 s87, s87, 6")
    k("s_add_u32 s74, s66, s87\ns_addc_u32 s75, s67, 0\ns_mov_b32 s76, s74\ns_mov_b32 s77, s75")
    k("s_mov_b32 s78, 1024\ns_lshl_b32 s79, s88, 1\ns_add_u32 s79, s79, s91\ns_lshl_b32 s79, s79, 7")
    k("s_lshl_b32 s89, s91, 15\ns_xor_b32 s90, s90, s88\ns_lshl_b32 s88, s88, 1\ns_add_u32 s90, s90, s88\ns_lshl_b32 s90, s90, 10")
    k(f"s_mul_i32 s80, s85, {WO_STR}\ns_add_u32 s80, s80, s89\ns_add_u32 s80, s80, s90\ns_add_u32 s80, s80, {WO}")
    k(f"s_mov_b32 s81, 4096\ns_mov_b32 s82, {DUMP}")
    k(f"s_branch {nm}_go")
    k.label(f"{nm}_u")
    k(f"s_sub_u32 s85, {u}, 48\ns_mul_i32 s84, s85, 2341\ns_lshr_b32 s84, s84, 16\ns_mul_i32 s86, s84, 28\ns_sub_u32 s85, s85, s86")
    k(f"s_lshl_b32 s85, s85, 2\ns_add_u32 s85, s85, s{sW}\ns_lshl_b32 s87, s85, 5")
    k("s_add_u32 s74, s68, s87\ns_addc_u32 s75, s69, 0")
    k("s_add_u32 s76, s70, s87\ns_addc_u32 s77, s71, 0\ns_sub_u32 s76, s76, 32\ns_subb_u32 s77, s77, 0")
    k("s_mov_b32 s78, 3584")
    k("s_mul_i32 s86, s85, 9363\ns_lshr_b32 s86, s86, 16\ns_mul_i32 s88, s86, 7\ns_sub_u32 s88, s85, s88")
    k(f"s_mul_i32 s91, s86, {WU_STR}\ns_add_u32 s91, s91, {WU}\ns_lshl_b32 s89, s88, 10\ns_add_u32 s91, s91, s89")
    k(f"s_cmp_lt_u32 s88, 5\ns_cselect_b32 s89, 3, 5\ns_lshl_b32 s89, s89, 15")
    k(f"s_cmp_lt_u32 s88, 3\ns_cselect_b32 s81, 3, 2\ns_cselect_b32 s89, 0, s89\ns_lshl_b32 s81, s81, 10\ns_add_u32 s91, s91, s89")
    k(f"s_branch {nm}_ext")
    k.label(f"{nm}_q")
    k(f"s_cmp_ge_u32 {u}, 24\ns_cselect_b32 s84, 2, 0\ns_cselect_b32 s86, 24, 0\ns_add_u32 s84, s84, s91\ns_sub_u32 s85, {u}, s86")
    k("s_lshl_b32 s85, s85, 1\ns_add_u32 s85, s85, s90\ns_and_b32 s86, s85, 15\ns_lshr_b32 s88, s85, 4")
    k("s_lshl_b32 s87, s85, 6\ns_lshl_b32 s89, s88, 10")
    k("s_add_u32 s74, s64, s87\ns_addc_u32 s75, s65, 0\ns_mov_b32 s76, s74\ns_mov_b32 s77, s75")
    k("s_mov_b32 s78, 3072")
    k(f"s_sub_u32 s89, s89, 1024\ns_cmp_eq_u32 s88, 0\ns_cselect_b32 s89, {66*KB}, s89\ns_cselect_b32 s81, 1, 2\ns_lshl_b32 s81, s81, 10")
    k(f"s_mul_i32 s91, s86, {WQ_STR}\ns_add_u32 s91, s91, s89\ns_add_u32 s91, s91, {WQ}")
    k.label(f"{nm}_ext")
    k("s_lshl_b32 s79, s84, 7")
    k("s_lshl_b32 s89, s81, 5\ns_add_u32 s82, s91, s89\ns_lshr_b32 s89, s84, 1\ns_lshl_b32 s89, s89, 9\ns_add_u32 s82, s82, s89")
    k("s_and_b32 s89, s84, 1\ns_lshl_b32 s89, s89, 3\ns_add_u32 s82, s82, s89")
    k("s_lshl_b32 s89, s81, 3\ns_mul_i32 s89, s89, s84\ns_add_u32 s80, s91, s89")
    k.label(f"{nm}_go")
    k(f"s_cmp_ge_u32 s{sU}, 232\ns_cselect_b32 s80, {DUMP}, s80")
    k("v_bfe_u32 v4, v0, 2, 4\nv_add_u32 v4, s79, v4\nv_mul_lo_u32 v4, v4, s78")
    k("v_and_b32 v13, 3, v0\nv_lshlrev_b32 v13, 4, v13\nv_add_u32 v4, v4, v13")
    k(f"s_lshl_b32 s83, s78, 4")
    if PK_Q0: k(f"s_lshl_b32 s84, s{sW}, 13\ns_add_u32 s84, s84, {64*KB}")
    elif PK_EARLY: k(f"s_lshl_b32 s84, s{sW}, 13\ns_add_u32 s84, s84, {4*KB}")
    else: k(f"s_lshl_b32 s84, s{sW}, 14\ns_add_u32 s84, s84, {96*KB}")
    k("s_mov_b32 s86, s83\ns_mov_b32 s87, 0")
    k("v_and_b32 v13, 2, v0\nv_cmp_eq_u32 vcc, 0, v13")
    k("v_mov_b32 v14, s76\nv_mov_b32 v13, s74\nv_cndmask_b32 v14, v14, v13, vcc\nv_mov_b32 v15, s77\nv_mov_b32 v13, s75\nv_cndmask_b32 v15, v15, v13, vcc")
    k("v_add_co_u32 v4, vcc, v4, v14\nv_addc_co_u32 v5, vcc, 0, v15, vcc")
def pack_issue(k, i, sbase):
    k(f"s_add_u32 m0, s{sbase}, {i*KB}")
    if i: k("v_lshl_add_u64 v[4:5], v[4:5], 0, s[86:87]")
    return k.vm("global_load_lds_dwordx4 v[4:5], off")
def tr_addr(k, v, t):
    k(f"v_bfe_u32 v{v}, v0, 5, 1\nv_lshlrev_b32 v{v}, 9, v{v}")
    k(f"v_bfe_u32 v{t}, v0, 2, 2\nv_lshlrev_b32 v{t}, 6, v{t}\nv_add_u32 v{v}, v{v}, v{t}")
    k(f"v_bfe_u32 v{t}, v0, 4, 1\nv_lshlrev_b32 v{t}, 5, v{t}\nv_add_u32 v{v}, v{v}, v{t}")
    k(f"v_and_b32 v{t}, 1, v0\nv_lshlrev_b32 v{t}, 4, v{t}\nv_add_u32 v{v}, v{v}, v{t}")
    k(f"v_bfe_u32 v{t}, v0, 1, 1\nv_lshlrev_b32 v{t}, 3, v{t}\nv_add_u32 v{v}, v{v}, v{t}")
def ext_pair(src, dst, t0):
    return [f"v_mov_b32 v{t0}, v{src}", f"v_permlane32_swap_b32 v{src}, v{t0}", f"v_add_f32 v{src}, v{src}, v{t0}",
            f"v_cvt_pk_bf16_f32 v{dst+1}, v{src}, 0", f"v_lshlrev_b32 v{t0}, 16, v{dst+1}", f"v_sub_f32 v{src}, v{src}, v{t0}",
            f"v_cvt_pk_bf16_f32 v{dst}, v{t0}, v{src}"]
class Pack:
    def __init__(self, k): self.k = k; self.r = {}
    def issue(self, *ii):
        for i in ii: self.d = pack_issue(self.k, i, 84)
    def reads(self, *ii):
        k = self.k
        if ii[0] == 0:
            k("v_accvgpr_read_b32 v4, a212")
            k.wait(vm=self.d)
        for i in ii:
            k.lg(f"ds_read_b64_tr_b16 {ar(160+4*i,2)}, v4 offset:{i*KB}")
            self.r[i] = k.lg(f"ds_read_b64_tr_b16 {ar(162+4*i,2)}, v4 offset:{i*KB+256}")
    def csum(self, i):
        self.k.wait(lg=self.r[i])
        self.k(f"v_mfma_f32_32x32x16_bf16 {ar(196,16)}, {ar(192)}, {ar(160+4*i)}, {'0' if i == 0 else ar(196,16)}")
    def stores(self, *ii):
        k = self.k
        k.wait(lg=self.r[ii[-1]])
        for i in ii:
            k.vm(f"buffer_store_dwordx4 {ar(160+4*i)}, v{vL16}, {srd(sWS)}, s80 offen sc1")
            k("s_add_u32 s80, s80, s81")
    def ext(self):
        k = self.k
        k("v_accvgpr_read_b32 v13, a196")
        k("v_cvt_pk_bf16_f32 v15, v13, 0\nv_lshlrev_b32 v14, 16, v15\nv_sub_f32 v13, v13, v14\nv_cvt_pk_bf16_f32 v14, v14, v13")
        k("s_mov_b32 exec_hi, 0")
        self.s = k.vm(f"buffer_store_dwordx2 v[14:15], v{vL16}, {srd(sWS)}, s82 offen sc1")
        k("s_mov_b64 exec, -1")
    def pub(self):
        k = self.k
        k(f"s_lshl_b32 s{sF}, s{sU}, 7\ns_add_u32 s{sF}, s{sF}, {FPK}")
        publish_wg(k, self.s, xid=True)
    def schedule(self, job):
        t = PK_T0
        if not PK_EARLY:
            for i in range(4): job(t + i, lambda i=i: self.issue(2*i, 2*i+1))
            t += 4 + PK_GAP
        if PK_WIN2:
            job(t, self.pub)
            return t
        if PK_EARLY and PK_SP:
            for i in range(8): job(t + PK_SP*i, lambda i=i: self.stores(i))
            job(t + 8*PK_SP, self.ext)
            job(t + 8*PK_SP + PK_GAP2, self.pub)
            return t + 8*PK_SP + PK_GAP2
        if PK_EARLY:
            for i in range(4): job(t + i, lambda i=i: self.stores(2*i, 2*i+1))
            job(t + 4, self.ext)
            job(t + 4 + PK_GAP2, self.pub)
            return t + 4 + PK_GAP2
        job(t, lambda: self.reads(0, 1, 2, 3)); job(t + 1, lambda: self.reads(4, 5, 6, 7))
        for i in range(4):
            job(t + 2 + i, lambda i=i: self.stores(2*i, 2*i+1))
            job(t + 1 + i, lambda i=i: self.csum(2*i), e=14)
            job(t + 2 + i, lambda i=i: self.csum(2*i+1), e=0)
        job(t + 6, self.ext)
        job(t + 6 + PK_GAP2, self.pub)
        return t + 6 + PK_GAP2
def qkv_consts(vT, vRS, vR):
    return [f"v_cvt_pk_bf16_f32 v{vT}, v{vRS}, 0", f"v_lshlrev_b32 v{vT+1}, 16, v{vT}", f"v_sub_f32 v{vT+2}, v{vRS}, v{vT+1}",
            f"v_cvt_pk_bf16_f32 v{vT}, v{vT+1}, v{vT+2}", f"v_mov_b32 v{vT+1}, 0", f"v_mov_b32 v{vT+2}, 0", f"v_mov_b32 v{vT+3}, 0",
            f"v_cmp_gt_u32 vcc, 512, v{vL16}", f"v_mov_b32 v{vT+4}, 0x3f803f80", f"v_cndmask_b32 v{vT+4}, 0, v{vT+4}, vcc",
            f"v_mov_b32 v{vT+5}, 0", f"v_mov_b32 v{vT+6}, 0", f"v_mov_b32 v{vT+7}, 0",
            f"v_mul_f32 v{vRS+1}, {hex(f2u(0.25*LOG2E))}, v{vRS}",
            "v_bfe_u32 v12, v0, 4, 1", "v_lshlrev_b32 v12, 17, v12", "v_and_b32 v13, 15, v0", "v_lshlrev_b32 v13, 4, v13", "v_add_u32 v12, v12, v13",
            "v_bfe_u32 v13, v0, 5, 1", "v_lshlrev_b32 v13, 8, v13", "v_add_u32 v12, v12, v13",
            f"v_mfma_f32_32x32x16_bf16 {vr(vR,16)}, {vr(vT)}, {vr(vT+4)}, 0"]
def qk_tile(a, dst, sc, fl, p0):
    o = []
    sb, hs = (sB, KB) if dst == QF else (sCc, 128*KB)
    for half in range(2):
        p = p0 + 4*half
        for j in range(4):
            r = a + 8*half + 2*j
            o += [f"v_mul_f32 v{r}, v{r}, v{sc}", f"v_mul_f32 v{r+1}, v{r+1}, v{sc}", f"v_cvt_pk_bf16_f32 v{p+j}, v{r}, v{r+1}"]
        o += [f"s_add_u32 s{sT2}, s{sb}, {dst + half*hs}", f"buffer_store_dwordx4 {vr(p)}, v{vL16}, {srd(sWS)}, s{sT2} offen{fl}"]
    return o
def v_tile(a, L, vR, p0):
    o = [f"s_add_u32 s{sT2}, s{sCc}, {KVF(L) + KB}"]
    for u in range(2):
        p = p0 + 4*u
        for j in range(4):
            r = a + 8*u + 2*j; q = vR + 8*u + 2*j
            o += [f"v_mul_f32 v{r}, v{r}, v{q}", f"v_mul_f32 v{r+1}, v{r+1}, v{q+1}", f"v_cvt_pk_bf16_f32 v{p+j}, v{r}, v{r+1}"]
        o.append(f"buffer_store_dwordx4 {vr(p)}, v12, {srd(sWS)}, s{sT2} offen offset:{u*512} sc1")
    return o
def kv_flag(k, L, tkv):
    k(f"s_lshl_b32 s{sF}, s{sA}, 4\ns_lshr_b32 s{sT1}, s{sRB}, 2\ns_add_u32 s{sF}, s{sF}, s{sT1}\ns_lshl_b32 s{sF}, s{sF}, 7\ns_add_u32 s{sF}, s{sF}, {FKV(L)}")
    publish_wg(k, tkv)
def q_flag(k, L, tq):
    k(f"s_lshr_b32 s{sF}, s{sRB}, 3\ns_lshl_b32 s{sF}, s{sF}, 4\ns_add_u32 s{sF}, s{sF}, s{sA}\ns_lshl_b32 s{sF}, s{sF}, 3\ns_and_b32 s{sT1}, s{sRB}, 7\ns_add_u32 s{sF}, s{sF}, s{sT1}\ns_lshl_b32 s{sF}, s{sF}, 3\ns_add_u32 s{sF}, s{sF}, {FLOC(L-1,5)}")
    publish_local(k, tq, force_global=(L == 0))

WARM = True
LIN_AT = 99
LIN_U = True
Q0_ROT = True
Q0_MARKS = False
Q0_MARKJ = ()
Q0_SCHED = ((3, 4), (5,), (6,), (7,), (), (), (), ())
LATE_AT = 1
Q0_UP = 3
PK_AT = (3, 3, 4, 4, 5, 5, 6, 6)
def ph_qkv0(k, late):
    vX, vACC, vST, vEXT, vRS, vT, vR = 16, 144, 192, 8, 6, 224, 232
    vXA, vWA, vXR, vTR, vTW, vCS, vCW, vONE = 10, 12, 196, 200, 202, 204, 208, 220
    sXS, sWR, sXL, sWL = 60, 56, sD, sE
    k(f"s_lshr_b32 s{sRB}, s{sG}, 1\ns_lshl_b32 s{sRB}, s{sRB}, 2\ns_add_u32 s{sRB}, s{sRB}, s{sC3}\ns_lshl_b32 s{sRB}, s{sRB}, 2\ns_add_u32 s{sRB}, s{sRB}, s{sW}")
    k(f"s_and_b32 s{sA}, s{sG}, 1\ns_lshl_b32 s{sA}, s{sA}, 3\ns_and_b32 s{sT0}, s{sC}, 7\ns_add_u32 s{sA}, s{sA}, s{sT0}")
    k(f"v_bfe_u32 v{vXA}, v0, 3, 3\nv_lshlrev_b32 v{vXA}, 10, v{vXA}\nv_and_b32 v13, 7, v0\nv_bfe_u32 v14, v0, 4, 2\nv_xor_b32 v13, v13, v14")
    k(f"v_lshlrev_b32 v13, 4, v13\nv_add_u32 v{vXA}, v{vXA}, v13\nv_xor_b32 v{vXA+1}, 64, v{vXA}")
    k(f"v_bfe_u32 v{vWA}, v0, 2, 4\nv_mul_u32_u24 v{vWA}, 3072, v{vWA}\nv_and_b32 v13, 3, v0\nv_lshlrev_b32 v13, 4, v13\nv_add_u32 v{vWA}, v{vWA}, v13")
    k(f"s_lshl_b32 s{sX}, s{sRB}, 15")
    k(f"s_mul_i32 s{sX2}, s{sW}, 49152\ns_lshl_b32 s{sT0}, s{sA}, 6\ns_add_u32 s{sX2}, s{sX2}, s{sT0}")
    k(f"s_lshl_b32 s{sXL}, s{sW}, 14\ns_add_u32 s{sXL}, s{sXL}, {96*KB}\ns_mul_i32 s{sWL}, s{sW}, 3072")
    k("s_waitcnt lgkmcnt(0)")
    if Q0_MARKS: mark(k, 'karg')
    k(f"s_mov_b32 s{sWR}, s64\ns_and_b32 s{sWR+1}, s65, 0xffff\ns_mov_b32 s{sWR+2}, {512*3072}\ns_mov_b32 s{sWR+3}, 0x20000")
    k(f"s_and_b32 s{sXS+1}, s{sXS+1}, 0xffff\ns_mov_b32 s{sXS+2}, {2*MB}\ns_mov_b32 s{sXS+3}, 0x20000")
    ct = {}; cn = {j: 0 for j in range(8)}
    k(f"s_lshl_b32 s{sCc}, s{sC3}, 1\ns_add_u32 s{sCc}, s{sCc}, s{sC}")
    def rot(j):
        k(f"s_add_u32 s{sT3}, s{sCc}, {j}\ns_and_b32 s{sT3}, s{sT3}, {7 if Q0_ROT else 0}")
        if not Q0_ROT: k(f"s_mov_b32 s{sT3}, {j}")
        k(f"s_lshl_b32 s{sS0}, s{sT3}, 7\ns_add_u32 s{sS0}, s{sS0}, s{sX}")
        k(f"s_mul_i32 s{sS1}, s{sT3}, {4*49152}\ns_add_u32 s{sS1}, s{sS1}, s{sX2}")
    def ldW(j, t):
        k(f"s_add_u32 m0, s{sWL}, {(12*j + t)*KB}\ns_add_u32 s{sT2}, s{sS1}, {((t+1) % 3)*1024}")
        ct[j] = k.vm(f"buffer_load_dwordx4 v{vWA}, {srd(sWR)}, s{sT2} offen lds"); cn[j] += 1
    def ldX(j, i):
        if i == 0: rot(j)
        k(f"s_add_u32 m0, s{sXL}, {(j & 3)*4*KB + i*KB}\ns_add_u32 s{sT2}, s{sS0}, {i*8192}")
        ct[j] = k.vm(f"buffer_load_dwordx4 v{vXA + (i & 1)}, {srd(sXS)}, s{sT2} offen lds"); cn[j] += 1
    def chunk_loads(j):
        return [lambda i=i: ldX(j, i) for i in range(4)] + [lambda t=t: ldW(j, t) for t in range(3)]
    for f in chunk_loads(0): f()
    if Q0_MARKS: mark(k, 'up0')
    late(k)
    pack_decode(k)
    k(f"s_cmp_eq_u32 s{sW}, 0\ns_cselect_b64 s[90:91], s[68:69], s[70:71]")
    k(f"s_cmp_eq_u32 s{sW}, 2\ns_cselect_b64 s[90:91], s[72:73], s[90:91]")
    k(f"s_cmp_eq_u32 s{sW}, 3\ns_cselect_b64 s[90:91], s[66:67], s[90:91]\ns_cselect_b32 s{sT0}, 16, 56")
    k(f"s_mul_i32 s{sT1}, s{sT0}, s{sU}\ns_sub_u32 s{sT0}, s{sT0}, 1")
    k(f"v_and_b32 v254, 63, v0\nv_min_u32 v254, s{sT0}, v254\nv_add_u32 v254, s{sT1}, v254\nv_lshlrev_b32 v254, 7, v254")
    pk = G.pk = Pack(k)
    k(f"s_and_b32 s{sT0}, s{sC}, 7\ns_and_b32 s{sT1}, s{sC}, 15")
    k("v_and_b32 v13, 15, v0\nv_min_u32 v14, 13, v13")
    k(f"s_lshr_b32 s{sT2}, s{sT0}, 1\ns_add_u32 s{sT2}, s{sT2}, 176\nv_lshl_add_u32 v252, v14, 2, s{sT2}")
    k(f"s_mul_i32 s{sT2}, s{sT1}, 7\ns_add_u32 s{sT3}, s{sT2}, 6\ns_lshr_b32 s{sT2}, s{sT2}, 2\ns_lshr_b32 s{sT3}, s{sT3}, 2")
    k(f"v_lshrrev_b32 v14, 2, v13\nv_add_u32 v14, s{sT2}, v14\nv_min_u32 v14, s{sT3}, v14\nv_and_b32 v15, 3, v13\nv_mul_u32_u24 v15, 28, v15")
    k("v_add3_u32 v14, v14, v15, 48")
    k("v_and_b32 v15, 16, v0\nv_cmp_ne_u32 vcc, 0, v15\nv_cndmask_b32 v252, v252, v14, vcc")
    k(f"s_add_u32 s{sT0}, s{sT0}, 160\nv_and_b32 v14, 1, v13\nv_lshl_add_u32 v251, v14, 3, s{sT0}")
    k(f"s_lshr_b32 s{sT1}, s{sT1}, 1\nv_mul_u32_u24 v14, 24, v14\nv_lshrrev_b32 v15, 1, v13\nv_min_u32 v15, 2, v15\nv_lshlrev_b32 v15, 3, v15")
    k(f"v_add3_u32 v14, v14, v15, s{sT1}")
    k("v_cndmask_b32 v251, v251, v14, vcc")
    k(f"v_cmp_gt_u32 vcc, 512, v{vL16}\nv_cndmask_b32 v252, v251, v252, vcc\nv_lshlrev_b32 v252, 7, v252\nv_accvgpr_write_b32 a213, v252")
    if WARM:
        k("s_getpc_b64 s[88:89]")
        k(f"s_lshl_b32 s{sT0}, s{sC}, 1\ns_add_u32 s{sT0}, s{sT0}, s{sW}\ns_and_b32 s{sT0}, s{sT0}, 63\ns_lshl_b32 s{sT0}, s{sT0}, 10")
        k(f"v_add_u32 v245, s{sT0}, v{vL16}")
        k(f"v_min_u32 v244, {(WS_PAGES-1)*16}, v{vL16}\nv_lshlrev_b32 v244, 17, v244")
        k(f"s_cmp_eq_u32 s{sW}, 1\ns_cselect_b64 s[88:89], s[{sAUX}:{sAUX+1}], s[88:89]")
        k(f"s_cmp_eq_u32 s{sW}, 0\ns_cselect_b64 s[88:89], s[{sWS}:{sWS+1}], s[88:89]\ns_cselect_b64 vcc, -1, 0")
        k("v_cndmask_b32 v245, v245, v244, vcc")
    if PK_Q0: pk.issue(*range(8))
    k(f"v_and_b32 v13, 31, v0\nv_bfe_u32 v14, v0, 1, 3\nv_bfe_u32 v15, v0, 5, 1\nv_xor_b32 v14, v14, v15\nv_lshlrev_b32 v14, 4, v14\nv_lshl_add_u32 v13, v13, 7, v14")
    for e in range(4):
        k(f"v_xor_b32 v{vXR+e}, {e*32}, v13\nv_add_u32 v{vXR+e}, s{sXL}, v{vXR+e}")
    tr_addr(k, vTR, 13)
    k(f"v_add_u32 v{vTR+1}, {48*KB}, v{vTR}\nv_add_u32 v{vTW}, s{sWL}, v{vTR}\nv_add_u32 v{vTW+1}, {48*KB}, v{vTW}")
    k(f"v_mov_b32 v{vONE}, 0x3f803f80\nv_add_u32 v255, s84, v{vTR}\nv_accvgpr_write_b32 a212, v255")
    for r in range(192, 196): k(f"v_accvgpr_write_b32 a{r}, v{vONE}")
    for r in list(range(vST, vST+4)) + list(range(vCS, vCS+3)): k(f"v_mov_b32 v{r}, 0")
    def reads(j):
        o = []
        for e in range(4):
            o.append(f"ds_read_b128 {vr(vX + 16*j + 4*e)}, v{vXR+e} offset:{(j & 3)*4*KB}")
        for t in range(3):
            off = (12*(j & 3) + t)*KB
            o.append(f"ds_read_b64_tr_b16 {vr(vCW+4*t,2)}, v{vTW + (j >> 2)} offset:{off}")
            o.append(f"ds_read_b64_tr_b16 {vr(vCW+4*t+2,2)}, v{vTW + (j >> 2)} offset:{off+256}")
        for b in range(12):
            off = (12*(j & 3) + b)*KB; r = 48*(j & 1) + 4*b
            o.append(f"ds_read_b64_tr_b16 {ar(r,2)}, v{vTR + (j >> 2)} offset:{off}")
            o.append(f"ds_read_b64_tr_b16 {ar(r+2,2)}, v{vTR + (j >> 2)} offset:{off+256}")
        return o
    def dots(j):
        for i in range(16):
            r = vX + 16*j + i
            k(f"v_dot2c_f32_bf16 v{vST + 2*(i & 1)}, v{vONE}, v{r}\nv_dot2c_f32_bf16 v{vST + 1 + 2*(i & 1)}, v{r}, v{r}")
        for i in range(4):
            for t in range(3): k(f"v_dot2c_f32_bf16 v{vCS+t}, v{vONE}, v{vCW+4*t+i}")
    def xid():
        k(f"s_add_u32 s{sTAG}, s{sTAG}, 0x7f4a7c15\ns_addc_u32 s{sTAG+1}, s{sTAG+1}, 0x9e3779b9")
        k("v_mov_b32 v13, 0")
        k("s_mov_b64 exec, 1")
        if FLAG_TOUCH:
            k(f"s_lshl_b32 s{sF}, s{sA}, 4\ns_lshr_b32 s{sT1}, s{sRB}, 2\ns_add_u32 s{sF}, s{sF}, s{sT1}\ns_lshl_b32 s{sF}, s{sF}, 7\ns_add_u32 s{sF}, s{sF}, {FKV(0)}")
            k.vm(f"buffer_load_dword v5, v13, {srd(sWS)}, s{sF} offen sc1")
            k(f"s_lshl_b32 s{sF}, s{sU}, 7\ns_add_u32 s{sF}, s{sF}, {FPK}")
            k.vm(f"buffer_load_dword v5, v13, {srd(sWS)}, s{sF} offen sc1")
        k("s_mov_b64 exec, -1")
    def lin_touch():
        k.vm("global_load_dword v253, v254, s[90:91]")
    side = []
    if Q0_MARKS: mark(k, 'alu')
    if WARM and WARM_AT == 0: k.vm(f"global_load_dword v253, v245, s[88:89]")
    for j in range(1, Q0_UP):
        for f in chunk_loads(j): f()
    if WARM and WARM_AT == 1: k.vm(f"global_load_dword v253, v245, s[88:89]")
    if Q0_MARKS: mark(k, 'iss')
    k.wait(vm=ct[0])
    if Q0_MARKS: mark(k, 'w0')
    k("s_barrier")
    mark(k, 'd0')
    rl = reads(0)
    for x in rl[:10]: t10 = k.lg(x)
    for x in rl[10:]: k.lg(x)
    k.wait(lg=t10)
    dots(0)
    for j in range(8):
        for c_ in Q0_SCHED[j]:
            assert c_ - 4 <= j
            side += chunk_loads(c_)
        if j == 1: side.append(xid)
        if WARM and WARM_AT == j + 2: side.append(lambda: k.vm(f"global_load_dword v253, v245, s[88:89]"))
        if PK_EARLY: side += [lambda i=i: pk.issue(i) for i in range(8) if PK_AT[i] == j]
        if j == LIN_AT and not PK_Q0: side.append(lin_touch)
        if PK_Q0:
            assert all(c_ < 5 or j > PK_RD for c_ in Q0_SCHED[j])
            if j == PK_RD: side += [lambda i=i: pk.reads(2*i, 2*i+1) for i in range(4)]
            if j == PK_ST: side += [lambda i=i: (pk.stores(i), pk.csum(i)) for i in range(4)]
            if j == PK_ST + 1: side += [lambda i=i: (pk.stores(i), pk.csum(i)) for i in range(4, 8)]
            if j == PK_ST + 2: side.append(pk.ext)
        k.wait_all(vm=False)
        rl = []
        if j < 7:
            assert cn[j+1] == 7
            k.wait(vm=ct[j+1]); k("s_barrier")
            if j in Q0_MARKJ: mark(k, f'c{j+1}')
            rl = reads(j + 1)
        t10 = None; nr = 0
        if j == 7:
            tail = f"s_lshr_b32 s{sT0}, s{sW}, 1\ns_lshl_b32 s{sT0}, s{sT0}, 9\ns_and_b32 s{sT1}, s{sW}, 1\ns_lshl_b32 s{sT1}, s{sT1}, 3\ns_add_u32 s{sT0}, s{sT0}, s{sT1}".split('\n')
            tail += [f"v_and_b32 v13, 0x1f0, v{vL16}", f"v_add_u32 v13, s{sT0}, v13"]
            for t in range(3): tail += ext_pair(vCS+t, vCW+2*t, 14) + [f"ds_write_b64 v13, {vr(vCW+2*t,2)} offset:{t*KB}"]
            fin = fin_stats(vST, vEXT, vRS)[NTREE:] + qkv_consts(vT, vRS, vR)
            tail += [f"v_add_f32 v{vST}, v{vST}, v{vST+2}", f"v_add_f32 v{vST+1}, v{vST+1}, v{vST+3}"] + fin[:18]
            tail += ["s_waitcnt lgkmcnt(0)", "s_barrier"] + [f"ds_read_b128 {vr(vCW+4*t)}, v{vL16} offset:{t*KB}" for t in range(3)] + fin[18:]
            tail += f"s_lshl_b32 s{sCc}, s{sA}, 18\ns_lshl_b32 s{sT1}, s{sRB}, 11\ns_add_u32 s{sCc}, s{sCc}, s{sT1}".split('\n')
            tail += f"s_mul_i32 s{sB}, s{sRB}, {112*KB}\ns_lshl_b32 s{sT1}, s{sA}, 11\ns_add_u32 s{sB}, s{sB}, s{sT1}".split('\n')
            assert not side
            n_ = -(-len(tail) // 12)
            side = [lambda c=tail[i:i+n_]: [k(x) for x in c] for i in range(0, len(tail), n_)]
        for b in range(12):
            ks = 4*j + b // 3; t = b % 3
            acc = vr(vACC + 16*t, 16); w = ar(48*(j & 1) + 4*b); x = vr(vX + 4*ks)
            A, B = (x, w) if t == 1 else (w, x)
            k(f"v_mfma_f32_32x32x16_bf16 {acc}, {A}, {B}, {'0' if ks == 0 else acc}")
            if ks == 0 and t == 0: mark(k, 'm0')
            for _ in range(3):
                if rl:
                    t_ = k.lg(rl.pop(0)); nr += 1
                    if nr == 10: t10 = t_
            if side: side.pop(0)()
            if len(side) > 11 - b: side.pop(0)()
        if j < 7:
            assert not rl
            k.wait(lg=t10)
            dots(j + 1)
    while side: side.pop(0)()
    mark(k, 'loop')
    k.wait_all(vm=False)
    for t in range(3):
        c = vCW + 4*t
        acc = vr(vACC + 16*t, 16)
        A, B = (vr(vEXT), vr(c)) if t == 1 else (vr(c), vr(vEXT))
        k(f"v_mfma_f32_32x32x16_bf16 {acc}, {A}, {B}, {acc}")
    t_ = None
    for x in qk_tile(vACC, KVF(0), vRS, " sc1", vX) + v_tile(vACC+16, 0, vR, vX+8) + qk_tile(vACC+32, QF, vRS+1, " sc1", vX+16):
        if x.startswith('buffer'): t_ = k.vm(x)
        else: k(x)
    mark(k, 'st')
    return t_, t_

def ph_qkv(k, L, ring, b0):
    vX, vACC, vST, vEXT, vRS, vT, vR = 16, 144, 192, 8, 6, 224, 232
    rb_128(k)
    k(f"s_and_b32 s{sA}, s{sC}, 15")
    k(f"s_lshl_b32 s{sX}, s{sRB}, 15\ns_add_u32 s{sX}, s{sX}, {XF}")
    set_lds_bases(k)
    ops = []
    b = b0
    for tiles in ((0, 1), (2,)):
        for ks in range(33):
            for t in tiles:
                ops.append(dict(b=b, bmin=b, bmax=b, xi=(ks if ks < 32 else None), x=(vr(vX+4*ks) if ks < 32 else vr(vEXT)),
                                acc=vr(vACC+16*t, 16), swap=(t == 1), first=(ks == 0)))
                b += 1
    xq = XLoader(k, 32, lambda i: vr(vX+4*i), lin_src(k))
    res = {}
    se = stats_emitters(k, vST, res)
    k(f"s_lshl_b32 s{sCc}, s{sA}, 18\ns_lshl_b32 s{sT1}, s{sRB}, 11\ns_add_u32 s{sCc}, s{sCc}, s{sT1}")
    k(f"s_mul_i32 s{sB}, s{sRB}, {112*KB}\ns_lshl_b32 s{sT1}, s{sA}, 11\ns_add_u32 s{sB}, s{sB}, s{sT1}")
    assert ring.issued == ring.total
    g = Gemm(k, ring, ops, {0})
    g.start()
    ring.issue_n(4)
    publish_local(k, G.tx)
    ring.issue_n(4)
    k(f"s_lshl_b32 s{sF}, s{sRB}, 7\ns_add_u32 s{sF}, s{sF}, {FLOC(L-1, 8)}")
    poll16(k)
    aps = stats_poll(k, FLOC(L-1,7) - FLOC(L-1,8))
    fin = fin_stats(vST, vEXT, vRS) + qkv_consts(vT, vRS, vR)
    epi = qk_tile(vACC, KVF(L), vRS, " sc1", vST) + v_tile(vACC+16, L, vR, vST+16)
    st = dict(i=0, j=0, t=None)
    def put(x):
        if x.startswith('buffer'): st['t'] = k.vm(x)
        else: k(x)
    def filler(m):
        if aps and m == 4: aps.issue()
        if m == 22:
            if aps: aps.check()
            for e in se: e()
        if 44 <= m < 64:
            if st['i'] == 0: k.wait(vm=res['t'])
            for _ in range(3):
                if st['i'] < len(fin): k(fin[st['i']]); st['i'] += 1
        if m >= 68:
            for _ in range(4):
                if st['j'] < len(epi): put(epi[st['j']]); st['j'] += 1
    g.run(xq, n0=8, filler=filler)
    assert st['i'] == len(fin) and st['j'] == len(epi)
    tkv = st['t']
    for x in qk_tile(vACC + 32, QF, vRS + 1, "", vST+8): put(x)
    mark(k, 'st')
    return tkv, st['t']

def code_touch(k, vd, skip=0):
    if not CODE_TOUCH: return
    k(f"s_getpc_b64 s[{sPC}:{sPC+1}]\ns_add_u32 s{sPC}, s{sPC}, s{sCT}\ns_addc_u32 s{sPC+1}, s{sPC+1}, 0")
    k.vm(f"global_load_dword v{vd}, v{vL16}, s[{sPC}:{sPC+1}] offset:{skip}")

def flag_touch(k, L, va, vd):
    if not FL_TOUCH: return
    k(f"v_bfe_u32 v{va}, v0, 3, 3\nv_lshlrev_b32 v{va}, 6, v{va}\nv_and_or_b32 v{va}, v0, 7, v{va}\nv_lshlrev_b32 v{va}, 7, v{va}")
    k(f"s_lshl_b32 s{sT3}, s{sG}, 10\ns_add_u32 s{sT3}, s{sT3}, {FLOC(L,0)}")
    k.vm(f"buffer_load_dword v{vd}, v{va}, {srd(sWS)}, s{sT3} offen sc1")

def ph_att(k, L, ring, tkv, tq):
    vO, vS0, vKV, aQ = 16, 144, 208, aWB
    NS = 4
    vS = [vS0 + 16*i for i in range(NS)]
    vK, vV, vIDX, vL128 = 6, 7, 8, 9
    sK, sHD = sB, sE
    k(f"s_lshl_b32 s{sHD}, s{sC}, 16")
    k(f"s_lshl_b32 s{sT0}, s{sC}, 17\ns_add_u32 s{sT0}, s{sT0}, s{sW4K}\ns_add_u32 s{sT0}, s{sT0}, {KVF(L)}")
    k("v_and_b32 v10, 0x33, v0\nv_bfe_u32 v11, v0, 2, 1\nv_lshlrev_b32 v11, 3, v11\nv_or_b32 v10, v10, v11")
    k(f"v_bfe_u32 v11, v0, 3, 1\nv_lshlrev_b32 v11, 2, v11\nv_or_b32 v10, v10, v11\nv_lshl_add_u32 v{vK}, v10, 4, s{sT0}")
    k(f"v_and_b32 v10, 15, v0\nv_bfe_u32 v11, v0, 5, 1\nv_lshlrev_b32 v11, 4, v11\nv_add_u32 v10, v10, v11\nv_lshl_add_u32 v{vV}, v10, 4, s{sT0}")
    k(f"v_mov_b32 v{vIDX}, 0xdddddddd\nv_lshlrev_b32 v{vL128}, 3, v{vL16}")
    k(f"s_lshl_b32 s{sK}, s{sG}, 14")
    k("v_and_b32 v10, 27, v0\nv_cmp_eq_u32 vcc, 16, v10\nv_mov_b32 v11, 0x3f803f80\nv_cndmask_b32 v11, 0, v11, vcc")
    k("v_mov_b32 v144, v11")
    k(f"s_lshr_b32 s{sT0}, s{sC}, 1\ns_lshl_b32 s{sD}, s{sT0}, 11\ns_add_u32 s{sD}, s{sD}, {FKV(L)}")
    k(f"s_lshl_b32 s{sT3}, s{sG}, 8\ns_add_u32 s{sT3}, s{sT3}, s{sD}")
    if L == 0:
        k(f"v_and_b32 v11, 1, v0\nv_lshlrev_b32 v11, 7, v11\nv_add_u32 v11, s{sT3}, v11")
        k(f"v_cmp_gt_u32 vcc, 512, v{vL16}")
    k(f"s_lshr_b32 s{sT1}, s{sW}, 1\ns_lshl_b32 s{sT1}, s{sT1}, 7\ns_add_u32 s{sD}, s{sD}, s{sT1}")
    if L:
        k(f"s_add_u32 s{sT3}, s{sT3}, s{sT1}")
        k(f"s_lshl_b32 s{sT2}, s{sG}, 10\ns_lshl_b32 s{sT0}, s{sT0}, 6\ns_add_u32 s{sT2}, s{sT2}, s{sT0}\ns_add_u32 s{sT2}, s{sT2}, {FLOC(L-1,5)}")
        k(f"v_mov_b32 v12, s{sT3}\nv_and_b32 v11, 7, v0\nv_lshlrev_b32 v11, 3, v11\nv_add_u32 v11, s{sT2}, v11")
        k(f"v_cmp_gt_u32 vcc, 512, v{vL16}\nv_cndmask_b32 v11, v11, v12, vcc")
    k(f"v_and_b32 v12, 7, v0\nv_lshlrev_b32 v12, 8, v12")
    k(f"s_mul_i32 s{sT2}, s{sG}, {8*112*KB}\ns_lshl_b32 s{sT3}, s{sC}, 10\ns_add_u32 s{sT2}, s{sT2}, s{sT3}\ns_add_u32 s{sT2}, s{sT2}, {QF}")
    sQ = list(range(64, 72))
    for p in range(4):
        k(f"s_xor_b32 s{sT3}, s{sW}, {p}\ns_mul_i32 s{sT3}, s{sT3}, {2*112*KB}\ns_add_u32 s{sQ[2*p]}, s{sT3}, s{sT2}\ns_add_u32 s{sQ[2*p+1]}, s{sQ[2*p]}, {112*KB}")
    sTH, sTW, sFO = 72, 73, 79
    k(f"s_lshl_b32 s{sT3}, s{sU}, 2\ns_add_u32 s{sT3}, s{sT3}, s{sW}")
    k(f"s_mul_i32 s{sTH}, s{sT3}, {7*KB}\ns_add_u32 s{sTH}, s{sTH}, {HF}")
    k(f"s_lshl_b32 s{sT0}, s{sT3}, 11\ns_add_u32 s{sT0}, s{sT0}, {XF}\ns_lshl_b32 s{sT1}, s{sT3}, 8\ns_add_u32 s{sT1}, s{sT1}, {SX}")
    k(f"v_and_b32 v3, 0x780, v{vL128}\nv_add_u32 v3, s{sT0}, v3\nv_and_b32 v13, 0x80, v{vL128}\nv_add_u32 v13, s{sT1}, v13\nv_cndmask_b32 v3, v13, v3, vcc")
    k(f"s_lshl_b32 s{sTW}, s{sC4}, 2\ns_add_u32 s{sTW}, s{sTW}, s{sW}\ns_mul_i32 s{sTW}, s{sTW}, {TOUCH_KBS[L] * KB // 8}")
    k(f"s_add_u32 s{sTW}, s{sTW}, s{sSEG+1}\ns_add_u32 s{sTW}, s{sTW}, {32*KB}")
    k(f"s_and_b32 s{sCT}, s{sT3}, 31\ns_lshl_b32 s{sCT}, s{sCT}, 10")
    k(f"s_lshl_b32 s{sFO}, s{sG}, 2\ns_add_u32 s{sFO}, s{sFO}, s{sW}\ns_lshl_b32 s{sFO}, s{sFO}, 5\ns_add_u32 s{sFO}, s{sFO}, s{sC}\ns_lshl_b32 s{sFO}, s{sFO}, 3\ns_add_u32 s{sFO}, s{sFO}, {FLOC(L,0)}")
    if L == 0:
        for i in range(48, 128): k(f"v_mov_b32 v{vO+i}, 0")
    mark(k, 'pre')
    if L: q_flag(k, L, tq)
    kv_flag(k, L, tkv)
    if L == 0 and PK_Q0:
        k(f"s_lshl_b32 s{sF}, s{sU}, 7\ns_add_u32 s{sF}, s{sF}, {FPK}\nv_mov_b32 v145, v12")
        publish_wg(k, None, xid=True, barrier=False)
        k("v_mov_b32 v12, v145")
    mark(k, 'flag')
    if L == 0 and PK_EARLY:
        G.pk.reads(*range(8))
        for i in range(8): G.pk.csum(i)
        if PK_WIN2:
            G.pk.stores(*range(8)); G.pk.ext()
    if L:
        for i in range(48, 128): k(f"v_mov_b32 v{vO+i}, 0")
    if L == 0 and LIN_AT == 'flag': k.vm("global_load_dword v253, v254, s[90:91]")
    for b in range(4):
        for j in range(8): k(f"v_mov_b32 v{vKV+12*b+4+j}, v144")
    k(f"s_mov_b32 s{sF}, 0")
    poll(k, 11, 14, sleep=SLEEP1[L])
    mark(k, 'poll')
    K = lambda t: vr(vKV + 12*(t % 4))
    V = lambda t, u: vr(vKV + 12*(t % 4) + 4 + 4*u)
    kt = {}; vt = {}
    def ldK(t):
        if t and (t & 1) == 0: k(f"s_add_u32 s{sK}, s{sK}, 0x4000\ns_and_b32 s{sK}, s{sK}, 0x1ffff")
        kt[t] = k.vm(f"buffer_load_dwordx4 {K(t)}, v{vK}, {srd(sWS)}, s{sK} offen offset:{(t & 1)*2*KB} sc1")
    def ldV(t):
        k(f"s_mov_b64 exec, s[{sMSK}:{sMSK+1}]")
        k.vm(f"buffer_load_dwordx4 {V(t,0)}, v{vV}, {srd(sWS)}, s{sK} offen offset:{(t & 1)*2*KB+KB} sc1")
        vt[t] = k.vm(f"buffer_load_dwordx4 {V(t,1)}, v{vV}, {srd(sWS)}, s{sK} offen offset:{(t & 1)*2*KB+KB+512} sc1")
        k("s_mov_b64 exec, -1")
    def ldKV(t):
        ldK(t); ldV(t); kt[t] = vt[t]
    ldK(0)
    qt = {}
    for s in range(8):
        qt[s] = k.vm(f"buffer_load_dwordx4 {ar(aQ+4*s)}, v{vL16}, {srd(sWS)}, s{sQ[s]} offen sc1")
        if s == 2: ldV(0)
    ldKV(1)
    ap2 = apoll1(k, 12, 10, sD, sleep=SLEEP2)
    for i in range(48): k(f"v_mov_b32 v{vO+i}, 0")
    NT = ATT_NT
    steps = [(t, q) for t in range(16 - NT) for q in range(8)] + [(t, q) for q in range(2, 8) for t in range(16 - NT, 16)] + [(t, q) for q in range(2) for t in range(16 - NT, 16)]
    n = len(steps)
    LA = NS - 1
    def qk(i):
        t, q = steps[i]
        k.wait(vm=max(kt[t], qt[q]) if t == 0 else kt[t])
        k(f"v_mfma_f32_32x32x16_bf16 {vr(vS[i % NS],16)}, {K(t)}, {ar(aQ+4*q)}, 0")
    def pv(i, u):
        t, q = steps[i]
        k.wait(vm=vt[t])
        k(f"v_smfmac_f32_32x32x32_bf16 {vr(vO+16*q,16)}, {V(t,u)}, {vr(vS[i % NS]+8*u,8)}, v{vIDX}")
    for i in range(LA): qk(i)
    mark(k, 'm0')
    ring.limit = 96
    jobs = {}
    def job(i, f, e=10): jobs.setdefault((i, e), []).append(f)
    job(0, lambda: code_touch(k, 10))
    job(P2_AT - 4, ap2.issue)
    job(P2_AT, lambda: (ap2.check(), ldKV(2), ldKV(3)))
    for t in range(1, 13): job(8*t, lambda t=t: ldKV(t + 3))
    def kvpf(j):
        def f():
            k(f"s_add_u32 s{sT0}, s{sG}, {2*j}\nv_bfe_u32 v13, v0, 5, 1\nv_add_u32 v13, s{sT0}, v13\nv_and_b32 v13, 7, v13\nv_lshlrev_b32 v13, 14, v13")
            k(f"v_and_b32 v14, 0xf80, v{vL128}\nv_add_u32 v13, v13, v14")
            k(f"s_lshl_b32 s{sT0}, s{sC}, 17\ns_add_u32 s{sT0}, s{sT0}, s{sW4K}\ns_add_u32 s{sT0}, s{sT0}, {KVF(L)}")
            k.vm(f"buffer_load_dword v5, v13, {srd(sWS)}, s{sT0} offen sc1")
        return f
    if KV_PF[L]:
        for j in (2, 3): job(KV_PF[L] + 8*(j-2), kvpf(j))
    if L == 0:
        CHK_AT = CHK_Q0 if PK_Q0 else G.pk.schedule(job) + CHK_GAP
        apk = APoll(k, [f"buffer_load_dwordx2 v[10:11], v12, {srd(sWS)}, s{sX} offen offset:8 sc1"],
                    f"v_cmp_ne_u64 vcc, s[{sTAG}:{sTAG+1}], v[10:11]")
        def chk0():
            k(f"v_accvgpr_read_b32 v12, a213\ns_mov_b32 s{sX}, {FPK}")
            apk.issue()
        job(CHK_AT - 6, chk0)
        apx = APoll(k, [f"buffer_load_dwordx4 v[12:15], v11, {srd(sWS)}, s{sCc} offen sc1"],
                    f"v_cmp_ne_u64 vcc, s[{sTAG}:{sTAG+1}], v[14:15]")
        def mode0():
            k(f"v_and_b32 v11, 0xf80, v{vL128}\ns_lshl_b32 s{sCc}, s{sG}, 12\ns_add_u32 s{sCc}, s{sCc}, {FPK}")
            apx.issue()
        def mode():
            apx.check()
            k(f"s_xor_b32 s{sT2}, s{sTAG}, s{sXCC}")
            k(f"v_cmp_ne_u32 vcc, s{sT2}, v12")
            k(f"s_cmp_eq_u64 vcc, 0\ns_cselect_b32 s{sMODE}, 1, 0")
        job(81, mode0); job(95, mode)
        def chk():
            apk.check()
            k(f"s_and_b32 s{sT2}, s{sC}, 7\ns_lshl_b32 s{sT2}, s{sT2}, 1\ns_lshr_b32 s{sT3}, s{sW}, 1\ns_add_u32 s{sT2}, s{sT2}, s{sT3}")
            k(f"s_mul_i32 s{sT3}, s{sW}, {28*KB}\ns_add_u32 s{sT3}, s{sT3}, {WD}")
            k(f"s_mul_i32 s{sX}, s{sT2}, {112*KB}\ns_add_u32 s{sX}, s{sX}, s{sT3}")
            k(f"s_xor_b32 s{sT2}, s{sT2}, 1\ns_mul_i32 s{sX2}, s{sT2}, {112*KB}\ns_add_u32 s{sX2}, s{sX2}, s{sT3}")
        job(CHK_AT, chk)
        def wsrc(i):
            s_ = sX if i < 28 else sX2
            j = i % 28
            if j and (j & 3) == 0: k(f"s_add_u32 s{s_}, s{s_}, 4096")
            return s_, (j & 3) * KB
        wq = XLoader(k, 56, lambda i: ar(aWD + 8*(i % 28) + 4*(i // 28)), wsrc)
        slots = [i for i in range(CHK_AT + 1, 112) if i % 8 in WD_SLOTS]
        work = [lambda: wq.issue_n(4)] * 14
        rw = [ring.issue16] * 6
        seq = []
        while work or rw:
            if work: seq.append(work.pop(0))
            if work: seq.append(work.pop(0))
            if rw: seq.append(rw.pop(0))
        assert len(seq) <= len(slots), (len(seq), len(slots))
        for i, f in zip(slots, seq): job(i, f)
    else:
        for j in range(6): job(12 + 8*j, ring.issue16)
    def tch(j):
        def f():
            if j: k(f"s_add_u32 s{sTW}, s{sTW}, 8192")
            k.vm(f"buffer_load_dword v5, v{vL128}, {srd(sWS)}, s{sTW} offen sc1")
        return f
    for j in range(-(-TOUCH_KBS[L] // 64)): job(TOUCH_AT[L] + j*TOUCH_STEP, tch(j))
    job(TACT_AT, lambda: k.vm(f"buffer_load_dword v5, v{vL128}, {srd(sWS)}, s{sTH} offen sc1"))
    def tact():
        k.vm(f"buffer_load_dword v5, v3, {srd(sWS)}, 0 offen sc1")
    job(TACT_AT + 4, tact)
    job(CT_AT, lambda: code_touch(k, 5))
    job(TACT_AT + 8, lambda: flag_touch(k, L, 4, 5))
    SC = 96 * KB
    vWA = 10
    def red_setup():
        k(f"s_lshl_b32 s{sT0}, s{sW}, 14\nv_add_u32 v13, s{sT0}, v{vL16}")
        for j in range(1, 4):
            k(f"v_xor_b32 v{vWA+j-1}, {j << 14}, v13\nv_add_u32 v{vWA+j-1}, {SC}, v{vWA+j-1}")
        k(f"v_add_u32 v13, {SC}, v13")
    job(126 - 8*NT, red_setup)
    def red_write(s, part):
        j = s >> 1; z = s & 1
        if part == 0:
            k.lg(f"ds_write_b128 v{vWA+j-1}, {vr(vO+16*s)} offset:{(z*3+j-1)*2*KB}")
            k.lg(f"ds_write_b32 v{vWA+j-1}, v{vO+16*s+8} offset:{(12+z)*KB+(j-1)*4}")
        if part == 1 or NT == 1:
            k.lg(f"ds_write_b128 v{vWA+j-1}, {vr(vO+16*s+4)} offset:{(z*3+j-1)*2*KB+KB}")
    for i in range(128):
        if steps[i][0] == 15 and steps[i][1] >= 2:
            job(i + 2, lambda s=steps[i][1]: red_write(s, 0), e=2)
            if NT > 1: job(i + 2, lambda s=steps[i][1]: red_write(s, 1))
    tl = []
    def red_read(zz):
        if zz[0] == 0:
            k.wait_all()
            k("s_barrier")
        for z in zz:
            k.lg(f"ds_read_b128 {vr(vO+32+48*z+8)}, v13 offset:{(12+z)*KB}")
            for j in range(3):
                b = vO + 32 + (z*3 + j)*16
                k.lg(f"ds_read_b128 {vr(b)}, v13 offset:{(z*3+j)*2*KB}")
                tl.append(k.lg(f"ds_read_b128 {vr(b+4)}, v13 offset:{(z*3+j)*2*KB+KB}"))
    if NT == 1: job(127, lambda: red_read((0, 1)))
    else:
        job(126, lambda: red_read((0,))); job(127, lambda: red_read((1,)), e=2)
    for i, (t, q) in enumerate(steps):
        s = vS[i % NS]
        if i in ATT_MARKS: mark(k, f's{i}')
        for e in range(16):
            if e == 2 and i > 0: pv(i-1, 1)
            if e == 6 and i + LA < n: qk(i + LA)
            if e == 10: pv(i, 0)
            for f in jobs.pop((i, e), []): f()
            k(f"v_exp_f32 v{s+e}, v{s+e}")
    pv(n-1, 1)
    assert not jobs, jobs.keys()
    assert ring.issued == 96
    mark(k, 'loop')
    for z in range(2):
        o = vO + 16*z; l = vO + 32 + 48*z + 8
        k.wait(lg=tl[z*3])
        k(f"v_add_f32 v{l}, v{l}, v{l+1}\nv_add_f32 v{o+8}, v{o+8}, v{l+2}\nv_add_f32 v{o+8}, v{o+8}, v{l}\nv_rcp_f32 v{o+9}, v{o+8}")
        for j in range(3):
            b = vO + 32 + (z*3 + j)*16
            k.wait(lg=tl[z*3+j])
            for i in range(8): k(f"v_add_f32 v{o+i}, v{o+i}, v{b+i}")
        for j in range(4):
            k(f"v_mul_f32 v{o+2*j}, v{o+2*j}, v{o+9}\nv_mul_f32 v{o+2*j+1}, v{o+2*j+1}, v{o+9}")
            k(f"v_cvt_pk_bf16_f32 v{o+12+j}, v{o+2*j}, v{o+2*j+1}")
        ts = k.vm(f"buffer_store_dwordx4 {vr(o+12)}, v{vL16}, {srd(sWS)}, s{sQ[z]} offen")
    mark(k, 'f_st')
    fb = k.newlabel('fb'); back = k.newlabel('fbret')
    LO, HI = f2u(2.0**-60), f2u(2.0**60)
    for z in range(2):
        o = vO + 16*z
        k(f"v_add_f32 v{o}, v{o}, v{o+1}\nv_add_f32 v{o+2}, v{o+2}, v{o+3}\nv_add_f32 v{o+4}, v{o+4}, v{o+5}\nv_add_f32 v{o+6}, v{o+6}, v{o+7}")
        k(f"v_add_f32 v{o}, v{o}, v{o+2}\nv_add_f32 v{o+4}, v{o+4}, v{o+6}\nv_add_f32 v{o}, v{o}, v{o+4}")
        k(f"v_fma_f32 v{o+8}, v{o}, 0, v{o+8}\nv_subrev_u32 v{o+8}, {hex(LO)}, v{o+8}")
    k(f"v_max_u32 v{vO+8}, v{vO+8}, v{vO+24}")
    k(f"v_cmp_lt_u32 vcc, {hex(0 if FORCE_FB else HI - LO)}, v{vO+8}")
    k(f"s_cbranch_vccnz {fb}")
    k.label(back)
    F = [f"{fb}:", "s_waitcnt vmcnt(0)",
         f"v_subrev_u32 v{vK}, s{sW4K}, v{vK}", f"v_subrev_u32 v{vV}, s{sW4K}, v{vV}"]
    S, C, M = vS0, vS0 + 16, vS0 + 32
    for z in range(2):
        o = vO + 16*z; Q = ar(aQ + 4*z)
        F += [f"v_mov_b32 v{M}, 0xff800000", f"s_mov_b32 s{sK}, 0", f"{fb}_a{z}:",
              f"buffer_load_dwordx4 {K(0)}, v{vK}, {srd(sWS)}, s{sK} offen sc1", "s_waitcnt vmcnt(0)",
              f"v_mfma_f32_32x32x16_bf16 {vr(S,16)}, {K(0)}, {Q}, 0"]
        F += [f"v_max3_f32 v{M}, v{M}, v{S+2*i}, v{S+2*i+1}" for i in range(8)]
        F += [f"s_add_u32 s{sK}, s{sK}, 2048", f"s_cmp_lt_u32 s{sK}, {64*2048}", f"s_cbranch_scc1 {fb}_a{z}",
              f"v_mov_b32 v{M+1}, v{M}", f"v_permlane32_swap_b32 v{M}, v{M+1}", f"v_max_f32 v{M}, v{M}, v{M+1}"]
        F += [f"v_sub_f32 v{C+i}, 0, v{M}" for i in range(16)] + [f"v_mov_b32 v{o+i}, 0" for i in range(16)]
        F += [f"s_mov_b32 s{sK}, 0", f"{fb}_b{z}:",
              f"buffer_load_dwordx4 {K(0)}, v{vK}, {srd(sWS)}, s{sK} offen sc1",
              f"s_mov_b64 exec, s[{sMSK}:{sMSK+1}]",
              f"buffer_load_dwordx4 {V(0,0)}, v{vV}, {srd(sWS)}, s{sK} offen offset:{KB} sc1",
              f"buffer_load_dwordx4 {V(0,1)}, v{vV}, {srd(sWS)}, s{sK} offen offset:{KB+512} sc1",
              "s_mov_b64 exec, -1", "s_waitcnt vmcnt(0)",
              f"v_mfma_f32_32x32x16_bf16 {vr(S,16)}, {K(0)}, {Q}, {vr(C,16)}"]
        F += [f"v_exp_f32 v{S+i}, v{S+i}" for i in range(16)]
        F += [f"v_smfmac_f32_32x32x32_bf16 {vr(o,16)}, {V(0,u)}, {vr(S+8*u,8)}, v{vIDX}" for u in range(2)]
        F += ["s_nop 15", f"s_add_u32 s{sK}, s{sK}, 2048", f"s_cmp_lt_u32 s{sK}, {64*2048}", f"s_cbranch_scc1 {fb}_b{z}",
              f"v_rcp_f32 v{o+9}, v{o+8}"]
        for j in range(4):
            F += [f"v_mul_f32 v{o+2*j}, v{o+2*j}, v{o+9}", f"v_mul_f32 v{o+2*j+1}, v{o+2*j+1}, v{o+9}", f"v_cvt_pk_bf16_f32 v{o+12+j}, v{o+2*j}, v{o+2*j+1}"]
        F += [f"buffer_store_dwordx4 {vr(o+12)}, v{vL16}, {srd(sWS)}, s{sQ[z]} offen"]
    F += ["s_waitcnt vmcnt(0)", f"s_branch {back}"]
    G.far += F
    k(f"s_mov_b32 s{sF}, s{sFO}")
    ring.end16()
    ring.limit = 144
    return ts

def load_res(k, v):
    k(f"s_add_u32 s{sT1}, s{sDST}, {XF}")
    k.vm(f"buffer_load_dwordx4 {vr(v)}, v{vL16}, {srd(sWS)}, s{sT1} offen sc1")
    return k.vm(f"buffer_load_dwordx4 {vr(v+4)}, v{vL16}, {srd(sWS)}, s{sT1} offen offset:1024 sc1")
def add_res(k, acc, v):
    for j in range(8):
        k(f"v_lshlrev_b32 v10, 16, v{v+j}\nv_and_b32 v11, 0xffff0000, v{v+j}")
        k(f"v_add_f32 v{acc+2*j}, v{acc+2*j}, v10\nv_add_f32 v{acc+2*j+1}, v{acc+2*j+1}, v11")

def ph_wo(k, L, ring, tO):
    k.label(f'L_wo{L}')
    vX, vACC, vRES, vSUM, vPK = 16, 80, 112, 120, 136
    k(f"s_lshr_b32 s{sRB}, s{sDST}, 15\ns_lshr_b32 s{sD}, s{sW}, 1")
    k(f"s_mul_i32 s{sX}, s{sRB}, {112*KB}\ns_lshl_b32 s{sT0}, s{sD}, 14\ns_add_u32 s{sX}, s{sX}, s{sT0}\ns_add_u32 s{sX}, s{sX}, {HF}")
    k(f"s_lshl_b32 s{sT0}, s{sD}, 11")
    set_lds_bases(k, sT0)
    seq = []
    for s in range(16):
        seq.append((s, 1))
        if s < 16 - WO_R0: seq.append((s, 0))
    nf = len(seq)
    seq += [(s, 0) for s in range(16 - WO_R0, 16)]
    ops = [dict(b=4*s + a, bmin=0, bmax=63, xi=s, x=vr(vX+4*s), acc=vr(vACC+16*a,16), swap=False, first=(s == 0)) for s, a in seq]
    g = Gemm(k, ring, ops, {0}, stop_issue=WO_STOP)
    if L == 0:
        rowmajor_addr(k, 8, sT0)
        k.vm(f"buffer_load_dwordx4 {vr(vRES)}, v8, {srd(60)}, s{sT0} offen")
        k.vm(f"buffer_load_dwordx4 {vr(vRES+4)}, v8, {srd(60)}, s{sT0} offen offset:32")
    else:
        load_res(k, vRES)
    g.start()
    mark(k, 'f_bar')
    ring.issue_n(PRE_WO)
    publish_local(k, tO)
    mark(k, 'f_pub')
    ring.issue_n(PRE_WO2)
    k(f"s_and_b32 s{sF}, s{sRB}, 0xfe\ns_add_u32 s{sF}, s{sF}, s{sD}\ns_lshl_b32 s{sF}, s{sF}, 7\ns_add_u32 s{sF}, s{sF}, {FLOC(L,0)}")
    SC = 144 * KB
    k(f"s_xor_b32 s{sT0}, s{sW}, 2\ns_lshl_b32 s{sT0}, s{sT0}, 12\ns_add_u32 s{sT0}, s{sT0}, {SC}\nv_add_u32 v6, s{sT0}, v{vL16}")
    k(f"s_lshl_b32 s{sT0}, s{sW}, 12\ns_add_u32 s{sT0}, s{sT0}, {SC}\nv_add_u32 v7, s{sT0}, v{vL16}")
    poll16(k)
    mark(k, 'f_poll')
    xq = XLoader(k, 16, lambda i: vr(vX+4*i), lin_src(k))
    xq.issue_n(WO_N0)
    for x in res_unpack(vSUM, vRES): k(x)
    st = {}
    def xchg(step):
        if step == 0:
            while g.nread < 32: g.rd()
            for j in range(4): k.lg(f"ds_write_b128 v6, {vr(vACC+16+4*j)} offset:{j*KB}")
        elif step == 1:
            k.wait_all(vm=False)
            ring.limit = None
            ring.sync(64, 0)
            for j in range(4): st['t'] = k.lg(f"ds_read_b128 {vr(vACC+16+4*j)}, v7 offset:{j*KB}")
        st['n'] = step + 1
    def filler(m):
        if m == max(nf + 1, 25): xchg(0)
        if m == max(nf + 4, 28): xchg(1)
    g.run(xq, n0=0, look=16, filler=filler)
    for step in range(st.get('n', 0), 2): xchg(step)
    k.wait(lg=st['t'])
    for i in range(16): k(f"v_add_f32 v{vSUM+i}, v{vSUM+i}, v{vACC+16+i}")
    for j in range(8):
        k(f"v_add_f32 v{vACC+2*j}, v{vACC+2*j}, v{vSUM+2*j}\nv_add_f32 v{vACC+2*j+1}, v{vACC+2*j+1}, v{vSUM+2*j+1}")
        k(f"v_cvt_pk_bf16_f32 v{vPK+j}, v{vACC+2*j}, v{vACC+2*j+1}")
    ts = store_x(k, vACC, vPK, L, 1, ring)
    mark(k, 'end')
    return ts

PASSES = ((0, 3), (3, 2), (5, 2))
def ph_up(k, L, ring, b0, tprev):
    vX, vACC, vST, vEXT, vRS = 16, 144, 224, 8, 6
    sH0, sH1 = sD, sE
    rb_128(k)
    k(f"s_and_b32 s{sA}, s{sC}, 15")
    k(f"s_lshl_b32 s{sX}, s{sRB}, 15\ns_add_u32 s{sX}, s{sX}, {XF}")
    set_lds_bases(k)
    ops = []
    b = b0
    for (t0, nt) in PASSES:
        for ks in range(33):
            for t in range(t0, t0+nt):
                ops.append(dict(b=b, bmin=b, bmax=b, xi=(ks if ks < 32 else None), x=(vr(vX+4*ks) if ks < 32 else vr(vEXT)),
                                acc=vr(vACC+16*t, 16), swap=False, first=(ks == 0)))
                b += 1
    g = Gemm(k, ring, ops, UP_SYNCS, stop_issue=UP_STOP)
    g.start()
    mark(k, 'f_bar')
    ring.issue_n(PRE)
    publish_local(k, tprev)
    mark(k, 'f_pub')
    ring.issue_n(PRE2)
    res = {}
    se = stats_emitters(k, vST, res)
    k(f"s_mul_i32 s{sH0}, s{sRB}, 112\ns_mul_i32 s{sT2}, s{sA}, 7\ns_add_u32 s{sH0}, s{sH0}, s{sT2}\ns_lshl_b32 s{sH0}, s{sH0}, 10\ns_add_u32 s{sH0}, s{sH0}, {HF}")
    k(f"s_add_u32 s{sH1}, s{sH0}, 4096")
    k(f"s_lshl_b32 s{sF}, s{sRB}, 7\ns_add_u32 s{sF}, s{sF}, {FLOC(L,1)}")
    poll16(k)
    mark(k, 'f_poll')
    aps = stats_poll(k, FLOC(L,6) - FLOC(L,1))
    xq = XLoader(k, 32, lambda i: vr(vX+4*i), lin_src(k))
    fin = fin_stats(vST, vEXT, vRS) + [f"v_mul_f32 v{vRS}, v{vRS}, v{vRS}"]
    def epi(t):
        a = vACC + 16*t
        o = []
        for j in range(4):
            o += [f"v_mul_f32 v{a+2*j}, v{a+2*j}, v{vRS}", f"v_mul_f32 v{a+2*j+1}, v{a+2*j+1}, v{vRS}",
                  f"v_mul_f32 v{a+2*j}, v{a+2*j}, v{a+8+2*j}", f"v_mul_f32 v{a+2*j+1}, v{a+2*j+1}, v{a+9+2*j}",
                  f"v_cvt_pk_bf16_f32 v{a+8+j}, v{a+2*j}, v{a+2*j+1}"]
        o.append(f"buffer_store_dwordx4 {vr(a+8)}, v{vL16}, {srd(sWS)}, s{sH0 + (t >> 2)} offen offset:{(t & 3)*KB}")
        return o
    st = dict(i=0, t=None); q = []
    def put(x):
        if x.startswith('buffer'): st['t'] = k.vm(x)
        else: k(x)
    dn = Down(k, L)
    def filler(m):
        if aps and m == 12: aps.issue()
        if aps and m == 30: aps.check()
        if 70 <= m < 96:
            if st['i'] == 0: k.wait(vm=res['t'])
            for _ in range(2):
                if st['i'] < len(fin): k(fin[st['i']]); st['i'] += 1
        if m == 102: q.extend(sum((epi(t) for t in range(0, 3)), []))
        if m == 168: q.extend(sum((epi(t) for t in range(3, 5)), []))
        for _ in range(UP_EPI):
            if q: put(q.pop(0))
        if m == 146: code_touch(k, 7)
        if m in UP_PUB:
            assert not q
            if m == UP_PUB[0]:
                k(f"s_lshl_b32 s{sF}, s{sRB}, 4\ns_add_u32 s{sF}, s{sF}, s{sA}\ns_lshl_b32 s{sF}, s{sF}, 3\ns_add_u32 s{sF}, s{sF}, {FLOC(L,2)}")
            publish_local(k, st['t'])
            k(f"s_add_u32 s{sF}, s{sF}, {8*KB}")
            if m == UP_PUB[1]: dn.xq.hold = 20
        if UP_PUB[0] < m and dn.setup:
            for _ in range(3):
                if dn.setup: k(dn.setup.pop(0))
        if m in DN_POLL: dn.ap.issue()
        if m in DN_CHK:
            dn.ap.check()
            k(f"s_add_u32 s{dn.sFl}, s{dn.sFl}, {8*KB}")
        if m > DN_CHK[0] and m % 2 and not (ring.can_issue() and m < UP_STOP): dn.xq.issue_n(1)
    if L == 0: ring.limit = 296 + QW_UP
    g.run(xq, look=UP_LOOK, filler=filler, misc=se, misc_from=32, skip=UP_SKIP[L])
    assert st['i'] == len(fin) and not dn.setup and ring.issued == min(ring.total, 296 + QW_UP)
    dn.xq.hold = 36 if len(DN_CHK) > 1 else 24
    for t in range(5, 7):
        for i, x in enumerate(epi(t)):
            put(x)
            if i in (4, 14): dn.xq.issue_n(1)
    mark(k, 'end')
    dn.tB = st['t']
    return dn

class Down:
    NX = 36
    def __init__(self, k, L):
        self.k = k; self.L = L
        sXa, sXb, sFl = sB, sX2, sCc
        self.sFl = sFl
        self.setup = (f"s_lshr_b32 s{sT0}, s{sDST}, 15\ns_mul_i32 s{sT1}, s{sW}, {28*KB}\ns_add_u32 s{sT1}, s{sT1}, {HF}\n"
                      f"s_mul_i32 s{sXa}, s{sT0}, {112*KB}\ns_add_u32 s{sXa}, s{sXa}, s{sT1}\n"
                      f"s_xor_b32 s{sT2}, s{sT0}, 1\ns_mul_i32 s{sXb}, s{sT2}, {112*KB}\ns_add_u32 s{sXb}, s{sXb}, s{sT1}\n"
                      f"v_and_b32 v12, 3, v0\nv_lshlrev_b32 v12, 3, v12\nv_and_b32 v13, 4, v0\nv_lshl_add_u32 v12, v13, 5, v12\n"
                      f"s_and_b32 s{sFl}, s{sT0}, 0xfe\ns_lshl_b32 s{sFl}, s{sFl}, 7\ns_lshl_b32 s{sT1}, s{sW}, 5\ns_add_u32 s{sFl}, s{sFl}, s{sT1}\n"
                      f"s_add_u32 s{sFl}, s{sFl}, {FLOC(L,2)}").split('\n')
        self.order = order = [7*c + t for t0, nt in PASSES for c in range(4) for t in range(t0, t0+nt)]
        cur = {sXa: 0, sXb: 0}
        def src(i):
            s_ = sXa if (i & 1) == 0 else sXb
            r = order[i >> 1]
            if not 0 <= r - cur[s_] < 4:
                d = (r - cur[s_]) * KB
                k(f"s_add_u32 s{s_}, s{s_}, {d}" if d > 0 else f"s_sub_u32 s{s_}, s{s_}, {-d}")
                cur[s_] = r
            return s_, (r - cur[s_]) * KB
        self.xr = lambda i: vr(144 + 4*(i % 36) if (i % 36) < 20 else 80 + 4*((i % 36) - 20))
        self.xq = XLoader(k, 56, self.xr, src)
        self.xq.hold = 12
        self.ap = apoll1(k, 12, 14, sFl)

def res_unpack(dst, v):
    o = []
    for j in range(8): o += [f"v_lshlrev_b32 v{dst+2*j}, 16, v{v+j}", f"v_and_b32 v{dst+2*j+1}, 0xffff0000, v{v+j}"]
    return o

def ph_down(k, L, ring, dn):
    vACC, vRES, vPK, vSUM = 16, 240, 240, 224
    final = L == 1
    xq = dn.xq; order = dn.order; NX = dn.NX
    if len(DN_CHK) > 1: xq.hold = 40
    SC = 108 * KB
    side = []
    for a in range(1, 4):
        side += f"s_xor_b32 s{sT0}, s{sW}, {a}\ns_mul_i32 s{sT0}, s{sT0}, {12*KB}\ns_add_u32 s{sT0}, s{sT0}, {SC + (a-1)*4*KB}\nv_add_u32 v{5+a}, s{sT0}, v{vL16}".split('\n')
    side += f"s_mul_i32 s{sT0}, s{sW}, {12*KB}\ns_add_u32 s{sT0}, s{sT0}, {SC}\nv_add_u32 v9, s{sT0}, v{vL16}".split('\n')
    if final and OUT_T:
        side += (f"s_and_b32 s{sT0}, s{sW}, 1\ns_mul_i32 s{sT0}, s{sT0}, {32*144}\ns_lshr_b32 s{sT2}, s{sW}, 1\ns_lshl_b32 s{sT2}, s{sT2}, 6\ns_add_u32 s{sT0}, s{sT0}, s{sT2}\n"
                 f"v_and_b32 v10, 31, v0\nv_mul_u32_u24 v10, 144, v10\nv_bfe_u32 v11, v0, 5, 1\nv_lshl_add_u32 v10, v11, 4, v10\nv_add_u32 v10, s{sT0}, v10\n"
                 f"s_mul_i32 s{sT0}, s{sW}, {16*144}\nv_bfe_u32 v13, v0, 3, 3\nv_mul_u32_u24 v11, 144, v13\nv_and_b32 v5, 7, v0\nv_lshl_add_u32 v11, v5, 4, v11\nv_add_u32 v11, s{sT0}, v11\n"
                 f"v_lshlrev_b32 v13, 10, v13\nv_lshl_add_u32 v13, v5, 4, v13\n"
                 f"s_and_b32 s{sT0}, s{sDST}, 0xffff0000\ns_lshl_b32 s{sT2}, s{sW}, 14\ns_add_u32 s{sT0}, s{sT0}, s{sT2}\n"
                 f"s_and_b32 s{sT2}, s{sC}, 7\ns_lshl_b32 s{sT2}, s{sT2}, 7\ns_add_u32 s{sT0}, s{sT0}, s{sT2}\ns_add_u32 s{sT2}, s{sT0}, 8192").split('\n')
    R, R0 = DN_R, DN_R0
    seq = []
    for s in range(28 - R):
        seq += [(s, a) for a in (3, 2, 1)]
        if s < 28 - R0: seq.append((s, 0))
    seq += [(s, a) for a in (3, 2, 1) for s in range(28 - R, 28)] + [(s, 0) for s in range(28 - R0, 28)]
    lo = [min(2*s_ + (a_ & 1) for s_, a_ in seq[m:]) for m in range(112)]
    wr = []; rt = None; tail = None; res = None; wb = False
    for m, (s, a) in enumerate(seq):
        r = order[s]
        if len(DN_CHK) == 1 and m == DN_CHK2:
            dn.ap.check()
            k(f"s_add_u32 s{dn.sFl}, s{dn.sFl}, {8*KB}")
            xq.hold = 40
        if m == 4*DN_PUBB: publish_local(k, dn.tB)
        if m == 4*DN_BAR:
            ring.limit = None
            ring.sync(296, 0)
        if m == 4*DN_POLLB:
            apb = dn.ap
            apb.issue()
            rt = load_res(k, vRES)
        if m == 4*DN_CHKB:
            apb.check()
            xq.hold = 56
            xq.issue_n(min(3, lo[m] + NX - xq.n))
        xi = 2*s + (a & 1)
        while xq.n <= xi:
            assert xq.n < xq.hold and xq.n < lo[m] + NX
            xq.issue_n(1)
        k.wait(vm=xq.t[xi])
        acc = vr(vACC + 16*a, 16)
        k(f"v_mfma_f32_32x32x16_bf16 {acc}, {ar(aWD + 8*r + 4*(a >> 1))}, {dn.xr(xi)}, {'0' if s == 0 else acc}")
        if m == 0: mark(k, 'm0')
        if m in GEMM_MARKS.get(G.ph, ()): mark(k, f'm{m}')
        if m % 2 == 0 and xq.n < min(lo[m] + NX, xq.total, xq.hold): xq.issue_n(1)
        elif m % 2 == 0 and xq.n == xq.total and ring.can_issue(): ring.issue()
        elif m > 4*DN_CHKB + 8:
            if res is None:
                k.wait(vm=rt); res = True
                side += res_unpack(vSUM, vRES)
            for _ in range(4):
                if side: k(side.pop(0))
        if final and WB_MASK is not None and xq.n == xq.total and k.vm_done == k.vm_issued and not wb:
            wb = True; l_ = k.newlabel('wb')
            k(f"s_lshl_b32 s{sT1}, s{sC}, 2\ns_add_u32 s{sT1}, s{sT1}, s{sW}\ns_and_b32 s{sT1}, s{sT1}, {WB_MASK}\ns_cbranch_scc1 {l_}")
            print('wbl2 at', m, file=sys.stderr)
            k("buffer_wbl2 sc1")
            k.label(l_)
        if wr and wr[0][0] <= m:
            assert not side
            for _ in range(min(DN_WR, len(wr))):
                if wr[0][0] <= m: k.lg(wr.pop(0)[1])
            if wr and DN_WR == 1: wr[0] = (max(wr[0][0], m + DN_WGAP), wr[0][1])
            if not wr and a == 0: tail = min(m + 2, 111)
        if s == 27 and a:
            wr += [(m + 2, f"ds_write_b128 v{5+a}, {vr(vACC+16*a+4*j)} offset:{j*KB}") for j in range(4)]
        if tail == m:
            k.wait_all(vm=False)
            k("s_barrier")
            tl = []
            for b in range(3):
                for j in range(4): t_ = k.lg(f"ds_read_b128 {vr(vACC+16+16*b+4*j)}, v9 offset:{b*4*KB + j*KB}")
                tl.append(t_)
            adds = []
            for b in range(3): adds += [(tl[b], f"v_add_f32 v{vSUM+i}, v{vSUM+i}, v{vACC+16+16*b+i}") for i in range(16)]
        elif tail is not None and m > tail + 1:
            for _ in range(6):
                if adds:
                    t_, x = adds.pop(0); k.wait(lg=t_); k(x)
    assert not side and not wr and tail is not None and tail < 112
    for t_, x in adds:
        k.wait(lg=t_); k(x)
    if final and not OUT_T: rowmajor_addr(k, 6, sT0)
    for j in range(8):
        k(f"v_add_f32 v{vACC+2*j}, v{vACC+2*j}, v{vSUM+2*j}\nv_add_f32 v{vACC+2*j+1}, v{vACC+2*j+1}, v{vSUM+2*j+1}")
        k(f"v_cvt_pk_bf16_f32 v{vPK+j}, v{vACC+2*j}, v{vACC+2*j+1}")
        if final and OUT_T and j in (3, 7): k.lg(f"ds_write_b128 v10, {vr(vPK+j-3)} offset:{(j >> 2)*32}")
    if final and OUT_T:
        k.wait_all(vm=False)
        k("s_barrier")
        t0 = k.lg(f"ds_read_b128 {vr(vPK)}, v11")
        t1 = k.lg(f"ds_read_b128 {vr(vPK+4)}, v11 offset:{8*144}")
        k.wait(lg=t0)
        k.vm(f"buffer_store_dwordx4 {vr(vPK)}, v13, {srd(sAUX)}, s{sT0} offen{OUT_SC}")
        k.wait(lg=t1)
        k.vm(f"buffer_store_dwordx4 {vr(vPK+4)}, v13, {srd(sAUX)}, s{sT2} offen{OUT_SC}")
    elif final:
        k.vm(f"buffer_store_dwordx4 {vr(vPK)}, v6, {srd(sAUX)}, s{sT0} offen{OUT_SC}")
        k.vm(f"buffer_store_dwordx4 {vr(vPK+4)}, v6, {srd(sAUX)}, s{sT0} offen offset:32{OUT_SC}")
    else:
        G.tx = store_x(k, vACC, vPK, L, 8, ring)
    mark(k, 'end')

def k_main(name):
    k = Asm()
    G.nst = 0
    k(f".globl {name}\n.p2align 8\n.type {name},@function")
    k.label(name)
    if STAMP or PADTO: k("s_memrealtime s[42:43]")
    mark(k, 'start')
    k("s_cmp_ge_u32 s2, 256")
    k("s_cbranch_scc1 L_abort")
    k(f"s_load_dwordx2 s[{sWS}:{sWS+1}], s[0:1], 72")
    k(f"s_load_dwordx2 s[{sAUX}:{sAUX+1}], s[0:1], 56")
    k("s_load_dwordx2 s[60:61], s[0:1], 0\ns_load_dwordx4 s[64:67], s[0:1], 8\ns_load_dwordx4 s[68:71], s[0:1], 32\ns_load_dwordx2 s[72:73], s[0:1], 48")
    k("v_lshrrev_b32 v2, 6, v0")
    k(f"v_and_b32 v{vL16}, 63, v0")
    k(f"v_readfirstlane_b32 s{sW}, v2")
    k(f"v_lshlrev_b32 v{vL16}, 4, v{vL16}")
    k(f"s_mov_b32 s{sWG}, s2\ns_and_b32 s{sG}, s2, 7\ns_lshr_b32 s{sC}, s2, 3\ns_lshl_b32 s{sW1K}, s{sW}, 10")
    k(f"s_lshr_b32 s{sC4}, s{sC}, 4\ns_lshr_b32 s{sC3}, s{sC}, 3")
    k(f"s_lshl_b32 s{sU}, s{sG}, 5\ns_add_u32 s{sU}, s{sU}, s{sC}")
    k(f"s_lshl_b32 s{sW4K}, s{sW}, 12")
    k(f"s_getreg_b32 s{sXCC}, hwreg(HW_REG_XCC_ID, 0, 4)")
    k(f"v_add_u32 v{vSRC}, s{sW1K}, v{vL16}")
    k(f"s_mov_b32 s{sMSK}, 0xffff\ns_mov_b32 s{sMSK+1}, 0xffff\ns_mov_b32 s{sMODE}, 0")
    k(f"s_and_b32 s{sT0}, s{sC}, 7\ns_mul_i32 s{sSEG}, s{sT0}, {WO_STR}\ns_add_u32 s{sSEG}, s{sSEG}, {WO}")
    k(f"s_lshl_b32 s{sT1}, s{sG}, 2\ns_add_u32 s{sT1}, s{sT1}, s{sC3}\ns_lshl_b32 s{sT1}, s{sT1}, 1\ns_and_b32 s{sT2}, s{sW}, 1\ns_add_u32 s{sT1}, s{sT1}, s{sT2}")
    k(f"s_lshl_b32 s{sT1}, s{sT1}, 5\ns_lshl_b32 s{sT0}, s{sT0}, 2\ns_add_u32 s{sT1}, s{sT1}, s{sT0}\ns_and_b32 s{sT2}, s{sW}, 2\ns_add_u32 s{sT1}, s{sT1}, s{sT2}\ns_lshl_b32 s{sDST}, s{sT1}, 10")
    k(f"s_lshr_b32 s{sSD}, s{sDST}, 12\ns_lshl_b32 s{sSD}, s{sSD}, 9\ns_lshl_b32 s{sT2}, s{sT2}, 2\ns_add_u32 s{sSD}, s{sSD}, s{sT2}\ns_add_u32 s{sSD}, s{sSD}, {SX}")
    k(f"s_and_b32 s{sT0}, s{sC}, 15\ns_mul_i32 s{sSEG+1}, s{sT0}, {WU_STR}\ns_add_u32 s{sSEG+1}, s{sSEG+1}, {WU}")
    k(f"s_mul_i32 s{sSEG+2}, s{sT0}, {WQ_STR}\ns_add_u32 s{sSEG+2}, s{sSEG+2}, {WQ}")
    def late(k):
        if WSOFF: k(f"s_add_u32 s{sWS}, s{sWS}, {WSOFF}\ns_addc_u32 s{sWS+1}, s{sWS+1}, 0")
        k(f"s_add_u32 s{sT0}, s{sWS}, {EP}\ns_addc_u32 s{sT1}, s{sWS+1}, 0")
        k(f"s_load_dwordx2 s[{sTAG}:{sTAG+1}], s[{sT0}:{sT1}], 0")
        k(f"s_and_b32 s{sWS+1}, s{sWS+1}, 0xffff\ns_mov_b32 s{sWS+2}, {0x10000000 - WSOFF}\ns_mov_b32 s{sWS+3}, 0x20000")
        k(f"s_and_b32 s{sAUX+1}, s{sAUX+1}, 0xffff\ns_mov_b32 s{sAUX+2}, {2*MB}\ns_mov_b32 s{sAUX+3}, 0x20000")
    G.ph = 'qkv0'; tk = ph_qkv0(k, late)
    for L in range(2):
        ring = Ring(k, [(sSEG, 64), (sSEG+1, 232)] + ([(sSEG+2, 100)] if L == 0 else []))
        G.ph = f'att{L}'; tO = ph_att(k, L, ring, *tk)
        G.ph = f'wo{L}'; tx = ph_wo(k, L, ring, tO)
        G.ph = f'up{L}'; tB = ph_up(k, L, ring, 64, tx)
        G.ph = f'dn{L}'; ph_down(k, L, ring, tB)
        G.ph = 'qkv1'
        if L == 0: tk = ph_qkv(k, 1, ring, 296)
    k(f"s_add_u32 s{sT0}, s{sWG}, s{sW}\ns_cmp_lg_u32 s{sT0}, 0\ns_cbranch_scc1 L_fin")
    k(f"s_mov_b32 s{sF}, {EP}")
    publish_local(k, None, force_global=True)
    k.label("L_fin")
    if PADTO:
        k("s_waitcnt vmcnt(0)")
        if PADMIN:
            k("s_load_dwordx2 s[64:65], s[0:1], 64\ns_waitcnt lgkmcnt(0)")
            k("s_not_b32 s66, s42\nv_mov_b32 v8, s66\nv_mov_b32 v9, 0\ns_mov_b64 exec, 1")
            k("global_atomic_umax v9, v8, s[64:65]\ns_waitcnt vmcnt(0)")
            k.label("L_pad0")
            k(f"s_memrealtime s[98:99]\ns_waitcnt lgkmcnt(0)\ns_sub_u32 s98, s98, s42\ns_cmp_lt_u32 s98, {PADTO - 1500}\ns_cbranch_scc1 L_pad0")
            k("global_load_dword v8, v9, s[64:65] sc1\ns_waitcnt vmcnt(0)\nv_readfirstlane_b32 s66, v8\ns_not_b32 s42, s66\ns_mov_b64 exec, -1")
        k.label("L_pad")
        k(f"s_memrealtime s[98:99]\ns_waitcnt lgkmcnt(0)\ns_sub_u32 s98, s98, s42\ns_cmp_lt_u32 s98, {PADTO}\ns_cbranch_scc1 L_pad")
    if STAMP:
        k("s_waitcnt vmcnt(0)")
        G.ph = ''; mark(k, 'fin')
        k("s_memrealtime s[98:99]\ns_waitcnt lgkmcnt(0)")
        vals = [42, 98, sMODE] + STS[:G.nst]
        for i, s_ in enumerate(vals): k(f"v_mov_b32 v{16+i}, s{s_}")
        k(f"s_lshl_b32 s{sT0}, s{sWG}, 2\ns_add_u32 s{sT0}, s{sT0}, s{sW}\ns_lshl_b32 s{sT0}, s{sT0}, 7\ns_add_u32 s{sT0}, s{sT0}, {TS}")
        k("v_mov_b32 v4, 0\ns_mov_b64 exec, 1")
        for j in range(8): k(f"buffer_store_dwordx4 {vr(16+4*j)}, v4, {srd(sWS)}, s{sT0} offen offset:{16*j}")
        if DBG is not None:
            k(f"s_lshl_b32 s{sT0}, s{sWG}, 2\ns_add_u32 s{sT0}, s{sT0}, s{sW}\ns_cmp_lg_u32 s{sT0}, {DBG}\ns_cbranch_scc1 L_nodbg")
            k("s_load_dwordx2 s[64:65], s[0:1], 64\ns_waitcnt lgkmcnt(0)")
            for i in range(16): k(f"v_sub_u32 v{64+i}, v{20+i}, v19")
            for j in range(4): k(f"global_store_dwordx4 v4, {vr(64+4*j)}, s[64:65] offset:{16*j}")
            k.label("L_nodbg")
    k("s_waitcnt vmcnt(0)")
    k.label("L_abort")
    k("s_endpgm")
    for x in G.far:
        if x.endswith(':'): k.label(x[:-1])
        else: k(x)
    k(".fill 8448, 4, 0xbf800000")
    return k

def build():
    name = NAME + "_kernel"
    k = k_main(name)
    nn = k.fix()
    print(f"{len(k.L)} lines, {nn} nop states", file=sys.stderr)
    return f"""; stamps: {','.join(G.names)}
; @launch grid=(256,1,1) block=(256,1,1) lds={160*KB}
.amdgcn_target "amdgcn-amd-amdhsa--gfx950"
.text
{k.text()}
.section .rodata,"a"
.p2align 6
.amdhsa_kernel {name}
  .amdhsa_next_free_vgpr 512
  .amdhsa_next_free_sgpr 102
  .amdhsa_accum_offset 256
  .amdhsa_group_segment_fixed_size 0
  .amdhsa_kernarg_size 80
  .amdhsa_user_sgpr_count 2
  .amdhsa_user_sgpr_kernarg_segment_ptr 1
  .amdhsa_system_sgpr_workgroup_id_x 1
.end_amdhsa_kernel
"""

if __name__ == "__main__":
    for a in sys.argv[2:]:
        kk_, vv_ = a.split('=', 1)
        globals()[kk_] = eval(vv_)
    open(sys.argv[1], "w").write(build())
```

```python
import sys, struct
from asmlib import Asm

NAME = "interleave_layers__mha_block__glu_gated_bilinear__prompt"
KB = 1024; MB = KB * KB
LOG2E = 1.4426950408889634
def f2u(x): return struct.unpack('<I', struct.pack('<f', x))[0]
def srd(b): return f"s[{b}:{b+3}]"
def vr(b, n=4): return f"v[{b}:{b+n-1}]"
def ar(b, n=4): return f"a[{b}:{b+n-1}]"

WQ = 0;                    WQ_STR = 100 * KB
WO = WQ + 16 * WQ_STR;     WO_STR = 64 * KB
WU = WO + 8 * WO_STR;      WU_STR = 232 * KB
WD = WU + 16 * WU_STR
FL = 7 * MB + 640 * KB
assert WD + 16 * 112 * KB <= FL
EP = FL
XID = FL + 1 * KB
def FLOC(L, p): return FL + 4 * KB + (L * 13 + p) * 8 * KB
FKV0 = FL + 4 * KB + 26 * 8 * KB
def FKV(L): return FKV0 + L * 32 * KB
FPK = FKV0 + 64 * KB
assert FPK + 32 * KB <= 8 * MB
XF = 8 * MB
HF = 10 * MB
QF = HF
SX = 17 * MB
def KVF(L): return 18 * MB + L * 4 * MB
WS_PAGES = 13
TS = 27 * MB
DUMP = 0x7ff00000

STAMP = False
DIAG_NOP = {}
UP4 = False; DN_POLL3 = 18; DN_CHK3 = 30
DN_X2 = True; DN_ADDS = 5; DN_CR = 2
RES_LATE = (False, False); XRES_TOUCH = 0
HEAD = 0
QKV_QE = 10; QKV_EPI = 5
R1_AT = 44; R1_STEP = 8
KV_LOC = True
PADTO = 0; PADMIN = False
OUT_T = True
ATT_NT = 2
PK_WIN2 = False; PK_SP = 0
WARM_AT = 1
RT = False
DN_CHK2 = 4
CT_AT = 92
FORCE_FB = False
WB_MASK = 127; OUT_SC = ' sc1'; DN_WR = 1; DN_WGAP = 2
QW_LATE = False; QW_UP = 64; QW_TOUCH = (72, 100); QW_N1 = 4
PK_Q0 = False; PK_RD = 1; PK_ST = 3; CHK_Q0 = 15
WO_STOP = 26; WO_R0 = 8; WO_N0 = 10; ST_PRE = 2; PPOLL = 0; KV_PF = (0, 0); PK_EARLY = True
FL_TOUCH = False
SPLIT_ST = True
FINE = False
UP_EPI = 2; UP_PUB = (154, 206); DN_POLL = (172, 226); DN_CHK = (186,); UP_LOOK = 8; UP_SYNCS = {0, 48, 80, 112, 144, 176, 200}; UP_SKIP = (0, 0); UP_STOP = 222
DN_PUBB = 4; DN_BAR = 14; DN_POLLB = 7; DN_CHKB = 12; DN_R = 8; DN_R0 = 12
FLAG_TOUCH = False
WSOFF = 0
SLEEP1 = (0, 0); SLEEP2 = 0; SLEEP3 = 0
DBG = None
PRE = 4; PRE2 = 0
PRE_WO = 5; PRE_WO2 = 0
CODE_TOUCH = True
WD_SLOTS = (2, 4, 6)
TOUCH_AT = (93, 90); TOUCH_STEP = (3, 4); TOUCH_LN = 32; TH_STEP = 3; TOUCH_KBS = (96, 96)
RING = 144
PK_T0 = 7; PK_GAP = 6; PK_GAP2 = 11; CHK_GAP = 18
P2_AT = 6
P2_LEAD = 4
TACT_AT = 102

sC4, sC3 = 2, 3
sWS, sAUX = 4, 8
sW, sG, sC, sW1K = 12, 13, 14, 15
sT0, sT1, sT2, sT3 = 16, 17, 18, 19
sX, sRS, sRB = 20, 21, 22
sA, sB, sCc, sD, sE = 23, 24, 25, 26, 27
sS0, sS1 = 28, 21
sMSK, sTAG, sMODE, sXCC = 30, 32, 34, 35
sSEG = 36
sX2 = 39
sSPIN, sF = 40, 41
STS = list(range(44, 56, 2)) + [92, 94, 56, 58, 74, 76, 80, 82, 86, 88, 60, 62]
sWG = 101
sW4K = 97
sSD = 29
sPC, sCT = 90, 85
sDST = 100
vL16, vSRC, vB = 1, 2, 3
aWD, aWB = 0, 224

class G:
    nst = 0
    names = []
    far = []
    ph = ''
SKIP = ''
ATT_MARKS = ()
GEMM_MARKS = {}
def mark(k, nm='x'):
    import re
    nm = G.ph + '_' + nm
    if SKIP and re.match(SKIP, nm): return
    if '_f_' in nm and not FINE: return
    if STAMP:
        G.names.append(nm)
        k(f"s_mem{'real' if RT else ''}time s[{STS[G.nst]}:{STS[G.nst]+1}]")
        G.nst += 1

class Ring:
    def __init__(self, k, segs):
        self.k = k; self.N = RING
        self.total = sum(n for _, n in segs)
        self.starts = {}
        b = 0
        for s, n in segs:
            assert n % 4 == 0
            self.starts[b] = s; b += n
        self.issued = 0; self.freed = 0; self.visible = 0
        self.limit = None
        self.tick = {}
    def can_issue(self):
        if self.limit is not None and self.issued + 4 > self.limit: return False
        return self.issued < self.total and self.issued + 4 <= self.freed + self.N
    def issue(self):
        k = self.k
        assert self.can_issue()
        slot = self.issued % self.N
        k(f"s_add_u32 m0, s{sW1K}, {slot*KB}")
        if self.issued in self.starts: k(f"s_mov_b32 s{sRS}, s{self.starts[self.issued]}")
        else: k(f"s_add_u32 s{sRS}, s{sRS}, 4096")
        self.tick[self.issued // 4] = k.vm(f"buffer_load_dwordx4 v{vSRC}, {srd(sWS)}, s{sRS} offen sc1 lds")
        self.issued += 4
    def issue16(self):
        k = self.k
        b = self.issued; slot = b % self.N
        assert slot + 16 <= self.N and b + 16 <= min(self.limit or 1 << 30, self.freed + self.N)
        assert not any(x in self.starts for x in range(b + 1, b + 16))
        k(f"s_add_u32 m0, s{sW4K}, {slot*KB}")
        if b in self.starts: k(f"s_add_u32 s{sRS}, s{self.starts[b]}, s{sW4K}")
        else: k(f"s_add_u32 s{sRS}, s{sRS}, 16384")
        for i in range(4):
            t = k.vm(f"buffer_load_dwordx4 v{vL16}, {srd(sWS)}, s{sRS} offen offset:{i*KB} sc1 lds")
        for q in range(4): self.tick[b // 4 + q] = t
        self.issued += 16
    def end16(self):
        self.k(f"s_sub_u32 s{sRS}, s{sRS}, s{sW4K}\ns_add_u32 s{sRS}, s{sRS}, 12288")
    def issue_n(self, n):
        for _ in range(n):
            if self.can_issue(): self.issue()
    def sync(self, consumed, need):
        k = self.k
        need = min(need, self.total)
        if need > self.visible:
            q = (need - 1) // 4
            assert q * 4 < self.issued, (need, self.issued)
            k.wait(vm=self.tick[q])
        k("s_barrier")
        q = self.visible // 4
        while q in self.tick and self.tick[q] <= k.vm_done: q += 1
        self.visible = q * 4
        assert self.visible >= need
        self.freed = max(self.freed, (consumed // 4) * 4)
    def addr(self, b): return (b % self.N) * KB

def set_lds_bases(k, extra_s=None):
    if extra_s is None: k(f"v_mov_b32 v{vB}, v{vL16}")
    else: k(f"v_add_u32 v{vB}, s{extra_s}, v{vL16}")
    k(f"v_add_u32 v{vB+1}, 0x10000, v{vB}")
    k(f"v_add_u32 v{vB+2}, 0x20000, v{vB}")

class XLoader:
    def __init__(self, k, total, reg, src):
        self.k = k; self.total = total; self.reg = reg; self.src = src; self.n = 0; self.t = []
        self.hold = total
    def issue_n(self, n):
        k = self.k
        for _ in range(n):
            i = self.n
            if i >= min(self.total, self.hold): return
            s_, imm = self.src(i)
            self.t.append(k.vm(f"buffer_load_dwordx4 {self.reg(i)}, v{vL16}, {srd(sWS)}, s{s_} offen offset:{imm} sc1"))
            self.n += 1
def lin_src(k):
    def f(i):
        if i and (i & 3) == 0: k(f"s_add_u32 s{sX}, s{sX}, 4096")
        return sX, (i & 3) * KB
    return f

class Gemm:
    def __init__(self, k, ring, ops, syncs, D=4, NB=8, stop_issue=None):
        self.k = k; self.ring = ring; self.ops = ops; self.syncs = sorted(syncs)
        assert all(x % 2 == 0 for x in syncs)
        self.D = D; self.NB = NB; self.tl = {}; self.nread = 0
        self.stop = stop_issue if stop_issue is not None else len(ops)
    def rd(self):
        k = self.k; m = self.nread; o = self.ops[m]
        assert o['bmax'] < self.ring.visible, (m, o['b'], self.ring.visible)
        a = self.ring.addr(o['b'])
        self.tl[m] = k.lg(f"ds_read_b128 {ar(aWB + 4*(m % self.NB))}, v{vB + (a >> 16)} offset:{a & 0xffff}")
        self.nread += 1
    def need_until(self, m):
        M = len(self.ops)
        nxt = [s for s in self.syncs if s > m]
        last = min((nxt[0] if nxt else M) - 1 + self.D, M - 1)
        return max(o['bmax'] for o in self.ops[:last+1]) + 1
    def start(self):
        self.ring.sync(self.ops[0]['bmin'], self.need_until(0))
        while self.nread < min(self.D, len(self.ops)): self.rd()
    def run(self, xq, n0=6, look=10, filler=None, misc=(), misc_from=0, skip=0):
        k = self.k; M = len(self.ops)
        misc = list(misc)
        xq.issue_n(n0)
        cur = 0
        for m in range(M):
            if m in self.syncs and m > 0:
                self.ring.sync(self.ops[m]['bmin'], self.need_until(m))
            o = self.ops[m]
            xt = None
            if m % 2 == 0:
                xs = [p['xi'] for p in self.ops[m:m+2] if p.get('xi') is not None]
                if xs:
                    cur = max(cur, max(xs))
                    while xq.n <= max(xs): xq.issue_n(1)
                    xt = xq.t[max(xs)]
                k.wait(vm=xt, lg=self.tl[min(m + 1, M - 1)])
            w = ar(aWB + 4*(m % self.NB))
            c = o.get('c0', '0') if o['first'] else o['acc']
            A, B = (o['x'], w) if o['swap'] else (w, o['x'])
            k(f"v_mfma_f32_32x32x16_bf16 {o['acc']}, {A}, {B}, {c}")
            if m == 0: mark(k, 'm0')
            if m in GEMM_MARKS.get(G.ph, ()): mark(k, f'm{m}')
            if m % 2 == 0:
                for _ in range(2):
                    if self.nread < M: self.rd()
                if DIAG_NOP.get(G.ph): k(f"s_nop {DIAG_NOP[G.ph]}")
            elif not (skip and m % skip == skip - 1):
                rok = m < self.stop and self.ring.can_issue()
                if xq.n < xq.total and (xq.n - cur < look or not (rok or (misc and m >= misc_from))): xq.issue_n(1)
                elif misc and m >= misc_from: misc.pop(0)()
                elif rok: self.ring.issue()
            if filler: filler(m)
        assert not misc

def stats_emitters(k, vt, res):
    k(f"s_lshl_b32 s{sS0}, s{sRB}, 12\ns_add_u32 s{sS0}, s{sS0}, {SX}")
    def mk(i):
        def f(): res['t'] = k.vm(f"buffer_load_dwordx4 {vr(vt+4*i)}, v{vL16}, {srd(sWS)}, s{sS0} offen offset:{i*KB} sc1")
        return f
    return [mk(i) for i in range(4)]

NTREE = 14
def fin_stats(vt, vext, vrstd):
    ins = []
    n = 8
    while n > 1:
        h = n // 2
        for i in range(h):
            ins.append(f"v_add_f32 v{vt+2*i}, v{vt+2*i}, v{vt+2*(i+h)}")
            ins.append(f"v_add_f32 v{vt+2*i+1}, v{vt+2*i+1}, v{vt+2*(i+h)+1}")
        n = h
    a, b, c, d = vt, vt+1, vt+2, vt+3
    ins += [f"v_mov_b32 v{c}, v{a}", f"v_mov_b32 v{d}, v{b}",
            f"v_permlane32_swap_b32 v{a}, v{c}", f"v_permlane32_swap_b32 v{b}, v{d}",
            f"v_add_f32 v{a}, v{a}, v{c}", f"v_add_f32 v{b}, v{b}, v{d}",
            f"v_mul_f32 v{a}, {hex(f2u(-1.0/512))}, v{a}",
            f"v_mul_f32 v{b}, {hex(f2u(1.0/512))}, v{b}",
            f"v_fma_f32 v{b}, -v{a}, v{a}, v{b}",
            f"v_max_f32 v{b}, 0, v{b}",
            f"v_add_f32 v{b}, {hex(f2u(1e-5))}, v{b}",
            f"v_rsq_f32 v{vrstd}, v{b}",
            f"v_cvt_pk_bf16_f32 v{vext}, v{a}, v{a}",
            f"v_and_b32 v{c}, 0xffff0000, v{vext}",
            f"v_sub_f32 v{c}, v{a}, v{c}",
            f"v_cvt_pk_bf16_f32 v{vext+1}, v{c}, 0",
            f"v_mov_b32 v{vext+2}, v{vext}", f"v_mov_b32 v{vext+3}, v{vext+1}"]
    return ins

def poll(k, vaddr, vpd, sleep=0):
    l = k.newlabel('poll')
    k(f"s_mov_b32 s{sSPIN}, 0x40000")
    k.label(l)
    k.vm(f"buffer_load_dwordx2 {vr(vpd,2)}, v{vaddr}, {srd(sWS)}, s{sF} offen sc1")
    k(f"s_sub_u32 s{sSPIN}, s{sSPIN}, 1")
    k("s_cbranch_scc1 L_abort")
    k.wait_all(lg=False)
    k(f"v_cmp_ne_u64 vcc, s[{sTAG}:{sTAG+1}], {vr(vpd,2)}")
    k(f"s_cbranch_vccnz {l}")
class APoll:
    def __init__(self, k, loads, cmp, sleep=0):
        self.k = k; self.loads = loads; self.cmp = cmp; self.sleep = sleep
    def issue(self):
        for x in self.loads: self.t = self.k.vm(x)
    def check(self):
        k = self.k
        l = k.newlabel('ap'); ok = k.newlabel('apok')
        k.wait(vm=self.t)
        k(self.cmp)
        k(f"s_cbranch_vccnz {l}")
        k.label(ok)
        G.far += [f"{l}:", f"s_mov_b32 s{sSPIN}, 0x40000", f"{l}_l:"] + list(self.loads) + [
            f"s_sub_u32 s{sSPIN}, s{sSPIN}, 1", "s_cbranch_scc1 L_abort", "s_waitcnt vmcnt(0)", self.cmp,
            f"s_cbranch_vccnz {l}_l", f"s_branch {ok}"]
def apoll1(k, vaddr, vpd, soff, sleep=0):
    return APoll(k, [f"buffer_load_dwordx2 {vr(vpd,2)}, v{vaddr}, {srd(sWS)}, s{soff} offen sc1"],
                 f"v_cmp_ne_u64 vcc, s[{sTAG}:{sTAG+1}], {vr(vpd,2)}", sleep)
def poll16(k):
    k("v_and_b32 v13, 15, v0\nv_lshlrev_b32 v13, 3, v13")
    poll(k, 13, 14)

def publish_local(k, last_store, force_global=False):
    k(f"v_mov_b32 v14, s{sTAG}\nv_mov_b32 v15, s{sTAG+1}")
    if force_global:
        k.wait(vm=last_store)
        k.vm(f"buffer_store_dwordx2 v[14:15], off, {srd(sWS)}, s{sF} sc1")
        return
    slow = k.newlabel('slow'); join = k.newlabel('join')
    k(f"s_cmp_eq_u32 s{sMODE}, 0")
    k(f"s_cbranch_scc1 {slow}")
    k.wait(vm=last_store)
    k.vm(f"buffer_store_dwordx2 v[14:15], off, {srd(sWS)}, s{sF}")
    k.label(join)
    G.far += [f"{slow}:", "s_waitcnt vmcnt(0)", "buffer_wbl2 sc1", "s_waitcnt vmcnt(0)",
              f"buffer_store_dwordx2 v[14:15], off, {srd(sWS)}, s{sF} sc1", f"s_branch {join}"]
def publish_wg(k, last_store, xid=False, barrier=True):
    l = k.newlabel('pw')
    k(f"v_mov_b32 v13, 0\nv_mov_b32 v14, s{sTAG}\nv_mov_b32 v15, s{sTAG+1}")
    k.wait(vm=last_store)
    if barrier: k("s_barrier")
    k(f"s_cmp_lg_u32 s{sW}, 0\ns_cbranch_scc1 {l}")
    k("s_mov_b64 exec, 1")
    if xid:
        k(f"v_xor_b32 v12, s{sXCC}, v14\nv_mov_b32 v13, v15")
        k(f"buffer_store_dwordx4 v[12:15], v{vL16}, {srd(sWS)}, s{sF} offen sc1")
    else:
        k(f"buffer_store_dwordx2 v[14:15], v13, {srd(sWS)}, s{sF} offen sc1")
    k("s_mov_b64 exec, -1")
    k.label(l)

def rb_128(k):
    k(f"s_lshl_b32 s{sT0}, s{sC4}, 2\ns_lshl_b32 s{sRB}, s{sG}, 3\ns_add_u32 s{sRB}, s{sRB}, s{sT0}\ns_add_u32 s{sRB}, s{sRB}, s{sW}")

def store_x(k, acc, pk, L, p, ring=None):
    k(f"s_add_u32 s{sT1}, s{sDST}, {XF}")
    k.vm(f"buffer_store_dwordx4 {vr(pk)}, v{vL16}, {srd(sWS)}, s{sT1} offen")
    td = k.vm(f"buffer_store_dwordx4 {vr(pk+4)}, v{vL16}, {srd(sWS)}, s{sT1} offen offset:1024")
    mark(k, 'f_xs')
    k(f"v_add_f32 v10, v{acc}, v{acc+1}\nv_mul_f32 v11, v{acc}, v{acc}\nv_add_f32 v8, v{acc+2}, v{acc+3}\nv_mul_f32 v9, v{acc+1}, v{acc+1}")
    k(f"v_fmac_f32 v11, v{acc+2}, v{acc+2}\nv_fmac_f32 v9, v{acc+3}, v{acc+3}")
    for i in range(4, 16, 2):
        k(f"v_add_f32 v10, v10, v{acc+i}\nv_fmac_f32 v11, v{acc+i}, v{acc+i}\nv_add_f32 v8, v8, v{acc+i+1}\nv_fmac_f32 v9, v{acc+i+1}, v{acc+i+1}")
        if ring and i in (4, 10): ring.issue_n(ST_PRE)
    k("v_add_f32 v10, v10, v8\nv_add_f32 v11, v11, v9\nv_mov_b32 v8, v10\nv_mov_b32 v9, v11")
    k("v_permlane32_swap_b32 v10, v8\nv_permlane32_swap_b32 v11, v9\nv_add_f32 v10, v10, v8\nv_add_f32 v11, v11, v9")
    k("s_mov_b32 exec_hi, 0")
    ts = k.vm(f"buffer_store_dwordx2 v[10:11], v{vL16}, {srd(sWS)}, s{sSD} offen")
    k("s_mov_b64 exec, -1")
    k(f"s_lshr_b32 s{sF}, s{sDST}, 8\ns_add_u32 s{sF}, s{sF}, {FLOC(L, p)}")
    mark(k, 'f_ss')
    if SPLIT_ST:
        publish_local(k, td)
        k(f"s_add_u32 s{sF}, s{sF}, {FLOC(L, 6 if p == 1 else 7) - FLOC(L, p)}")
    return ts
def stats_poll(k, delta):
    if not SPLIT_ST: return []
    k(f"s_add_u32 s{sF}, s{sF}, {delta}")
    ap = apoll1(k, 13, 14, sF)
    return ap

def rowmajor_addr(k, va, s_out):
    k(f"v_and_b32 v{va}, 31, v0\nv_lshlrev_b32 v{va}, 10, v{va}\nv_bfe_u32 v{va+1}, v0, 5, 1\nv_lshlrev_b32 v{va+1}, 4, v{va+1}\nv_add_u32 v{va}, v{va}, v{va+1}")
    k(f"s_and_b32 s{s_out}, s{sDST}, 0xffff8000\ns_bfe_u32 s{sT3}, s{sDST}, 0x5000a\ns_lshl_b32 s{sT3}, s{sT3}, 5\ns_add_u32 s{s_out}, s{s_out}, s{sT3}")

sU = 96
def pack_decode(k):
    nm = "pk"; u = f"s{sU}"
    k(f"s_min_u32 s83, {u}, 231")
    u = "s83"
    k(f"s_and_b32 s90, s{sW}, 1\ns_lshr_b32 s91, s{sW}, 1")
    k(f"s_cmp_lt_u32 {u}, 48\ns_cbranch_scc1 {nm}_q")
    k(f"s_cmp_lt_u32 {u}, 160\ns_cbranch_scc1 {nm}_u")
    k(f"s_cmp_lt_u32 {u}, 176\ns_cbranch_scc1 {nm}_o")
    k(f"s_sub_u32 s84, {u}, 176\ns_lshl_b32 s84, s84, 2\ns_add_u32 s84, s84, s{sW}")
    k("s_and_b32 s85, s84, 15\ns_lshr_b32 s86, s84, 4")
    k("s_lshl_b32 s87, s85, 6")
    k("s_add_u32 s74, s72, s87\ns_addc_u32 s75, s73, 0\ns_mov_b32 s76, s74\ns_mov_b32 s77, s75")
    k("s_mov_b32 s78, 1024\ns_lshl_b32 s79, s86, 7")
    k(f"s_mul_i32 s80, s85, 14\ns_add_u32 s80, s80, s86\ns_lshl_b32 s80, s80, 13\ns_add_u32 s80, s80, {WD}\ns_mov_b32 s81, 1024\ns_mov_b32 s82, {DUMP}")
    k(f"s_branch {nm}_go")
    k.label(f"{nm}_o")
    k(f"s_sub_u32 s85, {u}, 160\ns_lshr_b32 s88, s85, 3\ns_and_b32 s85, s85, 7")
    k("s_lshl_b32 s87, s85, 1\ns_add_u32 s87, s87, s90\ns_lshl_b32 s87, s87, 6")
    k("s_add_u32 s74, s66, s87\ns_addc_u32 s75, s67, 0\ns_mov_b32 s76, s74\ns_mov_b32 s77, s75")
    k("s_mov_b32 s78, 1024\ns_lshl_b32 s79, s88, 1\ns_add_u32 s79, s79, s91\ns_lshl_b32 s79, s79, 7")
    k("s_lshl_b32 s89, s91, 15\ns_xor_b32 s90, s90, s88\ns_lshl_b32 s88, s88, 1\ns_add_u32 s90, s90, s88\ns_lshl_b32 s90, s90, 10")
    k(f"s_mul_i32 s80, s85, {WO_STR}\ns_add_u32 s80, s80, s89\ns_add_u32 s80, s80, s90\ns_add_u32 s80, s80, {WO}")
    k(f"s_mov_b32 s81, 4096\ns_mov_b32 s82, {DUMP}")
    k(f"s_branch {nm}_go")
    k.label(f"{nm}_u")
    k(f"s_sub_u32 s85, {u}, 48\ns_mul_i32 s84, s85, 2341\ns_lshr_b32 s84, s84, 16\ns_mul_i32 s86, s84, 28\ns_sub_u32 s85, s85, s86")
    k(f"s_lshl_b32 s85, s85, 2\ns_add_u32 s85, s85, s{sW}\ns_lshl_b32 s87, s85, 5")
    k("s_add_u32 s74, s68, s87\ns_addc_u32 s75, s69, 0")
    k("s_add_u32 s76, s70, s87\ns_addc_u32 s77, s71, 0\ns_sub_u32 s76, s76, 32\ns_subb_u32 s77, s77, 0")
    k("s_mov_b32 s78, 3584")
    k("s_mul_i32 s86, s85, 9363\ns_lshr_b32 s86, s86, 16\ns_mul_i32 s88, s86, 7\ns_sub_u32 s88, s85, s88")
    k(f"s_mul_i32 s91, s86, {WU_STR}\ns_add_u32 s91, s91, {WU}\ns_lshl_b32 s89, s88, 10\ns_add_u32 s91, s91, s89")
    k(f"s_cmp_lt_u32 s88, 5\ns_cselect_b32 s89, 3, 5\ns_lshl_b32 s89, s89, 15")
    k(f"s_cmp_lt_u32 s88, 3\ns_cselect_b32 s81, 3, 2\ns_cselect_b32 s89, 0, s89\ns_lshl_b32 s81, s81, 10\ns_add_u32 s91, s91, s89")
    k(f"s_branch {nm}_ext")
    k.label(f"{nm}_q")
    k(f"s_cmp_ge_u32 {u}, 24\ns_cselect_b32 s84, 2, 0\ns_cselect_b32 s86, 24, 0\ns_add_u32 s84, s84, s91\ns_sub_u32 s85, {u}, s86")
    k("s_lshl_b32 s85, s85, 1\ns_add_u32 s85, s85, s90\ns_and_b32 s86, s85, 15\ns_lshr_b32 s88, s85, 4")
    k("s_lshl_b32 s87, s85, 6\ns_lshl_b32 s89, s88, 10")
    k("s_add_u32 s74, s64, s87\ns_addc_u32 s75, s65, 0\ns_mov_b32 s76, s74\ns_mov_b32 s77, s75")
    k("s_mov_b32 s78, 3072")
    k(f"s_sub_u32 s89, s89, 1024\ns_cmp_eq_u32 s88, 0\ns_cselect_b32 s89, {66*KB}, s89\ns_cselect_b32 s81, 1, 2\ns_lshl_b32 s81, s81, 10")
    k(f"s_mul_i32 s91, s86, {WQ_STR}\ns_add_u32 s91, s91, s89\ns_add_u32 s91, s91, {WQ}")
    k.label(f"{nm}_ext")
    k("s_lshl_b32 s79, s84, 7")
    k("s_lshl_b32 s89, s81, 5\ns_add_u32 s82, s91, s89\ns_lshr_b32 s89, s84, 1\ns_lshl_b32 s89, s89, 9\ns_add_u32 s82, s82, s89")
    k("s_and_b32 s89, s84, 1\ns_lshl_b32 s89, s89, 3\ns_add_u32 s82, s82, s89")
    k("s_lshl_b32 s89, s81, 3\ns_mul_i32 s89, s89, s84\ns_add_u32 s80, s91, s89")
    k.label(f"{nm}_go")
    k(f"s_cmp_ge_u32 s{sU}, 232\ns_cselect_b32 s80, {DUMP}, s80")
    k("v_bfe_u32 v4, v0, 2, 4\nv_add_u32 v4, s79, v4\nv_mul_lo_u32 v4, v4, s78")
    k("v_and_b32 v13, 3, v0\nv_lshlrev_b32 v13, 4, v13\nv_add_u32 v4, v4, v13")
    k(f"s_lshl_b32 s83, s78, 4")
    if PK_Q0: k(f"s_lshl_b32 s84, s{sW}, 13\ns_add_u32 s84, s84, {64*KB}")
    elif PK_EARLY: k(f"s_lshl_b32 s84, s{sW}, 13\ns_add_u32 s84, s84, {4*KB}")
    else: k(f"s_lshl_b32 s84, s{sW}, 14\ns_add_u32 s84, s84, {96*KB}")
    k("s_mov_b32 s86, s83\ns_mov_b32 s87, 0")
    k("v_and_b32 v13, 2, v0\nv_cmp_eq_u32 vcc, 0, v13")
    k("v_mov_b32 v14, s76\nv_mov_b32 v13, s74\nv_cndmask_b32 v14, v14, v13, vcc\nv_mov_b32 v15, s77\nv_mov_b32 v13, s75\nv_cndmask_b32 v15, v15, v13, vcc")
    k("v_add_co_u32 v4, vcc, v4, v14\nv_addc_co_u32 v5, vcc, 0, v15, vcc")
def pack_issue(k, i, sbase):
    k(f"s_add_u32 m0, s{sbase}, {i*KB}")
    if i: k("v_lshl_add_u64 v[4:5], v[4:5], 0, s[86:87]")
    return k.vm("global_load_lds_dwordx4 v[4:5], off")
def tr_addr(k, v, t):
    k(f"v_bfe_u32 v{v}, v0, 5, 1\nv_lshlrev_b32 v{v}, 9, v{v}")
    k(f"v_bfe_u32 v{t}, v0, 2, 2\nv_lshlrev_b32 v{t}, 6, v{t}\nv_add_u32 v{v}, v{v}, v{t}")
    k(f"v_bfe_u32 v{t}, v0, 4, 1\nv_lshlrev_b32 v{t}, 5, v{t}\nv_add_u32 v{v}, v{v}, v{t}")
    k(f"v_and_b32 v{t}, 1, v0\nv_lshlrev_b32 v{t}, 4, v{t}\nv_add_u32 v{v}, v{v}, v{t}")
    k(f"v_bfe_u32 v{t}, v0, 1, 1\nv_lshlrev_b32 v{t}, 3, v{t}\nv_add_u32 v{v}, v{v}, v{t}")
def ext_pair(src, dst, t0):
    return [f"v_mov_b32 v{t0}, v{src}", f"v_permlane32_swap_b32 v{src}, v{t0}", f"v_add_f32 v{src}, v{src}, v{t0}",
            f"v_cvt_pk_bf16_f32 v{dst+1}, v{src}, 0", f"v_lshlrev_b32 v{t0}, 16, v{dst+1}", f"v_sub_f32 v{src}, v{src}, v{t0}",
            f"v_cvt_pk_bf16_f32 v{dst}, v{t0}, v{src}"]
class Pack:
    def __init__(self, k): self.k = k; self.r = {}
    def issue(self, *ii):
        for i in ii: self.d = pack_issue(self.k, i, 84)
    def reads(self, *ii):
        k = self.k
        if ii[0] == 0:
            k("v_accvgpr_read_b32 v4, a212")
            k.wait(vm=self.d)
        for i in ii:
            k.lg(f"ds_read_b64_tr_b16 {ar(160+4*i,2)}, v4 offset:{i*KB}")
            self.r[i] = k.lg(f"ds_read_b64_tr_b16 {ar(162+4*i,2)}, v4 offset:{i*KB+256}")
    def csum(self, i):
        self.k.wait(lg=self.r[i])
        self.k(f"v_mfma_f32_32x32x16_bf16 {ar(196,16)}, {ar(192)}, {ar(160+4*i)}, {'0' if i == 0 else ar(196,16)}")
    def stores(self, *ii):
        k = self.k
        k.wait(lg=self.r[ii[-1]])
        for i in ii:
            k.vm(f"buffer_store_dwordx4 {ar(160+4*i)}, v{vL16}, {srd(sWS)}, s80 offen sc1")
            k("s_add_u32 s80, s80, s81")
    def ext(self):
        k = self.k
        k("v_accvgpr_read_b32 v13, a196")
        k("v_cvt_pk_bf16_f32 v15, v13, 0\nv_lshlrev_b32 v14, 16, v15\nv_sub_f32 v13, v13, v14\nv_cvt_pk_bf16_f32 v14, v14, v13")
        k("s_mov_b32 exec_hi, 0")
        self.s = k.vm(f"buffer_store_dwordx2 v[14:15], v{vL16}, {srd(sWS)}, s82 offen sc1")
        k("s_mov_b64 exec, -1")
    def pub(self):
        k = self.k
        k(f"s_lshl_b32 s{sF}, s{sU}, 7\ns_add_u32 s{sF}, s{sF}, {FPK}")
        publish_wg(k, self.s, xid=True)
    def schedule(self, job):
        t = PK_T0
        if not PK_EARLY:
            for i in range(4): job(t + i, lambda i=i: self.issue(2*i, 2*i+1))
            t += 4 + PK_GAP
        if PK_WIN2:
            job(t, self.pub)
            return t
        if PK_EARLY and PK_SP:
            for i in range(8): job(t + PK_SP*i, lambda i=i: self.stores(i))
            job(t + 8*PK_SP, self.ext)
            job(t + 8*PK_SP + PK_GAP2, self.pub)
            return t + 8*PK_SP + PK_GAP2
        if PK_EARLY:
            for i in range(4): job(t + i, lambda i=i: self.stores(2*i, 2*i+1))
            job(t + 4, self.ext)
            job(t + 4 + PK_GAP2, self.pub)
            return t + 4 + PK_GAP2
        job(t, lambda: self.reads(0, 1, 2, 3)); job(t + 1, lambda: self.reads(4, 5, 6, 7))
        for i in range(4):
            job(t + 2 + i, lambda i=i: self.stores(2*i, 2*i+1))
            job(t + 1 + i, lambda i=i: self.csum(2*i), e=14)
            job(t + 2 + i, lambda i=i: self.csum(2*i+1), e=0)
        job(t + 6, self.ext)
        job(t + 6 + PK_GAP2, self.pub)
        return t + 6 + PK_GAP2
def qkv_consts(vT, vRS, vR):
    return [f"v_cvt_pk_bf16_f32 v{vT}, v{vRS}, 0", f"v_lshlrev_b32 v{vT+1}, 16, v{vT}", f"v_sub_f32 v{vT+2}, v{vRS}, v{vT+1}",
            f"v_cvt_pk_bf16_f32 v{vT}, v{vT+1}, v{vT+2}", f"v_mov_b32 v{vT+1}, 0", f"v_mov_b32 v{vT+2}, 0", f"v_mov_b32 v{vT+3}, 0",
            f"v_cmp_gt_u32 vcc, 512, v{vL16}", f"v_mov_b32 v{vT+4}, 0x3f803f80", f"v_cndmask_b32 v{vT+4}, 0, v{vT+4}, vcc",
            f"v_mov_b32 v{vT+5}, 0", f"v_mov_b32 v{vT+6}, 0", f"v_mov_b32 v{vT+7}, 0",
            f"v_mul_f32 v{vRS+1}, {hex(f2u(0.25*LOG2E))}, v{vRS}",
            "v_bfe_u32 v12, v0, 4, 1", "v_lshlrev_b32 v12, 17, v12", "v_and_b32 v13, 15, v0", "v_lshlrev_b32 v13, 4, v13", "v_add_u32 v12, v12, v13",
            "v_bfe_u32 v13, v0, 5, 1", "v_lshlrev_b32 v13, 8, v13", "v_add_u32 v12, v12, v13",
            f"v_mfma_f32_32x32x16_bf16 {vr(vR,16)}, {vr(vT)}, {vr(vT+4)}, 0"]
def qk_tile(a, dst, sc, fl, p0):
    o = []
    sb, hs = (sB, KB) if dst == QF else (sCc, 128*KB)
    for half in range(2):
        p = p0 + 4*half
        for j in range(4):
            r = a + 8*half + 2*j
            o += [f"v_mul_f32 v{r}, v{r}, v{sc}", f"v_mul_f32 v{r+1}, v{r+1}, v{sc}", f"v_cvt_pk_bf16_f32 v{p+j}, v{r}, v{r+1}"]
        o += [f"s_add_u32 s{sT2}, s{sb}, {dst + half*hs}", f"buffer_store_dwordx4 {vr(p)}, v{vL16}, {srd(sWS)}, s{sT2} offen{fl}"]
    return o
def v_tile(a, L, vR, p0):
    o = [f"s_add_u32 s{sT2}, s{sCc}, {KVF(L) + KB}"]
    for u in range(2):
        p = p0 + 4*u
        for j in range(4):
            r = a + 8*u + 2*j; q = vR + 8*u + 2*j
            o += [f"v_mul_f32 v{r}, v{r}, v{q}", f"v_mul_f32 v{r+1}, v{r+1}, v{q+1}", f"v_cvt_pk_bf16_f32 v{p+j}, v{r}, v{r+1}"]
        o.append(f"buffer_store_dwordx4 {vr(p)}, v12, {srd(sWS)}, s{sT2} offen offset:{u*512} sc1")
    return o
def kv_flag(k, L, tkv):
    k(f"s_lshl_b32 s{sF}, s{sA}, 4\ns_lshr_b32 s{sT1}, s{sRB}, 2\ns_add_u32 s{sF}, s{sF}, s{sT1}\ns_lshl_b32 s{sF}, s{sF}, 7\ns_add_u32 s{sF}, s{sF}, {FKV(L)}")
    publish_wg(k, tkv)
def q_flag(k, L, tq):
    k(f"s_lshr_b32 s{sF}, s{sRB}, 3\ns_lshl_b32 s{sF}, s{sF}, 4\ns_add_u32 s{sF}, s{sF}, s{sA}\ns_lshl_b32 s{sF}, s{sF}, 3\ns_and_b32 s{sT1}, s{sRB}, 7\ns_add_u32 s{sF}, s{sF}, s{sT1}\ns_lshl_b32 s{sF}, s{sF}, 3\ns_add_u32 s{sF}, s{sF}, {FLOC(L-1,5)}")
    publish_local(k, tq, force_global=(L == 0))

WARM = True
LIN_AT = 99
LIN_U = True
Q0_ROT = True
Q0_MARKS = False
Q0_MARKJ = ()
Q0_SCHED = ((3, 4), (5,), (6,), (7,), (), (), (), ())
LATE_AT = 1
Q0_UP = 3
PK_AT = (3, 3, 4, 4, 5, 5, 6, 6)
def ph_qkv0(k, late):
    vX, vACC, vST, vEXT, vRS, vT, vR = 16, 144, 192, 8, 6, 224, 232
    vXA, vWA, vXR, vTR, vTW, vCS, vCW, vONE = 10, 12, 196, 200, 202, 204, 208, 220
    sXS, sWR, sXL, sWL = 60, 56, sD, sE
    k(f"s_lshr_b32 s{sRB}, s{sG}, 1\ns_lshl_b32 s{sRB}, s{sRB}, 2\ns_add_u32 s{sRB}, s{sRB}, s{sC3}\ns_lshl_b32 s{sRB}, s{sRB}, 2\ns_add_u32 s{sRB}, s{sRB}, s{sW}")
    k(f"s_and_b32 s{sA}, s{sG}, 1\ns_lshl_b32 s{sA}, s{sA}, 3\ns_and_b32 s{sT0}, s{sC}, 7\ns_add_u32 s{sA}, s{sA}, s{sT0}")
    k(f"v_bfe_u32 v{vXA}, v0, 3, 3\nv_lshlrev_b32 v{vXA}, 10, v{vXA}\nv_and_b32 v13, 7, v0\nv_bfe_u32 v14, v0, 4, 2\nv_xor_b32 v13, v13, v14")
    k(f"v_lshlrev_b32 v13, 4, v13\nv_add_u32 v{vXA}, v{vXA}, v13\nv_xor_b32 v{vXA+1}, 64, v{vXA}")
    k(f"v_bfe_u32 v{vWA}, v0, 2, 4\nv_mul_u32_u24 v{vWA}, 3072, v{vWA}\nv_and_b32 v13, 3, v0\nv_lshlrev_b32 v13, 4, v13\nv_add_u32 v{vWA}, v{vWA}, v13")
    k(f"s_lshl_b32 s{sX}, s{sRB}, 15")
    k(f"s_mul_i32 s{sX2}, s{sW}, 49152\ns_lshl_b32 s{sT0}, s{sA}, 6\ns_add_u32 s{sX2}, s{sX2}, s{sT0}")
    k(f"s_lshl_b32 s{sXL}, s{sW}, 14\ns_add_u32 s{sXL}, s{sXL}, {96*KB}\ns_mul_i32 s{sWL}, s{sW}, 3072")
    k("s_waitcnt lgkmcnt(0)")
    if Q0_MARKS: mark(k, 'karg')
    k(f"s_mov_b32 s{sWR}, s64\ns_and_b32 s{sWR+1}, s65, 0xffff\ns_mov_b32 s{sWR+2}, {512*3072}\ns_mov_b32 s{sWR+3}, 0x20000")
    k(f"s_and_b32 s{sXS+1}, s{sXS+1}, 0xffff\ns_mov_b32 s{sXS+2}, {2*MB}\ns_mov_b32 s{sXS+3}, 0x20000")
    ct = {}; cn = {j: 0 for j in range(8)}
    k(f"s_lshl_b32 s{sCc}, s{sC3}, 1\ns_add_u32 s{sCc}, s{sCc}, s{sC}")
    def rot(j):
        k(f"s_add_u32 s{sT3}, s{sCc}, {j}\ns_and_b32 s{sT3}, s{sT3}, {7 if Q0_ROT else 0}")
        if not Q0_ROT: k(f"s_mov_b32 s{sT3}, {j}")
        k(f"s_lshl_b32 s{sS0}, s{sT3}, 7\ns_add_u32 s{sS0}, s{sS0}, s{sX}")
        k(f"s_mul_i32 s{sS1}, s{sT3}, {4*49152}\ns_add_u32 s{sS1}, s{sS1}, s{sX2}")
    def ldW(j, t):
        k(f"s_add_u32 m0, s{sWL}, {(12*j + t)*KB}\ns_add_u32 s{sT2}, s{sS1}, {((t+1) % 3)*1024}")
        ct[j] = k.vm(f"buffer_load_dwordx4 v{vWA}, {srd(sWR)}, s{sT2} offen lds"); cn[j] += 1
    def ldX(j, i):
        if i == 0: rot(j)
        k(f"s_add_u32 m0, s{sXL}, {(j & 3)*4*KB + i*KB}\ns_add_u32 s{sT2}, s{sS0}, {i*8192}")
        ct[j] = k.vm(f"buffer_load_dwordx4 v{vXA + (i & 1)}, {srd(sXS)}, s{sT2} offen lds"); cn[j] += 1
    def chunk_loads(j):
        return [lambda i=i: ldX(j, i) for i in range(4)] + [lambda t=t: ldW(j, t) for t in range(3)]
    for f in chunk_loads(0): f()
    if Q0_MARKS: mark(k, 'up0')
    late(k)
    pack_decode(k)
    k(f"s_cmp_eq_u32 s{sW}, 0\ns_cselect_b64 s[90:91], s[68:69], s[70:71]")
    k(f"s_cmp_eq_u32 s{sW}, 2\ns_cselect_b64 s[90:91], s[72:73], s[90:91]")
    k(f"s_cmp_eq_u32 s{sW}, 3\ns_cselect_b64 s[90:91], s[66:67], s[90:91]\ns_cselect_b32 s{sT0}, 16, 56")
    k(f"s_mul_i32 s{sT1}, s{sT0}, s{sU}\ns_sub_u32 s{sT0}, s{sT0}, 1")
    k(f"v_and_b32 v254, 63, v0\nv_min_u32 v254, s{sT0}, v254\nv_add_u32 v254, s{sT1}, v254\nv_lshlrev_b32 v254, 7, v254")
    pk = G.pk = Pack(k)
    k(f"s_and_b32 s{sT0}, s{sC}, 7\ns_and_b32 s{sT1}, s{sC}, 15")
    k("v_and_b32 v13, 15, v0\nv_min_u32 v14, 13, v13")
    k(f"s_lshr_b32 s{sT2}, s{sT0}, 1\ns_add_u32 s{sT2}, s{sT2}, 176\nv_lshl_add_u32 v252, v14, 2, s{sT2}")
    k(f"s_mul_i32 s{sT2}, s{sT1}, 7\ns_add_u32 s{sT3}, s{sT2}, 6\ns_lshr_b32 s{sT2}, s{sT2}, 2\ns_lshr_b32 s{sT3}, s{sT3}, 2")
    k(f"v_lshrrev_b32 v14, 2, v13\nv_add_u32 v14, s{sT2}, v14\nv_min_u32 v14, s{sT3}, v14\nv_and_b32 v15, 3, v13\nv_mul_u32_u24 v15, 28, v15")
    k("v_add3_u32 v14, v14, v15, 48")
    k("v_and_b32 v15, 16, v0\nv_cmp_ne_u32 vcc, 0, v15\nv_cndmask_b32 v252, v252, v14, vcc")
    k(f"s_add_u32 s{sT0}, s{sT0}, 160\nv_and_b32 v14, 1, v13\nv_lshl_add_u32 v251, v14, 3, s{sT0}")
    k(f"s_lshr_b32 s{sT1}, s{sT1}, 1\nv_mul_u32_u24 v14, 24, v14\nv_lshrrev_b32 v15, 1, v13\nv_min_u32 v15, 2, v15\nv_lshlrev_b32 v15, 3, v15")
    k(f"v_add3_u32 v14, v14, v15, s{sT1}")
    k("v_cndmask_b32 v251, v251, v14, vcc")
    k(f"v_cmp_gt_u32 vcc, 512, v{vL16}\nv_cndmask_b32 v252, v251, v252, vcc\nv_lshlrev_b32 v252, 7, v252\nv_accvgpr_write_b32 a213, v252")
    if WARM:
        k("s_getpc_b64 s[88:89]")
        k(f"s_lshl_b32 s{sT0}, s{sC}, 1\ns_add_u32 s{sT0}, s{sT0}, s{sW}\ns_and_b32 s{sT0}, s{sT0}, 63\ns_lshl_b32 s{sT0}, s{sT0}, 10")
        k(f"v_add_u32 v245, s{sT0}, v{vL16}")
        k(f"v_min_u32 v244, {(WS_PAGES-1)*16}, v{vL16}\nv_lshlrev_b32 v244, 17, v244")
        k(f"s_cmp_eq_u32 s{sW}, 1\ns_cselect_b64 s[88:89], s[{sAUX}:{sAUX+1}], s[88:89]")
        k(f"s_cmp_eq_u32 s{sW}, 0\ns_cselect_b64 s[88:89], s[{sWS}:{sWS+1}], s[88:89]\ns_cselect_b64 vcc, -1, 0")
        k("v_cndmask_b32 v245, v245, v244, vcc")
    if PK_Q0: pk.issue(*range(8))
    k(f"v_and_b32 v13, 31, v0\nv_bfe_u32 v14, v0, 1, 3\nv_bfe_u32 v15, v0, 5, 1\nv_xor_b32 v14, v14, v15\nv_lshlrev_b32 v14, 4, v14\nv_lshl_add_u32 v13, v13, 7, v14")
    for e in range(4):
        k(f"v_xor_b32 v{vXR+e}, {e*32}, v13\nv_add_u32 v{vXR+e}, s{sXL}, v{vXR+e}")
    tr_addr(k, vTR, 13)
    k(f"v_add_u32 v{vTR+1}, {48*KB}, v{vTR}\nv_add_u32 v{vTW}, s{sWL}, v{vTR}\nv_add_u32 v{vTW+1}, {48*KB}, v{vTW}")
    k(f"v_mov_b32 v{vONE}, 0x3f803f80\nv_add_u32 v255, s84, v{vTR}\nv_accvgpr_write_b32 a212, v255")
    for r in range(192, 196): k(f"v_accvgpr_write_b32 a{r}, v{vONE}")
    for r in list(range(vST, vST+4)) + list(range(vCS, vCS+3)): k(f"v_mov_b32 v{r}, 0")
    def reads(j):
        o = []
        for e in range(4):
            o.append(f"ds_read_b128 {vr(vX + 16*j + 4*e)}, v{vXR+e} offset:{(j & 3)*4*KB}")
        for t in range(3):
            off = (12*(j & 3) + t)*KB
            o.append(f"ds_read_b64_tr_b16 {vr(vCW+4*t,2)}, v{vTW + (j >> 2)} offset:{off}")
            o.append(f"ds_read_b64_tr_b16 {vr(vCW+4*t+2,2)}, v{vTW + (j >> 2)} offset:{off+256}")
        for b in range(12):
            off = (12*(j & 3) + b)*KB; r = 48*(j & 1) + 4*b
            o.append(f"ds_read_b64_tr_b16 {ar(r,2)}, v{vTR + (j >> 2)} offset:{off}")
            o.append(f"ds_read_b64_tr_b16 {ar(r+2,2)}, v{vTR + (j >> 2)} offset:{off+256}")
        return o
    def dots(j):
        for i in range(16):
            r = vX + 16*j + i
            k(f"v_dot2c_f32_bf16 v{vST + 2*(i & 1)}, v{vONE}, v{r}\nv_dot2c_f32_bf16 v{vST + 1 + 2*(i & 1)}, v{r}, v{r}")
        for i in range(4):
            for t in range(3): k(f"v_dot2c_f32_bf16 v{vCS+t}, v{vONE}, v{vCW+4*t+i}")
    def xid():
        k(f"s_add_u32 s{sTAG}, s{sTAG}, 0x7f4a7c15\ns_addc_u32 s{sTAG+1}, s{sTAG+1}, 0x9e3779b9")
        k("v_mov_b32 v13, 0")
        k("s_mov_b64 exec, 1")
        if FLAG_TOUCH:
            k(f"s_lshl_b32 s{sF}, s{sA}, 4\ns_lshr_b32 s{sT1}, s{sRB}, 2\ns_add_u32 s{sF}, s{sF}, s{sT1}\ns_lshl_b32 s{sF}, s{sF}, 7\ns_add_u32 s{sF}, s{sF}, {FKV(0)}")
            k.vm(f"buffer_load_dword v5, v13, {srd(sWS)}, s{sF} offen sc1")
            k(f"s_lshl_b32 s{sF}, s{sU}, 7\ns_add_u32 s{sF}, s{sF}, {FPK}")
            k.vm(f"buffer_load_dword v5, v13, {srd(sWS)}, s{sF} offen sc1")
        k("s_mov_b64 exec, -1")
    def lin_touch():
        k.vm("global_load_dword v253, v254, s[90:91]")
    side = []
    if Q0_MARKS: mark(k, 'alu')
    if WARM and WARM_AT == 0: k.vm(f"global_load_dword v253, v245, s[88:89]")
    for j in range(1, Q0_UP):
        for f in chunk_loads(j): f()
    if WARM and WARM_AT == 1: k.vm(f"global_load_dword v253, v245, s[88:89]")
    if Q0_MARKS: mark(k, 'iss')
    k.wait(vm=ct[0])
    if Q0_MARKS: mark(k, 'w0')
    k("s_barrier")
    mark(k, 'd0')
    rl = reads(0)
    for x in rl[:10]: t10 = k.lg(x)
    for x in rl[10:]: k.lg(x)
    k.wait(lg=t10)
    dots(0)
    for j in range(8):
        for c_ in Q0_SCHED[j]:
            assert c_ - 4 <= j
            side += chunk_loads(c_)
        if j == 1: side.append(xid)
        if WARM and WARM_AT == j + 2: side.append(lambda: k.vm(f"global_load_dword v253, v245, s[88:89]"))
        if PK_EARLY: side += [lambda i=i: pk.issue(i) for i in range(8) if PK_AT[i] == j]
        if j == LIN_AT and not PK_Q0: side.append(lin_touch)
        if PK_Q0:
            assert all(c_ < 5 or j > PK_RD for c_ in Q0_SCHED[j])
            if j == PK_RD: side += [lambda i=i: pk.reads(2*i, 2*i+1) for i in range(4)]
            if j == PK_ST: side += [lambda i=i: (pk.stores(i), pk.csum(i)) for i in range(4)]
            if j == PK_ST + 1: side += [lambda i=i: (pk.stores(i), pk.csum(i)) for i in range(4, 8)]
            if j == PK_ST + 2: side.append(pk.ext)
        k.wait_all(vm=False)
        rl = []
        if j < 7:
            assert cn[j+1] == 7
            k.wait(vm=ct[j+1]); k("s_barrier")
            if j in Q0_MARKJ: mark(k, f'c{j+1}')
            rl = reads(j + 1)
        t10 = None; nr = 0
        if j == 7:
            tail = f"s_lshr_b32 s{sT0}, s{sW}, 1\ns_lshl_b32 s{sT0}, s{sT0}, 9\ns_and_b32 s{sT1}, s{sW}, 1\ns_lshl_b32 s{sT1}, s{sT1}, 3\ns_add_u32 s{sT0}, s{sT0}, s{sT1}".split('\n')
            tail += [f"v_and_b32 v13, 0x1f0, v{vL16}", f"v_add_u32 v13, s{sT0}, v13"]
            for t in range(3): tail += ext_pair(vCS+t, vCW+2*t, 14) + [f"ds_write_b64 v13, {vr(vCW+2*t,2)} offset:{t*KB}"]
            fin = fin_stats(vST, vEXT, vRS)[NTREE:] + qkv_consts(vT, vRS, vR)
            tail += [f"v_add_f32 v{vST}, v{vST}, v{vST+2}", f"v_add_f32 v{vST+1}, v{vST+1}, v{vST+3}"] + fin[:18]
            tail += ["s_waitcnt lgkmcnt(0)", "s_barrier"] + [f"ds_read_b128 {vr(vCW+4*t)}, v{vL16} offset:{t*KB}" for t in range(3)] + fin[18:]
            tail += f"s_lshl_b32 s{sCc}, s{sA}, 18\ns_lshl_b32 s{sT1}, s{sRB}, 11\ns_add_u32 s{sCc}, s{sCc}, s{sT1}".split('\n')
            tail += f"s_mul_i32 s{sB}, s{sRB}, {112*KB}\ns_lshl_b32 s{sT1}, s{sA}, 11\ns_add_u32 s{sB}, s{sB}, s{sT1}".split('\n')
            assert not side
            n_ = -(-len(tail) // 12)
            side = [lambda c=tail[i:i+n_]: [k(x) for x in c] for i in range(0, len(tail), n_)]
        for b in range(12):
            ks = 4*j + b // 3; t = b % 3
            acc = vr(vACC + 16*t, 16); w = ar(48*(j & 1) + 4*b); x = vr(vX + 4*ks)
            A, B = (x, w) if t == 1 else (w, x)
            k(f"v_mfma_f32_32x32x16_bf16 {acc}, {A}, {B}, {'0' if ks == 0 else acc}")
            if ks == 0 and t == 0: mark(k, 'm0')
            for _ in range(3):
                if rl:
                    t_ = k.lg(rl.pop(0)); nr += 1
                    if nr == 10: t10 = t_
            if side: side.pop(0)()
            if len(side) > 11 - b: side.pop(0)()
        if j < 7:
            assert not rl
            k.wait(lg=t10)
            dots(j + 1)
    while side: side.pop(0)()
    mark(k, 'loop')
    k.wait_all(vm=False)
    for t in range(3):
        c = vCW + 4*t
        acc = vr(vACC + 16*t, 16)
        A, B = (vr(vEXT), vr(c)) if t == 1 else (vr(c), vr(vEXT))
        k(f"v_mfma_f32_32x32x16_bf16 {acc}, {A}, {B}, {acc}")
    t_ = None
    for x in qk_tile(vACC, KVF(0), vRS, " sc1", vX) + v_tile(vACC+16, 0, vR, vX+8) + qk_tile(vACC+32, QF, vRS+1, " sc1", vX+16):
        if x.startswith('buffer'): t_ = k.vm(x)
        else: k(x)
    mark(k, 'st')
    return t_, t_

def ph_qkv(k, L, ring, b0):
    vX, vACC, vST, vEXT, vRS, vT, vR = 16, 144, 192, 8, 6, 224, 232
    rb_128(k)
    k(f"s_and_b32 s{sA}, s{sC}, 15")
    k(f"s_lshl_b32 s{sX}, s{sRB}, 15\ns_add_u32 s{sX}, s{sX}, {XF}")
    set_lds_bases(k)
    QE = QKV_QE
    seq = [(ks, t) for ks in range(33) for t in ((0, 1, 2) if ks < QE else (0, 1))] + [(ks, 2) for ks in range(QE, 33)]
    ops = [dict(b=b0 + (2*ks + t if t < 2 else 66 + ks), bmin=b0, bmax=b0 + 98, xi=(ks if ks < 32 else None), x=(vr(vX+4*ks) if ks < 32 else vr(vEXT)),
                acc=vr(vACC+16*t, 16), swap=(t == 1), first=(ks == 0)) for ks, t in seq]
    xq = XLoader(k, 32, lambda i: vr(vX+4*i), lin_src(k))
    res = {}
    se = stats_emitters(k, vST, res)
    k(f"s_lshl_b32 s{sCc}, s{sA}, 18\ns_lshl_b32 s{sT1}, s{sRB}, 11\ns_add_u32 s{sCc}, s{sCc}, s{sT1}")
    k(f"s_mul_i32 s{sB}, s{sRB}, {112*KB}\ns_lshl_b32 s{sT1}, s{sA}, 11\ns_add_u32 s{sB}, s{sB}, s{sT1}")
    assert ring.issued == ring.total
    g = Gemm(k, ring, ops, {0})
    g.start()
    ring.issue_n(4)
    publish_local(k, G.tx)
    ring.issue_n(4)
    k(f"s_lshl_b32 s{sF}, s{sRB}, 7\ns_add_u32 s{sF}, s{sF}, {FLOC(L-1, 8)}")
    poll16(k)
    aps = stats_poll(k, FLOC(L-1,7) - FLOC(L-1,8))
    fin = fin_stats(vST, vEXT, vRS) + qkv_consts(vT, vRS, vR)
    epi = qk_tile(vACC, KVF(L), vRS, " sc1", vST) + v_tile(vACC+16, L, vR, vST+16)
    nkv = len(epi)
    if KV_LOC:
        epi += [f"s_lshl_b32 s{sE}, s{sA}, 11", f"s_add_u32 s{sE}, s{sE}, s{sB}", f"s_add_u32 s{sE}, s{sE}, {HF + 32*KB}",
                f"buffer_store_dwordx4 {vr(vST)}, v{vL16}, {srd(sWS)}, s{sE} offen",
                f"buffer_store_dwordx4 {vr(vST+4)}, v{vL16}, {srd(sWS)}, s{sE} offen offset:2048",
                "v_lshrrev_b32 v13, 6, v12", "v_and_b32 v13, 0x800, v13", "v_and_b32 v12, 0x1ff, v12", "v_add_u32 v12, v12, v13",
                f"buffer_store_dwordx4 {vr(vST+16)}, v12, {srd(sWS)}, s{sE} offen offset:1024",
                f"buffer_store_dwordx4 {vr(vST+20)}, v12, {srd(sWS)}, s{sE} offen offset:1536"]
    st = dict(i=0, j=0, t=None)
    def put(x):
        if x.startswith('buffer'): st['t'] = k.vm(x)
        else: k(x)
    def filler(m):
        if aps and m == 4: aps.issue()
        if m == 22:
            if aps: aps.check()
            for e in se: e()
        if 44 <= m < 64 + QE:
            if st['i'] == 0: k.wait(vm=res['t'])
            for _ in range(3):
                if st['i'] < len(fin): k(fin[st['i']]); st['i'] += 1
        if m >= 68 + QE:
            for _ in range(QKV_EPI):
                if st['j'] < len(epi): put(epi[st['j']]); st['j'] += 1
    g.run(xq, n0=8, filler=filler)
    while st['j'] < len(epi):
        put(epi[st['j']]); st['j'] += 1
    assert st['i'] == len(fin)
    tkv = st['t']
    for x in qk_tile(vACC + 32, QF, vRS + 1, "", vST+8): put(x)
    mark(k, 'st')
    return tkv, st['t']

def code_touch(k, vd, skip=0):
    if not CODE_TOUCH: return
    k(f"s_getpc_b64 s[{sPC}:{sPC+1}]\ns_add_u32 s{sPC}, s{sPC}, s{sCT}\ns_addc_u32 s{sPC+1}, s{sPC+1}, 0")
    k.vm(f"global_load_dword v{vd}, v{vL16}, s[{sPC}:{sPC+1}] offset:{skip}")

def flag_touch(k, L, va, vd):
    if not FL_TOUCH: return
    k(f"v_bfe_u32 v{va}, v0, 3, 3\nv_lshlrev_b32 v{va}, 6, v{va}\nv_and_or_b32 v{va}, v0, 7, v{va}\nv_lshlrev_b32 v{va}, 7, v{va}")
    k(f"s_lshl_b32 s{sT3}, s{sG}, 10\ns_add_u32 s{sT3}, s{sT3}, {FLOC(L,0)}")
    k.vm(f"buffer_load_dword v{vd}, v{va}, {srd(sWS)}, s{sT3} offen sc1")

def ph_att(k, L, ring, tkv, tq):
    vO, vS0, vKV, aQ = 16, 144, 208, aWB
    NS = 4
    vS = [vS0 + 16*i for i in range(NS)]
    vK, vV, vIDX, vL128 = 6, 7, 8, 9
    sK, sHD = sB, sE
    k(f"s_lshl_b32 s{sHD}, s{sC}, 16")
    k(f"s_lshl_b32 s{sT0}, s{sC}, 17\ns_add_u32 s{sT0}, s{sT0}, s{sW4K}\ns_add_u32 s{sT0}, s{sT0}, {KVF(L)}")
    k("v_and_b32 v10, 0x33, v0\nv_bfe_u32 v11, v0, 2, 1\nv_lshlrev_b32 v11, 3, v11\nv_or_b32 v10, v10, v11")
    k(f"v_bfe_u32 v11, v0, 3, 1\nv_lshlrev_b32 v11, 2, v11\nv_or_b32 v10, v10, v11\nv_lshl_add_u32 v{vK}, v10, 4, s{sT0}")
    k(f"v_and_b32 v10, 15, v0\nv_bfe_u32 v11, v0, 5, 1\nv_lshlrev_b32 v11, 4, v11\nv_add_u32 v10, v10, v11\nv_lshl_add_u32 v{vV}, v10, 4, s{sT0}")
    k(f"v_mov_b32 v{vIDX}, 0xdddddddd\nv_lshlrev_b32 v{vL128}, 3, v{vL16}")
    k(f"s_lshl_b32 s{sK}, s{sG}, 14")
    if L and KV_LOC:
        k(f"s_lshl_b32 s{sT1}, s{sC}, 10\ns_add_u32 s{sT1}, s{sT1}, {32*KB}\ns_sub_u32 s{sT1}, s{sT0}, s{sT1}")
        k(f"v_subrev_u32 v146, s{sT1}, v{vK}\nv_subrev_u32 v147, s{sT1}, v{vV}")
    k("v_and_b32 v10, 27, v0\nv_cmp_eq_u32 vcc, 16, v10\nv_mov_b32 v11, 0x3f803f80\nv_cndmask_b32 v11, 0, v11, vcc")
    k("v_mov_b32 v144, v11")
    k(f"s_lshr_b32 s{sT0}, s{sC}, 1\ns_lshl_b32 s{sD}, s{sT0}, 11\ns_add_u32 s{sD}, s{sD}, {FKV(L)}")
    k(f"s_lshl_b32 s{sT3}, s{sG}, 8\ns_add_u32 s{sT3}, s{sT3}, s{sD}")
    if L == 0:
        k(f"v_and_b32 v11, 1, v0\nv_lshlrev_b32 v11, 7, v11\nv_add_u32 v11, s{sT3}, v11")
        k(f"v_cmp_gt_u32 vcc, 512, v{vL16}")
    k(f"s_lshr_b32 s{sT1}, s{sW}, 1\ns_lshl_b32 s{sT1}, s{sT1}, 7\ns_add_u32 s{sD}, s{sD}, s{sT1}")
    if L:
        k(f"s_add_u32 s{sT3}, s{sT3}, s{sT1}")
        k(f"s_lshl_b32 s{sT2}, s{sG}, 10\ns_lshl_b32 s{sT0}, s{sT0}, 6\ns_add_u32 s{sT2}, s{sT2}, s{sT0}\ns_add_u32 s{sT2}, s{sT2}, {FLOC(L-1,5)}")
        k(f"v_mov_b32 v12, s{sT3}\nv_and_b32 v11, 7, v0\nv_lshlrev_b32 v11, 3, v11\nv_add_u32 v11, s{sT2}, v11")
        k(f"v_cmp_gt_u32 vcc, 512, v{vL16}")
        if not KV_LOC: k("v_cndmask_b32 v11, v11, v12, vcc")
    k(f"v_and_b32 v12, 7, v0\nv_lshlrev_b32 v12, 8, v12")
    k(f"s_mul_i32 s{sT2}, s{sG}, {8*112*KB}\ns_lshl_b32 s{sT3}, s{sC}, 10\ns_add_u32 s{sT2}, s{sT2}, s{sT3}\ns_add_u32 s{sT2}, s{sT2}, {QF}")
    sQ = list(range(64, 72))
    for p in range(4):
        k(f"s_xor_b32 s{sT3}, s{sW}, {p}\ns_mul_i32 s{sT3}, s{sT3}, {2*112*KB}\ns_add_u32 s{sQ[2*p]}, s{sT3}, s{sT2}\ns_add_u32 s{sQ[2*p+1]}, s{sQ[2*p]}, {112*KB}")
    sTH, sTW, sFO = 72, 73, 79
    k(f"s_lshl_b32 s{sT3}, s{sU}, 2\ns_add_u32 s{sT3}, s{sT3}, s{sW}")
    k(f"s_mul_i32 s{sTH}, s{sT3}, {7*KB}\ns_add_u32 s{sTH}, s{sTH}, {HF}")
    k(f"s_lshl_b32 s{sT0}, s{sT3}, 11\ns_add_u32 s{sT0}, s{sT0}, {XF}\ns_lshl_b32 s{sT1}, s{sT3}, 8\ns_add_u32 s{sT1}, s{sT1}, {SX}")
    k(f"v_and_b32 v3, 0x780, v{vL128}\nv_add_u32 v3, s{sT0}, v3\nv_and_b32 v13, 0x80, v{vL128}\nv_add_u32 v13, s{sT1}, v13\nv_cndmask_b32 v3, v13, v3, vcc")
    k(f"s_lshl_b32 s{sTW}, s{sC4}, 2\ns_add_u32 s{sTW}, s{sTW}, s{sW}\ns_mul_i32 s{sTW}, s{sTW}, {TOUCH_KBS[L] * KB // 8}")
    k(f"s_add_u32 s{sTW}, s{sTW}, s{sSEG+1}\ns_add_u32 s{sTW}, s{sTW}, {32*KB}")
    k(f"s_and_b32 s{sCT}, s{sT3}, 31\ns_lshl_b32 s{sCT}, s{sCT}, 10")
    k(f"s_lshl_b32 s{sFO}, s{sG}, 2\ns_add_u32 s{sFO}, s{sFO}, s{sW}\ns_lshl_b32 s{sFO}, s{sFO}, 5\ns_add_u32 s{sFO}, s{sFO}, s{sC}\ns_lshl_b32 s{sFO}, s{sFO}, 3\ns_add_u32 s{sFO}, s{sFO}, {FLOC(L,0)}")
    for i in range(4): k(f"v_mov_b32 v{148+i}, 0")
    for q in range(8): k(f"v_mfma_f32_32x32x16_bf16 {vr(vO+16*q,16)}, {vr(148)}, {vr(148)}, 0")
    mark(k, 'pre')
    if L: q_flag(k, L, tq)
    kv_flag(k, L, tkv)
    if L == 0 and PK_Q0:
        k(f"s_lshl_b32 s{sF}, s{sU}, 7\ns_add_u32 s{sF}, s{sF}, {FPK}\nv_mov_b32 v145, v12")
        publish_wg(k, None, xid=True, barrier=False)
        k("v_mov_b32 v12, v145")
    mark(k, 'flag')
    if L == 0 and PK_EARLY:
        G.pk.reads(*range(8))
        for i in range(8): G.pk.csum(i)
        if PK_WIN2:
            G.pk.stores(*range(8)); G.pk.ext()
    if L == 0 and LIN_AT == 'flag': k.vm("global_load_dword v253, v254, s[90:91]")
    for b in range(2):
        for j in range(8): k(f"v_mov_b32 v{vKV+12*b+4+j}, v144")
    k(f"s_mov_b32 s{sF}, 0")
    poll(k, 11, 14, sleep=SLEEP1[L])
    mark(k, 'poll')
    K = lambda t: vr(vKV + 12*(t % 4))
    V = lambda t, u: vr(vKV + 12*(t % 4) + 4 + 4*u)
    kt = {}; vt = {}
    loc = lambda t: L and KV_LOC and t < 2
    def ldK(t):
        if t and (t & 1) == 0: k(f"s_add_u32 s{sK}, s{sK}, 0x4000\ns_and_b32 s{sK}, s{sK}, 0x1ffff")
        if loc(t): kt[t] = k.vm(f"buffer_load_dwordx4 {K(t)}, v{14 if t and HEAD else 146}, {srd(sWS)}, s{sQ[t]} offen sc1")
        else: kt[t] = k.vm(f"buffer_load_dwordx4 {K(t)}, v{vK}, {srd(sWS)}, s{sK} offen offset:{(t & 1)*2*KB} sc1")
    def ldV(t):
        va, so, o = (15 if t and HEAD else 147, sQ[t], KB) if loc(t) else (vV, sK, (t & 1)*2*KB + KB)
        k(f"s_mov_b64 exec, s[{sMSK}:{sMSK+1}]")
        k.vm(f"buffer_load_dwordx4 {V(t,0)}, v{va}, {srd(sWS)}, s{so} offen offset:{o} sc1")
        vt[t] = k.vm(f"buffer_load_dwordx4 {V(t,1)}, v{va}, {srd(sWS)}, s{so} offen offset:{o+512} sc1")
        k("s_mov_b64 exec, -1")
    def ldKV(t):
        ldK(t); ldV(t); kt[t] = vt[t]
    ldK(0)
    qt = {}
    def ldQ(*ss):
        for s in ss: qt[s] = k.vm(f"buffer_load_dwordx4 {ar(aQ+4*s)}, v{vL16}, {srd(sWS)}, s{sQ[s]} offen sc1")
    if HEAD == 0:
        ldQ(0, 1, 2); ldV(0); ldQ(3, 4, 5, 6, 7); ldKV(1)
    else:
        ldQ(0, 1); ldV(0); ldQ(2)
    ap2 = apoll1(k, 12, 10, sD, sleep=SLEEP2)
    for b in range(2, 4):
        for j in range(8): k(f"v_mov_b32 v{vKV+12*b+4+j}, v144")
    NT = ATT_NT
    steps = [(t, q) for t in range(16 - NT) for q in range(8)] + [(t, q) for q in range(2, 8) for t in range(16 - NT, 16)] + [(t, q) for q in range(2) for t in range(16 - NT, 16)]
    n = len(steps)
    LA = NS - 1
    def qk(i):
        t, q = steps[i]
        k.wait(vm=max(kt[t], qt[q]) if t == 0 else kt[t])
        k(f"v_mfma_f32_32x32x16_bf16 {vr(vS[i % NS],16)}, {K(t)}, {ar(aQ+4*q)}, 0")
    def pv(i, u):
        t, q = steps[i]
        k.wait(vm=vt[t])
        k(f"v_smfmac_f32_32x32x32_bf16 {vr(vO+16*q,16)}, {V(t,u)}, {vr(vS[i % NS]+8*u,8)}, v{vIDX}")
    if HEAD == 0:
        for i in range(LA): qk(i)
    else:
        if loc(1): k("v_mov_b32 v14, v146\nv_mov_b32 v15, v147")
        qk(0); ldQ(3, 4); qk(1)
    mark(k, 'm0')
    ring.limit = 96
    jobs = {}
    def job(i, f, e=10): jobs.setdefault((i, e), []).append(f)
    if HEAD:
        job(0, lambda: qk(2), e=3)
        job(0, lambda: ldQ(5, 6, 7))
        job(1, lambda: ldKV(1), e=2)
    job(HEAD, lambda: code_touch(k, 10))
    job(P2_AT - P2_LEAD, ap2.issue)
    job(P2_AT, lambda: (ap2.check(), ldKV(2), ldKV(3)))
    for t in range(1, 13): job(8*t, lambda t=t: ldKV(t + 3))
    def kvpf(j):
        def f():
            k(f"s_add_u32 s{sT0}, s{sG}, {2*j}\nv_bfe_u32 v13, v0, 5, 1\nv_add_u32 v13, s{sT0}, v13\nv_and_b32 v13, 7, v13\nv_lshlrev_b32 v13, 14, v13")
            k(f"v_and_b32 v14, 0xf80, v{vL128}\nv_add_u32 v13, v13, v14")
            k(f"s_lshl_b32 s{sT0}, s{sC}, 17\ns_add_u32 s{sT0}, s{sT0}, s{sW4K}\ns_add_u32 s{sT0}, s{sT0}, {KVF(L)}")
            k.vm(f"buffer_load_dword v5, v13, {srd(sWS)}, s{sT0} offen sc1")
        return f
    if KV_PF[L]:
        for j in (2, 3): job(KV_PF[L] + 8*(j-2), kvpf(j))
    if L == 0:
        CHK_AT = CHK_Q0 if PK_Q0 else G.pk.schedule(job) + CHK_GAP
        apk = APoll(k, [f"buffer_load_dwordx2 v[10:11], v12, {srd(sWS)}, s{sX} offen offset:8 sc1"],
                    f"v_cmp_ne_u64 vcc, s[{sTAG}:{sTAG+1}], v[10:11]")
        def chk0():
            k(f"v_accvgpr_read_b32 v12, a213\ns_mov_b32 s{sX}, {FPK}")
            apk.issue()
        job(CHK_AT - 6, chk0)
        apx = APoll(k, [f"buffer_load_dwordx4 v[12:15], v11, {srd(sWS)}, s{sCc} offen sc1"],
                    f"v_cmp_ne_u64 vcc, s[{sTAG}:{sTAG+1}], v[14:15]")
        def mode0():
            k(f"v_and_b32 v11, 0xf80, v{vL128}\ns_lshl_b32 s{sCc}, s{sG}, 12\ns_add_u32 s{sCc}, s{sCc}, {FPK}")
            apx.issue()
        def mode():
            apx.check()
            k(f"s_xor_b32 s{sT2}, s{sTAG}, s{sXCC}")
            k(f"v_cmp_ne_u32 vcc, s{sT2}, v12")
            k(f"s_cmp_eq_u64 vcc, 0\ns_cselect_b32 s{sMODE}, 1, 0")
        job(81, mode0); job(95, mode)
        def chk():
            apk.check()
            k(f"s_and_b32 s{sT2}, s{sC}, 7\ns_lshl_b32 s{sT2}, s{sT2}, 1\ns_lshr_b32 s{sT3}, s{sW}, 1\ns_add_u32 s{sT2}, s{sT2}, s{sT3}")
            k(f"s_mul_i32 s{sT3}, s{sW}, {28*KB}\ns_add_u32 s{sT3}, s{sT3}, {WD}")
            k(f"s_mul_i32 s{sX}, s{sT2}, {112*KB}\ns_add_u32 s{sX}, s{sX}, s{sT3}")
            k(f"s_xor_b32 s{sT2}, s{sT2}, 1\ns_mul_i32 s{sX2}, s{sT2}, {112*KB}\ns_add_u32 s{sX2}, s{sX2}, s{sT3}")
        job(CHK_AT, chk)
        def wsrc(i):
            s_ = sX if i < 28 else sX2
            j = i % 28
            if j and (j & 3) == 0: k(f"s_add_u32 s{s_}, s{s_}, 4096")
            return s_, (j & 3) * KB
        wq = XLoader(k, 56, lambda i: ar(aWD + 8*(i % 28) + 4*(i // 28)), wsrc)
        slots = [i for i in range(CHK_AT + 1, 112) if i % 8 in WD_SLOTS]
        work = [lambda: wq.issue_n(4)] * 14
        rw = [ring.issue16] * 6
        seq = []
        while work or rw:
            if work: seq.append(work.pop(0))
            if work: seq.append(work.pop(0))
            if rw: seq.append(rw.pop(0))
        assert len(seq) <= len(slots), (len(seq), len(slots))
        for i, f in zip(slots, seq): job(i, f)
    else:
        for j in range(6): job(R1_AT + R1_STEP*j, ring.issue16)
    def tch(j):
        def f():
            if j: k(f"s_add_u32 s{sTW}, s{sTW}, {TL*128}")
            elif TL < 64: k(f"v_and_b32 v4, {(TL-1)*128}, v{vL128}")
            k.vm(f"buffer_load_dword v5, v{vT_}, {srd(sWS)}, s{sTW} offen sc1")
        return f
    TL = TOUCH_LN; vT_ = vL128 if TL == 64 else 4
    for j in range(-(-TOUCH_KBS[L] // TL)): job(TOUCH_AT[L] + j*TOUCH_STEP[L], tch(j))
    def th(j):
        def f():
            if j: k(f"s_add_u32 s{sTH}, s{sTH}, {TL*128}")
            elif TL < 64: k(f"v_and_b32 v4, {(TL-1)*128}, v{vL128}")
            k.vm(f"buffer_load_dword v5, v{vT_}, {srd(sWS)}, s{sTH} offen sc1")
        return f
    for j in range(-(-56 // TL)): job(TACT_AT + j*TH_STEP, th(j))
    def tact():
        k.vm(f"buffer_load_dword v5, v3, {srd(sWS)}, 0 offen sc1")
    job(TACT_AT + 4, tact)
    if L == 0 and XRES_TOUCH:
        def xt_():
            rowmajor_addr(k, 14, sT0)
            k.vm(f"buffer_load_dword v5, v14, {srd(60)}, s{sT0} offen sc1")
        job(XRES_TOUCH, xt_)
    job(CT_AT, lambda: code_touch(k, 5))
    job(TACT_AT + 8, lambda: flag_touch(k, L, 4, 5))
    SC = 96 * KB
    vWA = 10
    def red_setup():
        k(f"s_lshl_b32 s{sT0}, s{sW}, 14\nv_add_u32 v13, s{sT0}, v{vL16}")
        for j in range(1, 4):
            k(f"v_xor_b32 v{vWA+j-1}, {j << 14}, v13\nv_add_u32 v{vWA+j-1}, {SC}, v{vWA+j-1}")
        k(f"v_add_u32 v13, {SC}, v13")
    job(126 - 8*NT, red_setup)
    def red_write(s, part):
        j = s >> 1; z = s & 1
        if part == 0:
            k.lg(f"ds_write_b128 v{vWA+j-1}, {vr(vO+16*s)} offset:{(z*3+j-1)*2*KB}")
            k.lg(f"ds_write_b32 v{vWA+j-1}, v{vO+16*s+8} offset:{(12+z)*KB+(j-1)*4}")
        if part == 1 or NT == 1:
            k.lg(f"ds_write_b128 v{vWA+j-1}, {vr(vO+16*s+4)} offset:{(z*3+j-1)*2*KB+KB}")
    for i in range(128):
        if steps[i][0] == 15 and steps[i][1] >= 2:
            job(i + 2, lambda s=steps[i][1]: red_write(s, 0), e=2)
            if NT > 1: job(i + 2, lambda s=steps[i][1]: red_write(s, 1))
    tl = []
    def red_read(zz):
        if zz[0] == 0:
            k.wait_all()
            k("s_barrier")
        for z in zz:
            k.lg(f"ds_read_b128 {vr(vO+32+48*z+8)}, v13 offset:{(12+z)*KB}")
            for j in range(3):
                b = vO + 32 + (z*3 + j)*16
                k.lg(f"ds_read_b128 {vr(b)}, v13 offset:{(z*3+j)*2*KB}")
                tl.append(k.lg(f"ds_read_b128 {vr(b+4)}, v13 offset:{(z*3+j)*2*KB+KB}"))
    if NT == 1: job(127, lambda: red_read((0, 1)))
    else:
        job(126, lambda: red_read((0,))); job(127, lambda: red_read((1,)), e=2)
    for i, (t, q) in enumerate(steps):
        s = vS[i % NS]
        if i in ATT_MARKS: mark(k, f's{i}')
        for e in range(16):
            if e == 2 and i > 0: pv(i-1, 1)
            if e == 6 and i + LA < n: qk(i + LA)
            if e == 10: pv(i, 0)
            for f in jobs.pop((i, e), []): f()
            k(f"v_exp_f32 v{s+e}, v{s+e}")
    pv(n-1, 1)
    assert not jobs, jobs.keys()
    assert ring.issued == 96
    mark(k, 'loop')
    for z in range(2):
        o = vO + 16*z; l = vO + 32 + 48*z + 8
        k.wait(lg=tl[z*3])
        k(f"v_add_f32 v{l}, v{l}, v{l+1}\nv_add_f32 v{o+8}, v{o+8}, v{l+2}\nv_add_f32 v{o+8}, v{o+8}, v{l}\nv_rcp_f32 v{o+9}, v{o+8}")
        for j in range(3):
            b = vO + 32 + (z*3 + j)*16
            k.wait(lg=tl[z*3+j])
            for i in range(8): k(f"v_add_f32 v{o+i}, v{o+i}, v{b+i}")
        for j in range(4):
            k(f"v_mul_f32 v{o+2*j}, v{o+2*j}, v{o+9}\nv_mul_f32 v{o+2*j+1}, v{o+2*j+1}, v{o+9}")
            k(f"v_cvt_pk_bf16_f32 v{o+12+j}, v{o+2*j}, v{o+2*j+1}")
        ts = k.vm(f"buffer_store_dwordx4 {vr(o+12)}, v{vL16}, {srd(sWS)}, s{sQ[z]} offen")
    mark(k, 'f_st')
    fb = k.newlabel('fb'); back = k.newlabel('fbret')
    LO, HI = f2u(2.0**-60), f2u(2.0**60)
    for z in range(2):
        o = vO + 16*z
        k(f"v_add_f32 v{o}, v{o}, v{o+1}\nv_add_f32 v{o+2}, v{o+2}, v{o+3}\nv_add_f32 v{o+4}, v{o+4}, v{o+5}\nv_add_f32 v{o+6}, v{o+6}, v{o+7}")
        k(f"v_add_f32 v{o}, v{o}, v{o+2}\nv_add_f32 v{o+4}, v{o+4}, v{o+6}\nv_add_f32 v{o}, v{o}, v{o+4}")
        k(f"v_fma_f32 v{o+8}, v{o}, 0, v{o+8}\nv_subrev_u32 v{o+8}, {hex(LO)}, v{o+8}")
    k(f"v_max_u32 v{vO+8}, v{vO+8}, v{vO+24}")
    k(f"v_cmp_lt_u32 vcc, {hex(0 if FORCE_FB else HI - LO)}, v{vO+8}")
    k(f"s_cbranch_vccnz {fb}")
    k.label(back)
    F = [f"{fb}:", "s_waitcnt vmcnt(0)",
         f"v_subrev_u32 v{vK}, s{sW4K}, v{vK}", f"v_subrev_u32 v{vV}, s{sW4K}, v{vV}"]
    S, C, M = vS0, vS0 + 16, vS0 + 32
    for z in range(2):
        o = vO + 16*z; Q = ar(aQ + 4*z)
        F += [f"v_mov_b32 v{M}, 0xff800000", f"s_mov_b32 s{sK}, 0", f"{fb}_a{z}:",
              f"buffer_load_dwordx4 {K(0)}, v{vK}, {srd(sWS)}, s{sK} offen sc1", "s_waitcnt vmcnt(0)",
              f"v_mfma_f32_32x32x16_bf16 {vr(S,16)}, {K(0)}, {Q}, 0"]
        F += [f"v_max3_f32 v{M}, v{M}, v{S+2*i}, v{S+2*i+1}" for i in range(8)]
        F += [f"s_add_u32 s{sK}, s{sK}, 2048", f"s_cmp_lt_u32 s{sK}, {64*2048}", f"s_cbranch_scc1 {fb}_a{z}",
              f"v_mov_b32 v{M+1}, v{M}", f"v_permlane32_swap_b32 v{M}, v{M+1}", f"v_max_f32 v{M}, v{M}, v{M+1}"]
        F += [f"v_sub_f32 v{C+i}, 0, v{M}" for i in range(16)] + [f"v_mov_b32 v{o+i}, 0" for i in range(16)]
        F += [f"s_mov_b32 s{sK}, 0", f"{fb}_b{z}:",
              f"buffer_load_dwordx4 {K(0)}, v{vK}, {srd(sWS)}, s{sK} offen sc1",
              f"s_mov_b64 exec, s[{sMSK}:{sMSK+1}]",
              f"buffer_load_dwordx4 {V(0,0)}, v{vV}, {srd(sWS)}, s{sK} offen offset:{KB} sc1",
              f"buffer_load_dwordx4 {V(0,1)}, v{vV}, {srd(sWS)}, s{sK} offen offset:{KB+512} sc1",
              "s_mov_b64 exec, -1", "s_waitcnt vmcnt(0)",
              f"v_mfma_f32_32x32x16_bf16 {vr(S,16)}, {K(0)}, {Q}, {vr(C,16)}"]
        F += [f"v_exp_f32 v{S+i}, v{S+i}" for i in range(16)]
        F += [f"v_smfmac_f32_32x32x32_bf16 {vr(o,16)}, {V(0,u)}, {vr(S+8*u,8)}, v{vIDX}" for u in range(2)]
        F += ["s_nop 15", f"s_add_u32 s{sK}, s{sK}, 2048", f"s_cmp_lt_u32 s{sK}, {64*2048}", f"s_cbranch_scc1 {fb}_b{z}",
              f"v_rcp_f32 v{o+9}, v{o+8}"]
        for j in range(4):
            F += [f"v_mul_f32 v{o+2*j}, v{o+2*j}, v{o+9}", f"v_mul_f32 v{o+2*j+1}, v{o+2*j+1}, v{o+9}", f"v_cvt_pk_bf16_f32 v{o+12+j}, v{o+2*j}, v{o+2*j+1}"]
        F += [f"buffer_store_dwordx4 {vr(o+12)}, v{vL16}, {srd(sWS)}, s{sQ[z]} offen"]
    F += ["s_waitcnt vmcnt(0)", f"s_branch {back}"]
    G.far += F
    k(f"s_mov_b32 s{sF}, s{sFO}")
    ring.end16()
    ring.limit = 144
    return ts

def load_res(k, v):
    k(f"s_add_u32 s{sT1}, s{sDST}, {XF}")
    k.vm(f"buffer_load_dwordx4 {vr(v)}, v{vL16}, {srd(sWS)}, s{sT1} offen sc1")
    return k.vm(f"buffer_load_dwordx4 {vr(v+4)}, v{vL16}, {srd(sWS)}, s{sT1} offen offset:1024 sc1")
def add_res(k, acc, v):
    for j in range(8):
        k(f"v_lshlrev_b32 v10, 16, v{v+j}\nv_and_b32 v11, 0xffff0000, v{v+j}")
        k(f"v_add_f32 v{acc+2*j}, v{acc+2*j}, v10\nv_add_f32 v{acc+2*j+1}, v{acc+2*j+1}, v11")

def ph_wo(k, L, ring, tO):
    k.label(f'L_wo{L}')
    vX, vACC, vRES, vSUM, vPK = 16, 80, 112, 120, 136
    k(f"s_lshr_b32 s{sRB}, s{sDST}, 15\ns_lshr_b32 s{sD}, s{sW}, 1")
    k(f"s_mul_i32 s{sX}, s{sRB}, {112*KB}\ns_lshl_b32 s{sT0}, s{sD}, 14\ns_add_u32 s{sX}, s{sX}, s{sT0}\ns_add_u32 s{sX}, s{sX}, {HF}")
    k(f"s_lshl_b32 s{sT0}, s{sD}, 11")
    set_lds_bases(k, sT0)
    seq = []
    for s in range(16):
        seq.append((s, 1))
        if s < 16 - WO_R0: seq.append((s, 0))
    nf = len(seq)
    seq += [(s, 0) for s in range(16 - WO_R0, 16)]
    ops = [dict(b=4*s + a, bmin=0, bmax=63, xi=s, x=vr(vX+4*s), acc=vr(vACC+16*a,16), swap=False, first=(s == 0)) for s, a in seq]
    g = Gemm(k, ring, ops, {0}, stop_issue=WO_STOP)
    rs = {}
    def ldres():
        if L == 0:
            k.vm(f"buffer_load_dwordx4 {vr(vRES)}, v8, {srd(60)}, s{sE} offen")
            rs['t'] = k.vm(f"buffer_load_dwordx4 {vr(vRES+4)}, v8, {srd(60)}, s{sE} offen offset:32")
        else:
            rs['t'] = load_res(k, vRES)
    if not RES_LATE[L]:
        if L == 0: rowmajor_addr(k, 8, sE)
        ldres()
    g.start()
    mark(k, 'f_bar')
    ring.issue_n(PRE_WO)
    publish_local(k, tO)
    mark(k, 'f_pub')
    ring.issue_n(PRE_WO2)
    k(f"s_and_b32 s{sF}, s{sRB}, 0xfe\ns_add_u32 s{sF}, s{sF}, s{sD}\ns_lshl_b32 s{sF}, s{sF}, 7\ns_add_u32 s{sF}, s{sF}, {FLOC(L,0)}")
    SC = 144 * KB
    k(f"s_xor_b32 s{sT0}, s{sW}, 2\ns_lshl_b32 s{sT0}, s{sT0}, 12\ns_add_u32 s{sT0}, s{sT0}, {SC}\nv_add_u32 v6, s{sT0}, v{vL16}")
    k(f"s_lshl_b32 s{sT0}, s{sW}, 12\ns_add_u32 s{sT0}, s{sT0}, {SC}\nv_add_u32 v7, s{sT0}, v{vL16}")
    if RES_LATE[L] and L == 0: rowmajor_addr(k, 8, sE)
    poll16(k)
    mark(k, 'f_poll')
    xq = XLoader(k, 16, lambda i: vr(vX+4*i), lin_src(k))
    xq.issue_n(WO_N0)
    if not RES_LATE[L]:
        for x in res_unpack(vSUM, vRES): k(x)
    st = {}
    def xchg(step):
        if step == 0:
            while g.nread < 32: g.rd()
            for j in range(4): k.lg(f"ds_write_b128 v6, {vr(vACC+16+4*j)} offset:{j*KB}")
        elif step == 1:
            k.wait_all(vm=False)
            ring.limit = None
            ring.sync(64, 0)
            for j in range(4): st['t'] = k.lg(f"ds_read_b128 {vr(vACC+16+4*j)}, v7 offset:{j*KB}")
        st['n'] = step + 1
    def filler(m):
        if m == max(nf + 1, 25): xchg(0)
        if m == max(nf + 4, 28): xchg(1)
    g.run(xq, n0=0, look=16, filler=filler, misc=[ldres] if RES_LATE[L] else [])
    for step in range(st.get('n', 0), 2): xchg(step)
    if RES_LATE[L]:
        k.wait(vm=rs['t'])
        for x in res_unpack(vSUM, vRES): k(x)
    k.wait(lg=st['t'])
    for i in range(16): k(f"v_add_f32 v{vSUM+i}, v{vSUM+i}, v{vACC+16+i}")
    for j in range(8):
        k(f"v_add_f32 v{vACC+2*j}, v{vACC+2*j}, v{vSUM+2*j}\nv_add_f32 v{vACC+2*j+1}, v{vACC+2*j+1}, v{vSUM+2*j+1}")
        k(f"v_cvt_pk_bf16_f32 v{vPK+j}, v{vACC+2*j}, v{vACC+2*j+1}")
    ts = store_x(k, vACC, vPK, L, 1, ring)
    mark(k, 'end')
    return ts

PASSES = ((0, 3), (3, 2), (5, 2))
def ph_up(k, L, ring, b0, tprev):
    vX, vACC, vST, vEXT, vRS = 16, 144, 224, 8, 6
    sH0, sH1 = sD, sE
    rb_128(k)
    k(f"s_and_b32 s{sA}, s{sC}, 15")
    k(f"s_lshl_b32 s{sX}, s{sRB}, 15\ns_add_u32 s{sX}, s{sX}, {XF}")
    set_lds_bases(k)
    ops = []
    b = b0
    for (t0, nt) in PASSES:
        for ks in range(33):
            for t in range(t0, t0+nt):
                ops.append(dict(b=b, bmin=b, bmax=b, xi=(ks if ks < 32 else None), x=(vr(vX+4*ks) if ks < 32 else vr(vEXT)),
                                acc=vr(vACC+16*t, 16), swap=False, first=(ks == 0)))
                b += 1
    if UP4:
        last = ops[165:]
        for o in last[0::2]: o['bmin'] = b0 + 165
        for o in last[1::2]: o['bmin'] -= 1
        ops = ops[:165] + last[0::2] + last[1::2]
    g = Gemm(k, ring, ops, UP_SYNCS, stop_issue=UP_STOP)
    g.start()
    mark(k, 'f_bar')
    ring.issue_n(PRE)
    publish_local(k, tprev)
    mark(k, 'f_pub')
    ring.issue_n(PRE2)
    res = {}
    se = stats_emitters(k, vST, res)
    k(f"s_mul_i32 s{sH0}, s{sRB}, 112\ns_mul_i32 s{sT2}, s{sA}, 7\ns_add_u32 s{sH0}, s{sH0}, s{sT2}\ns_lshl_b32 s{sH0}, s{sH0}, 10\ns_add_u32 s{sH0}, s{sH0}, {HF}")
    k(f"s_add_u32 s{sH1}, s{sH0}, 4096")
    k(f"s_lshl_b32 s{sF}, s{sRB}, 7\ns_add_u32 s{sF}, s{sF}, {FLOC(L,1)}")
    poll16(k)
    mark(k, 'f_poll')
    aps = stats_poll(k, FLOC(L,6) - FLOC(L,1))
    xq = XLoader(k, 32, lambda i: vr(vX+4*i), lin_src(k))
    fin = fin_stats(vST, vEXT, vRS) + [f"v_mul_f32 v{vRS}, v{vRS}, v{vRS}"]
    def epi(t):
        a = vACC + 16*t
        o = []
        for j in range(4):
            o += [f"v_mul_f32 v{a+2*j}, v{a+2*j}, v{vRS}", f"v_mul_f32 v{a+2*j+1}, v{a+2*j+1}, v{vRS}",
                  f"v_mul_f32 v{a+2*j}, v{a+2*j}, v{a+8+2*j}", f"v_mul_f32 v{a+2*j+1}, v{a+2*j+1}, v{a+9+2*j}",
                  f"v_cvt_pk_bf16_f32 v{a+8+j}, v{a+2*j}, v{a+2*j+1}"]
        o.append(f"buffer_store_dwordx4 {vr(a+8)}, v{vL16}, {srd(sWS)}, s{sH0 + (t >> 2)} offen offset:{(t & 3)*KB}")
        return o
    st = dict(i=0, t=None); q = []
    def put(x):
        if x.startswith('buffer'): st['t'] = k.vm(x)
        else: k(x)
    dn = Down(k, L)
    def filler(m):
        if aps and m == 12: aps.issue()
        if aps and m == 30: aps.check()
        if 70 <= m < 96:
            if st['i'] == 0: k.wait(vm=res['t'])
            for _ in range(2):
                if st['i'] < len(fin): k(fin[st['i']]); st['i'] += 1
        if m == 102: q.extend(sum((epi(t) for t in range(0, 3)), []))
        if m == 168: q.extend(sum((epi(t) for t in range(3, 5)), []))
        if UP4 and m == 201: q.extend(epi(5))
        for _ in range(UP_EPI):
            if q: put(q.pop(0))
        if m == 146: code_touch(k, 7)
        if m in UP_PUB:
            assert not q
            if m == UP_PUB[0]:
                k(f"s_lshl_b32 s{sF}, s{sRB}, 4\ns_add_u32 s{sF}, s{sF}, s{sA}\ns_lshl_b32 s{sF}, s{sF}, 3\ns_add_u32 s{sF}, s{sF}, {FLOC(L,9)}")
            publish_local(k, st['t'])
            k(f"s_add_u32 s{sF}, s{sF}, {8*KB}")
            if m == UP_PUB[1]: dn.xq.hold = 20
        if UP_PUB[0] < m and dn.setup:
            for _ in range(3):
                if dn.setup: k(dn.setup.pop(0))
        if m in DN_POLL: dn.ap.issue()
        if m in DN_CHK:
            dn.ap.check()
            k(f"s_add_u32 s{dn.sFl}, s{dn.sFl}, {8*KB}")
        if m > DN_CHK[0] and m % 2 and not (ring.can_issue() and m < UP_STOP): dn.xq.issue_n(1)
    if L == 0: ring.limit = 296 + QW_UP
    g.run(xq, look=UP_LOOK, filler=filler, misc=se, misc_from=32, skip=UP_SKIP[L])
    assert st['i'] == len(fin) and not dn.setup and ring.issued == min(ring.total, 296 + QW_UP)
    dn.xq.hold = 36 if len(DN_CHK) > 1 else 24
    for t in range(6 if UP4 else 5, 7):
        for i, x in enumerate(epi(t)):
            put(x)
            if i in (4, 14): dn.xq.issue_n(1)
    mark(k, 'end')
    dn.tB = st['t']
    return dn

class Down:
    NX = 36
    def __init__(self, k, L):
        self.k = k; self.L = L
        sXa, sXb, sFl = sB, sX2, sCc
        self.sFl = sFl
        self.setup = (f"s_lshr_b32 s{sT0}, s{sDST}, 15\ns_mul_i32 s{sT1}, s{sW}, {28*KB}\ns_add_u32 s{sT1}, s{sT1}, {HF}\n"
                      f"s_mul_i32 s{sXa}, s{sT0}, {112*KB}\ns_add_u32 s{sXa}, s{sXa}, s{sT1}\n"
                      f"s_xor_b32 s{sT2}, s{sT0}, 1\ns_mul_i32 s{sXb}, s{sT2}, {112*KB}\ns_add_u32 s{sXb}, s{sXb}, s{sT1}\n"
                      f"v_and_b32 v12, 3, v0\nv_lshlrev_b32 v12, 3, v12\nv_and_b32 v13, 4, v0\nv_lshl_add_u32 v12, v13, 5, v12\n"
                      f"s_and_b32 s{sFl}, s{sT0}, 0xfe\ns_lshl_b32 s{sFl}, s{sFl}, 7\ns_lshl_b32 s{sT1}, s{sW}, 5\ns_add_u32 s{sFl}, s{sFl}, s{sT1}\n"
                      f"s_add_u32 s{sFl}, s{sFl}, {FLOC(L,9)}").split('\n')
        self.order = order = [7*c + t for t0, nt in (((0, 3), (3, 2), (5, 1), (6, 1)) if UP4 else PASSES) for c in range(4) for t in range(t0, t0+nt)]
        cur = {sXa: 0, sXb: 0}
        def src(i):
            s_ = sXa if (i & 1) == 0 else sXb
            r = order[i >> 1]
            if not 0 <= r - cur[s_] < 4:
                d = (r - cur[s_]) * KB
                k(f"s_add_u32 s{s_}, s{s_}, {d}" if d > 0 else f"s_sub_u32 s{s_}, s{s_}, {-d}")
                cur[s_] = r
            return s_, (r - cur[s_]) * KB
        self.xr = lambda i: vr(144 + 4*(i % 36) if (i % 36) < 20 else 80 + 4*((i % 36) - 20))
        self.xq = XLoader(k, 56, self.xr, src)
        self.xq.hold = 12
        self.ap = apoll1(k, 12, 14, sFl)

def res_unpack(dst, v):
    o = []
    for j in range(8): o += [f"v_lshlrev_b32 v{dst+2*j}, 16, v{v+j}", f"v_and_b32 v{dst+2*j+1}, 0xffff0000, v{v+j}"]
    return o

def ph_down(k, L, ring, dn):
    vACC, vRES, vPK, vSUM = 16, 240, 240, 224
    final = L == 1
    xq = dn.xq; order = dn.order; NX = dn.NX
    if len(DN_CHK) > 1: xq.hold = 40
    SC = 108 * KB
    side = []
    for a in range(1, 4):
        side += f"s_xor_b32 s{sT0}, s{sW}, {a}\ns_mul_i32 s{sT0}, s{sT0}, {12*KB}\ns_add_u32 s{sT0}, s{sT0}, {SC + (a-1)*4*KB}\nv_add_u32 v{5+a}, s{sT0}, v{vL16}".split('\n')
    side += f"s_mul_i32 s{sT0}, s{sW}, {12*KB}\ns_add_u32 s{sT0}, s{sT0}, {SC}\nv_add_u32 v9, s{sT0}, v{vL16}".split('\n')
    if final and OUT_T:
        side += (f"s_and_b32 s{sT0}, s{sW}, 1\ns_mul_i32 s{sT0}, s{sT0}, {32*144}\ns_lshr_b32 s{sT2}, s{sW}, 1\ns_lshl_b32 s{sT2}, s{sT2}, 6\ns_add_u32 s{sT0}, s{sT0}, s{sT2}\n"
                 f"v_and_b32 v10, 31, v0\nv_mul_u32_u24 v10, 144, v10\nv_bfe_u32 v11, v0, 5, 1\nv_lshl_add_u32 v10, v11, 4, v10\nv_add_u32 v10, s{sT0}, v10\n"
                 f"s_mul_i32 s{sT0}, s{sW}, {16*144}\nv_bfe_u32 v13, v0, 3, 3\nv_mul_u32_u24 v11, 144, v13\nv_and_b32 v5, 7, v0\nv_lshl_add_u32 v11, v5, 4, v11\nv_add_u32 v11, s{sT0}, v11\n"
                 f"v_lshlrev_b32 v13, 10, v13\nv_lshl_add_u32 v13, v5, 4, v13\n"
                 f"s_and_b32 s{sT0}, s{sDST}, 0xffff0000\ns_lshl_b32 s{sT2}, s{sW}, 14\ns_add_u32 s{sT0}, s{sT0}, s{sT2}\n"
                 f"s_and_b32 s{sT2}, s{sC}, 7\ns_lshl_b32 s{sT2}, s{sT2}, 7\ns_add_u32 s{sT0}, s{sT0}, s{sT2}\ns_add_u32 s{sT2}, s{sT0}, 8192").split('\n')
    R, R0 = DN_R, DN_R0
    seq = []
    for s in range(28 - R):
        seq += [(s, a) for a in (3, 2, 1)]
        if s < 28 - R0: seq.append((s, 0))
    seq += [(s, a) for a in (3, 2, 1) for s in range(28 - R, 28)] + [(s, 0) for s in range(28 - R0, 28)]
    lo = [min(2*s_ + (a_ & 1) for s_, a_ in seq[m:]) for m in range(112)]
    wr = []; rt = None; tail = None; res = None; wb = False; adds = []
    for m, (s, a) in enumerate(seq):
        r = order[s]
        if len(DN_CHK) == 1 and m == DN_CHK2:
            dn.ap.check()
            k(f"s_add_u32 s{dn.sFl}, s{dn.sFl}, {8*KB}")
            xq.hold = 40
        if m == int(4*DN_PUBB): publish_local(k, dn.tB)
        if UP4 and m == DN_POLL3: dn.ap.issue()
        if UP4 and m == DN_CHK3:
            dn.ap.check()
            k(f"s_add_u32 s{dn.sFl}, s{dn.sFl}, {8*KB}")
            xq.hold = 48
        if m == 4*DN_BAR:
            ring.limit = None
            ring.sync(296, 0)
        if m == 4*DN_POLLB:
            apb = dn.ap
            apb.issue()
            rt = load_res(k, vRES)
        if m == 4*DN_CHKB:
            apb.check()
            xq.hold = 56
            xq.issue_n(min(3, lo[m] + NX - xq.n))
        xi = 2*s + (a & 1)
        while xq.n <= xi:
            assert xq.n < xq.hold and xq.n < lo[m] + NX
            xq.issue_n(1)
        k.wait(vm=xq.t[xi])
        acc = vr(vACC + 16*a, 16)
        k(f"v_mfma_f32_32x32x16_bf16 {acc}, {ar(aWD + 8*r + 4*(a >> 1))}, {dn.xr(xi)}, {'0' if s == 0 else acc}")
        if m == 0: mark(k, 'm0')
        if m in GEMM_MARKS.get(G.ph, ()): mark(k, f'm{m}')
        if (m % 2 == 0 or (xq.hold == 56 and m % DN_CR == 0)) and xq.n < min(lo[m] + NX, xq.total, xq.hold): xq.issue_n(1)
        elif m % 2 == 0 and xq.n == xq.total and ring.can_issue(): ring.issue()
        elif m > 4*DN_CHKB + 8:
            if res is None:
                k.wait(vm=rt); res = True
                side += res_unpack(vSUM, vRES)
            for _ in range(4):
                if side: k(side.pop(0))
        if final and WB_MASK is not None and xq.n == xq.total and k.vm_done == k.vm_issued and not wb:
            wb = True; l_ = k.newlabel('wb')
            k(f"s_lshl_b32 s{sT1}, s{sC}, 2\ns_add_u32 s{sT1}, s{sT1}, s{sW}\ns_and_b32 s{sT1}, s{sT1}, {WB_MASK}\ns_cbranch_scc1 {l_}")
            print('wbl2 at', m, file=sys.stderr)
            k("buffer_wbl2 sc1")
            k.label(l_)
        if wr and wr[0][0] <= m:
            assert not side
            for _ in range(min(DN_WR, len(wr))):
                if wr[0][0] <= m: k.lg(wr.pop(0)[1])
            if wr and DN_WR == 1: wr[0] = (max(wr[0][0], m + DN_WGAP), wr[0][1])
            if not wr and a == 0: tail = min(m + 2, 111)
        if s == 27 and a:
            wr += [(m + 2, f"ds_write_b128 v{5+a}, {vr(vACC+16*a+4*j)} offset:{j*KB}") for j in range(4)]
        def fetch(bs):
            k("s_barrier")
            for b in bs:
                for j in range(4): t_ = k.lg(f"ds_read_b128 {vr(vACC+16+16*b+4*j)}, v9 offset:{b*4*KB + j*KB}")
                adds.extend((m + 2, t_, f"v_add_f32 v{vSUM+i}, v{vSUM+i}, v{vACC+16+16*b+i}") for i in range(16))
        if DN_X2 and m == 112 - R0:
            assert all('ds_write_b128 v6,' in x[1] for x in wr)
            k.wait_all(vm=False)
            fetch((2, 1))
        elif tail == m:
            k.wait_all(vm=False)
            fetch((0,) if DN_X2 else (2, 1, 0))
        else:
            for _ in range(DN_ADDS):
                if adds and adds[0][0] <= m:
                    _, t_, x = adds.pop(0); k.wait(lg=t_); k(x)
    assert not side and not wr and tail is not None and tail < 112
    for _, t_, x in adds:
        k.wait(lg=t_); k(x)
    if final and not OUT_T: rowmajor_addr(k, 6, sT0)
    for j in range(8):
        k(f"v_add_f32 v{vACC+2*j}, v{vACC+2*j}, v{vSUM+2*j}\nv_add_f32 v{vACC+2*j+1}, v{vACC+2*j+1}, v{vSUM+2*j+1}")
        k(f"v_cvt_pk_bf16_f32 v{vPK+j}, v{vACC+2*j}, v{vACC+2*j+1}")
        if final and OUT_T and j in (3, 7): k.lg(f"ds_write_b128 v10, {vr(vPK+j-3)} offset:{(j >> 2)*32}")
    if final and OUT_T:
        k.wait_all(vm=False)
        k("s_barrier")
        t0 = k.lg(f"ds_read_b128 {vr(vPK)}, v11")
        t1 = k.lg(f"ds_read_b128 {vr(vPK+4)}, v11 offset:{8*144}")
        k.wait(lg=t0)
        k.vm(f"buffer_store_dwordx4 {vr(vPK)}, v13, {srd(sAUX)}, s{sT0} offen{OUT_SC}")
        k.wait(lg=t1)
        k.vm(f"buffer_store_dwordx4 {vr(vPK+4)}, v13, {srd(sAUX)}, s{sT2} offen{OUT_SC}")
    elif final:
        k.vm(f"buffer_store_dwordx4 {vr(vPK)}, v6, {srd(sAUX)}, s{sT0} offen{OUT_SC}")
        k.vm(f"buffer_store_dwordx4 {vr(vPK+4)}, v6, {srd(sAUX)}, s{sT0} offen offset:32{OUT_SC}")
    else:
        G.tx = store_x(k, vACC, vPK, L, 8, ring)
    mark(k, 'end')

def k_main(name):
    k = Asm()
    G.nst = 0
    k(f".globl {name}\n.p2align 8\n.type {name},@function")
    k.label(name)
    if STAMP or PADTO: k("s_memrealtime s[42:43]")
    mark(k, 'start')
    k("s_cmp_ge_u32 s2, 256")
    k("s_cbranch_scc1 L_abort")
    k(f"s_load_dwordx2 s[{sWS}:{sWS+1}], s[0:1], 72")
    k(f"s_load_dwordx2 s[{sAUX}:{sAUX+1}], s[0:1], 56")
    k("s_load_dwordx2 s[60:61], s[0:1], 0\ns_load_dwordx4 s[64:67], s[0:1], 8\ns_load_dwordx4 s[68:71], s[0:1], 32\ns_load_dwordx2 s[72:73], s[0:1], 48")
    k("v_lshrrev_b32 v2, 6, v0")
    k(f"v_and_b32 v{vL16}, 63, v0")
    k(f"v_readfirstlane_b32 s{sW}, v2")
    k(f"v_lshlrev_b32 v{vL16}, 4, v{vL16}")
    k(f"s_mov_b32 s{sWG}, s2\ns_and_b32 s{sG}, s2, 7\ns_lshr_b32 s{sC}, s2, 3\ns_lshl_b32 s{sW1K}, s{sW}, 10")
    k(f"s_lshr_b32 s{sC4}, s{sC}, 4\ns_lshr_b32 s{sC3}, s{sC}, 3")
    k(f"s_lshl_b32 s{sU}, s{sG}, 5\ns_add_u32 s{sU}, s{sU}, s{sC}")
    k(f"s_lshl_b32 s{sW4K}, s{sW}, 12")
    k(f"s_getreg_b32 s{sXCC}, hwreg(HW_REG_XCC_ID, 0, 4)")
    k(f"v_add_u32 v{vSRC}, s{sW1K}, v{vL16}")
    k(f"s_mov_b32 s{sMSK}, 0xffff\ns_mov_b32 s{sMSK+1}, 0xffff\ns_mov_b32 s{sMODE}, 0")
    k(f"s_and_b32 s{sT0}, s{sC}, 7\ns_mul_i32 s{sSEG}, s{sT0}, {WO_STR}\ns_add_u32 s{sSEG}, s{sSEG}, {WO}")
    k(f"s_lshl_b32 s{sT1}, s{sG}, 2\ns_add_u32 s{sT1}, s{sT1}, s{sC3}\ns_lshl_b32 s{sT1}, s{sT1}, 1\ns_and_b32 s{sT2}, s{sW}, 1\ns_add_u32 s{sT1}, s{sT1}, s{sT2}")
    k(f"s_lshl_b32 s{sT1}, s{sT1}, 5\ns_lshl_b32 s{sT0}, s{sT0}, 2\ns_add_u32 s{sT1}, s{sT1}, s{sT0}\ns_and_b32 s{sT2}, s{sW}, 2\ns_add_u32 s{sT1}, s{sT1}, s{sT2}\ns_lshl_b32 s{sDST}, s{sT1}, 10")
    k(f"s_lshr_b32 s{sSD}, s{sDST}, 12\ns_lshl_b32 s{sSD}, s{sSD}, 9\ns_lshl_b32 s{sT2}, s{sT2}, 2\ns_add_u32 s{sSD}, s{sSD}, s{sT2}\ns_add_u32 s{sSD}, s{sSD}, {SX}")
    k(f"s_and_b32 s{sT0}, s{sC}, 15\ns_mul_i32 s{sSEG+1}, s{sT0}, {WU_STR}\ns_add_u32 s{sSEG+1}, s{sSEG+1}, {WU}")
    k(f"s_mul_i32 s{sSEG+2}, s{sT0}, {WQ_STR}\ns_add_u32 s{sSEG+2}, s{sSEG+2}, {WQ}")
    def late(k):
        if WSOFF: k(f"s_add_u32 s{sWS}, s{sWS}, {WSOFF}\ns_addc_u32 s{sWS+1}, s{sWS+1}, 0")
        k(f"s_add_u32 s{sT0}, s{sWS}, {EP}\ns_addc_u32 s{sT1}, s{sWS+1}, 0")
        k(f"s_load_dwordx2 s[{sTAG}:{sTAG+1}], s[{sT0}:{sT1}], 0")
        k(f"s_and_b32 s{sWS+1}, s{sWS+1}, 0xffff\ns_mov_b32 s{sWS+2}, {0x10000000 - WSOFF}\ns_mov_b32 s{sWS+3}, 0x20000")
        k(f"s_and_b32 s{sAUX+1}, s{sAUX+1}, 0xffff\ns_mov_b32 s{sAUX+2}, {2*MB}\ns_mov_b32 s{sAUX+3}, 0x20000")
    G.ph = 'qkv0'; tk = ph_qkv0(k, late)
    for L in range(2):
        ring = Ring(k, [(sSEG, 64), (sSEG+1, 232)] + ([(sSEG+2, 100)] if L == 0 else []))
        G.ph = f'att{L}'; tO = ph_att(k, L, ring, *tk)
        G.ph = f'wo{L}'; tx = ph_wo(k, L, ring, tO)
        G.ph = f'up{L}'; tB = ph_up(k, L, ring, 64, tx)
        G.ph = f'dn{L}'; ph_down(k, L, ring, tB)
        G.ph = 'qkv1'
        if L == 0: tk = ph_qkv(k, 1, ring, 296)
    k(f"s_add_u32 s{sT0}, s{sWG}, s{sW}\ns_cmp_lg_u32 s{sT0}, 0\ns_cbranch_scc1 L_fin")
    k(f"s_mov_b32 s{sF}, {EP}")
    publish_local(k, None, force_global=True)
    k.label("L_fin")
    if PADTO:
        k("s_waitcnt vmcnt(0)")
        if PADMIN:
            k("s_load_dwordx2 s[64:65], s[0:1], 64\ns_waitcnt lgkmcnt(0)")
            k("s_not_b32 s66, s42\nv_mov_b32 v8, s66\nv_mov_b32 v9, 0\ns_mov_b64 exec, 1")
            k("global_atomic_umax v9, v8, s[64:65]\ns_waitcnt vmcnt(0)")
            k.label("L_pad0")
            k(f"s_memrealtime s[98:99]\ns_waitcnt lgkmcnt(0)\ns_sub_u32 s98, s98, s42\ns_cmp_lt_u32 s98, {PADTO - 1500}\ns_cbranch_scc1 L_pad0")
            k("global_load_dword v8, v9, s[64:65] sc1\ns_waitcnt vmcnt(0)\nv_readfirstlane_b32 s66, v8\ns_not_b32 s42, s66\ns_mov_b64 exec, -1")
        k.label("L_pad")
        k(f"s_memrealtime s[98:99]\ns_waitcnt lgkmcnt(0)\ns_sub_u32 s98, s98, s42\ns_cmp_lt_u32 s98, {PADTO}\ns_cbranch_scc1 L_pad")
    if STAMP:
        k("s_waitcnt vmcnt(0)")
        G.ph = ''; mark(k, 'fin')
        k("s_memrealtime s[98:99]\ns_waitcnt lgkmcnt(0)")
        vals = [42, 98, sMODE] + STS[:G.nst]
        for i, s_ in enumerate(vals): k(f"v_mov_b32 v{16+i}, s{s_}")
        k(f"s_lshl_b32 s{sT0}, s{sWG}, 2\ns_add_u32 s{sT0}, s{sT0}, s{sW}\ns_lshl_b32 s{sT0}, s{sT0}, 7\ns_add_u32 s{sT0}, s{sT0}, {TS}")
        k("v_mov_b32 v4, 0\ns_mov_b64 exec, 1")
        for j in range(8): k(f"buffer_store_dwordx4 {vr(16+4*j)}, v4, {srd(sWS)}, s{sT0} offen offset:{16*j}")
        if DBG is not None:
            k(f"s_lshl_b32 s{sT0}, s{sWG}, 2\ns_add_u32 s{sT0}, s{sT0}, s{sW}\ns_cmp_lg_u32 s{sT0}, {DBG}\ns_cbranch_scc1 L_nodbg")
            k("s_load_dwordx2 s[64:65], s[0:1], 64\ns_waitcnt lgkmcnt(0)")
            for i in range(16): k(f"v_sub_u32 v{64+i}, v{20+i}, v19")
            for j in range(4): k(f"global_store_dwordx4 v4, {vr(64+4*j)}, s[64:65] offset:{16*j}")
            k.label("L_nodbg")
    k("s_waitcnt vmcnt(0)")
    k.label("L_abort")
    k("s_endpgm")
    for x in G.far:
        if x.endswith(':'): k.label(x[:-1])
        else: k(x)
    k(".fill 8448, 4, 0xbf800000")
    return k

def build():
    name = NAME + "_kernel"
    k = k_main(name)
    nn = k.fix()
    print(f"{len(k.L)} lines, {nn} nop states", file=sys.stderr)
    return f"""; stamps: {','.join(G.names)}
; @launch grid=(256,1,1) block=(256,1,1) lds={160*KB}
.amdgcn_target "amdgcn-amd-amdhsa--gfx950"
.text
{k.text()}
.section .rodata,"a"
.p2align 6
.amdhsa_kernel {name}
  .amdhsa_next_free_vgpr 512
  .amdhsa_next_free_sgpr 102
  .amdhsa_accum_offset 256
  .amdhsa_group_segment_fixed_size 0
  .amdhsa_kernarg_size 80
  .amdhsa_user_sgpr_count 2
  .amdhsa_user_sgpr_kernarg_segment_ptr 1
  .amdhsa_system_sgpr_workgroup_id_x 1
.end_amdhsa_kernel
"""

if __name__ == "__main__":
    for a in sys.argv[2:]:
        kk_, vv_ = a.split('=', 1)
        globals()[kk_] = eval(vv_)
    open(sys.argv[1], "w").write(build())
```

```python
import sys, struct
from asmlib import Asm

NAME = "interleave_layers__mha_block__glu_gated_bilinear__prompt"
KB = 1024; MB = KB * KB
LOG2E = 1.4426950408889634
def f2u(x): return struct.unpack('<I', struct.pack('<f', x))[0]
def srd(b): return f"s[{b}:{b+3}]"
def vr(b, n=4): return f"v[{b}:{b+n-1}]"
def ar(b, n=4): return f"a[{b}:{b+n-1}]"

WQ = 0;                    WQ_STR = 100 * KB
WO = WQ + 16 * WQ_STR;     WO_STR = 64 * KB
WU = WO + 8 * WO_STR;      WU_STR = 232 * KB
WD = WU + 16 * WU_STR
FL = 7 * MB + 640 * KB
assert WD + 16 * 112 * KB <= FL
EP = FL
XID = FL + 1 * KB
def FLOC(L, p): return FL + 4 * KB + (L * 13 + p) * 8 * KB
FKV0 = FL + 4 * KB + 26 * 8 * KB
def FKV(L): return FKV0 + L * 32 * KB
FPK = FKV0 + 64 * KB
assert FPK + 32 * KB <= 8 * MB
XF = 8 * MB
HF = 10 * MB
QF = HF
SX = 17 * MB
def KVF(L): return 18 * MB + L * 4 * MB
WS_PAGES = 13
TS = 27 * MB
DUMP = 0x7ff00000

STAMP = False
WB_EARLY = False
DIAG_NOP = {}
UP4 = False; DN_POLL3 = 18; DN_CHK3 = 30
DN_X2 = True; DN_ADDS = 5; DN_CR = 2
RES_LATE = (False, False); XRES_TOUCH = 0
HEAD = 0
QKV_QE = 10; QKV_EPI = 5
R1_AT = 44; R1_STEP = 8
KV_LOC = True
PADTO = 0; PADMIN = False
OUT_T = True
ATT_NT = 2
PK_WIN2 = False; PK_SP = 0
WARM_AT = 1
RT = False
DN_CHK2 = 4
CT_AT = 92
FORCE_FB = False
WB_MASK = 127; OUT_SC = ' sc1'; DN_WR = 1; DN_WGAP = 2
QW_LATE = False; QW_UP = 64; QW_TOUCH = (72, 100); QW_N1 = 4
PK_Q0 = False; PK_RD = 1; PK_ST = 3; CHK_Q0 = 15
WO_STOP = 26; WO_R0 = 8; WO_N0 = 10; ST_PRE = 2; PPOLL = 0; KV_PF = (0, 0); PK_EARLY = True
FL_TOUCH = False
SPLIT_ST = True
FINE = False
UP_EPI = 2; UP_PUB = (154, 206); DN_POLL = (172, 226); DN_CHK = (186,); UP_LOOK = 8; UP_SYNCS = {0, 48, 80, 112, 144, 176, 200}; UP_SKIP = (0, 0); UP_STOP = 222
DN_PUBB = 4; DN_BAR = 14; DN_POLLB = 7; DN_CHKB = 12; DN_R = 8; DN_R0 = 12
FLAG_TOUCH = False
WSOFF = 0
SLEEP1 = (0, 0); SLEEP2 = 0; SLEEP3 = 0
DBG = None
PRE = 4; PRE2 = 0
PRE_WO = 5; PRE_WO2 = 0
CODE_TOUCH = True
WD_SLOTS = (2, 4, 6)
TOUCH_AT = (93, 90); TOUCH_STEP = (3, 4); TOUCH_LN = 32; TH_STEP = 3; TOUCH_KBS = (96, 96)
RING = 144
PK_T0 = 7; PK_GAP = 6; PK_GAP2 = 11; CHK_GAP = 18
P2_AT = 6
P2_LEAD = 4
TACT_AT = 102

sC4, sC3 = 2, 3
sWS, sAUX = 4, 8
sW, sG, sC, sW1K = 12, 13, 14, 15
sT0, sT1, sT2, sT3 = 16, 17, 18, 19
sX, sRS, sRB = 20, 21, 22
sA, sB, sCc, sD, sE = 23, 24, 25, 26, 27
sS0, sS1 = 28, 21
sMSK, sTAG, sMODE, sXCC = 30, 32, 34, 35
sSEG = 36
sX2 = 39
sSPIN, sF = 40, 41
STS = list(range(44, 56, 2)) + [92, 94, 56, 58, 74, 76, 80, 82, 86, 88, 60, 62]
sWG = 101
sW4K = 97
sSD = 29
sPC, sCT = 90, 85
sDST = 100
vL16, vSRC, vB = 1, 2, 3
aWD, aWB = 0, 224

class G:
    nst = 0
    names = []
    far = []
    ph = ''
SKIP = ''
ATT_MARKS = ()
GEMM_MARKS = {}
def mark(k, nm='x'):
    import re
    nm = G.ph + '_' + nm
    if SKIP and re.match(SKIP, nm): return
    if '_f_' in nm and not FINE: return
    if STAMP:
        G.names.append(nm)
        k(f"s_mem{'real' if RT else ''}time s[{STS[G.nst]}:{STS[G.nst]+1}]")
        G.nst += 1

class Ring:
    def __init__(self, k, segs):
        self.k = k; self.N = RING
        self.total = sum(n for _, n in segs)
        self.starts = {}
        b = 0
        for s, n in segs:
            assert n % 4 == 0
            self.starts[b] = s; b += n
        self.issued = 0; self.freed = 0; self.visible = 0
        self.limit = None
        self.tick = {}
    def can_issue(self):
        if self.limit is not None and self.issued + 4 > self.limit: return False
        return self.issued < self.total and self.issued + 4 <= self.freed + self.N
    def issue(self):
        k = self.k
        assert self.can_issue()
        slot = self.issued % self.N
        k(f"s_add_u32 m0, s{sW1K}, {slot*KB}")
        if self.issued in self.starts: k(f"s_mov_b32 s{sRS}, s{self.starts[self.issued]}")
        else: k(f"s_add_u32 s{sRS}, s{sRS}, 4096")
        self.tick[self.issued // 4] = k.vm(f"buffer_load_dwordx4 v{vSRC}, {srd(sWS)}, s{sRS} offen sc1 lds")
        self.issued += 4
    def issue16(self):
        k = self.k
        b = self.issued; slot = b % self.N
        assert slot + 16 <= self.N and b + 16 <= min(self.limit or 1 << 30, self.freed + self.N)
        assert not any(x in self.starts for x in range(b + 1, b + 16))
        k(f"s_add_u32 m0, s{sW4K}, {slot*KB}")
        if b in self.starts: k(f"s_add_u32 s{sRS}, s{self.starts[b]}, s{sW4K}")
        else: k(f"s_add_u32 s{sRS}, s{sRS}, 16384")
        for i in range(4):
            t = k.vm(f"buffer_load_dwordx4 v{vL16}, {srd(sWS)}, s{sRS} offen offset:{i*KB} sc1 lds")
        for q in range(4): self.tick[b // 4 + q] = t
        self.issued += 16
    def end16(self):
        self.k(f"s_sub_u32 s{sRS}, s{sRS}, s{sW4K}\ns_add_u32 s{sRS}, s{sRS}, 12288")
    def issue_n(self, n):
        for _ in range(n):
            if self.can_issue(): self.issue()
    def sync(self, consumed, need):
        k = self.k
        need = min(need, self.total)
        if need > self.visible:
            q = (need - 1) // 4
            assert q * 4 < self.issued, (need, self.issued)
            k.wait(vm=self.tick[q])
        k("s_barrier")
        q = self.visible // 4
        while q in self.tick and self.tick[q] <= k.vm_done: q += 1
        self.visible = q * 4
        assert self.visible >= need
        self.freed = max(self.freed, (consumed // 4) * 4)
    def addr(self, b): return (b % self.N) * KB

def set_lds_bases(k, extra_s=None):
    if extra_s is None: k(f"v_mov_b32 v{vB}, v{vL16}")
    else: k(f"v_add_u32 v{vB}, s{extra_s}, v{vL16}")
    k(f"v_add_u32 v{vB+1}, 0x10000, v{vB}")
    k(f"v_add_u32 v{vB+2}, 0x20000, v{vB}")

class XLoader:
    def __init__(self, k, total, reg, src):
        self.k = k; self.total = total; self.reg = reg; self.src = src; self.n = 0; self.t = []
        self.hold = total
    def issue_n(self, n):
        k = self.k
        for _ in range(n):
            i = self.n
            if i >= min(self.total, self.hold): return
            s_, imm = self.src(i)
            self.t.append(k.vm(f"buffer_load_dwordx4 {self.reg(i)}, v{vL16}, {srd(sWS)}, s{s_} offen offset:{imm} sc1"))
            self.n += 1
def lin_src(k):
    def f(i):
        if i and (i & 3) == 0: k(f"s_add_u32 s{sX}, s{sX}, 4096")
        return sX, (i & 3) * KB
    return f

class Gemm:
    def __init__(self, k, ring, ops, syncs, D=4, NB=8, stop_issue=None):
        self.k = k; self.ring = ring; self.ops = ops; self.syncs = sorted(syncs)
        assert all(x % 2 == 0 for x in syncs)
        self.D = D; self.NB = NB; self.tl = {}; self.nread = 0
        self.stop = stop_issue if stop_issue is not None else len(ops)
    def rd(self):
        k = self.k; m = self.nread; o = self.ops[m]
        assert o['bmax'] < self.ring.visible, (m, o['b'], self.ring.visible)
        a = self.ring.addr(o['b'])
        self.tl[m] = k.lg(f"ds_read_b128 {ar(aWB + 4*(m % self.NB))}, v{vB + (a >> 16)} offset:{a & 0xffff}")
        self.nread += 1
    def need_until(self, m):
        M = len(self.ops)
        nxt = [s for s in self.syncs if s > m]
        last = min((nxt[0] if nxt else M) - 1 + self.D, M - 1)
        return max(o['bmax'] for o in self.ops[:last+1]) + 1
    def start(self):
        self.ring.sync(self.ops[0]['bmin'], self.need_until(0))
        while self.nread < min(self.D, len(self.ops)): self.rd()
    def run(self, xq, n0=6, look=10, filler=None, misc=(), misc_from=0, skip=0):
        k = self.k; M = len(self.ops)
        misc = list(misc)
        xq.issue_n(n0)
        cur = 0
        for m in range(M):
            if m in self.syncs and m > 0:
                self.ring.sync(self.ops[m]['bmin'], self.need_until(m))
            o = self.ops[m]
            xt = None
            if m % 2 == 0:
                xs = [p['xi'] for p in self.ops[m:m+2] if p.get('xi') is not None]
                if xs:
                    cur = max(cur, max(xs))
                    while xq.n <= max(xs): xq.issue_n(1)
                    xt = xq.t[max(xs)]
                k.wait(vm=xt, lg=self.tl[min(m + 1, M - 1)])
            w = ar(aWB + 4*(m % self.NB))
            c = o.get('c0', '0') if o['first'] else o['acc']
            A, B = (o['x'], w) if o['swap'] else (w, o['x'])
            k(f"v_mfma_f32_32x32x16_bf16 {o['acc']}, {A}, {B}, {c}")
            if m == 0: mark(k, 'm0')
            if m in GEMM_MARKS.get(G.ph, ()): mark(k, f'm{m}')
            if m % 2 == 0:
                for _ in range(2):
                    if self.nread < M: self.rd()
                if DIAG_NOP.get(G.ph): k(f"s_nop {DIAG_NOP[G.ph]}")
            elif not (skip and m % skip == skip - 1):
                rok = m < self.stop and self.ring.can_issue()
                if xq.n < xq.total and (xq.n - cur < look or not (rok or (misc and m >= misc_from))): xq.issue_n(1)
                elif misc and m >= misc_from: misc.pop(0)()
                elif rok: self.ring.issue()
            if filler: filler(m)
        assert not misc

def stats_emitters(k, vt, res):
    k(f"s_lshl_b32 s{sS0}, s{sRB}, 12\ns_add_u32 s{sS0}, s{sS0}, {SX}")
    def mk(i):
        def f(): res['t'] = k.vm(f"buffer_load_dwordx4 {vr(vt+4*i)}, v{vL16}, {srd(sWS)}, s{sS0} offen offset:{i*KB} sc1")
        return f
    return [mk(i) for i in range(4)]

NTREE = 14
def fin_stats(vt, vext, vrstd):
    ins = []
    n = 8
    while n > 1:
        h = n // 2
        for i in range(h):
            ins.append(f"v_add_f32 v{vt+2*i}, v{vt+2*i}, v{vt+2*(i+h)}")
            ins.append(f"v_add_f32 v{vt+2*i+1}, v{vt+2*i+1}, v{vt+2*(i+h)+1}")
        n = h
    a, b, c, d = vt, vt+1, vt+2, vt+3
    ins += [f"v_mov_b32 v{c}, v{a}", f"v_mov_b32 v{d}, v{b}",
            f"v_permlane32_swap_b32 v{a}, v{c}", f"v_permlane32_swap_b32 v{b}, v{d}",
            f"v_add_f32 v{a}, v{a}, v{c}", f"v_add_f32 v{b}, v{b}, v{d}",
            f"v_mul_f32 v{a}, {hex(f2u(-1.0/512))}, v{a}",
            f"v_mul_f32 v{b}, {hex(f2u(1.0/512))}, v{b}",
            f"v_fma_f32 v{b}, -v{a}, v{a}, v{b}",
            f"v_max_f32 v{b}, 0, v{b}",
            f"v_add_f32 v{b}, {hex(f2u(1e-5))}, v{b}",
            f"v_rsq_f32 v{vrstd}, v{b}",
            f"v_cvt_pk_bf16_f32 v{vext}, v{a}, v{a}",
            f"v_and_b32 v{c}, 0xffff0000, v{vext}",
            f"v_sub_f32 v{c}, v{a}, v{c}",
            f"v_cvt_pk_bf16_f32 v{vext+1}, v{c}, 0",
            f"v_mov_b32 v{vext+2}, v{vext}", f"v_mov_b32 v{vext+3}, v{vext+1}"]
    return ins

def poll(k, vaddr, vpd, sleep=0):
    l = k.newlabel('poll')
    k(f"s_mov_b32 s{sSPIN}, 0x40000")
    k.label(l)
    k.vm(f"buffer_load_dwordx2 {vr(vpd,2)}, v{vaddr}, {srd(sWS)}, s{sF} offen sc1")
    k(f"s_sub_u32 s{sSPIN}, s{sSPIN}, 1")
    k("s_cbranch_scc1 L_abort")
    k.wait_all(lg=False)
    k(f"v_cmp_ne_u64 vcc, s[{sTAG}:{sTAG+1}], {vr(vpd,2)}")
    k(f"s_cbranch_vccnz {l}")
class APoll:
    def __init__(self, k, loads, cmp, sleep=0):
        self.k = k; self.loads = loads; self.cmp = cmp; self.sleep = sleep
    def issue(self):
        for x in self.loads: self.t = self.k.vm(x)
    def check(self):
        k = self.k
        l = k.newlabel('ap'); ok = k.newlabel('apok')
        k.wait(vm=self.t)
        k(self.cmp)
        k(f"s_cbranch_vccnz {l}")
        k.label(ok)
        G.far += [f"{l}:", f"s_mov_b32 s{sSPIN}, 0x40000", f"{l}_l:"] + list(self.loads) + [
            f"s_sub_u32 s{sSPIN}, s{sSPIN}, 1", "s_cbranch_scc1 L_abort", "s_waitcnt vmcnt(0)", self.cmp,
            f"s_cbranch_vccnz {l}_l", f"s_branch {ok}"]
def apoll1(k, vaddr, vpd, soff, sleep=0):
    return APoll(k, [f"buffer_load_dwordx2 {vr(vpd,2)}, v{vaddr}, {srd(sWS)}, s{soff} offen sc1"],
                 f"v_cmp_ne_u64 vcc, s[{sTAG}:{sTAG+1}], {vr(vpd,2)}", sleep)
def poll16(k):
    k("v_and_b32 v13, 15, v0\nv_lshlrev_b32 v13, 3, v13")
    poll(k, 13, 14)

def publish_local(k, last_store, force_global=False):
    k(f"v_mov_b32 v14, s{sTAG}\nv_mov_b32 v15, s{sTAG+1}")
    if force_global:
        k.wait(vm=last_store)
        k.vm(f"buffer_store_dwordx2 v[14:15], off, {srd(sWS)}, s{sF} sc1")
        return
    slow = k.newlabel('slow'); join = k.newlabel('join')
    k(f"s_cmp_eq_u32 s{sMODE}, 0")
    k(f"s_cbranch_scc1 {slow}")
    k.wait(vm=last_store)
    k.vm(f"buffer_store_dwordx2 v[14:15], off, {srd(sWS)}, s{sF}")
    k.label(join)
    G.far += [f"{slow}:", "s_waitcnt vmcnt(0)", "buffer_wbl2 sc1", "s_waitcnt vmcnt(0)",
              f"buffer_store_dwordx2 v[14:15], off, {srd(sWS)}, s{sF} sc1", f"s_branch {join}"]
def publish_wg(k, last_store, xid=False, barrier=True):
    l = k.newlabel('pw')
    k(f"v_mov_b32 v13, 0\nv_mov_b32 v14, s{sTAG}\nv_mov_b32 v15, s{sTAG+1}")
    k.wait(vm=last_store)
    if barrier: k("s_barrier")
    k(f"s_cmp_lg_u32 s{sW}, 0\ns_cbranch_scc1 {l}")
    k("s_mov_b64 exec, 1")
    if xid:
        k(f"v_xor_b32 v12, s{sXCC}, v14\nv_mov_b32 v13, v15")
        k(f"buffer_store_dwordx4 v[12:15], v{vL16}, {srd(sWS)}, s{sF} offen sc1")
    else:
        k(f"buffer_store_dwordx2 v[14:15], v13, {srd(sWS)}, s{sF} offen sc1")
    k("s_mov_b64 exec, -1")
    k.label(l)

def rb_128(k):
    k(f"s_lshl_b32 s{sT0}, s{sC4}, 2\ns_lshl_b32 s{sRB}, s{sG}, 3\ns_add_u32 s{sRB}, s{sRB}, s{sT0}\ns_add_u32 s{sRB}, s{sRB}, s{sW}")

def store_x(k, acc, pk, L, p, ring=None):
    k(f"s_add_u32 s{sT1}, s{sDST}, {XF}")
    k.vm(f"buffer_store_dwordx4 {vr(pk)}, v{vL16}, {srd(sWS)}, s{sT1} offen")
    td = k.vm(f"buffer_store_dwordx4 {vr(pk+4)}, v{vL16}, {srd(sWS)}, s{sT1} offen offset:1024")
    mark(k, 'f_xs')
    k(f"v_add_f32 v10, v{acc}, v{acc+1}\nv_mul_f32 v11, v{acc}, v{acc}\nv_add_f32 v8, v{acc+2}, v{acc+3}\nv_mul_f32 v9, v{acc+1}, v{acc+1}")
    k(f"v_fmac_f32 v11, v{acc+2}, v{acc+2}\nv_fmac_f32 v9, v{acc+3}, v{acc+3}")
    for i in range(4, 16, 2):
        k(f"v_add_f32 v10, v10, v{acc+i}\nv_fmac_f32 v11, v{acc+i}, v{acc+i}\nv_add_f32 v8, v8, v{acc+i+1}\nv_fmac_f32 v9, v{acc+i+1}, v{acc+i+1}")
        if ring and i in (4, 10): ring.issue_n(ST_PRE)
    k("v_add_f32 v10, v10, v8\nv_add_f32 v11, v11, v9\nv_mov_b32 v8, v10\nv_mov_b32 v9, v11")
    k("v_permlane32_swap_b32 v10, v8\nv_permlane32_swap_b32 v11, v9\nv_add_f32 v10, v10, v8\nv_add_f32 v11, v11, v9")
    k("s_mov_b32 exec_hi, 0")
    ts = k.vm(f"buffer_store_dwordx2 v[10:11], v{vL16}, {srd(sWS)}, s{sSD} offen")
    k("s_mov_b64 exec, -1")
    k(f"s_lshr_b32 s{sF}, s{sDST}, 8\ns_add_u32 s{sF}, s{sF}, {FLOC(L, p)}")
    mark(k, 'f_ss')
    if SPLIT_ST:
        publish_local(k, td)
        k(f"s_add_u32 s{sF}, s{sF}, {FLOC(L, 6 if p == 1 else 7) - FLOC(L, p)}")
    return ts
def stats_poll(k, delta):
    if not SPLIT_ST: return []
    k(f"s_add_u32 s{sF}, s{sF}, {delta}")
    ap = apoll1(k, 13, 14, sF)
    return ap

def rowmajor_addr(k, va, s_out):
    k(f"v_and_b32 v{va}, 31, v0\nv_lshlrev_b32 v{va}, 10, v{va}\nv_bfe_u32 v{va+1}, v0, 5, 1\nv_lshlrev_b32 v{va+1}, 4, v{va+1}\nv_add_u32 v{va}, v{va}, v{va+1}")
    k(f"s_and_b32 s{s_out}, s{sDST}, 0xffff8000\ns_bfe_u32 s{sT3}, s{sDST}, 0x5000a\ns_lshl_b32 s{sT3}, s{sT3}, 5\ns_add_u32 s{s_out}, s{s_out}, s{sT3}")

sU = 96
def pack_decode(k):
    nm = "pk"; u = f"s{sU}"
    k(f"s_min_u32 s83, {u}, 231")
    u = "s83"
    k(f"s_and_b32 s90, s{sW}, 1\ns_lshr_b32 s91, s{sW}, 1")
    k(f"s_cmp_lt_u32 {u}, 48\ns_cbranch_scc1 {nm}_q")
    k(f"s_cmp_lt_u32 {u}, 160\ns_cbranch_scc1 {nm}_u")
    k(f"s_cmp_lt_u32 {u}, 176\ns_cbranch_scc1 {nm}_o")
    k(f"s_sub_u32 s84, {u}, 176\ns_lshl_b32 s84, s84, 2\ns_add_u32 s84, s84, s{sW}")
    k("s_and_b32 s85, s84, 15\ns_lshr_b32 s86, s84, 4")
    k("s_lshl_b32 s87, s85, 6")
    k("s_add_u32 s74, s72, s87\ns_addc_u32 s75, s73, 0\ns_mov_b32 s76, s74\ns_mov_b32 s77, s75")
    k("s_mov_b32 s78, 1024\ns_lshl_b32 s79, s86, 7")
    k(f"s_mul_i32 s80, s85, 14\ns_add_u32 s80, s80, s86\ns_lshl_b32 s80, s80, 13\ns_add_u32 s80, s80, {WD}\ns_mov_b32 s81, 1024\ns_mov_b32 s82, {DUMP}")
    k(f"s_branch {nm}_go")
    k.label(f"{nm}_o")
    k(f"s_sub_u32 s85, {u}, 160\ns_lshr_b32 s88, s85, 3\ns_and_b32 s85, s85, 7")
    k("s_lshl_b32 s87, s85, 1\ns_add_u32 s87, s87, s90\ns_lshl_b32 s87, s87, 6")
    k("s_add_u32 s74, s66, s87\ns_addc_u32 s75, s67, 0\ns_mov_b32 s76, s74\ns_mov_b32 s77, s75")
    k("s_mov_b32 s78, 1024\ns_lshl_b32 s79, s88, 1\ns_add_u32 s79, s79, s91\ns_lshl_b32 s79, s79, 7")
    k("s_lshl_b32 s89, s91, 15\ns_xor_b32 s90, s90, s88\ns_lshl_b32 s88, s88, 1\ns_add_u32 s90, s90, s88\ns_lshl_b32 s90, s90, 10")
    k(f"s_mul_i32 s80, s85, {WO_STR}\ns_add_u32 s80, s80, s89\ns_add_u32 s80, s80, s90\ns_add_u32 s80, s80, {WO}")
    k(f"s_mov_b32 s81, 4096\ns_mov_b32 s82, {DUMP}")
    k(f"s_branch {nm}_go")
    k.label(f"{nm}_u")
    k(f"s_sub_u32 s85, {u}, 48\ns_mul_i32 s84, s85, 2341\ns_lshr_b32 s84, s84, 16\ns_mul_i32 s86, s84, 28\ns_sub_u32 s85, s85, s86")
    k(f"s_lshl_b32 s85, s85, 2\ns_add_u32 s85, s85, s{sW}\ns_lshl_b32 s87, s85, 5")
    k("s_add_u32 s74, s68, s87\ns_addc_u32 s75, s69, 0")
    k("s_add_u32 s76, s70, s87\ns_addc_u32 s77, s71, 0\ns_sub_u32 s76, s76, 32\ns_subb_u32 s77, s77, 0")
    k("s_mov_b32 s78, 3584")
    k("s_mul_i32 s86, s85, 9363\ns_lshr_b32 s86, s86, 16\ns_mul_i32 s88, s86, 7\ns_sub_u32 s88, s85, s88")
    k(f"s_mul_i32 s91, s86, {WU_STR}\ns_add_u32 s91, s91, {WU}\ns_lshl_b32 s89, s88, 10\ns_add_u32 s91, s91, s89")
    k(f"s_cmp_lt_u32 s88, 5\ns_cselect_b32 s89, 3, 5\ns_lshl_b32 s89, s89, 15")
    k(f"s_cmp_lt_u32 s88, 3\ns_cselect_b32 s81, 3, 2\ns_cselect_b32 s89, 0, s89\ns_lshl_b32 s81, s81, 10\ns_add_u32 s91, s91, s89")
    k(f"s_branch {nm}_ext")
    k.label(f"{nm}_q")
    k(f"s_cmp_ge_u32 {u}, 24\ns_cselect_b32 s84, 2, 0\ns_cselect_b32 s86, 24, 0\ns_add_u32 s84, s84, s91\ns_sub_u32 s85, {u}, s86")
    k("s_lshl_b32 s85, s85, 1\ns_add_u32 s85, s85, s90\ns_and_b32 s86, s85, 15\ns_lshr_b32 s88, s85, 4")
    k("s_lshl_b32 s87, s85, 6\ns_lshl_b32 s89, s88, 10")
    k("s_add_u32 s74, s64, s87\ns_addc_u32 s75, s65, 0\ns_mov_b32 s76, s74\ns_mov_b32 s77, s75")
    k("s_mov_b32 s78, 3072")
    k(f"s_sub_u32 s89, s89, 1024\ns_cmp_eq_u32 s88, 0\ns_cselect_b32 s89, {66*KB}, s89\ns_cselect_b32 s81, 1, 2\ns_lshl_b32 s81, s81, 10")
    k(f"s_mul_i32 s91, s86, {WQ_STR}\ns_add_u32 s91, s91, s89\ns_add_u32 s91, s91, {WQ}")
    k.label(f"{nm}_ext")
    k("s_lshl_b32 s79, s84, 7")
    k("s_lshl_b32 s89, s81, 5\ns_add_u32 s82, s91, s89\ns_lshr_b32 s89, s84, 1\ns_lshl_b32 s89, s89, 9\ns_add_u32 s82, s82, s89")
    k("s_and_b32 s89, s84, 1\ns_lshl_b32 s89, s89, 3\ns_add_u32 s82, s82, s89")
    k("s_lshl_b32 s89, s81, 3\ns_mul_i32 s89, s89, s84\ns_add_u32 s80, s91, s89")
    k.label(f"{nm}_go")
    k(f"s_cmp_ge_u32 s{sU}, 232\ns_cselect_b32 s80, {DUMP}, s80")
    k("v_bfe_u32 v4, v0, 2, 4\nv_add_u32 v4, s79, v4\nv_mul_lo_u32 v4, v4, s78")
    k("v_and_b32 v13, 3, v0\nv_lshlrev_b32 v13, 4, v13\nv_add_u32 v4, v4, v13")
    k(f"s_lshl_b32 s83, s78, 4")
    if PK_Q0: k(f"s_lshl_b32 s84, s{sW}, 13\ns_add_u32 s84, s84, {64*KB}")
    elif PK_EARLY: k(f"s_lshl_b32 s84, s{sW}, 13\ns_add_u32 s84, s84, {4*KB}")
    else: k(f"s_lshl_b32 s84, s{sW}, 14\ns_add_u32 s84, s84, {96*KB}")
    k("s_mov_b32 s86, s83\ns_mov_b32 s87, 0")
    k("v_and_b32 v13, 2, v0\nv_cmp_eq_u32 vcc, 0, v13")
    k("v_mov_b32 v14, s76\nv_mov_b32 v13, s74\nv_cndmask_b32 v14, v14, v13, vcc\nv_mov_b32 v15, s77\nv_mov_b32 v13, s75\nv_cndmask_b32 v15, v15, v13, vcc")
    k("v_add_co_u32 v4, vcc, v4, v14\nv_addc_co_u32 v5, vcc, 0, v15, vcc")
def pack_issue(k, i, sbase):
    k(f"s_add_u32 m0, s{sbase}, {i*KB}")
    if i: k("v_lshl_add_u64 v[4:5], v[4:5], 0, s[86:87]")
    return k.vm("global_load_lds_dwordx4 v[4:5], off")
def tr_addr(k, v, t):
    k(f"v_bfe_u32 v{v}, v0, 5, 1\nv_lshlrev_b32 v{v}, 9, v{v}")
    k(f"v_bfe_u32 v{t}, v0, 2, 2\nv_lshlrev_b32 v{t}, 6, v{t}\nv_add_u32 v{v}, v{v}, v{t}")
    k(f"v_bfe_u32 v{t}, v0, 4, 1\nv_lshlrev_b32 v{t}, 5, v{t}\nv_add_u32 v{v}, v{v}, v{t}")
    k(f"v_and_b32 v{t}, 1, v0\nv_lshlrev_b32 v{t}, 4, v{t}\nv_add_u32 v{v}, v{v}, v{t}")
    k(f"v_bfe_u32 v{t}, v0, 1, 1\nv_lshlrev_b32 v{t}, 3, v{t}\nv_add_u32 v{v}, v{v}, v{t}")
def ext_pair(src, dst, t0):
    return [f"v_mov_b32 v{t0}, v{src}", f"v_permlane32_swap_b32 v{src}, v{t0}", f"v_add_f32 v{src}, v{src}, v{t0}",
            f"v_cvt_pk_bf16_f32 v{dst+1}, v{src}, 0", f"v_lshlrev_b32 v{t0}, 16, v{dst+1}", f"v_sub_f32 v{src}, v{src}, v{t0}",
            f"v_cvt_pk_bf16_f32 v{dst}, v{t0}, v{src}"]
class Pack:
    def __init__(self, k): self.k = k; self.r = {}
    def issue(self, *ii):
        for i in ii: self.d = pack_issue(self.k, i, 84)
    def reads(self, *ii):
        k = self.k
        if ii[0] == 0:
            k("v_accvgpr_read_b32 v4, a212")
            k.wait(vm=self.d)
        for i in ii:
            k.lg(f"ds_read_b64_tr_b16 {ar(160+4*i,2)}, v4 offset:{i*KB}")
            self.r[i] = k.lg(f"ds_read_b64_tr_b16 {ar(162+4*i,2)}, v4 offset:{i*KB+256}")
    def csum(self, i):
        self.k.wait(lg=self.r[i])
        self.k(f"v_mfma_f32_32x32x16_bf16 {ar(196,16)}, {ar(192)}, {ar(160+4*i)}, {'0' if i == 0 else ar(196,16)}")
    def stores(self, *ii):
        k = self.k
        k.wait(lg=self.r[ii[-1]])
        for i in ii:
            k.vm(f"buffer_store_dwordx4 {ar(160+4*i)}, v{vL16}, {srd(sWS)}, s80 offen sc1")
            k("s_add_u32 s80, s80, s81")
    def ext(self):
        k = self.k
        k("v_accvgpr_read_b32 v13, a196")
        k("v_cvt_pk_bf16_f32 v15, v13, 0\nv_lshlrev_b32 v14, 16, v15\nv_sub_f32 v13, v13, v14\nv_cvt_pk_bf16_f32 v14, v14, v13")
        k("s_mov_b32 exec_hi, 0")
        self.s = k.vm(f"buffer_store_dwordx2 v[14:15], v{vL16}, {srd(sWS)}, s82 offen sc1")
        k("s_mov_b64 exec, -1")
    def pub(self):
        k = self.k
        k(f"s_lshl_b32 s{sF}, s{sU}, 7\ns_add_u32 s{sF}, s{sF}, {FPK}")
        publish_wg(k, self.s, xid=True)
    def schedule(self, job):
        t = PK_T0
        if not PK_EARLY:
            for i in range(4): job(t + i, lambda i=i: self.issue(2*i, 2*i+1))
            t += 4 + PK_GAP
        if PK_WIN2:
            job(t, self.pub)
            return t
        if PK_EARLY and PK_SP:
            for i in range(8): job(t + PK_SP*i, lambda i=i: self.stores(i))
            job(t + 8*PK_SP, self.ext)
            job(t + 8*PK_SP + PK_GAP2, self.pub)
            return t + 8*PK_SP + PK_GAP2
        if PK_EARLY:
            for i in range(4): job(t + i, lambda i=i: self.stores(2*i, 2*i+1))
            job(t + 4, self.ext)
            job(t + 4 + PK_GAP2, self.pub)
            return t + 4 + PK_GAP2
        job(t, lambda: self.reads(0, 1, 2, 3)); job(t + 1, lambda: self.reads(4, 5, 6, 7))
        for i in range(4):
            job(t + 2 + i, lambda i=i: self.stores(2*i, 2*i+1))
            job(t + 1 + i, lambda i=i: self.csum(2*i), e=14)
            job(t + 2 + i, lambda i=i: self.csum(2*i+1), e=0)
        job(t + 6, self.ext)
        job(t + 6 + PK_GAP2, self.pub)
        return t + 6 + PK_GAP2
def qkv_consts(vT, vRS, vR):
    return [f"v_cvt_pk_bf16_f32 v{vT}, v{vRS}, 0", f"v_lshlrev_b32 v{vT+1}, 16, v{vT}", f"v_sub_f32 v{vT+2}, v{vRS}, v{vT+1}",
            f"v_cvt_pk_bf16_f32 v{vT}, v{vT+1}, v{vT+2}", f"v_mov_b32 v{vT+1}, 0", f"v_mov_b32 v{vT+2}, 0", f"v_mov_b32 v{vT+3}, 0",
            f"v_cmp_gt_u32 vcc, 512, v{vL16}", f"v_mov_b32 v{vT+4}, 0x3f803f80", f"v_cndmask_b32 v{vT+4}, 0, v{vT+4}, vcc",
            f"v_mov_b32 v{vT+5}, 0", f"v_mov_b32 v{vT+6}, 0", f"v_mov_b32 v{vT+7}, 0",
            f"v_mul_f32 v{vRS+1}, {hex(f2u(0.25*LOG2E))}, v{vRS}",
            "v_bfe_u32 v12, v0, 4, 1", "v_lshlrev_b32 v12, 17, v12", "v_and_b32 v13, 15, v0", "v_lshlrev_b32 v13, 4, v13", "v_add_u32 v12, v12, v13",
            "v_bfe_u32 v13, v0, 5, 1", "v_lshlrev_b32 v13, 8, v13", "v_add_u32 v12, v12, v13",
            f"v_mfma_f32_32x32x16_bf16 {vr(vR,16)}, {vr(vT)}, {vr(vT+4)}, 0"]
def qk_tile(a, dst, sc, fl, p0):
    o = []
    sb, hs = (sB, KB) if dst == QF else (sCc, 128*KB)
    for half in range(2):
        p = p0 + 4*half
        for j in range(4):
            r = a + 8*half + 2*j
            o += [f"v_mul_f32 v{r}, v{r}, v{sc}", f"v_mul_f32 v{r+1}, v{r+1}, v{sc}", f"v_cvt_pk_bf16_f32 v{p+j}, v{r}, v{r+1}"]
        o += [f"s_add_u32 s{sT2}, s{sb}, {dst + half*hs}", f"buffer_store_dwordx4 {vr(p)}, v{vL16}, {srd(sWS)}, s{sT2} offen{fl}"]
    return o
def v_tile(a, L, vR, p0):
    o = [f"s_add_u32 s{sT2}, s{sCc}, {KVF(L) + KB}"]
    for u in range(2):
        p = p0 + 4*u
        for j in range(4):
            r = a + 8*u + 2*j; q = vR + 8*u + 2*j
            o += [f"v_mul_f32 v{r}, v{r}, v{q}", f"v_mul_f32 v{r+1}, v{r+1}, v{q+1}", f"v_cvt_pk_bf16_f32 v{p+j}, v{r}, v{r+1}"]
        o.append(f"buffer_store_dwordx4 {vr(p)}, v12, {srd(sWS)}, s{sT2} offen offset:{u*512} sc1")
    return o
def kv_flag(k, L, tkv):
    k(f"s_lshl_b32 s{sF}, s{sA}, 4\ns_lshr_b32 s{sT1}, s{sRB}, 2\ns_add_u32 s{sF}, s{sF}, s{sT1}\ns_lshl_b32 s{sF}, s{sF}, 7\ns_add_u32 s{sF}, s{sF}, {FKV(L)}")
    publish_wg(k, tkv)
def q_flag(k, L, tq):
    k(f"s_lshr_b32 s{sF}, s{sRB}, 3\ns_lshl_b32 s{sF}, s{sF}, 4\ns_add_u32 s{sF}, s{sF}, s{sA}\ns_lshl_b32 s{sF}, s{sF}, 3\ns_and_b32 s{sT1}, s{sRB}, 7\ns_add_u32 s{sF}, s{sF}, s{sT1}\ns_lshl_b32 s{sF}, s{sF}, 3\ns_add_u32 s{sF}, s{sF}, {FLOC(L-1,5)}")
    publish_local(k, tq, force_global=(L == 0))

WARM = True
LIN_AT = 99
LIN_U = True
Q0_ROT = True
Q0_MARKS = False
Q0_MARKJ = ()
Q0_SCHED = ((3, 4), (5,), (6,), (7,), (), (), (), ())
LATE_AT = 1
Q0_UP = 3
PK_AT = (3, 3, 4, 4, 5, 5, 6, 6)
def ph_qkv0(k, late):
    vX, vACC, vST, vEXT, vRS, vT, vR = 16, 144, 192, 8, 6, 224, 232
    vXA, vWA, vXR, vTR, vTW, vCS, vCW, vONE = 10, 12, 196, 200, 202, 204, 208, 220
    sXS, sWR, sXL, sWL = 60, 56, sD, sE
    k(f"s_lshr_b32 s{sRB}, s{sG}, 1\ns_lshl_b32 s{sRB}, s{sRB}, 2\ns_add_u32 s{sRB}, s{sRB}, s{sC3}\ns_lshl_b32 s{sRB}, s{sRB}, 2\ns_add_u32 s{sRB}, s{sRB}, s{sW}")
    k(f"s_and_b32 s{sA}, s{sG}, 1\ns_lshl_b32 s{sA}, s{sA}, 3\ns_and_b32 s{sT0}, s{sC}, 7\ns_add_u32 s{sA}, s{sA}, s{sT0}")
    k(f"v_bfe_u32 v{vXA}, v0, 3, 3\nv_lshlrev_b32 v{vXA}, 10, v{vXA}\nv_and_b32 v13, 7, v0\nv_bfe_u32 v14, v0, 4, 2\nv_xor_b32 v13, v13, v14")
    k(f"v_lshlrev_b32 v13, 4, v13\nv_add_u32 v{vXA}, v{vXA}, v13\nv_xor_b32 v{vXA+1}, 64, v{vXA}")
    k(f"v_bfe_u32 v{vWA}, v0, 2, 4\nv_mul_u32_u24 v{vWA}, 3072, v{vWA}\nv_and_b32 v13, 3, v0\nv_lshlrev_b32 v13, 4, v13\nv_add_u32 v{vWA}, v{vWA}, v13")
    k(f"s_lshl_b32 s{sX}, s{sRB}, 15")
    k(f"s_mul_i32 s{sX2}, s{sW}, 49152\ns_lshl_b32 s{sT0}, s{sA}, 6\ns_add_u32 s{sX2}, s{sX2}, s{sT0}")
    k(f"s_lshl_b32 s{sXL}, s{sW}, 14\ns_add_u32 s{sXL}, s{sXL}, {96*KB}\ns_mul_i32 s{sWL}, s{sW}, 3072")
    k("s_waitcnt lgkmcnt(0)")
    if Q0_MARKS: mark(k, 'karg')
    k(f"s_mov_b32 s{sWR}, s64\ns_and_b32 s{sWR+1}, s65, 0xffff\ns_mov_b32 s{sWR+2}, {512*3072}\ns_mov_b32 s{sWR+3}, 0x20000")
    k(f"s_and_b32 s{sXS+1}, s{sXS+1}, 0xffff\ns_mov_b32 s{sXS+2}, {2*MB}\ns_mov_b32 s{sXS+3}, 0x20000")
    ct = {}; cn = {j: 0 for j in range(8)}
    k(f"s_lshl_b32 s{sCc}, s{sC3}, 1\ns_add_u32 s{sCc}, s{sCc}, s{sC}")
    def rot(j):
        k(f"s_add_u32 s{sT3}, s{sCc}, {j}\ns_and_b32 s{sT3}, s{sT3}, {7 if Q0_ROT else 0}")
        if not Q0_ROT: k(f"s_mov_b32 s{sT3}, {j}")
        k(f"s_lshl_b32 s{sS0}, s{sT3}, 7\ns_add_u32 s{sS0}, s{sS0}, s{sX}")
        k(f"s_mul_i32 s{sS1}, s{sT3}, {4*49152}\ns_add_u32 s{sS1}, s{sS1}, s{sX2}")
    def ldW(j, t):
        k(f"s_add_u32 m0, s{sWL}, {(12*j + t)*KB}\ns_add_u32 s{sT2}, s{sS1}, {((t+1) % 3)*1024}")
        ct[j] = k.vm(f"buffer_load_dwordx4 v{vWA}, {srd(sWR)}, s{sT2} offen lds"); cn[j] += 1
    def ldX(j, i):
        if i == 0: rot(j)
        k(f"s_add_u32 m0, s{sXL}, {(j & 3)*4*KB + i*KB}\ns_add_u32 s{sT2}, s{sS0}, {i*8192}")
        ct[j] = k.vm(f"buffer_load_dwordx4 v{vXA + (i & 1)}, {srd(sXS)}, s{sT2} offen lds"); cn[j] += 1
    def chunk_loads(j):
        return [lambda i=i: ldX(j, i) for i in range(4)] + [lambda t=t: ldW(j, t) for t in range(3)]
    for f in chunk_loads(0): f()
    if Q0_MARKS: mark(k, 'up0')
    late(k)
    pack_decode(k)
    k(f"s_cmp_eq_u32 s{sW}, 0\ns_cselect_b64 s[90:91], s[68:69], s[70:71]")
    k(f"s_cmp_eq_u32 s{sW}, 2\ns_cselect_b64 s[90:91], s[72:73], s[90:91]")
    k(f"s_cmp_eq_u32 s{sW}, 3\ns_cselect_b64 s[90:91], s[66:67], s[90:91]\ns_cselect_b32 s{sT0}, 16, 56")
    k(f"s_mul_i32 s{sT1}, s{sT0}, s{sU}\ns_sub_u32 s{sT0}, s{sT0}, 1")
    k(f"v_and_b32 v254, 63, v0\nv_min_u32 v254, s{sT0}, v254\nv_add_u32 v254, s{sT1}, v254\nv_lshlrev_b32 v254, 7, v254")
    pk = G.pk = Pack(k)
    k(f"s_and_b32 s{sT0}, s{sC}, 7\ns_and_b32 s{sT1}, s{sC}, 15")
    k("v_and_b32 v13, 15, v0\nv_min_u32 v14, 13, v13")
    k(f"s_lshr_b32 s{sT2}, s{sT0}, 1\ns_add_u32 s{sT2}, s{sT2}, 176\nv_lshl_add_u32 v252, v14, 2, s{sT2}")
    k(f"s_mul_i32 s{sT2}, s{sT1}, 7\ns_add_u32 s{sT3}, s{sT2}, 6\ns_lshr_b32 s{sT2}, s{sT2}, 2\ns_lshr_b32 s{sT3}, s{sT3}, 2")
    k(f"v_lshrrev_b32 v14, 2, v13\nv_add_u32 v14, s{sT2}, v14\nv_min_u32 v14, s{sT3}, v14\nv_and_b32 v15, 3, v13\nv_mul_u32_u24 v15, 28, v15")
    k("v_add3_u32 v14, v14, v15, 48")
    k("v_and_b32 v15, 16, v0\nv_cmp_ne_u32 vcc, 0, v15\nv_cndmask_b32 v252, v252, v14, vcc")
    k(f"s_add_u32 s{sT0}, s{sT0}, 160\nv_and_b32 v14, 1, v13\nv_lshl_add_u32 v251, v14, 3, s{sT0}")
    k(f"s_lshr_b32 s{sT1}, s{sT1}, 1\nv_mul_u32_u24 v14, 24, v14\nv_lshrrev_b32 v15, 1, v13\nv_min_u32 v15, 2, v15\nv_lshlrev_b32 v15, 3, v15")
    k(f"v_add3_u32 v14, v14, v15, s{sT1}")
    k("v_cndmask_b32 v251, v251, v14, vcc")
    k(f"v_cmp_gt_u32 vcc, 512, v{vL16}\nv_cndmask_b32 v252, v251, v252, vcc\nv_lshlrev_b32 v252, 7, v252\nv_accvgpr_write_b32 a213, v252")
    if WARM:
        k("s_getpc_b64 s[88:89]")
        k(f"s_lshl_b32 s{sT0}, s{sC}, 1\ns_add_u32 s{sT0}, s{sT0}, s{sW}\ns_and_b32 s{sT0}, s{sT0}, 63\ns_lshl_b32 s{sT0}, s{sT0}, 10")
        k(f"v_add_u32 v245, s{sT0}, v{vL16}")
        k(f"v_min_u32 v244, {(WS_PAGES-1)*16}, v{vL16}\nv_lshlrev_b32 v244, 17, v244")
        k(f"s_cmp_eq_u32 s{sW}, 1\ns_cselect_b64 s[88:89], s[{sAUX}:{sAUX+1}], s[88:89]")
        k(f"s_cmp_eq_u32 s{sW}, 0\ns_cselect_b64 s[88:89], s[{sWS}:{sWS+1}], s[88:89]\ns_cselect_b64 vcc, -1, 0")
        k("v_cndmask_b32 v245, v245, v244, vcc")
    if PK_Q0: pk.issue(*range(8))
    k(f"v_and_b32 v13, 31, v0\nv_bfe_u32 v14, v0, 1, 3\nv_bfe_u32 v15, v0, 5, 1\nv_xor_b32 v14, v14, v15\nv_lshlrev_b32 v14, 4, v14\nv_lshl_add_u32 v13, v13, 7, v14")
    for e in range(4):
        k(f"v_xor_b32 v{vXR+e}, {e*32}, v13\nv_add_u32 v{vXR+e}, s{sXL}, v{vXR+e}")
    tr_addr(k, vTR, 13)
    k(f"v_add_u32 v{vTR+1}, {48*KB}, v{vTR}\nv_add_u32 v{vTW}, s{sWL}, v{vTR}\nv_add_u32 v{vTW+1}, {48*KB}, v{vTW}")
    k(f"v_mov_b32 v{vONE}, 0x3f803f80\nv_add_u32 v255, s84, v{vTR}\nv_accvgpr_write_b32 a212, v255")
    for r in range(192, 196): k(f"v_accvgpr_write_b32 a{r}, v{vONE}")
    for r in list(range(vST, vST+4)) + list(range(vCS, vCS+3)): k(f"v_mov_b32 v{r}, 0")
    def reads(j):
        o = []
        for e in range(4):
            o.append(f"ds_read_b128 {vr(vX + 16*j + 4*e)}, v{vXR+e} offset:{(j & 3)*4*KB}")
        for t in range(3):
            off = (12*(j & 3) + t)*KB
            o.append(f"ds_read_b64_tr_b16 {vr(vCW+4*t,2)}, v{vTW + (j >> 2)} offset:{off}")
            o.append(f"ds_read_b64_tr_b16 {vr(vCW+4*t+2,2)}, v{vTW + (j >> 2)} offset:{off+256}")
        for b in range(12):
            off = (12*(j & 3) + b)*KB; r = 48*(j & 1) + 4*b
            o.append(f"ds_read_b64_tr_b16 {ar(r,2)}, v{vTR + (j >> 2)} offset:{off}")
            o.append(f"ds_read_b64_tr_b16 {ar(r+2,2)}, v{vTR + (j >> 2)} offset:{off+256}")
        return o
    def dots(j):
        for i in range(16):
            r = vX + 16*j + i
            k(f"v_dot2c_f32_bf16 v{vST + 2*(i & 1)}, v{vONE}, v{r}\nv_dot2c_f32_bf16 v{vST + 1 + 2*(i & 1)}, v{r}, v{r}")
        for i in range(4):
            for t in range(3): k(f"v_dot2c_f32_bf16 v{vCS+t}, v{vONE}, v{vCW+4*t+i}")
    def xid():
        k(f"s_add_u32 s{sTAG}, s{sTAG}, 0x7f4a7c15\ns_addc_u32 s{sTAG+1}, s{sTAG+1}, 0x9e3779b9")
        k("v_mov_b32 v13, 0")
        k("s_mov_b64 exec, 1")
        if FLAG_TOUCH:
            k(f"s_lshl_b32 s{sF}, s{sA}, 4\ns_lshr_b32 s{sT1}, s{sRB}, 2\ns_add_u32 s{sF}, s{sF}, s{sT1}\ns_lshl_b32 s{sF}, s{sF}, 7\ns_add_u32 s{sF}, s{sF}, {FKV(0)}")
            k.vm(f"buffer_load_dword v5, v13, {srd(sWS)}, s{sF} offen sc1")
            k(f"s_lshl_b32 s{sF}, s{sU}, 7\ns_add_u32 s{sF}, s{sF}, {FPK}")
            k.vm(f"buffer_load_dword v5, v13, {srd(sWS)}, s{sF} offen sc1")
        k("s_mov_b64 exec, -1")
    def lin_touch():
        k.vm("global_load_dword v253, v254, s[90:91]")
    side = []
    if Q0_MARKS: mark(k, 'alu')
    if WARM and WARM_AT == 0: k.vm(f"global_load_dword v253, v245, s[88:89]")
    for j in range(1, Q0_UP):
        for f in chunk_loads(j): f()
    if WARM and WARM_AT == 1: k.vm(f"global_load_dword v253, v245, s[88:89]")
    if Q0_MARKS: mark(k, 'iss')
    k.wait(vm=ct[0])
    if Q0_MARKS: mark(k, 'w0')
    k("s_barrier")
    mark(k, 'd0')
    rl = reads(0)
    for x in rl[:10]: t10 = k.lg(x)
    for x in rl[10:]: k.lg(x)
    k.wait(lg=t10)
    dots(0)
    for j in range(8):
        for c_ in Q0_SCHED[j]:
            assert c_ - 4 <= j
            side += chunk_loads(c_)
        if j == 1: side.append(xid)
        if WARM and WARM_AT == j + 2: side.append(lambda: k.vm(f"global_load_dword v253, v245, s[88:89]"))
        if PK_EARLY: side += [lambda i=i: pk.issue(i) for i in range(8) if PK_AT[i] == j]
        if j == LIN_AT and not PK_Q0: side.append(lin_touch)
        if PK_Q0:
            assert all(c_ < 5 or j > PK_RD for c_ in Q0_SCHED[j])
            if j == PK_RD: side += [lambda i=i: pk.reads(2*i, 2*i+1) for i in range(4)]
            if j == PK_ST: side += [lambda i=i: (pk.stores(i), pk.csum(i)) for i in range(4)]
            if j == PK_ST + 1: side += [lambda i=i: (pk.stores(i), pk.csum(i)) for i in range(4, 8)]
            if j == PK_ST + 2: side.append(pk.ext)
        k.wait_all(vm=False)
        rl = []
        if j < 7:
            assert cn[j+1] == 7
            k.wait(vm=ct[j+1]); k("s_barrier")
            if j in Q0_MARKJ: mark(k, f'c{j+1}')
            rl = reads(j + 1)
        t10 = None; nr = 0
        if j == 7:
            tail = f"s_lshr_b32 s{sT0}, s{sW}, 1\ns_lshl_b32 s{sT0}, s{sT0}, 9\ns_and_b32 s{sT1}, s{sW}, 1\ns_lshl_b32 s{sT1}, s{sT1}, 3\ns_add_u32 s{sT0}, s{sT0}, s{sT1}".split('\n')
            tail += [f"v_and_b32 v13, 0x1f0, v{vL16}", f"v_add_u32 v13, s{sT0}, v13"]
            for t in range(3): tail += ext_pair(vCS+t, vCW+2*t, 14) + [f"ds_write_b64 v13, {vr(vCW+2*t,2)} offset:{t*KB}"]
            fin = fin_stats(vST, vEXT, vRS)[NTREE:] + qkv_consts(vT, vRS, vR)
            tail += [f"v_add_f32 v{vST}, v{vST}, v{vST+2}", f"v_add_f32 v{vST+1}, v{vST+1}, v{vST+3}"] + fin[:18]
            tail += ["s_waitcnt lgkmcnt(0)", "s_barrier"] + [f"ds_read_b128 {vr(vCW+4*t)}, v{vL16} offset:{t*KB}" for t in range(3)] + fin[18:]
            tail += f"s_lshl_b32 s{sCc}, s{sA}, 18\ns_lshl_b32 s{sT1}, s{sRB}, 11\ns_add_u32 s{sCc}, s{sCc}, s{sT1}".split('\n')
            tail += f"s_mul_i32 s{sB}, s{sRB}, {112*KB}\ns_lshl_b32 s{sT1}, s{sA}, 11\ns_add_u32 s{sB}, s{sB}, s{sT1}".split('\n')
            assert not side
            n_ = -(-len(tail) // 12)
            side = [lambda c=tail[i:i+n_]: [k(x) for x in c] for i in range(0, len(tail), n_)]
        for b in range(12):
            ks = 4*j + b // 3; t = b % 3
            acc = vr(vACC + 16*t, 16); w = ar(48*(j & 1) + 4*b); x = vr(vX + 4*ks)
            A, B = (x, w) if t == 1 else (w, x)
            k(f"v_mfma_f32_32x32x16_bf16 {acc}, {A}, {B}, {'0' if ks == 0 else acc}")
            if ks == 0 and t == 0: mark(k, 'm0')
            for _ in range(3):
                if rl:
                    t_ = k.lg(rl.pop(0)); nr += 1
                    if nr == 10: t10 = t_
            if side: side.pop(0)()
            if len(side) > 11 - b: side.pop(0)()
        if j < 7:
            assert not rl
            k.wait(lg=t10)
            dots(j + 1)
    while side: side.pop(0)()
    mark(k, 'loop')
    k.wait_all(vm=False)
    for t in range(3):
        c = vCW + 4*t
        acc = vr(vACC + 16*t, 16)
        A, B = (vr(vEXT), vr(c)) if t == 1 else (vr(c), vr(vEXT))
        k(f"v_mfma_f32_32x32x16_bf16 {acc}, {A}, {B}, {acc}")
    t_ = None
    for x in qk_tile(vACC, KVF(0), vRS, " sc1", vX) + v_tile(vACC+16, 0, vR, vX+8) + qk_tile(vACC+32, QF, vRS+1, " sc1", vX+16):
        if x.startswith('buffer'): t_ = k.vm(x)
        else: k(x)
    mark(k, 'st')
    return t_, t_

def ph_qkv(k, L, ring, b0):
    vX, vACC, vST, vEXT, vRS, vT, vR = 16, 144, 192, 8, 6, 224, 232
    rb_128(k)
    k(f"s_and_b32 s{sA}, s{sC}, 15")
    k(f"s_lshl_b32 s{sX}, s{sRB}, 15\ns_add_u32 s{sX}, s{sX}, {XF}")
    set_lds_bases(k)
    QE = QKV_QE
    seq = [(ks, t) for ks in range(33) for t in ((0, 1, 2) if ks < QE else (0, 1))] + [(ks, 2) for ks in range(QE, 33)]
    ops = [dict(b=b0 + (2*ks + t if t < 2 else 66 + ks), bmin=b0, bmax=b0 + 98, xi=(ks if ks < 32 else None), x=(vr(vX+4*ks) if ks < 32 else vr(vEXT)),
                acc=vr(vACC+16*t, 16), swap=(t == 1), first=(ks == 0)) for ks, t in seq]
    xq = XLoader(k, 32, lambda i: vr(vX+4*i), lin_src(k))
    res = {}
    se = stats_emitters(k, vST, res)
    k(f"s_lshl_b32 s{sCc}, s{sA}, 18\ns_lshl_b32 s{sT1}, s{sRB}, 11\ns_add_u32 s{sCc}, s{sCc}, s{sT1}")
    k(f"s_mul_i32 s{sB}, s{sRB}, {112*KB}\ns_lshl_b32 s{sT1}, s{sA}, 11\ns_add_u32 s{sB}, s{sB}, s{sT1}")
    assert ring.issued == ring.total
    g = Gemm(k, ring, ops, {0})
    g.start()
    ring.issue_n(4)
    publish_local(k, G.tx)
    ring.issue_n(4)
    k(f"s_lshl_b32 s{sF}, s{sRB}, 7\ns_add_u32 s{sF}, s{sF}, {FLOC(L-1, 8)}")
    poll16(k)
    aps = stats_poll(k, FLOC(L-1,7) - FLOC(L-1,8))
    fin = fin_stats(vST, vEXT, vRS) + qkv_consts(vT, vRS, vR)
    epi = qk_tile(vACC, KVF(L), vRS, " sc1", vST) + v_tile(vACC+16, L, vR, vST+16)
    nkv = len(epi)
    if KV_LOC:
        epi += [f"s_lshl_b32 s{sE}, s{sA}, 11", f"s_add_u32 s{sE}, s{sE}, s{sB}", f"s_add_u32 s{sE}, s{sE}, {HF + 32*KB}",
                f"buffer_store_dwordx4 {vr(vST)}, v{vL16}, {srd(sWS)}, s{sE} offen",
                f"buffer_store_dwordx4 {vr(vST+4)}, v{vL16}, {srd(sWS)}, s{sE} offen offset:2048",
                "v_lshrrev_b32 v13, 6, v12", "v_and_b32 v13, 0x800, v13", "v_and_b32 v12, 0x1ff, v12", "v_add_u32 v12, v12, v13",
                f"buffer_store_dwordx4 {vr(vST+16)}, v12, {srd(sWS)}, s{sE} offen offset:1024",
                f"buffer_store_dwordx4 {vr(vST+20)}, v12, {srd(sWS)}, s{sE} offen offset:1536"]
    st = dict(i=0, j=0, t=None)
    def put(x):
        if x.startswith('buffer'): st['t'] = k.vm(x)
        else: k(x)
    def filler(m):
        if aps and m == 4: aps.issue()
        if m == 22:
            if aps: aps.check()
            for e in se: e()
        if 44 <= m < 64 + QE:
            if st['i'] == 0: k.wait(vm=res['t'])
            for _ in range(3):
                if st['i'] < len(fin): k(fin[st['i']]); st['i'] += 1
        if m >= 68 + QE:
            for _ in range(QKV_EPI):
                if st['j'] < len(epi): put(epi[st['j']]); st['j'] += 1
    g.run(xq, n0=8, filler=filler)
    while st['j'] < len(epi):
        put(epi[st['j']]); st['j'] += 1
    assert st['i'] == len(fin)
    tkv = st['t']
    for x in qk_tile(vACC + 32, QF, vRS + 1, "", vST+8): put(x)
    mark(k, 'st')
    return tkv, st['t']

def code_touch(k, vd, skip=0):
    if not CODE_TOUCH: return
    k(f"s_getpc_b64 s[{sPC}:{sPC+1}]\ns_add_u32 s{sPC}, s{sPC}, s{sCT}\ns_addc_u32 s{sPC+1}, s{sPC+1}, 0")
    k.vm(f"global_load_dword v{vd}, v{vL16}, s[{sPC}:{sPC+1}] offset:{skip}")

def flag_touch(k, L, va, vd):
    if not FL_TOUCH: return
    k(f"v_bfe_u32 v{va}, v0, 3, 3\nv_lshlrev_b32 v{va}, 6, v{va}\nv_and_or_b32 v{va}, v0, 7, v{va}\nv_lshlrev_b32 v{va}, 7, v{va}")
    k(f"s_lshl_b32 s{sT3}, s{sG}, 10\ns_add_u32 s{sT3}, s{sT3}, {FLOC(L,0)}")
    k.vm(f"buffer_load_dword v{vd}, v{va}, {srd(sWS)}, s{sT3} offen sc1")

def ph_att(k, L, ring, tkv, tq):
    vO, vS0, vKV, aQ = 16, 144, 208, aWB
    NS = 4
    vS = [vS0 + 16*i for i in range(NS)]
    vK, vV, vIDX, vL128 = 6, 7, 8, 9
    sK, sHD = sB, sE
    k(f"s_lshl_b32 s{sHD}, s{sC}, 16")
    k(f"s_lshl_b32 s{sT0}, s{sC}, 17\ns_add_u32 s{sT0}, s{sT0}, s{sW4K}\ns_add_u32 s{sT0}, s{sT0}, {KVF(L)}")
    k("v_and_b32 v10, 0x33, v0\nv_bfe_u32 v11, v0, 2, 1\nv_lshlrev_b32 v11, 3, v11\nv_or_b32 v10, v10, v11")
    k(f"v_bfe_u32 v11, v0, 3, 1\nv_lshlrev_b32 v11, 2, v11\nv_or_b32 v10, v10, v11\nv_lshl_add_u32 v{vK}, v10, 4, s{sT0}")
    k(f"v_and_b32 v10, 15, v0\nv_bfe_u32 v11, v0, 5, 1\nv_lshlrev_b32 v11, 4, v11\nv_add_u32 v10, v10, v11\nv_lshl_add_u32 v{vV}, v10, 4, s{sT0}")
    k(f"v_mov_b32 v{vIDX}, 0xdddddddd\nv_lshlrev_b32 v{vL128}, 3, v{vL16}")
    k(f"s_lshl_b32 s{sK}, s{sG}, 14")
    if L and KV_LOC:
        k(f"s_lshl_b32 s{sT1}, s{sC}, 10\ns_add_u32 s{sT1}, s{sT1}, {32*KB}\ns_sub_u32 s{sT1}, s{sT0}, s{sT1}")
        k(f"v_subrev_u32 v146, s{sT1}, v{vK}\nv_subrev_u32 v147, s{sT1}, v{vV}")
    k("v_and_b32 v10, 27, v0\nv_cmp_eq_u32 vcc, 16, v10\nv_mov_b32 v11, 0x3f803f80\nv_cndmask_b32 v11, 0, v11, vcc")
    k("v_mov_b32 v144, v11")
    k(f"s_lshr_b32 s{sT0}, s{sC}, 1\ns_lshl_b32 s{sD}, s{sT0}, 11\ns_add_u32 s{sD}, s{sD}, {FKV(L)}")
    k(f"s_lshl_b32 s{sT3}, s{sG}, 8\ns_add_u32 s{sT3}, s{sT3}, s{sD}")
    if L == 0:
        k(f"v_and_b32 v11, 1, v0\nv_lshlrev_b32 v11, 7, v11\nv_add_u32 v11, s{sT3}, v11")
        k(f"v_cmp_gt_u32 vcc, 512, v{vL16}")
    k(f"s_lshr_b32 s{sT1}, s{sW}, 1\ns_lshl_b32 s{sT1}, s{sT1}, 7\ns_add_u32 s{sD}, s{sD}, s{sT1}")
    if L:
        k(f"s_add_u32 s{sT3}, s{sT3}, s{sT1}")
        k(f"s_lshl_b32 s{sT2}, s{sG}, 10\ns_lshl_b32 s{sT0}, s{sT0}, 6\ns_add_u32 s{sT2}, s{sT2}, s{sT0}\ns_add_u32 s{sT2}, s{sT2}, {FLOC(L-1,5)}")
        k(f"v_mov_b32 v12, s{sT3}\nv_and_b32 v11, 7, v0\nv_lshlrev_b32 v11, 3, v11\nv_add_u32 v11, s{sT2}, v11")
        k(f"v_cmp_gt_u32 vcc, 512, v{vL16}")
        if not KV_LOC: k("v_cndmask_b32 v11, v11, v12, vcc")
    k(f"v_and_b32 v12, 7, v0\nv_lshlrev_b32 v12, 8, v12")
    k(f"s_mul_i32 s{sT2}, s{sG}, {8*112*KB}\ns_lshl_b32 s{sT3}, s{sC}, 10\ns_add_u32 s{sT2}, s{sT2}, s{sT3}\ns_add_u32 s{sT2}, s{sT2}, {QF}")
    sQ = list(range(64, 72))
    for p in range(4):
        k(f"s_xor_b32 s{sT3}, s{sW}, {p}\ns_mul_i32 s{sT3}, s{sT3}, {2*112*KB}\ns_add_u32 s{sQ[2*p]}, s{sT3}, s{sT2}\ns_add_u32 s{sQ[2*p+1]}, s{sQ[2*p]}, {112*KB}")
    sTH, sTW, sFO = 72, 73, 79
    k(f"s_lshl_b32 s{sT3}, s{sU}, 2\ns_add_u32 s{sT3}, s{sT3}, s{sW}")
    k(f"s_mul_i32 s{sTH}, s{sT3}, {7*KB}\ns_add_u32 s{sTH}, s{sTH}, {HF}")
    k(f"s_lshl_b32 s{sT0}, s{sT3}, 11\ns_add_u32 s{sT0}, s{sT0}, {XF}\ns_lshl_b32 s{sT1}, s{sT3}, 8\ns_add_u32 s{sT1}, s{sT1}, {SX}")
    k(f"v_and_b32 v3, 0x780, v{vL128}\nv_add_u32 v3, s{sT0}, v3\nv_and_b32 v13, 0x80, v{vL128}\nv_add_u32 v13, s{sT1}, v13\nv_cndmask_b32 v3, v13, v3, vcc")
    k(f"s_lshl_b32 s{sTW}, s{sC4}, 2\ns_add_u32 s{sTW}, s{sTW}, s{sW}\ns_mul_i32 s{sTW}, s{sTW}, {TOUCH_KBS[L] * KB // 8}")
    k(f"s_add_u32 s{sTW}, s{sTW}, s{sSEG+1}\ns_add_u32 s{sTW}, s{sTW}, {32*KB}")
    k(f"s_and_b32 s{sCT}, s{sT3}, 31\ns_lshl_b32 s{sCT}, s{sCT}, 10")
    k(f"s_lshl_b32 s{sFO}, s{sG}, 2\ns_add_u32 s{sFO}, s{sFO}, s{sW}\ns_lshl_b32 s{sFO}, s{sFO}, 5\ns_add_u32 s{sFO}, s{sFO}, s{sC}\ns_lshl_b32 s{sFO}, s{sFO}, 3\ns_add_u32 s{sFO}, s{sFO}, {FLOC(L,0)}")
    for i in range(4): k(f"v_mov_b32 v{148+i}, 0")
    for q in range(8): k(f"v_mfma_f32_32x32x16_bf16 {vr(vO+16*q,16)}, {vr(148)}, {vr(148)}, 0")
    mark(k, 'pre')
    if L: q_flag(k, L, tq)
    kv_flag(k, L, tkv)
    if L == 0 and PK_Q0:
        k(f"s_lshl_b32 s{sF}, s{sU}, 7\ns_add_u32 s{sF}, s{sF}, {FPK}\nv_mov_b32 v145, v12")
        publish_wg(k, None, xid=True, barrier=False)
        k("v_mov_b32 v12, v145")
    mark(k, 'flag')
    if L == 0 and PK_EARLY:
        G.pk.reads(*range(8))
        for i in range(8): G.pk.csum(i)
        if PK_WIN2:
            G.pk.stores(*range(8)); G.pk.ext()
    if L == 0 and LIN_AT == 'flag': k.vm("global_load_dword v253, v254, s[90:91]")
    for b in range(2):
        for j in range(8): k(f"v_mov_b32 v{vKV+12*b+4+j}, v144")
    k(f"s_mov_b32 s{sF}, 0")
    poll(k, 11, 14, sleep=SLEEP1[L])
    mark(k, 'poll')
    K = lambda t: vr(vKV + 12*(t % 4))
    V = lambda t, u: vr(vKV + 12*(t % 4) + 4 + 4*u)
    kt = {}; vt = {}
    loc = lambda t: L and KV_LOC and t < 2
    def ldK(t):
        if t and (t & 1) == 0: k(f"s_add_u32 s{sK}, s{sK}, 0x4000\ns_and_b32 s{sK}, s{sK}, 0x1ffff")
        if loc(t): kt[t] = k.vm(f"buffer_load_dwordx4 {K(t)}, v{14 if t and HEAD else 146}, {srd(sWS)}, s{sQ[t]} offen sc1")
        else: kt[t] = k.vm(f"buffer_load_dwordx4 {K(t)}, v{vK}, {srd(sWS)}, s{sK} offen offset:{(t & 1)*2*KB} sc1")
    def ldV(t):
        va, so, o = (15 if t and HEAD else 147, sQ[t], KB) if loc(t) else (vV, sK, (t & 1)*2*KB + KB)
        k(f"s_mov_b64 exec, s[{sMSK}:{sMSK+1}]")
        k.vm(f"buffer_load_dwordx4 {V(t,0)}, v{va}, {srd(sWS)}, s{so} offen offset:{o} sc1")
        vt[t] = k.vm(f"buffer_load_dwordx4 {V(t,1)}, v{va}, {srd(sWS)}, s{so} offen offset:{o+512} sc1")
        k("s_mov_b64 exec, -1")
    def ldKV(t):
        ldK(t); ldV(t); kt[t] = vt[t]
    ldK(0)
    qt = {}
    def ldQ(*ss):
        for s in ss: qt[s] = k.vm(f"buffer_load_dwordx4 {ar(aQ+4*s)}, v{vL16}, {srd(sWS)}, s{sQ[s]} offen sc1")
    if HEAD == 0:
        ldQ(0, 1, 2); ldV(0); ldQ(3, 4, 5, 6, 7); ldKV(1)
    else:
        ldQ(0, 1); ldV(0); ldQ(2)
    ap2 = apoll1(k, 12, 10, sD, sleep=SLEEP2)
    for b in range(2, 4):
        for j in range(8): k(f"v_mov_b32 v{vKV+12*b+4+j}, v144")
    NT = ATT_NT
    steps = [(t, q) for t in range(16 - NT) for q in range(8)] + [(t, q) for q in range(2, 8) for t in range(16 - NT, 16)] + [(t, q) for q in range(2) for t in range(16 - NT, 16)]
    n = len(steps)
    LA = NS - 1
    def qk(i):
        t, q = steps[i]
        k.wait(vm=max(kt[t], qt[q]) if t == 0 else kt[t])
        k(f"v_mfma_f32_32x32x16_bf16 {vr(vS[i % NS],16)}, {K(t)}, {ar(aQ+4*q)}, 0")
    def pv(i, u):
        t, q = steps[i]
        k.wait(vm=vt[t])
        k(f"v_smfmac_f32_32x32x32_bf16 {vr(vO+16*q,16)}, {V(t,u)}, {vr(vS[i % NS]+8*u,8)}, v{vIDX}")
    if HEAD == 0:
        for i in range(LA): qk(i)
    else:
        if loc(1): k("v_mov_b32 v14, v146\nv_mov_b32 v15, v147")
        qk(0); ldQ(3, 4); qk(1)
    mark(k, 'm0')
    ring.limit = 96
    jobs = {}
    def job(i, f, e=10): jobs.setdefault((i, e), []).append(f)
    if HEAD:
        job(0, lambda: qk(2), e=3)
        job(0, lambda: ldQ(5, 6, 7))
        job(1, lambda: ldKV(1), e=2)
    job(HEAD, lambda: code_touch(k, 10))
    job(P2_AT - P2_LEAD, ap2.issue)
    job(P2_AT, lambda: (ap2.check(), ldKV(2), ldKV(3)))
    for t in range(1, 13): job(8*t, lambda t=t: ldKV(t + 3))
    def kvpf(j):
        def f():
            k(f"s_add_u32 s{sT0}, s{sG}, {2*j}\nv_bfe_u32 v13, v0, 5, 1\nv_add_u32 v13, s{sT0}, v13\nv_and_b32 v13, 7, v13\nv_lshlrev_b32 v13, 14, v13")
            k(f"v_and_b32 v14, 0xf80, v{vL128}\nv_add_u32 v13, v13, v14")
            k(f"s_lshl_b32 s{sT0}, s{sC}, 17\ns_add_u32 s{sT0}, s{sT0}, s{sW4K}\ns_add_u32 s{sT0}, s{sT0}, {KVF(L)}")
            k.vm(f"buffer_load_dword v5, v13, {srd(sWS)}, s{sT0} offen sc1")
        return f
    if KV_PF[L]:
        for j in (2, 3): job(KV_PF[L] + 8*(j-2), kvpf(j))
    if L == 0:
        CHK_AT = CHK_Q0 if PK_Q0 else G.pk.schedule(job) + CHK_GAP
        apk = APoll(k, [f"buffer_load_dwordx2 v[10:11], v12, {srd(sWS)}, s{sX} offen offset:8 sc1"],
                    f"v_cmp_ne_u64 vcc, s[{sTAG}:{sTAG+1}], v[10:11]")
        def chk0():
            k(f"v_accvgpr_read_b32 v12, a213\ns_mov_b32 s{sX}, {FPK}")
            apk.issue()
        job(CHK_AT - 6, chk0)
        apx = APoll(k, [f"buffer_load_dwordx4 v[12:15], v11, {srd(sWS)}, s{sCc} offen sc1"],
                    f"v_cmp_ne_u64 vcc, s[{sTAG}:{sTAG+1}], v[14:15]")
        def mode0():
            k(f"v_and_b32 v11, 0xf80, v{vL128}\ns_lshl_b32 s{sCc}, s{sG}, 12\ns_add_u32 s{sCc}, s{sCc}, {FPK}")
            apx.issue()
        def mode():
            apx.check()
            k(f"s_xor_b32 s{sT2}, s{sTAG}, s{sXCC}")
            k(f"v_cmp_ne_u32 vcc, s{sT2}, v12")
            k(f"s_cmp_eq_u64 vcc, 0\ns_cselect_b32 s{sMODE}, 1, 0")
        job(81, mode0); job(95, mode)
        def chk():
            apk.check()
            k(f"s_and_b32 s{sT2}, s{sC}, 7\ns_lshl_b32 s{sT2}, s{sT2}, 1\ns_lshr_b32 s{sT3}, s{sW}, 1\ns_add_u32 s{sT2}, s{sT2}, s{sT3}")
            k(f"s_mul_i32 s{sT3}, s{sW}, {28*KB}\ns_add_u32 s{sT3}, s{sT3}, {WD}")
            k(f"s_mul_i32 s{sX}, s{sT2}, {112*KB}\ns_add_u32 s{sX}, s{sX}, s{sT3}")
            k(f"s_xor_b32 s{sT2}, s{sT2}, 1\ns_mul_i32 s{sX2}, s{sT2}, {112*KB}\ns_add_u32 s{sX2}, s{sX2}, s{sT3}")
        job(CHK_AT, chk)
        def wsrc(i):
            s_ = sX if i < 28 else sX2
            j = i % 28
            if j and (j & 3) == 0: k(f"s_add_u32 s{s_}, s{s_}, 4096")
            return s_, (j & 3) * KB
        wq = XLoader(k, 56, lambda i: ar(aWD + 8*(i % 28) + 4*(i // 28)), wsrc)
        slots = [i for i in range(CHK_AT + 1, 112) if i % 8 in WD_SLOTS]
        work = [lambda: wq.issue_n(4)] * 14
        rw = [ring.issue16] * 6
        seq = []
        while work or rw:
            if work: seq.append(work.pop(0))
            if work: seq.append(work.pop(0))
            if rw: seq.append(rw.pop(0))
        assert len(seq) <= len(slots), (len(seq), len(slots))
        for i, f in zip(slots, seq): job(i, f)
    else:
        for j in range(6): job(R1_AT + R1_STEP*j, ring.issue16)
    def tch(j):
        def f():
            if j: k(f"s_add_u32 s{sTW}, s{sTW}, {TL*128}")
            elif TL < 64: k(f"v_and_b32 v4, {(TL-1)*128}, v{vL128}")
            k.vm(f"buffer_load_dword v5, v{vT_}, {srd(sWS)}, s{sTW} offen sc1")
        return f
    TL = TOUCH_LN; vT_ = vL128 if TL == 64 else 4
    for j in range(-(-TOUCH_KBS[L] // TL)): job(TOUCH_AT[L] + j*TOUCH_STEP[L], tch(j))
    def th(j):
        def f():
            if j: k(f"s_add_u32 s{sTH}, s{sTH}, {TL*128}")
            elif TL < 64: k(f"v_and_b32 v4, {(TL-1)*128}, v{vL128}")
            k.vm(f"buffer_load_dword v5, v{vT_}, {srd(sWS)}, s{sTH} offen sc1")
        return f
    for j in range(-(-56 // TL)): job(TACT_AT + j*TH_STEP, th(j))
    def tact():
        k.vm(f"buffer_load_dword v5, v3, {srd(sWS)}, 0 offen sc1")
    job(TACT_AT + 4, tact)
    if L == 0 and XRES_TOUCH:
        def xt_():
            rowmajor_addr(k, 14, sT0)
            k.vm(f"buffer_load_dword v5, v14, {srd(60)}, s{sT0} offen sc1")
        job(XRES_TOUCH, xt_)
    job(CT_AT, lambda: code_touch(k, 5))
    job(TACT_AT + 8, lambda: flag_touch(k, L, 4, 5))
    SC = 96 * KB
    vWA = 10
    def red_setup():
        k(f"s_lshl_b32 s{sT0}, s{sW}, 14\nv_add_u32 v13, s{sT0}, v{vL16}")
        for j in range(1, 4):
            k(f"v_xor_b32 v{vWA+j-1}, {j << 14}, v13\nv_add_u32 v{vWA+j-1}, {SC}, v{vWA+j-1}")
        k(f"v_add_u32 v13, {SC}, v13")
    job(126 - 8*NT, red_setup)
    def red_write(s, part):
        j = s >> 1; z = s & 1
        if part == 0:
            k.lg(f"ds_write_b128 v{vWA+j-1}, {vr(vO+16*s)} offset:{(z*3+j-1)*2*KB}")
            k.lg(f"ds_write_b32 v{vWA+j-1}, v{vO+16*s+8} offset:{(12+z)*KB+(j-1)*4}")
        if part == 1 or NT == 1:
            k.lg(f"ds_write_b128 v{vWA+j-1}, {vr(vO+16*s+4)} offset:{(z*3+j-1)*2*KB+KB}")
    for i in range(128):
        if steps[i][0] == 15 and steps[i][1] >= 2:
            job(i + 2, lambda s=steps[i][1]: red_write(s, 0), e=2)
            if NT > 1: job(i + 2, lambda s=steps[i][1]: red_write(s, 1))
    tl = []
    def red_read(zz):
        if zz[0] == 0:
            k.wait_all()
            k("s_barrier")
        for z in zz:
            k.lg(f"ds_read_b128 {vr(vO+32+48*z+8)}, v13 offset:{(12+z)*KB}")
            for j in range(3):
                b = vO + 32 + (z*3 + j)*16
                k.lg(f"ds_read_b128 {vr(b)}, v13 offset:{(z*3+j)*2*KB}")
                tl.append(k.lg(f"ds_read_b128 {vr(b+4)}, v13 offset:{(z*3+j)*2*KB+KB}"))
    if NT == 1: job(127, lambda: red_read((0, 1)))
    else:
        job(126, lambda: red_read((0,))); job(127, lambda: red_read((1,)), e=2)
    for i, (t, q) in enumerate(steps):
        s = vS[i % NS]
        if i in ATT_MARKS: mark(k, f's{i}')
        for e in range(16):
            if e == 2 and i > 0: pv(i-1, 1)
            if e == 6 and i + LA < n: qk(i + LA)
            if e == 10: pv(i, 0)
            for f in jobs.pop((i, e), []): f()
            k(f"v_exp_f32 v{s+e}, v{s+e}")
    pv(n-1, 1)
    assert not jobs, jobs.keys()
    assert ring.issued == 96
    mark(k, 'loop')
    for z in range(2):
        o = vO + 16*z; l = vO + 32 + 48*z + 8
        k.wait(lg=tl[z*3])
        k(f"v_add_f32 v{l}, v{l}, v{l+1}\nv_add_f32 v{o+8}, v{o+8}, v{l+2}\nv_add_f32 v{o+8}, v{o+8}, v{l}\nv_rcp_f32 v{o+9}, v{o+8}")
        for j in range(3):
            b = vO + 32 + (z*3 + j)*16
            k.wait(lg=tl[z*3+j])
            for i in range(8): k(f"v_add_f32 v{o+i}, v{o+i}, v{b+i}")
        for j in range(4):
            k(f"v_mul_f32 v{o+2*j}, v{o+2*j}, v{o+9}\nv_mul_f32 v{o+2*j+1}, v{o+2*j+1}, v{o+9}")
            k(f"v_cvt_pk_bf16_f32 v{o+12+j}, v{o+2*j}, v{o+2*j+1}")
        ts = k.vm(f"buffer_store_dwordx4 {vr(o+12)}, v{vL16}, {srd(sWS)}, s{sQ[z]} offen")
    mark(k, 'f_st')
    fb = k.newlabel('fb'); back = k.newlabel('fbret')
    LO, HI = f2u(2.0**-60), f2u(2.0**60)
    for z in range(2):
        o = vO + 16*z
        k(f"v_add_f32 v{o}, v{o}, v{o+1}\nv_add_f32 v{o+2}, v{o+2}, v{o+3}\nv_add_f32 v{o+4}, v{o+4}, v{o+5}\nv_add_f32 v{o+6}, v{o+6}, v{o+7}")
        k(f"v_add_f32 v{o}, v{o}, v{o+2}\nv_add_f32 v{o+4}, v{o+4}, v{o+6}\nv_add_f32 v{o}, v{o}, v{o+4}")
        k(f"v_fma_f32 v{o+8}, v{o}, 0, v{o+8}\nv_subrev_u32 v{o+8}, {hex(LO)}, v{o+8}")
    k(f"v_max_u32 v{vO+8}, v{vO+8}, v{vO+24}")
    k(f"v_cmp_lt_u32 vcc, {hex(0 if FORCE_FB else HI - LO)}, v{vO+8}")
    k(f"s_cbranch_vccnz {fb}")
    k.label(back)
    F = [f"{fb}:", "s_waitcnt vmcnt(0)",
         f"v_subrev_u32 v{vK}, s{sW4K}, v{vK}", f"v_subrev_u32 v{vV}, s{sW4K}, v{vV}"]
    S, C, M = vS0, vS0 + 16, vS0 + 32
    for z in range(2):
        o = vO + 16*z; Q = ar(aQ + 4*z)
        F += [f"v_mov_b32 v{M}, 0xff800000", f"s_mov_b32 s{sK}, 0", f"{fb}_a{z}:",
              f"buffer_load_dwordx4 {K(0)}, v{vK}, {srd(sWS)}, s{sK} offen sc1", "s_waitcnt vmcnt(0)",
              f"v_mfma_f32_32x32x16_bf16 {vr(S,16)}, {K(0)}, {Q}, 0"]
        F += [f"v_max3_f32 v{M}, v{M}, v{S+2*i}, v{S+2*i+1}" for i in range(8)]
        F += [f"s_add_u32 s{sK}, s{sK}, 2048", f"s_cmp_lt_u32 s{sK}, {64*2048}", f"s_cbranch_scc1 {fb}_a{z}",
              f"v_mov_b32 v{M+1}, v{M}", f"v_permlane32_swap_b32 v{M}, v{M+1}", f"v_max_f32 v{M}, v{M}, v{M+1}"]
        F += [f"v_sub_f32 v{C+i}, 0, v{M}" for i in range(16)] + [f"v_mov_b32 v{o+i}, 0" for i in range(16)]
        F += [f"s_mov_b32 s{sK}, 0", f"{fb}_b{z}:",
              f"buffer_load_dwordx4 {K(0)}, v{vK}, {srd(sWS)}, s{sK} offen sc1",
              f"s_mov_b64 exec, s[{sMSK}:{sMSK+1}]",
              f"buffer_load_dwordx4 {V(0,0)}, v{vV}, {srd(sWS)}, s{sK} offen offset:{KB} sc1",
              f"buffer_load_dwordx4 {V(0,1)}, v{vV}, {srd(sWS)}, s{sK} offen offset:{KB+512} sc1",
              "s_mov_b64 exec, -1", "s_waitcnt vmcnt(0)",
              f"v_mfma_f32_32x32x16_bf16 {vr(S,16)}, {K(0)}, {Q}, {vr(C,16)}"]
        F += [f"v_exp_f32 v{S+i}, v{S+i}" for i in range(16)]
        F += [f"v_smfmac_f32_32x32x32_bf16 {vr(o,16)}, {V(0,u)}, {vr(S+8*u,8)}, v{vIDX}" for u in range(2)]
        F += ["s_nop 15", f"s_add_u32 s{sK}, s{sK}, 2048", f"s_cmp_lt_u32 s{sK}, {64*2048}", f"s_cbranch_scc1 {fb}_b{z}",
              f"v_rcp_f32 v{o+9}, v{o+8}"]
        for j in range(4):
            F += [f"v_mul_f32 v{o+2*j}, v{o+2*j}, v{o+9}", f"v_mul_f32 v{o+2*j+1}, v{o+2*j+1}, v{o+9}", f"v_cvt_pk_bf16_f32 v{o+12+j}, v{o+2*j}, v{o+2*j+1}"]
        F += [f"buffer_store_dwordx4 {vr(o+12)}, v{vL16}, {srd(sWS)}, s{sQ[z]} offen"]
    F += ["s_waitcnt vmcnt(0)", f"s_branch {back}"]
    G.far += F
    k(f"s_mov_b32 s{sF}, s{sFO}")
    ring.end16()
    ring.limit = 144
    return ts

def load_res(k, v):
    k(f"s_add_u32 s{sT1}, s{sDST}, {XF}")
    k.vm(f"buffer_load_dwordx4 {vr(v)}, v{vL16}, {srd(sWS)}, s{sT1} offen sc1")
    return k.vm(f"buffer_load_dwordx4 {vr(v+4)}, v{vL16}, {srd(sWS)}, s{sT1} offen offset:1024 sc1")
def add_res(k, acc, v):
    for j in range(8):
        k(f"v_lshlrev_b32 v10, 16, v{v+j}\nv_and_b32 v11, 0xffff0000, v{v+j}")
        k(f"v_add_f32 v{acc+2*j}, v{acc+2*j}, v10\nv_add_f32 v{acc+2*j+1}, v{acc+2*j+1}, v11")

def ph_wo(k, L, ring, tO):
    k.label(f'L_wo{L}')
    vX, vACC, vRES, vSUM, vPK = 16, 80, 112, 120, 136
    k(f"s_lshr_b32 s{sRB}, s{sDST}, 15\ns_lshr_b32 s{sD}, s{sW}, 1")
    k(f"s_mul_i32 s{sX}, s{sRB}, {112*KB}\ns_lshl_b32 s{sT0}, s{sD}, 14\ns_add_u32 s{sX}, s{sX}, s{sT0}\ns_add_u32 s{sX}, s{sX}, {HF}")
    k(f"s_lshl_b32 s{sT0}, s{sD}, 11")
    set_lds_bases(k, sT0)
    seq = []
    for s in range(16):
        seq.append((s, 1))
        if s < 16 - WO_R0: seq.append((s, 0))
    nf = len(seq)
    seq += [(s, 0) for s in range(16 - WO_R0, 16)]
    ops = [dict(b=4*s + a, bmin=0, bmax=63, xi=s, x=vr(vX+4*s), acc=vr(vACC+16*a,16), swap=False, first=(s == 0)) for s, a in seq]
    g = Gemm(k, ring, ops, {0}, stop_issue=WO_STOP)
    rs = {}
    def ldres():
        if L == 0:
            k.vm(f"buffer_load_dwordx4 {vr(vRES)}, v8, {srd(60)}, s{sE} offen")
            rs['t'] = k.vm(f"buffer_load_dwordx4 {vr(vRES+4)}, v8, {srd(60)}, s{sE} offen offset:32")
        else:
            rs['t'] = load_res(k, vRES)
    if not RES_LATE[L]:
        if L == 0: rowmajor_addr(k, 8, sE)
        ldres()
    g.start()
    mark(k, 'f_bar')
    ring.issue_n(PRE_WO)
    publish_local(k, tO)
    mark(k, 'f_pub')
    ring.issue_n(PRE_WO2)
    k(f"s_and_b32 s{sF}, s{sRB}, 0xfe\ns_add_u32 s{sF}, s{sF}, s{sD}\ns_lshl_b32 s{sF}, s{sF}, 7\ns_add_u32 s{sF}, s{sF}, {FLOC(L,0)}")
    SC = 144 * KB
    k(f"s_xor_b32 s{sT0}, s{sW}, 2\ns_lshl_b32 s{sT0}, s{sT0}, 12\ns_add_u32 s{sT0}, s{sT0}, {SC}\nv_add_u32 v6, s{sT0}, v{vL16}")
    k(f"s_lshl_b32 s{sT0}, s{sW}, 12\ns_add_u32 s{sT0}, s{sT0}, {SC}\nv_add_u32 v7, s{sT0}, v{vL16}")
    if RES_LATE[L] and L == 0: rowmajor_addr(k, 8, sE)
    poll16(k)
    mark(k, 'f_poll')
    xq = XLoader(k, 16, lambda i: vr(vX+4*i), lin_src(k))
    xq.issue_n(WO_N0)
    if not RES_LATE[L]:
        for x in res_unpack(vSUM, vRES): k(x)
    st = {}
    def xchg(step):
        if step == 0:
            while g.nread < 32: g.rd()
            for j in range(4): k.lg(f"ds_write_b128 v6, {vr(vACC+16+4*j)} offset:{j*KB}")
        elif step == 1:
            k.wait_all(vm=False)
            ring.limit = None
            ring.sync(64, 0)
            for j in range(4): st['t'] = k.lg(f"ds_read_b128 {vr(vACC+16+4*j)}, v7 offset:{j*KB}")
        st['n'] = step + 1
    def filler(m):
        if m == max(nf + 1, 25): xchg(0)
        if m == max(nf + 4, 28): xchg(1)
    g.run(xq, n0=0, look=16, filler=filler, misc=[ldres] if RES_LATE[L] else [])
    for step in range(st.get('n', 0), 2): xchg(step)
    if RES_LATE[L]:
        k.wait(vm=rs['t'])
        for x in res_unpack(vSUM, vRES): k(x)
    k.wait(lg=st['t'])
    for i in range(16): k(f"v_add_f32 v{vSUM+i}, v{vSUM+i}, v{vACC+16+i}")
    for j in range(8):
        k(f"v_add_f32 v{vACC+2*j}, v{vACC+2*j}, v{vSUM+2*j}\nv_add_f32 v{vACC+2*j+1}, v{vACC+2*j+1}, v{vSUM+2*j+1}")
        k(f"v_cvt_pk_bf16_f32 v{vPK+j}, v{vACC+2*j}, v{vACC+2*j+1}")
    ts = store_x(k, vACC, vPK, L, 1, ring)
    mark(k, 'end')
    return ts

PASSES = ((0, 3), (3, 2), (5, 2))
def ph_up(k, L, ring, b0, tprev):
    vX, vACC, vST, vEXT, vRS = 16, 144, 224, 8, 6
    sH0, sH1 = sD, sE
    rb_128(k)
    k(f"s_and_b32 s{sA}, s{sC}, 15")
    k(f"s_lshl_b32 s{sX}, s{sRB}, 15\ns_add_u32 s{sX}, s{sX}, {XF}")
    set_lds_bases(k)
    ops = []
    b = b0
    for (t0, nt) in PASSES:
        for ks in range(33):
            for t in range(t0, t0+nt):
                ops.append(dict(b=b, bmin=b, bmax=b, xi=(ks if ks < 32 else None), x=(vr(vX+4*ks) if ks < 32 else vr(vEXT)),
                                acc=vr(vACC+16*t, 16), swap=False, first=(ks == 0)))
                b += 1
    if UP4:
        last = ops[165:]
        for o in last[0::2]: o['bmin'] = b0 + 165
        for o in last[1::2]: o['bmin'] -= 1
        ops = ops[:165] + last[0::2] + last[1::2]
    g = Gemm(k, ring, ops, UP_SYNCS, stop_issue=UP_STOP)
    g.start()
    mark(k, 'f_bar')
    ring.issue_n(PRE)
    publish_local(k, tprev)
    mark(k, 'f_pub')
    ring.issue_n(PRE2)
    res = {}
    se = stats_emitters(k, vST, res)
    k(f"s_mul_i32 s{sH0}, s{sRB}, 112\ns_mul_i32 s{sT2}, s{sA}, 7\ns_add_u32 s{sH0}, s{sH0}, s{sT2}\ns_lshl_b32 s{sH0}, s{sH0}, 10\ns_add_u32 s{sH0}, s{sH0}, {HF}")
    k(f"s_add_u32 s{sH1}, s{sH0}, 4096")
    k(f"s_lshl_b32 s{sF}, s{sRB}, 7\ns_add_u32 s{sF}, s{sF}, {FLOC(L,1)}")
    poll16(k)
    mark(k, 'f_poll')
    aps = stats_poll(k, FLOC(L,6) - FLOC(L,1))
    xq = XLoader(k, 32, lambda i: vr(vX+4*i), lin_src(k))
    fin = fin_stats(vST, vEXT, vRS) + [f"v_mul_f32 v{vRS}, v{vRS}, v{vRS}"]
    def epi(t):
        a = vACC + 16*t
        o = []
        for j in range(4):
            o += [f"v_mul_f32 v{a+2*j}, v{a+2*j}, v{vRS}", f"v_mul_f32 v{a+2*j+1}, v{a+2*j+1}, v{vRS}",
                  f"v_mul_f32 v{a+2*j}, v{a+2*j}, v{a+8+2*j}", f"v_mul_f32 v{a+2*j+1}, v{a+2*j+1}, v{a+9+2*j}",
                  f"v_cvt_pk_bf16_f32 v{a+8+j}, v{a+2*j}, v{a+2*j+1}"]
        o.append(f"buffer_store_dwordx4 {vr(a+8)}, v{vL16}, {srd(sWS)}, s{sH0 + (t >> 2)} offen offset:{(t & 3)*KB}")
        return o
    st = dict(i=0, t=None); q = []
    def put(x):
        if x.startswith('buffer'): st['t'] = k.vm(x)
        else: k(x)
    dn = Down(k, L)
    def filler(m):
        if aps and m == 12: aps.issue()
        if aps and m == 30: aps.check()
        if 70 <= m < 96:
            if st['i'] == 0: k.wait(vm=res['t'])
            for _ in range(2):
                if st['i'] < len(fin): k(fin[st['i']]); st['i'] += 1
        if m == 102: q.extend(sum((epi(t) for t in range(0, 3)), []))
        if m == 168: q.extend(sum((epi(t) for t in range(3, 5)), []))
        if UP4 and m == 201: q.extend(epi(5))
        for _ in range(UP_EPI):
            if q: put(q.pop(0))
        if m == 146: code_touch(k, 7)
        if m in UP_PUB:
            assert not q
            if m == UP_PUB[0]:
                k(f"s_lshl_b32 s{sF}, s{sRB}, 4\ns_add_u32 s{sF}, s{sF}, s{sA}\ns_lshl_b32 s{sF}, s{sF}, 3\ns_add_u32 s{sF}, s{sF}, {FLOC(L,9)}")
            publish_local(k, st['t'])
            k(f"s_add_u32 s{sF}, s{sF}, {8*KB}")
            if m == UP_PUB[1]: dn.xq.hold = 20
        if UP_PUB[0] < m and dn.setup:
            for _ in range(3):
                if dn.setup: k(dn.setup.pop(0))
        if m in DN_POLL: dn.ap.issue()
        if m in DN_CHK:
            dn.ap.check()
            k(f"s_add_u32 s{dn.sFl}, s{dn.sFl}, {8*KB}")
        if m > DN_CHK[0] and m % 2 and not (ring.can_issue() and m < UP_STOP): dn.xq.issue_n(1)
    if L == 0: ring.limit = 296 + QW_UP
    g.run(xq, look=UP_LOOK, filler=filler, misc=se, misc_from=32, skip=UP_SKIP[L])
    assert st['i'] == len(fin) and not dn.setup and ring.issued == min(ring.total, 296 + QW_UP)
    dn.xq.hold = 36 if len(DN_CHK) > 1 else 24
    for t in range(6 if UP4 else 5, 7):
        for i, x in enumerate(epi(t)):
            put(x)
            if i in (4, 14): dn.xq.issue_n(1)
    mark(k, 'end')
    dn.tB = st['t']
    return dn

class Down:
    NX = 36
    def __init__(self, k, L):
        self.k = k; self.L = L
        sXa, sXb, sFl = sB, sX2, sCc
        self.sFl = sFl
        self.setup = (f"s_lshr_b32 s{sT0}, s{sDST}, 15\ns_mul_i32 s{sT1}, s{sW}, {28*KB}\ns_add_u32 s{sT1}, s{sT1}, {HF}\n"
                      f"s_mul_i32 s{sXa}, s{sT0}, {112*KB}\ns_add_u32 s{sXa}, s{sXa}, s{sT1}\n"
                      f"s_xor_b32 s{sT2}, s{sT0}, 1\ns_mul_i32 s{sXb}, s{sT2}, {112*KB}\ns_add_u32 s{sXb}, s{sXb}, s{sT1}\n"
                      f"v_and_b32 v12, 3, v0\nv_lshlrev_b32 v12, 3, v12\nv_and_b32 v13, 4, v0\nv_lshl_add_u32 v12, v13, 5, v12\n"
                      f"s_and_b32 s{sFl}, s{sT0}, 0xfe\ns_lshl_b32 s{sFl}, s{sFl}, 7\ns_lshl_b32 s{sT1}, s{sW}, 5\ns_add_u32 s{sFl}, s{sFl}, s{sT1}\n"
                      f"s_add_u32 s{sFl}, s{sFl}, {FLOC(L,9)}").split('\n')
        self.order = order = [7*c + t for t0, nt in (((0, 3), (3, 2), (5, 1), (6, 1)) if UP4 else PASSES) for c in range(4) for t in range(t0, t0+nt)]
        cur = {sXa: 0, sXb: 0}
        def src(i):
            s_ = sXa if (i & 1) == 0 else sXb
            r = order[i >> 1]
            if not 0 <= r - cur[s_] < 4:
                d = (r - cur[s_]) * KB
                k(f"s_add_u32 s{s_}, s{s_}, {d}" if d > 0 else f"s_sub_u32 s{s_}, s{s_}, {-d}")
                cur[s_] = r
            return s_, (r - cur[s_]) * KB
        self.xr = lambda i: vr(144 + 4*(i % 36) if (i % 36) < 20 else 80 + 4*((i % 36) - 20))
        self.xq = XLoader(k, 56, self.xr, src)
        self.xq.hold = 12
        self.ap = apoll1(k, 12, 14, sFl)

def res_unpack(dst, v):
    o = []
    for j in range(8): o += [f"v_lshlrev_b32 v{dst+2*j}, 16, v{v+j}", f"v_and_b32 v{dst+2*j+1}, 0xffff0000, v{v+j}"]
    return o

def ph_down(k, L, ring, dn):
    vACC, vRES, vPK, vSUM = 16, 240, 240, 224
    final = L == 1
    xq = dn.xq; order = dn.order; NX = dn.NX
    if len(DN_CHK) > 1: xq.hold = 40
    SC = 108 * KB
    side = []
    for a in range(1, 4):
        side += f"s_xor_b32 s{sT0}, s{sW}, {a}\ns_mul_i32 s{sT0}, s{sT0}, {12*KB}\ns_add_u32 s{sT0}, s{sT0}, {SC + (a-1)*4*KB}\nv_add_u32 v{5+a}, s{sT0}, v{vL16}".split('\n')
    side += f"s_mul_i32 s{sT0}, s{sW}, {12*KB}\ns_add_u32 s{sT0}, s{sT0}, {SC}\nv_add_u32 v9, s{sT0}, v{vL16}".split('\n')
    if final and OUT_T:
        side += (f"s_and_b32 s{sT0}, s{sW}, 1\ns_mul_i32 s{sT0}, s{sT0}, {32*144}\ns_lshr_b32 s{sT2}, s{sW}, 1\ns_lshl_b32 s{sT2}, s{sT2}, 6\ns_add_u32 s{sT0}, s{sT0}, s{sT2}\n"
                 f"v_and_b32 v10, 31, v0\nv_mul_u32_u24 v10, 144, v10\nv_bfe_u32 v11, v0, 5, 1\nv_lshl_add_u32 v10, v11, 4, v10\nv_add_u32 v10, s{sT0}, v10\n"
                 f"s_mul_i32 s{sT0}, s{sW}, {16*144}\nv_bfe_u32 v13, v0, 3, 3\nv_mul_u32_u24 v11, 144, v13\nv_and_b32 v5, 7, v0\nv_lshl_add_u32 v11, v5, 4, v11\nv_add_u32 v11, s{sT0}, v11\n"
                 f"v_lshlrev_b32 v13, 10, v13\nv_lshl_add_u32 v13, v5, 4, v13\n"
                 f"s_and_b32 s{sT0}, s{sDST}, 0xffff0000\ns_lshl_b32 s{sT2}, s{sW}, 14\ns_add_u32 s{sT0}, s{sT0}, s{sT2}\n"
                 f"s_and_b32 s{sT2}, s{sC}, 7\ns_lshl_b32 s{sT2}, s{sT2}, 7\ns_add_u32 s{sT0}, s{sT0}, s{sT2}\ns_add_u32 s{sT2}, s{sT0}, 8192").split('\n')
    R, R0 = DN_R, DN_R0
    seq = []
    for s in range(28 - R):
        seq += [(s, a) for a in (3, 2, 1)]
        if s < 28 - R0: seq.append((s, 0))
    seq += [(s, a) for a in (3, 2, 1) for s in range(28 - R, 28)] + [(s, 0) for s in range(28 - R0, 28)]
    lo = [min(2*s_ + (a_ & 1) for s_, a_ in seq[m:]) for m in range(112)]
    wr = []; rt = None; tail = None; res = None; wb = False; adds = []
    for m, (s, a) in enumerate(seq):
        r = order[s]
        if len(DN_CHK) == 1 and m == DN_CHK2:
            dn.ap.check()
            k(f"s_add_u32 s{dn.sFl}, s{dn.sFl}, {8*KB}")
            xq.hold = 40
        if m == int(4*DN_PUBB): publish_local(k, dn.tB)
        if UP4 and m == DN_POLL3: dn.ap.issue()
        if UP4 and m == DN_CHK3:
            dn.ap.check()
            k(f"s_add_u32 s{dn.sFl}, s{dn.sFl}, {8*KB}")
            xq.hold = 48
        if m == 4*DN_BAR:
            ring.limit = None
            ring.sync(296, 0)
        if m == 4*DN_POLLB:
            apb = dn.ap
            apb.issue()
            rt = load_res(k, vRES)
        if m == 4*DN_CHKB:
            apb.check()
            xq.hold = 56
            xq.issue_n(min(3, lo[m] + NX - xq.n))
        xi = 2*s + (a & 1)
        while xq.n <= xi:
            assert xq.n < xq.hold and xq.n < lo[m] + NX
            xq.issue_n(1)
        k.wait(vm=xq.t[xi])
        acc = vr(vACC + 16*a, 16)
        k(f"v_mfma_f32_32x32x16_bf16 {acc}, {ar(aWD + 8*r + 4*(a >> 1))}, {dn.xr(xi)}, {'0' if s == 0 else acc}")
        if m == 0: mark(k, 'm0')
        if m in GEMM_MARKS.get(G.ph, ()): mark(k, f'm{m}')
        if (m % 2 == 0 or (xq.hold == 56 and m % DN_CR == 0)) and xq.n < min(lo[m] + NX, xq.total, xq.hold): xq.issue_n(1)
        elif m % 2 == 0 and xq.n == xq.total and ring.can_issue(): ring.issue()
        elif m > 4*DN_CHKB + 8:
            if res is None:
                k.wait(vm=rt); res = True
                side += res_unpack(vSUM, vRES)
            for _ in range(4):
                if side: k(side.pop(0))
        if final and WB_MASK is not None and xq.n == xq.total and (WB_EARLY or k.vm_done == k.vm_issued) and not wb:
            wb = True; l_ = k.newlabel('wb')
            k(f"s_lshl_b32 s{sT1}, s{sC}, 2\ns_add_u32 s{sT1}, s{sT1}, s{sW}\ns_and_b32 s{sT1}, s{sT1}, {WB_MASK}")
            if WB_EARLY:
                k(f"s_cbranch_scc0 {l_}")
                k.vm(f"buffer_load_dword v15, off, {srd(sWS)}, s{dn.sFl} sc1")
                k.label(l_ + 'r')
                G.far += [f"{l_}:", "buffer_wbl2 sc1", f"s_branch {l_}r"]
            else:
                k(f"s_cbranch_scc1 {l_}")
                k("buffer_wbl2 sc1")
                k.label(l_)
            print('wbl2 at', m, file=sys.stderr)
        if wr and wr[0][0] <= m:
            assert not side
            for _ in range(min(DN_WR, len(wr))):
                if wr[0][0] <= m: k.lg(wr.pop(0)[1])
            if wr and DN_WR == 1: wr[0] = (max(wr[0][0], m + DN_WGAP), wr[0][1])
            if not wr and a == 0: tail = min(m + 2, 111)
        if s == 27 and a:
            wr += [(m + 2, f"ds_write_b128 v{5+a}, {vr(vACC+16*a+4*j)} offset:{j*KB}") for j in range(4)]
        def fetch(bs):
            k("s_barrier")
            for b in bs:
                for j in range(4): t_ = k.lg(f"ds_read_b128 {vr(vACC+16+16*b+4*j)}, v9 offset:{b*4*KB + j*KB}")
                adds.extend((m + 2, t_, f"v_add_f32 v{vSUM+i}, v{vSUM+i}, v{vACC+16+16*b+i}") for i in range(16))
        if DN_X2 and m == 112 - R0:
            assert all('ds_write_b128 v6,' in x[1] for x in wr)
            k.wait_all(vm=False)
            fetch((2, 1))
        elif tail == m:
            k.wait_all(vm=False)
            fetch((0,) if DN_X2 else (2, 1, 0))
        else:
            for _ in range(DN_ADDS):
                if adds and adds[0][0] <= m:
                    _, t_, x = adds.pop(0); k.wait(lg=t_); k(x)
    assert not side and not wr and tail is not None and tail < 112
    for _, t_, x in adds:
        k.wait(lg=t_); k(x)
    if final and not OUT_T: rowmajor_addr(k, 6, sT0)
    for j in range(8):
        k(f"v_add_f32 v{vACC+2*j}, v{vACC+2*j}, v{vSUM+2*j}\nv_add_f32 v{vACC+2*j+1}, v{vACC+2*j+1}, v{vSUM+2*j+1}")
        k(f"v_cvt_pk_bf16_f32 v{vPK+j}, v{vACC+2*j}, v{vACC+2*j+1}")
        if final and OUT_T and j in (3, 7): k.lg(f"ds_write_b128 v10, {vr(vPK+j-3)} offset:{(j >> 2)*32}")
    if final and OUT_T:
        k.wait_all(vm=False)
        k("s_barrier")
        t0 = k.lg(f"ds_read_b128 {vr(vPK)}, v11")
        t1 = k.lg(f"ds_read_b128 {vr(vPK+4)}, v11 offset:{8*144}")
        k.wait(lg=t0)
        k.vm(f"buffer_store_dwordx4 {vr(vPK)}, v13, {srd(sAUX)}, s{sT0} offen{OUT_SC}")
        k.wait(lg=t1)
        k.vm(f"buffer_store_dwordx4 {vr(vPK+4)}, v13, {srd(sAUX)}, s{sT2} offen{OUT_SC}")
    elif final:
        k.vm(f"buffer_store_dwordx4 {vr(vPK)}, v6, {srd(sAUX)}, s{sT0} offen{OUT_SC}")
        k.vm(f"buffer_store_dwordx4 {vr(vPK+4)}, v6, {srd(sAUX)}, s{sT0} offen offset:32{OUT_SC}")
    else:
        G.tx = store_x(k, vACC, vPK, L, 8, ring)
    mark(k, 'end')

def k_main(name):
    k = Asm()
    G.nst = 0
    k(f".globl {name}\n.p2align 8\n.type {name},@function")
    k.label(name)
    if STAMP or PADTO: k("s_memrealtime s[42:43]")
    mark(k, 'start')
    k("s_cmp_ge_u32 s2, 256")
    k("s_cbranch_scc1 L_abort")
    k(f"s_load_dwordx2 s[{sWS}:{sWS+1}], s[0:1], 72")
    k(f"s_load_dwordx2 s[{sAUX}:{sAUX+1}], s[0:1], 56")
    k("s_load_dwordx2 s[60:61], s[0:1], 0\ns_load_dwordx4 s[64:67], s[0:1], 8\ns_load_dwordx4 s[68:71], s[0:1], 32\ns_load_dwordx2 s[72:73], s[0:1], 48")
    k("v_lshrrev_b32 v2, 6, v0")
    k(f"v_and_b32 v{vL16}, 63, v0")
    k(f"v_readfirstlane_b32 s{sW}, v2")
    k(f"v_lshlrev_b32 v{vL16}, 4, v{vL16}")
    k(f"s_mov_b32 s{sWG}, s2\ns_and_b32 s{sG}, s2, 7\ns_lshr_b32 s{sC}, s2, 3\ns_lshl_b32 s{sW1K}, s{sW}, 10")
    k(f"s_lshr_b32 s{sC4}, s{sC}, 4\ns_lshr_b32 s{sC3}, s{sC}, 3")
    k(f"s_lshl_b32 s{sU}, s{sG}, 5\ns_add_u32 s{sU}, s{sU}, s{sC}")
    k(f"s_lshl_b32 s{sW4K}, s{sW}, 12")
    k(f"s_getreg_b32 s{sXCC}, hwreg(HW_REG_XCC_ID, 0, 4)")
    k(f"v_add_u32 v{vSRC}, s{sW1K}, v{vL16}")
    k(f"s_mov_b32 s{sMSK}, 0xffff\ns_mov_b32 s{sMSK+1}, 0xffff\ns_mov_b32 s{sMODE}, 0")
    k(f"s_and_b32 s{sT0}, s{sC}, 7\ns_mul_i32 s{sSEG}, s{sT0}, {WO_STR}\ns_add_u32 s{sSEG}, s{sSEG}, {WO}")
    k(f"s_lshl_b32 s{sT1}, s{sG}, 2\ns_add_u32 s{sT1}, s{sT1}, s{sC3}\ns_lshl_b32 s{sT1}, s{sT1}, 1\ns_and_b32 s{sT2}, s{sW}, 1\ns_add_u32 s{sT1}, s{sT1}, s{sT2}")
    k(f"s_lshl_b32 s{sT1}, s{sT1}, 5\ns_lshl_b32 s{sT0}, s{sT0}, 2\ns_add_u32 s{sT1}, s{sT1}, s{sT0}\ns_and_b32 s{sT2}, s{sW}, 2\ns_add_u32 s{sT1}, s{sT1}, s{sT2}\ns_lshl_b32 s{sDST}, s{sT1}, 10")
    k(f"s_lshr_b32 s{sSD}, s{sDST}, 12\ns_lshl_b32 s{sSD}, s{sSD}, 9\ns_lshl_b32 s{sT2}, s{sT2}, 2\ns_add_u32 s{sSD}, s{sSD}, s{sT2}\ns_add_u32 s{sSD}, s{sSD}, {SX}")
    k(f"s_and_b32 s{sT0}, s{sC}, 15\ns_mul_i32 s{sSEG+1}, s{sT0}, {WU_STR}\ns_add_u32 s{sSEG+1}, s{sSEG+1}, {WU}")
    k(f"s_mul_i32 s{sSEG+2}, s{sT0}, {WQ_STR}\ns_add_u32 s{sSEG+2}, s{sSEG+2}, {WQ}")
    def late(k):
        if WSOFF: k(f"s_add_u32 s{sWS}, s{sWS}, {WSOFF}\ns_addc_u32 s{sWS+1}, s{sWS+1}, 0")
        k(f"s_add_u32 s{sT0}, s{sWS}, {EP}\ns_addc_u32 s{sT1}, s{sWS+1}, 0")
        k(f"s_load_dwordx2 s[{sTAG}:{sTAG+1}], s[{sT0}:{sT1}], 0")
        k(f"s_and_b32 s{sWS+1}, s{sWS+1}, 0xffff\ns_mov_b32 s{sWS+2}, {0x10000000 - WSOFF}\ns_mov_b32 s{sWS+3}, 0x20000")
        k(f"s_and_b32 s{sAUX+1}, s{sAUX+1}, 0xffff\ns_mov_b32 s{sAUX+2}, {2*MB}\ns_mov_b32 s{sAUX+3}, 0x20000")
    G.ph = 'qkv0'; tk = ph_qkv0(k, late)
    for L in range(2):
        ring = Ring(k, [(sSEG, 64), (sSEG+1, 232)] + ([(sSEG+2, 100)] if L == 0 else []))
        G.ph = f'att{L}'; tO = ph_att(k, L, ring, *tk)
        G.ph = f'wo{L}'; tx = ph_wo(k, L, ring, tO)
        G.ph = f'up{L}'; tB = ph_up(k, L, ring, 64, tx)
        G.ph = f'dn{L}'; ph_down(k, L, ring, tB)
        G.ph = 'qkv1'
        if L == 0: tk = ph_qkv(k, 1, ring, 296)
    k(f"s_add_u32 s{sT0}, s{sWG}, s{sW}\ns_cmp_lg_u32 s{sT0}, 0\ns_cbranch_scc1 L_fin")
    k(f"s_mov_b32 s{sF}, {EP}")
    publish_local(k, None, force_global=True)
    k.label("L_fin")
    if PADTO:
        k("s_waitcnt vmcnt(0)")
        if PADMIN:
            k("s_load_dwordx2 s[64:65], s[0:1], 64\ns_waitcnt lgkmcnt(0)")
            k("s_not_b32 s66, s42\nv_mov_b32 v8, s66\nv_mov_b32 v9, 0\ns_mov_b64 exec, 1")
            k("global_atomic_umax v9, v8, s[64:65]\ns_waitcnt vmcnt(0)")
            k.label("L_pad0")
            k(f"s_memrealtime s[98:99]\ns_waitcnt lgkmcnt(0)\ns_sub_u32 s98, s98, s42\ns_cmp_lt_u32 s98, {PADTO - 1500}\ns_cbranch_scc1 L_pad0")
            k("global_load_dword v8, v9, s[64:65] sc1\ns_waitcnt vmcnt(0)\nv_readfirstlane_b32 s66, v8\ns_not_b32 s42, s66\ns_mov_b64 exec, -1")
        k.label("L_pad")
        k(f"s_memrealtime s[98:99]\ns_waitcnt lgkmcnt(0)\ns_sub_u32 s98, s98, s42\ns_cmp_lt_u32 s98, {PADTO}\ns_cbranch_scc1 L_pad")
    if STAMP:
        k("s_waitcnt vmcnt(0)")
        G.ph = ''; mark(k, 'fin')
        k("s_memrealtime s[98:99]\ns_waitcnt lgkmcnt(0)")
        vals = [42, 98, sMODE] + STS[:G.nst]
        for i, s_ in enumerate(vals): k(f"v_mov_b32 v{16+i}, s{s_}")
        k(f"s_lshl_b32 s{sT0}, s{sWG}, 2\ns_add_u32 s{sT0}, s{sT0}, s{sW}\ns_lshl_b32 s{sT0}, s{sT0}, 7\ns_add_u32 s{sT0}, s{sT0}, {TS}")
        k("v_mov_b32 v4, 0\ns_mov_b64 exec, 1")
        for j in range(8): k(f"buffer_store_dwordx4 {vr(16+4*j)}, v4, {srd(sWS)}, s{sT0} offen offset:{16*j}")
        if DBG is not None:
            k(f"s_lshl_b32 s{sT0}, s{sWG}, 2\ns_add_u32 s{sT0}, s{sT0}, s{sW}\ns_cmp_lg_u32 s{sT0}, {DBG}\ns_cbranch_scc1 L_nodbg")
            k("s_load_dwordx2 s[64:65], s[0:1], 64\ns_waitcnt lgkmcnt(0)")
            for i in range(16): k(f"v_sub_u32 v{64+i}, v{20+i}, v19")
            for j in range(4): k(f"global_store_dwordx4 v4, {vr(64+4*j)}, s[64:65] offset:{16*j}")
            k.label("L_nodbg")
    k("s_waitcnt vmcnt(0)")
    k.label("L_abort")
    k("s_endpgm")
    for x in G.far:
        if x.endswith(':'): k.label(x[:-1])
        else: k(x)
    k(".fill 8448, 4, 0xbf800000")
    return k

def build():
    name = NAME + "_kernel"
    k = k_main(name)
    nn = k.fix()
    print(f"{len(k.L)} lines, {nn} nop states", file=sys.stderr)
    return f"""; stamps: {','.join(G.names)}
; @launch grid=(256,1,1) block=(256,1,1) lds={160*KB}
.amdgcn_target "amdgcn-amd-amdhsa--gfx950"
.text
{k.text()}
.section .rodata,"a"
.p2align 6
.amdhsa_kernel {name}
  .amdhsa_next_free_vgpr 512
  .amdhsa_next_free_sgpr 102
  .amdhsa_accum_offset 256
  .amdhsa_group_segment_fixed_size 0
  .amdhsa_kernarg_size 80
  .amdhsa_user_sgpr_count 2
  .amdhsa_user_sgpr_kernarg_segment_ptr 1
  .amdhsa_system_sgpr_workgroup_id_x 1
.end_amdhsa_kernel
"""

if __name__ == "__main__":
    for a in sys.argv[2:]:
        kk_, vv_ = a.split('=', 1)
        globals()[kk_] = eval(vv_)
    open(sys.argv[1], "w").write(build())
```

```python
import sys, struct
from asmlib import Asm

NAME = "interleave_layers__mha_block__glu_gated_bilinear__prompt"
KB = 1024; MB = KB * KB
LOG2E = 1.4426950408889634
def f2u(x): return struct.unpack('<I', struct.pack('<f', x))[0]
def srd(b): return f"s[{b}:{b+3}]"
def vr(b, n=4): return f"v[{b}:{b+n-1}]"
def ar(b, n=4): return f"a[{b}:{b+n-1}]"

WQ = 0;                    WQ_STR = 100 * KB
WO = WQ + 16 * WQ_STR;     WO_STR = 64 * KB
WU = WO + 8 * WO_STR;      WU_STR = 232 * KB
WD = WU + 16 * WU_STR
FL = 7 * MB + 640 * KB
assert WD + 16 * 112 * KB <= FL
EP = FL
XID = FL + 1 * KB
def FLOC(L, p): return FL + 4 * KB + (L * 13 + p) * 8 * KB
FKV0 = FL + 4 * KB + 26 * 8 * KB
def FKV(L): return FKV0 + L * 32 * KB
FPK = FKV0 + 64 * KB
assert FPK + 32 * KB <= 8 * MB
XF = 8 * MB
HF = 10 * MB
QF = HF
SX = 17 * MB
def KVF(L): return 18 * MB + L * 4 * MB
WS_PAGES = 13
TS = 27 * MB
DUMP = 0x7ff00000

STAMP = False
WB_EARLY = False
DIAG_NOP = {}
UP4 = False; DN_POLL3 = 18; DN_CHK3 = 30
DN_X2 = True; DN_ADDS = 5; DN_CR = 2
RES_LATE = (False, False); XRES_TOUCH = 0
HEAD = 0
QKV_QE = 10; QKV_EPI = 5
R1_AT = 44; R1_STEP = 8
KV_LOC = True
PADTO = 0; PADMIN = False
OUT_T = True
ATT_NT = 2
PK_WIN2 = False; PK_SP = 0
WARM_AT = 1
RT = False
DN_CHK2 = 4
CT_AT = 92
FORCE_FB = False
WB_MASK = 127; OUT_SC = ' sc1'; DN_WR = 1; DN_WGAP = 2
QW_LATE = False; QW_UP = 64; QW_TOUCH = (72, 100); QW_N1 = 4
PK_Q0 = False; PK_RD = 1; PK_ST = 3; CHK_Q0 = 15
WO_STOP = 26; WO_R0 = 8; WO_N0 = 10; ST_PRE = 2; PPOLL = 0; KV_PF = (0, 0); PK_EARLY = True
FL_TOUCH = False
SPLIT_ST = True
FINE = False
UP_EPI = 2; UP_PUB = (154, 206); DN_POLL = (172, 226); DN_CHK = (186,); UP_LOOK = 8; UP_SYNCS = {0, 48, 80, 112, 144, 176, 200}; UP_SKIP = (0, 0); UP_STOP = 222
DN_PUBB = 4; DN_BAR = 14; DN_POLLB = 7; DN_CHKB = 12; DN_R = 8; DN_R0 = 12
FLAG_TOUCH = False
WSOFF = 0
SLEEP1 = (0, 0); SLEEP2 = 0; SLEEP3 = 0
DBG = None
PRE = 4; PRE2 = 0
PRE_WO = 5; PRE_WO2 = 0
CODE_TOUCH = True
WD_SLOTS = (2, 4, 6)
TOUCH_AT = (93, 90); TOUCH_STEP = (3, 4); TOUCH_LN = 32; TH_STEP = 3; TOUCH_KBS = (96, 96)
RING = 144
PK_T0 = 7; PK_GAP = 6; PK_GAP2 = 9; CHK_GAP = 14
P2_AT = 6
P2_LEAD = 4
TACTS = (102, 102); EARLY_H = 0

sC4, sC3 = 2, 3
sWS, sAUX = 4, 8
sW, sG, sC, sW1K = 12, 13, 14, 15
sT0, sT1, sT2, sT3 = 16, 17, 18, 19
sX, sRS, sRB = 20, 21, 22
sA, sB, sCc, sD, sE = 23, 24, 25, 26, 27
sS0, sS1 = 28, 21
sMSK, sTAG, sMODE, sXCC = 30, 32, 34, 35
sSEG = 36
sX2 = 39
sSPIN, sF = 40, 41
STS = list(range(44, 56, 2)) + [92, 94, 56, 58, 74, 76, 80, 82, 86, 88, 60, 62]
sWG = 101
sW4K = 97
sSD = 29
sPC, sCT = 90, 85
sDST = 100
vL16, vSRC, vB = 1, 2, 3
aWD, aWB = 0, 224

class G:
    nst = 0
    names = []
    far = []
    ph = ''
SKIP = ''
ATT_MARKS = ()
GEMM_MARKS = {}
def mark(k, nm='x'):
    import re
    nm = G.ph + '_' + nm
    if SKIP and re.match(SKIP, nm): return
    if '_f_' in nm and not FINE: return
    if STAMP:
        G.names.append(nm)
        k(f"s_mem{'real' if RT else ''}time s[{STS[G.nst]}:{STS[G.nst]+1}]")
        G.nst += 1

class Ring:
    def __init__(self, k, segs):
        self.k = k; self.N = RING
        self.total = sum(n for _, n in segs)
        self.starts = {}
        b = 0
        for s, n in segs:
            assert n % 4 == 0
            self.starts[b] = s; b += n
        self.issued = 0; self.freed = 0; self.visible = 0
        self.limit = None
        self.tick = {}
    def can_issue(self):
        if self.limit is not None and self.issued + 4 > self.limit: return False
        return self.issued < self.total and self.issued + 4 <= self.freed + self.N
    def issue(self):
        k = self.k
        assert self.can_issue()
        slot = self.issued % self.N
        k(f"s_add_u32 m0, s{sW1K}, {slot*KB}")
        if self.issued in self.starts: k(f"s_mov_b32 s{sRS}, s{self.starts[self.issued]}")
        else: k(f"s_add_u32 s{sRS}, s{sRS}, 4096")
        self.tick[self.issued // 4] = k.vm(f"buffer_load_dwordx4 v{vSRC}, {srd(sWS)}, s{sRS} offen sc1 lds")
        self.issued += 4
    def issue16(self):
        k = self.k
        b = self.issued; slot = b % self.N
        assert slot + 16 <= self.N and b + 16 <= min(self.limit or 1 << 30, self.freed + self.N)
        assert not any(x in self.starts for x in range(b + 1, b + 16))
        k(f"s_add_u32 m0, s{sW4K}, {slot*KB}")
        if b in self.starts: k(f"s_add_u32 s{sRS}, s{self.starts[b]}, s{sW4K}")
        else: k(f"s_add_u32 s{sRS}, s{sRS}, 16384")
        for i in range(4):
            t = k.vm(f"buffer_load_dwordx4 v{vL16}, {srd(sWS)}, s{sRS} offen offset:{i*KB} sc1 lds")
        for q in range(4): self.tick[b // 4 + q] = t
        self.issued += 16
    def end16(self):
        self.k(f"s_sub_u32 s{sRS}, s{sRS}, s{sW4K}\ns_add_u32 s{sRS}, s{sRS}, 12288")
    def issue_n(self, n):
        for _ in range(n):
            if self.can_issue(): self.issue()
    def sync(self, consumed, need):
        k = self.k
        need = min(need, self.total)
        if need > self.visible:
            q = (need - 1) // 4
            assert q * 4 < self.issued, (need, self.issued)
            k.wait(vm=self.tick[q])
        k("s_barrier")
        q = self.visible // 4
        while q in self.tick and self.tick[q] <= k.vm_done: q += 1
        self.visible = q * 4
        assert self.visible >= need
        self.freed = max(self.freed, (consumed // 4) * 4)
    def addr(self, b): return (b % self.N) * KB

def set_lds_bases(k, extra_s=None):
    if extra_s is None: k(f"v_mov_b32 v{vB}, v{vL16}")
    else: k(f"v_add_u32 v{vB}, s{extra_s}, v{vL16}")
    k(f"v_add_u32 v{vB+1}, 0x10000, v{vB}")
    k(f"v_add_u32 v{vB+2}, 0x20000, v{vB}")

class XLoader:
    def __init__(self, k, total, reg, src):
        self.k = k; self.total = total; self.reg = reg; self.src = src; self.n = 0; self.t = []
        self.hold = total
    def issue_n(self, n):
        k = self.k
        for _ in range(n):
            i = self.n
            if i >= min(self.total, self.hold): return
            s_, imm = self.src(i)
            self.t.append(k.vm(f"buffer_load_dwordx4 {self.reg(i)}, v{vL16}, {srd(sWS)}, s{s_} offen offset:{imm} sc1"))
            self.n += 1
def lin_src(k):
    def f(i):
        if i and (i & 3) == 0: k(f"s_add_u32 s{sX}, s{sX}, 4096")
        return sX, (i & 3) * KB
    return f

class Gemm:
    def __init__(self, k, ring, ops, syncs, D=4, NB=8, stop_issue=None):
        self.k = k; self.ring = ring; self.ops = ops; self.syncs = sorted(syncs)
        assert all(x % 2 == 0 for x in syncs)
        self.D = D; self.NB = NB; self.tl = {}; self.nread = 0
        self.stop = stop_issue if stop_issue is not None else len(ops)
    def rd(self):
        k = self.k; m = self.nread; o = self.ops[m]
        assert o['bmax'] < self.ring.visible, (m, o['b'], self.ring.visible)
        a = self.ring.addr(o['b'])
        self.tl[m] = k.lg(f"ds_read_b128 {ar(aWB + 4*(m % self.NB))}, v{vB + (a >> 16)} offset:{a & 0xffff}")
        self.nread += 1
    def need_until(self, m):
        M = len(self.ops)
        nxt = [s for s in self.syncs if s > m]
        last = min((nxt[0] if nxt else M) - 1 + self.D, M - 1)
        return max(o['bmax'] for o in self.ops[:last+1]) + 1
    def start(self):
        self.ring.sync(self.ops[0]['bmin'], self.need_until(0))
        while self.nread < min(self.D, len(self.ops)): self.rd()
    def run(self, xq, n0=6, look=10, filler=None, misc=(), misc_from=0, skip=0):
        k = self.k; M = len(self.ops)
        misc = list(misc)
        xq.issue_n(n0)
        cur = 0
        for m in range(M):
            if m in self.syncs and m > 0:
                self.ring.sync(self.ops[m]['bmin'], self.need_until(m))
            o = self.ops[m]
            xt = None
            if m % 2 == 0:
                xs = [p['xi'] for p in self.ops[m:m+2] if p.get('xi') is not None]
                if xs:
                    cur = max(cur, max(xs))
                    while xq.n <= max(xs): xq.issue_n(1)
                    xt = xq.t[max(xs)]
                k.wait(vm=xt, lg=self.tl[min(m + 1, M - 1)])
            w = ar(aWB + 4*(m % self.NB))
            c = o.get('c0', '0') if o['first'] else o['acc']
            A, B = (o['x'], w) if o['swap'] else (w, o['x'])
            k(f"v_mfma_f32_32x32x16_bf16 {o['acc']}, {A}, {B}, {c}")
            if m == 0: mark(k, 'm0')
            if m in GEMM_MARKS.get(G.ph, ()): mark(k, f'm{m}')
            if m % 2 == 0:
                for _ in range(2):
                    if self.nread < M: self.rd()
                if DIAG_NOP.get(G.ph): k(f"s_nop {DIAG_NOP[G.ph]}")
            elif not (skip and m % skip == skip - 1):
                rok = m < self.stop and self.ring.can_issue()
                if xq.n < xq.total and (xq.n - cur < look or not (rok or (misc and m >= misc_from))): xq.issue_n(1)
                elif misc and m >= misc_from: misc.pop(0)()
                elif rok: self.ring.issue()
            if filler: filler(m)
        assert not misc

def stats_emitters(k, vt, res):
    k(f"s_lshl_b32 s{sS0}, s{sRB}, 12\ns_add_u32 s{sS0}, s{sS0}, {SX}")
    def mk(i):
        def f(): res['t'] = k.vm(f"buffer_load_dwordx4 {vr(vt+4*i)}, v{vL16}, {srd(sWS)}, s{sS0} offen offset:{i*KB} sc1")
        return f
    return [mk(i) for i in range(4)]

NTREE = 14
def fin_stats(vt, vext, vrstd):
    ins = []
    n = 8
    while n > 1:
        h = n // 2
        for i in range(h):
            ins.append(f"v_add_f32 v{vt+2*i}, v{vt+2*i}, v{vt+2*(i+h)}")
            ins.append(f"v_add_f32 v{vt+2*i+1}, v{vt+2*i+1}, v{vt+2*(i+h)+1}")
        n = h
    a, b, c, d = vt, vt+1, vt+2, vt+3
    ins += [f"v_mov_b32 v{c}, v{a}", f"v_mov_b32 v{d}, v{b}",
            f"v_permlane32_swap_b32 v{a}, v{c}", f"v_permlane32_swap_b32 v{b}, v{d}",
            f"v_add_f32 v{a}, v{a}, v{c}", f"v_add_f32 v{b}, v{b}, v{d}",
            f"v_mul_f32 v{a}, {hex(f2u(-1.0/512))}, v{a}",
            f"v_mul_f32 v{b}, {hex(f2u(1.0/512))}, v{b}",
            f"v_fma_f32 v{b}, -v{a}, v{a}, v{b}",
            f"v_max_f32 v{b}, 0, v{b}",
            f"v_add_f32 v{b}, {hex(f2u(1e-5))}, v{b}",
            f"v_rsq_f32 v{vrstd}, v{b}",
            f"v_cvt_pk_bf16_f32 v{vext}, v{a}, v{a}",
            f"v_and_b32 v{c}, 0xffff0000, v{vext}",
            f"v_sub_f32 v{c}, v{a}, v{c}",
            f"v_cvt_pk_bf16_f32 v{vext+1}, v{c}, 0",
            f"v_mov_b32 v{vext+2}, v{vext}", f"v_mov_b32 v{vext+3}, v{vext+1}"]
    return ins

def poll(k, vaddr, vpd, sleep=0):
    l = k.newlabel('poll')
    k(f"s_mov_b32 s{sSPIN}, 0x40000")
    k.label(l)
    k.vm(f"buffer_load_dwordx2 {vr(vpd,2)}, v{vaddr}, {srd(sWS)}, s{sF} offen sc1")
    k(f"s_sub_u32 s{sSPIN}, s{sSPIN}, 1")
    k("s_cbranch_scc1 L_abort")
    k.wait_all(lg=False)
    k(f"v_cmp_ne_u64 vcc, s[{sTAG}:{sTAG+1}], {vr(vpd,2)}")
    k(f"s_cbranch_vccnz {l}")
class APoll:
    def __init__(self, k, loads, cmp, sleep=0):
        self.k = k; self.loads = loads; self.cmp = cmp; self.sleep = sleep
    def issue(self):
        for x in self.loads: self.t = self.k.vm(x)
    def check(self):
        k = self.k
        l = k.newlabel('ap'); ok = k.newlabel('apok')
        k.wait(vm=self.t)
        k(self.cmp)
        k(f"s_cbranch_vccnz {l}")
        k.label(ok)
        G.far += [f"{l}:", f"s_mov_b32 s{sSPIN}, 0x40000", f"{l}_l:"] + list(self.loads) + [
            f"s_sub_u32 s{sSPIN}, s{sSPIN}, 1", "s_cbranch_scc1 L_abort", "s_waitcnt vmcnt(0)", self.cmp,
            f"s_cbranch_vccnz {l}_l", f"s_branch {ok}"]
def apoll1(k, vaddr, vpd, soff, sleep=0):
    return APoll(k, [f"buffer_load_dwordx2 {vr(vpd,2)}, v{vaddr}, {srd(sWS)}, s{soff} offen sc1"],
                 f"v_cmp_ne_u64 vcc, s[{sTAG}:{sTAG+1}], {vr(vpd,2)}", sleep)
def poll16(k):
    k("v_and_b32 v13, 15, v0\nv_lshlrev_b32 v13, 3, v13")
    poll(k, 13, 14)

def publish_local(k, last_store, force_global=False):
    k(f"v_mov_b32 v14, s{sTAG}\nv_mov_b32 v15, s{sTAG+1}")
    if force_global:
        k.wait(vm=last_store)
        k.vm(f"buffer_store_dwordx2 v[14:15], off, {srd(sWS)}, s{sF} sc1")
        return
    slow = k.newlabel('slow'); join = k.newlabel('join')
    k(f"s_cmp_eq_u32 s{sMODE}, 0")
    k(f"s_cbranch_scc1 {slow}")
    k.wait(vm=last_store)
    k.vm(f"buffer_store_dwordx2 v[14:15], off, {srd(sWS)}, s{sF}")
    k.label(join)
    G.far += [f"{slow}:", "s_waitcnt vmcnt(0)", "buffer_wbl2 sc1", "s_waitcnt vmcnt(0)",
              f"buffer_store_dwordx2 v[14:15], off, {srd(sWS)}, s{sF} sc1", f"s_branch {join}"]
def publish_wg(k, last_store, xid=False, barrier=True):
    l = k.newlabel('pw')
    k(f"v_mov_b32 v13, 0\nv_mov_b32 v14, s{sTAG}\nv_mov_b32 v15, s{sTAG+1}")
    k.wait(vm=last_store)
    if barrier: k("s_barrier")
    k(f"s_cmp_lg_u32 s{sW}, 0\ns_cbranch_scc1 {l}")
    k("s_mov_b64 exec, 1")
    if xid:
        k(f"v_xor_b32 v12, s{sXCC}, v14\nv_mov_b32 v13, v15")
        k(f"buffer_store_dwordx4 v[12:15], v{vL16}, {srd(sWS)}, s{sF} offen sc1")
    else:
        k(f"buffer_store_dwordx2 v[14:15], v13, {srd(sWS)}, s{sF} offen sc1")
    k("s_mov_b64 exec, -1")
    k.label(l)

def rb_128(k):
    k(f"s_lshl_b32 s{sT0}, s{sC4}, 2\ns_lshl_b32 s{sRB}, s{sG}, 3\ns_add_u32 s{sRB}, s{sRB}, s{sT0}\ns_add_u32 s{sRB}, s{sRB}, s{sW}")

def store_x(k, acc, pk, L, p, ring=None):
    k(f"s_add_u32 s{sT1}, s{sDST}, {XF}")
    k.vm(f"buffer_store_dwordx4 {vr(pk)}, v{vL16}, {srd(sWS)}, s{sT1} offen")
    td = k.vm(f"buffer_store_dwordx4 {vr(pk+4)}, v{vL16}, {srd(sWS)}, s{sT1} offen offset:1024")
    mark(k, 'f_xs')
    k(f"v_add_f32 v10, v{acc}, v{acc+1}\nv_mul_f32 v11, v{acc}, v{acc}\nv_add_f32 v8, v{acc+2}, v{acc+3}\nv_mul_f32 v9, v{acc+1}, v{acc+1}")
    k(f"v_fmac_f32 v11, v{acc+2}, v{acc+2}\nv_fmac_f32 v9, v{acc+3}, v{acc+3}")
    for i in range(4, 16, 2):
        k(f"v_add_f32 v10, v10, v{acc+i}\nv_fmac_f32 v11, v{acc+i}, v{acc+i}\nv_add_f32 v8, v8, v{acc+i+1}\nv_fmac_f32 v9, v{acc+i+1}, v{acc+i+1}")
        if ring and i in (4, 10): ring.issue_n(ST_PRE)
    k("v_add_f32 v10, v10, v8\nv_add_f32 v11, v11, v9\nv_mov_b32 v8, v10\nv_mov_b32 v9, v11")
    k("v_permlane32_swap_b32 v10, v8\nv_permlane32_swap_b32 v11, v9\nv_add_f32 v10, v10, v8\nv_add_f32 v11, v11, v9")
    k("s_mov_b32 exec_hi, 0")
    ts = k.vm(f"buffer_store_dwordx2 v[10:11], v{vL16}, {srd(sWS)}, s{sSD} offen")
    k("s_mov_b64 exec, -1")
    k(f"s_lshr_b32 s{sF}, s{sDST}, 8\ns_add_u32 s{sF}, s{sF}, {FLOC(L, p)}")
    mark(k, 'f_ss')
    if SPLIT_ST:
        publish_local(k, td)
        k(f"s_add_u32 s{sF}, s{sF}, {FLOC(L, 6 if p == 1 else 7) - FLOC(L, p)}")
    return ts
def stats_poll(k, delta):
    if not SPLIT_ST: return []
    k(f"s_add_u32 s{sF}, s{sF}, {delta}")
    ap = apoll1(k, 13, 14, sF)
    return ap

def rowmajor_addr(k, va, s_out):
    k(f"v_and_b32 v{va}, 31, v0\nv_lshlrev_b32 v{va}, 10, v{va}\nv_bfe_u32 v{va+1}, v0, 5, 1\nv_lshlrev_b32 v{va+1}, 4, v{va+1}\nv_add_u32 v{va}, v{va}, v{va+1}")
    k(f"s_and_b32 s{s_out}, s{sDST}, 0xffff8000\ns_bfe_u32 s{sT3}, s{sDST}, 0x5000a\ns_lshl_b32 s{sT3}, s{sT3}, 5\ns_add_u32 s{s_out}, s{s_out}, s{sT3}")

sU = 96
def pack_decode(k):
    nm = "pk"; u = f"s{sU}"
    k(f"s_min_u32 s83, {u}, 231")
    u = "s83"
    k(f"s_and_b32 s90, s{sW}, 1\ns_lshr_b32 s91, s{sW}, 1")
    k(f"s_cmp_lt_u32 {u}, 48\ns_cbranch_scc1 {nm}_q")
    k(f"s_cmp_lt_u32 {u}, 160\ns_cbranch_scc1 {nm}_u")
    k(f"s_cmp_lt_u32 {u}, 176\ns_cbranch_scc1 {nm}_o")
    k(f"s_sub_u32 s84, {u}, 176\ns_lshl_b32 s84, s84, 2\ns_add_u32 s84, s84, s{sW}")
    k("s_and_b32 s85, s84, 15\ns_lshr_b32 s86, s84, 4")
    k("s_lshl_b32 s87, s85, 6")
    k("s_add_u32 s74, s72, s87\ns_addc_u32 s75, s73, 0\ns_mov_b32 s76, s74\ns_mov_b32 s77, s75")
    k("s_mov_b32 s78, 1024\ns_lshl_b32 s79, s86, 7")
    k(f"s_mul_i32 s80, s85, 14\ns_add_u32 s80, s80, s86\ns_lshl_b32 s80, s80, 13\ns_add_u32 s80, s80, {WD}\ns_mov_b32 s81, 1024\ns_mov_b32 s82, {DUMP}")
    k(f"s_branch {nm}_go")
    k.label(f"{nm}_o")
    k(f"s_sub_u32 s85, {u}, 160\ns_lshr_b32 s88, s85, 3\ns_and_b32 s85, s85, 7")
    k("s_lshl_b32 s87, s85, 1\ns_add_u32 s87, s87, s90\ns_lshl_b32 s87, s87, 6")
    k("s_add_u32 s74, s66, s87\ns_addc_u32 s75, s67, 0\ns_mov_b32 s76, s74\ns_mov_b32 s77, s75")
    k("s_mov_b32 s78, 1024\ns_lshl_b32 s79, s88, 1\ns_add_u32 s79, s79, s91\ns_lshl_b32 s79, s79, 7")
    k("s_lshl_b32 s89, s91, 15\ns_xor_b32 s90, s90, s88\ns_lshl_b32 s88, s88, 1\ns_add_u32 s90, s90, s88\ns_lshl_b32 s90, s90, 10")
    k(f"s_mul_i32 s80, s85, {WO_STR}\ns_add_u32 s80, s80, s89\ns_add_u32 s80, s80, s90\ns_add_u32 s80, s80, {WO}")
    k(f"s_mov_b32 s81, 4096\ns_mov_b32 s82, {DUMP}")
    k(f"s_branch {nm}_go")
    k.label(f"{nm}_u")
    k(f"s_sub_u32 s85, {u}, 48\ns_mul_i32 s84, s85, 2341\ns_lshr_b32 s84, s84, 16\ns_mul_i32 s86, s84, 28\ns_sub_u32 s85, s85, s86")
    k(f"s_lshl_b32 s85, s85, 2\ns_add_u32 s85, s85, s{sW}\ns_lshl_b32 s87, s85, 5")
    k("s_add_u32 s74, s68, s87\ns_addc_u32 s75, s69, 0")
    k("s_add_u32 s76, s70, s87\ns_addc_u32 s77, s71, 0\ns_sub_u32 s76, s76, 32\ns_subb_u32 s77, s77, 0")
    k("s_mov_b32 s78, 3584")
    k("s_mul_i32 s86, s85, 9363\ns_lshr_b32 s86, s86, 16\ns_mul_i32 s88, s86, 7\ns_sub_u32 s88, s85, s88")
    k(f"s_mul_i32 s91, s86, {WU_STR}\ns_add_u32 s91, s91, {WU}\ns_lshl_b32 s89, s88, 10\ns_add_u32 s91, s91, s89")
    k(f"s_cmp_lt_u32 s88, 5\ns_cselect_b32 s89, 3, 5\ns_lshl_b32 s89, s89, 15")
    k(f"s_cmp_lt_u32 s88, 3\ns_cselect_b32 s81, 3, 2\ns_cselect_b32 s89, 0, s89\ns_lshl_b32 s81, s81, 10\ns_add_u32 s91, s91, s89")
    k(f"s_branch {nm}_ext")
    k.label(f"{nm}_q")
    k(f"s_cmp_ge_u32 {u}, 24\ns_cselect_b32 s84, 2, 0\ns_cselect_b32 s86, 24, 0\ns_add_u32 s84, s84, s91\ns_sub_u32 s85, {u}, s86")
    k("s_lshl_b32 s85, s85, 1\ns_add_u32 s85, s85, s90\ns_and_b32 s86, s85, 15\ns_lshr_b32 s88, s85, 4")
    k("s_lshl_b32 s87, s85, 6\ns_lshl_b32 s89, s88, 10")
    k("s_add_u32 s74, s64, s87\ns_addc_u32 s75, s65, 0\ns_mov_b32 s76, s74\ns_mov_b32 s77, s75")
    k("s_mov_b32 s78, 3072")
    k(f"s_sub_u32 s89, s89, 1024\ns_cmp_eq_u32 s88, 0\ns_cselect_b32 s89, {66*KB}, s89\ns_cselect_b32 s81, 1, 2\ns_lshl_b32 s81, s81, 10")
    k(f"s_mul_i32 s91, s86, {WQ_STR}\ns_add_u32 s91, s91, s89\ns_add_u32 s91, s91, {WQ}")
    k.label(f"{nm}_ext")
    k("s_lshl_b32 s79, s84, 7")
    k("s_lshl_b32 s89, s81, 5\ns_add_u32 s82, s91, s89\ns_lshr_b32 s89, s84, 1\ns_lshl_b32 s89, s89, 9\ns_add_u32 s82, s82, s89")
    k("s_and_b32 s89, s84, 1\ns_lshl_b32 s89, s89, 3\ns_add_u32 s82, s82, s89")
    k("s_lshl_b32 s89, s81, 3\ns_mul_i32 s89, s89, s84\ns_add_u32 s80, s91, s89")
    k.label(f"{nm}_go")
    k(f"s_cmp_ge_u32 s{sU}, 232\ns_cselect_b32 s80, {DUMP}, s80")
    k("v_bfe_u32 v4, v0, 2, 4\nv_add_u32 v4, s79, v4\nv_mul_lo_u32 v4, v4, s78")
    k("v_and_b32 v13, 3, v0\nv_lshlrev_b32 v13, 4, v13\nv_add_u32 v4, v4, v13")
    k(f"s_lshl_b32 s83, s78, 4")
    if PK_Q0: k(f"s_lshl_b32 s84, s{sW}, 13\ns_add_u32 s84, s84, {64*KB}")
    elif PK_EARLY: k(f"s_lshl_b32 s84, s{sW}, 13\ns_add_u32 s84, s84, {4*KB}")
    else: k(f"s_lshl_b32 s84, s{sW}, 14\ns_add_u32 s84, s84, {96*KB}")
    k("s_mov_b32 s86, s83\ns_mov_b32 s87, 0")
    k("v_and_b32 v13, 2, v0\nv_cmp_eq_u32 vcc, 0, v13")
    k("v_mov_b32 v14, s76\nv_mov_b32 v13, s74\nv_cndmask_b32 v14, v14, v13, vcc\nv_mov_b32 v15, s77\nv_mov_b32 v13, s75\nv_cndmask_b32 v15, v15, v13, vcc")
    k("v_add_co_u32 v4, vcc, v4, v14\nv_addc_co_u32 v5, vcc, 0, v15, vcc")
def pack_issue(k, i, sbase):
    k(f"s_add_u32 m0, s{sbase}, {i*KB}")
    if i: k("v_lshl_add_u64 v[4:5], v[4:5], 0, s[86:87]")
    return k.vm("global_load_lds_dwordx4 v[4:5], off")
def tr_addr(k, v, t):
    k(f"v_bfe_u32 v{v}, v0, 5, 1\nv_lshlrev_b32 v{v}, 9, v{v}")
    k(f"v_bfe_u32 v{t}, v0, 2, 2\nv_lshlrev_b32 v{t}, 6, v{t}\nv_add_u32 v{v}, v{v}, v{t}")
    k(f"v_bfe_u32 v{t}, v0, 4, 1\nv_lshlrev_b32 v{t}, 5, v{t}\nv_add_u32 v{v}, v{v}, v{t}")
    k(f"v_and_b32 v{t}, 1, v0\nv_lshlrev_b32 v{t}, 4, v{t}\nv_add_u32 v{v}, v{v}, v{t}")
    k(f"v_bfe_u32 v{t}, v0, 1, 1\nv_lshlrev_b32 v{t}, 3, v{t}\nv_add_u32 v{v}, v{v}, v{t}")
def ext_pair(src, dst, t0):
    return [f"v_mov_b32 v{t0}, v{src}", f"v_permlane32_swap_b32 v{src}, v{t0}", f"v_add_f32 v{src}, v{src}, v{t0}",
            f"v_cvt_pk_bf16_f32 v{dst+1}, v{src}, 0", f"v_lshlrev_b32 v{t0}, 16, v{dst+1}", f"v_sub_f32 v{src}, v{src}, v{t0}",
            f"v_cvt_pk_bf16_f32 v{dst}, v{t0}, v{src}"]
class Pack:
    def __init__(self, k): self.k = k; self.r = {}
    def issue(self, *ii):
        for i in ii: self.d = pack_issue(self.k, i, 84)
    def reads(self, *ii):
        k = self.k
        if ii[0] == 0:
            k("v_accvgpr_read_b32 v4, a212")
            k.wait(vm=self.d)
        for i in ii:
            k.lg(f"ds_read_b64_tr_b16 {ar(160+4*i,2)}, v4 offset:{i*KB}")
            self.r[i] = k.lg(f"ds_read_b64_tr_b16 {ar(162+4*i,2)}, v4 offset:{i*KB+256}")
    def csum(self, i):
        self.k.wait(lg=self.r[i])
        self.k(f"v_mfma_f32_32x32x16_bf16 {ar(196,16)}, {ar(192)}, {ar(160+4*i)}, {'0' if i == 0 else ar(196,16)}")
    def stores(self, *ii):
        k = self.k
        k.wait(lg=self.r[ii[-1]])
        for i in ii:
            k.vm(f"buffer_store_dwordx4 {ar(160+4*i)}, v{vL16}, {srd(sWS)}, s80 offen sc1")
            k("s_add_u32 s80, s80, s81")
    def ext(self):
        k = self.k
        k("v_accvgpr_read_b32 v13, a196")
        k("v_cvt_pk_bf16_f32 v15, v13, 0\nv_lshlrev_b32 v14, 16, v15\nv_sub_f32 v13, v13, v14\nv_cvt_pk_bf16_f32 v14, v14, v13")
        k("s_mov_b32 exec_hi, 0")
        self.s = k.vm(f"buffer_store_dwordx2 v[14:15], v{vL16}, {srd(sWS)}, s82 offen sc1")
        k("s_mov_b64 exec, -1")
    def pub(self):
        k = self.k
        k(f"s_lshl_b32 s{sF}, s{sU}, 7\ns_add_u32 s{sF}, s{sF}, {FPK}")
        publish_wg(k, self.s, xid=True)
    def schedule(self, job):
        t = PK_T0
        if not PK_EARLY:
            for i in range(4): job(t + i, lambda i=i: self.issue(2*i, 2*i+1))
            t += 4 + PK_GAP
        if PK_WIN2:
            job(t, self.pub)
            return t
        if PK_EARLY and PK_SP:
            for i in range(8): job(t + PK_SP*i, lambda i=i: self.stores(i))
            job(t + 8*PK_SP, self.ext)
            job(t + 8*PK_SP + PK_GAP2, self.pub)
            return t + 8*PK_SP + PK_GAP2
        if PK_EARLY:
            for i in range(4): job(t + i, lambda i=i: self.stores(2*i, 2*i+1))
            job(t + 4, self.ext)
            job(t + 4 + PK_GAP2, self.pub)
            return t + 4 + PK_GAP2
        job(t, lambda: self.reads(0, 1, 2, 3)); job(t + 1, lambda: self.reads(4, 5, 6, 7))
        for i in range(4):
            job(t + 2 + i, lambda i=i: self.stores(2*i, 2*i+1))
            job(t + 1 + i, lambda i=i: self.csum(2*i), e=14)
            job(t + 2 + i, lambda i=i: self.csum(2*i+1), e=0)
        job(t + 6, self.ext)
        job(t + 6 + PK_GAP2, self.pub)
        return t + 6 + PK_GAP2
def qkv_consts(vT, vRS, vR):
    return [f"v_cvt_pk_bf16_f32 v{vT}, v{vRS}, 0", f"v_lshlrev_b32 v{vT+1}, 16, v{vT}", f"v_sub_f32 v{vT+2}, v{vRS}, v{vT+1}",
            f"v_cvt_pk_bf16_f32 v{vT}, v{vT+1}, v{vT+2}", f"v_mov_b32 v{vT+1}, 0", f"v_mov_b32 v{vT+2}, 0", f"v_mov_b32 v{vT+3}, 0",
            f"v_cmp_gt_u32 vcc, 512, v{vL16}", f"v_mov_b32 v{vT+4}, 0x3f803f80", f"v_cndmask_b32 v{vT+4}, 0, v{vT+4}, vcc",
            f"v_mov_b32 v{vT+5}, 0", f"v_mov_b32 v{vT+6}, 0", f"v_mov_b32 v{vT+7}, 0",
            f"v_mul_f32 v{vRS+1}, {hex(f2u(0.25*LOG2E))}, v{vRS}",
            "v_bfe_u32 v12, v0, 4, 1", "v_lshlrev_b32 v12, 17, v12", "v_and_b32 v13, 15, v0", "v_lshlrev_b32 v13, 4, v13", "v_add_u32 v12, v12, v13",
            "v_bfe_u32 v13, v0, 5, 1", "v_lshlrev_b32 v13, 8, v13", "v_add_u32 v12, v12, v13",
            f"v_mfma_f32_32x32x16_bf16 {vr(vR,16)}, {vr(vT)}, {vr(vT+4)}, 0"]
def qk_tile(a, dst, sc, fl, p0):
    o = []
    sb, hs = (sB, KB) if dst == QF else (sCc, 128*KB)
    for half in range(2):
        p = p0 + 4*half
        for j in range(4):
            r = a + 8*half + 2*j
            o += [f"v_mul_f32 v{r}, v{r}, v{sc}", f"v_mul_f32 v{r+1}, v{r+1}, v{sc}", f"v_cvt_pk_bf16_f32 v{p+j}, v{r}, v{r+1}"]
        o += [f"s_add_u32 s{sT2}, s{sb}, {dst + half*hs}", f"buffer_store_dwordx4 {vr(p)}, v{vL16}, {srd(sWS)}, s{sT2} offen{fl}"]
    return o
def v_tile(a, L, vR, p0):
    o = [f"s_add_u32 s{sT2}, s{sCc}, {KVF(L) + KB}"]
    for u in range(2):
        p = p0 + 4*u
        for j in range(4):
            r = a + 8*u + 2*j; q = vR + 8*u + 2*j
            o += [f"v_mul_f32 v{r}, v{r}, v{q}", f"v_mul_f32 v{r+1}, v{r+1}, v{q+1}", f"v_cvt_pk_bf16_f32 v{p+j}, v{r}, v{r+1}"]
        o.append(f"buffer_store_dwordx4 {vr(p)}, v12, {srd(sWS)}, s{sT2} offen offset:{u*512} sc1")
    return o
def kv_flag(k, L, tkv):
    k(f"s_lshl_b32 s{sF}, s{sA}, 4\ns_lshr_b32 s{sT1}, s{sRB}, 2\ns_add_u32 s{sF}, s{sF}, s{sT1}\ns_lshl_b32 s{sF}, s{sF}, 7\ns_add_u32 s{sF}, s{sF}, {FKV(L)}")
    publish_wg(k, tkv)
def q_flag(k, L, tq):
    k(f"s_lshr_b32 s{sF}, s{sRB}, 3\ns_lshl_b32 s{sF}, s{sF}, 4\ns_add_u32 s{sF}, s{sF}, s{sA}\ns_lshl_b32 s{sF}, s{sF}, 3\ns_and_b32 s{sT1}, s{sRB}, 7\ns_add_u32 s{sF}, s{sF}, s{sT1}\ns_lshl_b32 s{sF}, s{sF}, 3\ns_add_u32 s{sF}, s{sF}, {FLOC(L-1,5)}")
    publish_local(k, tq, force_global=(L == 0))

WARM = True
LIN_AT = 99
LIN_U = True
Q0_ROT = True
Q0_MARKS = False
Q0_MARKJ = ()
Q0_SCHED = ((3, 4), (5,), (6,), (7,), (), (), (), ())
LATE_AT = 1
Q0_UP = 3
PK_AT = (3, 3, 4, 4, 5, 5, 6, 6)
def ph_qkv0(k, late):
    vX, vACC, vST, vEXT, vRS, vT, vR = 16, 144, 192, 8, 6, 224, 232
    vXA, vWA, vXR, vTR, vTW, vCS, vCW, vONE = 10, 12, 196, 200, 202, 204, 208, 220
    sXS, sWR, sXL, sWL = 60, 56, sD, sE
    k(f"s_lshr_b32 s{sRB}, s{sG}, 1\ns_lshl_b32 s{sRB}, s{sRB}, 2\ns_add_u32 s{sRB}, s{sRB}, s{sC3}\ns_lshl_b32 s{sRB}, s{sRB}, 2\ns_add_u32 s{sRB}, s{sRB}, s{sW}")
    k(f"s_and_b32 s{sA}, s{sG}, 1\ns_lshl_b32 s{sA}, s{sA}, 3\ns_and_b32 s{sT0}, s{sC}, 7\ns_add_u32 s{sA}, s{sA}, s{sT0}")
    k(f"v_bfe_u32 v{vXA}, v0, 3, 3\nv_lshlrev_b32 v{vXA}, 10, v{vXA}\nv_and_b32 v13, 7, v0\nv_bfe_u32 v14, v0, 4, 2\nv_xor_b32 v13, v13, v14")
    k(f"v_lshlrev_b32 v13, 4, v13\nv_add_u32 v{vXA}, v{vXA}, v13\nv_xor_b32 v{vXA+1}, 64, v{vXA}")
    k(f"v_bfe_u32 v{vWA}, v0, 2, 4\nv_mul_u32_u24 v{vWA}, 3072, v{vWA}\nv_and_b32 v13, 3, v0\nv_lshlrev_b32 v13, 4, v13\nv_add_u32 v{vWA}, v{vWA}, v13")
    k(f"s_lshl_b32 s{sX}, s{sRB}, 15")
    k(f"s_mul_i32 s{sX2}, s{sW}, 49152\ns_lshl_b32 s{sT0}, s{sA}, 6\ns_add_u32 s{sX2}, s{sX2}, s{sT0}")
    k(f"s_lshl_b32 s{sXL}, s{sW}, 14\ns_add_u32 s{sXL}, s{sXL}, {96*KB}\ns_mul_i32 s{sWL}, s{sW}, 3072")
    k("s_waitcnt lgkmcnt(0)")
    if Q0_MARKS: mark(k, 'karg')
    k(f"s_mov_b32 s{sWR}, s64\ns_and_b32 s{sWR+1}, s65, 0xffff\ns_mov_b32 s{sWR+2}, {512*3072}\ns_mov_b32 s{sWR+3}, 0x20000")
    k(f"s_and_b32 s{sXS+1}, s{sXS+1}, 0xffff\ns_mov_b32 s{sXS+2}, {2*MB}\ns_mov_b32 s{sXS+3}, 0x20000")
    ct = {}; cn = {j: 0 for j in range(8)}
    k(f"s_lshl_b32 s{sCc}, s{sC3}, 1\ns_add_u32 s{sCc}, s{sCc}, s{sC}")
    def rot(j):
        k(f"s_add_u32 s{sT3}, s{sCc}, {j}\ns_and_b32 s{sT3}, s{sT3}, {7 if Q0_ROT else 0}")
        if not Q0_ROT: k(f"s_mov_b32 s{sT3}, {j}")
        k(f"s_lshl_b32 s{sS0}, s{sT3}, 7\ns_add_u32 s{sS0}, s{sS0}, s{sX}")
        k(f"s_mul_i32 s{sS1}, s{sT3}, {4*49152}\ns_add_u32 s{sS1}, s{sS1}, s{sX2}")
    def ldW(j, t):
        k(f"s_add_u32 m0, s{sWL}, {(12*j + t)*KB}\ns_add_u32 s{sT2}, s{sS1}, {((t+1) % 3)*1024}")
        ct[j] = k.vm(f"buffer_load_dwordx4 v{vWA}, {srd(sWR)}, s{sT2} offen lds"); cn[j] += 1
    def ldX(j, i):
        if i == 0: rot(j)
        k(f"s_add_u32 m0, s{sXL}, {(j & 3)*4*KB + i*KB}\ns_add_u32 s{sT2}, s{sS0}, {i*8192}")
        ct[j] = k.vm(f"buffer_load_dwordx4 v{vXA + (i & 1)}, {srd(sXS)}, s{sT2} offen lds"); cn[j] += 1
    def chunk_loads(j):
        return [lambda i=i: ldX(j, i) for i in range(4)] + [lambda t=t: ldW(j, t) for t in range(3)]
    for f in chunk_loads(0): f()
    if Q0_MARKS: mark(k, 'up0')
    late(k)
    pack_decode(k)
    k(f"s_cmp_eq_u32 s{sW}, 0\ns_cselect_b64 s[90:91], s[68:69], s[70:71]")
    k(f"s_cmp_eq_u32 s{sW}, 2\ns_cselect_b64 s[90:91], s[72:73], s[90:91]")
    k(f"s_cmp_eq_u32 s{sW}, 3\ns_cselect_b64 s[90:91], s[66:67], s[90:91]\ns_cselect_b32 s{sT0}, 16, 56")
    k(f"s_mul_i32 s{sT1}, s{sT0}, s{sU}\ns_sub_u32 s{sT0}, s{sT0}, 1")
    k(f"v_and_b32 v254, 63, v0\nv_min_u32 v254, s{sT0}, v254\nv_add_u32 v254, s{sT1}, v254\nv_lshlrev_b32 v254, 7, v254")
    pk = G.pk = Pack(k)
    k(f"s_and_b32 s{sT0}, s{sC}, 7\ns_and_b32 s{sT1}, s{sC}, 15")
    k("v_and_b32 v13, 15, v0\nv_min_u32 v14, 13, v13")
    k(f"s_lshr_b32 s{sT2}, s{sT0}, 1\ns_add_u32 s{sT2}, s{sT2}, 176\nv_lshl_add_u32 v252, v14, 2, s{sT2}")
    k(f"s_mul_i32 s{sT2}, s{sT1}, 7\ns_add_u32 s{sT3}, s{sT2}, 6\ns_lshr_b32 s{sT2}, s{sT2}, 2\ns_lshr_b32 s{sT3}, s{sT3}, 2")
    k(f"v_lshrrev_b32 v14, 2, v13\nv_add_u32 v14, s{sT2}, v14\nv_min_u32 v14, s{sT3}, v14\nv_and_b32 v15, 3, v13\nv_mul_u32_u24 v15, 28, v15")
    k("v_add3_u32 v14, v14, v15, 48")
    k("v_and_b32 v15, 16, v0\nv_cmp_ne_u32 vcc, 0, v15\nv_cndmask_b32 v252, v252, v14, vcc")
    k(f"s_add_u32 s{sT0}, s{sT0}, 160\nv_and_b32 v14, 1, v13\nv_lshl_add_u32 v251, v14, 3, s{sT0}")
    k(f"s_lshr_b32 s{sT1}, s{sT1}, 1\nv_mul_u32_u24 v14, 24, v14\nv_lshrrev_b32 v15, 1, v13\nv_min_u32 v15, 2, v15\nv_lshlrev_b32 v15, 3, v15")
    k(f"v_add3_u32 v14, v14, v15, s{sT1}")
    k("v_cndmask_b32 v251, v251, v14, vcc")
    k(f"v_cmp_gt_u32 vcc, 512, v{vL16}\nv_cndmask_b32 v252, v251, v252, vcc\nv_lshlrev_b32 v252, 7, v252\nv_accvgpr_write_b32 a213, v252")
    if WARM:
        k("s_getpc_b64 s[88:89]")
        k(f"s_lshl_b32 s{sT0}, s{sC}, 1\ns_add_u32 s{sT0}, s{sT0}, s{sW}\ns_and_b32 s{sT0}, s{sT0}, 63\ns_lshl_b32 s{sT0}, s{sT0}, 10")
        k(f"v_add_u32 v245, s{sT0}, v{vL16}")
        k(f"v_min_u32 v244, {(WS_PAGES-1)*16}, v{vL16}\nv_lshlrev_b32 v244, 17, v244")
        k(f"s_cmp_eq_u32 s{sW}, 1\ns_cselect_b64 s[88:89], s[{sAUX}:{sAUX+1}], s[88:89]")
        k(f"s_cmp_eq_u32 s{sW}, 0\ns_cselect_b64 s[88:89], s[{sWS}:{sWS+1}], s[88:89]\ns_cselect_b64 vcc, -1, 0")
        k("v_cndmask_b32 v245, v245, v244, vcc")
    if PK_Q0: pk.issue(*range(8))
    k(f"v_and_b32 v13, 31, v0\nv_bfe_u32 v14, v0, 1, 3\nv_bfe_u32 v15, v0, 5, 1\nv_xor_b32 v14, v14, v15\nv_lshlrev_b32 v14, 4, v14\nv_lshl_add_u32 v13, v13, 7, v14")
    for e in range(4):
        k(f"v_xor_b32 v{vXR+e}, {e*32}, v13\nv_add_u32 v{vXR+e}, s{sXL}, v{vXR+e}")
    tr_addr(k, vTR, 13)
    k(f"v_add_u32 v{vTR+1}, {48*KB}, v{vTR}\nv_add_u32 v{vTW}, s{sWL}, v{vTR}\nv_add_u32 v{vTW+1}, {48*KB}, v{vTW}")
    k(f"v_mov_b32 v{vONE}, 0x3f803f80\nv_add_u32 v255, s84, v{vTR}\nv_accvgpr_write_b32 a212, v255")
    for r in range(192, 196): k(f"v_accvgpr_write_b32 a{r}, v{vONE}")
    for r in list(range(vST, vST+4)) + list(range(vCS, vCS+3)): k(f"v_mov_b32 v{r}, 0")
    def reads(j):
        o = []
        for e in range(4):
            o.append(f"ds_read_b128 {vr(vX + 16*j + 4*e)}, v{vXR+e} offset:{(j & 3)*4*KB}")
        for t in range(3):
            off = (12*(j & 3) + t)*KB
            o.append(f"ds_read_b64_tr_b16 {vr(vCW+4*t,2)}, v{vTW + (j >> 2)} offset:{off}")
            o.append(f"ds_read_b64_tr_b16 {vr(vCW+4*t+2,2)}, v{vTW + (j >> 2)} offset:{off+256}")
        for b in range(12):
            off = (12*(j & 3) + b)*KB; r = 48*(j & 1) + 4*b
            o.append(f"ds_read_b64_tr_b16 {ar(r,2)}, v{vTR + (j >> 2)} offset:{off}")
            o.append(f"ds_read_b64_tr_b16 {ar(r+2,2)}, v{vTR + (j >> 2)} offset:{off+256}")
        return o
    def dots(j):
        for i in range(16):
            r = vX + 16*j + i
            k(f"v_dot2c_f32_bf16 v{vST + 2*(i & 1)}, v{vONE}, v{r}\nv_dot2c_f32_bf16 v{vST + 1 + 2*(i & 1)}, v{r}, v{r}")
        for i in range(4):
            for t in range(3): k(f"v_dot2c_f32_bf16 v{vCS+t}, v{vONE}, v{vCW+4*t+i}")
    def xid():
        k(f"s_add_u32 s{sTAG}, s{sTAG}, 0x7f4a7c15\ns_addc_u32 s{sTAG+1}, s{sTAG+1}, 0x9e3779b9")
        k("v_mov_b32 v13, 0")
        k("s_mov_b64 exec, 1")
        if FLAG_TOUCH:
            k(f"s_lshl_b32 s{sF}, s{sA}, 4\ns_lshr_b32 s{sT1}, s{sRB}, 2\ns_add_u32 s{sF}, s{sF}, s{sT1}\ns_lshl_b32 s{sF}, s{sF}, 7\ns_add_u32 s{sF}, s{sF}, {FKV(0)}")
            k.vm(f"buffer_load_dword v5, v13, {srd(sWS)}, s{sF} offen sc1")
            k(f"s_lshl_b32 s{sF}, s{sU}, 7\ns_add_u32 s{sF}, s{sF}, {FPK}")
            k.vm(f"buffer_load_dword v5, v13, {srd(sWS)}, s{sF} offen sc1")
        k("s_mov_b64 exec, -1")
    def lin_touch():
        k.vm("global_load_dword v253, v254, s[90:91]")
    side = []
    if Q0_MARKS: mark(k, 'alu')
    if WARM and WARM_AT == 0: k.vm(f"global_load_dword v253, v245, s[88:89]")
    for j in range(1, Q0_UP):
        for f in chunk_loads(j): f()
    if WARM and WARM_AT == 1: k.vm(f"global_load_dword v253, v245, s[88:89]")
    if Q0_MARKS: mark(k, 'iss')
    k.wait(vm=ct[0])
    if Q0_MARKS: mark(k, 'w0')
    k("s_barrier")
    mark(k, 'd0')
    rl = reads(0)
    for x in rl[:10]: t10 = k.lg(x)
    for x in rl[10:]: k.lg(x)
    k.wait(lg=t10)
    dots(0)
    for j in range(8):
        for c_ in Q0_SCHED[j]:
            assert c_ - 4 <= j
            side += chunk_loads(c_)
        if j == 1: side.append(xid)
        if WARM and WARM_AT == j + 2: side.append(lambda: k.vm(f"global_load_dword v253, v245, s[88:89]"))
        if PK_EARLY: side += [lambda i=i: pk.issue(i) for i in range(8) if PK_AT[i] == j]
        if j == LIN_AT and not PK_Q0: side.append(lin_touch)
        if PK_Q0:
            assert all(c_ < 5 or j > PK_RD for c_ in Q0_SCHED[j])
            if j == PK_RD: side += [lambda i=i: pk.reads(2*i, 2*i+1) for i in range(4)]
            if j == PK_ST: side += [lambda i=i: (pk.stores(i), pk.csum(i)) for i in range(4)]
            if j == PK_ST + 1: side += [lambda i=i: (pk.stores(i), pk.csum(i)) for i in range(4, 8)]
            if j == PK_ST + 2: side.append(pk.ext)
        k.wait_all(vm=False)
        rl = []
        if j < 7:
            assert cn[j+1] == 7
            k.wait(vm=ct[j+1]); k("s_barrier")
            if j in Q0_MARKJ: mark(k, f'c{j+1}')
            rl = reads(j + 1)
        t10 = None; nr = 0
        if j == 7:
            tail = f"s_lshr_b32 s{sT0}, s{sW}, 1\ns_lshl_b32 s{sT0}, s{sT0}, 9\ns_and_b32 s{sT1}, s{sW}, 1\ns_lshl_b32 s{sT1}, s{sT1}, 3\ns_add_u32 s{sT0}, s{sT0}, s{sT1}".split('\n')
            tail += [f"v_and_b32 v13, 0x1f0, v{vL16}", f"v_add_u32 v13, s{sT0}, v13"]
            for t in range(3): tail += ext_pair(vCS+t, vCW+2*t, 14) + [f"ds_write_b64 v13, {vr(vCW+2*t,2)} offset:{t*KB}"]
            fin = fin_stats(vST, vEXT, vRS)[NTREE:] + qkv_consts(vT, vRS, vR)
            tail += [f"v_add_f32 v{vST}, v{vST}, v{vST+2}", f"v_add_f32 v{vST+1}, v{vST+1}, v{vST+3}"] + fin[:18]
            tail += ["s_waitcnt lgkmcnt(0)", "s_barrier"] + [f"ds_read_b128 {vr(vCW+4*t)}, v{vL16} offset:{t*KB}" for t in range(3)] + fin[18:]
            tail += f"s_lshl_b32 s{sCc}, s{sA}, 18\ns_lshl_b32 s{sT1}, s{sRB}, 11\ns_add_u32 s{sCc}, s{sCc}, s{sT1}".split('\n')
            tail += f"s_mul_i32 s{sB}, s{sRB}, {112*KB}\ns_lshl_b32 s{sT1}, s{sA}, 11\ns_add_u32 s{sB}, s{sB}, s{sT1}".split('\n')
            assert not side
            n_ = -(-len(tail) // 12)
            side = [lambda c=tail[i:i+n_]: [k(x) for x in c] for i in range(0, len(tail), n_)]
        for b in range(12):
            ks = 4*j + b // 3; t = b % 3
            acc = vr(vACC + 16*t, 16); w = ar(48*(j & 1) + 4*b); x = vr(vX + 4*ks)
            A, B = (x, w) if t == 1 else (w, x)
            k(f"v_mfma_f32_32x32x16_bf16 {acc}, {A}, {B}, {'0' if ks == 0 else acc}")
            if ks == 0 and t == 0: mark(k, 'm0')
            for _ in range(3):
                if rl:
                    t_ = k.lg(rl.pop(0)); nr += 1
                    if nr == 10: t10 = t_
            if side: side.pop(0)()
            if len(side) > 11 - b: side.pop(0)()
        if j < 7:
            assert not rl
            k.wait(lg=t10)
            dots(j + 1)
    while side: side.pop(0)()
    mark(k, 'loop')
    k.wait_all(vm=False)
    for t in range(3):
        c = vCW + 4*t
        acc = vr(vACC + 16*t, 16)
        A, B = (vr(vEXT), vr(c)) if t == 1 else (vr(c), vr(vEXT))
        k(f"v_mfma_f32_32x32x16_bf16 {acc}, {A}, {B}, {acc}")
    t_ = None
    for x in qk_tile(vACC, KVF(0), vRS, " sc1", vX) + v_tile(vACC+16, 0, vR, vX+8) + qk_tile(vACC+32, QF, vRS+1, " sc1", vX+16):
        if x.startswith('buffer'): t_ = k.vm(x)
        else: k(x)
    mark(k, 'st')
    return t_, t_

def ph_qkv(k, L, ring, b0):
    vX, vACC, vST, vEXT, vRS, vT, vR = 16, 144, 192, 8, 6, 224, 232
    rb_128(k)
    k(f"s_and_b32 s{sA}, s{sC}, 15")
    k(f"s_lshl_b32 s{sX}, s{sRB}, 15\ns_add_u32 s{sX}, s{sX}, {XF}")
    set_lds_bases(k)
    QE = QKV_QE
    seq = [(ks, t) for ks in range(33) for t in ((0, 1, 2) if ks < QE else (0, 1))] + [(ks, 2) for ks in range(QE, 33)]
    ops = [dict(b=b0 + (2*ks + t if t < 2 else 66 + ks), bmin=b0, bmax=b0 + 98, xi=(ks if ks < 32 else None), x=(vr(vX+4*ks) if ks < 32 else vr(vEXT)),
                acc=vr(vACC+16*t, 16), swap=(t == 1), first=(ks == 0)) for ks, t in seq]
    xq = XLoader(k, 32, lambda i: vr(vX+4*i), lin_src(k))
    res = {}
    se = stats_emitters(k, vST, res)
    k(f"s_lshl_b32 s{sCc}, s{sA}, 18\ns_lshl_b32 s{sT1}, s{sRB}, 11\ns_add_u32 s{sCc}, s{sCc}, s{sT1}")
    k(f"s_mul_i32 s{sB}, s{sRB}, {112*KB}\ns_lshl_b32 s{sT1}, s{sA}, 11\ns_add_u32 s{sB}, s{sB}, s{sT1}")
    assert ring.issued == ring.total
    g = Gemm(k, ring, ops, {0})
    g.start()
    ring.issue_n(4)
    publish_local(k, G.tx)
    ring.issue_n(4)
    k(f"s_lshl_b32 s{sF}, s{sRB}, 7\ns_add_u32 s{sF}, s{sF}, {FLOC(L-1, 8)}")
    poll16(k)
    aps = stats_poll(k, FLOC(L-1,7) - FLOC(L-1,8))
    fin = fin_stats(vST, vEXT, vRS) + qkv_consts(vT, vRS, vR)
    epi = qk_tile(vACC, KVF(L), vRS, " sc1", vST) + v_tile(vACC+16, L, vR, vST+16)
    nkv = len(epi)
    if KV_LOC:
        epi += [f"s_lshl_b32 s{sE}, s{sA}, 11", f"s_add_u32 s{sE}, s{sE}, s{sB}", f"s_add_u32 s{sE}, s{sE}, {HF + 32*KB}",
                f"buffer_store_dwordx4 {vr(vST)}, v{vL16}, {srd(sWS)}, s{sE} offen",
                f"buffer_store_dwordx4 {vr(vST+4)}, v{vL16}, {srd(sWS)}, s{sE} offen offset:2048",
                "v_lshrrev_b32 v13, 6, v12", "v_and_b32 v13, 0x800, v13", "v_and_b32 v12, 0x1ff, v12", "v_add_u32 v12, v12, v13",
                f"buffer_store_dwordx4 {vr(vST+16)}, v12, {srd(sWS)}, s{sE} offen offset:1024",
                f"buffer_store_dwordx4 {vr(vST+20)}, v12, {srd(sWS)}, s{sE} offen offset:1536"]
    st = dict(i=0, j=0, t=None)
    def put(x):
        if x.startswith('buffer'): st['t'] = k.vm(x)
        else: k(x)
    def filler(m):
        if aps and m == 4: aps.issue()
        if m == 22:
            if aps: aps.check()
            for e in se: e()
        if 44 <= m < 64 + QE:
            if st['i'] == 0: k.wait(vm=res['t'])
            for _ in range(3):
                if st['i'] < len(fin): k(fin[st['i']]); st['i'] += 1
        if m >= 68 + QE:
            for _ in range(QKV_EPI):
                if st['j'] < len(epi): put(epi[st['j']]); st['j'] += 1
    g.run(xq, n0=8, filler=filler)
    while st['j'] < len(epi):
        put(epi[st['j']]); st['j'] += 1
    assert st['i'] == len(fin)
    tkv = st['t']
    for x in qk_tile(vACC + 32, QF, vRS + 1, "", vST+8): put(x)
    mark(k, 'st')
    return tkv, st['t']

def code_touch(k, vd, skip=0):
    if not CODE_TOUCH: return
    k(f"s_getpc_b64 s[{sPC}:{sPC+1}]\ns_add_u32 s{sPC}, s{sPC}, s{sCT}\ns_addc_u32 s{sPC+1}, s{sPC+1}, 0")
    k.vm(f"global_load_dword v{vd}, v{vL16}, s[{sPC}:{sPC+1}] offset:{skip}")

def flag_touch(k, L, va, vd):
    if not FL_TOUCH: return
    k(f"v_bfe_u32 v{va}, v0, 3, 3\nv_lshlrev_b32 v{va}, 6, v{va}\nv_and_or_b32 v{va}, v0, 7, v{va}\nv_lshlrev_b32 v{va}, 7, v{va}")
    k(f"s_lshl_b32 s{sT3}, s{sG}, 10\ns_add_u32 s{sT3}, s{sT3}, {FLOC(L,0)}")
    k.vm(f"buffer_load_dword v{vd}, v{va}, {srd(sWS)}, s{sT3} offen sc1")

def ph_att(k, L, ring, tkv, tq):
    vO, vS0, vKV, aQ = 16, 144, 208, aWB
    NS = 4
    vS = [vS0 + 16*i for i in range(NS)]
    vK, vV, vIDX, vL128 = 6, 7, 8, 9
    sK, sHD = sB, sE
    k(f"s_lshl_b32 s{sHD}, s{sC}, 16")
    k(f"s_lshl_b32 s{sT0}, s{sC}, 17\ns_add_u32 s{sT0}, s{sT0}, s{sW4K}\ns_add_u32 s{sT0}, s{sT0}, {KVF(L)}")
    k("v_and_b32 v10, 0x33, v0\nv_bfe_u32 v11, v0, 2, 1\nv_lshlrev_b32 v11, 3, v11\nv_or_b32 v10, v10, v11")
    k(f"v_bfe_u32 v11, v0, 3, 1\nv_lshlrev_b32 v11, 2, v11\nv_or_b32 v10, v10, v11\nv_lshl_add_u32 v{vK}, v10, 4, s{sT0}")
    k(f"v_and_b32 v10, 15, v0\nv_bfe_u32 v11, v0, 5, 1\nv_lshlrev_b32 v11, 4, v11\nv_add_u32 v10, v10, v11\nv_lshl_add_u32 v{vV}, v10, 4, s{sT0}")
    k(f"v_mov_b32 v{vIDX}, 0xdddddddd\nv_lshlrev_b32 v{vL128}, 3, v{vL16}")
    k(f"s_lshl_b32 s{sK}, s{sG}, 14")
    if L and KV_LOC:
        k(f"s_lshl_b32 s{sT1}, s{sC}, 10\ns_add_u32 s{sT1}, s{sT1}, {32*KB}\ns_sub_u32 s{sT1}, s{sT0}, s{sT1}")
        k(f"v_subrev_u32 v146, s{sT1}, v{vK}\nv_subrev_u32 v147, s{sT1}, v{vV}")
    k("v_and_b32 v10, 27, v0\nv_cmp_eq_u32 vcc, 16, v10\nv_mov_b32 v11, 0x3f803f80\nv_cndmask_b32 v11, 0, v11, vcc")
    k("v_mov_b32 v144, v11")
    k(f"s_lshr_b32 s{sT0}, s{sC}, 1\ns_lshl_b32 s{sD}, s{sT0}, 11\ns_add_u32 s{sD}, s{sD}, {FKV(L)}")
    k(f"s_lshl_b32 s{sT3}, s{sG}, 8\ns_add_u32 s{sT3}, s{sT3}, s{sD}")
    if L == 0:
        k(f"v_and_b32 v11, 1, v0\nv_lshlrev_b32 v11, 7, v11\nv_add_u32 v11, s{sT3}, v11")
        k(f"v_cmp_gt_u32 vcc, 512, v{vL16}")
    k(f"s_lshr_b32 s{sT1}, s{sW}, 1\ns_lshl_b32 s{sT1}, s{sT1}, 7\ns_add_u32 s{sD}, s{sD}, s{sT1}")
    if L:
        k(f"s_add_u32 s{sT3}, s{sT3}, s{sT1}")
        k(f"s_lshl_b32 s{sT2}, s{sG}, 10\ns_lshl_b32 s{sT0}, s{sT0}, 6\ns_add_u32 s{sT2}, s{sT2}, s{sT0}\ns_add_u32 s{sT2}, s{sT2}, {FLOC(L-1,5)}")
        k(f"v_mov_b32 v12, s{sT3}\nv_and_b32 v11, 7, v0\nv_lshlrev_b32 v11, 3, v11\nv_add_u32 v11, s{sT2}, v11")
        k(f"v_cmp_gt_u32 vcc, 512, v{vL16}")
        if not KV_LOC: k("v_cndmask_b32 v11, v11, v12, vcc")
    k(f"v_and_b32 v12, 7, v0\nv_lshlrev_b32 v12, 8, v12")
    k(f"s_mul_i32 s{sT2}, s{sG}, {8*112*KB}\ns_lshl_b32 s{sT3}, s{sC}, 10\ns_add_u32 s{sT2}, s{sT2}, s{sT3}\ns_add_u32 s{sT2}, s{sT2}, {QF}")
    sQ = list(range(64, 72))
    for p in range(4):
        k(f"s_xor_b32 s{sT3}, s{sW}, {p}\ns_mul_i32 s{sT3}, s{sT3}, {2*112*KB}\ns_add_u32 s{sQ[2*p]}, s{sT3}, s{sT2}\ns_add_u32 s{sQ[2*p+1]}, s{sQ[2*p]}, {112*KB}")
    sTH, sTW, sFO = 72, 73, 79
    k(f"s_lshl_b32 s{sT3}, s{sU}, 2\ns_add_u32 s{sT3}, s{sT3}, s{sW}")
    k(f"s_mul_i32 s{sTH}, s{sT3}, {7*KB}\ns_add_u32 s{sTH}, s{sTH}, {HF}")
    k(f"s_lshl_b32 s{sT0}, s{sT3}, 11\ns_add_u32 s{sT0}, s{sT0}, {XF}\ns_lshl_b32 s{sT1}, s{sT3}, 8\ns_add_u32 s{sT1}, s{sT1}, {SX}")
    k(f"v_and_b32 v3, 0x780, v{vL128}\nv_add_u32 v3, s{sT0}, v3\nv_and_b32 v13, 0x80, v{vL128}\nv_add_u32 v13, s{sT1}, v13\nv_cndmask_b32 v3, v13, v3, vcc")
    k(f"s_lshl_b32 s{sTW}, s{sC4}, 2\ns_add_u32 s{sTW}, s{sTW}, s{sW}\ns_mul_i32 s{sTW}, s{sTW}, {TOUCH_KBS[L] * KB // 8}")
    k(f"s_add_u32 s{sTW}, s{sTW}, s{sSEG+1}\ns_add_u32 s{sTW}, s{sTW}, {32*KB}")
    k(f"s_and_b32 s{sCT}, s{sT3}, 31\ns_lshl_b32 s{sCT}, s{sCT}, 10")
    k(f"s_lshl_b32 s{sFO}, s{sG}, 2\ns_add_u32 s{sFO}, s{sFO}, s{sW}\ns_lshl_b32 s{sFO}, s{sFO}, 5\ns_add_u32 s{sFO}, s{sFO}, s{sC}\ns_lshl_b32 s{sFO}, s{sFO}, 3\ns_add_u32 s{sFO}, s{sFO}, {FLOC(L,0)}")
    for i in range(4): k(f"v_mov_b32 v{148+i}, 0")
    for q in range(8): k(f"v_mfma_f32_32x32x16_bf16 {vr(vO+16*q,16)}, {vr(148)}, {vr(148)}, 0")
    mark(k, 'pre')
    if L: q_flag(k, L, tq)
    kv_flag(k, L, tkv)
    if L == 0 and PK_Q0:
        k(f"s_lshl_b32 s{sF}, s{sU}, 7\ns_add_u32 s{sF}, s{sF}, {FPK}\nv_mov_b32 v145, v12")
        publish_wg(k, None, xid=True, barrier=False)
        k("v_mov_b32 v12, v145")
    mark(k, 'flag')
    if L == 0 and PK_EARLY:
        G.pk.reads(*range(8))
        for i in range(8): G.pk.csum(i)
        if PK_WIN2:
            G.pk.stores(*range(8)); G.pk.ext()
    if L == 0 and LIN_AT == 'flag': k.vm("global_load_dword v253, v254, s[90:91]")
    for b in range(2):
        for j in range(8): k(f"v_mov_b32 v{vKV+12*b+4+j}, v144")
    k(f"s_mov_b32 s{sF}, 0")
    poll(k, 11, 14, sleep=SLEEP1[L])
    mark(k, 'poll')
    K = lambda t: vr(vKV + 12*(t % 4))
    V = lambda t, u: vr(vKV + 12*(t % 4) + 4 + 4*u)
    kt = {}; vt = {}
    loc = lambda t: L and KV_LOC and t < 2
    def ldK(t):
        if t and (t & 1) == 0: k(f"s_add_u32 s{sK}, s{sK}, 0x4000\ns_and_b32 s{sK}, s{sK}, 0x1ffff")
        if loc(t): kt[t] = k.vm(f"buffer_load_dwordx4 {K(t)}, v{14 if t and HEAD else 146}, {srd(sWS)}, s{sQ[t]} offen sc1")
        else: kt[t] = k.vm(f"buffer_load_dwordx4 {K(t)}, v{vK}, {srd(sWS)}, s{sK} offen offset:{(t & 1)*2*KB} sc1")
    def ldV(t):
        va, so, o = (15 if t and HEAD else 147, sQ[t], KB) if loc(t) else (vV, sK, (t & 1)*2*KB + KB)
        k(f"s_mov_b64 exec, s[{sMSK}:{sMSK+1}]")
        k.vm(f"buffer_load_dwordx4 {V(t,0)}, v{va}, {srd(sWS)}, s{so} offen offset:{o} sc1")
        vt[t] = k.vm(f"buffer_load_dwordx4 {V(t,1)}, v{va}, {srd(sWS)}, s{so} offen offset:{o+512} sc1")
        k("s_mov_b64 exec, -1")
    def ldKV(t):
        ldK(t); ldV(t); kt[t] = vt[t]
    ldK(0)
    qt = {}
    def ldQ(*ss):
        for s in ss: qt[s] = k.vm(f"buffer_load_dwordx4 {ar(aQ+4*s)}, v{vL16}, {srd(sWS)}, s{sQ[s]} offen sc1")
    if HEAD == 0:
        ldQ(0, 1, 2); ldV(0); ldQ(3, 4, 5, 6, 7); ldKV(1)
    else:
        ldQ(0, 1); ldV(0); ldQ(2)
    ap2 = apoll1(k, 12, 10, sD, sleep=SLEEP2)
    for b in range(2, 4):
        for j in range(8): k(f"v_mov_b32 v{vKV+12*b+4+j}, v144")
    NT = ATT_NT
    steps = [(t, q) for t in range(16 - NT) for q in range(8)] + [(t, q) for q in range(2, 8) for t in range(16 - NT, 16)] + [(t, q) for q in range(2) for t in range(16 - NT, 16)]
    n = len(steps)
    LA = NS - 1
    def qk(i):
        t, q = steps[i]
        k.wait(vm=max(kt[t], qt[q]) if t == 0 else kt[t])
        k(f"v_mfma_f32_32x32x16_bf16 {vr(vS[i % NS],16)}, {K(t)}, {ar(aQ+4*q)}, 0")
    def pv(i, u):
        t, q = steps[i]
        k.wait(vm=vt[t])
        k(f"v_smfmac_f32_32x32x32_bf16 {vr(vO+16*q,16)}, {V(t,u)}, {vr(vS[i % NS]+8*u,8)}, v{vIDX}")
    if HEAD == 0:
        for i in range(LA): qk(i)
    else:
        if loc(1): k("v_mov_b32 v14, v146\nv_mov_b32 v15, v147")
        qk(0); ldQ(3, 4); qk(1)
    mark(k, 'm0')
    ring.limit = 96
    jobs = {}
    def job(i, f, e=10): jobs.setdefault((i, e), []).append(f)
    if HEAD:
        job(0, lambda: qk(2), e=3)
        job(0, lambda: ldQ(5, 6, 7))
        job(1, lambda: ldKV(1), e=2)
    job(HEAD, lambda: code_touch(k, 10))
    job(P2_AT - P2_LEAD, ap2.issue)
    job(P2_AT, lambda: (ap2.check(), ldKV(2), ldKV(3)))
    for t in range(1, 13): job(8*t, lambda t=t: ldKV(t + 3))
    def kvpf(j):
        def f():
            k(f"s_add_u32 s{sT0}, s{sG}, {2*j}\nv_bfe_u32 v13, v0, 5, 1\nv_add_u32 v13, s{sT0}, v13\nv_and_b32 v13, 7, v13\nv_lshlrev_b32 v13, 14, v13")
            k(f"v_and_b32 v14, 0xf80, v{vL128}\nv_add_u32 v13, v13, v14")
            k(f"s_lshl_b32 s{sT0}, s{sC}, 17\ns_add_u32 s{sT0}, s{sT0}, s{sW4K}\ns_add_u32 s{sT0}, s{sT0}, {KVF(L)}")
            k.vm(f"buffer_load_dword v5, v13, {srd(sWS)}, s{sT0} offen sc1")
        return f
    if KV_PF[L]:
        for j in (2, 3): job(KV_PF[L] + 8*(j-2), kvpf(j))
    if L == 0:
        CHK_AT = CHK_Q0 if PK_Q0 else G.pk.schedule(job) + CHK_GAP
        apk = APoll(k, [f"buffer_load_dwordx2 v[10:11], v12, {srd(sWS)}, s{sX} offen offset:8 sc1"],
                    f"v_cmp_ne_u64 vcc, s[{sTAG}:{sTAG+1}], v[10:11]")
        def chk0():
            k(f"v_accvgpr_read_b32 v12, a213\ns_mov_b32 s{sX}, {FPK}")
            apk.issue()
        job(CHK_AT - 6, chk0)
        apx = APoll(k, [f"buffer_load_dwordx4 v[12:15], v11, {srd(sWS)}, s{sCc} offen sc1"],
                    f"v_cmp_ne_u64 vcc, s[{sTAG}:{sTAG+1}], v[14:15]")
        def mode0():
            k(f"v_and_b32 v11, 0xf80, v{vL128}\ns_lshl_b32 s{sCc}, s{sG}, 12\ns_add_u32 s{sCc}, s{sCc}, {FPK}")
            apx.issue()
        def mode():
            apx.check()
            k(f"s_xor_b32 s{sT2}, s{sTAG}, s{sXCC}")
            k(f"v_cmp_ne_u32 vcc, s{sT2}, v12")
            k(f"s_cmp_eq_u64 vcc, 0\ns_cselect_b32 s{sMODE}, 1, 0")
        job(81, mode0); job(95, mode)
        def chk():
            apk.check()
            k(f"s_and_b32 s{sT2}, s{sC}, 7\ns_lshl_b32 s{sT2}, s{sT2}, 1\ns_lshr_b32 s{sT3}, s{sW}, 1\ns_add_u32 s{sT2}, s{sT2}, s{sT3}")
            k(f"s_mul_i32 s{sT3}, s{sW}, {28*KB}\ns_add_u32 s{sT3}, s{sT3}, {WD}")
            k(f"s_mul_i32 s{sX}, s{sT2}, {112*KB}\ns_add_u32 s{sX}, s{sX}, s{sT3}")
            k(f"s_xor_b32 s{sT2}, s{sT2}, 1\ns_mul_i32 s{sX2}, s{sT2}, {112*KB}\ns_add_u32 s{sX2}, s{sX2}, s{sT3}")
        job(CHK_AT, chk)
        def wsrc(i):
            s_ = sX if i < 28 else sX2
            j = i % 28
            if j and (j & 3) == 0: k(f"s_add_u32 s{s_}, s{s_}, 4096")
            return s_, (j & 3) * KB
        wq = XLoader(k, 56, lambda i: ar(aWD + 8*(i % 28) + 4*(i // 28)), wsrc)
        slots = [i for i in range(CHK_AT + 1, 112) if i % 8 in WD_SLOTS]
        work = [lambda: wq.issue_n(4)] * 14
        rw = [ring.issue16] * 6
        seq = []
        while work or rw:
            if work: seq.append(work.pop(0))
            if work: seq.append(work.pop(0))
            if rw: seq.append(rw.pop(0))
        assert len(seq) <= len(slots), (len(seq), len(slots))
        for i, f in zip(slots, seq): job(i, f)
    else:
        for j in range(6): job(R1_AT + R1_STEP*j, ring.issue16)
    def tch(j):
        def f():
            if j: k(f"s_add_u32 s{sTW}, s{sTW}, {TL*128}")
            elif TL < 64: k(f"v_and_b32 v4, {(TL-1)*128}, v{vL128}")
            k.vm(f"buffer_load_dword v5, v{vT_}, {srd(sWS)}, s{sTW} offen sc1")
        return f
    TL = TOUCH_LN; vT_ = vL128 if TL == 64 else 4
    for j in range(-(-TOUCH_KBS[L] // TL)): job(TOUCH_AT[L] + j*TOUCH_STEP[L], tch(j))
    def th(j):
        def f():
            if j: k(f"s_add_u32 s{sTH}, s{sTH}, {TL*128}")
            elif TL < 64: k(f"v_and_b32 v4, {(TL-1)*128}, v{vL128}")
            k.vm(f"buffer_load_dword v5, v{vT_}, {srd(sWS)}, s{sTH} offen sc1")
        return f
    TACT_AT = TACTS[L]
    if L == 0 and EARLY_H:
        job(EARLY_H, lambda: k.vm(f"buffer_load_dword v5, v{vL128}, {srd(sWS)}, s{sTH} offen sc1"))
        job(EARLY_H + 3, lambda: k.vm(f"buffer_load_dword v5, v3, {srd(sWS)}, 0 offen sc1"))
    if TACT_AT:
        for j in range(-(-56 // TL)): job(TACT_AT + j*TH_STEP, th(j))
    def tact():
        k.vm(f"buffer_load_dword v5, v3, {srd(sWS)}, 0 offen sc1")
    if TACT_AT: job(TACT_AT + 4, tact)
    if L == 0 and XRES_TOUCH:
        def xt_():
            rowmajor_addr(k, 14, sT0)
            k.vm(f"buffer_load_dword v5, v14, {srd(60)}, s{sT0} offen sc1")
        job(XRES_TOUCH, xt_)
    job(CT_AT, lambda: code_touch(k, 5))
    SC = 96 * KB
    vWA = 10
    def red_setup():
        k(f"s_lshl_b32 s{sT0}, s{sW}, 14\nv_add_u32 v13, s{sT0}, v{vL16}")
        for j in range(1, 4):
            k(f"v_xor_b32 v{vWA+j-1}, {j << 14}, v13\nv_add_u32 v{vWA+j-1}, {SC}, v{vWA+j-1}")
        k(f"v_add_u32 v13, {SC}, v13")
    job(126 - 8*NT, red_setup)
    def red_write(s, part):
        j = s >> 1; z = s & 1
        if part == 0:
            k.lg(f"ds_write_b128 v{vWA+j-1}, {vr(vO+16*s)} offset:{(z*3+j-1)*2*KB}")
            k.lg(f"ds_write_b32 v{vWA+j-1}, v{vO+16*s+8} offset:{(12+z)*KB+(j-1)*4}")
        if part == 1 or NT == 1:
            k.lg(f"ds_write_b128 v{vWA+j-1}, {vr(vO+16*s+4)} offset:{(z*3+j-1)*2*KB+KB}")
    for i in range(128):
        if steps[i][0] == 15 and steps[i][1] >= 2:
            job(i + 2, lambda s=steps[i][1]: red_write(s, 0), e=2)
            if NT > 1: job(i + 2, lambda s=steps[i][1]: red_write(s, 1))
    tl = []
    def red_read(zz):
        if zz[0] == 0:
            k.wait_all()
            k("s_barrier")
        for z in zz:
            k.lg(f"ds_read_b128 {vr(vO+32+48*z+8)}, v13 offset:{(12+z)*KB}")
            for j in range(3):
                b = vO + 32 + (z*3 + j)*16
                k.lg(f"ds_read_b128 {vr(b)}, v13 offset:{(z*3+j)*2*KB}")
                tl.append(k.lg(f"ds_read_b128 {vr(b+4)}, v13 offset:{(z*3+j)*2*KB+KB}"))
    if NT == 1: job(127, lambda: red_read((0, 1)))
    else:
        job(126, lambda: red_read((0,))); job(127, lambda: red_read((1,)), e=2)
    for i, (t, q) in enumerate(steps):
        s = vS[i % NS]
        if i in ATT_MARKS: mark(k, f's{i}')
        for e in range(16):
            if e == 2 and i > 0: pv(i-1, 1)
            if e == 6 and i + LA < n: qk(i + LA)
            if e == 10: pv(i, 0)
            for f in jobs.pop((i, e), []): f()
            k(f"v_exp_f32 v{s+e}, v{s+e}")
    pv(n-1, 1)
    assert not jobs, jobs.keys()
    assert ring.issued == 96
    mark(k, 'loop')
    for z in range(2):
        o = vO + 16*z; l = vO + 32 + 48*z + 8
        k.wait(lg=tl[z*3])
        k(f"v_add_f32 v{l}, v{l}, v{l+1}\nv_add_f32 v{o+8}, v{o+8}, v{l+2}\nv_add_f32 v{o+8}, v{o+8}, v{l}\nv_rcp_f32 v{o+9}, v{o+8}")
        for j in range(3):
            b = vO + 32 + (z*3 + j)*16
            k.wait(lg=tl[z*3+j])
            for i in range(8): k(f"v_add_f32 v{o+i}, v{o+i}, v{b+i}")
        for j in range(4):
            k(f"v_mul_f32 v{o+2*j}, v{o+2*j}, v{o+9}\nv_mul_f32 v{o+2*j+1}, v{o+2*j+1}, v{o+9}")
            k(f"v_cvt_pk_bf16_f32 v{o+12+j}, v{o+2*j}, v{o+2*j+1}")
        ts = k.vm(f"buffer_store_dwordx4 {vr(o+12)}, v{vL16}, {srd(sWS)}, s{sQ[z]} offen")
    mark(k, 'f_st')
    fb = k.newlabel('fb'); back = k.newlabel('fbret')
    LO, HI = f2u(2.0**-60), f2u(2.0**60)
    for z in range(2):
        o = vO + 16*z
        k(f"v_add_f32 v{o}, v{o}, v{o+1}\nv_add_f32 v{o+2}, v{o+2}, v{o+3}\nv_add_f32 v{o+4}, v{o+4}, v{o+5}\nv_add_f32 v{o+6}, v{o+6}, v{o+7}")
        k(f"v_add_f32 v{o}, v{o}, v{o+2}\nv_add_f32 v{o+4}, v{o+4}, v{o+6}\nv_add_f32 v{o}, v{o}, v{o+4}")
        k(f"v_fma_f32 v{o+8}, v{o}, 0, v{o+8}\nv_subrev_u32 v{o+8}, {hex(LO)}, v{o+8}")
    k(f"v_max_u32 v{vO+8}, v{vO+8}, v{vO+24}")
    k(f"v_cmp_lt_u32 vcc, {hex(0 if FORCE_FB else HI - LO)}, v{vO+8}")
    k(f"s_cbranch_vccnz {fb}")
    k.label(back)
    F = [f"{fb}:", "s_waitcnt vmcnt(0)",
         f"v_subrev_u32 v{vK}, s{sW4K}, v{vK}", f"v_subrev_u32 v{vV}, s{sW4K}, v{vV}"]
    S, C, M = vS0, vS0 + 16, vS0 + 32
    for z in range(2):
        o = vO + 16*z; Q = ar(aQ + 4*z)
        F += [f"v_mov_b32 v{M}, 0xff800000", f"s_mov_b32 s{sK}, 0", f"{fb}_a{z}:",
              f"buffer_load_dwordx4 {K(0)}, v{vK}, {srd(sWS)}, s{sK} offen sc1", "s_waitcnt vmcnt(0)",
              f"v_mfma_f32_32x32x16_bf16 {vr(S,16)}, {K(0)}, {Q}, 0"]
        F += [f"v_max3_f32 v{M}, v{M}, v{S+2*i}, v{S+2*i+1}" for i in range(8)]
        F += [f"s_add_u32 s{sK}, s{sK}, 2048", f"s_cmp_lt_u32 s{sK}, {64*2048}", f"s_cbranch_scc1 {fb}_a{z}",
              f"v_mov_b32 v{M+1}, v{M}", f"v_permlane32_swap_b32 v{M}, v{M+1}", f"v_max_f32 v{M}, v{M}, v{M+1}"]
        F += [f"v_sub_f32 v{C+i}, 0, v{M}" for i in range(16)] + [f"v_mov_b32 v{o+i}, 0" for i in range(16)]
        F += [f"s_mov_b32 s{sK}, 0", f"{fb}_b{z}:",
              f"buffer_load_dwordx4 {K(0)}, v{vK}, {srd(sWS)}, s{sK} offen sc1",
              f"s_mov_b64 exec, s[{sMSK}:{sMSK+1}]",
              f"buffer_load_dwordx4 {V(0,0)}, v{vV}, {srd(sWS)}, s{sK} offen offset:{KB} sc1",
              f"buffer_load_dwordx4 {V(0,1)}, v{vV}, {srd(sWS)}, s{sK} offen offset:{KB+512} sc1",
              "s_mov_b64 exec, -1", "s_waitcnt vmcnt(0)",
              f"v_mfma_f32_32x32x16_bf16 {vr(S,16)}, {K(0)}, {Q}, {vr(C,16)}"]
        F += [f"v_exp_f32 v{S+i}, v{S+i}" for i in range(16)]
        F += [f"v_smfmac_f32_32x32x32_bf16 {vr(o,16)}, {V(0,u)}, {vr(S+8*u,8)}, v{vIDX}" for u in range(2)]
        F += ["s_nop 15", f"s_add_u32 s{sK}, s{sK}, 2048", f"s_cmp_lt_u32 s{sK}, {64*2048}", f"s_cbranch_scc1 {fb}_b{z}",
              f"v_rcp_f32 v{o+9}, v{o+8}"]
        for j in range(4):
            F += [f"v_mul_f32 v{o+2*j}, v{o+2*j}, v{o+9}", f"v_mul_f32 v{o+2*j+1}, v{o+2*j+1}, v{o+9}", f"v_cvt_pk_bf16_f32 v{o+12+j}, v{o+2*j}, v{o+2*j+1}"]
        F += [f"buffer_store_dwordx4 {vr(o+12)}, v{vL16}, {srd(sWS)}, s{sQ[z]} offen"]
    F += ["s_waitcnt vmcnt(0)", f"s_branch {back}"]
    G.far += F
    k(f"s_mov_b32 s{sF}, s{sFO}")
    ring.end16()
    ring.limit = 144
    return ts

def load_res(k, v):
    k(f"s_add_u32 s{sT1}, s{sDST}, {XF}")
    k.vm(f"buffer_load_dwordx4 {vr(v)}, v{vL16}, {srd(sWS)}, s{sT1} offen sc1")
    return k.vm(f"buffer_load_dwordx4 {vr(v+4)}, v{vL16}, {srd(sWS)}, s{sT1} offen offset:1024 sc1")
def add_res(k, acc, v):
    for j in range(8):
        k(f"v_lshlrev_b32 v10, 16, v{v+j}\nv_and_b32 v11, 0xffff0000, v{v+j}")
        k(f"v_add_f32 v{acc+2*j}, v{acc+2*j}, v10\nv_add_f32 v{acc+2*j+1}, v{acc+2*j+1}, v11")

def ph_wo(k, L, ring, tO):
    k.label(f'L_wo{L}')
    vX, vACC, vRES, vSUM, vPK = 16, 80, 112, 120, 136
    k(f"s_lshr_b32 s{sRB}, s{sDST}, 15\ns_lshr_b32 s{sD}, s{sW}, 1")
    k(f"s_mul_i32 s{sX}, s{sRB}, {112*KB}\ns_lshl_b32 s{sT0}, s{sD}, 14\ns_add_u32 s{sX}, s{sX}, s{sT0}\ns_add_u32 s{sX}, s{sX}, {HF}")
    k(f"s_lshl_b32 s{sT0}, s{sD}, 11")
    set_lds_bases(k, sT0)
    seq = []
    for s in range(16):
        seq.append((s, 1))
        if s < 16 - WO_R0: seq.append((s, 0))
    nf = len(seq)
    seq += [(s, 0) for s in range(16 - WO_R0, 16)]
    ops = [dict(b=4*s + a, bmin=0, bmax=63, xi=s, x=vr(vX+4*s), acc=vr(vACC+16*a,16), swap=False, first=(s == 0)) for s, a in seq]
    g = Gemm(k, ring, ops, {0}, stop_issue=WO_STOP)
    rs = {}
    def ldres():
        if L == 0:
            k.vm(f"buffer_load_dwordx4 {vr(vRES)}, v8, {srd(60)}, s{sE} offen")
            rs['t'] = k.vm(f"buffer_load_dwordx4 {vr(vRES+4)}, v8, {srd(60)}, s{sE} offen offset:32")
        else:
            rs['t'] = load_res(k, vRES)
    if not RES_LATE[L]:
        if L == 0: rowmajor_addr(k, 8, sE)
        ldres()
    g.start()
    mark(k, 'f_bar')
    ring.issue_n(PRE_WO)
    publish_local(k, tO)
    mark(k, 'f_pub')
    ring.issue_n(PRE_WO2)
    k(f"s_and_b32 s{sF}, s{sRB}, 0xfe\ns_add_u32 s{sF}, s{sF}, s{sD}\ns_lshl_b32 s{sF}, s{sF}, 7\ns_add_u32 s{sF}, s{sF}, {FLOC(L,0)}")
    SC = 144 * KB
    k(f"s_xor_b32 s{sT0}, s{sW}, 2\ns_lshl_b32 s{sT0}, s{sT0}, 12\ns_add_u32 s{sT0}, s{sT0}, {SC}\nv_add_u32 v6, s{sT0}, v{vL16}")
    k(f"s_lshl_b32 s{sT0}, s{sW}, 12\ns_add_u32 s{sT0}, s{sT0}, {SC}\nv_add_u32 v7, s{sT0}, v{vL16}")
    if RES_LATE[L] and L == 0: rowmajor_addr(k, 8, sE)
    poll16(k)
    mark(k, 'f_poll')
    xq = XLoader(k, 16, lambda i: vr(vX+4*i), lin_src(k))
    xq.issue_n(WO_N0)
    if not RES_LATE[L]:
        for x in res_unpack(vSUM, vRES): k(x)
    st = {}
    def xchg(step):
        if step == 0:
            while g.nread < 32: g.rd()
            for j in range(4): k.lg(f"ds_write_b128 v6, {vr(vACC+16+4*j)} offset:{j*KB}")
        elif step == 1:
            k.wait_all(vm=False)
            ring.limit = None
            ring.sync(64, 0)
            for j in range(4): st['t'] = k.lg(f"ds_read_b128 {vr(vACC+16+4*j)}, v7 offset:{j*KB}")
        st['n'] = step + 1
    def filler(m):
        if m == max(nf + 1, 25): xchg(0)
        if m == max(nf + 4, 28): xchg(1)
    g.run(xq, n0=0, look=16, filler=filler, misc=[ldres] if RES_LATE[L] else [])
    for step in range(st.get('n', 0), 2): xchg(step)
    if RES_LATE[L]:
        k.wait(vm=rs['t'])
        for x in res_unpack(vSUM, vRES): k(x)
    k.wait(lg=st['t'])
    for i in range(16): k(f"v_add_f32 v{vSUM+i}, v{vSUM+i}, v{vACC+16+i}")
    for j in range(8):
        k(f"v_add_f32 v{vACC+2*j}, v{vACC+2*j}, v{vSUM+2*j}\nv_add_f32 v{vACC+2*j+1}, v{vACC+2*j+1}, v{vSUM+2*j+1}")
        k(f"v_cvt_pk_bf16_f32 v{vPK+j}, v{vACC+2*j}, v{vACC+2*j+1}")
    ts = store_x(k, vACC, vPK, L, 1, ring)
    mark(k, 'end')
    return ts

PASSES = ((0, 3), (3, 2), (5, 2))
def ph_up(k, L, ring, b0, tprev):
    vX, vACC, vST, vEXT, vRS = 16, 144, 224, 8, 6
    sH0, sH1 = sD, sE
    rb_128(k)
    k(f"s_and_b32 s{sA}, s{sC}, 15")
    k(f"s_lshl_b32 s{sX}, s{sRB}, 15\ns_add_u32 s{sX}, s{sX}, {XF}")
    set_lds_bases(k)
    ops = []
    b = b0
    for (t0, nt) in PASSES:
        for ks in range(33):
            for t in range(t0, t0+nt):
                ops.append(dict(b=b, bmin=b, bmax=b, xi=(ks if ks < 32 else None), x=(vr(vX+4*ks) if ks < 32 else vr(vEXT)),
                                acc=vr(vACC+16*t, 16), swap=False, first=(ks == 0)))
                b += 1
    if UP4:
        last = ops[165:]
        for o in last[0::2]: o['bmin'] = b0 + 165
        for o in last[1::2]: o['bmin'] -= 1
        ops = ops[:165] + last[0::2] + last[1::2]
    g = Gemm(k, ring, ops, UP_SYNCS, stop_issue=UP_STOP)
    g.start()
    mark(k, 'f_bar')
    ring.issue_n(PRE)
    publish_local(k, tprev)
    mark(k, 'f_pub')
    ring.issue_n(PRE2)
    res = {}
    se = stats_emitters(k, vST, res)
    k(f"s_mul_i32 s{sH0}, s{sRB}, 112\ns_mul_i32 s{sT2}, s{sA}, 7\ns_add_u32 s{sH0}, s{sH0}, s{sT2}\ns_lshl_b32 s{sH0}, s{sH0}, 10\ns_add_u32 s{sH0}, s{sH0}, {HF}")
    k(f"s_add_u32 s{sH1}, s{sH0}, 4096")
    k(f"s_lshl_b32 s{sF}, s{sRB}, 7\ns_add_u32 s{sF}, s{sF}, {FLOC(L,1)}")
    poll16(k)
    mark(k, 'f_poll')
    aps = stats_poll(k, FLOC(L,6) - FLOC(L,1))
    xq = XLoader(k, 32, lambda i: vr(vX+4*i), lin_src(k))
    fin = fin_stats(vST, vEXT, vRS) + [f"v_mul_f32 v{vRS}, v{vRS}, v{vRS}"]
    def epi(t):
        a = vACC + 16*t
        o = []
        for j in range(4):
            o += [f"v_mul_f32 v{a+2*j}, v{a+2*j}, v{vRS}", f"v_mul_f32 v{a+2*j+1}, v{a+2*j+1}, v{vRS}",
                  f"v_mul_f32 v{a+2*j}, v{a+2*j}, v{a+8+2*j}", f"v_mul_f32 v{a+2*j+1}, v{a+2*j+1}, v{a+9+2*j}",
                  f"v_cvt_pk_bf16_f32 v{a+8+j}, v{a+2*j}, v{a+2*j+1}"]
        o.append(f"buffer_store_dwordx4 {vr(a+8)}, v{vL16}, {srd(sWS)}, s{sH0 + (t >> 2)} offen offset:{(t & 3)*KB}")
        return o
    st = dict(i=0, t=None); q = []
    def put(x):
        if x.startswith('buffer'): st['t'] = k.vm(x)
        else: k(x)
    dn = Down(k, L)
    def filler(m):
        if aps and m == 12: aps.issue()
        if aps and m == 30: aps.check()
        if 70 <= m < 96:
            if st['i'] == 0: k.wait(vm=res['t'])
            for _ in range(2):
                if st['i'] < len(fin): k(fin[st['i']]); st['i'] += 1
        if m == 102: q.extend(sum((epi(t) for t in range(0, 3)), []))
        if m == 168: q.extend(sum((epi(t) for t in range(3, 5)), []))
        if UP4 and m == 201: q.extend(epi(5))
        for _ in range(UP_EPI):
            if q: put(q.pop(0))
        if m == 146: code_touch(k, 7)
        if m in UP_PUB:
            assert not q
            if m == UP_PUB[0]:
                k(f"s_lshl_b32 s{sF}, s{sRB}, 4\ns_add_u32 s{sF}, s{sF}, s{sA}\ns_lshl_b32 s{sF}, s{sF}, 3\ns_add_u32 s{sF}, s{sF}, {FLOC(L,9)}")
            publish_local(k, st['t'])
            k(f"s_add_u32 s{sF}, s{sF}, {8*KB}")
            if m == UP_PUB[1]: dn.xq.hold = 20
        if UP_PUB[0] < m and dn.setup:
            for _ in range(3):
                if dn.setup: k(dn.setup.pop(0))
        if m in DN_POLL: dn.ap.issue()
        if m in DN_CHK:
            dn.ap.check()
            k(f"s_add_u32 s{dn.sFl}, s{dn.sFl}, {8*KB}")
        if m > DN_CHK[0] and m % 2 and not (ring.can_issue() and m < UP_STOP): dn.xq.issue_n(1)
    if L == 0: ring.limit = 296 + QW_UP
    g.run(xq, look=UP_LOOK, filler=filler, misc=se, misc_from=32, skip=UP_SKIP[L])
    assert st['i'] == len(fin) and not dn.setup and ring.issued == min(ring.total, 296 + QW_UP)
    dn.xq.hold = 36 if len(DN_CHK) > 1 else 24
    for t in range(6 if UP4 else 5, 7):
        for i, x in enumerate(epi(t)):
            put(x)
            if i in (4, 14): dn.xq.issue_n(1)
    mark(k, 'end')
    dn.tB = st['t']
    return dn

class Down:
    NX = 36
    def __init__(self, k, L):
        self.k = k; self.L = L
        sXa, sXb, sFl = sB, sX2, sCc
        self.sFl = sFl
        self.setup = (f"s_lshr_b32 s{sT0}, s{sDST}, 15\ns_mul_i32 s{sT1}, s{sW}, {28*KB}\ns_add_u32 s{sT1}, s{sT1}, {HF}\n"
                      f"s_mul_i32 s{sXa}, s{sT0}, {112*KB}\ns_add_u32 s{sXa}, s{sXa}, s{sT1}\n"
                      f"s_xor_b32 s{sT2}, s{sT0}, 1\ns_mul_i32 s{sXb}, s{sT2}, {112*KB}\ns_add_u32 s{sXb}, s{sXb}, s{sT1}\n"
                      f"v_and_b32 v12, 3, v0\nv_lshlrev_b32 v12, 3, v12\nv_and_b32 v13, 4, v0\nv_lshl_add_u32 v12, v13, 5, v12\n"
                      f"s_and_b32 s{sFl}, s{sT0}, 0xfe\ns_lshl_b32 s{sFl}, s{sFl}, 7\ns_lshl_b32 s{sT1}, s{sW}, 5\ns_add_u32 s{sFl}, s{sFl}, s{sT1}\n"
                      f"s_add_u32 s{sFl}, s{sFl}, {FLOC(L,9)}").split('\n')
        self.order = order = [7*c + t for t0, nt in (((0, 3), (3, 2), (5, 1), (6, 1)) if UP4 else PASSES) for c in range(4) for t in range(t0, t0+nt)]
        cur = {sXa: 0, sXb: 0}
        def src(i):
            s_ = sXa if (i & 1) == 0 else sXb
            r = order[i >> 1]
            if not 0 <= r - cur[s_] < 4:
                d = (r - cur[s_]) * KB
                k(f"s_add_u32 s{s_}, s{s_}, {d}" if d > 0 else f"s_sub_u32 s{s_}, s{s_}, {-d}")
                cur[s_] = r
            return s_, (r - cur[s_]) * KB
        self.xr = lambda i: vr(144 + 4*(i % 36) if (i % 36) < 20 else 80 + 4*((i % 36) - 20))
        self.xq = XLoader(k, 56, self.xr, src)
        self.xq.hold = 12
        self.ap = apoll1(k, 12, 14, sFl)

def res_unpack(dst, v):
    o = []
    for j in range(8): o += [f"v_lshlrev_b32 v{dst+2*j}, 16, v{v+j}", f"v_and_b32 v{dst+2*j+1}, 0xffff0000, v{v+j}"]
    return o

def ph_down(k, L, ring, dn):
    vACC, vRES, vPK, vSUM = 16, 240, 240, 224
    final = L == 1
    xq = dn.xq; order = dn.order; NX = dn.NX
    if len(DN_CHK) > 1: xq.hold = 40
    SC = 108 * KB
    side = []
    for a in range(1, 4):
        side += f"s_xor_b32 s{sT0}, s{sW}, {a}\ns_mul_i32 s{sT0}, s{sT0}, {12*KB}\ns_add_u32 s{sT0}, s{sT0}, {SC + (a-1)*4*KB}\nv_add_u32 v{5+a}, s{sT0}, v{vL16}".split('\n')
    side += f"s_mul_i32 s{sT0}, s{sW}, {12*KB}\ns_add_u32 s{sT0}, s{sT0}, {SC}\nv_add_u32 v9, s{sT0}, v{vL16}".split('\n')
    if final and OUT_T:
        side += (f"s_and_b32 s{sT0}, s{sW}, 1\ns_mul_i32 s{sT0}, s{sT0}, {32*144}\ns_lshr_b32 s{sT2}, s{sW}, 1\ns_lshl_b32 s{sT2}, s{sT2}, 6\ns_add_u32 s{sT0}, s{sT0}, s{sT2}\n"
                 f"v_and_b32 v10, 31, v0\nv_mul_u32_u24 v10, 144, v10\nv_bfe_u32 v11, v0, 5, 1\nv_lshl_add_u32 v10, v11, 4, v10\nv_add_u32 v10, s{sT0}, v10\n"
                 f"s_mul_i32 s{sT0}, s{sW}, {16*144}\nv_bfe_u32 v13, v0, 3, 3\nv_mul_u32_u24 v11, 144, v13\nv_and_b32 v5, 7, v0\nv_lshl_add_u32 v11, v5, 4, v11\nv_add_u32 v11, s{sT0}, v11\n"
                 f"v_lshlrev_b32 v13, 10, v13\nv_lshl_add_u32 v13, v5, 4, v13\n"
                 f"s_and_b32 s{sT0}, s{sDST}, 0xffff0000\ns_lshl_b32 s{sT2}, s{sW}, 14\ns_add_u32 s{sT0}, s{sT0}, s{sT2}\n"
                 f"s_and_b32 s{sT2}, s{sC}, 7\ns_lshl_b32 s{sT2}, s{sT2}, 7\ns_add_u32 s{sT0}, s{sT0}, s{sT2}\ns_add_u32 s{sT2}, s{sT0}, 8192").split('\n')
    R, R0 = DN_R, DN_R0
    seq = []
    for s in range(28 - R):
        seq += [(s, a) for a in (3, 2, 1)]
        if s < 28 - R0: seq.append((s, 0))
    seq += [(s, a) for a in (3, 2, 1) for s in range(28 - R, 28)] + [(s, 0) for s in range(28 - R0, 28)]
    lo = [min(2*s_ + (a_ & 1) for s_, a_ in seq[m:]) for m in range(112)]
    wr = []; rt = None; tail = None; res = None; wb = False; adds = []
    for m, (s, a) in enumerate(seq):
        r = order[s]
        if len(DN_CHK) == 1 and m == DN_CHK2:
            dn.ap.check()
            k(f"s_add_u32 s{dn.sFl}, s{dn.sFl}, {8*KB}")
            xq.hold = 40
        if m == int(4*DN_PUBB): publish_local(k, dn.tB)
        if UP4 and m == DN_POLL3: dn.ap.issue()
        if UP4 and m == DN_CHK3:
            dn.ap.check()
            k(f"s_add_u32 s{dn.sFl}, s{dn.sFl}, {8*KB}")
            xq.hold = 48
        if m == 4*DN_BAR:
            ring.limit = None
            ring.sync(296, 0)
        if m == 4*DN_POLLB:
            apb = dn.ap
            apb.issue()
            rt = load_res(k, vRES)
        if m == 4*DN_CHKB:
            apb.check()
            xq.hold = 56
            xq.issue_n(min(3, lo[m] + NX - xq.n))
        xi = 2*s + (a & 1)
        while xq.n <= xi:
            assert xq.n < xq.hold and xq.n < lo[m] + NX
            xq.issue_n(1)
        k.wait(vm=xq.t[xi])
        acc = vr(vACC + 16*a, 16)
        k(f"v_mfma_f32_32x32x16_bf16 {acc}, {ar(aWD + 8*r + 4*(a >> 1))}, {dn.xr(xi)}, {'0' if s == 0 else acc}")
        if m == 0: mark(k, 'm0')
        if m in GEMM_MARKS.get(G.ph, ()): mark(k, f'm{m}')
        if (m % 2 == 0 or (xq.hold == 56 and m % DN_CR == 0)) and xq.n < min(lo[m] + NX, xq.total, xq.hold): xq.issue_n(1)
        elif m % 2 == 0 and xq.n == xq.total and ring.can_issue(): ring.issue()
        elif m > 4*DN_CHKB + 8:
            if res is None:
                k.wait(vm=rt); res = True
                side += res_unpack(vSUM, vRES)
            for _ in range(4):
                if side: k(side.pop(0))
        if final and WB_MASK is not None and xq.n == xq.total and (WB_EARLY or k.vm_done == k.vm_issued) and not wb:
            wb = True; l_ = k.newlabel('wb')
            k(f"s_lshl_b32 s{sT1}, s{sC}, 2\ns_add_u32 s{sT1}, s{sT1}, s{sW}\ns_and_b32 s{sT1}, s{sT1}, {WB_MASK}")
            if WB_EARLY:
                k(f"s_cbranch_scc0 {l_}")
                k.vm(f"buffer_load_dword v15, off, {srd(sWS)}, s{dn.sFl} sc1")
                k.label(l_ + 'r')
                G.far += [f"{l_}:", "buffer_wbl2 sc1", f"s_branch {l_}r"]
            else:
                k(f"s_cbranch_scc1 {l_}")
                k("buffer_wbl2 sc1")
                k.label(l_)
            print('wbl2 at', m, file=sys.stderr)
        if wr and wr[0][0] <= m:
            assert not side
            for _ in range(min(DN_WR, len(wr))):
                if wr[0][0] <= m: k.lg(wr.pop(0)[1])
            if wr and DN_WR == 1: wr[0] = (max(wr[0][0], m + DN_WGAP), wr[0][1])
            if not wr and a == 0: tail = min(m + 2, 111)
        if s == 27 and a:
            wr += [(m + 2, f"ds_write_b128 v{5+a}, {vr(vACC+16*a+4*j)} offset:{j*KB}") for j in range(4)]
        def fetch(bs):
            k("s_barrier")
            for b in bs:
                for j in range(4): t_ = k.lg(f"ds_read_b128 {vr(vACC+16+16*b+4*j)}, v9 offset:{b*4*KB + j*KB}")
                adds.extend((m + 2, t_, f"v_add_f32 v{vSUM+i}, v{vSUM+i}, v{vACC+16+16*b+i}") for i in range(16))
        if DN_X2 and m == 112 - R0:
            assert all('ds_write_b128 v6,' in x[1] for x in wr)
            k.wait_all(vm=False)
            fetch((2, 1))
        elif tail == m:
            k.wait_all(vm=False)
            fetch((0,) if DN_X2 else (2, 1, 0))
        else:
            for _ in range(DN_ADDS):
                if adds and adds[0][0] <= m:
                    _, t_, x = adds.pop(0); k.wait(lg=t_); k(x)
    assert not side and not wr and tail is not None and tail < 112
    for _, t_, x in adds:
        k.wait(lg=t_); k(x)
    if final and not OUT_T: rowmajor_addr(k, 6, sT0)
    for j in range(8):
        k(f"v_add_f32 v{vACC+2*j}, v{vACC+2*j}, v{vSUM+2*j}\nv_add_f32 v{vACC+2*j+1}, v{vACC+2*j+1}, v{vSUM+2*j+1}")
        k(f"v_cvt_pk_bf16_f32 v{vPK+j}, v{vACC+2*j}, v{vACC+2*j+1}")
        if final and OUT_T and j in (3, 7): k.lg(f"ds_write_b128 v10, {vr(vPK+j-3)} offset:{(j >> 2)*32}")
    if final and OUT_T:
        k.wait_all(vm=False)
        k("s_barrier")
        t0 = k.lg(f"ds_read_b128 {vr(vPK)}, v11")
        t1 = k.lg(f"ds_read_b128 {vr(vPK+4)}, v11 offset:{8*144}")
        k.wait(lg=t0)
        k.vm(f"buffer_store_dwordx4 {vr(vPK)}, v13, {srd(sAUX)}, s{sT0} offen{OUT_SC}")
        k.wait(lg=t1)
        k.vm(f"buffer_store_dwordx4 {vr(vPK+4)}, v13, {srd(sAUX)}, s{sT2} offen{OUT_SC}")
    elif final:
        k.vm(f"buffer_store_dwordx4 {vr(vPK)}, v6, {srd(sAUX)}, s{sT0} offen{OUT_SC}")
        k.vm(f"buffer_store_dwordx4 {vr(vPK+4)}, v6, {srd(sAUX)}, s{sT0} offen offset:32{OUT_SC}")
    else:
        G.tx = store_x(k, vACC, vPK, L, 8, ring)
    mark(k, 'end')

def k_main(name):
    k = Asm()
    G.nst = 0
    k(f".globl {name}\n.p2align 8\n.type {name},@function")
    k.label(name)
    if STAMP or PADTO: k("s_memrealtime s[42:43]")
    mark(k, 'start')
    k("s_cmp_ge_u32 s2, 256")
    k("s_cbranch_scc1 L_abort")
    k(f"s_load_dwordx2 s[{sWS}:{sWS+1}], s[0:1], 72")
    k(f"s_load_dwordx2 s[{sAUX}:{sAUX+1}], s[0:1], 56")
    k("s_load_dwordx2 s[60:61], s[0:1], 0\ns_load_dwordx4 s[64:67], s[0:1], 8\ns_load_dwordx4 s[68:71], s[0:1], 32\ns_load_dwordx2 s[72:73], s[0:1], 48")
    k("v_lshrrev_b32 v2, 6, v0")
    k(f"v_and_b32 v{vL16}, 63, v0")
    k(f"v_readfirstlane_b32 s{sW}, v2")
    k(f"v_lshlrev_b32 v{vL16}, 4, v{vL16}")
    k(f"s_mov_b32 s{sWG}, s2\ns_and_b32 s{sG}, s2, 7\ns_lshr_b32 s{sC}, s2, 3\ns_lshl_b32 s{sW1K}, s{sW}, 10")
    k(f"s_lshr_b32 s{sC4}, s{sC}, 4\ns_lshr_b32 s{sC3}, s{sC}, 3")
    k(f"s_lshl_b32 s{sU}, s{sG}, 5\ns_add_u32 s{sU}, s{sU}, s{sC}")
    k(f"s_lshl_b32 s{sW4K}, s{sW}, 12")
    k(f"s_getreg_b32 s{sXCC}, hwreg(HW_REG_XCC_ID, 0, 4)")
    k(f"v_add_u32 v{vSRC}, s{sW1K}, v{vL16}")
    k(f"s_mov_b32 s{sMSK}, 0xffff\ns_mov_b32 s{sMSK+1}, 0xffff\ns_mov_b32 s{sMODE}, 0")
    k(f"s_and_b32 s{sT0}, s{sC}, 7\ns_mul_i32 s{sSEG}, s{sT0}, {WO_STR}\ns_add_u32 s{sSEG}, s{sSEG}, {WO}")
    k(f"s_lshl_b32 s{sT1}, s{sG}, 2\ns_add_u32 s{sT1}, s{sT1}, s{sC3}\ns_lshl_b32 s{sT1}, s{sT1}, 1\ns_and_b32 s{sT2}, s{sW}, 1\ns_add_u32 s{sT1}, s{sT1}, s{sT2}")
    k(f"s_lshl_b32 s{sT1}, s{sT1}, 5\ns_lshl_b32 s{sT0}, s{sT0}, 2\ns_add_u32 s{sT1}, s{sT1}, s{sT0}\ns_and_b32 s{sT2}, s{sW}, 2\ns_add_u32 s{sT1}, s{sT1}, s{sT2}\ns_lshl_b32 s{sDST}, s{sT1}, 10")
    k(f"s_lshr_b32 s{sSD}, s{sDST}, 12\ns_lshl_b32 s{sSD}, s{sSD}, 9\ns_lshl_b32 s{sT2}, s{sT2}, 2\ns_add_u32 s{sSD}, s{sSD}, s{sT2}\ns_add_u32 s{sSD}, s{sSD}, {SX}")
    k(f"s_and_b32 s{sT0}, s{sC}, 15\ns_mul_i32 s{sSEG+1}, s{sT0}, {WU_STR}\ns_add_u32 s{sSEG+1}, s{sSEG+1}, {WU}")
    k(f"s_mul_i32 s{sSEG+2}, s{sT0}, {WQ_STR}\ns_add_u32 s{sSEG+2}, s{sSEG+2}, {WQ}")
    def late(k):
        if WSOFF: k(f"s_add_u32 s{sWS}, s{sWS}, {WSOFF}\ns_addc_u32 s{sWS+1}, s{sWS+1}, 0")
        k(f"s_add_u32 s{sT0}, s{sWS}, {EP}\ns_addc_u32 s{sT1}, s{sWS+1}, 0")
        k(f"s_load_dwordx2 s[{sTAG}:{sTAG+1}], s[{sT0}:{sT1}], 0")
        k(f"s_and_b32 s{sWS+1}, s{sWS+1}, 0xffff\ns_mov_b32 s{sWS+2}, {0x10000000 - WSOFF}\ns_mov_b32 s{sWS+3}, 0x20000")
        k(f"s_and_b32 s{sAUX+1}, s{sAUX+1}, 0xffff\ns_mov_b32 s{sAUX+2}, {2*MB}\ns_mov_b32 s{sAUX+3}, 0x20000")
    G.ph = 'qkv0'; tk = ph_qkv0(k, late)
    for L in range(2):
        ring = Ring(k, [(sSEG, 64), (sSEG+1, 232)] + ([(sSEG+2, 100)] if L == 0 else []))
        G.ph = f'att{L}'; tO = ph_att(k, L, ring, *tk)
        G.ph = f'wo{L}'; tx = ph_wo(k, L, ring, tO)
        G.ph = f'up{L}'; tB = ph_up(k, L, ring, 64, tx)
        G.ph = f'dn{L}'; ph_down(k, L, ring, tB)
        G.ph = 'qkv1'
        if L == 0: tk = ph_qkv(k, 1, ring, 296)
    k(f"s_add_u32 s{sT0}, s{sWG}, s{sW}\ns_cmp_lg_u32 s{sT0}, 0\ns_cbranch_scc1 L_fin")
    k(f"s_mov_b32 s{sF}, {EP}")
    publish_local(k, None, force_global=True)
    k.label("L_fin")
    if PADTO:
        k("s_waitcnt vmcnt(0)")
        if PADMIN:
            k("s_load_dwordx2 s[64:65], s[0:1], 64\ns_waitcnt lgkmcnt(0)")
            k("s_not_b32 s66, s42\nv_mov_b32 v8, s66\nv_mov_b32 v9, 0\ns_mov_b64 exec, 1")
            k("global_atomic_umax v9, v8, s[64:65]\ns_waitcnt vmcnt(0)")
            k.label("L_pad0")
            k(f"s_memrealtime s[98:99]\ns_waitcnt lgkmcnt(0)\ns_sub_u32 s98, s98, s42\ns_cmp_lt_u32 s98, {PADTO - 1500}\ns_cbranch_scc1 L_pad0")
            k("global_load_dword v8, v9, s[64:65] sc1\ns_waitcnt vmcnt(0)\nv_readfirstlane_b32 s66, v8\ns_not_b32 s42, s66\ns_mov_b64 exec, -1")
        k.label("L_pad")
        k(f"s_memrealtime s[98:99]\ns_waitcnt lgkmcnt(0)\ns_sub_u32 s98, s98, s42\ns_cmp_lt_u32 s98, {PADTO}\ns_cbranch_scc1 L_pad")
    if STAMP:
        k("s_waitcnt vmcnt(0)")
        G.ph = ''; mark(k, 'fin')
        k("s_memrealtime s[98:99]\ns_waitcnt lgkmcnt(0)")
        vals = [42, 98, sMODE] + STS[:G.nst]
        for i, s_ in enumerate(vals): k(f"v_mov_b32 v{16+i}, s{s_}")
        k(f"s_lshl_b32 s{sT0}, s{sWG}, 2\ns_add_u32 s{sT0}, s{sT0}, s{sW}\ns_lshl_b32 s{sT0}, s{sT0}, 7\ns_add_u32 s{sT0}, s{sT0}, {TS}")
        k("v_mov_b32 v4, 0\ns_mov_b64 exec, 1")
        for j in range(8): k(f"buffer_store_dwordx4 {vr(16+4*j)}, v4, {srd(sWS)}, s{sT0} offen offset:{16*j}")
        if DBG is not None:
            k(f"s_lshl_b32 s{sT0}, s{sWG}, 2\ns_add_u32 s{sT0}, s{sT0}, s{sW}\ns_cmp_lg_u32 s{sT0}, {DBG}\ns_cbranch_scc1 L_nodbg")
            k("s_load_dwordx2 s[64:65], s[0:1], 64\ns_waitcnt lgkmcnt(0)")
            for i in range(16): k(f"v_sub_u32 v{64+i}, v{20+i}, v19")
            for j in range(4): k(f"global_store_dwordx4 v4, {vr(64+4*j)}, s[64:65] offset:{16*j}")
            k.label("L_nodbg")
    k("s_waitcnt vmcnt(0)")
    k.label("L_abort")
    k("s_endpgm")
    for x in G.far:
        if x.endswith(':'): k.label(x[:-1])
        else: k(x)
    k(".fill 8448, 4, 0xbf800000")
    return k

def build():
    name = NAME + "_kernel"
    k = k_main(name)
    nn = k.fix()
    print(f"{len(k.L)} lines, {nn} nop states", file=sys.stderr)
    return f"""; stamps: {','.join(G.names)}
; @launch grid=(256,1,1) block=(256,1,1) lds={160*KB}
.amdgcn_target "amdgcn-amd-amdhsa--gfx950"
.text
{k.text()}
.section .rodata,"a"
.p2align 6
.amdhsa_kernel {name}
  .amdhsa_next_free_vgpr 512
  .amdhsa_next_free_sgpr 102
  .amdhsa_accum_offset 256
  .amdhsa_group_segment_fixed_size 0
  .amdhsa_kernarg_size 80
  .amdhsa_user_sgpr_count 2
  .amdhsa_user_sgpr_kernarg_segment_ptr 1
  .amdhsa_system_sgpr_workgroup_id_x 1
.end_amdhsa_kernel
"""

if __name__ == "__main__":
    for a in sys.argv[2:]:
        kk_, vv_ = a.split('=', 1)
        globals()[kk_] = eval(vv_)
    open(sys.argv[1], "w").write(build())
```

```python
import sys, struct
from asmlib import Asm

NAME = "interleave_layers__mha_block__glu_gated_bilinear__prompt"
KB = 1024; MB = KB * KB
LOG2E = 1.4426950408889634
def f2u(x): return struct.unpack('<I', struct.pack('<f', x))[0]
def srd(b): return f"s[{b}:{b+3}]"
def vr(b, n=4): return f"v[{b}:{b+n-1}]"
def ar(b, n=4): return f"a[{b}:{b+n-1}]"

WQ = 0;                    WQ_STR = 100 * KB
WO = WQ + 16 * WQ_STR;     WO_STR = 64 * KB
WU = WO + 8 * WO_STR;      WU_STR = 232 * KB
WD = WU + 16 * WU_STR
FL = 7 * MB + 640 * KB
assert WD + 16 * 112 * KB <= FL
EP = FL
XID = FL + 1 * KB
def FLOC(L, p): return FL + 4 * KB + (L * 13 + p) * 8 * KB
FKV0 = FL + 4 * KB + 26 * 8 * KB
def FKV(L): return FKV0 + L * 32 * KB
FPK = FKV0 + 64 * KB
assert FPK + 32 * KB <= 8 * MB
XF = 8 * MB
HF = 10 * MB
QF = HF
SX = 17 * MB
def KVF(L): return 18 * MB + L * 4 * MB
WS_PAGES = 13
TS = 27 * MB
DUMP = 0x7ff00000

STAMP = False
GATE = None
WB_EARLY = False
DIAG_NOP = {}
UP4 = False; DN_POLL3 = 18; DN_CHK3 = 30
DN_X2 = True; DN_ADDS = 5; DN_CR = 2
RES_LATE = (False, False); XRES_TOUCH = 0
HEAD = 0
QKV_QE = 10; QKV_EPI = 5
R1_AT = 44; R1_STEP = 8
KV_LOC = True
PADTO = 0; PADMIN = False
OUT_T = True
ATT_NT = 2
PK_WIN2 = False; PK_SP = 0
WARM_AT = 1
RT = False
DN_CHK2 = 4
CT_AT = 92
FORCE_FB = False
WB_MASK = 127; OUT_SC = ' sc1'; DN_WR = 1; DN_WGAP = 2
QW_LATE = False; QW_UP = 64; QW_TOUCH = (72, 100); QW_N1 = 4
PK_Q0 = False; PK_RD = 1; PK_ST = 3; CHK_Q0 = 15
WO_STOP = 26; WO_R0 = 8; WO_N0 = 10; ST_PRE = 2; PPOLL = 0; KV_PF = (0, 0); PK_EARLY = True
FL_TOUCH = False
SPLIT_ST = True
FINE = False
UP_EPI = 2; UP_PUB = (154, 206); DN_POLL = (172, 226); DN_CHK = (186,); UP_LOOK = 8; UP_SYNCS = {0, 48, 80, 112, 144, 176, 200}; UP_SKIP = (0, 0); UP_STOP = 222
DN_PUBB = 4; DN_BAR = 14; DN_POLLB = 7; DN_CHKB = 12; DN_R = 8; DN_R0 = 12
FLAG_TOUCH = False
WSOFF = 0
SLEEP1 = (0, 0); SLEEP2 = 0; SLEEP3 = 0
DBG = None
PRE = 4; PRE2 = 0
PRE_WO = 5; PRE_WO2 = 0
CODE_TOUCH = True
WD_SLOTS = (2, 4, 6)
TOUCH_AT = (93, 90); TOUCH_STEP = (3, 4); TOUCH_LN = 32; TH_STEP = 3; TOUCH_KBS = (96, 96)
RING = 144
PK_T0 = 7; PK_GAP = 6; PK_GAP2 = 9; CHK_GAP = 14
P2_AT = 6
P2_LEAD = 4
TACTS = (102, 102); EARLY_H = 0

sC4, sC3 = 2, 3
sWS, sAUX = 4, 8
sW, sG, sC, sW1K = 12, 13, 14, 15
sT0, sT1, sT2, sT3 = 16, 17, 18, 19
sX, sRS, sRB = 20, 21, 22
sA, sB, sCc, sD, sE = 23, 24, 25, 26, 27
sS0, sS1 = 28, 21
sMSK, sTAG, sMODE, sXCC = 30, 32, 34, 35
sSEG = 36
sX2 = 39
sSPIN, sF = 40, 41
STS = list(range(44, 56, 2)) + [92, 94, 56, 58, 74, 76, 80, 82, 86, 88, 60, 62]
sWG = 101
sW4K = 97
sSD = 29
sPC, sCT = 90, 85
sDST = 100
vL16, vSRC, vB = 1, 2, 3
aWD, aWB = 0, 224

class G:
    nst = 0
    names = []
    far = []
    ph = ''
SKIP = ''
ATT_MARKS = ()
GEMM_MARKS = {}
def mark(k, nm='x'):
    import re
    nm = G.ph + '_' + nm
    if GATE and GATE[0] == nm:
        k.label("L_gate")
        k(f"s_memrealtime s[98:99]\ns_waitcnt lgkmcnt(0)\ns_sub_u32 s98, s98, s42\ns_cmp_lt_u32 s98, {GATE[1]}\ns_cbranch_scc1 L_gate")
    if SKIP and re.match(SKIP, nm): return
    if '_f_' in nm and not FINE: return
    if STAMP:
        G.names.append(nm)
        k(f"s_mem{'real' if RT else ''}time s[{STS[G.nst]}:{STS[G.nst]+1}]")
        G.nst += 1

class Ring:
    def __init__(self, k, segs):
        self.k = k; self.N = RING
        self.total = sum(n for _, n in segs)
        self.starts = {}
        b = 0
        for s, n in segs:
            assert n % 4 == 0
            self.starts[b] = s; b += n
        self.issued = 0; self.freed = 0; self.visible = 0
        self.limit = None
        self.tick = {}
    def can_issue(self):
        if self.limit is not None and self.issued + 4 > self.limit: return False
        return self.issued < self.total and self.issued + 4 <= self.freed + self.N
    def issue(self):
        k = self.k
        assert self.can_issue()
        slot = self.issued % self.N
        k(f"s_add_u32 m0, s{sW1K}, {slot*KB}")
        if self.issued in self.starts: k(f"s_mov_b32 s{sRS}, s{self.starts[self.issued]}")
        else: k(f"s_add_u32 s{sRS}, s{sRS}, 4096")
        self.tick[self.issued // 4] = k.vm(f"buffer_load_dwordx4 v{vSRC}, {srd(sWS)}, s{sRS} offen sc1 lds")
        self.issued += 4
    def issue16(self):
        k = self.k
        b = self.issued; slot = b % self.N
        assert slot + 16 <= self.N and b + 16 <= min(self.limit or 1 << 30, self.freed + self.N)
        assert not any(x in self.starts for x in range(b + 1, b + 16))
        k(f"s_add_u32 m0, s{sW4K}, {slot*KB}")
        if b in self.starts: k(f"s_add_u32 s{sRS}, s{self.starts[b]}, s{sW4K}")
        else: k(f"s_add_u32 s{sRS}, s{sRS}, 16384")
        for i in range(4):
            t = k.vm(f"buffer_load_dwordx4 v{vL16}, {srd(sWS)}, s{sRS} offen offset:{i*KB} sc1 lds")
        for q in range(4): self.tick[b // 4 + q] = t
        self.issued += 16
    def end16(self):
        self.k(f"s_sub_u32 s{sRS}, s{sRS}, s{sW4K}\ns_add_u32 s{sRS}, s{sRS}, 12288")
    def issue_n(self, n):
        for _ in range(n):
            if self.can_issue(): self.issue()
    def sync(self, consumed, need):
        k = self.k
        need = min(need, self.total)
        if need > self.visible:
            q = (need - 1) // 4
            assert q * 4 < self.issued, (need, self.issued)
            k.wait(vm=self.tick[q])
        k("s_barrier")
        q = self.visible // 4
        while q in self.tick and self.tick[q] <= k.vm_done: q += 1
        self.visible = q * 4
        assert self.visible >= need
        self.freed = max(self.freed, (consumed // 4) * 4)
    def addr(self, b): return (b % self.N) * KB

def set_lds_bases(k, extra_s=None):
    if extra_s is None: k(f"v_mov_b32 v{vB}, v{vL16}")
    else: k(f"v_add_u32 v{vB}, s{extra_s}, v{vL16}")
    k(f"v_add_u32 v{vB+1}, 0x10000, v{vB}")
    k(f"v_add_u32 v{vB+2}, 0x20000, v{vB}")

class XLoader:
    def __init__(self, k, total, reg, src):
        self.k = k; self.total = total; self.reg = reg; self.src = src; self.n = 0; self.t = []
        self.hold = total
    def issue_n(self, n):
        k = self.k
        for _ in range(n):
            i = self.n
            if i >= min(self.total, self.hold): return
            s_, imm = self.src(i)
            self.t.append(k.vm(f"buffer_load_dwordx4 {self.reg(i)}, v{vL16}, {srd(sWS)}, s{s_} offen offset:{imm} sc1"))
            self.n += 1
def lin_src(k):
    def f(i):
        if i and (i & 3) == 0: k(f"s_add_u32 s{sX}, s{sX}, 4096")
        return sX, (i & 3) * KB
    return f

class Gemm:
    def __init__(self, k, ring, ops, syncs, D=4, NB=8, stop_issue=None):
        self.k = k; self.ring = ring; self.ops = ops; self.syncs = sorted(syncs)
        assert all(x % 2 == 0 for x in syncs)
        self.D = D; self.NB = NB; self.tl = {}; self.nread = 0
        self.stop = stop_issue if stop_issue is not None else len(ops)
    def rd(self):
        k = self.k; m = self.nread; o = self.ops[m]
        assert o['bmax'] < self.ring.visible, (m, o['b'], self.ring.visible)
        a = self.ring.addr(o['b'])
        self.tl[m] = k.lg(f"ds_read_b128 {ar(aWB + 4*(m % self.NB))}, v{vB + (a >> 16)} offset:{a & 0xffff}")
        self.nread += 1
    def need_until(self, m):
        M = len(self.ops)
        nxt = [s for s in self.syncs if s > m]
        last = min((nxt[0] if nxt else M) - 1 + self.D, M - 1)
        return max(o['bmax'] for o in self.ops[:last+1]) + 1
    def start(self):
        self.ring.sync(self.ops[0]['bmin'], self.need_until(0))
        while self.nread < min(self.D, len(self.ops)): self.rd()
    def run(self, xq, n0=6, look=10, filler=None, misc=(), misc_from=0, skip=0):
        k = self.k; M = len(self.ops)
        misc = list(misc)
        xq.issue_n(n0)
        cur = 0
        for m in range(M):
            if m in self.syncs and m > 0:
                self.ring.sync(self.ops[m]['bmin'], self.need_until(m))
            o = self.ops[m]
            xt = None
            if m % 2 == 0:
                xs = [p['xi'] for p in self.ops[m:m+2] if p.get('xi') is not None]
                if xs:
                    cur = max(cur, max(xs))
                    while xq.n <= max(xs): xq.issue_n(1)
                    xt = xq.t[max(xs)]
                k.wait(vm=xt, lg=self.tl[min(m + 1, M - 1)])
            w = ar(aWB + 4*(m % self.NB))
            c = o.get('c0', '0') if o['first'] else o['acc']
            A, B = (o['x'], w) if o['swap'] else (w, o['x'])
            k(f"v_mfma_f32_32x32x16_bf16 {o['acc']}, {A}, {B}, {c}")
            if m == 0: mark(k, 'm0')
            if m in GEMM_MARKS.get(G.ph, ()): mark(k, f'm{m}')
            if m % 2 == 0:
                for _ in range(2):
                    if self.nread < M: self.rd()
                if DIAG_NOP.get(G.ph): k(f"s_nop {DIAG_NOP[G.ph]}")
            elif not (skip and m % skip == skip - 1):
                rok = m < self.stop and self.ring.can_issue()
                if xq.n < xq.total and (xq.n - cur < look or not (rok or (misc and m >= misc_from))): xq.issue_n(1)
                elif misc and m >= misc_from: misc.pop(0)()
                elif rok: self.ring.issue()
            if filler: filler(m)
        assert not misc

def stats_emitters(k, vt, res):
    k(f"s_lshl_b32 s{sS0}, s{sRB}, 12\ns_add_u32 s{sS0}, s{sS0}, {SX}")
    def mk(i):
        def f(): res['t'] = k.vm(f"buffer_load_dwordx4 {vr(vt+4*i)}, v{vL16}, {srd(sWS)}, s{sS0} offen offset:{i*KB} sc1")
        return f
    return [mk(i) for i in range(4)]

NTREE = 14
def fin_stats(vt, vext, vrstd):
    ins = []
    n = 8
    while n > 1:
        h = n // 2
        for i in range(h):
            ins.append(f"v_add_f32 v{vt+2*i}, v{vt+2*i}, v{vt+2*(i+h)}")
            ins.append(f"v_add_f32 v{vt+2*i+1}, v{vt+2*i+1}, v{vt+2*(i+h)+1}")
        n = h
    a, b, c, d = vt, vt+1, vt+2, vt+3
    ins += [f"v_mov_b32 v{c}, v{a}", f"v_mov_b32 v{d}, v{b}",
            f"v_permlane32_swap_b32 v{a}, v{c}", f"v_permlane32_swap_b32 v{b}, v{d}",
            f"v_add_f32 v{a}, v{a}, v{c}", f"v_add_f32 v{b}, v{b}, v{d}",
            f"v_mul_f32 v{a}, {hex(f2u(-1.0/512))}, v{a}",
            f"v_mul_f32 v{b}, {hex(f2u(1.0/512))}, v{b}",
            f"v_fma_f32 v{b}, -v{a}, v{a}, v{b}",
            f"v_max_f32 v{b}, 0, v{b}",
            f"v_add_f32 v{b}, {hex(f2u(1e-5))}, v{b}",
            f"v_rsq_f32 v{vrstd}, v{b}",
            f"v_cvt_pk_bf16_f32 v{vext}, v{a}, v{a}",
            f"v_and_b32 v{c}, 0xffff0000, v{vext}",
            f"v_sub_f32 v{c}, v{a}, v{c}",
            f"v_cvt_pk_bf16_f32 v{vext+1}, v{c}, 0",
            f"v_mov_b32 v{vext+2}, v{vext}", f"v_mov_b32 v{vext+3}, v{vext+1}"]
    return ins

def poll(k, vaddr, vpd, sleep=0):
    l = k.newlabel('poll')
    k(f"s_mov_b32 s{sSPIN}, 0x40000")
    k.label(l)
    k.vm(f"buffer_load_dwordx2 {vr(vpd,2)}, v{vaddr}, {srd(sWS)}, s{sF} offen sc1")
    k(f"s_sub_u32 s{sSPIN}, s{sSPIN}, 1")
    k("s_cbranch_scc1 L_abort")
    k.wait_all(lg=False)
    k(f"v_cmp_ne_u64 vcc, s[{sTAG}:{sTAG+1}], {vr(vpd,2)}")
    k(f"s_cbranch_vccnz {l}")
class APoll:
    def __init__(self, k, loads, cmp, sleep=0):
        self.k = k; self.loads = loads; self.cmp = cmp; self.sleep = sleep
    def issue(self):
        for x in self.loads: self.t = self.k.vm(x)
    def check(self):
        k = self.k
        l = k.newlabel('ap'); ok = k.newlabel('apok')
        k.wait(vm=self.t)
        k(self.cmp)
        k(f"s_cbranch_vccnz {l}")
        k.label(ok)
        G.far += [f"{l}:", f"s_mov_b32 s{sSPIN}, 0x40000", f"{l}_l:"] + list(self.loads) + [
            f"s_sub_u32 s{sSPIN}, s{sSPIN}, 1", "s_cbranch_scc1 L_abort", "s_waitcnt vmcnt(0)", self.cmp,
            f"s_cbranch_vccnz {l}_l", f"s_branch {ok}"]
def apoll1(k, vaddr, vpd, soff, sleep=0):
    return APoll(k, [f"buffer_load_dwordx2 {vr(vpd,2)}, v{vaddr}, {srd(sWS)}, s{soff} offen sc1"],
                 f"v_cmp_ne_u64 vcc, s[{sTAG}:{sTAG+1}], {vr(vpd,2)}", sleep)
def poll16(k):
    k("v_and_b32 v13, 15, v0\nv_lshlrev_b32 v13, 3, v13")
    poll(k, 13, 14)

def publish_local(k, last_store, force_global=False):
    k(f"v_mov_b32 v14, s{sTAG}\nv_mov_b32 v15, s{sTAG+1}")
    if force_global:
        k.wait(vm=last_store)
        k.vm(f"buffer_store_dwordx2 v[14:15], off, {srd(sWS)}, s{sF} sc1")
        return
    slow = k.newlabel('slow'); join = k.newlabel('join')
    k(f"s_cmp_eq_u32 s{sMODE}, 0")
    k(f"s_cbranch_scc1 {slow}")
    k.wait(vm=last_store)
    k.vm(f"buffer_store_dwordx2 v[14:15], off, {srd(sWS)}, s{sF}")
    k.label(join)
    G.far += [f"{slow}:", "s_waitcnt vmcnt(0)", "buffer_wbl2 sc1", "s_waitcnt vmcnt(0)",
              f"buffer_store_dwordx2 v[14:15], off, {srd(sWS)}, s{sF} sc1", f"s_branch {join}"]
def publish_wg(k, last_store, xid=False, barrier=True):
    l = k.newlabel('pw')
    k(f"v_mov_b32 v13, 0\nv_mov_b32 v14, s{sTAG}\nv_mov_b32 v15, s{sTAG+1}")
    k.wait(vm=last_store)
    if barrier: k("s_barrier")
    k(f"s_cmp_lg_u32 s{sW}, 0\ns_cbranch_scc1 {l}")
    k("s_mov_b64 exec, 1")
    if xid:
        k(f"v_xor_b32 v12, s{sXCC}, v14\nv_mov_b32 v13, v15")
        k(f"buffer_store_dwordx4 v[12:15], v{vL16}, {srd(sWS)}, s{sF} offen sc1")
    else:
        k(f"buffer_store_dwordx2 v[14:15], v13, {srd(sWS)}, s{sF} offen sc1")
    k("s_mov_b64 exec, -1")
    k.label(l)

def rb_128(k):
    k(f"s_lshl_b32 s{sT0}, s{sC4}, 2\ns_lshl_b32 s{sRB}, s{sG}, 3\ns_add_u32 s{sRB}, s{sRB}, s{sT0}\ns_add_u32 s{sRB}, s{sRB}, s{sW}")

def store_x(k, acc, pk, L, p, ring=None):
    k(f"s_add_u32 s{sT1}, s{sDST}, {XF}")
    k.vm(f"buffer_store_dwordx4 {vr(pk)}, v{vL16}, {srd(sWS)}, s{sT1} offen")
    td = k.vm(f"buffer_store_dwordx4 {vr(pk+4)}, v{vL16}, {srd(sWS)}, s{sT1} offen offset:1024")
    mark(k, 'f_xs')
    k(f"v_add_f32 v10, v{acc}, v{acc+1}\nv_mul_f32 v11, v{acc}, v{acc}\nv_add_f32 v8, v{acc+2}, v{acc+3}\nv_mul_f32 v9, v{acc+1}, v{acc+1}")
    k(f"v_fmac_f32 v11, v{acc+2}, v{acc+2}\nv_fmac_f32 v9, v{acc+3}, v{acc+3}")
    for i in range(4, 16, 2):
        k(f"v_add_f32 v10, v10, v{acc+i}\nv_fmac_f32 v11, v{acc+i}, v{acc+i}\nv_add_f32 v8, v8, v{acc+i+1}\nv_fmac_f32 v9, v{acc+i+1}, v{acc+i+1}")
        if ring and i in (4, 10): ring.issue_n(ST_PRE)
    k("v_add_f32 v10, v10, v8\nv_add_f32 v11, v11, v9\nv_mov_b32 v8, v10\nv_mov_b32 v9, v11")
    k("v_permlane32_swap_b32 v10, v8\nv_permlane32_swap_b32 v11, v9\nv_add_f32 v10, v10, v8\nv_add_f32 v11, v11, v9")
    k("s_mov_b32 exec_hi, 0")
    ts = k.vm(f"buffer_store_dwordx2 v[10:11], v{vL16}, {srd(sWS)}, s{sSD} offen")
    k("s_mov_b64 exec, -1")
    k(f"s_lshr_b32 s{sF}, s{sDST}, 8\ns_add_u32 s{sF}, s{sF}, {FLOC(L, p)}")
    mark(k, 'f_ss')
    if SPLIT_ST:
        publish_local(k, td)
        k(f"s_add_u32 s{sF}, s{sF}, {FLOC(L, 6 if p == 1 else 7) - FLOC(L, p)}")
    return ts
def stats_poll(k, delta):
    if not SPLIT_ST: return []
    k(f"s_add_u32 s{sF}, s{sF}, {delta}")
    ap = apoll1(k, 13, 14, sF)
    return ap

def rowmajor_addr(k, va, s_out):
    k(f"v_and_b32 v{va}, 31, v0\nv_lshlrev_b32 v{va}, 10, v{va}\nv_bfe_u32 v{va+1}, v0, 5, 1\nv_lshlrev_b32 v{va+1}, 4, v{va+1}\nv_add_u32 v{va}, v{va}, v{va+1}")
    k(f"s_and_b32 s{s_out}, s{sDST}, 0xffff8000\ns_bfe_u32 s{sT3}, s{sDST}, 0x5000a\ns_lshl_b32 s{sT3}, s{sT3}, 5\ns_add_u32 s{s_out}, s{s_out}, s{sT3}")

sU = 96
def pack_decode(k):
    nm = "pk"; u = f"s{sU}"
    k(f"s_min_u32 s83, {u}, 231")
    u = "s83"
    k(f"s_and_b32 s90, s{sW}, 1\ns_lshr_b32 s91, s{sW}, 1")
    k(f"s_cmp_lt_u32 {u}, 48\ns_cbranch_scc1 {nm}_q")
    k(f"s_cmp_lt_u32 {u}, 160\ns_cbranch_scc1 {nm}_u")
    k(f"s_cmp_lt_u32 {u}, 176\ns_cbranch_scc1 {nm}_o")
    k(f"s_sub_u32 s84, {u}, 176\ns_lshl_b32 s84, s84, 2\ns_add_u32 s84, s84, s{sW}")
    k("s_and_b32 s85, s84, 15\ns_lshr_b32 s86, s84, 4")
    k("s_lshl_b32 s87, s85, 6")
    k("s_add_u32 s74, s72, s87\ns_addc_u32 s75, s73, 0\ns_mov_b32 s76, s74\ns_mov_b32 s77, s75")
    k("s_mov_b32 s78, 1024\ns_lshl_b32 s79, s86, 7")
    k(f"s_mul_i32 s80, s85, 14\ns_add_u32 s80, s80, s86\ns_lshl_b32 s80, s80, 13\ns_add_u32 s80, s80, {WD}\ns_mov_b32 s81, 1024\ns_mov_b32 s82, {DUMP}")
    k(f"s_branch {nm}_go")
    k.label(f"{nm}_o")
    k(f"s_sub_u32 s85, {u}, 160\ns_lshr_b32 s88, s85, 3\ns_and_b32 s85, s85, 7")
    k("s_lshl_b32 s87, s85, 1\ns_add_u32 s87, s87, s90\ns_lshl_b32 s87, s87, 6")
    k("s_add_u32 s74, s66, s87\ns_addc_u32 s75, s67, 0\ns_mov_b32 s76, s74\ns_mov_b32 s77, s75")
    k("s_mov_b32 s78, 1024\ns_lshl_b32 s79, s88, 1\ns_add_u32 s79, s79, s91\ns_lshl_b32 s79, s79, 7")
    k("s_lshl_b32 s89, s91, 15\ns_xor_b32 s90, s90, s88\ns_lshl_b32 s88, s88, 1\ns_add_u32 s90, s90, s88\ns_lshl_b32 s90, s90, 10")
    k(f"s_mul_i32 s80, s85, {WO_STR}\ns_add_u32 s80, s80, s89\ns_add_u32 s80, s80, s90\ns_add_u32 s80, s80, {WO}")
    k(f"s_mov_b32 s81, 4096\ns_mov_b32 s82, {DUMP}")
    k(f"s_branch {nm}_go")
    k.label(f"{nm}_u")
    k(f"s_sub_u32 s85, {u}, 48\ns_mul_i32 s84, s85, 2341\ns_lshr_b32 s84, s84, 16\ns_mul_i32 s86, s84, 28\ns_sub_u32 s85, s85, s86")
    k(f"s_lshl_b32 s85, s85, 2\ns_add_u32 s85, s85, s{sW}\ns_lshl_b32 s87, s85, 5")
    k("s_add_u32 s74, s68, s87\ns_addc_u32 s75, s69, 0")
    k("s_add_u32 s76, s70, s87\ns_addc_u32 s77, s71, 0\ns_sub_u32 s76, s76, 32\ns_subb_u32 s77, s77, 0")
    k("s_mov_b32 s78, 3584")
    k("s_mul_i32 s86, s85, 9363\ns_lshr_b32 s86, s86, 16\ns_mul_i32 s88, s86, 7\ns_sub_u32 s88, s85, s88")
    k(f"s_mul_i32 s91, s86, {WU_STR}\ns_add_u32 s91, s91, {WU}\ns_lshl_b32 s89, s88, 10\ns_add_u32 s91, s91, s89")
    k(f"s_cmp_lt_u32 s88, 5\ns_cselect_b32 s89, 3, 5\ns_lshl_b32 s89, s89, 15")
    k(f"s_cmp_lt_u32 s88, 3\ns_cselect_b32 s81, 3, 2\ns_cselect_b32 s89, 0, s89\ns_lshl_b32 s81, s81, 10\ns_add_u32 s91, s91, s89")
    k(f"s_branch {nm}_ext")
    k.label(f"{nm}_q")
    k(f"s_cmp_ge_u32 {u}, 24\ns_cselect_b32 s84, 2, 0\ns_cselect_b32 s86, 24, 0\ns_add_u32 s84, s84, s91\ns_sub_u32 s85, {u}, s86")
    k("s_lshl_b32 s85, s85, 1\ns_add_u32 s85, s85, s90\ns_and_b32 s86, s85, 15\ns_lshr_b32 s88, s85, 4")
    k("s_lshl_b32 s87, s85, 6\ns_lshl_b32 s89, s88, 10")
    k("s_add_u32 s74, s64, s87\ns_addc_u32 s75, s65, 0\ns_mov_b32 s76, s74\ns_mov_b32 s77, s75")
    k("s_mov_b32 s78, 3072")
    k(f"s_sub_u32 s89, s89, 1024\ns_cmp_eq_u32 s88, 0\ns_cselect_b32 s89, {66*KB}, s89\ns_cselect_b32 s81, 1, 2\ns_lshl_b32 s81, s81, 10")
    k(f"s_mul_i32 s91, s86, {WQ_STR}\ns_add_u32 s91, s91, s89\ns_add_u32 s91, s91, {WQ}")
    k.label(f"{nm}_ext")
    k("s_lshl_b32 s79, s84, 7")
    k("s_lshl_b32 s89, s81, 5\ns_add_u32 s82, s91, s89\ns_lshr_b32 s89, s84, 1\ns_lshl_b32 s89, s89, 9\ns_add_u32 s82, s82, s89")
    k("s_and_b32 s89, s84, 1\ns_lshl_b32 s89, s89, 3\ns_add_u32 s82, s82, s89")
    k("s_lshl_b32 s89, s81, 3\ns_mul_i32 s89, s89, s84\ns_add_u32 s80, s91, s89")
    k.label(f"{nm}_go")
    k(f"s_cmp_ge_u32 s{sU}, 232\ns_cselect_b32 s80, {DUMP}, s80")
    k("v_bfe_u32 v4, v0, 2, 4\nv_add_u32 v4, s79, v4\nv_mul_lo_u32 v4, v4, s78")
    k("v_and_b32 v13, 3, v0\nv_lshlrev_b32 v13, 4, v13\nv_add_u32 v4, v4, v13")
    k(f"s_lshl_b32 s83, s78, 4")
    if PK_Q0: k(f"s_lshl_b32 s84, s{sW}, 13\ns_add_u32 s84, s84, {64*KB}")
    elif PK_EARLY: k(f"s_lshl_b32 s84, s{sW}, 13\ns_add_u32 s84, s84, {4*KB}")
    else: k(f"s_lshl_b32 s84, s{sW}, 14\ns_add_u32 s84, s84, {96*KB}")
    k("s_mov_b32 s86, s83\ns_mov_b32 s87, 0")
    k("v_and_b32 v13, 2, v0\nv_cmp_eq_u32 vcc, 0, v13")
    k("v_mov_b32 v14, s76\nv_mov_b32 v13, s74\nv_cndmask_b32 v14, v14, v13, vcc\nv_mov_b32 v15, s77\nv_mov_b32 v13, s75\nv_cndmask_b32 v15, v15, v13, vcc")
    k("v_add_co_u32 v4, vcc, v4, v14\nv_addc_co_u32 v5, vcc, 0, v15, vcc")
def pack_issue(k, i, sbase):
    k(f"s_add_u32 m0, s{sbase}, {i*KB}")
    if i: k("v_lshl_add_u64 v[4:5], v[4:5], 0, s[86:87]")
    return k.vm("global_load_lds_dwordx4 v[4:5], off")
def tr_addr(k, v, t):
    k(f"v_bfe_u32 v{v}, v0, 5, 1\nv_lshlrev_b32 v{v}, 9, v{v}")
    k(f"v_bfe_u32 v{t}, v0, 2, 2\nv_lshlrev_b32 v{t}, 6, v{t}\nv_add_u32 v{v}, v{v}, v{t}")
    k(f"v_bfe_u32 v{t}, v0, 4, 1\nv_lshlrev_b32 v{t}, 5, v{t}\nv_add_u32 v{v}, v{v}, v{t}")
    k(f"v_and_b32 v{t}, 1, v0\nv_lshlrev_b32 v{t}, 4, v{t}\nv_add_u32 v{v}, v{v}, v{t}")
    k(f"v_bfe_u32 v{t}, v0, 1, 1\nv_lshlrev_b32 v{t}, 3, v{t}\nv_add_u32 v{v}, v{v}, v{t}")
def ext_pair(src, dst, t0):
    return [f"v_mov_b32 v{t0}, v{src}", f"v_permlane32_swap_b32 v{src}, v{t0}", f"v_add_f32 v{src}, v{src}, v{t0}",
            f"v_cvt_pk_bf16_f32 v{dst+1}, v{src}, 0", f"v_lshlrev_b32 v{t0}, 16, v{dst+1}", f"v_sub_f32 v{src}, v{src}, v{t0}",
            f"v_cvt_pk_bf16_f32 v{dst}, v{t0}, v{src}"]
class Pack:
    def __init__(self, k): self.k = k; self.r = {}
    def issue(self, *ii):
        for i in ii: self.d = pack_issue(self.k, i, 84)
    def reads(self, *ii):
        k = self.k
        if ii[0] == 0:
            k("v_accvgpr_read_b32 v4, a212")
            k.wait(vm=self.d)
        for i in ii:
            k.lg(f"ds_read_b64_tr_b16 {ar(160+4*i,2)}, v4 offset:{i*KB}")
            self.r[i] = k.lg(f"ds_read_b64_tr_b16 {ar(162+4*i,2)}, v4 offset:{i*KB+256}")
    def csum(self, i):
        self.k.wait(lg=self.r[i])
        self.k(f"v_mfma_f32_32x32x16_bf16 {ar(196,16)}, {ar(192)}, {ar(160+4*i)}, {'0' if i == 0 else ar(196,16)}")
    def stores(self, *ii):
        k = self.k
        k.wait(lg=self.r[ii[-1]])
        for i in ii:
            k.vm(f"buffer_store_dwordx4 {ar(160+4*i)}, v{vL16}, {srd(sWS)}, s80 offen sc1")
            k("s_add_u32 s80, s80, s81")
    def ext(self):
        k = self.k
        k("v_accvgpr_read_b32 v13, a196")
        k("v_cvt_pk_bf16_f32 v15, v13, 0\nv_lshlrev_b32 v14, 16, v15\nv_sub_f32 v13, v13, v14\nv_cvt_pk_bf16_f32 v14, v14, v13")
        k("s_mov_b32 exec_hi, 0")
        self.s = k.vm(f"buffer_store_dwordx2 v[14:15], v{vL16}, {srd(sWS)}, s82 offen sc1")
        k("s_mov_b64 exec, -1")
    def pub(self):
        k = self.k
        k(f"s_lshl_b32 s{sF}, s{sU}, 7\ns_add_u32 s{sF}, s{sF}, {FPK}")
        publish_wg(k, self.s, xid=True)
    def schedule(self, job):
        t = PK_T0
        if not PK_EARLY:
            for i in range(4): job(t + i, lambda i=i: self.issue(2*i, 2*i+1))
            t += 4 + PK_GAP
        if PK_WIN2:
            job(t, self.pub)
            return t
        if PK_EARLY and PK_SP:
            for i in range(8): job(t + PK_SP*i, lambda i=i: self.stores(i))
            job(t + 8*PK_SP, self.ext)
            job(t + 8*PK_SP + PK_GAP2, self.pub)
            return t + 8*PK_SP + PK_GAP2
        if PK_EARLY:
            for i in range(4): job(t + i, lambda i=i: self.stores(2*i, 2*i+1))
            job(t + 4, self.ext)
            job(t + 4 + PK_GAP2, self.pub)
            return t + 4 + PK_GAP2
        job(t, lambda: self.reads(0, 1, 2, 3)); job(t + 1, lambda: self.reads(4, 5, 6, 7))
        for i in range(4):
            job(t + 2 + i, lambda i=i: self.stores(2*i, 2*i+1))
            job(t + 1 + i, lambda i=i: self.csum(2*i), e=14)
            job(t + 2 + i, lambda i=i: self.csum(2*i+1), e=0)
        job(t + 6, self.ext)
        job(t + 6 + PK_GAP2, self.pub)
        return t + 6 + PK_GAP2
def qkv_consts(vT, vRS, vR):
    return [f"v_cvt_pk_bf16_f32 v{vT}, v{vRS}, 0", f"v_lshlrev_b32 v{vT+1}, 16, v{vT}", f"v_sub_f32 v{vT+2}, v{vRS}, v{vT+1}",
            f"v_cvt_pk_bf16_f32 v{vT}, v{vT+1}, v{vT+2}", f"v_mov_b32 v{vT+1}, 0", f"v_mov_b32 v{vT+2}, 0", f"v_mov_b32 v{vT+3}, 0",
            f"v_cmp_gt_u32 vcc, 512, v{vL16}", f"v_mov_b32 v{vT+4}, 0x3f803f80", f"v_cndmask_b32 v{vT+4}, 0, v{vT+4}, vcc",
            f"v_mov_b32 v{vT+5}, 0", f"v_mov_b32 v{vT+6}, 0", f"v_mov_b32 v{vT+7}, 0",
            f"v_mul_f32 v{vRS+1}, {hex(f2u(0.25*LOG2E))}, v{vRS}",
            "v_bfe_u32 v12, v0, 4, 1", "v_lshlrev_b32 v12, 17, v12", "v_and_b32 v13, 15, v0", "v_lshlrev_b32 v13, 4, v13", "v_add_u32 v12, v12, v13",
            "v_bfe_u32 v13, v0, 5, 1", "v_lshlrev_b32 v13, 8, v13", "v_add_u32 v12, v12, v13",
            f"v_mfma_f32_32x32x16_bf16 {vr(vR,16)}, {vr(vT)}, {vr(vT+4)}, 0"]
def qk_tile(a, dst, sc, fl, p0):
    o = []
    sb, hs = (sB, KB) if dst == QF else (sCc, 128*KB)
    for half in range(2):
        p = p0 + 4*half
        for j in range(4):
            r = a + 8*half + 2*j
            o += [f"v_mul_f32 v{r}, v{r}, v{sc}", f"v_mul_f32 v{r+1}, v{r+1}, v{sc}", f"v_cvt_pk_bf16_f32 v{p+j}, v{r}, v{r+1}"]
        o += [f"s_add_u32 s{sT2}, s{sb}, {dst + half*hs}", f"buffer_store_dwordx4 {vr(p)}, v{vL16}, {srd(sWS)}, s{sT2} offen{fl}"]
    return o
def v_tile(a, L, vR, p0):
    o = [f"s_add_u32 s{sT2}, s{sCc}, {KVF(L) + KB}"]
    for u in range(2):
        p = p0 + 4*u
        for j in range(4):
            r = a + 8*u + 2*j; q = vR + 8*u + 2*j
            o += [f"v_mul_f32 v{r}, v{r}, v{q}", f"v_mul_f32 v{r+1}, v{r+1}, v{q+1}", f"v_cvt_pk_bf16_f32 v{p+j}, v{r}, v{r+1}"]
        o.append(f"buffer_store_dwordx4 {vr(p)}, v12, {srd(sWS)}, s{sT2} offen offset:{u*512} sc1")
    return o
def kv_flag(k, L, tkv):
    k(f"s_lshl_b32 s{sF}, s{sA}, 4\ns_lshr_b32 s{sT1}, s{sRB}, 2\ns_add_u32 s{sF}, s{sF}, s{sT1}\ns_lshl_b32 s{sF}, s{sF}, 7\ns_add_u32 s{sF}, s{sF}, {FKV(L)}")
    publish_wg(k, tkv)
def q_flag(k, L, tq):
    k(f"s_lshr_b32 s{sF}, s{sRB}, 3\ns_lshl_b32 s{sF}, s{sF}, 4\ns_add_u32 s{sF}, s{sF}, s{sA}\ns_lshl_b32 s{sF}, s{sF}, 3\ns_and_b32 s{sT1}, s{sRB}, 7\ns_add_u32 s{sF}, s{sF}, s{sT1}\ns_lshl_b32 s{sF}, s{sF}, 3\ns_add_u32 s{sF}, s{sF}, {FLOC(L-1,5)}")
    publish_local(k, tq, force_global=(L == 0))

WARM = True
LIN_AT = 99
LIN_U = True
Q0_ROT = True
Q0_MARKS = False
Q0_MARKJ = ()
Q0_SCHED = ((3, 4), (5,), (6,), (7,), (), (), (), ())
LATE_AT = 1
Q0_UP = 3
PK_AT = (3, 3, 4, 4, 5, 5, 6, 6)
def ph_qkv0(k, late):
    vX, vACC, vST, vEXT, vRS, vT, vR = 16, 144, 192, 8, 6, 224, 232
    vXA, vWA, vXR, vTR, vTW, vCS, vCW, vONE = 10, 12, 196, 200, 202, 204, 208, 220
    sXS, sWR, sXL, sWL = 60, 56, sD, sE
    k(f"s_lshr_b32 s{sRB}, s{sG}, 1\ns_lshl_b32 s{sRB}, s{sRB}, 2\ns_add_u32 s{sRB}, s{sRB}, s{sC3}\ns_lshl_b32 s{sRB}, s{sRB}, 2\ns_add_u32 s{sRB}, s{sRB}, s{sW}")
    k(f"s_and_b32 s{sA}, s{sG}, 1\ns_lshl_b32 s{sA}, s{sA}, 3\ns_and_b32 s{sT0}, s{sC}, 7\ns_add_u32 s{sA}, s{sA}, s{sT0}")
    k(f"v_bfe_u32 v{vXA}, v0, 3, 3\nv_lshlrev_b32 v{vXA}, 10, v{vXA}\nv_and_b32 v13, 7, v0\nv_bfe_u32 v14, v0, 4, 2\nv_xor_b32 v13, v13, v14")
    k(f"v_lshlrev_b32 v13, 4, v13\nv_add_u32 v{vXA}, v{vXA}, v13\nv_xor_b32 v{vXA+1}, 64, v{vXA}")
    k(f"v_bfe_u32 v{vWA}, v0, 2, 4\nv_mul_u32_u24 v{vWA}, 3072, v{vWA}\nv_and_b32 v13, 3, v0\nv_lshlrev_b32 v13, 4, v13\nv_add_u32 v{vWA}, v{vWA}, v13")
    k(f"s_lshl_b32 s{sX}, s{sRB}, 15")
    k(f"s_mul_i32 s{sX2}, s{sW}, 49152\ns_lshl_b32 s{sT0}, s{sA}, 6\ns_add_u32 s{sX2}, s{sX2}, s{sT0}")
    k(f"s_lshl_b32 s{sXL}, s{sW}, 14\ns_add_u32 s{sXL}, s{sXL}, {96*KB}\ns_mul_i32 s{sWL}, s{sW}, 3072")
    k("s_waitcnt lgkmcnt(0)")
    if Q0_MARKS: mark(k, 'karg')
    k(f"s_mov_b32 s{sWR}, s64\ns_and_b32 s{sWR+1}, s65, 0xffff\ns_mov_b32 s{sWR+2}, {512*3072}\ns_mov_b32 s{sWR+3}, 0x20000")
    k(f"s_and_b32 s{sXS+1}, s{sXS+1}, 0xffff\ns_mov_b32 s{sXS+2}, {2*MB}\ns_mov_b32 s{sXS+3}, 0x20000")
    ct = {}; cn = {j: 0 for j in range(8)}
    k(f"s_lshl_b32 s{sCc}, s{sC3}, 1\ns_add_u32 s{sCc}, s{sCc}, s{sC}")
    def rot(j):
        k(f"s_add_u32 s{sT3}, s{sCc}, {j}\ns_and_b32 s{sT3}, s{sT3}, {7 if Q0_ROT else 0}")
        if not Q0_ROT: k(f"s_mov_b32 s{sT3}, {j}")
        k(f"s_lshl_b32 s{sS0}, s{sT3}, 7\ns_add_u32 s{sS0}, s{sS0}, s{sX}")
        k(f"s_mul_i32 s{sS1}, s{sT3}, {4*49152}\ns_add_u32 s{sS1}, s{sS1}, s{sX2}")
    def ldW(j, t):
        k(f"s_add_u32 m0, s{sWL}, {(12*j + t)*KB}\ns_add_u32 s{sT2}, s{sS1}, {((t+1) % 3)*1024}")
        ct[j] = k.vm(f"buffer_load_dwordx4 v{vWA}, {srd(sWR)}, s{sT2} offen lds"); cn[j] += 1
    def ldX(j, i):
        if i == 0: rot(j)
        k(f"s_add_u32 m0, s{sXL}, {(j & 3)*4*KB + i*KB}\ns_add_u32 s{sT2}, s{sS0}, {i*8192}")
        ct[j] = k.vm(f"buffer_load_dwordx4 v{vXA + (i & 1)}, {srd(sXS)}, s{sT2} offen lds"); cn[j] += 1
    def chunk_loads(j):
        return [lambda i=i: ldX(j, i) for i in range(4)] + [lambda t=t: ldW(j, t) for t in range(3)]
    for f in chunk_loads(0): f()
    if Q0_MARKS: mark(k, 'up0')
    late(k)
    pack_decode(k)
    k(f"s_cmp_eq_u32 s{sW}, 0\ns_cselect_b64 s[90:91], s[68:69], s[70:71]")
    k(f"s_cmp_eq_u32 s{sW}, 2\ns_cselect_b64 s[90:91], s[72:73], s[90:91]")
    k(f"s_cmp_eq_u32 s{sW}, 3\ns_cselect_b64 s[90:91], s[66:67], s[90:91]\ns_cselect_b32 s{sT0}, 16, 56")
    k(f"s_mul_i32 s{sT1}, s{sT0}, s{sU}\ns_sub_u32 s{sT0}, s{sT0}, 1")
    k(f"v_and_b32 v254, 63, v0\nv_min_u32 v254, s{sT0}, v254\nv_add_u32 v254, s{sT1}, v254\nv_lshlrev_b32 v254, 7, v254")
    pk = G.pk = Pack(k)
    k(f"s_and_b32 s{sT0}, s{sC}, 7\ns_and_b32 s{sT1}, s{sC}, 15")
    k("v_and_b32 v13, 15, v0\nv_min_u32 v14, 13, v13")
    k(f"s_lshr_b32 s{sT2}, s{sT0}, 1\ns_add_u32 s{sT2}, s{sT2}, 176\nv_lshl_add_u32 v252, v14, 2, s{sT2}")
    k(f"s_mul_i32 s{sT2}, s{sT1}, 7\ns_add_u32 s{sT3}, s{sT2}, 6\ns_lshr_b32 s{sT2}, s{sT2}, 2\ns_lshr_b32 s{sT3}, s{sT3}, 2")
    k(f"v_lshrrev_b32 v14, 2, v13\nv_add_u32 v14, s{sT2}, v14\nv_min_u32 v14, s{sT3}, v14\nv_and_b32 v15, 3, v13\nv_mul_u32_u24 v15, 28, v15")
    k("v_add3_u32 v14, v14, v15, 48")
    k("v_and_b32 v15, 16, v0\nv_cmp_ne_u32 vcc, 0, v15\nv_cndmask_b32 v252, v252, v14, vcc")
    k(f"s_add_u32 s{sT0}, s{sT0}, 160\nv_and_b32 v14, 1, v13\nv_lshl_add_u32 v251, v14, 3, s{sT0}")
    k(f"s_lshr_b32 s{sT1}, s{sT1}, 1\nv_mul_u32_u24 v14, 24, v14\nv_lshrrev_b32 v15, 1, v13\nv_min_u32 v15, 2, v15\nv_lshlrev_b32 v15, 3, v15")
    k(f"v_add3_u32 v14, v14, v15, s{sT1}")
    k("v_cndmask_b32 v251, v251, v14, vcc")
    k(f"v_cmp_gt_u32 vcc, 512, v{vL16}\nv_cndmask_b32 v252, v251, v252, vcc\nv_lshlrev_b32 v252, 7, v252\nv_accvgpr_write_b32 a213, v252")
    if WARM:
        k("s_getpc_b64 s[88:89]")
        k(f"s_lshl_b32 s{sT0}, s{sC}, 1\ns_add_u32 s{sT0}, s{sT0}, s{sW}\ns_and_b32 s{sT0}, s{sT0}, 63\ns_lshl_b32 s{sT0}, s{sT0}, 10")
        k(f"v_add_u32 v245, s{sT0}, v{vL16}")
        k(f"v_min_u32 v244, {(WS_PAGES-1)*16}, v{vL16}\nv_lshlrev_b32 v244, 17, v244")
        k(f"s_cmp_eq_u32 s{sW}, 1\ns_cselect_b64 s[88:89], s[{sAUX}:{sAUX+1}], s[88:89]")
        k(f"s_cmp_eq_u32 s{sW}, 0\ns_cselect_b64 s[88:89], s[{sWS}:{sWS+1}], s[88:89]\ns_cselect_b64 vcc, -1, 0")
        k("v_cndmask_b32 v245, v245, v244, vcc")
    if PK_Q0: pk.issue(*range(8))
    k(f"v_and_b32 v13, 31, v0\nv_bfe_u32 v14, v0, 1, 3\nv_bfe_u32 v15, v0, 5, 1\nv_xor_b32 v14, v14, v15\nv_lshlrev_b32 v14, 4, v14\nv_lshl_add_u32 v13, v13, 7, v14")
    for e in range(4):
        k(f"v_xor_b32 v{vXR+e}, {e*32}, v13\nv_add_u32 v{vXR+e}, s{sXL}, v{vXR+e}")
    tr_addr(k, vTR, 13)
    k(f"v_add_u32 v{vTR+1}, {48*KB}, v{vTR}\nv_add_u32 v{vTW}, s{sWL}, v{vTR}\nv_add_u32 v{vTW+1}, {48*KB}, v{vTW}")
    k(f"v_mov_b32 v{vONE}, 0x3f803f80\nv_add_u32 v255, s84, v{vTR}\nv_accvgpr_write_b32 a212, v255")
    for r in range(192, 196): k(f"v_accvgpr_write_b32 a{r}, v{vONE}")
    for r in list(range(vST, vST+4)) + list(range(vCS, vCS+3)): k(f"v_mov_b32 v{r}, 0")
    def reads(j):
        o = []
        for e in range(4):
            o.append(f"ds_read_b128 {vr(vX + 16*j + 4*e)}, v{vXR+e} offset:{(j & 3)*4*KB}")
        for t in range(3):
            off = (12*(j & 3) + t)*KB
            o.append(f"ds_read_b64_tr_b16 {vr(vCW+4*t,2)}, v{vTW + (j >> 2)} offset:{off}")
            o.append(f"ds_read_b64_tr_b16 {vr(vCW+4*t+2,2)}, v{vTW + (j >> 2)} offset:{off+256}")
        for b in range(12):
            off = (12*(j & 3) + b)*KB; r = 48*(j & 1) + 4*b
            o.append(f"ds_read_b64_tr_b16 {ar(r,2)}, v{vTR + (j >> 2)} offset:{off}")
            o.append(f"ds_read_b64_tr_b16 {ar(r+2,2)}, v{vTR + (j >> 2)} offset:{off+256}")
        return o
    def dots(j):
        for i in range(16):
            r = vX + 16*j + i
            k(f"v_dot2c_f32_bf16 v{vST + 2*(i & 1)}, v{vONE}, v{r}\nv_dot2c_f32_bf16 v{vST + 1 + 2*(i & 1)}, v{r}, v{r}")
        for i in range(4):
            for t in range(3): k(f"v_dot2c_f32_bf16 v{vCS+t}, v{vONE}, v{vCW+4*t+i}")
    def xid():
        k(f"s_add_u32 s{sTAG}, s{sTAG}, 0x7f4a7c15\ns_addc_u32 s{sTAG+1}, s{sTAG+1}, 0x9e3779b9")
        k("v_mov_b32 v13, 0")
        k("s_mov_b64 exec, 1")
        if FLAG_TOUCH:
            k(f"s_lshl_b32 s{sF}, s{sA}, 4\ns_lshr_b32 s{sT1}, s{sRB}, 2\ns_add_u32 s{sF}, s{sF}, s{sT1}\ns_lshl_b32 s{sF}, s{sF}, 7\ns_add_u32 s{sF}, s{sF}, {FKV(0)}")
            k.vm(f"buffer_load_dword v5, v13, {srd(sWS)}, s{sF} offen sc1")
            k(f"s_lshl_b32 s{sF}, s{sU}, 7\ns_add_u32 s{sF}, s{sF}, {FPK}")
            k.vm(f"buffer_load_dword v5, v13, {srd(sWS)}, s{sF} offen sc1")
        k("s_mov_b64 exec, -1")
    def lin_touch():
        k.vm("global_load_dword v253, v254, s[90:91]")
    side = []
    if Q0_MARKS: mark(k, 'alu')
    if WARM and WARM_AT == 0: k.vm(f"global_load_dword v253, v245, s[88:89]")
    for j in range(1, Q0_UP):
        for f in chunk_loads(j): f()
    if WARM and WARM_AT == 1: k.vm(f"global_load_dword v253, v245, s[88:89]")
    if Q0_MARKS: mark(k, 'iss')
    k.wait(vm=ct[0])
    if Q0_MARKS: mark(k, 'w0')
    k("s_barrier")
    mark(k, 'd0')
    rl = reads(0)
    for x in rl[:10]: t10 = k.lg(x)
    for x in rl[10:]: k.lg(x)
    k.wait(lg=t10)
    dots(0)
    for j in range(8):
        for c_ in Q0_SCHED[j]:
            assert c_ - 4 <= j
            side += chunk_loads(c_)
        if j == 1: side.append(xid)
        if WARM and WARM_AT == j + 2: side.append(lambda: k.vm(f"global_load_dword v253, v245, s[88:89]"))
        if PK_EARLY: side += [lambda i=i: pk.issue(i) for i in range(8) if PK_AT[i] == j]
        if j == LIN_AT and not PK_Q0: side.append(lin_touch)
        if PK_Q0:
            assert all(c_ < 5 or j > PK_RD for c_ in Q0_SCHED[j])
            if j == PK_RD: side += [lambda i=i: pk.reads(2*i, 2*i+1) for i in range(4)]
            if j == PK_ST: side += [lambda i=i: (pk.stores(i), pk.csum(i)) for i in range(4)]
            if j == PK_ST + 1: side += [lambda i=i: (pk.stores(i), pk.csum(i)) for i in range(4, 8)]
            if j == PK_ST + 2: side.append(pk.ext)
        k.wait_all(vm=False)
        rl = []
        if j < 7:
            assert cn[j+1] == 7
            k.wait(vm=ct[j+1]); k("s_barrier")
            if j in Q0_MARKJ: mark(k, f'c{j+1}')
            rl = reads(j + 1)
        t10 = None; nr = 0
        if j == 7:
            tail = f"s_lshr_b32 s{sT0}, s{sW}, 1\ns_lshl_b32 s{sT0}, s{sT0}, 9\ns_and_b32 s{sT1}, s{sW}, 1\ns_lshl_b32 s{sT1}, s{sT1}, 3\ns_add_u32 s{sT0}, s{sT0}, s{sT1}".split('\n')
            tail += [f"v_and_b32 v13, 0x1f0, v{vL16}", f"v_add_u32 v13, s{sT0}, v13"]
            for t in range(3): tail += ext_pair(vCS+t, vCW+2*t, 14) + [f"ds_write_b64 v13, {vr(vCW+2*t,2)} offset:{t*KB}"]
            fin = fin_stats(vST, vEXT, vRS)[NTREE:] + qkv_consts(vT, vRS, vR)
            tail += [f"v_add_f32 v{vST}, v{vST}, v{vST+2}", f"v_add_f32 v{vST+1}, v{vST+1}, v{vST+3}"] + fin[:18]
            tail += ["s_waitcnt lgkmcnt(0)", "s_barrier"] + [f"ds_read_b128 {vr(vCW+4*t)}, v{vL16} offset:{t*KB}" for t in range(3)] + fin[18:]
            tail += f"s_lshl_b32 s{sCc}, s{sA}, 18\ns_lshl_b32 s{sT1}, s{sRB}, 11\ns_add_u32 s{sCc}, s{sCc}, s{sT1}".split('\n')
            tail += f"s_mul_i32 s{sB}, s{sRB}, {112*KB}\ns_lshl_b32 s{sT1}, s{sA}, 11\ns_add_u32 s{sB}, s{sB}, s{sT1}".split('\n')
            assert not side
            n_ = -(-len(tail) // 12)
            side = [lambda c=tail[i:i+n_]: [k(x) for x in c] for i in range(0, len(tail), n_)]
        for b in range(12):
            ks = 4*j + b // 3; t = b % 3
            acc = vr(vACC + 16*t, 16); w = ar(48*(j & 1) + 4*b); x = vr(vX + 4*ks)
            A, B = (x, w) if t == 1 else (w, x)
            k(f"v_mfma_f32_32x32x16_bf16 {acc}, {A}, {B}, {'0' if ks == 0 else acc}")
            if ks == 0 and t == 0: mark(k, 'm0')
            for _ in range(3):
                if rl:
                    t_ = k.lg(rl.pop(0)); nr += 1
                    if nr == 10: t10 = t_
            if side: side.pop(0)()
            if len(side) > 11 - b: side.pop(0)()
        if j < 7:
            assert not rl
            k.wait(lg=t10)
            dots(j + 1)
    while side: side.pop(0)()
    mark(k, 'loop')
    k.wait_all(vm=False)
    for t in range(3):
        c = vCW + 4*t
        acc = vr(vACC + 16*t, 16)
        A, B = (vr(vEXT), vr(c)) if t == 1 else (vr(c), vr(vEXT))
        k(f"v_mfma_f32_32x32x16_bf16 {acc}, {A}, {B}, {acc}")
    t_ = None
    for x in qk_tile(vACC, KVF(0), vRS, " sc1", vX) + v_tile(vACC+16, 0, vR, vX+8) + qk_tile(vACC+32, QF, vRS+1, " sc1", vX+16):
        if x.startswith('buffer'): t_ = k.vm(x)
        else: k(x)
    mark(k, 'st')
    return t_, t_

def ph_qkv(k, L, ring, b0):
    vX, vACC, vST, vEXT, vRS, vT, vR = 16, 144, 192, 8, 6, 224, 232
    rb_128(k)
    k(f"s_and_b32 s{sA}, s{sC}, 15")
    k(f"s_lshl_b32 s{sX}, s{sRB}, 15\ns_add_u32 s{sX}, s{sX}, {XF}")
    set_lds_bases(k)
    QE = QKV_QE
    seq = [(ks, t) for ks in range(33) for t in ((0, 1, 2) if ks < QE else (0, 1))] + [(ks, 2) for ks in range(QE, 33)]
    ops = [dict(b=b0 + (2*ks + t if t < 2 else 66 + ks), bmin=b0, bmax=b0 + 98, xi=(ks if ks < 32 else None), x=(vr(vX+4*ks) if ks < 32 else vr(vEXT)),
                acc=vr(vACC+16*t, 16), swap=(t == 1), first=(ks == 0)) for ks, t in seq]
    xq = XLoader(k, 32, lambda i: vr(vX+4*i), lin_src(k))
    res = {}
    se = stats_emitters(k, vST, res)
    k(f"s_lshl_b32 s{sCc}, s{sA}, 18\ns_lshl_b32 s{sT1}, s{sRB}, 11\ns_add_u32 s{sCc}, s{sCc}, s{sT1}")
    k(f"s_mul_i32 s{sB}, s{sRB}, {112*KB}\ns_lshl_b32 s{sT1}, s{sA}, 11\ns_add_u32 s{sB}, s{sB}, s{sT1}")
    assert ring.issued == ring.total
    g = Gemm(k, ring, ops, {0})
    g.start()
    ring.issue_n(4)
    publish_local(k, G.tx)
    ring.issue_n(4)
    k(f"s_lshl_b32 s{sF}, s{sRB}, 7\ns_add_u32 s{sF}, s{sF}, {FLOC(L-1, 8)}")
    poll16(k)
    aps = stats_poll(k, FLOC(L-1,7) - FLOC(L-1,8))
    fin = fin_stats(vST, vEXT, vRS) + qkv_consts(vT, vRS, vR)
    epi = qk_tile(vACC, KVF(L), vRS, " sc1", vST) + v_tile(vACC+16, L, vR, vST+16)
    nkv = len(epi)
    if KV_LOC:
        epi += [f"s_lshl_b32 s{sE}, s{sA}, 11", f"s_add_u32 s{sE}, s{sE}, s{sB}", f"s_add_u32 s{sE}, s{sE}, {HF + 32*KB}",
                f"buffer_store_dwordx4 {vr(vST)}, v{vL16}, {srd(sWS)}, s{sE} offen",
                f"buffer_store_dwordx4 {vr(vST+4)}, v{vL16}, {srd(sWS)}, s{sE} offen offset:2048",
                "v_lshrrev_b32 v13, 6, v12", "v_and_b32 v13, 0x800, v13", "v_and_b32 v12, 0x1ff, v12", "v_add_u32 v12, v12, v13",
                f"buffer_store_dwordx4 {vr(vST+16)}, v12, {srd(sWS)}, s{sE} offen offset:1024",
                f"buffer_store_dwordx4 {vr(vST+20)}, v12, {srd(sWS)}, s{sE} offen offset:1536"]
    st = dict(i=0, j=0, t=None)
    def put(x):
        if x.startswith('buffer'): st['t'] = k.vm(x)
        else: k(x)
    def filler(m):
        if aps and m == 4: aps.issue()
        if m == 22:
            if aps: aps.check()
            for e in se: e()
        if 44 <= m < 64 + QE:
            if st['i'] == 0: k.wait(vm=res['t'])
            for _ in range(3):
                if st['i'] < len(fin): k(fin[st['i']]); st['i'] += 1
        if m >= 68 + QE:
            for _ in range(QKV_EPI):
                if st['j'] < len(epi): put(epi[st['j']]); st['j'] += 1
    g.run(xq, n0=8, filler=filler)
    while st['j'] < len(epi):
        put(epi[st['j']]); st['j'] += 1
    assert st['i'] == len(fin)
    tkv = st['t']
    for x in qk_tile(vACC + 32, QF, vRS + 1, "", vST+8): put(x)
    mark(k, 'st')
    return tkv, st['t']

def code_touch(k, vd, skip=0):
    if not CODE_TOUCH: return
    k(f"s_getpc_b64 s[{sPC}:{sPC+1}]\ns_add_u32 s{sPC}, s{sPC}, s{sCT}\ns_addc_u32 s{sPC+1}, s{sPC+1}, 0")
    k.vm(f"global_load_dword v{vd}, v{vL16}, s[{sPC}:{sPC+1}] offset:{skip}")

def flag_touch(k, L, va, vd):
    if not FL_TOUCH: return
    k(f"v_bfe_u32 v{va}, v0, 3, 3\nv_lshlrev_b32 v{va}, 6, v{va}\nv_and_or_b32 v{va}, v0, 7, v{va}\nv_lshlrev_b32 v{va}, 7, v{va}")
    k(f"s_lshl_b32 s{sT3}, s{sG}, 10\ns_add_u32 s{sT3}, s{sT3}, {FLOC(L,0)}")
    k.vm(f"buffer_load_dword v{vd}, v{va}, {srd(sWS)}, s{sT3} offen sc1")

def ph_att(k, L, ring, tkv, tq):
    vO, vS0, vKV, aQ = 16, 144, 208, aWB
    NS = 4
    vS = [vS0 + 16*i for i in range(NS)]
    vK, vV, vIDX, vL128 = 6, 7, 8, 9
    sK, sHD = sB, sE
    k(f"s_lshl_b32 s{sHD}, s{sC}, 16")
    k(f"s_lshl_b32 s{sT0}, s{sC}, 17\ns_add_u32 s{sT0}, s{sT0}, s{sW4K}\ns_add_u32 s{sT0}, s{sT0}, {KVF(L)}")
    k("v_and_b32 v10, 0x33, v0\nv_bfe_u32 v11, v0, 2, 1\nv_lshlrev_b32 v11, 3, v11\nv_or_b32 v10, v10, v11")
    k(f"v_bfe_u32 v11, v0, 3, 1\nv_lshlrev_b32 v11, 2, v11\nv_or_b32 v10, v10, v11\nv_lshl_add_u32 v{vK}, v10, 4, s{sT0}")
    k(f"v_and_b32 v10, 15, v0\nv_bfe_u32 v11, v0, 5, 1\nv_lshlrev_b32 v11, 4, v11\nv_add_u32 v10, v10, v11\nv_lshl_add_u32 v{vV}, v10, 4, s{sT0}")
    k(f"v_mov_b32 v{vIDX}, 0xdddddddd\nv_lshlrev_b32 v{vL128}, 3, v{vL16}")
    k(f"s_lshl_b32 s{sK}, s{sG}, 14")
    if L and KV_LOC:
        k(f"s_lshl_b32 s{sT1}, s{sC}, 10\ns_add_u32 s{sT1}, s{sT1}, {32*KB}\ns_sub_u32 s{sT1}, s{sT0}, s{sT1}")
        k(f"v_subrev_u32 v146, s{sT1}, v{vK}\nv_subrev_u32 v147, s{sT1}, v{vV}")
    k("v_and_b32 v10, 27, v0\nv_cmp_eq_u32 vcc, 16, v10\nv_mov_b32 v11, 0x3f803f80\nv_cndmask_b32 v11, 0, v11, vcc")
    k("v_mov_b32 v144, v11")
    k(f"s_lshr_b32 s{sT0}, s{sC}, 1\ns_lshl_b32 s{sD}, s{sT0}, 11\ns_add_u32 s{sD}, s{sD}, {FKV(L)}")
    k(f"s_lshl_b32 s{sT3}, s{sG}, 8\ns_add_u32 s{sT3}, s{sT3}, s{sD}")
    if L == 0:
        k(f"v_and_b32 v11, 1, v0\nv_lshlrev_b32 v11, 7, v11\nv_add_u32 v11, s{sT3}, v11")
        k(f"v_cmp_gt_u32 vcc, 512, v{vL16}")
    k(f"s_lshr_b32 s{sT1}, s{sW}, 1\ns_lshl_b32 s{sT1}, s{sT1}, 7\ns_add_u32 s{sD}, s{sD}, s{sT1}")
    if L:
        k(f"s_add_u32 s{sT3}, s{sT3}, s{sT1}")
        k(f"s_lshl_b32 s{sT2}, s{sG}, 10\ns_lshl_b32 s{sT0}, s{sT0}, 6\ns_add_u32 s{sT2}, s{sT2}, s{sT0}\ns_add_u32 s{sT2}, s{sT2}, {FLOC(L-1,5)}")
        k(f"v_mov_b32 v12, s{sT3}\nv_and_b32 v11, 7, v0\nv_lshlrev_b32 v11, 3, v11\nv_add_u32 v11, s{sT2}, v11")
        k(f"v_cmp_gt_u32 vcc, 512, v{vL16}")
        if not KV_LOC: k("v_cndmask_b32 v11, v11, v12, vcc")
    k(f"v_and_b32 v12, 7, v0\nv_lshlrev_b32 v12, 8, v12")
    k(f"s_mul_i32 s{sT2}, s{sG}, {8*112*KB}\ns_lshl_b32 s{sT3}, s{sC}, 10\ns_add_u32 s{sT2}, s{sT2}, s{sT3}\ns_add_u32 s{sT2}, s{sT2}, {QF}")
    sQ = list(range(64, 72))
    for p in range(4):
        k(f"s_xor_b32 s{sT3}, s{sW}, {p}\ns_mul_i32 s{sT3}, s{sT3}, {2*112*KB}\ns_add_u32 s{sQ[2*p]}, s{sT3}, s{sT2}\ns_add_u32 s{sQ[2*p+1]}, s{sQ[2*p]}, {112*KB}")
    sTH, sTW, sFO = 72, 73, 79
    k(f"s_lshl_b32 s{sT3}, s{sU}, 2\ns_add_u32 s{sT3}, s{sT3}, s{sW}")
    k(f"s_mul_i32 s{sTH}, s{sT3}, {7*KB}\ns_add_u32 s{sTH}, s{sTH}, {HF}")
    k(f"s_lshl_b32 s{sT0}, s{sT3}, 11\ns_add_u32 s{sT0}, s{sT0}, {XF}\ns_lshl_b32 s{sT1}, s{sT3}, 8\ns_add_u32 s{sT1}, s{sT1}, {SX}")
    k(f"v_and_b32 v3, 0x780, v{vL128}\nv_add_u32 v3, s{sT0}, v3\nv_and_b32 v13, 0x80, v{vL128}\nv_add_u32 v13, s{sT1}, v13\nv_cndmask_b32 v3, v13, v3, vcc")
    k(f"s_lshl_b32 s{sTW}, s{sC4}, 2\ns_add_u32 s{sTW}, s{sTW}, s{sW}\ns_mul_i32 s{sTW}, s{sTW}, {TOUCH_KBS[L] * KB // 8}")
    k(f"s_add_u32 s{sTW}, s{sTW}, s{sSEG+1}\ns_add_u32 s{sTW}, s{sTW}, {32*KB}")
    k(f"s_and_b32 s{sCT}, s{sT3}, 31\ns_lshl_b32 s{sCT}, s{sCT}, 10")
    k(f"s_lshl_b32 s{sFO}, s{sG}, 2\ns_add_u32 s{sFO}, s{sFO}, s{sW}\ns_lshl_b32 s{sFO}, s{sFO}, 5\ns_add_u32 s{sFO}, s{sFO}, s{sC}\ns_lshl_b32 s{sFO}, s{sFO}, 3\ns_add_u32 s{sFO}, s{sFO}, {FLOC(L,0)}")
    for i in range(4): k(f"v_mov_b32 v{148+i}, 0")
    for q in range(8): k(f"v_mfma_f32_32x32x16_bf16 {vr(vO+16*q,16)}, {vr(148)}, {vr(148)}, 0")
    mark(k, 'pre')
    if L: q_flag(k, L, tq)
    kv_flag(k, L, tkv)
    if L == 0 and PK_Q0:
        k(f"s_lshl_b32 s{sF}, s{sU}, 7\ns_add_u32 s{sF}, s{sF}, {FPK}\nv_mov_b32 v145, v12")
        publish_wg(k, None, xid=True, barrier=False)
        k("v_mov_b32 v12, v145")
    mark(k, 'flag')
    if L == 0 and PK_EARLY:
        G.pk.reads(*range(8))
        for i in range(8): G.pk.csum(i)
        if PK_WIN2:
            G.pk.stores(*range(8)); G.pk.ext()
    if L == 0 and LIN_AT == 'flag': k.vm("global_load_dword v253, v254, s[90:91]")
    for b in range(2):
        for j in range(8): k(f"v_mov_b32 v{vKV+12*b+4+j}, v144")
    k(f"s_mov_b32 s{sF}, 0")
    poll(k, 11, 14, sleep=SLEEP1[L])
    mark(k, 'poll')
    K = lambda t: vr(vKV + 12*(t % 4))
    V = lambda t, u: vr(vKV + 12*(t % 4) + 4 + 4*u)
    kt = {}; vt = {}
    loc = lambda t: L and KV_LOC and t < 2
    def ldK(t):
        if t and (t & 1) == 0: k(f"s_add_u32 s{sK}, s{sK}, 0x4000\ns_and_b32 s{sK}, s{sK}, 0x1ffff")
        if loc(t): kt[t] = k.vm(f"buffer_load_dwordx4 {K(t)}, v{14 if t and HEAD else 146}, {srd(sWS)}, s{sQ[t]} offen sc1")
        else: kt[t] = k.vm(f"buffer_load_dwordx4 {K(t)}, v{vK}, {srd(sWS)}, s{sK} offen offset:{(t & 1)*2*KB} sc1")
    def ldV(t):
        va, so, o = (15 if t and HEAD else 147, sQ[t], KB) if loc(t) else (vV, sK, (t & 1)*2*KB + KB)
        k(f"s_mov_b64 exec, s[{sMSK}:{sMSK+1}]")
        k.vm(f"buffer_load_dwordx4 {V(t,0)}, v{va}, {srd(sWS)}, s{so} offen offset:{o} sc1")
        vt[t] = k.vm(f"buffer_load_dwordx4 {V(t,1)}, v{va}, {srd(sWS)}, s{so} offen offset:{o+512} sc1")
        k("s_mov_b64 exec, -1")
    def ldKV(t):
        ldK(t); ldV(t); kt[t] = vt[t]
    ldK(0)
    qt = {}
    def ldQ(*ss):
        for s in ss: qt[s] = k.vm(f"buffer_load_dwordx4 {ar(aQ+4*s)}, v{vL16}, {srd(sWS)}, s{sQ[s]} offen sc1")
    if HEAD == 0:
        ldQ(0, 1, 2); ldV(0); ldQ(3, 4, 5, 6, 7); ldKV(1)
    else:
        ldQ(0, 1); ldV(0); ldQ(2)
    ap2 = apoll1(k, 12, 10, sD, sleep=SLEEP2)
    for b in range(2, 4):
        for j in range(8): k(f"v_mov_b32 v{vKV+12*b+4+j}, v144")
    NT = ATT_NT
    steps = [(t, q) for t in range(16 - NT) for q in range(8)] + [(t, q) for q in range(2, 8) for t in range(16 - NT, 16)] + [(t, q) for q in range(2) for t in range(16 - NT, 16)]
    n = len(steps)
    LA = NS - 1
    def qk(i):
        t, q = steps[i]
        k.wait(vm=max(kt[t], qt[q]) if t == 0 else kt[t])
        k(f"v_mfma_f32_32x32x16_bf16 {vr(vS[i % NS],16)}, {K(t)}, {ar(aQ+4*q)}, 0")
    def pv(i, u):
        t, q = steps[i]
        k.wait(vm=vt[t])
        k(f"v_smfmac_f32_32x32x32_bf16 {vr(vO+16*q,16)}, {V(t,u)}, {vr(vS[i % NS]+8*u,8)}, v{vIDX}")
    if HEAD == 0:
        for i in range(LA): qk(i)
    else:
        if loc(1): k("v_mov_b32 v14, v146\nv_mov_b32 v15, v147")
        qk(0); ldQ(3, 4); qk(1)
    mark(k, 'm0')
    ring.limit = 96
    jobs = {}
    def job(i, f, e=10): jobs.setdefault((i, e), []).append(f)
    if HEAD:
        job(0, lambda: qk(2), e=3)
        job(0, lambda: ldQ(5, 6, 7))
        job(1, lambda: ldKV(1), e=2)
    job(HEAD, lambda: code_touch(k, 10))
    job(P2_AT - P2_LEAD, ap2.issue)
    job(P2_AT, lambda: (ap2.check(), ldKV(2), ldKV(3)))
    for t in range(1, 13): job(8*t, lambda t=t: ldKV(t + 3))
    def kvpf(j):
        def f():
            k(f"s_add_u32 s{sT0}, s{sG}, {2*j}\nv_bfe_u32 v13, v0, 5, 1\nv_add_u32 v13, s{sT0}, v13\nv_and_b32 v13, 7, v13\nv_lshlrev_b32 v13, 14, v13")
            k(f"v_and_b32 v14, 0xf80, v{vL128}\nv_add_u32 v13, v13, v14")
            k(f"s_lshl_b32 s{sT0}, s{sC}, 17\ns_add_u32 s{sT0}, s{sT0}, s{sW4K}\ns_add_u32 s{sT0}, s{sT0}, {KVF(L)}")
            k.vm(f"buffer_load_dword v5, v13, {srd(sWS)}, s{sT0} offen sc1")
        return f
    if KV_PF[L]:
        for j in (2, 3): job(KV_PF[L] + 8*(j-2), kvpf(j))
    if L == 0:
        CHK_AT = CHK_Q0 if PK_Q0 else G.pk.schedule(job) + CHK_GAP
        apk = APoll(k, [f"buffer_load_dwordx2 v[10:11], v12, {srd(sWS)}, s{sX} offen offset:8 sc1"],
                    f"v_cmp_ne_u64 vcc, s[{sTAG}:{sTAG+1}], v[10:11]")
        def chk0():
            k(f"v_accvgpr_read_b32 v12, a213\ns_mov_b32 s{sX}, {FPK}")
            apk.issue()
        job(CHK_AT - 6, chk0)
        apx = APoll(k, [f"buffer_load_dwordx4 v[12:15], v11, {srd(sWS)}, s{sCc} offen sc1"],
                    f"v_cmp_ne_u64 vcc, s[{sTAG}:{sTAG+1}], v[14:15]")
        def mode0():
            k(f"v_and_b32 v11, 0xf80, v{vL128}\ns_lshl_b32 s{sCc}, s{sG}, 12\ns_add_u32 s{sCc}, s{sCc}, {FPK}")
            apx.issue()
        def mode():
            apx.check()
            k(f"s_xor_b32 s{sT2}, s{sTAG}, s{sXCC}")
            k(f"v_cmp_ne_u32 vcc, s{sT2}, v12")
            k(f"s_cmp_eq_u64 vcc, 0\ns_cselect_b32 s{sMODE}, 1, 0")
        job(81, mode0); job(95, mode)
        def chk():
            apk.check()
            k(f"s_and_b32 s{sT2}, s{sC}, 7\ns_lshl_b32 s{sT2}, s{sT2}, 1\ns_lshr_b32 s{sT3}, s{sW}, 1\ns_add_u32 s{sT2}, s{sT2}, s{sT3}")
            k(f"s_mul_i32 s{sT3}, s{sW}, {28*KB}\ns_add_u32 s{sT3}, s{sT3}, {WD}")
            k(f"s_mul_i32 s{sX}, s{sT2}, {112*KB}\ns_add_u32 s{sX}, s{sX}, s{sT3}")
            k(f"s_xor_b32 s{sT2}, s{sT2}, 1\ns_mul_i32 s{sX2}, s{sT2}, {112*KB}\ns_add_u32 s{sX2}, s{sX2}, s{sT3}")
        job(CHK_AT, chk)
        def wsrc(i):
            s_ = sX if i < 28 else sX2
            j = i % 28
            if j and (j & 3) == 0: k(f"s_add_u32 s{s_}, s{s_}, 4096")
            return s_, (j & 3) * KB
        wq = XLoader(k, 56, lambda i: ar(aWD + 8*(i % 28) + 4*(i // 28)), wsrc)
        slots = [i for i in range(CHK_AT + 1, 112) if i % 8 in WD_SLOTS]
        work = [lambda: wq.issue_n(4)] * 14
        rw = [ring.issue16] * 6
        seq = []
        while work or rw:
            if work: seq.append(work.pop(0))
            if work: seq.append(work.pop(0))
            if rw: seq.append(rw.pop(0))
        assert len(seq) <= len(slots), (len(seq), len(slots))
        for i, f in zip(slots, seq): job(i, f)
    else:
        for j in range(6): job(R1_AT + R1_STEP*j, ring.issue16)
    def tch(j):
        def f():
            if j: k(f"s_add_u32 s{sTW}, s{sTW}, {TL*128}")
            elif TL < 64: k(f"v_and_b32 v4, {(TL-1)*128}, v{vL128}")
            k.vm(f"buffer_load_dword v5, v{vT_}, {srd(sWS)}, s{sTW} offen sc1")
        return f
    TL = TOUCH_LN; vT_ = vL128 if TL == 64 else 4
    for j in range(-(-TOUCH_KBS[L] // TL)): job(TOUCH_AT[L] + j*TOUCH_STEP[L], tch(j))
    def th(j):
        def f():
            if j: k(f"s_add_u32 s{sTH}, s{sTH}, {TL*128}")
            elif TL < 64: k(f"v_and_b32 v4, {(TL-1)*128}, v{vL128}")
            k.vm(f"buffer_load_dword v5, v{vT_}, {srd(sWS)}, s{sTH} offen sc1")
        return f
    TACT_AT = TACTS[L]
    if L == 0 and EARLY_H:
        job(EARLY_H, lambda: k.vm(f"buffer_load_dword v5, v{vL128}, {srd(sWS)}, s{sTH} offen sc1"))
        job(EARLY_H + 3, lambda: k.vm(f"buffer_load_dword v5, v3, {srd(sWS)}, 0 offen sc1"))
    if TACT_AT:
        for j in range(-(-56 // TL)): job(TACT_AT + j*TH_STEP, th(j))
    def tact():
        k.vm(f"buffer_load_dword v5, v3, {srd(sWS)}, 0 offen sc1")
    if TACT_AT: job(TACT_AT + 4, tact)
    if L == 0 and XRES_TOUCH:
        def xt_():
            rowmajor_addr(k, 14, sT0)
            k.vm(f"buffer_load_dword v5, v14, {srd(60)}, s{sT0} offen sc1")
        job(XRES_TOUCH, xt_)
    job(CT_AT, lambda: code_touch(k, 5))
    SC = 96 * KB
    vWA = 10
    def red_setup():
        k(f"s_lshl_b32 s{sT0}, s{sW}, 14\nv_add_u32 v13, s{sT0}, v{vL16}")
        for j in range(1, 4):
            k(f"v_xor_b32 v{vWA+j-1}, {j << 14}, v13\nv_add_u32 v{vWA+j-1}, {SC}, v{vWA+j-1}")
        k(f"v_add_u32 v13, {SC}, v13")
    job(126 - 8*NT, red_setup)
    def red_write(s, part):
        j = s >> 1; z = s & 1
        if part == 0:
            k.lg(f"ds_write_b128 v{vWA+j-1}, {vr(vO+16*s)} offset:{(z*3+j-1)*2*KB}")
            k.lg(f"ds_write_b32 v{vWA+j-1}, v{vO+16*s+8} offset:{(12+z)*KB+(j-1)*4}")
        if part == 1 or NT == 1:
            k.lg(f"ds_write_b128 v{vWA+j-1}, {vr(vO+16*s+4)} offset:{(z*3+j-1)*2*KB+KB}")
    for i in range(128):
        if steps[i][0] == 15 and steps[i][1] >= 2:
            job(i + 2, lambda s=steps[i][1]: red_write(s, 0), e=2)
            if NT > 1: job(i + 2, lambda s=steps[i][1]: red_write(s, 1))
    tl = []
    def red_read(zz):
        if zz[0] == 0:
            k.wait_all()
            k("s_barrier")
        for z in zz:
            k.lg(f"ds_read_b128 {vr(vO+32+48*z+8)}, v13 offset:{(12+z)*KB}")
            for j in range(3):
                b = vO + 32 + (z*3 + j)*16
                k.lg(f"ds_read_b128 {vr(b)}, v13 offset:{(z*3+j)*2*KB}")
                tl.append(k.lg(f"ds_read_b128 {vr(b+4)}, v13 offset:{(z*3+j)*2*KB+KB}"))
    if NT == 1: job(127, lambda: red_read((0, 1)))
    else:
        job(126, lambda: red_read((0,))); job(127, lambda: red_read((1,)), e=2)
    for i, (t, q) in enumerate(steps):
        s = vS[i % NS]
        if i in ATT_MARKS: mark(k, f's{i}')
        for e in range(16):
            if e == 2 and i > 0: pv(i-1, 1)
            if e == 6 and i + LA < n: qk(i + LA)
            if e == 10: pv(i, 0)
            for f in jobs.pop((i, e), []): f()
            k(f"v_exp_f32 v{s+e}, v{s+e}")
    pv(n-1, 1)
    assert not jobs, jobs.keys()
    assert ring.issued == 96
    mark(k, 'loop')
    for z in range(2):
        o = vO + 16*z; l = vO + 32 + 48*z + 8
        k.wait(lg=tl[z*3])
        k(f"v_add_f32 v{l}, v{l}, v{l+1}\nv_add_f32 v{o+8}, v{o+8}, v{l+2}\nv_add_f32 v{o+8}, v{o+8}, v{l}\nv_rcp_f32 v{o+9}, v{o+8}")
        for j in range(3):
            b = vO + 32 + (z*3 + j)*16
            k.wait(lg=tl[z*3+j])
            for i in range(8): k(f"v_add_f32 v{o+i}, v{o+i}, v{b+i}")
        for j in range(4):
            k(f"v_mul_f32 v{o+2*j}, v{o+2*j}, v{o+9}\nv_mul_f32 v{o+2*j+1}, v{o+2*j+1}, v{o+9}")
            k(f"v_cvt_pk_bf16_f32 v{o+12+j}, v{o+2*j}, v{o+2*j+1}")
        ts = k.vm(f"buffer_store_dwordx4 {vr(o+12)}, v{vL16}, {srd(sWS)}, s{sQ[z]} offen")
    mark(k, 'f_st')
    fb = k.newlabel('fb'); back = k.newlabel('fbret')
    LO, HI = f2u(2.0**-60), f2u(2.0**60)
    for z in range(2):
        o = vO + 16*z
        k(f"v_add_f32 v{o}, v{o}, v{o+1}\nv_add_f32 v{o+2}, v{o+2}, v{o+3}\nv_add_f32 v{o+4}, v{o+4}, v{o+5}\nv_add_f32 v{o+6}, v{o+6}, v{o+7}")
        k(f"v_add_f32 v{o}, v{o}, v{o+2}\nv_add_f32 v{o+4}, v{o+4}, v{o+6}\nv_add_f32 v{o}, v{o}, v{o+4}")
        k(f"v_fma_f32 v{o+8}, v{o}, 0, v{o+8}\nv_subrev_u32 v{o+8}, {hex(LO)}, v{o+8}")
    k(f"v_max_u32 v{vO+8}, v{vO+8}, v{vO+24}")
    k(f"v_cmp_lt_u32 vcc, {hex(0 if FORCE_FB else HI - LO)}, v{vO+8}")
    k(f"s_cbranch_vccnz {fb}")
    k.label(back)
    F = [f"{fb}:", "s_waitcnt vmcnt(0)",
         f"v_subrev_u32 v{vK}, s{sW4K}, v{vK}", f"v_subrev_u32 v{vV}, s{sW4K}, v{vV}"]
    S, C, M = vS0, vS0 + 16, vS0 + 32
    for z in range(2):
        o = vO + 16*z; Q = ar(aQ + 4*z)
        F += [f"v_mov_b32 v{M}, 0xff800000", f"s_mov_b32 s{sK}, 0", f"{fb}_a{z}:",
              f"buffer_load_dwordx4 {K(0)}, v{vK}, {srd(sWS)}, s{sK} offen sc1", "s_waitcnt vmcnt(0)",
              f"v_mfma_f32_32x32x16_bf16 {vr(S,16)}, {K(0)}, {Q}, 0"]
        F += [f"v_max3_f32 v{M}, v{M}, v{S+2*i}, v{S+2*i+1}" for i in range(8)]
        F += [f"s_add_u32 s{sK}, s{sK}, 2048", f"s_cmp_lt_u32 s{sK}, {64*2048}", f"s_cbranch_scc1 {fb}_a{z}",
              f"v_mov_b32 v{M+1}, v{M}", f"v_permlane32_swap_b32 v{M}, v{M+1}", f"v_max_f32 v{M}, v{M}, v{M+1}"]
        F += [f"v_sub_f32 v{C+i}, 0, v{M}" for i in range(16)] + [f"v_mov_b32 v{o+i}, 0" for i in range(16)]
        F += [f"s_mov_b32 s{sK}, 0", f"{fb}_b{z}:",
              f"buffer_load_dwordx4 {K(0)}, v{vK}, {srd(sWS)}, s{sK} offen sc1",
              f"s_mov_b64 exec, s[{sMSK}:{sMSK+1}]",
              f"buffer_load_dwordx4 {V(0,0)}, v{vV}, {srd(sWS)}, s{sK} offen offset:{KB} sc1",
              f"buffer_load_dwordx4 {V(0,1)}, v{vV}, {srd(sWS)}, s{sK} offen offset:{KB+512} sc1",
              "s_mov_b64 exec, -1", "s_waitcnt vmcnt(0)",
              f"v_mfma_f32_32x32x16_bf16 {vr(S,16)}, {K(0)}, {Q}, {vr(C,16)}"]
        F += [f"v_exp_f32 v{S+i}, v{S+i}" for i in range(16)]
        F += [f"v_smfmac_f32_32x32x32_bf16 {vr(o,16)}, {V(0,u)}, {vr(S+8*u,8)}, v{vIDX}" for u in range(2)]
        F += ["s_nop 15", f"s_add_u32 s{sK}, s{sK}, 2048", f"s_cmp_lt_u32 s{sK}, {64*2048}", f"s_cbranch_scc1 {fb}_b{z}",
              f"v_rcp_f32 v{o+9}, v{o+8}"]
        for j in range(4):
            F += [f"v_mul_f32 v{o+2*j}, v{o+2*j}, v{o+9}", f"v_mul_f32 v{o+2*j+1}, v{o+2*j+1}, v{o+9}", f"v_cvt_pk_bf16_f32 v{o+12+j}, v{o+2*j}, v{o+2*j+1}"]
        F += [f"buffer_store_dwordx4 {vr(o+12)}, v{vL16}, {srd(sWS)}, s{sQ[z]} offen"]
    F += ["s_waitcnt vmcnt(0)", f"s_branch {back}"]
    G.far += F
    k(f"s_mov_b32 s{sF}, s{sFO}")
    ring.end16()
    ring.limit = 144
    return ts

def load_res(k, v):
    k(f"s_add_u32 s{sT1}, s{sDST}, {XF}")
    k.vm(f"buffer_load_dwordx4 {vr(v)}, v{vL16}, {srd(sWS)}, s{sT1} offen sc1")
    return k.vm(f"buffer_load_dwordx4 {vr(v+4)}, v{vL16}, {srd(sWS)}, s{sT1} offen offset:1024 sc1")
def add_res(k, acc, v):
    for j in range(8):
        k(f"v_lshlrev_b32 v10, 16, v{v+j}\nv_and_b32 v11, 0xffff0000, v{v+j}")
        k(f"v_add_f32 v{acc+2*j}, v{acc+2*j}, v10\nv_add_f32 v{acc+2*j+1}, v{acc+2*j+1}, v11")

def ph_wo(k, L, ring, tO):
    k.label(f'L_wo{L}')
    vX, vACC, vRES, vSUM, vPK = 16, 80, 112, 120, 136
    k(f"s_lshr_b32 s{sRB}, s{sDST}, 15\ns_lshr_b32 s{sD}, s{sW}, 1")
    k(f"s_mul_i32 s{sX}, s{sRB}, {112*KB}\ns_lshl_b32 s{sT0}, s{sD}, 14\ns_add_u32 s{sX}, s{sX}, s{sT0}\ns_add_u32 s{sX}, s{sX}, {HF}")
    k(f"s_lshl_b32 s{sT0}, s{sD}, 11")
    set_lds_bases(k, sT0)
    seq = []
    for s in range(16):
        seq.append((s, 1))
        if s < 16 - WO_R0: seq.append((s, 0))
    nf = len(seq)
    seq += [(s, 0) for s in range(16 - WO_R0, 16)]
    ops = [dict(b=4*s + a, bmin=0, bmax=63, xi=s, x=vr(vX+4*s), acc=vr(vACC+16*a,16), swap=False, first=(s == 0)) for s, a in seq]
    g = Gemm(k, ring, ops, {0}, stop_issue=WO_STOP)
    rs = {}
    def ldres():
        if L == 0:
            k.vm(f"buffer_load_dwordx4 {vr(vRES)}, v8, {srd(60)}, s{sE} offen")
            rs['t'] = k.vm(f"buffer_load_dwordx4 {vr(vRES+4)}, v8, {srd(60)}, s{sE} offen offset:32")
        else:
            rs['t'] = load_res(k, vRES)
    if not RES_LATE[L]:
        if L == 0: rowmajor_addr(k, 8, sE)
        ldres()
    g.start()
    mark(k, 'f_bar')
    ring.issue_n(PRE_WO)
    publish_local(k, tO)
    mark(k, 'f_pub')
    ring.issue_n(PRE_WO2)
    k(f"s_and_b32 s{sF}, s{sRB}, 0xfe\ns_add_u32 s{sF}, s{sF}, s{sD}\ns_lshl_b32 s{sF}, s{sF}, 7\ns_add_u32 s{sF}, s{sF}, {FLOC(L,0)}")
    SC = 144 * KB
    k(f"s_xor_b32 s{sT0}, s{sW}, 2\ns_lshl_b32 s{sT0}, s{sT0}, 12\ns_add_u32 s{sT0}, s{sT0}, {SC}\nv_add_u32 v6, s{sT0}, v{vL16}")
    k(f"s_lshl_b32 s{sT0}, s{sW}, 12\ns_add_u32 s{sT0}, s{sT0}, {SC}\nv_add_u32 v7, s{sT0}, v{vL16}")
    if RES_LATE[L] and L == 0: rowmajor_addr(k, 8, sE)
    poll16(k)
    mark(k, 'f_poll')
    xq = XLoader(k, 16, lambda i: vr(vX+4*i), lin_src(k))
    xq.issue_n(WO_N0)
    if not RES_LATE[L]:
        for x in res_unpack(vSUM, vRES): k(x)
    st = {}
    def xchg(step):
        if step == 0:
            while g.nread < 32: g.rd()
            for j in range(4): k.lg(f"ds_write_b128 v6, {vr(vACC+16+4*j)} offset:{j*KB}")
        elif step == 1:
            k.wait_all(vm=False)
            ring.limit = None
            ring.sync(64, 0)
            for j in range(4): st['t'] = k.lg(f"ds_read_b128 {vr(vACC+16+4*j)}, v7 offset:{j*KB}")
        st['n'] = step + 1
    def filler(m):
        if m == max(nf + 1, 25): xchg(0)
        if m == max(nf + 4, 28): xchg(1)
    g.run(xq, n0=0, look=16, filler=filler, misc=[ldres] if RES_LATE[L] else [])
    for step in range(st.get('n', 0), 2): xchg(step)
    if RES_LATE[L]:
        k.wait(vm=rs['t'])
        for x in res_unpack(vSUM, vRES): k(x)
    k.wait(lg=st['t'])
    for i in range(16): k(f"v_add_f32 v{vSUM+i}, v{vSUM+i}, v{vACC+16+i}")
    for j in range(8):
        k(f"v_add_f32 v{vACC+2*j}, v{vACC+2*j}, v{vSUM+2*j}\nv_add_f32 v{vACC+2*j+1}, v{vACC+2*j+1}, v{vSUM+2*j+1}")
        k(f"v_cvt_pk_bf16_f32 v{vPK+j}, v{vACC+2*j}, v{vACC+2*j+1}")
    ts = store_x(k, vACC, vPK, L, 1, ring)
    mark(k, 'end')
    return ts

PASSES = ((0, 3), (3, 2), (5, 2))
def ph_up(k, L, ring, b0, tprev):
    vX, vACC, vST, vEXT, vRS = 16, 144, 224, 8, 6
    sH0, sH1 = sD, sE
    rb_128(k)
    k(f"s_and_b32 s{sA}, s{sC}, 15")
    k(f"s_lshl_b32 s{sX}, s{sRB}, 15\ns_add_u32 s{sX}, s{sX}, {XF}")
    set_lds_bases(k)
    ops = []
    b = b0
    for (t0, nt) in PASSES:
        for ks in range(33):
            for t in range(t0, t0+nt):
                ops.append(dict(b=b, bmin=b, bmax=b, xi=(ks if ks < 32 else None), x=(vr(vX+4*ks) if ks < 32 else vr(vEXT)),
                                acc=vr(vACC+16*t, 16), swap=False, first=(ks == 0)))
                b += 1
    if UP4:
        last = ops[165:]
        for o in last[0::2]: o['bmin'] = b0 + 165
        for o in last[1::2]: o['bmin'] -= 1
        ops = ops[:165] + last[0::2] + last[1::2]
    g = Gemm(k, ring, ops, UP_SYNCS, stop_issue=UP_STOP)
    g.start()
    mark(k, 'f_bar')
    ring.issue_n(PRE)
    publish_local(k, tprev)
    mark(k, 'f_pub')
    ring.issue_n(PRE2)
    res = {}
    se = stats_emitters(k, vST, res)
    k(f"s_mul_i32 s{sH0}, s{sRB}, 112\ns_mul_i32 s{sT2}, s{sA}, 7\ns_add_u32 s{sH0}, s{sH0}, s{sT2}\ns_lshl_b32 s{sH0}, s{sH0}, 10\ns_add_u32 s{sH0}, s{sH0}, {HF}")
    k(f"s_add_u32 s{sH1}, s{sH0}, 4096")
    k(f"s_lshl_b32 s{sF}, s{sRB}, 7\ns_add_u32 s{sF}, s{sF}, {FLOC(L,1)}")
    poll16(k)
    mark(k, 'f_poll')
    aps = stats_poll(k, FLOC(L,6) - FLOC(L,1))
    xq = XLoader(k, 32, lambda i: vr(vX+4*i), lin_src(k))
    fin = fin_stats(vST, vEXT, vRS) + [f"v_mul_f32 v{vRS}, v{vRS}, v{vRS}"]
    def epi(t):
        a = vACC + 16*t
        o = []
        for j in range(4):
            o += [f"v_mul_f32 v{a+2*j}, v{a+2*j}, v{vRS}", f"v_mul_f32 v{a+2*j+1}, v{a+2*j+1}, v{vRS}",
                  f"v_mul_f32 v{a+2*j}, v{a+2*j}, v{a+8+2*j}", f"v_mul_f32 v{a+2*j+1}, v{a+2*j+1}, v{a+9+2*j}",
                  f"v_cvt_pk_bf16_f32 v{a+8+j}, v{a+2*j}, v{a+2*j+1}"]
        o.append(f"buffer_store_dwordx4 {vr(a+8)}, v{vL16}, {srd(sWS)}, s{sH0 + (t >> 2)} offen offset:{(t & 3)*KB}")
        return o
    st = dict(i=0, t=None); q = []
    def put(x):
        if x.startswith('buffer'): st['t'] = k.vm(x)
        else: k(x)
    dn = Down(k, L)
    def filler(m):
        if aps and m == 12: aps.issue()
        if aps and m == 30: aps.check()
        if 70 <= m < 96:
            if st['i'] == 0: k.wait(vm=res['t'])
            for _ in range(2):
                if st['i'] < len(fin): k(fin[st['i']]); st['i'] += 1
        if m == 102: q.extend(sum((epi(t) for t in range(0, 3)), []))
        if m == 168: q.extend(sum((epi(t) for t in range(3, 5)), []))
        if UP4 and m == 201: q.extend(epi(5))
        for _ in range(UP_EPI):
            if q: put(q.pop(0))
        if m == 146: code_touch(k, 7)
        if m in UP_PUB:
            assert not q
            if m == UP_PUB[0]:
                k(f"s_lshl_b32 s{sF}, s{sRB}, 4\ns_add_u32 s{sF}, s{sF}, s{sA}\ns_lshl_b32 s{sF}, s{sF}, 3\ns_add_u32 s{sF}, s{sF}, {FLOC(L,9)}")
            publish_local(k, st['t'])
            k(f"s_add_u32 s{sF}, s{sF}, {8*KB}")
            if m == UP_PUB[1]: dn.xq.hold = 20
        if UP_PUB[0] < m and dn.setup:
            for _ in range(3):
                if dn.setup: k(dn.setup.pop(0))
        if m in DN_POLL: dn.ap.issue()
        if m in DN_CHK:
            dn.ap.check()
            k(f"s_add_u32 s{dn.sFl}, s{dn.sFl}, {8*KB}")
        if m > DN_CHK[0] and m % 2 and not (ring.can_issue() and m < UP_STOP): dn.xq.issue_n(1)
    if L == 0: ring.limit = 296 + QW_UP
    g.run(xq, look=UP_LOOK, filler=filler, misc=se, misc_from=32, skip=UP_SKIP[L])
    assert st['i'] == len(fin) and not dn.setup and ring.issued == min(ring.total, 296 + QW_UP)
    dn.xq.hold = 36 if len(DN_CHK) > 1 else 24
    for t in range(6 if UP4 else 5, 7):
        for i, x in enumerate(epi(t)):
            put(x)
            if i in (4, 14): dn.xq.issue_n(1)
    mark(k, 'end')
    dn.tB = st['t']
    return dn

class Down:
    NX = 36
    def __init__(self, k, L):
        self.k = k; self.L = L
        sXa, sXb, sFl = sB, sX2, sCc
        self.sFl = sFl
        self.setup = (f"s_lshr_b32 s{sT0}, s{sDST}, 15\ns_mul_i32 s{sT1}, s{sW}, {28*KB}\ns_add_u32 s{sT1}, s{sT1}, {HF}\n"
                      f"s_mul_i32 s{sXa}, s{sT0}, {112*KB}\ns_add_u32 s{sXa}, s{sXa}, s{sT1}\n"
                      f"s_xor_b32 s{sT2}, s{sT0}, 1\ns_mul_i32 s{sXb}, s{sT2}, {112*KB}\ns_add_u32 s{sXb}, s{sXb}, s{sT1}\n"
                      f"v_and_b32 v12, 3, v0\nv_lshlrev_b32 v12, 3, v12\nv_and_b32 v13, 4, v0\nv_lshl_add_u32 v12, v13, 5, v12\n"
                      f"s_and_b32 s{sFl}, s{sT0}, 0xfe\ns_lshl_b32 s{sFl}, s{sFl}, 7\ns_lshl_b32 s{sT1}, s{sW}, 5\ns_add_u32 s{sFl}, s{sFl}, s{sT1}\n"
                      f"s_add_u32 s{sFl}, s{sFl}, {FLOC(L,9)}").split('\n')
        self.order = order = [7*c + t for t0, nt in (((0, 3), (3, 2), (5, 1), (6, 1)) if UP4 else PASSES) for c in range(4) for t in range(t0, t0+nt)]
        cur = {sXa: 0, sXb: 0}
        def src(i):
            s_ = sXa if (i & 1) == 0 else sXb
            r = order[i >> 1]
            if not 0 <= r - cur[s_] < 4:
                d = (r - cur[s_]) * KB
                k(f"s_add_u32 s{s_}, s{s_}, {d}" if d > 0 else f"s_sub_u32 s{s_}, s{s_}, {-d}")
                cur[s_] = r
            return s_, (r - cur[s_]) * KB
        self.xr = lambda i: vr(144 + 4*(i % 36) if (i % 36) < 20 else 80 + 4*((i % 36) - 20))
        self.xq = XLoader(k, 56, self.xr, src)
        self.xq.hold = 12
        self.ap = apoll1(k, 12, 14, sFl)

def res_unpack(dst, v):
    o = []
    for j in range(8): o += [f"v_lshlrev_b32 v{dst+2*j}, 16, v{v+j}", f"v_and_b32 v{dst+2*j+1}, 0xffff0000, v{v+j}"]
    return o

def ph_down(k, L, ring, dn):
    vACC, vRES, vPK, vSUM = 16, 240, 240, 224
    final = L == 1
    xq = dn.xq; order = dn.order; NX = dn.NX
    if len(DN_CHK) > 1: xq.hold = 40
    SC = 108 * KB
    side = []
    for a in range(1, 4):
        side += f"s_xor_b32 s{sT0}, s{sW}, {a}\ns_mul_i32 s{sT0}, s{sT0}, {12*KB}\ns_add_u32 s{sT0}, s{sT0}, {SC + (a-1)*4*KB}\nv_add_u32 v{5+a}, s{sT0}, v{vL16}".split('\n')
    side += f"s_mul_i32 s{sT0}, s{sW}, {12*KB}\ns_add_u32 s{sT0}, s{sT0}, {SC}\nv_add_u32 v9, s{sT0}, v{vL16}".split('\n')
    if final and OUT_T:
        side += (f"s_and_b32 s{sT0}, s{sW}, 1\ns_mul_i32 s{sT0}, s{sT0}, {32*144}\ns_lshr_b32 s{sT2}, s{sW}, 1\ns_lshl_b32 s{sT2}, s{sT2}, 6\ns_add_u32 s{sT0}, s{sT0}, s{sT2}\n"
                 f"v_and_b32 v10, 31, v0\nv_mul_u32_u24 v10, 144, v10\nv_bfe_u32 v11, v0, 5, 1\nv_lshl_add_u32 v10, v11, 4, v10\nv_add_u32 v10, s{sT0}, v10\n"
                 f"s_mul_i32 s{sT0}, s{sW}, {16*144}\nv_bfe_u32 v13, v0, 3, 3\nv_mul_u32_u24 v11, 144, v13\nv_and_b32 v5, 7, v0\nv_lshl_add_u32 v11, v5, 4, v11\nv_add_u32 v11, s{sT0}, v11\n"
                 f"v_lshlrev_b32 v13, 10, v13\nv_lshl_add_u32 v13, v5, 4, v13\n"
                 f"s_and_b32 s{sT0}, s{sDST}, 0xffff0000\ns_lshl_b32 s{sT2}, s{sW}, 14\ns_add_u32 s{sT0}, s{sT0}, s{sT2}\n"
                 f"s_and_b32 s{sT2}, s{sC}, 7\ns_lshl_b32 s{sT2}, s{sT2}, 7\ns_add_u32 s{sT0}, s{sT0}, s{sT2}\ns_add_u32 s{sT2}, s{sT0}, 8192").split('\n')
    R, R0 = DN_R, DN_R0
    seq = []
    for s in range(28 - R):
        seq += [(s, a) for a in (3, 2, 1)]
        if s < 28 - R0: seq.append((s, 0))
    seq += [(s, a) for a in (3, 2, 1) for s in range(28 - R, 28)] + [(s, 0) for s in range(28 - R0, 28)]
    lo = [min(2*s_ + (a_ & 1) for s_, a_ in seq[m:]) for m in range(112)]
    wr = []; rt = None; tail = None; res = None; wb = False; adds = []
    for m, (s, a) in enumerate(seq):
        r = order[s]
        if len(DN_CHK) == 1 and m == DN_CHK2:
            dn.ap.check()
            k(f"s_add_u32 s{dn.sFl}, s{dn.sFl}, {8*KB}")
            xq.hold = 40
        if m == int(4*DN_PUBB): publish_local(k, dn.tB)
        if UP4 and m == DN_POLL3: dn.ap.issue()
        if UP4 and m == DN_CHK3:
            dn.ap.check()
            k(f"s_add_u32 s{dn.sFl}, s{dn.sFl}, {8*KB}")
            xq.hold = 48
        if m == 4*DN_BAR:
            ring.limit = None
            ring.sync(296, 0)
        if m == 4*DN_POLLB:
            apb = dn.ap
            apb.issue()
            rt = load_res(k, vRES)
        if m == 4*DN_CHKB:
            apb.check()
            xq.hold = 56
            xq.issue_n(min(3, lo[m] + NX - xq.n))
        xi = 2*s + (a & 1)
        while xq.n <= xi:
            assert xq.n < xq.hold and xq.n < lo[m] + NX
            xq.issue_n(1)
        k.wait(vm=xq.t[xi])
        acc = vr(vACC + 16*a, 16)
        k(f"v_mfma_f32_32x32x16_bf16 {acc}, {ar(aWD + 8*r + 4*(a >> 1))}, {dn.xr(xi)}, {'0' if s == 0 else acc}")
        if m == 0: mark(k, 'm0')
        if m in GEMM_MARKS.get(G.ph, ()): mark(k, f'm{m}')
        if (m % 2 == 0 or (xq.hold == 56 and m % DN_CR == 0)) and xq.n < min(lo[m] + NX, xq.total, xq.hold): xq.issue_n(1)
        elif m % 2 == 0 and xq.n == xq.total and ring.can_issue(): ring.issue()
        elif m > 4*DN_CHKB + 8:
            if res is None:
                k.wait(vm=rt); res = True
                side += res_unpack(vSUM, vRES)
            for _ in range(4):
                if side: k(side.pop(0))
        if final and WB_MASK is not None and xq.n == xq.total and (WB_EARLY or k.vm_done == k.vm_issued) and not wb:
            wb = True; l_ = k.newlabel('wb')
            k(f"s_lshl_b32 s{sT1}, s{sC}, 2\ns_add_u32 s{sT1}, s{sT1}, s{sW}\ns_and_b32 s{sT1}, s{sT1}, {WB_MASK}")
            if WB_EARLY:
                k(f"s_cbranch_scc0 {l_}")
                k.vm(f"buffer_load_dword v15, off, {srd(sWS)}, s{dn.sFl} sc1")
                k.label(l_ + 'r')
                G.far += [f"{l_}:", "buffer_wbl2 sc1", f"s_branch {l_}r"]
            else:
                k(f"s_cbranch_scc1 {l_}")
                k("buffer_wbl2 sc1")
                k.label(l_)
            print('wbl2 at', m, file=sys.stderr)
        if wr and wr[0][0] <= m:
            assert not side
            for _ in range(min(DN_WR, len(wr))):
                if wr[0][0] <= m: k.lg(wr.pop(0)[1])
            if wr and DN_WR == 1: wr[0] = (max(wr[0][0], m + DN_WGAP), wr[0][1])
            if not wr and a == 0: tail = min(m + 2, 111)
        if s == 27 and a:
            wr += [(m + 2, f"ds_write_b128 v{5+a}, {vr(vACC+16*a+4*j)} offset:{j*KB}") for j in range(4)]
        def fetch(bs):
            k("s_barrier")
            for b in bs:
                for j in range(4): t_ = k.lg(f"ds_read_b128 {vr(vACC+16+16*b+4*j)}, v9 offset:{b*4*KB + j*KB}")
                adds.extend((m + 2, t_, f"v_add_f32 v{vSUM+i}, v{vSUM+i}, v{vACC+16+16*b+i}") for i in range(16))
        if DN_X2 and m == 112 - R0:
            assert all('ds_write_b128 v6,' in x[1] for x in wr)
            k.wait_all(vm=False)
            fetch((2, 1))
        elif tail == m:
            k.wait_all(vm=False)
            fetch((0,) if DN_X2 else (2, 1, 0))
        else:
            for _ in range(DN_ADDS):
                if adds and adds[0][0] <= m:
                    _, t_, x = adds.pop(0); k.wait(lg=t_); k(x)
    assert not side and not wr and tail is not None and tail < 112
    for _, t_, x in adds:
        k.wait(lg=t_); k(x)
    if final and not OUT_T: rowmajor_addr(k, 6, sT0)
    for j in range(8):
        k(f"v_add_f32 v{vACC+2*j}, v{vACC+2*j}, v{vSUM+2*j}\nv_add_f32 v{vACC+2*j+1}, v{vACC+2*j+1}, v{vSUM+2*j+1}")
        k(f"v_cvt_pk_bf16_f32 v{vPK+j}, v{vACC+2*j}, v{vACC+2*j+1}")
        if final and OUT_T and j in (3, 7): k.lg(f"ds_write_b128 v10, {vr(vPK+j-3)} offset:{(j >> 2)*32}")
    if final and OUT_T:
        k.wait_all(vm=False)
        k("s_barrier")
        t0 = k.lg(f"ds_read_b128 {vr(vPK)}, v11")
        t1 = k.lg(f"ds_read_b128 {vr(vPK+4)}, v11 offset:{8*144}")
        k.wait(lg=t0)
        k.vm(f"buffer_store_dwordx4 {vr(vPK)}, v13, {srd(sAUX)}, s{sT0} offen{OUT_SC}")
        k.wait(lg=t1)
        k.vm(f"buffer_store_dwordx4 {vr(vPK+4)}, v13, {srd(sAUX)}, s{sT2} offen{OUT_SC}")
    elif final:
        k.vm(f"buffer_store_dwordx4 {vr(vPK)}, v6, {srd(sAUX)}, s{sT0} offen{OUT_SC}")
        k.vm(f"buffer_store_dwordx4 {vr(vPK+4)}, v6, {srd(sAUX)}, s{sT0} offen offset:32{OUT_SC}")
    else:
        G.tx = store_x(k, vACC, vPK, L, 8, ring)
    mark(k, 'end')

def k_main(name):
    k = Asm()
    G.nst = 0
    k(f".globl {name}\n.p2align 8\n.type {name},@function")
    k.label(name)
    if STAMP or PADTO or GATE: k("s_memrealtime s[42:43]")
    mark(k, 'start')
    k("s_cmp_ge_u32 s2, 256")
    k("s_cbranch_scc1 L_abort")
    k(f"s_load_dwordx2 s[{sWS}:{sWS+1}], s[0:1], 72")
    k(f"s_load_dwordx2 s[{sAUX}:{sAUX+1}], s[0:1], 56")
    k("s_load_dwordx2 s[60:61], s[0:1], 0\ns_load_dwordx4 s[64:67], s[0:1], 8\ns_load_dwordx4 s[68:71], s[0:1], 32\ns_load_dwordx2 s[72:73], s[0:1], 48")
    k("v_lshrrev_b32 v2, 6, v0")
    k(f"v_and_b32 v{vL16}, 63, v0")
    k(f"v_readfirstlane_b32 s{sW}, v2")
    k(f"v_lshlrev_b32 v{vL16}, 4, v{vL16}")
    k(f"s_mov_b32 s{sWG}, s2\ns_and_b32 s{sG}, s2, 7\ns_lshr_b32 s{sC}, s2, 3\ns_lshl_b32 s{sW1K}, s{sW}, 10")
    k(f"s_lshr_b32 s{sC4}, s{sC}, 4\ns_lshr_b32 s{sC3}, s{sC}, 3")
    k(f"s_lshl_b32 s{sU}, s{sG}, 5\ns_add_u32 s{sU}, s{sU}, s{sC}")
    k(f"s_lshl_b32 s{sW4K}, s{sW}, 12")
    k(f"s_getreg_b32 s{sXCC}, hwreg(HW_REG_XCC_ID, 0, 4)")
    k(f"v_add_u32 v{vSRC}, s{sW1K}, v{vL16}")
    k(f"s_mov_b32 s{sMSK}, 0xffff\ns_mov_b32 s{sMSK+1}, 0xffff\ns_mov_b32 s{sMODE}, 0")
    k(f"s_and_b32 s{sT0}, s{sC}, 7\ns_mul_i32 s{sSEG}, s{sT0}, {WO_STR}\ns_add_u32 s{sSEG}, s{sSEG}, {WO}")
    k(f"s_lshl_b32 s{sT1}, s{sG}, 2\ns_add_u32 s{sT1}, s{sT1}, s{sC3}\ns_lshl_b32 s{sT1}, s{sT1}, 1\ns_and_b32 s{sT2}, s{sW}, 1\ns_add_u32 s{sT1}, s{sT1}, s{sT2}")
    k(f"s_lshl_b32 s{sT1}, s{sT1}, 5\ns_lshl_b32 s{sT0}, s{sT0}, 2\ns_add_u32 s{sT1}, s{sT1}, s{sT0}\ns_and_b32 s{sT2}, s{sW}, 2\ns_add_u32 s{sT1}, s{sT1}, s{sT2}\ns_lshl_b32 s{sDST}, s{sT1}, 10")
    k(f"s_lshr_b32 s{sSD}, s{sDST}, 12\ns_lshl_b32 s{sSD}, s{sSD}, 9\ns_lshl_b32 s{sT2}, s{sT2}, 2\ns_add_u32 s{sSD}, s{sSD}, s{sT2}\ns_add_u32 s{sSD}, s{sSD}, {SX}")
    k(f"s_and_b32 s{sT0}, s{sC}, 15\ns_mul_i32 s{sSEG+1}, s{sT0}, {WU_STR}\ns_add_u32 s{sSEG+1}, s{sSEG+1}, {WU}")
    k(f"s_mul_i32 s{sSEG+2}, s{sT0}, {WQ_STR}\ns_add_u32 s{sSEG+2}, s{sSEG+2}, {WQ}")
    def late(k):
        if WSOFF: k(f"s_add_u32 s{sWS}, s{sWS}, {WSOFF}\ns_addc_u32 s{sWS+1}, s{sWS+1}, 0")
        k(f"s_add_u32 s{sT0}, s{sWS}, {EP}\ns_addc_u32 s{sT1}, s{sWS+1}, 0")
        k(f"s_load_dwordx2 s[{sTAG}:{sTAG+1}], s[{sT0}:{sT1}], 0")
        k(f"s_and_b32 s{sWS+1}, s{sWS+1}, 0xffff\ns_mov_b32 s{sWS+2}, {0x10000000 - WSOFF}\ns_mov_b32 s{sWS+3}, 0x20000")
        k(f"s_and_b32 s{sAUX+1}, s{sAUX+1}, 0xffff\ns_mov_b32 s{sAUX+2}, {2*MB}\ns_mov_b32 s{sAUX+3}, 0x20000")
    G.ph = 'qkv0'; tk = ph_qkv0(k, late)
    for L in range(2):
        ring = Ring(k, [(sSEG, 64), (sSEG+1, 232)] + ([(sSEG+2, 100)] if L == 0 else []))
        G.ph = f'att{L}'; tO = ph_att(k, L, ring, *tk)
        G.ph = f'wo{L}'; tx = ph_wo(k, L, ring, tO)
        G.ph = f'up{L}'; tB = ph_up(k, L, ring, 64, tx)
        G.ph = f'dn{L}'; ph_down(k, L, ring, tB)
        G.ph = 'qkv1'
        if L == 0: tk = ph_qkv(k, 1, ring, 296)
    k(f"s_add_u32 s{sT0}, s{sWG}, s{sW}\ns_cmp_lg_u32 s{sT0}, 0\ns_cbranch_scc1 L_fin")
    k(f"s_mov_b32 s{sF}, {EP}")
    publish_local(k, None, force_global=True)
    k.label("L_fin")
    if PADTO:
        k("s_waitcnt vmcnt(0)")
        if PADMIN:
            k("s_load_dwordx2 s[64:65], s[0:1], 64\ns_waitcnt lgkmcnt(0)")
            k("s_not_b32 s66, s42\nv_mov_b32 v8, s66\nv_mov_b32 v9, 0\ns_mov_b64 exec, 1")
            k("global_atomic_umax v9, v8, s[64:65]\ns_waitcnt vmcnt(0)")
            k.label("L_pad0")
            k(f"s_memrealtime s[98:99]\ns_waitcnt lgkmcnt(0)\ns_sub_u32 s98, s98, s42\ns_cmp_lt_u32 s98, {PADTO - 1500}\ns_cbranch_scc1 L_pad0")
            k("global_load_dword v8, v9, s[64:65] sc1\ns_waitcnt vmcnt(0)\nv_readfirstlane_b32 s66, v8\ns_not_b32 s42, s66\ns_mov_b64 exec, -1")
        k.label("L_pad")
        k(f"s_memrealtime s[98:99]\ns_waitcnt lgkmcnt(0)\ns_sub_u32 s98, s98, s42\ns_cmp_lt_u32 s98, {PADTO}\ns_cbranch_scc1 L_pad")
    if STAMP:
        k("s_waitcnt vmcnt(0)")
        G.ph = ''; mark(k, 'fin')
        k("s_memrealtime s[98:99]\ns_waitcnt lgkmcnt(0)")
        vals = [42, 98, sMODE] + STS[:G.nst]
        for i, s_ in enumerate(vals): k(f"v_mov_b32 v{16+i}, s{s_}")
        k(f"s_lshl_b32 s{sT0}, s{sWG}, 2\ns_add_u32 s{sT0}, s{sT0}, s{sW}\ns_lshl_b32 s{sT0}, s{sT0}, 7\ns_add_u32 s{sT0}, s{sT0}, {TS}")
        k("v_mov_b32 v4, 0\ns_mov_b64 exec, 1")
        for j in range(8): k(f"buffer_store_dwordx4 {vr(16+4*j)}, v4, {srd(sWS)}, s{sT0} offen offset:{16*j}")
        if DBG is not None:
            k(f"s_lshl_b32 s{sT0}, s{sWG}, 2\ns_add_u32 s{sT0}, s{sT0}, s{sW}\ns_cmp_lg_u32 s{sT0}, {DBG}\ns_cbranch_scc1 L_nodbg")
            k("s_load_dwordx2 s[64:65], s[0:1], 64\ns_waitcnt lgkmcnt(0)")
            for i in range(16): k(f"v_sub_u32 v{64+i}, v{20+i}, v19")
            for j in range(4): k(f"global_store_dwordx4 v4, {vr(64+4*j)}, s[64:65] offset:{16*j}")
            k.label("L_nodbg")
    k("s_waitcnt vmcnt(0)")
    k.label("L_abort")
    k("s_endpgm")
    for x in G.far:
        if x.endswith(':'): k.label(x[:-1])
        else: k(x)
    k(".fill 8448, 4, 0xbf800000")
    return k

def build():
    name = NAME + "_kernel"
    k = k_main(name)
    nn = k.fix()
    print(f"{len(k.L)} lines, {nn} nop states", file=sys.stderr)
    return f"""; stamps: {','.join(G.names)}
; @launch grid=(256,1,1) block=(256,1,1) lds={160*KB}
.amdgcn_target "amdgcn-amd-amdhsa--gfx950"
.text
{k.text()}
.section .rodata,"a"
.p2align 6
.amdhsa_kernel {name}
  .amdhsa_next_free_vgpr 512
  .amdhsa_next_free_sgpr 102
  .amdhsa_accum_offset 256
  .amdhsa_group_segment_fixed_size 0
  .amdhsa_kernarg_size 80
  .amdhsa_user_sgpr_count 2
  .amdhsa_user_sgpr_kernarg_segment_ptr 1
  .amdhsa_system_sgpr_workgroup_id_x 1
.end_amdhsa_kernel
"""

if __name__ == "__main__":
    for a in sys.argv[2:]:
        kk_, vv_ = a.split('=', 1)
        globals()[kk_] = eval(vv_)
    open(sys.argv[1], "w").write(build())
```

```python
import sys, struct
from asmlib import Asm

NAME = "interleave_layers__mha_block__glu_gated_bilinear__prompt"
KB = 1024; MB = KB * KB
LOG2E = 1.4426950408889634
def f2u(x): return struct.unpack('<I', struct.pack('<f', x))[0]
def srd(b): return f"s[{b}:{b+3}]"
def vr(b, n=4): return f"v[{b}:{b+n-1}]"
def ar(b, n=4): return f"a[{b}:{b+n-1}]"

WQ = 0;                    WQ_STR = 100 * KB
WO = WQ + 16 * WQ_STR;     WO_STR = 64 * KB
WU = WO + 8 * WO_STR;      WU_STR = 232 * KB
WD = WU + 16 * WU_STR
FL = 7 * MB + 640 * KB
assert WD + 16 * 112 * KB <= FL
EP = FL
XID = FL + 1 * KB
def FLOC(L, p): return FL + 4 * KB + (L * 13 + p) * 8 * KB
FKV0 = FL + 4 * KB + 26 * 8 * KB
def FKV(L): return FKV0 + L * 32 * KB
FPK = FKV0 + 64 * KB
assert FPK + 32 * KB <= 8 * MB
XF = 8 * MB
HF = 10 * MB
QF = HF
SX = 17 * MB
def KVF(L): return 18 * MB + L * 4 * MB
WS_PAGES = 13
TS = 27 * MB
DUMP = 0x7ff00000

STAMP = False
FINAL = False
HDR = "; Two transformer layers (LN -> MHA -> residual, LN -> bilinear GLU -> residual) in ONE persistent launch:\n;    K/V, packed weights: write-through stores, device-scope flags.  Hand-offs inside a group use plain stores only\n;    written back before every flag.  All consumers read with L1-bypassing loads.\n;    finite, else the wave recomputes its rows with the true row maximum subtracted (labels fb_*).\n"
NEAR = True; CT0 = 8
GATE = None
WB_EARLY = False
DIAG_NOP = {}
UP4 = False; DN_POLL3 = 18; DN_CHK3 = 30
DN_X2 = True; DN_ADDS = 5; DN_CR = 2
RES_LATE = (False, False); XRES_TOUCH = 0
HEAD = 0
QKV_QE = 10; QKV_EPI = 5
R1_AT = 44; R1_STEP = 8
KV_LOC = True
PADTO = 0; PADMIN = False
OUT_T = True
ATT_NT = 2
PK_WIN2 = False; PK_SP = 0
WARM_AT = 1
RT = False
DN_CHK2 = 4
CT_AT = 92
FORCE_FB = False
WB_MASK = 127; OUT_SC = ' sc1'; DN_WR = 1; DN_WGAP = 2
QW_LATE = False; QW_UP = 64; QW_TOUCH = (72, 100); QW_N1 = 4
PK_Q0 = False; PK_RD = 1; PK_ST = 3; CHK_Q0 = 15
WO_STOP = 26; WO_R0 = 8; WO_N0 = 10; ST_PRE = 2; PPOLL = 0; KV_PF = (0, 0); PK_EARLY = True
FL_TOUCH = False
SPLIT_ST = True
FINE = False
UP_EPI = 2; UP_PUB = (154, 206); DN_POLL = (172, 226); DN_CHK = (186,); UP_LOOK = 8; UP_SYNCS = {0, 48, 80, 112, 144, 176, 200}; UP_SKIP = (0, 0); UP_STOP = 222
DN_PUBB = 4; DN_BAR = 14; DN_POLLB = 7; DN_CHKB = 12; DN_R = 8; DN_R0 = 12
FLAG_TOUCH = False
WSOFF = 0
SLEEP1 = (0, 0); SLEEP2 = 0; SLEEP3 = 0
DBG = None
PRE = 4; PRE2 = 0
PRE_WO = 5; PRE_WO2 = 0
CODE_TOUCH = True
WD_SLOTS = (2, 4, 6)
TOUCH_AT = (93, 90); TOUCH_STEP = (3, 4); TOUCH_LN = 32; TH_STEP = 3; TOUCH_KBS = (96, 96)
RING = 144
PK_T0 = 7; PK_GAP = 6; PK_GAP2 = 9; CHK_GAP = 14
P2_AT = 6
P2_LEAD = 4
TACTS = (102, 102); EARLY_H = 0

sC4, sC3 = 2, 3
sWS, sAUX = 4, 8
sW, sG, sC, sW1K = 12, 13, 14, 15
sT0, sT1, sT2, sT3 = 16, 17, 18, 19
sX, sRS, sRB = 20, 21, 22
sA, sB, sCc, sD, sE = 23, 24, 25, 26, 27
sS0, sS1 = 28, 21
sMSK, sTAG, sMODE, sXCC = 30, 32, 34, 35
sSEG = 36
sX2 = 39
sSPIN, sF = 40, 41
STS = list(range(44, 56, 2)) + [92, 94, 56, 58, 74, 76, 80, 82, 86, 88, 60, 62]
sWG = 101
sW4K = 97
sSD = 29
sPC, sCT = 90, 85
sDST = 100
vL16, vSRC, vB = 1, 2, 3
aWD, aWB = 0, 224

class G:
    nst = 0
    names = []
    far = []
    near = []
    ph = ''
SKIP = ''
ATT_MARKS = ()
GEMM_MARKS = {}
def mark(k, nm='x'):
    import re
    nm = G.ph + '_' + nm
    if GATE and GATE[0] == nm:
        k.label("L_gate")
        k(f"s_memrealtime s[98:99]\ns_waitcnt lgkmcnt(0)\ns_sub_u32 s98, s98, s42\ns_cmp_lt_u32 s98, {GATE[1]}\ns_cbranch_scc1 L_gate")
    if SKIP and re.match(SKIP, nm): return
    if '_f_' in nm and not FINE: return
    if STAMP:
        G.names.append(nm)
        k(f"s_mem{'real' if RT else ''}time s[{STS[G.nst]}:{STS[G.nst]+1}]")
        G.nst += 1

class Ring:
    def __init__(self, k, segs):
        self.k = k; self.N = RING
        self.total = sum(n for _, n in segs)
        self.starts = {}
        b = 0
        for s, n in segs:
            assert n % 4 == 0
            self.starts[b] = s; b += n
        self.issued = 0; self.freed = 0; self.visible = 0
        self.limit = None
        self.tick = {}
    def can_issue(self):
        if self.limit is not None and self.issued + 4 > self.limit: return False
        return self.issued < self.total and self.issued + 4 <= self.freed + self.N
    def issue(self):
        k = self.k
        assert self.can_issue()
        slot = self.issued % self.N
        k(f"s_add_u32 m0, s{sW1K}, {slot*KB}")
        if self.issued in self.starts: k(f"s_mov_b32 s{sRS}, s{self.starts[self.issued]}")
        else: k(f"s_add_u32 s{sRS}, s{sRS}, 4096")
        self.tick[self.issued // 4] = k.vm(f"buffer_load_dwordx4 v{vSRC}, {srd(sWS)}, s{sRS} offen sc1 lds")
        self.issued += 4
    def issue16(self):
        k = self.k
        b = self.issued; slot = b % self.N
        assert slot + 16 <= self.N and b + 16 <= min(self.limit or 1 << 30, self.freed + self.N)
        assert not any(x in self.starts for x in range(b + 1, b + 16))
        k(f"s_add_u32 m0, s{sW4K}, {slot*KB}")
        if b in self.starts: k(f"s_add_u32 s{sRS}, s{self.starts[b]}, s{sW4K}")
        else: k(f"s_add_u32 s{sRS}, s{sRS}, 16384")
        for i in range(4):
            t = k.vm(f"buffer_load_dwordx4 v{vL16}, {srd(sWS)}, s{sRS} offen offset:{i*KB} sc1 lds")
        for q in range(4): self.tick[b // 4 + q] = t
        self.issued += 16
    def end16(self):
        self.k(f"s_sub_u32 s{sRS}, s{sRS}, s{sW4K}\ns_add_u32 s{sRS}, s{sRS}, 12288")
    def issue_n(self, n):
        for _ in range(n):
            if self.can_issue(): self.issue()
    def sync(self, consumed, need):
        k = self.k
        need = min(need, self.total)
        if need > self.visible:
            q = (need - 1) // 4
            assert q * 4 < self.issued, (need, self.issued)
            k.wait(vm=self.tick[q])
        k("s_barrier")
        q = self.visible // 4
        while q in self.tick and self.tick[q] <= k.vm_done: q += 1
        self.visible = q * 4
        assert self.visible >= need
        self.freed = max(self.freed, (consumed // 4) * 4)
    def addr(self, b): return (b % self.N) * KB

def set_lds_bases(k, extra_s=None):
    if extra_s is None: k(f"v_mov_b32 v{vB}, v{vL16}")
    else: k(f"v_add_u32 v{vB}, s{extra_s}, v{vL16}")
    k(f"v_add_u32 v{vB+1}, 0x10000, v{vB}")
    k(f"v_add_u32 v{vB+2}, 0x20000, v{vB}")

class XLoader:
    def __init__(self, k, total, reg, src):
        self.k = k; self.total = total; self.reg = reg; self.src = src; self.n = 0; self.t = []
        self.hold = total
    def issue_n(self, n):
        k = self.k
        for _ in range(n):
            i = self.n
            if i >= min(self.total, self.hold): return
            s_, imm = self.src(i)
            self.t.append(k.vm(f"buffer_load_dwordx4 {self.reg(i)}, v{vL16}, {srd(sWS)}, s{s_} offen offset:{imm} sc1"))
            self.n += 1
def lin_src(k):
    def f(i):
        if i and (i & 3) == 0: k(f"s_add_u32 s{sX}, s{sX}, 4096")
        return sX, (i & 3) * KB
    return f

class Gemm:
    def __init__(self, k, ring, ops, syncs, D=4, NB=8, stop_issue=None):
        self.k = k; self.ring = ring; self.ops = ops; self.syncs = sorted(syncs)
        assert all(x % 2 == 0 for x in syncs)
        self.D = D; self.NB = NB; self.tl = {}; self.nread = 0
        self.stop = stop_issue if stop_issue is not None else len(ops)
    def rd(self):
        k = self.k; m = self.nread; o = self.ops[m]
        assert o['bmax'] < self.ring.visible, (m, o['b'], self.ring.visible)
        a = self.ring.addr(o['b'])
        self.tl[m] = k.lg(f"ds_read_b128 {ar(aWB + 4*(m % self.NB))}, v{vB + (a >> 16)} offset:{a & 0xffff}")
        self.nread += 1
    def need_until(self, m):
        M = len(self.ops)
        nxt = [s for s in self.syncs if s > m]
        last = min((nxt[0] if nxt else M) - 1 + self.D, M - 1)
        return max(o['bmax'] for o in self.ops[:last+1]) + 1
    def start(self):
        self.ring.sync(self.ops[0]['bmin'], self.need_until(0))
        while self.nread < min(self.D, len(self.ops)): self.rd()
    def run(self, xq, n0=6, look=10, filler=None, misc=(), misc_from=0, skip=0):
        k = self.k; M = len(self.ops)
        misc = list(misc)
        xq.issue_n(n0)
        cur = 0
        for m in range(M):
            if m in self.syncs and m > 0:
                self.ring.sync(self.ops[m]['bmin'], self.need_until(m))
            o = self.ops[m]
            xt = None
            if m % 2 == 0:
                xs = [p['xi'] for p in self.ops[m:m+2] if p.get('xi') is not None]
                if xs:
                    cur = max(cur, max(xs))
                    while xq.n <= max(xs): xq.issue_n(1)
                    xt = xq.t[max(xs)]
                k.wait(vm=xt, lg=self.tl[min(m + 1, M - 1)])
            w = ar(aWB + 4*(m % self.NB))
            c = o.get('c0', '0') if o['first'] else o['acc']
            A, B = (o['x'], w) if o['swap'] else (w, o['x'])
            k(f"v_mfma_f32_32x32x16_bf16 {o['acc']}, {A}, {B}, {c}")
            if m == 0: mark(k, 'm0')
            if m in GEMM_MARKS.get(G.ph, ()): mark(k, f'm{m}')
            if m % 2 == 0:
                for _ in range(2):
                    if self.nread < M: self.rd()
                if DIAG_NOP.get(G.ph): k(f"s_nop {DIAG_NOP[G.ph]}")
            elif not (skip and m % skip == skip - 1):
                rok = m < self.stop and self.ring.can_issue()
                if xq.n < xq.total and (xq.n - cur < look or not (rok or (misc and m >= misc_from))): xq.issue_n(1)
                elif misc and m >= misc_from: misc.pop(0)()
                elif rok: self.ring.issue()
            if filler: filler(m)
        assert not misc

def stats_emitters(k, vt, res):
    k(f"s_lshl_b32 s{sS0}, s{sRB}, 12\ns_add_u32 s{sS0}, s{sS0}, {SX}")
    def mk(i):
        def f(): res['t'] = k.vm(f"buffer_load_dwordx4 {vr(vt+4*i)}, v{vL16}, {srd(sWS)}, s{sS0} offen offset:{i*KB} sc1")
        return f
    return [mk(i) for i in range(4)]

NTREE = 14
def fin_stats(vt, vext, vrstd):
    ins = []
    n = 8
    while n > 1:
        h = n // 2
        for i in range(h):
            ins.append(f"v_add_f32 v{vt+2*i}, v{vt+2*i}, v{vt+2*(i+h)}")
            ins.append(f"v_add_f32 v{vt+2*i+1}, v{vt+2*i+1}, v{vt+2*(i+h)+1}")
        n = h
    a, b, c, d = vt, vt+1, vt+2, vt+3
    ins += [f"v_mov_b32 v{c}, v{a}", f"v_mov_b32 v{d}, v{b}",
            f"v_permlane32_swap_b32 v{a}, v{c}", f"v_permlane32_swap_b32 v{b}, v{d}",
            f"v_add_f32 v{a}, v{a}, v{c}", f"v_add_f32 v{b}, v{b}, v{d}",
            f"v_mul_f32 v{a}, {hex(f2u(-1.0/512))}, v{a}",
            f"v_mul_f32 v{b}, {hex(f2u(1.0/512))}, v{b}",
            f"v_fma_f32 v{b}, -v{a}, v{a}, v{b}",
            f"v_max_f32 v{b}, 0, v{b}",
            f"v_add_f32 v{b}, {hex(f2u(1e-5))}, v{b}",
            f"v_rsq_f32 v{vrstd}, v{b}",
            f"v_cvt_pk_bf16_f32 v{vext}, v{a}, v{a}",
            f"v_and_b32 v{c}, 0xffff0000, v{vext}",
            f"v_sub_f32 v{c}, v{a}, v{c}",
            f"v_cvt_pk_bf16_f32 v{vext+1}, v{c}, 0",
            f"v_mov_b32 v{vext+2}, v{vext}", f"v_mov_b32 v{vext+3}, v{vext+1}"]
    return ins

def poll(k, vaddr, vpd, sleep=0):
    l = k.newlabel('poll')
    k(f"s_mov_b32 s{sSPIN}, 0x40000")
    k.label(l)
    k.vm(f"buffer_load_dwordx2 {vr(vpd,2)}, v{vaddr}, {srd(sWS)}, s{sF} offen sc1")
    k(f"s_sub_u32 s{sSPIN}, s{sSPIN}, 1")
    k("s_cbranch_scc1 L_abort")
    k.wait_all(lg=False)
    k(f"v_cmp_ne_u64 vcc, s[{sTAG}:{sTAG+1}], {vr(vpd,2)}")
    k(f"s_cbranch_vccnz {l}")
class APoll:
    def __init__(self, k, loads, cmp, sleep=0):
        self.k = k; self.loads = loads; self.cmp = cmp; self.sleep = sleep
    def issue(self):
        for x in self.loads: self.t = self.k.vm(x)
    def check(self):
        k = self.k
        l = k.newlabel('ap'); ok = k.newlabel('apok')
        k.wait(vm=self.t)
        k(self.cmp)
        k(f"s_cbranch_vccnz {l}")
        k.label(ok)
        (G.near if NEAR else G.far).extend([f"{l}:", f"s_mov_b32 s{sSPIN}, 0x40000", f"{l}_l:"] + list(self.loads) + [
            f"s_sub_u32 s{sSPIN}, s{sSPIN}, 1", "s_cbranch_scc1 L_abort", "s_waitcnt vmcnt(0)", self.cmp,
            f"s_cbranch_vccnz {l}_l", f"s_branch {ok}"])
def flush_near(k):
    if not G.near: return
    l = k.newlabel('nr')
    k(f"s_branch {l}")
    for x in G.near:
        if x.endswith(':'): k.label(x[:-1])
        else: k(x)
    k.label(l)
    G.near.clear()
def apoll1(k, vaddr, vpd, soff, sleep=0):
    return APoll(k, [f"buffer_load_dwordx2 {vr(vpd,2)}, v{vaddr}, {srd(sWS)}, s{soff} offen sc1"],
                 f"v_cmp_ne_u64 vcc, s[{sTAG}:{sTAG+1}], {vr(vpd,2)}", sleep)
def poll16(k):
    flush_near(k)
    k("v_and_b32 v13, 15, v0\nv_lshlrev_b32 v13, 3, v13")
    poll(k, 13, 14)

def publish_local(k, last_store, force_global=False):
    k(f"v_mov_b32 v14, s{sTAG}\nv_mov_b32 v15, s{sTAG+1}")
    if force_global:
        k.wait(vm=last_store)
        k.vm(f"buffer_store_dwordx2 v[14:15], off, {srd(sWS)}, s{sF} sc1")
        return
    slow = k.newlabel('slow'); join = k.newlabel('join')
    k(f"s_cmp_eq_u32 s{sMODE}, 0")
    k(f"s_cbranch_scc1 {slow}")
    k.wait(vm=last_store)
    k.vm(f"buffer_store_dwordx2 v[14:15], off, {srd(sWS)}, s{sF}")
    k.label(join)
    G.far += [f"{slow}:", "s_waitcnt vmcnt(0)", "buffer_wbl2 sc1", "s_waitcnt vmcnt(0)",
              f"buffer_store_dwordx2 v[14:15], off, {srd(sWS)}, s{sF} sc1", f"s_branch {join}"]
def publish_wg(k, last_store, xid=False, barrier=True):
    l = k.newlabel('pw')
    k(f"v_mov_b32 v13, 0\nv_mov_b32 v14, s{sTAG}\nv_mov_b32 v15, s{sTAG+1}")
    k.wait(vm=last_store)
    if barrier: k("s_barrier")
    k(f"s_cmp_lg_u32 s{sW}, 0\ns_cbranch_scc1 {l}")
    k("s_mov_b64 exec, 1")
    if xid:
        k(f"v_xor_b32 v12, s{sXCC}, v14\nv_mov_b32 v13, v15")
        k(f"buffer_store_dwordx4 v[12:15], v{vL16}, {srd(sWS)}, s{sF} offen sc1")
    else:
        k(f"buffer_store_dwordx2 v[14:15], v13, {srd(sWS)}, s{sF} offen sc1")
    k("s_mov_b64 exec, -1")
    k.label(l)

def rb_128(k):
    k(f"s_lshl_b32 s{sT0}, s{sC4}, 2\ns_lshl_b32 s{sRB}, s{sG}, 3\ns_add_u32 s{sRB}, s{sRB}, s{sT0}\ns_add_u32 s{sRB}, s{sRB}, s{sW}")

def store_x(k, acc, pk, L, p, ring=None):
    k(f"s_add_u32 s{sT1}, s{sDST}, {XF}")
    k.vm(f"buffer_store_dwordx4 {vr(pk)}, v{vL16}, {srd(sWS)}, s{sT1} offen")
    td = k.vm(f"buffer_store_dwordx4 {vr(pk+4)}, v{vL16}, {srd(sWS)}, s{sT1} offen offset:1024")
    mark(k, 'f_xs')
    k(f"v_add_f32 v10, v{acc}, v{acc+1}\nv_mul_f32 v11, v{acc}, v{acc}\nv_add_f32 v8, v{acc+2}, v{acc+3}\nv_mul_f32 v9, v{acc+1}, v{acc+1}")
    k(f"v_fmac_f32 v11, v{acc+2}, v{acc+2}\nv_fmac_f32 v9, v{acc+3}, v{acc+3}")
    for i in range(4, 16, 2):
        k(f"v_add_f32 v10, v10, v{acc+i}\nv_fmac_f32 v11, v{acc+i}, v{acc+i}\nv_add_f32 v8, v8, v{acc+i+1}\nv_fmac_f32 v9, v{acc+i+1}, v{acc+i+1}")
        if ring and i in (4, 10): ring.issue_n(ST_PRE)
    k("v_add_f32 v10, v10, v8\nv_add_f32 v11, v11, v9\nv_mov_b32 v8, v10\nv_mov_b32 v9, v11")
    k("v_permlane32_swap_b32 v10, v8\nv_permlane32_swap_b32 v11, v9\nv_add_f32 v10, v10, v8\nv_add_f32 v11, v11, v9")
    k("s_mov_b32 exec_hi, 0")
    ts = k.vm(f"buffer_store_dwordx2 v[10:11], v{vL16}, {srd(sWS)}, s{sSD} offen")
    k("s_mov_b64 exec, -1")
    k(f"s_lshr_b32 s{sF}, s{sDST}, 8\ns_add_u32 s{sF}, s{sF}, {FLOC(L, p)}")
    mark(k, 'f_ss')
    if SPLIT_ST:
        publish_local(k, td)
        k(f"s_add_u32 s{sF}, s{sF}, {FLOC(L, 6 if p == 1 else 7) - FLOC(L, p)}")
    return ts
def stats_poll(k, delta):
    if not SPLIT_ST: return []
    k(f"s_add_u32 s{sF}, s{sF}, {delta}")
    ap = apoll1(k, 13, 14, sF)
    return ap

def rowmajor_addr(k, va, s_out):
    k(f"v_and_b32 v{va}, 31, v0\nv_lshlrev_b32 v{va}, 10, v{va}\nv_bfe_u32 v{va+1}, v0, 5, 1\nv_lshlrev_b32 v{va+1}, 4, v{va+1}\nv_add_u32 v{va}, v{va}, v{va+1}")
    k(f"s_and_b32 s{s_out}, s{sDST}, 0xffff8000\ns_bfe_u32 s{sT3}, s{sDST}, 0x5000a\ns_lshl_b32 s{sT3}, s{sT3}, 5\ns_add_u32 s{s_out}, s{s_out}, s{sT3}")

sU = 96
def pack_decode(k):
    nm = "pk"; u = f"s{sU}"
    k(f"s_min_u32 s83, {u}, 231")
    u = "s83"
    k(f"s_and_b32 s90, s{sW}, 1\ns_lshr_b32 s91, s{sW}, 1")
    k(f"s_cmp_lt_u32 {u}, 48\ns_cbranch_scc1 {nm}_q")
    k(f"s_cmp_lt_u32 {u}, 160\ns_cbranch_scc1 {nm}_u")
    k(f"s_cmp_lt_u32 {u}, 176\ns_cbranch_scc1 {nm}_o")
    k(f"s_sub_u32 s84, {u}, 176\ns_lshl_b32 s84, s84, 2\ns_add_u32 s84, s84, s{sW}")
    k("s_and_b32 s85, s84, 15\ns_lshr_b32 s86, s84, 4")
    k("s_lshl_b32 s87, s85, 6")
    k("s_add_u32 s74, s72, s87\ns_addc_u32 s75, s73, 0\ns_mov_b32 s76, s74\ns_mov_b32 s77, s75")
    k("s_mov_b32 s78, 1024\ns_lshl_b32 s79, s86, 7")
    k(f"s_mul_i32 s80, s85, 14\ns_add_u32 s80, s80, s86\ns_lshl_b32 s80, s80, 13\ns_add_u32 s80, s80, {WD}\ns_mov_b32 s81, 1024\ns_mov_b32 s82, {DUMP}")
    k(f"s_branch {nm}_go")
    k.label(f"{nm}_o")
    k(f"s_sub_u32 s85, {u}, 160\ns_lshr_b32 s88, s85, 3\ns_and_b32 s85, s85, 7")
    k("s_lshl_b32 s87, s85, 1\ns_add_u32 s87, s87, s90\ns_lshl_b32 s87, s87, 6")
    k("s_add_u32 s74, s66, s87\ns_addc_u32 s75, s67, 0\ns_mov_b32 s76, s74\ns_mov_b32 s77, s75")
    k("s_mov_b32 s78, 1024\ns_lshl_b32 s79, s88, 1\ns_add_u32 s79, s79, s91\ns_lshl_b32 s79, s79, 7")
    k("s_lshl_b32 s89, s91, 15\ns_xor_b32 s90, s90, s88\ns_lshl_b32 s88, s88, 1\ns_add_u32 s90, s90, s88\ns_lshl_b32 s90, s90, 10")
    k(f"s_mul_i32 s80, s85, {WO_STR}\ns_add_u32 s80, s80, s89\ns_add_u32 s80, s80, s90\ns_add_u32 s80, s80, {WO}")
    k(f"s_mov_b32 s81, 4096\ns_mov_b32 s82, {DUMP}")
    k(f"s_branch {nm}_go")
    k.label(f"{nm}_u")
    k(f"s_sub_u32 s85, {u}, 48\ns_mul_i32 s84, s85, 2341\ns_lshr_b32 s84, s84, 16\ns_mul_i32 s86, s84, 28\ns_sub_u32 s85, s85, s86")
    k(f"s_lshl_b32 s85, s85, 2\ns_add_u32 s85, s85, s{sW}\ns_lshl_b32 s87, s85, 5")
    k("s_add_u32 s74, s68, s87\ns_addc_u32 s75, s69, 0")
    k("s_add_u32 s76, s70, s87\ns_addc_u32 s77, s71, 0\ns_sub_u32 s76, s76, 32\ns_subb_u32 s77, s77, 0")
    k("s_mov_b32 s78, 3584")
    k("s_mul_i32 s86, s85, 9363\ns_lshr_b32 s86, s86, 16\ns_mul_i32 s88, s86, 7\ns_sub_u32 s88, s85, s88")
    k(f"s_mul_i32 s91, s86, {WU_STR}\ns_add_u32 s91, s91, {WU}\ns_lshl_b32 s89, s88, 10\ns_add_u32 s91, s91, s89")
    k(f"s_cmp_lt_u32 s88, 5\ns_cselect_b32 s89, 3, 5\ns_lshl_b32 s89, s89, 15")
    k(f"s_cmp_lt_u32 s88, 3\ns_cselect_b32 s81, 3, 2\ns_cselect_b32 s89, 0, s89\ns_lshl_b32 s81, s81, 10\ns_add_u32 s91, s91, s89")
    k(f"s_branch {nm}_ext")
    k.label(f"{nm}_q")
    k(f"s_cmp_ge_u32 {u}, 24\ns_cselect_b32 s84, 2, 0\ns_cselect_b32 s86, 24, 0\ns_add_u32 s84, s84, s91\ns_sub_u32 s85, {u}, s86")
    k("s_lshl_b32 s85, s85, 1\ns_add_u32 s85, s85, s90\ns_and_b32 s86, s85, 15\ns_lshr_b32 s88, s85, 4")
    k("s_lshl_b32 s87, s85, 6\ns_lshl_b32 s89, s88, 10")
    k("s_add_u32 s74, s64, s87\ns_addc_u32 s75, s65, 0\ns_mov_b32 s76, s74\ns_mov_b32 s77, s75")
    k("s_mov_b32 s78, 3072")
    k(f"s_sub_u32 s89, s89, 1024\ns_cmp_eq_u32 s88, 0\ns_cselect_b32 s89, {66*KB}, s89\ns_cselect_b32 s81, 1, 2\ns_lshl_b32 s81, s81, 10")
    k(f"s_mul_i32 s91, s86, {WQ_STR}\ns_add_u32 s91, s91, s89\ns_add_u32 s91, s91, {WQ}")
    k.label(f"{nm}_ext")
    k("s_lshl_b32 s79, s84, 7")
    k("s_lshl_b32 s89, s81, 5\ns_add_u32 s82, s91, s89\ns_lshr_b32 s89, s84, 1\ns_lshl_b32 s89, s89, 9\ns_add_u32 s82, s82, s89")
    k("s_and_b32 s89, s84, 1\ns_lshl_b32 s89, s89, 3\ns_add_u32 s82, s82, s89")
    k("s_lshl_b32 s89, s81, 3\ns_mul_i32 s89, s89, s84\ns_add_u32 s80, s91, s89")
    k.label(f"{nm}_go")
    k(f"s_cmp_ge_u32 s{sU}, 232\ns_cselect_b32 s80, {DUMP}, s80")
    k("v_bfe_u32 v4, v0, 2, 4\nv_add_u32 v4, s79, v4\nv_mul_lo_u32 v4, v4, s78")
    k("v_and_b32 v13, 3, v0\nv_lshlrev_b32 v13, 4, v13\nv_add_u32 v4, v4, v13")
    k(f"s_lshl_b32 s83, s78, 4")
    if PK_Q0: k(f"s_lshl_b32 s84, s{sW}, 13\ns_add_u32 s84, s84, {64*KB}")
    elif PK_EARLY: k(f"s_lshl_b32 s84, s{sW}, 13\ns_add_u32 s84, s84, {4*KB}")
    else: k(f"s_lshl_b32 s84, s{sW}, 14\ns_add_u32 s84, s84, {96*KB}")
    k("s_mov_b32 s86, s83\ns_mov_b32 s87, 0")
    k("v_and_b32 v13, 2, v0\nv_cmp_eq_u32 vcc, 0, v13")
    k("v_mov_b32 v14, s76\nv_mov_b32 v13, s74\nv_cndmask_b32 v14, v14, v13, vcc\nv_mov_b32 v15, s77\nv_mov_b32 v13, s75\nv_cndmask_b32 v15, v15, v13, vcc")
    k("v_add_co_u32 v4, vcc, v4, v14\nv_addc_co_u32 v5, vcc, 0, v15, vcc")
def pack_issue(k, i, sbase):
    k(f"s_add_u32 m0, s{sbase}, {i*KB}")
    if i: k("v_lshl_add_u64 v[4:5], v[4:5], 0, s[86:87]")
    return k.vm("global_load_lds_dwordx4 v[4:5], off")
def tr_addr(k, v, t):
    k(f"v_bfe_u32 v{v}, v0, 5, 1\nv_lshlrev_b32 v{v}, 9, v{v}")
    k(f"v_bfe_u32 v{t}, v0, 2, 2\nv_lshlrev_b32 v{t}, 6, v{t}\nv_add_u32 v{v}, v{v}, v{t}")
    k(f"v_bfe_u32 v{t}, v0, 4, 1\nv_lshlrev_b32 v{t}, 5, v{t}\nv_add_u32 v{v}, v{v}, v{t}")
    k(f"v_and_b32 v{t}, 1, v0\nv_lshlrev_b32 v{t}, 4, v{t}\nv_add_u32 v{v}, v{v}, v{t}")
    k(f"v_bfe_u32 v{t}, v0, 1, 1\nv_lshlrev_b32 v{t}, 3, v{t}\nv_add_u32 v{v}, v{v}, v{t}")
def ext_pair(src, dst, t0):
    return [f"v_mov_b32 v{t0}, v{src}", f"v_permlane32_swap_b32 v{src}, v{t0}", f"v_add_f32 v{src}, v{src}, v{t0}",
            f"v_cvt_pk_bf16_f32 v{dst+1}, v{src}, 0", f"v_lshlrev_b32 v{t0}, 16, v{dst+1}", f"v_sub_f32 v{src}, v{src}, v{t0}",
            f"v_cvt_pk_bf16_f32 v{dst}, v{t0}, v{src}"]
class Pack:
    def __init__(self, k): self.k = k; self.r = {}
    def issue(self, *ii):
        for i in ii: self.d = pack_issue(self.k, i, 84)
    def reads(self, *ii):
        k = self.k
        if ii[0] == 0:
            k("v_accvgpr_read_b32 v4, a212")
            k.wait(vm=self.d)
        for i in ii:
            k.lg(f"ds_read_b64_tr_b16 {ar(160+4*i,2)}, v4 offset:{i*KB}")
            self.r[i] = k.lg(f"ds_read_b64_tr_b16 {ar(162+4*i,2)}, v4 offset:{i*KB+256}")
    def csum(self, i):
        self.k.wait(lg=self.r[i])
        self.k(f"v_mfma_f32_32x32x16_bf16 {ar(196,16)}, {ar(192)}, {ar(160+4*i)}, {'0' if i == 0 else ar(196,16)}")
    def stores(self, *ii):
        k = self.k
        k.wait(lg=self.r[ii[-1]])
        for i in ii:
            k.vm(f"buffer_store_dwordx4 {ar(160+4*i)}, v{vL16}, {srd(sWS)}, s80 offen sc1")
            k("s_add_u32 s80, s80, s81")
    def ext(self):
        k = self.k
        k("v_accvgpr_read_b32 v13, a196")
        k("v_cvt_pk_bf16_f32 v15, v13, 0\nv_lshlrev_b32 v14, 16, v15\nv_sub_f32 v13, v13, v14\nv_cvt_pk_bf16_f32 v14, v14, v13")
        k("s_mov_b32 exec_hi, 0")
        self.s = k.vm(f"buffer_store_dwordx2 v[14:15], v{vL16}, {srd(sWS)}, s82 offen sc1")
        k("s_mov_b64 exec, -1")
    def pub(self):
        k = self.k
        k(f"s_lshl_b32 s{sF}, s{sU}, 7\ns_add_u32 s{sF}, s{sF}, {FPK}")
        publish_wg(k, self.s, xid=True)
    def schedule(self, job):
        t = PK_T0
        if not PK_EARLY:
            for i in range(4): job(t + i, lambda i=i: self.issue(2*i, 2*i+1))
            t += 4 + PK_GAP
        if PK_WIN2:
            job(t, self.pub)
            return t
        if PK_EARLY and PK_SP:
            for i in range(8): job(t + PK_SP*i, lambda i=i: self.stores(i))
            job(t + 8*PK_SP, self.ext)
            job(t + 8*PK_SP + PK_GAP2, self.pub)
            return t + 8*PK_SP + PK_GAP2
        if PK_EARLY:
            for i in range(4): job(t + i, lambda i=i: self.stores(2*i, 2*i+1))
            job(t + 4, self.ext)
            job(t + 4 + PK_GAP2, self.pub)
            return t + 4 + PK_GAP2
        job(t, lambda: self.reads(0, 1, 2, 3)); job(t + 1, lambda: self.reads(4, 5, 6, 7))
        for i in range(4):
            job(t + 2 + i, lambda i=i: self.stores(2*i, 2*i+1))
            job(t + 1 + i, lambda i=i: self.csum(2*i), e=14)
            job(t + 2 + i, lambda i=i: self.csum(2*i+1), e=0)
        job(t + 6, self.ext)
        job(t + 6 + PK_GAP2, self.pub)
        return t + 6 + PK_GAP2
def qkv_consts(vT, vRS, vR):
    return [f"v_cvt_pk_bf16_f32 v{vT}, v{vRS}, 0", f"v_lshlrev_b32 v{vT+1}, 16, v{vT}", f"v_sub_f32 v{vT+2}, v{vRS}, v{vT+1}",
            f"v_cvt_pk_bf16_f32 v{vT}, v{vT+1}, v{vT+2}", f"v_mov_b32 v{vT+1}, 0", f"v_mov_b32 v{vT+2}, 0", f"v_mov_b32 v{vT+3}, 0",
            f"v_cmp_gt_u32 vcc, 512, v{vL16}", f"v_mov_b32 v{vT+4}, 0x3f803f80", f"v_cndmask_b32 v{vT+4}, 0, v{vT+4}, vcc",
            f"v_mov_b32 v{vT+5}, 0", f"v_mov_b32 v{vT+6}, 0", f"v_mov_b32 v{vT+7}, 0",
            f"v_mul_f32 v{vRS+1}, {hex(f2u(0.25*LOG2E))}, v{vRS}",
            "v_bfe_u32 v12, v0, 4, 1", "v_lshlrev_b32 v12, 17, v12", "v_and_b32 v13, 15, v0", "v_lshlrev_b32 v13, 4, v13", "v_add_u32 v12, v12, v13",
            "v_bfe_u32 v13, v0, 5, 1", "v_lshlrev_b32 v13, 8, v13", "v_add_u32 v12, v12, v13",
            f"v_mfma_f32_32x32x16_bf16 {vr(vR,16)}, {vr(vT)}, {vr(vT+4)}, 0"]
def qk_tile(a, dst, sc, fl, p0):
    o = []
    sb, hs = (sB, KB) if dst == QF else (sCc, 128*KB)
    for half in range(2):
        p = p0 + 4*half
        for j in range(4):
            r = a + 8*half + 2*j
            o += [f"v_mul_f32 v{r}, v{r}, v{sc}", f"v_mul_f32 v{r+1}, v{r+1}, v{sc}", f"v_cvt_pk_bf16_f32 v{p+j}, v{r}, v{r+1}"]
        o += [f"s_add_u32 s{sT2}, s{sb}, {dst + half*hs}", f"buffer_store_dwordx4 {vr(p)}, v{vL16}, {srd(sWS)}, s{sT2} offen{fl}"]
    return o
def v_tile(a, L, vR, p0):
    o = [f"s_add_u32 s{sT2}, s{sCc}, {KVF(L) + KB}"]
    for u in range(2):
        p = p0 + 4*u
        for j in range(4):
            r = a + 8*u + 2*j; q = vR + 8*u + 2*j
            o += [f"v_mul_f32 v{r}, v{r}, v{q}", f"v_mul_f32 v{r+1}, v{r+1}, v{q+1}", f"v_cvt_pk_bf16_f32 v{p+j}, v{r}, v{r+1}"]
        o.append(f"buffer_store_dwordx4 {vr(p)}, v12, {srd(sWS)}, s{sT2} offen offset:{u*512} sc1")
    return o
def kv_flag(k, L, tkv):
    k(f"s_lshl_b32 s{sF}, s{sA}, 4\ns_lshr_b32 s{sT1}, s{sRB}, 2\ns_add_u32 s{sF}, s{sF}, s{sT1}\ns_lshl_b32 s{sF}, s{sF}, 7\ns_add_u32 s{sF}, s{sF}, {FKV(L)}")
    publish_wg(k, tkv)
def q_flag(k, L, tq):
    k(f"s_lshr_b32 s{sF}, s{sRB}, 3\ns_lshl_b32 s{sF}, s{sF}, 4\ns_add_u32 s{sF}, s{sF}, s{sA}\ns_lshl_b32 s{sF}, s{sF}, 3\ns_and_b32 s{sT1}, s{sRB}, 7\ns_add_u32 s{sF}, s{sF}, s{sT1}\ns_lshl_b32 s{sF}, s{sF}, 3\ns_add_u32 s{sF}, s{sF}, {FLOC(L-1,5)}")
    publish_local(k, tq, force_global=(L == 0))

WARM = True
LIN_AT = 99
LIN_U = True
Q0_ROT = True
Q0_MARKS = False
Q0_MARKJ = ()
Q0_SCHED = ((3, 4), (5,), (6,), (7,), (), (), (), ())
LATE_AT = 1
Q0_UP = 3
PK_AT = (3, 3, 4, 4, 5, 5, 6, 6)
def ph_qkv0(k, late):
    vX, vACC, vST, vEXT, vRS, vT, vR = 16, 144, 192, 8, 6, 224, 232
    vXA, vWA, vXR, vTR, vTW, vCS, vCW, vONE = 10, 12, 196, 200, 202, 204, 208, 220
    sXS, sWR, sXL, sWL = 60, 56, sD, sE
    k(f"s_lshr_b32 s{sRB}, s{sG}, 1\ns_lshl_b32 s{sRB}, s{sRB}, 2\ns_add_u32 s{sRB}, s{sRB}, s{sC3}\ns_lshl_b32 s{sRB}, s{sRB}, 2\ns_add_u32 s{sRB}, s{sRB}, s{sW}")
    k(f"s_and_b32 s{sA}, s{sG}, 1\ns_lshl_b32 s{sA}, s{sA}, 3\ns_and_b32 s{sT0}, s{sC}, 7\ns_add_u32 s{sA}, s{sA}, s{sT0}")
    k(f"v_bfe_u32 v{vXA}, v0, 3, 3\nv_lshlrev_b32 v{vXA}, 10, v{vXA}\nv_and_b32 v13, 7, v0\nv_bfe_u32 v14, v0, 4, 2\nv_xor_b32 v13, v13, v14")
    k(f"v_lshlrev_b32 v13, 4, v13\nv_add_u32 v{vXA}, v{vXA}, v13\nv_xor_b32 v{vXA+1}, 64, v{vXA}")
    k(f"v_bfe_u32 v{vWA}, v0, 2, 4\nv_mul_u32_u24 v{vWA}, 3072, v{vWA}\nv_and_b32 v13, 3, v0\nv_lshlrev_b32 v13, 4, v13\nv_add_u32 v{vWA}, v{vWA}, v13")
    k(f"s_lshl_b32 s{sX}, s{sRB}, 15")
    k(f"s_mul_i32 s{sX2}, s{sW}, 49152\ns_lshl_b32 s{sT0}, s{sA}, 6\ns_add_u32 s{sX2}, s{sX2}, s{sT0}")
    k(f"s_lshl_b32 s{sXL}, s{sW}, 14\ns_add_u32 s{sXL}, s{sXL}, {96*KB}\ns_mul_i32 s{sWL}, s{sW}, 3072")
    k("s_waitcnt lgkmcnt(0)")
    if Q0_MARKS: mark(k, 'karg')
    k(f"s_mov_b32 s{sWR}, s64\ns_and_b32 s{sWR+1}, s65, 0xffff\ns_mov_b32 s{sWR+2}, {512*3072}\ns_mov_b32 s{sWR+3}, 0x20000")
    k(f"s_and_b32 s{sXS+1}, s{sXS+1}, 0xffff\ns_mov_b32 s{sXS+2}, {2*MB}\ns_mov_b32 s{sXS+3}, 0x20000")
    ct = {}; cn = {j: 0 for j in range(8)}
    k(f"s_lshl_b32 s{sCc}, s{sC3}, 1\ns_add_u32 s{sCc}, s{sCc}, s{sC}")
    def rot(j):
        k(f"s_add_u32 s{sT3}, s{sCc}, {j}\ns_and_b32 s{sT3}, s{sT3}, {7 if Q0_ROT else 0}")
        if not Q0_ROT: k(f"s_mov_b32 s{sT3}, {j}")
        k(f"s_lshl_b32 s{sS0}, s{sT3}, 7\ns_add_u32 s{sS0}, s{sS0}, s{sX}")
        k(f"s_mul_i32 s{sS1}, s{sT3}, {4*49152}\ns_add_u32 s{sS1}, s{sS1}, s{sX2}")
    def ldW(j, t):
        k(f"s_add_u32 m0, s{sWL}, {(12*j + t)*KB}\ns_add_u32 s{sT2}, s{sS1}, {((t+1) % 3)*1024}")
        ct[j] = k.vm(f"buffer_load_dwordx4 v{vWA}, {srd(sWR)}, s{sT2} offen lds"); cn[j] += 1
    def ldX(j, i):
        if i == 0: rot(j)
        k(f"s_add_u32 m0, s{sXL}, {(j & 3)*4*KB + i*KB}\ns_add_u32 s{sT2}, s{sS0}, {i*8192}")
        ct[j] = k.vm(f"buffer_load_dwordx4 v{vXA + (i & 1)}, {srd(sXS)}, s{sT2} offen lds"); cn[j] += 1
    def chunk_loads(j):
        return [lambda i=i: ldX(j, i) for i in range(4)] + [lambda t=t: ldW(j, t) for t in range(3)]
    for f in chunk_loads(0): f()
    if Q0_MARKS: mark(k, 'up0')
    late(k)
    pack_decode(k)
    k(f"s_cmp_eq_u32 s{sW}, 0\ns_cselect_b64 s[90:91], s[68:69], s[70:71]")
    k(f"s_cmp_eq_u32 s{sW}, 2\ns_cselect_b64 s[90:91], s[72:73], s[90:91]")
    k(f"s_cmp_eq_u32 s{sW}, 3\ns_cselect_b64 s[90:91], s[66:67], s[90:91]\ns_cselect_b32 s{sT0}, 16, 56")
    k(f"s_mul_i32 s{sT1}, s{sT0}, s{sU}\ns_sub_u32 s{sT0}, s{sT0}, 1")
    k(f"v_and_b32 v254, 63, v0\nv_min_u32 v254, s{sT0}, v254\nv_add_u32 v254, s{sT1}, v254\nv_lshlrev_b32 v254, 7, v254")
    pk = G.pk = Pack(k)
    k(f"s_and_b32 s{sT0}, s{sC}, 7\ns_and_b32 s{sT1}, s{sC}, 15")
    k("v_and_b32 v13, 15, v0\nv_min_u32 v14, 13, v13")
    k(f"s_lshr_b32 s{sT2}, s{sT0}, 1\ns_add_u32 s{sT2}, s{sT2}, 176\nv_lshl_add_u32 v252, v14, 2, s{sT2}")
    k(f"s_mul_i32 s{sT2}, s{sT1}, 7\ns_add_u32 s{sT3}, s{sT2}, 6\ns_lshr_b32 s{sT2}, s{sT2}, 2\ns_lshr_b32 s{sT3}, s{sT3}, 2")
    k(f"v_lshrrev_b32 v14, 2, v13\nv_add_u32 v14, s{sT2}, v14\nv_min_u32 v14, s{sT3}, v14\nv_and_b32 v15, 3, v13\nv_mul_u32_u24 v15, 28, v15")
    k("v_add3_u32 v14, v14, v15, 48")
    k("v_and_b32 v15, 16, v0\nv_cmp_ne_u32 vcc, 0, v15\nv_cndmask_b32 v252, v252, v14, vcc")
    k(f"s_add_u32 s{sT0}, s{sT0}, 160\nv_and_b32 v14, 1, v13\nv_lshl_add_u32 v251, v14, 3, s{sT0}")
    k(f"s_lshr_b32 s{sT1}, s{sT1}, 1\nv_mul_u32_u24 v14, 24, v14\nv_lshrrev_b32 v15, 1, v13\nv_min_u32 v15, 2, v15\nv_lshlrev_b32 v15, 3, v15")
    k(f"v_add3_u32 v14, v14, v15, s{sT1}")
    k("v_cndmask_b32 v251, v251, v14, vcc")
    k(f"v_cmp_gt_u32 vcc, 512, v{vL16}\nv_cndmask_b32 v252, v251, v252, vcc\nv_lshlrev_b32 v252, 7, v252\nv_accvgpr_write_b32 a213, v252")
    if WARM:
        k("s_getpc_b64 s[88:89]")
        k.label("L_pcw")
        k(f"s_lshl_b32 s{sT0}, s{sC}, 1\ns_add_u32 s{sT0}, s{sT0}, s{sW}\ns_and_b32 s{sT0}, s{sT0}, 63\ns_lshl_b32 s{sT0}, s{sT0}, 10\ns_min_u32 s{sT0}, s{sT0}, L_end-L_pcw-1024")
        k(f"v_add_u32 v245, s{sT0}, v{vL16}")
        k(f"v_min_u32 v244, {(WS_PAGES-1)*16}, v{vL16}\nv_lshlrev_b32 v244, 17, v244")
        k(f"s_cmp_eq_u32 s{sW}, 1\ns_cselect_b64 s[88:89], s[{sAUX}:{sAUX+1}], s[88:89]")
        k(f"s_cmp_eq_u32 s{sW}, 0\ns_cselect_b64 s[88:89], s[{sWS}:{sWS+1}], s[88:89]\ns_cselect_b64 vcc, -1, 0")
        k("v_cndmask_b32 v245, v245, v244, vcc")
    if PK_Q0: pk.issue(*range(8))
    k(f"v_and_b32 v13, 31, v0\nv_bfe_u32 v14, v0, 1, 3\nv_bfe_u32 v15, v0, 5, 1\nv_xor_b32 v14, v14, v15\nv_lshlrev_b32 v14, 4, v14\nv_lshl_add_u32 v13, v13, 7, v14")
    for e in range(4):
        k(f"v_xor_b32 v{vXR+e}, {e*32}, v13\nv_add_u32 v{vXR+e}, s{sXL}, v{vXR+e}")
    tr_addr(k, vTR, 13)
    k(f"v_add_u32 v{vTR+1}, {48*KB}, v{vTR}\nv_add_u32 v{vTW}, s{sWL}, v{vTR}\nv_add_u32 v{vTW+1}, {48*KB}, v{vTW}")
    k(f"v_mov_b32 v{vONE}, 0x3f803f80\nv_add_u32 v255, s84, v{vTR}\nv_accvgpr_write_b32 a212, v255")
    for r in range(192, 196): k(f"v_accvgpr_write_b32 a{r}, v{vONE}")
    for r in list(range(vST, vST+4)) + list(range(vCS, vCS+3)): k(f"v_mov_b32 v{r}, 0")
    def reads(j):
        o = []
        for e in range(4):
            o.append(f"ds_read_b128 {vr(vX + 16*j + 4*e)}, v{vXR+e} offset:{(j & 3)*4*KB}")
        for t in range(3):
            off = (12*(j & 3) + t)*KB
            o.append(f"ds_read_b64_tr_b16 {vr(vCW+4*t,2)}, v{vTW + (j >> 2)} offset:{off}")
            o.append(f"ds_read_b64_tr_b16 {vr(vCW+4*t+2,2)}, v{vTW + (j >> 2)} offset:{off+256}")
        for b in range(12):
            off = (12*(j & 3) + b)*KB; r = 48*(j & 1) + 4*b
            o.append(f"ds_read_b64_tr_b16 {ar(r,2)}, v{vTR + (j >> 2)} offset:{off}")
            o.append(f"ds_read_b64_tr_b16 {ar(r+2,2)}, v{vTR + (j >> 2)} offset:{off+256}")
        return o
    def dots(j):
        for i in range(16):
            r = vX + 16*j + i
            k(f"v_dot2c_f32_bf16 v{vST + 2*(i & 1)}, v{vONE}, v{r}\nv_dot2c_f32_bf16 v{vST + 1 + 2*(i & 1)}, v{r}, v{r}")
        for i in range(4):
            for t in range(3): k(f"v_dot2c_f32_bf16 v{vCS+t}, v{vONE}, v{vCW+4*t+i}")
    def xid():
        k(f"s_add_u32 s{sTAG}, s{sTAG}, 0x7f4a7c15\ns_addc_u32 s{sTAG+1}, s{sTAG+1}, 0x9e3779b9")
        k("v_mov_b32 v13, 0")
        k("s_mov_b64 exec, 1")
        if FLAG_TOUCH:
            k(f"s_lshl_b32 s{sF}, s{sA}, 4\ns_lshr_b32 s{sT1}, s{sRB}, 2\ns_add_u32 s{sF}, s{sF}, s{sT1}\ns_lshl_b32 s{sF}, s{sF}, 7\ns_add_u32 s{sF}, s{sF}, {FKV(0)}")
            k.vm(f"buffer_load_dword v5, v13, {srd(sWS)}, s{sF} offen sc1")
            k(f"s_lshl_b32 s{sF}, s{sU}, 7\ns_add_u32 s{sF}, s{sF}, {FPK}")
            k.vm(f"buffer_load_dword v5, v13, {srd(sWS)}, s{sF} offen sc1")
        k("s_mov_b64 exec, -1")
    def lin_touch():
        k.vm("global_load_dword v253, v254, s[90:91]")
    side = []
    if Q0_MARKS: mark(k, 'alu')
    if WARM and WARM_AT == 0: k.vm(f"global_load_dword v253, v245, s[88:89]")
    for j in range(1, Q0_UP):
        for f in chunk_loads(j): f()
    if WARM and WARM_AT == 1: k.vm(f"global_load_dword v253, v245, s[88:89]")
    if Q0_MARKS: mark(k, 'iss')
    k.wait(vm=ct[0])
    if Q0_MARKS: mark(k, 'w0')
    k("s_barrier")
    mark(k, 'd0')
    rl = reads(0)
    for x in rl[:10]: t10 = k.lg(x)
    for x in rl[10:]: k.lg(x)
    k.wait(lg=t10)
    dots(0)
    for j in range(8):
        for c_ in Q0_SCHED[j]:
            assert c_ - 4 <= j
            side += chunk_loads(c_)
        if j == 1: side.append(xid)
        if WARM and WARM_AT == j + 2: side.append(lambda: k.vm(f"global_load_dword v253, v245, s[88:89]"))
        if PK_EARLY: side += [lambda i=i: pk.issue(i) for i in range(8) if PK_AT[i] == j]
        if j == LIN_AT and not PK_Q0: side.append(lin_touch)
        if PK_Q0:
            assert all(c_ < 5 or j > PK_RD for c_ in Q0_SCHED[j])
            if j == PK_RD: side += [lambda i=i: pk.reads(2*i, 2*i+1) for i in range(4)]
            if j == PK_ST: side += [lambda i=i: (pk.stores(i), pk.csum(i)) for i in range(4)]
            if j == PK_ST + 1: side += [lambda i=i: (pk.stores(i), pk.csum(i)) for i in range(4, 8)]
            if j == PK_ST + 2: side.append(pk.ext)
        k.wait_all(vm=False)
        rl = []
        if j < 7:
            assert cn[j+1] == 7
            k.wait(vm=ct[j+1]); k("s_barrier")
            if j in Q0_MARKJ: mark(k, f'c{j+1}')
            rl = reads(j + 1)
        t10 = None; nr = 0
        if j == 7:
            tail = f"s_lshr_b32 s{sT0}, s{sW}, 1\ns_lshl_b32 s{sT0}, s{sT0}, 9\ns_and_b32 s{sT1}, s{sW}, 1\ns_lshl_b32 s{sT1}, s{sT1}, 3\ns_add_u32 s{sT0}, s{sT0}, s{sT1}".split('\n')
            tail += [f"v_and_b32 v13, 0x1f0, v{vL16}", f"v_add_u32 v13, s{sT0}, v13"]
            for t in range(3): tail += ext_pair(vCS+t, vCW+2*t, 14) + [f"ds_write_b64 v13, {vr(vCW+2*t,2)} offset:{t*KB}"]
            fin = fin_stats(vST, vEXT, vRS)[NTREE:] + qkv_consts(vT, vRS, vR)
            tail += [f"v_add_f32 v{vST}, v{vST}, v{vST+2}", f"v_add_f32 v{vST+1}, v{vST+1}, v{vST+3}"] + fin[:18]
            tail += ["s_waitcnt lgkmcnt(0)", "s_barrier"] + [f"ds_read_b128 {vr(vCW+4*t)}, v{vL16} offset:{t*KB}" for t in range(3)] + fin[18:]
            tail += f"s_lshl_b32 s{sCc}, s{sA}, 18\ns_lshl_b32 s{sT1}, s{sRB}, 11\ns_add_u32 s{sCc}, s{sCc}, s{sT1}".split('\n')
            tail += f"s_mul_i32 s{sB}, s{sRB}, {112*KB}\ns_lshl_b32 s{sT1}, s{sA}, 11\ns_add_u32 s{sB}, s{sB}, s{sT1}".split('\n')
            assert not side
            n_ = -(-len(tail) // 12)
            side = [lambda c=tail[i:i+n_]: [k(x) for x in c] for i in range(0, len(tail), n_)]
        for b in range(12):
            ks = 4*j + b // 3; t = b % 3
            acc = vr(vACC + 16*t, 16); w = ar(48*(j & 1) + 4*b); x = vr(vX + 4*ks)
            A, B = (x, w) if t == 1 else (w, x)
            k(f"v_mfma_f32_32x32x16_bf16 {acc}, {A}, {B}, {'0' if ks == 0 else acc}")
            if ks == 0 and t == 0: mark(k, 'm0')
            for _ in range(3):
                if rl:
                    t_ = k.lg(rl.pop(0)); nr += 1
                    if nr == 10: t10 = t_
            if side: side.pop(0)()
            if len(side) > 11 - b: side.pop(0)()
        if j < 7:
            assert not rl
            k.wait(lg=t10)
            dots(j + 1)
    while side: side.pop(0)()
    mark(k, 'loop')
    k.wait_all(vm=False)
    for t in range(3):
        c = vCW + 4*t
        acc = vr(vACC + 16*t, 16)
        A, B = (vr(vEXT), vr(c)) if t == 1 else (vr(c), vr(vEXT))
        k(f"v_mfma_f32_32x32x16_bf16 {acc}, {A}, {B}, {acc}")
    t_ = None
    for x in qk_tile(vACC, KVF(0), vRS, " sc1", vX) + v_tile(vACC+16, 0, vR, vX+8) + qk_tile(vACC+32, QF, vRS+1, " sc1", vX+16):
        if x.startswith('buffer'): t_ = k.vm(x)
        else: k(x)
    mark(k, 'st')
    return t_, t_

def ph_qkv(k, L, ring, b0):
    vX, vACC, vST, vEXT, vRS, vT, vR = 16, 144, 192, 8, 6, 224, 232
    rb_128(k)
    k(f"s_and_b32 s{sA}, s{sC}, 15")
    k(f"s_lshl_b32 s{sX}, s{sRB}, 15\ns_add_u32 s{sX}, s{sX}, {XF}")
    set_lds_bases(k)
    QE = QKV_QE
    seq = [(ks, t) for ks in range(33) for t in ((0, 1, 2) if ks < QE else (0, 1))] + [(ks, 2) for ks in range(QE, 33)]
    ops = [dict(b=b0 + (2*ks + t if t < 2 else 66 + ks), bmin=b0, bmax=b0 + 98, xi=(ks if ks < 32 else None), x=(vr(vX+4*ks) if ks < 32 else vr(vEXT)),
                acc=vr(vACC+16*t, 16), swap=(t == 1), first=(ks == 0)) for ks, t in seq]
    xq = XLoader(k, 32, lambda i: vr(vX+4*i), lin_src(k))
    res = {}
    se = stats_emitters(k, vST, res)
    k(f"s_lshl_b32 s{sCc}, s{sA}, 18\ns_lshl_b32 s{sT1}, s{sRB}, 11\ns_add_u32 s{sCc}, s{sCc}, s{sT1}")
    k(f"s_mul_i32 s{sB}, s{sRB}, {112*KB}\ns_lshl_b32 s{sT1}, s{sA}, 11\ns_add_u32 s{sB}, s{sB}, s{sT1}")
    assert ring.issued == ring.total
    g = Gemm(k, ring, ops, {0})
    g.start()
    ring.issue_n(4)
    publish_local(k, G.tx)
    ring.issue_n(4)
    k(f"s_lshl_b32 s{sF}, s{sRB}, 7\ns_add_u32 s{sF}, s{sF}, {FLOC(L-1, 8)}")
    poll16(k)
    aps = stats_poll(k, FLOC(L-1,7) - FLOC(L-1,8))
    fin = fin_stats(vST, vEXT, vRS) + qkv_consts(vT, vRS, vR)
    epi = qk_tile(vACC, KVF(L), vRS, " sc1", vST) + v_tile(vACC+16, L, vR, vST+16)
    nkv = len(epi)
    if KV_LOC:
        epi += [f"s_lshl_b32 s{sE}, s{sA}, 11", f"s_add_u32 s{sE}, s{sE}, s{sB}", f"s_add_u32 s{sE}, s{sE}, {HF + 32*KB}",
                f"buffer_store_dwordx4 {vr(vST)}, v{vL16}, {srd(sWS)}, s{sE} offen",
                f"buffer_store_dwordx4 {vr(vST+4)}, v{vL16}, {srd(sWS)}, s{sE} offen offset:2048",
                "v_lshrrev_b32 v13, 6, v12", "v_and_b32 v13, 0x800, v13", "v_and_b32 v12, 0x1ff, v12", "v_add_u32 v12, v12, v13",
                f"buffer_store_dwordx4 {vr(vST+16)}, v12, {srd(sWS)}, s{sE} offen offset:1024",
                f"buffer_store_dwordx4 {vr(vST+20)}, v12, {srd(sWS)}, s{sE} offen offset:1536"]
    st = dict(i=0, j=0, t=None)
    def put(x):
        if x.startswith('buffer'): st['t'] = k.vm(x)
        else: k(x)
    def filler(m):
        if aps and m == 4: aps.issue()
        if m == 22:
            if aps: aps.check()
            for e in se: e()
        if 44 <= m < 64 + QE:
            if st['i'] == 0: k.wait(vm=res['t'])
            for _ in range(3):
                if st['i'] < len(fin): k(fin[st['i']]); st['i'] += 1
        if m >= 68 + QE:
            for _ in range(QKV_EPI):
                if st['j'] < len(epi): put(epi[st['j']]); st['j'] += 1
    g.run(xq, n0=8, filler=filler)
    while st['j'] < len(epi):
        put(epi[st['j']]); st['j'] += 1
    assert st['i'] == len(fin)
    tkv = st['t']
    for x in qk_tile(vACC + 32, QF, vRS + 1, "", vST+8): put(x)
    mark(k, 'st')
    return tkv, st['t']

def code_touch(k, vd, skip=0):
    if not CODE_TOUCH: return
    pc = k.newlabel('pc')
    k(f"s_getpc_b64 s[{sPC}:{sPC+1}]")
    k.label(pc)
    k(f"s_min_u32 s{sSPIN}, s{sCT}, L_end-{pc}-1024\ns_add_u32 s{sPC}, s{sPC}, s{sSPIN}\ns_addc_u32 s{sPC+1}, s{sPC+1}, 0")
    k.vm(f"global_load_dword v{vd}, v{vL16}, s[{sPC}:{sPC+1}] offset:{skip}")

def flag_touch(k, L, va, vd):
    if not FL_TOUCH: return
    k(f"v_bfe_u32 v{va}, v0, 3, 3\nv_lshlrev_b32 v{va}, 6, v{va}\nv_and_or_b32 v{va}, v0, 7, v{va}\nv_lshlrev_b32 v{va}, 7, v{va}")
    k(f"s_lshl_b32 s{sT3}, s{sG}, 10\ns_add_u32 s{sT3}, s{sT3}, {FLOC(L,0)}")
    k.vm(f"buffer_load_dword v{vd}, v{va}, {srd(sWS)}, s{sT3} offen sc1")

def ph_att(k, L, ring, tkv, tq):
    vO, vS0, vKV, aQ = 16, 144, 208, aWB
    NS = 4
    vS = [vS0 + 16*i for i in range(NS)]
    vK, vV, vIDX, vL128 = 6, 7, 8, 9
    sK, sHD = sB, sE
    k(f"s_lshl_b32 s{sHD}, s{sC}, 16")
    k(f"s_lshl_b32 s{sT0}, s{sC}, 17\ns_add_u32 s{sT0}, s{sT0}, s{sW4K}\ns_add_u32 s{sT0}, s{sT0}, {KVF(L)}")
    k("v_and_b32 v10, 0x33, v0\nv_bfe_u32 v11, v0, 2, 1\nv_lshlrev_b32 v11, 3, v11\nv_or_b32 v10, v10, v11")
    k(f"v_bfe_u32 v11, v0, 3, 1\nv_lshlrev_b32 v11, 2, v11\nv_or_b32 v10, v10, v11\nv_lshl_add_u32 v{vK}, v10, 4, s{sT0}")
    k(f"v_and_b32 v10, 15, v0\nv_bfe_u32 v11, v0, 5, 1\nv_lshlrev_b32 v11, 4, v11\nv_add_u32 v10, v10, v11\nv_lshl_add_u32 v{vV}, v10, 4, s{sT0}")
    k(f"v_mov_b32 v{vIDX}, 0xdddddddd\nv_lshlrev_b32 v{vL128}, 3, v{vL16}")
    k(f"s_lshl_b32 s{sK}, s{sG}, 14")
    if L and KV_LOC:
        k(f"s_lshl_b32 s{sT1}, s{sC}, 10\ns_add_u32 s{sT1}, s{sT1}, {32*KB}\ns_sub_u32 s{sT1}, s{sT0}, s{sT1}")
        k(f"v_subrev_u32 v146, s{sT1}, v{vK}\nv_subrev_u32 v147, s{sT1}, v{vV}")
    k("v_and_b32 v10, 27, v0\nv_cmp_eq_u32 vcc, 16, v10\nv_mov_b32 v11, 0x3f803f80\nv_cndmask_b32 v11, 0, v11, vcc")
    k("v_mov_b32 v144, v11")
    k(f"s_lshr_b32 s{sT0}, s{sC}, 1\ns_lshl_b32 s{sD}, s{sT0}, 11\ns_add_u32 s{sD}, s{sD}, {FKV(L)}")
    k(f"s_lshl_b32 s{sT3}, s{sG}, 8\ns_add_u32 s{sT3}, s{sT3}, s{sD}")
    if L == 0:
        k(f"v_and_b32 v11, 1, v0\nv_lshlrev_b32 v11, 7, v11\nv_add_u32 v11, s{sT3}, v11")
        k(f"v_cmp_gt_u32 vcc, 512, v{vL16}")
    k(f"s_lshr_b32 s{sT1}, s{sW}, 1\ns_lshl_b32 s{sT1}, s{sT1}, 7\ns_add_u32 s{sD}, s{sD}, s{sT1}")
    if L:
        k(f"s_add_u32 s{sT3}, s{sT3}, s{sT1}")
        k(f"s_lshl_b32 s{sT2}, s{sG}, 10\ns_lshl_b32 s{sT0}, s{sT0}, 6\ns_add_u32 s{sT2}, s{sT2}, s{sT0}\ns_add_u32 s{sT2}, s{sT2}, {FLOC(L-1,5)}")
        k(f"v_mov_b32 v12, s{sT3}\nv_and_b32 v11, 7, v0\nv_lshlrev_b32 v11, 3, v11\nv_add_u32 v11, s{sT2}, v11")
        k(f"v_cmp_gt_u32 vcc, 512, v{vL16}")
        if not KV_LOC: k("v_cndmask_b32 v11, v11, v12, vcc")
    k(f"v_and_b32 v12, 7, v0\nv_lshlrev_b32 v12, 8, v12")
    k(f"s_mul_i32 s{sT2}, s{sG}, {8*112*KB}\ns_lshl_b32 s{sT3}, s{sC}, 10\ns_add_u32 s{sT2}, s{sT2}, s{sT3}\ns_add_u32 s{sT2}, s{sT2}, {QF}")
    sQ = list(range(64, 72))
    for p in range(4):
        k(f"s_xor_b32 s{sT3}, s{sW}, {p}\ns_mul_i32 s{sT3}, s{sT3}, {2*112*KB}\ns_add_u32 s{sQ[2*p]}, s{sT3}, s{sT2}\ns_add_u32 s{sQ[2*p+1]}, s{sQ[2*p]}, {112*KB}")
    sTH, sTW, sFO = 72, 73, 79
    k(f"s_lshl_b32 s{sT3}, s{sU}, 2\ns_add_u32 s{sT3}, s{sT3}, s{sW}")
    k(f"s_mul_i32 s{sTH}, s{sT3}, {7*KB}\ns_add_u32 s{sTH}, s{sTH}, {HF}")
    k(f"s_lshl_b32 s{sT0}, s{sT3}, 11\ns_add_u32 s{sT0}, s{sT0}, {XF}\ns_lshl_b32 s{sT1}, s{sT3}, 8\ns_add_u32 s{sT1}, s{sT1}, {SX}")
    k(f"v_and_b32 v3, 0x780, v{vL128}\nv_add_u32 v3, s{sT0}, v3\nv_and_b32 v13, 0x80, v{vL128}\nv_add_u32 v13, s{sT1}, v13\nv_cndmask_b32 v3, v13, v3, vcc")
    k(f"s_lshl_b32 s{sTW}, s{sC4}, 2\ns_add_u32 s{sTW}, s{sTW}, s{sW}\ns_mul_i32 s{sTW}, s{sTW}, {TOUCH_KBS[L] * KB // 8}")
    k(f"s_add_u32 s{sTW}, s{sTW}, s{sSEG+1}\ns_add_u32 s{sTW}, s{sTW}, {32*KB}")
    k(f"s_and_b32 s{sCT}, s{sT3}, 31\ns_lshl_b32 s{sCT}, s{sCT}, 10")
    k(f"s_lshl_b32 s{sFO}, s{sG}, 2\ns_add_u32 s{sFO}, s{sFO}, s{sW}\ns_lshl_b32 s{sFO}, s{sFO}, 5\ns_add_u32 s{sFO}, s{sFO}, s{sC}\ns_lshl_b32 s{sFO}, s{sFO}, 3\ns_add_u32 s{sFO}, s{sFO}, {FLOC(L,0)}")
    for i in range(4): k(f"v_mov_b32 v{148+i}, 0")
    for q in range(8): k(f"v_mfma_f32_32x32x16_bf16 {vr(vO+16*q,16)}, {vr(148)}, {vr(148)}, 0")
    mark(k, 'pre')
    if L: q_flag(k, L, tq)
    kv_flag(k, L, tkv)
    if L == 0 and PK_Q0:
        k(f"s_lshl_b32 s{sF}, s{sU}, 7\ns_add_u32 s{sF}, s{sF}, {FPK}\nv_mov_b32 v145, v12")
        publish_wg(k, None, xid=True, barrier=False)
        k("v_mov_b32 v12, v145")
    mark(k, 'flag')
    if L == 0 and PK_EARLY:
        G.pk.reads(*range(8))
        for i in range(8): G.pk.csum(i)
        if PK_WIN2:
            G.pk.stores(*range(8)); G.pk.ext()
    if L == 0 and LIN_AT == 'flag': k.vm("global_load_dword v253, v254, s[90:91]")
    for b in range(2):
        for j in range(8): k(f"v_mov_b32 v{vKV+12*b+4+j}, v144")
    k(f"s_mov_b32 s{sF}, 0")
    flush_near(k)
    poll(k, 11, 14, sleep=SLEEP1[L])
    mark(k, 'poll')
    K = lambda t: vr(vKV + 12*(t % 4))
    V = lambda t, u: vr(vKV + 12*(t % 4) + 4 + 4*u)
    kt = {}; vt = {}
    loc = lambda t: L and KV_LOC and t < 2
    def ldK(t):
        if t and (t & 1) == 0: k(f"s_add_u32 s{sK}, s{sK}, 0x4000\ns_and_b32 s{sK}, s{sK}, 0x1ffff")
        if loc(t): kt[t] = k.vm(f"buffer_load_dwordx4 {K(t)}, v{14 if t and HEAD else 146}, {srd(sWS)}, s{sQ[t]} offen sc1")
        else: kt[t] = k.vm(f"buffer_load_dwordx4 {K(t)}, v{vK}, {srd(sWS)}, s{sK} offen offset:{(t & 1)*2*KB} sc1")
    def ldV(t):
        va, so, o = (15 if t and HEAD else 147, sQ[t], KB) if loc(t) else (vV, sK, (t & 1)*2*KB + KB)
        k(f"s_mov_b64 exec, s[{sMSK}:{sMSK+1}]")
        k.vm(f"buffer_load_dwordx4 {V(t,0)}, v{va}, {srd(sWS)}, s{so} offen offset:{o} sc1")
        vt[t] = k.vm(f"buffer_load_dwordx4 {V(t,1)}, v{va}, {srd(sWS)}, s{so} offen offset:{o+512} sc1")
        k("s_mov_b64 exec, -1")
    def ldKV(t):
        ldK(t); ldV(t); kt[t] = vt[t]
    ldK(0)
    qt = {}
    def ldQ(*ss):
        for s in ss: qt[s] = k.vm(f"buffer_load_dwordx4 {ar(aQ+4*s)}, v{vL16}, {srd(sWS)}, s{sQ[s]} offen sc1")
    if HEAD == 0:
        ldQ(0, 1, 2); ldV(0); ldQ(3, 4, 5, 6, 7); ldKV(1)
    else:
        ldQ(0, 1); ldV(0); ldQ(2)
    ap2 = apoll1(k, 12, 10, sD, sleep=SLEEP2)
    for b in range(2, 4):
        for j in range(8): k(f"v_mov_b32 v{vKV+12*b+4+j}, v144")
    NT = ATT_NT
    steps = [(t, q) for t in range(16 - NT) for q in range(8)] + [(t, q) for q in range(2, 8) for t in range(16 - NT, 16)] + [(t, q) for q in range(2) for t in range(16 - NT, 16)]
    n = len(steps)
    LA = NS - 1
    def qk(i):
        t, q = steps[i]
        k.wait(vm=max(kt[t], qt[q]) if t == 0 else kt[t])
        k(f"v_mfma_f32_32x32x16_bf16 {vr(vS[i % NS],16)}, {K(t)}, {ar(aQ+4*q)}, 0")
    def pv(i, u):
        t, q = steps[i]
        k.wait(vm=vt[t])
        k(f"v_smfmac_f32_32x32x32_bf16 {vr(vO+16*q,16)}, {V(t,u)}, {vr(vS[i % NS]+8*u,8)}, v{vIDX}")
    if HEAD == 0:
        for i in range(LA): qk(i)
    else:
        if loc(1): k("v_mov_b32 v14, v146\nv_mov_b32 v15, v147")
        qk(0); ldQ(3, 4); qk(1)
    mark(k, 'm0')
    ring.limit = 96
    jobs = {}
    def job(i, f, e=10): jobs.setdefault((i, e), []).append(f)
    if HEAD:
        job(0, lambda: qk(2), e=3)
        job(0, lambda: ldQ(5, 6, 7))
        job(1, lambda: ldKV(1), e=2)
    job(HEAD, lambda: code_touch(k, 10))
    job(P2_AT - P2_LEAD, ap2.issue)
    job(P2_AT, lambda: (ap2.check(), ldKV(2), ldKV(3)))
    for t in range(1, 13): job(8*t, lambda t=t: ldKV(t + 3))
    def kvpf(j):
        def f():
            k(f"s_add_u32 s{sT0}, s{sG}, {2*j}\nv_bfe_u32 v13, v0, 5, 1\nv_add_u32 v13, s{sT0}, v13\nv_and_b32 v13, 7, v13\nv_lshlrev_b32 v13, 14, v13")
            k(f"v_and_b32 v14, 0xf80, v{vL128}\nv_add_u32 v13, v13, v14")
            k(f"s_lshl_b32 s{sT0}, s{sC}, 17\ns_add_u32 s{sT0}, s{sT0}, s{sW4K}\ns_add_u32 s{sT0}, s{sT0}, {KVF(L)}")
            k.vm(f"buffer_load_dword v5, v13, {srd(sWS)}, s{sT0} offen sc1")
        return f
    if KV_PF[L]:
        for j in (2, 3): job(KV_PF[L] + 8*(j-2), kvpf(j))
    if L == 0:
        CHK_AT = CHK_Q0 if PK_Q0 else G.pk.schedule(job) + CHK_GAP
        apk = APoll(k, [f"buffer_load_dwordx2 v[10:11], v12, {srd(sWS)}, s{sX} offen offset:8 sc1"],
                    f"v_cmp_ne_u64 vcc, s[{sTAG}:{sTAG+1}], v[10:11]")
        def chk0():
            k(f"v_accvgpr_read_b32 v12, a213\ns_mov_b32 s{sX}, {FPK}")
            apk.issue()
        job(CHK_AT - 6, chk0)
        apx = APoll(k, [f"buffer_load_dwordx4 v[12:15], v11, {srd(sWS)}, s{sCc} offen sc1"],
                    f"v_cmp_ne_u64 vcc, s[{sTAG}:{sTAG+1}], v[14:15]")
        def mode0():
            k(f"v_and_b32 v11, 0xf80, v{vL128}\ns_lshl_b32 s{sCc}, s{sG}, 12\ns_add_u32 s{sCc}, s{sCc}, {FPK}")
            apx.issue()
        def mode():
            apx.check()
            k(f"s_xor_b32 s{sT2}, s{sTAG}, s{sXCC}")
            k(f"v_cmp_ne_u32 vcc, s{sT2}, v12")
            k(f"s_cmp_eq_u64 vcc, 0\ns_cselect_b32 s{sMODE}, 1, 0")
        job(81, mode0); job(95, mode)
        def chk():
            apk.check()
            k(f"s_and_b32 s{sT2}, s{sC}, 7\ns_lshl_b32 s{sT2}, s{sT2}, 1\ns_lshr_b32 s{sT3}, s{sW}, 1\ns_add_u32 s{sT2}, s{sT2}, s{sT3}")
            k(f"s_mul_i32 s{sT3}, s{sW}, {28*KB}\ns_add_u32 s{sT3}, s{sT3}, {WD}")
            k(f"s_mul_i32 s{sX}, s{sT2}, {112*KB}\ns_add_u32 s{sX}, s{sX}, s{sT3}")
            k(f"s_xor_b32 s{sT2}, s{sT2}, 1\ns_mul_i32 s{sX2}, s{sT2}, {112*KB}\ns_add_u32 s{sX2}, s{sX2}, s{sT3}")
        job(CHK_AT, chk)
        def wsrc(i):
            s_ = sX if i < 28 else sX2
            j = i % 28
            if j and (j & 3) == 0: k(f"s_add_u32 s{s_}, s{s_}, 4096")
            return s_, (j & 3) * KB
        wq = XLoader(k, 56, lambda i: ar(aWD + 8*(i % 28) + 4*(i // 28)), wsrc)
        slots = [i for i in range(CHK_AT + 1, 112) if i % 8 in WD_SLOTS]
        work = [lambda: wq.issue_n(4)] * 14
        rw = [ring.issue16] * 6
        seq = []
        while work or rw:
            if work: seq.append(work.pop(0))
            if work: seq.append(work.pop(0))
            if rw: seq.append(rw.pop(0))
        assert len(seq) <= len(slots), (len(seq), len(slots))
        for i, f in zip(slots, seq): job(i, f)
    else:
        for j in range(6): job(R1_AT + R1_STEP*j, ring.issue16)
    def tch(j):
        def f():
            if j: k(f"s_add_u32 s{sTW}, s{sTW}, {TL*128}")
            elif TL < 64: k(f"v_and_b32 v4, {(TL-1)*128}, v{vL128}")
            k.vm(f"buffer_load_dword v5, v{vT_}, {srd(sWS)}, s{sTW} offen sc1")
        return f
    TL = TOUCH_LN; vT_ = vL128 if TL == 64 else 4
    for j in range(-(-TOUCH_KBS[L] // TL)): job(TOUCH_AT[L] + j*TOUCH_STEP[L], tch(j))
    def th(j):
        def f():
            if j: k(f"s_add_u32 s{sTH}, s{sTH}, {TL*128}")
            elif TL < 64: k(f"v_and_b32 v4, {(TL-1)*128}, v{vL128}")
            k.vm(f"buffer_load_dword v5, v{vT_}, {srd(sWS)}, s{sTH} offen sc1")
        return f
    TACT_AT = TACTS[L]
    if L == 0 and EARLY_H:
        job(EARLY_H, lambda: k.vm(f"buffer_load_dword v5, v{vL128}, {srd(sWS)}, s{sTH} offen sc1"))
        job(EARLY_H + 3, lambda: k.vm(f"buffer_load_dword v5, v3, {srd(sWS)}, 0 offen sc1"))
    if TACT_AT:
        for j in range(-(-56 // TL)): job(TACT_AT + j*TH_STEP, th(j))
    def tact():
        k.vm(f"buffer_load_dword v5, v3, {srd(sWS)}, 0 offen sc1")
    if TACT_AT: job(TACT_AT + 4, tact)
    if L == 0 and XRES_TOUCH:
        def xt_():
            rowmajor_addr(k, 14, sT0)
            k.vm(f"buffer_load_dword v5, v14, {srd(60)}, s{sT0} offen sc1")
        job(XRES_TOUCH, xt_)
    job(CT_AT, lambda: code_touch(k, 5))
    SC = 96 * KB
    vWA = 10
    def red_setup():
        k(f"s_lshl_b32 s{sT0}, s{sW}, 14\nv_add_u32 v13, s{sT0}, v{vL16}")
        for j in range(1, 4):
            k(f"v_xor_b32 v{vWA+j-1}, {j << 14}, v13\nv_add_u32 v{vWA+j-1}, {SC}, v{vWA+j-1}")
        k(f"v_add_u32 v13, {SC}, v13")
    job(126 - 8*NT, red_setup)
    def red_write(s, part):
        j = s >> 1; z = s & 1
        if part == 0:
            k.lg(f"ds_write_b128 v{vWA+j-1}, {vr(vO+16*s)} offset:{(z*3+j-1)*2*KB}")
            k.lg(f"ds_write_b32 v{vWA+j-1}, v{vO+16*s+8} offset:{(12+z)*KB+(j-1)*4}")
        if part == 1 or NT == 1:
            k.lg(f"ds_write_b128 v{vWA+j-1}, {vr(vO+16*s+4)} offset:{(z*3+j-1)*2*KB+KB}")
    for i in range(128):
        if steps[i][0] == 15 and steps[i][1] >= 2:
            job(i + 2, lambda s=steps[i][1]: red_write(s, 0), e=2)
            if NT > 1: job(i + 2, lambda s=steps[i][1]: red_write(s, 1))
    tl = []
    def red_read(zz):
        if zz[0] == 0:
            k.wait_all()
            k("s_barrier")
        for z in zz:
            k.lg(f"ds_read_b128 {vr(vO+32+48*z+8)}, v13 offset:{(12+z)*KB}")
            for j in range(3):
                b = vO + 32 + (z*3 + j)*16
                k.lg(f"ds_read_b128 {vr(b)}, v13 offset:{(z*3+j)*2*KB}")
                tl.append(k.lg(f"ds_read_b128 {vr(b+4)}, v13 offset:{(z*3+j)*2*KB+KB}"))
    if NT == 1: job(127, lambda: red_read((0, 1)))
    else:
        job(126, lambda: red_read((0,))); job(127, lambda: red_read((1,)), e=2)
    for i, (t, q) in enumerate(steps):
        s = vS[i % NS]
        if i in ATT_MARKS: mark(k, f's{i}')
        for e in range(16):
            if e == 2 and i > 0: pv(i-1, 1)
            if e == 6 and i + LA < n: qk(i + LA)
            if e == 10: pv(i, 0)
            for f in jobs.pop((i, e), []): f()
            k(f"v_exp_f32 v{s+e}, v{s+e}")
    pv(n-1, 1)
    assert not jobs, jobs.keys()
    assert ring.issued == 96
    mark(k, 'loop')
    for z in range(2):
        o = vO + 16*z; l = vO + 32 + 48*z + 8
        k.wait(lg=tl[z*3])
        k(f"v_add_f32 v{l}, v{l}, v{l+1}\nv_add_f32 v{o+8}, v{o+8}, v{l+2}\nv_add_f32 v{o+8}, v{o+8}, v{l}\nv_rcp_f32 v{o+9}, v{o+8}")
        for j in range(3):
            b = vO + 32 + (z*3 + j)*16
            k.wait(lg=tl[z*3+j])
            for i in range(8): k(f"v_add_f32 v{o+i}, v{o+i}, v{b+i}")
        for j in range(4):
            k(f"v_mul_f32 v{o+2*j}, v{o+2*j}, v{o+9}\nv_mul_f32 v{o+2*j+1}, v{o+2*j+1}, v{o+9}")
            k(f"v_cvt_pk_bf16_f32 v{o+12+j}, v{o+2*j}, v{o+2*j+1}")
        ts = k.vm(f"buffer_store_dwordx4 {vr(o+12)}, v{vL16}, {srd(sWS)}, s{sQ[z]} offen")
    mark(k, 'f_st')
    fb = k.newlabel('fb'); back = k.newlabel('fbret')
    LO, HI = f2u(2.0**-60), f2u(2.0**60)
    for z in range(2):
        o = vO + 16*z
        k(f"v_add_f32 v{o}, v{o}, v{o+1}\nv_add_f32 v{o+2}, v{o+2}, v{o+3}\nv_add_f32 v{o+4}, v{o+4}, v{o+5}\nv_add_f32 v{o+6}, v{o+6}, v{o+7}")
        k(f"v_add_f32 v{o}, v{o}, v{o+2}\nv_add_f32 v{o+4}, v{o+4}, v{o+6}\nv_add_f32 v{o}, v{o}, v{o+4}")
        k(f"v_fma_f32 v{o+8}, v{o}, 0, v{o+8}\nv_subrev_u32 v{o+8}, {hex(LO)}, v{o+8}")
    k(f"v_max_u32 v{vO+8}, v{vO+8}, v{vO+24}")
    k(f"v_cmp_lt_u32 vcc, {hex(0 if FORCE_FB else HI - LO)}, v{vO+8}")
    k(f"s_cbranch_vccnz {fb}")
    k.label(back)
    F = [f"{fb}:", "s_waitcnt vmcnt(0)",
         f"v_subrev_u32 v{vK}, s{sW4K}, v{vK}", f"v_subrev_u32 v{vV}, s{sW4K}, v{vV}"]
    S, C, M = vS0, vS0 + 16, vS0 + 32
    for z in range(2):
        o = vO + 16*z; Q = ar(aQ + 4*z)
        F += [f"v_mov_b32 v{M}, 0xff800000", f"s_mov_b32 s{sK}, 0", f"{fb}_a{z}:",
              f"buffer_load_dwordx4 {K(0)}, v{vK}, {srd(sWS)}, s{sK} offen sc1", "s_waitcnt vmcnt(0)",
              f"v_mfma_f32_32x32x16_bf16 {vr(S,16)}, {K(0)}, {Q}, 0"]
        F += [f"v_max3_f32 v{M}, v{M}, v{S+2*i}, v{S+2*i+1}" for i in range(8)]
        F += [f"s_add_u32 s{sK}, s{sK}, 2048", f"s_cmp_lt_u32 s{sK}, {64*2048}", f"s_cbranch_scc1 {fb}_a{z}",
              f"v_mov_b32 v{M+1}, v{M}", f"v_permlane32_swap_b32 v{M}, v{M+1}", f"v_max_f32 v{M}, v{M}, v{M+1}"]
        F += [f"v_sub_f32 v{C+i}, 0, v{M}" for i in range(16)] + [f"v_mov_b32 v{o+i}, 0" for i in range(16)]
        F += [f"s_mov_b32 s{sK}, 0", f"{fb}_b{z}:",
              f"buffer_load_dwordx4 {K(0)}, v{vK}, {srd(sWS)}, s{sK} offen sc1",
              f"s_mov_b64 exec, s[{sMSK}:{sMSK+1}]",
              f"buffer_load_dwordx4 {V(0,0)}, v{vV}, {srd(sWS)}, s{sK} offen offset:{KB} sc1",
              f"buffer_load_dwordx4 {V(0,1)}, v{vV}, {srd(sWS)}, s{sK} offen offset:{KB+512} sc1",
              "s_mov_b64 exec, -1", "s_waitcnt vmcnt(0)",
              f"v_mfma_f32_32x32x16_bf16 {vr(S,16)}, {K(0)}, {Q}, {vr(C,16)}"]
        F += [f"v_exp_f32 v{S+i}, v{S+i}" for i in range(16)]
        F += [f"v_smfmac_f32_32x32x32_bf16 {vr(o,16)}, {V(0,u)}, {vr(S+8*u,8)}, v{vIDX}" for u in range(2)]
        F += ["s_nop 15", f"s_add_u32 s{sK}, s{sK}, 2048", f"s_cmp_lt_u32 s{sK}, {64*2048}", f"s_cbranch_scc1 {fb}_b{z}",
              f"v_rcp_f32 v{o+9}, v{o+8}"]
        for j in range(4):
            F += [f"v_mul_f32 v{o+2*j}, v{o+2*j}, v{o+9}", f"v_mul_f32 v{o+2*j+1}, v{o+2*j+1}, v{o+9}", f"v_cvt_pk_bf16_f32 v{o+12+j}, v{o+2*j}, v{o+2*j+1}"]
        F += [f"buffer_store_dwordx4 {vr(o+12)}, v{vL16}, {srd(sWS)}, s{sQ[z]} offen"]
    F += ["s_waitcnt vmcnt(0)", f"s_branch {back}"]
    G.far += F
    k(f"s_mov_b32 s{sF}, s{sFO}")
    ring.end16()
    ring.limit = 144
    return ts

def load_res(k, v):
    k(f"s_add_u32 s{sT1}, s{sDST}, {XF}")
    k.vm(f"buffer_load_dwordx4 {vr(v)}, v{vL16}, {srd(sWS)}, s{sT1} offen sc1")
    return k.vm(f"buffer_load_dwordx4 {vr(v+4)}, v{vL16}, {srd(sWS)}, s{sT1} offen offset:1024 sc1")
def add_res(k, acc, v):
    for j in range(8):
        k(f"v_lshlrev_b32 v10, 16, v{v+j}\nv_and_b32 v11, 0xffff0000, v{v+j}")
        k(f"v_add_f32 v{acc+2*j}, v{acc+2*j}, v10\nv_add_f32 v{acc+2*j+1}, v{acc+2*j+1}, v11")

def ph_wo(k, L, ring, tO):
    k.label(f'L_wo{L}')
    vX, vACC, vRES, vSUM, vPK = 16, 80, 112, 120, 136
    k(f"s_lshr_b32 s{sRB}, s{sDST}, 15\ns_lshr_b32 s{sD}, s{sW}, 1")
    k(f"s_mul_i32 s{sX}, s{sRB}, {112*KB}\ns_lshl_b32 s{sT0}, s{sD}, 14\ns_add_u32 s{sX}, s{sX}, s{sT0}\ns_add_u32 s{sX}, s{sX}, {HF}")
    k(f"s_lshl_b32 s{sT0}, s{sD}, 11")
    set_lds_bases(k, sT0)
    seq = []
    for s in range(16):
        seq.append((s, 1))
        if s < 16 - WO_R0: seq.append((s, 0))
    nf = len(seq)
    seq += [(s, 0) for s in range(16 - WO_R0, 16)]
    ops = [dict(b=4*s + a, bmin=0, bmax=63, xi=s, x=vr(vX+4*s), acc=vr(vACC+16*a,16), swap=False, first=(s == 0)) for s, a in seq]
    g = Gemm(k, ring, ops, {0}, stop_issue=WO_STOP)
    rs = {}
    def ldres():
        if L == 0:
            k.vm(f"buffer_load_dwordx4 {vr(vRES)}, v8, {srd(60)}, s{sE} offen")
            rs['t'] = k.vm(f"buffer_load_dwordx4 {vr(vRES+4)}, v8, {srd(60)}, s{sE} offen offset:32")
        else:
            rs['t'] = load_res(k, vRES)
    if not RES_LATE[L]:
        if L == 0: rowmajor_addr(k, 8, sE)
        ldres()
    g.start()
    mark(k, 'f_bar')
    ring.issue_n(PRE_WO)
    publish_local(k, tO)
    mark(k, 'f_pub')
    ring.issue_n(PRE_WO2)
    k(f"s_and_b32 s{sF}, s{sRB}, 0xfe\ns_add_u32 s{sF}, s{sF}, s{sD}\ns_lshl_b32 s{sF}, s{sF}, 7\ns_add_u32 s{sF}, s{sF}, {FLOC(L,0)}")
    SC = 144 * KB
    k(f"s_xor_b32 s{sT0}, s{sW}, 2\ns_lshl_b32 s{sT0}, s{sT0}, 12\ns_add_u32 s{sT0}, s{sT0}, {SC}\nv_add_u32 v6, s{sT0}, v{vL16}")
    k(f"s_lshl_b32 s{sT0}, s{sW}, 12\ns_add_u32 s{sT0}, s{sT0}, {SC}\nv_add_u32 v7, s{sT0}, v{vL16}")
    if RES_LATE[L] and L == 0: rowmajor_addr(k, 8, sE)
    poll16(k)
    mark(k, 'f_poll')
    xq = XLoader(k, 16, lambda i: vr(vX+4*i), lin_src(k))
    xq.issue_n(WO_N0)
    if not RES_LATE[L]:
        for x in res_unpack(vSUM, vRES): k(x)
    st = {}
    def xchg(step):
        if step == 0:
            while g.nread < 32: g.rd()
            for j in range(4): k.lg(f"ds_write_b128 v6, {vr(vACC+16+4*j)} offset:{j*KB}")
        elif step == 1:
            k.wait_all(vm=False)
            ring.limit = None
            ring.sync(64, 0)
            for j in range(4): st['t'] = k.lg(f"ds_read_b128 {vr(vACC+16+4*j)}, v7 offset:{j*KB}")
        st['n'] = step + 1
    def filler(m):
        if m == max(nf + 1, 25): xchg(0)
        if m == max(nf + 4, 28): xchg(1)
    g.run(xq, n0=0, look=16, filler=filler, misc=[ldres] if RES_LATE[L] else [])
    for step in range(st.get('n', 0), 2): xchg(step)
    if RES_LATE[L]:
        k.wait(vm=rs['t'])
        for x in res_unpack(vSUM, vRES): k(x)
    k.wait(lg=st['t'])
    for i in range(16): k(f"v_add_f32 v{vSUM+i}, v{vSUM+i}, v{vACC+16+i}")
    for j in range(8):
        k(f"v_add_f32 v{vACC+2*j}, v{vACC+2*j}, v{vSUM+2*j}\nv_add_f32 v{vACC+2*j+1}, v{vACC+2*j+1}, v{vSUM+2*j+1}")
        k(f"v_cvt_pk_bf16_f32 v{vPK+j}, v{vACC+2*j}, v{vACC+2*j+1}")
    ts = store_x(k, vACC, vPK, L, 1, ring)
    mark(k, 'end')
    return ts

PASSES = ((0, 3), (3, 2), (5, 2))
def ph_up(k, L, ring, b0, tprev):
    vX, vACC, vST, vEXT, vRS = 16, 144, 224, 8, 6
    sH0, sH1 = sD, sE
    rb_128(k)
    k(f"s_and_b32 s{sA}, s{sC}, 15")
    k(f"s_lshl_b32 s{sX}, s{sRB}, 15\ns_add_u32 s{sX}, s{sX}, {XF}")
    set_lds_bases(k)
    ops = []
    b = b0
    for (t0, nt) in PASSES:
        for ks in range(33):
            for t in range(t0, t0+nt):
                ops.append(dict(b=b, bmin=b, bmax=b, xi=(ks if ks < 32 else None), x=(vr(vX+4*ks) if ks < 32 else vr(vEXT)),
                                acc=vr(vACC+16*t, 16), swap=False, first=(ks == 0)))
                b += 1
    if UP4:
        last = ops[165:]
        for o in last[0::2]: o['bmin'] = b0 + 165
        for o in last[1::2]: o['bmin'] -= 1
        ops = ops[:165] + last[0::2] + last[1::2]
    g = Gemm(k, ring, ops, UP_SYNCS, stop_issue=UP_STOP)
    g.start()
    mark(k, 'f_bar')
    ring.issue_n(PRE)
    publish_local(k, tprev)
    mark(k, 'f_pub')
    ring.issue_n(PRE2)
    res = {}
    se = stats_emitters(k, vST, res)
    k(f"s_mul_i32 s{sH0}, s{sRB}, 112\ns_mul_i32 s{sT2}, s{sA}, 7\ns_add_u32 s{sH0}, s{sH0}, s{sT2}\ns_lshl_b32 s{sH0}, s{sH0}, 10\ns_add_u32 s{sH0}, s{sH0}, {HF}")
    k(f"s_add_u32 s{sH1}, s{sH0}, 4096")
    k(f"s_lshl_b32 s{sF}, s{sRB}, 7\ns_add_u32 s{sF}, s{sF}, {FLOC(L,1)}")
    poll16(k)
    mark(k, 'f_poll')
    aps = stats_poll(k, FLOC(L,6) - FLOC(L,1))
    xq = XLoader(k, 32, lambda i: vr(vX+4*i), lin_src(k))
    fin = fin_stats(vST, vEXT, vRS) + [f"v_mul_f32 v{vRS}, v{vRS}, v{vRS}"]
    def epi(t):
        a = vACC + 16*t
        o = []
        for j in range(4):
            o += [f"v_mul_f32 v{a+2*j}, v{a+2*j}, v{vRS}", f"v_mul_f32 v{a+2*j+1}, v{a+2*j+1}, v{vRS}",
                  f"v_mul_f32 v{a+2*j}, v{a+2*j}, v{a+8+2*j}", f"v_mul_f32 v{a+2*j+1}, v{a+2*j+1}, v{a+9+2*j}",
                  f"v_cvt_pk_bf16_f32 v{a+8+j}, v{a+2*j}, v{a+2*j+1}"]
        o.append(f"buffer_store_dwordx4 {vr(a+8)}, v{vL16}, {srd(sWS)}, s{sH0 + (t >> 2)} offen offset:{(t & 3)*KB}")
        return o
    st = dict(i=0, t=None); q = []
    def put(x):
        if x.startswith('buffer'): st['t'] = k.vm(x)
        else: k(x)
    dn = Down(k, L)
    def filler(m):
        if aps and m == 12: aps.issue()
        if aps and m == 30: aps.check()
        if 70 <= m < 96:
            if st['i'] == 0: k.wait(vm=res['t'])
            for _ in range(2):
                if st['i'] < len(fin): k(fin[st['i']]); st['i'] += 1
        if m == 102: q.extend(sum((epi(t) for t in range(0, 3)), []))
        if m == 168: q.extend(sum((epi(t) for t in range(3, 5)), []))
        if UP4 and m == 201: q.extend(epi(5))
        for _ in range(UP_EPI):
            if q: put(q.pop(0))
        if m == 146: code_touch(k, 7)
        if m in UP_PUB:
            assert not q
            if m == UP_PUB[0]:
                k(f"s_lshl_b32 s{sF}, s{sRB}, 4\ns_add_u32 s{sF}, s{sF}, s{sA}\ns_lshl_b32 s{sF}, s{sF}, 3\ns_add_u32 s{sF}, s{sF}, {FLOC(L,9)}")
            publish_local(k, st['t'])
            k(f"s_add_u32 s{sF}, s{sF}, {8*KB}")
            if m == UP_PUB[1]: dn.xq.hold = 20
        if UP_PUB[0] < m and dn.setup:
            for _ in range(3):
                if dn.setup: k(dn.setup.pop(0))
        if m in DN_POLL: dn.ap.issue()
        if m in DN_CHK:
            dn.ap.check()
            k(f"s_add_u32 s{dn.sFl}, s{dn.sFl}, {8*KB}")
        if m > DN_CHK[0] and m % 2 and not (ring.can_issue() and m < UP_STOP): dn.xq.issue_n(1)
    if L == 0: ring.limit = 296 + QW_UP
    g.run(xq, look=UP_LOOK, filler=filler, misc=se, misc_from=32, skip=UP_SKIP[L])
    assert st['i'] == len(fin) and not dn.setup and ring.issued == min(ring.total, 296 + QW_UP)
    dn.xq.hold = 36 if len(DN_CHK) > 1 else 24
    for t in range(6 if UP4 else 5, 7):
        for i, x in enumerate(epi(t)):
            put(x)
            if i in (4, 14): dn.xq.issue_n(1)
    mark(k, 'end')
    dn.tB = st['t']
    return dn

class Down:
    NX = 36
    def __init__(self, k, L):
        self.k = k; self.L = L
        sXa, sXb, sFl = sB, sX2, sCc
        self.sFl = sFl
        self.setup = (f"s_lshr_b32 s{sT0}, s{sDST}, 15\ns_mul_i32 s{sT1}, s{sW}, {28*KB}\ns_add_u32 s{sT1}, s{sT1}, {HF}\n"
                      f"s_mul_i32 s{sXa}, s{sT0}, {112*KB}\ns_add_u32 s{sXa}, s{sXa}, s{sT1}\n"
                      f"s_xor_b32 s{sT2}, s{sT0}, 1\ns_mul_i32 s{sXb}, s{sT2}, {112*KB}\ns_add_u32 s{sXb}, s{sXb}, s{sT1}\n"
                      f"v_and_b32 v12, 3, v0\nv_lshlrev_b32 v12, 3, v12\nv_and_b32 v13, 4, v0\nv_lshl_add_u32 v12, v13, 5, v12\n"
                      f"s_and_b32 s{sFl}, s{sT0}, 0xfe\ns_lshl_b32 s{sFl}, s{sFl}, 7\ns_lshl_b32 s{sT1}, s{sW}, 5\ns_add_u32 s{sFl}, s{sFl}, s{sT1}\n"
                      f"s_add_u32 s{sFl}, s{sFl}, {FLOC(L,9)}").split('\n')
        self.order = order = [7*c + t for t0, nt in (((0, 3), (3, 2), (5, 1), (6, 1)) if UP4 else PASSES) for c in range(4) for t in range(t0, t0+nt)]
        cur = {sXa: 0, sXb: 0}
        def src(i):
            s_ = sXa if (i & 1) == 0 else sXb
            r = order[i >> 1]
            if not 0 <= r - cur[s_] < 4:
                d = (r - cur[s_]) * KB
                k(f"s_add_u32 s{s_}, s{s_}, {d}" if d > 0 else f"s_sub_u32 s{s_}, s{s_}, {-d}")
                cur[s_] = r
            return s_, (r - cur[s_]) * KB
        self.xr = lambda i: vr(144 + 4*(i % 36) if (i % 36) < 20 else 80 + 4*((i % 36) - 20))
        self.xq = XLoader(k, 56, self.xr, src)
        self.xq.hold = 12
        self.ap = apoll1(k, 12, 14, sFl)

def res_unpack(dst, v):
    o = []
    for j in range(8): o += [f"v_lshlrev_b32 v{dst+2*j}, 16, v{v+j}", f"v_and_b32 v{dst+2*j+1}, 0xffff0000, v{v+j}"]
    return o

def ph_down(k, L, ring, dn):
    vACC, vRES, vPK, vSUM = 16, 240, 240, 224
    final = L == 1
    xq = dn.xq; order = dn.order; NX = dn.NX
    if len(DN_CHK) > 1: xq.hold = 40
    SC = 108 * KB
    side = []
    for a in range(1, 4):
        side += f"s_xor_b32 s{sT0}, s{sW}, {a}\ns_mul_i32 s{sT0}, s{sT0}, {12*KB}\ns_add_u32 s{sT0}, s{sT0}, {SC + (a-1)*4*KB}\nv_add_u32 v{5+a}, s{sT0}, v{vL16}".split('\n')
    side += f"s_mul_i32 s{sT0}, s{sW}, {12*KB}\ns_add_u32 s{sT0}, s{sT0}, {SC}\nv_add_u32 v9, s{sT0}, v{vL16}".split('\n')
    if final and OUT_T:
        side += (f"s_and_b32 s{sT0}, s{sW}, 1\ns_mul_i32 s{sT0}, s{sT0}, {32*144}\ns_lshr_b32 s{sT2}, s{sW}, 1\ns_lshl_b32 s{sT2}, s{sT2}, 6\ns_add_u32 s{sT0}, s{sT0}, s{sT2}\n"
                 f"v_and_b32 v10, 31, v0\nv_mul_u32_u24 v10, 144, v10\nv_bfe_u32 v11, v0, 5, 1\nv_lshl_add_u32 v10, v11, 4, v10\nv_add_u32 v10, s{sT0}, v10\n"
                 f"s_mul_i32 s{sT0}, s{sW}, {16*144}\nv_bfe_u32 v13, v0, 3, 3\nv_mul_u32_u24 v11, 144, v13\nv_and_b32 v5, 7, v0\nv_lshl_add_u32 v11, v5, 4, v11\nv_add_u32 v11, s{sT0}, v11\n"
                 f"v_lshlrev_b32 v13, 10, v13\nv_lshl_add_u32 v13, v5, 4, v13\n"
                 f"s_and_b32 s{sT0}, s{sDST}, 0xffff0000\ns_lshl_b32 s{sT2}, s{sW}, 14\ns_add_u32 s{sT0}, s{sT0}, s{sT2}\n"
                 f"s_and_b32 s{sT2}, s{sC}, 7\ns_lshl_b32 s{sT2}, s{sT2}, 7\ns_add_u32 s{sT0}, s{sT0}, s{sT2}\ns_add_u32 s{sT2}, s{sT0}, 8192").split('\n')
    R, R0 = DN_R, DN_R0
    seq = []
    for s in range(28 - R):
        seq += [(s, a) for a in (3, 2, 1)]
        if s < 28 - R0: seq.append((s, 0))
    seq += [(s, a) for a in (3, 2, 1) for s in range(28 - R, 28)] + [(s, 0) for s in range(28 - R0, 28)]
    lo = [min(2*s_ + (a_ & 1) for s_, a_ in seq[m:]) for m in range(112)]
    wr = []; rt = None; tail = None; res = None; wb = False; adds = []
    for m, (s, a) in enumerate(seq):
        r = order[s]
        if len(DN_CHK) == 1 and m == DN_CHK2:
            dn.ap.check()
            k(f"s_add_u32 s{dn.sFl}, s{dn.sFl}, {8*KB}")
            xq.hold = 40
        if m == int(4*DN_PUBB): publish_local(k, dn.tB)
        if UP4 and m == DN_POLL3: dn.ap.issue()
        if UP4 and m == DN_CHK3:
            dn.ap.check()
            k(f"s_add_u32 s{dn.sFl}, s{dn.sFl}, {8*KB}")
            xq.hold = 48
        if m == 4*DN_BAR:
            ring.limit = None
            ring.sync(296, 0)
        if m == 4*DN_POLLB:
            apb = dn.ap
            apb.issue()
            rt = load_res(k, vRES)
        if m == 4*DN_CHKB:
            apb.check()
            xq.hold = 56
            xq.issue_n(min(3, lo[m] + NX - xq.n))
        xi = 2*s + (a & 1)
        while xq.n <= xi:
            assert xq.n < xq.hold and xq.n < lo[m] + NX
            xq.issue_n(1)
        k.wait(vm=xq.t[xi])
        acc = vr(vACC + 16*a, 16)
        k(f"v_mfma_f32_32x32x16_bf16 {acc}, {ar(aWD + 8*r + 4*(a >> 1))}, {dn.xr(xi)}, {'0' if s == 0 else acc}")
        if m == 0: mark(k, 'm0')
        if m in GEMM_MARKS.get(G.ph, ()): mark(k, f'm{m}')
        if (m % 2 == 0 or (xq.hold == 56 and m % DN_CR == 0)) and xq.n < min(lo[m] + NX, xq.total, xq.hold): xq.issue_n(1)
        elif m % 2 == 0 and xq.n == xq.total and ring.can_issue(): ring.issue()
        elif m > 4*DN_CHKB + 8:
            if res is None:
                k.wait(vm=rt); res = True
                side += res_unpack(vSUM, vRES)
            for _ in range(4):
                if side: k(side.pop(0))
        if final and WB_MASK is not None and xq.n == xq.total and (WB_EARLY or k.vm_done == k.vm_issued) and not wb:
            wb = True; l_ = k.newlabel('wb')
            k(f"s_lshl_b32 s{sT1}, s{sC}, 2\ns_add_u32 s{sT1}, s{sT1}, s{sW}\ns_and_b32 s{sT1}, s{sT1}, {WB_MASK}")
            if WB_EARLY:
                k(f"s_cbranch_scc0 {l_}")
                k.vm(f"buffer_load_dword v15, off, {srd(sWS)}, s{dn.sFl} sc1")
                k.label(l_ + 'r')
                G.far += [f"{l_}:", "buffer_wbl2 sc1", f"s_branch {l_}r"]
            else:
                k(f"s_cbranch_scc1 {l_}")
                k("buffer_wbl2 sc1")
                k.label(l_)
            print('wbl2 at', m, file=sys.stderr)
        if wr and wr[0][0] <= m:
            assert not side
            for _ in range(min(DN_WR, len(wr))):
                if wr[0][0] <= m: k.lg(wr.pop(0)[1])
            if wr and DN_WR == 1: wr[0] = (max(wr[0][0], m + DN_WGAP), wr[0][1])
            if not wr and a == 0: tail = min(m + 2, 111)
        if s == 27 and a:
            wr += [(m + 2, f"ds_write_b128 v{5+a}, {vr(vACC+16*a+4*j)} offset:{j*KB}") for j in range(4)]
        def fetch(bs):
            k("s_barrier")
            for b in bs:
                for j in range(4): t_ = k.lg(f"ds_read_b128 {vr(vACC+16+16*b+4*j)}, v9 offset:{b*4*KB + j*KB}")
                adds.extend((m + 2, t_, f"v_add_f32 v{vSUM+i}, v{vSUM+i}, v{vACC+16+16*b+i}") for i in range(16))
        if DN_X2 and m == 112 - R0:
            assert all('ds_write_b128 v6,' in x[1] for x in wr)
            k.wait_all(vm=False)
            fetch((2, 1))
        elif tail == m:
            k.wait_all(vm=False)
            fetch((0,) if DN_X2 else (2, 1, 0))
        else:
            for _ in range(DN_ADDS):
                if adds and adds[0][0] <= m:
                    _, t_, x = adds.pop(0); k.wait(lg=t_); k(x)
    assert not side and not wr and tail is not None and tail < 112
    for _, t_, x in adds:
        k.wait(lg=t_); k(x)
    if final and not OUT_T: rowmajor_addr(k, 6, sT0)
    for j in range(8):
        k(f"v_add_f32 v{vACC+2*j}, v{vACC+2*j}, v{vSUM+2*j}\nv_add_f32 v{vACC+2*j+1}, v{vACC+2*j+1}, v{vSUM+2*j+1}")
        k(f"v_cvt_pk_bf16_f32 v{vPK+j}, v{vACC+2*j}, v{vACC+2*j+1}")
        if final and OUT_T and j in (3, 7): k.lg(f"ds_write_b128 v10, {vr(vPK+j-3)} offset:{(j >> 2)*32}")
    if final and OUT_T:
        k.wait_all(vm=False)
        k("s_barrier")
        t0 = k.lg(f"ds_read_b128 {vr(vPK)}, v11")
        t1 = k.lg(f"ds_read_b128 {vr(vPK+4)}, v11 offset:{8*144}")
        k.wait(lg=t0)
        k.vm(f"buffer_store_dwordx4 {vr(vPK)}, v13, {srd(sAUX)}, s{sT0} offen{OUT_SC}")
        k.wait(lg=t1)
        k.vm(f"buffer_store_dwordx4 {vr(vPK+4)}, v13, {srd(sAUX)}, s{sT2} offen{OUT_SC}")
    elif final:
        k.vm(f"buffer_store_dwordx4 {vr(vPK)}, v6, {srd(sAUX)}, s{sT0} offen{OUT_SC}")
        k.vm(f"buffer_store_dwordx4 {vr(vPK+4)}, v6, {srd(sAUX)}, s{sT0} offen offset:32{OUT_SC}")
    else:
        G.tx = store_x(k, vACC, vPK, L, 8, ring)
    mark(k, 'end')

def k_main(name):
    k = Asm()
    G.nst = 0
    k(f".globl {name}\n.p2align 8\n.type {name},@function")
    k.label(name)
    if STAMP or PADTO or GATE: k("s_memrealtime s[42:43]")
    mark(k, 'start')
    k("s_cmp_ge_u32 s2, 256")
    k("s_cbranch_scc1 L_abort")
    k(f"s_load_dwordx2 s[{sWS}:{sWS+1}], s[0:1], 72")
    k(f"s_load_dwordx2 s[{sAUX}:{sAUX+1}], s[0:1], 56")
    k("s_load_dwordx2 s[60:61], s[0:1], 0\ns_load_dwordx4 s[64:67], s[0:1], 8\ns_load_dwordx4 s[68:71], s[0:1], 32\ns_load_dwordx2 s[72:73], s[0:1], 48")
    if CT0:
        k("s_getpc_b64 s[88:89]")
        k(f"s_lshr_b32 s90, s2, 3\ns_and_b32 s90, s90, {CT0 - 1}\ns_lshl_b32 s90, s90, 12\nv_lshl_add_u32 v3, v0, 4, s90")
        k.vm("global_load_dword v253, v3, s[88:89]")
    k("v_lshrrev_b32 v2, 6, v0")
    k(f"v_and_b32 v{vL16}, 63, v0")
    k(f"v_readfirstlane_b32 s{sW}, v2")
    k(f"v_lshlrev_b32 v{vL16}, 4, v{vL16}")
    k(f"s_mov_b32 s{sWG}, s2\ns_and_b32 s{sG}, s2, 7\ns_lshr_b32 s{sC}, s2, 3\ns_lshl_b32 s{sW1K}, s{sW}, 10")
    k(f"s_lshr_b32 s{sC4}, s{sC}, 4\ns_lshr_b32 s{sC3}, s{sC}, 3")
    k(f"s_lshl_b32 s{sU}, s{sG}, 5\ns_add_u32 s{sU}, s{sU}, s{sC}")
    k(f"s_lshl_b32 s{sW4K}, s{sW}, 12")
    k(f"s_getreg_b32 s{sXCC}, hwreg(HW_REG_XCC_ID, 0, 4)")
    k(f"v_add_u32 v{vSRC}, s{sW1K}, v{vL16}")
    k(f"s_mov_b32 s{sMSK}, 0xffff\ns_mov_b32 s{sMSK+1}, 0xffff\ns_mov_b32 s{sMODE}, 0")
    k(f"s_and_b32 s{sT0}, s{sC}, 7\ns_mul_i32 s{sSEG}, s{sT0}, {WO_STR}\ns_add_u32 s{sSEG}, s{sSEG}, {WO}")
    k(f"s_lshl_b32 s{sT1}, s{sG}, 2\ns_add_u32 s{sT1}, s{sT1}, s{sC3}\ns_lshl_b32 s{sT1}, s{sT1}, 1\ns_and_b32 s{sT2}, s{sW}, 1\ns_add_u32 s{sT1}, s{sT1}, s{sT2}")
    k(f"s_lshl_b32 s{sT1}, s{sT1}, 5\ns_lshl_b32 s{sT0}, s{sT0}, 2\ns_add_u32 s{sT1}, s{sT1}, s{sT0}\ns_and_b32 s{sT2}, s{sW}, 2\ns_add_u32 s{sT1}, s{sT1}, s{sT2}\ns_lshl_b32 s{sDST}, s{sT1}, 10")
    k(f"s_lshr_b32 s{sSD}, s{sDST}, 12\ns_lshl_b32 s{sSD}, s{sSD}, 9\ns_lshl_b32 s{sT2}, s{sT2}, 2\ns_add_u32 s{sSD}, s{sSD}, s{sT2}\ns_add_u32 s{sSD}, s{sSD}, {SX}")
    k(f"s_and_b32 s{sT0}, s{sC}, 15\ns_mul_i32 s{sSEG+1}, s{sT0}, {WU_STR}\ns_add_u32 s{sSEG+1}, s{sSEG+1}, {WU}")
    k(f"s_mul_i32 s{sSEG+2}, s{sT0}, {WQ_STR}\ns_add_u32 s{sSEG+2}, s{sSEG+2}, {WQ}")
    def late(k):
        if WSOFF: k(f"s_add_u32 s{sWS}, s{sWS}, {WSOFF}\ns_addc_u32 s{sWS+1}, s{sWS+1}, 0")
        k(f"s_add_u32 s{sT0}, s{sWS}, {EP}\ns_addc_u32 s{sT1}, s{sWS+1}, 0")
        k(f"s_load_dwordx2 s[{sTAG}:{sTAG+1}], s[{sT0}:{sT1}], 0")
        k(f"s_and_b32 s{sWS+1}, s{sWS+1}, 0xffff\ns_mov_b32 s{sWS+2}, {0x10000000 - WSOFF}\ns_mov_b32 s{sWS+3}, 0x20000")
        k(f"s_and_b32 s{sAUX+1}, s{sAUX+1}, 0xffff\ns_mov_b32 s{sAUX+2}, {2*MB}\ns_mov_b32 s{sAUX+3}, 0x20000")
    G.ph = 'qkv0'; tk = ph_qkv0(k, late)
    for L in range(2):
        ring = Ring(k, [(sSEG, 64), (sSEG+1, 232)] + ([(sSEG+2, 100)] if L == 0 else []))
        G.ph = f'att{L}'; tO = ph_att(k, L, ring, *tk)
        G.ph = f'wo{L}'; tx = ph_wo(k, L, ring, tO)
        G.ph = f'up{L}'; tB = ph_up(k, L, ring, 64, tx)
        G.ph = f'dn{L}'; ph_down(k, L, ring, tB)
        G.ph = 'qkv1'
        if L == 0: tk = ph_qkv(k, 1, ring, 296)
    k(f"s_add_u32 s{sT0}, s{sWG}, s{sW}\ns_cmp_lg_u32 s{sT0}, 0\ns_cbranch_scc1 L_fin")
    k(f"s_mov_b32 s{sF}, {EP}")
    publish_local(k, None, force_global=True)
    k.label("L_fin")
    if PADTO:
        k("s_waitcnt vmcnt(0)")
        if PADMIN:
            k("s_load_dwordx2 s[64:65], s[0:1], 64\ns_waitcnt lgkmcnt(0)")
            k("s_not_b32 s66, s42\nv_mov_b32 v8, s66\nv_mov_b32 v9, 0\ns_mov_b64 exec, 1")
            k("global_atomic_umax v9, v8, s[64:65]\ns_waitcnt vmcnt(0)")
            k.label("L_pad0")
            k(f"s_memrealtime s[98:99]\ns_waitcnt lgkmcnt(0)\ns_sub_u32 s98, s98, s42\ns_cmp_lt_u32 s98, {PADTO - 1500}\ns_cbranch_scc1 L_pad0")
            k("global_load_dword v8, v9, s[64:65] sc1\ns_waitcnt vmcnt(0)\nv_readfirstlane_b32 s66, v8\ns_not_b32 s42, s66\ns_mov_b64 exec, -1")
        k.label("L_pad")
        k(f"s_memrealtime s[98:99]\ns_waitcnt lgkmcnt(0)\ns_sub_u32 s98, s98, s42\ns_cmp_lt_u32 s98, {PADTO}\ns_cbranch_scc1 L_pad")
    if STAMP:
        k("s_waitcnt vmcnt(0)")
        G.ph = ''; mark(k, 'fin')
        k("s_memrealtime s[98:99]\ns_waitcnt lgkmcnt(0)")
        vals = [42, 98, sMODE] + STS[:G.nst]
        for i, s_ in enumerate(vals): k(f"v_mov_b32 v{16+i}, s{s_}")
        k(f"s_lshl_b32 s{sT0}, s{sWG}, 2\ns_add_u32 s{sT0}, s{sT0}, s{sW}\ns_lshl_b32 s{sT0}, s{sT0}, 7\ns_add_u32 s{sT0}, s{sT0}, {TS}")
        k("v_mov_b32 v4, 0\ns_mov_b64 exec, 1")
        for j in range(8): k(f"buffer_store_dwordx4 {vr(16+4*j)}, v4, {srd(sWS)}, s{sT0} offen offset:{16*j}")
        if DBG is not None:
            k(f"s_lshl_b32 s{sT0}, s{sWG}, 2\ns_add_u32 s{sT0}, s{sT0}, s{sW}\ns_cmp_lg_u32 s{sT0}, {DBG}\ns_cbranch_scc1 L_nodbg")
            k("s_load_dwordx2 s[64:65], s[0:1], 64\ns_waitcnt lgkmcnt(0)")
            for i in range(16): k(f"v_sub_u32 v{64+i}, v{20+i}, v19")
            for j in range(4): k(f"global_store_dwordx4 v4, {vr(64+4*j)}, s[64:65] offset:{16*j}")
            k.label("L_nodbg")
    k("s_waitcnt vmcnt(0)")
    k.label("L_abort")
    k("s_endpgm")
    for x in G.near + G.far:
        if x.endswith(':'): k.label(x[:-1])
        else: k(x)
    k.label("L_end")
    return k

def build():
    name = NAME + "_kernel"
    k = k_main(name)
    nn = k.fix()
    print(f"{len(k.L)} lines, {nn} nop states", file=sys.stderr)
    head = f"; stamps: {','.join(G.names)}\n" if (STAMP or not FINAL) else HDR
    return f"""{head}; @launch grid=(256,1,1) block=(256,1,1) lds={160*KB}
.amdgcn_target "amdgcn-amd-amdhsa--gfx950"
.text
{k.text()}
.section .rodata,"a"
.p2align 6
.amdhsa_kernel {name}
  .amdhsa_next_free_vgpr 512
  .amdhsa_next_free_sgpr 102
  .amdhsa_accum_offset 256
  .amdhsa_group_segment_fixed_size 0
  .amdhsa_kernarg_size 80
  .amdhsa_user_sgpr_count 2
  .amdhsa_user_sgpr_kernarg_segment_ptr 1
  .amdhsa_system_sgpr_workgroup_id_x 1
.end_amdhsa_kernel
"""

if __name__ == "__main__":
    for a in sys.argv[2:]:
        kk_, vv_ = a.split('=', 1)
        globals()[kk_] = eval(vv_)
    open(sys.argv[1], "w").write(build())
```

```python
import sys, struct
from asmlib import Asm

NAME = "interleave_layers__mha_block__glu_gated_bilinear__prompt"
KB = 1024; MB = KB * KB
LOG2E = 1.4426950408889634
def f2u(x): return struct.unpack('<I', struct.pack('<f', x))[0]
def srd(b): return f"s[{b}:{b+3}]"
def vr(b, n=4): return f"v[{b}:{b+n-1}]"
def ar(b, n=4): return f"a[{b}:{b+n-1}]"

WQ = 0;                    WQ_STR = 100 * KB
WO = WQ + 16 * WQ_STR;     WO_STR = 64 * KB
WU = WO + 8 * WO_STR;      WU_STR = 232 * KB
WD = WU + 16 * WU_STR
FL = 7 * MB + 640 * KB
assert WD + 16 * 112 * KB <= FL
EP = FL
XID = FL + 1 * KB
def FLOC(L, p): return FL + 4 * KB + (L * 13 + p) * 8 * KB
FKV0 = FL + 4 * KB + 26 * 8 * KB
def FKV(L): return FKV0 + L * 32 * KB
FPK = FKV0 + 64 * KB
assert FPK + 32 * KB <= 8 * MB
XF = 8 * MB
HF = 10 * MB
QF = HF
SX = 17 * MB
def KVF(L): return 18 * MB + L * 4 * MB
WS_PAGES = 13
TS = 27 * MB
DUMP = 0x7ff00000

STAMP = False
DN16 = False
UP16 = True; U16_FIN = 64; U16_PUB = (156, 206); U16_POLL = (174, 226); U16_CHK = 188; U16_SLOTS = 3
FL1 = False; PP_SLEEP = 1
FINAL = False
HDR = "; Two transformer layers (LN -> MHA -> residual, LN -> bilinear GLU -> residual) in ONE persistent launch:\n;    K/V, packed weights: write-through stores, device-scope flags.  Hand-offs inside a group use plain stores only\n;    written back before every flag.  All consumers read with L1-bypassing loads.\n;    finite, else the wave recomputes its rows with the true row maximum subtracted (labels fb_*).\n"
NEAR = True; CT0 = 8
GATE = None
WB_EARLY = False
DIAG_NOP = {}
UP4 = False; DN_POLL3 = 18; DN_CHK3 = 30
DN_X2 = True; DN_ADDS = 5; DN_CR = 2
RES_LATE = (False, False); XRES_TOUCH = 0
HEAD = 0
QKV_QE = 10; QKV_EPI = 5
R1_AT = 44; R1_STEP = 8
KV_LOC = True
PADTO = 0; PADMIN = False
OUT_T = True
ATT_NT = 2
PK_WIN2 = False; PK_SP = 0
WARM_AT = 1
RT = False
DN_CHK2 = 4
CT_AT = 92
FORCE_FB = False
WB_MASK = 127; OUT_SC = ' sc1'; DN_WR = 1; DN_WGAP = 2
QW_LATE = False; QW_UP = 64; QW_TOUCH = (72, 100); QW_N1 = 4
PK_Q0 = False; PK_RD = 1; PK_ST = 3; CHK_Q0 = 15
WO_STOP = 26; WO_R0 = 8; WO_N0 = 10; ST_PRE = 2; PPOLL = 0; KV_PF = (0, 0); PK_EARLY = True
FL_TOUCH = False
SPLIT_ST = True
FINE = False
UP_EPI = 2; UP_PUB = (154, 206); DN_POLL = (172, 226); DN_CHK = (186,); UP_LOOK = 8; UP_SYNCS = {0, 48, 80, 112, 144, 176, 200}; UP_SKIP = (0, 0); UP_STOP = 222
DN_PUBB = 4; DN_BAR = 14; DN_POLLB = 7; DN_CHKB = 12; DN_R = 8; DN_R0 = 12
FLAG_TOUCH = False
WSOFF = 0
SLEEP1 = (0, 0); SLEEP2 = 0; SLEEP3 = 0
DBG = None
PRE = 4; PRE2 = 0
PRE_WO = 5; PRE_WO2 = 0
CODE_TOUCH = True
WD_SLOTS = (2, 4, 6)
TOUCH_AT = (93, 90); TOUCH_STEP = (3, 4); TOUCH_LN = 32; TH_STEP = 3; TOUCH_KBS = (96, 96)
RING = 144
PK_T0 = 7; PK_GAP = 6; PK_GAP2 = 9; CHK_GAP = 14
P2_AT = 6
P2_LEAD = 4
TACTS = (102, 102); EARLY_H = 0

sC4, sC3 = 2, 3
sWS, sAUX = 4, 8
sW, sG, sC, sW1K = 12, 13, 14, 15
sT0, sT1, sT2, sT3 = 16, 17, 18, 19
sX, sRS, sRB = 20, 21, 22
sA, sB, sCc, sD, sE = 23, 24, 25, 26, 27
sS0, sS1 = 28, 21
sMSK, sTAG, sMODE, sXCC = 30, 32, 34, 35
sSEG = 36
sX2 = 39
sSPIN, sF = 40, 41
STS = list(range(44, 56, 2)) + [92, 94, 56, 58, 74, 76, 80, 82, 86, 88, 60, 62]
sWG = 101
sW4K = 97
sW2K = 99
sSD = 29
sPC, sCT = 90, 85
sDST = 100
vL16, vSRC, vB = 1, 2, 3
aWD, aWB = 0, 224

class G:
    nst = 0
    names = []
    far = []
    near = []
    ph = ''
SKIP = ''
ATT_MARKS = ()
GEMM_MARKS = {}
def mark(k, nm='x'):
    import re
    nm = G.ph + '_' + nm
    if GATE and GATE[0] == nm:
        k.label("L_gate")
        k(f"s_memrealtime s[98:99]\ns_waitcnt lgkmcnt(0)\ns_sub_u32 s98, s98, s42\ns_cmp_lt_u32 s98, {GATE[1]}\ns_cbranch_scc1 L_gate")
    if SKIP and re.match(SKIP, nm): return
    if '_f_' in nm and not FINE: return
    if STAMP:
        G.names.append(nm)
        k(f"s_mem{'real' if RT else ''}time s[{STS[G.nst]}:{STS[G.nst]+1}]")
        G.nst += 1

class Ring:
    def __init__(self, k, segs):
        self.k = k; self.N = RING
        self.total = sum(n for _, n in segs)
        self.starts = {}
        b = 0
        for s, n in segs:
            assert n % 4 == 0
            self.starts[b] = s; b += n
        self.issued = 0; self.freed = 0; self.visible = 0
        self.limit = None
        self.tick = {}
        self.pair = False
    def can_issue(self):
        if self.limit is not None and self.issued + 4 > self.limit: return False
        return self.issued < self.total and self.issued + 4 <= self.freed + self.N
    def issue(self):
        k = self.k
        assert self.can_issue()
        slot = self.issued % self.N
        k(f"s_add_u32 m0, s{sW1K}, {slot*KB}")
        if self.issued in self.starts: k(f"s_mov_b32 s{sRS}, s{self.starts[self.issued]}")
        else: k(f"s_add_u32 s{sRS}, s{sRS}, 4096")
        self.tick[self.issued // 4] = k.vm(f"buffer_load_dwordx4 v{vSRC}, {srd(sWS)}, s{sRS} offen sc1 lds")
        self.issued += 4
    def parts(self):
        k = self.k
        assert self.can_issue()
        b = self.issued; self.issued += 4
        def ld(): self.tick[b // 4] = k.vm(f"buffer_load_dwordx4 v{vSRC}, {srd(sWS)}, s{sRS} offen sc1 lds")
        return [lambda: k(f"s_add_u32 m0, s{sW1K}, {(b % self.N)*KB}"),
                lambda: k(f"s_mov_b32 s{sRS}, s{self.starts[b]}" if b in self.starts else f"s_add_u32 s{sRS}, s{sRS}, 4096"), ld]
    def can8(self):
        b = self.issued
        if b % 8 or (b + 4) in self.starts or b + 8 > self.total or b + 8 > self.freed + self.N: return False
        return self.limit is None or b + 8 <= self.limit
    def parts8(self):
        k = self.k
        b = self.issued; self.issued += 8
        first = not self.pair; self.pair = True
        def src():
            if b in self.starts: k(f"s_add_u32 s{sRS}, s{self.starts[b]}, s{sW1K}")
            elif first: k(f"s_add_u32 s{sRS}, s{sRS}, 4096\ns_add_u32 s{sRS}, s{sRS}, s{sW1K}")
            else: k(f"s_add_u32 s{sRS}, s{sRS}, 8192")
        def ld1(): self.tick[b // 4] = self.tick[b // 4 + 1] = k.vm(f"buffer_load_dwordx4 v{vSRC}, {srd(sWS)}, s{sRS} offen offset:1024 sc1 lds")
        return [lambda: k(f"s_add_u32 m0, s{sW2K}, {(b % self.N)*KB}"), src,
                lambda: k.vm(f"buffer_load_dwordx4 v{vSRC}, {srd(sWS)}, s{sRS} offen sc1 lds")], [ld1]
    def end8(self):
        if self.pair:
            self.k(f"s_add_u32 s{sRS}, s{sRS}, 4096\ns_sub_u32 s{sRS}, s{sRS}, s{sW1K}")
            self.pair = False
    def issue16(self):
        k = self.k
        b = self.issued; slot = b % self.N
        assert slot + 16 <= self.N and b + 16 <= min(self.limit or 1 << 30, self.freed + self.N)
        assert not any(x in self.starts for x in range(b + 1, b + 16))
        k(f"s_add_u32 m0, s{sW4K}, {slot*KB}")
        if b in self.starts: k(f"s_add_u32 s{sRS}, s{self.starts[b]}, s{sW4K}")
        else: k(f"s_add_u32 s{sRS}, s{sRS}, 16384")
        for i in range(4):
            t = k.vm(f"buffer_load_dwordx4 v{vL16}, {srd(sWS)}, s{sRS} offen offset:{i*KB} sc1 lds")
        for q in range(4): self.tick[b // 4 + q] = t
        self.issued += 16
    def end16(self):
        self.k(f"s_sub_u32 s{sRS}, s{sRS}, s{sW4K}\ns_add_u32 s{sRS}, s{sRS}, 12288")
    def issue_n(self, n):
        for _ in range(n):
            if self.can_issue(): self.issue()
    def sync(self, consumed, need):
        k = self.k
        need = min(need, self.total)
        if need > self.visible:
            q = (need - 1) // 4
            assert q * 4 < self.issued, (need, self.issued)
            k.wait(vm=self.tick[q])
        k("s_barrier")
        q = self.visible // 4
        while q in self.tick and self.tick[q] <= k.vm_done: q += 1
        self.visible = q * 4
        assert self.visible >= need
        self.freed = max(self.freed, (consumed // 4) * 4)
    def addr(self, b): return (b % self.N) * KB

def set_lds_bases(k, extra_s=None):
    if extra_s is None: k(f"v_mov_b32 v{vB}, v{vL16}")
    else: k(f"v_add_u32 v{vB}, s{extra_s}, v{vL16}")
    k(f"v_add_u32 v{vB+1}, 0x10000, v{vB}")
    k(f"v_add_u32 v{vB+2}, 0x20000, v{vB}")

class XLoader:
    def __init__(self, k, total, reg, src, va=vL16):
        self.k = k; self.total = total; self.reg = reg; self.src = src; self.n = 0; self.t = []; self.va = va
        self.hold = total
    def issue_n(self, n):
        k = self.k
        for _ in range(n):
            i = self.n
            if i >= min(self.total, self.hold): return
            s_, imm = self.src(i)
            self.t.append(k.vm(f"buffer_load_dwordx4 {self.reg(i)}, v{self.va}, {srd(sWS)}, s{s_} offen offset:{imm} sc1"))
            self.n += 1
def lin_src(k):
    def f(i):
        if i and (i & 3) == 0: k(f"s_add_u32 s{sX}, s{sX}, 4096")
        return sX, (i & 3) * KB
    return f

class Gemm:
    def __init__(self, k, ring, ops, syncs, D=4, NB=8, stop_issue=None):
        self.k = k; self.ring = ring; self.ops = ops; self.syncs = sorted(syncs)
        assert all(x % 2 == 0 for x in syncs)
        self.D = D; self.NB = NB; self.tl = {}; self.nread = 0
        self.stop = stop_issue if stop_issue is not None else len(ops)
    def rd(self):
        k = self.k; m = self.nread; o = self.ops[m]
        assert o['bmax'] < self.ring.visible, (m, o['b'], self.ring.visible)
        a = self.ring.addr(o['b'])
        self.tl[m] = k.lg(f"ds_read_b128 {ar(aWB + 4*(m % self.NB))}, v{vB + (a >> 16)} offset:{a & 0xffff}")
        self.nread += 1
    def need_until(self, m):
        M = len(self.ops)
        nxt = [s for s in self.syncs if s > m]
        last = min((nxt[0] if nxt else M) - 1 + self.D, M - 1)
        return max(o['bmax'] for o in self.ops[:last+1]) + 1
    def start(self):
        self.ring.sync(self.ops[0]['bmin'], self.need_until(0))
        while self.nread < min(self.D, len(self.ops)): self.rd()
    def run(self, xq, n0=6, look=10, filler=None, misc=(), misc_from=0, skip=0):
        k = self.k; M = len(self.ops)
        misc = list(misc)
        xq.issue_n(n0)
        cur = 0
        for m in range(M):
            if m in self.syncs and m > 0:
                self.ring.sync(self.ops[m]['bmin'], self.need_until(m))
            o = self.ops[m]
            xt = None
            if m % 2 == 0:
                xs = [p['xi'] for p in self.ops[m:m+2] if p.get('xi') is not None]
                if xs:
                    cur = max(cur, max(xs))
                    while xq.n <= max(xs): xq.issue_n(1)
                    xt = xq.t[max(xs)]
                k.wait(vm=xt, lg=self.tl[min(m + 1, M - 1)])
            w = ar(aWB + 4*(m % self.NB))
            c = o.get('c0', '0') if o['first'] else o['acc']
            A, B = (o['x'], w) if o['swap'] else (w, o['x'])
            k(f"v_mfma_f32_32x32x16_bf16 {o['acc']}, {A}, {B}, {c}")
            if m == 0: mark(k, 'm0')
            if m in GEMM_MARKS.get(G.ph, ()): mark(k, f'm{m}')
            if m % 2 == 0:
                for _ in range(2):
                    if self.nread < M: self.rd()
                if DIAG_NOP.get(G.ph): k(f"s_nop {DIAG_NOP[G.ph]}")
            elif not (skip and m % skip == skip - 1):
                rok = m < self.stop and self.ring.can_issue()
                if xq.n < xq.total and (xq.n - cur < look or not (rok or (misc and m >= misc_from))): xq.issue_n(1)
                elif misc and m >= misc_from: misc.pop(0)()
                elif rok: self.ring.issue()
            if filler: filler(m)
        assert not misc

def stats_emitters(k, vt, res):
    k(f"s_lshl_b32 s{sS0}, s{sRB}, 12\ns_add_u32 s{sS0}, s{sS0}, {SX}")
    def mk(i):
        def f(): res['t'] = k.vm(f"buffer_load_dwordx4 {vr(vt+4*i)}, v{vL16}, {srd(sWS)}, s{sS0} offen offset:{i*KB} sc1")
        return f
    return [mk(i) for i in range(4)]

NTREE = 14
def fin_stats(vt, vext, vrstd):
    ins = []
    n = 8
    while n > 1:
        h = n // 2
        for i in range(h):
            ins.append(f"v_add_f32 v{vt+2*i}, v{vt+2*i}, v{vt+2*(i+h)}")
            ins.append(f"v_add_f32 v{vt+2*i+1}, v{vt+2*i+1}, v{vt+2*(i+h)+1}")
        n = h
    a, b, c, d = vt, vt+1, vt+2, vt+3
    ins += [f"v_mov_b32 v{c}, v{a}", f"v_mov_b32 v{d}, v{b}",
            f"v_permlane32_swap_b32 v{a}, v{c}", f"v_permlane32_swap_b32 v{b}, v{d}",
            f"v_add_f32 v{a}, v{a}, v{c}", f"v_add_f32 v{b}, v{b}, v{d}",
            f"v_mul_f32 v{a}, {hex(f2u(-1.0/512))}, v{a}",
            f"v_mul_f32 v{b}, {hex(f2u(1.0/512))}, v{b}",
            f"v_fma_f32 v{b}, -v{a}, v{a}, v{b}",
            f"v_max_f32 v{b}, 0, v{b}",
            f"v_add_f32 v{b}, {hex(f2u(1e-5))}, v{b}",
            f"v_rsq_f32 v{vrstd}, v{b}",
            f"v_cvt_pk_bf16_f32 v{vext}, v{a}, v{a}",
            f"v_and_b32 v{c}, 0xffff0000, v{vext}",
            f"v_sub_f32 v{c}, v{a}, v{c}",
            f"v_cvt_pk_bf16_f32 v{vext+1}, v{c}, 0",
            f"v_mov_b32 v{vext+2}, v{vext}", f"v_mov_b32 v{vext+3}, v{vext+1}"]
    return ins

def poll(k, vaddr, vpd, sleep=0):
    l = k.newlabel('poll')
    k(f"s_mov_b32 s{sSPIN}, 0x40000")
    k.label(l)
    k.vm(f"buffer_load_dwordx2 {vr(vpd,2)}, v{vaddr}, {srd(sWS)}, s{sF} offen sc1")
    k(f"s_sub_u32 s{sSPIN}, s{sSPIN}, 1")
    k("s_cbranch_scc1 L_abort")
    k.wait_all(lg=False)
    k(f"v_cmp_ne_u64 vcc, s[{sTAG}:{sTAG+1}], {vr(vpd,2)}")
    k(f"s_cbranch_vccnz {l}")
class APoll:
    def __init__(self, k, loads, cmp, sleep=0):
        self.k = k; self.loads = loads; self.cmp = cmp; self.sleep = sleep
    def issue(self):
        for x in self.loads:
            if x.startswith('buffer'): self.t = self.k.vm(x)
            else: self.k(x)
    def check(self):
        k = self.k
        l = k.newlabel('ap'); ok = k.newlabel('apok')
        k.wait(vm=self.t)
        k(self.cmp)
        k(f"s_cbranch_vccnz {l}")
        k.label(ok)
        (G.near if NEAR else G.far).extend([f"{l}:", f"s_mov_b32 s{sSPIN}, 0x40000", f"{l}_l:"] + list(self.loads) + [
            f"s_sub_u32 s{sSPIN}, s{sSPIN}, 1", "s_cbranch_scc1 L_abort", "s_waitcnt vmcnt(0)", self.cmp,
            f"s_cbranch_vccnz {l}_l", f"s_branch {ok}"])
def flush_near(k):
    if not G.near: return
    l = k.newlabel('nr')
    k(f"s_branch {l}")
    for x in G.near:
        if x.endswith(':'): k.label(x[:-1])
        else: k(x)
    k.label(l)
    G.near.clear()
def apoll1(k, vaddr, vpd, soff, sleep=0):
    return APoll(k, [f"buffer_load_dwordx2 {vr(vpd,2)}, v{vaddr}, {srd(sWS)}, s{soff} offen sc1"],
                 f"v_cmp_ne_u64 vcc, s[{sTAG}:{sTAG+1}], {vr(vpd,2)}", sleep)
def ppoll(k, vaddr, vd, n):
    l = k.newlabel('pp'); ok = k.newlabel('ppok')
    ld = lambda i: f"buffer_load_dwordx2 {vr(vd+2*i,2)}, v{vaddr}, {srd(sWS)}, s{sF} offen sc1"
    k(f"s_mov_b32 s{sSPIN}, 0x20000")
    for i in range(n - 1): k(ld(i))
    k.label(l)
    for i in range(n):
        k(ld((i + n - 1) % n))
        k(f"s_waitcnt vmcnt({n-1})")
        k(f"v_cmp_ne_u64 vcc, s[{sTAG}:{sTAG+1}], {vr(vd+2*i,2)}")
        k(f"s_cbranch_vccz {ok}")
        if PP_SLEEP: k(f"s_sleep {PP_SLEEP}")
    k(f"s_sub_u32 s{sSPIN}, s{sSPIN}, 1")
    k(f"s_cbranch_scc0 {l}")
    k("s_branch L_abort")
    k.label(ok)
    k.vm_done = k.vm_issued
def poll16(k):
    flush_near(k)
    k("v_and_b32 v13, 15, v0\nv_lshlrev_b32 v13, 3, v13")
    if PPOLL: ppoll(k, 13, 248, PPOLL)
    else: poll(k, 13, 14)

TAGMOV = [f"v_mov_b32 v14, s{sTAG}", f"v_mov_b32 v15, s{sTAG+1}"]
def publish_local(k, last_store, force_global=False, movs=True):
    if movs:
        for x in TAGMOV: k(x)
    if force_global:
        k.wait(vm=last_store)
        k.vm(f"buffer_store_dwordx2 v[14:15], off, {srd(sWS)}, s{sF} sc1")
        return
    slow = k.newlabel('slow'); join = k.newlabel('join')
    k(f"s_cmp_eq_u32 s{sMODE}, 0")
    k(f"s_cbranch_scc1 {slow}")
    if FL1: k("s_mov_b64 exec, 1")
    k.wait(vm=last_store)
    k.vm(f"buffer_store_dwordx2 v[14:15], off, {srd(sWS)}, s{sF}")
    if FL1: k("s_mov_b64 exec, -1")
    k.label(join)
    G.far += [f"{slow}:", "s_waitcnt vmcnt(0)", "buffer_wbl2 sc1", "s_waitcnt vmcnt(0)",
              f"buffer_store_dwordx2 v[14:15], off, {srd(sWS)}, s{sF} sc1", f"s_branch {join}"]
def publish_wg(k, last_store, xid=False, barrier=True):
    l = k.newlabel('pw')
    k(f"v_mov_b32 v13, 0\nv_mov_b32 v14, s{sTAG}\nv_mov_b32 v15, s{sTAG+1}")
    k.wait(vm=last_store)
    if barrier: k("s_barrier")
    k(f"s_cmp_lg_u32 s{sW}, 0\ns_cbranch_scc1 {l}")
    k("s_mov_b64 exec, 1")
    if xid:
        k(f"v_xor_b32 v12, s{sXCC}, v14\nv_mov_b32 v13, v15")
        k(f"buffer_store_dwordx4 v[12:15], v{vL16}, {srd(sWS)}, s{sF} offen sc1")
    else:
        k(f"buffer_store_dwordx2 v[14:15], v13, {srd(sWS)}, s{sF} offen sc1")
    k("s_mov_b64 exec, -1")
    k.label(l)

def rb_128(k):
    k(f"s_lshl_b32 s{sT0}, s{sC4}, 2\ns_lshl_b32 s{sRB}, s{sG}, 3\ns_add_u32 s{sRB}, s{sRB}, s{sT0}\ns_add_u32 s{sRB}, s{sRB}, s{sW}")

def store_x(k, acc, pk, L, p, ring=None, m16=False):
    k(f"s_add_u32 s{sT1}, s{sDST}, {XF}")
    k.vm(f"buffer_store_dwordx4 {vr(pk)}, v{vL16}, {srd(sWS)}, s{sT1} offen")
    td = k.vm(f"buffer_store_dwordx4 {vr(pk+4)}, v{vL16}, {srd(sWS)}, s{sT1} offen offset:1024")
    mark(k, 'f_xs')
    A_ = [acc + i for i in ((0, 1, 2, 3, 8, 9, 10, 11) if m16 else range(0, 16, 2))]
    B_ = [acc + i for i in ((4, 5, 6, 7, 12, 13, 14, 15) if m16 else range(1, 16, 2))]
    k(f"v_add_f32 v10, v{A_[0]}, v{A_[1]}\nv_mul_f32 v11, v{A_[0]}, v{A_[0]}\nv_add_f32 v8, v{B_[0]}, v{B_[1]}\nv_mul_f32 v9, v{B_[0]}, v{B_[0]}")
    k(f"v_fmac_f32 v11, v{A_[1]}, v{A_[1]}\nv_fmac_f32 v9, v{B_[1]}, v{B_[1]}")
    for i in range(2, 8):
        k(f"v_add_f32 v10, v10, v{A_[i]}\nv_fmac_f32 v11, v{A_[i]}, v{A_[i]}\nv_add_f32 v8, v8, v{B_[i]}\nv_fmac_f32 v9, v{B_[i]}, v{B_[i]}")
        if ring and i in (2, 5): ring.issue_n(ST_PRE)
    if m16: k("v_permlane16_swap_b32 v10, v8\nv_permlane16_swap_b32 v11, v9")
    k("v_add_f32 v10, v10, v8\nv_add_f32 v11, v11, v9\nv_mov_b32 v8, v10\nv_mov_b32 v9, v11")
    k("v_permlane32_swap_b32 v10, v8\nv_permlane32_swap_b32 v11, v9\nv_add_f32 v10, v10, v8\nv_add_f32 v11, v11, v9")
    k("s_mov_b32 exec_hi, 0")
    ts = k.vm(f"buffer_store_dwordx2 v[10:11], v{vL16}, {srd(sWS)}, s{sSD} offen")
    k("s_mov_b64 exec, -1")
    k(f"s_lshr_b32 s{sF}, s{sDST}, 8\ns_add_u32 s{sF}, s{sF}, {FLOC(L, p)}")
    mark(k, 'f_ss')
    if SPLIT_ST:
        publish_local(k, td)
        k(f"s_add_u32 s{sF}, s{sF}, {FLOC(L, 6 if p == 1 else 7) - FLOC(L, p)}")
    return ts
def stats_poll(k, delta):
    if not SPLIT_ST: return []
    k(f"s_add_u32 s{sF}, s{sF}, {delta}")
    ap = apoll1(k, 13, 14, sF)
    return ap

def rowmajor_addr(k, va, s_out):
    k(f"v_and_b32 v{va}, 31, v0\nv_lshlrev_b32 v{va}, 10, v{va}\nv_bfe_u32 v{va+1}, v0, 5, 1\nv_lshlrev_b32 v{va+1}, 4, v{va+1}\nv_add_u32 v{va}, v{va}, v{va+1}")
    k(f"s_and_b32 s{s_out}, s{sDST}, 0xffff8000\ns_bfe_u32 s{sT3}, s{sDST}, 0x5000a\ns_lshl_b32 s{sT3}, s{sT3}, 5\ns_add_u32 s{s_out}, s{s_out}, s{sT3}")

sU = 96
def pack_decode(k):
    nm = "pk"; u = f"s{sU}"
    k(f"s_min_u32 s83, {u}, 231")
    u = "s83"
    k(f"s_and_b32 s90, s{sW}, 1\ns_lshr_b32 s91, s{sW}, 1")
    k(f"s_cmp_lt_u32 {u}, 48\ns_cbranch_scc1 {nm}_q")
    k(f"s_cmp_lt_u32 {u}, 160\ns_cbranch_scc1 {nm}_u")
    k(f"s_cmp_lt_u32 {u}, 176\ns_cbranch_scc1 {nm}_o")
    k(f"s_sub_u32 s84, {u}, 176\ns_lshl_b32 s84, s84, 2\ns_add_u32 s84, s84, s{sW}")
    k("s_and_b32 s85, s84, 15\ns_lshr_b32 s86, s84, 4")
    k("s_lshl_b32 s87, s85, 6")
    k("s_add_u32 s74, s72, s87\ns_addc_u32 s75, s73, 0\ns_mov_b32 s76, s74\ns_mov_b32 s77, s75")
    k("s_mov_b32 s78, 1024\ns_lshl_b32 s79, s86, 7")
    k(f"s_mul_i32 s80, s85, 14\ns_add_u32 s80, s80, s86\ns_lshl_b32 s80, s80, 13\ns_add_u32 s80, s80, {WD}\ns_mov_b32 s81, 1024\ns_mov_b32 s88, s81\ns_mov_b32 s82, {DUMP}")
    k(f"s_branch {nm}_go")
    k.label(f"{nm}_o")
    k(f"s_sub_u32 s85, {u}, 160\ns_lshr_b32 s88, s85, 3\ns_and_b32 s85, s85, 7")
    k("s_lshl_b32 s87, s85, 1\ns_add_u32 s87, s87, s90\ns_lshl_b32 s87, s87, 6")
    k("s_add_u32 s74, s66, s87\ns_addc_u32 s75, s67, 0\ns_mov_b32 s76, s74\ns_mov_b32 s77, s75")
    k("s_mov_b32 s78, 1024\ns_lshl_b32 s79, s88, 1\ns_add_u32 s79, s79, s91\ns_lshl_b32 s79, s79, 7")
    k("s_lshl_b32 s89, s91, 15\ns_xor_b32 s90, s90, s88\ns_lshl_b32 s88, s88, 1\ns_add_u32 s90, s90, s88\ns_lshl_b32 s90, s90, 10")
    k(f"s_mul_i32 s80, s85, {WO_STR}\ns_add_u32 s80, s80, s89\ns_add_u32 s80, s80, s90\ns_add_u32 s80, s80, {WO}")
    k(f"s_mov_b32 s81, 4096\ns_mov_b32 s88, s81\ns_mov_b32 s82, {DUMP}")
    k(f"s_branch {nm}_go")
    k.label(f"{nm}_u")
    k(f"s_sub_u32 s85, {u}, 48\ns_mul_i32 s84, s85, 2341\ns_lshr_b32 s84, s84, 16\ns_mul_i32 s86, s84, 28\ns_sub_u32 s85, s85, s86")
    k(f"s_lshl_b32 s85, s85, 2\ns_add_u32 s85, s85, s{sW}\ns_lshl_b32 s87, s85, 5")
    k("s_add_u32 s74, s68, s87\ns_addc_u32 s75, s69, 0")
    k("s_add_u32 s76, s70, s87\ns_addc_u32 s77, s71, 0\ns_sub_u32 s76, s76, 32\ns_subb_u32 s77, s77, 0")
    k("s_mov_b32 s78, 3584")
    k("s_mul_i32 s86, s85, 9363\ns_lshr_b32 s86, s86, 16\ns_mul_i32 s88, s86, 7\ns_sub_u32 s88, s85, s88")
    if DN16: k("s_sub_u32 s89, 6, s88\ns_bitcmp0_b32 s86, 0\ns_cselect_b32 s88, s89, s88")
    k(f"s_mul_i32 s91, s86, {WU_STR}\ns_add_u32 s91, s91, {WU}\ns_lshl_b32 s89, s88, 10\ns_add_u32 s91, s91, s89")
    k(f"s_cmp_lt_u32 s88, 5\ns_cselect_b32 s90, 3, 5\ns_lshl_b32 s89, s90, 15\ns_add_u32 s89, s89, 1024")
    k(f"s_cmp_lt_u32 s88, 3\ns_cselect_b32 s81, 3, 2\ns_cselect_b32 s89, 0, s89\ns_cselect_b32 s90, 0, s90\ns_lshl_b32 s81, s81, 10\ns_add_u32 s91, s91, s89")
    k("s_sub_u32 s85, s88, s90\ns_lshl_b32 s85, s85, 10\ns_mov_b32 s88, 1024")
    k(f"s_branch {nm}_ext")
    k.label(f"{nm}_q")
    k(f"s_cmp_ge_u32 {u}, 24\ns_cselect_b32 s84, 2, 0\ns_cselect_b32 s86, 24, 0\ns_add_u32 s84, s84, s91\ns_sub_u32 s85, {u}, s86")
    k("s_lshl_b32 s85, s85, 1\ns_add_u32 s85, s85, s90\ns_and_b32 s86, s85, 15\ns_lshr_b32 s88, s85, 4")
    k("s_lshl_b32 s87, s85, 6\ns_lshl_b32 s89, s88, 10")
    k("s_add_u32 s74, s64, s87\ns_addc_u32 s75, s65, 0\ns_mov_b32 s76, s74\ns_mov_b32 s77, s75")
    k("s_mov_b32 s78, 3072")
    k(f"s_sub_u32 s89, s89, 1024\ns_cmp_eq_u32 s88, 0\ns_cselect_b32 s89, {66*KB}, s89\ns_cselect_b32 s81, 1, 2\ns_lshl_b32 s81, s81, 10")
    k(f"s_mul_i32 s91, s86, {WQ_STR}\ns_add_u32 s91, s91, s89\ns_add_u32 s91, s91, {WQ}\ns_mov_b32 s85, 0\ns_mov_b32 s88, s81")
    k.label(f"{nm}_ext")
    k("s_lshl_b32 s79, s84, 7")
    k("s_lshl_b32 s89, s81, 5\ns_add_u32 s82, s91, s89\ns_lshr_b32 s89, s84, 1\ns_lshl_b32 s89, s89, 9\ns_add_u32 s82, s82, s89")
    k("s_and_b32 s89, s84, 1\ns_lshl_b32 s89, s89, 3\ns_add_u32 s82, s82, s89")
    k("s_lshl_b32 s89, s81, 3\ns_mul_i32 s89, s89, s84\ns_add_u32 s80, s91, s89\ns_add_u32 s80, s80, s85")
    k.label(f"{nm}_go")
    k(f"s_cmp_ge_u32 s{sU}, 232\ns_cselect_b32 s80, {DUMP}, s80")
    k("v_bfe_u32 v4, v0, 2, 4\nv_add_u32 v4, s79, v4\nv_mul_lo_u32 v4, v4, s78")
    k("v_and_b32 v13, 3, v0\nv_lshlrev_b32 v13, 4, v13\nv_add_u32 v4, v4, v13")
    k(f"s_lshl_b32 s83, s78, 4")
    if PK_Q0: k(f"s_lshl_b32 s84, s{sW}, 13\ns_add_u32 s84, s84, {64*KB}")
    elif PK_EARLY: k(f"s_lshl_b32 s84, s{sW}, 13\ns_add_u32 s84, s84, {4*KB}")
    else: k(f"s_lshl_b32 s84, s{sW}, 14\ns_add_u32 s84, s84, {96*KB}")
    k("s_mov_b32 s86, s83\ns_mov_b32 s87, 0\ns_lshl_b32 s83, s81, 1\ns_sub_u32 s83, s83, s88\ns_mov_b32 s81, s88")
    k("v_and_b32 v13, 2, v0\nv_cmp_eq_u32 vcc, 0, v13")
    k("v_mov_b32 v14, s76\nv_mov_b32 v13, s74\nv_cndmask_b32 v14, v14, v13, vcc\nv_mov_b32 v15, s77\nv_mov_b32 v13, s75\nv_cndmask_b32 v15, v15, v13, vcc")
    k("v_add_co_u32 v4, vcc, v4, v14\nv_addc_co_u32 v5, vcc, 0, v15, vcc")
def pack_issue(k, i, sbase):
    k(f"s_add_u32 m0, s{sbase}, {i*KB}")
    if i: k("v_lshl_add_u64 v[4:5], v[4:5], 0, s[86:87]")
    return k.vm("global_load_lds_dwordx4 v[4:5], off")
def tr_addr(k, v, t):
    k(f"v_bfe_u32 v{v}, v0, 5, 1\nv_lshlrev_b32 v{v}, 9, v{v}")
    k(f"v_bfe_u32 v{t}, v0, 2, 2\nv_lshlrev_b32 v{t}, 6, v{t}\nv_add_u32 v{v}, v{v}, v{t}")
    k(f"v_bfe_u32 v{t}, v0, 4, 1\nv_lshlrev_b32 v{t}, 5, v{t}\nv_add_u32 v{v}, v{v}, v{t}")
    k(f"v_and_b32 v{t}, 1, v0\nv_lshlrev_b32 v{t}, 4, v{t}\nv_add_u32 v{v}, v{v}, v{t}")
    k(f"v_bfe_u32 v{t}, v0, 1, 1\nv_lshlrev_b32 v{t}, 3, v{t}\nv_add_u32 v{v}, v{v}, v{t}")
def ext_pair(src, dst, t0):
    return [f"v_mov_b32 v{t0}, v{src}", f"v_permlane32_swap_b32 v{src}, v{t0}", f"v_add_f32 v{src}, v{src}, v{t0}",
            f"v_cvt_pk_bf16_f32 v{dst+1}, v{src}, 0", f"v_lshlrev_b32 v{t0}, 16, v{dst+1}", f"v_sub_f32 v{src}, v{src}, v{t0}",
            f"v_cvt_pk_bf16_f32 v{dst}, v{t0}, v{src}"]
class Pack:
    def __init__(self, k): self.k = k; self.r = {}
    def issue(self, *ii):
        for i in ii: self.d = pack_issue(self.k, i, 84)
    def reads(self, *ii):
        k = self.k
        if ii[0] == 0:
            k("v_accvgpr_read_b32 v4, a212")
            k.wait(vm=self.d)
        for i in ii:
            k.lg(f"ds_read_b64_tr_b16 {ar(160+4*i,2)}, v4 offset:{i*KB}")
            self.r[i] = k.lg(f"ds_read_b64_tr_b16 {ar(162+4*i,2)}, v4 offset:{i*KB+256}")
    def csum(self, i):
        self.k.wait(lg=self.r[i])
        self.k(f"v_mfma_f32_32x32x16_bf16 {ar(196,16)}, {ar(192)}, {ar(160+4*i)}, {'0' if i == 0 else ar(196,16)}")
    def stores(self, *ii):
        k = self.k
        k.wait(lg=self.r[ii[-1]])
        for i in ii:
            k.vm(f"buffer_store_dwordx4 {ar(160+4*i)}, v{vL16}, {srd(sWS)}, s80 offen sc1")
            k(f"s_add_u32 s80, s80, s{83 if i & 1 else 81}")
    def ext(self):
        k = self.k
        k("v_accvgpr_read_b32 v13, a196")
        k("v_cvt_pk_bf16_f32 v15, v13, 0\nv_lshlrev_b32 v14, 16, v15\nv_sub_f32 v13, v13, v14\nv_cvt_pk_bf16_f32 v14, v14, v13")
        k("s_mov_b32 exec_hi, 0")
        self.s = k.vm(f"buffer_store_dwordx2 v[14:15], v{vL16}, {srd(sWS)}, s82 offen sc1")
        k("s_mov_b64 exec, -1")
    def pub(self):
        k = self.k
        k(f"s_lshl_b32 s{sF}, s{sU}, 7\ns_add_u32 s{sF}, s{sF}, {FPK}")
        publish_wg(k, self.s, xid=True)
    def schedule(self, job):
        t = PK_T0
        if not PK_EARLY:
            for i in range(4): job(t + i, lambda i=i: self.issue(2*i, 2*i+1))
            t += 4 + PK_GAP
        if PK_WIN2:
            job(t, self.pub)
            return t
        if PK_EARLY and PK_SP:
            for i in range(8): job(t + PK_SP*i, lambda i=i: self.stores(i))
            job(t + 8*PK_SP, self.ext)
            job(t + 8*PK_SP + PK_GAP2, self.pub)
            return t + 8*PK_SP + PK_GAP2
        if PK_EARLY:
            for i in range(4): job(t + i, lambda i=i: self.stores(2*i, 2*i+1))
            job(t + 4, self.ext)
            job(t + 4 + PK_GAP2, self.pub)
            return t + 4 + PK_GAP2
        job(t, lambda: self.reads(0, 1, 2, 3)); job(t + 1, lambda: self.reads(4, 5, 6, 7))
        for i in range(4):
            job(t + 2 + i, lambda i=i: self.stores(2*i, 2*i+1))
            job(t + 1 + i, lambda i=i: self.csum(2*i), e=14)
            job(t + 2 + i, lambda i=i: self.csum(2*i+1), e=0)
        job(t + 6, self.ext)
        job(t + 6 + PK_GAP2, self.pub)
        return t + 6 + PK_GAP2
def qkv_consts(vT, vRS, vR):
    return [f"v_cvt_pk_bf16_f32 v{vT}, v{vRS}, 0", f"v_lshlrev_b32 v{vT+1}, 16, v{vT}", f"v_sub_f32 v{vT+2}, v{vRS}, v{vT+1}",
            f"v_cvt_pk_bf16_f32 v{vT}, v{vT+1}, v{vT+2}", f"v_mov_b32 v{vT+1}, 0", f"v_mov_b32 v{vT+2}, 0", f"v_mov_b32 v{vT+3}, 0",
            f"v_cmp_gt_u32 vcc, 512, v{vL16}", f"v_mov_b32 v{vT+4}, 0x3f803f80", f"v_cndmask_b32 v{vT+4}, 0, v{vT+4}, vcc",
            f"v_mov_b32 v{vT+5}, 0", f"v_mov_b32 v{vT+6}, 0", f"v_mov_b32 v{vT+7}, 0",
            f"v_mul_f32 v{vRS+1}, {hex(f2u(0.25*LOG2E))}, v{vRS}",
            "v_bfe_u32 v12, v0, 4, 1", "v_lshlrev_b32 v12, 17, v12", "v_and_b32 v13, 15, v0", "v_lshlrev_b32 v13, 4, v13", "v_add_u32 v12, v12, v13",
            "v_bfe_u32 v13, v0, 5, 1", "v_lshlrev_b32 v13, 8, v13", "v_add_u32 v12, v12, v13",
            f"v_mfma_f32_32x32x16_bf16 {vr(vR,16)}, {vr(vT)}, {vr(vT+4)}, 0"]
def qk_tile(a, dst, sc, fl, p0):
    o = []
    sb, hs = (sB, KB) if dst == QF else (sCc, 128*KB)
    for half in range(2):
        p = p0 + 4*half
        for j in range(4):
            r = a + 8*half + 2*j
            o += [f"v_mul_f32 v{r}, v{r}, v{sc}", f"v_mul_f32 v{r+1}, v{r+1}, v{sc}", f"v_cvt_pk_bf16_f32 v{p+j}, v{r}, v{r+1}"]
        o += [f"s_add_u32 s{sT2}, s{sb}, {dst + half*hs}", f"buffer_store_dwordx4 {vr(p)}, v{vL16}, {srd(sWS)}, s{sT2} offen{fl}"]
    return o
def v_tile(a, L, vR, p0):
    o = [f"s_add_u32 s{sT2}, s{sCc}, {KVF(L) + KB}"]
    for u in range(2):
        p = p0 + 4*u
        for j in range(4):
            r = a + 8*u + 2*j; q = vR + 8*u + 2*j
            o += [f"v_mul_f32 v{r}, v{r}, v{q}", f"v_mul_f32 v{r+1}, v{r+1}, v{q+1}", f"v_cvt_pk_bf16_f32 v{p+j}, v{r}, v{r+1}"]
        o.append(f"buffer_store_dwordx4 {vr(p)}, v12, {srd(sWS)}, s{sT2} offen offset:{u*512} sc1")
    return o
def kv_flag(k, L, tkv):
    k(f"s_lshl_b32 s{sF}, s{sA}, 4\ns_lshr_b32 s{sT1}, s{sRB}, 2\ns_add_u32 s{sF}, s{sF}, s{sT1}\ns_lshl_b32 s{sF}, s{sF}, 7\ns_add_u32 s{sF}, s{sF}, {FKV(L)}")
    publish_wg(k, tkv)
def q_flag(k, L, tq):
    k(f"s_lshr_b32 s{sF}, s{sRB}, 3\ns_lshl_b32 s{sF}, s{sF}, 4\ns_add_u32 s{sF}, s{sF}, s{sA}\ns_lshl_b32 s{sF}, s{sF}, 3\ns_and_b32 s{sT1}, s{sRB}, 7\ns_add_u32 s{sF}, s{sF}, s{sT1}\ns_lshl_b32 s{sF}, s{sF}, 3\ns_add_u32 s{sF}, s{sF}, {FLOC(L-1,5)}")
    publish_local(k, tq, force_global=(L == 0))

WARM = True
LIN_AT = 99
LIN_U = True
Q0_ROT = True
Q0_MARKS = False
Q0_MARKJ = ()
Q0_SCHED = ((3, 4), (5,), (6,), (7,), (), (), (), ())
LATE_AT = 1
Q0_UP = 3
PK_AT = (3, 3, 4, 4, 5, 5, 6, 6)
def ph_qkv0(k, late):
    vX, vACC, vST, vEXT, vRS, vT, vR = 16, 144, 192, 8, 6, 224, 232
    vXA, vWA, vXR, vTR, vTW, vCS, vCW, vONE = 10, 12, 196, 200, 202, 204, 208, 220
    sXS, sWR, sXL, sWL = 60, 56, sD, sE
    k(f"s_lshr_b32 s{sRB}, s{sG}, 1\ns_lshl_b32 s{sRB}, s{sRB}, 2\ns_add_u32 s{sRB}, s{sRB}, s{sC3}\ns_lshl_b32 s{sRB}, s{sRB}, 2\ns_add_u32 s{sRB}, s{sRB}, s{sW}")
    k(f"s_and_b32 s{sA}, s{sG}, 1\ns_lshl_b32 s{sA}, s{sA}, 3\ns_and_b32 s{sT0}, s{sC}, 7\ns_add_u32 s{sA}, s{sA}, s{sT0}")
    k(f"v_bfe_u32 v{vXA}, v0, 3, 3\nv_lshlrev_b32 v{vXA}, 10, v{vXA}\nv_and_b32 v13, 7, v0\nv_bfe_u32 v14, v0, 4, 2\nv_xor_b32 v13, v13, v14")
    k(f"v_lshlrev_b32 v13, 4, v13\nv_add_u32 v{vXA}, v{vXA}, v13\nv_xor_b32 v{vXA+1}, 64, v{vXA}")
    k(f"v_bfe_u32 v{vWA}, v0, 2, 4\nv_mul_u32_u24 v{vWA}, 3072, v{vWA}\nv_and_b32 v13, 3, v0\nv_lshlrev_b32 v13, 4, v13\nv_add_u32 v{vWA}, v{vWA}, v13")
    k(f"s_lshl_b32 s{sX}, s{sRB}, 15")
    k(f"s_mul_i32 s{sX2}, s{sW}, 49152\ns_lshl_b32 s{sT0}, s{sA}, 6\ns_add_u32 s{sX2}, s{sX2}, s{sT0}")
    k(f"s_lshl_b32 s{sXL}, s{sW}, 14\ns_add_u32 s{sXL}, s{sXL}, {96*KB}\ns_mul_i32 s{sWL}, s{sW}, 3072")
    k("s_waitcnt lgkmcnt(0)")
    if Q0_MARKS: mark(k, 'karg')
    k(f"s_mov_b32 s{sWR}, s64\ns_and_b32 s{sWR+1}, s65, 0xffff\ns_mov_b32 s{sWR+2}, {512*3072}\ns_mov_b32 s{sWR+3}, 0x20000")
    k(f"s_and_b32 s{sXS+1}, s{sXS+1}, 0xffff\ns_mov_b32 s{sXS+2}, {2*MB}\ns_mov_b32 s{sXS+3}, 0x20000")
    ct = {}; cn = {j: 0 for j in range(8)}
    k(f"s_lshl_b32 s{sCc}, s{sC3}, 1\ns_add_u32 s{sCc}, s{sCc}, s{sC}")
    def rot(j):
        k(f"s_add_u32 s{sT3}, s{sCc}, {j}\ns_and_b32 s{sT3}, s{sT3}, {7 if Q0_ROT else 0}")
        if not Q0_ROT: k(f"s_mov_b32 s{sT3}, {j}")
        k(f"s_lshl_b32 s{sS0}, s{sT3}, 7\ns_add_u32 s{sS0}, s{sS0}, s{sX}")
        k(f"s_mul_i32 s{sS1}, s{sT3}, {4*49152}\ns_add_u32 s{sS1}, s{sS1}, s{sX2}")
    def ldW(j, t):
        k(f"s_add_u32 m0, s{sWL}, {(12*j + t)*KB}\ns_add_u32 s{sT2}, s{sS1}, {((t+1) % 3)*1024}")
        ct[j] = k.vm(f"buffer_load_dwordx4 v{vWA}, {srd(sWR)}, s{sT2} offen lds"); cn[j] += 1
    def ldX(j, i):
        if i == 0: rot(j)
        k(f"s_add_u32 m0, s{sXL}, {(j & 3)*4*KB + i*KB}\ns_add_u32 s{sT2}, s{sS0}, {i*8192}")
        ct[j] = k.vm(f"buffer_load_dwordx4 v{vXA + (i & 1)}, {srd(sXS)}, s{sT2} offen lds"); cn[j] += 1
    def chunk_loads(j):
        return [lambda i=i: ldX(j, i) for i in range(4)] + [lambda t=t: ldW(j, t) for t in range(3)]
    for f in chunk_loads(0): f()
    if Q0_MARKS: mark(k, 'up0')
    late(k)
    pack_decode(k)
    k(f"s_cmp_eq_u32 s{sW}, 0\ns_cselect_b64 s[90:91], s[68:69], s[70:71]")
    k(f"s_cmp_eq_u32 s{sW}, 2\ns_cselect_b64 s[90:91], s[72:73], s[90:91]")
    k(f"s_cmp_eq_u32 s{sW}, 3\ns_cselect_b64 s[90:91], s[66:67], s[90:91]\ns_cselect_b32 s{sT0}, 16, 56")
    k(f"s_mul_i32 s{sT1}, s{sT0}, s{sU}\ns_sub_u32 s{sT0}, s{sT0}, 1")
    k(f"v_and_b32 v254, 63, v0\nv_min_u32 v254, s{sT0}, v254\nv_add_u32 v254, s{sT1}, v254\nv_lshlrev_b32 v254, 7, v254")
    pk = G.pk = Pack(k)
    k(f"s_and_b32 s{sT0}, s{sC}, 7\ns_and_b32 s{sT1}, s{sC}, 15")
    k("v_and_b32 v13, 15, v0\nv_min_u32 v14, 13, v13")
    k(f"s_lshr_b32 s{sT2}, s{sT0}, 1\ns_add_u32 s{sT2}, s{sT2}, 176\nv_lshl_add_u32 v252, v14, 2, s{sT2}")
    k(f"s_mul_i32 s{sT2}, s{sT1}, 7\ns_add_u32 s{sT3}, s{sT2}, 6\ns_lshr_b32 s{sT2}, s{sT2}, 2\ns_lshr_b32 s{sT3}, s{sT3}, 2")
    k(f"v_lshrrev_b32 v14, 2, v13\nv_add_u32 v14, s{sT2}, v14\nv_min_u32 v14, s{sT3}, v14\nv_and_b32 v15, 3, v13\nv_mul_u32_u24 v15, 28, v15")
    k("v_add3_u32 v14, v14, v15, 48")
    k("v_and_b32 v15, 16, v0\nv_cmp_ne_u32 vcc, 0, v15\nv_cndmask_b32 v252, v252, v14, vcc")
    k(f"s_add_u32 s{sT0}, s{sT0}, 160\nv_and_b32 v14, 1, v13\nv_lshl_add_u32 v251, v14, 3, s{sT0}")
    k(f"s_lshr_b32 s{sT1}, s{sT1}, 1\nv_mul_u32_u24 v14, 24, v14\nv_lshrrev_b32 v15, 1, v13\nv_min_u32 v15, 2, v15\nv_lshlrev_b32 v15, 3, v15")
    k(f"v_add3_u32 v14, v14, v15, s{sT1}")
    k("v_cndmask_b32 v251, v251, v14, vcc")
    k(f"v_cmp_gt_u32 vcc, 512, v{vL16}\nv_cndmask_b32 v252, v251, v252, vcc\nv_lshlrev_b32 v252, 7, v252\nv_accvgpr_write_b32 a213, v252")
    if WARM:
        k("s_getpc_b64 s[88:89]")
        k.label("L_pcw")
        k(f"s_lshl_b32 s{sT0}, s{sC}, 1\ns_add_u32 s{sT0}, s{sT0}, s{sW}\ns_and_b32 s{sT0}, s{sT0}, 63\ns_lshl_b32 s{sT0}, s{sT0}, 10\ns_min_u32 s{sT0}, s{sT0}, L_end-L_pcw-1024")
        k(f"v_add_u32 v245, s{sT0}, v{vL16}")
        k(f"v_min_u32 v244, {(WS_PAGES-1)*16}, v{vL16}\nv_lshlrev_b32 v244, 17, v244")
        k(f"s_cmp_eq_u32 s{sW}, 1\ns_cselect_b64 s[88:89], s[{sAUX}:{sAUX+1}], s[88:89]")
        k(f"s_cmp_eq_u32 s{sW}, 0\ns_cselect_b64 s[88:89], s[{sWS}:{sWS+1}], s[88:89]\ns_cselect_b64 vcc, -1, 0")
        k("v_cndmask_b32 v245, v245, v244, vcc")
    if PK_Q0: pk.issue(*range(8))
    k(f"v_and_b32 v13, 31, v0\nv_bfe_u32 v14, v0, 1, 3\nv_bfe_u32 v15, v0, 5, 1\nv_xor_b32 v14, v14, v15\nv_lshlrev_b32 v14, 4, v14\nv_lshl_add_u32 v13, v13, 7, v14")
    for e in range(4):
        k(f"v_xor_b32 v{vXR+e}, {e*32}, v13\nv_add_u32 v{vXR+e}, s{sXL}, v{vXR+e}")
    tr_addr(k, vTR, 13)
    k(f"v_add_u32 v{vTR+1}, {48*KB}, v{vTR}\nv_add_u32 v{vTW}, s{sWL}, v{vTR}\nv_add_u32 v{vTW+1}, {48*KB}, v{vTW}")
    k(f"v_mov_b32 v{vONE}, 0x3f803f80\nv_add_u32 v255, s84, v{vTR}\nv_accvgpr_write_b32 a212, v255")
    for r in range(192, 196): k(f"v_accvgpr_write_b32 a{r}, v{vONE}")
    for r in list(range(vST, vST+4)) + list(range(vCS, vCS+3)): k(f"v_mov_b32 v{r}, 0")
    def reads(j):
        o = []
        for e in range(4):
            o.append(f"ds_read_b128 {vr(vX + 16*j + 4*e)}, v{vXR+e} offset:{(j & 3)*4*KB}")
        for t in range(3):
            off = (12*(j & 3) + t)*KB
            o.append(f"ds_read_b64_tr_b16 {vr(vCW+4*t,2)}, v{vTW + (j >> 2)} offset:{off}")
            o.append(f"ds_read_b64_tr_b16 {vr(vCW+4*t+2,2)}, v{vTW + (j >> 2)} offset:{off+256}")
        for b in range(12):
            off = (12*(j & 3) + b)*KB; r = 48*(j & 1) + 4*b
            o.append(f"ds_read_b64_tr_b16 {ar(r,2)}, v{vTR + (j >> 2)} offset:{off}")
            o.append(f"ds_read_b64_tr_b16 {ar(r+2,2)}, v{vTR + (j >> 2)} offset:{off+256}")
        return o
    def dots(j):
        for i in range(16):
            r = vX + 16*j + i
            k(f"v_dot2c_f32_bf16 v{vST + 2*(i & 1)}, v{vONE}, v{r}\nv_dot2c_f32_bf16 v{vST + 1 + 2*(i & 1)}, v{r}, v{r}")
        for i in range(4):
            for t in range(3): k(f"v_dot2c_f32_bf16 v{vCS+t}, v{vONE}, v{vCW+4*t+i}")
    def xid():
        k(f"s_add_u32 s{sTAG}, s{sTAG}, 0x7f4a7c15\ns_addc_u32 s{sTAG+1}, s{sTAG+1}, 0x9e3779b9")
        k("v_mov_b32 v13, 0")
        k("s_mov_b64 exec, 1")
        if FLAG_TOUCH:
            k(f"s_lshl_b32 s{sF}, s{sA}, 4\ns_lshr_b32 s{sT1}, s{sRB}, 2\ns_add_u32 s{sF}, s{sF}, s{sT1}\ns_lshl_b32 s{sF}, s{sF}, 7\ns_add_u32 s{sF}, s{sF}, {FKV(0)}")
            k.vm(f"buffer_load_dword v5, v13, {srd(sWS)}, s{sF} offen sc1")
            k(f"s_lshl_b32 s{sF}, s{sU}, 7\ns_add_u32 s{sF}, s{sF}, {FPK}")
            k.vm(f"buffer_load_dword v5, v13, {srd(sWS)}, s{sF} offen sc1")
        k("s_mov_b64 exec, -1")
    def lin_touch():
        k.vm("global_load_dword v253, v254, s[90:91]")
    side = []
    if Q0_MARKS: mark(k, 'alu')
    if WARM and WARM_AT == 0: k.vm(f"global_load_dword v253, v245, s[88:89]")
    for j in range(1, Q0_UP):
        for f in chunk_loads(j): f()
    if WARM and WARM_AT == 1: k.vm(f"global_load_dword v253, v245, s[88:89]")
    if Q0_MARKS: mark(k, 'iss')
    k.wait(vm=ct[0])
    if Q0_MARKS: mark(k, 'w0')
    k("s_barrier")
    mark(k, 'd0')
    rl = reads(0)
    for x in rl[:10]: t10 = k.lg(x)
    for x in rl[10:]: k.lg(x)
    k.wait(lg=t10)
    dots(0)
    for j in range(8):
        for c_ in Q0_SCHED[j]:
            assert c_ - 4 <= j
            side += chunk_loads(c_)
        if j == 1: side.append(xid)
        if WARM and WARM_AT == j + 2: side.append(lambda: k.vm(f"global_load_dword v253, v245, s[88:89]"))
        if PK_EARLY: side += [lambda i=i: pk.issue(i) for i in range(8) if PK_AT[i] == j]
        if j == LIN_AT and not PK_Q0: side.append(lin_touch)
        if PK_Q0:
            assert all(c_ < 5 or j > PK_RD for c_ in Q0_SCHED[j])
            if j == PK_RD: side += [lambda i=i: pk.reads(2*i, 2*i+1) for i in range(4)]
            if j == PK_ST: side += [lambda i=i: (pk.stores(i), pk.csum(i)) for i in range(4)]
            if j == PK_ST + 1: side += [lambda i=i: (pk.stores(i), pk.csum(i)) for i in range(4, 8)]
            if j == PK_ST + 2: side.append(pk.ext)
        k.wait_all(vm=False)
        rl = []
        if j < 7:
            assert cn[j+1] == 7
            k.wait(vm=ct[j+1]); k("s_barrier")
            if j in Q0_MARKJ: mark(k, f'c{j+1}')
            rl = reads(j + 1)
        t10 = None; nr = 0
        if j == 7:
            tail = f"s_lshr_b32 s{sT0}, s{sW}, 1\ns_lshl_b32 s{sT0}, s{sT0}, 9\ns_and_b32 s{sT1}, s{sW}, 1\ns_lshl_b32 s{sT1}, s{sT1}, 3\ns_add_u32 s{sT0}, s{sT0}, s{sT1}".split('\n')
            tail += [f"v_and_b32 v13, 0x1f0, v{vL16}", f"v_add_u32 v13, s{sT0}, v13"]
            for t in range(3): tail += ext_pair(vCS+t, vCW+2*t, 14) + [f"ds_write_b64 v13, {vr(vCW+2*t,2)} offset:{t*KB}"]
            fin = fin_stats(vST, vEXT, vRS)[NTREE:] + qkv_consts(vT, vRS, vR)
            tail += [f"v_add_f32 v{vST}, v{vST}, v{vST+2}", f"v_add_f32 v{vST+1}, v{vST+1}, v{vST+3}"] + fin[:18]
            tail += ["s_waitcnt lgkmcnt(0)", "s_barrier"] + [f"ds_read_b128 {vr(vCW+4*t)}, v{vL16} offset:{t*KB}" for t in range(3)] + fin[18:]
            tail += f"s_lshl_b32 s{sCc}, s{sA}, 18\ns_lshl_b32 s{sT1}, s{sRB}, 11\ns_add_u32 s{sCc}, s{sCc}, s{sT1}".split('\n')
            tail += f"s_mul_i32 s{sB}, s{sRB}, {112*KB}\ns_lshl_b32 s{sT1}, s{sA}, 11\ns_add_u32 s{sB}, s{sB}, s{sT1}".split('\n')
            assert not side
            n_ = -(-len(tail) // 12)
            side = [lambda c=tail[i:i+n_]: [k(x) for x in c] for i in range(0, len(tail), n_)]
        for b in range(12):
            ks = 4*j + b // 3; t = b % 3
            acc = vr(vACC + 16*t, 16); w = ar(48*(j & 1) + 4*b); x = vr(vX + 4*ks)
            A, B = (x, w) if t == 1 else (w, x)
            k(f"v_mfma_f32_32x32x16_bf16 {acc}, {A}, {B}, {'0' if ks == 0 else acc}")
            if ks == 0 and t == 0: mark(k, 'm0')
            for _ in range(3):
                if rl:
                    t_ = k.lg(rl.pop(0)); nr += 1
                    if nr == 10: t10 = t_
            if side: side.pop(0)()
            if len(side) > 11 - b: side.pop(0)()
        if j < 7:
            assert not rl
            k.wait(lg=t10)
            dots(j + 1)
    while side: side.pop(0)()
    mark(k, 'loop')
    k.wait_all(vm=False)
    for t in range(3):
        c = vCW + 4*t
        acc = vr(vACC + 16*t, 16)
        A, B = (vr(vEXT), vr(c)) if t == 1 else (vr(c), vr(vEXT))
        k(f"v_mfma_f32_32x32x16_bf16 {acc}, {A}, {B}, {acc}")
    t_ = None
    for x in qk_tile(vACC, KVF(0), vRS, " sc1", vX) + v_tile(vACC+16, 0, vR, vX+8) + qk_tile(vACC+32, QF, vRS+1, " sc1", vX+16):
        if x.startswith('buffer'): t_ = k.vm(x)
        else: k(x)
    mark(k, 'st')
    return t_, t_

def ph_qkv(k, L, ring, b0):
    vX, vACC, vST, vEXT, vRS, vT, vR = 16, 144, 192, 8, 6, 224, 232
    rb_128(k)
    k(f"s_and_b32 s{sA}, s{sC}, 15")
    k(f"s_lshl_b32 s{sX}, s{sRB}, 15\ns_add_u32 s{sX}, s{sX}, {XF}")
    set_lds_bases(k)
    QE = QKV_QE
    seq = [(ks, t) for ks in range(33) for t in ((0, 1, 2) if ks < QE else (0, 1))] + [(ks, 2) for ks in range(QE, 33)]
    ops = [dict(b=b0 + (2*ks + t if t < 2 else 66 + ks), bmin=b0, bmax=b0 + 98, xi=(ks if ks < 32 else None), x=(vr(vX+4*ks) if ks < 32 else vr(vEXT)),
                acc=vr(vACC+16*t, 16), swap=(t == 1), first=(ks == 0)) for ks, t in seq]
    xq = XLoader(k, 32, lambda i: vr(vX+4*i), lin_src(k))
    res = {}
    se = stats_emitters(k, vST, res)
    k(f"s_lshl_b32 s{sCc}, s{sA}, 18\ns_lshl_b32 s{sT1}, s{sRB}, 11\ns_add_u32 s{sCc}, s{sCc}, s{sT1}")
    k(f"s_mul_i32 s{sB}, s{sRB}, {112*KB}\ns_lshl_b32 s{sT1}, s{sA}, 11\ns_add_u32 s{sB}, s{sB}, s{sT1}")
    assert ring.issued == ring.total
    g = Gemm(k, ring, ops, {0})
    g.start()
    ring.issue_n(4)
    publish_local(k, G.tx)
    ring.issue_n(4)
    k(f"s_lshl_b32 s{sF}, s{sRB}, 7\ns_add_u32 s{sF}, s{sF}, {FLOC(L-1, 8)}")
    poll16(k)
    aps = stats_poll(k, FLOC(L-1,7) - FLOC(L-1,8))
    fin = fin_stats(vST, vEXT, vRS) + qkv_consts(vT, vRS, vR)
    epi = qk_tile(vACC, KVF(L), vRS, " sc1", vST) + v_tile(vACC+16, L, vR, vST+16)
    nkv = len(epi)
    if KV_LOC:
        epi += [f"s_lshl_b32 s{sE}, s{sA}, 11", f"s_add_u32 s{sE}, s{sE}, s{sB}", f"s_add_u32 s{sE}, s{sE}, {HF + 32*KB}",
                f"buffer_store_dwordx4 {vr(vST)}, v{vL16}, {srd(sWS)}, s{sE} offen",
                f"buffer_store_dwordx4 {vr(vST+4)}, v{vL16}, {srd(sWS)}, s{sE} offen offset:2048",
                "v_lshrrev_b32 v13, 6, v12", "v_and_b32 v13, 0x800, v13", "v_and_b32 v12, 0x1ff, v12", "v_add_u32 v12, v12, v13",
                f"buffer_store_dwordx4 {vr(vST+16)}, v12, {srd(sWS)}, s{sE} offen offset:1024",
                f"buffer_store_dwordx4 {vr(vST+20)}, v12, {srd(sWS)}, s{sE} offen offset:1536"]
    st = dict(i=0, j=0, t=None)
    def put(x):
        if x.startswith('buffer'): st['t'] = k.vm(x)
        else: k(x)
    def filler(m):
        if aps and m == 4: aps.issue()
        if m == 22:
            if aps: aps.check()
            for e in se: e()
        if 44 <= m < 64 + QE:
            if st['i'] == 0: k.wait(vm=res['t'])
            for _ in range(3):
                if st['i'] < len(fin): k(fin[st['i']]); st['i'] += 1
        if m >= 68 + QE:
            for _ in range(QKV_EPI):
                if st['j'] < len(epi): put(epi[st['j']]); st['j'] += 1
    g.run(xq, n0=8, filler=filler)
    while st['j'] < len(epi):
        put(epi[st['j']]); st['j'] += 1
    assert st['i'] == len(fin)
    tkv = st['t']
    for x in qk_tile(vACC + 32, QF, vRS + 1, "", vST+8): put(x)
    mark(k, 'st')
    return tkv, st['t']

def code_touch(k, vd, skip=0):
    if not CODE_TOUCH: return
    pc = k.newlabel('pc')
    k(f"s_getpc_b64 s[{sPC}:{sPC+1}]")
    k.label(pc)
    k(f"s_min_u32 s{sSPIN}, s{sCT}, L_end-{pc}-1024\ns_add_u32 s{sPC}, s{sPC}, s{sSPIN}\ns_addc_u32 s{sPC+1}, s{sPC+1}, 0")
    k.vm(f"global_load_dword v{vd}, v{vL16}, s[{sPC}:{sPC+1}] offset:{skip}")

def flag_touch(k, L, va, vd):
    if not FL_TOUCH: return
    k(f"v_bfe_u32 v{va}, v0, 3, 3\nv_lshlrev_b32 v{va}, 6, v{va}\nv_and_or_b32 v{va}, v0, 7, v{va}\nv_lshlrev_b32 v{va}, 7, v{va}")
    k(f"s_lshl_b32 s{sT3}, s{sG}, 10\ns_add_u32 s{sT3}, s{sT3}, {FLOC(L,0)}")
    k.vm(f"buffer_load_dword v{vd}, v{va}, {srd(sWS)}, s{sT3} offen sc1")

def ph_att(k, L, ring, tkv, tq):
    vO, vS0, vKV, aQ = 16, 144, 208, aWB
    NS = 4
    vS = [vS0 + 16*i for i in range(NS)]
    vK, vV, vIDX, vL128 = 6, 7, 8, 9
    sK, sHD = sB, sE
    k(f"s_lshl_b32 s{sHD}, s{sC}, 16")
    k(f"s_lshl_b32 s{sT0}, s{sC}, 17\ns_add_u32 s{sT0}, s{sT0}, s{sW4K}\ns_add_u32 s{sT0}, s{sT0}, {KVF(L)}")
    k("v_and_b32 v10, 0x33, v0\nv_bfe_u32 v11, v0, 2, 1\nv_lshlrev_b32 v11, 3, v11\nv_or_b32 v10, v10, v11")
    k(f"v_bfe_u32 v11, v0, 3, 1\nv_lshlrev_b32 v11, 2, v11\nv_or_b32 v10, v10, v11\nv_lshl_add_u32 v{vK}, v10, 4, s{sT0}")
    k(f"v_and_b32 v10, 15, v0\nv_bfe_u32 v11, v0, 5, 1\nv_lshlrev_b32 v11, 4, v11\nv_add_u32 v10, v10, v11\nv_lshl_add_u32 v{vV}, v10, 4, s{sT0}")
    k(f"v_mov_b32 v{vIDX}, 0xdddddddd\nv_lshlrev_b32 v{vL128}, 3, v{vL16}")
    k(f"s_lshl_b32 s{sK}, s{sG}, 14")
    if L and KV_LOC:
        k(f"s_lshl_b32 s{sT1}, s{sC}, 10\ns_add_u32 s{sT1}, s{sT1}, {32*KB}\ns_sub_u32 s{sT1}, s{sT0}, s{sT1}")
        k(f"v_subrev_u32 v146, s{sT1}, v{vK}\nv_subrev_u32 v147, s{sT1}, v{vV}")
    k("v_and_b32 v10, 27, v0\nv_cmp_eq_u32 vcc, 16, v10\nv_mov_b32 v11, 0x3f803f80\nv_cndmask_b32 v11, 0, v11, vcc")
    k("v_mov_b32 v144, v11")
    k(f"s_lshr_b32 s{sT0}, s{sC}, 1\ns_lshl_b32 s{sD}, s{sT0}, 11\ns_add_u32 s{sD}, s{sD}, {FKV(L)}")
    k(f"s_lshl_b32 s{sT3}, s{sG}, 8\ns_add_u32 s{sT3}, s{sT3}, s{sD}")
    if L == 0:
        k(f"v_and_b32 v11, 1, v0\nv_lshlrev_b32 v11, 7, v11\nv_add_u32 v11, s{sT3}, v11")
        k(f"v_cmp_gt_u32 vcc, 512, v{vL16}")
    k(f"s_lshr_b32 s{sT1}, s{sW}, 1\ns_lshl_b32 s{sT1}, s{sT1}, 7\ns_add_u32 s{sD}, s{sD}, s{sT1}")
    if L:
        k(f"s_add_u32 s{sT3}, s{sT3}, s{sT1}")
        k(f"s_lshl_b32 s{sT2}, s{sG}, 10\ns_lshl_b32 s{sT0}, s{sT0}, 6\ns_add_u32 s{sT2}, s{sT2}, s{sT0}\ns_add_u32 s{sT2}, s{sT2}, {FLOC(L-1,5)}")
        k(f"v_mov_b32 v12, s{sT3}\nv_and_b32 v11, 7, v0\nv_lshlrev_b32 v11, 3, v11\nv_add_u32 v11, s{sT2}, v11")
        k(f"v_cmp_gt_u32 vcc, 512, v{vL16}")
        if not KV_LOC: k("v_cndmask_b32 v11, v11, v12, vcc")
    k(f"v_and_b32 v12, 7, v0\nv_lshlrev_b32 v12, 8, v12")
    k(f"s_mul_i32 s{sT2}, s{sG}, {8*112*KB}\ns_lshl_b32 s{sT3}, s{sC}, 10\ns_add_u32 s{sT2}, s{sT2}, s{sT3}\ns_add_u32 s{sT2}, s{sT2}, {QF}")
    sQ = list(range(64, 72))
    for p in range(4):
        k(f"s_xor_b32 s{sT3}, s{sW}, {p}\ns_mul_i32 s{sT3}, s{sT3}, {2*112*KB}\ns_add_u32 s{sQ[2*p]}, s{sT3}, s{sT2}\ns_add_u32 s{sQ[2*p+1]}, s{sQ[2*p]}, {112*KB}")
    sTH, sTW, sFO = 72, 73, 79
    k(f"s_lshl_b32 s{sT3}, s{sU}, 2\ns_add_u32 s{sT3}, s{sT3}, s{sW}")
    k(f"s_mul_i32 s{sTH}, s{sT3}, {7*KB}\ns_add_u32 s{sTH}, s{sTH}, {HF}")
    k(f"s_lshl_b32 s{sT0}, s{sT3}, 11\ns_add_u32 s{sT0}, s{sT0}, {XF}\ns_lshl_b32 s{sT1}, s{sT3}, 8\ns_add_u32 s{sT1}, s{sT1}, {SX}")
    k(f"v_and_b32 v3, 0x780, v{vL128}\nv_add_u32 v3, s{sT0}, v3\nv_and_b32 v13, 0x80, v{vL128}\nv_add_u32 v13, s{sT1}, v13\nv_cndmask_b32 v3, v13, v3, vcc")
    k(f"s_lshl_b32 s{sTW}, s{sC4}, 2\ns_add_u32 s{sTW}, s{sTW}, s{sW}\ns_mul_i32 s{sTW}, s{sTW}, {TOUCH_KBS[L] * KB // 8}")
    k(f"s_add_u32 s{sTW}, s{sTW}, s{sSEG+1}\ns_add_u32 s{sTW}, s{sTW}, {32*KB}")
    k(f"s_and_b32 s{sCT}, s{sT3}, 31\ns_lshl_b32 s{sCT}, s{sCT}, 10")
    k(f"s_lshl_b32 s{sFO}, s{sG}, 2\ns_add_u32 s{sFO}, s{sFO}, s{sW}\ns_lshl_b32 s{sFO}, s{sFO}, 5\ns_add_u32 s{sFO}, s{sFO}, s{sC}\ns_lshl_b32 s{sFO}, s{sFO}, 3\ns_add_u32 s{sFO}, s{sFO}, {FLOC(L,0)}")
    for i in range(4): k(f"v_mov_b32 v{148+i}, 0")
    for q in range(8): k(f"v_mfma_f32_32x32x16_bf16 {vr(vO+16*q,16)}, {vr(148)}, {vr(148)}, 0")
    mark(k, 'pre')
    if L: q_flag(k, L, tq)
    kv_flag(k, L, tkv)
    if L == 0 and PK_Q0:
        k(f"s_lshl_b32 s{sF}, s{sU}, 7\ns_add_u32 s{sF}, s{sF}, {FPK}\nv_mov_b32 v145, v12")
        publish_wg(k, None, xid=True, barrier=False)
        k("v_mov_b32 v12, v145")
    mark(k, 'flag')
    if L == 0 and PK_EARLY:
        G.pk.reads(*range(8))
        for i in range(8): G.pk.csum(i)
        if PK_WIN2:
            G.pk.stores(*range(8)); G.pk.ext()
    if L == 0 and LIN_AT == 'flag': k.vm("global_load_dword v253, v254, s[90:91]")
    for b in range(2):
        for j in range(8): k(f"v_mov_b32 v{vKV+12*b+4+j}, v144")
    k(f"s_mov_b32 s{sF}, 0")
    flush_near(k)
    poll(k, 11, 14, sleep=SLEEP1[L])
    mark(k, 'poll')
    K = lambda t: vr(vKV + 12*(t % 4))
    V = lambda t, u: vr(vKV + 12*(t % 4) + 4 + 4*u)
    kt = {}; vt = {}
    loc = lambda t: L and KV_LOC and t < 2
    def ldK(t):
        if t and (t & 1) == 0: k(f"s_add_u32 s{sK}, s{sK}, 0x4000\ns_and_b32 s{sK}, s{sK}, 0x1ffff")
        if loc(t): kt[t] = k.vm(f"buffer_load_dwordx4 {K(t)}, v{14 if t and HEAD else 146}, {srd(sWS)}, s{sQ[t]} offen sc1")
        else: kt[t] = k.vm(f"buffer_load_dwordx4 {K(t)}, v{vK}, {srd(sWS)}, s{sK} offen offset:{(t & 1)*2*KB} sc1")
    def ldV(t):
        va, so, o = (15 if t and HEAD else 147, sQ[t], KB) if loc(t) else (vV, sK, (t & 1)*2*KB + KB)
        k(f"s_mov_b64 exec, s[{sMSK}:{sMSK+1}]")
        k.vm(f"buffer_load_dwordx4 {V(t,0)}, v{va}, {srd(sWS)}, s{so} offen offset:{o} sc1")
        vt[t] = k.vm(f"buffer_load_dwordx4 {V(t,1)}, v{va}, {srd(sWS)}, s{so} offen offset:{o+512} sc1")
        k("s_mov_b64 exec, -1")
    def ldKV(t):
        ldK(t); ldV(t); kt[t] = vt[t]
    ldK(0)
    qt = {}
    def ldQ(*ss):
        for s in ss: qt[s] = k.vm(f"buffer_load_dwordx4 {ar(aQ+4*s)}, v{vL16}, {srd(sWS)}, s{sQ[s]} offen sc1")
    if HEAD == 0:
        ldQ(0, 1, 2); ldV(0); ldQ(3, 4, 5, 6, 7); ldKV(1)
    else:
        ldQ(0, 1); ldV(0); ldQ(2)
    ap2 = apoll1(k, 12, 10, sD, sleep=SLEEP2)
    for b in range(2, 4):
        for j in range(8): k(f"v_mov_b32 v{vKV+12*b+4+j}, v144")
    NT = ATT_NT
    steps = [(t, q) for t in range(16 - NT) for q in range(8)] + [(t, q) for q in range(2, 8) for t in range(16 - NT, 16)] + [(t, q) for q in range(2) for t in range(16 - NT, 16)]
    n = len(steps)
    LA = NS - 1
    def qk(i):
        t, q = steps[i]
        k.wait(vm=max(kt[t], qt[q]) if t == 0 else kt[t])
        k(f"v_mfma_f32_32x32x16_bf16 {vr(vS[i % NS],16)}, {K(t)}, {ar(aQ+4*q)}, 0")
    def pv(i, u):
        t, q = steps[i]
        k.wait(vm=vt[t])
        k(f"v_smfmac_f32_32x32x32_bf16 {vr(vO+16*q,16)}, {V(t,u)}, {vr(vS[i % NS]+8*u,8)}, v{vIDX}")
    if HEAD == 0:
        for i in range(LA): qk(i)
    else:
        if loc(1): k("v_mov_b32 v14, v146\nv_mov_b32 v15, v147")
        qk(0); ldQ(3, 4); qk(1)
    mark(k, 'm0')
    ring.limit = 96
    jobs = {}
    def job(i, f, e=10): jobs.setdefault((i, e), []).append(f)
    if HEAD:
        job(0, lambda: qk(2), e=3)
        job(0, lambda: ldQ(5, 6, 7))
        job(1, lambda: ldKV(1), e=2)
    job(HEAD, lambda: code_touch(k, 10))
    job(P2_AT - P2_LEAD, ap2.issue)
    job(P2_AT, lambda: (ap2.check(), ldKV(2), ldKV(3)))
    for t in range(1, 13): job(8*t, lambda t=t: ldKV(t + 3))
    def kvpf(j):
        def f():
            k(f"s_add_u32 s{sT0}, s{sG}, {2*j}\nv_bfe_u32 v13, v0, 5, 1\nv_add_u32 v13, s{sT0}, v13\nv_and_b32 v13, 7, v13\nv_lshlrev_b32 v13, 14, v13")
            k(f"v_and_b32 v14, 0xf80, v{vL128}\nv_add_u32 v13, v13, v14")
            k(f"s_lshl_b32 s{sT0}, s{sC}, 17\ns_add_u32 s{sT0}, s{sT0}, s{sW4K}\ns_add_u32 s{sT0}, s{sT0}, {KVF(L)}")
            k.vm(f"buffer_load_dword v5, v13, {srd(sWS)}, s{sT0} offen sc1")
        return f
    if KV_PF[L]:
        for j in (2, 3): job(KV_PF[L] + 8*(j-2), kvpf(j))
    if L == 0:
        CHK_AT = CHK_Q0 if PK_Q0 else G.pk.schedule(job) + CHK_GAP
        apk = APoll(k, [f"buffer_load_dwordx2 v[10:11], v12, {srd(sWS)}, s{sX} offen offset:8 sc1"],
                    f"v_cmp_ne_u64 vcc, s[{sTAG}:{sTAG+1}], v[10:11]")
        def chk0():
            k(f"v_accvgpr_read_b32 v12, a213\ns_mov_b32 s{sX}, {FPK}")
            apk.issue()
        job(CHK_AT - 6, chk0)
        apx = APoll(k, [f"buffer_load_dwordx4 v[12:15], v11, {srd(sWS)}, s{sCc} offen sc1"],
                    f"v_cmp_ne_u64 vcc, s[{sTAG}:{sTAG+1}], v[14:15]")
        def mode0():
            k(f"v_and_b32 v11, 0xf80, v{vL128}\ns_lshl_b32 s{sCc}, s{sG}, 12\ns_add_u32 s{sCc}, s{sCc}, {FPK}")
            apx.issue()
        def mode():
            apx.check()
            k(f"s_xor_b32 s{sT2}, s{sTAG}, s{sXCC}")
            k(f"v_cmp_ne_u32 vcc, s{sT2}, v12")
            k(f"s_cmp_eq_u64 vcc, 0\ns_cselect_b32 s{sMODE}, 1, 0")
        job(81, mode0); job(95, mode)
        def chk():
            apk.check()
            k(f"s_and_b32 s{sT2}, s{sC}, 7\ns_lshl_b32 s{sT2}, s{sT2}, 1\ns_lshr_b32 s{sT3}, s{sW}, 1\ns_add_u32 s{sT2}, s{sT2}, s{sT3}")
            k(f"s_mul_i32 s{sT3}, s{sW}, {28*KB}\ns_add_u32 s{sT3}, s{sT3}, {WD}")
            k(f"s_mul_i32 s{sX}, s{sT2}, {112*KB}\ns_add_u32 s{sX}, s{sX}, s{sT3}")
            k(f"s_xor_b32 s{sT2}, s{sT2}, 1\ns_mul_i32 s{sX2}, s{sT2}, {112*KB}\ns_add_u32 s{sX2}, s{sX2}, s{sT3}")
        job(CHK_AT, chk)
        def wsrc(i):
            s_ = sX if i < 28 else sX2
            j = i % 28
            if j and (j & 3) == 0: k(f"s_add_u32 s{s_}, s{s_}, 4096")
            return s_, (j & 3) * KB
        if DN16:
            def wsrc(i):
                s_ = sX if i < 28 else sX2
                j = i % 28
                if j and (j & 3) == 0: k(f"s_add_u32 s{s_}, s{s_}, 4096")
                return s_, ((j >> 1) & 1) * 2048 + (j & 1) * 256
            wq = XLoader(k, 56, lambda i: ar(aWD + 16*((i % 28) >> 1) + 8*(i // 28) + 4*(i & 1)), wsrc, va=10)
            job(CHK_AT, lambda: k(f"v_and_b32 v10, 0xf0, v{vK}\nv_bfe_u32 v11, v0, 4, 2\nv_lshl_add_u32 v10, v11, 9, v10"))
        else:
            wq = XLoader(k, 56, lambda i: ar(aWD + 8*(i % 28) + 4*(i // 28)), wsrc)
        slots = [i for i in range(CHK_AT + 1, 112) if i % 8 in WD_SLOTS]
        work = [lambda: wq.issue_n(4)] * 14
        rw = [ring.issue16] * 6
        seq = []
        while work or rw:
            if work: seq.append(work.pop(0))
            if work: seq.append(work.pop(0))
            if rw: seq.append(rw.pop(0))
        assert len(seq) <= len(slots), (len(seq), len(slots))
        for i, f in zip(slots, seq): job(i, f)
    else:
        for j in range(6): job(R1_AT + R1_STEP*j, ring.issue16)
    def tch(j):
        def f():
            if j: k(f"s_add_u32 s{sTW}, s{sTW}, {TL*128}")
            elif TL < 64: k(f"v_and_b32 v4, {(TL-1)*128}, v{vL128}")
            k.vm(f"buffer_load_dword v5, v{vT_}, {srd(sWS)}, s{sTW} offen sc1")
        return f
    TL = TOUCH_LN; vT_ = vL128 if TL == 64 else 4
    for j in range(-(-TOUCH_KBS[L] // TL)): job(TOUCH_AT[L] + j*TOUCH_STEP[L], tch(j))
    def th(j):
        def f():
            if j: k(f"s_add_u32 s{sTH}, s{sTH}, {TL*128}")
            elif TL < 64: k(f"v_and_b32 v4, {(TL-1)*128}, v{vL128}")
            k.vm(f"buffer_load_dword v5, v{vT_}, {srd(sWS)}, s{sTH} offen sc1")
        return f
    TACT_AT = TACTS[L]
    if L == 0 and EARLY_H:
        job(EARLY_H, lambda: k.vm(f"buffer_load_dword v5, v{vL128}, {srd(sWS)}, s{sTH} offen sc1"))
        job(EARLY_H + 3, lambda: k.vm(f"buffer_load_dword v5, v3, {srd(sWS)}, 0 offen sc1"))
    if TACT_AT:
        for j in range(-(-56 // TL)): job(TACT_AT + j*TH_STEP, th(j))
    def tact():
        k.vm(f"buffer_load_dword v5, v3, {srd(sWS)}, 0 offen sc1")
    if TACT_AT: job(TACT_AT + 4, tact)
    if L == 0 and XRES_TOUCH:
        def xt_():
            rowmajor_addr(k, 14, sT0)
            k.vm(f"buffer_load_dword v5, v14, {srd(60)}, s{sT0} offen sc1")
        job(XRES_TOUCH, xt_)
    job(CT_AT, lambda: code_touch(k, 5))
    SC = 96 * KB
    vWA = 10
    def red_setup():
        k(f"s_lshl_b32 s{sT0}, s{sW}, 14\nv_add_u32 v13, s{sT0}, v{vL16}")
        for j in range(1, 4):
            k(f"v_xor_b32 v{vWA+j-1}, {j << 14}, v13\nv_add_u32 v{vWA+j-1}, {SC}, v{vWA+j-1}")
        k(f"v_add_u32 v13, {SC}, v13")
    job(126 - 8*NT, red_setup)
    def red_write(s, part):
        j = s >> 1; z = s & 1
        if part == 0:
            k.lg(f"ds_write_b128 v{vWA+j-1}, {vr(vO+16*s)} offset:{(z*3+j-1)*2*KB}")
            k.lg(f"ds_write_b32 v{vWA+j-1}, v{vO+16*s+8} offset:{(12+z)*KB+(j-1)*4}")
        if part == 1 or NT == 1:
            k.lg(f"ds_write_b128 v{vWA+j-1}, {vr(vO+16*s+4)} offset:{(z*3+j-1)*2*KB+KB}")
    for i in range(128):
        if steps[i][0] == 15 and steps[i][1] >= 2:
            job(i + 2, lambda s=steps[i][1]: red_write(s, 0), e=2)
            if NT > 1: job(i + 2, lambda s=steps[i][1]: red_write(s, 1))
    tl = []
    def red_read(zz):
        if zz[0] == 0:
            k.wait_all()
            k("s_barrier")
        for z in zz:
            k.lg(f"ds_read_b128 {vr(vO+32+48*z+8)}, v13 offset:{(12+z)*KB}")
            for j in range(3):
                b = vO + 32 + (z*3 + j)*16
                k.lg(f"ds_read_b128 {vr(b)}, v13 offset:{(z*3+j)*2*KB}")
                tl.append(k.lg(f"ds_read_b128 {vr(b+4)}, v13 offset:{(z*3+j)*2*KB+KB}"))
    if NT == 1: job(127, lambda: red_read((0, 1)))
    else:
        job(126, lambda: red_read((0,))); job(127, lambda: red_read((1,)), e=2)
    for i, (t, q) in enumerate(steps):
        s = vS[i % NS]
        if i in ATT_MARKS: mark(k, f's{i}')
        for e in range(16):
            if e == 2 and i > 0: pv(i-1, 1)
            if e == 6 and i + LA < n: qk(i + LA)
            if e == 10: pv(i, 0)
            for f in jobs.pop((i, e), []): f()
            k(f"v_exp_f32 v{s+e}, v{s+e}")
    pv(n-1, 1)
    assert not jobs, jobs.keys()
    assert ring.issued == 96
    mark(k, 'loop')
    for z in range(2):
        o = vO + 16*z; l = vO + 32 + 48*z + 8
        k.wait(lg=tl[z*3])
        k(f"v_add_f32 v{l}, v{l}, v{l+1}\nv_add_f32 v{o+8}, v{o+8}, v{l+2}\nv_add_f32 v{o+8}, v{o+8}, v{l}\nv_rcp_f32 v{o+9}, v{o+8}")
        for j in range(3):
            b = vO + 32 + (z*3 + j)*16
            k.wait(lg=tl[z*3+j])
            for i in range(8): k(f"v_add_f32 v{o+i}, v{o+i}, v{b+i}")
        for j in range(4):
            k(f"v_mul_f32 v{o+2*j}, v{o+2*j}, v{o+9}\nv_mul_f32 v{o+2*j+1}, v{o+2*j+1}, v{o+9}")
            k(f"v_cvt_pk_bf16_f32 v{o+12+j}, v{o+2*j}, v{o+2*j+1}")
        ts = k.vm(f"buffer_store_dwordx4 {vr(o+12)}, v{vL16}, {srd(sWS)}, s{sQ[z]} offen")
    mark(k, 'f_st')
    fb = k.newlabel('fb'); back = k.newlabel('fbret')
    LO, HI = f2u(2.0**-60), f2u(2.0**60)
    for z in range(2):
        o = vO + 16*z
        k(f"v_add_f32 v{o}, v{o}, v{o+1}\nv_add_f32 v{o+2}, v{o+2}, v{o+3}\nv_add_f32 v{o+4}, v{o+4}, v{o+5}\nv_add_f32 v{o+6}, v{o+6}, v{o+7}")
        k(f"v_add_f32 v{o}, v{o}, v{o+2}\nv_add_f32 v{o+4}, v{o+4}, v{o+6}\nv_add_f32 v{o}, v{o}, v{o+4}")
        k(f"v_fma_f32 v{o+8}, v{o}, 0, v{o+8}\nv_subrev_u32 v{o+8}, {hex(LO)}, v{o+8}")
    k(f"v_max_u32 v{vO+8}, v{vO+8}, v{vO+24}")
    k(f"v_cmp_lt_u32 vcc, {hex(0 if FORCE_FB else HI - LO)}, v{vO+8}")
    k(f"s_cbranch_vccnz {fb}")
    k.label(back)
    F = [f"{fb}:", "s_waitcnt vmcnt(0)",
         f"v_subrev_u32 v{vK}, s{sW4K}, v{vK}", f"v_subrev_u32 v{vV}, s{sW4K}, v{vV}"]
    S, C, M = vS0, vS0 + 16, vS0 + 32
    for z in range(2):
        o = vO + 16*z; Q = ar(aQ + 4*z)
        F += [f"v_mov_b32 v{M}, 0xff800000", f"s_mov_b32 s{sK}, 0", f"{fb}_a{z}:",
              f"buffer_load_dwordx4 {K(0)}, v{vK}, {srd(sWS)}, s{sK} offen sc1", "s_waitcnt vmcnt(0)",
              f"v_mfma_f32_32x32x16_bf16 {vr(S,16)}, {K(0)}, {Q}, 0"]
        F += [f"v_max3_f32 v{M}, v{M}, v{S+2*i}, v{S+2*i+1}" for i in range(8)]
        F += [f"s_add_u32 s{sK}, s{sK}, 2048", f"s_cmp_lt_u32 s{sK}, {64*2048}", f"s_cbranch_scc1 {fb}_a{z}",
              f"v_mov_b32 v{M+1}, v{M}", f"v_permlane32_swap_b32 v{M}, v{M+1}", f"v_max_f32 v{M}, v{M}, v{M+1}"]
        F += [f"v_sub_f32 v{C+i}, 0, v{M}" for i in range(16)] + [f"v_mov_b32 v{o+i}, 0" for i in range(16)]
        F += [f"s_mov_b32 s{sK}, 0", f"{fb}_b{z}:",
              f"buffer_load_dwordx4 {K(0)}, v{vK}, {srd(sWS)}, s{sK} offen sc1",
              f"s_mov_b64 exec, s[{sMSK}:{sMSK+1}]",
              f"buffer_load_dwordx4 {V(0,0)}, v{vV}, {srd(sWS)}, s{sK} offen offset:{KB} sc1",
              f"buffer_load_dwordx4 {V(0,1)}, v{vV}, {srd(sWS)}, s{sK} offen offset:{KB+512} sc1",
              "s_mov_b64 exec, -1", "s_waitcnt vmcnt(0)",
              f"v_mfma_f32_32x32x16_bf16 {vr(S,16)}, {K(0)}, {Q}, {vr(C,16)}"]
        F += [f"v_exp_f32 v{S+i}, v{S+i}" for i in range(16)]
        F += [f"v_smfmac_f32_32x32x32_bf16 {vr(o,16)}, {V(0,u)}, {vr(S+8*u,8)}, v{vIDX}" for u in range(2)]
        F += ["s_nop 15", f"s_add_u32 s{sK}, s{sK}, 2048", f"s_cmp_lt_u32 s{sK}, {64*2048}", f"s_cbranch_scc1 {fb}_b{z}",
              f"v_rcp_f32 v{o+9}, v{o+8}"]
        for j in range(4):
            F += [f"v_mul_f32 v{o+2*j}, v{o+2*j}, v{o+9}", f"v_mul_f32 v{o+2*j+1}, v{o+2*j+1}, v{o+9}", f"v_cvt_pk_bf16_f32 v{o+12+j}, v{o+2*j}, v{o+2*j+1}"]
        F += [f"buffer_store_dwordx4 {vr(o+12)}, v{vL16}, {srd(sWS)}, s{sQ[z]} offen"]
    F += ["s_waitcnt vmcnt(0)", f"s_branch {back}"]
    G.far += F
    k(f"s_mov_b32 s{sF}, s{sFO}")
    ring.end16()
    ring.limit = 144
    return ts

def load_res(k, v):
    k(f"s_add_u32 s{sT1}, s{sDST}, {XF}")
    k.vm(f"buffer_load_dwordx4 {vr(v)}, v{vL16}, {srd(sWS)}, s{sT1} offen sc1")
    return k.vm(f"buffer_load_dwordx4 {vr(v+4)}, v{vL16}, {srd(sWS)}, s{sT1} offen offset:1024 sc1")
def add_res(k, acc, v):
    for j in range(8):
        k(f"v_lshlrev_b32 v10, 16, v{v+j}\nv_and_b32 v11, 0xffff0000, v{v+j}")
        k(f"v_add_f32 v{acc+2*j}, v{acc+2*j}, v10\nv_add_f32 v{acc+2*j+1}, v{acc+2*j+1}, v11")

def ph_wo(k, L, ring, tO):
    k.label(f'L_wo{L}')
    vX, vACC, vRES, vSUM, vPK = 16, 80, 112, 120, 136
    k(f"s_lshr_b32 s{sRB}, s{sDST}, 15\ns_lshr_b32 s{sD}, s{sW}, 1")
    k(f"s_mul_i32 s{sX}, s{sRB}, {112*KB}\ns_lshl_b32 s{sT0}, s{sD}, 14\ns_add_u32 s{sX}, s{sX}, s{sT0}\ns_add_u32 s{sX}, s{sX}, {HF}")
    k(f"s_lshl_b32 s{sT0}, s{sD}, 11")
    set_lds_bases(k, sT0)
    seq = []
    for s in range(16):
        seq.append((s, 1))
        if s < 16 - WO_R0: seq.append((s, 0))
    nf = len(seq)
    seq += [(s, 0) for s in range(16 - WO_R0, 16)]
    ops = [dict(b=4*s + a, bmin=0, bmax=63, xi=s, x=vr(vX+4*s), acc=vr(vACC+16*a,16), swap=False, first=(s == 0)) for s, a in seq]
    g = Gemm(k, ring, ops, {0}, stop_issue=WO_STOP)
    rs = {}
    def ldres():
        if L == 0:
            k.vm(f"buffer_load_dwordx4 {vr(vRES)}, v8, {srd(60)}, s{sE} offen")
            rs['t'] = k.vm(f"buffer_load_dwordx4 {vr(vRES+4)}, v8, {srd(60)}, s{sE} offen offset:32")
        else:
            rs['t'] = load_res(k, vRES)
    if not RES_LATE[L]:
        if L == 0: rowmajor_addr(k, 8, sE)
        ldres()
    g.start()
    mark(k, 'f_bar')
    ring.issue_n(PRE_WO)
    publish_local(k, tO)
    mark(k, 'f_pub')
    ring.issue_n(PRE_WO2)
    k(f"s_and_b32 s{sF}, s{sRB}, 0xfe\ns_add_u32 s{sF}, s{sF}, s{sD}\ns_lshl_b32 s{sF}, s{sF}, 7\ns_add_u32 s{sF}, s{sF}, {FLOC(L,0)}")
    SC = 144 * KB
    k(f"s_xor_b32 s{sT0}, s{sW}, 2\ns_lshl_b32 s{sT0}, s{sT0}, 12\ns_add_u32 s{sT0}, s{sT0}, {SC}\nv_add_u32 v6, s{sT0}, v{vL16}")
    k(f"s_lshl_b32 s{sT0}, s{sW}, 12\ns_add_u32 s{sT0}, s{sT0}, {SC}\nv_add_u32 v7, s{sT0}, v{vL16}")
    if RES_LATE[L] and L == 0: rowmajor_addr(k, 8, sE)
    poll16(k)
    mark(k, 'f_poll')
    xq = XLoader(k, 16, lambda i: vr(vX+4*i), lin_src(k))
    xq.issue_n(WO_N0)
    if not RES_LATE[L]:
        for x in res_unpack(vSUM, vRES): k(x)
    st = {}
    def xchg(step):
        if step == 0:
            while g.nread < 32: g.rd()
            for j in range(4): k.lg(f"ds_write_b128 v6, {vr(vACC+16+4*j)} offset:{j*KB}")
        elif step == 1:
            k.wait_all(vm=False)
            ring.limit = None
            ring.sync(64, 0)
            for j in range(4): st['t'] = k.lg(f"ds_read_b128 {vr(vACC+16+4*j)}, v7 offset:{j*KB}")
        st['n'] = step + 1
    def filler(m):
        if m == max(nf + 1, 25): xchg(0)
        if m == max(nf + 4, 28): xchg(1)
    g.run(xq, n0=0, look=16, filler=filler, misc=[ldres] if RES_LATE[L] else [])
    for step in range(st.get('n', 0), 2): xchg(step)
    if RES_LATE[L]:
        k.wait(vm=rs['t'])
        for x in res_unpack(vSUM, vRES): k(x)
    k.wait(lg=st['t'])
    for i in range(16): k(f"v_add_f32 v{vSUM+i}, v{vSUM+i}, v{vACC+16+i}")
    for j in range(8):
        k(f"v_add_f32 v{vACC+2*j}, v{vACC+2*j}, v{vSUM+2*j}\nv_add_f32 v{vACC+2*j+1}, v{vACC+2*j+1}, v{vSUM+2*j+1}")
        k(f"v_cvt_pk_bf16_f32 v{vPK+j}, v{vACC+2*j}, v{vACC+2*j+1}")
    ts = store_x(k, vACC, vPK, L, 1, ring)
    mark(k, 'end')
    return ts

PASSES = ((0, 3), (3, 2), (5, 2))
PBASE = (0, 100, 166)
def ph_up(k, L, ring, b0, tprev):
    vX, vACC, vST, vEXT, vRS = 16, 144, 224, 8, 6
    sH0, sH1 = sD, sE
    rb_128(k)
    k(f"s_and_b32 s{sA}, s{sC}, 15")
    k(f"s_lshl_b32 s{sX}, s{sRB}, 15\ns_add_u32 s{sX}, s{sX}, {XF}")
    set_lds_bases(k)
    if UP16: return ph_up16(k, L, ring, b0, tprev)
    ops = []
    for (t0, nt), pb in zip(PASSES, PBASE):
        for ks in range(33):
            for t in range(t0, t0+nt):
                lo_ = b0 + pb + (ks >> 1)*2*nt
                b = lo_ + (2*(t - t0) + (ks & 1) if ks < 32 else t - t0)
                ops.append(dict(b=b, bmin=lo_, bmax=b, xi=(ks if ks < 32 else None), x=(vr(vX+4*ks) if ks < 32 else vr(vEXT)),
                                acc=vr(vACC+16*t, 16), swap=False, first=(ks == 0)))
    g = Gemm(k, ring, ops, UP_SYNCS, stop_issue=UP_STOP)
    g.start()
    mark(k, 'f_bar')
    ring.issue_n(PRE)
    publish_local(k, tprev)
    mark(k, 'f_pub')
    ring.issue_n(PRE2)
    res = {}
    se = stats_emitters(k, vST, res)
    k(f"s_mul_i32 s{sH0}, s{sRB}, 112\ns_mul_i32 s{sT2}, s{sA}, 7\ns_add_u32 s{sH0}, s{sH0}, s{sT2}\ns_lshl_b32 s{sH0}, s{sH0}, 10\ns_add_u32 s{sH0}, s{sH0}, {HF}")
    k(f"s_add_u32 s{sH1}, s{sH0}, 4096")
    k(f"s_lshl_b32 s{sF}, s{sRB}, 7\ns_add_u32 s{sF}, s{sF}, {FLOC(L,1)}")
    poll16(k)
    mark(k, 'f_poll')
    aps = stats_poll(k, FLOC(L,6) - FLOC(L,1))
    xq = XLoader(k, 32, lambda i: vr(vX+4*i), lin_src(k))
    fin = fin_stats(vST, vEXT, vRS) + [f"v_mul_f32 v{vRS}, v{vRS}, v{vRS}"]
    def epi(t):
        a = vACC + 16*t
        o = []
        for j in range(4):
            o += [f"v_mul_f32 v{a+2*j}, v{a+2*j}, v{vRS}", f"v_mul_f32 v{a+2*j+1}, v{a+2*j+1}, v{vRS}",
                  f"v_mul_f32 v{a+2*j}, v{a+2*j}, v{a+8+2*j}", f"v_mul_f32 v{a+2*j+1}, v{a+2*j+1}, v{a+9+2*j}",
                  f"v_cvt_pk_bf16_f32 v{a+8+j}, v{a+2*j}, v{a+2*j+1}"]
        o.append(f"buffer_store_dwordx4 {vr(a+8)}, v{vL16}, {srd(sWS)}, s{sH0 + (t >> 2)} offen offset:{(t & 3)*KB}")
        return o
    st = dict(i=0, t=None); q = []
    def put(x):
        if x.startswith('buffer'): st['t'] = k.vm(x)
        else: k(x)
    dn = Down(k, L)
    def filler(m):
        if aps and m == 12: aps.issue()
        if aps and m == 30: aps.check()
        if 70 <= m < 96:
            if st['i'] == 0: k.wait(vm=res['t'])
            for _ in range(2):
                if st['i'] < len(fin): k(fin[st['i']]); st['i'] += 1
        if m == 102: q.extend(sum((epi(t) for t in range(0, 3)), []))
        if m == 168: q.extend(sum((epi(t) for t in range(3, 5)), []))
        if UP4 and m == 201: q.extend(epi(5))
        for _ in range(UP_EPI):
            if q: put(q.pop(0))
        if m == 146: code_touch(k, 7)
        if m in UP_PUB:
            assert not q
            if m == UP_PUB[0]:
                k(f"s_lshl_b32 s{sF}, s{sRB}, 4\ns_add_u32 s{sF}, s{sF}, s{sA}\ns_lshl_b32 s{sF}, s{sF}, 3\ns_add_u32 s{sF}, s{sF}, {FLOC(L,9)}")
            publish_local(k, st['t'])
            k(f"s_add_u32 s{sF}, s{sF}, {8*KB}")
            if m == UP_PUB[1]: dn.xq.hold = 20
        if UP_PUB[0] < m and dn.setup:
            for _ in range(3):
                if dn.setup: k(dn.setup.pop(0))
        if m in DN_POLL: dn.ap.issue()
        if m in DN_CHK:
            dn.ap.check()
            k(f"s_add_u32 s{dn.sFl}, s{dn.sFl}, {8*KB}")
        if m > DN_CHK[0] and m % 2 and not (ring.can_issue() and m < UP_STOP): dn.xq.issue_n(1)
    if L == 0: ring.limit = 296 + QW_UP
    g.run(xq, look=UP_LOOK, filler=filler, misc=se, misc_from=32, skip=UP_SKIP[L])
    assert st['i'] == len(fin) and not dn.setup and ring.issued == min(ring.total, 296 + QW_UP)
    dn.xq.hold = 36 if len(DN_CHK) > 1 else 24
    for t in range(6 if UP4 else 5, 7):
        for i, x in enumerate(epi(t)):
            put(x)
            if i in (4, 14): dn.xq.issue_n(1)
    mark(k, 'end')
    dn.tB = st['t']
    return dn

def ph_up16(k, L, ring, b0, tprev):
    vX, vACC, vST, vEXT, vRS, vXM = 16, 144, 224, 8, 6, 12
    sH0, sH1 = sD, sE
    D, NB = 5, 8
    k(f"v_bfe_u32 v8, v0, 4, 2\nv_lshlrev_b32 v8, 9, v8\nv_and_b32 v9, 15, v0\nv_lshl_add_u32 v{vXM}, v9, 4, v8")
    k("v_and_b32 v9, 3, v0\nv_bfe_u32 v10, v0, 2, 1\nv_lshl_or_b32 v9, v10, 3, v9\nv_bfe_u32 v10, v0, 3, 1\nv_lshl_or_b32 v9, v10, 2, v9")
    k(f"v_lshl_add_u32 v{vB}, v9, 4, v8\nv_add_u32 v{vB+1}, 0x10000, v{vB}\nv_add_u32 v{vB+2}, 0x20000, v{vB}")
    units = []
    for (t0, nt), pb in zip(PASSES, PBASE):
        for K in range(16):
            for t in range(t0, t0+nt):
                for ch in range(2):
                    lo_ = b0 + pb + K*2*nt
                    units.append(dict(b=lo_ + 2*(t - t0), bmin=lo_, bmax=lo_ + 2*(t - t0) + 1, K=K, t=t, ch=ch))
        for t in range(t0, t0+nt):
            b = b0 + pb + 32*nt + t - t0
            units.append(dict(b=b, bmin=b0 + pb + 32*nt, bmax=b, K=16, t=t, e0=b0 + pb + 32*nt))
    M = len(units); syncs = sorted(UP_SYNCS)
    tl = {}; S = dict(nread=0)
    def rd():
        m = S['nread']; o = units[m]; w = aWB + 4*(m % NB)
        assert o['bmax'] < ring.visible, (m, o, ring.visible)
        a = ring.addr(o['b'])
        if o['K'] < 16:
            assert ring.addr(o['b'] + 1) == a + KB
            a += o['ch'] * 256
            tl[m] = k.lg(f"ds_read_b128 {ar(w)}, v{vB + (a >> 16)} offset:{a & 0xffff}")
        else:
            a0 = ring.addr(o['e0'])
            if o['b'] == o['e0']:
                if a0 != S['a0']: k(f"v_add_u32 v13, {a0 - S['a0']}, v13")
                S['a0'] = a0
            assert a >= a0
            k.lg(f"ds_read_b64 {ar(w,2)}, v13 offset:{a - a0}")
            tl[m] = k.lg(f"ds_read_b64 {ar(w+2,2)}, v13 offset:{a - a0 + 256}")
        S['nread'] += 1
    def need_until(m):
        nxt = [x for x in syncs if x > m]
        last = min((nxt[0] if nxt else M) - 1 + D, M - 1)
        return max(o['bmax'] for o in units[:last+1]) + 1
    ring.sync(units[0]['bmin'], need_until(0))
    for _ in range(D): rd()
    mark(k, 'f_bar')
    ring.issue_n(PRE)
    publish_local(k, tprev)
    mark(k, 'f_pub')
    res = {}
    se = stats_emitters(k, vST, res)
    k(f"s_mul_i32 s{sH0}, s{sRB}, 112\ns_mul_i32 s{sT2}, s{sA}, 7\ns_add_u32 s{sH0}, s{sH0}, s{sT2}\ns_lshl_b32 s{sH0}, s{sH0}, 10\ns_add_u32 s{sH0}, s{sH0}, {HF}")
    if DN16:
        k(f"s_bitcmp0_b32 s{sA}, 0\ns_cselect_b32 s{sH1}, -1, 1\ns_cselect_b32 s{sT2}, 7, -1\ns_lshl_b32 s{sH1}, s{sH1}, 10\ns_lshl_b32 s{sT2}, s{sT2}, 10\ns_add_u32 s{sH0}, s{sH0}, s{sT2}")
    else: k(f"s_add_u32 s{sH1}, s{sH0}, 4096")
    k(f"s_lshl_b32 s{sF}, s{sRB}, 7\ns_add_u32 s{sF}, s{sF}, {FLOC(L,1)}")
    poll16(k)
    mark(k, 'f_poll')
    aps = stats_poll(k, FLOC(L,6) - FLOC(L,1))
    def xsrc(i):
        if i and (i & 3) == 0: k(f"s_add_u32 s{sX}, s{sX}, 4096")
        return sX, ((i >> 1) & 1) * 2048 + (i & 1) * 256
    xq = XLoader(k, 32, lambda i: vr(vX+4*i), xsrc, va=vXM)
    fin = fin_stats(vST, vEXT, vRS) + [f"v_mul_f32 v{vRS}, v{vRS}, v{vRS}", f"v_permlane16_swap_b32 v{vEXT}, v{vEXT+2}", f"v_permlane16_swap_b32 v{vEXT+1}, v{vEXT+3}"]
    fin2 = [f"v_mov_b32 v{vRS+1}, v{vRS}", f"v_permlane16_swap_b32 v{vRS}, v{vRS+1}"]
    def epi(t):
        a = vACC + 16*t
        o = []
        for th in range(2):
            g_ = a + 4*th; u_ = a + 8 + 4*th
            o += [f"v_mul_f32 v{g_+j}, v{g_+j}, v{vRS+th}" for j in range(4)] + [f"v_mul_f32 v{g_+j}, v{g_+j}, v{u_+j}" for j in range(4)]
            o += [f"v_cvt_pk_bf16_f32 v{a+8+2*th}, v{g_}, v{g_+1}", f"v_cvt_pk_bf16_f32 v{a+9+2*th}, v{g_+2}, v{g_+3}"]
        if DN16: o.append(f"s_add_u32 s{sH0}, s{sH0}, s{sH1}")
        o += [f"v_permlane16_swap_b32 v{a+8}, v{a+10}", f"v_permlane16_swap_b32 v{a+9}, v{a+11}"]
        if DN16: o.append(f"buffer_store_dwordx4 {vr(a+8)}, v{vL16}, {srd(sWS)}, s{sH0} offen")
        else: o.append(f"buffer_store_dwordx4 {vr(a+8)}, v{vL16}, {srd(sWS)}, s{sH0 + (t >> 2)} offen offset:{(t & 3)*KB}")
        return o
    st = dict(t=None)
    def put(x):
        if x.startswith('buffer'): st['t'] = k.vm(x)
        else: k(x)
    dn = Down(k, L)
    if L == 0: ring.limit = 296 + QW_UP
    xq.issue_n(6)
    mem = []; alu = []; se = list(se); cur = 0; second = []
    def waits(m):
        nonlocal cur
        xs = [2*p['K'] + 1 for p in units[m:m+2] if p['K'] < 16]
        xt = None
        if xs:
            cur = max(cur, max(xs))
            while xq.n <= max(xs): xq.issue_n(1)
            xt = xq.t[max(xs)]
        n0 = len(k.L)
        k.wait(vm=xt, lg=tl[min(m + 1, M - 1)])
        return len(k.L) - n0
    def slot(first):
        if mem and (len(mem) > 1 or first): mem.pop(0)()
        elif alu and (first or not alu[0].startswith('buffer')): put(alu.pop(0))
    waits(0)
    for m, o in enumerate(units):
        if m in syncs and m > 0:
            while mem: mem.pop(0)()
            while second: second.pop()()
            ring.sync(o['bmin'], need_until(m))
        w = aWB + 4*(m % NB); a = vACC + 16*o['t']
        if o['K'] < 16:
            mm = [f"v_mfma_f32_16x16x32_bf16 {vr(a+8*o['ch']+4*th)}, {ar(w)}, {vr(vX+8*o['K']+4*th)}, {'0' if o['K'] == 0 else vr(a+8*o['ch']+4*th)}" for th in range(2)]
        else:
            mm = [f"v_mfma_f32_16x16x16_bf16 {vr(a+8*ch+4*th)}, {ar(w+2*ch,2)}, {vr(vEXT+2*th,2)}, {vr(a+8*ch+4*th)}" for ch in range(2) for th in range(2)]
        k(mm[0])
        if m == 0: mark(k, 'm0')
        if m in GEMM_MARKS.get(G.ph, ()): mark(k, f'm{m}')
        if S['nread'] < M: rd()
        else: slot(True)
        if not (m % 2 and m + 1 < M and waits(m + 1)): slot(False)
        for x in mm[1:-1]:
            k(x); slot(True); slot(False)
        k(mm[-1])
        if aps and m == 12: aps.issue()
        if aps and m == 30: aps.check()
        if m == 34:
            a0 = S['a0'] = ring.addr(b0 + 96)
            alu += f"v_and_b32 v13, 0xf0, v{vB}\nv_bfe_u32 v7, v0, 5, 1\nv_lshl_add_u32 v13, v7, 9, v13\nv_bfe_u32 v7, v0, 4, 1\nv_lshl_add_u32 v13, v7, 3, v13\nv_add_u32 v13, {a0}, v13".split('\n')
            alu += f"s_lshl_b32 s{sF}, s{sRB}, 4\ns_add_u32 s{sF}, s{sF}, s{sA}\ns_lshl_b32 s{sF}, s{sF}, 3\ns_add_u32 s{sF}, s{sF}, {FLOC(L,9)}".split('\n')
            alu += TAGMOV + [x for x in dn.setup if x.startswith('s_')]
            dn.setup = [x for x in dn.setup if not x.startswith('s_')]
            if CODE_TOUCH:
                pc = k.newlabel('pc')
                alu += [f"s_getpc_b64 s[{sPC}:{sPC+1}]\n{pc}:", f"s_min_u32 s{sT3}, s{sCT}, L_end-{pc}-1024",
                        f"s_add_u32 s{sPC}, s{sPC}, s{sT3}\ns_addc_u32 s{sPC+1}, s{sPC+1}, 0"]
        if m == U16_FIN:
            assert not alu
            k.wait(vm=res['t']); alu += fin + fin2
        if m == 95: assert not alu
        if m == 100:
            assert xq.n == xq.total
            if CODE_TOUCH: k.vm(f"global_load_dword v255, v{vL16}, s[{sPC}:{sPC+1}]")
            alu += sum((epi(t) for t in range(0, 3)), []) + dn.setup; dn.setup = []
        if m == 167: alu += sum((epi(t) for t in range(3, 5)), [])
        if m in U16_PUB:
            assert not alu, (m, len(alu))
            publish_local(k, st['t'], movs=False)
            alu.append(f"s_add_u32 s{sF}, s{sF}, {8*KB}")
            if m == U16_PUB[1]: dn.xq.hold = 20
        if m in U16_POLL: dn.ap.issue()
        if m == U16_CHK:
            dn.ap.check()
            alu += [f"s_add_u32 s{dn.sFl}, s{dn.sFl}, {8*KB}"] + TAGMOV
        if m % 2 == 0 and not mem:
            rok = second or (m < UP_STOP and (ring.can8() or (ring.can_issue() and not ring.pair)))
            mok = se and m >= 32
            if xq.n < xq.total and (xq.n - cur < UP_LOOK or not (rok or mok)): mem.append(lambda: xq.issue_n(1))
            elif mok: mem.append(se.pop(0))
            elif second: mem.append(second.pop())
            elif rok and ring.can8():
                p1, p2 = ring.parts8(); mem += p1; second += p2
            elif rok: mem += ring.parts()
            elif m > U16_CHK and dn.xq.n < dn.xq.hold: mem.append(lambda: dn.xq.issue_n(1))
        slot(True); slot(False)
    while mem: mem.pop(0)()
    while second: second.pop()()
    ring.end8()
    assert not alu and not se and ring.issued == min(ring.total, 296 + QW_UP)
    dn.xq.hold = 24
    for t in range(5, 7):
        for i, x in enumerate(epi(t)):
            put(x)
            if i in (4, 14): dn.xq.issue_n(1)
    mark(k, 'end')
    dn.tB = st['t']
    return dn

class Down:
    NX = 36
    def __init__(self, k, L):
        self.k = k; self.L = L
        sXa, sXb, sFl = sB, sX2, sCc
        self.sFl = sFl
        self.setup = (f"s_lshr_b32 s{sT0}, s{sDST}, 15\ns_mul_i32 s{sT1}, s{sW}, {28*KB}\ns_add_u32 s{sT1}, s{sT1}, {HF}\n"
                      f"s_mul_i32 s{sXa}, s{sT0}, {112*KB}\ns_add_u32 s{sXa}, s{sXa}, s{sT1}\n"
                      f"s_xor_b32 s{sT2}, s{sT0}, 1\ns_mul_i32 s{sXb}, s{sT2}, {112*KB}\ns_add_u32 s{sXb}, s{sXb}, s{sT1}\n"
                      f"v_lshlrev_b32 v12, 3, v0\nv_and_b32 v12, 0x98, v12\n"
                      f"s_and_b32 s{sFl}, s{sT0}, 0xfe\ns_lshl_b32 s{sFl}, s{sFl}, 7\ns_lshl_b32 s{sT1}, s{sW}, 5\ns_add_u32 s{sFl}, s{sFl}, s{sT1}\n"
                      f"s_add_u32 s{sFl}, s{sFl}, {FLOC(L,9)}").split('\n')
        self.order = order = [7*c + t for t0, nt in (((0, 3), (3, 2), (5, 1), (6, 1)) if UP4 else PASSES) for c in range(4) for t in range(t0, t0+nt)]
        cur = {sXa: 0, sXb: 0}
        if DN16:
            assert UP16
            self.setup = [x for x in self.setup if x.startswith('s_')]
            self.order = order = [2, 3, 4, 9, 10, 11, 1, 5, 8, 12, 0, 6, 7, 13]
            def src16(i):
                s_ = sXa if (i & 2) == 0 else sXb
                r = 2 * order[i >> 2]
                if not 0 <= r - cur[s_] < 4:
                    d = (r - cur[s_]) * KB
                    k(f"s_add_u32 s{s_}, s{s_}, {d}" if d > 0 else f"s_sub_u32 s{s_}, s{s_}, {-d}")
                    cur[s_] = r
                return s_, (r - cur[s_]) * KB + (i & 1) * 256
            self.xr = lambda i: vr(144 + 4*(i % 36) if (i % 36) < 20 else 80 + 4*((i % 36) - 20))
            self.xq = XLoader(k, 56, self.xr, src16, va=12)
            self.xq.hold = 12
            self.ap = APoll(k, ["v_lshlrev_b32 v14, 3, v0", "v_and_b32 v14, 0x98, v14",
                                f"buffer_load_dwordx2 v[14:15], v14, {srd(sWS)}, s{sFl} offen sc1"], f"v_cmp_ne_u64 vcc, s[{sTAG}:{sTAG+1}], v[14:15]")
            return
        def src(i):
            s_ = sXa if (i & 1) == 0 else sXb
            r = order[i >> 1]
            if not 0 <= r - cur[s_] < 4:
                d = (r - cur[s_]) * KB
                k(f"s_add_u32 s{s_}, s{s_}, {d}" if d > 0 else f"s_sub_u32 s{s_}, s{s_}, {-d}")
                cur[s_] = r
            return s_, (r - cur[s_]) * KB
        self.xr = lambda i: vr(144 + 4*(i % 36) if (i % 36) < 20 else 80 + 4*((i % 36) - 20))
        self.xq = XLoader(k, 56, self.xr, src)
        self.xq.hold = 12
        self.ap = apoll1(k, 12, 14, sFl)

def load_res16(k, v):
    k(f"v_and_b32 v13, 0x2f0, v{vL16}\nv_bfe_u32 v5, v0, 4, 1\nv_lshl_add_u32 v13, v5, 3, v13\ns_add_u32 s{sT1}, s{sDST}, {XF}")
    for ch in range(2):
        for th in range(2):
            t = k.vm(f"buffer_load_dwordx2 {vr(v+4*ch+2*th,2)}, v13, {srd(sWS)}, s{sT1} offen offset:{ch*KB + th*256} sc1")
    return t
def res_unpack(dst, v):
    o = []
    for j in range(8): o += [f"v_lshlrev_b32 v{dst+2*j}, 16, v{v+j}", f"v_and_b32 v{dst+2*j+1}, 0xffff0000, v{v+j}"]
    return o

def ph_down(k, L, ring, dn):
    vACC, vRES, vPK, vSUM = 16, 240, 240, 224
    final = L == 1
    xq = dn.xq; order = dn.order; NX = dn.NX
    if len(DN_CHK) > 1: xq.hold = 40
    SC = 108 * KB
    side = []
    for a in range(1, 4):
        side += f"s_xor_b32 s{sT0}, s{sW}, {a}\ns_mul_i32 s{sT0}, s{sT0}, {12*KB}\ns_add_u32 s{sT0}, s{sT0}, {SC + (a-1)*4*KB}\nv_add_u32 v{5+a}, s{sT0}, v{vL16}".split('\n')
    side += f"s_mul_i32 s{sT0}, s{sW}, {12*KB}\ns_add_u32 s{sT0}, s{sT0}, {SC}\nv_add_u32 v9, s{sT0}, v{vL16}".split('\n')
    if final and OUT_T:
        side += (f"s_and_b32 s{sT0}, s{sW}, 1\ns_mul_i32 s{sT0}, s{sT0}, {32*144}\ns_lshr_b32 s{sT2}, s{sW}, 1\ns_lshl_b32 s{sT2}, s{sT2}, 6\ns_add_u32 s{sT0}, s{sT0}, s{sT2}\n"
                 f"v_and_b32 v10, 31, v0\nv_mul_u32_u24 v10, 144, v10\nv_bfe_u32 v11, v0, 5, 1\nv_lshl_add_u32 v10, v11, 4, v10\nv_add_u32 v10, s{sT0}, v10\n"
                 f"s_mul_i32 s{sT0}, s{sW}, {16*144}\nv_bfe_u32 v13, v0, 3, 3\nv_mul_u32_u24 v11, 144, v13\nv_and_b32 v5, 7, v0\nv_lshl_add_u32 v11, v5, 4, v11\nv_add_u32 v11, s{sT0}, v11\n"
                 f"v_lshlrev_b32 v13, 10, v13\nv_lshl_add_u32 v13, v5, 4, v13\n"
                 f"s_and_b32 s{sT0}, s{sDST}, 0xffff0000\ns_lshl_b32 s{sT2}, s{sW}, 14\ns_add_u32 s{sT0}, s{sT0}, s{sT2}\n"
                 f"s_and_b32 s{sT2}, s{sC}, 7\ns_lshl_b32 s{sT2}, s{sT2}, 7\ns_add_u32 s{sT0}, s{sT0}, s{sT2}\ns_add_u32 s{sT2}, s{sT0}, 8192").split('\n')
    R, R0 = DN_R, DN_R0
    seq = []
    for s in range(28 - R):
        seq += [(s, a) for a in (3, 2, 1)]
        if s < 28 - R0: seq.append((s, 0))
    seq += [(s, a) for a in (3, 2, 1) for s in range(28 - R, 28)] + [(s, 0) for s in range(28 - R0, 28)]
    fx = (lambda s_, a_: 4*(s_ >> 1) + 2*(a_ & 1)) if DN16 else (lambda s_, a_: 2*s_ + (a_ & 1))
    lo = [min(fx(s_, a_) for s_, a_ in seq[m:]) for m in range(112)]
    wr = []; rt = None; tail = None; res = None; wb = False; adds = []
    for m, (s, a) in enumerate(seq):
        r = order[s >> 1] if DN16 else order[s]
        if len(DN_CHK) == 1 and m == DN_CHK2:
            dn.ap.check()
            k(f"s_add_u32 s{dn.sFl}, s{dn.sFl}, {8*KB}")
            xq.hold = 40
        if m == int(4*DN_PUBB): publish_local(k, dn.tB)
        if UP4 and m == DN_POLL3: dn.ap.issue()
        if UP4 and m == DN_CHK3:
            dn.ap.check()
            k(f"s_add_u32 s{dn.sFl}, s{dn.sFl}, {8*KB}")
            xq.hold = 48
        if m == 4*DN_BAR:
            ring.limit = None
            ring.sync(296, 0)
        if m == 4*DN_POLLB:
            apb = dn.ap
            apb.issue()
            rt = load_res16(k, vRES) if DN16 else load_res(k, vRES)
        if m == 4*DN_CHKB:
            apb.check()
            xq.hold = 56
            xq.issue_n(min(3, lo[m] + NX - xq.n))
        xi = fx(s, a) + (1 if DN16 else 0)
        while xq.n <= xi:
            assert xq.n < xq.hold and xq.n < lo[m] + NX
            xq.issue_n(1)
        k.wait(vm=xq.t[xi])
        if DN16:
            ch = s & 1
            for th in range(2):
                acc = vr(vACC + 16*a + 8*ch + 4*th)
                k(f"v_mfma_f32_16x16x32_bf16 {acc}, {ar(aWD + 16*r + 8*(a >> 1) + 4*ch)}, {dn.xr(xi - 1 + th)}, {'0' if s < 2 else acc}")
                if th == 0:
                    for _ in range(2):
                        if side and res: k(side.pop(0))
                        elif adds and adds[0][0] <= m:
                            _, t_, x = adds.pop(0); k.wait(lg=t_); k(x)
        else:
            acc = vr(vACC + 16*a, 16)
            k(f"v_mfma_f32_32x32x16_bf16 {acc}, {ar(aWD + 8*r + 4*(a >> 1))}, {dn.xr(xi)}, {'0' if s == 0 else acc}")
        if m == 0: mark(k, 'm0')
        if m in GEMM_MARKS.get(G.ph, ()): mark(k, f'm{m}')
        if (m % 2 == 0 or (xq.hold == 56 and m % DN_CR == 0)) and xq.n < min(lo[m] + NX, xq.total, xq.hold): xq.issue_n(1)
        elif m % 2 == 0 and xq.n == xq.total and ring.can_issue(): ring.issue()
        elif m > 4*DN_CHKB + 8:
            if res is None:
                k.wait(vm=rt); res = True
                side += res_unpack(vSUM, vRES)
            for _ in range(2 if DN16 else 4):
                if side: k(side.pop(0))
        if final and WB_MASK is not None and xq.n == xq.total and (WB_EARLY or k.vm_done == k.vm_issued) and not wb:
            wb = True; l_ = k.newlabel('wb')
            k(f"s_lshl_b32 s{sT1}, s{sC}, 2\ns_add_u32 s{sT1}, s{sT1}, s{sW}\ns_and_b32 s{sT1}, s{sT1}, {WB_MASK}")
            if WB_EARLY:
                k(f"s_cbranch_scc0 {l_}")
                k.vm(f"buffer_load_dword v15, off, {srd(sWS)}, s{dn.sFl} sc1")
                k.label(l_ + 'r')
                G.far += [f"{l_}:", "buffer_wbl2 sc1", f"s_branch {l_}r"]
            else:
                k(f"s_cbranch_scc1 {l_}")
                k("buffer_wbl2 sc1")
                k.label(l_)
            print('wbl2 at', m, file=sys.stderr)
        if wr and wr[0][0] <= m:
            assert not side
            for _ in range(min(DN_WR, len(wr))):
                if wr[0][0] <= m: k.lg(wr.pop(0)[1])
            if wr and DN_WR == 1: wr[0] = (max(wr[0][0], m + DN_WGAP), wr[0][1])
            if not wr and a == 0: tail = min(m + 2, 111)
        if s == 27 and a:
            wr += [(m + 2, f"ds_write_b128 v{5+a}, {vr(vACC+16*a+4*j)} offset:{j*KB}") for j in range(4)]
        def fetch(bs):
            k("s_barrier")
            for b in bs:
                for j in range(4): t_ = k.lg(f"ds_read_b128 {vr(vACC+16+16*b+4*j)}, v9 offset:{b*4*KB + j*KB}")
                adds.extend((m + 2, t_, f"v_add_f32 v{vSUM+i}, v{vSUM+i}, v{vACC+16+16*b+i}") for i in range(16))
        if DN_X2 and m == 112 - R0:
            assert all('ds_write_b128 v6,' in x[1] for x in wr)
            k.wait_all(vm=False)
            fetch((2, 1))
        elif tail == m:
            k.wait_all(vm=False)
            fetch((0,) if DN_X2 else (2, 1, 0))
        else:
            for _ in range(2 if DN16 else DN_ADDS):
                if adds and adds[0][0] <= m:
                    _, t_, x = adds.pop(0); k.wait(lg=t_); k(x)
    assert not side and not wr and tail is not None and tail < 112
    for _, t_, x in adds:
        k.wait(lg=t_); k(x)
    if final and not OUT_T: rowmajor_addr(k, 6, sT0)
    for j in range(8):
        k(f"v_add_f32 v{vACC+2*j}, v{vACC+2*j}, v{vSUM+2*j}\nv_add_f32 v{vACC+2*j+1}, v{vACC+2*j+1}, v{vSUM+2*j+1}")
        k(f"v_cvt_pk_bf16_f32 v{vPK+j}, v{vACC+2*j}, v{vACC+2*j+1}")
        if DN16 and j in (3, 7): k(f"v_permlane16_swap_b32 v{vPK+j-3}, v{vPK+j-1}\nv_permlane16_swap_b32 v{vPK+j-2}, v{vPK+j}")
        if final and OUT_T and j in (3, 7): k.lg(f"ds_write_b128 v10, {vr(vPK+j-3)} offset:{(j >> 2)*32}")
    if final and OUT_T:
        k.wait_all(vm=False)
        k("s_barrier")
        t0 = k.lg(f"ds_read_b128 {vr(vPK)}, v11")
        t1 = k.lg(f"ds_read_b128 {vr(vPK+4)}, v11 offset:{8*144}")
        k.wait(lg=t0)
        k.vm(f"buffer_store_dwordx4 {vr(vPK)}, v13, {srd(sAUX)}, s{sT0} offen{OUT_SC}")
        k.wait(lg=t1)
        k.vm(f"buffer_store_dwordx4 {vr(vPK+4)}, v13, {srd(sAUX)}, s{sT2} offen{OUT_SC}")
    elif final:
        k.vm(f"buffer_store_dwordx4 {vr(vPK)}, v6, {srd(sAUX)}, s{sT0} offen{OUT_SC}")
        k.vm(f"buffer_store_dwordx4 {vr(vPK+4)}, v6, {srd(sAUX)}, s{sT0} offen offset:32{OUT_SC}")
    else:
        G.tx = store_x(k, vACC, vPK, L, 8, ring, m16=DN16)
    mark(k, 'end')

def k_main(name):
    k = Asm()
    G.nst = 0
    k(f".globl {name}\n.p2align 8\n.type {name},@function")
    k.label(name)
    if STAMP or PADTO or GATE: k("s_memrealtime s[42:43]")
    mark(k, 'start')
    k("s_cmp_ge_u32 s2, 256")
    k("s_cbranch_scc1 L_abort")
    k(f"s_load_dwordx2 s[{sWS}:{sWS+1}], s[0:1], 72")
    k(f"s_load_dwordx2 s[{sAUX}:{sAUX+1}], s[0:1], 56")
    k("s_load_dwordx2 s[60:61], s[0:1], 0\ns_load_dwordx4 s[64:67], s[0:1], 8\ns_load_dwordx4 s[68:71], s[0:1], 32\ns_load_dwordx2 s[72:73], s[0:1], 48")
    if CT0:
        k("s_getpc_b64 s[88:89]")
        k(f"s_lshr_b32 s90, s2, 3\ns_and_b32 s90, s90, {CT0 - 1}\ns_lshl_b32 s90, s90, 12\nv_lshl_add_u32 v3, v0, 4, s90")
        k.vm("global_load_dword v253, v3, s[88:89]")
    k("v_lshrrev_b32 v2, 6, v0")
    k(f"v_and_b32 v{vL16}, 63, v0")
    k(f"v_readfirstlane_b32 s{sW}, v2")
    k(f"v_lshlrev_b32 v{vL16}, 4, v{vL16}")
    k(f"s_mov_b32 s{sWG}, s2\ns_and_b32 s{sG}, s2, 7\ns_lshr_b32 s{sC}, s2, 3\ns_lshl_b32 s{sW1K}, s{sW}, 10")
    k(f"s_lshr_b32 s{sC4}, s{sC}, 4\ns_lshr_b32 s{sC3}, s{sC}, 3")
    k(f"s_lshl_b32 s{sU}, s{sG}, 5\ns_add_u32 s{sU}, s{sU}, s{sC}")
    k(f"s_lshl_b32 s{sW4K}, s{sW}, 12\ns_lshl_b32 s{sW2K}, s{sW}, 11")
    k(f"s_getreg_b32 s{sXCC}, hwreg(HW_REG_XCC_ID, 0, 4)")
    k(f"v_add_u32 v{vSRC}, s{sW1K}, v{vL16}")
    k(f"s_mov_b32 s{sMSK}, 0xffff\ns_mov_b32 s{sMSK+1}, 0xffff\ns_mov_b32 s{sMODE}, 0")
    k(f"s_and_b32 s{sT0}, s{sC}, 7\ns_mul_i32 s{sSEG}, s{sT0}, {WO_STR}\ns_add_u32 s{sSEG}, s{sSEG}, {WO}")
    k(f"s_lshl_b32 s{sT1}, s{sG}, 2\ns_add_u32 s{sT1}, s{sT1}, s{sC3}\ns_lshl_b32 s{sT1}, s{sT1}, 1\ns_and_b32 s{sT2}, s{sW}, 1\ns_add_u32 s{sT1}, s{sT1}, s{sT2}")
    k(f"s_lshl_b32 s{sT1}, s{sT1}, 5\ns_lshl_b32 s{sT0}, s{sT0}, 2\ns_add_u32 s{sT1}, s{sT1}, s{sT0}\ns_and_b32 s{sT2}, s{sW}, 2\ns_add_u32 s{sT1}, s{sT1}, s{sT2}\ns_lshl_b32 s{sDST}, s{sT1}, 10")
    k(f"s_lshr_b32 s{sSD}, s{sDST}, 12\ns_lshl_b32 s{sSD}, s{sSD}, 9\ns_lshl_b32 s{sT2}, s{sT2}, 2\ns_add_u32 s{sSD}, s{sSD}, s{sT2}\ns_add_u32 s{sSD}, s{sSD}, {SX}")
    k(f"s_and_b32 s{sT0}, s{sC}, 15\ns_mul_i32 s{sSEG+1}, s{sT0}, {WU_STR}\ns_add_u32 s{sSEG+1}, s{sSEG+1}, {WU}")
    k(f"s_mul_i32 s{sSEG+2}, s{sT0}, {WQ_STR}\ns_add_u32 s{sSEG+2}, s{sSEG+2}, {WQ}")
    def late(k):
        if WSOFF: k(f"s_add_u32 s{sWS}, s{sWS}, {WSOFF}\ns_addc_u32 s{sWS+1}, s{sWS+1}, 0")
        k(f"s_add_u32 s{sT0}, s{sWS}, {EP}\ns_addc_u32 s{sT1}, s{sWS+1}, 0")
        k(f"s_load_dwordx2 s[{sTAG}:{sTAG+1}], s[{sT0}:{sT1}], 0")
        k(f"s_and_b32 s{sWS+1}, s{sWS+1}, 0xffff\ns_mov_b32 s{sWS+2}, {0x10000000 - WSOFF}\ns_mov_b32 s{sWS+3}, 0x20000")
        k(f"s_and_b32 s{sAUX+1}, s{sAUX+1}, 0xffff\ns_mov_b32 s{sAUX+2}, {2*MB}\ns_mov_b32 s{sAUX+3}, 0x20000")
    G.ph = 'qkv0'; tk = ph_qkv0(k, late)
    for L in range(2):
        ring = Ring(k, [(sSEG, 64), (sSEG+1, 232)] + ([(sSEG+2, 100)] if L == 0 else []))
        G.ph = f'att{L}'; tO = ph_att(k, L, ring, *tk)
        G.ph = f'wo{L}'; tx = ph_wo(k, L, ring, tO)
        G.ph = f'up{L}'; tB = ph_up(k, L, ring, 64, tx)
        G.ph = f'dn{L}'; ph_down(k, L, ring, tB)
        G.ph = 'qkv1'
        if L == 0: tk = ph_qkv(k, 1, ring, 296)
    k(f"s_add_u32 s{sT0}, s{sWG}, s{sW}\ns_cmp_lg_u32 s{sT0}, 0\ns_cbranch_scc1 L_fin")
    k(f"s_mov_b32 s{sF}, {EP}")
    publish_local(k, None, force_global=True)
    k.label("L_fin")
    if PADTO:
        k("s_waitcnt vmcnt(0)")
        if PADMIN:
            k("s_load_dwordx2 s[64:65], s[0:1], 64\ns_waitcnt lgkmcnt(0)")
            k("s_not_b32 s66, s42\nv_mov_b32 v8, s66\nv_mov_b32 v9, 0\ns_mov_b64 exec, 1")
            k("global_atomic_umax v9, v8, s[64:65]\ns_waitcnt vmcnt(0)")
            k.label("L_pad0")
            k(f"s_memrealtime s[98:99]\ns_waitcnt lgkmcnt(0)\ns_sub_u32 s98, s98, s42\ns_cmp_lt_u32 s98, {PADTO - 1500}\ns_cbranch_scc1 L_pad0")
            k("global_load_dword v8, v9, s[64:65] sc1\ns_waitcnt vmcnt(0)\nv_readfirstlane_b32 s66, v8\ns_not_b32 s42, s66\ns_mov_b64 exec, -1")
        k.label("L_pad")
        k(f"s_memrealtime s[98:99]\ns_waitcnt lgkmcnt(0)\ns_sub_u32 s98, s98, s42\ns_cmp_lt_u32 s98, {PADTO}\ns_cbranch_scc1 L_pad")
    if STAMP:
        k("s_waitcnt vmcnt(0)")
        G.ph = ''; mark(k, 'fin')
        k("s_memrealtime s[98:99]\ns_waitcnt lgkmcnt(0)")
        vals = [42, 98, sMODE] + STS[:G.nst]
        for i, s_ in enumerate(vals): k(f"v_mov_b32 v{16+i}, s{s_}")
        k(f"s_lshl_b32 s{sT0}, s{sWG}, 2\ns_add_u32 s{sT0}, s{sT0}, s{sW}\ns_lshl_b32 s{sT0}, s{sT0}, 7\ns_add_u32 s{sT0}, s{sT0}, {TS}")
        k("v_mov_b32 v4, 0\ns_mov_b64 exec, 1")
        for j in range(8): k(f"buffer_store_dwordx4 {vr(16+4*j)}, v4, {srd(sWS)}, s{sT0} offen offset:{16*j}")
        if DBG is not None:
            k(f"s_lshl_b32 s{sT0}, s{sWG}, 2\ns_add_u32 s{sT0}, s{sT0}, s{sW}\ns_cmp_lg_u32 s{sT0}, {DBG}\ns_cbranch_scc1 L_nodbg")
            k("s_load_dwordx2 s[64:65], s[0:1], 64\ns_waitcnt lgkmcnt(0)")
            for i in range(16): k(f"v_sub_u32 v{64+i}, v{20+i}, v19")
            for j in range(4): k(f"global_store_dwordx4 v4, {vr(64+4*j)}, s[64:65] offset:{16*j}")
            k.label("L_nodbg")
    k("s_waitcnt vmcnt(0)")
    k.label("L_abort")
    k("s_endpgm")
    for x in G.near + G.far:
        if x.endswith(':'): k.label(x[:-1])
        else: k(x)
    k.label("L_end")
    return k

def build():
    name = NAME + "_kernel"
    k = k_main(name)
    nn = k.fix()
    print(f"{len(k.L)} lines, {nn} nop states", file=sys.stderr)
    head = f"; stamps: {','.join(G.names)}\n" if (STAMP or not FINAL) else HDR
    return f"""{head}; @launch grid=(256,1,1) block=(256,1,1) lds={160*KB}
.amdgcn_target "amdgcn-amd-amdhsa--gfx950"
.text
{k.text()}
.section .rodata,"a"
.p2align 6
.amdhsa_kernel {name}
  .amdhsa_next_free_vgpr 512
  .amdhsa_next_free_sgpr 102
  .amdhsa_accum_offset 256
  .amdhsa_group_segment_fixed_size 0
  .amdhsa_kernarg_size 80
  .amdhsa_user_sgpr_count 2
  .amdhsa_user_sgpr_kernarg_segment_ptr 1
  .amdhsa_system_sgpr_workgroup_id_x 1
.end_amdhsa_kernel
"""

if __name__ == "__main__":
    for a in sys.argv[2:]:
        kk_, vv_ = a.split('=', 1)
        globals()[kk_] = eval(vv_)
    open(sys.argv[1], "w").write(build())
```

```python
import sys, struct
from asmlib import Asm

NAME = "interleave_layers__mha_block__glu_gated_bilinear__prompt"
KB = 1024; MB = KB * KB
LOG2E = 1.4426950408889634
def f2u(x): return struct.unpack('<I', struct.pack('<f', x))[0]
def srd(b): return f"s[{b}:{b+3}]"
def vr(b, n=4): return f"v[{b}:{b+n-1}]"
def ar(b, n=4): return f"a[{b}:{b+n-1}]"

WQ = 0;                    WQ_STR = 100 * KB
WO = WQ + 16 * WQ_STR;     WO_STR = 64 * KB
WU = WO + 8 * WO_STR;      WU_STR = 232 * KB
WD = WU + 16 * WU_STR
FL = 7 * MB + 640 * KB
assert WD + 16 * 112 * KB <= FL
EP = FL
XID = FL + 1 * KB
def FLOC(L, p): return FL + 4 * KB + (L * 13 + p) * 8 * KB
FKV0 = FL + 4 * KB + 26 * 8 * KB
def FKV(L): return FKV0 + L * 32 * KB
FPK = FKV0 + 64 * KB
assert FPK + 32 * KB <= 8 * MB
XF = 8 * MB
HF = 10 * MB
QF = HF
SX = 17 * MB
SG = SX + 512 * KB
def KVF(L): return 18 * MB + L * 4 * MB
WS_PAGES = 13
TS = 27 * MB
DUMP = 0x7ff00000

STAMP = False
PK_WAIT = 0; PUB_AT = 15
QF_AT = 1
PREFILL = 128; A1_AT = (2, 4); KVF_AT = (3, 0); P2 = ((6, 7), (5, 8)); Q0_RSH = 1
Q0G = False; Q0_ST0 = 24; Q0_GLD = 5
DIAG_W = False
U16_HOLD = 999; U16_BIG = False
DN16 = False
UP16 = True; U16_FIN = 64; U16_PUB = (156, 206); U16_POLL = (174, 226); U16_CHK = 188; U16_SLOTS = 3
FL1 = False; PP_SLEEP = 1
FINAL = False
HDR = "; Two transformer layers (LN -> MHA -> residual, LN -> bilinear GLU -> residual) in ONE persistent launch:\n;    finite, else the wave recomputes its rows with the true row maximum subtracted (labels fb_*).\n"
NEAR = True; CT0 = 8
GATE = None
WB_EARLY = False
DIAG_NOP = {}
UP4 = False; DN_POLL3 = 18; DN_CHK3 = 30
DN_X2 = True; DN_ADDS = 5; DN_CR = 2
RES_LATE = (False, False); XRES_TOUCH = 0
HEAD = 0
QKV_QE = 6; QKV_EPI = 5
R1_AT = 36; R1_STEP = 8
KV_LOC = True
PADTO = 0; PADMIN = False
OUT_T = True
ATT_NT = 2
PK_WIN2 = False; PK_SP = 0
WARM_AT = 1
RT = False
DN_CHK2 = 4
CT_AT = 92
FORCE_FB = False
WB_MASK = 127; OUT_SC = ' sc1'; DN_WR = 1; DN_WGAP = 2
QW_LATE = False; QW_UP = 64; QW_TOUCH = (72, 100); QW_N1 = 4
PK_Q0 = False; PK_RD = 1; PK_ST = 3; CHK_Q0 = 15
WO_STOP = 26; WO_R0 = 8; WO_N0 = 10; ST_PRE = 2; PPOLL = 0; KV_PF = (0, 0); PK_EARLY = True
FL_TOUCH = False
SPLIT_ST = True
FINE = False
UP_EPI = 2; UP_PUB = (154, 206); DN_POLL = (172, 226); DN_CHK = (186,); UP_LOOK = 8; UP_SYNCS = {0, 48, 80, 112, 144, 176, 200}; UP_SKIP = (0, 0); UP_STOP = 222
DN_PUBB = 4; DN_BAR = 14; DN_POLLB = 7; DN_CHKB = 12; DN_R = 8; DN_R0 = 12
FLAG_TOUCH = False
WSOFF = 0
SLEEP1 = (0, 0); SLEEP2 = 0; SLEEP3 = 0
DBG = None
PRE = 4; PRE2 = 0
PRE_WO = 5; PRE_WO2 = 0
CODE_TOUCH = True
WD_SLOTS = (2, 4, 6)
TOUCH_AT = (99, 98); TOUCH_STEP = (2, 2); TOUCH_LN = 32; TH_STEP = 3; TOUCH_KBS = (64, 64)
RING = 144
PK_T0 = 11; PK_GAP = 6; PK_GAP2 = 9; CHK_GAP = 14
P2_AT = 6
P2_LEAD = 4
TACTS = (103, 102); EARLY_H = 0

sC4, sC3 = 2, 3
sWS, sAUX = 4, 8
sW, sG, sC, sW1K = 12, 13, 14, 15
sT0, sT1, sT2, sT3 = 16, 17, 18, 19
sX, sRS, sRB = 20, 21, 22
sA, sB, sCc, sD, sE = 23, 24, 25, 26, 27
sS0, sS1 = 28, 21
sMSK, sTAG, sMODE, sXCC = 30, 32, 34, 35
sSEG = 36
sX2 = 39
sSPIN, sF = 40, 41
STS = list(range(44, 56, 2)) + [92, 94, 56, 58, 74, 76, 80, 82, 86, 88, 60, 62]
sWG = 101
sW4K = 97
sW2K = 99
sSD = 29
sPC, sCT = 90, 85
sDST = 100
vL16, vSRC, vB = 1, 2, 3
aWD, aWB = 0, 224

class G:
    nst = 0
    names = []
    far = []
    near = []
    ph = ''
SKIP = ''
ATT_MARKS = ()
GEMM_MARKS = {}
def mark(k, nm='x'):
    import re
    nm = G.ph + '_' + nm
    if GATE and GATE[0] == nm:
        k.label("L_gate")
        k(f"s_memrealtime s[98:99]\ns_waitcnt lgkmcnt(0)\ns_sub_u32 s98, s98, s42\ns_cmp_lt_u32 s98, {GATE[1]}\ns_cbranch_scc1 L_gate")
    if SKIP and re.match(SKIP, nm): return
    if '_f_' in nm and not FINE: return
    if STAMP:
        G.names.append(nm)
        k(f"s_mem{'real' if RT else ''}time s[{STS[G.nst]}:{STS[G.nst]+1}]")
        G.nst += 1

class Ring:
    def __init__(self, k, segs):
        self.k = k; self.N = RING
        self.total = sum(n for _, n in segs)
        self.starts = {}
        b = 0
        for s, n in segs:
            assert n % 4 == 0
            self.starts[b] = s; b += n
        self.issued = 0; self.freed = 0; self.visible = 0
        self.limit = None
        self.tick = {}
        self.pair = False
    def can_issue(self):
        if self.limit is not None and self.issued + 4 > self.limit: return False
        return self.issued < self.total and self.issued + 4 <= self.freed + self.N
    def issue(self):
        k = self.k
        assert self.can_issue()
        slot = self.issued % self.N
        k(f"s_add_u32 m0, s{sW1K}, {slot*KB}")
        if self.issued in self.starts: k(f"s_mov_b32 s{sRS}, s{self.starts[self.issued]}")
        else: k(f"s_add_u32 s{sRS}, s{sRS}, 4096")
        self.tick[self.issued // 4] = k.vm(f"buffer_load_dwordx4 v{vSRC}, {srd(sWS)}, s{sRS} offen sc1 lds")
        self.issued += 4
    def parts(self):
        k = self.k
        assert self.can_issue()
        b = self.issued; self.issued += 4
        def ld(): self.tick[b // 4] = k.vm(f"buffer_load_dwordx4 v{vSRC}, {srd(sWS)}, s{sRS} offen sc1 lds")
        return [lambda: k(f"s_add_u32 m0, s{sW1K}, {(b % self.N)*KB}"),
                lambda: k(f"s_mov_b32 s{sRS}, s{self.starts[b]}" if b in self.starts else f"s_add_u32 s{sRS}, s{sRS}, 4096"), ld]
    def can8(self):
        b = self.issued
        if b % 8 or (b + 4) in self.starts or b + 8 > self.total or b + 8 > self.freed + self.N: return False
        return self.limit is None or b + 8 <= self.limit
    def parts8(self):
        k = self.k
        b = self.issued; self.issued += 8
        first = not self.pair; self.pair = True
        def src():
            if b in self.starts: k(f"s_add_u32 s{sRS}, s{self.starts[b]}, s{sW1K}")
            elif first: k(f"s_add_u32 s{sRS}, s{sRS}, 4096\ns_add_u32 s{sRS}, s{sRS}, s{sW1K}")
            else: k(f"s_add_u32 s{sRS}, s{sRS}, 8192")
        def ld1(): self.tick[b // 4] = self.tick[b // 4 + 1] = k.vm(f"buffer_load_dwordx4 v{vSRC}, {srd(sWS)}, s{sRS} offen offset:1024 sc1 lds")
        return [lambda: k(f"s_add_u32 m0, s{sW2K}, {(b % self.N)*KB}"), src,
                lambda: k.vm(f"buffer_load_dwordx4 v{vSRC}, {srd(sWS)}, s{sRS} offen sc1 lds")], [ld1]
    def end8(self):
        if self.pair:
            self.k(f"s_add_u32 s{sRS}, s{sRS}, 4096\ns_sub_u32 s{sRS}, s{sRS}, s{sW1K}")
            self.pair = False
    def issue16(self):
        k = self.k
        b = self.issued; slot = b % self.N
        assert slot + 16 <= self.N and b + 16 <= min(self.limit or 1 << 30, self.freed + self.N)
        assert not any(x in self.starts for x in range(b + 1, b + 16))
        k(f"s_add_u32 m0, s{sW4K}, {slot*KB}")
        if b in self.starts: k(f"s_add_u32 s{sRS}, s{self.starts[b]}, s{sW4K}")
        else: k(f"s_add_u32 s{sRS}, s{sRS}, 16384")
        for i in range(4):
            t = k.vm(f"buffer_load_dwordx4 v{vL16}, {srd(sWS)}, s{sRS} offen offset:{i*KB} sc1 lds")
        for q in range(4): self.tick[b // 4 + q] = t
        self.issued += 16
    def end16(self):
        self.k(f"s_sub_u32 s{sRS}, s{sRS}, s{sW4K}\ns_add_u32 s{sRS}, s{sRS}, 12288")
    def issue_n(self, n):
        for _ in range(n):
            if self.can_issue(): self.issue()
    def sync(self, consumed, need):
        k = self.k
        need = min(need, self.total)
        if need > self.visible:
            q = (need - 1) // 4
            assert q * 4 < self.issued, (need, self.issued)
            k.wait(vm=self.tick[q])
        k("s_barrier")
        q = self.visible // 4
        while q in self.tick and self.tick[q] <= k.vm_done: q += 1
        self.visible = q * 4
        assert self.visible >= need
        self.freed = max(self.freed, (consumed // 4) * 4)
    def addr(self, b): return (b % self.N) * KB

def set_lds_bases(k, extra_s=None):
    if extra_s is None: k(f"v_mov_b32 v{vB}, v{vL16}")
    else: k(f"v_add_u32 v{vB}, s{extra_s}, v{vL16}")
    k(f"v_add_u32 v{vB+1}, 0x10000, v{vB}")
    k(f"v_add_u32 v{vB+2}, 0x20000, v{vB}")

class XLoader:
    def __init__(self, k, total, reg, src, va=vL16):
        self.k = k; self.total = total; self.reg = reg; self.src = src; self.n = 0; self.t = []; self.va = va
        self.hold = total
    def issue_n(self, n):
        k = self.k
        for _ in range(n):
            i = self.n
            if i >= min(self.total, self.hold): return
            s_, imm = self.src(i)
            self.t.append(k.vm(f"buffer_load_dwordx4 {self.reg(i)}, v{self.va}, {srd(sWS)}, s{s_} offen offset:{imm} sc1"))
            self.n += 1
def lin_src(k):
    def f(i):
        if i and (i & 3) == 0: k(f"s_add_u32 s{sX}, s{sX}, 4096")
        return sX, (i & 3) * KB
    return f

class Gemm:
    def __init__(self, k, ring, ops, syncs, D=4, NB=8, stop_issue=None):
        self.k = k; self.ring = ring; self.ops = ops; self.syncs = sorted(syncs)
        assert all(x % 2 == 0 for x in syncs)
        self.D = D; self.NB = NB; self.tl = {}; self.nread = 0
        self.stop = stop_issue if stop_issue is not None else len(ops)
    def rd(self):
        k = self.k; m = self.nread; o = self.ops[m]
        assert o['bmax'] < self.ring.visible, (m, o['b'], self.ring.visible)
        a = self.ring.addr(o['b'])
        self.tl[m] = k.lg(f"ds_read_b128 {ar(aWB + 4*(m % self.NB))}, v{vB + (a >> 16)} offset:{a & 0xffff}")
        self.nread += 1
    def need_until(self, m):
        M = len(self.ops)
        nxt = [s for s in self.syncs if s > m]
        last = min((nxt[0] if nxt else M) - 1 + self.D, M - 1)
        return max(o['bmax'] for o in self.ops[:last+1]) + 1
    def start(self):
        self.ring.sync(self.ops[0]['bmin'], self.need_until(0))
        while self.nread < min(self.D, len(self.ops)): self.rd()
    def run(self, xq, n0=6, look=10, filler=None, misc=(), misc_from=0, skip=0):
        k = self.k; M = len(self.ops)
        misc = list(misc)
        xq.issue_n(n0)
        cur = 0
        for m in range(M):
            if m in self.syncs and m > 0:
                self.ring.sync(self.ops[m]['bmin'], self.need_until(m))
            o = self.ops[m]
            xt = None
            if m % 2 == 0:
                xs = [p['xi'] for p in self.ops[m:m+2] if p.get('xi') is not None]
                if xs:
                    cur = max(cur, max(xs))
                    while xq.n <= max(xs): xq.issue_n(1)
                    xt = xq.t[max(xs)]
                k.wait(vm=xt, lg=self.tl[min(m + 1, M - 1)])
            w = ar(aWB + 4*(m % self.NB))
            c = o.get('c0', '0') if o['first'] else o['acc']
            A, B = (o['x'], w) if o['swap'] else (w, o['x'])
            k(f"v_mfma_f32_32x32x16_bf16 {o['acc']}, {A}, {B}, {c}")
            if m == 0: mark(k, 'm0')
            if m in GEMM_MARKS.get(G.ph, ()): mark(k, f'm{m}')
            if m % 2 == 0:
                for _ in range(2):
                    if self.nread < M: self.rd()
                if DIAG_NOP.get(G.ph): k(f"s_nop {DIAG_NOP[G.ph]}")
            elif not (skip and m % skip == skip - 1):
                rok = m < self.stop and self.ring.can_issue()
                if xq.n < xq.total and (xq.n - cur < look or not (rok or (misc and m >= misc_from))): xq.issue_n(1)
                elif misc and m >= misc_from: misc.pop(0)()
                elif rok: self.ring.issue()
            if filler: filler(m)
        assert not misc

def stats_emitters(k, vt, res):
    k(f"s_lshl_b32 s{sS0}, s{sRB}, 12\ns_add_u32 s{sS0}, s{sS0}, {SX}")
    def mk(i):
        def f(): res['t'] = k.vm(f"buffer_load_dwordx4 {vr(vt+4*i)}, v{vL16}, {srd(sWS)}, s{sS0} offen offset:{i*KB} sc1")
        return f
    return [mk(i) for i in range(4)]

NTREE = 14
def fin_stats(vt, vext, vrstd):
    ins = []
    n = 8
    while n > 1:
        h = n // 2
        for i in range(h):
            ins.append(f"v_add_f32 v{vt+2*i}, v{vt+2*i}, v{vt+2*(i+h)}")
            ins.append(f"v_add_f32 v{vt+2*i+1}, v{vt+2*i+1}, v{vt+2*(i+h)+1}")
        n = h
    a, b, c, d = vt, vt+1, vt+2, vt+3
    ins += [f"v_mov_b32 v{c}, v{a}", f"v_mov_b32 v{d}, v{b}",
            f"v_permlane32_swap_b32 v{a}, v{c}", f"v_permlane32_swap_b32 v{b}, v{d}",
            f"v_add_f32 v{a}, v{a}, v{c}", f"v_add_f32 v{b}, v{b}, v{d}",
            f"v_mul_f32 v{a}, {hex(f2u(-1.0/512))}, v{a}",
            f"v_mul_f32 v{b}, {hex(f2u(1.0/512))}, v{b}",
            f"v_fma_f32 v{b}, -v{a}, v{a}, v{b}",
            f"v_max_f32 v{b}, 0, v{b}",
            f"v_add_f32 v{b}, {hex(f2u(1e-5))}, v{b}",
            f"v_rsq_f32 v{vrstd}, v{b}",
            f"v_cvt_pk_bf16_f32 v{vext}, v{a}, v{a}",
            f"v_and_b32 v{c}, 0xffff0000, v{vext}",
            f"v_sub_f32 v{c}, v{a}, v{c}",
            f"v_cvt_pk_bf16_f32 v{vext+1}, v{c}, 0",
            f"v_mov_b32 v{vext+2}, v{vext}", f"v_mov_b32 v{vext+3}, v{vext+1}"]
    return ins

def poll(k, vaddr, vpd, sleep=0):
    l = k.newlabel('poll')
    k(f"s_mov_b32 s{sSPIN}, 0x40000")
    k.label(l)
    k.vm(f"buffer_load_dwordx2 {vr(vpd,2)}, v{vaddr}, {srd(sWS)}, s{sF} offen sc1")
    k(f"s_sub_u32 s{sSPIN}, s{sSPIN}, 1")
    k("s_cbranch_scc1 L_abort")
    k.wait_all(lg=False)
    k(f"v_cmp_ne_u64 vcc, s[{sTAG}:{sTAG+1}], {vr(vpd,2)}")
    k(f"s_cbranch_vccnz {l}")
class APoll:
    def __init__(self, k, loads, cmp, sleep=0):
        self.k = k; self.loads = loads; self.cmp = cmp; self.sleep = sleep
    def issue(self):
        for x in self.loads:
            if x.startswith('buffer'): self.t = self.k.vm(x)
            else: self.k(x)
    def check(self):
        k = self.k
        l = k.newlabel('ap'); ok = k.newlabel('apok')
        k.wait(vm=self.t)
        k(self.cmp)
        k(f"s_cbranch_vccnz {l}")
        k.label(ok)
        (G.near if NEAR else G.far).extend([f"{l}:", f"s_mov_b32 s{sSPIN}, 0x40000", f"{l}_l:"] + list(self.loads) + [
            f"s_sub_u32 s{sSPIN}, s{sSPIN}, 1", "s_cbranch_scc1 L_abort", "s_waitcnt vmcnt(0)", self.cmp,
            f"s_cbranch_vccnz {l}_l", f"s_branch {ok}"])
def flush_near(k):
    if not G.near: return
    l = k.newlabel('nr')
    k(f"s_branch {l}")
    for x in G.near:
        if x.endswith(':'): k.label(x[:-1])
        else: k(x)
    k.label(l)
    G.near.clear()
def apoll1(k, vaddr, vpd, soff, sleep=0):
    return APoll(k, [f"buffer_load_dwordx2 {vr(vpd,2)}, v{vaddr}, {srd(sWS)}, s{soff} offen sc1"],
                 f"v_cmp_ne_u64 vcc, s[{sTAG}:{sTAG+1}], {vr(vpd,2)}", sleep)
def ppoll(k, vaddr, vd, n):
    l = k.newlabel('pp'); ok = k.newlabel('ppok')
    ld = lambda i: f"buffer_load_dwordx2 {vr(vd+2*i,2)}, v{vaddr}, {srd(sWS)}, s{sF} offen sc1"
    k(f"s_mov_b32 s{sSPIN}, 0x20000")
    for i in range(n - 1): k(ld(i))
    k.label(l)
    for i in range(n):
        k(ld((i + n - 1) % n))
        k(f"s_waitcnt vmcnt({n-1})")
        k(f"v_cmp_ne_u64 vcc, s[{sTAG}:{sTAG+1}], {vr(vd+2*i,2)}")
        k(f"s_cbranch_vccz {ok}")
        if PP_SLEEP: k(f"s_sleep {PP_SLEEP}")
    k(f"s_sub_u32 s{sSPIN}, s{sSPIN}, 1")
    k(f"s_cbranch_scc0 {l}")
    k("s_branch L_abort")
    k.label(ok)
    k.vm_done = k.vm_issued
def poll16(k):
    flush_near(k)
    k("v_and_b32 v13, 15, v0\nv_lshlrev_b32 v13, 3, v13")
    if PPOLL: ppoll(k, 13, 248, PPOLL)
    else: poll(k, 13, 14)

TAGMOV = [f"v_mov_b32 v14, s{sTAG}", f"v_mov_b32 v15, s{sTAG+1}"]
def publish_local(k, last_store, force_global=False, movs=True):
    if movs:
        for x in TAGMOV: k(x)
    if force_global:
        k.wait(vm=last_store)
        k.vm(f"buffer_store_dwordx2 v[14:15], off, {srd(sWS)}, s{sF} sc1")
        return
    slow = k.newlabel('slow'); join = k.newlabel('join')
    k(f"s_cmp_eq_u32 s{sMODE}, 0")
    k(f"s_cbranch_scc1 {slow}")
    if FL1: k("s_mov_b64 exec, 1")
    k.wait(vm=last_store)
    k.vm(f"buffer_store_dwordx2 v[14:15], off, {srd(sWS)}, s{sF}")
    if FL1: k("s_mov_b64 exec, -1")
    k.label(join)
    G.far += [f"{slow}:", "s_waitcnt vmcnt(0)", "buffer_wbl2 sc1", "s_waitcnt vmcnt(0)",
              f"buffer_store_dwordx2 v[14:15], off, {srd(sWS)}, s{sF} sc1", f"s_branch {join}"]
def publish_wg(k, last_store, xid=False, barrier=True):
    l = k.newlabel('pw')
    k(f"v_mov_b32 v13, 0\nv_mov_b32 v14, s{sTAG}\nv_mov_b32 v15, s{sTAG+1}")
    k.wait(vm=last_store)
    if barrier: k("s_barrier")
    k(f"s_cmp_lg_u32 s{sW}, 0\ns_cbranch_scc1 {l}")
    k("s_mov_b64 exec, 1")
    if xid:
        k(f"v_xor_b32 v12, s{sXCC}, v14\nv_mov_b32 v13, v15")
        k(f"buffer_store_dwordx4 v[12:15], v{vL16}, {srd(sWS)}, s{sF} offen sc1")
    else:
        k(f"buffer_store_dwordx2 v[14:15], v13, {srd(sWS)}, s{sF} offen sc1")
    k("s_mov_b64 exec, -1")
    k.label(l)

def rb_128(k):
    k(f"s_lshl_b32 s{sT0}, s{sC4}, 2\ns_lshl_b32 s{sRB}, s{sG}, 3\ns_add_u32 s{sRB}, s{sRB}, s{sT0}\ns_add_u32 s{sRB}, s{sRB}, s{sW}")

def store_x(k, acc, pk, L, p, ring=None, m16=False):
    k(f"s_add_u32 s{sT1}, s{sDST}, {XF}")
    k.vm(f"buffer_store_dwordx4 {vr(pk)}, v{vL16}, {srd(sWS)}, s{sT1} offen")
    td = k.vm(f"buffer_store_dwordx4 {vr(pk+4)}, v{vL16}, {srd(sWS)}, s{sT1} offen offset:1024")
    mark(k, 'f_xs')
    A_ = [acc + i for i in ((0, 1, 2, 3, 8, 9, 10, 11) if m16 else range(0, 16, 2))]
    B_ = [acc + i for i in ((4, 5, 6, 7, 12, 13, 14, 15) if m16 else range(1, 16, 2))]
    k(f"v_add_f32 v10, v{A_[0]}, v{A_[1]}\nv_mul_f32 v11, v{A_[0]}, v{A_[0]}\nv_add_f32 v8, v{B_[0]}, v{B_[1]}\nv_mul_f32 v9, v{B_[0]}, v{B_[0]}")
    k(f"v_fmac_f32 v11, v{A_[1]}, v{A_[1]}\nv_fmac_f32 v9, v{B_[1]}, v{B_[1]}")
    for i in range(2, 8):
        k(f"v_add_f32 v10, v10, v{A_[i]}\nv_fmac_f32 v11, v{A_[i]}, v{A_[i]}\nv_add_f32 v8, v8, v{B_[i]}\nv_fmac_f32 v9, v{B_[i]}, v{B_[i]}")
        if ring and i in (2, 5): ring.issue_n(ST_PRE)
    if m16: k("v_permlane16_swap_b32 v10, v8\nv_permlane16_swap_b32 v11, v9")
    k("v_add_f32 v10, v10, v8\nv_add_f32 v11, v11, v9\nv_mov_b32 v8, v10\nv_mov_b32 v9, v11")
    k("v_permlane32_swap_b32 v10, v8\nv_permlane32_swap_b32 v11, v9\nv_add_f32 v10, v10, v8\nv_add_f32 v11, v11, v9")
    k("s_mov_b32 exec_hi, 0")
    ts = k.vm(f"buffer_store_dwordx2 v[10:11], v{vL16}, {srd(sWS)}, s{sSD} offen")
    k("s_mov_b64 exec, -1")
    k(f"s_lshr_b32 s{sF}, s{sDST}, 8\ns_add_u32 s{sF}, s{sF}, {FLOC(L, p)}")
    mark(k, 'f_ss')
    if SPLIT_ST:
        publish_local(k, td)
        k(f"s_add_u32 s{sF}, s{sF}, {FLOC(L, 6 if p == 1 else 7) - FLOC(L, p)}")
    return ts
def stats_poll(k, delta):
    if not SPLIT_ST: return []
    k(f"s_add_u32 s{sF}, s{sF}, {delta}")
    ap = apoll1(k, 13, 14, sF)
    return ap

def rowmajor_addr(k, va, s_out):
    k(f"v_and_b32 v{va}, 31, v0\nv_lshlrev_b32 v{va}, 10, v{va}\nv_bfe_u32 v{va+1}, v0, 5, 1\nv_lshlrev_b32 v{va+1}, 4, v{va+1}\nv_add_u32 v{va}, v{va}, v{va+1}")
    k(f"s_and_b32 s{s_out}, s{sDST}, 0xffff8000\ns_bfe_u32 s{sT3}, s{sDST}, 0x5000a\ns_lshl_b32 s{sT3}, s{sT3}, 5\ns_add_u32 s{s_out}, s{s_out}, s{sT3}")

sU = 96
def pack_decode(k):
    nm = "pk"; u = f"s{sU}"
    k(f"s_min_u32 s83, {u}, 231")
    u = "s83"
    k(f"s_and_b32 s90, s{sW}, 1\ns_lshr_b32 s91, s{sW}, 1")
    k(f"s_cmp_lt_u32 {u}, 48\ns_cbranch_scc1 {nm}_q")
    k(f"s_cmp_lt_u32 {u}, 160\ns_cbranch_scc1 {nm}_u")
    k(f"s_cmp_lt_u32 {u}, 176\ns_cbranch_scc1 {nm}_o")
    k(f"s_sub_u32 s84, {u}, 176\ns_lshl_b32 s84, s84, 2\ns_add_u32 s84, s84, s{sW}")
    k("s_and_b32 s85, s84, 15\ns_lshr_b32 s86, s84, 4")
    k("s_lshl_b32 s87, s85, 6")
    k("s_add_u32 s74, s72, s87\ns_addc_u32 s75, s73, 0\ns_mov_b32 s76, s74\ns_mov_b32 s77, s75")
    k("s_mov_b32 s78, 1024\ns_lshl_b32 s79, s86, 7")
    k(f"s_mul_i32 s80, s85, 14\ns_add_u32 s80, s80, s86\ns_lshl_b32 s80, s80, 13\ns_add_u32 s80, s80, {WD}\ns_mov_b32 s81, 1024\ns_mov_b32 s88, s81\ns_mov_b32 s82, {DUMP}")
    k(f"s_branch {nm}_go")
    k.label(f"{nm}_o")
    k(f"s_sub_u32 s85, {u}, 160\ns_lshr_b32 s88, s85, 3\ns_and_b32 s85, s85, 7")
    k("s_lshl_b32 s87, s85, 1\ns_add_u32 s87, s87, s90\ns_lshl_b32 s87, s87, 6")
    k("s_add_u32 s74, s66, s87\ns_addc_u32 s75, s67, 0\ns_mov_b32 s76, s74\ns_mov_b32 s77, s75")
    k("s_mov_b32 s78, 1024\ns_lshl_b32 s79, s88, 1\ns_add_u32 s79, s79, s91\ns_lshl_b32 s79, s79, 7")
    k("s_lshl_b32 s89, s91, 15\ns_xor_b32 s90, s90, s88\ns_lshl_b32 s88, s88, 1\ns_add_u32 s90, s90, s88\ns_lshl_b32 s90, s90, 10")
    k(f"s_mul_i32 s80, s85, {WO_STR}\ns_add_u32 s80, s80, s89\ns_add_u32 s80, s80, s90\ns_add_u32 s80, s80, {WO}")
    k(f"s_mov_b32 s81, 4096\ns_mov_b32 s88, s81\ns_mov_b32 s82, {DUMP}")
    k(f"s_branch {nm}_go")
    k.label(f"{nm}_u")
    k(f"s_sub_u32 s85, {u}, 48\ns_mul_i32 s84, s85, 2341\ns_lshr_b32 s84, s84, 16\ns_mul_i32 s86, s84, 28\ns_sub_u32 s85, s85, s86")
    k(f"s_lshl_b32 s85, s85, 2\ns_add_u32 s85, s85, s{sW}\ns_lshl_b32 s87, s85, 5")
    k("s_add_u32 s74, s68, s87\ns_addc_u32 s75, s69, 0")
    k("s_add_u32 s76, s70, s87\ns_addc_u32 s77, s71, 0\ns_sub_u32 s76, s76, 32\ns_subb_u32 s77, s77, 0")
    k("s_mov_b32 s78, 3584")
    k("s_mul_i32 s86, s85, 9363\ns_lshr_b32 s86, s86, 16\ns_mul_i32 s88, s86, 7\ns_sub_u32 s88, s85, s88")
    if DN16: k("s_sub_u32 s89, 6, s88\ns_bitcmp0_b32 s86, 0\ns_cselect_b32 s88, s89, s88")
    k(f"s_mul_i32 s91, s86, {WU_STR}\ns_add_u32 s91, s91, {WU}\ns_lshl_b32 s89, s88, 10\ns_add_u32 s91, s91, s89")
    k(f"s_cmp_lt_u32 s88, 5\ns_cselect_b32 s90, 3, 5\ns_lshl_b32 s89, s90, 15\ns_add_u32 s89, s89, 1024")
    k(f"s_cmp_lt_u32 s88, 3\ns_cselect_b32 s81, 3, 2\ns_cselect_b32 s89, 0, s89\ns_cselect_b32 s90, 0, s90\ns_lshl_b32 s81, s81, 10\ns_add_u32 s91, s91, s89")
    k("s_sub_u32 s85, s88, s90\ns_lshl_b32 s85, s85, 10\ns_mov_b32 s88, 1024")
    k(f"s_branch {nm}_ext")
    k.label(f"{nm}_q")
    k(f"s_cmp_ge_u32 {u}, 24\ns_cselect_b32 s84, 2, 0\ns_cselect_b32 s86, 24, 0\ns_add_u32 s84, s84, s91\ns_sub_u32 s85, {u}, s86")
    k("s_lshl_b32 s85, s85, 1\ns_add_u32 s85, s85, s90\ns_and_b32 s86, s85, 15\ns_lshr_b32 s88, s85, 4")
    k("s_lshl_b32 s87, s85, 6\ns_lshl_b32 s89, s88, 10")
    k("s_add_u32 s74, s64, s87\ns_addc_u32 s75, s65, 0\ns_mov_b32 s76, s74\ns_mov_b32 s77, s75")
    k("s_mov_b32 s78, 3072")
    k(f"s_sub_u32 s89, s89, 1024\ns_cmp_eq_u32 s88, 0\ns_cselect_b32 s89, {66*KB}, s89\ns_cselect_b32 s81, 1, 2\ns_lshl_b32 s81, s81, 10")
    k(f"s_mul_i32 s91, s86, {WQ_STR}\ns_add_u32 s91, s91, s89\ns_add_u32 s91, s91, {WQ}\ns_mov_b32 s85, 0\ns_mov_b32 s88, s81")
    k.label(f"{nm}_ext")
    k("s_lshl_b32 s79, s84, 7")
    k("s_lshl_b32 s89, s81, 5\ns_add_u32 s82, s91, s89\ns_lshr_b32 s89, s84, 1\ns_lshl_b32 s89, s89, 9\ns_add_u32 s82, s82, s89")
    k("s_and_b32 s89, s84, 1\ns_lshl_b32 s89, s89, 3\ns_add_u32 s82, s82, s89")
    k("s_lshl_b32 s89, s81, 3\ns_mul_i32 s89, s89, s84\ns_add_u32 s80, s91, s89\ns_add_u32 s80, s80, s85")
    k.label(f"{nm}_go")
    k(f"s_cmp_ge_u32 s{sU}, 232\ns_cselect_b32 s80, {DUMP}, s80")
    k("v_bfe_u32 v4, v0, 2, 4\nv_add_u32 v4, s79, v4\nv_mul_lo_u32 v4, v4, s78")
    k("v_and_b32 v13, 3, v0\nv_lshlrev_b32 v13, 4, v13\nv_add_u32 v4, v4, v13")
    k(f"s_lshl_b32 s83, s78, 4")
    if PK_Q0: k(f"s_lshl_b32 s84, s{sW}, 13\ns_add_u32 s84, s84, {64*KB}")
    elif PK_EARLY: k(f"s_lshl_b32 s84, s{sW}, 13\ns_add_u32 s84, s84, {4*KB}")
    else: k(f"s_lshl_b32 s84, s{sW}, 14\ns_add_u32 s84, s84, {96*KB}")
    k("s_mov_b32 s86, s83\ns_mov_b32 s87, 0\ns_lshl_b32 s83, s81, 1\ns_sub_u32 s83, s83, s88\ns_mov_b32 s81, s88")
    k("v_and_b32 v13, 2, v0\nv_cmp_eq_u32 vcc, 0, v13")
    k("v_mov_b32 v14, s76\nv_mov_b32 v13, s74\nv_cndmask_b32 v14, v14, v13, vcc\nv_mov_b32 v15, s77\nv_mov_b32 v13, s75\nv_cndmask_b32 v15, v15, v13, vcc")
    k("v_add_co_u32 v4, vcc, v4, v14\nv_addc_co_u32 v5, vcc, 0, v15, vcc")
def pack_issue(k, i, sbase):
    k(f"s_add_u32 m0, s{sbase}, {i*KB}")
    if i: k("v_lshl_add_u64 v[4:5], v[4:5], 0, s[86:87]")
    return k.vm("global_load_lds_dwordx4 v[4:5], off")
def tr_addr(k, v, t):
    k(f"v_bfe_u32 v{v}, v0, 5, 1\nv_lshlrev_b32 v{v}, 9, v{v}")
    k(f"v_bfe_u32 v{t}, v0, 2, 2\nv_lshlrev_b32 v{t}, 6, v{t}\nv_add_u32 v{v}, v{v}, v{t}")
    k(f"v_bfe_u32 v{t}, v0, 4, 1\nv_lshlrev_b32 v{t}, 5, v{t}\nv_add_u32 v{v}, v{v}, v{t}")
    k(f"v_and_b32 v{t}, 1, v0\nv_lshlrev_b32 v{t}, 4, v{t}\nv_add_u32 v{v}, v{v}, v{t}")
    k(f"v_bfe_u32 v{t}, v0, 1, 1\nv_lshlrev_b32 v{t}, 3, v{t}\nv_add_u32 v{v}, v{v}, v{t}")
def ext_pair(src, dst, t0):
    return [f"v_mov_b32 v{t0}, v{src}", f"v_permlane32_swap_b32 v{src}, v{t0}", f"v_add_f32 v{src}, v{src}, v{t0}",
            f"v_cvt_pk_bf16_f32 v{dst+1}, v{src}, 0", f"v_lshlrev_b32 v{t0}, 16, v{dst+1}", f"v_sub_f32 v{src}, v{src}, v{t0}",
            f"v_cvt_pk_bf16_f32 v{dst}, v{t0}, v{src}"]
class Pack:
    def __init__(self, k): self.k = k; self.r = {}
    def issue(self, *ii):
        for i in ii: self.d = pack_issue(self.k, i, 84)
    def reads(self, *ii):
        k = self.k
        if ii[0] == 0:
            k("v_accvgpr_read_b32 v4, a212")
            k.wait(vm=self.d)
        for i in ii:
            k.lg(f"ds_read_b64_tr_b16 {ar(160+4*i,2)}, v4 offset:{i*KB}")
            self.r[i] = k.lg(f"ds_read_b64_tr_b16 {ar(162+4*i,2)}, v4 offset:{i*KB+256}")
    def csum(self, i):
        self.k.wait(lg=self.r[i])
        self.k(f"v_mfma_f32_32x32x16_bf16 {ar(196,16)}, {ar(192)}, {ar(160+4*i)}, {'0' if i == 0 else ar(196,16)}")
    def stores(self, *ii):
        k = self.k
        k.wait(lg=self.r[ii[-1]])
        for i in ii:
            k.vm(f"buffer_store_dwordx4 {ar(160+4*i)}, v{vL16}, {srd(sWS)}, s80 offen sc1")
            k(f"s_add_u32 s80, s80, s{83 if i & 1 else 81}")
    def ext(self):
        k = self.k
        k("v_accvgpr_read_b32 v13, a196")
        k("v_cvt_pk_bf16_f32 v15, v13, 0\nv_lshlrev_b32 v14, 16, v15\nv_sub_f32 v13, v13, v14\nv_cvt_pk_bf16_f32 v14, v14, v13")
        k("s_mov_b32 exec_hi, 0")
        self.s = k.vm(f"buffer_store_dwordx2 v[14:15], v{vL16}, {srd(sWS)}, s82 offen sc1")
        k("s_mov_b64 exec, -1")
    def pub(self):
        k = self.k
        k(f"s_lshl_b32 s{sF}, s{sU}, 7\ns_add_u32 s{sF}, s{sF}, {FPK}")
        publish_wg(k, self.s, xid=True)
    def schedule(self, job):
        t = PK_T0
        if not PK_EARLY:
            for i in range(4): job(t + i, lambda i=i: self.issue(2*i, 2*i+1))
            t += 4 + PK_GAP
        if PK_WIN2:
            job(t, self.pub)
            return t
        if PK_EARLY and PK_SP:
            for i in range(8): job(t + PK_SP*i, lambda i=i: self.stores(i))
            job(t + 8*PK_SP, self.ext)
            job(t + 8*PK_SP + PK_GAP2, self.pub)
            return t + 8*PK_SP + PK_GAP2
        if PK_EARLY:
            for i in range(4): job(t + i, lambda i=i: self.stores(2*i, 2*i+1))
            job(t + 4, self.ext)
            job(t + 4 + PK_GAP2, self.pub)
            return t + 4 + PK_GAP2
        job(t, lambda: self.reads(0, 1, 2, 3)); job(t + 1, lambda: self.reads(4, 5, 6, 7))
        for i in range(4):
            job(t + 2 + i, lambda i=i: self.stores(2*i, 2*i+1))
            job(t + 1 + i, lambda i=i: self.csum(2*i), e=14)
            job(t + 2 + i, lambda i=i: self.csum(2*i+1), e=0)
        job(t + 6, self.ext)
        job(t + 6 + PK_GAP2, self.pub)
        return t + 6 + PK_GAP2
def qkv_consts(vT, vRS, vR):
    return [f"v_cvt_pk_bf16_f32 v{vT}, v{vRS}, 0", f"v_lshlrev_b32 v{vT+1}, 16, v{vT}", f"v_sub_f32 v{vT+2}, v{vRS}, v{vT+1}",
            f"v_cvt_pk_bf16_f32 v{vT}, v{vT+1}, v{vT+2}", f"v_mov_b32 v{vT+1}, 0", f"v_mov_b32 v{vT+2}, 0", f"v_mov_b32 v{vT+3}, 0",
            f"v_cmp_gt_u32 vcc, 512, v{vL16}", f"v_mov_b32 v{vT+4}, 0x3f803f80", f"v_cndmask_b32 v{vT+4}, 0, v{vT+4}, vcc",
            f"v_mov_b32 v{vT+5}, 0", f"v_mov_b32 v{vT+6}, 0", f"v_mov_b32 v{vT+7}, 0",
            f"v_mul_f32 v{vRS+1}, {hex(f2u(0.25*LOG2E))}, v{vRS}",
            "v_bfe_u32 v12, v0, 4, 1", "v_lshlrev_b32 v12, 17, v12", "v_and_b32 v13, 15, v0", "v_lshlrev_b32 v13, 4, v13", "v_add_u32 v12, v12, v13",
            "v_bfe_u32 v13, v0, 5, 1", "v_lshlrev_b32 v13, 8, v13", "v_add_u32 v12, v12, v13",
            f"v_mfma_f32_32x32x16_bf16 {vr(vR,16)}, {vr(vT)}, {vr(vT+4)}, 0"]
def qk_tile(a, dst, sc, fl, p0):
    o = []
    sb, hs = (sB, KB) if dst == QF else (sCc, 128*KB)
    for half in range(2):
        p = p0 + 4*half
        for j in range(4):
            r = a + 8*half + 2*j
            o += [f"v_mul_f32 v{r}, v{r}, v{sc}", f"v_mul_f32 v{r+1}, v{r+1}, v{sc}", f"v_cvt_pk_bf16_f32 v{p+j}, v{r}, v{r+1}"]
        o += [f"s_add_u32 s{sT2}, s{sb}, {dst + half*hs}", f"buffer_store_dwordx4 {vr(p)}, v{vL16}, {srd(sWS)}, s{sT2} offen{fl}"]
    return o
def v_tile(a, L, vR, p0):
    o = [f"s_add_u32 s{sT2}, s{sCc}, {KVF(L) + KB}"]
    for u in range(2):
        p = p0 + 4*u
        for j in range(4):
            r = a + 8*u + 2*j; q = vR + 8*u + 2*j
            o += [f"v_mul_f32 v{r}, v{r}, v{q}", f"v_mul_f32 v{r+1}, v{r+1}, v{q+1}", f"v_cvt_pk_bf16_f32 v{p+j}, v{r}, v{r+1}"]
        o.append(f"buffer_store_dwordx4 {vr(p)}, v12, {srd(sWS)}, s{sT2} offen offset:{u*512} sc1")
    return o
def kv_flag(k, L, tkv):
    k(f"s_lshl_b32 s{sF}, s{sA}, 4\ns_lshr_b32 s{sT1}, s{sRB}, 2\ns_add_u32 s{sF}, s{sF}, s{sT1}\ns_lshl_b32 s{sF}, s{sF}, 7\ns_add_u32 s{sF}, s{sF}, {FKV(L)}")
    publish_wg(k, tkv)
def q_flag(k, L, tq):
    k(f"s_lshr_b32 s{sF}, s{sRB}, 3\ns_lshl_b32 s{sF}, s{sF}, 4\ns_add_u32 s{sF}, s{sF}, s{sA}\ns_lshl_b32 s{sF}, s{sF}, 3\ns_and_b32 s{sT1}, s{sRB}, 7\ns_add_u32 s{sF}, s{sF}, s{sT1}\ns_lshl_b32 s{sF}, s{sF}, 3\ns_add_u32 s{sF}, s{sF}, {FLOC(L-1,5)}")
    publish_local(k, tq, force_global=(L == 0))

WARM = True
LIN_AT = 99
LIN_U = True
Q0_ROT = True
Q0_MARKS = False
Q0_MARKJ = ()
Q0_SCHED = ((3, 4), (5,), (6,), (7,), (), (), (), ())
LATE_AT = 1
Q0_UP = 3
PK_AT = (3, 3, 4, 4, 5, 5, 6, 6)
def ph_qkv0(k, late):
    vX, vACC, vST, vEXT, vRS, vT, vR = 16, 144, 192, 8, 6, 224, 232
    vXA, vWA, vXR, vTR, vTW, vCS, vCW, vONE = 10, 12, 196, 200, 202, 204, 208, 220
    sXS, sWR, sXL, sWL = 60, 56, sD, sE
    rb_128(k)
    k(f"s_and_b32 s{sA}, s{sC}, 15")
    k(f"v_bfe_u32 v{vXA}, v0, 3, 3\nv_lshlrev_b32 v{vXA}, 10, v{vXA}\nv_and_b32 v13, 7, v0\nv_bfe_u32 v14, v0, 4, 2\nv_xor_b32 v13, v13, v14")
    k(f"v_lshlrev_b32 v13, 4, v13\nv_add_u32 v{vXA}, v{vXA}, v13\nv_xor_b32 v{vXA+1}, 64, v{vXA}")
    k(f"v_bfe_u32 v{vWA}, v0, 2, 4\nv_mul_u32_u24 v{vWA}, 3072, v{vWA}\nv_and_b32 v13, 3, v0\nv_lshlrev_b32 v13, 4, v13\nv_add_u32 v{vWA}, v{vWA}, v13")
    if DIAG_W: k(f"v_bfe_u32 v{vWA}, v0, 3, 3\nv_mul_u32_u24 v{vWA}, 6144, v{vWA}\nv_and_b32 v13, 7, v0\nv_lshlrev_b32 v13, 4, v13\nv_add_u32 v{vWA}, v{vWA}, v13\ns_and_b32 s{sA}, s{sA}, 14")
    k(f"s_lshl_b32 s{sX}, s{sRB}, 15")
    k(f"s_mul_i32 s{sX2}, s{sW}, 49152\ns_lshl_b32 s{sT0}, s{sA}, 6\ns_add_u32 s{sX2}, s{sX2}, s{sT0}")
    if DIAG_W: k(f"s_and_b32 s{sA}, s{sG}, 1\ns_lshl_b32 s{sA}, s{sA}, 3\ns_and_b32 s{sT0}, s{sC}, 7\ns_add_u32 s{sA}, s{sA}, s{sT0}")
    k(f"s_lshl_b32 s{sXL}, s{sW}, 14\ns_add_u32 s{sXL}, s{sXL}, {96*KB}\ns_mul_i32 s{sWL}, s{sW}, 3072")
    k("s_waitcnt lgkmcnt(0)")
    if Q0_MARKS: mark(k, 'karg')
    k(f"s_mov_b32 s{sWR}, s64\ns_and_b32 s{sWR+1}, s65, 0xffff\ns_mov_b32 s{sWR+2}, {512*3072}\ns_mov_b32 s{sWR+3}, 0x20000")
    k(f"s_and_b32 s{sXS+1}, s{sXS+1}, 0xffff\ns_mov_b32 s{sXS+2}, {2*MB}\ns_mov_b32 s{sXS+3}, 0x20000")
    ct = {}; cn = {j: 0 for j in range(8)}
    k(f"s_lshl_b32 s{sCc}, s{sC4}, 2\ns_lshr_b32 s{sT3}, s{sC}, {Q0_RSH}\ns_add_u32 s{sCc}, s{sCc}, s{sT3}\ns_add_u32 s{sCc}, s{sCc}, s{sG}")
    def rot(j):
        k(f"s_add_u32 s{sT3}, s{sCc}, {j}\ns_and_b32 s{sT3}, s{sT3}, {7 if Q0_ROT else 0}")
        if not Q0_ROT: k(f"s_mov_b32 s{sT3}, {j}")
        k(f"s_lshl_b32 s{sS0}, s{sT3}, 7\ns_add_u32 s{sS0}, s{sS0}, s{sX}")
        k(f"s_mul_i32 s{sS1}, s{sT3}, {4*49152}\ns_add_u32 s{sS1}, s{sS1}, s{sX2}")
    def ldW(j, t):
        k(f"s_add_u32 m0, s{sWL}, {(12*j + t)*KB}\ns_add_u32 s{sT2}, s{sS1}, {((t+1) % 3)*1024}")
        ct[j] = k.vm(f"buffer_load_dwordx4 v{vWA}, {srd(sWR)}, s{sT2} offen lds"); cn[j] += 1
    def ldX(j, i):
        if i == 0: rot(j)
        k(f"s_add_u32 m0, s{sXL}, {(j & 3)*4*KB + i*KB}\ns_add_u32 s{sT2}, s{sS0}, {i*8192}")
        ct[j] = k.vm(f"buffer_load_dwordx4 v{vXA + (i & 1)}, {srd(sXS)}, s{sT2} offen lds"); cn[j] += 1
    def chunk_loads(j):
        return [lambda i=i: ldX(j, i) for i in range(4)] + [lambda t=t: ldW(j, t) for t in range(3)]
    for f in chunk_loads(0): f()
    if Q0_MARKS: mark(k, 'up0')
    late(k)
    pack_decode(k)
    k(f"s_cmp_eq_u32 s{sW}, 0\ns_cselect_b64 s[90:91], s[68:69], s[70:71]")
    k(f"s_cmp_eq_u32 s{sW}, 2\ns_cselect_b64 s[90:91], s[72:73], s[90:91]")
    k(f"s_cmp_eq_u32 s{sW}, 3\ns_cselect_b64 s[90:91], s[66:67], s[90:91]\ns_cselect_b32 s{sT0}, 16, 56")
    k(f"s_mul_i32 s{sT1}, s{sT0}, s{sU}\ns_sub_u32 s{sT0}, s{sT0}, 1")
    k(f"v_and_b32 v254, 63, v0\nv_min_u32 v254, s{sT0}, v254\nv_add_u32 v254, s{sT1}, v254\nv_lshlrev_b32 v254, 7, v254")
    pk = G.pk = Pack(k)
    k(f"s_and_b32 s{sT0}, s{sC}, 7\ns_and_b32 s{sT1}, s{sC}, 15")
    k("v_and_b32 v13, 15, v0\nv_min_u32 v14, 13, v13")
    k(f"s_lshr_b32 s{sT2}, s{sT0}, 1\ns_add_u32 s{sT2}, s{sT2}, 176\nv_lshl_add_u32 v252, v14, 2, s{sT2}")
    k(f"s_mul_i32 s{sT2}, s{sT1}, 7\ns_add_u32 s{sT3}, s{sT2}, 6\ns_lshr_b32 s{sT2}, s{sT2}, 2\ns_lshr_b32 s{sT3}, s{sT3}, 2")
    k(f"v_lshrrev_b32 v14, 2, v13\nv_add_u32 v14, s{sT2}, v14\nv_min_u32 v14, s{sT3}, v14\nv_and_b32 v15, 3, v13\nv_mul_u32_u24 v15, 28, v15")
    k("v_add3_u32 v14, v14, v15, 48")
    k("v_and_b32 v15, 16, v0\nv_cmp_ne_u32 vcc, 0, v15\nv_cndmask_b32 v252, v252, v14, vcc")
    k(f"s_add_u32 s{sT0}, s{sT0}, 160\nv_and_b32 v14, 1, v13\nv_lshl_add_u32 v251, v14, 3, s{sT0}")
    k(f"s_lshr_b32 s{sT1}, s{sT1}, 1\nv_mul_u32_u24 v14, 24, v14\nv_lshrrev_b32 v15, 1, v13\nv_min_u32 v15, 2, v15\nv_lshlrev_b32 v15, 3, v15")
    k(f"v_add3_u32 v14, v14, v15, s{sT1}")
    k("v_cndmask_b32 v251, v251, v14, vcc")
    k(f"v_cmp_gt_u32 vcc, 512, v{vL16}\nv_cndmask_b32 v252, v251, v252, vcc\nv_lshlrev_b32 v252, 7, v252\nv_accvgpr_write_b32 a213, v252")
    if WARM:
        k("s_getpc_b64 s[88:89]")
        k.label("L_pcw")
        k(f"s_lshl_b32 s{sT0}, s{sC}, 1\ns_add_u32 s{sT0}, s{sT0}, s{sW}\ns_and_b32 s{sT0}, s{sT0}, 63\ns_lshl_b32 s{sT0}, s{sT0}, 10\ns_min_u32 s{sT0}, s{sT0}, L_end-L_pcw-1024")
        k(f"v_add_u32 v245, s{sT0}, v{vL16}")
        k(f"v_min_u32 v244, {(WS_PAGES-1)*16}, v{vL16}\nv_lshlrev_b32 v244, 17, v244")
        k(f"s_cmp_eq_u32 s{sW}, 1\ns_cselect_b64 s[88:89], s[{sAUX}:{sAUX+1}], s[88:89]")
        k(f"s_cmp_eq_u32 s{sW}, 0\ns_cselect_b64 s[88:89], s[{sWS}:{sWS+1}], s[88:89]\ns_cselect_b64 vcc, -1, 0")
        k("v_cndmask_b32 v245, v245, v244, vcc")
    if PK_Q0: pk.issue(*range(8))
    k(f"v_and_b32 v13, 31, v0\nv_bfe_u32 v14, v0, 1, 3\nv_bfe_u32 v15, v0, 5, 1\nv_xor_b32 v14, v14, v15\nv_lshlrev_b32 v14, 4, v14\nv_lshl_add_u32 v13, v13, 7, v14")
    for e in range(4):
        k(f"v_xor_b32 v{vXR+e}, {e*32}, v13\nv_add_u32 v{vXR+e}, s{sXL}, v{vXR+e}")
    tr_addr(k, vTR, 13)
    k(f"v_add_u32 v{vTR+1}, {48*KB}, v{vTR}\nv_add_u32 v{vTW}, s{sWL}, v{vTR}\nv_add_u32 v{vTW+1}, {48*KB}, v{vTW}")
    k(f"v_mov_b32 v{vONE}, 0x3f803f80\nv_add_u32 v255, s84, v{vTR}\nv_accvgpr_write_b32 a212, v255")
    for r in range(192, 196): k(f"v_accvgpr_write_b32 a{r}, v{vONE}")
    for r in list(range(vST, vST+4)) + list(range(vCS, vCS+3)): k(f"v_mov_b32 v{r}, 0")
    def reads(j):
        o = []
        for e in range(4):
            o.append(f"ds_read_b128 {vr(vX + 16*j + 4*e)}, v{vXR+e} offset:{(j & 3)*4*KB}")
        for t in range(3):
            off = (12*(j & 3) + t)*KB
            o.append(f"ds_read_b64_tr_b16 {vr(vCW+4*t,2)}, v{vTW + (j >> 2)} offset:{off}")
            o.append(f"ds_read_b64_tr_b16 {vr(vCW+4*t+2,2)}, v{vTW + (j >> 2)} offset:{off+256}")
        for b in range(12):
            off = (12*(j & 3) + b)*KB; r = 48*(j & 1) + 4*b
            o.append(f"ds_read_b64_tr_b16 {ar(r,2)}, v{vTR + (j >> 2)} offset:{off}")
            o.append(f"ds_read_b64_tr_b16 {ar(r+2,2)}, v{vTR + (j >> 2)} offset:{off+256}")
        return o
    def dots(j):
        for i in range(16):
            r = vX + 16*j + i
            k(f"v_dot2c_f32_bf16 v{vST + 2*(i & 1)}, v{vONE}, v{r}\nv_dot2c_f32_bf16 v{vST + 1 + 2*(i & 1)}, v{r}, v{r}")
        for i in range(4):
            for t in range(3): k(f"v_dot2c_f32_bf16 v{vCS+t}, v{vONE}, v{vCW+4*t+i}")
    def xid():
        k(f"s_add_u32 s{sTAG}, s{sTAG}, 0x7f4a7c15\ns_addc_u32 s{sTAG+1}, s{sTAG+1}, 0x9e3779b9")
        k("v_mov_b32 v13, 0")
        k("s_mov_b64 exec, 1")
        if FLAG_TOUCH:
            k(f"s_lshl_b32 s{sF}, s{sA}, 4\ns_lshr_b32 s{sT1}, s{sRB}, 2\ns_add_u32 s{sF}, s{sF}, s{sT1}\ns_lshl_b32 s{sF}, s{sF}, 7\ns_add_u32 s{sF}, s{sF}, {FKV(0)}")
            k.vm(f"buffer_load_dword v5, v13, {srd(sWS)}, s{sF} offen sc1")
            k(f"s_lshl_b32 s{sF}, s{sU}, 7\ns_add_u32 s{sF}, s{sF}, {FPK}")
            k.vm(f"buffer_load_dword v5, v13, {srd(sWS)}, s{sF} offen sc1")
        k("s_mov_b64 exec, -1")
    def lin_touch():
        k.vm("global_load_dword v253, v254, s[90:91]")
    side = []
    for x in att_setup(0): k(x)
    if Q0_MARKS: mark(k, 'alu')
    if WARM and WARM_AT == 0: k.vm(f"global_load_dword v255, v245, s[88:89]")
    for j in range(1, Q0_UP):
        for f in chunk_loads(j): f()
    if WARM and WARM_AT == 1: k.vm(f"global_load_dword v255, v245, s[88:89]")
    if Q0_MARKS: mark(k, 'iss')
    k.wait(vm=ct[0])
    if Q0_MARKS: mark(k, 'w0')
    k("s_barrier")
    mark(k, 'd0')
    rl = reads(0)
    for x in rl[:10]: t10 = k.lg(x)
    for x in rl[10:]: k.lg(x)
    k.wait(lg=t10)
    dots(0)
    for j in range(8):
        for c_ in Q0_SCHED[j]:
            assert c_ - 4 <= j
            side += chunk_loads(c_)
        if j == 1: side.append(xid)
        if WARM and WARM_AT == j + 2: side.append(lambda: k.vm(f"global_load_dword v255, v245, s[88:89]"))
        if PK_EARLY: side += [lambda i=i: pk.issue(i) for i in range(8) if PK_AT[i] == j]
        if j == LIN_AT and not PK_Q0: side.append(lin_touch)
        if PK_Q0:
            assert all(c_ < 5 or j > PK_RD for c_ in Q0_SCHED[j])
            if j == PK_RD: side += [lambda i=i: pk.reads(2*i, 2*i+1) for i in range(4)]
            if j == PK_ST: side += [lambda i=i: (pk.stores(i), pk.csum(i)) for i in range(4)]
            if j == PK_ST + 1: side += [lambda i=i: (pk.stores(i), pk.csum(i)) for i in range(4, 8)]
            if j == PK_ST + 2: side.append(pk.ext)
        k.wait_all(vm=False)
        rl = []
        if j < 7:
            assert cn[j+1] == 7
            k.wait(vm=ct[j+1]); k("s_barrier")
            if j in Q0_MARKJ: mark(k, f'c{j+1}')
            rl = reads(j + 1)
        t10 = None; nr = 0
        if j == 7:
            tail = f"s_lshr_b32 s{sT0}, s{sW}, 1\ns_lshl_b32 s{sT0}, s{sT0}, 9\ns_and_b32 s{sT1}, s{sW}, 1\ns_lshl_b32 s{sT1}, s{sT1}, 3\ns_add_u32 s{sT0}, s{sT0}, s{sT1}".split('\n')
            tail += [f"v_and_b32 v13, 0x1f0, v{vL16}", f"v_add_u32 v13, s{sT0}, v13"]
            for t in range(3): tail += ext_pair(vCS+t, vCW+2*t, 14) + [f"ds_write_b64 v13, {vr(vCW+2*t,2)} offset:{t*KB}"]
            fin = fin_stats(vST, vEXT, vRS)[NTREE:] + qkv_consts(vT, vRS, vR)
            tail += [f"v_add_f32 v{vST}, v{vST}, v{vST+2}", f"v_add_f32 v{vST+1}, v{vST+1}, v{vST+3}"] + fin[:18]
            tail += ["s_waitcnt lgkmcnt(0)", "s_barrier"] + [f"ds_read_b128 {vr(vCW+4*t)}, v{vL16} offset:{t*KB}" for t in range(3)] + fin[18:]
            tail += f"s_lshl_b32 s{sCc}, s{sA}, 18\ns_lshl_b32 s{sT1}, s{sRB}, 11\ns_add_u32 s{sCc}, s{sCc}, s{sT1}".split('\n')
            tail += f"s_mul_i32 s{sB}, s{sRB}, {112*KB}\ns_lshl_b32 s{sT1}, s{sA}, 11\ns_add_u32 s{sB}, s{sB}, s{sT1}".split('\n')
            assert not side
            n_ = -(-len(tail) // 12)
            side = [lambda c=tail[i:i+n_]: [k(x) for x in c] for i in range(0, len(tail), n_)]
        for b in range(12):
            ks = 4*j + b // 3; t = b % 3
            acc = vr(vACC + 16*t, 16); w = ar(48*(j & 1) + 4*b); x = vr(vX + 4*ks)
            A, B = (x, w) if t == 1 else (w, x)
            k(f"v_mfma_f32_32x32x16_bf16 {acc}, {A}, {B}, {'0' if ks == 0 else acc}")
            if ks == 0 and t == 0: mark(k, 'm0')
            for _ in range(3):
                if rl:
                    t_ = k.lg(rl.pop(0)); nr += 1
                    if nr == 10: t10 = t_
            if side: side.pop(0)()
            if len(side) > 11 - b: side.pop(0)()
        if j < 7:
            assert not rl
            k.wait(lg=t10)
            dots(j + 1)
    while side: side.pop(0)()
    mark(k, 'loop')
    k.wait_all(vm=False)
    for t in range(3):
        c = vCW + 4*t
        acc = vr(vACC + 16*t, 16)
        A, B = (vr(vEXT), vr(c)) if t == 1 else (vr(c), vr(vEXT))
        k(f"v_mfma_f32_32x32x16_bf16 {acc}, {A}, {B}, {acc}")
    t_ = None
    for x in qk_tile(vACC, KVF(0), vRS, " sc1", 192) + v_tile(vACC+16, 0, vR, 208) + VLOC + ex_kv(192, 208):
        if x.startswith('buffer'): t_ = k.vm(x)
        elif x.startswith('ds_'): k.lg(x)
        else: k(x)
    q_out(k, vACC + 32, vRS + 1, 200, vT)
    mark(k, 'st')
    return t_, None

def ph_qkv0g(k, late):
    vX, vACC, vST, vEXT, vRS, vT, vR = 16, 144, 192, 8, 6, 224, 232
    vXA, vWA, vXR, vTR, vCW, vG = 10, 12, 224, 228, 192, 192
    aCS = 96
    sXS, sWR, sXL, sWL = 60, 56, sD, sE
    rb_128(k)
    k(f"s_and_b32 s{sA}, s{sC}, 15")
    k(f"v_bfe_u32 v{vXA}, v0, 3, 3\nv_lshlrev_b32 v{vXA}, 10, v{vXA}\nv_and_b32 v13, 7, v0\nv_bfe_u32 v14, v0, 4, 2\nv_xor_b32 v13, v13, v14")
    k(f"v_lshlrev_b32 v13, 4, v13\nv_add_u32 v{vXA}, v{vXA}, v13\nv_xor_b32 v{vXA+1}, 64, v{vXA}")
    k(f"v_bfe_u32 v{vWA}, v0, 2, 4\nv_mul_u32_u24 v{vWA}, 3072, v{vWA}\nv_and_b32 v13, 3, v0\nv_lshlrev_b32 v13, 4, v13\nv_add_u32 v{vWA}, v{vWA}, v13")
    if DIAG_W: k(f"v_bfe_u32 v{vWA}, v0, 3, 3\nv_mul_u32_u24 v{vWA}, 6144, v{vWA}\nv_and_b32 v13, 7, v0\nv_lshlrev_b32 v13, 4, v13\nv_add_u32 v{vWA}, v{vWA}, v13\ns_and_b32 s{sA}, s{sA}, 14")
    k(f"s_lshl_b32 s{sX}, s{sRB}, 15")
    k(f"s_mul_i32 s{sX2}, s{sW}, 49152\ns_lshl_b32 s{sT0}, s{sA}, 6\ns_add_u32 s{sX2}, s{sX2}, s{sT0}")
    if DIAG_W: k(f"s_and_b32 s{sA}, s{sG}, 1\ns_lshl_b32 s{sA}, s{sA}, 3\ns_and_b32 s{sT0}, s{sC}, 7\ns_add_u32 s{sA}, s{sA}, s{sT0}")
    k(f"s_lshl_b32 s{sXL}, s{sW}, 14\ns_add_u32 s{sXL}, s{sXL}, {96*KB}\ns_mul_i32 s{sWL}, s{sW}, 3072")
    k("s_waitcnt lgkmcnt(0)")
    if Q0_MARKS: mark(k, 'karg')
    k(f"s_mov_b32 s{sWR}, s64\ns_and_b32 s{sWR+1}, s65, 0xffff\ns_mov_b32 s{sWR+2}, {512*3072}\ns_mov_b32 s{sWR+3}, 0x20000")
    k(f"s_and_b32 s{sXS+1}, s{sXS+1}, 0xffff\ns_mov_b32 s{sXS+2}, {2*MB}\ns_mov_b32 s{sXS+3}, 0x20000")
    ct = {}; cn = {j: 0 for j in range(8)}
    k(f"s_lshl_b32 s{sCc}, s{sC4}, 2\ns_lshr_b32 s{sT3}, s{sC}, {Q0_RSH}\ns_add_u32 s{sCc}, s{sCc}, s{sT3}\ns_add_u32 s{sCc}, s{sCc}, s{sG}")
    def rot(j):
        k(f"s_add_u32 s{sT3}, s{sCc}, {j}\ns_and_b32 s{sT3}, s{sT3}, {7 if Q0_ROT else 0}")
        if not Q0_ROT: k(f"s_mov_b32 s{sT3}, {j}")
        k(f"s_lshl_b32 s{sS0}, s{sT3}, 7\ns_add_u32 s{sS0}, s{sS0}, s{sX}")
        k(f"s_mul_i32 s{sS1}, s{sT3}, {4*49152}\ns_add_u32 s{sS1}, s{sS1}, s{sX2}")
    def ldW(j, t):
        k(f"s_add_u32 m0, s{sWL}, {(12*j + t)*KB}\ns_add_u32 s{sT2}, s{sS1}, {((t+1) % 3)*1024}")
        ct[j] = k.vm(f"buffer_load_dwordx4 v{vWA}, {srd(sWR)}, s{sT2} offen lds"); cn[j] += 1
    def ldX(j, i):
        if i == 0: rot(j)
        k(f"s_add_u32 m0, s{sXL}, {(j & 3)*4*KB + i*KB}\ns_add_u32 s{sT2}, s{sS0}, {i*8192}")
        ct[j] = k.vm(f"buffer_load_dwordx4 v{vXA + (i & 1)}, {srd(sXS)}, s{sT2} offen lds"); cn[j] += 1
    def chunk_loads(j):
        return [lambda i=i: ldX(j, i) for i in range(4)] + [lambda t=t: ldW(j, t) for t in range(3)]
    rowmajor_addr(k, 236, sT0)
    k.vm(f"buffer_load_dwordx4 {vr(vG)}, v236, {srd(sXS)}, s{sT0} offen")
    tres = k.vm(f"buffer_load_dwordx4 {vr(vG+4)}, v236, {srd(sXS)}, s{sT0} offen offset:32")
    for f in chunk_loads(0): f()
    if Q0_MARKS: mark(k, 'up0')
    late(k)
    pack_decode(k)
    k(f"s_cmp_eq_u32 s{sW}, 0\ns_cselect_b64 s[90:91], s[68:69], s[70:71]")
    k(f"s_cmp_eq_u32 s{sW}, 2\ns_cselect_b64 s[90:91], s[72:73], s[90:91]")
    k(f"s_cmp_eq_u32 s{sW}, 3\ns_cselect_b64 s[90:91], s[66:67], s[90:91]\ns_cselect_b32 s{sT0}, 16, 56")
    k(f"s_mul_i32 s{sT1}, s{sT0}, s{sU}\ns_sub_u32 s{sT0}, s{sT0}, 1")
    k(f"v_and_b32 v254, 63, v0\nv_min_u32 v254, s{sT0}, v254\nv_add_u32 v254, s{sT1}, v254\nv_lshlrev_b32 v254, 7, v254")
    pk = G.pk = Pack(k)
    k(f"s_and_b32 s{sT0}, s{sC}, 7\ns_and_b32 s{sT1}, s{sC}, 15")
    k("v_and_b32 v13, 15, v0\nv_min_u32 v14, 13, v13")
    k(f"s_lshr_b32 s{sT2}, s{sT0}, 1\ns_add_u32 s{sT2}, s{sT2}, 176\nv_lshl_add_u32 v252, v14, 2, s{sT2}")
    k(f"s_mul_i32 s{sT2}, s{sT1}, 7\ns_add_u32 s{sT3}, s{sT2}, 6\ns_lshr_b32 s{sT2}, s{sT2}, 2\ns_lshr_b32 s{sT3}, s{sT3}, 2")
    k(f"v_lshrrev_b32 v14, 2, v13\nv_add_u32 v14, s{sT2}, v14\nv_min_u32 v14, s{sT3}, v14\nv_and_b32 v15, 3, v13\nv_mul_u32_u24 v15, 28, v15")
    k("v_add3_u32 v14, v14, v15, 48")
    k("v_and_b32 v15, 16, v0\nv_cmp_ne_u32 vcc, 0, v15\nv_cndmask_b32 v252, v252, v14, vcc")
    k(f"s_add_u32 s{sT0}, s{sT0}, 160\nv_and_b32 v14, 1, v13\nv_lshl_add_u32 v251, v14, 3, s{sT0}")
    k(f"s_lshr_b32 s{sT1}, s{sT1}, 1\nv_mul_u32_u24 v14, 24, v14\nv_lshrrev_b32 v15, 1, v13\nv_min_u32 v15, 2, v15\nv_lshlrev_b32 v15, 3, v15")
    k(f"v_add3_u32 v14, v14, v15, s{sT1}")
    k("v_cndmask_b32 v251, v251, v14, vcc")
    k(f"v_cmp_gt_u32 vcc, 512, v{vL16}\nv_cndmask_b32 v252, v251, v252, vcc\nv_lshlrev_b32 v252, 7, v252\nv_accvgpr_write_b32 a213, v252")
    if WARM:
        k("s_getpc_b64 s[88:89]")
        k.label("L_pcw")
        k(f"s_lshl_b32 s{sT0}, s{sC}, 1\ns_add_u32 s{sT0}, s{sT0}, s{sW}\ns_and_b32 s{sT0}, s{sT0}, 63\ns_lshl_b32 s{sT0}, s{sT0}, 10\ns_min_u32 s{sT0}, s{sT0}, L_end-L_pcw-1024")
        k(f"v_add_u32 v245, s{sT0}, v{vL16}")
        k(f"v_min_u32 v244, {(WS_PAGES-1)*16}, v{vL16}\nv_lshlrev_b32 v244, 17, v244")
        k(f"s_cmp_eq_u32 s{sW}, 1\ns_cselect_b64 s[88:89], s[{sAUX}:{sAUX+1}], s[88:89]")
        k(f"s_cmp_eq_u32 s{sW}, 0\ns_cselect_b64 s[88:89], s[{sWS}:{sWS+1}], s[88:89]\ns_cselect_b64 vcc, -1, 0")
        k("v_cndmask_b32 v245, v245, v244, vcc")
    if PK_Q0: pk.issue(*range(8))
    k(f"v_and_b32 v13, 31, v0\nv_bfe_u32 v14, v0, 1, 3\nv_bfe_u32 v15, v0, 5, 1\nv_xor_b32 v14, v14, v15\nv_lshlrev_b32 v14, 4, v14\nv_lshl_add_u32 v13, v13, 7, v14")
    tr_addr(k, 255, 14)
    for e in range(4):
        k(f"s_add_u32 s{sT0}, s{sW}, {e}\ns_and_b32 s{sT0}, s{sT0}, 3\ns_lshl_b32 s{sT1}, s{sT0}, 5\ns_mul_i32 s{sT0}, s{sT0}, 3072")
        k(f"v_xor_b32 v{vXR+e}, s{sT1}, v13\nv_add_u32 v{vXR+e}, s{sXL}, v{vXR+e}")
        k(f"v_add_u32 v{vTR+e}, s{sT0}, v255\nv_add_u32 v{vTR+4+e}, {48*KB}, v{vTR+e}")
    k(f"v_mov_b32 v14, 0x3f803f80\nv_add_u32 v255, s84, v255\nv_accvgpr_write_b32 a212, v255")
    for r in range(192, 196): k(f"v_accvgpr_write_b32 a{r}, v14")
    def reads(j):
        o = []
        for e in range(4):
            o.append(f"ds_read_b128 {vr(vX + 16*j + 4*e)}, v{vXR+e} offset:{(j & 3)*4*KB}")
            for t in range(3):
                off = (12*(j & 3) + t)*KB; r = 48*(j & 1) + 4*(3*e + t)
                o.append(f"ds_read_b64_tr_b16 {ar(r,2)}, v{vTR + 4*(j >> 2) + e} offset:{off}")
                o.append(f"ds_read_b64_tr_b16 {ar(r+2,2)}, v{vTR + 4*(j >> 2) + e} offset:{off+256}")
        return o
    side = []
    if Q0_MARKS: mark(k, 'alu')
    for j in range(1, Q0_UP):
        for f in chunk_loads(j): f()
    if WARM and WARM_AT == 1: k.vm(f"global_load_dword v255, v245, s[88:89]")
    if Q0_MARKS: mark(k, 'iss')
    k.wait(vm=ct[0])
    k("s_barrier")
    mark(k, 'd0')
    for x in reads(0): k.lg(x)
    U = vG + 8
    st_ = res_unpack(U, vG)
    st_ += [f"v_add_f32 v{vG}, v{U}, v{U+1}", f"v_mul_f32 v{vG+2}, v{U}, v{U}", f"v_add_f32 v{vG+1}, v{U+2}, v{U+3}", f"v_mul_f32 v{vG+3}, v{U+1}, v{U+1}",
            f"v_fmac_f32 v{vG+2}, v{U+2}, v{U+2}", f"v_fmac_f32 v{vG+3}, v{U+3}, v{U+3}"]
    for i in range(4, 16, 2):
        st_ += [f"v_add_f32 v{vG}, v{vG}, v{U+i}", f"v_fmac_f32 v{vG+2}, v{U+i}, v{U+i}", f"v_add_f32 v{vG+1}, v{vG+1}, v{U+i+1}", f"v_fmac_f32 v{vG+3}, v{U+i+1}, v{U+i+1}"]
    st_ += [f"v_add_f32 v{vG}, v{vG}, v{vG+1}", f"v_add_f32 v{vG+2}, v{vG+2}, v{vG+3}", f"v_mov_b32 v{vG+1}, v{vG}", f"v_mov_b32 v{vG+3}, v{vG+2}",
            f"v_permlane32_swap_b32 v{vG}, v{vG+1}", f"v_permlane32_swap_b32 v{vG+2}, v{vG+3}",
            f"v_add_f32 v{vG}, v{vG}, v{vG+1}", f"v_add_f32 v{vG+2}, v{vG+2}, v{vG+3}"]
    for x in st_[:Q0_ST0]: k(x)
    st_ = st_[Q0_ST0:]
    def gran():
        k(f"s_add_u32 s{sTAG}, s{sTAG}, 0x7f4a7c15\ns_addc_u32 s{sTAG+1}, s{sTAG+1}, 0x9e3779b9")
        k(f"v_mov_b32 v{vG+1}, s{sTAG}\nv_mov_b32 v{vG+3}, s{sTAG+1}")
        k(f"s_lshr_b32 s{sT0}, s{sDST}, 2\ns_add_u32 s{sT0}, s{sT0}, {SG}\ns_mov_b32 exec_hi, 0")
        k.vm(f"buffer_store_dwordx4 {vr(vG)}, v{vL16}, {srd(sWS)}, s{sT0} offen sc1")
        k("s_mov_b64 exec, -1")
        k(f"s_lshl_b32 s{sF}, s{sRB}, 13\ns_add_u32 s{sF}, s{sF}, {SG}\ns_add_u32 s{sB}, s{sF}, 4096")
    cmpg = []
    for i in range(8):
        cmpg += [f"v_xor_b32 v13, s{sTAG}, v{vG+4*i+1}", f"v_xor_b32 v14, s{sTAG+1}, v{vG+4*i+3}",
                 ("v_or_b32 v15, v13, v14" if i == 0 else "v_or3_b32 v15, v13, v14, v15")]
    apg = APoll(k, [f"buffer_load_dwordx4 {vr(vG+4*i)}, v{vL16}, {srd(sWS)}, s{sF if i < 4 else sB} offen offset:{(i & 3)*KB} sc1" for i in range(8)],
                "\n".join(cmpg + ["v_cmp_ne_u32 vcc, 0, v15"]))
    for j in range(8):
        if j == 0 and st_:
            n_ = -(-len(st_) // 8)
            side += [lambda c=st_[i:i+n_]: [k(x) for x in c] for i in range(0, len(st_), n_)]
        if j == 0: side.append(gran)
        for c_ in Q0_SCHED[j]:
            assert c_ - 4 <= j
            side += chunk_loads(c_)
        if WARM and WARM_AT == j + 2: side.append(lambda: k.vm(f"global_load_dword v255, v245, s[88:89]"))
        if j == Q0_GLD: side += [lambda x=x: setattr(apg, 't', k.vm(x)) for x in apg.loads]
        if PK_EARLY: side += [lambda i=i: pk.issue(i) for i in range(8) if PK_AT[i] == j]
        k.wait_all(vm=False)
        rl = []
        if j < 7:
            assert cn[j+1] == 7
            k.wait(vm=ct[j+1]); k("s_barrier")
            if j in Q0_MARKJ: mark(k, f'c{j+1}')
            rl = reads(j + 1)
        mm = [('c', t) for t in range(3)] + [('m', b) for b in range(12)]
        if j == 7:
            apg.check()
            tail = []
            n = 8
            while n > 1:
                h = n // 2
                for i in range(h):
                    tail += [f"v_add_f32 v{vG+4*i}, v{vG+4*i}, v{vG+4*(i+h)}", f"v_add_f32 v{vG+4*i+2}, v{vG+4*i+2}, v{vG+4*(i+h)+2}"]
                n = h
            tail += [f"v_mov_b32 v{vG+1}, v{vG+2}"]
            tail += f"s_lshr_b32 s{sT0}, s{sW}, 1\ns_lshl_b32 s{sT0}, s{sT0}, 9\ns_and_b32 s{sT1}, s{sW}, 1\ns_lshl_b32 s{sT1}, s{sT1}, 3\ns_add_u32 s{sT0}, s{sT0}, s{sT1}".split('\n')
            tail += [f"v_and_b32 v13, 0x1f0, v{vL16}", f"v_add_u32 v13, s{sT0}, v13"]
            C = vG + 8
            for t in range(3):
                tail += [f"v_accvgpr_read_b32 v14, a{aCS+16*t}", f"v_cvt_pk_bf16_f32 v{C+2*t+1}, v14, 0", f"v_lshlrev_b32 v15, 16, v{C+2*t+1}",
                         "v_sub_f32 v14, v14, v15", f"v_cvt_pk_bf16_f32 v{C+2*t}, v15, v14", f"ds_write_b64 v13, {vr(C+2*t,2)} offset:{t*KB}"]
            fin = fin_stats(vST, vEXT, vRS)[NTREE:] + qkv_consts(vT, vRS, vR)
            tail += fin[:18]
            tail += ["s_waitcnt lgkmcnt(0)", "s_barrier"] + [f"ds_read_b128 {vr(C+4*t)}, v{vL16} offset:{t*KB}" for t in range(3)] + fin[18:]
            tail += f"s_lshl_b32 s{sCc}, s{sA}, 18\ns_lshl_b32 s{sT1}, s{sRB}, 11\ns_add_u32 s{sCc}, s{sCc}, s{sT1}".split('\n')
            tail += f"s_mul_i32 s{sB}, s{sRB}, {112*KB}\ns_lshl_b32 s{sT1}, s{sA}, 11\ns_add_u32 s{sB}, s{sB}, s{sT1}".split('\n')
            n_ = -(-len(tail) // 15)
            side += [lambda c=tail[i:i+n_]: [k(x) for x in c] for i in range(0, len(tail), n_)]
        for p, (kind, b) in enumerate(mm):
            if kind == 'c':
                acc = ar(aCS + 16*b, 16)
                k(f"v_mfma_f32_32x32x16_bf16 {acc}, {ar(192)}, {ar(48*(j & 1) + 4*b)}, {'0' if j == 0 else acc}")
            else:
                ks = 4*j + b // 3; t = b % 3
                acc = vr(vACC + 16*t, 16); w = ar(48*(j & 1) + 4*b); x = vr(vX + 4*ks)
                A, B = (x, w) if t == 1 else (w, x)
                k(f"v_mfma_f32_32x32x16_bf16 {acc}, {A}, {B}, {'0' if ks == 0 else acc}")
            if j == 0 and p == 0: mark(k, 'm0')
            for _ in range(2):
                if rl: k.lg(rl.pop(0))
            if side and (j == 7 or p % 2 == 0 or 2 * len(side) > 15 - p): side.pop(0)()
            if len(side) > 14 - p: side.pop(0)()
        assert not rl
    while side: side.pop(0)()
    mark(k, 'loop')
    k.wait_all(vm=False)
    for t in range(3):
        c = vG + 8 + 4*t
        acc = vr(vACC + 16*t, 16)
        A, B = (vr(vEXT), vr(c)) if t == 1 else (vr(c), vr(vEXT))
        k(f"v_mfma_f32_32x32x16_bf16 {acc}, {A}, {B}, {acc}")
    t_ = None
    for x in qk_tile(vACC, KVF(0), vRS, " sc1", vX) + v_tile(vACC+16, 0, vR, vX+8) + qk_tile(vACC+32, QF, vRS+1, " sc1", vX+16):
        if x.startswith('buffer'): t_ = k.vm(x)
        else: k(x)
    mark(k, 'st')
    return t_, t_

def ph_qkv(k, L, ring, b0):
    vX, vACC, vST, vEXT, vRS, vT, vR = 16, 144, 192, 8, 6, 224, 232
    rb_128(k)
    k(f"s_and_b32 s{sA}, s{sC}, 15")
    k(f"s_lshl_b32 s{sX}, s{sRB}, 15\ns_add_u32 s{sX}, s{sX}, {XF}")
    set_lds_bases(k)
    QE = QKV_QE
    seq = [(ks, t) for ks in range(33) for t in ((0, 1, 2) if ks < QE else (0, 1))] + [(ks, 2) for ks in range(QE, 33)]
    ops = [dict(b=b0 + (2*ks + t if t < 2 else 66 + ks), bmin=b0, bmax=b0 + 98, xi=(ks if ks < 32 else None), x=(vr(vX+4*ks) if ks < 32 else vr(vEXT)),
                acc=vr(vACC+16*t, 16), swap=(t == 1), first=(ks == 0)) for ks, t in seq]
    xq = XLoader(k, 32, lambda i: vr(vX+4*i), lin_src(k))
    res = {}
    se = stats_emitters(k, vST, res)
    k(f"s_lshl_b32 s{sCc}, s{sA}, 18\ns_lshl_b32 s{sT1}, s{sRB}, 11\ns_add_u32 s{sCc}, s{sCc}, s{sT1}")
    k(f"s_mul_i32 s{sB}, s{sRB}, {112*KB}\ns_lshl_b32 s{sT1}, s{sA}, 11\ns_add_u32 s{sB}, s{sB}, s{sT1}")
    assert ring.issued == ring.total
    g = Gemm(k, ring, ops, {0})
    g.start()
    ring.issue_n(4)
    publish_local(k, G.tx)
    ring.issue_n(4)
    su = [x.replace('v13', 'v246').replace('v14', 'v247') for x in att_setup(L)]
    k(f"s_lshl_b32 s{sF}, s{sRB}, 7\ns_add_u32 s{sF}, s{sF}, {FLOC(L-1, 8)}")
    poll16(k)
    aps = stats_poll(k, FLOC(L-1,7) - FLOC(L-1,8))
    fin = fin_stats(vST, vEXT, vRS) + qkv_consts(vT, vRS, vR)
    full = qk_tile(vACC, KVF(L), vRS, " sc1", vST) + v_tile(vACC+16, L, vR, vST+16)
    alu_ = [x for x in full if x.startswith('v_')]
    glob = [x for x in full if not x.startswith('v_')]
    glob = [x.replace(', v12,', ', v246,') for x in glob]
    epi = alu_ + ["v_mov_b32 v246, v12"] + VLOC
    if KV_LOC:
        epi += [f"s_lshl_b32 s{sE}, s{sA}, 11", f"s_add_u32 s{sE}, s{sE}, s{sB}", f"s_add_u32 s{sE}, s{sE}, {HF + 32*KB}",
                f"buffer_store_dwordx4 {vr(vST)}, v{vL16}, {srd(sWS)}, s{sE} offen",
                f"buffer_store_dwordx4 {vr(vST+4)}, v{vL16}, {srd(sWS)}, s{sE} offen offset:2048",
                f"buffer_store_dwordx4 {vr(vST+16)}, v12, {srd(sWS)}, s{sE} offen offset:1024",
                f"buffer_store_dwordx4 {vr(vST+20)}, v12, {srd(sWS)}, s{sE} offen offset:1536", "#loc"]
    epi += glob + ex_kv(vST, vST+16)
    st = dict(i=0, j=0, t=None, loc=None)
    def put(x):
        if x == '#loc': st['loc'] = st['t']
        elif x.startswith('buffer'): st['t'] = k.vm(x)
        elif x.startswith('ds_'): k.lg(x)
        else: k(x)
    def filler(m):
        if aps and m == 4: aps.issue()
        if m == 22:
            if aps: aps.check()
            for e in se: e()
        if m < 10 or m > 22:
            for _ in range(3):
                if su: k(su.pop(0))
        if 44 <= m < 64 + QE:
            assert not su
            if st['i'] == 0: k.wait(vm=res['t'])
            for _ in range(3):
                if st['i'] < len(fin): k(fin[st['i']]); st['i'] += 1
        if m >= 68 + QE:
            for _ in range(QKV_EPI):
                if st['j'] < len(epi): put(epi[st['j']]); st['j'] += 1
    g.run(xq, n0=8, filler=filler)
    while st['j'] < len(epi):
        put(epi[st['j']]); st['j'] += 1
    assert st['i'] == len(fin)
    if KV_LOC and QF_AT == 0: q_flag(k, L, st['loc'])
    q_out(k, vACC + 32, vRS + 1, vST + 8, vT)
    if KV_LOC and QF_AT == 1: q_flag(k, L, st['loc'])
    mark(k, 'st')
    return st['t'], st['loc']

def code_touch(k, vd, skip=0):
    if not CODE_TOUCH: return
    pc = k.newlabel('pc')
    k(f"s_getpc_b64 s[{sPC}:{sPC+1}]")
    k.label(pc)
    k(f"s_min_u32 s{sSPIN}, s{sCT}, L_end-{pc}-1024\ns_add_u32 s{sPC}, s{sPC}, s{sSPIN}\ns_addc_u32 s{sPC+1}, s{sPC+1}, 0")
    k.vm(f"global_load_dword v{vd}, v{vL16}, s[{sPC}:{sPC+1}] offset:{skip}")

def flag_touch(k, L, va, vd):
    if not FL_TOUCH: return
    k(f"v_bfe_u32 v{va}, v0, 3, 3\nv_lshlrev_b32 v{va}, 6, v{va}\nv_and_or_b32 v{va}, v0, 7, v{va}\nv_lshlrev_b32 v{va}, 7, v{va}")
    k(f"s_lshl_b32 s{sT3}, s{sG}, 10\ns_add_u32 s{sT3}, s{sT3}, {FLOC(L,0)}")
    k.vm(f"buffer_load_dword v{vd}, v{va}, {srd(sWS)}, s{sT3} offen sc1")

EX = 112 * KB
vK, vV, vIDX, vL128, vTX, vP2, vCP = 248, 249, 250, 251, 252, 253, 254
sOD, sLC, sTH, sTW, sFO, sF2, sKX = 64, 66, 72, 73, 79, 68, 69
def att_setup(L):
    o = f"""s_and_b32 s{sT0}, s{sC}, 15
s_lshl_b32 s{sF2}, s{sT0}, 11
s_add_u32 s{sF2}, s{sF2}, {FKV(L)}
s_lshl_b32 s{sT0}, s{sT0}, 1
s_and_b32 s{sT1}, s{sW}, 1
s_add_u32 s{sT0}, s{sT0}, s{sT1}
s_lshr_b32 s{sT1}, s{sW}, 1
s_lshl_b32 s{sKX}, s{sG}, 1
s_add_u32 s{sKX}, s{sKX}, s{sC4}
s_lshl_b32 s{sT2}, s{sKX}, 1
s_add_u32 s{sT2}, s{sT2}, s{sT1}
s_lshl_b32 s{sFO}, s{sT2}, 5
s_add_u32 s{sFO}, s{sFO}, s{sT0}
s_lshl_b32 s{sFO}, s{sFO}, 3
s_add_u32 s{sFO}, s{sFO}, {FLOC(L,0)}
s_mul_i32 s{sOD}, s{sT2}, {224*KB}
s_lshl_b32 s{sT3}, s{sT0}, 10
s_add_u32 s{sOD}, s{sOD}, s{sT3}
s_add_u32 s{sOD}, s{sOD}, {HF}
s_add_u32 s{sOD+1}, s{sOD}, {112*KB}
s_xor_b32 s{sT2}, s{sT2}, 2
s_mul_i32 s{sLC}, s{sT2}, {224*KB}
s_lshl_b32 s{sT3}, s{sT0}, 11
s_add_u32 s{sLC}, s{sLC}, s{sT3}
s_add_u32 s{sLC}, s{sLC}, {HF + 32*KB}
s_add_u32 s{sLC+1}, s{sLC}, {112*KB}
s_lshl_b32 s{sKX}, s{sKX}, 13
s_lshl_b32 s{sT0}, s{sT0}, 17
s_lshl_b32 s{sT1}, s{sT1}, 12
s_add_u32 s{sT0}, s{sT0}, s{sT1}
s_add_u32 s{sKX}, s{sKX}, s{sT0}
s_add_u32 s{sKX}, s{sKX}, {KVF(L)}
v_and_b32 v13, 0x33, v0
v_bfe_u32 v14, v0, 2, 1
v_lshl_or_b32 v13, v14, 3, v13
v_bfe_u32 v14, v0, 3, 1
v_lshl_or_b32 v13, v14, 2, v13
v_lshlrev_b32 v{vK}, 4, v13
v_and_b32 v13, 15, v0
v_lshlrev_b32 v{vP2}, 7, v13
v_bfe_u32 v14, v0, 5, 1
v_lshl_add_u32 v13, v14, 4, v13
v_lshlrev_b32 v{vV}, 4, v13
v_mov_b32 v{vIDX}, 0xdddddddd
v_lshlrev_b32 v{vL128}, 3, v{vL16}
v_and_b32 v13, 27, v0
v_cmp_eq_u32 vcc, 16, v13
v_mov_b32 v14, 0x3afe3f80
v_cndmask_b32 v{vCP}, 0, v14, vcc
s_lshl_b32 s{sT3}, s{sU}, 2
s_add_u32 s{sT3}, s{sT3}, s{sW}
s_mul_i32 s{sTH}, s{sT3}, {7*KB}
s_add_u32 s{sTH}, s{sTH}, {HF}
s_lshl_b32 s{sT0}, s{sT3}, 11
s_add_u32 s{sT0}, s{sT0}, {XF}
s_lshl_b32 s{sT1}, s{sT3}, 8
s_add_u32 s{sT1}, s{sT1}, {SX}
v_and_b32 v13, 0x780, v{vL128}
v_add_u32 v13, s{sT0}, v13
v_and_b32 v14, 0x80, v{vL128}
v_add_u32 v14, s{sT1}, v14
v_cmp_gt_u32 vcc, 512, v{vL16}
v_cndmask_b32 v{vTX}, v14, v13, vcc
s_lshl_b32 s{sTW}, s{sC4}, 2
s_add_u32 s{sTW}, s{sTW}, s{sW}
s_mul_i32 s{sTW}, s{sTW}, {TOUCH_KBS[L] * KB // 8}
s_add_u32 s{sTW}, s{sTW}, s{sSEG+1}
s_add_u32 s{sTW}, s{sTW}, {(PREFILL - 64)*KB}
s_and_b32 s{sCT}, s{sT3}, 31
s_lshl_b32 s{sCT}, s{sCT}, 10"""
    return o.split('\n')
def ex_kv(pK, pV):
    return [f"s_mul_i32 s{sT3}, s{sW}, {6*KB}", f"s_add_u32 s{sT3}, s{sT3}, {EX}", f"v_add_u32 v240, s{sT3}, v{vL16}", f"v_add_u32 v241, s{sT3}, v12",
            f"ds_write_b128 v240, {vr(pK)}", f"ds_write_b128 v240, {vr(pK+4)} offset:2048",
            f"ds_write_b128 v241, {vr(pV)} offset:1024", f"ds_write_b128 v241, {vr(pV+4)} offset:1536",
            f"s_lshr_b32 s{sT3}, s{sW}, 1", f"s_mul_i32 s{sT3}, s{sT3}, {12*KB}", f"s_and_b32 s{sT2}, s{sW}, 1", f"s_lshl_b32 s{sT2}, s{sT2}, 10",
            f"s_add_u32 s{sT2}, s{sT2}, {EX}", f"s_add_u32 s{sT1}, s{sT2}, s{sT3}", f"v_add_u32 v242, s{sT1}, v{vL16}",
            f"s_sub_u32 s{sT2}, s{sT2}, s{sT3}", f"v_add_u32 v243, s{sT2}, v{vL16}",
            f"s_and_b32 s{sT2}, s{sW}, 1", f"s_lshl_b32 s{sT2}, s{sT2}, 10", f"s_add_u32 s{sT1}, s{sT1}, s{sT2}",
            f"v_add_u32 v244, s{sT1}, v{vK}", f"v_add_u32 v245, s{sT1}, v{vV}"]
VLOC = ["v_lshrrev_b32 v13, 6, v12", "v_and_b32 v13, 0x800, v13", "v_and_b32 v12, 0x1ff, v12", "v_add_u32 v12, v12, v13"]
def q_out(k, a, sc, p0, vT):
    init = [f"v_mfma_f32_32x32x16_bf16 {vr(16+16*q,16)}, {vr(vT+4)}, {vr(vT)}, 0" for q in range(4)]
    init2 = [f"v_mfma_f32_32x32x16_bf16 {vr(80+16*q,16)}, {vr(vT+4)}, {vr(vT)}, 0" for q in range(6)]
    k(f"v_mov_b32 v{vT}, 0")
    for x in init: k(x)
    k(f"v_mov_b32 v{vT}, v{vCP}")
    for half in range(2):
        p = p0 + 4*half
        for j in range(4):
            r = a + 8*half + 2*j
            k(f"v_mul_f32 v{r}, v{r}, v{sc}\nv_mul_f32 v{r+1}, v{r+1}, v{sc}\nv_cvt_pk_bf16_f32 v{p+j}, v{r}, v{r+1}")
            if init2: k(init2.pop(0))
        k.lg(f"ds_write_b128 v240, {vr(p)} offset:{4096 + half*KB}")

def ph_att(k, L, ring, tkv, tloc):
    vO, vKV, vS0, aQ = 16, 80, 176, aWB
    NS = 4; NKV = 8
    vS = [vS0 + 16*i for i in range(NS)]
    sK = sB
    K = lambda t: vr(vKV + 12*(t % NKV))
    V = lambda t, u: vr(vKV + 12*(t % NKV) + 4 + 4*u)
    k.wait_all(vm=False)
    k("s_barrier")
    lt = {}
    lt['k0'] = k.lg(f"ds_read_b128 {K(0)}, v244")
    for s in range(4):
        lt[s] = k.lg(f"ds_read_b128 {ar(aQ+4*s)}, v{242 + (s >> 1)} offset:{4096 + (s & 1)*6*KB + (12*KB if s >> 1 else 0)}")
    k(f"s_mov_b64 exec, s[{sMSK}:{sMSK+1}]")
    for t in range(2):
        for u in range(2): lt['v'] = k.lg(f"ds_read_b128 {V(t,u)}, v245 offset:{t*6*KB + KB + u*512}")
    k("s_mov_b64 exec, -1")
    lt['k1'] = k.lg(f"ds_read_b128 {K(1)}, v244 offset:{6*KB}")
    mark(k, 'pre')
    if L and KV_LOC and QF_AT == 2: q_flag(k, L, tloc)
    kt = {}
    def ldP(x):
        if x == 1 and L and KV_LOC: src = [(sLC, 0), (sLC + 1, 0)]
        else:
            k(f"s_xor_b32 s{sK}, s{sKX}, {x << 13}")
            src = [(sK, 0), (sK, 2*KB)]
        for z in range(2): k.vm(f"buffer_load_dwordx4 {K(2*x+z)}, v{vK}, {srd(sWS)}, s{src[z][0]} offen offset:{src[z][1]} sc1")
        k(f"s_mov_b64 exec, s[{sMSK}:{sMSK+1}]")
        for z in range(2):
            for u in range(2): t_ = k.vm(f"buffer_load_dwordx4 {V(2*x+z,u)}, v{vV}, {srd(sWS)}, s{src[z][0]} offen offset:{src[z][1] + KB + u*512} sc1")
        k("s_mov_b64 exec, -1")
        kt[2*x] = kt[2*x+1] = t_
    NT = ATT_NT
    steps = [(t, q) for t in range(32 - NT) for q in range(4)] + [(t, q) for q in (2, 3, 0, 1) for t in range(32 - NT, 32)]
    n = len(steps)
    LA = NS - 1
    def qk(i):
        t, q = steps[i]
        if t < 2: k.wait(lg=lt[q] if t == 0 else lt['k1'])
        else: k.wait(vm=kt[t])
        k(f"v_mfma_f32_32x32x16_bf16 {vr(vS[i % NS],16)}, {K(t)}, {ar(aQ+4*q)}, 0")
    def pv(i, u):
        t, q = steps[i]
        if t < 2: k.wait(lg=lt['v'])
        k(f"v_smfmac_f32_32x32x32_bf16 {vr(vO+16*q,16)}, {V(t,u)}, {vr(vS[i % NS]+8*u,8)}, v{vIDX}")
    for i in range(LA): qk(i)
    mark(k, 'm0')
    ring.limit = PREFILL
    jobs = {}
    def job(i, f, e=10): jobs.setdefault((i, e), []).append(f)
    ap2 = apoll1(k, vP2, 10, sF2)
    late_qk = set()
    if L and KV_LOC:
        def a1():
            k(f"s_xor_b32 s{sT0}, s{sRB}, 4\ns_and_b32 s{sT0}, s{sT0}, 6\ns_lshl_b32 s{sT1}, s{sG}, 4\ns_add_u32 s{sT1}, s{sT1}, s{sA}\ns_lshl_b32 s{sT1}, s{sT1}, 3")
            k(f"s_add_u32 s{sT1}, s{sT1}, s{sT0}\ns_lshl_b32 s{sT1}, s{sT1}, 3\ns_add_u32 s{sD}, s{sT1}, {FLOC(L-1,5)}\nv_and_b32 v12, 8, v0")
            ap1.issue()
        ap1 = apoll1(k, 12, 8, sD)
        job(A1_AT[0], a1, e=2 if A1_AT[0] else 3)
        job(A1_AT[1], lambda: (ap1.check(), ldP(1)))
        job(KVF_AT[L], lambda: (k.wait(lg=lt['k1']), kv_flag(k, L, tkv)))
        job(P2[L][0], ap2.issue)
        job(P2[L][1], lambda: (ap2.check(), ldP(2)))
        job(P2[L][1] + 1, lambda: ldP(3))
    else:
        job(KVF_AT[L], lambda: (k.wait(lg=lt['k1']), kv_flag(k, L, tkv)))
        if L == 0:
            job(KVF_AT[L] + 1, lambda: G.pk.reads(*range(8)))
            for i in range(8): job(KVF_AT[L] + 2 + i // 4, lambda i=i: G.pk.csum(i), e=(0, 4, 8, 13)[i % 4])
        job(P2[L][0], ap2.issue)
        if L == 0 and PK_WAIT:
            job(P2[L][1], lambda: (ap2.check(), ldP(1), ldP(2), ldP(3) if PK_WAIT > 1 else None, G.pk.stores(*range(8)), G.pk.ext()), e=15)
            if PK_WAIT == 1: job(P2[L][1] + 2, lambda: ldP(3))
        else:
            job(P2[L][1], lambda: (ap2.check(), ldP(1), ldP(2)), e=15)
            job(P2[L][1] + 2, lambda: ldP(3))
        late_qk = set(range(8, 8 + LA))
    job(9, lambda: code_touch(k, 5))
    for x in range(4, 16): job(8*(x - 3) + (4 if x == 4 else 0), lambda x=x: ldP(x))
    NR = PREFILL // 16
    if L == 0:
        if PK_WAIT:
            job(PUB_AT, G.pk.pub); CHK_AT = PUB_AT + CHK_GAP
        else: CHK_AT = G.pk.schedule(job) + CHK_GAP
        apk = APoll(k, [f"buffer_load_dwordx2 v[10:11], v12, {srd(sWS)}, s{sX} offen offset:8 sc1"],
                    f"v_cmp_ne_u64 vcc, s[{sTAG}:{sTAG+1}], v[10:11]")
        def chk0():
            k(f"v_accvgpr_read_b32 v12, a213\ns_mov_b32 s{sX}, {FPK}")
            apk.issue()
        job(CHK_AT - 6, chk0)
        apx = APoll(k, [f"buffer_load_dwordx4 v[12:15], v11, {srd(sWS)}, s{sCc} offen sc1"],
                    f"v_cmp_ne_u64 vcc, s[{sTAG}:{sTAG+1}], v[14:15]")
        def mode0():
            k(f"v_and_b32 v11, 0xf80, v{vL128}\ns_lshl_b32 s{sCc}, s{sG}, 12\ns_add_u32 s{sCc}, s{sCc}, {FPK}")
            apx.issue()
        def mode():
            apx.check()
            k(f"s_xor_b32 s{sT2}, s{sTAG}, s{sXCC}")
            k(f"v_cmp_ne_u32 vcc, s{sT2}, v12")
            k(f"s_cmp_eq_u64 vcc, 0\ns_cselect_b32 s{sMODE}, 1, 0")
        job(81, mode0); job(95, mode)
        def chk():
            apk.check()
            k(f"s_and_b32 s{sT2}, s{sC}, 7\ns_lshl_b32 s{sT2}, s{sT2}, 1\ns_lshr_b32 s{sT3}, s{sW}, 1\ns_add_u32 s{sT2}, s{sT2}, s{sT3}")
            k(f"s_mul_i32 s{sT3}, s{sW}, {28*KB}\ns_add_u32 s{sT3}, s{sT3}, {WD}")
            k(f"s_mul_i32 s{sX}, s{sT2}, {112*KB}\ns_add_u32 s{sX}, s{sX}, s{sT3}")
            k(f"s_xor_b32 s{sT2}, s{sT2}, 1\ns_mul_i32 s{sX2}, s{sT2}, {112*KB}\ns_add_u32 s{sX2}, s{sX2}, s{sT3}")
        job(CHK_AT, chk)
        def wsrc(i):
            s_ = sX if i < 28 else sX2
            j = i % 28
            if j and (j & 3) == 0: k(f"s_add_u32 s{s_}, s{s_}, 4096")
            return s_, (j & 3) * KB
        assert not DN16
        wq = XLoader(k, 56, lambda i: ar(aWD + 8*(i % 28) + 4*(i // 28)), wsrc)
        slots = [i for i in range(CHK_AT + 1, 112) if i % 8 in WD_SLOTS]
        work = [lambda: wq.issue_n(4)] * 14
        rw = [ring.issue16] * NR
        seq = []
        while work or rw:
            if work: seq.append(work.pop(0))
            if work: seq.append(work.pop(0))
            if rw: seq.append(rw.pop(0))
        assert len(seq) <= len(slots), (len(seq), len(slots))
        for i, f in zip(slots, seq): job(i, f)
    else:
        for j in range(NR): job(R1_AT + R1_STEP*j, ring.issue16)
    TL = TOUCH_LN; vT_ = vL128 if TL == 64 else 4
    def tch(sreg, j):
        def f():
            if j: k(f"s_add_u32 s{sreg}, s{sreg}, {TL*128}")
            elif TL < 64: k(f"v_and_b32 v4, {(TL-1)*128}, v{vL128}")
            k.vm(f"buffer_load_dword v5, v{vT_}, {srd(sWS)}, s{sreg} offen sc1")
        return f
    for j in range(-(-TOUCH_KBS[L] // TL)): job(TOUCH_AT[L] + j*TOUCH_STEP[L], tch(sTW, j))
    for j in range(-(-56 // TL)): job(TACTS[L] + j*TH_STEP, tch(sTH, j))
    job(TACTS[L] + 4, lambda: k.vm(f"buffer_load_dword v5, v{vTX}, {srd(sWS)}, 0 offen sc1"))
    job(CT_AT, lambda: code_touch(k, 5))
    SC = 136 * KB
    assert PREFILL <= 136
    def red_setup():
        k(f"s_mul_i32 s{sT0}, s{sW}, {6*KB}\ns_add_u32 s{sT0}, s{sT0}, {SC}\nv_add_u32 v13, s{sT0}, v{vL16}")
        k(f"s_xor_b32 s{sT0}, s{sW}, 2\ns_mul_i32 s{sT0}, s{sT0}, {6*KB}\ns_add_u32 s{sT0}, s{sT0}, {SC}\nv_add_u32 v10, s{sT0}, v{vL16}")
    job(112, red_setup)
    def red_write(s):
        z = s & 1
        k.lg(f"ds_write_b128 v10, {vr(vO+16*s)} offset:{z*3*KB}")
        k.lg(f"ds_write_b128 v10, {vr(vO+16*s+4)} offset:{z*3*KB+KB}")
        k.lg(f"ds_write_b32 v10, v{vO+16*s+8} offset:{z*3*KB+2*KB}")
    for i in range(128):
        if steps[i][0] == 31 and steps[i][1] >= 2: job(i + 2, lambda s=steps[i][1]: red_write(s), e=2)
    tl = []
    def red_read():
        k.wait_all()
        k("s_barrier")
        for z in range(2):
            b = vO + 32 + 16*z
            k.lg(f"ds_read_b32 v{b+8}, v13 offset:{z*3*KB+2*KB}")
            k.lg(f"ds_read_b128 {vr(b)}, v13 offset:{z*3*KB}")
            tl.append(k.lg(f"ds_read_b128 {vr(b+4)}, v13 offset:{z*3*KB+KB}"))
    job(127 if NT == 1 else 126, red_read)
    for i, (t, q) in enumerate(steps):
        s = vS[i % NS]
        if i in ATT_MARKS: mark(k, f's{i}')
        if i == 8 and late_qk:
            pv(7, 1)
            for j in sorted(late_qk): qk(j)
        for e in range(16):
            if e == 2 and i > 0 and not (i == 8 and late_qk): pv(i-1, 1)
            if e == 6 and i + LA < n and i + LA not in late_qk: qk(i + LA)
            if e == 10: pv(i, 0)
            for f in jobs.pop((i, e), []): f()
            k(f"v_exp_f32 v{s+e}, v{s+e}")
    pv(n-1, 1)
    assert not jobs, jobs.keys()
    assert ring.issued == PREFILL
    mark(k, 'loop')
    for z in range(2):
        o = vO + 16*z; b = vO + 32 + 16*z
        k.wait(lg=tl[z])
        k(f"v_add_f32 v{o+8}, v{o+8}, v{b+8}\nv_rcp_f32 v{o+9}, v{o+8}")
        for i in range(8): k(f"v_add_f32 v{o+i}, v{o+i}, v{b+i}")
        for j in range(4):
            k(f"v_mul_f32 v{o+2*j}, v{o+2*j}, v{o+9}\nv_mul_f32 v{o+2*j+1}, v{o+2*j+1}, v{o+9}")
            k(f"v_cvt_pk_bf16_f32 v{o+12+j}, v{o+2*j}, v{o+2*j+1}")
        ts = k.vm(f"buffer_store_dwordx4 {vr(o+12)}, v{vL16}, {srd(sWS)}, s{sOD+z} offen")
    mark(k, 'f_st')
    fb = k.newlabel('fb'); back = k.newlabel('fbret')
    LO, HI = f2u(2.0**-60), f2u(2.0**60)
    for z in range(2):
        o = vO + 16*z
        k(f"v_add_f32 v{o}, v{o}, v{o+1}\nv_add_f32 v{o+2}, v{o+2}, v{o+3}\nv_add_f32 v{o+4}, v{o+4}, v{o+5}\nv_add_f32 v{o+6}, v{o+6}, v{o+7}")
        k(f"v_add_f32 v{o}, v{o}, v{o+2}\nv_add_f32 v{o+4}, v{o+4}, v{o+6}\nv_add_f32 v{o}, v{o}, v{o+4}")
        k(f"v_fma_f32 v{o+8}, v{o}, 0, v{o+8}\nv_subrev_u32 v{o+8}, {hex(LO)}, v{o+8}")
    k(f"v_max_u32 v{vO+8}, v{vO+8}, v{vO+24}")
    k(f"v_cmp_lt_u32 vcc, {hex(0 if FORCE_FB else HI - LO)}, v{vO+8}")
    k(f"s_cbranch_vccnz {fb}")
    k.label(back)
    F = [f"{fb}:", "s_waitcnt vmcnt(0)", f"s_and_b32 s{sT0}, s{sKX}, 0xfffe0000",
         f"v_add_u32 v{vK}, s{sT0}, v{vK}", f"v_add_u32 v{vV}, s{sT0}, v{vV}"]
    S, C, M = vS0, vS0 + 16, vS0 + 32
    for z in range(2):
        o = vO + 16*z; Q = ar(aQ + 4*z)
        F += [f"v_mov_b32 v{M}, 0xff800000", f"s_mov_b32 s{sK}, 0", f"{fb}_a{z}:",
              f"buffer_load_dwordx4 {K(0)}, v{vK}, {srd(sWS)}, s{sK} offen sc1", "s_waitcnt vmcnt(0)",
              f"v_mfma_f32_32x32x16_bf16 {vr(S,16)}, {K(0)}, {Q}, 0"]
        F += [f"v_max3_f32 v{M}, v{M}, v{S+2*i}, v{S+2*i+1}" for i in range(8)]
        F += [f"s_add_u32 s{sK}, s{sK}, 2048", f"s_cmp_lt_u32 s{sK}, {64*2048}", f"s_cbranch_scc1 {fb}_a{z}",
              f"v_mov_b32 v{M+1}, v{M}", f"v_permlane32_swap_b32 v{M}, v{M+1}", f"v_max_f32 v{M}, v{M}, v{M+1}"]
        F += [f"v_sub_f32 v{C+i}, 0, v{M}" for i in range(16)] + [f"v_mov_b32 v{o+i}, 0" for i in range(16)]
        F += [f"s_mov_b32 s{sK}, 0", f"{fb}_b{z}:",
              f"buffer_load_dwordx4 {K(0)}, v{vK}, {srd(sWS)}, s{sK} offen sc1",
              f"s_mov_b64 exec, s[{sMSK}:{sMSK+1}]",
              f"buffer_load_dwordx4 {V(0,0)}, v{vV}, {srd(sWS)}, s{sK} offen offset:{KB} sc1",
              f"buffer_load_dwordx4 {V(0,1)}, v{vV}, {srd(sWS)}, s{sK} offen offset:{KB+512} sc1",
              "s_mov_b64 exec, -1", "s_waitcnt vmcnt(0)",
              f"v_mfma_f32_32x32x16_bf16 {vr(S,16)}, {K(0)}, {Q}, {vr(C,16)}"]
        F += [f"v_exp_f32 v{S+i}, v{S+i}" for i in range(16)]
        F += [f"v_smfmac_f32_32x32x32_bf16 {vr(o,16)}, {V(0,u)}, {vr(S+8*u,8)}, v{vIDX}" for u in range(2)]
        F += ["s_nop 15", f"s_add_u32 s{sK}, s{sK}, 2048", f"s_cmp_lt_u32 s{sK}, {64*2048}", f"s_cbranch_scc1 {fb}_b{z}",
              f"v_rcp_f32 v{o+9}, v{o+8}"]
        for j in range(4):
            F += [f"v_mul_f32 v{o+2*j}, v{o+2*j}, v{o+9}", f"v_mul_f32 v{o+2*j+1}, v{o+2*j+1}, v{o+9}", f"v_cvt_pk_bf16_f32 v{o+12+j}, v{o+2*j}, v{o+2*j+1}"]
        F += [f"buffer_store_dwordx4 {vr(o+12)}, v{vL16}, {srd(sWS)}, s{sOD+z} offen"]
    F += ["s_waitcnt vmcnt(0)", f"s_branch {back}"]
    G.far += F
    k(f"s_mov_b32 s{sF}, s{sFO}")
    ring.end16()
    ring.limit = 144
    return ts

def load_res(k, v):
    k(f"s_add_u32 s{sT1}, s{sDST}, {XF}")
    k.vm(f"buffer_load_dwordx4 {vr(v)}, v{vL16}, {srd(sWS)}, s{sT1} offen sc1")
    return k.vm(f"buffer_load_dwordx4 {vr(v+4)}, v{vL16}, {srd(sWS)}, s{sT1} offen offset:1024 sc1")
def add_res(k, acc, v):
    for j in range(8):
        k(f"v_lshlrev_b32 v10, 16, v{v+j}\nv_and_b32 v11, 0xffff0000, v{v+j}")
        k(f"v_add_f32 v{acc+2*j}, v{acc+2*j}, v10\nv_add_f32 v{acc+2*j+1}, v{acc+2*j+1}, v11")

def ph_wo(k, L, ring, tO):
    k.label(f'L_wo{L}')
    vX, vACC, vRES, vSUM, vPK = 16, 80, 112, 120, 136
    k(f"s_lshr_b32 s{sRB}, s{sDST}, 15\ns_lshr_b32 s{sD}, s{sW}, 1")
    k(f"s_mul_i32 s{sX}, s{sRB}, {112*KB}\ns_lshl_b32 s{sT0}, s{sD}, 14\ns_add_u32 s{sX}, s{sX}, s{sT0}\ns_add_u32 s{sX}, s{sX}, {HF}")
    k(f"s_lshl_b32 s{sT0}, s{sD}, 11")
    set_lds_bases(k, sT0)
    seq = []
    for s in range(16):
        seq.append((s, 1))
        if s < 16 - WO_R0: seq.append((s, 0))
    nf = len(seq)
    seq += [(s, 0) for s in range(16 - WO_R0, 16)]
    ops = [dict(b=4*s + a, bmin=0, bmax=63, xi=s, x=vr(vX+4*s), acc=vr(vACC+16*a,16), swap=False, first=(s == 0)) for s, a in seq]
    g = Gemm(k, ring, ops, {0}, stop_issue=WO_STOP)
    rs = {}
    def ldres():
        if L == 0:
            k.vm(f"buffer_load_dwordx4 {vr(vRES)}, v8, {srd(60)}, s{sE} offen")
            rs['t'] = k.vm(f"buffer_load_dwordx4 {vr(vRES+4)}, v8, {srd(60)}, s{sE} offen offset:32")
        else:
            rs['t'] = load_res(k, vRES)
    if not RES_LATE[L]:
        if L == 0: rowmajor_addr(k, 8, sE)
        ldres()
    g.start()
    mark(k, 'f_bar')
    ring.issue_n(PRE_WO)
    publish_local(k, tO)
    mark(k, 'f_pub')
    ring.issue_n(PRE_WO2)
    k(f"s_and_b32 s{sF}, s{sRB}, 0xfe\ns_add_u32 s{sF}, s{sF}, s{sD}\ns_lshl_b32 s{sF}, s{sF}, 7\ns_add_u32 s{sF}, s{sF}, {FLOC(L,0)}")
    SC = 144 * KB
    k(f"s_xor_b32 s{sT0}, s{sW}, 2\ns_lshl_b32 s{sT0}, s{sT0}, 12\ns_add_u32 s{sT0}, s{sT0}, {SC}\nv_add_u32 v6, s{sT0}, v{vL16}")
    k(f"s_lshl_b32 s{sT0}, s{sW}, 12\ns_add_u32 s{sT0}, s{sT0}, {SC}\nv_add_u32 v7, s{sT0}, v{vL16}")
    if RES_LATE[L] and L == 0: rowmajor_addr(k, 8, sE)
    poll16(k)
    mark(k, 'f_poll')
    xq = XLoader(k, 16, lambda i: vr(vX+4*i), lin_src(k))
    xq.issue_n(WO_N0)
    if not RES_LATE[L]:
        for x in res_unpack(vSUM, vRES): k(x)
    st = {}
    def xchg(step):
        if step == 0:
            while g.nread < 32: g.rd()
            for j in range(4): k.lg(f"ds_write_b128 v6, {vr(vACC+16+4*j)} offset:{j*KB}")
        elif step == 1:
            k.wait_all(vm=False)
            ring.limit = None
            ring.sync(64, 0)
            for j in range(4): st['t'] = k.lg(f"ds_read_b128 {vr(vACC+16+4*j)}, v7 offset:{j*KB}")
        st['n'] = step + 1
    def filler(m):
        if m == max(nf + 1, 25): xchg(0)
        if m == max(nf + 4, 28): xchg(1)
    g.run(xq, n0=0, look=16, filler=filler, misc=[ldres] if RES_LATE[L] else [])
    for step in range(st.get('n', 0), 2): xchg(step)
    if RES_LATE[L]:
        k.wait(vm=rs['t'])
        for x in res_unpack(vSUM, vRES): k(x)
    k.wait(lg=st['t'])
    for i in range(16): k(f"v_add_f32 v{vSUM+i}, v{vSUM+i}, v{vACC+16+i}")
    for j in range(8):
        k(f"v_add_f32 v{vACC+2*j}, v{vACC+2*j}, v{vSUM+2*j}\nv_add_f32 v{vACC+2*j+1}, v{vACC+2*j+1}, v{vSUM+2*j+1}")
        k(f"v_cvt_pk_bf16_f32 v{vPK+j}, v{vACC+2*j}, v{vACC+2*j+1}")
    ts = store_x(k, vACC, vPK, L, 1, ring)
    mark(k, 'end')
    return ts

PASSES = ((0, 3), (3, 2), (5, 2))
PBASE = (0, 100, 166)
def ph_up(k, L, ring, b0, tprev):
    vX, vACC, vST, vEXT, vRS = 16, 144, 224, 8, 6
    sH0, sH1 = sD, sE
    rb_128(k)
    k(f"s_and_b32 s{sA}, s{sC}, 15")
    k(f"s_lshl_b32 s{sX}, s{sRB}, 15\ns_add_u32 s{sX}, s{sX}, {XF}")
    set_lds_bases(k)
    if UP16: return ph_up16(k, L, ring, b0, tprev)
    ops = []
    for (t0, nt), pb in zip(PASSES, PBASE):
        for ks in range(33):
            for t in range(t0, t0+nt):
                lo_ = b0 + pb + (ks >> 1)*2*nt
                b = lo_ + (2*(t - t0) + (ks & 1) if ks < 32 else t - t0)
                ops.append(dict(b=b, bmin=lo_, bmax=b, xi=(ks if ks < 32 else None), x=(vr(vX+4*ks) if ks < 32 else vr(vEXT)),
                                acc=vr(vACC+16*t, 16), swap=False, first=(ks == 0)))
    g = Gemm(k, ring, ops, UP_SYNCS, stop_issue=UP_STOP)
    g.start()
    mark(k, 'f_bar')
    ring.issue_n(PRE)
    publish_local(k, tprev)
    mark(k, 'f_pub')
    ring.issue_n(PRE2)
    res = {}
    se = stats_emitters(k, vST, res)
    k(f"s_mul_i32 s{sH0}, s{sRB}, 112\ns_mul_i32 s{sT2}, s{sA}, 7\ns_add_u32 s{sH0}, s{sH0}, s{sT2}\ns_lshl_b32 s{sH0}, s{sH0}, 10\ns_add_u32 s{sH0}, s{sH0}, {HF}")
    k(f"s_add_u32 s{sH1}, s{sH0}, 4096")
    k(f"s_lshl_b32 s{sF}, s{sRB}, 7\ns_add_u32 s{sF}, s{sF}, {FLOC(L,1)}")
    poll16(k)
    mark(k, 'f_poll')
    aps = stats_poll(k, FLOC(L,6) - FLOC(L,1))
    xq = XLoader(k, 32, lambda i: vr(vX+4*i), lin_src(k))
    fin = fin_stats(vST, vEXT, vRS) + [f"v_mul_f32 v{vRS}, v{vRS}, v{vRS}"]
    def epi(t):
        a = vACC + 16*t
        o = []
        for j in range(4):
            o += [f"v_mul_f32 v{a+2*j}, v{a+2*j}, v{vRS}", f"v_mul_f32 v{a+2*j+1}, v{a+2*j+1}, v{vRS}",
                  f"v_mul_f32 v{a+2*j}, v{a+2*j}, v{a+8+2*j}", f"v_mul_f32 v{a+2*j+1}, v{a+2*j+1}, v{a+9+2*j}",
                  f"v_cvt_pk_bf16_f32 v{a+8+j}, v{a+2*j}, v{a+2*j+1}"]
        o.append(f"buffer_store_dwordx4 {vr(a+8)}, v{vL16}, {srd(sWS)}, s{sH0 + (t >> 2)} offen offset:{(t & 3)*KB}")
        return o
    st = dict(i=0, t=None); q = []
    def put(x):
        if x.startswith('buffer'): st['t'] = k.vm(x)
        else: k(x)
    dn = Down(k, L)
    def filler(m):
        if aps and m == 12: aps.issue()
        if aps and m == 30: aps.check()
        if 70 <= m < 96:
            if st['i'] == 0: k.wait(vm=res['t'])
            for _ in range(2):
                if st['i'] < len(fin): k(fin[st['i']]); st['i'] += 1
        if m == 102: q.extend(sum((epi(t) for t in range(0, 3)), []))
        if m == 168: q.extend(sum((epi(t) for t in range(3, 5)), []))
        if UP4 and m == 201: q.extend(epi(5))
        for _ in range(UP_EPI):
            if q: put(q.pop(0))
        if m == 146: code_touch(k, 7)
        if m in UP_PUB:
            assert not q
            if m == UP_PUB[0]:
                k(f"s_lshl_b32 s{sF}, s{sRB}, 4\ns_add_u32 s{sF}, s{sF}, s{sA}\ns_lshl_b32 s{sF}, s{sF}, 3\ns_add_u32 s{sF}, s{sF}, {FLOC(L,9)}")
            publish_local(k, st['t'])
            k(f"s_add_u32 s{sF}, s{sF}, {8*KB}")
            if m == UP_PUB[1]: dn.xq.hold = 20
        if UP_PUB[0] < m and dn.setup:
            for _ in range(3):
                if dn.setup: k(dn.setup.pop(0))
        if m in DN_POLL: dn.ap.issue()
        if m in DN_CHK:
            dn.ap.check()
            k(f"s_add_u32 s{dn.sFl}, s{dn.sFl}, {8*KB}")
        if m > DN_CHK[0] and m % 2 and not (ring.can_issue() and m < UP_STOP): dn.xq.issue_n(1)
    if L == 0: ring.limit = 296 + QW_UP
    g.run(xq, look=UP_LOOK, filler=filler, misc=se, misc_from=32, skip=UP_SKIP[L])
    assert st['i'] == len(fin) and not dn.setup and ring.issued == min(ring.total, 296 + QW_UP)
    dn.xq.hold = 36 if len(DN_CHK) > 1 else 24
    for t in range(6 if UP4 else 5, 7):
        for i, x in enumerate(epi(t)):
            put(x)
            if i in (4, 14): dn.xq.issue_n(1)
    mark(k, 'end')
    dn.tB = st['t']
    return dn

def ph_up16(k, L, ring, b0, tprev):
    vX, vACC, vST, vEXT, vRS, vXM = 16, 144, 224, 8, 6, 12
    sH0, sH1 = sD, sE
    D, NB = 5, 8
    k(f"v_bfe_u32 v8, v0, 4, 2\nv_lshlrev_b32 v8, 9, v8\nv_and_b32 v9, 15, v0\nv_lshl_add_u32 v{vXM}, v9, 4, v8")
    k("v_and_b32 v9, 3, v0\nv_bfe_u32 v10, v0, 2, 1\nv_lshl_or_b32 v9, v10, 3, v9\nv_bfe_u32 v10, v0, 3, 1\nv_lshl_or_b32 v9, v10, 2, v9")
    k(f"v_lshl_add_u32 v{vB}, v9, 4, v8\nv_add_u32 v{vB+1}, 0x10000, v{vB}\nv_add_u32 v{vB+2}, 0x20000, v{vB}")
    units = []
    for (t0, nt), pb in zip(PASSES, PBASE):
        for K in range(16):
            for t in range(t0, t0+nt):
                for ch in range(2):
                    lo_ = b0 + pb + K*2*nt
                    units.append(dict(b=lo_ + 2*(t - t0), bmin=lo_, bmax=lo_ + 2*(t - t0) + 1, K=K, t=t, ch=ch))
        for t in range(t0, t0+nt):
            b = b0 + pb + 32*nt + t - t0
            units.append(dict(b=b, bmin=b0 + pb + 32*nt, bmax=b, K=16, t=t, e0=b0 + pb + 32*nt))
    M = len(units); syncs = sorted(UP_SYNCS)
    tl = {}; S = dict(nread=0)
    def rd():
        m = S['nread']; o = units[m]; w = aWB + 4*(m % NB)
        assert o['bmax'] < ring.visible, (m, o, ring.visible)
        a = ring.addr(o['b'])
        if o['K'] < 16:
            assert ring.addr(o['b'] + 1) == a + KB
            a += o['ch'] * 256
            tl[m] = k.lg(f"ds_read_b128 {ar(w)}, v{vB + (a >> 16)} offset:{a & 0xffff}")
        else:
            a0 = ring.addr(o['e0'])
            if o['b'] == o['e0']:
                if a0 != S['a0']: k(f"v_add_u32 v13, {a0 - S['a0']}, v13")
                S['a0'] = a0
            assert a >= a0
            k.lg(f"ds_read_b64 {ar(w,2)}, v13 offset:{a - a0}")
            tl[m] = k.lg(f"ds_read_b64 {ar(w+2,2)}, v13 offset:{a - a0 + 256}")
        S['nread'] += 1
    def need_until(m):
        nxt = [x for x in syncs if x > m]
        last = min((nxt[0] if nxt else M) - 1 + D, M - 1)
        return max(o['bmax'] for o in units[:last+1]) + 1
    ring.sync(units[0]['bmin'], need_until(0))
    for _ in range(D): rd()
    mark(k, 'f_bar')
    ring.issue_n(PRE)
    publish_local(k, tprev)
    mark(k, 'f_pub')
    res = {}
    se = stats_emitters(k, vST, res)
    k(f"s_mul_i32 s{sH0}, s{sRB}, 112\ns_mul_i32 s{sT2}, s{sA}, 7\ns_add_u32 s{sH0}, s{sH0}, s{sT2}\ns_lshl_b32 s{sH0}, s{sH0}, 10\ns_add_u32 s{sH0}, s{sH0}, {HF}")
    if DN16:
        k(f"s_bitcmp0_b32 s{sA}, 0\ns_cselect_b32 s{sH1}, -1, 1\ns_cselect_b32 s{sT2}, 7, -1\ns_lshl_b32 s{sH1}, s{sH1}, 10\ns_lshl_b32 s{sT2}, s{sT2}, 10\ns_add_u32 s{sH0}, s{sH0}, s{sT2}")
    else: k(f"s_add_u32 s{sH1}, s{sH0}, 4096")
    k(f"s_lshl_b32 s{sF}, s{sRB}, 7\ns_add_u32 s{sF}, s{sF}, {FLOC(L,1)}")
    poll16(k)
    mark(k, 'f_poll')
    aps = stats_poll(k, FLOC(L,6) - FLOC(L,1))
    def xsrc(i):
        if i and (i & 3) == 0: k(f"s_add_u32 s{sX}, s{sX}, 4096")
        return sX, ((i >> 1) & 1) * 2048 + (i & 1) * 256
    xq = XLoader(k, 32, lambda i: vr(vX+4*i), xsrc, va=vXM)
    fin = fin_stats(vST, vEXT, vRS) + [f"v_mul_f32 v{vRS}, v{vRS}, v{vRS}", f"v_permlane16_swap_b32 v{vEXT}, v{vEXT+2}", f"v_permlane16_swap_b32 v{vEXT+1}, v{vEXT+3}"]
    fin2 = [f"v_mov_b32 v{vRS+1}, v{vRS}", f"v_permlane16_swap_b32 v{vRS}, v{vRS+1}"]
    def epi(t):
        a = vACC + 16*t
        o = []
        for th in range(2):
            g_ = a + 4*th; u_ = a + 8 + 4*th
            o += [f"v_mul_f32 v{g_+j}, v{g_+j}, v{vRS+th}" for j in range(4)] + [f"v_mul_f32 v{g_+j}, v{g_+j}, v{u_+j}" for j in range(4)]
            o += [f"v_cvt_pk_bf16_f32 v{a+8+2*th}, v{g_}, v{g_+1}", f"v_cvt_pk_bf16_f32 v{a+9+2*th}, v{g_+2}, v{g_+3}"]
        if DN16: o.append(f"s_add_u32 s{sH0}, s{sH0}, s{sH1}")
        o += [f"v_permlane16_swap_b32 v{a+8}, v{a+10}", f"v_permlane16_swap_b32 v{a+9}, v{a+11}"]
        if DN16: o.append(f"buffer_store_dwordx4 {vr(a+8)}, v{vL16}, {srd(sWS)}, s{sH0} offen")
        else: o.append(f"buffer_store_dwordx4 {vr(a+8)}, v{vL16}, {srd(sWS)}, s{sH0 + (t >> 2)} offen offset:{(t & 3)*KB}")
        return o
    st = dict(t=None)
    def put(x):
        if x.startswith('buffer'): st['t'] = k.vm(x)
        else: k(x)
    dn = Down(k, L)
    if L == 0: ring.limit = 296 + QW_UP
    xq.issue_n(6)
    mem = []; alu = []; se = list(se); cur = 0; second = []
    def waits(m):
        nonlocal cur
        xs = [2*p['K'] + 1 for p in units[m:m+2] if p['K'] < 16]
        xt = None
        if xs:
            cur = max(cur, max(xs))
            while xq.n <= max(xs): xq.issue_n(1)
            xt = xq.t[max(xs)]
        n0 = len(k.L)
        k.wait(vm=xt, lg=tl[min(m + 1, M - 1)])
        return len(k.L) - n0
    big = lambda x: x.startswith(('buffer', 'v_permlane', 'v_rsq'))
    def slot(first):
        if mem and (len(mem) > 1 or first):
            last = len(mem) == 1
            mem.pop(0)()
            return last and U16_BIG
        if alu and (first or not (big(alu[0]) if U16_BIG else alu[0].startswith('buffer'))):
            x = alu.pop(0); put(x)
            return big(x) and U16_BIG
        return False
    waits(0)
    for m, o in enumerate(units):
        if m in syncs and m > 0:
            while mem: mem.pop(0)()
            while second: second.pop()()
            ring.sync(o['bmin'], need_until(m))
        w = aWB + 4*(m % NB); a = vACC + 16*o['t']
        if o['K'] < 16:
            mm = [f"v_mfma_f32_16x16x32_bf16 {vr(a+8*o['ch']+4*th)}, {ar(w)}, {vr(vX+8*o['K']+4*th)}, {'0' if o['K'] == 0 else vr(a+8*o['ch']+4*th)}" for th in range(2)]
        else:
            mm = [f"v_mfma_f32_16x16x16_bf16 {vr(a+8*ch+4*th)}, {ar(w+2*ch,2)}, {vr(vEXT+2*th,2)}, {vr(a+8*ch+4*th)}" for ch in range(2) for th in range(2)]
        k(mm[0])
        if m == 0: mark(k, 'm0')
        if m in GEMM_MARKS.get(G.ph, ()): mark(k, f'm{m}')
        if S['nread'] < M: rd()
        else: slot(True)
        if not (m % 2 and m + 1 < M and waits(m + 1)): slot(False)
        for x in mm[1:-1]:
            k(x); slot(True) or slot(False)
        k(mm[-1])
        if aps and m == 12: aps.issue()
        if aps and m == 30: aps.check()
        if m == 34:
            a0 = S['a0'] = ring.addr(b0 + 96)
            alu += f"v_and_b32 v13, 0xf0, v{vB}\nv_bfe_u32 v7, v0, 5, 1\nv_lshl_add_u32 v13, v7, 9, v13\nv_bfe_u32 v7, v0, 4, 1\nv_lshl_add_u32 v13, v7, 3, v13\nv_add_u32 v13, {a0}, v13".split('\n')
            alu += f"s_lshl_b32 s{sF}, s{sRB}, 4\ns_add_u32 s{sF}, s{sF}, s{sA}\ns_lshl_b32 s{sF}, s{sF}, 3\ns_add_u32 s{sF}, s{sF}, {FLOC(L,9)}".split('\n')
            alu += TAGMOV + [x for x in dn.setup if x.startswith('s_')]
            dn.setup = [x for x in dn.setup if not x.startswith('s_')]
            if CODE_TOUCH:
                pc = k.newlabel('pc')
                alu += [f"s_getpc_b64 s[{sPC}:{sPC+1}]\n{pc}:", f"s_min_u32 s{sT3}, s{sCT}, L_end-{pc}-1024",
                        f"s_add_u32 s{sPC}, s{sPC}, s{sT3}\ns_addc_u32 s{sPC+1}, s{sPC+1}, 0"]
        if m == U16_FIN:
            assert not alu
            k.wait(vm=res['t']); alu += fin + fin2
        if m == 95: assert not alu
        if m == 100:
            assert xq.n == xq.total
            if CODE_TOUCH: k.vm(f"global_load_dword v255, v{vL16}, s[{sPC}:{sPC+1}]")
            alu += sum((epi(t) for t in range(0, 3)), []) + dn.setup; dn.setup = []
        if m == 167: alu += sum((epi(t) for t in range(3, 5)), [])
        if m in U16_PUB:
            assert not alu, (m, len(alu))
            publish_local(k, st['t'], movs=False)
            alu.append(f"s_add_u32 s{sF}, s{sF}, {8*KB}")
            if m == U16_PUB[1]: dn.xq.hold = 20
        if m in U16_POLL: dn.ap.issue()
        if m == U16_CHK:
            dn.ap.check()
            alu += [f"s_add_u32 s{dn.sFl}, s{dn.sFl}, {8*KB}"] + TAGMOV
        if m % 2 == 0 and not mem:
            rok = second or (m < UP_STOP and (ring.can8() or (ring.can_issue() and not ring.pair)))
            if not second and xq.n < xq.total and ring.issued >= b0 + U16_HOLD: rok = False
            mok = se and m >= 32
            if xq.n < xq.total and (xq.n - cur < UP_LOOK or not (rok or mok)): mem.append(lambda: xq.issue_n(1))
            elif mok: mem.append(se.pop(0))
            elif second: mem.append(second.pop())
            elif rok and ring.can8():
                p1, p2 = ring.parts8(); mem += p1; second += p2
            elif rok: mem += ring.parts()
            elif m > U16_CHK and dn.xq.n < dn.xq.hold: mem.append(lambda: dn.xq.issue_n(1))
        slot(True) or slot(False)
    while mem: mem.pop(0)()
    while second: second.pop()()
    ring.end8()
    assert not alu and not se and ring.issued == min(ring.total, 296 + QW_UP)
    dn.xq.hold = 24
    for t in range(5, 7):
        for i, x in enumerate(epi(t)):
            put(x)
            if i in (4, 14): dn.xq.issue_n(1)
    mark(k, 'end')
    dn.tB = st['t']
    return dn

class Down:
    NX = 36
    def __init__(self, k, L):
        self.k = k; self.L = L
        sXa, sXb, sFl = sB, sX2, sCc
        self.sFl = sFl
        self.setup = (f"s_lshr_b32 s{sT0}, s{sDST}, 15\ns_mul_i32 s{sT1}, s{sW}, {28*KB}\ns_add_u32 s{sT1}, s{sT1}, {HF}\n"
                      f"s_mul_i32 s{sXa}, s{sT0}, {112*KB}\ns_add_u32 s{sXa}, s{sXa}, s{sT1}\n"
                      f"s_xor_b32 s{sT2}, s{sT0}, 1\ns_mul_i32 s{sXb}, s{sT2}, {112*KB}\ns_add_u32 s{sXb}, s{sXb}, s{sT1}\n"
                      f"v_lshlrev_b32 v12, 3, v0\nv_and_b32 v12, 0x98, v12\n"
                      f"s_and_b32 s{sFl}, s{sT0}, 0xfe\ns_lshl_b32 s{sFl}, s{sFl}, 7\ns_lshl_b32 s{sT1}, s{sW}, 5\ns_add_u32 s{sFl}, s{sFl}, s{sT1}\n"
                      f"s_add_u32 s{sFl}, s{sFl}, {FLOC(L,9)}").split('\n')
        self.order = order = [7*c + t for t0, nt in (((0, 3), (3, 2), (5, 1), (6, 1)) if UP4 else PASSES) for c in range(4) for t in range(t0, t0+nt)]
        cur = {sXa: 0, sXb: 0}
        if DN16:
            assert UP16
            self.setup = [x for x in self.setup if x.startswith('s_')]
            self.order = order = [2, 3, 4, 9, 10, 11, 1, 5, 8, 12, 0, 6, 7, 13]
            def src16(i):
                s_ = sXa if (i & 2) == 0 else sXb
                r = 2 * order[i >> 2]
                if not 0 <= r - cur[s_] < 4:
                    d = (r - cur[s_]) * KB
                    k(f"s_add_u32 s{s_}, s{s_}, {d}" if d > 0 else f"s_sub_u32 s{s_}, s{s_}, {-d}")
                    cur[s_] = r
                return s_, (r - cur[s_]) * KB + (i & 1) * 256
            self.xr = lambda i: vr(144 + 4*(i % 36) if (i % 36) < 20 else 80 + 4*((i % 36) - 20))
            self.xq = XLoader(k, 56, self.xr, src16, va=12)
            self.xq.hold = 12
            self.ap = APoll(k, ["v_lshlrev_b32 v14, 3, v0", "v_and_b32 v14, 0x98, v14",
                                f"buffer_load_dwordx2 v[14:15], v14, {srd(sWS)}, s{sFl} offen sc1"], f"v_cmp_ne_u64 vcc, s[{sTAG}:{sTAG+1}], v[14:15]")
            return
        def src(i):
            s_ = sXa if (i & 1) == 0 else sXb
            r = order[i >> 1]
            if not 0 <= r - cur[s_] < 4:
                d = (r - cur[s_]) * KB
                k(f"s_add_u32 s{s_}, s{s_}, {d}" if d > 0 else f"s_sub_u32 s{s_}, s{s_}, {-d}")
                cur[s_] = r
            return s_, (r - cur[s_]) * KB
        self.xr = lambda i: vr(144 + 4*(i % 36) if (i % 36) < 20 else 80 + 4*((i % 36) - 20))
        self.xq = XLoader(k, 56, self.xr, src)
        self.xq.hold = 12
        self.ap = apoll1(k, 12, 14, sFl)

def load_res16(k, v):
    k(f"v_and_b32 v13, 0x2f0, v{vL16}\nv_bfe_u32 v5, v0, 4, 1\nv_lshl_add_u32 v13, v5, 3, v13\ns_add_u32 s{sT1}, s{sDST}, {XF}")
    for ch in range(2):
        for th in range(2):
            t = k.vm(f"buffer_load_dwordx2 {vr(v+4*ch+2*th,2)}, v13, {srd(sWS)}, s{sT1} offen offset:{ch*KB + th*256} sc1")
    return t
def res_unpack(dst, v):
    o = []
    for j in range(8): o += [f"v_lshlrev_b32 v{dst+2*j}, 16, v{v+j}", f"v_and_b32 v{dst+2*j+1}, 0xffff0000, v{v+j}"]
    return o

def ph_down(k, L, ring, dn):
    vACC, vRES, vPK, vSUM = 16, 240, 240, 224
    final = L == 1
    xq = dn.xq; order = dn.order; NX = dn.NX
    if len(DN_CHK) > 1: xq.hold = 40
    SC = 108 * KB
    side = []
    for a in range(1, 4):
        side += f"s_xor_b32 s{sT0}, s{sW}, {a}\ns_mul_i32 s{sT0}, s{sT0}, {12*KB}\ns_add_u32 s{sT0}, s{sT0}, {SC + (a-1)*4*KB}\nv_add_u32 v{5+a}, s{sT0}, v{vL16}".split('\n')
    side += f"s_mul_i32 s{sT0}, s{sW}, {12*KB}\ns_add_u32 s{sT0}, s{sT0}, {SC}\nv_add_u32 v9, s{sT0}, v{vL16}".split('\n')
    if final and OUT_T:
        side += (f"s_and_b32 s{sT0}, s{sW}, 1\ns_mul_i32 s{sT0}, s{sT0}, {32*144}\ns_lshr_b32 s{sT2}, s{sW}, 1\ns_lshl_b32 s{sT2}, s{sT2}, 6\ns_add_u32 s{sT0}, s{sT0}, s{sT2}\n"
                 f"v_and_b32 v10, 31, v0\nv_mul_u32_u24 v10, 144, v10\nv_bfe_u32 v11, v0, 5, 1\nv_lshl_add_u32 v10, v11, 4, v10\nv_add_u32 v10, s{sT0}, v10\n"
                 f"s_mul_i32 s{sT0}, s{sW}, {16*144}\nv_bfe_u32 v13, v0, 3, 3\nv_mul_u32_u24 v11, 144, v13\nv_and_b32 v5, 7, v0\nv_lshl_add_u32 v11, v5, 4, v11\nv_add_u32 v11, s{sT0}, v11\n"
                 f"v_lshlrev_b32 v13, 10, v13\nv_lshl_add_u32 v13, v5, 4, v13\n"
                 f"s_and_b32 s{sT0}, s{sDST}, 0xffff0000\ns_lshl_b32 s{sT2}, s{sW}, 14\ns_add_u32 s{sT0}, s{sT0}, s{sT2}\n"
                 f"s_and_b32 s{sT2}, s{sC}, 7\ns_lshl_b32 s{sT2}, s{sT2}, 7\ns_add_u32 s{sT0}, s{sT0}, s{sT2}\ns_add_u32 s{sT2}, s{sT0}, 8192").split('\n')
    R, R0 = DN_R, DN_R0
    seq = []
    for s in range(28 - R):
        seq += [(s, a) for a in (3, 2, 1)]
        if s < 28 - R0: seq.append((s, 0))
    seq += [(s, a) for a in (3, 2, 1) for s in range(28 - R, 28)] + [(s, 0) for s in range(28 - R0, 28)]
    fx = (lambda s_, a_: 4*(s_ >> 1) + 2*(a_ & 1)) if DN16 else (lambda s_, a_: 2*s_ + (a_ & 1))
    lo = [min(fx(s_, a_) for s_, a_ in seq[m:]) for m in range(112)]
    wr = []; rt = None; tail = None; res = None; wb = False; adds = []
    for m, (s, a) in enumerate(seq):
        r = order[s >> 1] if DN16 else order[s]
        if len(DN_CHK) == 1 and m == DN_CHK2:
            dn.ap.check()
            k(f"s_add_u32 s{dn.sFl}, s{dn.sFl}, {8*KB}")
            xq.hold = 40
        if m == int(4*DN_PUBB): publish_local(k, dn.tB)
        if UP4 and m == DN_POLL3: dn.ap.issue()
        if UP4 and m == DN_CHK3:
            dn.ap.check()
            k(f"s_add_u32 s{dn.sFl}, s{dn.sFl}, {8*KB}")
            xq.hold = 48
        if m == 4*DN_BAR:
            ring.limit = None
            ring.sync(296, 0)
        if m == 4*DN_POLLB:
            apb = dn.ap
            apb.issue()
            rt = load_res16(k, vRES) if DN16 else load_res(k, vRES)
        if m == 4*DN_CHKB:
            apb.check()
            xq.hold = 56
            xq.issue_n(min(3, lo[m] + NX - xq.n))
        xi = fx(s, a) + (1 if DN16 else 0)
        while xq.n <= xi:
            assert xq.n < xq.hold and xq.n < lo[m] + NX
            xq.issue_n(1)
        k.wait(vm=xq.t[xi])
        if DN16:
            ch = s & 1
            for th in range(2):
                acc = vr(vACC + 16*a + 8*ch + 4*th)
                k(f"v_mfma_f32_16x16x32_bf16 {acc}, {ar(aWD + 16*r + 8*(a >> 1) + 4*ch)}, {dn.xr(xi - 1 + th)}, {'0' if s < 2 else acc}")
                if th == 0:
                    for _ in range(2):
                        if side and res: k(side.pop(0))
                        elif adds and adds[0][0] <= m:
                            _, t_, x = adds.pop(0); k.wait(lg=t_); k(x)
        else:
            acc = vr(vACC + 16*a, 16)
            k(f"v_mfma_f32_32x32x16_bf16 {acc}, {ar(aWD + 8*r + 4*(a >> 1))}, {dn.xr(xi)}, {'0' if s == 0 else acc}")
        if m == 0: mark(k, 'm0')
        if m in GEMM_MARKS.get(G.ph, ()): mark(k, f'm{m}')
        if (m % 2 == 0 or (xq.hold == 56 and m % DN_CR == 0)) and xq.n < min(lo[m] + NX, xq.total, xq.hold): xq.issue_n(1)
        elif m % 2 == 0 and xq.n == xq.total and ring.can_issue(): ring.issue()
        elif m > 4*DN_CHKB + 8:
            if res is None:
                k.wait(vm=rt); res = True
                side += res_unpack(vSUM, vRES)
            for _ in range(2 if DN16 else 4):
                if side: k(side.pop(0))
        if final and WB_MASK is not None and xq.n == xq.total and (WB_EARLY or k.vm_done == k.vm_issued) and not wb:
            wb = True; l_ = k.newlabel('wb')
            k(f"s_lshl_b32 s{sT1}, s{sC}, 2\ns_add_u32 s{sT1}, s{sT1}, s{sW}\ns_and_b32 s{sT1}, s{sT1}, {WB_MASK}")
            if WB_EARLY:
                k(f"s_cbranch_scc0 {l_}")
                k.vm(f"buffer_load_dword v15, off, {srd(sWS)}, s{dn.sFl} sc1")
                k.label(l_ + 'r')
                G.far += [f"{l_}:", "buffer_wbl2 sc1", f"s_branch {l_}r"]
            else:
                k(f"s_cbranch_scc1 {l_}")
                k("buffer_wbl2 sc1")
                k.label(l_)
            print('wbl2 at', m, file=sys.stderr)
        if wr and wr[0][0] <= m:
            assert not side
            for _ in range(min(DN_WR, len(wr))):
                if wr[0][0] <= m: k.lg(wr.pop(0)[1])
            if wr and DN_WR == 1: wr[0] = (max(wr[0][0], m + DN_WGAP), wr[0][1])
            if not wr and a == 0: tail = min(m + 2, 111)
        if s == 27 and a:
            wr += [(m + 2, f"ds_write_b128 v{5+a}, {vr(vACC+16*a+4*j)} offset:{j*KB}") for j in range(4)]
        def fetch(bs):
            k("s_barrier")
            for b in bs:
                for j in range(4): t_ = k.lg(f"ds_read_b128 {vr(vACC+16+16*b+4*j)}, v9 offset:{b*4*KB + j*KB}")
                adds.extend((m + 2, t_, f"v_add_f32 v{vSUM+i}, v{vSUM+i}, v{vACC+16+16*b+i}") for i in range(16))
        if DN_X2 and m == 112 - R0:
            assert all('ds_write_b128 v6,' in x[1] for x in wr)
            k.wait_all(vm=False)
            fetch((2, 1))
        elif tail == m:
            k.wait_all(vm=False)
            fetch((0,) if DN_X2 else (2, 1, 0))
        else:
            for _ in range(2 if DN16 else DN_ADDS):
                if adds and adds[0][0] <= m:
                    _, t_, x = adds.pop(0); k.wait(lg=t_); k(x)
    assert not side and not wr and tail is not None and tail < 112
    for _, t_, x in adds:
        k.wait(lg=t_); k(x)
    if final and not OUT_T: rowmajor_addr(k, 6, sT0)
    for j in range(8):
        k(f"v_add_f32 v{vACC+2*j}, v{vACC+2*j}, v{vSUM+2*j}\nv_add_f32 v{vACC+2*j+1}, v{vACC+2*j+1}, v{vSUM+2*j+1}")
        k(f"v_cvt_pk_bf16_f32 v{vPK+j}, v{vACC+2*j}, v{vACC+2*j+1}")
        if DN16 and j in (3, 7): k(f"v_permlane16_swap_b32 v{vPK+j-3}, v{vPK+j-1}\nv_permlane16_swap_b32 v{vPK+j-2}, v{vPK+j}")
        if final and OUT_T and j in (3, 7): k.lg(f"ds_write_b128 v10, {vr(vPK+j-3)} offset:{(j >> 2)*32}")
    if final and OUT_T:
        k.wait_all(vm=False)
        k("s_barrier")
        t0 = k.lg(f"ds_read_b128 {vr(vPK)}, v11")
        t1 = k.lg(f"ds_read_b128 {vr(vPK+4)}, v11 offset:{8*144}")
        k.wait(lg=t0)
        k.vm(f"buffer_store_dwordx4 {vr(vPK)}, v13, {srd(sAUX)}, s{sT0} offen{OUT_SC}")
        k.wait(lg=t1)
        k.vm(f"buffer_store_dwordx4 {vr(vPK+4)}, v13, {srd(sAUX)}, s{sT2} offen{OUT_SC}")
    elif final:
        k.vm(f"buffer_store_dwordx4 {vr(vPK)}, v6, {srd(sAUX)}, s{sT0} offen{OUT_SC}")
        k.vm(f"buffer_store_dwordx4 {vr(vPK+4)}, v6, {srd(sAUX)}, s{sT0} offen offset:32{OUT_SC}")
    else:
        G.tx = store_x(k, vACC, vPK, L, 8, ring, m16=DN16)
    mark(k, 'end')

def k_main(name):
    k = Asm()
    G.nst = 0
    k(f".globl {name}\n.p2align 8\n.type {name},@function")
    k.label(name)
    if STAMP or PADTO or GATE: k("s_memrealtime s[42:43]")
    mark(k, 'start')
    k("s_cmp_ge_u32 s2, 256")
    k("s_cbranch_scc1 L_abort")
    k(f"s_load_dwordx2 s[{sWS}:{sWS+1}], s[0:1], 72")
    k(f"s_load_dwordx2 s[{sAUX}:{sAUX+1}], s[0:1], 56")
    k("s_load_dwordx2 s[60:61], s[0:1], 0\ns_load_dwordx4 s[64:67], s[0:1], 8\ns_load_dwordx4 s[68:71], s[0:1], 32\ns_load_dwordx2 s[72:73], s[0:1], 48")
    if CT0:
        k("s_getpc_b64 s[88:89]")
        k(f"s_lshr_b32 s90, s2, 3\ns_and_b32 s90, s90, {CT0 - 1}\ns_lshl_b32 s90, s90, 12\nv_lshl_add_u32 v3, v0, 4, s90")
        k.vm("global_load_dword v247, v3, s[88:89]")
    k("v_lshrrev_b32 v2, 6, v0")
    k(f"v_and_b32 v{vL16}, 63, v0")
    k(f"v_readfirstlane_b32 s{sW}, v2")
    k(f"v_lshlrev_b32 v{vL16}, 4, v{vL16}")
    k(f"s_mov_b32 s{sWG}, s2\ns_and_b32 s{sG}, s2, 7\ns_lshr_b32 s{sC}, s2, 3\ns_lshl_b32 s{sW1K}, s{sW}, 10")
    k(f"s_lshr_b32 s{sC4}, s{sC}, 4\ns_lshr_b32 s{sC3}, s{sC}, 3")
    k(f"s_lshl_b32 s{sU}, s{sG}, 5\ns_add_u32 s{sU}, s{sU}, s{sC}")
    k(f"s_lshl_b32 s{sW4K}, s{sW}, 12\ns_lshl_b32 s{sW2K}, s{sW}, 11")
    k(f"s_getreg_b32 s{sXCC}, hwreg(HW_REG_XCC_ID, 0, 4)")
    k(f"v_add_u32 v{vSRC}, s{sW1K}, v{vL16}")
    k(f"s_mov_b32 s{sMSK}, 0xffff\ns_mov_b32 s{sMSK+1}, 0xffff\ns_mov_b32 s{sMODE}, 0")
    k(f"s_and_b32 s{sT0}, s{sC}, 7\ns_mul_i32 s{sSEG}, s{sT0}, {WO_STR}\ns_add_u32 s{sSEG}, s{sSEG}, {WO}")
    k(f"s_lshl_b32 s{sT1}, s{sG}, 2\ns_add_u32 s{sT1}, s{sT1}, s{sC3}\ns_lshl_b32 s{sT1}, s{sT1}, 1\ns_and_b32 s{sT2}, s{sW}, 1\ns_add_u32 s{sT1}, s{sT1}, s{sT2}")
    k(f"s_lshl_b32 s{sT1}, s{sT1}, 5\ns_lshl_b32 s{sT0}, s{sT0}, 2\ns_add_u32 s{sT1}, s{sT1}, s{sT0}\ns_and_b32 s{sT2}, s{sW}, 2\ns_add_u32 s{sT1}, s{sT1}, s{sT2}\ns_lshl_b32 s{sDST}, s{sT1}, 10")
    k(f"s_lshr_b32 s{sSD}, s{sDST}, 12\ns_lshl_b32 s{sSD}, s{sSD}, 9\ns_lshl_b32 s{sT2}, s{sT2}, 2\ns_add_u32 s{sSD}, s{sSD}, s{sT2}\ns_add_u32 s{sSD}, s{sSD}, {SX}")
    k(f"s_and_b32 s{sT0}, s{sC}, 15\ns_mul_i32 s{sSEG+1}, s{sT0}, {WU_STR}\ns_add_u32 s{sSEG+1}, s{sSEG+1}, {WU}")
    k(f"s_mul_i32 s{sSEG+2}, s{sT0}, {WQ_STR}\ns_add_u32 s{sSEG+2}, s{sSEG+2}, {WQ}")
    def late(k):
        if WSOFF: k(f"s_add_u32 s{sWS}, s{sWS}, {WSOFF}\ns_addc_u32 s{sWS+1}, s{sWS+1}, 0")
        k(f"s_add_u32 s{sT0}, s{sWS}, {EP}\ns_addc_u32 s{sT1}, s{sWS+1}, 0")
        k(f"s_load_dwordx2 s[{sTAG}:{sTAG+1}], s[{sT0}:{sT1}], 0")
        k(f"s_and_b32 s{sWS+1}, s{sWS+1}, 0xffff\ns_mov_b32 s{sWS+2}, {0x10000000 - WSOFF}\ns_mov_b32 s{sWS+3}, 0x20000")
        k(f"s_and_b32 s{sAUX+1}, s{sAUX+1}, 0xffff\ns_mov_b32 s{sAUX+2}, {2*MB}\ns_mov_b32 s{sAUX+3}, 0x20000")
    G.ph = 'qkv0'; tk = (ph_qkv0g if Q0G else ph_qkv0)(k, late)
    for L in range(2):
        ring = Ring(k, [(sSEG, 64), (sSEG+1, 232)] + ([(sSEG+2, 100)] if L == 0 else []))
        G.ph = f'att{L}'; tO = ph_att(k, L, ring, *tk)
        G.ph = f'wo{L}'; tx = ph_wo(k, L, ring, tO)
        G.ph = f'up{L}'; tB = ph_up(k, L, ring, 64, tx)
        G.ph = f'dn{L}'; ph_down(k, L, ring, tB)
        G.ph = 'qkv1'
        if L == 0: tk = ph_qkv(k, 1, ring, 296)
    k(f"s_add_u32 s{sT0}, s{sWG}, s{sW}\ns_cmp_lg_u32 s{sT0}, 0\ns_cbranch_scc1 L_fin")
    k(f"s_mov_b32 s{sF}, {EP}")
    publish_local(k, None, force_global=True)
    k.label("L_fin")
    if PADTO:
        k("s_waitcnt vmcnt(0)")
        if PADMIN:
            k("s_load_dwordx2 s[64:65], s[0:1], 64\ns_waitcnt lgkmcnt(0)")
            k("s_not_b32 s66, s42\nv_mov_b32 v8, s66\nv_mov_b32 v9, 0\ns_mov_b64 exec, 1")
            k("global_atomic_umax v9, v8, s[64:65]\ns_waitcnt vmcnt(0)")
            k.label("L_pad0")
            k(f"s_memrealtime s[98:99]\ns_waitcnt lgkmcnt(0)\ns_sub_u32 s98, s98, s42\ns_cmp_lt_u32 s98, {PADTO - 1500}\ns_cbranch_scc1 L_pad0")
            k("global_load_dword v8, v9, s[64:65] sc1\ns_waitcnt vmcnt(0)\nv_readfirstlane_b32 s66, v8\ns_not_b32 s42, s66\ns_mov_b64 exec, -1")
        k.label("L_pad")
        k(f"s_memrealtime s[98:99]\ns_waitcnt lgkmcnt(0)\ns_sub_u32 s98, s98, s42\ns_cmp_lt_u32 s98, {PADTO}\ns_cbranch_scc1 L_pad")
    if STAMP:
        k("s_waitcnt vmcnt(0)")
        G.ph = ''; mark(k, 'fin')
        k("s_memrealtime s[98:99]\ns_waitcnt lgkmcnt(0)")
        vals = [42, 98, sMODE] + STS[:G.nst]
        for i, s_ in enumerate(vals): k(f"v_mov_b32 v{16+i}, s{s_}")
        k(f"s_lshl_b32 s{sT0}, s{sWG}, 2\ns_add_u32 s{sT0}, s{sT0}, s{sW}\ns_lshl_b32 s{sT0}, s{sT0}, 7\ns_add_u32 s{sT0}, s{sT0}, {TS}")
        k("v_mov_b32 v4, 0\ns_mov_b64 exec, 1")
        for j in range(8): k(f"buffer_store_dwordx4 {vr(16+4*j)}, v4, {srd(sWS)}, s{sT0} offen offset:{16*j}")
        if DBG is not None:
            k(f"s_lshl_b32 s{sT0}, s{sWG}, 2\ns_add_u32 s{sT0}, s{sT0}, s{sW}\ns_cmp_lg_u32 s{sT0}, {DBG}\ns_cbranch_scc1 L_nodbg")
            k("s_load_dwordx2 s[64:65], s[0:1], 64\ns_waitcnt lgkmcnt(0)")
            for i in range(16): k(f"v_sub_u32 v{64+i}, v{20+i}, v19")
            for j in range(4): k(f"global_store_dwordx4 v4, {vr(64+4*j)}, s[64:65] offset:{16*j}")
            k.label("L_nodbg")
    k("s_waitcnt vmcnt(0)")
    k.label("L_abort")
    k("s_endpgm")
    for x in G.near + G.far:
        if x.endswith(':'): k.label(x[:-1])
        else: k(x)
    k.label("L_end")
    return k

def build():
    name = NAME + "_kernel"
    k = k_main(name)
    nn = k.fix()
    print(f"{len(k.L)} lines, {nn} nop states", file=sys.stderr)
    head = f"; stamps: {','.join(G.names)}\n" if (STAMP or not FINAL) else HDR
    return f"""{head}; @launch grid=(256,1,1) block=(256,1,1) lds={160*KB}
.amdgcn_target "amdgcn-amd-amdhsa--gfx950"
.text
{k.text()}
.section .rodata,"a"
.p2align 6
.amdhsa_kernel {name}
  .amdhsa_next_free_vgpr 512
  .amdhsa_next_free_sgpr 102
  .amdhsa_accum_offset 256
  .amdhsa_group_segment_fixed_size 0
  .amdhsa_kernarg_size 80
  .amdhsa_user_sgpr_count 2
  .amdhsa_user_sgpr_kernarg_segment_ptr 1
  .amdhsa_system_sgpr_workgroup_id_x 1
.end_amdhsa_kernel
"""

if __name__ == "__main__":
    for a in sys.argv[2:]:
        kk_, vv_ = a.split('=', 1)
        globals()[kk_] = eval(vv_)
    open(sys.argv[1], "w").write(build())
```

```python
import sys, struct
from asmlib import Asm

NAME = "interleave_layers__mha_block__glu_gated_bilinear__prompt"
KB = 1024; MB = KB * KB
LOG2E = 1.4426950408889634
def f2u(x): return struct.unpack('<I', struct.pack('<f', x))[0]
def srd(b): return f"s[{b}:{b+3}]"
def vr(b, n=4): return f"v[{b}:{b+n-1}]"
def ar(b, n=4): return f"a[{b}:{b+n-1}]"

WQ = 0;                    WQ_STR = 100 * KB
WO = WQ + 16 * WQ_STR;     WO_STR = 64 * KB
WU = WO + 8 * WO_STR;      WU_STR = 232 * KB
WD = WU + 16 * WU_STR
FL = 7 * MB + 640 * KB
assert WD + 16 * 112 * KB <= FL
EP = FL
XID = FL + 1 * KB
def FLOC(L, p): return FL + 4 * KB + (L * 13 + p) * 8 * KB
FKV0 = FL + 4 * KB + 26 * 8 * KB
def FKV(L): return FKV0 + L * 32 * KB
FPK = FKV0 + 64 * KB
assert FPK + 32 * KB <= 8 * MB
XF = 8 * MB
HF = 10 * MB
QF = HF
SX = 17 * MB
SG = SX + 512 * KB
def KVF(L): return 18 * MB + L * 4 * MB
WS_PAGES = 13
TS = 27 * MB
DUMP = 0x7ff00000

STAMP = False
Q0K_FLAG = 24; Q0K = True; Q0K_Q = (3, 4, 4, 4, 5, 5, 5, 5); Q0K_LEAD = 40; Q0K_EPI = 8
RES_AT = 97
PKR_AT = 5; PK_WAIT = 0; PUB_AT = 17
QF_AT = 1
PREFILL = 128; A1_AT = (2, 4); KVF_AT = (3, 0); P2 = ((0, 3), (5, 8)); Q0_RSH = 1
Q0G = False; Q0_ST0 = 24; Q0_GLD = 5
DIAG_W = False
U16_HOLD = 999; U16_BIG = False
DN16 = False
UP16 = True; U16_FIN = 64; U16_PUB = (156, 206); U16_POLL = (174, 226); U16_CHK = 188; U16_SLOTS = 3
FL1 = False; PP_SLEEP = 1
FINAL = False
HDR = "; Two transformer layers (LN -> MHA -> residual, LN -> bilinear GLU -> residual) in ONE persistent launch:\n;    finite, else the wave recomputes its rows with the true row maximum subtracted (labels fb_*).\n"
NEAR = True; CT0 = 8
GATE = None
WB_EARLY = False
DIAG_NOP = {}
UP4 = False; DN_POLL3 = 18; DN_CHK3 = 30
DN_X2 = True; DN_ADDS = 5; DN_CR = 2
RES_LATE = (False, False); XRES_TOUCH = 0
HEAD = 0
QKV_QE = 6; QKV_EPI = 5
R1_AT = 28; R1_STEP = 8
KV_LOC = True
PADTO = 0; PADMIN = False
OUT_T = True
ATT_NT = 3
PK_WIN2 = False; PK_SP = 0
WARM_AT = 1
RT = False
DN_CHK2 = 4
CT_AT = 92
FORCE_FB = False
WB_MASK = 127; OUT_SC = ' sc1'; DN_WR = 1; DN_WGAP = 2
QW_LATE = False; QW_UP = 64; QW_TOUCH = (72, 100); QW_N1 = 4
PK_Q0 = False; PK_RD = 1; PK_ST = 3; CHK_Q0 = 15
WO_STOP = 26; WO_R0 = 8; WO_N0 = 10; ST_PRE = 2; PPOLL = 0; KV_PF = (0, 0); PK_EARLY = True
FL_TOUCH = False
SPLIT_ST = True
FINE = False
UP_EPI = 2; UP_PUB = (154, 206); DN_POLL = (172, 226); DN_CHK = (186,); UP_LOOK = 8; UP_SYNCS = {0, 48, 80, 112, 144, 176, 200}; UP_SKIP = (0, 0); UP_STOP = 222
DN_PUBB = 4; DN_BAR = 14; DN_POLLB = 7; DN_CHKB = 12; DN_R = 8; DN_R0 = 12
FLAG_TOUCH = False
WSOFF = 0
SLEEP1 = (0, 0); SLEEP2 = 0; SLEEP3 = 0
DBG = None
PRE = 4; PRE2 = 0
PRE_WO = 5; PRE_WO2 = 0
CODE_TOUCH = True
WD_SLOTS = (2, 4, 6)
TOUCH_AT = (99, 96); TOUCH_STEP = (2, 2); TOUCH_LN = 32; TH_STEP = 3; TOUCH_KBS = (64, 96)
RING = 144
PK_T0 = 9; PK_GAP = 6; PK_GAP2 = 9; CHK_GAP = 14
P2_AT = 6
P2_LEAD = 4
TACTS = (103, 102); EARLY_H = 0

sC4, sC3 = 2, 3
sWS, sAUX = 4, 8
sW, sG, sC, sW1K = 12, 13, 14, 15
sT0, sT1, sT2, sT3 = 16, 17, 18, 19
sX, sRS, sRB = 20, 21, 22
sA, sB, sCc, sD, sE = 23, 24, 25, 26, 27
sS0, sS1 = 28, 21
sMSK, sTAG, sMODE, sXCC = 30, 32, 34, 35
sSEG = 36
sX2 = 39
sSPIN, sF = 40, 41
STS = list(range(44, 56, 2)) + [92, 94, 56, 58, 74, 76, 80, 82, 86, 88, 60, 62]
sWG = 101
sW4K = 97
sW2K = 99
sSD = 29
sPC, sCT = 90, 85
sDST = 100
vL16, vSRC, vB = 1, 2, 3
aWD, aWB = 0, 224

class G:
    nst = 0
    names = []
    far = []
    near = []
    ph = ''
SKIP = ''
ATT_MARKS = ()
GEMM_MARKS = {}
def mark(k, nm='x'):
    import re
    nm = G.ph + '_' + nm
    if GATE and GATE[0] == nm:
        k.label("L_gate")
        k(f"s_memrealtime s[98:99]\ns_waitcnt lgkmcnt(0)\ns_sub_u32 s98, s98, s42\ns_cmp_lt_u32 s98, {GATE[1]}\ns_cbranch_scc1 L_gate")
    if SKIP and re.match(SKIP, nm): return
    if '_f_' in nm and not FINE: return
    if STAMP:
        G.names.append(nm)
        k(f"s_mem{'real' if RT else ''}time s[{STS[G.nst]}:{STS[G.nst]+1}]")
        G.nst += 1

class Ring:
    def __init__(self, k, segs):
        self.k = k; self.N = RING
        self.total = sum(n for _, n in segs)
        self.starts = {}
        b = 0
        for s, n in segs:
            assert n % 4 == 0
            self.starts[b] = s; b += n
        self.issued = 0; self.freed = 0; self.visible = 0
        self.limit = None
        self.tick = {}
        self.pair = False
    def can_issue(self):
        if self.limit is not None and self.issued + 4 > self.limit: return False
        return self.issued < self.total and self.issued + 4 <= self.freed + self.N
    def issue(self):
        k = self.k
        assert self.can_issue()
        slot = self.issued % self.N
        k(f"s_add_u32 m0, s{sW1K}, {slot*KB}")
        if self.issued in self.starts: k(f"s_mov_b32 s{sRS}, s{self.starts[self.issued]}")
        else: k(f"s_add_u32 s{sRS}, s{sRS}, 4096")
        self.tick[self.issued // 4] = k.vm(f"buffer_load_dwordx4 v{vSRC}, {srd(sWS)}, s{sRS} offen sc1 lds")
        self.issued += 4
    def parts(self):
        k = self.k
        assert self.can_issue()
        b = self.issued; self.issued += 4
        def ld(): self.tick[b // 4] = k.vm(f"buffer_load_dwordx4 v{vSRC}, {srd(sWS)}, s{sRS} offen sc1 lds")
        return [lambda: k(f"s_add_u32 m0, s{sW1K}, {(b % self.N)*KB}"),
                lambda: k(f"s_mov_b32 s{sRS}, s{self.starts[b]}" if b in self.starts else f"s_add_u32 s{sRS}, s{sRS}, 4096"), ld]
    def can8(self):
        b = self.issued
        if b % 8 or (b + 4) in self.starts or b + 8 > self.total or b + 8 > self.freed + self.N: return False
        return self.limit is None or b + 8 <= self.limit
    def parts8(self):
        k = self.k
        b = self.issued; self.issued += 8
        first = not self.pair; self.pair = True
        def src():
            if b in self.starts: k(f"s_add_u32 s{sRS}, s{self.starts[b]}, s{sW1K}")
            elif first: k(f"s_add_u32 s{sRS}, s{sRS}, 4096\ns_add_u32 s{sRS}, s{sRS}, s{sW1K}")
            else: k(f"s_add_u32 s{sRS}, s{sRS}, 8192")
        def ld1(): self.tick[b // 4] = self.tick[b // 4 + 1] = k.vm(f"buffer_load_dwordx4 v{vSRC}, {srd(sWS)}, s{sRS} offen offset:1024 sc1 lds")
        return [lambda: k(f"s_add_u32 m0, s{sW2K}, {(b % self.N)*KB}"), src,
                lambda: k.vm(f"buffer_load_dwordx4 v{vSRC}, {srd(sWS)}, s{sRS} offen sc1 lds")], [ld1]
    def end8(self):
        if self.pair:
            self.k(f"s_add_u32 s{sRS}, s{sRS}, 4096\ns_sub_u32 s{sRS}, s{sRS}, s{sW1K}")
            self.pair = False
    def issue16(self):
        k = self.k
        b = self.issued; slot = b % self.N
        assert slot + 16 <= self.N and b + 16 <= min(self.limit or 1 << 30, self.freed + self.N)
        assert not any(x in self.starts for x in range(b + 1, b + 16))
        k(f"s_add_u32 m0, s{sW4K}, {slot*KB}")
        if b in self.starts: k(f"s_add_u32 s{sRS}, s{self.starts[b]}, s{sW4K}")
        else: k(f"s_add_u32 s{sRS}, s{sRS}, 16384")
        for i in range(4):
            t = k.vm(f"buffer_load_dwordx4 v{vL16}, {srd(sWS)}, s{sRS} offen offset:{i*KB} sc1 lds")
        for q in range(4): self.tick[b // 4 + q] = t
        self.issued += 16
    def end16(self):
        self.k(f"s_sub_u32 s{sRS}, s{sRS}, s{sW4K}\ns_add_u32 s{sRS}, s{sRS}, 12288")
    def issue_n(self, n):
        for _ in range(n):
            if self.can_issue(): self.issue()
    def sync(self, consumed, need):
        k = self.k
        need = min(need, self.total)
        if need > self.visible:
            q = (need - 1) // 4
            assert q * 4 < self.issued, (need, self.issued)
            k.wait(vm=self.tick[q])
        k("s_barrier")
        q = self.visible // 4
        while q in self.tick and self.tick[q] <= k.vm_done: q += 1
        self.visible = q * 4
        assert self.visible >= need
        self.freed = max(self.freed, (consumed // 4) * 4)
    def addr(self, b): return (b % self.N) * KB

def set_lds_bases(k, extra_s=None):
    if extra_s is None: k(f"v_mov_b32 v{vB}, v{vL16}")
    else: k(f"v_add_u32 v{vB}, s{extra_s}, v{vL16}")
    k(f"v_add_u32 v{vB+1}, 0x10000, v{vB}")
    k(f"v_add_u32 v{vB+2}, 0x20000, v{vB}")

class XLoader:
    def __init__(self, k, total, reg, src, va=vL16):
        self.k = k; self.total = total; self.reg = reg; self.src = src; self.n = 0; self.t = []; self.va = va
        self.hold = total
    def issue_n(self, n):
        k = self.k
        for _ in range(n):
            i = self.n
            if i >= min(self.total, self.hold): return
            s_, imm = self.src(i)
            self.t.append(k.vm(f"buffer_load_dwordx4 {self.reg(i)}, v{self.va}, {srd(sWS)}, s{s_} offen offset:{imm} sc1"))
            self.n += 1
def lin_src(k):
    def f(i):
        if i and (i & 3) == 0: k(f"s_add_u32 s{sX}, s{sX}, 4096")
        return sX, (i & 3) * KB
    return f

class Gemm:
    def __init__(self, k, ring, ops, syncs, D=4, NB=8, stop_issue=None):
        self.k = k; self.ring = ring; self.ops = ops; self.syncs = sorted(syncs)
        assert all(x % 2 == 0 for x in syncs)
        self.D = D; self.NB = NB; self.tl = {}; self.nread = 0
        self.stop = stop_issue if stop_issue is not None else len(ops)
    def rd(self):
        k = self.k; m = self.nread; o = self.ops[m]
        assert o['bmax'] < self.ring.visible, (m, o['b'], self.ring.visible)
        a = self.ring.addr(o['b'])
        self.tl[m] = k.lg(f"ds_read_b128 {ar(aWB + 4*(m % self.NB))}, v{vB + (a >> 16)} offset:{a & 0xffff}")
        self.nread += 1
    def need_until(self, m):
        M = len(self.ops)
        nxt = [s for s in self.syncs if s > m]
        last = min((nxt[0] if nxt else M) - 1 + self.D, M - 1)
        return max(o['bmax'] for o in self.ops[:last+1]) + 1
    def start(self):
        self.ring.sync(self.ops[0]['bmin'], self.need_until(0))
        while self.nread < min(self.D, len(self.ops)): self.rd()
    def run(self, xq, n0=6, look=10, filler=None, misc=(), misc_from=0, skip=0):
        k = self.k; M = len(self.ops)
        misc = list(misc)
        xq.issue_n(n0)
        cur = 0
        for m in range(M):
            if m in self.syncs and m > 0:
                self.ring.sync(self.ops[m]['bmin'], self.need_until(m))
            o = self.ops[m]
            xt = None
            if m % 2 == 0:
                xs = [p['xi'] for p in self.ops[m:m+2] if p.get('xi') is not None]
                if xs:
                    cur = max(cur, max(xs))
                    while xq.n <= max(xs): xq.issue_n(1)
                    xt = xq.t[max(xs)]
                k.wait(vm=xt, lg=self.tl[min(m + 1, M - 1)])
            w = ar(aWB + 4*(m % self.NB))
            c = o.get('c0', '0') if o['first'] else o['acc']
            A, B = (o['x'], w) if o['swap'] else (w, o['x'])
            k(f"v_mfma_f32_32x32x16_bf16 {o['acc']}, {A}, {B}, {c}")
            if m == 0: mark(k, 'm0')
            if m in GEMM_MARKS.get(G.ph, ()): mark(k, f'm{m}')
            if m % 2 == 0:
                for _ in range(2):
                    if self.nread < M: self.rd()
                if DIAG_NOP.get(G.ph): k(f"s_nop {DIAG_NOP[G.ph]}")
            elif not (skip and m % skip == skip - 1):
                rok = m < self.stop and self.ring.can_issue()
                if xq.n < xq.total and (xq.n - cur < look or not (rok or (misc and m >= misc_from))): xq.issue_n(1)
                elif misc and m >= misc_from: misc.pop(0)()
                elif rok: self.ring.issue()
            if filler: filler(m)
        assert not misc

def stats_emitters(k, vt, res):
    k(f"s_lshl_b32 s{sS0}, s{sRB}, 12\ns_add_u32 s{sS0}, s{sS0}, {SX}")
    def mk(i):
        def f(): res['t'] = k.vm(f"buffer_load_dwordx4 {vr(vt+4*i)}, v{vL16}, {srd(sWS)}, s{sS0} offen offset:{i*KB} sc1")
        return f
    return [mk(i) for i in range(4)]

NTREE = 14
def fin_stats(vt, vext, vrstd):
    ins = []
    n = 8
    while n > 1:
        h = n // 2
        for i in range(h):
            ins.append(f"v_add_f32 v{vt+2*i}, v{vt+2*i}, v{vt+2*(i+h)}")
            ins.append(f"v_add_f32 v{vt+2*i+1}, v{vt+2*i+1}, v{vt+2*(i+h)+1}")
        n = h
    a, b, c, d = vt, vt+1, vt+2, vt+3
    ins += [f"v_mov_b32 v{c}, v{a}", f"v_mov_b32 v{d}, v{b}",
            f"v_permlane32_swap_b32 v{a}, v{c}", f"v_permlane32_swap_b32 v{b}, v{d}",
            f"v_add_f32 v{a}, v{a}, v{c}", f"v_add_f32 v{b}, v{b}, v{d}",
            f"v_mul_f32 v{a}, {hex(f2u(-1.0/512))}, v{a}",
            f"v_mul_f32 v{b}, {hex(f2u(1.0/512))}, v{b}",
            f"v_fma_f32 v{b}, -v{a}, v{a}, v{b}",
            f"v_max_f32 v{b}, 0, v{b}",
            f"v_add_f32 v{b}, {hex(f2u(1e-5))}, v{b}",
            f"v_rsq_f32 v{vrstd}, v{b}",
            f"v_cvt_pk_bf16_f32 v{vext}, v{a}, v{a}",
            f"v_and_b32 v{c}, 0xffff0000, v{vext}",
            f"v_sub_f32 v{c}, v{a}, v{c}",
            f"v_cvt_pk_bf16_f32 v{vext+1}, v{c}, 0",
            f"v_mov_b32 v{vext+2}, v{vext}", f"v_mov_b32 v{vext+3}, v{vext+1}"]
    return ins

def poll(k, vaddr, vpd, sleep=0):
    l = k.newlabel('poll')
    k(f"s_mov_b32 s{sSPIN}, 0x40000")
    k.label(l)
    k.vm(f"buffer_load_dwordx2 {vr(vpd,2)}, v{vaddr}, {srd(sWS)}, s{sF} offen sc1")
    k(f"s_sub_u32 s{sSPIN}, s{sSPIN}, 1")
    k("s_cbranch_scc1 L_abort")
    k.wait_all(lg=False)
    k(f"v_cmp_ne_u64 vcc, s[{sTAG}:{sTAG+1}], {vr(vpd,2)}")
    k(f"s_cbranch_vccnz {l}")
class APoll:
    def __init__(self, k, loads, cmp, sleep=0):
        self.k = k; self.loads = loads; self.cmp = cmp; self.sleep = sleep
    def issue(self):
        for x in self.loads:
            if x.startswith('buffer'): self.t = self.k.vm(x)
            else: self.k(x)
    def check(self):
        k = self.k
        l = k.newlabel('ap'); ok = k.newlabel('apok')
        k.wait(vm=self.t)
        k(self.cmp)
        k(f"s_cbranch_vccnz {l}")
        k.label(ok)
        (G.near if NEAR else G.far).extend([f"{l}:", f"s_mov_b32 s{sSPIN}, 0x40000", f"{l}_l:"] + list(self.loads) + [
            f"s_sub_u32 s{sSPIN}, s{sSPIN}, 1", "s_cbranch_scc1 L_abort", "s_waitcnt vmcnt(0)", self.cmp,
            f"s_cbranch_vccnz {l}_l", f"s_branch {ok}"])
def flush_near(k):
    if not G.near: return
    l = k.newlabel('nr')
    k(f"s_branch {l}")
    for x in G.near:
        if x.endswith(':'): k.label(x[:-1])
        else: k(x)
    k.label(l)
    G.near.clear()
def apoll1(k, vaddr, vpd, soff, sleep=0):
    return APoll(k, [f"buffer_load_dwordx2 {vr(vpd,2)}, v{vaddr}, {srd(sWS)}, s{soff} offen sc1"],
                 f"v_cmp_ne_u64 vcc, s[{sTAG}:{sTAG+1}], {vr(vpd,2)}", sleep)
def ppoll(k, vaddr, vd, n):
    l = k.newlabel('pp'); ok = k.newlabel('ppok')
    ld = lambda i: f"buffer_load_dwordx2 {vr(vd+2*i,2)}, v{vaddr}, {srd(sWS)}, s{sF} offen sc1"
    k(f"s_mov_b32 s{sSPIN}, 0x20000")
    for i in range(n - 1): k(ld(i))
    k.label(l)
    for i in range(n):
        k(ld((i + n - 1) % n))
        k(f"s_waitcnt vmcnt({n-1})")
        k(f"v_cmp_ne_u64 vcc, s[{sTAG}:{sTAG+1}], {vr(vd+2*i,2)}")
        k(f"s_cbranch_vccz {ok}")
        if PP_SLEEP: k(f"s_sleep {PP_SLEEP}")
    k(f"s_sub_u32 s{sSPIN}, s{sSPIN}, 1")
    k(f"s_cbranch_scc0 {l}")
    k("s_branch L_abort")
    k.label(ok)
    k.vm_done = k.vm_issued
def poll16(k):
    flush_near(k)
    k("v_and_b32 v13, 15, v0\nv_lshlrev_b32 v13, 3, v13")
    if PPOLL: ppoll(k, 13, 248, PPOLL)
    else: poll(k, 13, 14)

TAGMOV = [f"v_mov_b32 v14, s{sTAG}", f"v_mov_b32 v15, s{sTAG+1}"]
def publish_local(k, last_store, force_global=False, movs=True):
    if movs:
        for x in TAGMOV: k(x)
    if force_global:
        k.wait(vm=last_store)
        k.vm(f"buffer_store_dwordx2 v[14:15], off, {srd(sWS)}, s{sF} sc1")
        return
    slow = k.newlabel('slow'); join = k.newlabel('join')
    k(f"s_cmp_eq_u32 s{sMODE}, 0")
    k(f"s_cbranch_scc1 {slow}")
    if FL1: k("s_mov_b64 exec, 1")
    k.wait(vm=last_store)
    k.vm(f"buffer_store_dwordx2 v[14:15], off, {srd(sWS)}, s{sF}")
    if FL1: k("s_mov_b64 exec, -1")
    k.label(join)
    G.far += [f"{slow}:", "s_waitcnt vmcnt(0)", "buffer_wbl2 sc1", "s_waitcnt vmcnt(0)",
              f"buffer_store_dwordx2 v[14:15], off, {srd(sWS)}, s{sF} sc1", f"s_branch {join}"]
def publish_wg(k, last_store, xid=False, barrier=True):
    l = k.newlabel('pw')
    k(f"v_mov_b32 v13, 0\nv_mov_b32 v14, s{sTAG}\nv_mov_b32 v15, s{sTAG+1}")
    k.wait(vm=last_store)
    if barrier: k("s_barrier")
    k(f"s_cmp_lg_u32 s{sW}, 0\ns_cbranch_scc1 {l}")
    k("s_mov_b64 exec, 1")
    if xid:
        k(f"v_xor_b32 v12, s{sXCC}, v14\nv_mov_b32 v13, v15")
        k(f"buffer_store_dwordx4 v[12:15], v{vL16}, {srd(sWS)}, s{sF} offen sc1")
    else:
        k(f"buffer_store_dwordx2 v[14:15], v13, {srd(sWS)}, s{sF} offen sc1")
    k("s_mov_b64 exec, -1")
    k.label(l)

def rb_128(k):
    k(f"s_lshl_b32 s{sT0}, s{sC4}, 2\ns_lshl_b32 s{sRB}, s{sG}, 3\ns_add_u32 s{sRB}, s{sRB}, s{sT0}\ns_add_u32 s{sRB}, s{sRB}, s{sW}")

def store_x(k, acc, pk, L, p, ring=None, m16=False):
    k(f"s_add_u32 s{sT1}, s{sDST}, {XF}")
    k.vm(f"buffer_store_dwordx4 {vr(pk)}, v{vL16}, {srd(sWS)}, s{sT1} offen")
    td = k.vm(f"buffer_store_dwordx4 {vr(pk+4)}, v{vL16}, {srd(sWS)}, s{sT1} offen offset:1024")
    mark(k, 'f_xs')
    A_ = [acc + i for i in ((0, 1, 2, 3, 8, 9, 10, 11) if m16 else range(0, 16, 2))]
    B_ = [acc + i for i in ((4, 5, 6, 7, 12, 13, 14, 15) if m16 else range(1, 16, 2))]
    k(f"v_add_f32 v10, v{A_[0]}, v{A_[1]}\nv_mul_f32 v11, v{A_[0]}, v{A_[0]}\nv_add_f32 v8, v{B_[0]}, v{B_[1]}\nv_mul_f32 v9, v{B_[0]}, v{B_[0]}")
    k(f"v_fmac_f32 v11, v{A_[1]}, v{A_[1]}\nv_fmac_f32 v9, v{B_[1]}, v{B_[1]}")
    for i in range(2, 8):
        k(f"v_add_f32 v10, v10, v{A_[i]}\nv_fmac_f32 v11, v{A_[i]}, v{A_[i]}\nv_add_f32 v8, v8, v{B_[i]}\nv_fmac_f32 v9, v{B_[i]}, v{B_[i]}")
        if ring and i in (2, 5): ring.issue_n(ST_PRE)
    if m16: k("v_permlane16_swap_b32 v10, v8\nv_permlane16_swap_b32 v11, v9")
    k("v_add_f32 v10, v10, v8\nv_add_f32 v11, v11, v9\nv_mov_b32 v8, v10\nv_mov_b32 v9, v11")
    k("v_permlane32_swap_b32 v10, v8\nv_permlane32_swap_b32 v11, v9\nv_add_f32 v10, v10, v8\nv_add_f32 v11, v11, v9")
    k("s_mov_b32 exec_hi, 0")
    ts = k.vm(f"buffer_store_dwordx2 v[10:11], v{vL16}, {srd(sWS)}, s{sSD} offen")
    k("s_mov_b64 exec, -1")
    k(f"s_lshr_b32 s{sF}, s{sDST}, 8\ns_add_u32 s{sF}, s{sF}, {FLOC(L, p)}")
    mark(k, 'f_ss')
    if SPLIT_ST:
        publish_local(k, td)
        k(f"s_add_u32 s{sF}, s{sF}, {FLOC(L, 6 if p == 1 else 7) - FLOC(L, p)}")
    return ts
def stats_poll(k, delta):
    if not SPLIT_ST: return []
    k(f"s_add_u32 s{sF}, s{sF}, {delta}")
    ap = apoll1(k, 13, 14, sF)
    return ap

def rowmajor_addr(k, va, s_out):
    k(f"v_and_b32 v{va}, 31, v0\nv_lshlrev_b32 v{va}, 10, v{va}\nv_bfe_u32 v{va+1}, v0, 5, 1\nv_lshlrev_b32 v{va+1}, 4, v{va+1}\nv_add_u32 v{va}, v{va}, v{va+1}")
    k(f"s_and_b32 s{s_out}, s{sDST}, 0xffff8000\ns_bfe_u32 s{sT3}, s{sDST}, 0x5000a\ns_lshl_b32 s{sT3}, s{sT3}, 5\ns_add_u32 s{s_out}, s{s_out}, s{sT3}")

sU = 96
def pack_decode(k):
    nm = "pk"; u = f"s{sU}"
    k(f"s_min_u32 s83, {u}, 231")
    u = "s83"
    k(f"s_and_b32 s90, s{sW}, 1\ns_lshr_b32 s91, s{sW}, 1")
    k(f"s_cmp_lt_u32 {u}, 48\ns_cbranch_scc1 {nm}_q")
    k(f"s_cmp_lt_u32 {u}, 160\ns_cbranch_scc1 {nm}_u")
    k(f"s_cmp_lt_u32 {u}, 176\ns_cbranch_scc1 {nm}_o")
    k(f"s_sub_u32 s84, {u}, 176\ns_lshl_b32 s84, s84, 2\ns_add_u32 s84, s84, s{sW}")
    k("s_and_b32 s85, s84, 15\ns_lshr_b32 s86, s84, 4")
    k("s_lshl_b32 s87, s85, 6")
    k("s_add_u32 s74, s72, s87\ns_addc_u32 s75, s73, 0\ns_mov_b32 s76, s74\ns_mov_b32 s77, s75")
    k("s_mov_b32 s78, 1024\ns_lshl_b32 s79, s86, 7")
    k(f"s_mul_i32 s80, s85, 14\ns_add_u32 s80, s80, s86\ns_lshl_b32 s80, s80, 13\ns_add_u32 s80, s80, {WD}\ns_mov_b32 s81, 1024\ns_mov_b32 s88, s81\ns_mov_b32 s82, {DUMP}")
    k(f"s_branch {nm}_go")
    k.label(f"{nm}_o")
    k(f"s_sub_u32 s85, {u}, 160\ns_lshr_b32 s88, s85, 3\ns_and_b32 s85, s85, 7")
    k("s_lshl_b32 s87, s85, 1\ns_add_u32 s87, s87, s90\ns_lshl_b32 s87, s87, 6")
    k("s_add_u32 s74, s66, s87\ns_addc_u32 s75, s67, 0\ns_mov_b32 s76, s74\ns_mov_b32 s77, s75")
    k("s_mov_b32 s78, 1024\ns_lshl_b32 s79, s88, 1\ns_add_u32 s79, s79, s91\ns_lshl_b32 s79, s79, 7")
    k("s_lshl_b32 s89, s91, 15\ns_xor_b32 s90, s90, s88\ns_lshl_b32 s88, s88, 1\ns_add_u32 s90, s90, s88\ns_lshl_b32 s90, s90, 10")
    k(f"s_mul_i32 s80, s85, {WO_STR}\ns_add_u32 s80, s80, s89\ns_add_u32 s80, s80, s90\ns_add_u32 s80, s80, {WO}")
    k(f"s_mov_b32 s81, 4096\ns_mov_b32 s88, s81\ns_mov_b32 s82, {DUMP}")
    k(f"s_branch {nm}_go")
    k.label(f"{nm}_u")
    k(f"s_sub_u32 s85, {u}, 48\ns_mul_i32 s84, s85, 2341\ns_lshr_b32 s84, s84, 16\ns_mul_i32 s86, s84, 28\ns_sub_u32 s85, s85, s86")
    k(f"s_lshl_b32 s85, s85, 2\ns_add_u32 s85, s85, s{sW}\ns_lshl_b32 s87, s85, 5")
    k("s_add_u32 s74, s68, s87\ns_addc_u32 s75, s69, 0")
    k("s_add_u32 s76, s70, s87\ns_addc_u32 s77, s71, 0\ns_sub_u32 s76, s76, 32\ns_subb_u32 s77, s77, 0")
    k("s_mov_b32 s78, 3584")
    k("s_mul_i32 s86, s85, 9363\ns_lshr_b32 s86, s86, 16\ns_mul_i32 s88, s86, 7\ns_sub_u32 s88, s85, s88")
    if DN16: k("s_sub_u32 s89, 6, s88\ns_bitcmp0_b32 s86, 0\ns_cselect_b32 s88, s89, s88")
    k(f"s_mul_i32 s91, s86, {WU_STR}\ns_add_u32 s91, s91, {WU}\ns_lshl_b32 s89, s88, 10\ns_add_u32 s91, s91, s89")
    k(f"s_cmp_lt_u32 s88, 5\ns_cselect_b32 s90, 3, 5\ns_lshl_b32 s89, s90, 15\ns_add_u32 s89, s89, 1024")
    k(f"s_cmp_lt_u32 s88, 3\ns_cselect_b32 s81, 3, 2\ns_cselect_b32 s89, 0, s89\ns_cselect_b32 s90, 0, s90\ns_lshl_b32 s81, s81, 10\ns_add_u32 s91, s91, s89")
    k("s_sub_u32 s85, s88, s90\ns_lshl_b32 s85, s85, 10\ns_mov_b32 s88, 1024")
    k(f"s_branch {nm}_ext")
    k.label(f"{nm}_q")
    k(f"s_cmp_ge_u32 {u}, 24\ns_cselect_b32 s84, 2, 0\ns_cselect_b32 s86, 24, 0\ns_add_u32 s84, s84, s91\ns_sub_u32 s85, {u}, s86")
    k("s_lshl_b32 s85, s85, 1\ns_add_u32 s85, s85, s90\ns_and_b32 s86, s85, 15\ns_lshr_b32 s88, s85, 4")
    k("s_lshl_b32 s87, s85, 6\ns_lshl_b32 s89, s88, 10")
    k("s_add_u32 s74, s64, s87\ns_addc_u32 s75, s65, 0\ns_mov_b32 s76, s74\ns_mov_b32 s77, s75")
    k("s_mov_b32 s78, 3072")
    k(f"s_sub_u32 s89, s89, 1024\ns_cmp_eq_u32 s88, 0\ns_cselect_b32 s89, {66*KB}, s89\ns_cselect_b32 s81, 1, 2\ns_lshl_b32 s81, s81, 10")
    k(f"s_mul_i32 s91, s86, {WQ_STR}\ns_add_u32 s91, s91, s89\ns_add_u32 s91, s91, {WQ}\ns_mov_b32 s85, 0\ns_mov_b32 s88, s81")
    k.label(f"{nm}_ext")
    k("s_lshl_b32 s79, s84, 7")
    k("s_lshl_b32 s89, s81, 5\ns_add_u32 s82, s91, s89\ns_lshr_b32 s89, s84, 1\ns_lshl_b32 s89, s89, 9\ns_add_u32 s82, s82, s89")
    k("s_and_b32 s89, s84, 1\ns_lshl_b32 s89, s89, 3\ns_add_u32 s82, s82, s89")
    k("s_lshl_b32 s89, s81, 3\ns_mul_i32 s89, s89, s84\ns_add_u32 s80, s91, s89\ns_add_u32 s80, s80, s85")
    k.label(f"{nm}_go")
    k(f"s_cmp_ge_u32 s{sU}, 232\ns_cselect_b32 s80, {DUMP}, s80")
    k("v_bfe_u32 v4, v0, 2, 4\nv_add_u32 v4, s79, v4\nv_mul_lo_u32 v4, v4, s78")
    k("v_and_b32 v13, 3, v0\nv_lshlrev_b32 v13, 4, v13\nv_add_u32 v4, v4, v13")
    k(f"s_lshl_b32 s83, s78, 4")
    if PK_Q0: k(f"s_lshl_b32 s84, s{sW}, 13\ns_add_u32 s84, s84, {64*KB}")
    elif Q0K: k(f"s_lshl_b32 s84, s{sW}, 13")
    elif PK_EARLY: k(f"s_lshl_b32 s84, s{sW}, 13\ns_add_u32 s84, s84, {4*KB}")
    else: k(f"s_lshl_b32 s84, s{sW}, 14\ns_add_u32 s84, s84, {96*KB}")
    k("s_mov_b32 s86, s83\ns_mov_b32 s87, 0\ns_lshl_b32 s83, s81, 1\ns_sub_u32 s83, s83, s88\ns_mov_b32 s81, s88")
    k("v_and_b32 v13, 2, v0\nv_cmp_eq_u32 vcc, 0, v13")
    k("v_mov_b32 v14, s76\nv_mov_b32 v13, s74\nv_cndmask_b32 v14, v14, v13, vcc\nv_mov_b32 v15, s77\nv_mov_b32 v13, s75\nv_cndmask_b32 v15, v15, v13, vcc")
    k("v_add_co_u32 v4, vcc, v4, v14\nv_addc_co_u32 v5, vcc, 0, v15, vcc")
def pack_issue(k, i, sbase):
    k(f"s_add_u32 m0, s{sbase}, {i*KB}")
    if i: k("v_lshl_add_u64 v[4:5], v[4:5], 0, s[86:87]")
    return k.vm("global_load_lds_dwordx4 v[4:5], off")
def tr_addr(k, v, t):
    k(f"v_bfe_u32 v{v}, v0, 5, 1\nv_lshlrev_b32 v{v}, 9, v{v}")
    k(f"v_bfe_u32 v{t}, v0, 2, 2\nv_lshlrev_b32 v{t}, 6, v{t}\nv_add_u32 v{v}, v{v}, v{t}")
    k(f"v_bfe_u32 v{t}, v0, 4, 1\nv_lshlrev_b32 v{t}, 5, v{t}\nv_add_u32 v{v}, v{v}, v{t}")
    k(f"v_and_b32 v{t}, 1, v0\nv_lshlrev_b32 v{t}, 4, v{t}\nv_add_u32 v{v}, v{v}, v{t}")
    k(f"v_bfe_u32 v{t}, v0, 1, 1\nv_lshlrev_b32 v{t}, 3, v{t}\nv_add_u32 v{v}, v{v}, v{t}")
def ext_pair(src, dst, t0):
    return [f"v_mov_b32 v{t0}, v{src}", f"v_permlane32_swap_b32 v{src}, v{t0}", f"v_add_f32 v{src}, v{src}, v{t0}",
            f"v_cvt_pk_bf16_f32 v{dst+1}, v{src}, 0", f"v_lshlrev_b32 v{t0}, 16, v{dst+1}", f"v_sub_f32 v{src}, v{src}, v{t0}",
            f"v_cvt_pk_bf16_f32 v{dst}, v{t0}, v{src}"]
class Pack:
    def __init__(self, k): self.k = k; self.r = {}
    def issue(self, *ii):
        for i in ii: self.d = pack_issue(self.k, i, 84)
    def reads(self, *ii):
        k = self.k
        if ii[0] == 0:
            k("v_accvgpr_read_b32 v4, a212")
            k.wait(vm=self.d)
        for i in ii:
            k.lg(f"ds_read_b64_tr_b16 {ar(160+4*i,2)}, v4 offset:{i*KB}")
            self.r[i] = k.lg(f"ds_read_b64_tr_b16 {ar(162+4*i,2)}, v4 offset:{i*KB+256}")
    def csum(self, i):
        self.k.wait(lg=self.r[i])
        self.k(f"v_mfma_f32_32x32x16_bf16 {ar(196,16)}, {ar(192)}, {ar(160+4*i)}, {'0' if i == 0 else ar(196,16)}")
    def stores(self, *ii):
        k = self.k
        k.wait(lg=self.r[ii[-1]])
        for i in ii:
            k.vm(f"buffer_store_dwordx4 {ar(160+4*i)}, v{vL16}, {srd(sWS)}, s80 offen sc1")
            k(f"s_add_u32 s80, s80, s{83 if i & 1 else 81}")
    def ext(self):
        k = self.k
        k("v_accvgpr_read_b32 v13, a196")
        k("v_cvt_pk_bf16_f32 v15, v13, 0\nv_lshlrev_b32 v14, 16, v15\nv_sub_f32 v13, v13, v14\nv_cvt_pk_bf16_f32 v14, v14, v13")
        k("s_mov_b32 exec_hi, 0")
        self.s = k.vm(f"buffer_store_dwordx2 v[14:15], v{vL16}, {srd(sWS)}, s82 offen sc1")
        k("s_mov_b64 exec, -1")
    def pub(self):
        k = self.k
        k(f"s_lshl_b32 s{sF}, s{sU}, 7\ns_add_u32 s{sF}, s{sF}, {FPK}")
        publish_wg(k, self.s, xid=True)
    def schedule(self, job):
        t = PK_T0
        if not PK_EARLY:
            for i in range(4): job(t + i, lambda i=i: self.issue(2*i, 2*i+1))
            t += 4 + PK_GAP
        if PK_WIN2:
            job(t, self.pub)
            return t
        if PK_EARLY and PK_SP:
            for i in range(8): job(t + PK_SP*i, lambda i=i: self.stores(i))
            job(t + 8*PK_SP, self.ext)
            job(t + 8*PK_SP + PK_GAP2, self.pub)
            return t + 8*PK_SP + PK_GAP2
        if PK_EARLY:
            for i in range(4): job(t + i, lambda i=i: self.stores(2*i, 2*i+1))
            job(t + 4, self.ext)
            job(t + 4 + PK_GAP2, self.pub)
            return t + 4 + PK_GAP2
        job(t, lambda: self.reads(0, 1, 2, 3)); job(t + 1, lambda: self.reads(4, 5, 6, 7))
        for i in range(4):
            job(t + 2 + i, lambda i=i: self.stores(2*i, 2*i+1))
            job(t + 1 + i, lambda i=i: self.csum(2*i), e=14)
            job(t + 2 + i, lambda i=i: self.csum(2*i+1), e=0)
        job(t + 6, self.ext)
        job(t + 6 + PK_GAP2, self.pub)
        return t + 6 + PK_GAP2
def qkv_consts(vT, vRS, vR):
    return [f"v_cvt_pk_bf16_f32 v{vT}, v{vRS}, 0", f"v_lshlrev_b32 v{vT+1}, 16, v{vT}", f"v_sub_f32 v{vT+2}, v{vRS}, v{vT+1}",
            f"v_cvt_pk_bf16_f32 v{vT}, v{vT+1}, v{vT+2}", f"v_mov_b32 v{vT+1}, 0", f"v_mov_b32 v{vT+2}, 0", f"v_mov_b32 v{vT+3}, 0",
            f"v_cmp_gt_u32 vcc, 512, v{vL16}", f"v_mov_b32 v{vT+4}, 0x3f803f80", f"v_cndmask_b32 v{vT+4}, 0, v{vT+4}, vcc",
            f"v_mov_b32 v{vT+5}, 0", f"v_mov_b32 v{vT+6}, 0", f"v_mov_b32 v{vT+7}, 0",
            f"v_mul_f32 v{vRS+1}, {hex(f2u(0.25*LOG2E))}, v{vRS}",
            "v_bfe_u32 v12, v0, 4, 1", "v_lshlrev_b32 v12, 17, v12", "v_and_b32 v13, 15, v0", "v_lshlrev_b32 v13, 4, v13", "v_add_u32 v12, v12, v13",
            "v_bfe_u32 v13, v0, 5, 1", "v_lshlrev_b32 v13, 8, v13", "v_add_u32 v12, v12, v13",
            f"v_mfma_f32_32x32x16_bf16 {vr(vR,16)}, {vr(vT)}, {vr(vT+4)}, 0"]
def qk_tile(a, dst, sc, fl, p0):
    o = []
    sb, hs = (sB, KB) if dst == QF else (sCc, 128*KB)
    for half in range(2):
        p = p0 + 4*half
        for j in range(4):
            r = a + 8*half + 2*j
            o += [f"v_mul_f32 v{r}, v{r}, v{sc}", f"v_mul_f32 v{r+1}, v{r+1}, v{sc}", f"v_cvt_pk_bf16_f32 v{p+j}, v{r}, v{r+1}"]
        o += [f"s_add_u32 s{sT2}, s{sb}, {dst + half*hs}", f"buffer_store_dwordx4 {vr(p)}, v{vL16}, {srd(sWS)}, s{sT2} offen{fl}"]
    return o
def v_tile(a, L, vR, p0):
    o = [f"s_add_u32 s{sT2}, s{sCc}, {KVF(L) + KB}"]
    for u in range(2):
        p = p0 + 4*u
        for j in range(4):
            r = a + 8*u + 2*j; q = vR + 8*u + 2*j
            o += [f"v_mul_f32 v{r}, v{r}, v{q}", f"v_mul_f32 v{r+1}, v{r+1}, v{q+1}", f"v_cvt_pk_bf16_f32 v{p+j}, v{r}, v{r+1}"]
        o.append(f"buffer_store_dwordx4 {vr(p)}, v12, {srd(sWS)}, s{sT2} offen offset:{u*512} sc1")
    return o
def kv_flag(k, L, tkv):
    k(f"s_lshl_b32 s{sF}, s{sA}, 4\ns_lshr_b32 s{sT1}, s{sRB}, 2\ns_add_u32 s{sF}, s{sF}, s{sT1}\ns_lshl_b32 s{sF}, s{sF}, 7\ns_add_u32 s{sF}, s{sF}, {FKV(L)}")
    publish_wg(k, tkv)
def q_flag(k, L, tq):
    k(f"s_lshr_b32 s{sF}, s{sRB}, 3\ns_lshl_b32 s{sF}, s{sF}, 4\ns_add_u32 s{sF}, s{sF}, s{sA}\ns_lshl_b32 s{sF}, s{sF}, 3\ns_and_b32 s{sT1}, s{sRB}, 7\ns_add_u32 s{sF}, s{sF}, s{sT1}\ns_lshl_b32 s{sF}, s{sF}, 3\ns_add_u32 s{sF}, s{sF}, {FLOC(L-1,5)}")
    publish_local(k, tq, force_global=(L == 0))

WARM = True
LIN_AT = 99
LIN_U = True
Q0_ROT = True
Q0_MARKS = False
Q0_MARKJ = ()
Q0_SCHED = ((3, 4), (5,), (6,), (7,), (), (), (), ())
LATE_AT = 1
Q0_UP = 3
PK_AT = (5, 5, 6, 6, 6, 6, 6, 6)
def ph_qkv0(k, late):
    vX, vACC, vST, vEXT, vRS, vT, vR = 16, 144, 192, 8, 6, 224, 232
    vXA, vWA, vXR, vTR, vTW, vCS, vCW, vONE = 10, 12, 196, 200, 202, 204, 208, 220
    sXS, sWR, sXL, sWL = 60, 56, sD, sE
    rb_128(k)
    k(f"s_and_b32 s{sA}, s{sC}, 15")
    k(f"v_bfe_u32 v{vXA}, v0, 3, 3\nv_lshlrev_b32 v{vXA}, 10, v{vXA}\nv_and_b32 v13, 7, v0\nv_bfe_u32 v14, v0, 4, 2\nv_xor_b32 v13, v13, v14")
    k(f"v_lshlrev_b32 v13, 4, v13\nv_add_u32 v{vXA}, v{vXA}, v13\nv_xor_b32 v{vXA+1}, 64, v{vXA}")
    k(f"v_bfe_u32 v{vWA}, v0, 2, 4\nv_mul_u32_u24 v{vWA}, 3072, v{vWA}\nv_and_b32 v13, 3, v0\nv_lshlrev_b32 v13, 4, v13\nv_add_u32 v{vWA}, v{vWA}, v13")
    if DIAG_W: k(f"v_bfe_u32 v{vWA}, v0, 3, 3\nv_mul_u32_u24 v{vWA}, 6144, v{vWA}\nv_and_b32 v13, 7, v0\nv_lshlrev_b32 v13, 4, v13\nv_add_u32 v{vWA}, v{vWA}, v13\ns_and_b32 s{sA}, s{sA}, 14")
    k(f"s_lshl_b32 s{sX}, s{sRB}, 15")
    k(f"s_mul_i32 s{sX2}, s{sW}, 49152\ns_lshl_b32 s{sT0}, s{sA}, 6\ns_add_u32 s{sX2}, s{sX2}, s{sT0}")
    if DIAG_W: k(f"s_and_b32 s{sA}, s{sG}, 1\ns_lshl_b32 s{sA}, s{sA}, 3\ns_and_b32 s{sT0}, s{sC}, 7\ns_add_u32 s{sA}, s{sA}, s{sT0}")
    k(f"s_lshl_b32 s{sXL}, s{sW}, 14\ns_add_u32 s{sXL}, s{sXL}, {96*KB}\ns_mul_i32 s{sWL}, s{sW}, 3072")
    k("s_waitcnt lgkmcnt(0)")
    if Q0_MARKS: mark(k, 'karg')
    k(f"s_mov_b32 s{sWR}, s64\ns_and_b32 s{sWR+1}, s65, 0xffff\ns_mov_b32 s{sWR+2}, {512*3072}\ns_mov_b32 s{sWR+3}, 0x20000")
    k(f"s_and_b32 s{sXS+1}, s{sXS+1}, 0xffff\ns_mov_b32 s{sXS+2}, {2*MB}\ns_mov_b32 s{sXS+3}, 0x20000")
    ct = {}; cn = {j: 0 for j in range(8)}
    k(f"s_lshl_b32 s{sCc}, s{sC4}, 2\ns_lshr_b32 s{sT3}, s{sC}, {Q0_RSH}\ns_add_u32 s{sCc}, s{sCc}, s{sT3}\ns_add_u32 s{sCc}, s{sCc}, s{sG}")
    def rot(j):
        k(f"s_add_u32 s{sT3}, s{sCc}, {j}\ns_and_b32 s{sT3}, s{sT3}, {7 if Q0_ROT else 0}")
        if not Q0_ROT: k(f"s_mov_b32 s{sT3}, {j}")
        k(f"s_lshl_b32 s{sS0}, s{sT3}, 7\ns_add_u32 s{sS0}, s{sS0}, s{sX}")
        k(f"s_mul_i32 s{sS1}, s{sT3}, {4*49152}\ns_add_u32 s{sS1}, s{sS1}, s{sX2}")
    def ldW(j, t):
        k(f"s_add_u32 m0, s{sWL}, {(12*j + t)*KB}\ns_add_u32 s{sT2}, s{sS1}, {((t+1) % 3)*1024}")
        ct[j] = k.vm(f"buffer_load_dwordx4 v{vWA}, {srd(sWR)}, s{sT2} offen lds"); cn[j] += 1
    def ldX(j, i):
        if i == 0: rot(j)
        k(f"s_add_u32 m0, s{sXL}, {(j & 3)*4*KB + i*KB}\ns_add_u32 s{sT2}, s{sS0}, {i*8192}")
        ct[j] = k.vm(f"buffer_load_dwordx4 v{vXA + (i & 1)}, {srd(sXS)}, s{sT2} offen lds"); cn[j] += 1
    def chunk_loads(j):
        return [lambda i=i: ldX(j, i) for i in range(4)] + [lambda t=t: ldW(j, t) for t in range(3)]
    for f in chunk_loads(0): f()
    if Q0_MARKS: mark(k, 'up0')
    late(k)
    pack_decode(k)
    k(f"s_cmp_eq_u32 s{sW}, 0\ns_cselect_b64 s[90:91], s[68:69], s[70:71]")
    k(f"s_cmp_eq_u32 s{sW}, 2\ns_cselect_b64 s[90:91], s[72:73], s[90:91]")
    k(f"s_cmp_eq_u32 s{sW}, 3\ns_cselect_b64 s[90:91], s[66:67], s[90:91]\ns_cselect_b32 s{sT0}, 16, 56")
    k(f"s_mul_i32 s{sT1}, s{sT0}, s{sU}\ns_sub_u32 s{sT0}, s{sT0}, 1")
    k(f"v_and_b32 v254, 63, v0\nv_min_u32 v254, s{sT0}, v254\nv_add_u32 v254, s{sT1}, v254\nv_lshlrev_b32 v254, 7, v254")
    pk = G.pk = Pack(k)
    k(f"s_and_b32 s{sT0}, s{sC}, 7\ns_and_b32 s{sT1}, s{sC}, 15")
    k("v_and_b32 v13, 15, v0\nv_min_u32 v14, 13, v13")
    k(f"s_lshr_b32 s{sT2}, s{sT0}, 1\ns_add_u32 s{sT2}, s{sT2}, 176\nv_lshl_add_u32 v252, v14, 2, s{sT2}")
    k(f"s_mul_i32 s{sT2}, s{sT1}, 7\ns_add_u32 s{sT3}, s{sT2}, 6\ns_lshr_b32 s{sT2}, s{sT2}, 2\ns_lshr_b32 s{sT3}, s{sT3}, 2")
    k(f"v_lshrrev_b32 v14, 2, v13\nv_add_u32 v14, s{sT2}, v14\nv_min_u32 v14, s{sT3}, v14\nv_and_b32 v15, 3, v13\nv_mul_u32_u24 v15, 28, v15")
    k("v_add3_u32 v14, v14, v15, 48")
    k("v_and_b32 v15, 16, v0\nv_cmp_ne_u32 vcc, 0, v15\nv_cndmask_b32 v252, v252, v14, vcc")
    k(f"s_add_u32 s{sT0}, s{sT0}, 160\nv_and_b32 v14, 1, v13\nv_lshl_add_u32 v251, v14, 3, s{sT0}")
    k(f"s_lshr_b32 s{sT1}, s{sT1}, 1\nv_mul_u32_u24 v14, 24, v14\nv_lshrrev_b32 v15, 1, v13\nv_min_u32 v15, 2, v15\nv_lshlrev_b32 v15, 3, v15")
    k(f"v_add3_u32 v14, v14, v15, s{sT1}")
    k("v_cndmask_b32 v251, v251, v14, vcc")
    k(f"v_cmp_gt_u32 vcc, 512, v{vL16}\nv_cndmask_b32 v252, v251, v252, vcc\nv_lshlrev_b32 v252, 7, v252\nv_accvgpr_write_b32 a213, v252")
    if WARM:
        k("s_getpc_b64 s[88:89]")
        k.label("L_pcw")
        k(f"s_lshl_b32 s{sT0}, s{sC}, 1\ns_add_u32 s{sT0}, s{sT0}, s{sW}\ns_and_b32 s{sT0}, s{sT0}, 63\ns_lshl_b32 s{sT0}, s{sT0}, 10\ns_min_u32 s{sT0}, s{sT0}, L_end-L_pcw-1024")
        k(f"v_add_u32 v245, s{sT0}, v{vL16}")
        k(f"v_min_u32 v244, {(WS_PAGES-1)*16}, v{vL16}\nv_lshlrev_b32 v244, 17, v244")
        k(f"s_cmp_eq_u32 s{sW}, 1\ns_cselect_b64 s[88:89], s[{sAUX}:{sAUX+1}], s[88:89]")
        k(f"s_cmp_eq_u32 s{sW}, 0\ns_cselect_b64 s[88:89], s[{sWS}:{sWS+1}], s[88:89]\ns_cselect_b64 vcc, -1, 0")
        k("v_cndmask_b32 v245, v245, v244, vcc")
    if PK_Q0: pk.issue(*range(8))
    k(f"v_and_b32 v13, 31, v0\nv_bfe_u32 v14, v0, 1, 3\nv_bfe_u32 v15, v0, 5, 1\nv_xor_b32 v14, v14, v15\nv_lshlrev_b32 v14, 4, v14\nv_lshl_add_u32 v13, v13, 7, v14")
    for e in range(4):
        k(f"v_xor_b32 v{vXR+e}, {e*32}, v13\nv_add_u32 v{vXR+e}, s{sXL}, v{vXR+e}")
    tr_addr(k, vTR, 13)
    k(f"v_add_u32 v{vTR+1}, {48*KB}, v{vTR}\nv_add_u32 v{vTW}, s{sWL}, v{vTR}\nv_add_u32 v{vTW+1}, {48*KB}, v{vTW}")
    k(f"v_mov_b32 v{vONE}, 0x3f803f80\nv_add_u32 v255, s84, v{vTR}\nv_accvgpr_write_b32 a212, v255")
    for r in range(192, 196): k(f"v_accvgpr_write_b32 a{r}, v{vONE}")
    for r in list(range(vST, vST+4)) + list(range(vCS, vCS+3)): k(f"v_mov_b32 v{r}, 0")
    def reads(j):
        o = []
        for e in range(4):
            o.append(f"ds_read_b128 {vr(vX + 16*j + 4*e)}, v{vXR+e} offset:{(j & 3)*4*KB}")
        for t in range(3):
            off = (12*(j & 3) + t)*KB
            o.append(f"ds_read_b64_tr_b16 {vr(vCW+4*t,2)}, v{vTW + (j >> 2)} offset:{off}")
            o.append(f"ds_read_b64_tr_b16 {vr(vCW+4*t+2,2)}, v{vTW + (j >> 2)} offset:{off+256}")
        for b in range(12):
            off = (12*(j & 3) + b)*KB; r = 48*(j & 1) + 4*b
            o.append(f"ds_read_b64_tr_b16 {ar(r,2)}, v{vTR + (j >> 2)} offset:{off}")
            o.append(f"ds_read_b64_tr_b16 {ar(r+2,2)}, v{vTR + (j >> 2)} offset:{off+256}")
        return o
    def dots(j):
        for i in range(16):
            r = vX + 16*j + i
            k(f"v_dot2c_f32_bf16 v{vST + 2*(i & 1)}, v{vONE}, v{r}\nv_dot2c_f32_bf16 v{vST + 1 + 2*(i & 1)}, v{r}, v{r}")
        for i in range(4):
            for t in range(3): k(f"v_dot2c_f32_bf16 v{vCS+t}, v{vONE}, v{vCW+4*t+i}")
    def xid():
        k(f"s_add_u32 s{sTAG}, s{sTAG}, 0x7f4a7c15\ns_addc_u32 s{sTAG+1}, s{sTAG+1}, 0x9e3779b9")
        k("v_mov_b32 v13, 0")
        k("s_mov_b64 exec, 1")
        if FLAG_TOUCH:
            k(f"s_lshl_b32 s{sF}, s{sA}, 4\ns_lshr_b32 s{sT1}, s{sRB}, 2\ns_add_u32 s{sF}, s{sF}, s{sT1}\ns_lshl_b32 s{sF}, s{sF}, 7\ns_add_u32 s{sF}, s{sF}, {FKV(0)}")
            k.vm(f"buffer_load_dword v5, v13, {srd(sWS)}, s{sF} offen sc1")
            k(f"s_lshl_b32 s{sF}, s{sU}, 7\ns_add_u32 s{sF}, s{sF}, {FPK}")
            k.vm(f"buffer_load_dword v5, v13, {srd(sWS)}, s{sF} offen sc1")
        k("s_mov_b64 exec, -1")
    def lin_touch():
        k.vm("global_load_dword v253, v254, s[90:91]")
    side = []
    for x in att_setup(0): k(x)
    if Q0_MARKS: mark(k, 'alu')
    if WARM and WARM_AT == 0: k.vm(f"global_load_dword v255, v245, s[88:89]")
    for j in range(1, Q0_UP):
        for f in chunk_loads(j): f()
    if WARM and WARM_AT == 1: k.vm(f"global_load_dword v255, v245, s[88:89]")
    if Q0_MARKS: mark(k, 'iss')
    k.wait(vm=ct[0])
    if Q0_MARKS: mark(k, 'w0')
    k("s_barrier")
    mark(k, 'd0')
    rl = reads(0)
    for x in rl[:10]: t10 = k.lg(x)
    for x in rl[10:]: k.lg(x)
    k.wait(lg=t10)
    dots(0)
    for j in range(8):
        for c_ in Q0_SCHED[j]:
            assert c_ - 4 <= j
            side += chunk_loads(c_)
        if j == 1: side.append(xid)
        if WARM and WARM_AT == j + 2: side.append(lambda: k.vm(f"global_load_dword v255, v245, s[88:89]"))
        if PK_EARLY: side += [lambda i=i: pk.issue(i) for i in range(8) if PK_AT[i] == j]
        if j == LIN_AT and not PK_Q0: side.append(lin_touch)
        if PK_Q0:
            assert all(c_ < 5 or j > PK_RD for c_ in Q0_SCHED[j])
            if j == PK_RD: side += [lambda i=i: pk.reads(2*i, 2*i+1) for i in range(4)]
            if j == PK_ST: side += [lambda i=i: (pk.stores(i), pk.csum(i)) for i in range(4)]
            if j == PK_ST + 1: side += [lambda i=i: (pk.stores(i), pk.csum(i)) for i in range(4, 8)]
            if j == PK_ST + 2: side.append(pk.ext)
        k.wait_all(vm=False)
        rl = []
        if j < 7:
            assert cn[j+1] == 7
            k.wait(vm=ct[j+1]); k("s_barrier")
            if j in Q0_MARKJ: mark(k, f'c{j+1}')
            rl = reads(j + 1)
        t10 = None; nr = 0
        if j == 7:
            tail = f"s_lshr_b32 s{sT0}, s{sW}, 1\ns_lshl_b32 s{sT0}, s{sT0}, 9\ns_and_b32 s{sT1}, s{sW}, 1\ns_lshl_b32 s{sT1}, s{sT1}, 3\ns_add_u32 s{sT0}, s{sT0}, s{sT1}".split('\n')
            tail += [f"v_and_b32 v13, 0x1f0, v{vL16}", f"v_add_u32 v13, s{sT0}, v13"]
            for t in range(3): tail += ext_pair(vCS+t, vCW+2*t, 14) + [f"ds_write_b64 v13, {vr(vCW+2*t,2)} offset:{t*KB}"]
            fin = fin_stats(vST, vEXT, vRS)[NTREE:] + qkv_consts(vT, vRS, vR)
            tail += [f"v_add_f32 v{vST}, v{vST}, v{vST+2}", f"v_add_f32 v{vST+1}, v{vST+1}, v{vST+3}"] + fin[:18]
            tail += ["s_waitcnt lgkmcnt(0)", "s_barrier"] + [f"ds_read_b128 {vr(vCW+4*t)}, v{vL16} offset:{t*KB}" for t in range(3)] + fin[18:]
            tail += f"s_lshl_b32 s{sCc}, s{sA}, 18\ns_lshl_b32 s{sT1}, s{sRB}, 11\ns_add_u32 s{sCc}, s{sCc}, s{sT1}".split('\n')
            tail += f"s_mul_i32 s{sB}, s{sRB}, {112*KB}\ns_lshl_b32 s{sT1}, s{sA}, 11\ns_add_u32 s{sB}, s{sB}, s{sT1}".split('\n')
            G.ex = 196
            tail += ex_addr(G.ex)
            assert not side
            n_ = -(-len(tail) // 12)
            side = [lambda c=tail[i:i+n_]: [k(x) for x in c] for i in range(0, len(tail), n_)]
        for b in range(12):
            ks = 4*j + b // 3; t = b % 3
            acc = vr(vACC + 16*t, 16); w = ar(48*(j & 1) + 4*b); x = vr(vX + 4*ks)
            A, B = (x, w) if t == 1 else (w, x)
            k(f"v_mfma_f32_32x32x16_bf16 {acc}, {A}, {B}, {'0' if ks == 0 else acc}")
            if ks == 0 and t == 0: mark(k, 'm0')
            for _ in range(3):
                if rl:
                    t_ = k.lg(rl.pop(0)); nr += 1
                    if nr == 10: t10 = t_
            if side: side.pop(0)()
            if len(side) > 11 - b: side.pop(0)()
        if j < 7:
            assert not rl
            k.wait(lg=t10)
            dots(j + 1)
    while side: side.pop(0)()
    mark(k, 'loop')
    k.wait_all(vm=False)
    for t in range(3):
        c = vCW + 4*t
        acc = vr(vACC + 16*t, 16)
        A, B = (vr(vEXT), vr(c)) if t == 1 else (vr(c), vr(vEXT))
        k(f"v_mfma_f32_32x32x16_bf16 {acc}, {A}, {B}, {acc}")
    t_ = None
    for x in qk_tile(vACC, KVF(0), vRS, " sc1", 204) + v_tile(vACC+16, 0, vR, 212) + ex_kv(204, 212):
        if x.startswith('buffer'): t_ = k.vm(x)
        elif x.startswith('ds_'): k.lg(x)
        else: k(x)
    q_out(k, vACC + 32, vRS + 1, 232, vT)
    mark(k, 'st')
    return t_, None

def ph_qkv0k(k, late):
    vX, vACC, vST, vEXT, vRS, vT, vR = 16, 144, 192, 8, 6, 224, 232
    vXA, vWA, vXR, vTR, vTW, vCS, vCW, vONE = 10, 12, 196, 200, 202, 204, 208, 220
    sXS, sWR, sXL, sWL = 60, 56, sD, sE
    rb_128(k)
    k(f"s_and_b32 s{sA}, s{sC}, 15")
    k(f"v_bfe_u32 v{vXA}, v0, 3, 3\nv_lshlrev_b32 v{vXA}, 10, v{vXA}\nv_and_b32 v13, 7, v0\nv_bfe_u32 v14, v0, 4, 2\nv_xor_b32 v13, v13, v14")
    k(f"v_lshlrev_b32 v13, 4, v13\nv_add_u32 v{vXA}, v{vXA}, v13\nv_xor_b32 v{vXA+1}, 64, v{vXA}")
    k(f"v_bfe_u32 v{vWA}, v0, 2, 4\nv_mul_u32_u24 v{vWA}, 3072, v{vWA}\nv_and_b32 v13, 3, v0\nv_lshlrev_b32 v13, 4, v13\nv_add_u32 v{vWA}, v{vWA}, v13")
    if DIAG_W: k(f"v_bfe_u32 v{vWA}, v0, 3, 3\nv_mul_u32_u24 v{vWA}, 6144, v{vWA}\nv_and_b32 v13, 7, v0\nv_lshlrev_b32 v13, 4, v13\nv_add_u32 v{vWA}, v{vWA}, v13\ns_and_b32 s{sA}, s{sA}, 14")
    k(f"s_lshl_b32 s{sX}, s{sRB}, 15")
    k(f"s_mul_i32 s{sX2}, s{sW}, 49152\ns_lshl_b32 s{sT0}, s{sA}, 6\ns_add_u32 s{sX2}, s{sX2}, s{sT0}")
    if DIAG_W: k(f"s_and_b32 s{sA}, s{sG}, 1\ns_lshl_b32 s{sA}, s{sA}, 3\ns_and_b32 s{sT0}, s{sC}, 7\ns_add_u32 s{sA}, s{sA}, s{sT0}")
    k(f"s_lshl_b32 s{sXL}, s{sW}, 14\ns_add_u32 s{sXL}, s{sXL}, {96*KB}\ns_lshl_b32 s{sWL}, s{sW}, 11")
    k("s_waitcnt lgkmcnt(0)")
    if Q0_MARKS: mark(k, 'karg')
    k(f"s_mov_b32 s{sWR}, s64\ns_and_b32 s{sWR+1}, s65, 0xffff\ns_mov_b32 s{sWR+2}, {512*3072}\ns_mov_b32 s{sWR+3}, 0x20000")
    k(f"s_and_b32 s{sXS+1}, s{sXS+1}, 0xffff\ns_mov_b32 s{sXS+2}, {2*MB}\ns_mov_b32 s{sXS+3}, 0x20000")
    ct = {}; cn = {j: 0 for j in range(8)}
    k(f"s_lshl_b32 s{sCc}, s{sC4}, 2\ns_lshr_b32 s{sT3}, s{sC}, {Q0_RSH}\ns_add_u32 s{sCc}, s{sCc}, s{sT3}\ns_add_u32 s{sCc}, s{sCc}, s{sG}")
    def rot(j):
        k(f"s_add_u32 s{sT3}, s{sCc}, {j}\ns_and_b32 s{sT3}, s{sT3}, {7 if Q0_ROT else 0}")
        if not Q0_ROT: k(f"s_mov_b32 s{sT3}, {j}")
        k(f"s_lshl_b32 s{sS0}, s{sT3}, 7\ns_add_u32 s{sS0}, s{sS0}, s{sX}")
        k(f"s_mul_i32 s{sS1}, s{sT3}, {4*49152}\ns_add_u32 s{sS1}, s{sS1}, s{sX2}")
    def ldW(j, t):
        k(f"s_add_u32 m0, s{sWL}, {(8*j + t)*KB}\ns_add_u32 s{sT2}, s{sS1}, {(t+1)*1024}")
        ct[j] = k.vm(f"buffer_load_dwordx4 v{vWA}, {srd(sWR)}, s{sT2} offen lds"); cn[j] += 1
    def ldQ(j):
        k(f"s_add_u32 s{sT3}, s{sCc}, {j}\ns_and_b32 s{sT3}, s{sT3}, 7\ns_mul_i32 s{sT3}, s{sT3}, {4*49152}\ns_add_u32 m0, s{sW1K}, {(64 + 4*j)*KB}\ns_add_u32 s{sT2}, s{sT3}, s{sX2}")
        ct['q'] = k.vm(f"buffer_load_dwordx4 v{vWA}, {srd(sWR)}, s{sT2} offen lds")
    def ldX(j, i):
        if i == 0: rot(j)
        k(f"s_add_u32 m0, s{sXL}, {(j & 3)*4*KB + i*KB}\ns_add_u32 s{sT2}, s{sS0}, {i*8192}")
        ct[j] = k.vm(f"buffer_load_dwordx4 v{vXA + (i & 1)}, {srd(sXS)}, s{sT2} offen lds"); cn[j] += 1
    def chunk_loads(j):
        return [lambda i=i: ldX(j, i) for i in range(4)] + [lambda t=t: ldW(j, t) for t in range(2)]
    for f in chunk_loads(0): f()
    if Q0_MARKS: mark(k, 'up0')
    late(k)
    pack_decode(k)
    k(f"s_cmp_eq_u32 s{sW}, 0\ns_cselect_b64 s[90:91], s[68:69], s[70:71]")
    k(f"s_cmp_eq_u32 s{sW}, 2\ns_cselect_b64 s[90:91], s[72:73], s[90:91]")
    k(f"s_cmp_eq_u32 s{sW}, 3\ns_cselect_b64 s[90:91], s[66:67], s[90:91]\ns_cselect_b32 s{sT0}, 16, 56")
    k(f"s_mul_i32 s{sT1}, s{sT0}, s{sU}\ns_sub_u32 s{sT0}, s{sT0}, 1")
    k(f"v_and_b32 v254, 63, v0\nv_min_u32 v254, s{sT0}, v254\nv_add_u32 v254, s{sT1}, v254\nv_lshlrev_b32 v254, 7, v254")
    pk = G.pk = Pack(k)
    k(f"s_and_b32 s{sT0}, s{sC}, 7\ns_and_b32 s{sT1}, s{sC}, 15")
    k("v_and_b32 v13, 15, v0\nv_min_u32 v14, 13, v13")
    k(f"s_lshr_b32 s{sT2}, s{sT0}, 1\ns_add_u32 s{sT2}, s{sT2}, 176\nv_lshl_add_u32 v252, v14, 2, s{sT2}")
    k(f"s_mul_i32 s{sT2}, s{sT1}, 7\ns_add_u32 s{sT3}, s{sT2}, 6\ns_lshr_b32 s{sT2}, s{sT2}, 2\ns_lshr_b32 s{sT3}, s{sT3}, 2")
    k(f"v_lshrrev_b32 v14, 2, v13\nv_add_u32 v14, s{sT2}, v14\nv_min_u32 v14, s{sT3}, v14\nv_and_b32 v15, 3, v13\nv_mul_u32_u24 v15, 28, v15")
    k("v_add3_u32 v14, v14, v15, 48")
    k("v_and_b32 v15, 16, v0\nv_cmp_ne_u32 vcc, 0, v15\nv_cndmask_b32 v252, v252, v14, vcc")
    k(f"s_add_u32 s{sT0}, s{sT0}, 160\nv_and_b32 v14, 1, v13\nv_lshl_add_u32 v251, v14, 3, s{sT0}")
    k(f"s_lshr_b32 s{sT1}, s{sT1}, 1\nv_mul_u32_u24 v14, 24, v14\nv_lshrrev_b32 v15, 1, v13\nv_min_u32 v15, 2, v15\nv_lshlrev_b32 v15, 3, v15")
    k(f"v_add3_u32 v14, v14, v15, s{sT1}")
    k("v_cndmask_b32 v251, v251, v14, vcc")
    k(f"v_cmp_gt_u32 vcc, 512, v{vL16}\nv_cndmask_b32 v252, v251, v252, vcc\nv_lshlrev_b32 v252, 7, v252\nv_accvgpr_write_b32 a213, v252")
    if WARM:
        k("s_getpc_b64 s[88:89]")
        k.label("L_pcw")
        k(f"s_lshl_b32 s{sT0}, s{sC}, 1\ns_add_u32 s{sT0}, s{sT0}, s{sW}\ns_and_b32 s{sT0}, s{sT0}, 63\ns_lshl_b32 s{sT0}, s{sT0}, 10\ns_min_u32 s{sT0}, s{sT0}, L_end-L_pcw-1024")
        k(f"v_add_u32 v245, s{sT0}, v{vL16}")
        k(f"v_min_u32 v244, {(WS_PAGES-1)*16}, v{vL16}\nv_lshlrev_b32 v244, 17, v244")
        k(f"s_cmp_eq_u32 s{sW}, 1\ns_cselect_b64 s[88:89], s[{sAUX}:{sAUX+1}], s[88:89]")
        k(f"s_cmp_eq_u32 s{sW}, 0\ns_cselect_b64 s[88:89], s[{sWS}:{sWS+1}], s[88:89]\ns_cselect_b64 vcc, -1, 0")
        k("v_cndmask_b32 v245, v245, v244, vcc")
    if PK_Q0: pk.issue(*range(8))
    aSEL, aCS = 96, 100
    k(f"v_and_b32 v13, 31, v0\nv_bfe_u32 v14, v0, 1, 3\nv_bfe_u32 v15, v0, 5, 1\nv_xor_b32 v14, v14, v15\nv_lshlrev_b32 v14, 4, v14\nv_lshl_add_u32 v13, v13, 7, v14")
    for e in range(4):
        k(f"v_xor_b32 v{vXR+e}, {e*32}, v13\nv_add_u32 v{vXR+e}, s{sXL}, v{vXR+e}")
    tr_addr(k, vTR, 13)
    k(f"v_add_u32 v{vTR+1}, {64*KB}, v{vTR}")
    k(f"v_mov_b32 v{vONE}, 0x3f803f80\nv_add_u32 v255, s84, v{vTR}\nv_accvgpr_write_b32 a212, v255")
    for r in range(192, 196): k(f"v_accvgpr_write_b32 a{r}, v{vONE}")
    k(f"v_and_b32 v13, 15, v0\nv_bfe_u32 v14, v0, 4, 1\nv_cmp_eq_u32 vcc, v13, v14\nv_cndmask_b32 v13, 0, v{vONE}, vcc")
    for r in range(4): k(f"v_accvgpr_write_b32 a{aSEL+r}, v13")
    for r in range(vST, vST+4): k(f"v_mov_b32 v{r}, 0")
    def reads(j):
        o = [f"ds_read_b128 {vr(vX + 16*j + 4*e)}, v{vXR+e} offset:{(j & 3)*4*KB}" for e in range(4)]
        for b in range(8):
            off = (8*j + b)*KB; r = 32*(j & 1) + 4*b
            o.append(f"ds_read_b64_tr_b16 {ar(r,2)}, v{vTR} offset:{off}")
            o.append(f"ds_read_b64_tr_b16 {ar(r+2,2)}, v{vTR} offset:{off+256}")
        return o
    def dots(j):
        for i in range(16):
            r = vX + 16*j + i
            k(f"v_dot2c_f32_bf16 v{vST + 2*(i & 1)}, v{vONE}, v{r}\nv_dot2c_f32_bf16 v{vST + 1 + 2*(i & 1)}, v{r}, v{r}")
    def csum(t, w, first):
        c = ar(aCS + 4*t)
        k(f"v_mfma_f32_16x16x32_bf16 {c}, {ar(aSEL)}, {w}, {'0' if first else c}")
    def extw(t, d):
        return [f"v_accvgpr_read_b32 v{d+2}, a{aCS+4*t}", f"v_accvgpr_read_b32 v{d+3}, a{aCS+4*t+1}", f"v_permlane16_swap_b32 v{d+2}, v{d+3}",
                f"v_cndmask_b32 v{d+2}, 0, v{d+2}, vcc", f"v_cvt_pk_bf16_f32 v{d+1}, v{d+2}, 0", f"v_lshlrev_b32 v{d+3}, 16, v{d+1}",
                f"v_sub_f32 v{d+2}, v{d+2}, v{d+3}", f"v_cvt_pk_bf16_f32 v{d}, v{d+3}, v{d+2}", f"v_mov_b32 v{d+2}, 0", f"v_mov_b32 v{d+3}, 0"]
    side = []
    for x in att_setup(0): k(x)
    for j in range(1, Q0_UP):
        for f in chunk_loads(j): f()
    if WARM: k.vm(f"global_load_dword v255, v245, s[88:89]")
    k.wait(vm=ct[0])
    k("s_barrier")
    mark(k, 'd0')
    rl = reads(0)
    for x in rl[:4]: t4 = k.lg(x)
    for x in rl[4:]: k.lg(x)
    k.wait(lg=t4)
    dots(0)
    def qread(ks):
        r = 64 + 4*(ks % 8)
        k.lg(f"ds_read_b64_tr_b16 {ar(r,2)}, v{vTR+1} offset:{ks*KB}")
        return k.lg(f"ds_read_b64_tr_b16 {ar(r+2,2)}, v{vTR+1} offset:{ks*KB+256}")
    qt = {}
    for j in range(8):
        for c_ in Q0_SCHED[j]:
            assert c_ - 4 <= j
            side += chunk_loads(c_)
        if j == 1: side.append(lambda: k(f"s_add_u32 s{sTAG}, s{sTAG}, 0x7f4a7c15\ns_addc_u32 s{sTAG+1}, s{sTAG+1}, 0x9e3779b9"))
        side += [lambda c=c: ldQ(c) for c in range(8) if Q0K_Q[c] == j]
        assert min(PK_AT) >= 3
        side += [lambda i=i: pk.issue(i) for i in range(8) if PK_AT[i] == j]
        k.wait_all(vm=False)
        rl = []
        if j < 7:
            assert cn[j+1] == 6
            k.wait(vm=ct[j+1]); k("s_barrier")
            rl = reads(j + 1)
        else:
            assert not side
            k.wait(vm=ct['q']); k("s_barrier")
            G.ex = 212
            fin = fin_stats(vST, vEXT, vRS)[NTREE:] + qkv_consts(vT, vRS, vR)
            tail = [f"v_add_f32 v{vST}, v{vST}, v{vST+2}", f"v_add_f32 v{vST+1}, v{vST+1}, v{vST+3}"] + fin
            tail += f"s_lshl_b32 s{sCc}, s{sA}, 18\ns_lshl_b32 s{sT1}, s{sRB}, 11\ns_add_u32 s{sCc}, s{sCc}, s{sT1}".split('\n')
            n_ = -(-len(tail) // 8)
            side = [lambda c=tail[i:i+n_]: [k(x) for x in c] for i in range(0, len(tail), n_)]
        t4 = None; nr = 0
        for b in range(8):
            ks = 4*j + b // 2; t = b % 2
            acc = vr(vACC + 16*t, 16); w = ar(32*(j & 1) + 4*b); x = vr(vX + 4*ks)
            if j == 7: csum(t, w, False)
            A, B = (x, w) if t == 1 else (w, x)
            k(f"v_mfma_f32_32x32x16_bf16 {acc}, {A}, {B}, {'0' if ks == 0 else acc}")
            if ks == 0 and t == 0: mark(k, 'm0')
            for _ in range(3):
                if rl:
                    t_ = k.lg(rl.pop(0)); nr += 1
                    if nr == 4: t4 = t_
            if j < 7: csum(t, w, ks == 0)
            if j == 7 and b >= 4: qt[b - 4] = qread(b - 4)
            if side: side.pop(0)()
            if len(side) > 7 - b: side.pop(0)()
        while side: side.pop(0)()
        if j < 7:
            assert not rl
            k.wait(lg=t4)
            dots(j + 1)
    mark(k, 'loop')
    E = 204
    work = extw(0, E) + extw(1, E+4)
    work += [f"v_mfma_f32_32x32x16_bf16 {vr(vACC,16)}, {vr(E)}, {vr(vEXT)}, {vr(vACC,16)}",
             f"v_mfma_f32_32x32x16_bf16 {vr(vACC+16,16)}, {vr(vEXT)}, {vr(E+4)}, {vr(vACC+16,16)}"] + ex_addr(G.ex)
    work += qk_tile(vACC, KVF(0), vRS, " sc1", 192) + v_tile(vACC+16, 0, vR, E) + ["#kv"] + ex_kv(192, E)
    work += [f"#pk{i}" for i in range(8) if PK_AT[i] == 8]
    st = {}
    def put(x):
        if x == '#kv': st['kv'] = st['t']
        elif x.startswith('#pk'): pk.issue(int(x[3:]))
        elif x.startswith('buffer'): st['t'] = k.vm(x)
        elif x.startswith('ds_'): k.lg(x)
        else: k(x)
    for _ in range(Q0K_LEAD): put(work.pop(0))
    acc = vr(vACC + 32, 16)
    for ks in range(32):
        w = ar(64 + 4*(ks % 8))
        k.wait(lg=qt[ks])
        k(f"v_mfma_f32_32x32x16_bf16 {acc}, {w}, {vr(vX + 4*ks)}, {'0' if ks == 0 else acc}")
        if ks + 4 < 32: qt[ks + 4] = qread(ks + 4)
        csum(2, w, ks == 0)
        for _ in range(Q0K_EPI):
            if work: put(work.pop(0))
        if ks == Q0K_FLAG:
            assert not work
            kv_flag(k, 0, st['kv'])
    while work: put(work.pop(0))
    for x in extw(2, 220): k(x)
    k(f"v_mfma_f32_32x32x16_bf16 {acc}, {vr(220)}, {vr(vEXT)}, {acc}")
    q_out(k, vACC + 32, vRS + 1, 232, vT)
    mark(k, 'st')
    return st['kv'], None

def ph_qkv0g(k, late):
    vX, vACC, vST, vEXT, vRS, vT, vR = 16, 144, 192, 8, 6, 224, 232
    vXA, vWA, vXR, vTR, vCW, vG = 10, 12, 224, 228, 192, 192
    aCS = 96
    sXS, sWR, sXL, sWL = 60, 56, sD, sE
    rb_128(k)
    k(f"s_and_b32 s{sA}, s{sC}, 15")
    k(f"v_bfe_u32 v{vXA}, v0, 3, 3\nv_lshlrev_b32 v{vXA}, 10, v{vXA}\nv_and_b32 v13, 7, v0\nv_bfe_u32 v14, v0, 4, 2\nv_xor_b32 v13, v13, v14")
    k(f"v_lshlrev_b32 v13, 4, v13\nv_add_u32 v{vXA}, v{vXA}, v13\nv_xor_b32 v{vXA+1}, 64, v{vXA}")
    k(f"v_bfe_u32 v{vWA}, v0, 2, 4\nv_mul_u32_u24 v{vWA}, 3072, v{vWA}\nv_and_b32 v13, 3, v0\nv_lshlrev_b32 v13, 4, v13\nv_add_u32 v{vWA}, v{vWA}, v13")
    if DIAG_W: k(f"v_bfe_u32 v{vWA}, v0, 3, 3\nv_mul_u32_u24 v{vWA}, 6144, v{vWA}\nv_and_b32 v13, 7, v0\nv_lshlrev_b32 v13, 4, v13\nv_add_u32 v{vWA}, v{vWA}, v13\ns_and_b32 s{sA}, s{sA}, 14")
    k(f"s_lshl_b32 s{sX}, s{sRB}, 15")
    k(f"s_mul_i32 s{sX2}, s{sW}, 49152\ns_lshl_b32 s{sT0}, s{sA}, 6\ns_add_u32 s{sX2}, s{sX2}, s{sT0}")
    if DIAG_W: k(f"s_and_b32 s{sA}, s{sG}, 1\ns_lshl_b32 s{sA}, s{sA}, 3\ns_and_b32 s{sT0}, s{sC}, 7\ns_add_u32 s{sA}, s{sA}, s{sT0}")
    k(f"s_lshl_b32 s{sXL}, s{sW}, 14\ns_add_u32 s{sXL}, s{sXL}, {96*KB}\ns_mul_i32 s{sWL}, s{sW}, 3072")
    k("s_waitcnt lgkmcnt(0)")
    if Q0_MARKS: mark(k, 'karg')
    k(f"s_mov_b32 s{sWR}, s64\ns_and_b32 s{sWR+1}, s65, 0xffff\ns_mov_b32 s{sWR+2}, {512*3072}\ns_mov_b32 s{sWR+3}, 0x20000")
    k(f"s_and_b32 s{sXS+1}, s{sXS+1}, 0xffff\ns_mov_b32 s{sXS+2}, {2*MB}\ns_mov_b32 s{sXS+3}, 0x20000")
    ct = {}; cn = {j: 0 for j in range(8)}
    k(f"s_lshl_b32 s{sCc}, s{sC4}, 2\ns_lshr_b32 s{sT3}, s{sC}, {Q0_RSH}\ns_add_u32 s{sCc}, s{sCc}, s{sT3}\ns_add_u32 s{sCc}, s{sCc}, s{sG}")
    def rot(j):
        k(f"s_add_u32 s{sT3}, s{sCc}, {j}\ns_and_b32 s{sT3}, s{sT3}, {7 if Q0_ROT else 0}")
        if not Q0_ROT: k(f"s_mov_b32 s{sT3}, {j}")
        k(f"s_lshl_b32 s{sS0}, s{sT3}, 7\ns_add_u32 s{sS0}, s{sS0}, s{sX}")
        k(f"s_mul_i32 s{sS1}, s{sT3}, {4*49152}\ns_add_u32 s{sS1}, s{sS1}, s{sX2}")
    def ldW(j, t):
        k(f"s_add_u32 m0, s{sWL}, {(12*j + t)*KB}\ns_add_u32 s{sT2}, s{sS1}, {((t+1) % 3)*1024}")
        ct[j] = k.vm(f"buffer_load_dwordx4 v{vWA}, {srd(sWR)}, s{sT2} offen lds"); cn[j] += 1
    def ldX(j, i):
        if i == 0: rot(j)
        k(f"s_add_u32 m0, s{sXL}, {(j & 3)*4*KB + i*KB}\ns_add_u32 s{sT2}, s{sS0}, {i*8192}")
        ct[j] = k.vm(f"buffer_load_dwordx4 v{vXA + (i & 1)}, {srd(sXS)}, s{sT2} offen lds"); cn[j] += 1
    def chunk_loads(j):
        return [lambda i=i: ldX(j, i) for i in range(4)] + [lambda t=t: ldW(j, t) for t in range(3)]
    rowmajor_addr(k, 236, sT0)
    k.vm(f"buffer_load_dwordx4 {vr(vG)}, v236, {srd(sXS)}, s{sT0} offen")
    tres = k.vm(f"buffer_load_dwordx4 {vr(vG+4)}, v236, {srd(sXS)}, s{sT0} offen offset:32")
    for f in chunk_loads(0): f()
    if Q0_MARKS: mark(k, 'up0')
    late(k)
    pack_decode(k)
    k(f"s_cmp_eq_u32 s{sW}, 0\ns_cselect_b64 s[90:91], s[68:69], s[70:71]")
    k(f"s_cmp_eq_u32 s{sW}, 2\ns_cselect_b64 s[90:91], s[72:73], s[90:91]")
    k(f"s_cmp_eq_u32 s{sW}, 3\ns_cselect_b64 s[90:91], s[66:67], s[90:91]\ns_cselect_b32 s{sT0}, 16, 56")
    k(f"s_mul_i32 s{sT1}, s{sT0}, s{sU}\ns_sub_u32 s{sT0}, s{sT0}, 1")
    k(f"v_and_b32 v254, 63, v0\nv_min_u32 v254, s{sT0}, v254\nv_add_u32 v254, s{sT1}, v254\nv_lshlrev_b32 v254, 7, v254")
    pk = G.pk = Pack(k)
    k(f"s_and_b32 s{sT0}, s{sC}, 7\ns_and_b32 s{sT1}, s{sC}, 15")
    k("v_and_b32 v13, 15, v0\nv_min_u32 v14, 13, v13")
    k(f"s_lshr_b32 s{sT2}, s{sT0}, 1\ns_add_u32 s{sT2}, s{sT2}, 176\nv_lshl_add_u32 v252, v14, 2, s{sT2}")
    k(f"s_mul_i32 s{sT2}, s{sT1}, 7\ns_add_u32 s{sT3}, s{sT2}, 6\ns_lshr_b32 s{sT2}, s{sT2}, 2\ns_lshr_b32 s{sT3}, s{sT3}, 2")
    k(f"v_lshrrev_b32 v14, 2, v13\nv_add_u32 v14, s{sT2}, v14\nv_min_u32 v14, s{sT3}, v14\nv_and_b32 v15, 3, v13\nv_mul_u32_u24 v15, 28, v15")
    k("v_add3_u32 v14, v14, v15, 48")
    k("v_and_b32 v15, 16, v0\nv_cmp_ne_u32 vcc, 0, v15\nv_cndmask_b32 v252, v252, v14, vcc")
    k(f"s_add_u32 s{sT0}, s{sT0}, 160\nv_and_b32 v14, 1, v13\nv_lshl_add_u32 v251, v14, 3, s{sT0}")
    k(f"s_lshr_b32 s{sT1}, s{sT1}, 1\nv_mul_u32_u24 v14, 24, v14\nv_lshrrev_b32 v15, 1, v13\nv_min_u32 v15, 2, v15\nv_lshlrev_b32 v15, 3, v15")
    k(f"v_add3_u32 v14, v14, v15, s{sT1}")
    k("v_cndmask_b32 v251, v251, v14, vcc")
    k(f"v_cmp_gt_u32 vcc, 512, v{vL16}\nv_cndmask_b32 v252, v251, v252, vcc\nv_lshlrev_b32 v252, 7, v252\nv_accvgpr_write_b32 a213, v252")
    if WARM:
        k("s_getpc_b64 s[88:89]")
        k.label("L_pcw")
        k(f"s_lshl_b32 s{sT0}, s{sC}, 1\ns_add_u32 s{sT0}, s{sT0}, s{sW}\ns_and_b32 s{sT0}, s{sT0}, 63\ns_lshl_b32 s{sT0}, s{sT0}, 10\ns_min_u32 s{sT0}, s{sT0}, L_end-L_pcw-1024")
        k(f"v_add_u32 v245, s{sT0}, v{vL16}")
        k(f"v_min_u32 v244, {(WS_PAGES-1)*16}, v{vL16}\nv_lshlrev_b32 v244, 17, v244")
        k(f"s_cmp_eq_u32 s{sW}, 1\ns_cselect_b64 s[88:89], s[{sAUX}:{sAUX+1}], s[88:89]")
        k(f"s_cmp_eq_u32 s{sW}, 0\ns_cselect_b64 s[88:89], s[{sWS}:{sWS+1}], s[88:89]\ns_cselect_b64 vcc, -1, 0")
        k("v_cndmask_b32 v245, v245, v244, vcc")
    if PK_Q0: pk.issue(*range(8))
    k(f"v_and_b32 v13, 31, v0\nv_bfe_u32 v14, v0, 1, 3\nv_bfe_u32 v15, v0, 5, 1\nv_xor_b32 v14, v14, v15\nv_lshlrev_b32 v14, 4, v14\nv_lshl_add_u32 v13, v13, 7, v14")
    tr_addr(k, 255, 14)
    for e in range(4):
        k(f"s_add_u32 s{sT0}, s{sW}, {e}\ns_and_b32 s{sT0}, s{sT0}, 3\ns_lshl_b32 s{sT1}, s{sT0}, 5\ns_mul_i32 s{sT0}, s{sT0}, 3072")
        k(f"v_xor_b32 v{vXR+e}, s{sT1}, v13\nv_add_u32 v{vXR+e}, s{sXL}, v{vXR+e}")
        k(f"v_add_u32 v{vTR+e}, s{sT0}, v255\nv_add_u32 v{vTR+4+e}, {48*KB}, v{vTR+e}")
    k(f"v_mov_b32 v14, 0x3f803f80\nv_add_u32 v255, s84, v255\nv_accvgpr_write_b32 a212, v255")
    for r in range(192, 196): k(f"v_accvgpr_write_b32 a{r}, v14")
    def reads(j):
        o = []
        for e in range(4):
            o.append(f"ds_read_b128 {vr(vX + 16*j + 4*e)}, v{vXR+e} offset:{(j & 3)*4*KB}")
            for t in range(3):
                off = (12*(j & 3) + t)*KB; r = 48*(j & 1) + 4*(3*e + t)
                o.append(f"ds_read_b64_tr_b16 {ar(r,2)}, v{vTR + 4*(j >> 2) + e} offset:{off}")
                o.append(f"ds_read_b64_tr_b16 {ar(r+2,2)}, v{vTR + 4*(j >> 2) + e} offset:{off+256}")
        return o
    side = []
    if Q0_MARKS: mark(k, 'alu')
    for j in range(1, Q0_UP):
        for f in chunk_loads(j): f()
    if WARM and WARM_AT == 1: k.vm(f"global_load_dword v255, v245, s[88:89]")
    if Q0_MARKS: mark(k, 'iss')
    k.wait(vm=ct[0])
    k("s_barrier")
    mark(k, 'd0')
    for x in reads(0): k.lg(x)
    U = vG + 8
    st_ = res_unpack(U, vG)
    st_ += [f"v_add_f32 v{vG}, v{U}, v{U+1}", f"v_mul_f32 v{vG+2}, v{U}, v{U}", f"v_add_f32 v{vG+1}, v{U+2}, v{U+3}", f"v_mul_f32 v{vG+3}, v{U+1}, v{U+1}",
            f"v_fmac_f32 v{vG+2}, v{U+2}, v{U+2}", f"v_fmac_f32 v{vG+3}, v{U+3}, v{U+3}"]
    for i in range(4, 16, 2):
        st_ += [f"v_add_f32 v{vG}, v{vG}, v{U+i}", f"v_fmac_f32 v{vG+2}, v{U+i}, v{U+i}", f"v_add_f32 v{vG+1}, v{vG+1}, v{U+i+1}", f"v_fmac_f32 v{vG+3}, v{U+i+1}, v{U+i+1}"]
    st_ += [f"v_add_f32 v{vG}, v{vG}, v{vG+1}", f"v_add_f32 v{vG+2}, v{vG+2}, v{vG+3}", f"v_mov_b32 v{vG+1}, v{vG}", f"v_mov_b32 v{vG+3}, v{vG+2}",
            f"v_permlane32_swap_b32 v{vG}, v{vG+1}", f"v_permlane32_swap_b32 v{vG+2}, v{vG+3}",
            f"v_add_f32 v{vG}, v{vG}, v{vG+1}", f"v_add_f32 v{vG+2}, v{vG+2}, v{vG+3}"]
    for x in st_[:Q0_ST0]: k(x)
    st_ = st_[Q0_ST0:]
    def gran():
        k(f"s_add_u32 s{sTAG}, s{sTAG}, 0x7f4a7c15\ns_addc_u32 s{sTAG+1}, s{sTAG+1}, 0x9e3779b9")
        k(f"v_mov_b32 v{vG+1}, s{sTAG}\nv_mov_b32 v{vG+3}, s{sTAG+1}")
        k(f"s_lshr_b32 s{sT0}, s{sDST}, 2\ns_add_u32 s{sT0}, s{sT0}, {SG}\ns_mov_b32 exec_hi, 0")
        k.vm(f"buffer_store_dwordx4 {vr(vG)}, v{vL16}, {srd(sWS)}, s{sT0} offen sc1")
        k("s_mov_b64 exec, -1")
        k(f"s_lshl_b32 s{sF}, s{sRB}, 13\ns_add_u32 s{sF}, s{sF}, {SG}\ns_add_u32 s{sB}, s{sF}, 4096")
    cmpg = []
    for i in range(8):
        cmpg += [f"v_xor_b32 v13, s{sTAG}, v{vG+4*i+1}", f"v_xor_b32 v14, s{sTAG+1}, v{vG+4*i+3}",
                 ("v_or_b32 v15, v13, v14" if i == 0 else "v_or3_b32 v15, v13, v14, v15")]
    apg = APoll(k, [f"buffer_load_dwordx4 {vr(vG+4*i)}, v{vL16}, {srd(sWS)}, s{sF if i < 4 else sB} offen offset:{(i & 3)*KB} sc1" for i in range(8)],
                "\n".join(cmpg + ["v_cmp_ne_u32 vcc, 0, v15"]))
    for j in range(8):
        if j == 0 and st_:
            n_ = -(-len(st_) // 8)
            side += [lambda c=st_[i:i+n_]: [k(x) for x in c] for i in range(0, len(st_), n_)]
        if j == 0: side.append(gran)
        for c_ in Q0_SCHED[j]:
            assert c_ - 4 <= j
            side += chunk_loads(c_)
        if WARM and WARM_AT == j + 2: side.append(lambda: k.vm(f"global_load_dword v255, v245, s[88:89]"))
        if j == Q0_GLD: side += [lambda x=x: setattr(apg, 't', k.vm(x)) for x in apg.loads]
        if PK_EARLY: side += [lambda i=i: pk.issue(i) for i in range(8) if PK_AT[i] == j]
        k.wait_all(vm=False)
        rl = []
        if j < 7:
            assert cn[j+1] == 7
            k.wait(vm=ct[j+1]); k("s_barrier")
            if j in Q0_MARKJ: mark(k, f'c{j+1}')
            rl = reads(j + 1)
        mm = [('c', t) for t in range(3)] + [('m', b) for b in range(12)]
        if j == 7:
            apg.check()
            tail = []
            n = 8
            while n > 1:
                h = n // 2
                for i in range(h):
                    tail += [f"v_add_f32 v{vG+4*i}, v{vG+4*i}, v{vG+4*(i+h)}", f"v_add_f32 v{vG+4*i+2}, v{vG+4*i+2}, v{vG+4*(i+h)+2}"]
                n = h
            tail += [f"v_mov_b32 v{vG+1}, v{vG+2}"]
            tail += f"s_lshr_b32 s{sT0}, s{sW}, 1\ns_lshl_b32 s{sT0}, s{sT0}, 9\ns_and_b32 s{sT1}, s{sW}, 1\ns_lshl_b32 s{sT1}, s{sT1}, 3\ns_add_u32 s{sT0}, s{sT0}, s{sT1}".split('\n')
            tail += [f"v_and_b32 v13, 0x1f0, v{vL16}", f"v_add_u32 v13, s{sT0}, v13"]
            C = vG + 8
            for t in range(3):
                tail += [f"v_accvgpr_read_b32 v14, a{aCS+16*t}", f"v_cvt_pk_bf16_f32 v{C+2*t+1}, v14, 0", f"v_lshlrev_b32 v15, 16, v{C+2*t+1}",
                         "v_sub_f32 v14, v14, v15", f"v_cvt_pk_bf16_f32 v{C+2*t}, v15, v14", f"ds_write_b64 v13, {vr(C+2*t,2)} offset:{t*KB}"]
            fin = fin_stats(vST, vEXT, vRS)[NTREE:] + qkv_consts(vT, vRS, vR)
            tail += fin[:18]
            tail += ["s_waitcnt lgkmcnt(0)", "s_barrier"] + [f"ds_read_b128 {vr(C+4*t)}, v{vL16} offset:{t*KB}" for t in range(3)] + fin[18:]
            tail += f"s_lshl_b32 s{sCc}, s{sA}, 18\ns_lshl_b32 s{sT1}, s{sRB}, 11\ns_add_u32 s{sCc}, s{sCc}, s{sT1}".split('\n')
            tail += f"s_mul_i32 s{sB}, s{sRB}, {112*KB}\ns_lshl_b32 s{sT1}, s{sA}, 11\ns_add_u32 s{sB}, s{sB}, s{sT1}".split('\n')
            n_ = -(-len(tail) // 15)
            side += [lambda c=tail[i:i+n_]: [k(x) for x in c] for i in range(0, len(tail), n_)]
        for p, (kind, b) in enumerate(mm):
            if kind == 'c':
                acc = ar(aCS + 16*b, 16)
                k(f"v_mfma_f32_32x32x16_bf16 {acc}, {ar(192)}, {ar(48*(j & 1) + 4*b)}, {'0' if j == 0 else acc}")
            else:
                ks = 4*j + b // 3; t = b % 3
                acc = vr(vACC + 16*t, 16); w = ar(48*(j & 1) + 4*b); x = vr(vX + 4*ks)
                A, B = (x, w) if t == 1 else (w, x)
                k(f"v_mfma_f32_32x32x16_bf16 {acc}, {A}, {B}, {'0' if ks == 0 else acc}")
            if j == 0 and p == 0: mark(k, 'm0')
            for _ in range(2):
                if rl: k.lg(rl.pop(0))
            if side and (j == 7 or p % 2 == 0 or 2 * len(side) > 15 - p): side.pop(0)()
            if len(side) > 14 - p: side.pop(0)()
        assert not rl
    while side: side.pop(0)()
    mark(k, 'loop')
    k.wait_all(vm=False)
    for t in range(3):
        c = vG + 8 + 4*t
        acc = vr(vACC + 16*t, 16)
        A, B = (vr(vEXT), vr(c)) if t == 1 else (vr(c), vr(vEXT))
        k(f"v_mfma_f32_32x32x16_bf16 {acc}, {A}, {B}, {acc}")
    t_ = None
    for x in qk_tile(vACC, KVF(0), vRS, " sc1", vX) + v_tile(vACC+16, 0, vR, vX+8) + qk_tile(vACC+32, QF, vRS+1, " sc1", vX+16):
        if x.startswith('buffer'): t_ = k.vm(x)
        else: k(x)
    mark(k, 'st')
    return t_, t_

def ph_qkv(k, L, ring, b0):
    vX, vACC, vST, vEXT, vRS, vT, vR = 16, 144, 192, 8, 6, 224, 232
    rb_128(k)
    k(f"s_and_b32 s{sA}, s{sC}, 15")
    k(f"s_lshl_b32 s{sX}, s{sRB}, 15\ns_add_u32 s{sX}, s{sX}, {XF}")
    set_lds_bases(k)
    QE = QKV_QE
    seq = [(ks, t) for ks in range(33) for t in ((0, 1, 2) if ks < QE else (0, 1))] + [(ks, 2) for ks in range(QE, 33)]
    ops = [dict(b=b0 + (2*ks + t if t < 2 else 66 + ks), bmin=b0, bmax=b0 + 98, xi=(ks if ks < 32 else None), x=(vr(vX+4*ks) if ks < 32 else vr(vEXT)),
                acc=vr(vACC+16*t, 16), swap=(t == 1), first=(ks == 0)) for ks, t in seq]
    xq = XLoader(k, 32, lambda i: vr(vX+4*i), lin_src(k))
    res = {}
    se = stats_emitters(k, vST, res)
    k(f"s_lshl_b32 s{sCc}, s{sA}, 18\ns_lshl_b32 s{sT1}, s{sRB}, 11\ns_add_u32 s{sCc}, s{sCc}, s{sT1}")
    k(f"s_mul_i32 s{sB}, s{sRB}, {112*KB}\ns_lshl_b32 s{sT1}, s{sA}, 11\ns_add_u32 s{sB}, s{sB}, s{sT1}")
    assert ring.issued == ring.total
    g = Gemm(k, ring, ops, {0})
    g.start()
    ring.issue_n(4)
    publish_local(k, G.tx)
    ring.issue_n(4)
    G.ex = 216
    su = [x.replace('v13', 'v246').replace('v14', 'v247') for x in att_setup(L)] + ex_addr(G.ex)
    su += [f"s_lshl_b32 s{sE}, s{sA}, 11", f"s_add_u32 s{sE}, s{sE}, s{sB}", f"s_add_u32 s{sE}, s{sE}, {HF + 32*KB}"]
    k(f"s_lshl_b32 s{sF}, s{sRB}, 7\ns_add_u32 s{sF}, s{sF}, {FLOC(L-1, 8)}")
    poll16(k)
    aps = stats_poll(k, FLOC(L-1,7) - FLOC(L-1,8))
    fin = fin_stats(vST, vEXT, vRS) + qkv_consts(vT, vRS, vR)
    full = qk_tile(vACC, KVF(L), vRS, " sc1", vST) + v_tile(vACC+16, L, vR, vST+16)
    alu_ = [x for x in full if x.startswith('v_')]
    glob = [x for x in full if not x.startswith('v_')]
    lo_ = [f"buffer_store_dwordx4 {vr(vST)}, v{vL16}, {srd(sWS)}, s{sE} offen",
           f"buffer_store_dwordx4 {vr(vST+4)}, v{vL16}, {srd(sWS)}, s{sE} offen offset:2048",
           f"buffer_store_dwordx4 {vr(vST+16)}, v{G.ex+6}, {srd(sWS)}, s{sE} offen offset:1024",
           f"buffer_store_dwordx4 {vr(vST+20)}, v{G.ex+6}, {srd(sWS)}, s{sE} offen offset:1536"]
    epi = []
    for q_ in range(4): epi += alu_[12*q_:12*q_+12] + ([lo_[q_]] if KV_LOC else [])
    epi += ["#loc"] + glob + ex_kv(vST, vST+16)
    st = dict(i=0, j=0, t=None, loc=None)
    def put(x):
        if x == '#loc': st['loc'] = st['t']
        elif x.startswith('buffer'): st['t'] = k.vm(x)
        elif x.startswith('ds_'): k.lg(x)
        else: k(x)
    def filler(m):
        if aps and m == 4: aps.issue()
        if m == 22:
            if aps: aps.check()
            for e in se: e()
        if m < 10 or m > 22:
            for _ in range(3 if m < 10 else 4):
                if su: k(su.pop(0))
        if 44 <= m < 64 + QE:
            assert not su
            if st['i'] == 0: k.wait(vm=res['t'])
            for _ in range(3):
                if st['i'] < len(fin): k(fin[st['i']]); st['i'] += 1
        if m >= 68 + QE:
            for _ in range(QKV_EPI):
                if st['j'] < len(epi): put(epi[st['j']]); st['j'] += 1
    g.run(xq, n0=8, filler=filler)
    while st['j'] < len(epi):
        put(epi[st['j']]); st['j'] += 1
    assert st['i'] == len(fin)
    if KV_LOC and QF_AT == 0: q_flag(k, L, st['loc'])
    q_out(k, vACC + 32, vRS + 1, vST + 8, vT)
    if KV_LOC and QF_AT == 1: q_flag(k, L, st['loc'])
    mark(k, 'st')
    return st['t'], st['loc']

def code_touch(k, vd, skip=0):
    if not CODE_TOUCH: return
    pc = k.newlabel('pc')
    k(f"s_getpc_b64 s[{sPC}:{sPC+1}]")
    k.label(pc)
    k(f"s_min_u32 s{sSPIN}, s{sCT}, L_end-{pc}-1024\ns_add_u32 s{sPC}, s{sPC}, s{sSPIN}\ns_addc_u32 s{sPC+1}, s{sPC+1}, 0")
    k.vm(f"global_load_dword v{vd}, v{vL16}, s[{sPC}:{sPC+1}] offset:{skip}")

def flag_touch(k, L, va, vd):
    if not FL_TOUCH: return
    k(f"v_bfe_u32 v{va}, v0, 3, 3\nv_lshlrev_b32 v{va}, 6, v{va}\nv_and_or_b32 v{va}, v0, 7, v{va}\nv_lshlrev_b32 v{va}, 7, v{va}")
    k(f"s_lshl_b32 s{sT3}, s{sG}, 10\ns_add_u32 s{sT3}, s{sT3}, {FLOC(L,0)}")
    k.vm(f"buffer_load_dword v{vd}, v{va}, {srd(sWS)}, s{sT3} offen sc1")

EX = 112 * KB
vK, vV, vIDX, vL128, vTX, vP2, vCP = 248, 249, 250, 251, 252, 253, 254
sOD, sLC, sTH, sTW, sFO, sF2, sKX = 64, 66, 72, 73, 79, 68, 69
def att_setup(L):
    o = f"""s_and_b32 s{sT0}, s{sC}, 15
s_lshl_b32 s{sF2}, s{sT0}, 11
s_add_u32 s{sF2}, s{sF2}, {FKV(L)}
s_lshl_b32 s{sT0}, s{sT0}, 1
s_and_b32 s{sT1}, s{sW}, 1
s_add_u32 s{sT0}, s{sT0}, s{sT1}
s_lshr_b32 s{sT1}, s{sW}, 1
s_lshl_b32 s{sKX}, s{sG}, 1
s_add_u32 s{sKX}, s{sKX}, s{sC4}
s_lshl_b32 s{sT2}, s{sKX}, 1
s_add_u32 s{sT2}, s{sT2}, s{sT1}
s_lshl_b32 s{sFO}, s{sT2}, 5
s_add_u32 s{sFO}, s{sFO}, s{sT0}
s_lshl_b32 s{sFO}, s{sFO}, 3
s_add_u32 s{sFO}, s{sFO}, {FLOC(L,0)}
s_mul_i32 s{sOD}, s{sT2}, {224*KB}
s_lshl_b32 s{sT3}, s{sT0}, 10
s_add_u32 s{sOD}, s{sOD}, s{sT3}
s_add_u32 s{sOD}, s{sOD}, {HF}
s_add_u32 s{sOD+1}, s{sOD}, {112*KB}
s_xor_b32 s{sT2}, s{sT2}, 2
s_mul_i32 s{sLC}, s{sT2}, {224*KB}
s_lshl_b32 s{sT3}, s{sT0}, 11
s_add_u32 s{sLC}, s{sLC}, s{sT3}
s_add_u32 s{sLC}, s{sLC}, {HF + 32*KB}
s_add_u32 s{sLC+1}, s{sLC}, {112*KB}
s_lshl_b32 s{sKX}, s{sKX}, 13
s_lshl_b32 s{sT0}, s{sT0}, 17
s_lshl_b32 s{sT1}, s{sT1}, 12
s_add_u32 s{sT0}, s{sT0}, s{sT1}
s_add_u32 s{sKX}, s{sKX}, s{sT0}
s_add_u32 s{sKX}, s{sKX}, {KVF(L)}
v_and_b32 v13, 0x33, v0
v_bfe_u32 v14, v0, 2, 1
v_lshl_or_b32 v13, v14, 3, v13
v_bfe_u32 v14, v0, 3, 1
v_lshl_or_b32 v13, v14, 2, v13
v_lshlrev_b32 v{vK}, 4, v13
v_and_b32 v13, 15, v0
v_lshlrev_b32 v{vP2}, 7, v13
v_bfe_u32 v14, v0, 5, 1
v_lshl_add_u32 v13, v14, 4, v13
v_lshlrev_b32 v{vV}, 4, v13
v_mov_b32 v{vIDX}, 0xdddddddd
v_lshlrev_b32 v{vL128}, 3, v{vL16}
v_and_b32 v13, 27, v0
v_cmp_eq_u32 vcc, 16, v13
v_mov_b32 v14, 0x3afe3f80
v_cndmask_b32 v{vCP}, 0, v14, vcc
s_lshl_b32 s{sT3}, s{sU}, 2
s_add_u32 s{sT3}, s{sT3}, s{sW}
s_mul_i32 s{sTH}, s{sT3}, {7*KB}
s_add_u32 s{sTH}, s{sTH}, {HF}
s_lshl_b32 s{sT0}, s{sT3}, 11
s_add_u32 s{sT0}, s{sT0}, {XF}
s_lshl_b32 s{sT1}, s{sT3}, 8
s_add_u32 s{sT1}, s{sT1}, {SX}
v_and_b32 v13, 0x780, v{vL128}
v_add_u32 v13, s{sT0}, v13
v_and_b32 v14, 0x80, v{vL128}
v_add_u32 v14, s{sT1}, v14
v_cmp_gt_u32 vcc, 512, v{vL16}
v_cndmask_b32 v{vTX}, v14, v13, vcc
s_lshl_b32 s{sTW}, s{sC4}, 2
s_add_u32 s{sTW}, s{sTW}, s{sW}
s_mul_i32 s{sTW}, s{sTW}, {TOUCH_KBS[L] * KB // 8}
s_add_u32 s{sTW}, s{sTW}, s{sSEG+1}
s_add_u32 s{sTW}, s{sTW}, {(PREFILL - 64)*KB}
s_and_b32 s{sCT}, s{sT3}, 31
s_lshl_b32 s{sCT}, s{sCT}, 10"""
    return o.split('\n')
def ex_addr(e):
    return [f"v_bfe_u32 v{e+6}, v0, 4, 1", f"v_lshl_add_u32 v{e+6}, v{e+6}, 11, v{vV}",
            f"s_mul_i32 s{sT3}, s{sW}, {6*KB}", f"s_add_u32 s{sT3}, s{sT3}, {EX}", f"v_add_u32 v{e}, s{sT3}, v{vL16}", f"v_add_u32 v{e+1}, s{sT3}, v{e+6}",
            f"s_lshr_b32 s{sT3}, s{sW}, 1", f"s_mul_i32 s{sT3}, s{sT3}, {12*KB}", f"s_and_b32 s{sT0}, s{sW}, 1", f"s_lshl_b32 s{sT0}, s{sT0}, 10",
            f"s_add_u32 s{sT2}, s{sT0}, {EX}", f"s_add_u32 s{sT1}, s{sT2}, s{sT3}", f"v_add_u32 v{e+2}, s{sT1}, v{vL16}",
            f"s_sub_u32 s{sT2}, s{sT2}, s{sT3}", f"v_add_u32 v{e+3}, s{sT2}, v{vL16}", f"s_add_u32 s{sT1}, s{sT1}, s{sT0}",
            f"v_add_u32 v{e+4}, s{sT1}, v{vK}", f"v_add_u32 v{e+5}, s{sT1}, v{vV}"]
def ex_kv(pK, pV):
    e = G.ex
    return [f"ds_write_b128 v{e}, {vr(pK)}", f"ds_write_b128 v{e}, {vr(pK+4)} offset:2048",
            f"ds_write_b128 v{e+1}, {vr(pV)} offset:1024", f"ds_write_b128 v{e+1}, {vr(pV+4)} offset:1536"]
def q_out(k, a, sc, p0, vT):
    init = [f"v_mfma_f32_32x32x16_bf16 {vr(16+16*q,16)}, {vr(vT+4)}, {vr(vT)}, 0" for q in range(4)]
    init2 = [f"v_mfma_f32_32x32x16_bf16 {vr(80+16*q,16)}, {vr(vT+4)}, {vr(vT)}, 0" for q in range(6)]
    k(f"v_mov_b32 v{vT}, 0")
    for x in init: k(x)
    k(f"v_mov_b32 v{vT}, v{vCP}")
    for half in range(2):
        p = p0 + 4*half
        for j in range(4):
            r = a + 8*half + 2*j
            k(f"v_mul_f32 v{r}, v{r}, v{sc}\nv_mul_f32 v{r+1}, v{r+1}, v{sc}\nv_cvt_pk_bf16_f32 v{p+j}, v{r}, v{r+1}")
            if init2: k(init2.pop(0))
        k.lg(f"ds_write_b128 v{G.ex}, {vr(p)} offset:{4096 + half*KB}")

def ph_att(k, L, ring, tkv, tloc):
    vO, vKV, vS0, aQ = 16, 80, 176, aWB
    NS = 4; NKV = 8
    vS = [vS0 + 16*i for i in range(NS)]
    sK = sB
    K = lambda t: vr(vKV + 12*(t % NKV))
    V = lambda t, u: vr(vKV + 12*(t % NKV) + 4 + 4*u)
    k.wait_all(vm=False)
    k("s_barrier")
    lt = {}
    lt['k0'] = k.lg(f"ds_read_b128 {K(0)}, v{G.ex+4}")
    for s in range(4):
        lt[s] = k.lg(f"ds_read_b128 {ar(aQ+4*s)}, v{G.ex + 2 + (s >> 1)} offset:{4096 + (s & 1)*6*KB + (12*KB if s >> 1 else 0)}")
    k(f"s_mov_b64 exec, s[{sMSK}:{sMSK+1}]")
    for t in range(2):
        for u in range(2): lt['v'] = k.lg(f"ds_read_b128 {V(t,u)}, v{G.ex+5} offset:{t*6*KB + KB + u*512}")
    k("s_mov_b64 exec, -1")
    lt['k1'] = k.lg(f"ds_read_b128 {K(1)}, v{G.ex+4} offset:{6*KB}")
    mark(k, 'pre')
    if L and KV_LOC and QF_AT == 2: q_flag(k, L, tloc)
    kt = {}
    def ldP(x):
        if x == 1 and L and KV_LOC: src = [(sLC, 0), (sLC + 1, 0)]
        else:
            k(f"s_xor_b32 s{sK}, s{sKX}, {x << 13}")
            src = [(sK, 0), (sK, 2*KB)]
        for z in range(2): k.vm(f"buffer_load_dwordx4 {K(2*x+z)}, v{vK}, {srd(sWS)}, s{src[z][0]} offen offset:{src[z][1]} sc1")
        k(f"s_mov_b64 exec, s[{sMSK}:{sMSK+1}]")
        for z in range(2):
            for u in range(2): t_ = k.vm(f"buffer_load_dwordx4 {V(2*x+z,u)}, v{vV}, {srd(sWS)}, s{src[z][0]} offen offset:{src[z][1] + KB + u*512} sc1")
        k("s_mov_b64 exec, -1")
        kt[2*x] = kt[2*x+1] = t_
    NT = ATT_NT
    steps = [(t, q) for t in range(32 - NT) for q in range(4)] + [(t, q) for q in (2, 3, 0, 1) for t in range(32 - NT, 32)]
    n = len(steps)
    LA = NS - 1
    def qk(i):
        t, q = steps[i]
        if t < 2: k.wait(lg=lt[q] if t == 0 else lt['k1'])
        else: k.wait(vm=kt[t])
        k(f"v_mfma_f32_32x32x16_bf16 {vr(vS[i % NS],16)}, {K(t)}, {ar(aQ+4*q)}, 0")
    def pv(i, u):
        t, q = steps[i]
        if t < 2: k.wait(lg=lt['v'])
        k(f"v_smfmac_f32_32x32x32_bf16 {vr(vO+16*q,16)}, {V(t,u)}, {vr(vS[i % NS]+8*u,8)}, v{vIDX}")
    for i in range(LA): qk(i)
    mark(k, 'm0')
    ring.limit = PREFILL
    jobs = {}
    def job(i, f, e=10): jobs.setdefault((i, e), []).append(f)
    ap2 = apoll1(k, vP2, 10, sF2)
    late_qk = set()
    if L and KV_LOC:
        def a1():
            k(f"s_xor_b32 s{sT0}, s{sRB}, 4\ns_and_b32 s{sT0}, s{sT0}, 6\ns_lshl_b32 s{sT1}, s{sG}, 4\ns_add_u32 s{sT1}, s{sT1}, s{sA}\ns_lshl_b32 s{sT1}, s{sT1}, 3")
            k(f"s_add_u32 s{sT1}, s{sT1}, s{sT0}\ns_lshl_b32 s{sT1}, s{sT1}, 3\ns_add_u32 s{sD}, s{sT1}, {FLOC(L-1,5)}\nv_and_b32 v12, 8, v0")
            ap1.issue()
        ap1 = apoll1(k, 12, 8, sD)
        job(A1_AT[0], a1, e=2 if A1_AT[0] else 3)
        job(A1_AT[1], lambda: (ap1.check(), ldP(1)))
        job(KVF_AT[L], lambda: (k.wait(lg=lt['k1']), kv_flag(k, L, tkv)))
        job(P2[L][0], ap2.issue)
        job(P2[L][1], lambda: (ap2.check(), ldP(2)))
        job(P2[L][1] + 1, lambda: ldP(3))
    else:
        if not (L == 0 and Q0K and Q0K_FLAG < 32): job(KVF_AT[L], lambda: (k.wait(lg=lt['k1']), kv_flag(k, L, tkv)))
        if L == 0:
            job(PKR_AT, lambda: G.pk.reads(*range(8)))
            for i in range(8): job(PKR_AT + 1 + i // 4, lambda i=i: G.pk.csum(i), e=(0, 4, 8, 13)[i % 4])
        job(P2[L][0], ap2.issue)
        if L == 0 and PK_WAIT:
            job(P2[L][1], lambda: (ap2.check(), ldP(1), ldP(2), ldP(3) if PK_WAIT > 1 else None, G.pk.stores(*range(8)), G.pk.ext()), e=15)
            if PK_WAIT == 1: job(P2[L][1] + 2, lambda: ldP(3))
        else:
            job(P2[L][1], lambda: (ap2.check(), ldP(1)))
            job(P2[L][1] + 1, lambda: ldP(2))
            job(P2[L][1] + 2, lambda: ldP(3))
        late_qk = set(range(8, 8 + LA))
    job(9, lambda: code_touch(k, 5))
    for x in range(4, 16): job(8*(x - 3) + (4 if x == 4 else 0), lambda x=x: ldP(x))
    NR = PREFILL // 16
    if L == 0:
        if PK_WAIT:
            job(PUB_AT, G.pk.pub); CHK_AT = PUB_AT + CHK_GAP
        else: CHK_AT = G.pk.schedule(job) + CHK_GAP
        apk = APoll(k, [f"buffer_load_dwordx2 v[10:11], v12, {srd(sWS)}, s{sX} offen offset:8 sc1"],
                    f"v_cmp_ne_u64 vcc, s[{sTAG}:{sTAG+1}], v[10:11]")
        def chk0():
            k(f"v_accvgpr_read_b32 v12, a213\ns_mov_b32 s{sX}, {FPK}")
            apk.issue()
        job(CHK_AT - 6, chk0)
        apx = APoll(k, [f"buffer_load_dwordx4 v[12:15], v11, {srd(sWS)}, s{sCc} offen sc1"],
                    f"v_cmp_ne_u64 vcc, s[{sTAG}:{sTAG+1}], v[14:15]")
        def mode0():
            k(f"v_and_b32 v11, 0xf80, v{vL128}\ns_lshl_b32 s{sCc}, s{sG}, 12\ns_add_u32 s{sCc}, s{sCc}, {FPK}")
            apx.issue()
        def mode():
            apx.check()
            k(f"s_xor_b32 s{sT2}, s{sTAG}, s{sXCC}")
            k(f"v_cmp_ne_u32 vcc, s{sT2}, v12")
            k(f"s_cmp_eq_u64 vcc, 0\ns_cselect_b32 s{sMODE}, 1, 0")
        job(81, mode0); job(95, mode)
        def chk():
            apk.check()
            k(f"s_and_b32 s{sT2}, s{sC}, 7\ns_lshl_b32 s{sT2}, s{sT2}, 1\ns_lshr_b32 s{sT3}, s{sW}, 1\ns_add_u32 s{sT2}, s{sT2}, s{sT3}")
            k(f"s_mul_i32 s{sT3}, s{sW}, {28*KB}\ns_add_u32 s{sT3}, s{sT3}, {WD}")
            k(f"s_mul_i32 s{sX}, s{sT2}, {112*KB}\ns_add_u32 s{sX}, s{sX}, s{sT3}")
            k(f"s_xor_b32 s{sT2}, s{sT2}, 1\ns_mul_i32 s{sX2}, s{sT2}, {112*KB}\ns_add_u32 s{sX2}, s{sX2}, s{sT3}")
        job(CHK_AT, chk)
        def wsrc(i):
            s_ = sX if i < 28 else sX2
            j = i % 28
            if j and (j & 3) == 0: k(f"s_add_u32 s{s_}, s{s_}, 4096")
            return s_, (j & 3) * KB
        assert not DN16
        wq = XLoader(k, 56, lambda i: ar(aWD + 8*(i % 28) + 4*(i // 28)), wsrc)
        slots = [i for i in range(CHK_AT + 1, 112) if i % 8 in WD_SLOTS]
        work = [lambda: wq.issue_n(4)] * 14
        rw = [ring.issue16] * NR
        seq = []
        while work or rw:
            if work: seq.append(work.pop(0))
            if work: seq.append(work.pop(0))
            if rw: seq.append(rw.pop(0))
        assert len(seq) <= len(slots), (len(seq), len(slots))
        for i, f in zip(slots, seq): job(i, f)
    else:
        for j in range(NR): job(R1_AT + R1_STEP*j, ring.issue16)
    TL = TOUCH_LN; vT_ = vL128 if TL == 64 else 4
    def tch(sreg, j):
        def f():
            if j: k(f"s_add_u32 s{sreg}, s{sreg}, {TL*128}")
            elif TL < 64: k(f"v_and_b32 v4, {(TL-1)*128}, v{vL128}")
            k.vm(f"buffer_load_dword v5, v{vT_}, {srd(sWS)}, s{sreg} offen sc1")
        return f
    for j in range(-(-TOUCH_KBS[L] // TL)): job(TOUCH_AT[L] + j*TOUCH_STEP[L], tch(sTW, j))
    for j in range(-(-56 // TL)): job(TACTS[L] + j*TH_STEP, tch(sTH, j))
    job(TACTS[L] + 4, lambda: k.vm(f"buffer_load_dword v5, v{vTX}, {srd(sWS)}, 0 offen sc1"))
    job(CT_AT, lambda: code_touch(k, 5))
    SC = 136 * KB
    assert PREFILL <= 136
    def red_setup():
        k(f"s_mul_i32 s{sT0}, s{sW}, {6*KB}\ns_add_u32 s{sT0}, s{sT0}, {SC}\nv_add_u32 v13, s{sT0}, v{vL16}")
        k(f"s_xor_b32 s{sT0}, s{sW}, 2\ns_mul_i32 s{sT0}, s{sT0}, {6*KB}\ns_add_u32 s{sT0}, s{sT0}, {SC}\nv_add_u32 v10, s{sT0}, v{vL16}")
    job(112, red_setup)
    def res_early():
        if L == 0:
            rowmajor_addr(k, 14, sT0)
            k.vm(f"buffer_load_dwordx4 {vr(240)}, v14, {srd(60)}, s{sT0} offen")
            k.vm(f"buffer_load_dwordx4 {vr(244)}, v14, {srd(60)}, s{sT0} offen offset:32")
        else: load_res(k, 240)
    if RES_AT: job(RES_AT, res_early)
    def red_write(s):
        z = s & 1
        k.lg(f"ds_write_b128 v10, {vr(vO+16*s)} offset:{z*3*KB}")
        k.lg(f"ds_write_b128 v10, {vr(vO+16*s+4)} offset:{z*3*KB+KB}")
        k.lg(f"ds_write_b32 v10, v{vO+16*s+8} offset:{z*3*KB+2*KB}")
    for i in range(128):
        if steps[i][0] == 31 and steps[i][1] >= 2: job(i + 2, lambda s=steps[i][1]: red_write(s), e=2)
    tl = []
    def red_read():
        k.wait_all()
        k("s_barrier")
        for z in range(2):
            b = vO + 32 + 16*z
            k.lg(f"ds_read_b32 v{b+8}, v13 offset:{z*3*KB+2*KB}")
            k.lg(f"ds_read_b128 {vr(b)}, v13 offset:{z*3*KB}")
            tl.append(k.lg(f"ds_read_b128 {vr(b+4)}, v13 offset:{z*3*KB+KB}"))
    job(127 if NT == 1 else 126, red_read)
    for i, (t, q) in enumerate(steps):
        s = vS[i % NS]
        if i in ATT_MARKS: mark(k, f's{i}')
        if i == 8 and late_qk:
            pv(7, 1)
            for j in sorted(late_qk): qk(j)
        for e in range(16):
            if e == 2 and i > 0 and not (i == 8 and late_qk): pv(i-1, 1)
            if e == 6 and i + LA < n and i + LA not in late_qk: qk(i + LA)
            if e == 10: pv(i, 0)
            for f in jobs.pop((i, e), []): f()
            k(f"v_exp_f32 v{s+e}, v{s+e}")
    pv(n-1, 1)
    assert not jobs, jobs.keys()
    assert ring.issued == PREFILL
    mark(k, 'loop')
    for z in range(2):
        o = vO + 16*z; b = vO + 32 + 16*z
        k.wait(lg=tl[z])
        k(f"v_add_f32 v{o+8}, v{o+8}, v{b+8}\nv_rcp_f32 v{o+9}, v{o+8}")
        for i in range(8): k(f"v_add_f32 v{o+i}, v{o+i}, v{b+i}")
        for j in range(4):
            k(f"v_mul_f32 v{o+2*j}, v{o+2*j}, v{o+9}\nv_mul_f32 v{o+2*j+1}, v{o+2*j+1}, v{o+9}")
            k(f"v_cvt_pk_bf16_f32 v{o+12+j}, v{o+2*j}, v{o+2*j+1}")
        ts = k.vm(f"buffer_store_dwordx4 {vr(o+12)}, v{vL16}, {srd(sWS)}, s{sOD+z} offen")
    mark(k, 'f_st')
    fb = k.newlabel('fb'); back = k.newlabel('fbret')
    LO, HI = f2u(2.0**-60), f2u(2.0**60)
    for z in range(2):
        o = vO + 16*z
        k(f"v_add_f32 v{o}, v{o}, v{o+1}\nv_add_f32 v{o+2}, v{o+2}, v{o+3}\nv_add_f32 v{o+4}, v{o+4}, v{o+5}\nv_add_f32 v{o+6}, v{o+6}, v{o+7}")
        k(f"v_add_f32 v{o}, v{o}, v{o+2}\nv_add_f32 v{o+4}, v{o+4}, v{o+6}\nv_add_f32 v{o}, v{o}, v{o+4}")
        k(f"v_fma_f32 v{o+8}, v{o}, 0, v{o+8}\nv_subrev_u32 v{o+8}, {hex(LO)}, v{o+8}")
    k(f"v_max_u32 v{vO+8}, v{vO+8}, v{vO+24}")
    k(f"v_cmp_lt_u32 vcc, {hex(0 if FORCE_FB else HI - LO)}, v{vO+8}")
    k(f"s_cbranch_vccnz {fb}")
    k.label(back)
    F = [f"{fb}:", "s_waitcnt vmcnt(0)", f"s_and_b32 s{sT0}, s{sKX}, 0xfffe0000",
         f"v_add_u32 v{vK}, s{sT0}, v{vK}", f"v_add_u32 v{vV}, s{sT0}, v{vV}"]
    S, C, M = vS0, vS0 + 16, vS0 + 32
    for z in range(2):
        o = vO + 16*z; Q = ar(aQ + 4*z)
        F += [f"v_mov_b32 v{M}, 0xff800000", f"s_mov_b32 s{sK}, 0", f"{fb}_a{z}:",
              f"buffer_load_dwordx4 {K(0)}, v{vK}, {srd(sWS)}, s{sK} offen sc1", "s_waitcnt vmcnt(0)",
              f"v_mfma_f32_32x32x16_bf16 {vr(S,16)}, {K(0)}, {Q}, 0"]
        F += [f"v_max3_f32 v{M}, v{M}, v{S+2*i}, v{S+2*i+1}" for i in range(8)]
        F += [f"s_add_u32 s{sK}, s{sK}, 2048", f"s_cmp_lt_u32 s{sK}, {64*2048}", f"s_cbranch_scc1 {fb}_a{z}",
              f"v_mov_b32 v{M+1}, v{M}", f"v_permlane32_swap_b32 v{M}, v{M+1}", f"v_max_f32 v{M}, v{M}, v{M+1}"]
        F += [f"v_sub_f32 v{C+i}, 0, v{M}" for i in range(16)] + [f"v_mov_b32 v{o+i}, 0" for i in range(16)]
        F += [f"s_mov_b32 s{sK}, 0", f"{fb}_b{z}:",
              f"buffer_load_dwordx4 {K(0)}, v{vK}, {srd(sWS)}, s{sK} offen sc1",
              f"s_mov_b64 exec, s[{sMSK}:{sMSK+1}]",
              f"buffer_load_dwordx4 {V(0,0)}, v{vV}, {srd(sWS)}, s{sK} offen offset:{KB} sc1",
              f"buffer_load_dwordx4 {V(0,1)}, v{vV}, {srd(sWS)}, s{sK} offen offset:{KB+512} sc1",
              "s_mov_b64 exec, -1", "s_waitcnt vmcnt(0)",
              f"v_mfma_f32_32x32x16_bf16 {vr(S,16)}, {K(0)}, {Q}, {vr(C,16)}"]
        F += [f"v_exp_f32 v{S+i}, v{S+i}" for i in range(16)]
        F += [f"v_smfmac_f32_32x32x32_bf16 {vr(o,16)}, {V(0,u)}, {vr(S+8*u,8)}, v{vIDX}" for u in range(2)]
        F += ["s_nop 15", f"s_add_u32 s{sK}, s{sK}, 2048", f"s_cmp_lt_u32 s{sK}, {64*2048}", f"s_cbranch_scc1 {fb}_b{z}",
              f"v_rcp_f32 v{o+9}, v{o+8}"]
        for j in range(4):
            F += [f"v_mul_f32 v{o+2*j}, v{o+2*j}, v{o+9}", f"v_mul_f32 v{o+2*j+1}, v{o+2*j+1}, v{o+9}", f"v_cvt_pk_bf16_f32 v{o+12+j}, v{o+2*j}, v{o+2*j+1}"]
        F += [f"buffer_store_dwordx4 {vr(o+12)}, v{vL16}, {srd(sWS)}, s{sOD+z} offen"]
    F += ["s_waitcnt vmcnt(0)", f"s_branch {back}"]
    G.far += F
    k(f"s_mov_b32 s{sF}, s{sFO}")
    ring.end16()
    ring.limit = 144
    return ts

def load_res(k, v):
    k(f"s_add_u32 s{sT1}, s{sDST}, {XF}")
    k.vm(f"buffer_load_dwordx4 {vr(v)}, v{vL16}, {srd(sWS)}, s{sT1} offen sc1")
    return k.vm(f"buffer_load_dwordx4 {vr(v+4)}, v{vL16}, {srd(sWS)}, s{sT1} offen offset:1024 sc1")
def add_res(k, acc, v):
    for j in range(8):
        k(f"v_lshlrev_b32 v10, 16, v{v+j}\nv_and_b32 v11, 0xffff0000, v{v+j}")
        k(f"v_add_f32 v{acc+2*j}, v{acc+2*j}, v10\nv_add_f32 v{acc+2*j+1}, v{acc+2*j+1}, v11")

def ph_wo(k, L, ring, tO):
    k.label(f'L_wo{L}')
    vX, vACC, vRES, vSUM, vPK = 16, 80, (240 if RES_AT else 112), 120, 136
    k(f"s_lshr_b32 s{sRB}, s{sDST}, 15\ns_lshr_b32 s{sD}, s{sW}, 1")
    k(f"s_mul_i32 s{sX}, s{sRB}, {112*KB}\ns_lshl_b32 s{sT0}, s{sD}, 14\ns_add_u32 s{sX}, s{sX}, s{sT0}\ns_add_u32 s{sX}, s{sX}, {HF}")
    k(f"s_lshl_b32 s{sT0}, s{sD}, 11")
    set_lds_bases(k, sT0)
    seq = []
    for s in range(16):
        seq.append((s, 1))
        if s < 16 - WO_R0: seq.append((s, 0))
    nf = len(seq)
    seq += [(s, 0) for s in range(16 - WO_R0, 16)]
    ops = [dict(b=4*s + a, bmin=0, bmax=63, xi=s, x=vr(vX+4*s), acc=vr(vACC+16*a,16), swap=False, first=(s == 0)) for s, a in seq]
    g = Gemm(k, ring, ops, {0}, stop_issue=WO_STOP)
    rs = {}
    def ldres():
        if L == 0:
            k.vm(f"buffer_load_dwordx4 {vr(vRES)}, v8, {srd(60)}, s{sE} offen")
            rs['t'] = k.vm(f"buffer_load_dwordx4 {vr(vRES+4)}, v8, {srd(60)}, s{sE} offen offset:32")
        else:
            rs['t'] = load_res(k, vRES)
    if not RES_LATE[L] and not RES_AT:
        if L == 0: rowmajor_addr(k, 8, sE)
        ldres()
    g.start()
    mark(k, 'f_bar')
    ring.issue_n(PRE_WO)
    publish_local(k, tO)
    mark(k, 'f_pub')
    ring.issue_n(PRE_WO2)
    k(f"s_and_b32 s{sF}, s{sRB}, 0xfe\ns_add_u32 s{sF}, s{sF}, s{sD}\ns_lshl_b32 s{sF}, s{sF}, 7\ns_add_u32 s{sF}, s{sF}, {FLOC(L,0)}")
    SC = 144 * KB
    k(f"s_xor_b32 s{sT0}, s{sW}, 2\ns_lshl_b32 s{sT0}, s{sT0}, 12\ns_add_u32 s{sT0}, s{sT0}, {SC}\nv_add_u32 v6, s{sT0}, v{vL16}")
    k(f"s_lshl_b32 s{sT0}, s{sW}, 12\ns_add_u32 s{sT0}, s{sT0}, {SC}\nv_add_u32 v7, s{sT0}, v{vL16}")
    if RES_LATE[L] and L == 0: rowmajor_addr(k, 8, sE)
    if RES_AT:
        for x in res_unpack(vSUM, vRES): k(x)
    poll16(k)
    mark(k, 'f_poll')
    xq = XLoader(k, 16, lambda i: vr(vX+4*i), lin_src(k))
    xq.issue_n(WO_N0)
    if not RES_LATE[L] and not RES_AT:
        for x in res_unpack(vSUM, vRES): k(x)
    st = {}
    def xchg(step):
        if step == 0:
            while g.nread < 32: g.rd()
            for j in range(4): k.lg(f"ds_write_b128 v6, {vr(vACC+16+4*j)} offset:{j*KB}")
        elif step == 1:
            k.wait_all(vm=False)
            ring.limit = None
            ring.sync(64, 0)
            for j in range(4): st['t'] = k.lg(f"ds_read_b128 {vr(vACC+16+4*j)}, v7 offset:{j*KB}")
        st['n'] = step + 1
    def filler(m):
        if m == max(nf + 1, 25): xchg(0)
        if m == max(nf + 4, 28): xchg(1)
    g.run(xq, n0=0, look=16, filler=filler, misc=[ldres] if RES_LATE[L] else [])
    for step in range(st.get('n', 0), 2): xchg(step)
    if RES_LATE[L]:
        k.wait(vm=rs['t'])
        for x in res_unpack(vSUM, vRES): k(x)
    k.wait(lg=st['t'])
    for i in range(16): k(f"v_add_f32 v{vSUM+i}, v{vSUM+i}, v{vACC+16+i}")
    for j in range(8):
        k(f"v_add_f32 v{vACC+2*j}, v{vACC+2*j}, v{vSUM+2*j}\nv_add_f32 v{vACC+2*j+1}, v{vACC+2*j+1}, v{vSUM+2*j+1}")
        k(f"v_cvt_pk_bf16_f32 v{vPK+j}, v{vACC+2*j}, v{vACC+2*j+1}")
    ts = store_x(k, vACC, vPK, L, 1, ring)
    mark(k, 'end')
    return ts

PASSES = ((0, 3), (3, 2), (5, 2))
PBASE = (0, 100, 166)
def ph_up(k, L, ring, b0, tprev):
    vX, vACC, vST, vEXT, vRS = 16, 144, 224, 8, 6
    sH0, sH1 = sD, sE
    rb_128(k)
    k(f"s_and_b32 s{sA}, s{sC}, 15")
    k(f"s_lshl_b32 s{sX}, s{sRB}, 15\ns_add_u32 s{sX}, s{sX}, {XF}")
    set_lds_bases(k)
    if UP16: return ph_up16(k, L, ring, b0, tprev)
    ops = []
    for (t0, nt), pb in zip(PASSES, PBASE):
        for ks in range(33):
            for t in range(t0, t0+nt):
                lo_ = b0 + pb + (ks >> 1)*2*nt
                b = lo_ + (2*(t - t0) + (ks & 1) if ks < 32 else t - t0)
                ops.append(dict(b=b, bmin=lo_, bmax=b, xi=(ks if ks < 32 else None), x=(vr(vX+4*ks) if ks < 32 else vr(vEXT)),
                                acc=vr(vACC+16*t, 16), swap=False, first=(ks == 0)))
    g = Gemm(k, ring, ops, UP_SYNCS, stop_issue=UP_STOP)
    g.start()
    mark(k, 'f_bar')
    ring.issue_n(PRE)
    publish_local(k, tprev)
    mark(k, 'f_pub')
    ring.issue_n(PRE2)
    res = {}
    se = stats_emitters(k, vST, res)
    k(f"s_mul_i32 s{sH0}, s{sRB}, 112\ns_mul_i32 s{sT2}, s{sA}, 7\ns_add_u32 s{sH0}, s{sH0}, s{sT2}\ns_lshl_b32 s{sH0}, s{sH0}, 10\ns_add_u32 s{sH0}, s{sH0}, {HF}")
    k(f"s_add_u32 s{sH1}, s{sH0}, 4096")
    k(f"s_lshl_b32 s{sF}, s{sRB}, 7\ns_add_u32 s{sF}, s{sF}, {FLOC(L,1)}")
    poll16(k)
    mark(k, 'f_poll')
    aps = stats_poll(k, FLOC(L,6) - FLOC(L,1))
    xq = XLoader(k, 32, lambda i: vr(vX+4*i), lin_src(k))
    fin = fin_stats(vST, vEXT, vRS) + [f"v_mul_f32 v{vRS}, v{vRS}, v{vRS}"]
    def epi(t):
        a = vACC + 16*t
        o = []
        for j in range(4):
            o += [f"v_mul_f32 v{a+2*j}, v{a+2*j}, v{vRS}", f"v_mul_f32 v{a+2*j+1}, v{a+2*j+1}, v{vRS}",
                  f"v_mul_f32 v{a+2*j}, v{a+2*j}, v{a+8+2*j}", f"v_mul_f32 v{a+2*j+1}, v{a+2*j+1}, v{a+9+2*j}",
                  f"v_cvt_pk_bf16_f32 v{a+8+j}, v{a+2*j}, v{a+2*j+1}"]
        o.append(f"buffer_store_dwordx4 {vr(a+8)}, v{vL16}, {srd(sWS)}, s{sH0 + (t >> 2)} offen offset:{(t & 3)*KB}")
        return o
    st = dict(i=0, t=None); q = []
    def put(x):
        if x.startswith('buffer'): st['t'] = k.vm(x)
        else: k(x)
    dn = Down(k, L)
    def filler(m):
        if aps and m == 12: aps.issue()
        if aps and m == 30: aps.check()
        if 70 <= m < 96:
            if st['i'] == 0: k.wait(vm=res['t'])
            for _ in range(2):
                if st['i'] < len(fin): k(fin[st['i']]); st['i'] += 1
        if m == 102: q.extend(sum((epi(t) for t in range(0, 3)), []))
        if m == 168: q.extend(sum((epi(t) for t in range(3, 5)), []))
        if UP4 and m == 201: q.extend(epi(5))
        for _ in range(UP_EPI):
            if q: put(q.pop(0))
        if m == 146: code_touch(k, 7)
        if m in UP_PUB:
            assert not q
            if m == UP_PUB[0]:
                k(f"s_lshl_b32 s{sF}, s{sRB}, 4\ns_add_u32 s{sF}, s{sF}, s{sA}\ns_lshl_b32 s{sF}, s{sF}, 3\ns_add_u32 s{sF}, s{sF}, {FLOC(L,9)}")
            publish_local(k, st['t'])
            k(f"s_add_u32 s{sF}, s{sF}, {8*KB}")
            if m == UP_PUB[1]: dn.xq.hold = 20
        if UP_PUB[0] < m and dn.setup:
            for _ in range(3):
                if dn.setup: k(dn.setup.pop(0))
        if m in DN_POLL: dn.ap.issue()
        if m in DN_CHK:
            dn.ap.check()
            k(f"s_add_u32 s{dn.sFl}, s{dn.sFl}, {8*KB}")
        if m > DN_CHK[0] and m % 2 and not (ring.can_issue() and m < UP_STOP): dn.xq.issue_n(1)
    if L == 0: ring.limit = 296 + QW_UP
    g.run(xq, look=UP_LOOK, filler=filler, misc=se, misc_from=32, skip=UP_SKIP[L])
    assert st['i'] == len(fin) and not dn.setup and ring.issued == min(ring.total, 296 + QW_UP)
    dn.xq.hold = 36 if len(DN_CHK) > 1 else 24
    for t in range(6 if UP4 else 5, 7):
        for i, x in enumerate(epi(t)):
            put(x)
            if i in (4, 14): dn.xq.issue_n(1)
    mark(k, 'end')
    dn.tB = st['t']
    return dn

def ph_up16(k, L, ring, b0, tprev):
    vX, vACC, vST, vEXT, vRS, vXM = 16, 144, 224, 8, 6, 12
    sH0, sH1 = sD, sE
    D, NB = 5, 8
    k(f"v_bfe_u32 v8, v0, 4, 2\nv_lshlrev_b32 v8, 9, v8\nv_and_b32 v9, 15, v0\nv_lshl_add_u32 v{vXM}, v9, 4, v8")
    k("v_and_b32 v9, 3, v0\nv_bfe_u32 v10, v0, 2, 1\nv_lshl_or_b32 v9, v10, 3, v9\nv_bfe_u32 v10, v0, 3, 1\nv_lshl_or_b32 v9, v10, 2, v9")
    k(f"v_lshl_add_u32 v{vB}, v9, 4, v8\nv_add_u32 v{vB+1}, 0x10000, v{vB}\nv_add_u32 v{vB+2}, 0x20000, v{vB}")
    units = []
    for (t0, nt), pb in zip(PASSES, PBASE):
        for K in range(16):
            for t in range(t0, t0+nt):
                for ch in range(2):
                    lo_ = b0 + pb + K*2*nt
                    units.append(dict(b=lo_ + 2*(t - t0), bmin=lo_, bmax=lo_ + 2*(t - t0) + 1, K=K, t=t, ch=ch))
        for t in range(t0, t0+nt):
            b = b0 + pb + 32*nt + t - t0
            units.append(dict(b=b, bmin=b0 + pb + 32*nt, bmax=b, K=16, t=t, e0=b0 + pb + 32*nt))
    M = len(units); syncs = sorted(UP_SYNCS)
    tl = {}; S = dict(nread=0)
    def rd():
        m = S['nread']; o = units[m]; w = aWB + 4*(m % NB)
        assert o['bmax'] < ring.visible, (m, o, ring.visible)
        a = ring.addr(o['b'])
        if o['K'] < 16:
            assert ring.addr(o['b'] + 1) == a + KB
            a += o['ch'] * 256
            tl[m] = k.lg(f"ds_read_b128 {ar(w)}, v{vB + (a >> 16)} offset:{a & 0xffff}")
        else:
            a0 = ring.addr(o['e0'])
            if o['b'] == o['e0']:
                if a0 != S['a0']: k(f"v_add_u32 v13, {a0 - S['a0']}, v13")
                S['a0'] = a0
            assert a >= a0
            k.lg(f"ds_read_b64 {ar(w,2)}, v13 offset:{a - a0}")
            tl[m] = k.lg(f"ds_read_b64 {ar(w+2,2)}, v13 offset:{a - a0 + 256}")
        S['nread'] += 1
    def need_until(m):
        nxt = [x for x in syncs if x > m]
        last = min((nxt[0] if nxt else M) - 1 + D, M - 1)
        return max(o['bmax'] for o in units[:last+1]) + 1
    ring.sync(units[0]['bmin'], need_until(0))
    for _ in range(D): rd()
    mark(k, 'f_bar')
    ring.issue_n(PRE)
    publish_local(k, tprev)
    mark(k, 'f_pub')
    res = {}
    se = stats_emitters(k, vST, res)
    k(f"s_mul_i32 s{sH0}, s{sRB}, 112\ns_mul_i32 s{sT2}, s{sA}, 7\ns_add_u32 s{sH0}, s{sH0}, s{sT2}\ns_lshl_b32 s{sH0}, s{sH0}, 10\ns_add_u32 s{sH0}, s{sH0}, {HF}")
    if DN16:
        k(f"s_bitcmp0_b32 s{sA}, 0\ns_cselect_b32 s{sH1}, -1, 1\ns_cselect_b32 s{sT2}, 7, -1\ns_lshl_b32 s{sH1}, s{sH1}, 10\ns_lshl_b32 s{sT2}, s{sT2}, 10\ns_add_u32 s{sH0}, s{sH0}, s{sT2}")
    else: k(f"s_add_u32 s{sH1}, s{sH0}, 4096")
    k(f"s_lshl_b32 s{sF}, s{sRB}, 7\ns_add_u32 s{sF}, s{sF}, {FLOC(L,1)}")
    poll16(k)
    mark(k, 'f_poll')
    aps = stats_poll(k, FLOC(L,6) - FLOC(L,1))
    def xsrc(i):
        if i and (i & 3) == 0: k(f"s_add_u32 s{sX}, s{sX}, 4096")
        return sX, ((i >> 1) & 1) * 2048 + (i & 1) * 256
    xq = XLoader(k, 32, lambda i: vr(vX+4*i), xsrc, va=vXM)
    fin = fin_stats(vST, vEXT, vRS) + [f"v_mul_f32 v{vRS}, v{vRS}, v{vRS}", f"v_permlane16_swap_b32 v{vEXT}, v{vEXT+2}", f"v_permlane16_swap_b32 v{vEXT+1}, v{vEXT+3}"]
    fin2 = [f"v_mov_b32 v{vRS+1}, v{vRS}", f"v_permlane16_swap_b32 v{vRS}, v{vRS+1}"]
    def epi(t):
        a = vACC + 16*t
        o = []
        for th in range(2):
            g_ = a + 4*th; u_ = a + 8 + 4*th
            o += [f"v_mul_f32 v{g_+j}, v{g_+j}, v{vRS+th}" for j in range(4)] + [f"v_mul_f32 v{g_+j}, v{g_+j}, v{u_+j}" for j in range(4)]
            o += [f"v_cvt_pk_bf16_f32 v{a+8+2*th}, v{g_}, v{g_+1}", f"v_cvt_pk_bf16_f32 v{a+9+2*th}, v{g_+2}, v{g_+3}"]
        if DN16: o.append(f"s_add_u32 s{sH0}, s{sH0}, s{sH1}")
        o += [f"v_permlane16_swap_b32 v{a+8}, v{a+10}", f"v_permlane16_swap_b32 v{a+9}, v{a+11}"]
        if DN16: o.append(f"buffer_store_dwordx4 {vr(a+8)}, v{vL16}, {srd(sWS)}, s{sH0} offen")
        else: o.append(f"buffer_store_dwordx4 {vr(a+8)}, v{vL16}, {srd(sWS)}, s{sH0 + (t >> 2)} offen offset:{(t & 3)*KB}")
        return o
    st = dict(t=None)
    def put(x):
        if x.startswith('buffer'): st['t'] = k.vm(x)
        else: k(x)
    dn = Down(k, L)
    if L == 0: ring.limit = 296 + QW_UP
    xq.issue_n(6)
    mem = []; alu = []; se = list(se); cur = 0; second = []
    def waits(m):
        nonlocal cur
        xs = [2*p['K'] + 1 for p in units[m:m+2] if p['K'] < 16]
        xt = None
        if xs:
            cur = max(cur, max(xs))
            while xq.n <= max(xs): xq.issue_n(1)
            xt = xq.t[max(xs)]
        n0 = len(k.L)
        k.wait(vm=xt, lg=tl[min(m + 1, M - 1)])
        return len(k.L) - n0
    big = lambda x: x.startswith(('buffer', 'v_permlane', 'v_rsq'))
    def slot(first):
        if mem and (len(mem) > 1 or first):
            last = len(mem) == 1
            mem.pop(0)()
            return last and U16_BIG
        if alu and (first or not (big(alu[0]) if U16_BIG else alu[0].startswith('buffer'))):
            x = alu.pop(0); put(x)
            return big(x) and U16_BIG
        return False
    waits(0)
    for m, o in enumerate(units):
        if m in syncs and m > 0:
            while mem: mem.pop(0)()
            while second: second.pop()()
            ring.sync(o['bmin'], need_until(m))
        w = aWB + 4*(m % NB); a = vACC + 16*o['t']
        if o['K'] < 16:
            mm = [f"v_mfma_f32_16x16x32_bf16 {vr(a+8*o['ch']+4*th)}, {ar(w)}, {vr(vX+8*o['K']+4*th)}, {'0' if o['K'] == 0 else vr(a+8*o['ch']+4*th)}" for th in range(2)]
        else:
            mm = [f"v_mfma_f32_16x16x16_bf16 {vr(a+8*ch+4*th)}, {ar(w+2*ch,2)}, {vr(vEXT+2*th,2)}, {vr(a+8*ch+4*th)}" for ch in range(2) for th in range(2)]
        k(mm[0])
        if m == 0: mark(k, 'm0')
        if m in GEMM_MARKS.get(G.ph, ()): mark(k, f'm{m}')
        if S['nread'] < M: rd()
        else: slot(True)
        if not (m % 2 and m + 1 < M and waits(m + 1)): slot(False)
        for x in mm[1:-1]:
            k(x); slot(True) or slot(False)
        k(mm[-1])
        if aps and m == 12: aps.issue()
        if aps and m == 30: aps.check()
        if m == 34:
            a0 = S['a0'] = ring.addr(b0 + 96)
            alu += f"v_and_b32 v13, 0xf0, v{vB}\nv_bfe_u32 v7, v0, 5, 1\nv_lshl_add_u32 v13, v7, 9, v13\nv_bfe_u32 v7, v0, 4, 1\nv_lshl_add_u32 v13, v7, 3, v13\nv_add_u32 v13, {a0}, v13".split('\n')
            alu += f"s_lshl_b32 s{sF}, s{sRB}, 4\ns_add_u32 s{sF}, s{sF}, s{sA}\ns_lshl_b32 s{sF}, s{sF}, 3\ns_add_u32 s{sF}, s{sF}, {FLOC(L,9)}".split('\n')
            alu += TAGMOV + [x for x in dn.setup if x.startswith('s_')]
            dn.setup = [x for x in dn.setup if not x.startswith('s_')]
            if CODE_TOUCH:
                pc = k.newlabel('pc')
                alu += [f"s_getpc_b64 s[{sPC}:{sPC+1}]\n{pc}:", f"s_min_u32 s{sT3}, s{sCT}, L_end-{pc}-1024",
                        f"s_add_u32 s{sPC}, s{sPC}, s{sT3}\ns_addc_u32 s{sPC+1}, s{sPC+1}, 0"]
        if m == U16_FIN:
            assert not alu
            k.wait(vm=res['t']); alu += fin + fin2
        if m == 95: assert not alu
        if m == 100:
            assert xq.n == xq.total
            if CODE_TOUCH: k.vm(f"global_load_dword v255, v{vL16}, s[{sPC}:{sPC+1}]")
            alu += sum((epi(t) for t in range(0, 3)), []) + dn.setup; dn.setup = []
        if m == 167: alu += sum((epi(t) for t in range(3, 5)), [])
        if m in U16_PUB:
            assert not alu, (m, len(alu))
            publish_local(k, st['t'], movs=False)
            alu.append(f"s_add_u32 s{sF}, s{sF}, {8*KB}")
            if m == U16_PUB[1]: dn.xq.hold = 20
        if m in U16_POLL: dn.ap.issue()
        if m == U16_CHK:
            dn.ap.check()
            alu += [f"s_add_u32 s{dn.sFl}, s{dn.sFl}, {8*KB}"] + TAGMOV
        if m % 2 == 0 and not mem:
            rok = second or (m < UP_STOP and (ring.can8() or (ring.can_issue() and not ring.pair)))
            if not second and xq.n < xq.total and ring.issued >= b0 + U16_HOLD: rok = False
            mok = se and m >= 32
            if xq.n < xq.total and (xq.n - cur < UP_LOOK or not (rok or mok)): mem.append(lambda: xq.issue_n(1))
            elif mok: mem.append(se.pop(0))
            elif second: mem.append(second.pop())
            elif rok and ring.can8():
                p1, p2 = ring.parts8(); mem += p1; second += p2
            elif rok: mem += ring.parts()
            elif m > U16_CHK and dn.xq.n < dn.xq.hold: mem.append(lambda: dn.xq.issue_n(1))
        slot(True) or slot(False)
    while mem: mem.pop(0)()
    while second: second.pop()()
    ring.end8()
    assert not alu and not se and ring.issued == min(ring.total, 296 + QW_UP)
    dn.xq.hold = 24
    for t in range(5, 7):
        for i, x in enumerate(epi(t)):
            put(x)
            if i in (4, 14): dn.xq.issue_n(1)
    mark(k, 'end')
    dn.tB = st['t']
    return dn

class Down:
    NX = 36
    def __init__(self, k, L):
        self.k = k; self.L = L
        sXa, sXb, sFl = sB, sX2, sCc
        self.sFl = sFl
        self.setup = (f"s_lshr_b32 s{sT0}, s{sDST}, 15\ns_mul_i32 s{sT1}, s{sW}, {28*KB}\ns_add_u32 s{sT1}, s{sT1}, {HF}\n"
                      f"s_mul_i32 s{sXa}, s{sT0}, {112*KB}\ns_add_u32 s{sXa}, s{sXa}, s{sT1}\n"
                      f"s_xor_b32 s{sT2}, s{sT0}, 1\ns_mul_i32 s{sXb}, s{sT2}, {112*KB}\ns_add_u32 s{sXb}, s{sXb}, s{sT1}\n"
                      f"v_lshlrev_b32 v12, 3, v0\nv_and_b32 v12, 0x98, v12\n"
                      f"s_and_b32 s{sFl}, s{sT0}, 0xfe\ns_lshl_b32 s{sFl}, s{sFl}, 7\ns_lshl_b32 s{sT1}, s{sW}, 5\ns_add_u32 s{sFl}, s{sFl}, s{sT1}\n"
                      f"s_add_u32 s{sFl}, s{sFl}, {FLOC(L,9)}").split('\n')
        self.order = order = [7*c + t for t0, nt in (((0, 3), (3, 2), (5, 1), (6, 1)) if UP4 else PASSES) for c in range(4) for t in range(t0, t0+nt)]
        cur = {sXa: 0, sXb: 0}
        if DN16:
            assert UP16
            self.setup = [x for x in self.setup if x.startswith('s_')]
            self.order = order = [2, 3, 4, 9, 10, 11, 1, 5, 8, 12, 0, 6, 7, 13]
            def src16(i):
                s_ = sXa if (i & 2) == 0 else sXb
                r = 2 * order[i >> 2]
                if not 0 <= r - cur[s_] < 4:
                    d = (r - cur[s_]) * KB
                    k(f"s_add_u32 s{s_}, s{s_}, {d}" if d > 0 else f"s_sub_u32 s{s_}, s{s_}, {-d}")
                    cur[s_] = r
                return s_, (r - cur[s_]) * KB + (i & 1) * 256
            self.xr = lambda i: vr(144 + 4*(i % 36) if (i % 36) < 20 else 80 + 4*((i % 36) - 20))
            self.xq = XLoader(k, 56, self.xr, src16, va=12)
            self.xq.hold = 12
            self.ap = APoll(k, ["v_lshlrev_b32 v14, 3, v0", "v_and_b32 v14, 0x98, v14",
                                f"buffer_load_dwordx2 v[14:15], v14, {srd(sWS)}, s{sFl} offen sc1"], f"v_cmp_ne_u64 vcc, s[{sTAG}:{sTAG+1}], v[14:15]")
            return
        def src(i):
            s_ = sXa if (i & 1) == 0 else sXb
            r = order[i >> 1]
            if not 0 <= r - cur[s_] < 4:
                d = (r - cur[s_]) * KB
                k(f"s_add_u32 s{s_}, s{s_}, {d}" if d > 0 else f"s_sub_u32 s{s_}, s{s_}, {-d}")
                cur[s_] = r
            return s_, (r - cur[s_]) * KB
        self.xr = lambda i: vr(144 + 4*(i % 36) if (i % 36) < 20 else 80 + 4*((i % 36) - 20))
        self.xq = XLoader(k, 56, self.xr, src)
        self.xq.hold = 12
        self.ap = apoll1(k, 12, 14, sFl)

def load_res16(k, v):
    k(f"v_and_b32 v13, 0x2f0, v{vL16}\nv_bfe_u32 v5, v0, 4, 1\nv_lshl_add_u32 v13, v5, 3, v13\ns_add_u32 s{sT1}, s{sDST}, {XF}")
    for ch in range(2):
        for th in range(2):
            t = k.vm(f"buffer_load_dwordx2 {vr(v+4*ch+2*th,2)}, v13, {srd(sWS)}, s{sT1} offen offset:{ch*KB + th*256} sc1")
    return t
def res_unpack(dst, v):
    o = []
    for j in range(8): o += [f"v_lshlrev_b32 v{dst+2*j}, 16, v{v+j}", f"v_and_b32 v{dst+2*j+1}, 0xffff0000, v{v+j}"]
    return o

def ph_down(k, L, ring, dn):
    vACC, vRES, vPK, vSUM = 16, 240, 240, 224
    final = L == 1
    xq = dn.xq; order = dn.order; NX = dn.NX
    if len(DN_CHK) > 1: xq.hold = 40
    SC = 108 * KB
    side = []
    for a in range(1, 4):
        side += f"s_xor_b32 s{sT0}, s{sW}, {a}\ns_mul_i32 s{sT0}, s{sT0}, {12*KB}\ns_add_u32 s{sT0}, s{sT0}, {SC + (a-1)*4*KB}\nv_add_u32 v{5+a}, s{sT0}, v{vL16}".split('\n')
    side += f"s_mul_i32 s{sT0}, s{sW}, {12*KB}\ns_add_u32 s{sT0}, s{sT0}, {SC}\nv_add_u32 v9, s{sT0}, v{vL16}".split('\n')
    if final and OUT_T:
        side += (f"s_and_b32 s{sT0}, s{sW}, 1\ns_mul_i32 s{sT0}, s{sT0}, {32*144}\ns_lshr_b32 s{sT2}, s{sW}, 1\ns_lshl_b32 s{sT2}, s{sT2}, 6\ns_add_u32 s{sT0}, s{sT0}, s{sT2}\n"
                 f"v_and_b32 v10, 31, v0\nv_mul_u32_u24 v10, 144, v10\nv_bfe_u32 v11, v0, 5, 1\nv_lshl_add_u32 v10, v11, 4, v10\nv_add_u32 v10, s{sT0}, v10\n"
                 f"s_mul_i32 s{sT0}, s{sW}, {16*144}\nv_bfe_u32 v13, v0, 3, 3\nv_mul_u32_u24 v11, 144, v13\nv_and_b32 v5, 7, v0\nv_lshl_add_u32 v11, v5, 4, v11\nv_add_u32 v11, s{sT0}, v11\n"
                 f"v_lshlrev_b32 v13, 10, v13\nv_lshl_add_u32 v13, v5, 4, v13\n"
                 f"s_and_b32 s{sT0}, s{sDST}, 0xffff0000\ns_lshl_b32 s{sT2}, s{sW}, 14\ns_add_u32 s{sT0}, s{sT0}, s{sT2}\n"
                 f"s_and_b32 s{sT2}, s{sC}, 7\ns_lshl_b32 s{sT2}, s{sT2}, 7\ns_add_u32 s{sT0}, s{sT0}, s{sT2}\ns_add_u32 s{sT2}, s{sT0}, 8192").split('\n')
    R, R0 = DN_R, DN_R0
    seq = []
    for s in range(28 - R):
        seq += [(s, a) for a in (3, 2, 1)]
        if s < 28 - R0: seq.append((s, 0))
    seq += [(s, a) for a in (3, 2, 1) for s in range(28 - R, 28)] + [(s, 0) for s in range(28 - R0, 28)]
    fx = (lambda s_, a_: 4*(s_ >> 1) + 2*(a_ & 1)) if DN16 else (lambda s_, a_: 2*s_ + (a_ & 1))
    lo = [min(fx(s_, a_) for s_, a_ in seq[m:]) for m in range(112)]
    wr = []; rt = None; tail = None; res = None; wb = False; adds = []
    for m, (s, a) in enumerate(seq):
        r = order[s >> 1] if DN16 else order[s]
        if len(DN_CHK) == 1 and m == DN_CHK2:
            dn.ap.check()
            k(f"s_add_u32 s{dn.sFl}, s{dn.sFl}, {8*KB}")
            xq.hold = 40
        if m == int(4*DN_PUBB): publish_local(k, dn.tB)
        if UP4 and m == DN_POLL3: dn.ap.issue()
        if UP4 and m == DN_CHK3:
            dn.ap.check()
            k(f"s_add_u32 s{dn.sFl}, s{dn.sFl}, {8*KB}")
            xq.hold = 48
        if m == 4*DN_BAR:
            ring.limit = None
            ring.sync(296, 0)
        if m == 4*DN_POLLB:
            apb = dn.ap
            apb.issue()
            rt = load_res16(k, vRES) if DN16 else load_res(k, vRES)
        if m == 4*DN_CHKB:
            apb.check()
            xq.hold = 56
            xq.issue_n(min(3, lo[m] + NX - xq.n))
        xi = fx(s, a) + (1 if DN16 else 0)
        while xq.n <= xi:
            assert xq.n < xq.hold and xq.n < lo[m] + NX
            xq.issue_n(1)
        k.wait(vm=xq.t[xi])
        if DN16:
            ch = s & 1
            for th in range(2):
                acc = vr(vACC + 16*a + 8*ch + 4*th)
                k(f"v_mfma_f32_16x16x32_bf16 {acc}, {ar(aWD + 16*r + 8*(a >> 1) + 4*ch)}, {dn.xr(xi - 1 + th)}, {'0' if s < 2 else acc}")
                if th == 0:
                    for _ in range(2):
                        if side and res: k(side.pop(0))
                        elif adds and adds[0][0] <= m:
                            _, t_, x = adds.pop(0); k.wait(lg=t_); k(x)
        else:
            acc = vr(vACC + 16*a, 16)
            k(f"v_mfma_f32_32x32x16_bf16 {acc}, {ar(aWD + 8*r + 4*(a >> 1))}, {dn.xr(xi)}, {'0' if s == 0 else acc}")
        if m == 0: mark(k, 'm0')
        if m in GEMM_MARKS.get(G.ph, ()): mark(k, f'm{m}')
        if (m % 2 == 0 or (xq.hold == 56 and m % DN_CR == 0)) and xq.n < min(lo[m] + NX, xq.total, xq.hold): xq.issue_n(1)
        elif m % 2 == 0 and xq.n == xq.total and ring.can_issue(): ring.issue()
        elif m > 4*DN_CHKB + 8:
            if res is None:
                k.wait(vm=rt); res = True
                side += res_unpack(vSUM, vRES)
            for _ in range(2 if DN16 else 4):
                if side: k(side.pop(0))
        if final and WB_MASK is not None and xq.n == xq.total and (WB_EARLY or k.vm_done == k.vm_issued) and not wb:
            wb = True; l_ = k.newlabel('wb')
            k(f"s_lshl_b32 s{sT1}, s{sC}, 2\ns_add_u32 s{sT1}, s{sT1}, s{sW}\ns_and_b32 s{sT1}, s{sT1}, {WB_MASK}")
            if WB_EARLY:
                k(f"s_cbranch_scc0 {l_}")
                k.vm(f"buffer_load_dword v15, off, {srd(sWS)}, s{dn.sFl} sc1")
                k.label(l_ + 'r')
                G.far += [f"{l_}:", "buffer_wbl2 sc1", f"s_branch {l_}r"]
            else:
                k(f"s_cbranch_scc1 {l_}")
                k("buffer_wbl2 sc1")
                k.label(l_)
            print('wbl2 at', m, file=sys.stderr)
        if wr and wr[0][0] <= m:
            assert not side
            for _ in range(min(DN_WR, len(wr))):
                if wr[0][0] <= m: k.lg(wr.pop(0)[1])
            if wr and DN_WR == 1: wr[0] = (max(wr[0][0], m + DN_WGAP), wr[0][1])
            if not wr and a == 0: tail = min(m + 2, 111)
        if s == 27 and a:
            wr += [(m + 2, f"ds_write_b128 v{5+a}, {vr(vACC+16*a+4*j)} offset:{j*KB}") for j in range(4)]
        def fetch(bs):
            k("s_barrier")
            for b in bs:
                for j in range(4): t_ = k.lg(f"ds_read_b128 {vr(vACC+16+16*b+4*j)}, v9 offset:{b*4*KB + j*KB}")
                adds.extend((m + 2, t_, f"v_add_f32 v{vSUM+i}, v{vSUM+i}, v{vACC+16+16*b+i}") for i in range(16))
        if DN_X2 and m == 112 - R0:
            assert all('ds_write_b128 v6,' in x[1] for x in wr)
            k.wait_all(vm=False)
            fetch((2, 1))
        elif tail == m:
            k.wait_all(vm=False)
            fetch((0,) if DN_X2 else (2, 1, 0))
        else:
            for _ in range(2 if DN16 else DN_ADDS):
                if adds and adds[0][0] <= m:
                    _, t_, x = adds.pop(0); k.wait(lg=t_); k(x)
    assert not side and not wr and tail is not None and tail < 112
    for _, t_, x in adds:
        k.wait(lg=t_); k(x)
    if final and not OUT_T: rowmajor_addr(k, 6, sT0)
    for j in range(8):
        k(f"v_add_f32 v{vACC+2*j}, v{vACC+2*j}, v{vSUM+2*j}\nv_add_f32 v{vACC+2*j+1}, v{vACC+2*j+1}, v{vSUM+2*j+1}")
        k(f"v_cvt_pk_bf16_f32 v{vPK+j}, v{vACC+2*j}, v{vACC+2*j+1}")
        if DN16 and j in (3, 7): k(f"v_permlane16_swap_b32 v{vPK+j-3}, v{vPK+j-1}\nv_permlane16_swap_b32 v{vPK+j-2}, v{vPK+j}")
        if final and OUT_T and j in (3, 7): k.lg(f"ds_write_b128 v10, {vr(vPK+j-3)} offset:{(j >> 2)*32}")
    if final and OUT_T:
        k.wait_all(vm=False)
        k("s_barrier")
        t0 = k.lg(f"ds_read_b128 {vr(vPK)}, v11")
        t1 = k.lg(f"ds_read_b128 {vr(vPK+4)}, v11 offset:{8*144}")
        k.wait(lg=t0)
        k.vm(f"buffer_store_dwordx4 {vr(vPK)}, v13, {srd(sAUX)}, s{sT0} offen{OUT_SC}")
        k.wait(lg=t1)
        k.vm(f"buffer_store_dwordx4 {vr(vPK+4)}, v13, {srd(sAUX)}, s{sT2} offen{OUT_SC}")
    elif final:
        k.vm(f"buffer_store_dwordx4 {vr(vPK)}, v6, {srd(sAUX)}, s{sT0} offen{OUT_SC}")
        k.vm(f"buffer_store_dwordx4 {vr(vPK+4)}, v6, {srd(sAUX)}, s{sT0} offen offset:32{OUT_SC}")
    else:
        G.tx = store_x(k, vACC, vPK, L, 8, ring, m16=DN16)
    mark(k, 'end')

def k_main(name):
    k = Asm()
    G.nst = 0
    k(f".globl {name}\n.p2align 8\n.type {name},@function")
    k.label(name)
    if STAMP or PADTO or GATE: k("s_memrealtime s[42:43]")
    mark(k, 'start')
    k("s_cmp_ge_u32 s2, 256")
    k("s_cbranch_scc1 L_abort")
    k(f"s_load_dwordx2 s[{sWS}:{sWS+1}], s[0:1], 72")
    k(f"s_load_dwordx2 s[{sAUX}:{sAUX+1}], s[0:1], 56")
    k("s_load_dwordx2 s[60:61], s[0:1], 0\ns_load_dwordx4 s[64:67], s[0:1], 8\ns_load_dwordx4 s[68:71], s[0:1], 32\ns_load_dwordx2 s[72:73], s[0:1], 48")
    if CT0:
        k("s_getpc_b64 s[88:89]")
        k(f"s_lshr_b32 s90, s2, 3\ns_and_b32 s90, s90, {CT0 - 1}\ns_lshl_b32 s90, s90, 12\nv_lshl_add_u32 v3, v0, 4, s90")
        k.vm("global_load_dword v247, v3, s[88:89]")
    k("v_lshrrev_b32 v2, 6, v0")
    k(f"v_and_b32 v{vL16}, 63, v0")
    k(f"v_readfirstlane_b32 s{sW}, v2")
    k(f"v_lshlrev_b32 v{vL16}, 4, v{vL16}")
    k(f"s_mov_b32 s{sWG}, s2\ns_and_b32 s{sG}, s2, 7\ns_lshr_b32 s{sC}, s2, 3\ns_lshl_b32 s{sW1K}, s{sW}, 10")
    k(f"s_lshr_b32 s{sC4}, s{sC}, 4\ns_lshr_b32 s{sC3}, s{sC}, 3")
    k(f"s_lshl_b32 s{sU}, s{sG}, 5\ns_add_u32 s{sU}, s{sU}, s{sC}")
    k(f"s_lshl_b32 s{sW4K}, s{sW}, 12\ns_lshl_b32 s{sW2K}, s{sW}, 11")
    k(f"s_getreg_b32 s{sXCC}, hwreg(HW_REG_XCC_ID, 0, 4)")
    k(f"v_add_u32 v{vSRC}, s{sW1K}, v{vL16}")
    k(f"s_mov_b32 s{sMSK}, 0xffff\ns_mov_b32 s{sMSK+1}, 0xffff\ns_mov_b32 s{sMODE}, 0")
    k(f"s_and_b32 s{sT0}, s{sC}, 7\ns_mul_i32 s{sSEG}, s{sT0}, {WO_STR}\ns_add_u32 s{sSEG}, s{sSEG}, {WO}")
    k(f"s_lshl_b32 s{sT1}, s{sG}, 2\ns_add_u32 s{sT1}, s{sT1}, s{sC3}\ns_lshl_b32 s{sT1}, s{sT1}, 1\ns_and_b32 s{sT2}, s{sW}, 1\ns_add_u32 s{sT1}, s{sT1}, s{sT2}")
    k(f"s_lshl_b32 s{sT1}, s{sT1}, 5\ns_lshl_b32 s{sT0}, s{sT0}, 2\ns_add_u32 s{sT1}, s{sT1}, s{sT0}\ns_and_b32 s{sT2}, s{sW}, 2\ns_add_u32 s{sT1}, s{sT1}, s{sT2}\ns_lshl_b32 s{sDST}, s{sT1}, 10")
    k(f"s_lshr_b32 s{sSD}, s{sDST}, 12\ns_lshl_b32 s{sSD}, s{sSD}, 9\ns_lshl_b32 s{sT2}, s{sT2}, 2\ns_add_u32 s{sSD}, s{sSD}, s{sT2}\ns_add_u32 s{sSD}, s{sSD}, {SX}")
    k(f"s_and_b32 s{sT0}, s{sC}, 15\ns_mul_i32 s{sSEG+1}, s{sT0}, {WU_STR}\ns_add_u32 s{sSEG+1}, s{sSEG+1}, {WU}")
    k(f"s_mul_i32 s{sSEG+2}, s{sT0}, {WQ_STR}\ns_add_u32 s{sSEG+2}, s{sSEG+2}, {WQ}")
    def late(k):
        if WSOFF: k(f"s_add_u32 s{sWS}, s{sWS}, {WSOFF}\ns_addc_u32 s{sWS+1}, s{sWS+1}, 0")
        k(f"s_add_u32 s{sT0}, s{sWS}, {EP}\ns_addc_u32 s{sT1}, s{sWS+1}, 0")
        k(f"s_load_dwordx2 s[{sTAG}:{sTAG+1}], s[{sT0}:{sT1}], 0")
        k(f"s_and_b32 s{sWS+1}, s{sWS+1}, 0xffff\ns_mov_b32 s{sWS+2}, {0x10000000 - WSOFF}\ns_mov_b32 s{sWS+3}, 0x20000")
        k(f"s_and_b32 s{sAUX+1}, s{sAUX+1}, 0xffff\ns_mov_b32 s{sAUX+2}, {2*MB}\ns_mov_b32 s{sAUX+3}, 0x20000")
    G.ph = 'qkv0'; tk = (ph_qkv0k if Q0K else ph_qkv0)(k, late)
    for L in range(2):
        ring = Ring(k, [(sSEG, 64), (sSEG+1, 232)] + ([(sSEG+2, 100)] if L == 0 else []))
        G.ph = f'att{L}'; tO = ph_att(k, L, ring, *tk)
        G.ph = f'wo{L}'; tx = ph_wo(k, L, ring, tO)
        G.ph = f'up{L}'; tB = ph_up(k, L, ring, 64, tx)
        G.ph = f'dn{L}'; ph_down(k, L, ring, tB)
        G.ph = 'qkv1'
        if L == 0: tk = ph_qkv(k, 1, ring, 296)
    k(f"s_add_u32 s{sT0}, s{sWG}, s{sW}\ns_cmp_lg_u32 s{sT0}, 0\ns_cbranch_scc1 L_fin")
    k(f"s_mov_b32 s{sF}, {EP}")
    publish_local(k, None, force_global=True)
    k.label("L_fin")
    if PADTO:
        k("s_waitcnt vmcnt(0)")
        if PADMIN:
            k("s_load_dwordx2 s[64:65], s[0:1], 64\ns_waitcnt lgkmcnt(0)")
            k("s_not_b32 s66, s42\nv_mov_b32 v8, s66\nv_mov_b32 v9, 0\ns_mov_b64 exec, 1")
            k("global_atomic_umax v9, v8, s[64:65]\ns_waitcnt vmcnt(0)")
            k.label("L_pad0")
            k(f"s_memrealtime s[98:99]\ns_waitcnt lgkmcnt(0)\ns_sub_u32 s98, s98, s42\ns_cmp_lt_u32 s98, {PADTO - 1500}\ns_cbranch_scc1 L_pad0")
            k("global_load_dword v8, v9, s[64:65] sc1\ns_waitcnt vmcnt(0)\nv_readfirstlane_b32 s66, v8\ns_not_b32 s42, s66\ns_mov_b64 exec, -1")
        k.label("L_pad")
        k(f"s_memrealtime s[98:99]\ns_waitcnt lgkmcnt(0)\ns_sub_u32 s98, s98, s42\ns_cmp_lt_u32 s98, {PADTO}\ns_cbranch_scc1 L_pad")
    if STAMP:
        k("s_waitcnt vmcnt(0)")
        G.ph = ''; mark(k, 'fin')
        k("s_memrealtime s[98:99]\ns_waitcnt lgkmcnt(0)")
        vals = [42, 98, sMODE] + STS[:G.nst]
        for i, s_ in enumerate(vals): k(f"v_mov_b32 v{16+i}, s{s_}")
        k(f"s_lshl_b32 s{sT0}, s{sWG}, 2\ns_add_u32 s{sT0}, s{sT0}, s{sW}\ns_lshl_b32 s{sT0}, s{sT0}, 7\ns_add_u32 s{sT0}, s{sT0}, {TS}")
        k("v_mov_b32 v4, 0\ns_mov_b64 exec, 1")
        for j in range(8): k(f"buffer_store_dwordx4 {vr(16+4*j)}, v4, {srd(sWS)}, s{sT0} offen offset:{16*j}")
        if DBG is not None:
            k(f"s_lshl_b32 s{sT0}, s{sWG}, 2\ns_add_u32 s{sT0}, s{sT0}, s{sW}\ns_cmp_lg_u32 s{sT0}, {DBG}\ns_cbranch_scc1 L_nodbg")
            k("s_load_dwordx2 s[64:65], s[0:1], 64\ns_waitcnt lgkmcnt(0)")
            for i in range(16): k(f"v_sub_u32 v{64+i}, v{20+i}, v19")
            for j in range(4): k(f"global_store_dwordx4 v4, {vr(64+4*j)}, s[64:65] offset:{16*j}")
            k.label("L_nodbg")
    k("s_waitcnt vmcnt(0)")
    k.label("L_abort")
    k("s_endpgm")
    for x in G.near + G.far:
        if x.endswith(':'): k.label(x[:-1])
        else: k(x)
    k.label("L_end")
    return k

def build():
    name = NAME + "_kernel"
    k = k_main(name)
    nn = k.fix()
    print(f"{len(k.L)} lines, {nn} nop states", file=sys.stderr)
    head = f"; stamps: {','.join(G.names)}\n" if (STAMP or not FINAL) else HDR
    return f"""{head}; @launch grid=(256,1,1) block=(256,1,1) lds={160*KB}
.amdgcn_target "amdgcn-amd-amdhsa--gfx950"
.text
{k.text()}
.section .rodata,"a"
.p2align 6
.amdhsa_kernel {name}
  .amdhsa_next_free_vgpr 512
  .amdhsa_next_free_sgpr 102
  .amdhsa_accum_offset 256
  .amdhsa_group_segment_fixed_size 0
  .amdhsa_kernarg_size 80
  .amdhsa_user_sgpr_count 2
  .amdhsa_user_sgpr_kernarg_segment_ptr 1
  .amdhsa_system_sgpr_workgroup_id_x 1
.end_amdhsa_kernel
"""

if __name__ == "__main__":
    for a in sys.argv[2:]:
        kk_, vv_ = a.split('=', 1)
        globals()[kk_] = eval(vv_)
    open(sys.argv[1], "w").write(build())
```

```python
import sys, struct
from asmlib import Asm

NAME = "interleave_layers__mha_block__glu_gated_bilinear__prompt"
KB = 1024; MB = KB * KB
LOG2E = 1.4426950408889634
def f2u(x): return struct.unpack('<I', struct.pack('<f', x))[0]
def srd(b): return f"s[{b}:{b+3}]"
def vr(b, n=4): return f"v[{b}:{b+n-1}]"
def ar(b, n=4): return f"a[{b}:{b+n-1}]"

WQ = 0;                    WQ_STR = 100 * KB
WO = WQ + 16 * WQ_STR;     WO_STR = 64 * KB
WU = WO + 8 * WO_STR;      WU_STR = 232 * KB
WD = WU + 16 * WU_STR
FL = 7 * MB + 640 * KB
assert WD + 16 * 112 * KB <= FL
EP = FL
XID = FL + 1 * KB
def FLOC(L, p): return FL + 4 * KB + (L * 13 + p) * 8 * KB
FKV0 = FL + 4 * KB + 26 * 8 * KB
def FKV(L): return FKV0 + L * 32 * KB
FPK = FKV0 + 64 * KB
assert FPK + 32 * KB <= 8 * MB
XF = 8 * MB
HF = 10 * MB
QF = HF
SX = 17 * MB
SG = SX + 512 * KB
def KVF(L): return 18 * MB + L * 4 * MB
WS_PAGES = 13
TS = 27 * MB
DUMP = 0x7ff00000

STAMP = False
XB_PRE = 0
Q0K_FLAG = 24; Q0K = True; Q0K_Q = (3, 4, 4, 4, 5, 5, 5, 5); Q0K_LEAD = 40; Q0K_EPI = 8
RES_AT = 97
PKR_AT = 5; PK_WAIT = 0; PUB_AT = 17
QF_AT = 1
PREFILL = 128; A1_AT = (0, 2); KVF_AT = (3, 0); P2 = ((0, 2), (3, 6)); Q0_RSH = 1
Q0G = False; Q0_ST0 = 24; Q0_GLD = 5
DIAG_W = False
U16_HOLD = 999; U16_BIG = False
DN16 = False
UP16 = True; U16_FIN = 64; U16_PUB = (156, 206); U16_POLL = (174, 226); U16_CHK = 188; U16_SLOTS = 3
FL1 = False; PP_SLEEP = 1
FINAL = False
HDR = "; Two transformer layers (LN -> MHA -> residual, LN -> bilinear GLU -> residual) in ONE persistent launch:\n;    finite, else the wave recomputes its rows with the true row maximum subtracted (labels fb_*).\n"
NEAR = True; CT0 = 8
GATE = None
WB_EARLY = False
DIAG_NOP = {}
UP4 = False; DN_POLL3 = 18; DN_CHK3 = 30
DN_X2 = True; DN_ADDS = 5; DN_CR = 2
RES_LATE = (False, False); XRES_TOUCH = 0
HEAD = 0
QKV_QE = 6; QKV_EPI = 5
R1_AT = 44; R1_STEP = 6
KV_LOC = True
PADTO = 0; PADMIN = False
OUT_T = True
ATT_NT = 3
PK_WIN2 = False; PK_SP = 0
WARM_AT = 1
RT = False
DN_CHK2 = 4
CT_AT = 92
FORCE_FB = False
WB_MASK = 127; OUT_SC = ' sc1'; DN_WR = 1; DN_WGAP = 2
QW_LATE = False; QW_UP = 32; QW_TOUCH = (72, 100); QW_N1 = 4
PK_Q0 = False; PK_RD = 1; PK_ST = 3; CHK_Q0 = 15
WO_STOP = 32; WO_R0 = 8; WO_N0 = 10; ST_PRE = 5; PPOLL = 0; KV_PF = (0, 0); PK_EARLY = True
FL_TOUCH = False
SPLIT_ST = True
FINE = False
UP_EPI = 2; UP_PUB = (154, 206); DN_POLL = (172, 226); DN_CHK = (186,); UP_LOOK = 8; UP_SYNCS = {0, 48, 80, 112, 144, 176, 200}; UP_SKIP = (0, 0); UP_STOP = 222
DN_PUBB = 4; DN_BAR = 14; DN_POLLB = 7; DN_CHKB = 12; DN_R = 8; DN_R0 = 12
FLAG_TOUCH = False
WSOFF = 0
SLEEP1 = (0, 0); SLEEP2 = 0; SLEEP3 = 0
DBG = None
PRE = 2; PRE2 = 0
PRE_WO = 0; PRE_WO2 = 0
CODE_TOUCH = True
WD_SLOTS = (2, 4, 6)
TOUCH_AT = (99, 96); TOUCH_STEP = (2, 2); TOUCH_LN = 32; TH_STEP = 3; TOUCH_KBS = (64, 96)
RING = 144
PK_T0 = 9; PK_GAP = 6; PK_GAP2 = 9; CHK_GAP = 14
P2_AT = 6
P2_LEAD = 4
TACTS = (103, 102); EARLY_H = 0

sC4, sC3 = 2, 3
sWS, sAUX = 4, 8
sW, sG, sC, sW1K = 12, 13, 14, 15
sT0, sT1, sT2, sT3 = 16, 17, 18, 19
sX, sRS, sRB = 20, 21, 22
sA, sB, sCc, sD, sE = 23, 24, 25, 26, 27
sS0, sS1 = 28, 21
sMSK, sTAG, sMODE, sXCC = 30, 32, 34, 35
sSEG = 36
sX2 = 39
sSPIN, sF = 40, 41
STS = list(range(44, 56, 2)) + [92, 94, 56, 58, 74, 76, 80, 82, 86, 88, 60, 62]
sWG = 101
sW4K = 97
sW2K = 99
sSD = 29
sPC, sCT = 90, 85
sDST = 100
vL16, vSRC, vB = 1, 2, 3
aWD, aWB = 0, 224

class G:
    nst = 0
    names = []
    far = []
    near = []
    ph = ''
SKIP = ''
ATT_MARKS = ()
GEMM_MARKS = {}
def mark(k, nm='x'):
    import re
    nm = G.ph + '_' + nm
    if GATE and GATE[0] == nm:
        k.label("L_gate")
        k(f"s_memrealtime s[98:99]\ns_waitcnt lgkmcnt(0)\ns_sub_u32 s98, s98, s42\ns_cmp_lt_u32 s98, {GATE[1]}\ns_cbranch_scc1 L_gate")
    if SKIP and re.match(SKIP, nm): return
    if '_f_' in nm and not FINE: return
    if STAMP:
        G.names.append(nm)
        k(f"s_mem{'real' if RT else ''}time s[{STS[G.nst]}:{STS[G.nst]+1}]")
        G.nst += 1

class Ring:
    def __init__(self, k, segs):
        self.k = k; self.N = RING
        self.total = sum(n for _, n in segs)
        self.starts = {}
        b = 0
        for s, n in segs:
            assert n % 4 == 0
            self.starts[b] = s; b += n
        self.issued = 0; self.freed = 0; self.visible = 0
        self.limit = None
        self.tick = {}
        self.pair = False
    def can_issue(self):
        if self.limit is not None and self.issued + 4 > self.limit: return False
        return self.issued < self.total and self.issued + 4 <= self.freed + self.N
    def issue(self):
        k = self.k
        assert self.can_issue()
        slot = self.issued % self.N
        k(f"s_add_u32 m0, s{sW1K}, {slot*KB}")
        if self.issued in self.starts: k(f"s_mov_b32 s{sRS}, s{self.starts[self.issued]}")
        else: k(f"s_add_u32 s{sRS}, s{sRS}, 4096")
        self.tick[self.issued // 4] = k.vm(f"buffer_load_dwordx4 v{vSRC}, {srd(sWS)}, s{sRS} offen sc1 lds")
        self.issued += 4
    def parts(self):
        k = self.k
        assert self.can_issue()
        b = self.issued; self.issued += 4
        def ld(): self.tick[b // 4] = k.vm(f"buffer_load_dwordx4 v{vSRC}, {srd(sWS)}, s{sRS} offen sc1 lds")
        return [lambda: k(f"s_add_u32 m0, s{sW1K}, {(b % self.N)*KB}"),
                lambda: k(f"s_mov_b32 s{sRS}, s{self.starts[b]}" if b in self.starts else f"s_add_u32 s{sRS}, s{sRS}, 4096"), ld]
    def can8(self):
        b = self.issued
        if b % 8 or (b + 4) in self.starts or b + 8 > self.total or b + 8 > self.freed + self.N: return False
        return self.limit is None or b + 8 <= self.limit
    def parts8(self):
        k = self.k
        b = self.issued; self.issued += 8
        first = not self.pair; self.pair = True
        def src():
            if b in self.starts: k(f"s_add_u32 s{sRS}, s{self.starts[b]}, s{sW1K}")
            elif first: k(f"s_add_u32 s{sRS}, s{sRS}, 4096\ns_add_u32 s{sRS}, s{sRS}, s{sW1K}")
            else: k(f"s_add_u32 s{sRS}, s{sRS}, 8192")
        def ld1(): self.tick[b // 4] = self.tick[b // 4 + 1] = k.vm(f"buffer_load_dwordx4 v{vSRC}, {srd(sWS)}, s{sRS} offen offset:1024 sc1 lds")
        return [lambda: k(f"s_add_u32 m0, s{sW2K}, {(b % self.N)*KB}"), src,
                lambda: k.vm(f"buffer_load_dwordx4 v{vSRC}, {srd(sWS)}, s{sRS} offen sc1 lds")], [ld1]
    def end8(self):
        if self.pair:
            self.k(f"s_add_u32 s{sRS}, s{sRS}, 4096\ns_sub_u32 s{sRS}, s{sRS}, s{sW1K}")
            self.pair = False
    def issue16(self):
        k = self.k
        b = self.issued; slot = b % self.N
        assert slot + 16 <= self.N and b + 16 <= min(self.limit or 1 << 30, self.freed + self.N)
        assert not any(x in self.starts for x in range(b + 1, b + 16))
        k(f"s_add_u32 m0, s{sW4K}, {slot*KB}")
        if b in self.starts: k(f"s_add_u32 s{sRS}, s{self.starts[b]}, s{sW4K}")
        else: k(f"s_add_u32 s{sRS}, s{sRS}, 16384")
        for i in range(4):
            t = k.vm(f"buffer_load_dwordx4 v{vL16}, {srd(sWS)}, s{sRS} offen offset:{i*KB} sc1 lds")
        for q in range(4): self.tick[b // 4 + q] = t
        self.issued += 16
    def end16(self):
        self.k(f"s_sub_u32 s{sRS}, s{sRS}, s{sW4K}\ns_add_u32 s{sRS}, s{sRS}, 12288")
    def issue_n(self, n):
        for _ in range(n):
            if self.can_issue(): self.issue()
    def sync(self, consumed, need):
        k = self.k
        need = min(need, self.total)
        if need > self.visible:
            q = (need - 1) // 4
            assert q * 4 < self.issued, (need, self.issued)
            k.wait(vm=self.tick[q])
        k("s_barrier")
        q = self.visible // 4
        while q in self.tick and self.tick[q] <= k.vm_done: q += 1
        self.visible = q * 4
        assert self.visible >= need
        self.freed = max(self.freed, (consumed // 4) * 4)
    def addr(self, b): return (b % self.N) * KB

def set_lds_bases(k, extra_s=None):
    if extra_s is None: k(f"v_mov_b32 v{vB}, v{vL16}")
    else: k(f"v_add_u32 v{vB}, s{extra_s}, v{vL16}")
    k(f"v_add_u32 v{vB+1}, 0x10000, v{vB}")
    k(f"v_add_u32 v{vB+2}, 0x20000, v{vB}")

class XLoader:
    def __init__(self, k, total, reg, src, va=vL16):
        self.k = k; self.total = total; self.reg = reg; self.src = src; self.n = 0; self.t = []; self.va = va
        self.hold = total
    def issue_n(self, n):
        k = self.k
        for _ in range(n):
            i = self.n
            if i >= min(self.total, self.hold): return
            s_, imm = self.src(i)
            self.t.append(k.vm(f"buffer_load_dwordx4 {self.reg(i)}, v{self.va}, {srd(sWS)}, s{s_} offen offset:{imm} sc1"))
            self.n += 1
def lin_src(k):
    def f(i):
        if i and (i & 3) == 0: k(f"s_add_u32 s{sX}, s{sX}, 4096")
        return sX, (i & 3) * KB
    return f

class Gemm:
    def __init__(self, k, ring, ops, syncs, D=4, NB=8, stop_issue=None):
        self.k = k; self.ring = ring; self.ops = ops; self.syncs = sorted(syncs)
        assert all(x % 2 == 0 for x in syncs)
        self.D = D; self.NB = NB; self.tl = {}; self.nread = 0
        self.stop = stop_issue if stop_issue is not None else len(ops)
    def rd(self):
        k = self.k; m = self.nread; o = self.ops[m]
        assert o['bmax'] < self.ring.visible, (m, o['b'], self.ring.visible)
        a = self.ring.addr(o['b'])
        self.tl[m] = k.lg(f"ds_read_b128 {ar(aWB + 4*(m % self.NB))}, v{vB + (a >> 16)} offset:{a & 0xffff}")
        self.nread += 1
    def need_until(self, m):
        M = len(self.ops)
        nxt = [s for s in self.syncs if s > m]
        last = min((nxt[0] if nxt else M) - 1 + self.D, M - 1)
        return max(o['bmax'] for o in self.ops[:last+1]) + 1
    def start(self):
        self.ring.sync(self.ops[0]['bmin'], self.need_until(0))
        while self.nread < min(self.D, len(self.ops)): self.rd()
    def run(self, xq, n0=6, look=10, filler=None, misc=(), misc_from=0, skip=0):
        k = self.k; M = len(self.ops)
        misc = list(misc)
        xq.issue_n(n0)
        cur = 0
        for m in range(M):
            if m in self.syncs and m > 0:
                self.ring.sync(self.ops[m]['bmin'], self.need_until(m))
            o = self.ops[m]
            xt = None
            if m % 2 == 0:
                xs = [p['xi'] for p in self.ops[m:m+2] if p.get('xi') is not None]
                if xs:
                    cur = max(cur, max(xs))
                    while xq.n <= max(xs): xq.issue_n(1)
                    xt = xq.t[max(xs)]
                k.wait(vm=xt, lg=self.tl[min(m + 1, M - 1)])
            w = ar(aWB + 4*(m % self.NB))
            c = o.get('c0', '0') if o['first'] else o['acc']
            A, B = (o['x'], w) if o['swap'] else (w, o['x'])
            k(f"v_mfma_f32_32x32x16_bf16 {o['acc']}, {A}, {B}, {c}")
            if m == 0: mark(k, 'm0')
            if m in GEMM_MARKS.get(G.ph, ()): mark(k, f'm{m}')
            if m % 2 == 0:
                for _ in range(2):
                    if self.nread < M: self.rd()
                if DIAG_NOP.get(G.ph): k(f"s_nop {DIAG_NOP[G.ph]}")
            elif not (skip and m % skip == skip - 1):
                rok = m < self.stop and self.ring.can_issue()
                if xq.n < xq.total and (xq.n - cur < look or not (rok or (misc and m >= misc_from))): xq.issue_n(1)
                elif misc and m >= misc_from: misc.pop(0)()
                elif rok: self.ring.issue()
            if filler: filler(m)
        assert not misc

def stats_emitters(k, vt, res):
    k(f"s_lshl_b32 s{sS0}, s{sRB}, 12\ns_add_u32 s{sS0}, s{sS0}, {SX}")
    def mk(i):
        def f(): res['t'] = k.vm(f"buffer_load_dwordx4 {vr(vt+4*i)}, v{vL16}, {srd(sWS)}, s{sS0} offen offset:{i*KB} sc1")
        return f
    return [mk(i) for i in range(4)]

NTREE = 14
def fin_stats(vt, vext, vrstd):
    ins = []
    n = 8
    while n > 1:
        h = n // 2
        for i in range(h):
            ins.append(f"v_add_f32 v{vt+2*i}, v{vt+2*i}, v{vt+2*(i+h)}")
            ins.append(f"v_add_f32 v{vt+2*i+1}, v{vt+2*i+1}, v{vt+2*(i+h)+1}")
        n = h
    a, b, c, d = vt, vt+1, vt+2, vt+3
    ins += [f"v_mov_b32 v{c}, v{a}", f"v_mov_b32 v{d}, v{b}",
            f"v_permlane32_swap_b32 v{a}, v{c}", f"v_permlane32_swap_b32 v{b}, v{d}",
            f"v_add_f32 v{a}, v{a}, v{c}", f"v_add_f32 v{b}, v{b}, v{d}",
            f"v_mul_f32 v{a}, {hex(f2u(-1.0/512))}, v{a}",
            f"v_mul_f32 v{b}, {hex(f2u(1.0/512))}, v{b}",
            f"v_fma_f32 v{b}, -v{a}, v{a}, v{b}",
            f"v_max_f32 v{b}, 0, v{b}",
            f"v_add_f32 v{b}, {hex(f2u(1e-5))}, v{b}",
            f"v_rsq_f32 v{vrstd}, v{b}",
            f"v_cvt_pk_bf16_f32 v{vext}, v{a}, v{a}",
            f"v_and_b32 v{c}, 0xffff0000, v{vext}",
            f"v_sub_f32 v{c}, v{a}, v{c}",
            f"v_cvt_pk_bf16_f32 v{vext+1}, v{c}, 0",
            f"v_mov_b32 v{vext+2}, v{vext}", f"v_mov_b32 v{vext+3}, v{vext+1}"]
    return ins

def poll(k, vaddr, vpd, sleep=0):
    l = k.newlabel('poll')
    k(f"s_mov_b32 s{sSPIN}, 0x40000")
    k.label(l)
    k.vm(f"buffer_load_dwordx2 {vr(vpd,2)}, v{vaddr}, {srd(sWS)}, s{sF} offen sc1")
    k(f"s_sub_u32 s{sSPIN}, s{sSPIN}, 1")
    k("s_cbranch_scc1 L_abort")
    k.wait_all(lg=False)
    k(f"v_cmp_ne_u64 vcc, s[{sTAG}:{sTAG+1}], {vr(vpd,2)}")
    k(f"s_cbranch_vccnz {l}")
class APoll:
    def __init__(self, k, loads, cmp, sleep=0):
        self.k = k; self.loads = loads; self.cmp = cmp; self.sleep = sleep
    def issue(self):
        for x in self.loads:
            if x.startswith('buffer'): self.t = self.k.vm(x)
            else: self.k(x)
    def check(self):
        k = self.k
        l = k.newlabel('ap'); ok = k.newlabel('apok')
        k.wait(vm=self.t)
        k(self.cmp)
        k(f"s_cbranch_vccnz {l}")
        k.label(ok)
        (G.near if NEAR else G.far).extend([f"{l}:", f"s_mov_b32 s{sSPIN}, 0x40000", f"{l}_l:"] + list(self.loads) + [
            f"s_sub_u32 s{sSPIN}, s{sSPIN}, 1", "s_cbranch_scc1 L_abort", "s_waitcnt vmcnt(0)", self.cmp,
            f"s_cbranch_vccnz {l}_l", f"s_branch {ok}"])
def flush_near(k):
    if not G.near: return
    l = k.newlabel('nr')
    k(f"s_branch {l}")
    for x in G.near:
        if x.endswith(':'): k.label(x[:-1])
        else: k(x)
    k.label(l)
    G.near.clear()
def apoll1(k, vaddr, vpd, soff, sleep=0):
    return APoll(k, [f"buffer_load_dwordx2 {vr(vpd,2)}, v{vaddr}, {srd(sWS)}, s{soff} offen sc1"],
                 f"v_cmp_ne_u64 vcc, s[{sTAG}:{sTAG+1}], {vr(vpd,2)}", sleep)
def ppoll(k, vaddr, vd, n):
    l = k.newlabel('pp'); ok = k.newlabel('ppok')
    ld = lambda i: f"buffer_load_dwordx2 {vr(vd+2*i,2)}, v{vaddr}, {srd(sWS)}, s{sF} offen sc1"
    k(f"s_mov_b32 s{sSPIN}, 0x20000")
    for i in range(n - 1): k(ld(i))
    k.label(l)
    for i in range(n):
        k(ld((i + n - 1) % n))
        k(f"s_waitcnt vmcnt({n-1})")
        k(f"v_cmp_ne_u64 vcc, s[{sTAG}:{sTAG+1}], {vr(vd+2*i,2)}")
        k(f"s_cbranch_vccz {ok}")
        if PP_SLEEP: k(f"s_sleep {PP_SLEEP}")
    k(f"s_sub_u32 s{sSPIN}, s{sSPIN}, 1")
    k(f"s_cbranch_scc0 {l}")
    k("s_branch L_abort")
    k.label(ok)
    k.vm_done = k.vm_issued
def poll16(k):
    flush_near(k)
    k("v_and_b32 v13, 15, v0\nv_lshlrev_b32 v13, 3, v13")
    if PPOLL: ppoll(k, 13, 248, PPOLL)
    else: poll(k, 13, 14)

TAGMOV = [f"v_mov_b32 v14, s{sTAG}", f"v_mov_b32 v15, s{sTAG+1}"]
def publish_local(k, last_store, force_global=False, movs=True):
    if movs:
        for x in TAGMOV: k(x)
    if force_global:
        k.wait(vm=last_store)
        k.vm(f"buffer_store_dwordx2 v[14:15], off, {srd(sWS)}, s{sF} sc1")
        return
    slow = k.newlabel('slow'); join = k.newlabel('join')
    k(f"s_cmp_eq_u32 s{sMODE}, 0")
    k(f"s_cbranch_scc1 {slow}")
    if FL1: k("s_mov_b64 exec, 1")
    k.wait(vm=last_store)
    k.vm(f"buffer_store_dwordx2 v[14:15], off, {srd(sWS)}, s{sF}")
    if FL1: k("s_mov_b64 exec, -1")
    k.label(join)
    G.far += [f"{slow}:", "s_waitcnt vmcnt(0)", "buffer_wbl2 sc1", "s_waitcnt vmcnt(0)",
              f"buffer_store_dwordx2 v[14:15], off, {srd(sWS)}, s{sF} sc1", f"s_branch {join}"]
def publish_wg(k, last_store, xid=False, barrier=True):
    l = k.newlabel('pw')
    k(f"v_mov_b32 v13, 0\nv_mov_b32 v14, s{sTAG}\nv_mov_b32 v15, s{sTAG+1}")
    k.wait(vm=last_store)
    if barrier: k("s_barrier")
    k(f"s_cmp_lg_u32 s{sW}, 0\ns_cbranch_scc1 {l}")
    k("s_mov_b64 exec, 1")
    if xid:
        k(f"v_xor_b32 v12, s{sXCC}, v14\nv_mov_b32 v13, v15")
        k(f"buffer_store_dwordx4 v[12:15], v{vL16}, {srd(sWS)}, s{sF} offen sc1")
    else:
        k(f"buffer_store_dwordx2 v[14:15], v13, {srd(sWS)}, s{sF} offen sc1")
    k("s_mov_b64 exec, -1")
    k.label(l)

def rb_128(k):
    k(f"s_lshl_b32 s{sT0}, s{sC4}, 2\ns_lshl_b32 s{sRB}, s{sG}, 3\ns_add_u32 s{sRB}, s{sRB}, s{sT0}\ns_add_u32 s{sRB}, s{sRB}, s{sW}")

def store_x(k, acc, pk, L, p, ring=None, m16=False):
    k(f"s_add_u32 s{sT1}, s{sDST}, {XF}")
    k.vm(f"buffer_store_dwordx4 {vr(pk)}, v{vL16}, {srd(sWS)}, s{sT1} offen")
    td = k.vm(f"buffer_store_dwordx4 {vr(pk+4)}, v{vL16}, {srd(sWS)}, s{sT1} offen offset:1024")
    mark(k, 'f_xs')
    A_ = [acc + i for i in ((0, 1, 2, 3, 8, 9, 10, 11) if m16 else range(0, 16, 2))]
    B_ = [acc + i for i in ((4, 5, 6, 7, 12, 13, 14, 15) if m16 else range(1, 16, 2))]
    k(f"v_add_f32 v10, v{A_[0]}, v{A_[1]}\nv_mul_f32 v11, v{A_[0]}, v{A_[0]}\nv_add_f32 v8, v{B_[0]}, v{B_[1]}\nv_mul_f32 v9, v{B_[0]}, v{B_[0]}")
    k(f"v_fmac_f32 v11, v{A_[1]}, v{A_[1]}\nv_fmac_f32 v9, v{B_[1]}, v{B_[1]}")
    for i in range(2, 8):
        k(f"v_add_f32 v10, v10, v{A_[i]}\nv_fmac_f32 v11, v{A_[i]}, v{A_[i]}\nv_add_f32 v8, v8, v{B_[i]}\nv_fmac_f32 v9, v{B_[i]}, v{B_[i]}")
        if ring and i in (2, 5): ring.issue_n(ST_PRE)
    if m16: k("v_permlane16_swap_b32 v10, v8\nv_permlane16_swap_b32 v11, v9")
    k("v_add_f32 v10, v10, v8\nv_add_f32 v11, v11, v9\nv_mov_b32 v8, v10\nv_mov_b32 v9, v11")
    k("v_permlane32_swap_b32 v10, v8\nv_permlane32_swap_b32 v11, v9\nv_add_f32 v10, v10, v8\nv_add_f32 v11, v11, v9")
    k("s_mov_b32 exec_hi, 0")
    ts = k.vm(f"buffer_store_dwordx2 v[10:11], v{vL16}, {srd(sWS)}, s{sSD} offen")
    k("s_mov_b64 exec, -1")
    k(f"s_lshr_b32 s{sF}, s{sDST}, 8\ns_add_u32 s{sF}, s{sF}, {FLOC(L, p)}")
    mark(k, 'f_ss')
    if SPLIT_ST:
        publish_local(k, td)
        k(f"s_add_u32 s{sF}, s{sF}, {FLOC(L, 6 if p == 1 else 7) - FLOC(L, p)}")
    return ts
def stats_poll(k, delta):
    if not SPLIT_ST: return []
    k(f"s_add_u32 s{sF}, s{sF}, {delta}")
    ap = apoll1(k, 13, 14, sF)
    return ap

def rowmajor_addr(k, va, s_out):
    k(f"v_and_b32 v{va}, 31, v0\nv_lshlrev_b32 v{va}, 10, v{va}\nv_bfe_u32 v{va+1}, v0, 5, 1\nv_lshlrev_b32 v{va+1}, 4, v{va+1}\nv_add_u32 v{va}, v{va}, v{va+1}")
    k(f"s_and_b32 s{s_out}, s{sDST}, 0xffff8000\ns_bfe_u32 s{sT3}, s{sDST}, 0x5000a\ns_lshl_b32 s{sT3}, s{sT3}, 5\ns_add_u32 s{s_out}, s{s_out}, s{sT3}")

sU = 96
def pack_decode(k):
    nm = "pk"; u = f"s{sU}"
    k(f"s_min_u32 s83, {u}, 231")
    u = "s83"
    k(f"s_and_b32 s90, s{sW}, 1\ns_lshr_b32 s91, s{sW}, 1")
    k(f"s_cmp_lt_u32 {u}, 48\ns_cbranch_scc1 {nm}_q")
    k(f"s_cmp_lt_u32 {u}, 160\ns_cbranch_scc1 {nm}_u")
    k(f"s_cmp_lt_u32 {u}, 176\ns_cbranch_scc1 {nm}_o")
    k(f"s_sub_u32 s84, {u}, 176\ns_lshl_b32 s84, s84, 2\ns_add_u32 s84, s84, s{sW}")
    k("s_and_b32 s85, s84, 15\ns_lshr_b32 s86, s84, 4")
    k("s_lshl_b32 s87, s85, 6")
    k("s_add_u32 s74, s72, s87\ns_addc_u32 s75, s73, 0\ns_mov_b32 s76, s74\ns_mov_b32 s77, s75")
    k("s_mov_b32 s78, 1024\ns_lshl_b32 s79, s86, 7")
    k(f"s_mul_i32 s80, s85, 14\ns_add_u32 s80, s80, s86\ns_lshl_b32 s80, s80, 13\ns_add_u32 s80, s80, {WD}\ns_mov_b32 s81, 1024\ns_mov_b32 s88, s81\ns_mov_b32 s82, {DUMP}")
    k(f"s_branch {nm}_go")
    k.label(f"{nm}_o")
    k(f"s_sub_u32 s85, {u}, 160\ns_lshr_b32 s88, s85, 3\ns_and_b32 s85, s85, 7")
    k("s_lshl_b32 s87, s85, 1\ns_add_u32 s87, s87, s90\ns_lshl_b32 s87, s87, 6")
    k("s_add_u32 s74, s66, s87\ns_addc_u32 s75, s67, 0\ns_mov_b32 s76, s74\ns_mov_b32 s77, s75")
    k("s_mov_b32 s78, 1024\ns_lshl_b32 s79, s88, 1\ns_add_u32 s79, s79, s91\ns_lshl_b32 s79, s79, 7")
    k("s_lshl_b32 s89, s91, 15\ns_xor_b32 s90, s90, s88\ns_lshl_b32 s88, s88, 1\ns_add_u32 s90, s90, s88\ns_lshl_b32 s90, s90, 10")
    k(f"s_mul_i32 s80, s85, {WO_STR}\ns_add_u32 s80, s80, s89\ns_add_u32 s80, s80, s90\ns_add_u32 s80, s80, {WO}")
    k(f"s_mov_b32 s81, 4096\ns_mov_b32 s88, s81\ns_mov_b32 s82, {DUMP}")
    k(f"s_branch {nm}_go")
    k.label(f"{nm}_u")
    k(f"s_sub_u32 s85, {u}, 48\ns_mul_i32 s84, s85, 2341\ns_lshr_b32 s84, s84, 16\ns_mul_i32 s86, s84, 28\ns_sub_u32 s85, s85, s86")
    k(f"s_lshl_b32 s85, s85, 2\ns_add_u32 s85, s85, s{sW}\ns_lshl_b32 s87, s85, 5")
    k("s_add_u32 s74, s68, s87\ns_addc_u32 s75, s69, 0")
    k("s_add_u32 s76, s70, s87\ns_addc_u32 s77, s71, 0\ns_sub_u32 s76, s76, 32\ns_subb_u32 s77, s77, 0")
    k("s_mov_b32 s78, 3584")
    k("s_mul_i32 s86, s85, 9363\ns_lshr_b32 s86, s86, 16\ns_mul_i32 s88, s86, 7\ns_sub_u32 s88, s85, s88")
    if DN16: k("s_sub_u32 s89, 6, s88\ns_bitcmp0_b32 s86, 0\ns_cselect_b32 s88, s89, s88")
    k(f"s_mul_i32 s91, s86, {WU_STR}\ns_add_u32 s91, s91, {WU}\ns_lshl_b32 s89, s88, 10\ns_add_u32 s91, s91, s89")
    k(f"s_cmp_lt_u32 s88, 5\ns_cselect_b32 s90, 3, 5\ns_lshl_b32 s89, s90, 15\ns_add_u32 s89, s89, 1024")
    k(f"s_cmp_lt_u32 s88, 3\ns_cselect_b32 s81, 3, 2\ns_cselect_b32 s89, 0, s89\ns_cselect_b32 s90, 0, s90\ns_lshl_b32 s81, s81, 10\ns_add_u32 s91, s91, s89")
    k("s_sub_u32 s85, s88, s90\ns_lshl_b32 s85, s85, 10\ns_mov_b32 s88, 1024")
    k(f"s_branch {nm}_ext")
    k.label(f"{nm}_q")
    k(f"s_cmp_ge_u32 {u}, 24\ns_cselect_b32 s84, 2, 0\ns_cselect_b32 s86, 24, 0\ns_add_u32 s84, s84, s91\ns_sub_u32 s85, {u}, s86")
    k("s_lshl_b32 s85, s85, 1\ns_add_u32 s85, s85, s90\ns_and_b32 s86, s85, 15\ns_lshr_b32 s88, s85, 4")
    k("s_lshl_b32 s87, s85, 6\ns_lshl_b32 s89, s88, 10")
    k("s_add_u32 s74, s64, s87\ns_addc_u32 s75, s65, 0\ns_mov_b32 s76, s74\ns_mov_b32 s77, s75")
    k("s_mov_b32 s78, 3072")
    k(f"s_sub_u32 s89, s89, 1024\ns_cmp_eq_u32 s88, 0\ns_cselect_b32 s89, {66*KB}, s89\ns_cselect_b32 s81, 1, 2\ns_lshl_b32 s81, s81, 10")
    k(f"s_mul_i32 s91, s86, {WQ_STR}\ns_add_u32 s91, s91, s89\ns_add_u32 s91, s91, {WQ}\ns_mov_b32 s85, 0\ns_mov_b32 s88, s81")
    k.label(f"{nm}_ext")
    k("s_lshl_b32 s79, s84, 7")
    k("s_lshl_b32 s89, s81, 5\ns_add_u32 s82, s91, s89\ns_lshr_b32 s89, s84, 1\ns_lshl_b32 s89, s89, 9\ns_add_u32 s82, s82, s89")
    k("s_and_b32 s89, s84, 1\ns_lshl_b32 s89, s89, 3\ns_add_u32 s82, s82, s89")
    k("s_lshl_b32 s89, s81, 3\ns_mul_i32 s89, s89, s84\ns_add_u32 s80, s91, s89\ns_add_u32 s80, s80, s85")
    k.label(f"{nm}_go")
    k(f"s_cmp_ge_u32 s{sU}, 232\ns_cselect_b32 s80, {DUMP}, s80")
    k("v_bfe_u32 v4, v0, 2, 4\nv_add_u32 v4, s79, v4\nv_mul_lo_u32 v4, v4, s78")
    k("v_and_b32 v13, 3, v0\nv_lshlrev_b32 v13, 4, v13\nv_add_u32 v4, v4, v13")
    k(f"s_lshl_b32 s83, s78, 4")
    if PK_Q0: k(f"s_lshl_b32 s84, s{sW}, 13\ns_add_u32 s84, s84, {64*KB}")
    elif Q0K: k(f"s_lshl_b32 s84, s{sW}, 13")
    elif PK_EARLY: k(f"s_lshl_b32 s84, s{sW}, 13\ns_add_u32 s84, s84, {4*KB}")
    else: k(f"s_lshl_b32 s84, s{sW}, 14\ns_add_u32 s84, s84, {96*KB}")
    k("s_mov_b32 s86, s83\ns_mov_b32 s87, 0\ns_lshl_b32 s83, s81, 1\ns_sub_u32 s83, s83, s88\ns_mov_b32 s81, s88")
    k("v_and_b32 v13, 2, v0\nv_cmp_eq_u32 vcc, 0, v13")
    k("v_mov_b32 v14, s76\nv_mov_b32 v13, s74\nv_cndmask_b32 v14, v14, v13, vcc\nv_mov_b32 v15, s77\nv_mov_b32 v13, s75\nv_cndmask_b32 v15, v15, v13, vcc")
    k("v_add_co_u32 v4, vcc, v4, v14\nv_addc_co_u32 v5, vcc, 0, v15, vcc")
def pack_issue(k, i, sbase):
    k(f"s_add_u32 m0, s{sbase}, {i*KB}")
    if i: k("v_lshl_add_u64 v[4:5], v[4:5], 0, s[86:87]")
    return k.vm("global_load_lds_dwordx4 v[4:5], off")
def tr_addr(k, v, t):
    k(f"v_bfe_u32 v{v}, v0, 5, 1\nv_lshlrev_b32 v{v}, 9, v{v}")
    k(f"v_bfe_u32 v{t}, v0, 2, 2\nv_lshlrev_b32 v{t}, 6, v{t}\nv_add_u32 v{v}, v{v}, v{t}")
    k(f"v_bfe_u32 v{t}, v0, 4, 1\nv_lshlrev_b32 v{t}, 5, v{t}\nv_add_u32 v{v}, v{v}, v{t}")
    k(f"v_and_b32 v{t}, 1, v0\nv_lshlrev_b32 v{t}, 4, v{t}\nv_add_u32 v{v}, v{v}, v{t}")
    k(f"v_bfe_u32 v{t}, v0, 1, 1\nv_lshlrev_b32 v{t}, 3, v{t}\nv_add_u32 v{v}, v{v}, v{t}")
def ext_pair(src, dst, t0):
    return [f"v_mov_b32 v{t0}, v{src}", f"v_permlane32_swap_b32 v{src}, v{t0}", f"v_add_f32 v{src}, v{src}, v{t0}",
            f"v_cvt_pk_bf16_f32 v{dst+1}, v{src}, 0", f"v_lshlrev_b32 v{t0}, 16, v{dst+1}", f"v_sub_f32 v{src}, v{src}, v{t0}",
            f"v_cvt_pk_bf16_f32 v{dst}, v{t0}, v{src}"]
class Pack:
    def __init__(self, k): self.k = k; self.r = {}
    def issue(self, *ii):
        for i in ii: self.d = pack_issue(self.k, i, 84)
    def reads(self, *ii):
        k = self.k
        if ii[0] == 0:
            k("v_accvgpr_read_b32 v4, a212")
            k.wait(vm=self.d)
        for i in ii:
            k.lg(f"ds_read_b64_tr_b16 {ar(160+4*i,2)}, v4 offset:{i*KB}")
            self.r[i] = k.lg(f"ds_read_b64_tr_b16 {ar(162+4*i,2)}, v4 offset:{i*KB+256}")
    def csum(self, i):
        self.k.wait(lg=self.r[i])
        self.k(f"v_mfma_f32_32x32x16_bf16 {ar(196,16)}, {ar(192)}, {ar(160+4*i)}, {'0' if i == 0 else ar(196,16)}")
    def stores(self, *ii):
        k = self.k
        k.wait(lg=self.r[ii[-1]])
        for i in ii:
            k.vm(f"buffer_store_dwordx4 {ar(160+4*i)}, v{vL16}, {srd(sWS)}, s80 offen sc1")
            k(f"s_add_u32 s80, s80, s{83 if i & 1 else 81}")
    def ext(self):
        k = self.k
        k("v_accvgpr_read_b32 v13, a196")
        k("v_cvt_pk_bf16_f32 v15, v13, 0\nv_lshlrev_b32 v14, 16, v15\nv_sub_f32 v13, v13, v14\nv_cvt_pk_bf16_f32 v14, v14, v13")
        k("s_mov_b32 exec_hi, 0")
        self.s = k.vm(f"buffer_store_dwordx2 v[14:15], v{vL16}, {srd(sWS)}, s82 offen sc1")
        k("s_mov_b64 exec, -1")
    def pub(self):
        k = self.k
        k(f"s_lshl_b32 s{sF}, s{sU}, 7\ns_add_u32 s{sF}, s{sF}, {FPK}")
        publish_wg(k, self.s, xid=True)
    def schedule(self, job):
        t = PK_T0
        if not PK_EARLY:
            for i in range(4): job(t + i, lambda i=i: self.issue(2*i, 2*i+1))
            t += 4 + PK_GAP
        if PK_WIN2:
            job(t, self.pub)
            return t
        if PK_EARLY and PK_SP:
            for i in range(8): job(t + PK_SP*i, lambda i=i: self.stores(i))
            job(t + 8*PK_SP, self.ext)
            job(t + 8*PK_SP + PK_GAP2, self.pub)
            return t + 8*PK_SP + PK_GAP2
        if PK_EARLY:
            for i in range(4): job(t + i, lambda i=i: self.stores(2*i, 2*i+1))
            job(t + 4, self.ext)
            job(t + 4 + PK_GAP2, self.pub)
            return t + 4 + PK_GAP2
        job(t, lambda: self.reads(0, 1, 2, 3)); job(t + 1, lambda: self.reads(4, 5, 6, 7))
        for i in range(4):
            job(t + 2 + i, lambda i=i: self.stores(2*i, 2*i+1))
            job(t + 1 + i, lambda i=i: self.csum(2*i), e=14)
            job(t + 2 + i, lambda i=i: self.csum(2*i+1), e=0)
        job(t + 6, self.ext)
        job(t + 6 + PK_GAP2, self.pub)
        return t + 6 + PK_GAP2
def qkv_consts(vT, vRS, vR):
    return [f"v_cvt_pk_bf16_f32 v{vT}, v{vRS}, 0", f"v_lshlrev_b32 v{vT+1}, 16, v{vT}", f"v_sub_f32 v{vT+2}, v{vRS}, v{vT+1}",
            f"v_cvt_pk_bf16_f32 v{vT}, v{vT+1}, v{vT+2}", f"v_mov_b32 v{vT+1}, 0", f"v_mov_b32 v{vT+2}, 0", f"v_mov_b32 v{vT+3}, 0",
            f"v_cmp_gt_u32 vcc, 512, v{vL16}", f"v_mov_b32 v{vT+4}, 0x3f803f80", f"v_cndmask_b32 v{vT+4}, 0, v{vT+4}, vcc",
            f"v_mov_b32 v{vT+5}, 0", f"v_mov_b32 v{vT+6}, 0", f"v_mov_b32 v{vT+7}, 0",
            f"v_mul_f32 v{vRS+1}, {hex(f2u(0.25*LOG2E))}, v{vRS}",
            "v_bfe_u32 v12, v0, 4, 1", "v_lshlrev_b32 v12, 17, v12", "v_and_b32 v13, 15, v0", "v_lshlrev_b32 v13, 4, v13", "v_add_u32 v12, v12, v13",
            "v_bfe_u32 v13, v0, 5, 1", "v_lshlrev_b32 v13, 8, v13", "v_add_u32 v12, v12, v13",
            f"v_mfma_f32_32x32x16_bf16 {vr(vR,16)}, {vr(vT)}, {vr(vT+4)}, 0"]
def qk_tile(a, dst, sc, fl, p0):
    o = []
    sb, hs = (sB, KB) if dst == QF else (sCc, 128*KB)
    for half in range(2):
        p = p0 + 4*half
        for j in range(4):
            r = a + 8*half + 2*j
            o += [f"v_mul_f32 v{r}, v{r}, v{sc}", f"v_mul_f32 v{r+1}, v{r+1}, v{sc}", f"v_cvt_pk_bf16_f32 v{p+j}, v{r}, v{r+1}"]
        o += [f"s_add_u32 s{sT2}, s{sb}, {dst + half*hs}", f"buffer_store_dwordx4 {vr(p)}, v{vL16}, {srd(sWS)}, s{sT2} offen{fl}"]
    return o
def v_tile(a, L, vR, p0):
    o = [f"s_add_u32 s{sT2}, s{sCc}, {KVF(L) + KB}"]
    for u in range(2):
        p = p0 + 4*u
        for j in range(4):
            r = a + 8*u + 2*j; q = vR + 8*u + 2*j
            o += [f"v_mul_f32 v{r}, v{r}, v{q}", f"v_mul_f32 v{r+1}, v{r+1}, v{q+1}", f"v_cvt_pk_bf16_f32 v{p+j}, v{r}, v{r+1}"]
        o.append(f"buffer_store_dwordx4 {vr(p)}, v12, {srd(sWS)}, s{sT2} offen offset:{u*512} sc1")
    return o
def kv_flag(k, L, tkv):
    k(f"s_lshl_b32 s{sF}, s{sA}, 4\ns_lshr_b32 s{sT1}, s{sRB}, 2\ns_add_u32 s{sF}, s{sF}, s{sT1}\ns_lshl_b32 s{sF}, s{sF}, 7\ns_add_u32 s{sF}, s{sF}, {FKV(L)}")
    publish_wg(k, tkv)
def q_flag(k, L, tq):
    k(f"s_lshr_b32 s{sF}, s{sRB}, 3\ns_lshl_b32 s{sF}, s{sF}, 4\ns_add_u32 s{sF}, s{sF}, s{sA}\ns_lshl_b32 s{sF}, s{sF}, 3\ns_and_b32 s{sT1}, s{sRB}, 7\ns_add_u32 s{sF}, s{sF}, s{sT1}\ns_lshl_b32 s{sF}, s{sF}, 3\ns_add_u32 s{sF}, s{sF}, {FLOC(L-1,5)}")
    publish_local(k, tq, force_global=(L == 0))

WARM = True
LIN_AT = 99
LIN_U = True
Q0_ROT = True
Q0_MARKS = False
Q0_MARKJ = ()
Q0_SCHED = ((3, 4), (5,), (6,), (7,), (), (), (), ())
LATE_AT = 1
Q0_UP = 3
PK_AT = (5, 5, 6, 6, 6, 6, 6, 6)
def ph_qkv0(k, late):
    vX, vACC, vST, vEXT, vRS, vT, vR = 16, 144, 192, 8, 6, 224, 232
    vXA, vWA, vXR, vTR, vTW, vCS, vCW, vONE = 10, 12, 196, 200, 202, 204, 208, 220
    sXS, sWR, sXL, sWL = 60, 56, sD, sE
    rb_128(k)
    k(f"s_and_b32 s{sA}, s{sC}, 15")
    k(f"v_bfe_u32 v{vXA}, v0, 3, 3\nv_lshlrev_b32 v{vXA}, 10, v{vXA}\nv_and_b32 v13, 7, v0\nv_bfe_u32 v14, v0, 4, 2\nv_xor_b32 v13, v13, v14")
    k(f"v_lshlrev_b32 v13, 4, v13\nv_add_u32 v{vXA}, v{vXA}, v13\nv_xor_b32 v{vXA+1}, 64, v{vXA}")
    k(f"v_bfe_u32 v{vWA}, v0, 2, 4\nv_mul_u32_u24 v{vWA}, 3072, v{vWA}\nv_and_b32 v13, 3, v0\nv_lshlrev_b32 v13, 4, v13\nv_add_u32 v{vWA}, v{vWA}, v13")
    if DIAG_W: k(f"v_bfe_u32 v{vWA}, v0, 3, 3\nv_mul_u32_u24 v{vWA}, 6144, v{vWA}\nv_and_b32 v13, 7, v0\nv_lshlrev_b32 v13, 4, v13\nv_add_u32 v{vWA}, v{vWA}, v13\ns_and_b32 s{sA}, s{sA}, 14")
    k(f"s_lshl_b32 s{sX}, s{sRB}, 15")
    k(f"s_mul_i32 s{sX2}, s{sW}, 49152\ns_lshl_b32 s{sT0}, s{sA}, 6\ns_add_u32 s{sX2}, s{sX2}, s{sT0}")
    if DIAG_W: k(f"s_and_b32 s{sA}, s{sG}, 1\ns_lshl_b32 s{sA}, s{sA}, 3\ns_and_b32 s{sT0}, s{sC}, 7\ns_add_u32 s{sA}, s{sA}, s{sT0}")
    k(f"s_lshl_b32 s{sXL}, s{sW}, 14\ns_add_u32 s{sXL}, s{sXL}, {96*KB}\ns_mul_i32 s{sWL}, s{sW}, 3072")
    k("s_waitcnt lgkmcnt(0)")
    if Q0_MARKS: mark(k, 'karg')
    k(f"s_mov_b32 s{sWR}, s64\ns_and_b32 s{sWR+1}, s65, 0xffff\ns_mov_b32 s{sWR+2}, {512*3072}\ns_mov_b32 s{sWR+3}, 0x20000")
    k(f"s_and_b32 s{sXS+1}, s{sXS+1}, 0xffff\ns_mov_b32 s{sXS+2}, {2*MB}\ns_mov_b32 s{sXS+3}, 0x20000")
    ct = {}; cn = {j: 0 for j in range(8)}
    k(f"s_lshl_b32 s{sCc}, s{sC4}, 2\ns_lshr_b32 s{sT3}, s{sC}, {Q0_RSH}\ns_add_u32 s{sCc}, s{sCc}, s{sT3}\ns_add_u32 s{sCc}, s{sCc}, s{sG}")
    def rot(j):
        k(f"s_add_u32 s{sT3}, s{sCc}, {j}\ns_and_b32 s{sT3}, s{sT3}, {7 if Q0_ROT else 0}")
        if not Q0_ROT: k(f"s_mov_b32 s{sT3}, {j}")
        k(f"s_lshl_b32 s{sS0}, s{sT3}, 7\ns_add_u32 s{sS0}, s{sS0}, s{sX}")
        k(f"s_mul_i32 s{sS1}, s{sT3}, {4*49152}\ns_add_u32 s{sS1}, s{sS1}, s{sX2}")
    def ldW(j, t):
        k(f"s_add_u32 m0, s{sWL}, {(12*j + t)*KB}\ns_add_u32 s{sT2}, s{sS1}, {((t+1) % 3)*1024}")
        ct[j] = k.vm(f"buffer_load_dwordx4 v{vWA}, {srd(sWR)}, s{sT2} offen lds"); cn[j] += 1
    def ldX(j, i):
        if i == 0: rot(j)
        k(f"s_add_u32 m0, s{sXL}, {(j & 3)*4*KB + i*KB}\ns_add_u32 s{sT2}, s{sS0}, {i*8192}")
        ct[j] = k.vm(f"buffer_load_dwordx4 v{vXA + (i & 1)}, {srd(sXS)}, s{sT2} offen lds"); cn[j] += 1
    def chunk_loads(j):
        return [lambda i=i: ldX(j, i) for i in range(4)] + [lambda t=t: ldW(j, t) for t in range(3)]
    for f in chunk_loads(0): f()
    if Q0_MARKS: mark(k, 'up0')
    late(k)
    pack_decode(k)
    k(f"s_cmp_eq_u32 s{sW}, 0\ns_cselect_b64 s[90:91], s[68:69], s[70:71]")
    k(f"s_cmp_eq_u32 s{sW}, 2\ns_cselect_b64 s[90:91], s[72:73], s[90:91]")
    k(f"s_cmp_eq_u32 s{sW}, 3\ns_cselect_b64 s[90:91], s[66:67], s[90:91]\ns_cselect_b32 s{sT0}, 16, 56")
    k(f"s_mul_i32 s{sT1}, s{sT0}, s{sU}\ns_sub_u32 s{sT0}, s{sT0}, 1")
    k(f"v_and_b32 v254, 63, v0\nv_min_u32 v254, s{sT0}, v254\nv_add_u32 v254, s{sT1}, v254\nv_lshlrev_b32 v254, 7, v254")
    pk = G.pk = Pack(k)
    k(f"s_and_b32 s{sT0}, s{sC}, 7\ns_and_b32 s{sT1}, s{sC}, 15")
    k("v_and_b32 v13, 15, v0\nv_min_u32 v14, 13, v13")
    k(f"s_lshr_b32 s{sT2}, s{sT0}, 1\ns_add_u32 s{sT2}, s{sT2}, 176\nv_lshl_add_u32 v252, v14, 2, s{sT2}")
    k(f"s_mul_i32 s{sT2}, s{sT1}, 7\ns_add_u32 s{sT3}, s{sT2}, 6\ns_lshr_b32 s{sT2}, s{sT2}, 2\ns_lshr_b32 s{sT3}, s{sT3}, 2")
    k(f"v_lshrrev_b32 v14, 2, v13\nv_add_u32 v14, s{sT2}, v14\nv_min_u32 v14, s{sT3}, v14\nv_and_b32 v15, 3, v13\nv_mul_u32_u24 v15, 28, v15")
    k("v_add3_u32 v14, v14, v15, 48")
    k("v_and_b32 v15, 16, v0\nv_cmp_ne_u32 vcc, 0, v15\nv_cndmask_b32 v252, v252, v14, vcc")
    k(f"s_add_u32 s{sT0}, s{sT0}, 160\nv_and_b32 v14, 1, v13\nv_lshl_add_u32 v251, v14, 3, s{sT0}")
    k(f"s_lshr_b32 s{sT1}, s{sT1}, 1\nv_mul_u32_u24 v14, 24, v14\nv_lshrrev_b32 v15, 1, v13\nv_min_u32 v15, 2, v15\nv_lshlrev_b32 v15, 3, v15")
    k(f"v_add3_u32 v14, v14, v15, s{sT1}")
    k("v_cndmask_b32 v251, v251, v14, vcc")
    k(f"v_cmp_gt_u32 vcc, 512, v{vL16}\nv_cndmask_b32 v252, v251, v252, vcc\nv_lshlrev_b32 v252, 7, v252\nv_accvgpr_write_b32 a213, v252")
    if WARM:
        k("s_getpc_b64 s[88:89]")
        k.label("L_pcw")
        k(f"s_lshl_b32 s{sT0}, s{sC}, 1\ns_add_u32 s{sT0}, s{sT0}, s{sW}\ns_and_b32 s{sT0}, s{sT0}, 63\ns_lshl_b32 s{sT0}, s{sT0}, 10\ns_min_u32 s{sT0}, s{sT0}, L_end-L_pcw-1024")
        k(f"v_add_u32 v245, s{sT0}, v{vL16}")
        k(f"v_min_u32 v244, {(WS_PAGES-1)*16}, v{vL16}\nv_lshlrev_b32 v244, 17, v244")
        k(f"s_cmp_eq_u32 s{sW}, 1\ns_cselect_b64 s[88:89], s[{sAUX}:{sAUX+1}], s[88:89]")
        k(f"s_cmp_eq_u32 s{sW}, 0\ns_cselect_b64 s[88:89], s[{sWS}:{sWS+1}], s[88:89]\ns_cselect_b64 vcc, -1, 0")
        k("v_cndmask_b32 v245, v245, v244, vcc")
    if PK_Q0: pk.issue(*range(8))
    k(f"v_and_b32 v13, 31, v0\nv_bfe_u32 v14, v0, 1, 3\nv_bfe_u32 v15, v0, 5, 1\nv_xor_b32 v14, v14, v15\nv_lshlrev_b32 v14, 4, v14\nv_lshl_add_u32 v13, v13, 7, v14")
    for e in range(4):
        k(f"v_xor_b32 v{vXR+e}, {e*32}, v13\nv_add_u32 v{vXR+e}, s{sXL}, v{vXR+e}")
    tr_addr(k, vTR, 13)
    k(f"v_add_u32 v{vTR+1}, {48*KB}, v{vTR}\nv_add_u32 v{vTW}, s{sWL}, v{vTR}\nv_add_u32 v{vTW+1}, {48*KB}, v{vTW}")
    k(f"v_mov_b32 v{vONE}, 0x3f803f80\nv_add_u32 v255, s84, v{vTR}\nv_accvgpr_write_b32 a212, v255")
    for r in range(192, 196): k(f"v_accvgpr_write_b32 a{r}, v{vONE}")
    for r in list(range(vST, vST+4)) + list(range(vCS, vCS+3)): k(f"v_mov_b32 v{r}, 0")
    def reads(j):
        o = []
        for e in range(4):
            o.append(f"ds_read_b128 {vr(vX + 16*j + 4*e)}, v{vXR+e} offset:{(j & 3)*4*KB}")
        for t in range(3):
            off = (12*(j & 3) + t)*KB
            o.append(f"ds_read_b64_tr_b16 {vr(vCW+4*t,2)}, v{vTW + (j >> 2)} offset:{off}")
            o.append(f"ds_read_b64_tr_b16 {vr(vCW+4*t+2,2)}, v{vTW + (j >> 2)} offset:{off+256}")
        for b in range(12):
            off = (12*(j & 3) + b)*KB; r = 48*(j & 1) + 4*b
            o.append(f"ds_read_b64_tr_b16 {ar(r,2)}, v{vTR + (j >> 2)} offset:{off}")
            o.append(f"ds_read_b64_tr_b16 {ar(r+2,2)}, v{vTR + (j >> 2)} offset:{off+256}")
        return o
    def dots(j):
        for i in range(16):
            r = vX + 16*j + i
            k(f"v_dot2c_f32_bf16 v{vST + 2*(i & 1)}, v{vONE}, v{r}\nv_dot2c_f32_bf16 v{vST + 1 + 2*(i & 1)}, v{r}, v{r}")
        for i in range(4):
            for t in range(3): k(f"v_dot2c_f32_bf16 v{vCS+t}, v{vONE}, v{vCW+4*t+i}")
    def xid():
        k(f"s_add_u32 s{sTAG}, s{sTAG}, 0x7f4a7c15\ns_addc_u32 s{sTAG+1}, s{sTAG+1}, 0x9e3779b9")
        k("v_mov_b32 v13, 0")
        k("s_mov_b64 exec, 1")
        if FLAG_TOUCH:
            k(f"s_lshl_b32 s{sF}, s{sA}, 4\ns_lshr_b32 s{sT1}, s{sRB}, 2\ns_add_u32 s{sF}, s{sF}, s{sT1}\ns_lshl_b32 s{sF}, s{sF}, 7\ns_add_u32 s{sF}, s{sF}, {FKV(0)}")
            k.vm(f"buffer_load_dword v5, v13, {srd(sWS)}, s{sF} offen sc1")
            k(f"s_lshl_b32 s{sF}, s{sU}, 7\ns_add_u32 s{sF}, s{sF}, {FPK}")
            k.vm(f"buffer_load_dword v5, v13, {srd(sWS)}, s{sF} offen sc1")
        k("s_mov_b64 exec, -1")
    def lin_touch():
        k.vm("global_load_dword v253, v254, s[90:91]")
    side = []
    for x in att_setup(0): k(x)
    if Q0_MARKS: mark(k, 'alu')
    if WARM and WARM_AT == 0: k.vm(f"global_load_dword v255, v245, s[88:89]")
    for j in range(1, Q0_UP):
        for f in chunk_loads(j): f()
    if WARM and WARM_AT == 1: k.vm(f"global_load_dword v255, v245, s[88:89]")
    if Q0_MARKS: mark(k, 'iss')
    k.wait(vm=ct[0])
    if Q0_MARKS: mark(k, 'w0')
    k("s_barrier")
    mark(k, 'd0')
    rl = reads(0)
    for x in rl[:10]: t10 = k.lg(x)
    for x in rl[10:]: k.lg(x)
    k.wait(lg=t10)
    dots(0)
    for j in range(8):
        for c_ in Q0_SCHED[j]:
            assert c_ - 4 <= j
            side += chunk_loads(c_)
        if j == 1: side.append(xid)
        if WARM and WARM_AT == j + 2: side.append(lambda: k.vm(f"global_load_dword v255, v245, s[88:89]"))
        if PK_EARLY: side += [lambda i=i: pk.issue(i) for i in range(8) if PK_AT[i] == j]
        if j == LIN_AT and not PK_Q0: side.append(lin_touch)
        if PK_Q0:
            assert all(c_ < 5 or j > PK_RD for c_ in Q0_SCHED[j])
            if j == PK_RD: side += [lambda i=i: pk.reads(2*i, 2*i+1) for i in range(4)]
            if j == PK_ST: side += [lambda i=i: (pk.stores(i), pk.csum(i)) for i in range(4)]
            if j == PK_ST + 1: side += [lambda i=i: (pk.stores(i), pk.csum(i)) for i in range(4, 8)]
            if j == PK_ST + 2: side.append(pk.ext)
        k.wait_all(vm=False)
        rl = []
        if j < 7:
            assert cn[j+1] == 7
            k.wait(vm=ct[j+1]); k("s_barrier")
            if j in Q0_MARKJ: mark(k, f'c{j+1}')
            rl = reads(j + 1)
        t10 = None; nr = 0
        if j == 7:
            tail = f"s_lshr_b32 s{sT0}, s{sW}, 1\ns_lshl_b32 s{sT0}, s{sT0}, 9\ns_and_b32 s{sT1}, s{sW}, 1\ns_lshl_b32 s{sT1}, s{sT1}, 3\ns_add_u32 s{sT0}, s{sT0}, s{sT1}".split('\n')
            tail += [f"v_and_b32 v13, 0x1f0, v{vL16}", f"v_add_u32 v13, s{sT0}, v13"]
            for t in range(3): tail += ext_pair(vCS+t, vCW+2*t, 14) + [f"ds_write_b64 v13, {vr(vCW+2*t,2)} offset:{t*KB}"]
            fin = fin_stats(vST, vEXT, vRS)[NTREE:] + qkv_consts(vT, vRS, vR)
            tail += [f"v_add_f32 v{vST}, v{vST}, v{vST+2}", f"v_add_f32 v{vST+1}, v{vST+1}, v{vST+3}"] + fin[:18]
            tail += ["s_waitcnt lgkmcnt(0)", "s_barrier"] + [f"ds_read_b128 {vr(vCW+4*t)}, v{vL16} offset:{t*KB}" for t in range(3)] + fin[18:]
            tail += f"s_lshl_b32 s{sCc}, s{sA}, 18\ns_lshl_b32 s{sT1}, s{sRB}, 11\ns_add_u32 s{sCc}, s{sCc}, s{sT1}".split('\n')
            tail += f"s_mul_i32 s{sB}, s{sRB}, {112*KB}\ns_lshl_b32 s{sT1}, s{sA}, 11\ns_add_u32 s{sB}, s{sB}, s{sT1}".split('\n')
            G.ex = 196
            tail += ex_addr(G.ex)
            assert not side
            n_ = -(-len(tail) // 12)
            side = [lambda c=tail[i:i+n_]: [k(x) for x in c] for i in range(0, len(tail), n_)]
        for b in range(12):
            ks = 4*j + b // 3; t = b % 3
            acc = vr(vACC + 16*t, 16); w = ar(48*(j & 1) + 4*b); x = vr(vX + 4*ks)
            A, B = (x, w) if t == 1 else (w, x)
            k(f"v_mfma_f32_32x32x16_bf16 {acc}, {A}, {B}, {'0' if ks == 0 else acc}")
            if ks == 0 and t == 0: mark(k, 'm0')
            for _ in range(3):
                if rl:
                    t_ = k.lg(rl.pop(0)); nr += 1
                    if nr == 10: t10 = t_
            if side: side.pop(0)()
            if len(side) > 11 - b: side.pop(0)()
        if j < 7:
            assert not rl
            k.wait(lg=t10)
            dots(j + 1)
    while side: side.pop(0)()
    mark(k, 'loop')
    k.wait_all(vm=False)
    for t in range(3):
        c = vCW + 4*t
        acc = vr(vACC + 16*t, 16)
        A, B = (vr(vEXT), vr(c)) if t == 1 else (vr(c), vr(vEXT))
        k(f"v_mfma_f32_32x32x16_bf16 {acc}, {A}, {B}, {acc}")
    t_ = None
    for x in qk_tile(vACC, KVF(0), vRS, " sc1", 204) + v_tile(vACC+16, 0, vR, 212) + ex_kv(204, 212):
        if x.startswith('buffer'): t_ = k.vm(x)
        elif x.startswith('ds_'): k.lg(x)
        else: k(x)
    q_out(k, vACC + 32, vRS + 1, 232, vT)
    mark(k, 'st')
    return t_, None

def ph_qkv0k(k, late):
    vX, vACC, vST, vEXT, vRS, vT, vR = 16, 144, 192, 8, 6, 224, 232
    vXA, vWA, vXR, vTR, vTW, vCS, vCW, vONE = 10, 12, 196, 200, 202, 204, 208, 220
    sXS, sWR, sXL, sWL = 60, 56, sD, sE
    rb_128(k)
    k(f"s_and_b32 s{sA}, s{sC}, 15")
    k(f"v_bfe_u32 v{vXA}, v0, 3, 3\nv_lshlrev_b32 v{vXA}, 10, v{vXA}\nv_and_b32 v13, 7, v0\nv_bfe_u32 v14, v0, 4, 2\nv_xor_b32 v13, v13, v14")
    k(f"v_lshlrev_b32 v13, 4, v13\nv_add_u32 v{vXA}, v{vXA}, v13\nv_xor_b32 v{vXA+1}, 64, v{vXA}")
    k(f"v_bfe_u32 v{vWA}, v0, 2, 4\nv_mul_u32_u24 v{vWA}, 3072, v{vWA}\nv_and_b32 v13, 3, v0\nv_lshlrev_b32 v13, 4, v13\nv_add_u32 v{vWA}, v{vWA}, v13")
    if DIAG_W: k(f"v_bfe_u32 v{vWA}, v0, 3, 3\nv_mul_u32_u24 v{vWA}, 6144, v{vWA}\nv_and_b32 v13, 7, v0\nv_lshlrev_b32 v13, 4, v13\nv_add_u32 v{vWA}, v{vWA}, v13\ns_and_b32 s{sA}, s{sA}, 14")
    k(f"s_lshl_b32 s{sX}, s{sRB}, 15")
    k(f"s_mul_i32 s{sX2}, s{sW}, 49152\ns_lshl_b32 s{sT0}, s{sA}, 6\ns_add_u32 s{sX2}, s{sX2}, s{sT0}")
    if DIAG_W: k(f"s_and_b32 s{sA}, s{sG}, 1\ns_lshl_b32 s{sA}, s{sA}, 3\ns_and_b32 s{sT0}, s{sC}, 7\ns_add_u32 s{sA}, s{sA}, s{sT0}")
    k(f"s_lshl_b32 s{sXL}, s{sW}, 14\ns_add_u32 s{sXL}, s{sXL}, {96*KB}\ns_lshl_b32 s{sWL}, s{sW}, 11")
    k("s_waitcnt lgkmcnt(0)")
    if Q0_MARKS: mark(k, 'karg')
    k(f"s_mov_b32 s{sWR}, s64\ns_and_b32 s{sWR+1}, s65, 0xffff\ns_mov_b32 s{sWR+2}, {512*3072}\ns_mov_b32 s{sWR+3}, 0x20000")
    k(f"s_and_b32 s{sXS+1}, s{sXS+1}, 0xffff\ns_mov_b32 s{sXS+2}, {2*MB}\ns_mov_b32 s{sXS+3}, 0x20000")
    ct = {}; cn = {j: 0 for j in range(8)}
    k(f"s_lshl_b32 s{sCc}, s{sC4}, 2\ns_lshr_b32 s{sT3}, s{sC}, {Q0_RSH}\ns_add_u32 s{sCc}, s{sCc}, s{sT3}\ns_add_u32 s{sCc}, s{sCc}, s{sG}")
    def rot(j):
        k(f"s_add_u32 s{sT3}, s{sCc}, {j}\ns_and_b32 s{sT3}, s{sT3}, {7 if Q0_ROT else 0}")
        if not Q0_ROT: k(f"s_mov_b32 s{sT3}, {j}")
        k(f"s_lshl_b32 s{sS0}, s{sT3}, 7\ns_add_u32 s{sS0}, s{sS0}, s{sX}")
        k(f"s_mul_i32 s{sS1}, s{sT3}, {4*49152}\ns_add_u32 s{sS1}, s{sS1}, s{sX2}")
    def ldW(j, t):
        k(f"s_add_u32 m0, s{sWL}, {(8*j + t)*KB}\ns_add_u32 s{sT2}, s{sS1}, {(t+1)*1024}")
        ct[j] = k.vm(f"buffer_load_dwordx4 v{vWA}, {srd(sWR)}, s{sT2} offen lds"); cn[j] += 1
    def ldQ(j):
        k(f"s_add_u32 s{sT3}, s{sCc}, {j}\ns_and_b32 s{sT3}, s{sT3}, 7\ns_mul_i32 s{sT3}, s{sT3}, {4*49152}\ns_add_u32 m0, s{sW1K}, {(64 + 4*j)*KB}\ns_add_u32 s{sT2}, s{sT3}, s{sX2}")
        ct['q'] = k.vm(f"buffer_load_dwordx4 v{vWA}, {srd(sWR)}, s{sT2} offen lds")
    def ldX(j, i):
        if i == 0: rot(j)
        k(f"s_add_u32 m0, s{sXL}, {(j & 3)*4*KB + i*KB}\ns_add_u32 s{sT2}, s{sS0}, {i*8192}")
        ct[j] = k.vm(f"buffer_load_dwordx4 v{vXA + (i & 1)}, {srd(sXS)}, s{sT2} offen lds"); cn[j] += 1
    def chunk_loads(j):
        return [lambda i=i: ldX(j, i) for i in range(4)] + [lambda t=t: ldW(j, t) for t in range(2)]
    for f in chunk_loads(0): f()
    if Q0_MARKS: mark(k, 'up0')
    late(k)
    pack_decode(k)
    k(f"s_cmp_eq_u32 s{sW}, 0\ns_cselect_b64 s[90:91], s[68:69], s[70:71]")
    k(f"s_cmp_eq_u32 s{sW}, 2\ns_cselect_b64 s[90:91], s[72:73], s[90:91]")
    k(f"s_cmp_eq_u32 s{sW}, 3\ns_cselect_b64 s[90:91], s[66:67], s[90:91]\ns_cselect_b32 s{sT0}, 16, 56")
    k(f"s_mul_i32 s{sT1}, s{sT0}, s{sU}\ns_sub_u32 s{sT0}, s{sT0}, 1")
    k(f"v_and_b32 v254, 63, v0\nv_min_u32 v254, s{sT0}, v254\nv_add_u32 v254, s{sT1}, v254\nv_lshlrev_b32 v254, 7, v254")
    pk = G.pk = Pack(k)
    k(f"s_and_b32 s{sT0}, s{sC}, 7\ns_and_b32 s{sT1}, s{sC}, 15")
    k("v_and_b32 v13, 15, v0\nv_min_u32 v14, 13, v13")
    k(f"s_lshr_b32 s{sT2}, s{sT0}, 1\ns_add_u32 s{sT2}, s{sT2}, 176\nv_lshl_add_u32 v252, v14, 2, s{sT2}")
    k(f"s_mul_i32 s{sT2}, s{sT1}, 7\ns_add_u32 s{sT3}, s{sT2}, 6\ns_lshr_b32 s{sT2}, s{sT2}, 2\ns_lshr_b32 s{sT3}, s{sT3}, 2")
    k(f"v_lshrrev_b32 v14, 2, v13\nv_add_u32 v14, s{sT2}, v14\nv_min_u32 v14, s{sT3}, v14\nv_and_b32 v15, 3, v13\nv_mul_u32_u24 v15, 28, v15")
    k("v_add3_u32 v14, v14, v15, 48")
    k("v_and_b32 v15, 16, v0\nv_cmp_ne_u32 vcc, 0, v15\nv_cndmask_b32 v252, v252, v14, vcc")
    k(f"s_add_u32 s{sT0}, s{sT0}, 160\nv_and_b32 v14, 1, v13\nv_lshl_add_u32 v251, v14, 3, s{sT0}")
    k(f"s_lshr_b32 s{sT1}, s{sT1}, 1\nv_mul_u32_u24 v14, 24, v14\nv_lshrrev_b32 v15, 1, v13\nv_min_u32 v15, 2, v15\nv_lshlrev_b32 v15, 3, v15")
    k(f"v_add3_u32 v14, v14, v15, s{sT1}")
    k("v_cndmask_b32 v251, v251, v14, vcc")
    k(f"v_cmp_gt_u32 vcc, 512, v{vL16}\nv_cndmask_b32 v252, v251, v252, vcc\nv_lshlrev_b32 v252, 7, v252\nv_accvgpr_write_b32 a213, v252")
    if WARM:
        k("s_getpc_b64 s[88:89]")
        k.label("L_pcw")
        k(f"s_lshl_b32 s{sT0}, s{sC}, 1\ns_add_u32 s{sT0}, s{sT0}, s{sW}\ns_and_b32 s{sT0}, s{sT0}, 63\ns_lshl_b32 s{sT0}, s{sT0}, 10\ns_min_u32 s{sT0}, s{sT0}, L_end-L_pcw-1024")
        k(f"v_add_u32 v245, s{sT0}, v{vL16}")
        k(f"v_min_u32 v244, {(WS_PAGES-1)*16}, v{vL16}\nv_lshlrev_b32 v244, 17, v244")
        k(f"s_cmp_eq_u32 s{sW}, 1\ns_cselect_b64 s[88:89], s[{sAUX}:{sAUX+1}], s[88:89]")
        k(f"s_cmp_eq_u32 s{sW}, 0\ns_cselect_b64 s[88:89], s[{sWS}:{sWS+1}], s[88:89]\ns_cselect_b64 vcc, -1, 0")
        k("v_cndmask_b32 v245, v245, v244, vcc")
    if PK_Q0: pk.issue(*range(8))
    aSEL, aCS = 96, 100
    k(f"v_and_b32 v13, 31, v0\nv_bfe_u32 v14, v0, 1, 3\nv_bfe_u32 v15, v0, 5, 1\nv_xor_b32 v14, v14, v15\nv_lshlrev_b32 v14, 4, v14\nv_lshl_add_u32 v13, v13, 7, v14")
    for e in range(4):
        k(f"v_xor_b32 v{vXR+e}, {e*32}, v13\nv_add_u32 v{vXR+e}, s{sXL}, v{vXR+e}")
    tr_addr(k, vTR, 13)
    k(f"v_add_u32 v{vTR+1}, {64*KB}, v{vTR}")
    k(f"v_mov_b32 v{vONE}, 0x3f803f80\nv_add_u32 v255, s84, v{vTR}\nv_accvgpr_write_b32 a212, v255")
    for r in range(192, 196): k(f"v_accvgpr_write_b32 a{r}, v{vONE}")
    k(f"v_and_b32 v13, 15, v0\nv_bfe_u32 v14, v0, 4, 1\nv_cmp_eq_u32 vcc, v13, v14\nv_cndmask_b32 v13, 0, v{vONE}, vcc")
    for r in range(4): k(f"v_accvgpr_write_b32 a{aSEL+r}, v13")
    for r in range(vST, vST+4): k(f"v_mov_b32 v{r}, 0")
    def reads(j):
        o = [f"ds_read_b128 {vr(vX + 16*j + 4*e)}, v{vXR+e} offset:{(j & 3)*4*KB}" for e in range(4)]
        for b in range(8):
            off = (8*j + b)*KB; r = 32*(j & 1) + 4*b
            o.append(f"ds_read_b64_tr_b16 {ar(r,2)}, v{vTR} offset:{off}")
            o.append(f"ds_read_b64_tr_b16 {ar(r+2,2)}, v{vTR} offset:{off+256}")
        return o
    def dots(j):
        for i in range(16):
            r = vX + 16*j + i
            k(f"v_dot2c_f32_bf16 v{vST + 2*(i & 1)}, v{vONE}, v{r}\nv_dot2c_f32_bf16 v{vST + 1 + 2*(i & 1)}, v{r}, v{r}")
    def csum(t, w, first):
        c = ar(aCS + 4*t)
        k(f"v_mfma_f32_16x16x32_bf16 {c}, {ar(aSEL)}, {w}, {'0' if first else c}")
    def extw(t, d):
        return [f"v_accvgpr_read_b32 v{d+2}, a{aCS+4*t}", f"v_accvgpr_read_b32 v{d+3}, a{aCS+4*t+1}", f"v_permlane16_swap_b32 v{d+2}, v{d+3}",
                f"v_cndmask_b32 v{d+2}, 0, v{d+2}, vcc", f"v_cvt_pk_bf16_f32 v{d+1}, v{d+2}, 0", f"v_lshlrev_b32 v{d+3}, 16, v{d+1}",
                f"v_sub_f32 v{d+2}, v{d+2}, v{d+3}", f"v_cvt_pk_bf16_f32 v{d}, v{d+3}, v{d+2}", f"v_mov_b32 v{d+2}, 0", f"v_mov_b32 v{d+3}, 0"]
    side = []
    for x in att_setup(0): k(x)
    for j in range(1, Q0_UP):
        for f in chunk_loads(j): f()
    if WARM: k.vm(f"global_load_dword v255, v245, s[88:89]")
    k.wait(vm=ct[0])
    k("s_barrier")
    mark(k, 'd0')
    rl = reads(0)
    for x in rl[:4]: t4 = k.lg(x)
    for x in rl[4:]: k.lg(x)
    k.wait(lg=t4)
    dots(0)
    def qread(ks):
        r = 64 + 4*(ks % 8)
        k.lg(f"ds_read_b64_tr_b16 {ar(r,2)}, v{vTR+1} offset:{ks*KB}")
        return k.lg(f"ds_read_b64_tr_b16 {ar(r+2,2)}, v{vTR+1} offset:{ks*KB+256}")
    qt = {}
    for j in range(8):
        for c_ in Q0_SCHED[j]:
            assert c_ - 4 <= j
            side += chunk_loads(c_)
        if j == 1: side.append(lambda: k(f"s_add_u32 s{sTAG}, s{sTAG}, 0x7f4a7c15\ns_addc_u32 s{sTAG+1}, s{sTAG+1}, 0x9e3779b9"))
        side += [lambda c=c: ldQ(c) for c in range(8) if Q0K_Q[c] == j]
        assert min(PK_AT) >= 3
        side += [lambda i=i: pk.issue(i) for i in range(8) if PK_AT[i] == j]
        k.wait_all(vm=False)
        rl = []
        if j < 7:
            assert cn[j+1] == 6
            k.wait(vm=ct[j+1]); k("s_barrier")
            rl = reads(j + 1)
        else:
            assert not side
            k.wait(vm=ct['q']); k("s_barrier")
            G.ex = 212
            fin = fin_stats(vST, vEXT, vRS)[NTREE:] + qkv_consts(vT, vRS, vR)
            tail = [f"v_add_f32 v{vST}, v{vST}, v{vST+2}", f"v_add_f32 v{vST+1}, v{vST+1}, v{vST+3}"] + fin
            tail += f"s_lshl_b32 s{sCc}, s{sA}, 18\ns_lshl_b32 s{sT1}, s{sRB}, 11\ns_add_u32 s{sCc}, s{sCc}, s{sT1}".split('\n')
            n_ = -(-len(tail) // 8)
            side = [lambda c=tail[i:i+n_]: [k(x) for x in c] for i in range(0, len(tail), n_)]
        t4 = None; nr = 0
        for b in range(8):
            ks = 4*j + b // 2; t = b % 2
            acc = vr(vACC + 16*t, 16); w = ar(32*(j & 1) + 4*b); x = vr(vX + 4*ks)
            if j == 7: csum(t, w, False)
            A, B = (x, w) if t == 1 else (w, x)
            k(f"v_mfma_f32_32x32x16_bf16 {acc}, {A}, {B}, {'0' if ks == 0 else acc}")
            if ks == 0 and t == 0: mark(k, 'm0')
            for _ in range(3):
                if rl:
                    t_ = k.lg(rl.pop(0)); nr += 1
                    if nr == 4: t4 = t_
            if j < 7: csum(t, w, ks == 0)
            if j == 7 and b >= 4: qt[b - 4] = qread(b - 4)
            if side: side.pop(0)()
            if len(side) > 7 - b: side.pop(0)()
        while side: side.pop(0)()
        if j < 7:
            assert not rl
            k.wait(lg=t4)
            dots(j + 1)
    mark(k, 'loop')
    E = 204
    work = extw(0, E) + extw(1, E+4)
    work += [f"v_mfma_f32_32x32x16_bf16 {vr(vACC,16)}, {vr(E)}, {vr(vEXT)}, {vr(vACC,16)}",
             f"v_mfma_f32_32x32x16_bf16 {vr(vACC+16,16)}, {vr(vEXT)}, {vr(E+4)}, {vr(vACC+16,16)}"] + ex_addr(G.ex)
    work += qk_tile(vACC, KVF(0), vRS, " sc1", 192) + v_tile(vACC+16, 0, vR, E) + ["#kv"] + ex_kv(192, E)
    work += [f"#pk{i}" for i in range(8) if PK_AT[i] == 8]
    st = {}
    def put(x):
        if x == '#kv': st['kv'] = st['t']
        elif x.startswith('#pk'): pk.issue(int(x[3:]))
        elif x.startswith('buffer'): st['t'] = k.vm(x)
        elif x.startswith('ds_'): k.lg(x)
        else: k(x)
    for _ in range(Q0K_LEAD): put(work.pop(0))
    acc = vr(vACC + 32, 16)
    for ks in range(32):
        w = ar(64 + 4*(ks % 8))
        k.wait(lg=qt[ks])
        k(f"v_mfma_f32_32x32x16_bf16 {acc}, {w}, {vr(vX + 4*ks)}, {'0' if ks == 0 else acc}")
        if ks + 4 < 32: qt[ks + 4] = qread(ks + 4)
        csum(2, w, ks == 0)
        for _ in range(Q0K_EPI):
            if work: put(work.pop(0))
        if ks == Q0K_FLAG:
            assert not work
            kv_flag(k, 0, st['kv'])
    while work: put(work.pop(0))
    for x in extw(2, 220): k(x)
    k(f"v_mfma_f32_32x32x16_bf16 {acc}, {vr(220)}, {vr(vEXT)}, {acc}")
    q_out(k, vACC + 32, vRS + 1, 232, vT)
    mark(k, 'st')
    return st['kv'], None

def ph_qkv0g(k, late):
    vX, vACC, vST, vEXT, vRS, vT, vR = 16, 144, 192, 8, 6, 224, 232
    vXA, vWA, vXR, vTR, vCW, vG = 10, 12, 224, 228, 192, 192
    aCS = 96
    sXS, sWR, sXL, sWL = 60, 56, sD, sE
    rb_128(k)
    k(f"s_and_b32 s{sA}, s{sC}, 15")
    k(f"v_bfe_u32 v{vXA}, v0, 3, 3\nv_lshlrev_b32 v{vXA}, 10, v{vXA}\nv_and_b32 v13, 7, v0\nv_bfe_u32 v14, v0, 4, 2\nv_xor_b32 v13, v13, v14")
    k(f"v_lshlrev_b32 v13, 4, v13\nv_add_u32 v{vXA}, v{vXA}, v13\nv_xor_b32 v{vXA+1}, 64, v{vXA}")
    k(f"v_bfe_u32 v{vWA}, v0, 2, 4\nv_mul_u32_u24 v{vWA}, 3072, v{vWA}\nv_and_b32 v13, 3, v0\nv_lshlrev_b32 v13, 4, v13\nv_add_u32 v{vWA}, v{vWA}, v13")
    if DIAG_W: k(f"v_bfe_u32 v{vWA}, v0, 3, 3\nv_mul_u32_u24 v{vWA}, 6144, v{vWA}\nv_and_b32 v13, 7, v0\nv_lshlrev_b32 v13, 4, v13\nv_add_u32 v{vWA}, v{vWA}, v13\ns_and_b32 s{sA}, s{sA}, 14")
    k(f"s_lshl_b32 s{sX}, s{sRB}, 15")
    k(f"s_mul_i32 s{sX2}, s{sW}, 49152\ns_lshl_b32 s{sT0}, s{sA}, 6\ns_add_u32 s{sX2}, s{sX2}, s{sT0}")
    if DIAG_W: k(f"s_and_b32 s{sA}, s{sG}, 1\ns_lshl_b32 s{sA}, s{sA}, 3\ns_and_b32 s{sT0}, s{sC}, 7\ns_add_u32 s{sA}, s{sA}, s{sT0}")
    k(f"s_lshl_b32 s{sXL}, s{sW}, 14\ns_add_u32 s{sXL}, s{sXL}, {96*KB}\ns_mul_i32 s{sWL}, s{sW}, 3072")
    k("s_waitcnt lgkmcnt(0)")
    if Q0_MARKS: mark(k, 'karg')
    k(f"s_mov_b32 s{sWR}, s64\ns_and_b32 s{sWR+1}, s65, 0xffff\ns_mov_b32 s{sWR+2}, {512*3072}\ns_mov_b32 s{sWR+3}, 0x20000")
    k(f"s_and_b32 s{sXS+1}, s{sXS+1}, 0xffff\ns_mov_b32 s{sXS+2}, {2*MB}\ns_mov_b32 s{sXS+3}, 0x20000")
    ct = {}; cn = {j: 0 for j in range(8)}
    k(f"s_lshl_b32 s{sCc}, s{sC4}, 2\ns_lshr_b32 s{sT3}, s{sC}, {Q0_RSH}\ns_add_u32 s{sCc}, s{sCc}, s{sT3}\ns_add_u32 s{sCc}, s{sCc}, s{sG}")
    def rot(j):
        k(f"s_add_u32 s{sT3}, s{sCc}, {j}\ns_and_b32 s{sT3}, s{sT3}, {7 if Q0_ROT else 0}")
        if not Q0_ROT: k(f"s_mov_b32 s{sT3}, {j}")
        k(f"s_lshl_b32 s{sS0}, s{sT3}, 7\ns_add_u32 s{sS0}, s{sS0}, s{sX}")
        k(f"s_mul_i32 s{sS1}, s{sT3}, {4*49152}\ns_add_u32 s{sS1}, s{sS1}, s{sX2}")
    def ldW(j, t):
        k(f"s_add_u32 m0, s{sWL}, {(12*j + t)*KB}\ns_add_u32 s{sT2}, s{sS1}, {((t+1) % 3)*1024}")
        ct[j] = k.vm(f"buffer_load_dwordx4 v{vWA}, {srd(sWR)}, s{sT2} offen lds"); cn[j] += 1
    def ldX(j, i):
        if i == 0: rot(j)
        k(f"s_add_u32 m0, s{sXL}, {(j & 3)*4*KB + i*KB}\ns_add_u32 s{sT2}, s{sS0}, {i*8192}")
        ct[j] = k.vm(f"buffer_load_dwordx4 v{vXA + (i & 1)}, {srd(sXS)}, s{sT2} offen lds"); cn[j] += 1
    def chunk_loads(j):
        return [lambda i=i: ldX(j, i) for i in range(4)] + [lambda t=t: ldW(j, t) for t in range(3)]
    rowmajor_addr(k, 236, sT0)
    k.vm(f"buffer_load_dwordx4 {vr(vG)}, v236, {srd(sXS)}, s{sT0} offen")
    tres = k.vm(f"buffer_load_dwordx4 {vr(vG+4)}, v236, {srd(sXS)}, s{sT0} offen offset:32")
    for f in chunk_loads(0): f()
    if Q0_MARKS: mark(k, 'up0')
    late(k)
    pack_decode(k)
    k(f"s_cmp_eq_u32 s{sW}, 0\ns_cselect_b64 s[90:91], s[68:69], s[70:71]")
    k(f"s_cmp_eq_u32 s{sW}, 2\ns_cselect_b64 s[90:91], s[72:73], s[90:91]")
    k(f"s_cmp_eq_u32 s{sW}, 3\ns_cselect_b64 s[90:91], s[66:67], s[90:91]\ns_cselect_b32 s{sT0}, 16, 56")
    k(f"s_mul_i32 s{sT1}, s{sT0}, s{sU}\ns_sub_u32 s{sT0}, s{sT0}, 1")
    k(f"v_and_b32 v254, 63, v0\nv_min_u32 v254, s{sT0}, v254\nv_add_u32 v254, s{sT1}, v254\nv_lshlrev_b32 v254, 7, v254")
    pk = G.pk = Pack(k)
    k(f"s_and_b32 s{sT0}, s{sC}, 7\ns_and_b32 s{sT1}, s{sC}, 15")
    k("v_and_b32 v13, 15, v0\nv_min_u32 v14, 13, v13")
    k(f"s_lshr_b32 s{sT2}, s{sT0}, 1\ns_add_u32 s{sT2}, s{sT2}, 176\nv_lshl_add_u32 v252, v14, 2, s{sT2}")
    k(f"s_mul_i32 s{sT2}, s{sT1}, 7\ns_add_u32 s{sT3}, s{sT2}, 6\ns_lshr_b32 s{sT2}, s{sT2}, 2\ns_lshr_b32 s{sT3}, s{sT3}, 2")
    k(f"v_lshrrev_b32 v14, 2, v13\nv_add_u32 v14, s{sT2}, v14\nv_min_u32 v14, s{sT3}, v14\nv_and_b32 v15, 3, v13\nv_mul_u32_u24 v15, 28, v15")
    k("v_add3_u32 v14, v14, v15, 48")
    k("v_and_b32 v15, 16, v0\nv_cmp_ne_u32 vcc, 0, v15\nv_cndmask_b32 v252, v252, v14, vcc")
    k(f"s_add_u32 s{sT0}, s{sT0}, 160\nv_and_b32 v14, 1, v13\nv_lshl_add_u32 v251, v14, 3, s{sT0}")
    k(f"s_lshr_b32 s{sT1}, s{sT1}, 1\nv_mul_u32_u24 v14, 24, v14\nv_lshrrev_b32 v15, 1, v13\nv_min_u32 v15, 2, v15\nv_lshlrev_b32 v15, 3, v15")
    k(f"v_add3_u32 v14, v14, v15, s{sT1}")
    k("v_cndmask_b32 v251, v251, v14, vcc")
    k(f"v_cmp_gt_u32 vcc, 512, v{vL16}\nv_cndmask_b32 v252, v251, v252, vcc\nv_lshlrev_b32 v252, 7, v252\nv_accvgpr_write_b32 a213, v252")
    if WARM:
        k("s_getpc_b64 s[88:89]")
        k.label("L_pcw")
        k(f"s_lshl_b32 s{sT0}, s{sC}, 1\ns_add_u32 s{sT0}, s{sT0}, s{sW}\ns_and_b32 s{sT0}, s{sT0}, 63\ns_lshl_b32 s{sT0}, s{sT0}, 10\ns_min_u32 s{sT0}, s{sT0}, L_end-L_pcw-1024")
        k(f"v_add_u32 v245, s{sT0}, v{vL16}")
        k(f"v_min_u32 v244, {(WS_PAGES-1)*16}, v{vL16}\nv_lshlrev_b32 v244, 17, v244")
        k(f"s_cmp_eq_u32 s{sW}, 1\ns_cselect_b64 s[88:89], s[{sAUX}:{sAUX+1}], s[88:89]")
        k(f"s_cmp_eq_u32 s{sW}, 0\ns_cselect_b64 s[88:89], s[{sWS}:{sWS+1}], s[88:89]\ns_cselect_b64 vcc, -1, 0")
        k("v_cndmask_b32 v245, v245, v244, vcc")
    if PK_Q0: pk.issue(*range(8))
    k(f"v_and_b32 v13, 31, v0\nv_bfe_u32 v14, v0, 1, 3\nv_bfe_u32 v15, v0, 5, 1\nv_xor_b32 v14, v14, v15\nv_lshlrev_b32 v14, 4, v14\nv_lshl_add_u32 v13, v13, 7, v14")
    tr_addr(k, 255, 14)
    for e in range(4):
        k(f"s_add_u32 s{sT0}, s{sW}, {e}\ns_and_b32 s{sT0}, s{sT0}, 3\ns_lshl_b32 s{sT1}, s{sT0}, 5\ns_mul_i32 s{sT0}, s{sT0}, 3072")
        k(f"v_xor_b32 v{vXR+e}, s{sT1}, v13\nv_add_u32 v{vXR+e}, s{sXL}, v{vXR+e}")
        k(f"v_add_u32 v{vTR+e}, s{sT0}, v255\nv_add_u32 v{vTR+4+e}, {48*KB}, v{vTR+e}")
    k(f"v_mov_b32 v14, 0x3f803f80\nv_add_u32 v255, s84, v255\nv_accvgpr_write_b32 a212, v255")
    for r in range(192, 196): k(f"v_accvgpr_write_b32 a{r}, v14")
    def reads(j):
        o = []
        for e in range(4):
            o.append(f"ds_read_b128 {vr(vX + 16*j + 4*e)}, v{vXR+e} offset:{(j & 3)*4*KB}")
            for t in range(3):
                off = (12*(j & 3) + t)*KB; r = 48*(j & 1) + 4*(3*e + t)
                o.append(f"ds_read_b64_tr_b16 {ar(r,2)}, v{vTR + 4*(j >> 2) + e} offset:{off}")
                o.append(f"ds_read_b64_tr_b16 {ar(r+2,2)}, v{vTR + 4*(j >> 2) + e} offset:{off+256}")
        return o
    side = []
    if Q0_MARKS: mark(k, 'alu')
    for j in range(1, Q0_UP):
        for f in chunk_loads(j): f()
    if WARM and WARM_AT == 1: k.vm(f"global_load_dword v255, v245, s[88:89]")
    if Q0_MARKS: mark(k, 'iss')
    k.wait(vm=ct[0])
    k("s_barrier")
    mark(k, 'd0')
    for x in reads(0): k.lg(x)
    U = vG + 8
    st_ = res_unpack(U, vG)
    st_ += [f"v_add_f32 v{vG}, v{U}, v{U+1}", f"v_mul_f32 v{vG+2}, v{U}, v{U}", f"v_add_f32 v{vG+1}, v{U+2}, v{U+3}", f"v_mul_f32 v{vG+3}, v{U+1}, v{U+1}",
            f"v_fmac_f32 v{vG+2}, v{U+2}, v{U+2}", f"v_fmac_f32 v{vG+3}, v{U+3}, v{U+3}"]
    for i in range(4, 16, 2):
        st_ += [f"v_add_f32 v{vG}, v{vG}, v{U+i}", f"v_fmac_f32 v{vG+2}, v{U+i}, v{U+i}", f"v_add_f32 v{vG+1}, v{vG+1}, v{U+i+1}", f"v_fmac_f32 v{vG+3}, v{U+i+1}, v{U+i+1}"]
    st_ += [f"v_add_f32 v{vG}, v{vG}, v{vG+1}", f"v_add_f32 v{vG+2}, v{vG+2}, v{vG+3}", f"v_mov_b32 v{vG+1}, v{vG}", f"v_mov_b32 v{vG+3}, v{vG+2}",
            f"v_permlane32_swap_b32 v{vG}, v{vG+1}", f"v_permlane32_swap_b32 v{vG+2}, v{vG+3}",
            f"v_add_f32 v{vG}, v{vG}, v{vG+1}", f"v_add_f32 v{vG+2}, v{vG+2}, v{vG+3}"]
    for x in st_[:Q0_ST0]: k(x)
    st_ = st_[Q0_ST0:]
    def gran():
        k(f"s_add_u32 s{sTAG}, s{sTAG}, 0x7f4a7c15\ns_addc_u32 s{sTAG+1}, s{sTAG+1}, 0x9e3779b9")
        k(f"v_mov_b32 v{vG+1}, s{sTAG}\nv_mov_b32 v{vG+3}, s{sTAG+1}")
        k(f"s_lshr_b32 s{sT0}, s{sDST}, 2\ns_add_u32 s{sT0}, s{sT0}, {SG}\ns_mov_b32 exec_hi, 0")
        k.vm(f"buffer_store_dwordx4 {vr(vG)}, v{vL16}, {srd(sWS)}, s{sT0} offen sc1")
        k("s_mov_b64 exec, -1")
        k(f"s_lshl_b32 s{sF}, s{sRB}, 13\ns_add_u32 s{sF}, s{sF}, {SG}\ns_add_u32 s{sB}, s{sF}, 4096")
    cmpg = []
    for i in range(8):
        cmpg += [f"v_xor_b32 v13, s{sTAG}, v{vG+4*i+1}", f"v_xor_b32 v14, s{sTAG+1}, v{vG+4*i+3}",
                 ("v_or_b32 v15, v13, v14" if i == 0 else "v_or3_b32 v15, v13, v14, v15")]
    apg = APoll(k, [f"buffer_load_dwordx4 {vr(vG+4*i)}, v{vL16}, {srd(sWS)}, s{sF if i < 4 else sB} offen offset:{(i & 3)*KB} sc1" for i in range(8)],
                "\n".join(cmpg + ["v_cmp_ne_u32 vcc, 0, v15"]))
    for j in range(8):
        if j == 0 and st_:
            n_ = -(-len(st_) // 8)
            side += [lambda c=st_[i:i+n_]: [k(x) for x in c] for i in range(0, len(st_), n_)]
        if j == 0: side.append(gran)
        for c_ in Q0_SCHED[j]:
            assert c_ - 4 <= j
            side += chunk_loads(c_)
        if WARM and WARM_AT == j + 2: side.append(lambda: k.vm(f"global_load_dword v255, v245, s[88:89]"))
        if j == Q0_GLD: side += [lambda x=x: setattr(apg, 't', k.vm(x)) for x in apg.loads]
        if PK_EARLY: side += [lambda i=i: pk.issue(i) for i in range(8) if PK_AT[i] == j]
        k.wait_all(vm=False)
        rl = []
        if j < 7:
            assert cn[j+1] == 7
            k.wait(vm=ct[j+1]); k("s_barrier")
            if j in Q0_MARKJ: mark(k, f'c{j+1}')
            rl = reads(j + 1)
        mm = [('c', t) for t in range(3)] + [('m', b) for b in range(12)]
        if j == 7:
            apg.check()
            tail = []
            n = 8
            while n > 1:
                h = n // 2
                for i in range(h):
                    tail += [f"v_add_f32 v{vG+4*i}, v{vG+4*i}, v{vG+4*(i+h)}", f"v_add_f32 v{vG+4*i+2}, v{vG+4*i+2}, v{vG+4*(i+h)+2}"]
                n = h
            tail += [f"v_mov_b32 v{vG+1}, v{vG+2}"]
            tail += f"s_lshr_b32 s{sT0}, s{sW}, 1\ns_lshl_b32 s{sT0}, s{sT0}, 9\ns_and_b32 s{sT1}, s{sW}, 1\ns_lshl_b32 s{sT1}, s{sT1}, 3\ns_add_u32 s{sT0}, s{sT0}, s{sT1}".split('\n')
            tail += [f"v_and_b32 v13, 0x1f0, v{vL16}", f"v_add_u32 v13, s{sT0}, v13"]
            C = vG + 8
            for t in range(3):
                tail += [f"v_accvgpr_read_b32 v14, a{aCS+16*t}", f"v_cvt_pk_bf16_f32 v{C+2*t+1}, v14, 0", f"v_lshlrev_b32 v15, 16, v{C+2*t+1}",
                         "v_sub_f32 v14, v14, v15", f"v_cvt_pk_bf16_f32 v{C+2*t}, v15, v14", f"ds_write_b64 v13, {vr(C+2*t,2)} offset:{t*KB}"]
            fin = fin_stats(vST, vEXT, vRS)[NTREE:] + qkv_consts(vT, vRS, vR)
            tail += fin[:18]
            tail += ["s_waitcnt lgkmcnt(0)", "s_barrier"] + [f"ds_read_b128 {vr(C+4*t)}, v{vL16} offset:{t*KB}" for t in range(3)] + fin[18:]
            tail += f"s_lshl_b32 s{sCc}, s{sA}, 18\ns_lshl_b32 s{sT1}, s{sRB}, 11\ns_add_u32 s{sCc}, s{sCc}, s{sT1}".split('\n')
            tail += f"s_mul_i32 s{sB}, s{sRB}, {112*KB}\ns_lshl_b32 s{sT1}, s{sA}, 11\ns_add_u32 s{sB}, s{sB}, s{sT1}".split('\n')
            n_ = -(-len(tail) // 15)
            side += [lambda c=tail[i:i+n_]: [k(x) for x in c] for i in range(0, len(tail), n_)]
        for p, (kind, b) in enumerate(mm):
            if kind == 'c':
                acc = ar(aCS + 16*b, 16)
                k(f"v_mfma_f32_32x32x16_bf16 {acc}, {ar(192)}, {ar(48*(j & 1) + 4*b)}, {'0' if j == 0 else acc}")
            else:
                ks = 4*j + b // 3; t = b % 3
                acc = vr(vACC + 16*t, 16); w = ar(48*(j & 1) + 4*b); x = vr(vX + 4*ks)
                A, B = (x, w) if t == 1 else (w, x)
                k(f"v_mfma_f32_32x32x16_bf16 {acc}, {A}, {B}, {'0' if ks == 0 else acc}")
            if j == 0 and p == 0: mark(k, 'm0')
            for _ in range(2):
                if rl: k.lg(rl.pop(0))
            if side and (j == 7 or p % 2 == 0 or 2 * len(side) > 15 - p): side.pop(0)()
            if len(side) > 14 - p: side.pop(0)()
        assert not rl
    while side: side.pop(0)()
    mark(k, 'loop')
    k.wait_all(vm=False)
    for t in range(3):
        c = vG + 8 + 4*t
        acc = vr(vACC + 16*t, 16)
        A, B = (vr(vEXT), vr(c)) if t == 1 else (vr(c), vr(vEXT))
        k(f"v_mfma_f32_32x32x16_bf16 {acc}, {A}, {B}, {acc}")
    t_ = None
    for x in qk_tile(vACC, KVF(0), vRS, " sc1", vX) + v_tile(vACC+16, 0, vR, vX+8) + qk_tile(vACC+32, QF, vRS+1, " sc1", vX+16):
        if x.startswith('buffer'): t_ = k.vm(x)
        else: k(x)
    mark(k, 'st')
    return t_, t_

def ph_qkv(k, L, ring, b0):
    vX, vACC, vST, vEXT, vRS, vT, vR = 16, 144, 192, 8, 6, 224, 232
    rb_128(k)
    k(f"s_and_b32 s{sA}, s{sC}, 15")
    k(f"s_lshl_b32 s{sX}, s{sRB}, 15\ns_add_u32 s{sX}, s{sX}, {XF}")
    set_lds_bases(k)
    QE = QKV_QE
    seq = [(ks, t) for ks in range(33) for t in ((0, 1, 2) if ks < QE else (0, 1))] + [(ks, 2) for ks in range(QE, 33)]
    ops = [dict(b=b0 + (2*ks + t if t < 2 else 66 + ks), bmin=b0, bmax=b0 + 98, xi=(ks if ks < 32 else None), x=(vr(vX+4*ks) if ks < 32 else vr(vEXT)),
                acc=vr(vACC+16*t, 16), swap=(t == 1), first=(ks == 0)) for ks, t in seq]
    xq = XLoader(k, 32, lambda i: vr(vX+4*i), lin_src(k))
    res = {}
    se = stats_emitters(k, vST, res)
    k(f"s_lshl_b32 s{sCc}, s{sA}, 18\ns_lshl_b32 s{sT1}, s{sRB}, 11\ns_add_u32 s{sCc}, s{sCc}, s{sT1}")
    k(f"s_mul_i32 s{sB}, s{sRB}, {112*KB}\ns_lshl_b32 s{sT1}, s{sA}, 11\ns_add_u32 s{sB}, s{sB}, s{sT1}")
    assert ring.issued == ring.total
    g = Gemm(k, ring, ops, {0})
    g.start()
    ring.issue_n(4)
    publish_local(k, G.tx)
    ring.issue_n(4)
    G.ex = 216
    su = [x.replace('v13', 'v246').replace('v14', 'v247') for x in att_setup(L)] + ex_addr(G.ex)
    su += [f"s_lshl_b32 s{sE}, s{sA}, 11", f"s_add_u32 s{sE}, s{sE}, s{sB}", f"s_add_u32 s{sE}, s{sE}, {HF + 32*KB}"]
    k(f"s_lshl_b32 s{sF}, s{sRB}, 7\ns_add_u32 s{sF}, s{sF}, {FLOC(L-1, 8)}")
    poll16(k)
    aps = stats_poll(k, FLOC(L-1,7) - FLOC(L-1,8))
    fin = fin_stats(vST, vEXT, vRS) + qkv_consts(vT, vRS, vR)
    full = qk_tile(vACC, KVF(L), vRS, " sc1", vST) + v_tile(vACC+16, L, vR, vST+16)
    alu_ = [x for x in full if x.startswith('v_')]
    glob = [x for x in full if not x.startswith('v_')]
    lo_ = [f"buffer_store_dwordx4 {vr(vST)}, v{vL16}, {srd(sWS)}, s{sE} offen",
           f"buffer_store_dwordx4 {vr(vST+4)}, v{vL16}, {srd(sWS)}, s{sE} offen offset:2048",
           f"buffer_store_dwordx4 {vr(vST+16)}, v{G.ex+6}, {srd(sWS)}, s{sE} offen offset:1024",
           f"buffer_store_dwordx4 {vr(vST+20)}, v{G.ex+6}, {srd(sWS)}, s{sE} offen offset:1536"]
    epi = []
    for q_ in range(4): epi += alu_[12*q_:12*q_+12] + ([lo_[q_]] if KV_LOC else [])
    epi += ["#loc"] + glob + ex_kv(vST, vST+16)
    st = dict(i=0, j=0, t=None, loc=None)
    def put(x):
        if x == '#loc': st['loc'] = st['t']
        elif x.startswith('buffer'): st['t'] = k.vm(x)
        elif x.startswith('ds_'): k.lg(x)
        else: k(x)
    def filler(m):
        if aps and m == 4: aps.issue()
        if m == 22:
            if aps: aps.check()
            for e in se: e()
        if m < 10 or m > 22:
            for _ in range(3 if m < 10 else 4):
                if su: k(su.pop(0))
        if 44 <= m < 64 + QE:
            assert not su
            if st['i'] == 0: k.wait(vm=res['t'])
            for _ in range(3):
                if st['i'] < len(fin): k(fin[st['i']]); st['i'] += 1
        if m >= 68 + QE:
            for _ in range(QKV_EPI):
                if st['j'] < len(epi): put(epi[st['j']]); st['j'] += 1
    g.run(xq, n0=8, filler=filler)
    while st['j'] < len(epi):
        put(epi[st['j']]); st['j'] += 1
    assert st['i'] == len(fin)
    if KV_LOC and QF_AT == 0: q_flag(k, L, st['loc'])
    q_out(k, vACC + 32, vRS + 1, vST + 8, vT)
    if KV_LOC and QF_AT == 1: q_flag(k, L, st['loc'])
    mark(k, 'st')
    return st['t'], st['loc']

def code_touch(k, vd, skip=0):
    if not CODE_TOUCH: return
    pc = k.newlabel('pc')
    k(f"s_getpc_b64 s[{sPC}:{sPC+1}]")
    k.label(pc)
    k(f"s_min_u32 s{sSPIN}, s{sCT}, L_end-{pc}-1024\ns_add_u32 s{sPC}, s{sPC}, s{sSPIN}\ns_addc_u32 s{sPC+1}, s{sPC+1}, 0")
    k.vm(f"global_load_dword v{vd}, v{vL16}, s[{sPC}:{sPC+1}] offset:{skip}")

def flag_touch(k, L, va, vd):
    if not FL_TOUCH: return
    k(f"v_bfe_u32 v{va}, v0, 3, 3\nv_lshlrev_b32 v{va}, 6, v{va}\nv_and_or_b32 v{va}, v0, 7, v{va}\nv_lshlrev_b32 v{va}, 7, v{va}")
    k(f"s_lshl_b32 s{sT3}, s{sG}, 10\ns_add_u32 s{sT3}, s{sT3}, {FLOC(L,0)}")
    k.vm(f"buffer_load_dword v{vd}, v{va}, {srd(sWS)}, s{sT3} offen sc1")

EX = 112 * KB
vK, vV, vIDX, vL128, vTX, vP2, vCP = 248, 249, 250, 251, 252, 253, 254
sOD, sLC, sTH, sTW, sFO, sF2, sKX = 64, 66, 72, 73, 79, 68, 69
def att_setup(L):
    o = f"""s_and_b32 s{sT0}, s{sC}, 15
s_lshl_b32 s{sF2}, s{sT0}, 11
s_add_u32 s{sF2}, s{sF2}, {FKV(L)}
s_lshl_b32 s{sT0}, s{sT0}, 1
s_and_b32 s{sT1}, s{sW}, 1
s_add_u32 s{sT0}, s{sT0}, s{sT1}
s_lshr_b32 s{sT1}, s{sW}, 1
s_lshl_b32 s{sKX}, s{sG}, 1
s_add_u32 s{sKX}, s{sKX}, s{sC4}
s_lshl_b32 s{sT2}, s{sKX}, 1
s_add_u32 s{sT2}, s{sT2}, s{sT1}
s_lshl_b32 s{sFO}, s{sT2}, 5
s_add_u32 s{sFO}, s{sFO}, s{sT0}
s_lshl_b32 s{sFO}, s{sFO}, 3
s_add_u32 s{sFO}, s{sFO}, {FLOC(L,0)}
s_mul_i32 s{sOD}, s{sT2}, {224*KB}
s_lshl_b32 s{sT3}, s{sT0}, 10
s_add_u32 s{sOD}, s{sOD}, s{sT3}
s_add_u32 s{sOD}, s{sOD}, {HF}
s_add_u32 s{sOD+1}, s{sOD}, {112*KB}
s_xor_b32 s{sT2}, s{sT2}, 2
s_mul_i32 s{sLC}, s{sT2}, {224*KB}
s_lshl_b32 s{sT3}, s{sT0}, 11
s_add_u32 s{sLC}, s{sLC}, s{sT3}
s_add_u32 s{sLC}, s{sLC}, {HF + 32*KB}
s_add_u32 s{sLC+1}, s{sLC}, {112*KB}
s_lshl_b32 s{sKX}, s{sKX}, 13
s_lshl_b32 s{sT0}, s{sT0}, 17
s_lshl_b32 s{sT1}, s{sT1}, 12
s_add_u32 s{sT0}, s{sT0}, s{sT1}
s_add_u32 s{sKX}, s{sKX}, s{sT0}
s_add_u32 s{sKX}, s{sKX}, {KVF(L)}
v_and_b32 v13, 0x33, v0
v_bfe_u32 v14, v0, 2, 1
v_lshl_or_b32 v13, v14, 3, v13
v_bfe_u32 v14, v0, 3, 1
v_lshl_or_b32 v13, v14, 2, v13
v_lshlrev_b32 v{vK}, 4, v13
v_and_b32 v13, 15, v0
v_lshlrev_b32 v{vP2}, 7, v13
v_bfe_u32 v14, v0, 5, 1
v_lshl_add_u32 v13, v14, 4, v13
v_lshlrev_b32 v{vV}, 4, v13
v_mov_b32 v{vIDX}, 0xdddddddd
v_lshlrev_b32 v{vL128}, 3, v{vL16}
v_and_b32 v13, 27, v0
v_cmp_eq_u32 vcc, 16, v13
v_mov_b32 v14, 0x3afe3f80
v_cndmask_b32 v{vCP}, 0, v14, vcc
s_lshl_b32 s{sT3}, s{sU}, 2
s_add_u32 s{sT3}, s{sT3}, s{sW}
s_mul_i32 s{sTH}, s{sT3}, {7*KB}
s_add_u32 s{sTH}, s{sTH}, {HF}
s_lshl_b32 s{sT0}, s{sT3}, 11
s_add_u32 s{sT0}, s{sT0}, {XF}
s_lshl_b32 s{sT1}, s{sT3}, 8
s_add_u32 s{sT1}, s{sT1}, {SX}
v_and_b32 v13, 0x780, v{vL128}
v_add_u32 v13, s{sT0}, v13
v_and_b32 v14, 0x80, v{vL128}
v_add_u32 v14, s{sT1}, v14
v_cmp_gt_u32 vcc, 512, v{vL16}
v_cndmask_b32 v{vTX}, v14, v13, vcc
s_lshl_b32 s{sTW}, s{sC4}, 2
s_add_u32 s{sTW}, s{sTW}, s{sW}
s_mul_i32 s{sTW}, s{sTW}, {TOUCH_KBS[L] * KB // 8}
s_add_u32 s{sTW}, s{sTW}, s{sSEG+1}
s_add_u32 s{sTW}, s{sTW}, {(PREFILL - 64)*KB}
s_and_b32 s{sCT}, s{sT3}, 31
s_lshl_b32 s{sCT}, s{sCT}, 10"""
    return o.split('\n')
def ex_addr(e):
    return [f"v_bfe_u32 v{e+6}, v0, 4, 1", f"v_lshl_add_u32 v{e+6}, v{e+6}, 11, v{vV}",
            f"s_mul_i32 s{sT3}, s{sW}, {6*KB}", f"s_add_u32 s{sT3}, s{sT3}, {EX}", f"v_add_u32 v{e}, s{sT3}, v{vL16}", f"v_add_u32 v{e+1}, s{sT3}, v{e+6}",
            f"s_lshr_b32 s{sT3}, s{sW}, 1", f"s_mul_i32 s{sT3}, s{sT3}, {12*KB}", f"s_and_b32 s{sT0}, s{sW}, 1", f"s_lshl_b32 s{sT0}, s{sT0}, 10",
            f"s_add_u32 s{sT2}, s{sT0}, {EX}", f"s_add_u32 s{sT1}, s{sT2}, s{sT3}", f"v_add_u32 v{e+2}, s{sT1}, v{vL16}",
            f"s_sub_u32 s{sT2}, s{sT2}, s{sT3}", f"v_add_u32 v{e+3}, s{sT2}, v{vL16}", f"s_add_u32 s{sT1}, s{sT1}, s{sT0}",
            f"v_add_u32 v{e+4}, s{sT1}, v{vK}", f"v_add_u32 v{e+5}, s{sT1}, v{vV}"]
def ex_kv(pK, pV):
    e = G.ex
    return [f"ds_write_b128 v{e}, {vr(pK)}", f"ds_write_b128 v{e}, {vr(pK+4)} offset:2048",
            f"ds_write_b128 v{e+1}, {vr(pV)} offset:1024", f"ds_write_b128 v{e+1}, {vr(pV+4)} offset:1536"]
def q_out(k, a, sc, p0, vT):
    init = [f"v_mfma_f32_32x32x16_bf16 {vr(16+16*q,16)}, {vr(vT+4)}, {vr(vT)}, 0" for q in range(4)]
    init2 = [f"v_mfma_f32_32x32x16_bf16 {vr(80+16*q,16)}, {vr(vT+4)}, {vr(vT)}, 0" for q in range(6)]
    k(f"v_mov_b32 v{vT}, 0")
    for x in init: k(x)
    k(f"v_mov_b32 v{vT}, v{vCP}")
    for half in range(2):
        p = p0 + 4*half
        for j in range(4):
            r = a + 8*half + 2*j
            k(f"v_mul_f32 v{r}, v{r}, v{sc}\nv_mul_f32 v{r+1}, v{r+1}, v{sc}\nv_cvt_pk_bf16_f32 v{p+j}, v{r}, v{r+1}")
            if init2: k(init2.pop(0))
        k.lg(f"ds_write_b128 v{G.ex}, {vr(p)} offset:{4096 + half*KB}")

def ph_att(k, L, ring, tkv, tloc):
    vO, vKV, vS0, aQ = 16, 80, 176, aWB
    NS = 4; NKV = 8
    vS = [vS0 + 16*i for i in range(NS)]
    sK = sB
    K = lambda t: vr(vKV + 12*(t % NKV))
    V = lambda t, u: vr(vKV + 12*(t % NKV) + 4 + 4*u)
    k.wait_all(vm=False)
    k("s_barrier")
    lt = {}
    lt['k0'] = k.lg(f"ds_read_b128 {K(0)}, v{G.ex+4}")
    for s in range(4):
        lt[s] = k.lg(f"ds_read_b128 {ar(aQ+4*s)}, v{G.ex + 2 + (s >> 1)} offset:{4096 + (s & 1)*6*KB + (12*KB if s >> 1 else 0)}")
    k(f"s_mov_b64 exec, s[{sMSK}:{sMSK+1}]")
    for t in range(2):
        for u in range(2): lt['v'] = k.lg(f"ds_read_b128 {V(t,u)}, v{G.ex+5} offset:{t*6*KB + KB + u*512}")
    k("s_mov_b64 exec, -1")
    lt['k1'] = k.lg(f"ds_read_b128 {K(1)}, v{G.ex+4} offset:{6*KB}")
    mark(k, 'pre')
    if L and KV_LOC and QF_AT == 2: q_flag(k, L, tloc)
    kt = {}
    def ldP(x):
        if x == 1 and L and KV_LOC: src = [(sLC, 0), (sLC + 1, 0)]
        else:
            k(f"s_xor_b32 s{sK}, s{sKX}, {x << 13}")
            src = [(sK, 0), (sK, 2*KB)]
        for z in range(2): k.vm(f"buffer_load_dwordx4 {K(2*x+z)}, v{vK}, {srd(sWS)}, s{src[z][0]} offen offset:{src[z][1]} sc1")
        k(f"s_mov_b64 exec, s[{sMSK}:{sMSK+1}]")
        for z in range(2):
            for u in range(2): t_ = k.vm(f"buffer_load_dwordx4 {V(2*x+z,u)}, v{vV}, {srd(sWS)}, s{src[z][0]} offen offset:{src[z][1] + KB + u*512} sc1")
        k("s_mov_b64 exec, -1")
        kt[2*x] = kt[2*x+1] = t_
    NT = ATT_NT
    steps = [(t, q) for t in range(32 - NT) for q in range(4)] + [(t, q) for q in (2, 3, 0, 1) for t in range(32 - NT, 32)]
    n = len(steps)
    LA = NS - 1
    def qk(i):
        t, q = steps[i]
        if t < 2: k.wait(lg=lt[q] if t == 0 else lt['k1'])
        else: k.wait(vm=kt[t])
        k(f"v_mfma_f32_32x32x16_bf16 {vr(vS[i % NS],16)}, {K(t)}, {ar(aQ+4*q)}, 0")
    def pv(i, u):
        t, q = steps[i]
        if t < 2: k.wait(lg=lt['v'])
        k(f"v_smfmac_f32_32x32x32_bf16 {vr(vO+16*q,16)}, {V(t,u)}, {vr(vS[i % NS]+8*u,8)}, v{vIDX}")
    for i in range(LA): qk(i)
    mark(k, 'm0')
    ring.limit = PREFILL
    jobs = {}
    def job(i, f, e=10): jobs.setdefault((i, e), []).append(f)
    ap2 = apoll1(k, vP2, 10, sF2)
    late_qk = set()
    if L and KV_LOC:
        def a1():
            k(f"s_xor_b32 s{sT0}, s{sRB}, 4\ns_and_b32 s{sT0}, s{sT0}, 6\ns_lshl_b32 s{sT1}, s{sG}, 4\ns_add_u32 s{sT1}, s{sT1}, s{sA}\ns_lshl_b32 s{sT1}, s{sT1}, 3")
            k(f"s_add_u32 s{sT1}, s{sT1}, s{sT0}\ns_lshl_b32 s{sT1}, s{sT1}, 3\ns_add_u32 s{sD}, s{sT1}, {FLOC(L-1,5)}\nv_and_b32 v12, 8, v0")
            ap1.issue()
        ap1 = apoll1(k, 12, 8, sD)
        job(A1_AT[0], a1, e=2 if A1_AT[0] else 3)
        job(A1_AT[1], lambda: (ap1.check(), ldP(1)))
        job(KVF_AT[L], lambda: (k.wait(lg=lt['k1']), kv_flag(k, L, tkv)))
        job(P2[L][0], ap2.issue)
        job(P2[L][1], lambda: (ap2.check(), ldP(2)))
        job(P2[L][1] + 1, lambda: ldP(3))
    else:
        if not (L == 0 and Q0K and Q0K_FLAG < 32): job(KVF_AT[L], lambda: (k.wait(lg=lt['k1']), kv_flag(k, L, tkv)))
        if L == 0:
            job(PKR_AT, lambda: G.pk.reads(*range(8)))
            for i in range(8): job(PKR_AT + 1 + i // 4, lambda i=i: G.pk.csum(i), e=(0, 4, 8, 13)[i % 4])
        job(P2[L][0], ap2.issue)
        if L == 0 and PK_WAIT:
            job(P2[L][1], lambda: (ap2.check(), ldP(1), ldP(2), ldP(3) if PK_WAIT > 1 else None, G.pk.stores(*range(8)), G.pk.ext()), e=15)
            if PK_WAIT == 1: job(P2[L][1] + 2, lambda: ldP(3))
        else:
            job(P2[L][1], lambda: (ap2.check(), ldP(1)))
            job(P2[L][1] + 1, lambda: ldP(2))
            job(P2[L][1] + 2, lambda: ldP(3))
        late_qk = set(range(8, 8 + LA))
    job(9, lambda: code_touch(k, 5))
    for x in range(4, 16): job(8*(x - 3) + (4 if x == 4 else 0), lambda x=x: ldP(x))
    NR = PREFILL // 16
    if L == 0:
        if PK_WAIT:
            job(PUB_AT, G.pk.pub); CHK_AT = PUB_AT + CHK_GAP
        else: CHK_AT = G.pk.schedule(job) + CHK_GAP
        apk = APoll(k, [f"buffer_load_dwordx2 v[10:11], v12, {srd(sWS)}, s{sX} offen offset:8 sc1"],
                    f"v_cmp_ne_u64 vcc, s[{sTAG}:{sTAG+1}], v[10:11]")
        def chk0():
            k(f"v_accvgpr_read_b32 v12, a213\ns_mov_b32 s{sX}, {FPK}")
            apk.issue()
        job(CHK_AT - 6, chk0)
        apx = APoll(k, [f"buffer_load_dwordx4 v[12:15], v11, {srd(sWS)}, s{sCc} offen sc1"],
                    f"v_cmp_ne_u64 vcc, s[{sTAG}:{sTAG+1}], v[14:15]")
        def mode0():
            k(f"v_and_b32 v11, 0xf80, v{vL128}\ns_lshl_b32 s{sCc}, s{sG}, 12\ns_add_u32 s{sCc}, s{sCc}, {FPK}")
            apx.issue()
        def mode():
            apx.check()
            k(f"s_xor_b32 s{sT2}, s{sTAG}, s{sXCC}")
            k(f"v_cmp_ne_u32 vcc, s{sT2}, v12")
            k(f"s_cmp_eq_u64 vcc, 0\ns_cselect_b32 s{sMODE}, 1, 0")
        job(81, mode0); job(95, mode)
        def chk():
            apk.check()
            k(f"s_and_b32 s{sT2}, s{sC}, 7\ns_lshl_b32 s{sT2}, s{sT2}, 1\ns_lshr_b32 s{sT3}, s{sW}, 1\ns_add_u32 s{sT2}, s{sT2}, s{sT3}")
            k(f"s_mul_i32 s{sT3}, s{sW}, {28*KB}\ns_add_u32 s{sT3}, s{sT3}, {WD}")
            k(f"s_mul_i32 s{sX}, s{sT2}, {112*KB}\ns_add_u32 s{sX}, s{sX}, s{sT3}")
            k(f"s_xor_b32 s{sT2}, s{sT2}, 1\ns_mul_i32 s{sX2}, s{sT2}, {112*KB}\ns_add_u32 s{sX2}, s{sX2}, s{sT3}")
        job(CHK_AT, chk)
        def wsrc(i):
            s_ = sX if i < 28 else sX2
            j = i % 28
            if j and (j & 3) == 0: k(f"s_add_u32 s{s_}, s{s_}, 4096")
            return s_, (j & 3) * KB
        assert not DN16
        wq = XLoader(k, 56, lambda i: ar(aWD + 8*(i % 28) + 4*(i // 28)), wsrc)
        slots = [i for i in range(CHK_AT + 1, 112) if i % 8 in WD_SLOTS]
        work = [lambda: wq.issue_n(4)] * 14
        rw = [ring.issue16] * NR
        seq = []
        while work or rw:
            if work: seq.append(work.pop(0))
            if work: seq.append(work.pop(0))
            if rw: seq.append(rw.pop(0))
        assert len(seq) <= len(slots), (len(seq), len(slots))
        for i, f in zip(slots, seq): job(i, f)
    else:
        for j in range(NR): job(R1_AT + R1_STEP*j, ring.issue16)
    TL = TOUCH_LN; vT_ = vL128 if TL == 64 else 4
    def tch(sreg, j):
        def f():
            if j: k(f"s_add_u32 s{sreg}, s{sreg}, {TL*128}")
            elif TL < 64: k(f"v_and_b32 v4, {(TL-1)*128}, v{vL128}")
            k.vm(f"buffer_load_dword v5, v{vT_}, {srd(sWS)}, s{sreg} offen sc1")
        return f
    for j in range(-(-TOUCH_KBS[L] // TL)): job(TOUCH_AT[L] + j*TOUCH_STEP[L], tch(sTW, j))
    for j in range(-(-56 // TL)): job(TACTS[L] + j*TH_STEP, tch(sTH, j))
    job(TACTS[L] + 4, lambda: k.vm(f"buffer_load_dword v5, v{vTX}, {srd(sWS)}, 0 offen sc1"))
    job(CT_AT, lambda: code_touch(k, 5))
    SC = 136 * KB
    assert PREFILL <= 136
    def red_setup():
        k(f"s_mul_i32 s{sT0}, s{sW}, {6*KB}\ns_add_u32 s{sT0}, s{sT0}, {SC}\nv_add_u32 v13, s{sT0}, v{vL16}")
        k(f"s_xor_b32 s{sT0}, s{sW}, 2\ns_mul_i32 s{sT0}, s{sT0}, {6*KB}\ns_add_u32 s{sT0}, s{sT0}, {SC}\nv_add_u32 v10, s{sT0}, v{vL16}")
    job(112, red_setup)
    def res_early():
        if L == 0:
            rowmajor_addr(k, 14, sT0)
            k.vm(f"buffer_load_dwordx4 {vr(240)}, v14, {srd(60)}, s{sT0} offen")
            k.vm(f"buffer_load_dwordx4 {vr(244)}, v14, {srd(60)}, s{sT0} offen offset:32")
        else: load_res(k, 240)
    if RES_AT: job(RES_AT, res_early)
    def red_write(s):
        z = s & 1
        k.lg(f"ds_write_b128 v10, {vr(vO+16*s)} offset:{z*3*KB}")
        k.lg(f"ds_write_b128 v10, {vr(vO+16*s+4)} offset:{z*3*KB+KB}")
        k.lg(f"ds_write_b32 v10, v{vO+16*s+8} offset:{z*3*KB+2*KB}")
    for i in range(128):
        if steps[i][0] == 31 and steps[i][1] >= 2: job(i + 2, lambda s=steps[i][1]: red_write(s), e=2)
    tl = []
    def red_read():
        k.wait_all()
        k("s_barrier")
        for z in range(2):
            b = vO + 32 + 16*z
            k.lg(f"ds_read_b32 v{b+8}, v13 offset:{z*3*KB+2*KB}")
            k.lg(f"ds_read_b128 {vr(b)}, v13 offset:{z*3*KB}")
            tl.append(k.lg(f"ds_read_b128 {vr(b+4)}, v13 offset:{z*3*KB+KB}"))
    job(127 if NT == 1 else 126, red_read)
    for i, (t, q) in enumerate(steps):
        s = vS[i % NS]
        if i in ATT_MARKS: mark(k, f's{i}')
        if i == 8 and late_qk:
            pv(7, 1)
            for j in sorted(late_qk): qk(j)
        for e in range(16):
            if e == 2 and i > 0 and not (i == 8 and late_qk): pv(i-1, 1)
            if e == 6 and i + LA < n and i + LA not in late_qk: qk(i + LA)
            if e == 10: pv(i, 0)
            for f in jobs.pop((i, e), []): f()
            k(f"v_exp_f32 v{s+e}, v{s+e}")
    pv(n-1, 1)
    assert not jobs, jobs.keys()
    assert ring.issued == PREFILL
    mark(k, 'loop')
    for z in range(2):
        o = vO + 16*z; b = vO + 32 + 16*z
        k.wait(lg=tl[z])
        k(f"v_add_f32 v{o+8}, v{o+8}, v{b+8}\nv_rcp_f32 v{o+9}, v{o+8}")
        for i in range(8): k(f"v_add_f32 v{o+i}, v{o+i}, v{b+i}")
        for j in range(4):
            k(f"v_mul_f32 v{o+2*j}, v{o+2*j}, v{o+9}\nv_mul_f32 v{o+2*j+1}, v{o+2*j+1}, v{o+9}")
            k(f"v_cvt_pk_bf16_f32 v{o+12+j}, v{o+2*j}, v{o+2*j+1}")
        ts = k.vm(f"buffer_store_dwordx4 {vr(o+12)}, v{vL16}, {srd(sWS)}, s{sOD+z} offen")
    mark(k, 'f_st')
    fb = k.newlabel('fb'); back = k.newlabel('fbret')
    LO, HI = f2u(2.0**-60), f2u(2.0**60)
    for z in range(2):
        o = vO + 16*z
        k(f"v_add_f32 v{o}, v{o}, v{o+1}\nv_add_f32 v{o+2}, v{o+2}, v{o+3}\nv_add_f32 v{o+4}, v{o+4}, v{o+5}\nv_add_f32 v{o+6}, v{o+6}, v{o+7}")
        k(f"v_add_f32 v{o}, v{o}, v{o+2}\nv_add_f32 v{o+4}, v{o+4}, v{o+6}\nv_add_f32 v{o}, v{o}, v{o+4}")
        k(f"v_fma_f32 v{o+8}, v{o}, 0, v{o+8}\nv_subrev_u32 v{o+8}, {hex(LO)}, v{o+8}")
    k(f"v_max_u32 v{vO+8}, v{vO+8}, v{vO+24}")
    k(f"v_cmp_lt_u32 vcc, {hex(0 if FORCE_FB else HI - LO)}, v{vO+8}")
    k(f"s_cbranch_vccnz {fb}")
    k.label(back)
    F = [f"{fb}:", "s_waitcnt vmcnt(0)", f"s_and_b32 s{sT0}, s{sKX}, 0xfffe0000",
         f"v_add_u32 v{vK}, s{sT0}, v{vK}", f"v_add_u32 v{vV}, s{sT0}, v{vV}"]
    S, C, M = vS0, vS0 + 16, vS0 + 32
    for z in range(2):
        o = vO + 16*z; Q = ar(aQ + 4*z)
        F += [f"v_mov_b32 v{M}, 0xff800000", f"s_mov_b32 s{sK}, 0", f"{fb}_a{z}:",
              f"buffer_load_dwordx4 {K(0)}, v{vK}, {srd(sWS)}, s{sK} offen sc1", "s_waitcnt vmcnt(0)",
              f"v_mfma_f32_32x32x16_bf16 {vr(S,16)}, {K(0)}, {Q}, 0"]
        F += [f"v_max3_f32 v{M}, v{M}, v{S+2*i}, v{S+2*i+1}" for i in range(8)]
        F += [f"s_add_u32 s{sK}, s{sK}, 2048", f"s_cmp_lt_u32 s{sK}, {64*2048}", f"s_cbranch_scc1 {fb}_a{z}",
              f"v_mov_b32 v{M+1}, v{M}", f"v_permlane32_swap_b32 v{M}, v{M+1}", f"v_max_f32 v{M}, v{M}, v{M+1}"]
        F += [f"v_sub_f32 v{C+i}, 0, v{M}" for i in range(16)] + [f"v_mov_b32 v{o+i}, 0" for i in range(16)]
        F += [f"s_mov_b32 s{sK}, 0", f"{fb}_b{z}:",
              f"buffer_load_dwordx4 {K(0)}, v{vK}, {srd(sWS)}, s{sK} offen sc1",
              f"s_mov_b64 exec, s[{sMSK}:{sMSK+1}]",
              f"buffer_load_dwordx4 {V(0,0)}, v{vV}, {srd(sWS)}, s{sK} offen offset:{KB} sc1",
              f"buffer_load_dwordx4 {V(0,1)}, v{vV}, {srd(sWS)}, s{sK} offen offset:{KB+512} sc1",
              "s_mov_b64 exec, -1", "s_waitcnt vmcnt(0)",
              f"v_mfma_f32_32x32x16_bf16 {vr(S,16)}, {K(0)}, {Q}, {vr(C,16)}"]
        F += [f"v_exp_f32 v{S+i}, v{S+i}" for i in range(16)]
        F += [f"v_smfmac_f32_32x32x32_bf16 {vr(o,16)}, {V(0,u)}, {vr(S+8*u,8)}, v{vIDX}" for u in range(2)]
        F += ["s_nop 15", f"s_add_u32 s{sK}, s{sK}, 2048", f"s_cmp_lt_u32 s{sK}, {64*2048}", f"s_cbranch_scc1 {fb}_b{z}",
              f"v_rcp_f32 v{o+9}, v{o+8}"]
        for j in range(4):
            F += [f"v_mul_f32 v{o+2*j}, v{o+2*j}, v{o+9}", f"v_mul_f32 v{o+2*j+1}, v{o+2*j+1}, v{o+9}", f"v_cvt_pk_bf16_f32 v{o+12+j}, v{o+2*j}, v{o+2*j+1}"]
        F += [f"buffer_store_dwordx4 {vr(o+12)}, v{vL16}, {srd(sWS)}, s{sOD+z} offen"]
    F += ["s_waitcnt vmcnt(0)", f"s_branch {back}"]
    G.far += F
    k(f"s_mov_b32 s{sF}, s{sFO}")
    ring.end16()
    ring.limit = 144
    return ts

def load_res(k, v):
    k(f"s_add_u32 s{sT1}, s{sDST}, {XF}")
    k.vm(f"buffer_load_dwordx4 {vr(v)}, v{vL16}, {srd(sWS)}, s{sT1} offen sc1")
    return k.vm(f"buffer_load_dwordx4 {vr(v+4)}, v{vL16}, {srd(sWS)}, s{sT1} offen offset:1024 sc1")
def add_res(k, acc, v):
    for j in range(8):
        k(f"v_lshlrev_b32 v10, 16, v{v+j}\nv_and_b32 v11, 0xffff0000, v{v+j}")
        k(f"v_add_f32 v{acc+2*j}, v{acc+2*j}, v10\nv_add_f32 v{acc+2*j+1}, v{acc+2*j+1}, v11")

def ph_wo(k, L, ring, tO):
    k.label(f'L_wo{L}')
    vX, vACC, vRES, vSUM, vPK = 16, 80, (240 if RES_AT else 112), 120, 136
    k(f"s_lshr_b32 s{sRB}, s{sDST}, 15\ns_lshr_b32 s{sD}, s{sW}, 1")
    k(f"s_mul_i32 s{sX}, s{sRB}, {112*KB}\ns_lshl_b32 s{sT0}, s{sD}, 14\ns_add_u32 s{sX}, s{sX}, s{sT0}\ns_add_u32 s{sX}, s{sX}, {HF}")
    k(f"s_lshl_b32 s{sT0}, s{sD}, 11")
    set_lds_bases(k, sT0)
    seq = []
    for s in range(16):
        seq.append((s, 1))
        if s < 16 - WO_R0: seq.append((s, 0))
    nf = len(seq)
    seq += [(s, 0) for s in range(16 - WO_R0, 16)]
    ops = [dict(b=4*s + a, bmin=0, bmax=63, xi=s, x=vr(vX+4*s), acc=vr(vACC+16*a,16), swap=False, first=(s == 0)) for s, a in seq]
    g = Gemm(k, ring, ops, {0}, stop_issue=WO_STOP)
    rs = {}
    def ldres():
        if L == 0:
            k.vm(f"buffer_load_dwordx4 {vr(vRES)}, v8, {srd(60)}, s{sE} offen")
            rs['t'] = k.vm(f"buffer_load_dwordx4 {vr(vRES+4)}, v8, {srd(60)}, s{sE} offen offset:32")
        else:
            rs['t'] = load_res(k, vRES)
    if not RES_LATE[L] and not RES_AT:
        if L == 0: rowmajor_addr(k, 8, sE)
        ldres()
    g.start()
    mark(k, 'f_bar')
    ring.issue_n(PRE_WO)
    publish_local(k, tO)
    mark(k, 'f_pub')
    ring.issue_n(PRE_WO2)
    k(f"s_and_b32 s{sF}, s{sRB}, 0xfe\ns_add_u32 s{sF}, s{sF}, s{sD}\ns_lshl_b32 s{sF}, s{sF}, 7\ns_add_u32 s{sF}, s{sF}, {FLOC(L,0)}")
    SC = 144 * KB
    k(f"s_xor_b32 s{sT0}, s{sW}, 2\ns_lshl_b32 s{sT0}, s{sT0}, 12\ns_add_u32 s{sT0}, s{sT0}, {SC}\nv_add_u32 v6, s{sT0}, v{vL16}")
    k(f"s_lshl_b32 s{sT0}, s{sW}, 12\ns_add_u32 s{sT0}, s{sT0}, {SC}\nv_add_u32 v7, s{sT0}, v{vL16}")
    if RES_LATE[L] and L == 0: rowmajor_addr(k, 8, sE)
    if RES_AT:
        for x in res_unpack(vSUM, vRES): k(x)
    poll16(k)
    mark(k, 'f_poll')
    xq = XLoader(k, 16, lambda i: vr(vX+4*i), lin_src(k))
    xq.issue_n(WO_N0)
    if not RES_LATE[L] and not RES_AT:
        for x in res_unpack(vSUM, vRES): k(x)
    st = {}
    def xchg(step):
        if step == 0:
            while g.nread < 32: g.rd()
            for j in range(4): k.lg(f"ds_write_b128 v6, {vr(vACC+16+4*j)} offset:{j*KB}")
        elif step == 1:
            k.wait_all(vm=False)
            ring.limit = None
            ring.sync(64, 0)
            for j in range(4): st['t'] = k.lg(f"ds_read_b128 {vr(vACC+16+4*j)}, v7 offset:{j*KB}")
            ring.issue_n(XB_PRE)
        st['n'] = step + 1
    def filler(m):
        if m == max(nf + 1, 25): xchg(0)
        if m == max(nf + 4, 28): xchg(1)
    g.run(xq, n0=0, look=16, filler=filler, misc=[ldres] if RES_LATE[L] else [])
    for step in range(st.get('n', 0), 2): xchg(step)
    if RES_LATE[L]:
        k.wait(vm=rs['t'])
        for x in res_unpack(vSUM, vRES): k(x)
    k.wait(lg=st['t'])
    for i in range(16): k(f"v_add_f32 v{vSUM+i}, v{vSUM+i}, v{vACC+16+i}")
    for j in range(8):
        k(f"v_add_f32 v{vACC+2*j}, v{vACC+2*j}, v{vSUM+2*j}\nv_add_f32 v{vACC+2*j+1}, v{vACC+2*j+1}, v{vSUM+2*j+1}")
        k(f"v_cvt_pk_bf16_f32 v{vPK+j}, v{vACC+2*j}, v{vACC+2*j+1}")
    ts = store_x(k, vACC, vPK, L, 1, ring)
    mark(k, 'end')
    return ts

PASSES = ((0, 3), (3, 2), (5, 2))
PBASE = (0, 100, 166)
def ph_up(k, L, ring, b0, tprev):
    vX, vACC, vST, vEXT, vRS = 16, 144, 224, 8, 6
    sH0, sH1 = sD, sE
    rb_128(k)
    k(f"s_and_b32 s{sA}, s{sC}, 15")
    k(f"s_lshl_b32 s{sX}, s{sRB}, 15\ns_add_u32 s{sX}, s{sX}, {XF}")
    set_lds_bases(k)
    if UP16: return ph_up16(k, L, ring, b0, tprev)
    ops = []
    for (t0, nt), pb in zip(PASSES, PBASE):
        for ks in range(33):
            for t in range(t0, t0+nt):
                lo_ = b0 + pb + (ks >> 1)*2*nt
                b = lo_ + (2*(t - t0) + (ks & 1) if ks < 32 else t - t0)
                ops.append(dict(b=b, bmin=lo_, bmax=b, xi=(ks if ks < 32 else None), x=(vr(vX+4*ks) if ks < 32 else vr(vEXT)),
                                acc=vr(vACC+16*t, 16), swap=False, first=(ks == 0)))
    g = Gemm(k, ring, ops, UP_SYNCS, stop_issue=UP_STOP)
    g.start()
    mark(k, 'f_bar')
    ring.issue_n(PRE)
    publish_local(k, tprev)
    mark(k, 'f_pub')
    ring.issue_n(PRE2)
    res = {}
    se = stats_emitters(k, vST, res)
    k(f"s_mul_i32 s{sH0}, s{sRB}, 112\ns_mul_i32 s{sT2}, s{sA}, 7\ns_add_u32 s{sH0}, s{sH0}, s{sT2}\ns_lshl_b32 s{sH0}, s{sH0}, 10\ns_add_u32 s{sH0}, s{sH0}, {HF}")
    k(f"s_add_u32 s{sH1}, s{sH0}, 4096")
    k(f"s_lshl_b32 s{sF}, s{sRB}, 7\ns_add_u32 s{sF}, s{sF}, {FLOC(L,1)}")
    poll16(k)
    mark(k, 'f_poll')
    aps = stats_poll(k, FLOC(L,6) - FLOC(L,1))
    xq = XLoader(k, 32, lambda i: vr(vX+4*i), lin_src(k))
    fin = fin_stats(vST, vEXT, vRS) + [f"v_mul_f32 v{vRS}, v{vRS}, v{vRS}"]
    def epi(t):
        a = vACC + 16*t
        o = []
        for j in range(4):
            o += [f"v_mul_f32 v{a+2*j}, v{a+2*j}, v{vRS}", f"v_mul_f32 v{a+2*j+1}, v{a+2*j+1}, v{vRS}",
                  f"v_mul_f32 v{a+2*j}, v{a+2*j}, v{a+8+2*j}", f"v_mul_f32 v{a+2*j+1}, v{a+2*j+1}, v{a+9+2*j}",
                  f"v_cvt_pk_bf16_f32 v{a+8+j}, v{a+2*j}, v{a+2*j+1}"]
        o.append(f"buffer_store_dwordx4 {vr(a+8)}, v{vL16}, {srd(sWS)}, s{sH0 + (t >> 2)} offen offset:{(t & 3)*KB}")
        return o
    st = dict(i=0, t=None); q = []
    def put(x):
        if x.startswith('buffer'): st['t'] = k.vm(x)
        else: k(x)
    dn = Down(k, L)
    def filler(m):
        if aps and m == 12: aps.issue()
        if aps and m == 30: aps.check()
        if 70 <= m < 96:
            if st['i'] == 0: k.wait(vm=res['t'])
            for _ in range(2):
                if st['i'] < len(fin): k(fin[st['i']]); st['i'] += 1
        if m == 102: q.extend(sum((epi(t) for t in range(0, 3)), []))
        if m == 168: q.extend(sum((epi(t) for t in range(3, 5)), []))
        if UP4 and m == 201: q.extend(epi(5))
        for _ in range(UP_EPI):
            if q: put(q.pop(0))
        if m == 146: code_touch(k, 7)
        if m in UP_PUB:
            assert not q
            if m == UP_PUB[0]:
                k(f"s_lshl_b32 s{sF}, s{sRB}, 4\ns_add_u32 s{sF}, s{sF}, s{sA}\ns_lshl_b32 s{sF}, s{sF}, 3\ns_add_u32 s{sF}, s{sF}, {FLOC(L,9)}")
            publish_local(k, st['t'])
            k(f"s_add_u32 s{sF}, s{sF}, {8*KB}")
            if m == UP_PUB[1]: dn.xq.hold = 20
        if UP_PUB[0] < m and dn.setup:
            for _ in range(3):
                if dn.setup: k(dn.setup.pop(0))
        if m in DN_POLL: dn.ap.issue()
        if m in DN_CHK:
            dn.ap.check()
            k(f"s_add_u32 s{dn.sFl}, s{dn.sFl}, {8*KB}")
        if m > DN_CHK[0] and m % 2 and not (ring.can_issue() and m < UP_STOP): dn.xq.issue_n(1)
    if L == 0: ring.limit = 296 + QW_UP
    g.run(xq, look=UP_LOOK, filler=filler, misc=se, misc_from=32, skip=UP_SKIP[L])
    assert st['i'] == len(fin) and not dn.setup and ring.issued == min(ring.total, 296 + QW_UP)
    dn.xq.hold = 36 if len(DN_CHK) > 1 else 24
    for t in range(6 if UP4 else 5, 7):
        for i, x in enumerate(epi(t)):
            put(x)
            if i in (4, 14): dn.xq.issue_n(1)
    mark(k, 'end')
    dn.tB = st['t']
    return dn

def ph_up16(k, L, ring, b0, tprev):
    vX, vACC, vST, vEXT, vRS, vXM = 16, 144, 224, 8, 6, 12
    sH0, sH1 = sD, sE
    D, NB = 5, 8
    k(f"v_bfe_u32 v8, v0, 4, 2\nv_lshlrev_b32 v8, 9, v8\nv_and_b32 v9, 15, v0\nv_lshl_add_u32 v{vXM}, v9, 4, v8")
    k("v_and_b32 v9, 3, v0\nv_bfe_u32 v10, v0, 2, 1\nv_lshl_or_b32 v9, v10, 3, v9\nv_bfe_u32 v10, v0, 3, 1\nv_lshl_or_b32 v9, v10, 2, v9")
    k(f"v_lshl_add_u32 v{vB}, v9, 4, v8\nv_add_u32 v{vB+1}, 0x10000, v{vB}\nv_add_u32 v{vB+2}, 0x20000, v{vB}")
    units = []
    for (t0, nt), pb in zip(PASSES, PBASE):
        for K in range(16):
            for t in range(t0, t0+nt):
                for ch in range(2):
                    lo_ = b0 + pb + K*2*nt
                    units.append(dict(b=lo_ + 2*(t - t0), bmin=lo_, bmax=lo_ + 2*(t - t0) + 1, K=K, t=t, ch=ch))
        for t in range(t0, t0+nt):
            b = b0 + pb + 32*nt + t - t0
            units.append(dict(b=b, bmin=b0 + pb + 32*nt, bmax=b, K=16, t=t, e0=b0 + pb + 32*nt))
    M = len(units); syncs = sorted(UP_SYNCS)
    tl = {}; S = dict(nread=0)
    def rd():
        m = S['nread']; o = units[m]; w = aWB + 4*(m % NB)
        assert o['bmax'] < ring.visible, (m, o, ring.visible)
        a = ring.addr(o['b'])
        if o['K'] < 16:
            assert ring.addr(o['b'] + 1) == a + KB
            a += o['ch'] * 256
            tl[m] = k.lg(f"ds_read_b128 {ar(w)}, v{vB + (a >> 16)} offset:{a & 0xffff}")
        else:
            a0 = ring.addr(o['e0'])
            if o['b'] == o['e0']:
                if a0 != S['a0']: k(f"v_add_u32 v13, {a0 - S['a0']}, v13")
                S['a0'] = a0
            assert a >= a0
            k.lg(f"ds_read_b64 {ar(w,2)}, v13 offset:{a - a0}")
            tl[m] = k.lg(f"ds_read_b64 {ar(w+2,2)}, v13 offset:{a - a0 + 256}")
        S['nread'] += 1
    def need_until(m):
        nxt = [x for x in syncs if x > m]
        last = min((nxt[0] if nxt else M) - 1 + D, M - 1)
        return max(o['bmax'] for o in units[:last+1]) + 1
    ring.sync(units[0]['bmin'], need_until(0))
    for _ in range(D): rd()
    mark(k, 'f_bar')
    ring.issue_n(PRE)
    publish_local(k, tprev)
    mark(k, 'f_pub')
    res = {}
    se = stats_emitters(k, vST, res)
    k(f"s_mul_i32 s{sH0}, s{sRB}, 112\ns_mul_i32 s{sT2}, s{sA}, 7\ns_add_u32 s{sH0}, s{sH0}, s{sT2}\ns_lshl_b32 s{sH0}, s{sH0}, 10\ns_add_u32 s{sH0}, s{sH0}, {HF}")
    if DN16:
        k(f"s_bitcmp0_b32 s{sA}, 0\ns_cselect_b32 s{sH1}, -1, 1\ns_cselect_b32 s{sT2}, 7, -1\ns_lshl_b32 s{sH1}, s{sH1}, 10\ns_lshl_b32 s{sT2}, s{sT2}, 10\ns_add_u32 s{sH0}, s{sH0}, s{sT2}")
    else: k(f"s_add_u32 s{sH1}, s{sH0}, 4096")
    k(f"s_lshl_b32 s{sF}, s{sRB}, 7\ns_add_u32 s{sF}, s{sF}, {FLOC(L,1)}")
    poll16(k)
    mark(k, 'f_poll')
    aps = stats_poll(k, FLOC(L,6) - FLOC(L,1))
    def xsrc(i):
        if i and (i & 3) == 0: k(f"s_add_u32 s{sX}, s{sX}, 4096")
        return sX, ((i >> 1) & 1) * 2048 + (i & 1) * 256
    xq = XLoader(k, 32, lambda i: vr(vX+4*i), xsrc, va=vXM)
    fin = fin_stats(vST, vEXT, vRS) + [f"v_mul_f32 v{vRS}, v{vRS}, v{vRS}", f"v_permlane16_swap_b32 v{vEXT}, v{vEXT+2}", f"v_permlane16_swap_b32 v{vEXT+1}, v{vEXT+3}"]
    fin2 = [f"v_mov_b32 v{vRS+1}, v{vRS}", f"v_permlane16_swap_b32 v{vRS}, v{vRS+1}"]
    def epi(t):
        a = vACC + 16*t
        o = []
        for th in range(2):
            g_ = a + 4*th; u_ = a + 8 + 4*th
            o += [f"v_mul_f32 v{g_+j}, v{g_+j}, v{vRS+th}" for j in range(4)] + [f"v_mul_f32 v{g_+j}, v{g_+j}, v{u_+j}" for j in range(4)]
            o += [f"v_cvt_pk_bf16_f32 v{a+8+2*th}, v{g_}, v{g_+1}", f"v_cvt_pk_bf16_f32 v{a+9+2*th}, v{g_+2}, v{g_+3}"]
        if DN16: o.append(f"s_add_u32 s{sH0}, s{sH0}, s{sH1}")
        o += [f"v_permlane16_swap_b32 v{a+8}, v{a+10}", f"v_permlane16_swap_b32 v{a+9}, v{a+11}"]
        if DN16: o.append(f"buffer_store_dwordx4 {vr(a+8)}, v{vL16}, {srd(sWS)}, s{sH0} offen")
        else: o.append(f"buffer_store_dwordx4 {vr(a+8)}, v{vL16}, {srd(sWS)}, s{sH0 + (t >> 2)} offen offset:{(t & 3)*KB}")
        return o
    st = dict(t=None)
    def put(x):
        if x.startswith('buffer'): st['t'] = k.vm(x)
        else: k(x)
    dn = Down(k, L)
    if L == 0: ring.limit = 296 + QW_UP
    xq.issue_n(6)
    mem = []; alu = []; se = list(se); cur = 0; second = []
    def waits(m):
        nonlocal cur
        xs = [2*p['K'] + 1 for p in units[m:m+2] if p['K'] < 16]
        xt = None
        if xs:
            cur = max(cur, max(xs))
            while xq.n <= max(xs): xq.issue_n(1)
            xt = xq.t[max(xs)]
        n0 = len(k.L)
        k.wait(vm=xt, lg=tl[min(m + 1, M - 1)])
        return len(k.L) - n0
    big = lambda x: x.startswith(('buffer', 'v_permlane', 'v_rsq'))
    def slot(first):
        if mem and (len(mem) > 1 or first):
            last = len(mem) == 1
            mem.pop(0)()
            return last and U16_BIG
        if alu and (first or not (big(alu[0]) if U16_BIG else alu[0].startswith('buffer'))):
            x = alu.pop(0); put(x)
            return big(x) and U16_BIG
        return False
    waits(0)
    for m, o in enumerate(units):
        if m in syncs and m > 0:
            while mem: mem.pop(0)()
            while second: second.pop()()
            ring.sync(o['bmin'], need_until(m))
        w = aWB + 4*(m % NB); a = vACC + 16*o['t']
        if o['K'] < 16:
            mm = [f"v_mfma_f32_16x16x32_bf16 {vr(a+8*o['ch']+4*th)}, {ar(w)}, {vr(vX+8*o['K']+4*th)}, {'0' if o['K'] == 0 else vr(a+8*o['ch']+4*th)}" for th in range(2)]
        else:
            mm = [f"v_mfma_f32_16x16x16_bf16 {vr(a+8*ch+4*th)}, {ar(w+2*ch,2)}, {vr(vEXT+2*th,2)}, {vr(a+8*ch+4*th)}" for ch in range(2) for th in range(2)]
        k(mm[0])
        if m == 0: mark(k, 'm0')
        if m in GEMM_MARKS.get(G.ph, ()): mark(k, f'm{m}')
        if S['nread'] < M: rd()
        else: slot(True)
        if not (m % 2 and m + 1 < M and waits(m + 1)): slot(False)
        for x in mm[1:-1]:
            k(x); slot(True) or slot(False)
        k(mm[-1])
        if aps and m == 12: aps.issue()
        if aps and m == 30: aps.check()
        if m == 34:
            a0 = S['a0'] = ring.addr(b0 + 96)
            alu += f"v_and_b32 v13, 0xf0, v{vB}\nv_bfe_u32 v7, v0, 5, 1\nv_lshl_add_u32 v13, v7, 9, v13\nv_bfe_u32 v7, v0, 4, 1\nv_lshl_add_u32 v13, v7, 3, v13\nv_add_u32 v13, {a0}, v13".split('\n')
            alu += f"s_lshl_b32 s{sF}, s{sRB}, 4\ns_add_u32 s{sF}, s{sF}, s{sA}\ns_lshl_b32 s{sF}, s{sF}, 3\ns_add_u32 s{sF}, s{sF}, {FLOC(L,9)}".split('\n')
            alu += TAGMOV + [x for x in dn.setup if x.startswith('s_')]
            dn.setup = [x for x in dn.setup if not x.startswith('s_')]
            if CODE_TOUCH:
                pc = k.newlabel('pc')
                alu += [f"s_getpc_b64 s[{sPC}:{sPC+1}]\n{pc}:", f"s_min_u32 s{sT3}, s{sCT}, L_end-{pc}-1024",
                        f"s_add_u32 s{sPC}, s{sPC}, s{sT3}\ns_addc_u32 s{sPC+1}, s{sPC+1}, 0"]
        if L and KV_LOC and m == U16_FIN:
            assert not alu
            k(f"s_xor_b32 s{sT3}, s{sRB}, 4\ns_lshr_b32 s{sT3}, s{sT3}, 1\ns_lshl_b32 s{sT3}, s{sT3}, 8\ns_add_u32 s{sT3}, s{sT3}, {FLOC(L,0)}")
            apw = APoll(k, ["v_and_b32 v252, 31, v0", "v_lshlrev_b32 v252, 3, v252",
                            f"buffer_load_dwordx2 v[252:253], v252, {srd(sWS)}, s{sT3} offen sc1"], f"v_cmp_ne_u64 vcc, s[{sTAG}:{sTAG+1}], v[252:253]")
            apw.issue()
        if L and KV_LOC and m == 98: apw.check()
        if m == U16_FIN:
            assert not alu
            k.wait(vm=res['t']); alu += fin + fin2
        if m == 95: assert not alu
        if m == 100:
            assert xq.n == xq.total
            if CODE_TOUCH: k.vm(f"global_load_dword v255, v{vL16}, s[{sPC}:{sPC+1}]")
            alu += sum((epi(t) for t in range(0, 3)), []) + dn.setup; dn.setup = []
        if m == 167: alu += sum((epi(t) for t in range(3, 5)), [])
        if m in U16_PUB:
            assert not alu, (m, len(alu))
            publish_local(k, st['t'], movs=False)
            alu.append(f"s_add_u32 s{sF}, s{sF}, {8*KB}")
            if m == U16_PUB[1]: dn.xq.hold = 20
        if m in U16_POLL: dn.ap.issue()
        if m == U16_CHK:
            dn.ap.check()
            alu += [f"s_add_u32 s{dn.sFl}, s{dn.sFl}, {8*KB}"] + TAGMOV
        if m % 2 == 0 and not mem:
            rok = second or (m < UP_STOP and (ring.can8() or (ring.can_issue() and not ring.pair)))
            if not second and xq.n < xq.total and ring.issued >= b0 + U16_HOLD: rok = False
            mok = se and m >= 32
            if xq.n < xq.total and (xq.n - cur < UP_LOOK or not (rok or mok)): mem.append(lambda: xq.issue_n(1))
            elif mok: mem.append(se.pop(0))
            elif second: mem.append(second.pop())
            elif rok and ring.can8():
                p1, p2 = ring.parts8(); mem += p1; second += p2
            elif rok: mem += ring.parts()
            elif m > U16_CHK and dn.xq.n < dn.xq.hold: mem.append(lambda: dn.xq.issue_n(1))
        slot(True) or slot(False)
    while mem: mem.pop(0)()
    while second: second.pop()()
    ring.end8()
    assert not alu and not se and ring.issued == min(ring.total, 296 + QW_UP)
    dn.xq.hold = 24
    for t in range(5, 7):
        for i, x in enumerate(epi(t)):
            put(x)
            if i in (4, 14): dn.xq.issue_n(1)
    mark(k, 'end')
    dn.tB = st['t']
    return dn

class Down:
    NX = 36
    def __init__(self, k, L):
        self.k = k; self.L = L
        sXa, sXb, sFl = sB, sX2, sCc
        self.sFl = sFl
        self.setup = (f"s_lshr_b32 s{sT0}, s{sDST}, 15\ns_mul_i32 s{sT1}, s{sW}, {28*KB}\ns_add_u32 s{sT1}, s{sT1}, {HF}\n"
                      f"s_mul_i32 s{sXa}, s{sT0}, {112*KB}\ns_add_u32 s{sXa}, s{sXa}, s{sT1}\n"
                      f"s_xor_b32 s{sT2}, s{sT0}, 1\ns_mul_i32 s{sXb}, s{sT2}, {112*KB}\ns_add_u32 s{sXb}, s{sXb}, s{sT1}\n"
                      f"v_lshlrev_b32 v12, 3, v0\nv_and_b32 v12, 0x98, v12\n"
                      f"s_and_b32 s{sFl}, s{sT0}, 0xfe\ns_lshl_b32 s{sFl}, s{sFl}, 7\ns_lshl_b32 s{sT1}, s{sW}, 5\ns_add_u32 s{sFl}, s{sFl}, s{sT1}\n"
                      f"s_add_u32 s{sFl}, s{sFl}, {FLOC(L,9)}").split('\n')
        self.order = order = [7*c + t for t0, nt in (((0, 3), (3, 2), (5, 1), (6, 1)) if UP4 else PASSES) for c in range(4) for t in range(t0, t0+nt)]
        cur = {sXa: 0, sXb: 0}
        if DN16:
            assert UP16
            self.setup = [x for x in self.setup if x.startswith('s_')]
            self.order = order = [2, 3, 4, 9, 10, 11, 1, 5, 8, 12, 0, 6, 7, 13]
            def src16(i):
                s_ = sXa if (i & 2) == 0 else sXb
                r = 2 * order[i >> 2]
                if not 0 <= r - cur[s_] < 4:
                    d = (r - cur[s_]) * KB
                    k(f"s_add_u32 s{s_}, s{s_}, {d}" if d > 0 else f"s_sub_u32 s{s_}, s{s_}, {-d}")
                    cur[s_] = r
                return s_, (r - cur[s_]) * KB + (i & 1) * 256
            self.xr = lambda i: vr(144 + 4*(i % 36) if (i % 36) < 20 else 80 + 4*((i % 36) - 20))
            self.xq = XLoader(k, 56, self.xr, src16, va=12)
            self.xq.hold = 12
            self.ap = APoll(k, ["v_lshlrev_b32 v14, 3, v0", "v_and_b32 v14, 0x98, v14",
                                f"buffer_load_dwordx2 v[14:15], v14, {srd(sWS)}, s{sFl} offen sc1"], f"v_cmp_ne_u64 vcc, s[{sTAG}:{sTAG+1}], v[14:15]")
            return
        def src(i):
            s_ = sXa if (i & 1) == 0 else sXb
            r = order[i >> 1]
            if not 0 <= r - cur[s_] < 4:
                d = (r - cur[s_]) * KB
                k(f"s_add_u32 s{s_}, s{s_}, {d}" if d > 0 else f"s_sub_u32 s{s_}, s{s_}, {-d}")
                cur[s_] = r
            return s_, (r - cur[s_]) * KB
        self.xr = lambda i: vr(144 + 4*(i % 36) if (i % 36) < 20 else 80 + 4*((i % 36) - 20))
        self.xq = XLoader(k, 56, self.xr, src)
        self.xq.hold = 12
        self.ap = apoll1(k, 12, 14, sFl)

def load_res16(k, v):
    k(f"v_and_b32 v13, 0x2f0, v{vL16}\nv_bfe_u32 v5, v0, 4, 1\nv_lshl_add_u32 v13, v5, 3, v13\ns_add_u32 s{sT1}, s{sDST}, {XF}")
    for ch in range(2):
        for th in range(2):
            t = k.vm(f"buffer_load_dwordx2 {vr(v+4*ch+2*th,2)}, v13, {srd(sWS)}, s{sT1} offen offset:{ch*KB + th*256} sc1")
    return t
def res_unpack(dst, v):
    o = []
    for j in range(8): o += [f"v_lshlrev_b32 v{dst+2*j}, 16, v{v+j}", f"v_and_b32 v{dst+2*j+1}, 0xffff0000, v{v+j}"]
    return o

def ph_down(k, L, ring, dn):
    vACC, vRES, vPK, vSUM = 16, 240, 240, 224
    final = L == 1
    xq = dn.xq; order = dn.order; NX = dn.NX
    if len(DN_CHK) > 1: xq.hold = 40
    SC = 108 * KB
    side = []
    for a in range(1, 4):
        side += f"s_xor_b32 s{sT0}, s{sW}, {a}\ns_mul_i32 s{sT0}, s{sT0}, {12*KB}\ns_add_u32 s{sT0}, s{sT0}, {SC + (a-1)*4*KB}\nv_add_u32 v{5+a}, s{sT0}, v{vL16}".split('\n')
    side += f"s_mul_i32 s{sT0}, s{sW}, {12*KB}\ns_add_u32 s{sT0}, s{sT0}, {SC}\nv_add_u32 v9, s{sT0}, v{vL16}".split('\n')
    if final and OUT_T:
        side += (f"s_and_b32 s{sT0}, s{sW}, 1\ns_mul_i32 s{sT0}, s{sT0}, {32*144}\ns_lshr_b32 s{sT2}, s{sW}, 1\ns_lshl_b32 s{sT2}, s{sT2}, 6\ns_add_u32 s{sT0}, s{sT0}, s{sT2}\n"
                 f"v_and_b32 v10, 31, v0\nv_mul_u32_u24 v10, 144, v10\nv_bfe_u32 v11, v0, 5, 1\nv_lshl_add_u32 v10, v11, 4, v10\nv_add_u32 v10, s{sT0}, v10\n"
                 f"s_mul_i32 s{sT0}, s{sW}, {16*144}\nv_bfe_u32 v13, v0, 3, 3\nv_mul_u32_u24 v11, 144, v13\nv_and_b32 v5, 7, v0\nv_lshl_add_u32 v11, v5, 4, v11\nv_add_u32 v11, s{sT0}, v11\n"
                 f"v_lshlrev_b32 v13, 10, v13\nv_lshl_add_u32 v13, v5, 4, v13\n"
                 f"s_and_b32 s{sT0}, s{sDST}, 0xffff0000\ns_lshl_b32 s{sT2}, s{sW}, 14\ns_add_u32 s{sT0}, s{sT0}, s{sT2}\n"
                 f"s_and_b32 s{sT2}, s{sC}, 7\ns_lshl_b32 s{sT2}, s{sT2}, 7\ns_add_u32 s{sT0}, s{sT0}, s{sT2}\ns_add_u32 s{sT2}, s{sT0}, 8192").split('\n')
    R, R0 = DN_R, DN_R0
    seq = []
    for s in range(28 - R):
        seq += [(s, a) for a in (3, 2, 1)]
        if s < 28 - R0: seq.append((s, 0))
    seq += [(s, a) for a in (3, 2, 1) for s in range(28 - R, 28)] + [(s, 0) for s in range(28 - R0, 28)]
    fx = (lambda s_, a_: 4*(s_ >> 1) + 2*(a_ & 1)) if DN16 else (lambda s_, a_: 2*s_ + (a_ & 1))
    lo = [min(fx(s_, a_) for s_, a_ in seq[m:]) for m in range(112)]
    wr = []; rt = None; tail = None; res = None; wb = False; adds = []
    for m, (s, a) in enumerate(seq):
        r = order[s >> 1] if DN16 else order[s]
        if len(DN_CHK) == 1 and m == DN_CHK2:
            dn.ap.check()
            k(f"s_add_u32 s{dn.sFl}, s{dn.sFl}, {8*KB}")
            xq.hold = 40
        if m == int(4*DN_PUBB): publish_local(k, dn.tB)
        if UP4 and m == DN_POLL3: dn.ap.issue()
        if UP4 and m == DN_CHK3:
            dn.ap.check()
            k(f"s_add_u32 s{dn.sFl}, s{dn.sFl}, {8*KB}")
            xq.hold = 48
        if m == 4*DN_BAR:
            ring.limit = None
            ring.sync(296, 0)
        if m == 4*DN_POLLB:
            apb = dn.ap
            apb.issue()
            rt = load_res16(k, vRES) if DN16 else load_res(k, vRES)
        if m == 4*DN_CHKB:
            apb.check()
            xq.hold = 56
            xq.issue_n(min(3, lo[m] + NX - xq.n))
        xi = fx(s, a) + (1 if DN16 else 0)
        while xq.n <= xi:
            assert xq.n < xq.hold and xq.n < lo[m] + NX
            xq.issue_n(1)
        k.wait(vm=xq.t[xi])
        if DN16:
            ch = s & 1
            for th in range(2):
                acc = vr(vACC + 16*a + 8*ch + 4*th)
                k(f"v_mfma_f32_16x16x32_bf16 {acc}, {ar(aWD + 16*r + 8*(a >> 1) + 4*ch)}, {dn.xr(xi - 1 + th)}, {'0' if s < 2 else acc}")
                if th == 0:
                    for _ in range(2):
                        if side and res: k(side.pop(0))
                        elif adds and adds[0][0] <= m:
                            _, t_, x = adds.pop(0); k.wait(lg=t_); k(x)
        else:
            acc = vr(vACC + 16*a, 16)
            k(f"v_mfma_f32_32x32x16_bf16 {acc}, {ar(aWD + 8*r + 4*(a >> 1))}, {dn.xr(xi)}, {'0' if s == 0 else acc}")
        if m == 0: mark(k, 'm0')
        if m in GEMM_MARKS.get(G.ph, ()): mark(k, f'm{m}')
        if (m % 2 == 0 or (xq.hold == 56 and m % DN_CR == 0)) and xq.n < min(lo[m] + NX, xq.total, xq.hold): xq.issue_n(1)
        elif m % 2 == 0 and xq.n == xq.total and ring.can_issue(): ring.issue()
        elif m > 4*DN_CHKB + 8:
            if res is None:
                k.wait(vm=rt); res = True
                side += res_unpack(vSUM, vRES)
            for _ in range(2 if DN16 else 4):
                if side: k(side.pop(0))
        if final and WB_MASK is not None and xq.n == xq.total and (WB_EARLY or k.vm_done == k.vm_issued) and not wb:
            wb = True; l_ = k.newlabel('wb')
            k(f"s_lshl_b32 s{sT1}, s{sC}, 2\ns_add_u32 s{sT1}, s{sT1}, s{sW}\ns_and_b32 s{sT1}, s{sT1}, {WB_MASK}")
            if WB_EARLY:
                k(f"s_cbranch_scc0 {l_}")
                k.vm(f"buffer_load_dword v15, off, {srd(sWS)}, s{dn.sFl} sc1")
                k.label(l_ + 'r')
                G.far += [f"{l_}:", "buffer_wbl2 sc1", f"s_branch {l_}r"]
            else:
                k(f"s_cbranch_scc1 {l_}")
                k("buffer_wbl2 sc1")
                k.label(l_)
            print('wbl2 at', m, file=sys.stderr)
        if wr and wr[0][0] <= m:
            assert not side
            for _ in range(min(DN_WR, len(wr))):
                if wr[0][0] <= m: k.lg(wr.pop(0)[1])
            if wr and DN_WR == 1: wr[0] = (max(wr[0][0], m + DN_WGAP), wr[0][1])
            if not wr and a == 0: tail = min(m + 2, 111)
        if s == 27 and a:
            wr += [(m + 2, f"ds_write_b128 v{5+a}, {vr(vACC+16*a+4*j)} offset:{j*KB}") for j in range(4)]
        def fetch(bs):
            k("s_barrier")
            for b in bs:
                for j in range(4): t_ = k.lg(f"ds_read_b128 {vr(vACC+16+16*b+4*j)}, v9 offset:{b*4*KB + j*KB}")
                adds.extend((m + 2, t_, f"v_add_f32 v{vSUM+i}, v{vSUM+i}, v{vACC+16+16*b+i}") for i in range(16))
        if DN_X2 and m == 112 - R0:
            assert all('ds_write_b128 v6,' in x[1] for x in wr)
            k.wait_all(vm=False)
            fetch((2, 1))
        elif tail == m:
            k.wait_all(vm=False)
            fetch((0,) if DN_X2 else (2, 1, 0))
        else:
            for _ in range(2 if DN16 else DN_ADDS):
                if adds and adds[0][0] <= m:
                    _, t_, x = adds.pop(0); k.wait(lg=t_); k(x)
    assert not side and not wr and tail is not None and tail < 112
    for _, t_, x in adds:
        k.wait(lg=t_); k(x)
    if final and not OUT_T: rowmajor_addr(k, 6, sT0)
    for j in range(8):
        k(f"v_add_f32 v{vACC+2*j}, v{vACC+2*j}, v{vSUM+2*j}\nv_add_f32 v{vACC+2*j+1}, v{vACC+2*j+1}, v{vSUM+2*j+1}")
        k(f"v_cvt_pk_bf16_f32 v{vPK+j}, v{vACC+2*j}, v{vACC+2*j+1}")
        if DN16 and j in (3, 7): k(f"v_permlane16_swap_b32 v{vPK+j-3}, v{vPK+j-1}\nv_permlane16_swap_b32 v{vPK+j-2}, v{vPK+j}")
        if final and OUT_T and j in (3, 7): k.lg(f"ds_write_b128 v10, {vr(vPK+j-3)} offset:{(j >> 2)*32}")
    if final and OUT_T:
        k.wait_all(vm=False)
        k("s_barrier")
        t0 = k.lg(f"ds_read_b128 {vr(vPK)}, v11")
        t1 = k.lg(f"ds_read_b128 {vr(vPK+4)}, v11 offset:{8*144}")
        k.wait(lg=t0)
        k.vm(f"buffer_store_dwordx4 {vr(vPK)}, v13, {srd(sAUX)}, s{sT0} offen{OUT_SC}")
        k.wait(lg=t1)
        k.vm(f"buffer_store_dwordx4 {vr(vPK+4)}, v13, {srd(sAUX)}, s{sT2} offen{OUT_SC}")
    elif final:
        k.vm(f"buffer_store_dwordx4 {vr(vPK)}, v6, {srd(sAUX)}, s{sT0} offen{OUT_SC}")
        k.vm(f"buffer_store_dwordx4 {vr(vPK+4)}, v6, {srd(sAUX)}, s{sT0} offen offset:32{OUT_SC}")
    else:
        G.tx = store_x(k, vACC, vPK, L, 8, ring, m16=DN16)
    mark(k, 'end')

def k_main(name):
    k = Asm()
    G.nst = 0
    k(f".globl {name}\n.p2align 8\n.type {name},@function")
    k.label(name)
    if STAMP or PADTO or GATE: k("s_memrealtime s[42:43]")
    mark(k, 'start')
    k("s_cmp_ge_u32 s2, 256")
    k("s_cbranch_scc1 L_abort")
    k(f"s_load_dwordx2 s[{sWS}:{sWS+1}], s[0:1], 72")
    k(f"s_load_dwordx2 s[{sAUX}:{sAUX+1}], s[0:1], 56")
    k("s_load_dwordx2 s[60:61], s[0:1], 0\ns_load_dwordx4 s[64:67], s[0:1], 8\ns_load_dwordx4 s[68:71], s[0:1], 32\ns_load_dwordx2 s[72:73], s[0:1], 48")
    if CT0:
        k("s_getpc_b64 s[88:89]")
        k(f"s_lshr_b32 s90, s2, 3\ns_and_b32 s90, s90, {CT0 - 1}\ns_lshl_b32 s90, s90, 12\nv_lshl_add_u32 v3, v0, 4, s90")
        k.vm("global_load_dword v247, v3, s[88:89]")
    k("v_lshrrev_b32 v2, 6, v0")
    k(f"v_and_b32 v{vL16}, 63, v0")
    k(f"v_readfirstlane_b32 s{sW}, v2")
    k(f"v_lshlrev_b32 v{vL16}, 4, v{vL16}")
    k(f"s_mov_b32 s{sWG}, s2\ns_and_b32 s{sG}, s2, 7\ns_lshr_b32 s{sC}, s2, 3\ns_lshl_b32 s{sW1K}, s{sW}, 10")
    k(f"s_lshr_b32 s{sC4}, s{sC}, 4\ns_lshr_b32 s{sC3}, s{sC}, 3")
    k(f"s_lshl_b32 s{sU}, s{sG}, 5\ns_add_u32 s{sU}, s{sU}, s{sC}")
    k(f"s_lshl_b32 s{sW4K}, s{sW}, 12\ns_lshl_b32 s{sW2K}, s{sW}, 11")
    k(f"s_getreg_b32 s{sXCC}, hwreg(HW_REG_XCC_ID, 0, 4)")
    k(f"v_add_u32 v{vSRC}, s{sW1K}, v{vL16}")
    k(f"s_mov_b32 s{sMSK}, 0xffff\ns_mov_b32 s{sMSK+1}, 0xffff\ns_mov_b32 s{sMODE}, 0")
    k(f"s_and_b32 s{sT0}, s{sC}, 7\ns_mul_i32 s{sSEG}, s{sT0}, {WO_STR}\ns_add_u32 s{sSEG}, s{sSEG}, {WO}")
    k(f"s_lshl_b32 s{sT1}, s{sG}, 2\ns_add_u32 s{sT1}, s{sT1}, s{sC3}\ns_lshl_b32 s{sT1}, s{sT1}, 1\ns_and_b32 s{sT2}, s{sW}, 1\ns_add_u32 s{sT1}, s{sT1}, s{sT2}")
    k(f"s_lshl_b32 s{sT1}, s{sT1}, 5\ns_lshl_b32 s{sT0}, s{sT0}, 2\ns_add_u32 s{sT1}, s{sT1}, s{sT0}\ns_and_b32 s{sT2}, s{sW}, 2\ns_add_u32 s{sT1}, s{sT1}, s{sT2}\ns_lshl_b32 s{sDST}, s{sT1}, 10")
    k(f"s_lshr_b32 s{sSD}, s{sDST}, 12\ns_lshl_b32 s{sSD}, s{sSD}, 9\ns_lshl_b32 s{sT2}, s{sT2}, 2\ns_add_u32 s{sSD}, s{sSD}, s{sT2}\ns_add_u32 s{sSD}, s{sSD}, {SX}")
    k(f"s_and_b32 s{sT0}, s{sC}, 15\ns_mul_i32 s{sSEG+1}, s{sT0}, {WU_STR}\ns_add_u32 s{sSEG+1}, s{sSEG+1}, {WU}")
    k(f"s_mul_i32 s{sSEG+2}, s{sT0}, {WQ_STR}\ns_add_u32 s{sSEG+2}, s{sSEG+2}, {WQ}")
    def late(k):
        if WSOFF: k(f"s_add_u32 s{sWS}, s{sWS}, {WSOFF}\ns_addc_u32 s{sWS+1}, s{sWS+1}, 0")
        k(f"s_add_u32 s{sT0}, s{sWS}, {EP}\ns_addc_u32 s{sT1}, s{sWS+1}, 0")
        k(f"s_load_dwordx2 s[{sTAG}:{sTAG+1}], s[{sT0}:{sT1}], 0")
        k(f"s_and_b32 s{sWS+1}, s{sWS+1}, 0xffff\ns_mov_b32 s{sWS+2}, {0x10000000 - WSOFF}\ns_mov_b32 s{sWS+3}, 0x20000")
        k(f"s_and_b32 s{sAUX+1}, s{sAUX+1}, 0xffff\ns_mov_b32 s{sAUX+2}, {2*MB}\ns_mov_b32 s{sAUX+3}, 0x20000")
    G.ph = 'qkv0'; tk = (ph_qkv0k if Q0K else ph_qkv0)(k, late)
    for L in range(2):
        ring = Ring(k, [(sSEG, 64), (sSEG+1, 232)] + ([(sSEG+2, 100)] if L == 0 else []))
        G.ph = f'att{L}'; tO = ph_att(k, L, ring, *tk)
        G.ph = f'wo{L}'; tx = ph_wo(k, L, ring, tO)
        G.ph = f'up{L}'; tB = ph_up(k, L, ring, 64, tx)
        G.ph = f'dn{L}'; ph_down(k, L, ring, tB)
        G.ph = 'qkv1'
        if L == 0: tk = ph_qkv(k, 1, ring, 296)
    k(f"s_add_u32 s{sT0}, s{sWG}, s{sW}\ns_cmp_lg_u32 s{sT0}, 0\ns_cbranch_scc1 L_fin")
    k(f"s_mov_b32 s{sF}, {EP}")
    publish_local(k, None, force_global=True)
    k.label("L_fin")
    if PADTO:
        k("s_waitcnt vmcnt(0)")
        if PADMIN:
            k("s_load_dwordx2 s[64:65], s[0:1], 64\ns_waitcnt lgkmcnt(0)")
            k("s_not_b32 s66, s42\nv_mov_b32 v8, s66\nv_mov_b32 v9, 0\ns_mov_b64 exec, 1")
            k("global_atomic_umax v9, v8, s[64:65]\ns_waitcnt vmcnt(0)")
            k.label("L_pad0")
            k(f"s_memrealtime s[98:99]\ns_waitcnt lgkmcnt(0)\ns_sub_u32 s98, s98, s42\ns_cmp_lt_u32 s98, {PADTO - 1500}\ns_cbranch_scc1 L_pad0")
            k("global_load_dword v8, v9, s[64:65] sc1\ns_waitcnt vmcnt(0)\nv_readfirstlane_b32 s66, v8\ns_not_b32 s42, s66\ns_mov_b64 exec, -1")
        k.label("L_pad")
        k(f"s_memrealtime s[98:99]\ns_waitcnt lgkmcnt(0)\ns_sub_u32 s98, s98, s42\ns_cmp_lt_u32 s98, {PADTO}\ns_cbranch_scc1 L_pad")
    if STAMP:
        k("s_waitcnt vmcnt(0)")
        G.ph = ''; mark(k, 'fin')
        k("s_memrealtime s[98:99]\ns_waitcnt lgkmcnt(0)")
        vals = [42, 98, sMODE] + STS[:G.nst]
        for i, s_ in enumerate(vals): k(f"v_mov_b32 v{16+i}, s{s_}")
        k(f"s_lshl_b32 s{sT0}, s{sWG}, 2\ns_add_u32 s{sT0}, s{sT0}, s{sW}\ns_lshl_b32 s{sT0}, s{sT0}, 7\ns_add_u32 s{sT0}, s{sT0}, {TS}")
        k("v_mov_b32 v4, 0\ns_mov_b64 exec, 1")
        for j in range(8): k(f"buffer_store_dwordx4 {vr(16+4*j)}, v4, {srd(sWS)}, s{sT0} offen offset:{16*j}")
        if DBG is not None:
            k(f"s_lshl_b32 s{sT0}, s{sWG}, 2\ns_add_u32 s{sT0}, s{sT0}, s{sW}\ns_cmp_lg_u32 s{sT0}, {DBG}\ns_cbranch_scc1 L_nodbg")
            k("s_load_dwordx2 s[64:65], s[0:1], 64\ns_waitcnt lgkmcnt(0)")
            for i in range(16): k(f"v_sub_u32 v{64+i}, v{20+i}, v19")
            for j in range(4): k(f"global_store_dwordx4 v4, {vr(64+4*j)}, s[64:65] offset:{16*j}")
            k.label("L_nodbg")
    k("s_waitcnt vmcnt(0)")
    k.label("L_abort")
    k("s_endpgm")
    for x in G.near + G.far:
        if x.endswith(':'): k.label(x[:-1])
        else: k(x)
    k.label("L_end")
    return k

def build():
    name = NAME + "_kernel"
    k = k_main(name)
    nn = k.fix()
    print(f"{len(k.L)} lines, {nn} nop states", file=sys.stderr)
    head = f"; stamps: {','.join(G.names)}\n" if (STAMP or not FINAL) else HDR
    return f"""{head}; @launch grid=(256,1,1) block=(256,1,1) lds={160*KB}
.amdgcn_target "amdgcn-amd-amdhsa--gfx950"
.text
{k.text()}
.section .rodata,"a"
.p2align 6
.amdhsa_kernel {name}
  .amdhsa_next_free_vgpr 512
  .amdhsa_next_free_sgpr 102
  .amdhsa_accum_offset 256
  .amdhsa_group_segment_fixed_size 0
  .amdhsa_kernarg_size 80
  .amdhsa_user_sgpr_count 2
  .amdhsa_user_sgpr_kernarg_segment_ptr 1
  .amdhsa_system_sgpr_workgroup_id_x 1
.end_amdhsa_kernel
"""

if __name__ == "__main__":
    for a in sys.argv[2:]:
        kk_, vv_ = a.split('=', 1)
        globals()[kk_] = eval(vv_)
    open(sys.argv[1], "w").write(build())
```

```python
import sys, struct
from asmlib import Asm

NAME = "interleave_layers__mha_block__glu_gated_bilinear__prompt"
KB = 1024; MB = KB * KB
LOG2E = 1.4426950408889634
def f2u(x): return struct.unpack('<I', struct.pack('<f', x))[0]
def srd(b): return f"s[{b}:{b+3}]"
def vr(b, n=4): return f"v[{b}:{b+n-1}]"
def ar(b, n=4): return f"a[{b}:{b+n-1}]"

WQ = 0;                    WQ_STR = 100 * KB
WO = WQ + 16 * WQ_STR;     WO_STR = 64 * KB
WU = WO + 8 * WO_STR;      WU_STR = 232 * KB
WD = WU + 16 * WU_STR
FL = 7 * MB + 640 * KB
assert WD + 16 * 112 * KB <= FL
EP = FL
XID = FL + 1 * KB
def FLOC(L, p): return FL + 4 * KB + (L * 13 + p) * 8 * KB
FKV0 = FL + 4 * KB + 26 * 8 * KB
def FKV(L): return FKV0 + L * 32 * KB
FPK = FKV0 + 64 * KB
assert FPK + 32 * KB <= 8 * MB
XF = 8 * MB
HF = 10 * MB
QF = HF
SX = 17 * MB
SG = SX + 512 * KB
def KVF(L): return 18 * MB + L * 4 * MB
WS_PAGES = 13
TS = 27 * MB
DUMP = 0x7ff00000

STAMP = False
LN_BF16 = True
XB_PRE = 0
Q0K_FLAG = 24; Q0K = True; Q0K_Q = (3, 4, 4, 4, 5, 5, 5, 5); Q0K_LEAD = 40; Q0K_EPI = 8
RES_AT = 97
PKR_AT = 5; PK_WAIT = 0; PUB_AT = 17
QF_AT = 1
PREFILL = 128; A1_AT = (0, 2); KVF_AT = (3, 0); P2 = ((0, 2), (3, 6)); Q0_RSH = 1
Q0G = False; Q0_ST0 = 24; Q0_GLD = 5
DIAG_W = False
U16_HOLD = 999; U16_BIG = False
DN16 = False
UP16 = True; U16_FIN = 64; U16_PUB = (156, 206); U16_POLL = (174, 226); U16_CHK = 188; U16_SLOTS = 3
FL1 = False; PP_SLEEP = 1
FINAL = False
HDR = "; Two transformer layers (LN -> MHA -> residual, LN -> bilinear GLU -> residual) in ONE persistent launch:\n;    finite, else the wave recomputes its rows with the true row maximum subtracted (labels fb_*).\n"
NEAR = True; CT0 = 8
GATE = None
WB_EARLY = False
DIAG_NOP = {}
UP4 = False; DN_POLL3 = 18; DN_CHK3 = 30
DN_X2 = True; DN_ADDS = 5; DN_CR = 2
RES_LATE = (False, False); XRES_TOUCH = 0
HEAD = 0
QKV_QE = 6; QKV_EPI = 5
R1_AT = 44; R1_STEP = 6
KV_LOC = True
PADTO = 0; PADMIN = False
OUT_T = True
ATT_NT = 3
PK_WIN2 = False; PK_SP = 0
WARM_AT = 1
RT = False
DN_CHK2 = 4
CT_AT = 92
FORCE_FB = False
WB_MASK = 127; OUT_SC = ' sc1'; DN_WR = 1; DN_WGAP = 2
QW_LATE = False; QW_UP = 32; QW_TOUCH = (72, 100); QW_N1 = 4
PK_Q0 = False; PK_RD = 1; PK_ST = 3; CHK_Q0 = 15
WO_STOP = 32; WO_R0 = 8; WO_N0 = 10; ST_PRE = 5; PPOLL = 0; KV_PF = (0, 0); PK_EARLY = True
FL_TOUCH = False
SPLIT_ST = True
FINE = False
UP_EPI = 2; UP_PUB = (154, 206); DN_POLL = (172, 226); DN_CHK = (186,); UP_LOOK = 8; UP_SYNCS = {0, 48, 80, 112, 144, 176, 200}; UP_SKIP = (0, 0); UP_STOP = 222
DN_PUBB = 4; DN_BAR = 14; DN_POLLB = 7; DN_CHKB = 12; DN_R = 8; DN_R0 = 12
FLAG_TOUCH = False
WSOFF = 0
SLEEP1 = (0, 0); SLEEP2 = 0; SLEEP3 = 0
DBG = None
PRE = 2; PRE2 = 0
PRE_WO = 0; PRE_WO2 = 0
CODE_TOUCH = True
WD_SLOTS = (2, 4, 6)
TOUCH_AT = (99, 96); TOUCH_STEP = (2, 2); TOUCH_LN = 32; TH_STEP = 3; TOUCH_KBS = (64, 96)
RING = 144
PK_T0 = 9; PK_GAP = 6; PK_GAP2 = 9; CHK_GAP = 14
P2_AT = 6
P2_LEAD = 4
TACTS = (103, 102); EARLY_H = 0

sC4, sC3 = 2, 3
sWS, sAUX = 4, 8
sW, sG, sC, sW1K = 12, 13, 14, 15
sT0, sT1, sT2, sT3 = 16, 17, 18, 19
sX, sRS, sRB = 20, 21, 22
sA, sB, sCc, sD, sE = 23, 24, 25, 26, 27
sS0, sS1 = 28, 21
sMSK, sTAG, sMODE, sXCC = 30, 32, 34, 35
sSEG = 36
sX2 = 39
sSPIN, sF = 40, 41
STS = list(range(44, 56, 2)) + [92, 94, 56, 58, 74, 76, 80, 82, 86, 88, 60, 62]
sWG = 101
sW4K = 97
sW2K = 99
sSD = 29
sPC, sCT = 90, 85
sDST = 100
vL16, vSRC, vB = 1, 2, 3
aWD, aWB = 0, 224

class G:
    nst = 0
    names = []
    far = []
    near = []
    ph = ''
SKIP = ''
ATT_MARKS = ()
GEMM_MARKS = {}
def mark(k, nm='x'):
    import re
    nm = G.ph + '_' + nm
    if GATE and GATE[0] == nm:
        k.label("L_gate")
        k(f"s_memrealtime s[98:99]\ns_waitcnt lgkmcnt(0)\ns_sub_u32 s98, s98, s42\ns_cmp_lt_u32 s98, {GATE[1]}\ns_cbranch_scc1 L_gate")
    if SKIP and re.match(SKIP, nm): return
    if '_f_' in nm and not FINE: return
    if STAMP:
        G.names.append(nm)
        k(f"s_mem{'real' if RT else ''}time s[{STS[G.nst]}:{STS[G.nst]+1}]")
        G.nst += 1

class Ring:
    def __init__(self, k, segs):
        self.k = k; self.N = RING
        self.total = sum(n for _, n in segs)
        self.starts = {}
        b = 0
        for s, n in segs:
            assert n % 4 == 0
            self.starts[b] = s; b += n
        self.issued = 0; self.freed = 0; self.visible = 0
        self.limit = None
        self.tick = {}
        self.pair = False
    def can_issue(self):
        if self.limit is not None and self.issued + 4 > self.limit: return False
        return self.issued < self.total and self.issued + 4 <= self.freed + self.N
    def issue(self):
        k = self.k
        assert self.can_issue()
        slot = self.issued % self.N
        k(f"s_add_u32 m0, s{sW1K}, {slot*KB}")
        if self.issued in self.starts: k(f"s_mov_b32 s{sRS}, s{self.starts[self.issued]}")
        else: k(f"s_add_u32 s{sRS}, s{sRS}, 4096")
        self.tick[self.issued // 4] = k.vm(f"buffer_load_dwordx4 v{vSRC}, {srd(sWS)}, s{sRS} offen sc1 lds")
        self.issued += 4
    def parts(self):
        k = self.k
        assert self.can_issue()
        b = self.issued; self.issued += 4
        def ld(): self.tick[b // 4] = k.vm(f"buffer_load_dwordx4 v{vSRC}, {srd(sWS)}, s{sRS} offen sc1 lds")
        return [lambda: k(f"s_add_u32 m0, s{sW1K}, {(b % self.N)*KB}"),
                lambda: k(f"s_mov_b32 s{sRS}, s{self.starts[b]}" if b in self.starts else f"s_add_u32 s{sRS}, s{sRS}, 4096"), ld]
    def can8(self):
        b = self.issued
        if b % 8 or (b + 4) in self.starts or b + 8 > self.total or b + 8 > self.freed + self.N: return False
        return self.limit is None or b + 8 <= self.limit
    def parts8(self):
        k = self.k
        b = self.issued; self.issued += 8
        first = not self.pair; self.pair = True
        def src():
            if b in self.starts: k(f"s_add_u32 s{sRS}, s{self.starts[b]}, s{sW1K}")
            elif first: k(f"s_add_u32 s{sRS}, s{sRS}, 4096\ns_add_u32 s{sRS}, s{sRS}, s{sW1K}")
            else: k(f"s_add_u32 s{sRS}, s{sRS}, 8192")
        def ld1(): self.tick[b // 4] = self.tick[b // 4 + 1] = k.vm(f"buffer_load_dwordx4 v{vSRC}, {srd(sWS)}, s{sRS} offen offset:1024 sc1 lds")
        return [lambda: k(f"s_add_u32 m0, s{sW2K}, {(b % self.N)*KB}"), src,
                lambda: k.vm(f"buffer_load_dwordx4 v{vSRC}, {srd(sWS)}, s{sRS} offen sc1 lds")], [ld1]
    def end8(self):
        if self.pair:
            self.k(f"s_add_u32 s{sRS}, s{sRS}, 4096\ns_sub_u32 s{sRS}, s{sRS}, s{sW1K}")
            self.pair = False
    def issue16(self):
        k = self.k
        b = self.issued; slot = b % self.N
        assert slot + 16 <= self.N and b + 16 <= min(self.limit or 1 << 30, self.freed + self.N)
        assert not any(x in self.starts for x in range(b + 1, b + 16))
        k(f"s_add_u32 m0, s{sW4K}, {slot*KB}")
        if b in self.starts: k(f"s_add_u32 s{sRS}, s{self.starts[b]}, s{sW4K}")
        else: k(f"s_add_u32 s{sRS}, s{sRS}, 16384")
        for i in range(4):
            t = k.vm(f"buffer_load_dwordx4 v{vL16}, {srd(sWS)}, s{sRS} offen offset:{i*KB} sc1 lds")
        for q in range(4): self.tick[b // 4 + q] = t
        self.issued += 16
    def end16(self):
        self.k(f"s_sub_u32 s{sRS}, s{sRS}, s{sW4K}\ns_add_u32 s{sRS}, s{sRS}, 12288")
    def issue_n(self, n):
        for _ in range(n):
            if self.can_issue(): self.issue()
    def sync(self, consumed, need):
        k = self.k
        need = min(need, self.total)
        if need > self.visible:
            q = (need - 1) // 4
            assert q * 4 < self.issued, (need, self.issued)
            k.wait(vm=self.tick[q])
        k("s_barrier")
        q = self.visible // 4
        while q in self.tick and self.tick[q] <= k.vm_done: q += 1
        self.visible = q * 4
        assert self.visible >= need
        self.freed = max(self.freed, (consumed // 4) * 4)
    def addr(self, b): return (b % self.N) * KB

def set_lds_bases(k, extra_s=None):
    if extra_s is None: k(f"v_mov_b32 v{vB}, v{vL16}")
    else: k(f"v_add_u32 v{vB}, s{extra_s}, v{vL16}")
    k(f"v_add_u32 v{vB+1}, 0x10000, v{vB}")
    k(f"v_add_u32 v{vB+2}, 0x20000, v{vB}")

class XLoader:
    def __init__(self, k, total, reg, src, va=vL16):
        self.k = k; self.total = total; self.reg = reg; self.src = src; self.n = 0; self.t = []; self.va = va
        self.hold = total
    def issue_n(self, n):
        k = self.k
        for _ in range(n):
            i = self.n
            if i >= min(self.total, self.hold): return
            s_, imm = self.src(i)
            self.t.append(k.vm(f"buffer_load_dwordx4 {self.reg(i)}, v{self.va}, {srd(sWS)}, s{s_} offen offset:{imm} sc1"))
            self.n += 1
def lin_src(k):
    def f(i):
        if i and (i & 3) == 0: k(f"s_add_u32 s{sX}, s{sX}, 4096")
        return sX, (i & 3) * KB
    return f

class Gemm:
    def __init__(self, k, ring, ops, syncs, D=4, NB=8, stop_issue=None):
        self.k = k; self.ring = ring; self.ops = ops; self.syncs = sorted(syncs)
        assert all(x % 2 == 0 for x in syncs)
        self.D = D; self.NB = NB; self.tl = {}; self.nread = 0
        self.stop = stop_issue if stop_issue is not None else len(ops)
    def rd(self):
        k = self.k; m = self.nread; o = self.ops[m]
        assert o['bmax'] < self.ring.visible, (m, o['b'], self.ring.visible)
        a = self.ring.addr(o['b'])
        self.tl[m] = k.lg(f"ds_read_b128 {ar(aWB + 4*(m % self.NB))}, v{vB + (a >> 16)} offset:{a & 0xffff}")
        self.nread += 1
    def need_until(self, m):
        M = len(self.ops)
        nxt = [s for s in self.syncs if s > m]
        last = min((nxt[0] if nxt else M) - 1 + self.D, M - 1)
        return max(o['bmax'] for o in self.ops[:last+1]) + 1
    def start(self):
        self.ring.sync(self.ops[0]['bmin'], self.need_until(0))
        while self.nread < min(self.D, len(self.ops)): self.rd()
    def run(self, xq, n0=6, look=10, filler=None, misc=(), misc_from=0, skip=0):
        k = self.k; M = len(self.ops)
        misc = list(misc)
        xq.issue_n(n0)
        cur = 0
        for m in range(M):
            if m in self.syncs and m > 0:
                self.ring.sync(self.ops[m]['bmin'], self.need_until(m))
            o = self.ops[m]
            xt = None
            if m % 2 == 0:
                xs = [p['xi'] for p in self.ops[m:m+2] if p.get('xi') is not None]
                if xs:
                    cur = max(cur, max(xs))
                    while xq.n <= max(xs): xq.issue_n(1)
                    xt = xq.t[max(xs)]
                k.wait(vm=xt, lg=self.tl[min(m + 1, M - 1)])
            w = ar(aWB + 4*(m % self.NB))
            c = o.get('c0', '0') if o['first'] else o['acc']
            A, B = (o['x'], w) if o['swap'] else (w, o['x'])
            k(f"v_mfma_f32_32x32x16_bf16 {o['acc']}, {A}, {B}, {c}")
            if m == 0: mark(k, 'm0')
            if m in GEMM_MARKS.get(G.ph, ()): mark(k, f'm{m}')
            if m % 2 == 0:
                for _ in range(2):
                    if self.nread < M: self.rd()
                if DIAG_NOP.get(G.ph): k(f"s_nop {DIAG_NOP[G.ph]}")
            elif not (skip and m % skip == skip - 1):
                rok = m < self.stop and self.ring.can_issue()
                if xq.n < xq.total and (xq.n - cur < look or not (rok or (misc and m >= misc_from))): xq.issue_n(1)
                elif misc and m >= misc_from: misc.pop(0)()
                elif rok: self.ring.issue()
            if filler: filler(m)
        assert not misc

def stats_emitters(k, vt, res):
    k(f"s_lshl_b32 s{sS0}, s{sRB}, 12\ns_add_u32 s{sS0}, s{sS0}, {SX}")
    def mk(i):
        def f(): res['t'] = k.vm(f"buffer_load_dwordx4 {vr(vt+4*i)}, v{vL16}, {srd(sWS)}, s{sS0} offen offset:{i*KB} sc1")
        return f
    return [mk(i) for i in range(4)]

NTREE = 14
def fin_stats(vt, vext, vrstd):
    ins = []
    n = 8
    while n > 1:
        h = n // 2
        for i in range(h):
            ins.append(f"v_add_f32 v{vt+2*i}, v{vt+2*i}, v{vt+2*(i+h)}")
            ins.append(f"v_add_f32 v{vt+2*i+1}, v{vt+2*i+1}, v{vt+2*(i+h)+1}")
        n = h
    a, b, c, d = vt, vt+1, vt+2, vt+3
    ins += [f"v_mov_b32 v{c}, v{a}", f"v_mov_b32 v{d}, v{b}",
            f"v_permlane32_swap_b32 v{a}, v{c}", f"v_permlane32_swap_b32 v{b}, v{d}",
            f"v_add_f32 v{a}, v{a}, v{c}", f"v_add_f32 v{b}, v{b}, v{d}",
            f"v_mul_f32 v{a}, {hex(f2u(-1.0/512))}, v{a}",
            f"v_mul_f32 v{b}, {hex(f2u(1.0/512))}, v{b}",
            f"v_fma_f32 v{b}, -v{a}, v{a}, v{b}",
            f"v_max_f32 v{b}, 0, v{b}"]
    rnd = lambda r: [f"v_cvt_pk_bf16_f32 v{r}, v{r}, 0", f"v_lshlrev_b32 v{r}, 16, v{r}"]
    if LN_BF16:
        ins += rnd(b) + [f"v_add_f32 v{b}, {hex(f2u(1e-5))}, v{b}"] + rnd(b) + [f"v_sqrt_f32 v{b}, v{b}",
                f"v_cvt_pk_bf16_f32 v{vext}, v{a}, v{a}"] + rnd(b) + [f"v_rcp_f32 v{vrstd}, v{b}",
                f"v_mov_b32 v{vext+1}, 0", f"v_mov_b32 v{vext+2}, v{vext}", f"v_mov_b32 v{vext+3}, 0"]
    else:
        ins += [f"v_add_f32 v{b}, {hex(f2u(1e-5))}, v{b}", f"v_rsq_f32 v{vrstd}, v{b}",
                f"v_cvt_pk_bf16_f32 v{vext}, v{a}, v{a}", f"v_and_b32 v{c}, 0xffff0000, v{vext}", f"v_sub_f32 v{c}, v{a}, v{c}",
                f"v_cvt_pk_bf16_f32 v{vext+1}, v{c}, 0", f"v_mov_b32 v{vext+2}, v{vext}", f"v_mov_b32 v{vext+3}, v{vext+1}"]
    return ins

def poll(k, vaddr, vpd, sleep=0):
    l = k.newlabel('poll')
    k(f"s_mov_b32 s{sSPIN}, 0x40000")
    k.label(l)
    k.vm(f"buffer_load_dwordx2 {vr(vpd,2)}, v{vaddr}, {srd(sWS)}, s{sF} offen sc1")
    k(f"s_sub_u32 s{sSPIN}, s{sSPIN}, 1")
    k("s_cbranch_scc1 L_abort")
    k.wait_all(lg=False)
    k(f"v_cmp_ne_u64 vcc, s[{sTAG}:{sTAG+1}], {vr(vpd,2)}")
    k(f"s_cbranch_vccnz {l}")
class APoll:
    def __init__(self, k, loads, cmp, sleep=0):
        self.k = k; self.loads = loads; self.cmp = cmp; self.sleep = sleep
    def issue(self):
        for x in self.loads:
            if x.startswith('buffer'): self.t = self.k.vm(x)
            else: self.k(x)
    def check(self):
        k = self.k
        l = k.newlabel('ap'); ok = k.newlabel('apok')
        k.wait(vm=self.t)
        k(self.cmp)
        k(f"s_cbranch_vccnz {l}")
        k.label(ok)
        (G.near if NEAR else G.far).extend([f"{l}:", f"s_mov_b32 s{sSPIN}, 0x40000", f"{l}_l:"] + list(self.loads) + [
            f"s_sub_u32 s{sSPIN}, s{sSPIN}, 1", "s_cbranch_scc1 L_abort", "s_waitcnt vmcnt(0)", self.cmp,
            f"s_cbranch_vccnz {l}_l", f"s_branch {ok}"])
def flush_near(k):
    if not G.near: return
    l = k.newlabel('nr')
    k(f"s_branch {l}")
    for x in G.near:
        if x.endswith(':'): k.label(x[:-1])
        else: k(x)
    k.label(l)
    G.near.clear()
def apoll1(k, vaddr, vpd, soff, sleep=0):
    return APoll(k, [f"buffer_load_dwordx2 {vr(vpd,2)}, v{vaddr}, {srd(sWS)}, s{soff} offen sc1"],
                 f"v_cmp_ne_u64 vcc, s[{sTAG}:{sTAG+1}], {vr(vpd,2)}", sleep)
def ppoll(k, vaddr, vd, n):
    l = k.newlabel('pp'); ok = k.newlabel('ppok')
    ld = lambda i: f"buffer_load_dwordx2 {vr(vd+2*i,2)}, v{vaddr}, {srd(sWS)}, s{sF} offen sc1"
    k(f"s_mov_b32 s{sSPIN}, 0x20000")
    for i in range(n - 1): k(ld(i))
    k.label(l)
    for i in range(n):
        k(ld((i + n - 1) % n))
        k(f"s_waitcnt vmcnt({n-1})")
        k(f"v_cmp_ne_u64 vcc, s[{sTAG}:{sTAG+1}], {vr(vd+2*i,2)}")
        k(f"s_cbranch_vccz {ok}")
        if PP_SLEEP: k(f"s_sleep {PP_SLEEP}")
    k(f"s_sub_u32 s{sSPIN}, s{sSPIN}, 1")
    k(f"s_cbranch_scc0 {l}")
    k("s_branch L_abort")
    k.label(ok)
    k.vm_done = k.vm_issued
def poll16(k):
    flush_near(k)
    k("v_and_b32 v13, 15, v0\nv_lshlrev_b32 v13, 3, v13")
    if PPOLL: ppoll(k, 13, 248, PPOLL)
    else: poll(k, 13, 14)

TAGMOV = [f"v_mov_b32 v14, s{sTAG}", f"v_mov_b32 v15, s{sTAG+1}"]
def publish_local(k, last_store, force_global=False, movs=True):
    if movs:
        for x in TAGMOV: k(x)
    if force_global:
        k.wait(vm=last_store)
        k.vm(f"buffer_store_dwordx2 v[14:15], off, {srd(sWS)}, s{sF} sc1")
        return
    slow = k.newlabel('slow'); join = k.newlabel('join')
    k(f"s_cmp_eq_u32 s{sMODE}, 0")
    k(f"s_cbranch_scc1 {slow}")
    if FL1: k("s_mov_b64 exec, 1")
    k.wait(vm=last_store)
    k.vm(f"buffer_store_dwordx2 v[14:15], off, {srd(sWS)}, s{sF}")
    if FL1: k("s_mov_b64 exec, -1")
    k.label(join)
    G.far += [f"{slow}:", "s_waitcnt vmcnt(0)", "buffer_wbl2 sc1", "s_waitcnt vmcnt(0)",
              f"buffer_store_dwordx2 v[14:15], off, {srd(sWS)}, s{sF} sc1", f"s_branch {join}"]
def publish_wg(k, last_store, xid=False, barrier=True):
    l = k.newlabel('pw')
    k(f"v_mov_b32 v13, 0\nv_mov_b32 v14, s{sTAG}\nv_mov_b32 v15, s{sTAG+1}")
    k.wait(vm=last_store)
    if barrier: k("s_barrier")
    k(f"s_cmp_lg_u32 s{sW}, 0\ns_cbranch_scc1 {l}")
    k("s_mov_b64 exec, 1")
    if xid:
        k(f"v_xor_b32 v12, s{sXCC}, v14\nv_mov_b32 v13, v15")
        k(f"buffer_store_dwordx4 v[12:15], v{vL16}, {srd(sWS)}, s{sF} offen sc1")
    else:
        k(f"buffer_store_dwordx2 v[14:15], v13, {srd(sWS)}, s{sF} offen sc1")
    k("s_mov_b64 exec, -1")
    k.label(l)

def rb_128(k):
    k(f"s_lshl_b32 s{sT0}, s{sC4}, 2\ns_lshl_b32 s{sRB}, s{sG}, 3\ns_add_u32 s{sRB}, s{sRB}, s{sT0}\ns_add_u32 s{sRB}, s{sRB}, s{sW}")

def store_x(k, acc, pk, L, p, ring=None, m16=False):
    k(f"s_add_u32 s{sT1}, s{sDST}, {XF}")
    k.vm(f"buffer_store_dwordx4 {vr(pk)}, v{vL16}, {srd(sWS)}, s{sT1} offen")
    td = k.vm(f"buffer_store_dwordx4 {vr(pk+4)}, v{vL16}, {srd(sWS)}, s{sT1} offen offset:1024")
    mark(k, 'f_xs')
    A_ = [acc + i for i in ((0, 1, 2, 3, 8, 9, 10, 11) if m16 else range(0, 16, 2))]
    B_ = [acc + i for i in ((4, 5, 6, 7, 12, 13, 14, 15) if m16 else range(1, 16, 2))]
    k(f"v_add_f32 v10, v{A_[0]}, v{A_[1]}\nv_mul_f32 v11, v{A_[0]}, v{A_[0]}\nv_add_f32 v8, v{B_[0]}, v{B_[1]}\nv_mul_f32 v9, v{B_[0]}, v{B_[0]}")
    k(f"v_fmac_f32 v11, v{A_[1]}, v{A_[1]}\nv_fmac_f32 v9, v{B_[1]}, v{B_[1]}")
    for i in range(2, 8):
        k(f"v_add_f32 v10, v10, v{A_[i]}\nv_fmac_f32 v11, v{A_[i]}, v{A_[i]}\nv_add_f32 v8, v8, v{B_[i]}\nv_fmac_f32 v9, v{B_[i]}, v{B_[i]}")
        if ring and i in (2, 5): ring.issue_n(ST_PRE)
    if m16: k("v_permlane16_swap_b32 v10, v8\nv_permlane16_swap_b32 v11, v9")
    k("v_add_f32 v10, v10, v8\nv_add_f32 v11, v11, v9\nv_mov_b32 v8, v10\nv_mov_b32 v9, v11")
    k("v_permlane32_swap_b32 v10, v8\nv_permlane32_swap_b32 v11, v9\nv_add_f32 v10, v10, v8\nv_add_f32 v11, v11, v9")
    k("s_mov_b32 exec_hi, 0")
    ts = k.vm(f"buffer_store_dwordx2 v[10:11], v{vL16}, {srd(sWS)}, s{sSD} offen")
    k("s_mov_b64 exec, -1")
    k(f"s_lshr_b32 s{sF}, s{sDST}, 8\ns_add_u32 s{sF}, s{sF}, {FLOC(L, p)}")
    mark(k, 'f_ss')
    if SPLIT_ST:
        publish_local(k, td)
        k(f"s_add_u32 s{sF}, s{sF}, {FLOC(L, 6 if p == 1 else 7) - FLOC(L, p)}")
    return ts
def stats_poll(k, delta):
    if not SPLIT_ST: return []
    k(f"s_add_u32 s{sF}, s{sF}, {delta}")
    ap = apoll1(k, 13, 14, sF)
    return ap

def rowmajor_addr(k, va, s_out):
    k(f"v_and_b32 v{va}, 31, v0\nv_lshlrev_b32 v{va}, 10, v{va}\nv_bfe_u32 v{va+1}, v0, 5, 1\nv_lshlrev_b32 v{va+1}, 4, v{va+1}\nv_add_u32 v{va}, v{va}, v{va+1}")
    k(f"s_and_b32 s{s_out}, s{sDST}, 0xffff8000\ns_bfe_u32 s{sT3}, s{sDST}, 0x5000a\ns_lshl_b32 s{sT3}, s{sT3}, 5\ns_add_u32 s{s_out}, s{s_out}, s{sT3}")

sU = 96
def pack_decode(k):
    nm = "pk"; u = f"s{sU}"
    k(f"s_min_u32 s83, {u}, 231")
    u = "s83"
    k(f"s_and_b32 s90, s{sW}, 1\ns_lshr_b32 s91, s{sW}, 1")
    k(f"s_cmp_lt_u32 {u}, 48\ns_cbranch_scc1 {nm}_q")
    k(f"s_cmp_lt_u32 {u}, 160\ns_cbranch_scc1 {nm}_u")
    k(f"s_cmp_lt_u32 {u}, 176\ns_cbranch_scc1 {nm}_o")
    k(f"s_sub_u32 s84, {u}, 176\ns_lshl_b32 s84, s84, 2\ns_add_u32 s84, s84, s{sW}")
    k("s_and_b32 s85, s84, 15\ns_lshr_b32 s86, s84, 4")
    k("s_lshl_b32 s87, s85, 6")
    k("s_add_u32 s74, s72, s87\ns_addc_u32 s75, s73, 0\ns_mov_b32 s76, s74\ns_mov_b32 s77, s75")
    k("s_mov_b32 s78, 1024\ns_lshl_b32 s79, s86, 7")
    k(f"s_mul_i32 s80, s85, 14\ns_add_u32 s80, s80, s86\ns_lshl_b32 s80, s80, 13\ns_add_u32 s80, s80, {WD}\ns_mov_b32 s81, 1024\ns_mov_b32 s88, s81\ns_mov_b32 s82, {DUMP}")
    k(f"s_branch {nm}_go")
    k.label(f"{nm}_o")
    k(f"s_sub_u32 s85, {u}, 160\ns_lshr_b32 s88, s85, 3\ns_and_b32 s85, s85, 7")
    k("s_lshl_b32 s87, s85, 1\ns_add_u32 s87, s87, s90\ns_lshl_b32 s87, s87, 6")
    k("s_add_u32 s74, s66, s87\ns_addc_u32 s75, s67, 0\ns_mov_b32 s76, s74\ns_mov_b32 s77, s75")
    k("s_mov_b32 s78, 1024\ns_lshl_b32 s79, s88, 1\ns_add_u32 s79, s79, s91\ns_lshl_b32 s79, s79, 7")
    k("s_lshl_b32 s89, s91, 15\ns_xor_b32 s90, s90, s88\ns_lshl_b32 s88, s88, 1\ns_add_u32 s90, s90, s88\ns_lshl_b32 s90, s90, 10")
    k(f"s_mul_i32 s80, s85, {WO_STR}\ns_add_u32 s80, s80, s89\ns_add_u32 s80, s80, s90\ns_add_u32 s80, s80, {WO}")
    k(f"s_mov_b32 s81, 4096\ns_mov_b32 s88, s81\ns_mov_b32 s82, {DUMP}")
    k(f"s_branch {nm}_go")
    k.label(f"{nm}_u")
    k(f"s_sub_u32 s85, {u}, 48\ns_mul_i32 s84, s85, 2341\ns_lshr_b32 s84, s84, 16\ns_mul_i32 s86, s84, 28\ns_sub_u32 s85, s85, s86")
    k(f"s_lshl_b32 s85, s85, 2\ns_add_u32 s85, s85, s{sW}\ns_lshl_b32 s87, s85, 5")
    k("s_add_u32 s74, s68, s87\ns_addc_u32 s75, s69, 0")
    k("s_add_u32 s76, s70, s87\ns_addc_u32 s77, s71, 0\ns_sub_u32 s76, s76, 32\ns_subb_u32 s77, s77, 0")
    k("s_mov_b32 s78, 3584")
    k("s_mul_i32 s86, s85, 9363\ns_lshr_b32 s86, s86, 16\ns_mul_i32 s88, s86, 7\ns_sub_u32 s88, s85, s88")
    if DN16: k("s_sub_u32 s89, 6, s88\ns_bitcmp0_b32 s86, 0\ns_cselect_b32 s88, s89, s88")
    k(f"s_mul_i32 s91, s86, {WU_STR}\ns_add_u32 s91, s91, {WU}\ns_lshl_b32 s89, s88, 10\ns_add_u32 s91, s91, s89")
    k(f"s_cmp_lt_u32 s88, 5\ns_cselect_b32 s90, 3, 5\ns_lshl_b32 s89, s90, 15\ns_add_u32 s89, s89, 1024")
    k(f"s_cmp_lt_u32 s88, 3\ns_cselect_b32 s81, 3, 2\ns_cselect_b32 s89, 0, s89\ns_cselect_b32 s90, 0, s90\ns_lshl_b32 s81, s81, 10\ns_add_u32 s91, s91, s89")
    k("s_sub_u32 s85, s88, s90\ns_lshl_b32 s85, s85, 10\ns_mov_b32 s88, 1024")
    k(f"s_branch {nm}_ext")
    k.label(f"{nm}_q")
    k(f"s_cmp_ge_u32 {u}, 24\ns_cselect_b32 s84, 2, 0\ns_cselect_b32 s86, 24, 0\ns_add_u32 s84, s84, s91\ns_sub_u32 s85, {u}, s86")
    k("s_lshl_b32 s85, s85, 1\ns_add_u32 s85, s85, s90\ns_and_b32 s86, s85, 15\ns_lshr_b32 s88, s85, 4")
    k("s_lshl_b32 s87, s85, 6\ns_lshl_b32 s89, s88, 10")
    k("s_add_u32 s74, s64, s87\ns_addc_u32 s75, s65, 0\ns_mov_b32 s76, s74\ns_mov_b32 s77, s75")
    k("s_mov_b32 s78, 3072")
    k(f"s_sub_u32 s89, s89, 1024\ns_cmp_eq_u32 s88, 0\ns_cselect_b32 s89, {66*KB}, s89\ns_cselect_b32 s81, 1, 2\ns_lshl_b32 s81, s81, 10")
    k(f"s_mul_i32 s91, s86, {WQ_STR}\ns_add_u32 s91, s91, s89\ns_add_u32 s91, s91, {WQ}\ns_mov_b32 s85, 0\ns_mov_b32 s88, s81")
    k.label(f"{nm}_ext")
    k("s_lshl_b32 s79, s84, 7")
    k("s_lshl_b32 s89, s81, 5\ns_add_u32 s82, s91, s89\ns_lshr_b32 s89, s84, 1\ns_lshl_b32 s89, s89, 9\ns_add_u32 s82, s82, s89")
    k("s_and_b32 s89, s84, 1\ns_lshl_b32 s89, s89, 3\ns_add_u32 s82, s82, s89")
    k("s_lshl_b32 s89, s81, 3\ns_mul_i32 s89, s89, s84\ns_add_u32 s80, s91, s89\ns_add_u32 s80, s80, s85")
    k.label(f"{nm}_go")
    k(f"s_cmp_ge_u32 s{sU}, 232\ns_cselect_b32 s80, {DUMP}, s80")
    k("v_bfe_u32 v4, v0, 2, 4\nv_add_u32 v4, s79, v4\nv_mul_lo_u32 v4, v4, s78")
    k("v_and_b32 v13, 3, v0\nv_lshlrev_b32 v13, 4, v13\nv_add_u32 v4, v4, v13")
    k(f"s_lshl_b32 s83, s78, 4")
    if PK_Q0: k(f"s_lshl_b32 s84, s{sW}, 13\ns_add_u32 s84, s84, {64*KB}")
    elif Q0K: k(f"s_lshl_b32 s84, s{sW}, 13")
    elif PK_EARLY: k(f"s_lshl_b32 s84, s{sW}, 13\ns_add_u32 s84, s84, {4*KB}")
    else: k(f"s_lshl_b32 s84, s{sW}, 14\ns_add_u32 s84, s84, {96*KB}")
    k("s_mov_b32 s86, s83\ns_mov_b32 s87, 0\ns_lshl_b32 s83, s81, 1\ns_sub_u32 s83, s83, s88\ns_mov_b32 s81, s88")
    k("v_and_b32 v13, 2, v0\nv_cmp_eq_u32 vcc, 0, v13")
    k("v_mov_b32 v14, s76\nv_mov_b32 v13, s74\nv_cndmask_b32 v14, v14, v13, vcc\nv_mov_b32 v15, s77\nv_mov_b32 v13, s75\nv_cndmask_b32 v15, v15, v13, vcc")
    k("v_add_co_u32 v4, vcc, v4, v14\nv_addc_co_u32 v5, vcc, 0, v15, vcc")
def pack_issue(k, i, sbase):
    k(f"s_add_u32 m0, s{sbase}, {i*KB}")
    if i: k("v_lshl_add_u64 v[4:5], v[4:5], 0, s[86:87]")
    return k.vm("global_load_lds_dwordx4 v[4:5], off")
def tr_addr(k, v, t):
    k(f"v_bfe_u32 v{v}, v0, 5, 1\nv_lshlrev_b32 v{v}, 9, v{v}")
    k(f"v_bfe_u32 v{t}, v0, 2, 2\nv_lshlrev_b32 v{t}, 6, v{t}\nv_add_u32 v{v}, v{v}, v{t}")
    k(f"v_bfe_u32 v{t}, v0, 4, 1\nv_lshlrev_b32 v{t}, 5, v{t}\nv_add_u32 v{v}, v{v}, v{t}")
    k(f"v_and_b32 v{t}, 1, v0\nv_lshlrev_b32 v{t}, 4, v{t}\nv_add_u32 v{v}, v{v}, v{t}")
    k(f"v_bfe_u32 v{t}, v0, 1, 1\nv_lshlrev_b32 v{t}, 3, v{t}\nv_add_u32 v{v}, v{v}, v{t}")
def ext_pair(src, dst, t0):
    return [f"v_mov_b32 v{t0}, v{src}", f"v_permlane32_swap_b32 v{src}, v{t0}", f"v_add_f32 v{src}, v{src}, v{t0}",
            f"v_cvt_pk_bf16_f32 v{dst+1}, v{src}, 0", f"v_lshlrev_b32 v{t0}, 16, v{dst+1}", f"v_sub_f32 v{src}, v{src}, v{t0}",
            f"v_cvt_pk_bf16_f32 v{dst}, v{t0}, v{src}"]
class Pack:
    def __init__(self, k): self.k = k; self.r = {}
    def issue(self, *ii):
        for i in ii: self.d = pack_issue(self.k, i, 84)
    def reads(self, *ii):
        k = self.k
        if ii[0] == 0:
            k("v_accvgpr_read_b32 v4, a212")
            k.wait(vm=self.d)
        for i in ii:
            k.lg(f"ds_read_b64_tr_b16 {ar(160+4*i,2)}, v4 offset:{i*KB}")
            self.r[i] = k.lg(f"ds_read_b64_tr_b16 {ar(162+4*i,2)}, v4 offset:{i*KB+256}")
    def csum(self, i):
        self.k.wait(lg=self.r[i])
        self.k(f"v_mfma_f32_32x32x16_bf16 {ar(196,16)}, {ar(192)}, {ar(160+4*i)}, {'0' if i == 0 else ar(196,16)}")
    def stores(self, *ii):
        k = self.k
        k.wait(lg=self.r[ii[-1]])
        for i in ii:
            k.vm(f"buffer_store_dwordx4 {ar(160+4*i)}, v{vL16}, {srd(sWS)}, s80 offen sc1")
            k(f"s_add_u32 s80, s80, s{83 if i & 1 else 81}")
    def ext(self):
        k = self.k
        k("v_accvgpr_read_b32 v13, a196")
        k("v_cvt_pk_bf16_f32 v15, v13, 0\nv_lshlrev_b32 v14, 16, v15\nv_sub_f32 v13, v13, v14\nv_cvt_pk_bf16_f32 v14, v14, v13")
        k("s_mov_b32 exec_hi, 0")
        self.s = k.vm(f"buffer_store_dwordx2 v[14:15], v{vL16}, {srd(sWS)}, s82 offen sc1")
        k("s_mov_b64 exec, -1")
    def pub(self):
        k = self.k
        k(f"s_lshl_b32 s{sF}, s{sU}, 7\ns_add_u32 s{sF}, s{sF}, {FPK}")
        publish_wg(k, self.s, xid=True)
    def schedule(self, job):
        t = PK_T0
        if not PK_EARLY:
            for i in range(4): job(t + i, lambda i=i: self.issue(2*i, 2*i+1))
            t += 4 + PK_GAP
        if PK_WIN2:
            job(t, self.pub)
            return t
        if PK_EARLY and PK_SP:
            for i in range(8): job(t + PK_SP*i, lambda i=i: self.stores(i))
            job(t + 8*PK_SP, self.ext)
            job(t + 8*PK_SP + PK_GAP2, self.pub)
            return t + 8*PK_SP + PK_GAP2
        if PK_EARLY:
            for i in range(4): job(t + i, lambda i=i: self.stores(2*i, 2*i+1))
            job(t + 4, self.ext)
            job(t + 4 + PK_GAP2, self.pub)
            return t + 4 + PK_GAP2
        job(t, lambda: self.reads(0, 1, 2, 3)); job(t + 1, lambda: self.reads(4, 5, 6, 7))
        for i in range(4):
            job(t + 2 + i, lambda i=i: self.stores(2*i, 2*i+1))
            job(t + 1 + i, lambda i=i: self.csum(2*i), e=14)
            job(t + 2 + i, lambda i=i: self.csum(2*i+1), e=0)
        job(t + 6, self.ext)
        job(t + 6 + PK_GAP2, self.pub)
        return t + 6 + PK_GAP2
def qkv_consts(vT, vRS, vR):
    return [f"v_cvt_pk_bf16_f32 v{vT}, v{vRS}, 0", f"v_lshlrev_b32 v{vT+1}, 16, v{vT}", f"v_sub_f32 v{vT+2}, v{vRS}, v{vT+1}",
            f"v_cvt_pk_bf16_f32 v{vT}, v{vT+1}, v{vT+2}", f"v_mov_b32 v{vT+1}, 0", f"v_mov_b32 v{vT+2}, 0", f"v_mov_b32 v{vT+3}, 0",
            f"v_cmp_gt_u32 vcc, 512, v{vL16}", f"v_mov_b32 v{vT+4}, 0x3f803f80", f"v_cndmask_b32 v{vT+4}, 0, v{vT+4}, vcc",
            f"v_mov_b32 v{vT+5}, 0", f"v_mov_b32 v{vT+6}, 0", f"v_mov_b32 v{vT+7}, 0",
            f"v_mul_f32 v{vRS+1}, {hex(f2u(0.25*LOG2E))}, v{vRS}",
            "v_bfe_u32 v12, v0, 4, 1", "v_lshlrev_b32 v12, 17, v12", "v_and_b32 v13, 15, v0", "v_lshlrev_b32 v13, 4, v13", "v_add_u32 v12, v12, v13",
            "v_bfe_u32 v13, v0, 5, 1", "v_lshlrev_b32 v13, 8, v13", "v_add_u32 v12, v12, v13",
            f"v_mfma_f32_32x32x16_bf16 {vr(vR,16)}, {vr(vT)}, {vr(vT+4)}, 0"]
def qk_tile(a, dst, sc, fl, p0):
    o = []
    sb, hs = (sB, KB) if dst == QF else (sCc, 128*KB)
    for half in range(2):
        p = p0 + 4*half
        for j in range(4):
            r = a + 8*half + 2*j
            o += [f"v_mul_f32 v{r}, v{r}, v{sc}", f"v_mul_f32 v{r+1}, v{r+1}, v{sc}", f"v_cvt_pk_bf16_f32 v{p+j}, v{r}, v{r+1}"]
        o += [f"s_add_u32 s{sT2}, s{sb}, {dst + half*hs}", f"buffer_store_dwordx4 {vr(p)}, v{vL16}, {srd(sWS)}, s{sT2} offen{fl}"]
    return o
def v_tile(a, L, vR, p0):
    o = [f"s_add_u32 s{sT2}, s{sCc}, {KVF(L) + KB}"]
    for u in range(2):
        p = p0 + 4*u
        for j in range(4):
            r = a + 8*u + 2*j; q = vR + 8*u + 2*j
            o += [f"v_mul_f32 v{r}, v{r}, v{q}", f"v_mul_f32 v{r+1}, v{r+1}, v{q+1}", f"v_cvt_pk_bf16_f32 v{p+j}, v{r}, v{r+1}"]
        o.append(f"buffer_store_dwordx4 {vr(p)}, v12, {srd(sWS)}, s{sT2} offen offset:{u*512} sc1")
    return o
def kv_flag(k, L, tkv):
    k(f"s_lshl_b32 s{sF}, s{sA}, 4\ns_lshr_b32 s{sT1}, s{sRB}, 2\ns_add_u32 s{sF}, s{sF}, s{sT1}\ns_lshl_b32 s{sF}, s{sF}, 7\ns_add_u32 s{sF}, s{sF}, {FKV(L)}")
    publish_wg(k, tkv)
def q_flag(k, L, tq):
    k(f"s_lshr_b32 s{sF}, s{sRB}, 3\ns_lshl_b32 s{sF}, s{sF}, 4\ns_add_u32 s{sF}, s{sF}, s{sA}\ns_lshl_b32 s{sF}, s{sF}, 3\ns_and_b32 s{sT1}, s{sRB}, 7\ns_add_u32 s{sF}, s{sF}, s{sT1}\ns_lshl_b32 s{sF}, s{sF}, 3\ns_add_u32 s{sF}, s{sF}, {FLOC(L-1,5)}")
    publish_local(k, tq, force_global=(L == 0))

WARM = True
LIN_AT = 99
LIN_U = True
Q0_ROT = True
Q0_MARKS = False
Q0_MARKJ = ()
Q0_SCHED = ((3, 4), (5,), (6,), (7,), (), (), (), ())
LATE_AT = 1
Q0_UP = 3
PK_AT = (5, 5, 6, 6, 6, 6, 6, 6)
def ph_qkv0(k, late):
    vX, vACC, vST, vEXT, vRS, vT, vR = 16, 144, 192, 8, 6, 224, 232
    vXA, vWA, vXR, vTR, vTW, vCS, vCW, vONE = 10, 12, 196, 200, 202, 204, 208, 220
    sXS, sWR, sXL, sWL = 60, 56, sD, sE
    rb_128(k)
    k(f"s_and_b32 s{sA}, s{sC}, 15")
    k(f"v_bfe_u32 v{vXA}, v0, 3, 3\nv_lshlrev_b32 v{vXA}, 10, v{vXA}\nv_and_b32 v13, 7, v0\nv_bfe_u32 v14, v0, 4, 2\nv_xor_b32 v13, v13, v14")
    k(f"v_lshlrev_b32 v13, 4, v13\nv_add_u32 v{vXA}, v{vXA}, v13\nv_xor_b32 v{vXA+1}, 64, v{vXA}")
    k(f"v_bfe_u32 v{vWA}, v0, 2, 4\nv_mul_u32_u24 v{vWA}, 3072, v{vWA}\nv_and_b32 v13, 3, v0\nv_lshlrev_b32 v13, 4, v13\nv_add_u32 v{vWA}, v{vWA}, v13")
    if DIAG_W: k(f"v_bfe_u32 v{vWA}, v0, 3, 3\nv_mul_u32_u24 v{vWA}, 6144, v{vWA}\nv_and_b32 v13, 7, v0\nv_lshlrev_b32 v13, 4, v13\nv_add_u32 v{vWA}, v{vWA}, v13\ns_and_b32 s{sA}, s{sA}, 14")
    k(f"s_lshl_b32 s{sX}, s{sRB}, 15")
    k(f"s_mul_i32 s{sX2}, s{sW}, 49152\ns_lshl_b32 s{sT0}, s{sA}, 6\ns_add_u32 s{sX2}, s{sX2}, s{sT0}")
    if DIAG_W: k(f"s_and_b32 s{sA}, s{sG}, 1\ns_lshl_b32 s{sA}, s{sA}, 3\ns_and_b32 s{sT0}, s{sC}, 7\ns_add_u32 s{sA}, s{sA}, s{sT0}")
    k(f"s_lshl_b32 s{sXL}, s{sW}, 14\ns_add_u32 s{sXL}, s{sXL}, {96*KB}\ns_mul_i32 s{sWL}, s{sW}, 3072")
    k("s_waitcnt lgkmcnt(0)")
    if Q0_MARKS: mark(k, 'karg')
    k(f"s_mov_b32 s{sWR}, s64\ns_and_b32 s{sWR+1}, s65, 0xffff\ns_mov_b32 s{sWR+2}, {512*3072}\ns_mov_b32 s{sWR+3}, 0x20000")
    k(f"s_and_b32 s{sXS+1}, s{sXS+1}, 0xffff\ns_mov_b32 s{sXS+2}, {2*MB}\ns_mov_b32 s{sXS+3}, 0x20000")
    ct = {}; cn = {j: 0 for j in range(8)}
    k(f"s_lshl_b32 s{sCc}, s{sC4}, 2\ns_lshr_b32 s{sT3}, s{sC}, {Q0_RSH}\ns_add_u32 s{sCc}, s{sCc}, s{sT3}\ns_add_u32 s{sCc}, s{sCc}, s{sG}")
    def rot(j):
        k(f"s_add_u32 s{sT3}, s{sCc}, {j}\ns_and_b32 s{sT3}, s{sT3}, {7 if Q0_ROT else 0}")
        if not Q0_ROT: k(f"s_mov_b32 s{sT3}, {j}")
        k(f"s_lshl_b32 s{sS0}, s{sT3}, 7\ns_add_u32 s{sS0}, s{sS0}, s{sX}")
        k(f"s_mul_i32 s{sS1}, s{sT3}, {4*49152}\ns_add_u32 s{sS1}, s{sS1}, s{sX2}")
    def ldW(j, t):
        k(f"s_add_u32 m0, s{sWL}, {(12*j + t)*KB}\ns_add_u32 s{sT2}, s{sS1}, {((t+1) % 3)*1024}")
        ct[j] = k.vm(f"buffer_load_dwordx4 v{vWA}, {srd(sWR)}, s{sT2} offen lds"); cn[j] += 1
    def ldX(j, i):
        if i == 0: rot(j)
        k(f"s_add_u32 m0, s{sXL}, {(j & 3)*4*KB + i*KB}\ns_add_u32 s{sT2}, s{sS0}, {i*8192}")
        ct[j] = k.vm(f"buffer_load_dwordx4 v{vXA + (i & 1)}, {srd(sXS)}, s{sT2} offen lds"); cn[j] += 1
    def chunk_loads(j):
        return [lambda i=i: ldX(j, i) for i in range(4)] + [lambda t=t: ldW(j, t) for t in range(3)]
    for f in chunk_loads(0): f()
    if Q0_MARKS: mark(k, 'up0')
    late(k)
    pack_decode(k)
    k(f"s_cmp_eq_u32 s{sW}, 0\ns_cselect_b64 s[90:91], s[68:69], s[70:71]")
    k(f"s_cmp_eq_u32 s{sW}, 2\ns_cselect_b64 s[90:91], s[72:73], s[90:91]")
    k(f"s_cmp_eq_u32 s{sW}, 3\ns_cselect_b64 s[90:91], s[66:67], s[90:91]\ns_cselect_b32 s{sT0}, 16, 56")
    k(f"s_mul_i32 s{sT1}, s{sT0}, s{sU}\ns_sub_u32 s{sT0}, s{sT0}, 1")
    k(f"v_and_b32 v254, 63, v0\nv_min_u32 v254, s{sT0}, v254\nv_add_u32 v254, s{sT1}, v254\nv_lshlrev_b32 v254, 7, v254")
    pk = G.pk = Pack(k)
    k(f"s_and_b32 s{sT0}, s{sC}, 7\ns_and_b32 s{sT1}, s{sC}, 15")
    k("v_and_b32 v13, 15, v0\nv_min_u32 v14, 13, v13")
    k(f"s_lshr_b32 s{sT2}, s{sT0}, 1\ns_add_u32 s{sT2}, s{sT2}, 176\nv_lshl_add_u32 v252, v14, 2, s{sT2}")
    k(f"s_mul_i32 s{sT2}, s{sT1}, 7\ns_add_u32 s{sT3}, s{sT2}, 6\ns_lshr_b32 s{sT2}, s{sT2}, 2\ns_lshr_b32 s{sT3}, s{sT3}, 2")
    k(f"v_lshrrev_b32 v14, 2, v13\nv_add_u32 v14, s{sT2}, v14\nv_min_u32 v14, s{sT3}, v14\nv_and_b32 v15, 3, v13\nv_mul_u32_u24 v15, 28, v15")
    k("v_add3_u32 v14, v14, v15, 48")
    k("v_and_b32 v15, 16, v0\nv_cmp_ne_u32 vcc, 0, v15\nv_cndmask_b32 v252, v252, v14, vcc")
    k(f"s_add_u32 s{sT0}, s{sT0}, 160\nv_and_b32 v14, 1, v13\nv_lshl_add_u32 v251, v14, 3, s{sT0}")
    k(f"s_lshr_b32 s{sT1}, s{sT1}, 1\nv_mul_u32_u24 v14, 24, v14\nv_lshrrev_b32 v15, 1, v13\nv_min_u32 v15, 2, v15\nv_lshlrev_b32 v15, 3, v15")
    k(f"v_add3_u32 v14, v14, v15, s{sT1}")
    k("v_cndmask_b32 v251, v251, v14, vcc")
    k(f"v_cmp_gt_u32 vcc, 512, v{vL16}\nv_cndmask_b32 v252, v251, v252, vcc\nv_lshlrev_b32 v252, 7, v252\nv_accvgpr_write_b32 a213, v252")
    if WARM:
        k("s_getpc_b64 s[88:89]")
        k.label("L_pcw")
        k(f"s_lshl_b32 s{sT0}, s{sC}, 1\ns_add_u32 s{sT0}, s{sT0}, s{sW}\ns_and_b32 s{sT0}, s{sT0}, 63\ns_lshl_b32 s{sT0}, s{sT0}, 10\ns_min_u32 s{sT0}, s{sT0}, L_end-L_pcw-1024")
        k(f"v_add_u32 v245, s{sT0}, v{vL16}")
        k(f"v_min_u32 v244, {(WS_PAGES-1)*16}, v{vL16}\nv_lshlrev_b32 v244, 17, v244")
        k(f"s_cmp_eq_u32 s{sW}, 1\ns_cselect_b64 s[88:89], s[{sAUX}:{sAUX+1}], s[88:89]")
        k(f"s_cmp_eq_u32 s{sW}, 0\ns_cselect_b64 s[88:89], s[{sWS}:{sWS+1}], s[88:89]\ns_cselect_b64 vcc, -1, 0")
        k("v_cndmask_b32 v245, v245, v244, vcc")
    if PK_Q0: pk.issue(*range(8))
    k(f"v_and_b32 v13, 31, v0\nv_bfe_u32 v14, v0, 1, 3\nv_bfe_u32 v15, v0, 5, 1\nv_xor_b32 v14, v14, v15\nv_lshlrev_b32 v14, 4, v14\nv_lshl_add_u32 v13, v13, 7, v14")
    for e in range(4):
        k(f"v_xor_b32 v{vXR+e}, {e*32}, v13\nv_add_u32 v{vXR+e}, s{sXL}, v{vXR+e}")
    tr_addr(k, vTR, 13)
    k(f"v_add_u32 v{vTR+1}, {48*KB}, v{vTR}\nv_add_u32 v{vTW}, s{sWL}, v{vTR}\nv_add_u32 v{vTW+1}, {48*KB}, v{vTW}")
    k(f"v_mov_b32 v{vONE}, 0x3f803f80\nv_add_u32 v255, s84, v{vTR}\nv_accvgpr_write_b32 a212, v255")
    for r in range(192, 196): k(f"v_accvgpr_write_b32 a{r}, v{vONE}")
    for r in list(range(vST, vST+4)) + list(range(vCS, vCS+3)): k(f"v_mov_b32 v{r}, 0")
    def reads(j):
        o = []
        for e in range(4):
            o.append(f"ds_read_b128 {vr(vX + 16*j + 4*e)}, v{vXR+e} offset:{(j & 3)*4*KB}")
        for t in range(3):
            off = (12*(j & 3) + t)*KB
            o.append(f"ds_read_b64_tr_b16 {vr(vCW+4*t,2)}, v{vTW + (j >> 2)} offset:{off}")
            o.append(f"ds_read_b64_tr_b16 {vr(vCW+4*t+2,2)}, v{vTW + (j >> 2)} offset:{off+256}")
        for b in range(12):
            off = (12*(j & 3) + b)*KB; r = 48*(j & 1) + 4*b
            o.append(f"ds_read_b64_tr_b16 {ar(r,2)}, v{vTR + (j >> 2)} offset:{off}")
            o.append(f"ds_read_b64_tr_b16 {ar(r+2,2)}, v{vTR + (j >> 2)} offset:{off+256}")
        return o
    def dots(j):
        for i in range(16):
            r = vX + 16*j + i
            k(f"v_dot2c_f32_bf16 v{vST + 2*(i & 1)}, v{vONE}, v{r}\nv_dot2c_f32_bf16 v{vST + 1 + 2*(i & 1)}, v{r}, v{r}")
        for i in range(4):
            for t in range(3): k(f"v_dot2c_f32_bf16 v{vCS+t}, v{vONE}, v{vCW+4*t+i}")
    def xid():
        k(f"s_add_u32 s{sTAG}, s{sTAG}, 0x7f4a7c15\ns_addc_u32 s{sTAG+1}, s{sTAG+1}, 0x9e3779b9")
        k("v_mov_b32 v13, 0")
        k("s_mov_b64 exec, 1")
        if FLAG_TOUCH:
            k(f"s_lshl_b32 s{sF}, s{sA}, 4\ns_lshr_b32 s{sT1}, s{sRB}, 2\ns_add_u32 s{sF}, s{sF}, s{sT1}\ns_lshl_b32 s{sF}, s{sF}, 7\ns_add_u32 s{sF}, s{sF}, {FKV(0)}")
            k.vm(f"buffer_load_dword v5, v13, {srd(sWS)}, s{sF} offen sc1")
            k(f"s_lshl_b32 s{sF}, s{sU}, 7\ns_add_u32 s{sF}, s{sF}, {FPK}")
            k.vm(f"buffer_load_dword v5, v13, {srd(sWS)}, s{sF} offen sc1")
        k("s_mov_b64 exec, -1")
    def lin_touch():
        k.vm("global_load_dword v253, v254, s[90:91]")
    side = []
    for x in att_setup(0): k(x)
    if Q0_MARKS: mark(k, 'alu')
    if WARM and WARM_AT == 0: k.vm(f"global_load_dword v255, v245, s[88:89]")
    for j in range(1, Q0_UP):
        for f in chunk_loads(j): f()
    if WARM and WARM_AT == 1: k.vm(f"global_load_dword v255, v245, s[88:89]")
    if Q0_MARKS: mark(k, 'iss')
    k.wait(vm=ct[0])
    if Q0_MARKS: mark(k, 'w0')
    k("s_barrier")
    mark(k, 'd0')
    rl = reads(0)
    for x in rl[:10]: t10 = k.lg(x)
    for x in rl[10:]: k.lg(x)
    k.wait(lg=t10)
    dots(0)
    for j in range(8):
        for c_ in Q0_SCHED[j]:
            assert c_ - 4 <= j
            side += chunk_loads(c_)
        if j == 1: side.append(xid)
        if WARM and WARM_AT == j + 2: side.append(lambda: k.vm(f"global_load_dword v255, v245, s[88:89]"))
        if PK_EARLY: side += [lambda i=i: pk.issue(i) for i in range(8) if PK_AT[i] == j]
        if j == LIN_AT and not PK_Q0: side.append(lin_touch)
        if PK_Q0:
            assert all(c_ < 5 or j > PK_RD for c_ in Q0_SCHED[j])
            if j == PK_RD: side += [lambda i=i: pk.reads(2*i, 2*i+1) for i in range(4)]
            if j == PK_ST: side += [lambda i=i: (pk.stores(i), pk.csum(i)) for i in range(4)]
            if j == PK_ST + 1: side += [lambda i=i: (pk.stores(i), pk.csum(i)) for i in range(4, 8)]
            if j == PK_ST + 2: side.append(pk.ext)
        k.wait_all(vm=False)
        rl = []
        if j < 7:
            assert cn[j+1] == 7
            k.wait(vm=ct[j+1]); k("s_barrier")
            if j in Q0_MARKJ: mark(k, f'c{j+1}')
            rl = reads(j + 1)
        t10 = None; nr = 0
        if j == 7:
            tail = f"s_lshr_b32 s{sT0}, s{sW}, 1\ns_lshl_b32 s{sT0}, s{sT0}, 9\ns_and_b32 s{sT1}, s{sW}, 1\ns_lshl_b32 s{sT1}, s{sT1}, 3\ns_add_u32 s{sT0}, s{sT0}, s{sT1}".split('\n')
            tail += [f"v_and_b32 v13, 0x1f0, v{vL16}", f"v_add_u32 v13, s{sT0}, v13"]
            for t in range(3): tail += ext_pair(vCS+t, vCW+2*t, 14) + [f"ds_write_b64 v13, {vr(vCW+2*t,2)} offset:{t*KB}"]
            fin = fin_stats(vST, vEXT, vRS)[NTREE:] + qkv_consts(vT, vRS, vR)
            tail += [f"v_add_f32 v{vST}, v{vST}, v{vST+2}", f"v_add_f32 v{vST+1}, v{vST+1}, v{vST+3}"] + fin[:18]
            tail += ["s_waitcnt lgkmcnt(0)", "s_barrier"] + [f"ds_read_b128 {vr(vCW+4*t)}, v{vL16} offset:{t*KB}" for t in range(3)] + fin[18:]
            tail += f"s_lshl_b32 s{sCc}, s{sA}, 18\ns_lshl_b32 s{sT1}, s{sRB}, 11\ns_add_u32 s{sCc}, s{sCc}, s{sT1}".split('\n')
            tail += f"s_mul_i32 s{sB}, s{sRB}, {112*KB}\ns_lshl_b32 s{sT1}, s{sA}, 11\ns_add_u32 s{sB}, s{sB}, s{sT1}".split('\n')
            G.ex = 196
            tail += ex_addr(G.ex)
            assert not side
            n_ = -(-len(tail) // 12)
            side = [lambda c=tail[i:i+n_]: [k(x) for x in c] for i in range(0, len(tail), n_)]
        for b in range(12):
            ks = 4*j + b // 3; t = b % 3
            acc = vr(vACC + 16*t, 16); w = ar(48*(j & 1) + 4*b); x = vr(vX + 4*ks)
            A, B = (x, w) if t == 1 else (w, x)
            k(f"v_mfma_f32_32x32x16_bf16 {acc}, {A}, {B}, {'0' if ks == 0 else acc}")
            if ks == 0 and t == 0: mark(k, 'm0')
            for _ in range(3):
                if rl:
                    t_ = k.lg(rl.pop(0)); nr += 1
                    if nr == 10: t10 = t_
            if side: side.pop(0)()
            if len(side) > 11 - b: side.pop(0)()
        if j < 7:
            assert not rl
            k.wait(lg=t10)
            dots(j + 1)
    while side: side.pop(0)()
    mark(k, 'loop')
    k.wait_all(vm=False)
    for t in range(3):
        c = vCW + 4*t
        acc = vr(vACC + 16*t, 16)
        A, B = (vr(vEXT), vr(c)) if t == 1 else (vr(c), vr(vEXT))
        k(f"v_mfma_f32_32x32x16_bf16 {acc}, {A}, {B}, {acc}")
    t_ = None
    for x in qk_tile(vACC, KVF(0), vRS, " sc1", 204) + v_tile(vACC+16, 0, vR, 212) + ex_kv(204, 212):
        if x.startswith('buffer'): t_ = k.vm(x)
        elif x.startswith('ds_'): k.lg(x)
        else: k(x)
    q_out(k, vACC + 32, vRS + 1, 232, vT)
    mark(k, 'st')
    return t_, None

def ph_qkv0k(k, late):
    vX, vACC, vST, vEXT, vRS, vT, vR = 16, 144, 192, 8, 6, 224, 232
    vXA, vWA, vXR, vTR, vTW, vCS, vCW, vONE = 10, 12, 196, 200, 202, 204, 208, 220
    sXS, sWR, sXL, sWL = 60, 56, sD, sE
    rb_128(k)
    k(f"s_and_b32 s{sA}, s{sC}, 15")
    k(f"v_bfe_u32 v{vXA}, v0, 3, 3\nv_lshlrev_b32 v{vXA}, 10, v{vXA}\nv_and_b32 v13, 7, v0\nv_bfe_u32 v14, v0, 4, 2\nv_xor_b32 v13, v13, v14")
    k(f"v_lshlrev_b32 v13, 4, v13\nv_add_u32 v{vXA}, v{vXA}, v13\nv_xor_b32 v{vXA+1}, 64, v{vXA}")
    k(f"v_bfe_u32 v{vWA}, v0, 2, 4\nv_mul_u32_u24 v{vWA}, 3072, v{vWA}\nv_and_b32 v13, 3, v0\nv_lshlrev_b32 v13, 4, v13\nv_add_u32 v{vWA}, v{vWA}, v13")
    if DIAG_W: k(f"v_bfe_u32 v{vWA}, v0, 3, 3\nv_mul_u32_u24 v{vWA}, 6144, v{vWA}\nv_and_b32 v13, 7, v0\nv_lshlrev_b32 v13, 4, v13\nv_add_u32 v{vWA}, v{vWA}, v13\ns_and_b32 s{sA}, s{sA}, 14")
    k(f"s_lshl_b32 s{sX}, s{sRB}, 15")
    k(f"s_mul_i32 s{sX2}, s{sW}, 49152\ns_lshl_b32 s{sT0}, s{sA}, 6\ns_add_u32 s{sX2}, s{sX2}, s{sT0}")
    if DIAG_W: k(f"s_and_b32 s{sA}, s{sG}, 1\ns_lshl_b32 s{sA}, s{sA}, 3\ns_and_b32 s{sT0}, s{sC}, 7\ns_add_u32 s{sA}, s{sA}, s{sT0}")
    k(f"s_lshl_b32 s{sXL}, s{sW}, 14\ns_add_u32 s{sXL}, s{sXL}, {96*KB}\ns_lshl_b32 s{sWL}, s{sW}, 11")
    k("s_waitcnt lgkmcnt(0)")
    if Q0_MARKS: mark(k, 'karg')
    k(f"s_mov_b32 s{sWR}, s64\ns_and_b32 s{sWR+1}, s65, 0xffff\ns_mov_b32 s{sWR+2}, {512*3072}\ns_mov_b32 s{sWR+3}, 0x20000")
    k(f"s_and_b32 s{sXS+1}, s{sXS+1}, 0xffff\ns_mov_b32 s{sXS+2}, {2*MB}\ns_mov_b32 s{sXS+3}, 0x20000")
    ct = {}; cn = {j: 0 for j in range(8)}
    k(f"s_lshl_b32 s{sCc}, s{sC4}, 2\ns_lshr_b32 s{sT3}, s{sC}, {Q0_RSH}\ns_add_u32 s{sCc}, s{sCc}, s{sT3}\ns_add_u32 s{sCc}, s{sCc}, s{sG}")
    def rot(j):
        k(f"s_add_u32 s{sT3}, s{sCc}, {j}\ns_and_b32 s{sT3}, s{sT3}, {7 if Q0_ROT else 0}")
        if not Q0_ROT: k(f"s_mov_b32 s{sT3}, {j}")
        k(f"s_lshl_b32 s{sS0}, s{sT3}, 7\ns_add_u32 s{sS0}, s{sS0}, s{sX}")
        k(f"s_mul_i32 s{sS1}, s{sT3}, {4*49152}\ns_add_u32 s{sS1}, s{sS1}, s{sX2}")
    def ldW(j, t):
        k(f"s_add_u32 m0, s{sWL}, {(8*j + t)*KB}\ns_add_u32 s{sT2}, s{sS1}, {(t+1)*1024}")
        ct[j] = k.vm(f"buffer_load_dwordx4 v{vWA}, {srd(sWR)}, s{sT2} offen lds"); cn[j] += 1
    def ldQ(j):
        k(f"s_add_u32 s{sT3}, s{sCc}, {j}\ns_and_b32 s{sT3}, s{sT3}, 7\ns_mul_i32 s{sT3}, s{sT3}, {4*49152}\ns_add_u32 m0, s{sW1K}, {(64 + 4*j)*KB}\ns_add_u32 s{sT2}, s{sT3}, s{sX2}")
        ct['q'] = k.vm(f"buffer_load_dwordx4 v{vWA}, {srd(sWR)}, s{sT2} offen lds")
    def ldX(j, i):
        if i == 0: rot(j)
        k(f"s_add_u32 m0, s{sXL}, {(j & 3)*4*KB + i*KB}\ns_add_u32 s{sT2}, s{sS0}, {i*8192}")
        ct[j] = k.vm(f"buffer_load_dwordx4 v{vXA + (i & 1)}, {srd(sXS)}, s{sT2} offen lds"); cn[j] += 1
    def chunk_loads(j):
        return [lambda i=i: ldX(j, i) for i in range(4)] + [lambda t=t: ldW(j, t) for t in range(2)]
    for f in chunk_loads(0): f()
    if Q0_MARKS: mark(k, 'up0')
    late(k)
    pack_decode(k)
    k(f"s_cmp_eq_u32 s{sW}, 0\ns_cselect_b64 s[90:91], s[68:69], s[70:71]")
    k(f"s_cmp_eq_u32 s{sW}, 2\ns_cselect_b64 s[90:91], s[72:73], s[90:91]")
    k(f"s_cmp_eq_u32 s{sW}, 3\ns_cselect_b64 s[90:91], s[66:67], s[90:91]\ns_cselect_b32 s{sT0}, 16, 56")
    k(f"s_mul_i32 s{sT1}, s{sT0}, s{sU}\ns_sub_u32 s{sT0}, s{sT0}, 1")
    k(f"v_and_b32 v254, 63, v0\nv_min_u32 v254, s{sT0}, v254\nv_add_u32 v254, s{sT1}, v254\nv_lshlrev_b32 v254, 7, v254")
    pk = G.pk = Pack(k)
    k(f"s_and_b32 s{sT0}, s{sC}, 7\ns_and_b32 s{sT1}, s{sC}, 15")
    k("v_and_b32 v13, 15, v0\nv_min_u32 v14, 13, v13")
    k(f"s_lshr_b32 s{sT2}, s{sT0}, 1\ns_add_u32 s{sT2}, s{sT2}, 176\nv_lshl_add_u32 v252, v14, 2, s{sT2}")
    k(f"s_mul_i32 s{sT2}, s{sT1}, 7\ns_add_u32 s{sT3}, s{sT2}, 6\ns_lshr_b32 s{sT2}, s{sT2}, 2\ns_lshr_b32 s{sT3}, s{sT3}, 2")
    k(f"v_lshrrev_b32 v14, 2, v13\nv_add_u32 v14, s{sT2}, v14\nv_min_u32 v14, s{sT3}, v14\nv_and_b32 v15, 3, v13\nv_mul_u32_u24 v15, 28, v15")
    k("v_add3_u32 v14, v14, v15, 48")
    k("v_and_b32 v15, 16, v0\nv_cmp_ne_u32 vcc, 0, v15\nv_cndmask_b32 v252, v252, v14, vcc")
    k(f"s_add_u32 s{sT0}, s{sT0}, 160\nv_and_b32 v14, 1, v13\nv_lshl_add_u32 v251, v14, 3, s{sT0}")
    k(f"s_lshr_b32 s{sT1}, s{sT1}, 1\nv_mul_u32_u24 v14, 24, v14\nv_lshrrev_b32 v15, 1, v13\nv_min_u32 v15, 2, v15\nv_lshlrev_b32 v15, 3, v15")
    k(f"v_add3_u32 v14, v14, v15, s{sT1}")
    k("v_cndmask_b32 v251, v251, v14, vcc")
    k(f"v_cmp_gt_u32 vcc, 512, v{vL16}\nv_cndmask_b32 v252, v251, v252, vcc\nv_lshlrev_b32 v252, 7, v252\nv_accvgpr_write_b32 a213, v252")
    if WARM:
        k("s_getpc_b64 s[88:89]")
        k.label("L_pcw")
        k(f"s_lshl_b32 s{sT0}, s{sC}, 1\ns_add_u32 s{sT0}, s{sT0}, s{sW}\ns_and_b32 s{sT0}, s{sT0}, 63\ns_lshl_b32 s{sT0}, s{sT0}, 10\ns_min_u32 s{sT0}, s{sT0}, L_end-L_pcw-1024")
        k(f"v_add_u32 v245, s{sT0}, v{vL16}")
        k(f"v_min_u32 v244, {(WS_PAGES-1)*16}, v{vL16}\nv_lshlrev_b32 v244, 17, v244")
        k(f"s_cmp_eq_u32 s{sW}, 1\ns_cselect_b64 s[88:89], s[{sAUX}:{sAUX+1}], s[88:89]")
        k(f"s_cmp_eq_u32 s{sW}, 0\ns_cselect_b64 s[88:89], s[{sWS}:{sWS+1}], s[88:89]\ns_cselect_b64 vcc, -1, 0")
        k("v_cndmask_b32 v245, v245, v244, vcc")
    if PK_Q0: pk.issue(*range(8))
    aSEL, aCS = 96, 100
    k(f"v_and_b32 v13, 31, v0\nv_bfe_u32 v14, v0, 1, 3\nv_bfe_u32 v15, v0, 5, 1\nv_xor_b32 v14, v14, v15\nv_lshlrev_b32 v14, 4, v14\nv_lshl_add_u32 v13, v13, 7, v14")
    for e in range(4):
        k(f"v_xor_b32 v{vXR+e}, {e*32}, v13\nv_add_u32 v{vXR+e}, s{sXL}, v{vXR+e}")
    tr_addr(k, vTR, 13)
    k(f"v_add_u32 v{vTR+1}, {64*KB}, v{vTR}")
    k(f"v_mov_b32 v{vONE}, 0x3f803f80\nv_add_u32 v255, s84, v{vTR}\nv_accvgpr_write_b32 a212, v255")
    for r in range(192, 196): k(f"v_accvgpr_write_b32 a{r}, v{vONE}")
    k(f"v_and_b32 v13, 15, v0\nv_bfe_u32 v14, v0, 4, 1\nv_cmp_eq_u32 vcc, v13, v14\nv_cndmask_b32 v13, 0, v{vONE}, vcc")
    for r in range(4): k(f"v_accvgpr_write_b32 a{aSEL+r}, v13")
    for r in range(vST, vST+4): k(f"v_mov_b32 v{r}, 0")
    def reads(j):
        o = [f"ds_read_b128 {vr(vX + 16*j + 4*e)}, v{vXR+e} offset:{(j & 3)*4*KB}" for e in range(4)]
        for b in range(8):
            off = (8*j + b)*KB; r = 32*(j & 1) + 4*b
            o.append(f"ds_read_b64_tr_b16 {ar(r,2)}, v{vTR} offset:{off}")
            o.append(f"ds_read_b64_tr_b16 {ar(r+2,2)}, v{vTR} offset:{off+256}")
        return o
    def dots(j):
        for i in range(16):
            r = vX + 16*j + i
            k(f"v_dot2c_f32_bf16 v{vST + 2*(i & 1)}, v{vONE}, v{r}\nv_dot2c_f32_bf16 v{vST + 1 + 2*(i & 1)}, v{r}, v{r}")
    def csum(t, w, first):
        c = ar(aCS + 4*t)
        k(f"v_mfma_f32_16x16x32_bf16 {c}, {ar(aSEL)}, {w}, {'0' if first else c}")
    def extw(t, d):
        return [f"v_accvgpr_read_b32 v{d+2}, a{aCS+4*t}", f"v_accvgpr_read_b32 v{d+3}, a{aCS+4*t+1}", f"v_permlane16_swap_b32 v{d+2}, v{d+3}",
                f"v_cndmask_b32 v{d+2}, 0, v{d+2}, vcc", f"v_cvt_pk_bf16_f32 v{d+1}, v{d+2}, 0", f"v_lshlrev_b32 v{d+3}, 16, v{d+1}",
                f"v_sub_f32 v{d+2}, v{d+2}, v{d+3}", f"v_cvt_pk_bf16_f32 v{d}, v{d+3}, v{d+2}", f"v_mov_b32 v{d+2}, 0", f"v_mov_b32 v{d+3}, 0"]
    side = []
    for x in att_setup(0): k(x)
    for j in range(1, Q0_UP):
        for f in chunk_loads(j): f()
    if WARM: k.vm(f"global_load_dword v255, v245, s[88:89]")
    k.wait(vm=ct[0])
    k("s_barrier")
    mark(k, 'd0')
    rl = reads(0)
    for x in rl[:4]: t4 = k.lg(x)
    for x in rl[4:]: k.lg(x)
    k.wait(lg=t4)
    dots(0)
    def qread(ks):
        r = 64 + 4*(ks % 8)
        k.lg(f"ds_read_b64_tr_b16 {ar(r,2)}, v{vTR+1} offset:{ks*KB}")
        return k.lg(f"ds_read_b64_tr_b16 {ar(r+2,2)}, v{vTR+1} offset:{ks*KB+256}")
    qt = {}
    for j in range(8):
        for c_ in Q0_SCHED[j]:
            assert c_ - 4 <= j
            side += chunk_loads(c_)
        if j == 1: side.append(lambda: k(f"s_add_u32 s{sTAG}, s{sTAG}, 0x7f4a7c15\ns_addc_u32 s{sTAG+1}, s{sTAG+1}, 0x9e3779b9"))
        side += [lambda c=c: ldQ(c) for c in range(8) if Q0K_Q[c] == j]
        assert min(PK_AT) >= 3
        side += [lambda i=i: pk.issue(i) for i in range(8) if PK_AT[i] == j]
        k.wait_all(vm=False)
        rl = []
        if j < 7:
            assert cn[j+1] == 6
            k.wait(vm=ct[j+1]); k("s_barrier")
            rl = reads(j + 1)
        else:
            assert not side
            k.wait(vm=ct['q']); k("s_barrier")
            G.ex = 212
            fin = fin_stats(vST, vEXT, vRS)[NTREE:] + qkv_consts(vT, vRS, vR)
            tail = [f"v_add_f32 v{vST}, v{vST}, v{vST+2}", f"v_add_f32 v{vST+1}, v{vST+1}, v{vST+3}"] + fin
            tail += f"s_lshl_b32 s{sCc}, s{sA}, 18\ns_lshl_b32 s{sT1}, s{sRB}, 11\ns_add_u32 s{sCc}, s{sCc}, s{sT1}".split('\n')
            n_ = -(-len(tail) // 8)
            side = [lambda c=tail[i:i+n_]: [k(x) for x in c] for i in range(0, len(tail), n_)]
        t4 = None; nr = 0
        for b in range(8):
            ks = 4*j + b // 2; t = b % 2
            acc = vr(vACC + 16*t, 16); w = ar(32*(j & 1) + 4*b); x = vr(vX + 4*ks)
            if j == 7: csum(t, w, False)
            A, B = (x, w) if t == 1 else (w, x)
            k(f"v_mfma_f32_32x32x16_bf16 {acc}, {A}, {B}, {'0' if ks == 0 else acc}")
            if ks == 0 and t == 0: mark(k, 'm0')
            for _ in range(3):
                if rl:
                    t_ = k.lg(rl.pop(0)); nr += 1
                    if nr == 4: t4 = t_
            if j < 7: csum(t, w, ks == 0)
            if j == 7 and b >= 4: qt[b - 4] = qread(b - 4)
            if side: side.pop(0)()
            if len(side) > 7 - b: side.pop(0)()
        while side: side.pop(0)()
        if j < 7:
            assert not rl
            k.wait(lg=t4)
            dots(j + 1)
    mark(k, 'loop')
    E = 204
    work = extw(0, E) + extw(1, E+4)
    work += [f"v_mfma_f32_32x32x16_bf16 {vr(vACC,16)}, {vr(E)}, {vr(vEXT)}, {vr(vACC,16)}",
             f"v_mfma_f32_32x32x16_bf16 {vr(vACC+16,16)}, {vr(vEXT)}, {vr(E+4)}, {vr(vACC+16,16)}"] + ex_addr(G.ex)
    work += qk_tile(vACC, KVF(0), vRS, " sc1", 192) + v_tile(vACC+16, 0, vR, E) + ["#kv"] + ex_kv(192, E)
    work += [f"#pk{i}" for i in range(8) if PK_AT[i] == 8]
    st = {}
    def put(x):
        if x == '#kv': st['kv'] = st['t']
        elif x.startswith('#pk'): pk.issue(int(x[3:]))
        elif x.startswith('buffer'): st['t'] = k.vm(x)
        elif x.startswith('ds_'): k.lg(x)
        else: k(x)
    for _ in range(Q0K_LEAD): put(work.pop(0))
    acc = vr(vACC + 32, 16)
    for ks in range(32):
        w = ar(64 + 4*(ks % 8))
        k.wait(lg=qt[ks])
        k(f"v_mfma_f32_32x32x16_bf16 {acc}, {w}, {vr(vX + 4*ks)}, {'0' if ks == 0 else acc}")
        if ks + 4 < 32: qt[ks + 4] = qread(ks + 4)
        csum(2, w, ks == 0)
        for _ in range(Q0K_EPI):
            if work: put(work.pop(0))
        if ks == Q0K_FLAG:
            assert not work
            kv_flag(k, 0, st['kv'])
    while work: put(work.pop(0))
    for x in extw(2, 220): k(x)
    k(f"v_mfma_f32_32x32x16_bf16 {acc}, {vr(220)}, {vr(vEXT)}, {acc}")
    q_out(k, vACC + 32, vRS + 1, 232, vT)
    mark(k, 'st')
    return st['kv'], None

def ph_qkv0g(k, late):
    vX, vACC, vST, vEXT, vRS, vT, vR = 16, 144, 192, 8, 6, 224, 232
    vXA, vWA, vXR, vTR, vCW, vG = 10, 12, 224, 228, 192, 192
    aCS = 96
    sXS, sWR, sXL, sWL = 60, 56, sD, sE
    rb_128(k)
    k(f"s_and_b32 s{sA}, s{sC}, 15")
    k(f"v_bfe_u32 v{vXA}, v0, 3, 3\nv_lshlrev_b32 v{vXA}, 10, v{vXA}\nv_and_b32 v13, 7, v0\nv_bfe_u32 v14, v0, 4, 2\nv_xor_b32 v13, v13, v14")
    k(f"v_lshlrev_b32 v13, 4, v13\nv_add_u32 v{vXA}, v{vXA}, v13\nv_xor_b32 v{vXA+1}, 64, v{vXA}")
    k(f"v_bfe_u32 v{vWA}, v0, 2, 4\nv_mul_u32_u24 v{vWA}, 3072, v{vWA}\nv_and_b32 v13, 3, v0\nv_lshlrev_b32 v13, 4, v13\nv_add_u32 v{vWA}, v{vWA}, v13")
    if DIAG_W: k(f"v_bfe_u32 v{vWA}, v0, 3, 3\nv_mul_u32_u24 v{vWA}, 6144, v{vWA}\nv_and_b32 v13, 7, v0\nv_lshlrev_b32 v13, 4, v13\nv_add_u32 v{vWA}, v{vWA}, v13\ns_and_b32 s{sA}, s{sA}, 14")
    k(f"s_lshl_b32 s{sX}, s{sRB}, 15")
    k(f"s_mul_i32 s{sX2}, s{sW}, 49152\ns_lshl_b32 s{sT0}, s{sA}, 6\ns_add_u32 s{sX2}, s{sX2}, s{sT0}")
    if DIAG_W: k(f"s_and_b32 s{sA}, s{sG}, 1\ns_lshl_b32 s{sA}, s{sA}, 3\ns_and_b32 s{sT0}, s{sC}, 7\ns_add_u32 s{sA}, s{sA}, s{sT0}")
    k(f"s_lshl_b32 s{sXL}, s{sW}, 14\ns_add_u32 s{sXL}, s{sXL}, {96*KB}\ns_mul_i32 s{sWL}, s{sW}, 3072")
    k("s_waitcnt lgkmcnt(0)")
    if Q0_MARKS: mark(k, 'karg')
    k(f"s_mov_b32 s{sWR}, s64\ns_and_b32 s{sWR+1}, s65, 0xffff\ns_mov_b32 s{sWR+2}, {512*3072}\ns_mov_b32 s{sWR+3}, 0x20000")
    k(f"s_and_b32 s{sXS+1}, s{sXS+1}, 0xffff\ns_mov_b32 s{sXS+2}, {2*MB}\ns_mov_b32 s{sXS+3}, 0x20000")
    ct = {}; cn = {j: 0 for j in range(8)}
    k(f"s_lshl_b32 s{sCc}, s{sC4}, 2\ns_lshr_b32 s{sT3}, s{sC}, {Q0_RSH}\ns_add_u32 s{sCc}, s{sCc}, s{sT3}\ns_add_u32 s{sCc}, s{sCc}, s{sG}")
    def rot(j):
        k(f"s_add_u32 s{sT3}, s{sCc}, {j}\ns_and_b32 s{sT3}, s{sT3}, {7 if Q0_ROT else 0}")
        if not Q0_ROT: k(f"s_mov_b32 s{sT3}, {j}")
        k(f"s_lshl_b32 s{sS0}, s{sT3}, 7\ns_add_u32 s{sS0}, s{sS0}, s{sX}")
        k(f"s_mul_i32 s{sS1}, s{sT3}, {4*49152}\ns_add_u32 s{sS1}, s{sS1}, s{sX2}")
    def ldW(j, t):
        k(f"s_add_u32 m0, s{sWL}, {(12*j + t)*KB}\ns_add_u32 s{sT2}, s{sS1}, {((t+1) % 3)*1024}")
        ct[j] = k.vm(f"buffer_load_dwordx4 v{vWA}, {srd(sWR)}, s{sT2} offen lds"); cn[j] += 1
    def ldX(j, i):
        if i == 0: rot(j)
        k(f"s_add_u32 m0, s{sXL}, {(j & 3)*4*KB + i*KB}\ns_add_u32 s{sT2}, s{sS0}, {i*8192}")
        ct[j] = k.vm(f"buffer_load_dwordx4 v{vXA + (i & 1)}, {srd(sXS)}, s{sT2} offen lds"); cn[j] += 1
    def chunk_loads(j):
        return [lambda i=i: ldX(j, i) for i in range(4)] + [lambda t=t: ldW(j, t) for t in range(3)]
    rowmajor_addr(k, 236, sT0)
    k.vm(f"buffer_load_dwordx4 {vr(vG)}, v236, {srd(sXS)}, s{sT0} offen")
    tres = k.vm(f"buffer_load_dwordx4 {vr(vG+4)}, v236, {srd(sXS)}, s{sT0} offen offset:32")
    for f in chunk_loads(0): f()
    if Q0_MARKS: mark(k, 'up0')
    late(k)
    pack_decode(k)
    k(f"s_cmp_eq_u32 s{sW}, 0\ns_cselect_b64 s[90:91], s[68:69], s[70:71]")
    k(f"s_cmp_eq_u32 s{sW}, 2\ns_cselect_b64 s[90:91], s[72:73], s[90:91]")
    k(f"s_cmp_eq_u32 s{sW}, 3\ns_cselect_b64 s[90:91], s[66:67], s[90:91]\ns_cselect_b32 s{sT0}, 16, 56")
    k(f"s_mul_i32 s{sT1}, s{sT0}, s{sU}\ns_sub_u32 s{sT0}, s{sT0}, 1")
    k(f"v_and_b32 v254, 63, v0\nv_min_u32 v254, s{sT0}, v254\nv_add_u32 v254, s{sT1}, v254\nv_lshlrev_b32 v254, 7, v254")
    pk = G.pk = Pack(k)
    k(f"s_and_b32 s{sT0}, s{sC}, 7\ns_and_b32 s{sT1}, s{sC}, 15")
    k("v_and_b32 v13, 15, v0\nv_min_u32 v14, 13, v13")
    k(f"s_lshr_b32 s{sT2}, s{sT0}, 1\ns_add_u32 s{sT2}, s{sT2}, 176\nv_lshl_add_u32 v252, v14, 2, s{sT2}")
    k(f"s_mul_i32 s{sT2}, s{sT1}, 7\ns_add_u32 s{sT3}, s{sT2}, 6\ns_lshr_b32 s{sT2}, s{sT2}, 2\ns_lshr_b32 s{sT3}, s{sT3}, 2")
    k(f"v_lshrrev_b32 v14, 2, v13\nv_add_u32 v14, s{sT2}, v14\nv_min_u32 v14, s{sT3}, v14\nv_and_b32 v15, 3, v13\nv_mul_u32_u24 v15, 28, v15")
    k("v_add3_u32 v14, v14, v15, 48")
    k("v_and_b32 v15, 16, v0\nv_cmp_ne_u32 vcc, 0, v15\nv_cndmask_b32 v252, v252, v14, vcc")
    k(f"s_add_u32 s{sT0}, s{sT0}, 160\nv_and_b32 v14, 1, v13\nv_lshl_add_u32 v251, v14, 3, s{sT0}")
    k(f"s_lshr_b32 s{sT1}, s{sT1}, 1\nv_mul_u32_u24 v14, 24, v14\nv_lshrrev_b32 v15, 1, v13\nv_min_u32 v15, 2, v15\nv_lshlrev_b32 v15, 3, v15")
    k(f"v_add3_u32 v14, v14, v15, s{sT1}")
    k("v_cndmask_b32 v251, v251, v14, vcc")
    k(f"v_cmp_gt_u32 vcc, 512, v{vL16}\nv_cndmask_b32 v252, v251, v252, vcc\nv_lshlrev_b32 v252, 7, v252\nv_accvgpr_write_b32 a213, v252")
    if WARM:
        k("s_getpc_b64 s[88:89]")
        k.label("L_pcw")
        k(f"s_lshl_b32 s{sT0}, s{sC}, 1\ns_add_u32 s{sT0}, s{sT0}, s{sW}\ns_and_b32 s{sT0}, s{sT0}, 63\ns_lshl_b32 s{sT0}, s{sT0}, 10\ns_min_u32 s{sT0}, s{sT0}, L_end-L_pcw-1024")
        k(f"v_add_u32 v245, s{sT0}, v{vL16}")
        k(f"v_min_u32 v244, {(WS_PAGES-1)*16}, v{vL16}\nv_lshlrev_b32 v244, 17, v244")
        k(f"s_cmp_eq_u32 s{sW}, 1\ns_cselect_b64 s[88:89], s[{sAUX}:{sAUX+1}], s[88:89]")
        k(f"s_cmp_eq_u32 s{sW}, 0\ns_cselect_b64 s[88:89], s[{sWS}:{sWS+1}], s[88:89]\ns_cselect_b64 vcc, -1, 0")
        k("v_cndmask_b32 v245, v245, v244, vcc")
    if PK_Q0: pk.issue(*range(8))
    k(f"v_and_b32 v13, 31, v0\nv_bfe_u32 v14, v0, 1, 3\nv_bfe_u32 v15, v0, 5, 1\nv_xor_b32 v14, v14, v15\nv_lshlrev_b32 v14, 4, v14\nv_lshl_add_u32 v13, v13, 7, v14")
    tr_addr(k, 255, 14)
    for e in range(4):
        k(f"s_add_u32 s{sT0}, s{sW}, {e}\ns_and_b32 s{sT0}, s{sT0}, 3\ns_lshl_b32 s{sT1}, s{sT0}, 5\ns_mul_i32 s{sT0}, s{sT0}, 3072")
        k(f"v_xor_b32 v{vXR+e}, s{sT1}, v13\nv_add_u32 v{vXR+e}, s{sXL}, v{vXR+e}")
        k(f"v_add_u32 v{vTR+e}, s{sT0}, v255\nv_add_u32 v{vTR+4+e}, {48*KB}, v{vTR+e}")
    k(f"v_mov_b32 v14, 0x3f803f80\nv_add_u32 v255, s84, v255\nv_accvgpr_write_b32 a212, v255")
    for r in range(192, 196): k(f"v_accvgpr_write_b32 a{r}, v14")
    def reads(j):
        o = []
        for e in range(4):
            o.append(f"ds_read_b128 {vr(vX + 16*j + 4*e)}, v{vXR+e} offset:{(j & 3)*4*KB}")
            for t in range(3):
                off = (12*(j & 3) + t)*KB; r = 48*(j & 1) + 4*(3*e + t)
                o.append(f"ds_read_b64_tr_b16 {ar(r,2)}, v{vTR + 4*(j >> 2) + e} offset:{off}")
                o.append(f"ds_read_b64_tr_b16 {ar(r+2,2)}, v{vTR + 4*(j >> 2) + e} offset:{off+256}")
        return o
    side = []
    if Q0_MARKS: mark(k, 'alu')
    for j in range(1, Q0_UP):
        for f in chunk_loads(j): f()
    if WARM and WARM_AT == 1: k.vm(f"global_load_dword v255, v245, s[88:89]")
    if Q0_MARKS: mark(k, 'iss')
    k.wait(vm=ct[0])
    k("s_barrier")
    mark(k, 'd0')
    for x in reads(0): k.lg(x)
    U = vG + 8
    st_ = res_unpack(U, vG)
    st_ += [f"v_add_f32 v{vG}, v{U}, v{U+1}", f"v_mul_f32 v{vG+2}, v{U}, v{U}", f"v_add_f32 v{vG+1}, v{U+2}, v{U+3}", f"v_mul_f32 v{vG+3}, v{U+1}, v{U+1}",
            f"v_fmac_f32 v{vG+2}, v{U+2}, v{U+2}", f"v_fmac_f32 v{vG+3}, v{U+3}, v{U+3}"]
    for i in range(4, 16, 2):
        st_ += [f"v_add_f32 v{vG}, v{vG}, v{U+i}", f"v_fmac_f32 v{vG+2}, v{U+i}, v{U+i}", f"v_add_f32 v{vG+1}, v{vG+1}, v{U+i+1}", f"v_fmac_f32 v{vG+3}, v{U+i+1}, v{U+i+1}"]
    st_ += [f"v_add_f32 v{vG}, v{vG}, v{vG+1}", f"v_add_f32 v{vG+2}, v{vG+2}, v{vG+3}", f"v_mov_b32 v{vG+1}, v{vG}", f"v_mov_b32 v{vG+3}, v{vG+2}",
            f"v_permlane32_swap_b32 v{vG}, v{vG+1}", f"v_permlane32_swap_b32 v{vG+2}, v{vG+3}",
            f"v_add_f32 v{vG}, v{vG}, v{vG+1}", f"v_add_f32 v{vG+2}, v{vG+2}, v{vG+3}"]
    for x in st_[:Q0_ST0]: k(x)
    st_ = st_[Q0_ST0:]
    def gran():
        k(f"s_add_u32 s{sTAG}, s{sTAG}, 0x7f4a7c15\ns_addc_u32 s{sTAG+1}, s{sTAG+1}, 0x9e3779b9")
        k(f"v_mov_b32 v{vG+1}, s{sTAG}\nv_mov_b32 v{vG+3}, s{sTAG+1}")
        k(f"s_lshr_b32 s{sT0}, s{sDST}, 2\ns_add_u32 s{sT0}, s{sT0}, {SG}\ns_mov_b32 exec_hi, 0")
        k.vm(f"buffer_store_dwordx4 {vr(vG)}, v{vL16}, {srd(sWS)}, s{sT0} offen sc1")
        k("s_mov_b64 exec, -1")
        k(f"s_lshl_b32 s{sF}, s{sRB}, 13\ns_add_u32 s{sF}, s{sF}, {SG}\ns_add_u32 s{sB}, s{sF}, 4096")
    cmpg = []
    for i in range(8):
        cmpg += [f"v_xor_b32 v13, s{sTAG}, v{vG+4*i+1}", f"v_xor_b32 v14, s{sTAG+1}, v{vG+4*i+3}",
                 ("v_or_b32 v15, v13, v14" if i == 0 else "v_or3_b32 v15, v13, v14, v15")]
    apg = APoll(k, [f"buffer_load_dwordx4 {vr(vG+4*i)}, v{vL16}, {srd(sWS)}, s{sF if i < 4 else sB} offen offset:{(i & 3)*KB} sc1" for i in range(8)],
                "\n".join(cmpg + ["v_cmp_ne_u32 vcc, 0, v15"]))
    for j in range(8):
        if j == 0 and st_:
            n_ = -(-len(st_) // 8)
            side += [lambda c=st_[i:i+n_]: [k(x) for x in c] for i in range(0, len(st_), n_)]
        if j == 0: side.append(gran)
        for c_ in Q0_SCHED[j]:
            assert c_ - 4 <= j
            side += chunk_loads(c_)
        if WARM and WARM_AT == j + 2: side.append(lambda: k.vm(f"global_load_dword v255, v245, s[88:89]"))
        if j == Q0_GLD: side += [lambda x=x: setattr(apg, 't', k.vm(x)) for x in apg.loads]
        if PK_EARLY: side += [lambda i=i: pk.issue(i) for i in range(8) if PK_AT[i] == j]
        k.wait_all(vm=False)
        rl = []
        if j < 7:
            assert cn[j+1] == 7
            k.wait(vm=ct[j+1]); k("s_barrier")
            if j in Q0_MARKJ: mark(k, f'c{j+1}')
            rl = reads(j + 1)
        mm = [('c', t) for t in range(3)] + [('m', b) for b in range(12)]
        if j == 7:
            apg.check()
            tail = []
            n = 8
            while n > 1:
                h = n // 2
                for i in range(h):
                    tail += [f"v_add_f32 v{vG+4*i}, v{vG+4*i}, v{vG+4*(i+h)}", f"v_add_f32 v{vG+4*i+2}, v{vG+4*i+2}, v{vG+4*(i+h)+2}"]
                n = h
            tail += [f"v_mov_b32 v{vG+1}, v{vG+2}"]
            tail += f"s_lshr_b32 s{sT0}, s{sW}, 1\ns_lshl_b32 s{sT0}, s{sT0}, 9\ns_and_b32 s{sT1}, s{sW}, 1\ns_lshl_b32 s{sT1}, s{sT1}, 3\ns_add_u32 s{sT0}, s{sT0}, s{sT1}".split('\n')
            tail += [f"v_and_b32 v13, 0x1f0, v{vL16}", f"v_add_u32 v13, s{sT0}, v13"]
            C = vG + 8
            for t in range(3):
                tail += [f"v_accvgpr_read_b32 v14, a{aCS+16*t}", f"v_cvt_pk_bf16_f32 v{C+2*t+1}, v14, 0", f"v_lshlrev_b32 v15, 16, v{C+2*t+1}",
                         "v_sub_f32 v14, v14, v15", f"v_cvt_pk_bf16_f32 v{C+2*t}, v15, v14", f"ds_write_b64 v13, {vr(C+2*t,2)} offset:{t*KB}"]
            fin = fin_stats(vST, vEXT, vRS)[NTREE:] + qkv_consts(vT, vRS, vR)
            tail += fin[:18]
            tail += ["s_waitcnt lgkmcnt(0)", "s_barrier"] + [f"ds_read_b128 {vr(C+4*t)}, v{vL16} offset:{t*KB}" for t in range(3)] + fin[18:]
            tail += f"s_lshl_b32 s{sCc}, s{sA}, 18\ns_lshl_b32 s{sT1}, s{sRB}, 11\ns_add_u32 s{sCc}, s{sCc}, s{sT1}".split('\n')
            tail += f"s_mul_i32 s{sB}, s{sRB}, {112*KB}\ns_lshl_b32 s{sT1}, s{sA}, 11\ns_add_u32 s{sB}, s{sB}, s{sT1}".split('\n')
            n_ = -(-len(tail) // 15)
            side += [lambda c=tail[i:i+n_]: [k(x) for x in c] for i in range(0, len(tail), n_)]
        for p, (kind, b) in enumerate(mm):
            if kind == 'c':
                acc = ar(aCS + 16*b, 16)
                k(f"v_mfma_f32_32x32x16_bf16 {acc}, {ar(192)}, {ar(48*(j & 1) + 4*b)}, {'0' if j == 0 else acc}")
            else:
                ks = 4*j + b // 3; t = b % 3
                acc = vr(vACC + 16*t, 16); w = ar(48*(j & 1) + 4*b); x = vr(vX + 4*ks)
                A, B = (x, w) if t == 1 else (w, x)
                k(f"v_mfma_f32_32x32x16_bf16 {acc}, {A}, {B}, {'0' if ks == 0 else acc}")
            if j == 0 and p == 0: mark(k, 'm0')
            for _ in range(2):
                if rl: k.lg(rl.pop(0))
            if side and (j == 7 or p % 2 == 0 or 2 * len(side) > 15 - p): side.pop(0)()
            if len(side) > 14 - p: side.pop(0)()
        assert not rl
    while side: side.pop(0)()
    mark(k, 'loop')
    k.wait_all(vm=False)
    for t in range(3):
        c = vG + 8 + 4*t
        acc = vr(vACC + 16*t, 16)
        A, B = (vr(vEXT), vr(c)) if t == 1 else (vr(c), vr(vEXT))
        k(f"v_mfma_f32_32x32x16_bf16 {acc}, {A}, {B}, {acc}")
    t_ = None
    for x in qk_tile(vACC, KVF(0), vRS, " sc1", vX) + v_tile(vACC+16, 0, vR, vX+8) + qk_tile(vACC+32, QF, vRS+1, " sc1", vX+16):
        if x.startswith('buffer'): t_ = k.vm(x)
        else: k(x)
    mark(k, 'st')
    return t_, t_

def ph_qkv(k, L, ring, b0):
    vX, vACC, vST, vEXT, vRS, vT, vR = 16, 144, 192, 8, 6, 224, 232
    rb_128(k)
    k(f"s_and_b32 s{sA}, s{sC}, 15")
    k(f"s_lshl_b32 s{sX}, s{sRB}, 15\ns_add_u32 s{sX}, s{sX}, {XF}")
    set_lds_bases(k)
    QE = QKV_QE
    seq = [(ks, t) for ks in range(33) for t in ((0, 1, 2) if ks < QE else (0, 1))] + [(ks, 2) for ks in range(QE, 33)]
    ops = [dict(b=b0 + (2*ks + t if t < 2 else 66 + ks), bmin=b0, bmax=b0 + 98, xi=(ks if ks < 32 else None), x=(vr(vX+4*ks) if ks < 32 else vr(vEXT)),
                acc=vr(vACC+16*t, 16), swap=(t == 1), first=(ks == 0)) for ks, t in seq]
    xq = XLoader(k, 32, lambda i: vr(vX+4*i), lin_src(k))
    res = {}
    se = stats_emitters(k, vST, res)
    k(f"s_lshl_b32 s{sCc}, s{sA}, 18\ns_lshl_b32 s{sT1}, s{sRB}, 11\ns_add_u32 s{sCc}, s{sCc}, s{sT1}")
    k(f"s_mul_i32 s{sB}, s{sRB}, {112*KB}\ns_lshl_b32 s{sT1}, s{sA}, 11\ns_add_u32 s{sB}, s{sB}, s{sT1}")
    assert ring.issued == ring.total
    g = Gemm(k, ring, ops, {0})
    g.start()
    ring.issue_n(4)
    publish_local(k, G.tx)
    ring.issue_n(4)
    G.ex = 216
    su = [x.replace('v13', 'v246').replace('v14', 'v247') for x in att_setup(L)] + ex_addr(G.ex)
    su += [f"s_lshl_b32 s{sE}, s{sA}, 11", f"s_add_u32 s{sE}, s{sE}, s{sB}", f"s_add_u32 s{sE}, s{sE}, {HF + 32*KB}"]
    k(f"s_lshl_b32 s{sF}, s{sRB}, 7\ns_add_u32 s{sF}, s{sF}, {FLOC(L-1, 8)}")
    poll16(k)
    aps = stats_poll(k, FLOC(L-1,7) - FLOC(L-1,8))
    fin = fin_stats(vST, vEXT, vRS) + qkv_consts(vT, vRS, vR)
    full = qk_tile(vACC, KVF(L), vRS, " sc1", vST) + v_tile(vACC+16, L, vR, vST+16)
    alu_ = [x for x in full if x.startswith('v_')]
    glob = [x for x in full if not x.startswith('v_')]
    lo_ = [f"buffer_store_dwordx4 {vr(vST)}, v{vL16}, {srd(sWS)}, s{sE} offen",
           f"buffer_store_dwordx4 {vr(vST+4)}, v{vL16}, {srd(sWS)}, s{sE} offen offset:2048",
           f"buffer_store_dwordx4 {vr(vST+16)}, v{G.ex+6}, {srd(sWS)}, s{sE} offen offset:1024",
           f"buffer_store_dwordx4 {vr(vST+20)}, v{G.ex+6}, {srd(sWS)}, s{sE} offen offset:1536"]
    epi = []
    for q_ in range(4): epi += alu_[12*q_:12*q_+12] + ([lo_[q_]] if KV_LOC else [])
    epi += ["#loc"] + glob + ex_kv(vST, vST+16)
    st = dict(i=0, j=0, t=None, loc=None)
    def put(x):
        if x == '#loc': st['loc'] = st['t']
        elif x.startswith('buffer'): st['t'] = k.vm(x)
        elif x.startswith('ds_'): k.lg(x)
        else: k(x)
    def filler(m):
        if aps and m == 4: aps.issue()
        if m == 22:
            if aps: aps.check()
            for e in se: e()
        if m < 10 or m > 22:
            for _ in range(3 if m < 10 else 4):
                if su: k(su.pop(0))
        if 44 <= m < 64 + QE:
            assert not su
            if st['i'] == 0: k.wait(vm=res['t'])
            for _ in range(3):
                if st['i'] < len(fin): k(fin[st['i']]); st['i'] += 1
        if m >= 68 + QE:
            for _ in range(QKV_EPI):
                if st['j'] < len(epi): put(epi[st['j']]); st['j'] += 1
    g.run(xq, n0=8, filler=filler)
    while st['j'] < len(epi):
        put(epi[st['j']]); st['j'] += 1
    assert st['i'] == len(fin)
    if KV_LOC and QF_AT == 0: q_flag(k, L, st['loc'])
    q_out(k, vACC + 32, vRS + 1, vST + 8, vT)
    if KV_LOC and QF_AT == 1: q_flag(k, L, st['loc'])
    mark(k, 'st')
    return st['t'], st['loc']

def code_touch(k, vd, skip=0):
    if not CODE_TOUCH: return
    pc = k.newlabel('pc')
    k(f"s_getpc_b64 s[{sPC}:{sPC+1}]")
    k.label(pc)
    k(f"s_min_u32 s{sSPIN}, s{sCT}, L_end-{pc}-1024\ns_add_u32 s{sPC}, s{sPC}, s{sSPIN}\ns_addc_u32 s{sPC+1}, s{sPC+1}, 0")
    k.vm(f"global_load_dword v{vd}, v{vL16}, s[{sPC}:{sPC+1}] offset:{skip}")

def flag_touch(k, L, va, vd):
    if not FL_TOUCH: return
    k(f"v_bfe_u32 v{va}, v0, 3, 3\nv_lshlrev_b32 v{va}, 6, v{va}\nv_and_or_b32 v{va}, v0, 7, v{va}\nv_lshlrev_b32 v{va}, 7, v{va}")
    k(f"s_lshl_b32 s{sT3}, s{sG}, 10\ns_add_u32 s{sT3}, s{sT3}, {FLOC(L,0)}")
    k.vm(f"buffer_load_dword v{vd}, v{va}, {srd(sWS)}, s{sT3} offen sc1")

EX = 112 * KB
vK, vV, vIDX, vL128, vTX, vP2, vCP = 248, 249, 250, 251, 252, 253, 254
sOD, sLC, sTH, sTW, sFO, sF2, sKX = 64, 66, 72, 73, 79, 68, 69
def att_setup(L):
    o = f"""s_and_b32 s{sT0}, s{sC}, 15
s_lshl_b32 s{sF2}, s{sT0}, 11
s_add_u32 s{sF2}, s{sF2}, {FKV(L)}
s_lshl_b32 s{sT0}, s{sT0}, 1
s_and_b32 s{sT1}, s{sW}, 1
s_add_u32 s{sT0}, s{sT0}, s{sT1}
s_lshr_b32 s{sT1}, s{sW}, 1
s_lshl_b32 s{sKX}, s{sG}, 1
s_add_u32 s{sKX}, s{sKX}, s{sC4}
s_lshl_b32 s{sT2}, s{sKX}, 1
s_add_u32 s{sT2}, s{sT2}, s{sT1}
s_lshl_b32 s{sFO}, s{sT2}, 5
s_add_u32 s{sFO}, s{sFO}, s{sT0}
s_lshl_b32 s{sFO}, s{sFO}, 3
s_add_u32 s{sFO}, s{sFO}, {FLOC(L,0)}
s_mul_i32 s{sOD}, s{sT2}, {224*KB}
s_lshl_b32 s{sT3}, s{sT0}, 10
s_add_u32 s{sOD}, s{sOD}, s{sT3}
s_add_u32 s{sOD}, s{sOD}, {HF}
s_add_u32 s{sOD+1}, s{sOD}, {112*KB}
s_xor_b32 s{sT2}, s{sT2}, 2
s_mul_i32 s{sLC}, s{sT2}, {224*KB}
s_lshl_b32 s{sT3}, s{sT0}, 11
s_add_u32 s{sLC}, s{sLC}, s{sT3}
s_add_u32 s{sLC}, s{sLC}, {HF + 32*KB}
s_add_u32 s{sLC+1}, s{sLC}, {112*KB}
s_lshl_b32 s{sKX}, s{sKX}, 13
s_lshl_b32 s{sT0}, s{sT0}, 17
s_lshl_b32 s{sT1}, s{sT1}, 12
s_add_u32 s{sT0}, s{sT0}, s{sT1}
s_add_u32 s{sKX}, s{sKX}, s{sT0}
s_add_u32 s{sKX}, s{sKX}, {KVF(L)}
v_and_b32 v13, 0x33, v0
v_bfe_u32 v14, v0, 2, 1
v_lshl_or_b32 v13, v14, 3, v13
v_bfe_u32 v14, v0, 3, 1
v_lshl_or_b32 v13, v14, 2, v13
v_lshlrev_b32 v{vK}, 4, v13
v_and_b32 v13, 15, v0
v_lshlrev_b32 v{vP2}, 7, v13
v_bfe_u32 v14, v0, 5, 1
v_lshl_add_u32 v13, v14, 4, v13
v_lshlrev_b32 v{vV}, 4, v13
v_mov_b32 v{vIDX}, 0xdddddddd
v_lshlrev_b32 v{vL128}, 3, v{vL16}
v_and_b32 v13, 27, v0
v_cmp_eq_u32 vcc, 16, v13
v_mov_b32 v14, 0x3afe3f80
v_cndmask_b32 v{vCP}, 0, v14, vcc
s_lshl_b32 s{sT3}, s{sU}, 2
s_add_u32 s{sT3}, s{sT3}, s{sW}
s_mul_i32 s{sTH}, s{sT3}, {7*KB}
s_add_u32 s{sTH}, s{sTH}, {HF}
s_lshl_b32 s{sT0}, s{sT3}, 11
s_add_u32 s{sT0}, s{sT0}, {XF}
s_lshl_b32 s{sT1}, s{sT3}, 8
s_add_u32 s{sT1}, s{sT1}, {SX}
v_and_b32 v13, 0x780, v{vL128}
v_add_u32 v13, s{sT0}, v13
v_and_b32 v14, 0x80, v{vL128}
v_add_u32 v14, s{sT1}, v14
v_cmp_gt_u32 vcc, 512, v{vL16}
v_cndmask_b32 v{vTX}, v14, v13, vcc
s_lshl_b32 s{sTW}, s{sC4}, 2
s_add_u32 s{sTW}, s{sTW}, s{sW}
s_mul_i32 s{sTW}, s{sTW}, {TOUCH_KBS[L] * KB // 8}
s_add_u32 s{sTW}, s{sTW}, s{sSEG+1}
s_add_u32 s{sTW}, s{sTW}, {(PREFILL - 64)*KB}
s_and_b32 s{sCT}, s{sT3}, 31
s_lshl_b32 s{sCT}, s{sCT}, 10"""
    return o.split('\n')
def ex_addr(e):
    return [f"v_bfe_u32 v{e+6}, v0, 4, 1", f"v_lshl_add_u32 v{e+6}, v{e+6}, 11, v{vV}",
            f"s_mul_i32 s{sT3}, s{sW}, {6*KB}", f"s_add_u32 s{sT3}, s{sT3}, {EX}", f"v_add_u32 v{e}, s{sT3}, v{vL16}", f"v_add_u32 v{e+1}, s{sT3}, v{e+6}",
            f"s_lshr_b32 s{sT3}, s{sW}, 1", f"s_mul_i32 s{sT3}, s{sT3}, {12*KB}", f"s_and_b32 s{sT0}, s{sW}, 1", f"s_lshl_b32 s{sT0}, s{sT0}, 10",
            f"s_add_u32 s{sT2}, s{sT0}, {EX}", f"s_add_u32 s{sT1}, s{sT2}, s{sT3}", f"v_add_u32 v{e+2}, s{sT1}, v{vL16}",
            f"s_sub_u32 s{sT2}, s{sT2}, s{sT3}", f"v_add_u32 v{e+3}, s{sT2}, v{vL16}", f"s_add_u32 s{sT1}, s{sT1}, s{sT0}",
            f"v_add_u32 v{e+4}, s{sT1}, v{vK}", f"v_add_u32 v{e+5}, s{sT1}, v{vV}"]
def ex_kv(pK, pV):
    e = G.ex
    return [f"ds_write_b128 v{e}, {vr(pK)}", f"ds_write_b128 v{e}, {vr(pK+4)} offset:2048",
            f"ds_write_b128 v{e+1}, {vr(pV)} offset:1024", f"ds_write_b128 v{e+1}, {vr(pV+4)} offset:1536"]
def q_out(k, a, sc, p0, vT):
    init = [f"v_mfma_f32_32x32x16_bf16 {vr(16+16*q,16)}, {vr(vT+4)}, {vr(vT)}, 0" for q in range(4)]
    init2 = [f"v_mfma_f32_32x32x16_bf16 {vr(80+16*q,16)}, {vr(vT+4)}, {vr(vT)}, 0" for q in range(6)]
    k(f"v_mov_b32 v{vT}, 0")
    for x in init: k(x)
    k(f"v_mov_b32 v{vT}, v{vCP}")
    for half in range(2):
        p = p0 + 4*half
        for j in range(4):
            r = a + 8*half + 2*j
            k(f"v_mul_f32 v{r}, v{r}, v{sc}\nv_mul_f32 v{r+1}, v{r+1}, v{sc}\nv_cvt_pk_bf16_f32 v{p+j}, v{r}, v{r+1}")
            if init2: k(init2.pop(0))
        k.lg(f"ds_write_b128 v{G.ex}, {vr(p)} offset:{4096 + half*KB}")

def ph_att(k, L, ring, tkv, tloc):
    vO, vKV, vS0, aQ = 16, 80, 176, aWB
    NS = 4; NKV = 8
    vS = [vS0 + 16*i for i in range(NS)]
    sK = sB
    K = lambda t: vr(vKV + 12*(t % NKV))
    V = lambda t, u: vr(vKV + 12*(t % NKV) + 4 + 4*u)
    k.wait_all(vm=False)
    k("s_barrier")
    lt = {}
    lt['k0'] = k.lg(f"ds_read_b128 {K(0)}, v{G.ex+4}")
    for s in range(4):
        lt[s] = k.lg(f"ds_read_b128 {ar(aQ+4*s)}, v{G.ex + 2 + (s >> 1)} offset:{4096 + (s & 1)*6*KB + (12*KB if s >> 1 else 0)}")
    k(f"s_mov_b64 exec, s[{sMSK}:{sMSK+1}]")
    for t in range(2):
        for u in range(2): lt['v'] = k.lg(f"ds_read_b128 {V(t,u)}, v{G.ex+5} offset:{t*6*KB + KB + u*512}")
    k("s_mov_b64 exec, -1")
    lt['k1'] = k.lg(f"ds_read_b128 {K(1)}, v{G.ex+4} offset:{6*KB}")
    mark(k, 'pre')
    if L and KV_LOC and QF_AT == 2: q_flag(k, L, tloc)
    kt = {}
    def ldP(x):
        if x == 1 and L and KV_LOC: src = [(sLC, 0), (sLC + 1, 0)]
        else:
            k(f"s_xor_b32 s{sK}, s{sKX}, {x << 13}")
            src = [(sK, 0), (sK, 2*KB)]
        for z in range(2): k.vm(f"buffer_load_dwordx4 {K(2*x+z)}, v{vK}, {srd(sWS)}, s{src[z][0]} offen offset:{src[z][1]} sc1")
        k(f"s_mov_b64 exec, s[{sMSK}:{sMSK+1}]")
        for z in range(2):
            for u in range(2): t_ = k.vm(f"buffer_load_dwordx4 {V(2*x+z,u)}, v{vV}, {srd(sWS)}, s{src[z][0]} offen offset:{src[z][1] + KB + u*512} sc1")
        k("s_mov_b64 exec, -1")
        kt[2*x] = kt[2*x+1] = t_
    NT = ATT_NT
    steps = [(t, q) for t in range(32 - NT) for q in range(4)] + [(t, q) for q in (2, 3, 0, 1) for t in range(32 - NT, 32)]
    n = len(steps)
    LA = NS - 1
    def qk(i):
        t, q = steps[i]
        if t < 2: k.wait(lg=lt[q] if t == 0 else lt['k1'])
        else: k.wait(vm=kt[t])
        k(f"v_mfma_f32_32x32x16_bf16 {vr(vS[i % NS],16)}, {K(t)}, {ar(aQ+4*q)}, 0")
    def pv(i, u):
        t, q = steps[i]
        if t < 2: k.wait(lg=lt['v'])
        k(f"v_smfmac_f32_32x32x32_bf16 {vr(vO+16*q,16)}, {V(t,u)}, {vr(vS[i % NS]+8*u,8)}, v{vIDX}")
    for i in range(LA): qk(i)
    mark(k, 'm0')
    ring.limit = PREFILL
    jobs = {}
    def job(i, f, e=10): jobs.setdefault((i, e), []).append(f)
    ap2 = apoll1(k, vP2, 10, sF2)
    late_qk = set()
    if L and KV_LOC:
        def a1():
            k(f"s_xor_b32 s{sT0}, s{sRB}, 4\ns_and_b32 s{sT0}, s{sT0}, 6\ns_lshl_b32 s{sT1}, s{sG}, 4\ns_add_u32 s{sT1}, s{sT1}, s{sA}\ns_lshl_b32 s{sT1}, s{sT1}, 3")
            k(f"s_add_u32 s{sT1}, s{sT1}, s{sT0}\ns_lshl_b32 s{sT1}, s{sT1}, 3\ns_add_u32 s{sD}, s{sT1}, {FLOC(L-1,5)}\nv_and_b32 v12, 8, v0")
            ap1.issue()
        ap1 = apoll1(k, 12, 8, sD)
        job(A1_AT[0], a1, e=2 if A1_AT[0] else 3)
        job(A1_AT[1], lambda: (ap1.check(), ldP(1)))
        job(KVF_AT[L], lambda: (k.wait(lg=lt['k1']), kv_flag(k, L, tkv)))
        job(P2[L][0], ap2.issue)
        job(P2[L][1], lambda: (ap2.check(), ldP(2)))
        job(P2[L][1] + 1, lambda: ldP(3))
    else:
        if not (L == 0 and Q0K and Q0K_FLAG < 32): job(KVF_AT[L], lambda: (k.wait(lg=lt['k1']), kv_flag(k, L, tkv)))
        if L == 0:
            job(PKR_AT, lambda: G.pk.reads(*range(8)))
            for i in range(8): job(PKR_AT + 1 + i // 4, lambda i=i: G.pk.csum(i), e=(0, 4, 8, 13)[i % 4])
        job(P2[L][0], ap2.issue)
        if L == 0 and PK_WAIT:
            job(P2[L][1], lambda: (ap2.check(), ldP(1), ldP(2), ldP(3) if PK_WAIT > 1 else None, G.pk.stores(*range(8)), G.pk.ext()), e=15)
            if PK_WAIT == 1: job(P2[L][1] + 2, lambda: ldP(3))
        else:
            job(P2[L][1], lambda: (ap2.check(), ldP(1)))
            job(P2[L][1] + 1, lambda: ldP(2))
            job(P2[L][1] + 2, lambda: ldP(3))
        late_qk = set(range(8, 8 + LA))
    job(9, lambda: code_touch(k, 5))
    for x in range(4, 16): job(8*(x - 3) + (4 if x == 4 else 0), lambda x=x: ldP(x))
    NR = PREFILL // 16
    if L == 0:
        if PK_WAIT:
            job(PUB_AT, G.pk.pub); CHK_AT = PUB_AT + CHK_GAP
        else: CHK_AT = G.pk.schedule(job) + CHK_GAP
        apk = APoll(k, [f"buffer_load_dwordx2 v[10:11], v12, {srd(sWS)}, s{sX} offen offset:8 sc1"],
                    f"v_cmp_ne_u64 vcc, s[{sTAG}:{sTAG+1}], v[10:11]")
        def chk0():
            k(f"v_accvgpr_read_b32 v12, a213\ns_mov_b32 s{sX}, {FPK}")
            apk.issue()
        job(CHK_AT - 6, chk0)
        apx = APoll(k, [f"buffer_load_dwordx4 v[12:15], v11, {srd(sWS)}, s{sCc} offen sc1"],
                    f"v_cmp_ne_u64 vcc, s[{sTAG}:{sTAG+1}], v[14:15]")
        def mode0():
            k(f"v_and_b32 v11, 0xf80, v{vL128}\ns_lshl_b32 s{sCc}, s{sG}, 12\ns_add_u32 s{sCc}, s{sCc}, {FPK}")
            apx.issue()
        def mode():
            apx.check()
            k(f"s_xor_b32 s{sT2}, s{sTAG}, s{sXCC}")
            k(f"v_cmp_ne_u32 vcc, s{sT2}, v12")
            k(f"s_cmp_eq_u64 vcc, 0\ns_cselect_b32 s{sMODE}, 1, 0")
        job(81, mode0); job(95, mode)
        def chk():
            apk.check()
            k(f"s_and_b32 s{sT2}, s{sC}, 7\ns_lshl_b32 s{sT2}, s{sT2}, 1\ns_lshr_b32 s{sT3}, s{sW}, 1\ns_add_u32 s{sT2}, s{sT2}, s{sT3}")
            k(f"s_mul_i32 s{sT3}, s{sW}, {28*KB}\ns_add_u32 s{sT3}, s{sT3}, {WD}")
            k(f"s_mul_i32 s{sX}, s{sT2}, {112*KB}\ns_add_u32 s{sX}, s{sX}, s{sT3}")
            k(f"s_xor_b32 s{sT2}, s{sT2}, 1\ns_mul_i32 s{sX2}, s{sT2}, {112*KB}\ns_add_u32 s{sX2}, s{sX2}, s{sT3}")
        job(CHK_AT, chk)
        def wsrc(i):
            s_ = sX if i < 28 else sX2
            j = i % 28
            if j and (j & 3) == 0: k(f"s_add_u32 s{s_}, s{s_}, 4096")
            return s_, (j & 3) * KB
        if DN16:
            def wsrc(i):
                s_ = sX if i < 28 else sX2
                j = i % 28
                if j and (j & 3) == 0: k(f"s_add_u32 s{s_}, s{s_}, 4096")
                return s_, ((j >> 1) & 1) * 2048 + (j & 1) * 256
            wq = XLoader(k, 56, lambda i: ar(aWD + 16*((i % 28) >> 1) + 8*(i // 28) + 4*(i & 1)), wsrc, va=9)
            job(CHK_AT, lambda: k(f"v_and_b32 v9, 0xf0, v{vK}\nv_bfe_u32 v8, v0, 4, 2\nv_lshl_add_u32 v9, v8, 9, v9"))
        else:
            wq = XLoader(k, 56, lambda i: ar(aWD + 8*(i % 28) + 4*(i // 28)), wsrc)
        slots = [i for i in range(CHK_AT + 1, 112) if i % 8 in WD_SLOTS]
        work = [lambda: wq.issue_n(4)] * 14
        rw = [ring.issue16] * NR
        seq = []
        while work or rw:
            if work: seq.append(work.pop(0))
            if work: seq.append(work.pop(0))
            if rw: seq.append(rw.pop(0))
        assert len(seq) <= len(slots), (len(seq), len(slots))
        for i, f in zip(slots, seq): job(i, f)
    else:
        for j in range(NR): job(R1_AT + R1_STEP*j, ring.issue16)
    TL = TOUCH_LN; vT_ = vL128 if TL == 64 else 4
    def tch(sreg, j):
        def f():
            if j: k(f"s_add_u32 s{sreg}, s{sreg}, {TL*128}")
            elif TL < 64: k(f"v_and_b32 v4, {(TL-1)*128}, v{vL128}")
            k.vm(f"buffer_load_dword v5, v{vT_}, {srd(sWS)}, s{sreg} offen sc1")
        return f
    for j in range(-(-TOUCH_KBS[L] // TL)): job(TOUCH_AT[L] + j*TOUCH_STEP[L], tch(sTW, j))
    for j in range(-(-56 // TL)): job(TACTS[L] + j*TH_STEP, tch(sTH, j))
    job(TACTS[L] + 4, lambda: k.vm(f"buffer_load_dword v5, v{vTX}, {srd(sWS)}, 0 offen sc1"))
    job(CT_AT, lambda: code_touch(k, 5))
    SC = 136 * KB
    assert PREFILL <= 136
    def red_setup():
        k(f"s_mul_i32 s{sT0}, s{sW}, {6*KB}\ns_add_u32 s{sT0}, s{sT0}, {SC}\nv_add_u32 v13, s{sT0}, v{vL16}")
        k(f"s_xor_b32 s{sT0}, s{sW}, 2\ns_mul_i32 s{sT0}, s{sT0}, {6*KB}\ns_add_u32 s{sT0}, s{sT0}, {SC}\nv_add_u32 v10, s{sT0}, v{vL16}")
    job(112, red_setup)
    def res_early():
        if L == 0:
            rowmajor_addr(k, 14, sT0)
            k.vm(f"buffer_load_dwordx4 {vr(240)}, v14, {srd(60)}, s{sT0} offen")
            k.vm(f"buffer_load_dwordx4 {vr(244)}, v14, {srd(60)}, s{sT0} offen offset:32")
        else: load_res(k, 240)
    if RES_AT: job(RES_AT, res_early)
    def red_write(s):
        z = s & 1
        k.lg(f"ds_write_b128 v10, {vr(vO+16*s)} offset:{z*3*KB}")
        k.lg(f"ds_write_b128 v10, {vr(vO+16*s+4)} offset:{z*3*KB+KB}")
        k.lg(f"ds_write_b32 v10, v{vO+16*s+8} offset:{z*3*KB+2*KB}")
    for i in range(128):
        if steps[i][0] == 31 and steps[i][1] >= 2: job(i + 2, lambda s=steps[i][1]: red_write(s), e=2)
    tl = []
    def red_read():
        k.wait_all()
        k("s_barrier")
        for z in range(2):
            b = vO + 32 + 16*z
            k.lg(f"ds_read_b32 v{b+8}, v13 offset:{z*3*KB+2*KB}")
            k.lg(f"ds_read_b128 {vr(b)}, v13 offset:{z*3*KB}")
            tl.append(k.lg(f"ds_read_b128 {vr(b+4)}, v13 offset:{z*3*KB+KB}"))
    job(127 if NT == 1 else 126, red_read)
    for i, (t, q) in enumerate(steps):
        s = vS[i % NS]
        if i in ATT_MARKS: mark(k, f's{i}')
        if i == 8 and late_qk:
            pv(7, 1)
            for j in sorted(late_qk): qk(j)
        for e in range(16):
            if e == 2 and i > 0 and not (i == 8 and late_qk): pv(i-1, 1)
            if e == 6 and i + LA < n and i + LA not in late_qk: qk(i + LA)
            if e == 10: pv(i, 0)
            for f in jobs.pop((i, e), []): f()
            k(f"v_exp_f32 v{s+e}, v{s+e}")
    pv(n-1, 1)
    assert not jobs, jobs.keys()
    assert ring.issued == PREFILL
    mark(k, 'loop')
    for z in range(2):
        o = vO + 16*z; b = vO + 32 + 16*z
        k.wait(lg=tl[z])
        k(f"v_add_f32 v{o+8}, v{o+8}, v{b+8}\nv_rcp_f32 v{o+9}, v{o+8}")
        for i in range(8): k(f"v_add_f32 v{o+i}, v{o+i}, v{b+i}")
        for j in range(4):
            k(f"v_mul_f32 v{o+2*j}, v{o+2*j}, v{o+9}\nv_mul_f32 v{o+2*j+1}, v{o+2*j+1}, v{o+9}")
            k(f"v_cvt_pk_bf16_f32 v{o+12+j}, v{o+2*j}, v{o+2*j+1}")
        ts = k.vm(f"buffer_store_dwordx4 {vr(o+12)}, v{vL16}, {srd(sWS)}, s{sOD+z} offen")
    mark(k, 'f_st')
    fb = k.newlabel('fb'); back = k.newlabel('fbret')
    LO, HI = f2u(2.0**-60), f2u(2.0**60)
    for z in range(2):
        o = vO + 16*z
        k(f"v_add_f32 v{o}, v{o}, v{o+1}\nv_add_f32 v{o+2}, v{o+2}, v{o+3}\nv_add_f32 v{o+4}, v{o+4}, v{o+5}\nv_add_f32 v{o+6}, v{o+6}, v{o+7}")
        k(f"v_add_f32 v{o}, v{o}, v{o+2}\nv_add_f32 v{o+4}, v{o+4}, v{o+6}\nv_add_f32 v{o}, v{o}, v{o+4}")
        k(f"v_fma_f32 v{o+8}, v{o}, 0, v{o+8}\nv_subrev_u32 v{o+8}, {hex(LO)}, v{o+8}")
    k(f"v_max_u32 v{vO+8}, v{vO+8}, v{vO+24}")
    k(f"v_cmp_lt_u32 vcc, {hex(0 if FORCE_FB else HI - LO)}, v{vO+8}")
    k(f"s_cbranch_vccnz {fb}")
    k.label(back)
    F = [f"{fb}:", "s_waitcnt vmcnt(0)", f"s_and_b32 s{sT0}, s{sKX}, 0xfffe0000",
         f"v_add_u32 v{vK}, s{sT0}, v{vK}", f"v_add_u32 v{vV}, s{sT0}, v{vV}"]
    S, C, M = vS0, vS0 + 16, vS0 + 32
    for z in range(2):
        o = vO + 16*z; Q = ar(aQ + 4*z)
        F += [f"v_mov_b32 v{M}, 0xff800000", f"s_mov_b32 s{sK}, 0", f"{fb}_a{z}:",
              f"buffer_load_dwordx4 {K(0)}, v{vK}, {srd(sWS)}, s{sK} offen sc1", "s_waitcnt vmcnt(0)",
              f"v_mfma_f32_32x32x16_bf16 {vr(S,16)}, {K(0)}, {Q}, 0"]
        F += [f"v_max3_f32 v{M}, v{M}, v{S+2*i}, v{S+2*i+1}" for i in range(8)]
        F += [f"s_add_u32 s{sK}, s{sK}, 2048", f"s_cmp_lt_u32 s{sK}, {64*2048}", f"s_cbranch_scc1 {fb}_a{z}",
              f"v_mov_b32 v{M+1}, v{M}", f"v_permlane32_swap_b32 v{M}, v{M+1}", f"v_max_f32 v{M}, v{M}, v{M+1}"]
        F += [f"v_sub_f32 v{C+i}, 0, v{M}" for i in range(16)] + [f"v_mov_b32 v{o+i}, 0" for i in range(16)]
        F += [f"s_mov_b32 s{sK}, 0", f"{fb}_b{z}:",
              f"buffer_load_dwordx4 {K(0)}, v{vK}, {srd(sWS)}, s{sK} offen sc1",
              f"s_mov_b64 exec, s[{sMSK}:{sMSK+1}]",
              f"buffer_load_dwordx4 {V(0,0)}, v{vV}, {srd(sWS)}, s{sK} offen offset:{KB} sc1",
              f"buffer_load_dwordx4 {V(0,1)}, v{vV}, {srd(sWS)}, s{sK} offen offset:{KB+512} sc1",
              "s_mov_b64 exec, -1", "s_waitcnt vmcnt(0)",
              f"v_mfma_f32_32x32x16_bf16 {vr(S,16)}, {K(0)}, {Q}, {vr(C,16)}"]
        F += [f"v_exp_f32 v{S+i}, v{S+i}" for i in range(16)]
        F += [f"v_smfmac_f32_32x32x32_bf16 {vr(o,16)}, {V(0,u)}, {vr(S+8*u,8)}, v{vIDX}" for u in range(2)]
        F += ["s_nop 15", f"s_add_u32 s{sK}, s{sK}, 2048", f"s_cmp_lt_u32 s{sK}, {64*2048}", f"s_cbranch_scc1 {fb}_b{z}",
              f"v_rcp_f32 v{o+9}, v{o+8}"]
        for j in range(4):
            F += [f"v_mul_f32 v{o+2*j}, v{o+2*j}, v{o+9}", f"v_mul_f32 v{o+2*j+1}, v{o+2*j+1}, v{o+9}", f"v_cvt_pk_bf16_f32 v{o+12+j}, v{o+2*j}, v{o+2*j+1}"]
        F += [f"buffer_store_dwordx4 {vr(o+12)}, v{vL16}, {srd(sWS)}, s{sOD+z} offen"]
    F += ["s_waitcnt vmcnt(0)", f"s_branch {back}"]
    G.far += F
    k(f"s_mov_b32 s{sF}, s{sFO}")
    ring.end16()
    ring.limit = 144
    return ts

def load_res(k, v):
    k(f"s_add_u32 s{sT1}, s{sDST}, {XF}")
    k.vm(f"buffer_load_dwordx4 {vr(v)}, v{vL16}, {srd(sWS)}, s{sT1} offen sc1")
    return k.vm(f"buffer_load_dwordx4 {vr(v+4)}, v{vL16}, {srd(sWS)}, s{sT1} offen offset:1024 sc1")
def add_res(k, acc, v):
    for j in range(8):
        k(f"v_lshlrev_b32 v10, 16, v{v+j}\nv_and_b32 v11, 0xffff0000, v{v+j}")
        k(f"v_add_f32 v{acc+2*j}, v{acc+2*j}, v10\nv_add_f32 v{acc+2*j+1}, v{acc+2*j+1}, v11")

def ph_wo(k, L, ring, tO):
    k.label(f'L_wo{L}')
    vX, vACC, vRES, vSUM, vPK = 16, 80, (240 if RES_AT else 112), 120, 136
    k(f"s_lshr_b32 s{sRB}, s{sDST}, 15\ns_lshr_b32 s{sD}, s{sW}, 1")
    k(f"s_mul_i32 s{sX}, s{sRB}, {112*KB}\ns_lshl_b32 s{sT0}, s{sD}, 14\ns_add_u32 s{sX}, s{sX}, s{sT0}\ns_add_u32 s{sX}, s{sX}, {HF}")
    k(f"s_lshl_b32 s{sT0}, s{sD}, 11")
    set_lds_bases(k, sT0)
    seq = []
    for s in range(16):
        seq.append((s, 1))
        if s < 16 - WO_R0: seq.append((s, 0))
    nf = len(seq)
    seq += [(s, 0) for s in range(16 - WO_R0, 16)]
    ops = [dict(b=4*s + a, bmin=0, bmax=63, xi=s, x=vr(vX+4*s), acc=vr(vACC+16*a,16), swap=False, first=(s == 0)) for s, a in seq]
    g = Gemm(k, ring, ops, {0}, stop_issue=WO_STOP)
    rs = {}
    def ldres():
        if L == 0:
            k.vm(f"buffer_load_dwordx4 {vr(vRES)}, v8, {srd(60)}, s{sE} offen")
            rs['t'] = k.vm(f"buffer_load_dwordx4 {vr(vRES+4)}, v8, {srd(60)}, s{sE} offen offset:32")
        else:
            rs['t'] = load_res(k, vRES)
    if not RES_LATE[L] and not RES_AT:
        if L == 0: rowmajor_addr(k, 8, sE)
        ldres()
    g.start()
    mark(k, 'f_bar')
    ring.issue_n(PRE_WO)
    publish_local(k, tO)
    mark(k, 'f_pub')
    ring.issue_n(PRE_WO2)
    k(f"s_and_b32 s{sF}, s{sRB}, 0xfe\ns_add_u32 s{sF}, s{sF}, s{sD}\ns_lshl_b32 s{sF}, s{sF}, 7\ns_add_u32 s{sF}, s{sF}, {FLOC(L,0)}")
    SC = 144 * KB
    k(f"s_xor_b32 s{sT0}, s{sW}, 2\ns_lshl_b32 s{sT0}, s{sT0}, 12\ns_add_u32 s{sT0}, s{sT0}, {SC}\nv_add_u32 v6, s{sT0}, v{vL16}")
    k(f"s_lshl_b32 s{sT0}, s{sW}, 12\ns_add_u32 s{sT0}, s{sT0}, {SC}\nv_add_u32 v7, s{sT0}, v{vL16}")
    if RES_LATE[L] and L == 0: rowmajor_addr(k, 8, sE)
    if RES_AT:
        for x in res_unpack(vSUM, vRES): k(x)
    poll16(k)
    mark(k, 'f_poll')
    xq = XLoader(k, 16, lambda i: vr(vX+4*i), lin_src(k))
    xq.issue_n(WO_N0)
    if not RES_LATE[L] and not RES_AT:
        for x in res_unpack(vSUM, vRES): k(x)
    st = {}
    def xchg(step):
        if step == 0:
            while g.nread < 32: g.rd()
            for j in range(4): k.lg(f"ds_write_b128 v6, {vr(vACC+16+4*j)} offset:{j*KB}")
        elif step == 1:
            k.wait_all(vm=False)
            ring.limit = None
            ring.sync(64, 0)
            for j in range(4): st['t'] = k.lg(f"ds_read_b128 {vr(vACC+16+4*j)}, v7 offset:{j*KB}")
            ring.issue_n(XB_PRE)
        st['n'] = step + 1
    def filler(m):
        if m == max(nf + 1, 25): xchg(0)
        if m == max(nf + 4, 28): xchg(1)
    g.run(xq, n0=0, look=16, filler=filler, misc=[ldres] if RES_LATE[L] else [])
    for step in range(st.get('n', 0), 2): xchg(step)
    if RES_LATE[L]:
        k.wait(vm=rs['t'])
        for x in res_unpack(vSUM, vRES): k(x)
    k.wait(lg=st['t'])
    for i in range(16): k(f"v_add_f32 v{vSUM+i}, v{vSUM+i}, v{vACC+16+i}")
    for j in range(8):
        k(f"v_add_f32 v{vACC+2*j}, v{vACC+2*j}, v{vSUM+2*j}\nv_add_f32 v{vACC+2*j+1}, v{vACC+2*j+1}, v{vSUM+2*j+1}")
        k(f"v_cvt_pk_bf16_f32 v{vPK+j}, v{vACC+2*j}, v{vACC+2*j+1}")
    ts = store_x(k, vACC, vPK, L, 1, ring)
    mark(k, 'end')
    return ts

PASSES = ((0, 3), (3, 2), (5, 2))
PBASE = (0, 100, 166)
def ph_up(k, L, ring, b0, tprev):
    vX, vACC, vST, vEXT, vRS = 16, 144, 224, 8, 6
    sH0, sH1 = sD, sE
    rb_128(k)
    k(f"s_and_b32 s{sA}, s{sC}, 15")
    k(f"s_lshl_b32 s{sX}, s{sRB}, 15\ns_add_u32 s{sX}, s{sX}, {XF}")
    set_lds_bases(k)
    if UP16: return ph_up16(k, L, ring, b0, tprev)
    ops = []
    for (t0, nt), pb in zip(PASSES, PBASE):
        for ks in range(33):
            for t in range(t0, t0+nt):
                lo_ = b0 + pb + (ks >> 1)*2*nt
                b = lo_ + (2*(t - t0) + (ks & 1) if ks < 32 else t - t0)
                ops.append(dict(b=b, bmin=lo_, bmax=b, xi=(ks if ks < 32 else None), x=(vr(vX+4*ks) if ks < 32 else vr(vEXT)),
                                acc=vr(vACC+16*t, 16), swap=False, first=(ks == 0)))
    g = Gemm(k, ring, ops, UP_SYNCS, stop_issue=UP_STOP)
    g.start()
    mark(k, 'f_bar')
    ring.issue_n(PRE)
    publish_local(k, tprev)
    mark(k, 'f_pub')
    ring.issue_n(PRE2)
    res = {}
    se = stats_emitters(k, vST, res)
    k(f"s_mul_i32 s{sH0}, s{sRB}, 112\ns_mul_i32 s{sT2}, s{sA}, 7\ns_add_u32 s{sH0}, s{sH0}, s{sT2}\ns_lshl_b32 s{sH0}, s{sH0}, 10\ns_add_u32 s{sH0}, s{sH0}, {HF}")
    k(f"s_add_u32 s{sH1}, s{sH0}, 4096")
    k(f"s_lshl_b32 s{sF}, s{sRB}, 7\ns_add_u32 s{sF}, s{sF}, {FLOC(L,1)}")
    poll16(k)
    mark(k, 'f_poll')
    aps = stats_poll(k, FLOC(L,6) - FLOC(L,1))
    xq = XLoader(k, 32, lambda i: vr(vX+4*i), lin_src(k))
    fin = fin_stats(vST, vEXT, vRS) + [f"v_mul_f32 v{vRS}, v{vRS}, v{vRS}"]
    def epi(t):
        a = vACC + 16*t
        o = []
        for j in range(4):
            o += [f"v_mul_f32 v{a+2*j}, v{a+2*j}, v{vRS}", f"v_mul_f32 v{a+2*j+1}, v{a+2*j+1}, v{vRS}",
                  f"v_mul_f32 v{a+2*j}, v{a+2*j}, v{a+8+2*j}", f"v_mul_f32 v{a+2*j+1}, v{a+2*j+1}, v{a+9+2*j}",
                  f"v_cvt_pk_bf16_f32 v{a+8+j}, v{a+2*j}, v{a+2*j+1}"]
        o.append(f"buffer_store_dwordx4 {vr(a+8)}, v{vL16}, {srd(sWS)}, s{sH0 + (t >> 2)} offen offset:{(t & 3)*KB}")
        return o
    st = dict(i=0, t=None); q = []
    def put(x):
        if x.startswith('buffer'): st['t'] = k.vm(x)
        else: k(x)
    dn = Down(k, L)
    def filler(m):
        if aps and m == 12: aps.issue()
        if aps and m == 30: aps.check()
        if 70 <= m < 96:
            if st['i'] == 0: k.wait(vm=res['t'])
            for _ in range(2):
                if st['i'] < len(fin): k(fin[st['i']]); st['i'] += 1
        if m == 102: q.extend(sum((epi(t) for t in range(0, 3)), []))
        if m == 168: q.extend(sum((epi(t) for t in range(3, 5)), []))
        if UP4 and m == 201: q.extend(epi(5))
        for _ in range(UP_EPI):
            if q: put(q.pop(0))
        if m == 146: code_touch(k, 7)
        if m in UP_PUB:
            assert not q
            if m == UP_PUB[0]:
                k(f"s_lshl_b32 s{sF}, s{sRB}, 4\ns_add_u32 s{sF}, s{sF}, s{sA}\ns_lshl_b32 s{sF}, s{sF}, 3\ns_add_u32 s{sF}, s{sF}, {FLOC(L,9)}")
            publish_local(k, st['t'])
            k(f"s_add_u32 s{sF}, s{sF}, {8*KB}")
            if m == UP_PUB[1]: dn.xq.hold = 20
        if UP_PUB[0] < m and dn.setup:
            for _ in range(3):
                if dn.setup: k(dn.setup.pop(0))
        if m in DN_POLL: dn.ap.issue()
        if m in DN_CHK:
            dn.ap.check()
            k(f"s_add_u32 s{dn.sFl}, s{dn.sFl}, {8*KB}")
        if m > DN_CHK[0] and m % 2 and not (ring.can_issue() and m < UP_STOP): dn.xq.issue_n(1)
    if L == 0: ring.limit = 296 + QW_UP
    g.run(xq, look=UP_LOOK, filler=filler, misc=se, misc_from=32, skip=UP_SKIP[L])
    assert st['i'] == len(fin) and not dn.setup and ring.issued == min(ring.total, 296 + QW_UP)
    dn.xq.hold = 36 if len(DN_CHK) > 1 else 24
    for t in range(6 if UP4 else 5, 7):
        for i, x in enumerate(epi(t)):
            put(x)
            if i in (4, 14): dn.xq.issue_n(1)
    mark(k, 'end')
    dn.tB = st['t']
    return dn

def ph_up16(k, L, ring, b0, tprev):
    vX, vACC, vST, vEXT, vRS, vXM = 16, 144, 224, 8, 6, 12
    sH0, sH1 = sD, sE
    D, NB = 5, 8
    k(f"v_bfe_u32 v8, v0, 4, 2\nv_lshlrev_b32 v8, 9, v8\nv_and_b32 v9, 15, v0\nv_lshl_add_u32 v{vXM}, v9, 4, v8")
    k("v_and_b32 v9, 3, v0\nv_bfe_u32 v10, v0, 2, 1\nv_lshl_or_b32 v9, v10, 3, v9\nv_bfe_u32 v10, v0, 3, 1\nv_lshl_or_b32 v9, v10, 2, v9")
    k(f"v_lshl_add_u32 v{vB}, v9, 4, v8\nv_add_u32 v{vB+1}, 0x10000, v{vB}\nv_add_u32 v{vB+2}, 0x20000, v{vB}")
    units = []
    for (t0, nt), pb in zip(PASSES, PBASE):
        for K in range(16):
            for t in range(t0, t0+nt):
                for ch in range(2):
                    lo_ = b0 + pb + K*2*nt
                    units.append(dict(b=lo_ + 2*(t - t0), bmin=lo_, bmax=lo_ + 2*(t - t0) + 1, K=K, t=t, ch=ch))
        for t in range(t0, t0+nt):
            b = b0 + pb + 32*nt + t - t0
            units.append(dict(b=b, bmin=b0 + pb + 32*nt, bmax=b, K=16, t=t, e0=b0 + pb + 32*nt))
    M = len(units); syncs = sorted(UP_SYNCS)
    tl = {}; S = dict(nread=0)
    def rd():
        m = S['nread']; o = units[m]; w = aWB + 4*(m % NB)
        assert o['bmax'] < ring.visible, (m, o, ring.visible)
        a = ring.addr(o['b'])
        if o['K'] < 16:
            assert ring.addr(o['b'] + 1) == a + KB
            a += o['ch'] * 256
            tl[m] = k.lg(f"ds_read_b128 {ar(w)}, v{vB + (a >> 16)} offset:{a & 0xffff}")
        else:
            a0 = ring.addr(o['e0'])
            if o['b'] == o['e0']:
                if a0 != S['a0']: k(f"v_add_u32 v13, {a0 - S['a0']}, v13")
                S['a0'] = a0
            assert a >= a0
            k.lg(f"ds_read_b64 {ar(w,2)}, v13 offset:{a - a0}")
            tl[m] = k.lg(f"ds_read_b64 {ar(w+2,2)}, v13 offset:{a - a0 + 256}")
        S['nread'] += 1
    def need_until(m):
        nxt = [x for x in syncs if x > m]
        last = min((nxt[0] if nxt else M) - 1 + D, M - 1)
        return max(o['bmax'] for o in units[:last+1]) + 1
    ring.sync(units[0]['bmin'], need_until(0))
    for _ in range(D): rd()
    mark(k, 'f_bar')
    ring.issue_n(PRE)
    publish_local(k, tprev)
    mark(k, 'f_pub')
    res = {}
    se = stats_emitters(k, vST, res)
    k(f"s_mul_i32 s{sH0}, s{sRB}, 112\ns_mul_i32 s{sT2}, s{sA}, 7\ns_add_u32 s{sH0}, s{sH0}, s{sT2}\ns_lshl_b32 s{sH0}, s{sH0}, 10\ns_add_u32 s{sH0}, s{sH0}, {HF}")
    if DN16:
        k(f"s_bitcmp0_b32 s{sA}, 0\ns_cselect_b32 s{sH1}, -1, 1\ns_cselect_b32 s{sT2}, 7, -1\ns_lshl_b32 s{sH1}, s{sH1}, 10\ns_lshl_b32 s{sT2}, s{sT2}, 10\ns_add_u32 s{sH0}, s{sH0}, s{sT2}")
    else: k(f"s_add_u32 s{sH1}, s{sH0}, 4096")
    k(f"s_lshl_b32 s{sF}, s{sRB}, 7\ns_add_u32 s{sF}, s{sF}, {FLOC(L,1)}")
    poll16(k)
    mark(k, 'f_poll')
    aps = stats_poll(k, FLOC(L,6) - FLOC(L,1))
    def xsrc(i):
        if i and (i & 3) == 0: k(f"s_add_u32 s{sX}, s{sX}, 4096")
        return sX, ((i >> 1) & 1) * 2048 + (i & 1) * 256
    xq = XLoader(k, 32, lambda i: vr(vX+4*i), xsrc, va=vXM)
    fin = fin_stats(vST, vEXT, vRS) + [f"v_mul_f32 v{vRS}, v{vRS}, v{vRS}", f"v_permlane16_swap_b32 v{vEXT}, v{vEXT+2}"] + ([] if LN_BF16 else [f"v_permlane16_swap_b32 v{vEXT+1}, v{vEXT+3}"])
    fin2 = [f"v_mov_b32 v{vRS+1}, v{vRS}", f"v_permlane16_swap_b32 v{vRS}, v{vRS+1}"]
    def epi(t):
        a = vACC + 16*t
        o = []
        for th in range(2):
            g_ = a + 4*th; u_ = a + 8 + 4*th
            o += [f"v_mul_f32 v{g_+j}, v{g_+j}, v{vRS+th}" for j in range(4)] + [f"v_mul_f32 v{g_+j}, v{g_+j}, v{u_+j}" for j in range(4)]
            o += [f"v_cvt_pk_bf16_f32 v{a+8+2*th}, v{g_}, v{g_+1}", f"v_cvt_pk_bf16_f32 v{a+9+2*th}, v{g_+2}, v{g_+3}"]
        if DN16: o.append(f"s_add_u32 s{sH0}, s{sH0}, s{sH1}")
        o += [f"v_permlane16_swap_b32 v{a+8}, v{a+10}", f"v_permlane16_swap_b32 v{a+9}, v{a+11}"]
        if DN16: o.append(f"buffer_store_dwordx4 {vr(a+8)}, v{vL16}, {srd(sWS)}, s{sH0} offen")
        else: o.append(f"buffer_store_dwordx4 {vr(a+8)}, v{vL16}, {srd(sWS)}, s{sH0 + (t >> 2)} offen offset:{(t & 3)*KB}")
        return o
    st = dict(t=None)
    def put(x):
        if x.startswith('buffer'): st['t'] = k.vm(x)
        else: k(x)
    dn = Down(k, L)
    if L == 0: ring.limit = 296 + QW_UP
    xq.issue_n(6)
    mem = []; alu = []; se = list(se); cur = 0; second = []
    def waits(m):
        nonlocal cur
        xs = [2*p['K'] + 1 for p in units[m:m+2] if p['K'] < 16]
        xt = None
        if xs:
            cur = max(cur, max(xs))
            while xq.n <= max(xs): xq.issue_n(1)
            xt = xq.t[max(xs)]
        n0 = len(k.L)
        k.wait(vm=xt, lg=tl[min(m + 1, M - 1)])
        return len(k.L) - n0
    big = lambda x: x.startswith(('buffer', 'v_permlane', 'v_rsq'))
    def slot(first):
        if mem and (len(mem) > 1 or first):
            last = len(mem) == 1
            mem.pop(0)()
            return last and U16_BIG
        if alu and (first or not (big(alu[0]) if U16_BIG else alu[0].startswith('buffer'))):
            x = alu.pop(0); put(x)
            return big(x) and U16_BIG
        return False
    waits(0)
    for m, o in enumerate(units):
        if m in syncs and m > 0:
            while mem: mem.pop(0)()
            while second: second.pop()()
            ring.sync(o['bmin'], need_until(m))
        w = aWB + 4*(m % NB); a = vACC + 16*o['t']
        if o['K'] < 16:
            mm = [f"v_mfma_f32_16x16x32_bf16 {vr(a+8*o['ch']+4*th)}, {ar(w)}, {vr(vX+8*o['K']+4*th)}, {'0' if o['K'] == 0 else vr(a+8*o['ch']+4*th)}" for th in range(2)]
        else:
            mm = [f"v_mfma_f32_16x16x16_bf16 {vr(a+8*ch+4*th)}, {ar(w+2*ch,2)}, {vr(vEXT+2*th,2)}, {vr(a+8*ch+4*th)}" for ch in range(2) for th in range(2)]
        k(mm[0])
        if m == 0: mark(k, 'm0')
        if m in GEMM_MARKS.get(G.ph, ()): mark(k, f'm{m}')
        if S['nread'] < M: rd()
        else: slot(True)
        if not (m % 2 and m + 1 < M and waits(m + 1)): slot(False)
        for x in mm[1:-1]:
            k(x); slot(True) or slot(False)
        k(mm[-1])
        if aps and m == 12: aps.issue()
        if aps and m == 30: aps.check()
        if m == 34:
            a0 = S['a0'] = ring.addr(b0 + 96)
            alu += f"v_and_b32 v13, 0xf0, v{vB}\nv_bfe_u32 v7, v0, 5, 1\nv_lshl_add_u32 v13, v7, 9, v13\nv_bfe_u32 v7, v0, 4, 1\nv_lshl_add_u32 v13, v7, 3, v13\nv_add_u32 v13, {a0}, v13".split('\n')
            alu += f"s_lshl_b32 s{sF}, s{sRB}, 4\ns_add_u32 s{sF}, s{sF}, s{sA}\ns_lshl_b32 s{sF}, s{sF}, 3\ns_add_u32 s{sF}, s{sF}, {FLOC(L,9)}".split('\n')
            alu += TAGMOV + [x for x in dn.setup if x.startswith('s_')]
            dn.setup = [x for x in dn.setup if not x.startswith('s_')]
            if CODE_TOUCH:
                pc = k.newlabel('pc')
                alu += [f"s_getpc_b64 s[{sPC}:{sPC+1}]\n{pc}:", f"s_min_u32 s{sT3}, s{sCT}, L_end-{pc}-1024",
                        f"s_add_u32 s{sPC}, s{sPC}, s{sT3}\ns_addc_u32 s{sPC+1}, s{sPC+1}, 0"]
        if L and KV_LOC and m == U16_FIN:
            assert not alu
            k(f"s_xor_b32 s{sT3}, s{sRB}, 4\ns_lshr_b32 s{sT3}, s{sT3}, 1\ns_lshl_b32 s{sT3}, s{sT3}, 8\ns_add_u32 s{sT3}, s{sT3}, {FLOC(L,0)}")
            apw = APoll(k, ["v_and_b32 v252, 31, v0", "v_lshlrev_b32 v252, 3, v252",
                            f"buffer_load_dwordx2 v[252:253], v252, {srd(sWS)}, s{sT3} offen sc1"], f"v_cmp_ne_u64 vcc, s[{sTAG}:{sTAG+1}], v[252:253]")
            apw.issue()
        if L and KV_LOC and m == 98: apw.check()
        if m == U16_FIN:
            assert not alu
            k.wait(vm=res['t']); alu += fin + fin2
        if m == 95: assert not alu
        if m == 100:
            assert xq.n == xq.total
            if CODE_TOUCH: k.vm(f"global_load_dword v255, v{vL16}, s[{sPC}:{sPC+1}]")
            alu += sum((epi(t) for t in range(0, 3)), []) + dn.setup; dn.setup = []
        if m == 167: alu += sum((epi(t) for t in range(3, 5)), [])
        if m in U16_PUB:
            assert not alu, (m, len(alu))
            publish_local(k, st['t'], movs=False)
            alu.append(f"s_add_u32 s{sF}, s{sF}, {8*KB}")
            if m == U16_PUB[1]: dn.xq.hold = 20
        if m in U16_POLL: dn.ap.issue()
        if m == U16_CHK:
            dn.ap.check()
            alu += [f"s_add_u32 s{dn.sFl}, s{dn.sFl}, {8*KB}"] + TAGMOV
        if m % 2 == 0 and not mem:
            rok = second or (m < UP_STOP and (ring.can8() or (ring.can_issue() and not ring.pair)))
            if not second and xq.n < xq.total and ring.issued >= b0 + U16_HOLD: rok = False
            mok = se and m >= 32
            if xq.n < xq.total and (xq.n - cur < UP_LOOK or not (rok or mok)): mem.append(lambda: xq.issue_n(1))
            elif mok: mem.append(se.pop(0))
            elif second: mem.append(second.pop())
            elif rok and ring.can8():
                p1, p2 = ring.parts8(); mem += p1; second += p2
            elif rok: mem += ring.parts()
            elif m > U16_CHK and dn.xq.n < dn.xq.hold: mem.append(lambda: dn.xq.issue_n(1))
        slot(True) or slot(False)
    while mem: mem.pop(0)()
    while second: second.pop()()
    ring.end8()
    assert not alu and not se and ring.issued == min(ring.total, 296 + QW_UP)
    dn.xq.hold = 24
    for t in range(5, 7):
        for i, x in enumerate(epi(t)):
            put(x)
            if i in (4, 14): dn.xq.issue_n(1)
    mark(k, 'end')
    dn.tB = st['t']
    return dn

class Down:
    NX = 36
    def __init__(self, k, L):
        self.k = k; self.L = L
        sXa, sXb, sFl = sB, sX2, sCc
        self.sFl = sFl
        self.setup = (f"s_lshr_b32 s{sT0}, s{sDST}, 15\ns_mul_i32 s{sT1}, s{sW}, {28*KB}\ns_add_u32 s{sT1}, s{sT1}, {HF}\n"
                      f"s_mul_i32 s{sXa}, s{sT0}, {112*KB}\ns_add_u32 s{sXa}, s{sXa}, s{sT1}\n"
                      f"s_xor_b32 s{sT2}, s{sT0}, 1\ns_mul_i32 s{sXb}, s{sT2}, {112*KB}\ns_add_u32 s{sXb}, s{sXb}, s{sT1}\n"
                      f"v_lshlrev_b32 v12, 3, v0\nv_and_b32 v12, 0x98, v12\n"
                      f"s_and_b32 s{sFl}, s{sT0}, 0xfe\ns_lshl_b32 s{sFl}, s{sFl}, 7\ns_lshl_b32 s{sT1}, s{sW}, 5\ns_add_u32 s{sFl}, s{sFl}, s{sT1}\n"
                      f"s_add_u32 s{sFl}, s{sFl}, {FLOC(L,9)}").split('\n')
        self.order = order = [7*c + t for t0, nt in (((0, 3), (3, 2), (5, 1), (6, 1)) if UP4 else PASSES) for c in range(4) for t in range(t0, t0+nt)]
        cur = {sXa: 0, sXb: 0}
        if DN16:
            assert UP16
            self.setup = [x for x in self.setup if x.startswith('s_')]
            self.order = order = [2, 3, 4, 9, 10, 11, 1, 5, 8, 12, 0, 6, 7, 13]
            def src16(i):
                s_ = sXa if (i & 2) == 0 else sXb
                r = 2 * order[i >> 2]
                if not 0 <= r - cur[s_] < 4:
                    d = (r - cur[s_]) * KB
                    k(f"s_add_u32 s{s_}, s{s_}, {d}" if d > 0 else f"s_sub_u32 s{s_}, s{s_}, {-d}")
                    cur[s_] = r
                return s_, (r - cur[s_]) * KB + (i & 1) * 256
            self.xr = lambda i: vr(144 + 4*(i % 36) if (i % 36) < 20 else 80 + 4*((i % 36) - 20))
            self.xq = XLoader(k, 56, self.xr, src16, va=12)
            self.xq.hold = 12
            self.ap = APoll(k, ["v_lshlrev_b32 v14, 3, v0", "v_and_b32 v14, 0x98, v14",
                                f"buffer_load_dwordx2 v[14:15], v14, {srd(sWS)}, s{sFl} offen sc1"], f"v_cmp_ne_u64 vcc, s[{sTAG}:{sTAG+1}], v[14:15]")
            return
        def src(i):
            s_ = sXa if (i & 1) == 0 else sXb
            r = order[i >> 1]
            if not 0 <= r - cur[s_] < 4:
                d = (r - cur[s_]) * KB
                k(f"s_add_u32 s{s_}, s{s_}, {d}" if d > 0 else f"s_sub_u32 s{s_}, s{s_}, {-d}")
                cur[s_] = r
            return s_, (r - cur[s_]) * KB
        self.xr = lambda i: vr(144 + 4*(i % 36) if (i % 36) < 20 else 80 + 4*((i % 36) - 20))
        self.xq = XLoader(k, 56, self.xr, src)
        self.xq.hold = 12
        self.ap = apoll1(k, 12, 14, sFl)

def load_res16(k, v):
    k(f"v_and_b32 v13, 0x2f0, v{vL16}\nv_bfe_u32 v5, v0, 4, 1\nv_lshl_add_u32 v13, v5, 3, v13\ns_add_u32 s{sT1}, s{sDST}, {XF}")
    for ch in range(2):
        for th in range(2):
            t = k.vm(f"buffer_load_dwordx2 {vr(v+4*ch+2*th,2)}, v13, {srd(sWS)}, s{sT1} offen offset:{ch*KB + th*256} sc1")
    return t
def res_unpack(dst, v):
    o = []
    for j in range(8): o += [f"v_lshlrev_b32 v{dst+2*j}, 16, v{v+j}", f"v_and_b32 v{dst+2*j+1}, 0xffff0000, v{v+j}"]
    return o

def ph_down(k, L, ring, dn):
    vACC, vRES, vPK, vSUM = 16, 240, 240, 224
    final = L == 1
    xq = dn.xq; order = dn.order; NX = dn.NX
    if len(DN_CHK) > 1: xq.hold = 40
    SC = 108 * KB
    side = []
    for a in range(1, 4):
        side += f"s_xor_b32 s{sT0}, s{sW}, {a}\ns_mul_i32 s{sT0}, s{sT0}, {12*KB}\ns_add_u32 s{sT0}, s{sT0}, {SC + (a-1)*4*KB}\nv_add_u32 v{5+a}, s{sT0}, v{vL16}".split('\n')
    side += f"s_mul_i32 s{sT0}, s{sW}, {12*KB}\ns_add_u32 s{sT0}, s{sT0}, {SC}\nv_add_u32 v9, s{sT0}, v{vL16}".split('\n')
    if final and OUT_T:
        side += (f"s_and_b32 s{sT0}, s{sW}, 1\ns_mul_i32 s{sT0}, s{sT0}, {32*144}\ns_lshr_b32 s{sT2}, s{sW}, 1\ns_lshl_b32 s{sT2}, s{sT2}, 6\ns_add_u32 s{sT0}, s{sT0}, s{sT2}\n"
                 f"v_and_b32 v10, 31, v0\nv_mul_u32_u24 v10, 144, v10\nv_bfe_u32 v11, v0, 5, 1\nv_lshl_add_u32 v10, v11, 4, v10\nv_add_u32 v10, s{sT0}, v10\n"
                 f"s_mul_i32 s{sT0}, s{sW}, {16*144}\nv_bfe_u32 v13, v0, 3, 3\nv_mul_u32_u24 v11, 144, v13\nv_and_b32 v5, 7, v0\nv_lshl_add_u32 v11, v5, 4, v11\nv_add_u32 v11, s{sT0}, v11\n"
                 f"v_lshlrev_b32 v13, 10, v13\nv_lshl_add_u32 v13, v5, 4, v13\n"
                 f"s_and_b32 s{sT0}, s{sDST}, 0xffff0000\ns_lshl_b32 s{sT2}, s{sW}, 14\ns_add_u32 s{sT0}, s{sT0}, s{sT2}\n"
                 f"s_and_b32 s{sT2}, s{sC}, 7\ns_lshl_b32 s{sT2}, s{sT2}, 7\ns_add_u32 s{sT0}, s{sT0}, s{sT2}\ns_add_u32 s{sT2}, s{sT0}, 8192").split('\n')
    R, R0 = DN_R, DN_R0
    seq = []
    for s in range(28 - R):
        seq += [(s, a) for a in (3, 2, 1)]
        if s < 28 - R0: seq.append((s, 0))
    seq += [(s, a) for a in (3, 2, 1) for s in range(28 - R, 28)] + [(s, 0) for s in range(28 - R0, 28)]
    fx = (lambda s_, a_: 4*(s_ >> 1) + 2*(a_ & 1)) if DN16 else (lambda s_, a_: 2*s_ + (a_ & 1))
    lo = [min(fx(s_, a_) for s_, a_ in seq[m:]) for m in range(112)]
    wr = []; rt = None; tail = None; res = None; wb = False; adds = []
    for m, (s, a) in enumerate(seq):
        r = order[s >> 1] if DN16 else order[s]
        if len(DN_CHK) == 1 and m == DN_CHK2:
            dn.ap.check()
            k(f"s_add_u32 s{dn.sFl}, s{dn.sFl}, {8*KB}")
            xq.hold = 40
        if m == int(4*DN_PUBB): publish_local(k, dn.tB)
        if UP4 and m == DN_POLL3: dn.ap.issue()
        if UP4 and m == DN_CHK3:
            dn.ap.check()
            k(f"s_add_u32 s{dn.sFl}, s{dn.sFl}, {8*KB}")
            xq.hold = 48
        if m == 4*DN_BAR:
            ring.limit = None
            ring.sync(296, 0)
        if m == 4*DN_POLLB:
            apb = dn.ap
            apb.issue()
            rt = load_res16(k, vRES) if DN16 else load_res(k, vRES)
        if m == 4*DN_CHKB:
            apb.check()
            xq.hold = 56
            xq.issue_n(min(3, lo[m] + NX - xq.n))
        xi = fx(s, a) + (1 if DN16 else 0)
        while xq.n <= xi:
            assert xq.n < xq.hold and xq.n < lo[m] + NX
            xq.issue_n(1)
        k.wait(vm=xq.t[xi])
        if DN16:
            ch = s & 1
            for th in range(2):
                acc = vr(vACC + 16*a + 8*ch + 4*th)
                k(f"v_mfma_f32_16x16x32_bf16 {acc}, {ar(aWD + 16*r + 8*(a >> 1) + 4*ch)}, {dn.xr(xi - 1 + th)}, {'0' if s < 2 else acc}")
                if th == 0:
                    for _ in range(2):
                        if side and res: k(side.pop(0))
                        elif adds and adds[0][0] <= m:
                            _, t_, x = adds.pop(0); k.wait(lg=t_); k(x)
        else:
            acc = vr(vACC + 16*a, 16)
            k(f"v_mfma_f32_32x32x16_bf16 {acc}, {ar(aWD + 8*r + 4*(a >> 1))}, {dn.xr(xi)}, {'0' if s == 0 else acc}")
        if m == 0: mark(k, 'm0')
        if m in GEMM_MARKS.get(G.ph, ()): mark(k, f'm{m}')
        if (m % 2 == 0 or (xq.hold == 56 and m % DN_CR == 0)) and xq.n < min(lo[m] + NX, xq.total, xq.hold): xq.issue_n(1)
        elif m % 2 == 0 and xq.n == xq.total and ring.can_issue(): ring.issue()
        elif m > 4*DN_CHKB + 8:
            if res is None:
                k.wait(vm=rt); res = True
                side += res_unpack(vSUM, vRES)
            for _ in range(2 if DN16 else 4):
                if side: k(side.pop(0))
        if final and WB_MASK is not None and xq.n == xq.total and (WB_EARLY or k.vm_done == k.vm_issued) and not wb:
            wb = True; l_ = k.newlabel('wb')
            k(f"s_lshl_b32 s{sT1}, s{sC}, 2\ns_add_u32 s{sT1}, s{sT1}, s{sW}\ns_and_b32 s{sT1}, s{sT1}, {WB_MASK}")
            if WB_EARLY:
                k(f"s_cbranch_scc0 {l_}")
                k.vm(f"buffer_load_dword v15, off, {srd(sWS)}, s{dn.sFl} sc1")
                k.label(l_ + 'r')
                G.far += [f"{l_}:", "buffer_wbl2 sc1", f"s_branch {l_}r"]
            else:
                k(f"s_cbranch_scc1 {l_}")
                k("buffer_wbl2 sc1")
                k.label(l_)
            print('wbl2 at', m, file=sys.stderr)
        if wr and wr[0][0] <= m:
            assert not side
            for _ in range(min(DN_WR, len(wr))):
                if wr[0][0] <= m: k.lg(wr.pop(0)[1])
            if wr and DN_WR == 1: wr[0] = (max(wr[0][0], m + DN_WGAP), wr[0][1])
            if not wr and a == 0: tail = min(m + 2, 111)
        if s == 27 and a:
            wr += [(m + 2, f"ds_write_b128 v{5+a}, {vr(vACC+16*a+4*j)} offset:{j*KB}") for j in range(4)]
        def fetch(bs):
            k("s_barrier")
            for b in bs:
                for j in range(4): t_ = k.lg(f"ds_read_b128 {vr(vACC+16+16*b+4*j)}, v9 offset:{b*4*KB + j*KB}")
                adds.extend((m + 2, t_, f"v_add_f32 v{vSUM+i}, v{vSUM+i}, v{vACC+16+16*b+i}") for i in range(16))
        if DN_X2 and m == 112 - R0:
            assert all('ds_write_b128 v6,' in x[1] for x in wr)
            k.wait_all(vm=False)
            fetch((2, 1))
        elif tail == m:
            k.wait_all(vm=False)
            fetch((0,) if DN_X2 else (2, 1, 0))
        else:
            for _ in range(2 if DN16 else DN_ADDS):
                if adds and adds[0][0] <= m:
                    _, t_, x = adds.pop(0); k.wait(lg=t_); k(x)
    assert not side and not wr and tail is not None and tail < 112
    for _, t_, x in adds:
        k.wait(lg=t_); k(x)
    if final and not OUT_T: rowmajor_addr(k, 6, sT0)
    for j in range(8):
        k(f"v_add_f32 v{vACC+2*j}, v{vACC+2*j}, v{vSUM+2*j}\nv_add_f32 v{vACC+2*j+1}, v{vACC+2*j+1}, v{vSUM+2*j+1}")
        k(f"v_cvt_pk_bf16_f32 v{vPK+j}, v{vACC+2*j}, v{vACC+2*j+1}")
        if DN16 and j in (3, 7): k(f"v_permlane16_swap_b32 v{vPK+j-3}, v{vPK+j-1}\nv_permlane16_swap_b32 v{vPK+j-2}, v{vPK+j}")
        if final and OUT_T and j in (3, 7): k.lg(f"ds_write_b128 v10, {vr(vPK+j-3)} offset:{(j >> 2)*32}")
    if final and OUT_T:
        k.wait_all(vm=False)
        k("s_barrier")
        t0 = k.lg(f"ds_read_b128 {vr(vPK)}, v11")
        t1 = k.lg(f"ds_read_b128 {vr(vPK+4)}, v11 offset:{8*144}")
        k.wait(lg=t0)
        k.vm(f"buffer_store_dwordx4 {vr(vPK)}, v13, {srd(sAUX)}, s{sT0} offen{OUT_SC}")
        k.wait(lg=t1)
        k.vm(f"buffer_store_dwordx4 {vr(vPK+4)}, v13, {srd(sAUX)}, s{sT2} offen{OUT_SC}")
    elif final:
        k.vm(f"buffer_store_dwordx4 {vr(vPK)}, v6, {srd(sAUX)}, s{sT0} offen{OUT_SC}")
        k.vm(f"buffer_store_dwordx4 {vr(vPK+4)}, v6, {srd(sAUX)}, s{sT0} offen offset:32{OUT_SC}")
    else:
        G.tx = store_x(k, vACC, vPK, L, 8, ring, m16=DN16)
    mark(k, 'end')

def k_main(name):
    k = Asm()
    G.nst = 0
    k(f".globl {name}\n.p2align 8\n.type {name},@function")
    k.label(name)
    if STAMP or PADTO or GATE: k("s_memrealtime s[42:43]")
    mark(k, 'start')
    k("s_cmp_ge_u32 s2, 256")
    k("s_cbranch_scc1 L_abort")
    k(f"s_load_dwordx2 s[{sWS}:{sWS+1}], s[0:1], 72")
    k(f"s_load_dwordx2 s[{sAUX}:{sAUX+1}], s[0:1], 56")
    k("s_load_dwordx2 s[60:61], s[0:1], 0\ns_load_dwordx4 s[64:67], s[0:1], 8\ns_load_dwordx4 s[68:71], s[0:1], 32\ns_load_dwordx2 s[72:73], s[0:1], 48")
    if CT0:
        k("s_getpc_b64 s[88:89]")
        k(f"s_lshr_b32 s90, s2, 3\ns_and_b32 s90, s90, {CT0 - 1}\ns_lshl_b32 s90, s90, 12\nv_lshl_add_u32 v3, v0, 4, s90")
        k.vm("global_load_dword v247, v3, s[88:89]")
    k("v_lshrrev_b32 v2, 6, v0")
    k(f"v_and_b32 v{vL16}, 63, v0")
    k(f"v_readfirstlane_b32 s{sW}, v2")
    k(f"v_lshlrev_b32 v{vL16}, 4, v{vL16}")
    k(f"s_mov_b32 s{sWG}, s2\ns_and_b32 s{sG}, s2, 7\ns_lshr_b32 s{sC}, s2, 3\ns_lshl_b32 s{sW1K}, s{sW}, 10")
    k(f"s_lshr_b32 s{sC4}, s{sC}, 4\ns_lshr_b32 s{sC3}, s{sC}, 3")
    k(f"s_lshl_b32 s{sU}, s{sG}, 5\ns_add_u32 s{sU}, s{sU}, s{sC}")
    k(f"s_lshl_b32 s{sW4K}, s{sW}, 12\ns_lshl_b32 s{sW2K}, s{sW}, 11")
    k(f"s_getreg_b32 s{sXCC}, hwreg(HW_REG_XCC_ID, 0, 4)")
    k(f"v_add_u32 v{vSRC}, s{sW1K}, v{vL16}")
    k(f"s_mov_b32 s{sMSK}, 0xffff\ns_mov_b32 s{sMSK+1}, 0xffff\ns_mov_b32 s{sMODE}, 0")
    k(f"s_and_b32 s{sT0}, s{sC}, 7\ns_mul_i32 s{sSEG}, s{sT0}, {WO_STR}\ns_add_u32 s{sSEG}, s{sSEG}, {WO}")
    k(f"s_lshl_b32 s{sT1}, s{sG}, 2\ns_add_u32 s{sT1}, s{sT1}, s{sC3}\ns_lshl_b32 s{sT1}, s{sT1}, 1\ns_and_b32 s{sT2}, s{sW}, 1\ns_add_u32 s{sT1}, s{sT1}, s{sT2}")
    k(f"s_lshl_b32 s{sT1}, s{sT1}, 5\ns_lshl_b32 s{sT0}, s{sT0}, 2\ns_add_u32 s{sT1}, s{sT1}, s{sT0}\ns_and_b32 s{sT2}, s{sW}, 2\ns_add_u32 s{sT1}, s{sT1}, s{sT2}\ns_lshl_b32 s{sDST}, s{sT1}, 10")
    k(f"s_lshr_b32 s{sSD}, s{sDST}, 12\ns_lshl_b32 s{sSD}, s{sSD}, 9\ns_lshl_b32 s{sT2}, s{sT2}, 2\ns_add_u32 s{sSD}, s{sSD}, s{sT2}\ns_add_u32 s{sSD}, s{sSD}, {SX}")
    k(f"s_and_b32 s{sT0}, s{sC}, 15\ns_mul_i32 s{sSEG+1}, s{sT0}, {WU_STR}\ns_add_u32 s{sSEG+1}, s{sSEG+1}, {WU}")
    k(f"s_mul_i32 s{sSEG+2}, s{sT0}, {WQ_STR}\ns_add_u32 s{sSEG+2}, s{sSEG+2}, {WQ}")
    def late(k):
        if WSOFF: k(f"s_add_u32 s{sWS}, s{sWS}, {WSOFF}\ns_addc_u32 s{sWS+1}, s{sWS+1}, 0")
        k(f"s_add_u32 s{sT0}, s{sWS}, {EP}\ns_addc_u32 s{sT1}, s{sWS+1}, 0")
        k(f"s_load_dwordx2 s[{sTAG}:{sTAG+1}], s[{sT0}:{sT1}], 0")
        k(f"s_and_b32 s{sWS+1}, s{sWS+1}, 0xffff\ns_mov_b32 s{sWS+2}, {0x10000000 - WSOFF}\ns_mov_b32 s{sWS+3}, 0x20000")
        k(f"s_and_b32 s{sAUX+1}, s{sAUX+1}, 0xffff\ns_mov_b32 s{sAUX+2}, {2*MB}\ns_mov_b32 s{sAUX+3}, 0x20000")
    G.ph = 'qkv0'; tk = (ph_qkv0k if Q0K else ph_qkv0)(k, late)
    for L in range(2):
        ring = Ring(k, [(sSEG, 64), (sSEG+1, 232)] + ([(sSEG+2, 100)] if L == 0 else []))
        G.ph = f'att{L}'; tO = ph_att(k, L, ring, *tk)
        G.ph = f'wo{L}'; tx = ph_wo(k, L, ring, tO)
        G.ph = f'up{L}'; tB = ph_up(k, L, ring, 64, tx)
        G.ph = f'dn{L}'; ph_down(k, L, ring, tB)
        G.ph = 'qkv1'
        if L == 0: tk = ph_qkv(k, 1, ring, 296)
    k(f"s_add_u32 s{sT0}, s{sWG}, s{sW}\ns_cmp_lg_u32 s{sT0}, 0\ns_cbranch_scc1 L_fin")
    k(f"s_mov_b32 s{sF}, {EP}")
    publish_local(k, None, force_global=True)
    k.label("L_fin")
    if PADTO:
        k("s_waitcnt vmcnt(0)")
        if PADMIN:
            k("s_load_dwordx2 s[64:65], s[0:1], 64\ns_waitcnt lgkmcnt(0)")
            k("s_not_b32 s66, s42\nv_mov_b32 v8, s66\nv_mov_b32 v9, 0\ns_mov_b64 exec, 1")
            k("global_atomic_umax v9, v8, s[64:65]\ns_waitcnt vmcnt(0)")
            k.label("L_pad0")
            k(f"s_memrealtime s[98:99]\ns_waitcnt lgkmcnt(0)\ns_sub_u32 s98, s98, s42\ns_cmp_lt_u32 s98, {PADTO - 1500}\ns_cbranch_scc1 L_pad0")
            k("global_load_dword v8, v9, s[64:65] sc1\ns_waitcnt vmcnt(0)\nv_readfirstlane_b32 s66, v8\ns_not_b32 s42, s66\ns_mov_b64 exec, -1")
        k.label("L_pad")
        k(f"s_memrealtime s[98:99]\ns_waitcnt lgkmcnt(0)\ns_sub_u32 s98, s98, s42\ns_cmp_lt_u32 s98, {PADTO}\ns_cbranch_scc1 L_pad")
    if STAMP:
        k("s_waitcnt vmcnt(0)")
        G.ph = ''; mark(k, 'fin')
        k("s_memrealtime s[98:99]\ns_waitcnt lgkmcnt(0)")
        vals = [42, 98, sMODE] + STS[:G.nst]
        for i, s_ in enumerate(vals): k(f"v_mov_b32 v{16+i}, s{s_}")
        k(f"s_lshl_b32 s{sT0}, s{sWG}, 2\ns_add_u32 s{sT0}, s{sT0}, s{sW}\ns_lshl_b32 s{sT0}, s{sT0}, 7\ns_add_u32 s{sT0}, s{sT0}, {TS}")
        k("v_mov_b32 v4, 0\ns_mov_b64 exec, 1")
        for j in range(8): k(f"buffer_store_dwordx4 {vr(16+4*j)}, v4, {srd(sWS)}, s{sT0} offen offset:{16*j}")
        if DBG is not None:
            k(f"s_lshl_b32 s{sT0}, s{sWG}, 2\ns_add_u32 s{sT0}, s{sT0}, s{sW}\ns_cmp_lg_u32 s{sT0}, {DBG}\ns_cbranch_scc1 L_nodbg")
            k("s_load_dwordx2 s[64:65], s[0:1], 64\ns_waitcnt lgkmcnt(0)")
            for i in range(16): k(f"v_sub_u32 v{64+i}, v{20+i}, v19")
            for j in range(4): k(f"global_store_dwordx4 v4, {vr(64+4*j)}, s[64:65] offset:{16*j}")
            k.label("L_nodbg")
    k("s_waitcnt vmcnt(0)")
    k.label("L_abort")
    k("s_endpgm")
    for x in G.near + G.far:
        if x.endswith(':'): k.label(x[:-1])
        else: k(x)
    k.label("L_end")
    return k

def build():
    name = NAME + "_kernel"
    k = k_main(name)
    nn = k.fix()
    print(f"{len(k.L)} lines, {nn} nop states", file=sys.stderr)
    head = f"; stamps: {','.join(G.names)}\n" if (STAMP or not FINAL) else HDR
    return f"""{head}; @launch grid=(256,1,1) block=(256,1,1) lds={160*KB}
.amdgcn_target "amdgcn-amd-amdhsa--gfx950"
.text
{k.text()}
.section .rodata,"a"
.p2align 6
.amdhsa_kernel {name}
  .amdhsa_next_free_vgpr 512
  .amdhsa_next_free_sgpr 102
  .amdhsa_accum_offset 256
  .amdhsa_group_segment_fixed_size 0
  .amdhsa_kernarg_size 80
  .amdhsa_user_sgpr_count 2
  .amdhsa_user_sgpr_kernarg_segment_ptr 1
  .amdhsa_system_sgpr_workgroup_id_x 1
.end_amdhsa_kernel
"""

if __name__ == "__main__":
    for a in sys.argv[2:]:
        kk_, vv_ = a.split('=', 1)
        globals()[kk_] = eval(vv_)
    open(sys.argv[1], "w").write(build())
```

```python
import sys, struct
from asmlib import Asm

NAME = "interleave_layers__mha_block__glu_gated_bilinear__prompt"
KB = 1024; MB = KB * KB
LOG2E = 1.4426950408889634
def f2u(x): return struct.unpack('<I', struct.pack('<f', x))[0]
def srd(b): return f"s[{b}:{b+3}]"
def vr(b, n=4): return f"v[{b}:{b+n-1}]"
def ar(b, n=4): return f"a[{b}:{b+n-1}]"

WQ = 0;                    WQ_STR = 100 * KB
WO = WQ + 16 * WQ_STR;     WO_STR = 64 * KB
WU = WO + 8 * WO_STR;      WU_STR = 232 * KB
WD = WU + 16 * WU_STR
FL = 7 * MB + 640 * KB
assert WD + 16 * 112 * KB <= FL
EP = FL
XID = FL + 1 * KB
def FLOC(L, p): return FL + 4 * KB + (L * 13 + p) * 8 * KB
FKV0 = FL + 4 * KB + 26 * 8 * KB
def FKV(L): return FKV0 + L * 32 * KB
FPK = FKV0 + 64 * KB
assert FPK + 32 * KB <= 8 * MB
XF = 8 * MB
HF = 10 * MB
QF = HF
SX = 17 * MB
SG = SX + 512 * KB
def KVF(L): return 18 * MB + L * 4 * MB
WS_PAGES = 13
TS = 27 * MB
DUMP = 0x7ff00000

STAMP = False
Q0_MARKQ = ()
LN_BF16 = True
XB_PRE = 0
Q0K_FLAG = 29; Q0K = True; Q0K_Q = (3, 4, 4, 4, 5, 5, 5, 5); Q0K_LEAD = 20; Q0K_EPI = 5
RES_AT = 97
PKR_AT = 5; PK_WAIT = 0; PUB_AT = 17
QF_AT = 1
PREFILL = 128; A1_AT = (0, 2); KVF_AT = (3, 0); P2 = ((0, 2), (3, 6)); Q0_RSH = 1
Q0G = False; Q0_ST0 = 24; Q0_GLD = 5
DIAG_W = False
U16_HOLD = 999; U16_BIG = False
DN16 = False
UP16 = True; U16_FIN = 64; U16_PUB = (156, 206); U16_POLL = (174, 226); U16_CHK = 188; U16_SLOTS = 3
FL1 = False; PP_SLEEP = 1
FINAL = False
HDR = "; Two transformer layers (LN -> MHA -> residual, LN -> bilinear GLU -> residual) in ONE persistent launch:\n;    finite, else the wave recomputes its rows with the true row maximum subtracted (labels fb_*).\n"
NEAR = True; CT0 = 8
GATE = None
WB_EARLY = False
DIAG_NOP = {}
UP4 = False; DN_POLL3 = 18; DN_CHK3 = 30
DN_X2 = True; DN_ADDS = 5; DN_CR = 2
RES_LATE = (False, False); XRES_TOUCH = 0
HEAD = 0
QKV_QE = 6; QKV_EPI = 5
R1_AT = 44; R1_STEP = 6
KV_LOC = True
PADTO = 0; PADMIN = False
OUT_T = True
ATT_NT = 3
PK_WIN2 = False; PK_SP = 0
WARM_AT = 1
RT = False
DN_CHK2 = 4
CT_AT = 92
FORCE_FB = False
WB_MASK = 127; OUT_SC = ' sc1'; DN_WR = 1; DN_WGAP = 2
QW_LATE = False; QW_UP = 32; QW_TOUCH = (72, 100); QW_N1 = 4
PK_Q0 = False; PK_RD = 1; PK_ST = 3; CHK_Q0 = 15
WO_STOP = 32; WO_R0 = 8; WO_N0 = 10; ST_PRE = 5; PPOLL = 0; KV_PF = (0, 0); PK_EARLY = True
FL_TOUCH = False
SPLIT_ST = True
FINE = False
UP_EPI = 2; UP_PUB = (154, 206); DN_POLL = (172, 226); DN_CHK = (186,); UP_LOOK = 8; UP_SYNCS = {0, 48, 80, 112, 144, 176, 200}; UP_SKIP = (0, 0); UP_STOP = 222
DN_PUBB = 4; DN_BAR = 14; DN_POLLB = 7; DN_CHKB = 12; DN_R = 8; DN_R0 = 12
FLAG_TOUCH = False
WSOFF = 0
SLEEP1 = (0, 0); SLEEP2 = 0; SLEEP3 = 0
DBG = None
PRE = 2; PRE2 = 0
PRE_WO = 0; PRE_WO2 = 0
CODE_TOUCH = True
WD_SLOTS = (2, 4, 6)
TOUCH_AT = (99, 96); TOUCH_STEP = (2, 2); TOUCH_LN = 32; TH_STEP = 3; TOUCH_KBS = (64, 96)
RING = 144
PK_T0 = 9; PK_GAP = 6; PK_GAP2 = 9; CHK_GAP = 14
P2_AT = 6
P2_LEAD = 4
TACTS = (103, 102); EARLY_H = 0

sC4, sC3 = 2, 3
sWS, sAUX = 4, 8
sW, sG, sC, sW1K = 12, 13, 14, 15
sT0, sT1, sT2, sT3 = 16, 17, 18, 19
sX, sRS, sRB = 20, 21, 22
sA, sB, sCc, sD, sE = 23, 24, 25, 26, 27
sS0, sS1 = 28, 21
sMSK, sTAG, sMODE, sXCC = 30, 32, 34, 35
sSEG = 36
sX2 = 39
sSPIN, sF = 40, 41
STS = list(range(44, 56, 2)) + [92, 94, 56, 58, 74, 76, 80, 82, 86, 88, 60, 62]
sWG = 101
sW4K = 97
sW2K = 99
sSD = 29
sPC, sCT = 90, 85
sDST = 100
vL16, vSRC, vB = 1, 2, 3
aWD, aWB = 0, 224

class G:
    nst = 0
    names = []
    far = []
    near = []
    ph = ''
SKIP = ''
ATT_MARKS = ()
GEMM_MARKS = {}
def mark(k, nm='x'):
    import re
    nm = G.ph + '_' + nm
    if GATE and GATE[0] == nm:
        k.label("L_gate")
        k(f"s_memrealtime s[98:99]\ns_waitcnt lgkmcnt(0)\ns_sub_u32 s98, s98, s42\ns_cmp_lt_u32 s98, {GATE[1]}\ns_cbranch_scc1 L_gate")
    if SKIP and re.match(SKIP, nm): return
    if '_f_' in nm and not FINE: return
    if STAMP:
        G.names.append(nm)
        k(f"s_mem{'real' if RT else ''}time s[{STS[G.nst]}:{STS[G.nst]+1}]")
        G.nst += 1

class Ring:
    def __init__(self, k, segs):
        self.k = k; self.N = RING
        self.total = sum(n for _, n in segs)
        self.starts = {}
        b = 0
        for s, n in segs:
            assert n % 4 == 0
            self.starts[b] = s; b += n
        self.issued = 0; self.freed = 0; self.visible = 0
        self.limit = None
        self.tick = {}
        self.pair = False
    def can_issue(self):
        if self.limit is not None and self.issued + 4 > self.limit: return False
        return self.issued < self.total and self.issued + 4 <= self.freed + self.N
    def issue(self):
        k = self.k
        assert self.can_issue()
        slot = self.issued % self.N
        k(f"s_add_u32 m0, s{sW1K}, {slot*KB}")
        if self.issued in self.starts: k(f"s_mov_b32 s{sRS}, s{self.starts[self.issued]}")
        else: k(f"s_add_u32 s{sRS}, s{sRS}, 4096")
        self.tick[self.issued // 4] = k.vm(f"buffer_load_dwordx4 v{vSRC}, {srd(sWS)}, s{sRS} offen sc1 lds")
        self.issued += 4
    def parts(self):
        k = self.k
        assert self.can_issue()
        b = self.issued; self.issued += 4
        def ld(): self.tick[b // 4] = k.vm(f"buffer_load_dwordx4 v{vSRC}, {srd(sWS)}, s{sRS} offen sc1 lds")
        return [lambda: k(f"s_add_u32 m0, s{sW1K}, {(b % self.N)*KB}"),
                lambda: k(f"s_mov_b32 s{sRS}, s{self.starts[b]}" if b in self.starts else f"s_add_u32 s{sRS}, s{sRS}, 4096"), ld]
    def can8(self):
        b = self.issued
        if b % 8 or (b + 4) in self.starts or b + 8 > self.total or b + 8 > self.freed + self.N: return False
        return self.limit is None or b + 8 <= self.limit
    def parts8(self):
        k = self.k
        b = self.issued; self.issued += 8
        first = not self.pair; self.pair = True
        def src():
            if b in self.starts: k(f"s_add_u32 s{sRS}, s{self.starts[b]}, s{sW1K}")
            elif first: k(f"s_add_u32 s{sRS}, s{sRS}, 4096\ns_add_u32 s{sRS}, s{sRS}, s{sW1K}")
            else: k(f"s_add_u32 s{sRS}, s{sRS}, 8192")
        def ld1(): self.tick[b // 4] = self.tick[b // 4 + 1] = k.vm(f"buffer_load_dwordx4 v{vSRC}, {srd(sWS)}, s{sRS} offen offset:1024 sc1 lds")
        return [lambda: k(f"s_add_u32 m0, s{sW2K}, {(b % self.N)*KB}"), src,
                lambda: k.vm(f"buffer_load_dwordx4 v{vSRC}, {srd(sWS)}, s{sRS} offen sc1 lds")], [ld1]
    def end8(self):
        if self.pair:
            self.k(f"s_add_u32 s{sRS}, s{sRS}, 4096\ns_sub_u32 s{sRS}, s{sRS}, s{sW1K}")
            self.pair = False
    def issue16(self):
        k = self.k
        b = self.issued; slot = b % self.N
        assert slot + 16 <= self.N and b + 16 <= min(self.limit or 1 << 30, self.freed + self.N)
        assert not any(x in self.starts for x in range(b + 1, b + 16))
        k(f"s_add_u32 m0, s{sW4K}, {slot*KB}")
        if b in self.starts: k(f"s_add_u32 s{sRS}, s{self.starts[b]}, s{sW4K}")
        else: k(f"s_add_u32 s{sRS}, s{sRS}, 16384")
        for i in range(4):
            t = k.vm(f"buffer_load_dwordx4 v{vL16}, {srd(sWS)}, s{sRS} offen offset:{i*KB} sc1 lds")
        for q in range(4): self.tick[b // 4 + q] = t
        self.issued += 16
    def end16(self):
        self.k(f"s_sub_u32 s{sRS}, s{sRS}, s{sW4K}\ns_add_u32 s{sRS}, s{sRS}, 12288")
    def issue_n(self, n):
        for _ in range(n):
            if self.can_issue(): self.issue()
    def sync(self, consumed, need):
        k = self.k
        need = min(need, self.total)
        if need > self.visible:
            q = (need - 1) // 4
            assert q * 4 < self.issued, (need, self.issued)
            k.wait(vm=self.tick[q])
        k("s_barrier")
        q = self.visible // 4
        while q in self.tick and self.tick[q] <= k.vm_done: q += 1
        self.visible = q * 4
        assert self.visible >= need
        self.freed = max(self.freed, (consumed // 4) * 4)
    def addr(self, b): return (b % self.N) * KB

def set_lds_bases(k, extra_s=None):
    if extra_s is None: k(f"v_mov_b32 v{vB}, v{vL16}")
    else: k(f"v_add_u32 v{vB}, s{extra_s}, v{vL16}")
    k(f"v_add_u32 v{vB+1}, 0x10000, v{vB}")
    k(f"v_add_u32 v{vB+2}, 0x20000, v{vB}")

class XLoader:
    def __init__(self, k, total, reg, src, va=vL16):
        self.k = k; self.total = total; self.reg = reg; self.src = src; self.n = 0; self.t = []; self.va = va
        self.hold = total
    def issue_n(self, n):
        k = self.k
        for _ in range(n):
            i = self.n
            if i >= min(self.total, self.hold): return
            s_, imm = self.src(i)
            self.t.append(k.vm(f"buffer_load_dwordx4 {self.reg(i)}, v{self.va}, {srd(sWS)}, s{s_} offen offset:{imm} sc1"))
            self.n += 1
def lin_src(k):
    def f(i):
        if i and (i & 3) == 0: k(f"s_add_u32 s{sX}, s{sX}, 4096")
        return sX, (i & 3) * KB
    return f

class Gemm:
    def __init__(self, k, ring, ops, syncs, D=4, NB=8, stop_issue=None):
        self.k = k; self.ring = ring; self.ops = ops; self.syncs = sorted(syncs)
        assert all(x % 2 == 0 for x in syncs)
        self.D = D; self.NB = NB; self.tl = {}; self.nread = 0
        self.stop = stop_issue if stop_issue is not None else len(ops)
    def rd(self):
        k = self.k; m = self.nread; o = self.ops[m]
        assert o['bmax'] < self.ring.visible, (m, o['b'], self.ring.visible)
        a = self.ring.addr(o['b'])
        self.tl[m] = k.lg(f"ds_read_b128 {ar(aWB + 4*(m % self.NB))}, v{vB + (a >> 16)} offset:{a & 0xffff}")
        self.nread += 1
    def need_until(self, m):
        M = len(self.ops)
        nxt = [s for s in self.syncs if s > m]
        last = min((nxt[0] if nxt else M) - 1 + self.D, M - 1)
        return max(o['bmax'] for o in self.ops[:last+1]) + 1
    def start(self):
        self.ring.sync(self.ops[0]['bmin'], self.need_until(0))
        while self.nread < min(self.D, len(self.ops)): self.rd()
    def run(self, xq, n0=6, look=10, filler=None, misc=(), misc_from=0, skip=0):
        k = self.k; M = len(self.ops)
        misc = list(misc)
        xq.issue_n(n0)
        cur = 0
        for m in range(M):
            if m in self.syncs and m > 0:
                self.ring.sync(self.ops[m]['bmin'], self.need_until(m))
            o = self.ops[m]
            xt = None
            if m % 2 == 0:
                xs = [p['xi'] for p in self.ops[m:m+2] if p.get('xi') is not None]
                if xs:
                    cur = max(cur, max(xs))
                    while xq.n <= max(xs): xq.issue_n(1)
                    xt = xq.t[max(xs)]
                k.wait(vm=xt, lg=self.tl[min(m + 1, M - 1)])
            w = ar(aWB + 4*(m % self.NB))
            c = o.get('c0', '0') if o['first'] else o['acc']
            A, B = (o['x'], w) if o['swap'] else (w, o['x'])
            k(f"v_mfma_f32_32x32x16_bf16 {o['acc']}, {A}, {B}, {c}")
            if m == 0: mark(k, 'm0')
            if m in GEMM_MARKS.get(G.ph, ()): mark(k, f'm{m}')
            if m % 2 == 0:
                for _ in range(2):
                    if self.nread < M: self.rd()
                if DIAG_NOP.get(G.ph): k(f"s_nop {DIAG_NOP[G.ph]}")
            elif not (skip and m % skip == skip - 1):
                rok = m < self.stop and self.ring.can_issue()
                if xq.n < xq.total and (xq.n - cur < look or not (rok or (misc and m >= misc_from))): xq.issue_n(1)
                elif misc and m >= misc_from: misc.pop(0)()
                elif rok: self.ring.issue()
            if filler: filler(m)
        assert not misc

def stats_emitters(k, vt, res):
    k(f"s_lshl_b32 s{sS0}, s{sRB}, 12\ns_add_u32 s{sS0}, s{sS0}, {SX}")
    def mk(i):
        def f(): res['t'] = k.vm(f"buffer_load_dwordx4 {vr(vt+4*i)}, v{vL16}, {srd(sWS)}, s{sS0} offen offset:{i*KB} sc1")
        return f
    return [mk(i) for i in range(4)]

NTREE = 14
def fin_stats(vt, vext, vrstd):
    ins = []
    n = 8
    while n > 1:
        h = n // 2
        for i in range(h):
            ins.append(f"v_add_f32 v{vt+2*i}, v{vt+2*i}, v{vt+2*(i+h)}")
            ins.append(f"v_add_f32 v{vt+2*i+1}, v{vt+2*i+1}, v{vt+2*(i+h)+1}")
        n = h
    a, b, c, d = vt, vt+1, vt+2, vt+3
    ins += [f"v_mov_b32 v{c}, v{a}", f"v_mov_b32 v{d}, v{b}",
            f"v_permlane32_swap_b32 v{a}, v{c}", f"v_permlane32_swap_b32 v{b}, v{d}",
            f"v_add_f32 v{a}, v{a}, v{c}", f"v_add_f32 v{b}, v{b}, v{d}",
            f"v_mul_f32 v{a}, {hex(f2u(-1.0/512))}, v{a}",
            f"v_mul_f32 v{b}, {hex(f2u(1.0/512))}, v{b}",
            f"v_fma_f32 v{b}, -v{a}, v{a}, v{b}",
            f"v_max_f32 v{b}, 0, v{b}"]
    rnd = lambda r: [f"v_cvt_pk_bf16_f32 v{r}, v{r}, 0", f"v_lshlrev_b32 v{r}, 16, v{r}"]
    if LN_BF16:
        ins += rnd(b) + [f"v_add_f32 v{b}, {hex(f2u(1e-5))}, v{b}"] + rnd(b) + [f"v_sqrt_f32 v{b}, v{b}",
                f"v_cvt_pk_bf16_f32 v{vext}, v{a}, v{a}"] + rnd(b) + [f"v_rcp_f32 v{vrstd}, v{b}",
                f"v_mov_b32 v{vext+1}, 0", f"v_mov_b32 v{vext+2}, v{vext}", f"v_mov_b32 v{vext+3}, 0"]
    else:
        ins += [f"v_add_f32 v{b}, {hex(f2u(1e-5))}, v{b}", f"v_rsq_f32 v{vrstd}, v{b}",
                f"v_cvt_pk_bf16_f32 v{vext}, v{a}, v{a}", f"v_and_b32 v{c}, 0xffff0000, v{vext}", f"v_sub_f32 v{c}, v{a}, v{c}",
                f"v_cvt_pk_bf16_f32 v{vext+1}, v{c}, 0", f"v_mov_b32 v{vext+2}, v{vext}", f"v_mov_b32 v{vext+3}, v{vext+1}"]
    return ins

def poll(k, vaddr, vpd, sleep=0):
    l = k.newlabel('poll')
    k(f"s_mov_b32 s{sSPIN}, 0x40000")
    k.label(l)
    k.vm(f"buffer_load_dwordx2 {vr(vpd,2)}, v{vaddr}, {srd(sWS)}, s{sF} offen sc1")
    k(f"s_sub_u32 s{sSPIN}, s{sSPIN}, 1")
    k("s_cbranch_scc1 L_abort")
    k.wait_all(lg=False)
    k(f"v_cmp_ne_u64 vcc, s[{sTAG}:{sTAG+1}], {vr(vpd,2)}")
    k(f"s_cbranch_vccnz {l}")
class APoll:
    def __init__(self, k, loads, cmp, sleep=0):
        self.k = k; self.loads = loads; self.cmp = cmp; self.sleep = sleep
    def issue(self):
        for x in self.loads:
            if x.startswith('buffer'): self.t = self.k.vm(x)
            else: self.k(x)
    def check(self):
        k = self.k
        l = k.newlabel('ap'); ok = k.newlabel('apok')
        k.wait(vm=self.t)
        k(self.cmp)
        k(f"s_cbranch_vccnz {l}")
        k.label(ok)
        (G.near if NEAR else G.far).extend([f"{l}:", f"s_mov_b32 s{sSPIN}, 0x40000", f"{l}_l:"] + list(self.loads) + [
            f"s_sub_u32 s{sSPIN}, s{sSPIN}, 1", "s_cbranch_scc1 L_abort", "s_waitcnt vmcnt(0)", self.cmp,
            f"s_cbranch_vccnz {l}_l", f"s_branch {ok}"])
def flush_near(k):
    if not G.near: return
    l = k.newlabel('nr')
    k(f"s_branch {l}")
    for x in G.near:
        if x.endswith(':'): k.label(x[:-1])
        else: k(x)
    k.label(l)
    G.near.clear()
def apoll1(k, vaddr, vpd, soff, sleep=0):
    return APoll(k, [f"buffer_load_dwordx2 {vr(vpd,2)}, v{vaddr}, {srd(sWS)}, s{soff} offen sc1"],
                 f"v_cmp_ne_u64 vcc, s[{sTAG}:{sTAG+1}], {vr(vpd,2)}", sleep)
def ppoll(k, vaddr, vd, n):
    l = k.newlabel('pp'); ok = k.newlabel('ppok')
    ld = lambda i: f"buffer_load_dwordx2 {vr(vd+2*i,2)}, v{vaddr}, {srd(sWS)}, s{sF} offen sc1"
    k(f"s_mov_b32 s{sSPIN}, 0x20000")
    for i in range(n - 1): k(ld(i))
    k.label(l)
    for i in range(n):
        k(ld((i + n - 1) % n))
        k(f"s_waitcnt vmcnt({n-1})")
        k(f"v_cmp_ne_u64 vcc, s[{sTAG}:{sTAG+1}], {vr(vd+2*i,2)}")
        k(f"s_cbranch_vccz {ok}")
        if PP_SLEEP: k(f"s_sleep {PP_SLEEP}")
    k(f"s_sub_u32 s{sSPIN}, s{sSPIN}, 1")
    k(f"s_cbranch_scc0 {l}")
    k("s_branch L_abort")
    k.label(ok)
    k.vm_done = k.vm_issued
def poll16(k):
    flush_near(k)
    k("v_and_b32 v13, 15, v0\nv_lshlrev_b32 v13, 3, v13")
    if PPOLL: ppoll(k, 13, 248, PPOLL)
    else: poll(k, 13, 14)

TAGMOV = [f"v_mov_b32 v14, s{sTAG}", f"v_mov_b32 v15, s{sTAG+1}"]
def publish_local(k, last_store, force_global=False, movs=True):
    if movs:
        for x in TAGMOV: k(x)
    if force_global:
        k.wait(vm=last_store)
        k.vm(f"buffer_store_dwordx2 v[14:15], off, {srd(sWS)}, s{sF} sc1")
        return
    slow = k.newlabel('slow'); join = k.newlabel('join')
    k(f"s_cmp_eq_u32 s{sMODE}, 0")
    k(f"s_cbranch_scc1 {slow}")
    if FL1: k("s_mov_b64 exec, 1")
    k.wait(vm=last_store)
    k.vm(f"buffer_store_dwordx2 v[14:15], off, {srd(sWS)}, s{sF}")
    if FL1: k("s_mov_b64 exec, -1")
    k.label(join)
    G.far += [f"{slow}:", "s_waitcnt vmcnt(0)", "buffer_wbl2 sc1", "s_waitcnt vmcnt(0)",
              f"buffer_store_dwordx2 v[14:15], off, {srd(sWS)}, s{sF} sc1", f"s_branch {join}"]
def publish_wg(k, last_store, xid=False, barrier=True):
    l = k.newlabel('pw')
    k(f"v_mov_b32 v13, 0\nv_mov_b32 v14, s{sTAG}\nv_mov_b32 v15, s{sTAG+1}")
    k.wait(vm=last_store)
    if barrier: k("s_barrier")
    k(f"s_cmp_lg_u32 s{sW}, 0\ns_cbranch_scc1 {l}")
    k("s_mov_b64 exec, 1")
    if xid:
        k(f"v_xor_b32 v12, s{sXCC}, v14\nv_mov_b32 v13, v15")
        k(f"buffer_store_dwordx4 v[12:15], v{vL16}, {srd(sWS)}, s{sF} offen sc1")
    else:
        k(f"buffer_store_dwordx2 v[14:15], v13, {srd(sWS)}, s{sF} offen sc1")
    k("s_mov_b64 exec, -1")
    k.label(l)

def rb_128(k):
    k(f"s_lshl_b32 s{sT0}, s{sC4}, 2\ns_lshl_b32 s{sRB}, s{sG}, 3\ns_add_u32 s{sRB}, s{sRB}, s{sT0}\ns_add_u32 s{sRB}, s{sRB}, s{sW}")

def store_x(k, acc, pk, L, p, ring=None, m16=False):
    k(f"s_add_u32 s{sT1}, s{sDST}, {XF}")
    k.vm(f"buffer_store_dwordx4 {vr(pk)}, v{vL16}, {srd(sWS)}, s{sT1} offen")
    td = k.vm(f"buffer_store_dwordx4 {vr(pk+4)}, v{vL16}, {srd(sWS)}, s{sT1} offen offset:1024")
    mark(k, 'f_xs')
    A_ = [acc + i for i in ((0, 1, 2, 3, 8, 9, 10, 11) if m16 else range(0, 16, 2))]
    B_ = [acc + i for i in ((4, 5, 6, 7, 12, 13, 14, 15) if m16 else range(1, 16, 2))]
    k(f"v_add_f32 v10, v{A_[0]}, v{A_[1]}\nv_mul_f32 v11, v{A_[0]}, v{A_[0]}\nv_add_f32 v8, v{B_[0]}, v{B_[1]}\nv_mul_f32 v9, v{B_[0]}, v{B_[0]}")
    k(f"v_fmac_f32 v11, v{A_[1]}, v{A_[1]}\nv_fmac_f32 v9, v{B_[1]}, v{B_[1]}")
    for i in range(2, 8):
        k(f"v_add_f32 v10, v10, v{A_[i]}\nv_fmac_f32 v11, v{A_[i]}, v{A_[i]}\nv_add_f32 v8, v8, v{B_[i]}\nv_fmac_f32 v9, v{B_[i]}, v{B_[i]}")
        if ring and i in (2, 5): ring.issue_n(ST_PRE)
    if m16: k("v_permlane16_swap_b32 v10, v8\nv_permlane16_swap_b32 v11, v9")
    k("v_add_f32 v10, v10, v8\nv_add_f32 v11, v11, v9\nv_mov_b32 v8, v10\nv_mov_b32 v9, v11")
    k("v_permlane32_swap_b32 v10, v8\nv_permlane32_swap_b32 v11, v9\nv_add_f32 v10, v10, v8\nv_add_f32 v11, v11, v9")
    k("s_mov_b32 exec_hi, 0")
    ts = k.vm(f"buffer_store_dwordx2 v[10:11], v{vL16}, {srd(sWS)}, s{sSD} offen")
    k("s_mov_b64 exec, -1")
    k(f"s_lshr_b32 s{sF}, s{sDST}, 8\ns_add_u32 s{sF}, s{sF}, {FLOC(L, p)}")
    mark(k, 'f_ss')
    if SPLIT_ST:
        publish_local(k, td)
        k(f"s_add_u32 s{sF}, s{sF}, {FLOC(L, 6 if p == 1 else 7) - FLOC(L, p)}")
    return ts
def stats_poll(k, delta):
    if not SPLIT_ST: return []
    k(f"s_add_u32 s{sF}, s{sF}, {delta}")
    ap = apoll1(k, 13, 14, sF)
    return ap

def rowmajor_addr(k, va, s_out):
    k(f"v_and_b32 v{va}, 31, v0\nv_lshlrev_b32 v{va}, 10, v{va}\nv_bfe_u32 v{va+1}, v0, 5, 1\nv_lshlrev_b32 v{va+1}, 4, v{va+1}\nv_add_u32 v{va}, v{va}, v{va+1}")
    k(f"s_and_b32 s{s_out}, s{sDST}, 0xffff8000\ns_bfe_u32 s{sT3}, s{sDST}, 0x5000a\ns_lshl_b32 s{sT3}, s{sT3}, 5\ns_add_u32 s{s_out}, s{s_out}, s{sT3}")

sU = 96
def pack_decode(k):
    nm = "pk"; u = f"s{sU}"
    k(f"s_min_u32 s83, {u}, 231")
    u = "s83"
    k(f"s_and_b32 s90, s{sW}, 1\ns_lshr_b32 s91, s{sW}, 1")
    k(f"s_cmp_lt_u32 {u}, 48\ns_cbranch_scc1 {nm}_q")
    k(f"s_cmp_lt_u32 {u}, 160\ns_cbranch_scc1 {nm}_u")
    k(f"s_cmp_lt_u32 {u}, 176\ns_cbranch_scc1 {nm}_o")
    k(f"s_sub_u32 s84, {u}, 176\ns_lshl_b32 s84, s84, 2\ns_add_u32 s84, s84, s{sW}")
    k("s_and_b32 s85, s84, 15\ns_lshr_b32 s86, s84, 4")
    k("s_lshl_b32 s87, s85, 6")
    k("s_add_u32 s74, s72, s87\ns_addc_u32 s75, s73, 0\ns_mov_b32 s76, s74\ns_mov_b32 s77, s75")
    k("s_mov_b32 s78, 1024\ns_lshl_b32 s79, s86, 7")
    k(f"s_mul_i32 s80, s85, 14\ns_add_u32 s80, s80, s86\ns_lshl_b32 s80, s80, 13\ns_add_u32 s80, s80, {WD}\ns_mov_b32 s81, 1024\ns_mov_b32 s88, s81\ns_mov_b32 s82, {DUMP}")
    k(f"s_branch {nm}_go")
    k.label(f"{nm}_o")
    k(f"s_sub_u32 s85, {u}, 160\ns_lshr_b32 s88, s85, 3\ns_and_b32 s85, s85, 7")
    k("s_lshl_b32 s87, s85, 1\ns_add_u32 s87, s87, s90\ns_lshl_b32 s87, s87, 6")
    k("s_add_u32 s74, s66, s87\ns_addc_u32 s75, s67, 0\ns_mov_b32 s76, s74\ns_mov_b32 s77, s75")
    k("s_mov_b32 s78, 1024\ns_lshl_b32 s79, s88, 1\ns_add_u32 s79, s79, s91\ns_lshl_b32 s79, s79, 7")
    k("s_lshl_b32 s89, s91, 15\ns_xor_b32 s90, s90, s88\ns_lshl_b32 s88, s88, 1\ns_add_u32 s90, s90, s88\ns_lshl_b32 s90, s90, 10")
    k(f"s_mul_i32 s80, s85, {WO_STR}\ns_add_u32 s80, s80, s89\ns_add_u32 s80, s80, s90\ns_add_u32 s80, s80, {WO}")
    k(f"s_mov_b32 s81, 4096\ns_mov_b32 s88, s81\ns_mov_b32 s82, {DUMP}")
    k(f"s_branch {nm}_go")
    k.label(f"{nm}_u")
    k(f"s_sub_u32 s85, {u}, 48\ns_mul_i32 s84, s85, 2341\ns_lshr_b32 s84, s84, 16\ns_mul_i32 s86, s84, 28\ns_sub_u32 s85, s85, s86")
    k(f"s_lshl_b32 s85, s85, 2\ns_add_u32 s85, s85, s{sW}\ns_lshl_b32 s87, s85, 5")
    k("s_add_u32 s74, s68, s87\ns_addc_u32 s75, s69, 0")
    k("s_add_u32 s76, s70, s87\ns_addc_u32 s77, s71, 0\ns_sub_u32 s76, s76, 32\ns_subb_u32 s77, s77, 0")
    k("s_mov_b32 s78, 3584")
    k("s_mul_i32 s86, s85, 9363\ns_lshr_b32 s86, s86, 16\ns_mul_i32 s88, s86, 7\ns_sub_u32 s88, s85, s88")
    if DN16: k("s_sub_u32 s89, 6, s88\ns_bitcmp0_b32 s86, 0\ns_cselect_b32 s88, s89, s88")
    k(f"s_mul_i32 s91, s86, {WU_STR}\ns_add_u32 s91, s91, {WU}\ns_lshl_b32 s89, s88, 10\ns_add_u32 s91, s91, s89")
    k(f"s_cmp_lt_u32 s88, 5\ns_cselect_b32 s90, 3, 5\ns_lshl_b32 s89, s90, 15\ns_add_u32 s89, s89, 1024")
    k(f"s_cmp_lt_u32 s88, 3\ns_cselect_b32 s81, 3, 2\ns_cselect_b32 s89, 0, s89\ns_cselect_b32 s90, 0, s90\ns_lshl_b32 s81, s81, 10\ns_add_u32 s91, s91, s89")
    k("s_sub_u32 s85, s88, s90\ns_lshl_b32 s85, s85, 10\ns_mov_b32 s88, 1024")
    k(f"s_branch {nm}_ext")
    k.label(f"{nm}_q")
    k(f"s_cmp_ge_u32 {u}, 24\ns_cselect_b32 s84, 2, 0\ns_cselect_b32 s86, 24, 0\ns_add_u32 s84, s84, s91\ns_sub_u32 s85, {u}, s86")
    k("s_lshl_b32 s85, s85, 1\ns_add_u32 s85, s85, s90\ns_and_b32 s86, s85, 15\ns_lshr_b32 s88, s85, 4")
    k("s_lshl_b32 s87, s85, 6\ns_lshl_b32 s89, s88, 10")
    k("s_add_u32 s74, s64, s87\ns_addc_u32 s75, s65, 0\ns_mov_b32 s76, s74\ns_mov_b32 s77, s75")
    k("s_mov_b32 s78, 3072")
    k(f"s_sub_u32 s89, s89, 1024\ns_cmp_eq_u32 s88, 0\ns_cselect_b32 s89, {66*KB}, s89\ns_cselect_b32 s81, 1, 2\ns_lshl_b32 s81, s81, 10")
    k(f"s_mul_i32 s91, s86, {WQ_STR}\ns_add_u32 s91, s91, s89\ns_add_u32 s91, s91, {WQ}\ns_mov_b32 s85, 0\ns_mov_b32 s88, s81")
    k.label(f"{nm}_ext")
    k("s_lshl_b32 s79, s84, 7")
    k("s_lshl_b32 s89, s81, 5\ns_add_u32 s82, s91, s89\ns_lshr_b32 s89, s84, 1\ns_lshl_b32 s89, s89, 9\ns_add_u32 s82, s82, s89")
    k("s_and_b32 s89, s84, 1\ns_lshl_b32 s89, s89, 3\ns_add_u32 s82, s82, s89")
    k("s_lshl_b32 s89, s81, 3\ns_mul_i32 s89, s89, s84\ns_add_u32 s80, s91, s89\ns_add_u32 s80, s80, s85")
    k.label(f"{nm}_go")
    k(f"s_cmp_ge_u32 s{sU}, 232\ns_cselect_b32 s80, {DUMP}, s80")
    k("v_bfe_u32 v4, v0, 2, 4\nv_add_u32 v4, s79, v4\nv_mul_lo_u32 v4, v4, s78")
    k("v_and_b32 v13, 3, v0\nv_lshlrev_b32 v13, 4, v13\nv_add_u32 v4, v4, v13")
    k(f"s_lshl_b32 s83, s78, 4")
    if PK_Q0: k(f"s_lshl_b32 s84, s{sW}, 13\ns_add_u32 s84, s84, {64*KB}")
    elif Q0K: k(f"s_lshl_b32 s84, s{sW}, 13")
    elif PK_EARLY: k(f"s_lshl_b32 s84, s{sW}, 13\ns_add_u32 s84, s84, {4*KB}")
    else: k(f"s_lshl_b32 s84, s{sW}, 14\ns_add_u32 s84, s84, {96*KB}")
    k("s_mov_b32 s86, s83\ns_mov_b32 s87, 0\ns_lshl_b32 s83, s81, 1\ns_sub_u32 s83, s83, s88\ns_mov_b32 s81, s88")
    k("v_and_b32 v13, 2, v0\nv_cmp_eq_u32 vcc, 0, v13")
    k("v_mov_b32 v14, s76\nv_mov_b32 v13, s74\nv_cndmask_b32 v14, v14, v13, vcc\nv_mov_b32 v15, s77\nv_mov_b32 v13, s75\nv_cndmask_b32 v15, v15, v13, vcc")
    k("v_add_co_u32 v4, vcc, v4, v14\nv_addc_co_u32 v5, vcc, 0, v15, vcc")
def pack_issue(k, i, sbase):
    k(f"s_add_u32 m0, s{sbase}, {i*KB}")
    if i: k("v_lshl_add_u64 v[4:5], v[4:5], 0, s[86:87]")
    return k.vm("global_load_lds_dwordx4 v[4:5], off")
def tr_addr(k, v, t):
    k(f"v_bfe_u32 v{v}, v0, 5, 1\nv_lshlrev_b32 v{v}, 9, v{v}")
    k(f"v_bfe_u32 v{t}, v0, 2, 2\nv_lshlrev_b32 v{t}, 6, v{t}\nv_add_u32 v{v}, v{v}, v{t}")
    k(f"v_bfe_u32 v{t}, v0, 4, 1\nv_lshlrev_b32 v{t}, 5, v{t}\nv_add_u32 v{v}, v{v}, v{t}")
    k(f"v_and_b32 v{t}, 1, v0\nv_lshlrev_b32 v{t}, 4, v{t}\nv_add_u32 v{v}, v{v}, v{t}")
    k(f"v_bfe_u32 v{t}, v0, 1, 1\nv_lshlrev_b32 v{t}, 3, v{t}\nv_add_u32 v{v}, v{v}, v{t}")
def ext_pair(src, dst, t0):
    return [f"v_mov_b32 v{t0}, v{src}", f"v_permlane32_swap_b32 v{src}, v{t0}", f"v_add_f32 v{src}, v{src}, v{t0}",
            f"v_cvt_pk_bf16_f32 v{dst+1}, v{src}, 0", f"v_lshlrev_b32 v{t0}, 16, v{dst+1}", f"v_sub_f32 v{src}, v{src}, v{t0}",
            f"v_cvt_pk_bf16_f32 v{dst}, v{t0}, v{src}"]
class Pack:
    def __init__(self, k): self.k = k; self.r = {}
    def issue(self, *ii):
        for i in ii: self.d = pack_issue(self.k, i, 84)
    def reads(self, *ii):
        k = self.k
        if ii[0] == 0:
            k("v_accvgpr_read_b32 v4, a212")
            k.wait(vm=self.d)
        for i in ii:
            k.lg(f"ds_read_b64_tr_b16 {ar(160+4*i,2)}, v4 offset:{i*KB}")
            self.r[i] = k.lg(f"ds_read_b64_tr_b16 {ar(162+4*i,2)}, v4 offset:{i*KB+256}")
    def csum(self, i):
        self.k.wait(lg=self.r[i])
        self.k(f"v_mfma_f32_32x32x16_bf16 {ar(196,16)}, {ar(192)}, {ar(160+4*i)}, {'0' if i == 0 else ar(196,16)}")
    def stores(self, *ii):
        k = self.k
        k.wait(lg=self.r[ii[-1]])
        for i in ii:
            k.vm(f"buffer_store_dwordx4 {ar(160+4*i)}, v{vL16}, {srd(sWS)}, s80 offen sc1")
            k(f"s_add_u32 s80, s80, s{83 if i & 1 else 81}")
    def ext(self):
        k = self.k
        k("v_accvgpr_read_b32 v13, a196")
        k("v_cvt_pk_bf16_f32 v15, v13, 0\nv_lshlrev_b32 v14, 16, v15\nv_sub_f32 v13, v13, v14\nv_cvt_pk_bf16_f32 v14, v14, v13")
        k("s_mov_b32 exec_hi, 0")
        self.s = k.vm(f"buffer_store_dwordx2 v[14:15], v{vL16}, {srd(sWS)}, s82 offen sc1")
        k("s_mov_b64 exec, -1")
    def pub(self):
        k = self.k
        k(f"s_lshl_b32 s{sF}, s{sU}, 7\ns_add_u32 s{sF}, s{sF}, {FPK}")
        publish_wg(k, self.s, xid=True)
    def schedule(self, job):
        t = PK_T0
        if not PK_EARLY:
            for i in range(4): job(t + i, lambda i=i: self.issue(2*i, 2*i+1))
            t += 4 + PK_GAP
        if PK_WIN2:
            job(t, self.pub)
            return t
        if PK_EARLY and PK_SP:
            for i in range(8): job(t + PK_SP*i, lambda i=i: self.stores(i))
            job(t + 8*PK_SP, self.ext)
            job(t + 8*PK_SP + PK_GAP2, self.pub)
            return t + 8*PK_SP + PK_GAP2
        if PK_EARLY:
            for i in range(4): job(t + i, lambda i=i: self.stores(2*i, 2*i+1))
            job(t + 4, self.ext)
            job(t + 4 + PK_GAP2, self.pub)
            return t + 4 + PK_GAP2
        job(t, lambda: self.reads(0, 1, 2, 3)); job(t + 1, lambda: self.reads(4, 5, 6, 7))
        for i in range(4):
            job(t + 2 + i, lambda i=i: self.stores(2*i, 2*i+1))
            job(t + 1 + i, lambda i=i: self.csum(2*i), e=14)
            job(t + 2 + i, lambda i=i: self.csum(2*i+1), e=0)
        job(t + 6, self.ext)
        job(t + 6 + PK_GAP2, self.pub)
        return t + 6 + PK_GAP2
def qkv_consts(vT, vRS, vR):
    return [f"v_cvt_pk_bf16_f32 v{vT}, v{vRS}, 0", f"v_lshlrev_b32 v{vT+1}, 16, v{vT}", f"v_sub_f32 v{vT+2}, v{vRS}, v{vT+1}",
            f"v_cvt_pk_bf16_f32 v{vT}, v{vT+1}, v{vT+2}", f"v_mov_b32 v{vT+1}, 0", f"v_mov_b32 v{vT+2}, 0", f"v_mov_b32 v{vT+3}, 0",
            f"v_cmp_gt_u32 vcc, 512, v{vL16}", f"v_mov_b32 v{vT+4}, 0x3f803f80", f"v_cndmask_b32 v{vT+4}, 0, v{vT+4}, vcc",
            f"v_mov_b32 v{vT+5}, 0", f"v_mov_b32 v{vT+6}, 0", f"v_mov_b32 v{vT+7}, 0",
            f"v_mul_f32 v{vRS+1}, {hex(f2u(0.25*LOG2E))}, v{vRS}",
            "v_bfe_u32 v12, v0, 4, 1", "v_lshlrev_b32 v12, 17, v12", "v_and_b32 v13, 15, v0", "v_lshlrev_b32 v13, 4, v13", "v_add_u32 v12, v12, v13",
            "v_bfe_u32 v13, v0, 5, 1", "v_lshlrev_b32 v13, 8, v13", "v_add_u32 v12, v12, v13",
            f"v_mfma_f32_32x32x16_bf16 {vr(vR,16)}, {vr(vT)}, {vr(vT+4)}, 0"]
def qk_tile(a, dst, sc, fl, p0):
    o = []
    sb, hs = (sB, KB) if dst == QF else (sCc, 128*KB)
    for half in range(2):
        p = p0 + 4*half
        for j in range(4):
            r = a + 8*half + 2*j
            o += [f"v_mul_f32 v{r}, v{r}, v{sc}", f"v_mul_f32 v{r+1}, v{r+1}, v{sc}", f"v_cvt_pk_bf16_f32 v{p+j}, v{r}, v{r+1}"]
        o += [f"s_add_u32 s{sT2}, s{sb}, {dst + half*hs}", f"buffer_store_dwordx4 {vr(p)}, v{vL16}, {srd(sWS)}, s{sT2} offen{fl}"]
    return o
def v_tile(a, L, vR, p0):
    o = [f"s_add_u32 s{sT2}, s{sCc}, {KVF(L) + KB}"]
    for u in range(2):
        p = p0 + 4*u
        for j in range(4):
            r = a + 8*u + 2*j; q = vR + 8*u + 2*j
            o += [f"v_mul_f32 v{r}, v{r}, v{q}", f"v_mul_f32 v{r+1}, v{r+1}, v{q+1}", f"v_cvt_pk_bf16_f32 v{p+j}, v{r}, v{r+1}"]
        o.append(f"buffer_store_dwordx4 {vr(p)}, v12, {srd(sWS)}, s{sT2} offen offset:{u*512} sc1")
    return o
def kv_flag(k, L, tkv):
    k(f"s_lshl_b32 s{sF}, s{sA}, 4\ns_lshr_b32 s{sT1}, s{sRB}, 2\ns_add_u32 s{sF}, s{sF}, s{sT1}\ns_lshl_b32 s{sF}, s{sF}, 7\ns_add_u32 s{sF}, s{sF}, {FKV(L)}")
    publish_wg(k, tkv)
def q_flag(k, L, tq):
    k(f"s_lshr_b32 s{sF}, s{sRB}, 3\ns_lshl_b32 s{sF}, s{sF}, 4\ns_add_u32 s{sF}, s{sF}, s{sA}\ns_lshl_b32 s{sF}, s{sF}, 3\ns_and_b32 s{sT1}, s{sRB}, 7\ns_add_u32 s{sF}, s{sF}, s{sT1}\ns_lshl_b32 s{sF}, s{sF}, 3\ns_add_u32 s{sF}, s{sF}, {FLOC(L-1,5)}")
    publish_local(k, tq, force_global=(L == 0))

WARM = True
LIN_AT = 99
LIN_U = True
Q0_ROT = True
Q0_MARKS = False
Q0_MARKJ = ()
Q0_SCHED = ((3, 4), (5,), (6,), (7,), (), (), (), ())
LATE_AT = 1
Q0_UP = 3
PK_AT = (5, 5, 6, 6, 6, 6, 6, 6)
def ph_qkv0(k, late):
    vX, vACC, vST, vEXT, vRS, vT, vR = 16, 144, 192, 8, 6, 224, 232
    vXA, vWA, vXR, vTR, vTW, vCS, vCW, vONE = 10, 12, 196, 200, 202, 204, 208, 220
    sXS, sWR, sXL, sWL = 60, 56, sD, sE
    rb_128(k)
    k(f"s_and_b32 s{sA}, s{sC}, 15")
    k(f"v_bfe_u32 v{vXA}, v0, 3, 3\nv_lshlrev_b32 v{vXA}, 10, v{vXA}\nv_and_b32 v13, 7, v0\nv_bfe_u32 v14, v0, 4, 2\nv_xor_b32 v13, v13, v14")
    k(f"v_lshlrev_b32 v13, 4, v13\nv_add_u32 v{vXA}, v{vXA}, v13\nv_xor_b32 v{vXA+1}, 64, v{vXA}")
    k(f"v_bfe_u32 v{vWA}, v0, 2, 4\nv_mul_u32_u24 v{vWA}, 3072, v{vWA}\nv_and_b32 v13, 3, v0\nv_lshlrev_b32 v13, 4, v13\nv_add_u32 v{vWA}, v{vWA}, v13")
    if DIAG_W: k(f"v_bfe_u32 v{vWA}, v0, 3, 3\nv_mul_u32_u24 v{vWA}, 6144, v{vWA}\nv_and_b32 v13, 7, v0\nv_lshlrev_b32 v13, 4, v13\nv_add_u32 v{vWA}, v{vWA}, v13\ns_and_b32 s{sA}, s{sA}, 14")
    k(f"s_lshl_b32 s{sX}, s{sRB}, 15")
    k(f"s_mul_i32 s{sX2}, s{sW}, 49152\ns_lshl_b32 s{sT0}, s{sA}, 6\ns_add_u32 s{sX2}, s{sX2}, s{sT0}")
    if DIAG_W: k(f"s_and_b32 s{sA}, s{sG}, 1\ns_lshl_b32 s{sA}, s{sA}, 3\ns_and_b32 s{sT0}, s{sC}, 7\ns_add_u32 s{sA}, s{sA}, s{sT0}")
    k(f"s_lshl_b32 s{sXL}, s{sW}, 14\ns_add_u32 s{sXL}, s{sXL}, {96*KB}\ns_mul_i32 s{sWL}, s{sW}, 3072")
    k("s_waitcnt lgkmcnt(0)")
    if Q0_MARKS: mark(k, 'karg')
    k(f"s_mov_b32 s{sWR}, s64\ns_and_b32 s{sWR+1}, s65, 0xffff\ns_mov_b32 s{sWR+2}, {512*3072}\ns_mov_b32 s{sWR+3}, 0x20000")
    k(f"s_and_b32 s{sXS+1}, s{sXS+1}, 0xffff\ns_mov_b32 s{sXS+2}, {2*MB}\ns_mov_b32 s{sXS+3}, 0x20000")
    ct = {}; cn = {j: 0 for j in range(8)}
    k(f"s_lshl_b32 s{sCc}, s{sC4}, 2\ns_lshr_b32 s{sT3}, s{sC}, {Q0_RSH}\ns_add_u32 s{sCc}, s{sCc}, s{sT3}\ns_add_u32 s{sCc}, s{sCc}, s{sG}")
    def rot(j):
        k(f"s_add_u32 s{sT3}, s{sCc}, {j}\ns_and_b32 s{sT3}, s{sT3}, {7 if Q0_ROT else 0}")
        if not Q0_ROT: k(f"s_mov_b32 s{sT3}, {j}")
        k(f"s_lshl_b32 s{sS0}, s{sT3}, 7\ns_add_u32 s{sS0}, s{sS0}, s{sX}")
        k(f"s_mul_i32 s{sS1}, s{sT3}, {4*49152}\ns_add_u32 s{sS1}, s{sS1}, s{sX2}")
    def ldW(j, t):
        k(f"s_add_u32 m0, s{sWL}, {(12*j + t)*KB}\ns_add_u32 s{sT2}, s{sS1}, {((t+1) % 3)*1024}")
        ct[j] = k.vm(f"buffer_load_dwordx4 v{vWA}, {srd(sWR)}, s{sT2} offen lds"); cn[j] += 1
    def ldX(j, i):
        if i == 0: rot(j)
        k(f"s_add_u32 m0, s{sXL}, {(j & 3)*4*KB + i*KB}\ns_add_u32 s{sT2}, s{sS0}, {i*8192}")
        ct[j] = k.vm(f"buffer_load_dwordx4 v{vXA + (i & 1)}, {srd(sXS)}, s{sT2} offen lds"); cn[j] += 1
    def chunk_loads(j):
        return [lambda i=i: ldX(j, i) for i in range(4)] + [lambda t=t: ldW(j, t) for t in range(3)]
    for f in chunk_loads(0): f()
    if Q0_MARKS: mark(k, 'up0')
    late(k)
    pack_decode(k)
    k(f"s_cmp_eq_u32 s{sW}, 0\ns_cselect_b64 s[90:91], s[68:69], s[70:71]")
    k(f"s_cmp_eq_u32 s{sW}, 2\ns_cselect_b64 s[90:91], s[72:73], s[90:91]")
    k(f"s_cmp_eq_u32 s{sW}, 3\ns_cselect_b64 s[90:91], s[66:67], s[90:91]\ns_cselect_b32 s{sT0}, 16, 56")
    k(f"s_mul_i32 s{sT1}, s{sT0}, s{sU}\ns_sub_u32 s{sT0}, s{sT0}, 1")
    k(f"v_and_b32 v254, 63, v0\nv_min_u32 v254, s{sT0}, v254\nv_add_u32 v254, s{sT1}, v254\nv_lshlrev_b32 v254, 7, v254")
    pk = G.pk = Pack(k)
    k(f"s_and_b32 s{sT0}, s{sC}, 7\ns_and_b32 s{sT1}, s{sC}, 15")
    k("v_and_b32 v13, 15, v0\nv_min_u32 v14, 13, v13")
    k(f"s_lshr_b32 s{sT2}, s{sT0}, 1\ns_add_u32 s{sT2}, s{sT2}, 176\nv_lshl_add_u32 v252, v14, 2, s{sT2}")
    k(f"s_mul_i32 s{sT2}, s{sT1}, 7\ns_add_u32 s{sT3}, s{sT2}, 6\ns_lshr_b32 s{sT2}, s{sT2}, 2\ns_lshr_b32 s{sT3}, s{sT3}, 2")
    k(f"v_lshrrev_b32 v14, 2, v13\nv_add_u32 v14, s{sT2}, v14\nv_min_u32 v14, s{sT3}, v14\nv_and_b32 v15, 3, v13\nv_mul_u32_u24 v15, 28, v15")
    k("v_add3_u32 v14, v14, v15, 48")
    k("v_and_b32 v15, 16, v0\nv_cmp_ne_u32 vcc, 0, v15\nv_cndmask_b32 v252, v252, v14, vcc")
    k(f"s_add_u32 s{sT0}, s{sT0}, 160\nv_and_b32 v14, 1, v13\nv_lshl_add_u32 v251, v14, 3, s{sT0}")
    k(f"s_lshr_b32 s{sT1}, s{sT1}, 1\nv_mul_u32_u24 v14, 24, v14\nv_lshrrev_b32 v15, 1, v13\nv_min_u32 v15, 2, v15\nv_lshlrev_b32 v15, 3, v15")
    k(f"v_add3_u32 v14, v14, v15, s{sT1}")
    k("v_cndmask_b32 v251, v251, v14, vcc")
    k(f"v_cmp_gt_u32 vcc, 512, v{vL16}\nv_cndmask_b32 v252, v251, v252, vcc\nv_lshlrev_b32 v252, 7, v252\nv_accvgpr_write_b32 a213, v252")
    if WARM:
        k("s_getpc_b64 s[88:89]")
        k.label("L_pcw")
        k(f"s_lshl_b32 s{sT0}, s{sC}, 1\ns_add_u32 s{sT0}, s{sT0}, s{sW}\ns_and_b32 s{sT0}, s{sT0}, 63\ns_lshl_b32 s{sT0}, s{sT0}, 10\ns_min_u32 s{sT0}, s{sT0}, L_end-L_pcw-1024")
        k(f"v_add_u32 v245, s{sT0}, v{vL16}")
        k(f"v_min_u32 v244, {(WS_PAGES-1)*16}, v{vL16}\nv_lshlrev_b32 v244, 17, v244")
        k(f"s_cmp_eq_u32 s{sW}, 1\ns_cselect_b64 s[88:89], s[{sAUX}:{sAUX+1}], s[88:89]")
        k(f"s_cmp_eq_u32 s{sW}, 0\ns_cselect_b64 s[88:89], s[{sWS}:{sWS+1}], s[88:89]\ns_cselect_b64 vcc, -1, 0")
        k("v_cndmask_b32 v245, v245, v244, vcc")
    if PK_Q0: pk.issue(*range(8))
    k(f"v_and_b32 v13, 31, v0\nv_bfe_u32 v14, v0, 1, 3\nv_bfe_u32 v15, v0, 5, 1\nv_xor_b32 v14, v14, v15\nv_lshlrev_b32 v14, 4, v14\nv_lshl_add_u32 v13, v13, 7, v14")
    for e in range(4):
        k(f"v_xor_b32 v{vXR+e}, {e*32}, v13\nv_add_u32 v{vXR+e}, s{sXL}, v{vXR+e}")
    tr_addr(k, vTR, 13)
    k(f"v_add_u32 v{vTR+1}, {48*KB}, v{vTR}\nv_add_u32 v{vTW}, s{sWL}, v{vTR}\nv_add_u32 v{vTW+1}, {48*KB}, v{vTW}")
    k(f"v_mov_b32 v{vONE}, 0x3f803f80\nv_add_u32 v255, s84, v{vTR}\nv_accvgpr_write_b32 a212, v255")
    for r in range(192, 196): k(f"v_accvgpr_write_b32 a{r}, v{vONE}")
    for r in list(range(vST, vST+4)) + list(range(vCS, vCS+3)): k(f"v_mov_b32 v{r}, 0")
    def reads(j):
        o = []
        for e in range(4):
            o.append(f"ds_read_b128 {vr(vX + 16*j + 4*e)}, v{vXR+e} offset:{(j & 3)*4*KB}")
        for t in range(3):
            off = (12*(j & 3) + t)*KB
            o.append(f"ds_read_b64_tr_b16 {vr(vCW+4*t,2)}, v{vTW + (j >> 2)} offset:{off}")
            o.append(f"ds_read_b64_tr_b16 {vr(vCW+4*t+2,2)}, v{vTW + (j >> 2)} offset:{off+256}")
        for b in range(12):
            off = (12*(j & 3) + b)*KB; r = 48*(j & 1) + 4*b
            o.append(f"ds_read_b64_tr_b16 {ar(r,2)}, v{vTR + (j >> 2)} offset:{off}")
            o.append(f"ds_read_b64_tr_b16 {ar(r+2,2)}, v{vTR + (j >> 2)} offset:{off+256}")
        return o
    def dots(j):
        for i in range(16):
            r = vX + 16*j + i
            k(f"v_dot2c_f32_bf16 v{vST + 2*(i & 1)}, v{vONE}, v{r}\nv_dot2c_f32_bf16 v{vST + 1 + 2*(i & 1)}, v{r}, v{r}")
        for i in range(4):
            for t in range(3): k(f"v_dot2c_f32_bf16 v{vCS+t}, v{vONE}, v{vCW+4*t+i}")
    def xid():
        k(f"s_add_u32 s{sTAG}, s{sTAG}, 0x7f4a7c15\ns_addc_u32 s{sTAG+1}, s{sTAG+1}, 0x9e3779b9")
        k("v_mov_b32 v13, 0")
        k("s_mov_b64 exec, 1")
        if FLAG_TOUCH:
            k(f"s_lshl_b32 s{sF}, s{sA}, 4\ns_lshr_b32 s{sT1}, s{sRB}, 2\ns_add_u32 s{sF}, s{sF}, s{sT1}\ns_lshl_b32 s{sF}, s{sF}, 7\ns_add_u32 s{sF}, s{sF}, {FKV(0)}")
            k.vm(f"buffer_load_dword v5, v13, {srd(sWS)}, s{sF} offen sc1")
            k(f"s_lshl_b32 s{sF}, s{sU}, 7\ns_add_u32 s{sF}, s{sF}, {FPK}")
            k.vm(f"buffer_load_dword v5, v13, {srd(sWS)}, s{sF} offen sc1")
        k("s_mov_b64 exec, -1")
    def lin_touch():
        k.vm("global_load_dword v253, v254, s[90:91]")
    side = []
    for x in att_setup(0): k(x)
    if Q0_MARKS: mark(k, 'alu')
    if WARM and WARM_AT == 0: k.vm(f"global_load_dword v255, v245, s[88:89]")
    for j in range(1, Q0_UP):
        for f in chunk_loads(j): f()
    if WARM and WARM_AT == 1: k.vm(f"global_load_dword v255, v245, s[88:89]")
    if Q0_MARKS: mark(k, 'iss')
    k.wait(vm=ct[0])
    if Q0_MARKS: mark(k, 'w0')
    k("s_barrier")
    mark(k, 'd0')
    rl = reads(0)
    for x in rl[:10]: t10 = k.lg(x)
    for x in rl[10:]: k.lg(x)
    k.wait(lg=t10)
    dots(0)
    for j in range(8):
        for c_ in Q0_SCHED[j]:
            assert c_ - 4 <= j
            side += chunk_loads(c_)
        if j == 1: side.append(xid)
        if WARM and WARM_AT == j + 2: side.append(lambda: k.vm(f"global_load_dword v255, v245, s[88:89]"))
        if PK_EARLY: side += [lambda i=i: pk.issue(i) for i in range(8) if PK_AT[i] == j]
        if j == LIN_AT and not PK_Q0: side.append(lin_touch)
        if PK_Q0:
            assert all(c_ < 5 or j > PK_RD for c_ in Q0_SCHED[j])
            if j == PK_RD: side += [lambda i=i: pk.reads(2*i, 2*i+1) for i in range(4)]
            if j == PK_ST: side += [lambda i=i: (pk.stores(i), pk.csum(i)) for i in range(4)]
            if j == PK_ST + 1: side += [lambda i=i: (pk.stores(i), pk.csum(i)) for i in range(4, 8)]
            if j == PK_ST + 2: side.append(pk.ext)
        k.wait_all(vm=False)
        rl = []
        if j < 7:
            assert cn[j+1] == 7
            k.wait(vm=ct[j+1]); k("s_barrier")
            if j in Q0_MARKJ: mark(k, f'c{j+1}')
            rl = reads(j + 1)
        t10 = None; nr = 0
        if j == 7:
            tail = f"s_lshr_b32 s{sT0}, s{sW}, 1\ns_lshl_b32 s{sT0}, s{sT0}, 9\ns_and_b32 s{sT1}, s{sW}, 1\ns_lshl_b32 s{sT1}, s{sT1}, 3\ns_add_u32 s{sT0}, s{sT0}, s{sT1}".split('\n')
            tail += [f"v_and_b32 v13, 0x1f0, v{vL16}", f"v_add_u32 v13, s{sT0}, v13"]
            for t in range(3): tail += ext_pair(vCS+t, vCW+2*t, 14) + [f"ds_write_b64 v13, {vr(vCW+2*t,2)} offset:{t*KB}"]
            fin = fin_stats(vST, vEXT, vRS)[NTREE:] + qkv_consts(vT, vRS, vR)
            tail += [f"v_add_f32 v{vST}, v{vST}, v{vST+2}", f"v_add_f32 v{vST+1}, v{vST+1}, v{vST+3}"] + fin[:18]
            tail += ["s_waitcnt lgkmcnt(0)", "s_barrier"] + [f"ds_read_b128 {vr(vCW+4*t)}, v{vL16} offset:{t*KB}" for t in range(3)] + fin[18:]
            tail += f"s_lshl_b32 s{sCc}, s{sA}, 18\ns_lshl_b32 s{sT1}, s{sRB}, 11\ns_add_u32 s{sCc}, s{sCc}, s{sT1}".split('\n')
            tail += f"s_mul_i32 s{sB}, s{sRB}, {112*KB}\ns_lshl_b32 s{sT1}, s{sA}, 11\ns_add_u32 s{sB}, s{sB}, s{sT1}".split('\n')
            G.ex = 196
            tail += ex_addr(G.ex)
            assert not side
            n_ = -(-len(tail) // 12)
            side = [lambda c=tail[i:i+n_]: [k(x) for x in c] for i in range(0, len(tail), n_)]
        for b in range(12):
            ks = 4*j + b // 3; t = b % 3
            acc = vr(vACC + 16*t, 16); w = ar(48*(j & 1) + 4*b); x = vr(vX + 4*ks)
            A, B = (x, w) if t == 1 else (w, x)
            k(f"v_mfma_f32_32x32x16_bf16 {acc}, {A}, {B}, {'0' if ks == 0 else acc}")
            if ks == 0 and t == 0: mark(k, 'm0')
            for _ in range(3):
                if rl:
                    t_ = k.lg(rl.pop(0)); nr += 1
                    if nr == 10: t10 = t_
            if side: side.pop(0)()
            if len(side) > 11 - b: side.pop(0)()
        if j < 7:
            assert not rl
            k.wait(lg=t10)
            dots(j + 1)
    while side: side.pop(0)()
    mark(k, 'loop')
    k.wait_all(vm=False)
    for t in range(3):
        c = vCW + 4*t
        acc = vr(vACC + 16*t, 16)
        A, B = (vr(vEXT), vr(c)) if t == 1 else (vr(c), vr(vEXT))
        k(f"v_mfma_f32_32x32x16_bf16 {acc}, {A}, {B}, {acc}")
    t_ = None
    for x in qk_tile(vACC, KVF(0), vRS, " sc1", 204) + v_tile(vACC+16, 0, vR, 212) + ex_kv(204, 212):
        if x.startswith('buffer'): t_ = k.vm(x)
        elif x.startswith('ds_'): k.lg(x)
        else: k(x)
    q_out(k, vACC + 32, vRS + 1, 232, vT)
    mark(k, 'st')
    return t_, None

def ph_qkv0k(k, late):
    vX, vACC, vST, vEXT, vRS, vT, vR = 16, 144, 192, 8, 6, 224, 232
    vXA, vWA, vXR, vTR, vTW, vCS, vCW, vONE = 10, 12, 196, 200, 202, 204, 208, 220
    sXS, sWR, sXL, sWL = 60, 56, sD, sE
    rb_128(k)
    k(f"s_and_b32 s{sA}, s{sC}, 15")
    k(f"v_bfe_u32 v{vXA}, v0, 3, 3\nv_lshlrev_b32 v{vXA}, 10, v{vXA}\nv_and_b32 v13, 7, v0\nv_bfe_u32 v14, v0, 4, 2\nv_xor_b32 v13, v13, v14")
    k(f"v_lshlrev_b32 v13, 4, v13\nv_add_u32 v{vXA}, v{vXA}, v13\nv_xor_b32 v{vXA+1}, 64, v{vXA}")
    k(f"v_bfe_u32 v{vWA}, v0, 2, 4\nv_mul_u32_u24 v{vWA}, 3072, v{vWA}\nv_and_b32 v13, 3, v0\nv_lshlrev_b32 v13, 4, v13\nv_add_u32 v{vWA}, v{vWA}, v13")
    if DIAG_W: k(f"v_bfe_u32 v{vWA}, v0, 3, 3\nv_mul_u32_u24 v{vWA}, 6144, v{vWA}\nv_and_b32 v13, 7, v0\nv_lshlrev_b32 v13, 4, v13\nv_add_u32 v{vWA}, v{vWA}, v13\ns_and_b32 s{sA}, s{sA}, 14")
    k(f"s_lshl_b32 s{sX}, s{sRB}, 15")
    k(f"s_mul_i32 s{sX2}, s{sW}, 49152\ns_lshl_b32 s{sT0}, s{sA}, 6\ns_add_u32 s{sX2}, s{sX2}, s{sT0}")
    if DIAG_W: k(f"s_and_b32 s{sA}, s{sG}, 1\ns_lshl_b32 s{sA}, s{sA}, 3\ns_and_b32 s{sT0}, s{sC}, 7\ns_add_u32 s{sA}, s{sA}, s{sT0}")
    k(f"s_lshl_b32 s{sXL}, s{sW}, 14\ns_add_u32 s{sXL}, s{sXL}, {96*KB}\ns_lshl_b32 s{sWL}, s{sW}, 11")
    k("s_waitcnt lgkmcnt(0)")
    if Q0_MARKS: mark(k, 'karg')
    k(f"s_mov_b32 s{sWR}, s64\ns_and_b32 s{sWR+1}, s65, 0xffff\ns_mov_b32 s{sWR+2}, {512*3072}\ns_mov_b32 s{sWR+3}, 0x20000")
    k(f"s_and_b32 s{sXS+1}, s{sXS+1}, 0xffff\ns_mov_b32 s{sXS+2}, {2*MB}\ns_mov_b32 s{sXS+3}, 0x20000")
    ct = {}; cn = {j: 0 for j in range(8)}
    k(f"s_lshl_b32 s{sCc}, s{sC4}, 2\ns_lshr_b32 s{sT3}, s{sC}, {Q0_RSH}\ns_add_u32 s{sCc}, s{sCc}, s{sT3}\ns_add_u32 s{sCc}, s{sCc}, s{sG}")
    def rot(j):
        k(f"s_add_u32 s{sT3}, s{sCc}, {j}\ns_and_b32 s{sT3}, s{sT3}, {7 if Q0_ROT else 0}")
        if not Q0_ROT: k(f"s_mov_b32 s{sT3}, {j}")
        k(f"s_lshl_b32 s{sS0}, s{sT3}, 7\ns_add_u32 s{sS0}, s{sS0}, s{sX}")
        k(f"s_mul_i32 s{sS1}, s{sT3}, {4*49152}\ns_add_u32 s{sS1}, s{sS1}, s{sX2}")
    def ldW(j, t):
        k(f"s_add_u32 m0, s{sWL}, {(8*j + t)*KB}\ns_add_u32 s{sT2}, s{sS1}, {(t+1)*1024}")
        ct[j] = k.vm(f"buffer_load_dwordx4 v{vWA}, {srd(sWR)}, s{sT2} offen lds"); cn[j] += 1
    def ldQ(j):
        k(f"s_add_u32 s{sT3}, s{sCc}, {j}\ns_and_b32 s{sT3}, s{sT3}, 7\ns_mul_i32 s{sT3}, s{sT3}, {4*49152}\ns_add_u32 m0, s{sW1K}, {(64 + 4*j)*KB}\ns_add_u32 s{sT2}, s{sT3}, s{sX2}")
        ct['q'] = k.vm(f"buffer_load_dwordx4 v{vWA}, {srd(sWR)}, s{sT2} offen lds")
    def ldX(j, i):
        if i == 0: rot(j)
        k(f"s_add_u32 m0, s{sXL}, {(j & 3)*4*KB + i*KB}\ns_add_u32 s{sT2}, s{sS0}, {i*8192}")
        ct[j] = k.vm(f"buffer_load_dwordx4 v{vXA + (i & 1)}, {srd(sXS)}, s{sT2} offen lds"); cn[j] += 1
    def chunk_loads(j):
        return [lambda i=i: ldX(j, i) for i in range(4)] + [lambda t=t: ldW(j, t) for t in range(2)]
    for f in chunk_loads(0): f()
    if Q0_MARKS: mark(k, 'up0')
    late(k)
    pack_decode(k)
    k(f"s_cmp_eq_u32 s{sW}, 0\ns_cselect_b64 s[90:91], s[68:69], s[70:71]")
    k(f"s_cmp_eq_u32 s{sW}, 2\ns_cselect_b64 s[90:91], s[72:73], s[90:91]")
    k(f"s_cmp_eq_u32 s{sW}, 3\ns_cselect_b64 s[90:91], s[66:67], s[90:91]\ns_cselect_b32 s{sT0}, 16, 56")
    k(f"s_mul_i32 s{sT1}, s{sT0}, s{sU}\ns_sub_u32 s{sT0}, s{sT0}, 1")
    k(f"v_and_b32 v254, 63, v0\nv_min_u32 v254, s{sT0}, v254\nv_add_u32 v254, s{sT1}, v254\nv_lshlrev_b32 v254, 7, v254")
    pk = G.pk = Pack(k)
    k(f"s_and_b32 s{sT0}, s{sC}, 7\ns_and_b32 s{sT1}, s{sC}, 15")
    k("v_and_b32 v13, 15, v0\nv_min_u32 v14, 13, v13")
    k(f"s_lshr_b32 s{sT2}, s{sT0}, 1\ns_add_u32 s{sT2}, s{sT2}, 176\nv_lshl_add_u32 v252, v14, 2, s{sT2}")
    k(f"s_mul_i32 s{sT2}, s{sT1}, 7\ns_add_u32 s{sT3}, s{sT2}, 6\ns_lshr_b32 s{sT2}, s{sT2}, 2\ns_lshr_b32 s{sT3}, s{sT3}, 2")
    k(f"v_lshrrev_b32 v14, 2, v13\nv_add_u32 v14, s{sT2}, v14\nv_min_u32 v14, s{sT3}, v14\nv_and_b32 v15, 3, v13\nv_mul_u32_u24 v15, 28, v15")
    k("v_add3_u32 v14, v14, v15, 48")
    k("v_and_b32 v15, 16, v0\nv_cmp_ne_u32 vcc, 0, v15\nv_cndmask_b32 v252, v252, v14, vcc")
    k(f"s_add_u32 s{sT0}, s{sT0}, 160\nv_and_b32 v14, 1, v13\nv_lshl_add_u32 v251, v14, 3, s{sT0}")
    k(f"s_lshr_b32 s{sT1}, s{sT1}, 1\nv_mul_u32_u24 v14, 24, v14\nv_lshrrev_b32 v15, 1, v13\nv_min_u32 v15, 2, v15\nv_lshlrev_b32 v15, 3, v15")
    k(f"v_add3_u32 v14, v14, v15, s{sT1}")
    k("v_cndmask_b32 v251, v251, v14, vcc")
    k(f"v_cmp_gt_u32 vcc, 512, v{vL16}\nv_cndmask_b32 v252, v251, v252, vcc\nv_lshlrev_b32 v252, 7, v252\nv_accvgpr_write_b32 a213, v252")
    if WARM:
        k("s_getpc_b64 s[88:89]")
        k.label("L_pcw")
        k(f"s_lshl_b32 s{sT0}, s{sC}, 1\ns_add_u32 s{sT0}, s{sT0}, s{sW}\ns_and_b32 s{sT0}, s{sT0}, 63\ns_lshl_b32 s{sT0}, s{sT0}, 10\ns_min_u32 s{sT0}, s{sT0}, L_end-L_pcw-1024")
        k(f"v_add_u32 v245, s{sT0}, v{vL16}")
        k(f"v_min_u32 v244, {(WS_PAGES-1)*16}, v{vL16}\nv_lshlrev_b32 v244, 17, v244")
        k(f"s_cmp_eq_u32 s{sW}, 1\ns_cselect_b64 s[88:89], s[{sAUX}:{sAUX+1}], s[88:89]")
        k(f"s_cmp_eq_u32 s{sW}, 0\ns_cselect_b64 s[88:89], s[{sWS}:{sWS+1}], s[88:89]\ns_cselect_b64 vcc, -1, 0")
        k("v_cndmask_b32 v245, v245, v244, vcc")
    if PK_Q0: pk.issue(*range(8))
    aSEL, aCS = 96, 100
    k(f"v_and_b32 v13, 31, v0\nv_bfe_u32 v14, v0, 1, 3\nv_bfe_u32 v15, v0, 5, 1\nv_xor_b32 v14, v14, v15\nv_lshlrev_b32 v14, 4, v14\nv_lshl_add_u32 v13, v13, 7, v14")
    vTQ = 200; vTR = 204
    tr_addr(k, 255, 14)
    for e in range(4):
        k(f"s_add_u32 s{sT0}, s{sW}, {e}\ns_and_b32 s{sT0}, s{sT0}, 3\ns_lshl_b32 s{sT1}, s{sT0}, 5\ns_lshl_b32 s{sT2}, s{sT0}, 11\ns_lshl_b32 s{sT0}, s{sT0}, 10\ns_add_u32 s{sT0}, s{sT0}, {64*KB}")
        k(f"v_xor_b32 v{vXR+e}, s{sT1}, v13\nv_add_u32 v{vXR+e}, s{sXL}, v{vXR+e}\nv_add_u32 v{vTR+e}, s{sT2}, v255\nv_add_u32 v{vTQ+e}, s{sT0}, v255")
    k(f"v_mov_b32 v{vONE}, 0x3f803f80\nv_add_u32 v255, s84, v255\nv_accvgpr_write_b32 a212, v255")
    XS = 40 * KB
    k(f"s_lshr_b32 s{sT0}, s{sW}, 1\ns_lshl_b32 s{sT0}, s{sT0}, 9\ns_and_b32 s{sT1}, s{sW}, 1\ns_lshl_b32 s{sT1}, s{sT1}, 3\ns_add_u32 s{sT0}, s{sT0}, s{sT1}")
    k(f"v_add_u32 v221, s{sT0}, v{vL16}")
    for r in range(192, 196): k(f"v_accvgpr_write_b32 a{r}, v{vONE}")
    k(f"v_and_b32 v13, 15, v0\nv_bfe_u32 v14, v0, 4, 1\nv_cmp_eq_u32 vcc, v13, v14\nv_cndmask_b32 v13, 0, v{vONE}, vcc")
    for r in range(4): k(f"v_accvgpr_write_b32 a{aSEL+r}, v13")
    for r in range(vST, vST+4): k(f"v_mov_b32 v{r}, 0")
    def reads(j):
        o = [f"ds_read_b128 {vr(vX + 16*j + 4*e)}, v{vXR+e} offset:{(j & 3)*4*KB}" for e in range(4)]
        for b in range(8):
            off = (8*j + (b & 1))*KB; r = 32*(j & 1) + 4*b
            o.append(f"ds_read_b64_tr_b16 {ar(r,2)}, v{vTR + (b >> 1)} offset:{off}")
            o.append(f"ds_read_b64_tr_b16 {ar(r+2,2)}, v{vTR + (b >> 1)} offset:{off+256}")
        return o
    def dots(j):
        for i in range(16):
            r = vX + 16*j + i
            k(f"v_dot2c_f32_bf16 v{vST + 2*(i & 1)}, v{vONE}, v{r}\nv_dot2c_f32_bf16 v{vST + 1 + 2*(i & 1)}, v{r}, v{r}")
    def csum(t, w, first):
        c = ar(aCS + 4*t)
        k(f"v_mfma_f32_16x16x32_bf16 {c}, {ar(aSEL)}, {w}, {'0' if first else c}")
    def extp(t, d):
        return [f"v_accvgpr_read_b32 v{d+2}, a{aCS+4*t}", f"v_accvgpr_read_b32 v{d+3}, a{aCS+4*t+1}", f"v_permlane16_swap_b32 v{d+2}, v{d+3}",
                f"v_cvt_pk_bf16_f32 v{d+1}, v{d+2}, 0", f"v_lshlrev_b32 v{d+3}, 16, v{d+1}",
                f"v_sub_f32 v{d+2}, v{d+2}, v{d+3}", f"v_cvt_pk_bf16_f32 v{d}, v{d+3}, v{d+2}",
                f"s_mov_b32 exec_hi, 0\nds_write_b64 v221, {vr(d,2)} offset:{XS + t*KB}\ns_mov_b64 exec, -1"]
    side = []
    for x in att_setup(0): k(x)
    for j in range(1, Q0_UP):
        for f in chunk_loads(j): f()
    if WARM: k.vm(f"global_load_dword v255, v245, s[88:89]")
    k.wait(vm=ct[0])
    k("s_barrier")
    mark(k, 'd0')
    rl = reads(0)
    for x in rl[:4]: t4 = k.lg(x)
    for x in rl[4:]: k.lg(x)
    k.wait(lg=t4)
    dots(0)
    QO = [4*c for c in range(8)] + [4*c + e for c in range(8) for e in (1, 2, 3)]
    def qread(n_):
        r = 64 + 4*(n_ % 8); ks = QO[n_]
        k.lg(f"ds_read_b64_tr_b16 {ar(r,2)}, v{vTQ + (ks & 3)} offset:{(ks >> 2)*4*KB}")
        return k.lg(f"ds_read_b64_tr_b16 {ar(r+2,2)}, v{vTQ + (ks & 3)} offset:{(ks >> 2)*4*KB+256}")
    qt = {}
    for j in range(8):
        for c_ in Q0_SCHED[j]:
            assert c_ - 4 <= j
            side += chunk_loads(c_)
        if j == 1: side.append(lambda: k(f"s_add_u32 s{sTAG}, s{sTAG}, 0x7f4a7c15\ns_addc_u32 s{sTAG+1}, s{sTAG+1}, 0x9e3779b9"))
        side += [lambda c=c: ldQ(c) for c in range(8) if Q0K_Q[c] == j]
        assert min(PK_AT) >= 3
        side += [lambda i=i: pk.issue(i) for i in range(8) if PK_AT[i] == j]
        k.wait_all(vm=False)
        rl = []
        if j < 7:
            assert cn[j+1] == 6
            k.wait(vm=ct[j+1]); k("s_barrier")
            if j in Q0_MARKJ: mark(k, f'c{j+1}')
            rl = reads(j + 1)
        else:
            assert not side
            k.wait(vm=ct['q']); k("s_barrier")
            G.ex = 212
            for t in range(2): csum(t, ar(32 + 4*t), False)
            fin = fin_stats(vST, vEXT, vRS)[NTREE:] + qkv_consts(vT, vRS, vR)
            tail = [f"v_add_f32 v{vST}, v{vST}, v{vST+2}", f"v_add_f32 v{vST+1}, v{vST+1}, v{vST+3}"] + fin[:6] + extp(0, 204) + extp(1, 208) + fin[6:24]
            tail += ["s_waitcnt lgkmcnt(0)", "s_barrier", f"ds_read_b128 {vr(204)}, v{vL16} offset:{XS}", f"ds_read_b128 {vr(208)}, v{vL16} offset:{XS+KB}"] + fin[24:]
            tail += f"s_lshl_b32 s{sCc}, s{sA}, 18\ns_lshl_b32 s{sT1}, s{sRB}, 11\ns_add_u32 s{sCc}, s{sCc}, s{sT1}".split('\n')
            n_ = -(-len(tail) // 8)
            side = [lambda c=tail[i:i+n_]: [k(x) for x in c] for i in range(0, len(tail), n_)]
        t4 = None; nr = 0
        for b in range(8):
            ks = 4*j + b // 2; t = b % 2
            acc = vr(vACC + 16*t, 16); w = ar(32*(j & 1) + 4*b); x = vr(vX + 4*ks)
            A, B = (x, w) if t == 1 else (w, x)
            k(f"v_mfma_f32_32x32x16_bf16 {acc}, {A}, {B}, {'0' if ks == 0 else acc}")
            if ks == 0 and t == 0: mark(k, 'm0')
            for _ in range(3):
                if rl:
                    t_ = k.lg(rl.pop(0)); nr += 1
                    if nr == 4: t4 = t_
            if j < 7 and b < 2: csum(t, w, ks == 0)
            if side: side.pop(0)()
            if len(side) > 7 - b: side.pop(0)()
        while side: side.pop(0)()
        if j < 7:
            assert not rl
            k.wait(lg=t4)
            dots(j + 1)
    mark(k, 'loop')
    E = 204
    for n_ in range(4): qt[n_] = qread(n_)
    k.wait(lg=qt[0] - 2)
    k("s_waitcnt lgkmcnt(8)")
    work = [f"v_mfma_f32_32x32x16_bf16 {vr(vACC,16)}, {vr(E)}, {vr(vEXT)}, {vr(vACC,16)}",
             f"v_mfma_f32_32x32x16_bf16 {vr(vACC+16,16)}, {vr(vEXT)}, {vr(E+4)}, {vr(vACC+16,16)}"] + ex_addr(G.ex)
    work += qk_tile(vACC, KVF(0), vRS, " sc1", 192) + v_tile(vACC+16, 0, vR, E) + ["#kv"] + ex_kv(192, E)
    work += [f"#pk{i}" for i in range(8) if PK_AT[i] == 8]
    st = {}
    def put(x):
        if x == '#kv': st['kv'] = st['t']
        elif x.startswith('#pk'): pk.issue(int(x[3:]))
        elif x.startswith('buffer'): st['t'] = k.vm(x)
        elif x.startswith('ds_'): k.lg(x)
        else: k(x)
    for _ in range(Q0K_LEAD): put(work.pop(0))
    acc = vr(vACC + 32, 16)
    for ks in range(32):
        w = ar(64 + 4*(ks % 8))
        k.wait(lg=qt[ks])
        k(f"v_mfma_f32_32x32x16_bf16 {acc}, {w}, {vr(vX + 4*QO[ks])}, {'0' if ks == 0 else acc}")
        if ks + 4 < 32: qt[ks + 4] = qread(ks + 4)
        if ks < 8: csum(2, w, ks == 0)
        if ks == 9: work += extp(2, 240)
        for _ in range(Q0K_EPI):
            if work: put(work.pop(0))
        if ks in Q0_MARKQ: mark(k, f'q{ks}')
        if ks == Q0K_FLAG:
            assert not work
            k.wait_all(vm=False)
            kv_flag(k, 0, st['kv'])
            te = k.lg(f"ds_read_b128 {vr(240)}, v{vL16} offset:{XS+2*KB}")
    k.wait(lg=te)
    k(f"v_mfma_f32_32x32x16_bf16 {acc}, {vr(240)}, {vr(vEXT)}, {acc}")
    q_out(k, vACC + 32, vRS + 1, 232, vT)
    mark(k, 'st')
    return st['kv'], None

def ph_qkv0g(k, late):
    vX, vACC, vST, vEXT, vRS, vT, vR = 16, 144, 192, 8, 6, 224, 232
    vXA, vWA, vXR, vTR, vCW, vG = 10, 12, 224, 228, 192, 192
    aCS = 96
    sXS, sWR, sXL, sWL = 60, 56, sD, sE
    rb_128(k)
    k(f"s_and_b32 s{sA}, s{sC}, 15")
    k(f"v_bfe_u32 v{vXA}, v0, 3, 3\nv_lshlrev_b32 v{vXA}, 10, v{vXA}\nv_and_b32 v13, 7, v0\nv_bfe_u32 v14, v0, 4, 2\nv_xor_b32 v13, v13, v14")
    k(f"v_lshlrev_b32 v13, 4, v13\nv_add_u32 v{vXA}, v{vXA}, v13\nv_xor_b32 v{vXA+1}, 64, v{vXA}")
    k(f"v_bfe_u32 v{vWA}, v0, 2, 4\nv_mul_u32_u24 v{vWA}, 3072, v{vWA}\nv_and_b32 v13, 3, v0\nv_lshlrev_b32 v13, 4, v13\nv_add_u32 v{vWA}, v{vWA}, v13")
    if DIAG_W: k(f"v_bfe_u32 v{vWA}, v0, 3, 3\nv_mul_u32_u24 v{vWA}, 6144, v{vWA}\nv_and_b32 v13, 7, v0\nv_lshlrev_b32 v13, 4, v13\nv_add_u32 v{vWA}, v{vWA}, v13\ns_and_b32 s{sA}, s{sA}, 14")
    k(f"s_lshl_b32 s{sX}, s{sRB}, 15")
    k(f"s_mul_i32 s{sX2}, s{sW}, 49152\ns_lshl_b32 s{sT0}, s{sA}, 6\ns_add_u32 s{sX2}, s{sX2}, s{sT0}")
    if DIAG_W: k(f"s_and_b32 s{sA}, s{sG}, 1\ns_lshl_b32 s{sA}, s{sA}, 3\ns_and_b32 s{sT0}, s{sC}, 7\ns_add_u32 s{sA}, s{sA}, s{sT0}")
    k(f"s_lshl_b32 s{sXL}, s{sW}, 14\ns_add_u32 s{sXL}, s{sXL}, {96*KB}\ns_mul_i32 s{sWL}, s{sW}, 3072")
    k("s_waitcnt lgkmcnt(0)")
    if Q0_MARKS: mark(k, 'karg')
    k(f"s_mov_b32 s{sWR}, s64\ns_and_b32 s{sWR+1}, s65, 0xffff\ns_mov_b32 s{sWR+2}, {512*3072}\ns_mov_b32 s{sWR+3}, 0x20000")
    k(f"s_and_b32 s{sXS+1}, s{sXS+1}, 0xffff\ns_mov_b32 s{sXS+2}, {2*MB}\ns_mov_b32 s{sXS+3}, 0x20000")
    ct = {}; cn = {j: 0 for j in range(8)}
    k(f"s_lshl_b32 s{sCc}, s{sC4}, 2\ns_lshr_b32 s{sT3}, s{sC}, {Q0_RSH}\ns_add_u32 s{sCc}, s{sCc}, s{sT3}\ns_add_u32 s{sCc}, s{sCc}, s{sG}")
    def rot(j):
        k(f"s_add_u32 s{sT3}, s{sCc}, {j}\ns_and_b32 s{sT3}, s{sT3}, {7 if Q0_ROT else 0}")
        if not Q0_ROT: k(f"s_mov_b32 s{sT3}, {j}")
        k(f"s_lshl_b32 s{sS0}, s{sT3}, 7\ns_add_u32 s{sS0}, s{sS0}, s{sX}")
        k(f"s_mul_i32 s{sS1}, s{sT3}, {4*49152}\ns_add_u32 s{sS1}, s{sS1}, s{sX2}")
    def ldW(j, t):
        k(f"s_add_u32 m0, s{sWL}, {(12*j + t)*KB}\ns_add_u32 s{sT2}, s{sS1}, {((t+1) % 3)*1024}")
        ct[j] = k.vm(f"buffer_load_dwordx4 v{vWA}, {srd(sWR)}, s{sT2} offen lds"); cn[j] += 1
    def ldX(j, i):
        if i == 0: rot(j)
        k(f"s_add_u32 m0, s{sXL}, {(j & 3)*4*KB + i*KB}\ns_add_u32 s{sT2}, s{sS0}, {i*8192}")
        ct[j] = k.vm(f"buffer_load_dwordx4 v{vXA + (i & 1)}, {srd(sXS)}, s{sT2} offen lds"); cn[j] += 1
    def chunk_loads(j):
        return [lambda i=i: ldX(j, i) for i in range(4)] + [lambda t=t: ldW(j, t) for t in range(3)]
    rowmajor_addr(k, 236, sT0)
    k.vm(f"buffer_load_dwordx4 {vr(vG)}, v236, {srd(sXS)}, s{sT0} offen")
    tres = k.vm(f"buffer_load_dwordx4 {vr(vG+4)}, v236, {srd(sXS)}, s{sT0} offen offset:32")
    for f in chunk_loads(0): f()
    if Q0_MARKS: mark(k, 'up0')
    late(k)
    pack_decode(k)
    k(f"s_cmp_eq_u32 s{sW}, 0\ns_cselect_b64 s[90:91], s[68:69], s[70:71]")
    k(f"s_cmp_eq_u32 s{sW}, 2\ns_cselect_b64 s[90:91], s[72:73], s[90:91]")
    k(f"s_cmp_eq_u32 s{sW}, 3\ns_cselect_b64 s[90:91], s[66:67], s[90:91]\ns_cselect_b32 s{sT0}, 16, 56")
    k(f"s_mul_i32 s{sT1}, s{sT0}, s{sU}\ns_sub_u32 s{sT0}, s{sT0}, 1")
    k(f"v_and_b32 v254, 63, v0\nv_min_u32 v254, s{sT0}, v254\nv_add_u32 v254, s{sT1}, v254\nv_lshlrev_b32 v254, 7, v254")
    pk = G.pk = Pack(k)
    k(f"s_and_b32 s{sT0}, s{sC}, 7\ns_and_b32 s{sT1}, s{sC}, 15")
    k("v_and_b32 v13, 15, v0\nv_min_u32 v14, 13, v13")
    k(f"s_lshr_b32 s{sT2}, s{sT0}, 1\ns_add_u32 s{sT2}, s{sT2}, 176\nv_lshl_add_u32 v252, v14, 2, s{sT2}")
    k(f"s_mul_i32 s{sT2}, s{sT1}, 7\ns_add_u32 s{sT3}, s{sT2}, 6\ns_lshr_b32 s{sT2}, s{sT2}, 2\ns_lshr_b32 s{sT3}, s{sT3}, 2")
    k(f"v_lshrrev_b32 v14, 2, v13\nv_add_u32 v14, s{sT2}, v14\nv_min_u32 v14, s{sT3}, v14\nv_and_b32 v15, 3, v13\nv_mul_u32_u24 v15, 28, v15")
    k("v_add3_u32 v14, v14, v15, 48")
    k("v_and_b32 v15, 16, v0\nv_cmp_ne_u32 vcc, 0, v15\nv_cndmask_b32 v252, v252, v14, vcc")
    k(f"s_add_u32 s{sT0}, s{sT0}, 160\nv_and_b32 v14, 1, v13\nv_lshl_add_u32 v251, v14, 3, s{sT0}")
    k(f"s_lshr_b32 s{sT1}, s{sT1}, 1\nv_mul_u32_u24 v14, 24, v14\nv_lshrrev_b32 v15, 1, v13\nv_min_u32 v15, 2, v15\nv_lshlrev_b32 v15, 3, v15")
    k(f"v_add3_u32 v14, v14, v15, s{sT1}")
    k("v_cndmask_b32 v251, v251, v14, vcc")
    k(f"v_cmp_gt_u32 vcc, 512, v{vL16}\nv_cndmask_b32 v252, v251, v252, vcc\nv_lshlrev_b32 v252, 7, v252\nv_accvgpr_write_b32 a213, v252")
    if WARM:
        k("s_getpc_b64 s[88:89]")
        k.label("L_pcw")
        k(f"s_lshl_b32 s{sT0}, s{sC}, 1\ns_add_u32 s{sT0}, s{sT0}, s{sW}\ns_and_b32 s{sT0}, s{sT0}, 63\ns_lshl_b32 s{sT0}, s{sT0}, 10\ns_min_u32 s{sT0}, s{sT0}, L_end-L_pcw-1024")
        k(f"v_add_u32 v245, s{sT0}, v{vL16}")
        k(f"v_min_u32 v244, {(WS_PAGES-1)*16}, v{vL16}\nv_lshlrev_b32 v244, 17, v244")
        k(f"s_cmp_eq_u32 s{sW}, 1\ns_cselect_b64 s[88:89], s[{sAUX}:{sAUX+1}], s[88:89]")
        k(f"s_cmp_eq_u32 s{sW}, 0\ns_cselect_b64 s[88:89], s[{sWS}:{sWS+1}], s[88:89]\ns_cselect_b64 vcc, -1, 0")
        k("v_cndmask_b32 v245, v245, v244, vcc")
    if PK_Q0: pk.issue(*range(8))
    k(f"v_and_b32 v13, 31, v0\nv_bfe_u32 v14, v0, 1, 3\nv_bfe_u32 v15, v0, 5, 1\nv_xor_b32 v14, v14, v15\nv_lshlrev_b32 v14, 4, v14\nv_lshl_add_u32 v13, v13, 7, v14")
    tr_addr(k, 255, 14)
    for e in range(4):
        k(f"s_add_u32 s{sT0}, s{sW}, {e}\ns_and_b32 s{sT0}, s{sT0}, 3\ns_lshl_b32 s{sT1}, s{sT0}, 5\ns_mul_i32 s{sT0}, s{sT0}, 3072")
        k(f"v_xor_b32 v{vXR+e}, s{sT1}, v13\nv_add_u32 v{vXR+e}, s{sXL}, v{vXR+e}")
        k(f"v_add_u32 v{vTR+e}, s{sT0}, v255\nv_add_u32 v{vTR+4+e}, {48*KB}, v{vTR+e}")
    k(f"v_mov_b32 v14, 0x3f803f80\nv_add_u32 v255, s84, v255\nv_accvgpr_write_b32 a212, v255")
    for r in range(192, 196): k(f"v_accvgpr_write_b32 a{r}, v14")
    def reads(j):
        o = []
        for e in range(4):
            o.append(f"ds_read_b128 {vr(vX + 16*j + 4*e)}, v{vXR+e} offset:{(j & 3)*4*KB}")
            for t in range(3):
                off = (12*(j & 3) + t)*KB; r = 48*(j & 1) + 4*(3*e + t)
                o.append(f"ds_read_b64_tr_b16 {ar(r,2)}, v{vTR + 4*(j >> 2) + e} offset:{off}")
                o.append(f"ds_read_b64_tr_b16 {ar(r+2,2)}, v{vTR + 4*(j >> 2) + e} offset:{off+256}")
        return o
    side = []
    if Q0_MARKS: mark(k, 'alu')
    for j in range(1, Q0_UP):
        for f in chunk_loads(j): f()
    if WARM and WARM_AT == 1: k.vm(f"global_load_dword v255, v245, s[88:89]")
    if Q0_MARKS: mark(k, 'iss')
    k.wait(vm=ct[0])
    k("s_barrier")
    mark(k, 'd0')
    for x in reads(0): k.lg(x)
    U = vG + 8
    st_ = res_unpack(U, vG)
    st_ += [f"v_add_f32 v{vG}, v{U}, v{U+1}", f"v_mul_f32 v{vG+2}, v{U}, v{U}", f"v_add_f32 v{vG+1}, v{U+2}, v{U+3}", f"v_mul_f32 v{vG+3}, v{U+1}, v{U+1}",
            f"v_fmac_f32 v{vG+2}, v{U+2}, v{U+2}", f"v_fmac_f32 v{vG+3}, v{U+3}, v{U+3}"]
    for i in range(4, 16, 2):
        st_ += [f"v_add_f32 v{vG}, v{vG}, v{U+i}", f"v_fmac_f32 v{vG+2}, v{U+i}, v{U+i}", f"v_add_f32 v{vG+1}, v{vG+1}, v{U+i+1}", f"v_fmac_f32 v{vG+3}, v{U+i+1}, v{U+i+1}"]
    st_ += [f"v_add_f32 v{vG}, v{vG}, v{vG+1}", f"v_add_f32 v{vG+2}, v{vG+2}, v{vG+3}", f"v_mov_b32 v{vG+1}, v{vG}", f"v_mov_b32 v{vG+3}, v{vG+2}",
            f"v_permlane32_swap_b32 v{vG}, v{vG+1}", f"v_permlane32_swap_b32 v{vG+2}, v{vG+3}",
            f"v_add_f32 v{vG}, v{vG}, v{vG+1}", f"v_add_f32 v{vG+2}, v{vG+2}, v{vG+3}"]
    for x in st_[:Q0_ST0]: k(x)
    st_ = st_[Q0_ST0:]
    def gran():
        k(f"s_add_u32 s{sTAG}, s{sTAG}, 0x7f4a7c15\ns_addc_u32 s{sTAG+1}, s{sTAG+1}, 0x9e3779b9")
        k(f"v_mov_b32 v{vG+1}, s{sTAG}\nv_mov_b32 v{vG+3}, s{sTAG+1}")
        k(f"s_lshr_b32 s{sT0}, s{sDST}, 2\ns_add_u32 s{sT0}, s{sT0}, {SG}\ns_mov_b32 exec_hi, 0")
        k.vm(f"buffer_store_dwordx4 {vr(vG)}, v{vL16}, {srd(sWS)}, s{sT0} offen sc1")
        k("s_mov_b64 exec, -1")
        k(f"s_lshl_b32 s{sF}, s{sRB}, 13\ns_add_u32 s{sF}, s{sF}, {SG}\ns_add_u32 s{sB}, s{sF}, 4096")
    cmpg = []
    for i in range(8):
        cmpg += [f"v_xor_b32 v13, s{sTAG}, v{vG+4*i+1}", f"v_xor_b32 v14, s{sTAG+1}, v{vG+4*i+3}",
                 ("v_or_b32 v15, v13, v14" if i == 0 else "v_or3_b32 v15, v13, v14, v15")]
    apg = APoll(k, [f"buffer_load_dwordx4 {vr(vG+4*i)}, v{vL16}, {srd(sWS)}, s{sF if i < 4 else sB} offen offset:{(i & 3)*KB} sc1" for i in range(8)],
                "\n".join(cmpg + ["v_cmp_ne_u32 vcc, 0, v15"]))
    for j in range(8):
        if j == 0 and st_:
            n_ = -(-len(st_) // 8)
            side += [lambda c=st_[i:i+n_]: [k(x) for x in c] for i in range(0, len(st_), n_)]
        if j == 0: side.append(gran)
        for c_ in Q0_SCHED[j]:
            assert c_ - 4 <= j
            side += chunk_loads(c_)
        if WARM and WARM_AT == j + 2: side.append(lambda: k.vm(f"global_load_dword v255, v245, s[88:89]"))
        if j == Q0_GLD: side += [lambda x=x: setattr(apg, 't', k.vm(x)) for x in apg.loads]
        if PK_EARLY: side += [lambda i=i: pk.issue(i) for i in range(8) if PK_AT[i] == j]
        k.wait_all(vm=False)
        rl = []
        if j < 7:
            assert cn[j+1] == 7
            k.wait(vm=ct[j+1]); k("s_barrier")
            if j in Q0_MARKJ: mark(k, f'c{j+1}')
            rl = reads(j + 1)
        mm = [('c', t) for t in range(3)] + [('m', b) for b in range(12)]
        if j == 7:
            apg.check()
            tail = []
            n = 8
            while n > 1:
                h = n // 2
                for i in range(h):
                    tail += [f"v_add_f32 v{vG+4*i}, v{vG+4*i}, v{vG+4*(i+h)}", f"v_add_f32 v{vG+4*i+2}, v{vG+4*i+2}, v{vG+4*(i+h)+2}"]
                n = h
            tail += [f"v_mov_b32 v{vG+1}, v{vG+2}"]
            tail += f"s_lshr_b32 s{sT0}, s{sW}, 1\ns_lshl_b32 s{sT0}, s{sT0}, 9\ns_and_b32 s{sT1}, s{sW}, 1\ns_lshl_b32 s{sT1}, s{sT1}, 3\ns_add_u32 s{sT0}, s{sT0}, s{sT1}".split('\n')
            tail += [f"v_and_b32 v13, 0x1f0, v{vL16}", f"v_add_u32 v13, s{sT0}, v13"]
            C = vG + 8
            for t in range(3):
                tail += [f"v_accvgpr_read_b32 v14, a{aCS+16*t}", f"v_cvt_pk_bf16_f32 v{C+2*t+1}, v14, 0", f"v_lshlrev_b32 v15, 16, v{C+2*t+1}",
                         "v_sub_f32 v14, v14, v15", f"v_cvt_pk_bf16_f32 v{C+2*t}, v15, v14", f"ds_write_b64 v13, {vr(C+2*t,2)} offset:{t*KB}"]
            fin = fin_stats(vST, vEXT, vRS)[NTREE:] + qkv_consts(vT, vRS, vR)
            tail += fin[:18]
            tail += ["s_waitcnt lgkmcnt(0)", "s_barrier"] + [f"ds_read_b128 {vr(C+4*t)}, v{vL16} offset:{t*KB}" for t in range(3)] + fin[18:]
            tail += f"s_lshl_b32 s{sCc}, s{sA}, 18\ns_lshl_b32 s{sT1}, s{sRB}, 11\ns_add_u32 s{sCc}, s{sCc}, s{sT1}".split('\n')
            tail += f"s_mul_i32 s{sB}, s{sRB}, {112*KB}\ns_lshl_b32 s{sT1}, s{sA}, 11\ns_add_u32 s{sB}, s{sB}, s{sT1}".split('\n')
            n_ = -(-len(tail) // 15)
            side += [lambda c=tail[i:i+n_]: [k(x) for x in c] for i in range(0, len(tail), n_)]
        for p, (kind, b) in enumerate(mm):
            if kind == 'c':
                acc = ar(aCS + 16*b, 16)
                k(f"v_mfma_f32_32x32x16_bf16 {acc}, {ar(192)}, {ar(48*(j & 1) + 4*b)}, {'0' if j == 0 else acc}")
            else:
                ks = 4*j + b // 3; t = b % 3
                acc = vr(vACC + 16*t, 16); w = ar(48*(j & 1) + 4*b); x = vr(vX + 4*ks)
                A, B = (x, w) if t == 1 else (w, x)
                k(f"v_mfma_f32_32x32x16_bf16 {acc}, {A}, {B}, {'0' if ks == 0 else acc}")
            if j == 0 and p == 0: mark(k, 'm0')
            for _ in range(2):
                if rl: k.lg(rl.pop(0))
            if side and (j == 7 or p % 2 == 0 or 2 * len(side) > 15 - p): side.pop(0)()
            if len(side) > 14 - p: side.pop(0)()
        assert not rl
    while side: side.pop(0)()
    mark(k, 'loop')
    k.wait_all(vm=False)
    for t in range(3):
        c = vG + 8 + 4*t
        acc = vr(vACC + 16*t, 16)
        A, B = (vr(vEXT), vr(c)) if t == 1 else (vr(c), vr(vEXT))
        k(f"v_mfma_f32_32x32x16_bf16 {acc}, {A}, {B}, {acc}")
    t_ = None
    for x in qk_tile(vACC, KVF(0), vRS, " sc1", vX) + v_tile(vACC+16, 0, vR, vX+8) + qk_tile(vACC+32, QF, vRS+1, " sc1", vX+16):
        if x.startswith('buffer'): t_ = k.vm(x)
        else: k(x)
    mark(k, 'st')
    return t_, t_

def ph_qkv(k, L, ring, b0):
    vX, vACC, vST, vEXT, vRS, vT, vR = 16, 144, 192, 8, 6, 224, 232
    rb_128(k)
    k(f"s_and_b32 s{sA}, s{sC}, 15")
    k(f"s_lshl_b32 s{sX}, s{sRB}, 15\ns_add_u32 s{sX}, s{sX}, {XF}")
    set_lds_bases(k)
    QE = QKV_QE
    seq = [(ks, t) for ks in range(33) for t in ((0, 1, 2) if ks < QE else (0, 1))] + [(ks, 2) for ks in range(QE, 33)]
    ops = [dict(b=b0 + (2*ks + t if t < 2 else 66 + ks), bmin=b0, bmax=b0 + 98, xi=(ks if ks < 32 else None), x=(vr(vX+4*ks) if ks < 32 else vr(vEXT)),
                acc=vr(vACC+16*t, 16), swap=(t == 1), first=(ks == 0)) for ks, t in seq]
    xq = XLoader(k, 32, lambda i: vr(vX+4*i), lin_src(k))
    res = {}
    se = stats_emitters(k, vST, res)
    k(f"s_lshl_b32 s{sCc}, s{sA}, 18\ns_lshl_b32 s{sT1}, s{sRB}, 11\ns_add_u32 s{sCc}, s{sCc}, s{sT1}")
    k(f"s_mul_i32 s{sB}, s{sRB}, {112*KB}\ns_lshl_b32 s{sT1}, s{sA}, 11\ns_add_u32 s{sB}, s{sB}, s{sT1}")
    assert ring.issued == ring.total
    g = Gemm(k, ring, ops, {0})
    g.start()
    ring.issue_n(4)
    publish_local(k, G.tx)
    ring.issue_n(4)
    G.ex = 216
    su = [x.replace('v13', 'v246').replace('v14', 'v247') for x in att_setup(L)] + ex_addr(G.ex)
    su += [f"s_lshl_b32 s{sE}, s{sA}, 11", f"s_add_u32 s{sE}, s{sE}, s{sB}", f"s_add_u32 s{sE}, s{sE}, {HF + 32*KB}"]
    k(f"s_lshl_b32 s{sF}, s{sRB}, 7\ns_add_u32 s{sF}, s{sF}, {FLOC(L-1, 8)}")
    poll16(k)
    aps = stats_poll(k, FLOC(L-1,7) - FLOC(L-1,8))
    fin = fin_stats(vST, vEXT, vRS) + qkv_consts(vT, vRS, vR)
    full = qk_tile(vACC, KVF(L), vRS, " sc1", vST) + v_tile(vACC+16, L, vR, vST+16)
    alu_ = [x for x in full if x.startswith('v_')]
    glob = [x for x in full if not x.startswith('v_')]
    lo_ = [f"buffer_store_dwordx4 {vr(vST)}, v{vL16}, {srd(sWS)}, s{sE} offen",
           f"buffer_store_dwordx4 {vr(vST+4)}, v{vL16}, {srd(sWS)}, s{sE} offen offset:2048",
           f"buffer_store_dwordx4 {vr(vST+16)}, v{G.ex+6}, {srd(sWS)}, s{sE} offen offset:1024",
           f"buffer_store_dwordx4 {vr(vST+20)}, v{G.ex+6}, {srd(sWS)}, s{sE} offen offset:1536"]
    epi = []
    for q_ in range(4): epi += alu_[12*q_:12*q_+12] + ([lo_[q_]] if KV_LOC else [])
    epi += ["#loc"] + glob + ex_kv(vST, vST+16)
    st = dict(i=0, j=0, t=None, loc=None)
    def put(x):
        if x == '#loc': st['loc'] = st['t']
        elif x.startswith('buffer'): st['t'] = k.vm(x)
        elif x.startswith('ds_'): k.lg(x)
        else: k(x)
    def filler(m):
        if aps and m == 4: aps.issue()
        if m == 22:
            if aps: aps.check()
            for e in se: e()
        if m < 10 or m > 22:
            for _ in range(3 if m < 10 else 4):
                if su: k(su.pop(0))
        if 44 <= m < 64 + QE:
            assert not su
            if st['i'] == 0: k.wait(vm=res['t'])
            for _ in range(3):
                if st['i'] < len(fin): k(fin[st['i']]); st['i'] += 1
        if m >= 68 + QE:
            for _ in range(QKV_EPI):
                if st['j'] < len(epi): put(epi[st['j']]); st['j'] += 1
    g.run(xq, n0=8, filler=filler)
    while st['j'] < len(epi):
        put(epi[st['j']]); st['j'] += 1
    assert st['i'] == len(fin)
    if KV_LOC and QF_AT == 0: q_flag(k, L, st['loc'])
    q_out(k, vACC + 32, vRS + 1, vST + 8, vT)
    if KV_LOC and QF_AT == 1: q_flag(k, L, st['loc'])
    mark(k, 'st')
    return st['t'], st['loc']

def code_touch(k, vd, skip=0):
    if not CODE_TOUCH: return
    pc = k.newlabel('pc')
    k(f"s_getpc_b64 s[{sPC}:{sPC+1}]")
    k.label(pc)
    k(f"s_min_u32 s{sSPIN}, s{sCT}, L_end-{pc}-1024\ns_add_u32 s{sPC}, s{sPC}, s{sSPIN}\ns_addc_u32 s{sPC+1}, s{sPC+1}, 0")
    k.vm(f"global_load_dword v{vd}, v{vL16}, s[{sPC}:{sPC+1}] offset:{skip}")

def flag_touch(k, L, va, vd):
    if not FL_TOUCH: return
    k(f"v_bfe_u32 v{va}, v0, 3, 3\nv_lshlrev_b32 v{va}, 6, v{va}\nv_and_or_b32 v{va}, v0, 7, v{va}\nv_lshlrev_b32 v{va}, 7, v{va}")
    k(f"s_lshl_b32 s{sT3}, s{sG}, 10\ns_add_u32 s{sT3}, s{sT3}, {FLOC(L,0)}")
    k.vm(f"buffer_load_dword v{vd}, v{va}, {srd(sWS)}, s{sT3} offen sc1")

EX = 112 * KB
vK, vV, vIDX, vL128, vTX, vP2, vCP = 248, 249, 250, 251, 252, 253, 254
sOD, sLC, sTH, sTW, sFO, sF2, sKX = 64, 66, 72, 73, 79, 68, 69
def att_setup(L):
    o = f"""s_and_b32 s{sT0}, s{sC}, 15
s_lshl_b32 s{sF2}, s{sT0}, 11
s_add_u32 s{sF2}, s{sF2}, {FKV(L)}
s_lshl_b32 s{sT0}, s{sT0}, 1
s_and_b32 s{sT1}, s{sW}, 1
s_add_u32 s{sT0}, s{sT0}, s{sT1}
s_lshr_b32 s{sT1}, s{sW}, 1
s_lshl_b32 s{sKX}, s{sG}, 1
s_add_u32 s{sKX}, s{sKX}, s{sC4}
s_lshl_b32 s{sT2}, s{sKX}, 1
s_add_u32 s{sT2}, s{sT2}, s{sT1}
s_lshl_b32 s{sFO}, s{sT2}, 5
s_add_u32 s{sFO}, s{sFO}, s{sT0}
s_lshl_b32 s{sFO}, s{sFO}, 3
s_add_u32 s{sFO}, s{sFO}, {FLOC(L,0)}
s_mul_i32 s{sOD}, s{sT2}, {224*KB}
s_lshl_b32 s{sT3}, s{sT0}, 10
s_add_u32 s{sOD}, s{sOD}, s{sT3}
s_add_u32 s{sOD}, s{sOD}, {HF}
s_add_u32 s{sOD+1}, s{sOD}, {112*KB}
s_xor_b32 s{sT2}, s{sT2}, 2
s_mul_i32 s{sLC}, s{sT2}, {224*KB}
s_lshl_b32 s{sT3}, s{sT0}, 11
s_add_u32 s{sLC}, s{sLC}, s{sT3}
s_add_u32 s{sLC}, s{sLC}, {HF + 32*KB}
s_add_u32 s{sLC+1}, s{sLC}, {112*KB}
s_lshl_b32 s{sKX}, s{sKX}, 13
s_lshl_b32 s{sT0}, s{sT0}, 17
s_lshl_b32 s{sT1}, s{sT1}, 12
s_add_u32 s{sT0}, s{sT0}, s{sT1}
s_add_u32 s{sKX}, s{sKX}, s{sT0}
s_add_u32 s{sKX}, s{sKX}, {KVF(L)}
v_and_b32 v13, 0x33, v0
v_bfe_u32 v14, v0, 2, 1
v_lshl_or_b32 v13, v14, 3, v13
v_bfe_u32 v14, v0, 3, 1
v_lshl_or_b32 v13, v14, 2, v13
v_lshlrev_b32 v{vK}, 4, v13
v_and_b32 v13, 15, v0
v_lshlrev_b32 v{vP2}, 7, v13
v_bfe_u32 v14, v0, 5, 1
v_lshl_add_u32 v13, v14, 4, v13
v_lshlrev_b32 v{vV}, 4, v13
v_mov_b32 v{vIDX}, 0xdddddddd
v_lshlrev_b32 v{vL128}, 3, v{vL16}
v_and_b32 v13, 27, v0
v_cmp_eq_u32 vcc, 16, v13
v_mov_b32 v14, 0x3afe3f80
v_cndmask_b32 v{vCP}, 0, v14, vcc
s_lshl_b32 s{sT3}, s{sU}, 2
s_add_u32 s{sT3}, s{sT3}, s{sW}
s_mul_i32 s{sTH}, s{sT3}, {7*KB}
s_add_u32 s{sTH}, s{sTH}, {HF}
s_lshl_b32 s{sT0}, s{sT3}, 11
s_add_u32 s{sT0}, s{sT0}, {XF}
s_lshl_b32 s{sT1}, s{sT3}, 8
s_add_u32 s{sT1}, s{sT1}, {SX}
v_and_b32 v13, 0x780, v{vL128}
v_add_u32 v13, s{sT0}, v13
v_and_b32 v14, 0x80, v{vL128}
v_add_u32 v14, s{sT1}, v14
v_cmp_gt_u32 vcc, 512, v{vL16}
v_cndmask_b32 v{vTX}, v14, v13, vcc
s_lshl_b32 s{sTW}, s{sC4}, 2
s_add_u32 s{sTW}, s{sTW}, s{sW}
s_mul_i32 s{sTW}, s{sTW}, {TOUCH_KBS[L] * KB // 8}
s_add_u32 s{sTW}, s{sTW}, s{sSEG+1}
s_add_u32 s{sTW}, s{sTW}, {(PREFILL - 64)*KB}
s_and_b32 s{sCT}, s{sT3}, 31
s_lshl_b32 s{sCT}, s{sCT}, 10"""
    return o.split('\n')
def ex_addr(e):
    return [f"v_bfe_u32 v{e+6}, v0, 4, 1", f"v_lshl_add_u32 v{e+6}, v{e+6}, 11, v{vV}",
            f"s_mul_i32 s{sT3}, s{sW}, {6*KB}", f"s_add_u32 s{sT3}, s{sT3}, {EX}", f"v_add_u32 v{e}, s{sT3}, v{vL16}", f"v_add_u32 v{e+1}, s{sT3}, v{e+6}",
            f"s_lshr_b32 s{sT3}, s{sW}, 1", f"s_mul_i32 s{sT3}, s{sT3}, {12*KB}", f"s_and_b32 s{sT0}, s{sW}, 1", f"s_lshl_b32 s{sT0}, s{sT0}, 10",
            f"s_add_u32 s{sT2}, s{sT0}, {EX}", f"s_add_u32 s{sT1}, s{sT2}, s{sT3}", f"v_add_u32 v{e+2}, s{sT1}, v{vL16}",
            f"s_sub_u32 s{sT2}, s{sT2}, s{sT3}", f"v_add_u32 v{e+3}, s{sT2}, v{vL16}", f"s_add_u32 s{sT1}, s{sT1}, s{sT0}",
            f"v_add_u32 v{e+4}, s{sT1}, v{vK}", f"v_add_u32 v{e+5}, s{sT1}, v{vV}"]
def ex_kv(pK, pV):
    e = G.ex
    return [f"ds_write_b128 v{e}, {vr(pK)}", f"ds_write_b128 v{e}, {vr(pK+4)} offset:2048",
            f"ds_write_b128 v{e+1}, {vr(pV)} offset:1024", f"ds_write_b128 v{e+1}, {vr(pV+4)} offset:1536"]
def q_out(k, a, sc, p0, vT):
    init = [f"v_mfma_f32_32x32x16_bf16 {vr(16+16*q,16)}, {vr(vT+4)}, {vr(vT)}, 0" for q in range(4)]
    init2 = [f"v_mfma_f32_32x32x16_bf16 {vr(80+16*q,16)}, {vr(vT+4)}, {vr(vT)}, 0" for q in range(6)]
    k(f"v_mov_b32 v{vT}, 0")
    for x in init: k(x)
    k(f"v_mov_b32 v{vT}, v{vCP}")
    for half in range(2):
        p = p0 + 4*half
        for j in range(4):
            r = a + 8*half + 2*j
            k(f"v_mul_f32 v{r}, v{r}, v{sc}\nv_mul_f32 v{r+1}, v{r+1}, v{sc}\nv_cvt_pk_bf16_f32 v{p+j}, v{r}, v{r+1}")
            if init2: k(init2.pop(0))
        k.lg(f"ds_write_b128 v{G.ex}, {vr(p)} offset:{4096 + half*KB}")

def ph_att(k, L, ring, tkv, tloc):
    vO, vKV, vS0, aQ = 16, 80, 176, aWB
    NS = 4; NKV = 8
    vS = [vS0 + 16*i for i in range(NS)]
    sK = sB
    K = lambda t: vr(vKV + 12*(t % NKV))
    V = lambda t, u: vr(vKV + 12*(t % NKV) + 4 + 4*u)
    k.wait_all(vm=False)
    k("s_barrier")
    lt = {}
    lt['k0'] = k.lg(f"ds_read_b128 {K(0)}, v{G.ex+4}")
    for s in range(4):
        lt[s] = k.lg(f"ds_read_b128 {ar(aQ+4*s)}, v{G.ex + 2 + (s >> 1)} offset:{4096 + (s & 1)*6*KB + (12*KB if s >> 1 else 0)}")
    k(f"s_mov_b64 exec, s[{sMSK}:{sMSK+1}]")
    for t in range(2):
        for u in range(2): lt['v'] = k.lg(f"ds_read_b128 {V(t,u)}, v{G.ex+5} offset:{t*6*KB + KB + u*512}")
    k("s_mov_b64 exec, -1")
    lt['k1'] = k.lg(f"ds_read_b128 {K(1)}, v{G.ex+4} offset:{6*KB}")
    mark(k, 'pre')
    if L and KV_LOC and QF_AT == 2: q_flag(k, L, tloc)
    kt = {}
    def ldP(x):
        if x == 1 and L and KV_LOC: src = [(sLC, 0), (sLC + 1, 0)]
        else:
            k(f"s_xor_b32 s{sK}, s{sKX}, {x << 13}")
            src = [(sK, 0), (sK, 2*KB)]
        for z in range(2): k.vm(f"buffer_load_dwordx4 {K(2*x+z)}, v{vK}, {srd(sWS)}, s{src[z][0]} offen offset:{src[z][1]} sc1")
        k(f"s_mov_b64 exec, s[{sMSK}:{sMSK+1}]")
        for z in range(2):
            for u in range(2): t_ = k.vm(f"buffer_load_dwordx4 {V(2*x+z,u)}, v{vV}, {srd(sWS)}, s{src[z][0]} offen offset:{src[z][1] + KB + u*512} sc1")
        k("s_mov_b64 exec, -1")
        kt[2*x] = kt[2*x+1] = t_
    NT = ATT_NT
    steps = [(t, q) for t in range(32 - NT) for q in range(4)] + [(t, q) for q in (2, 3, 0, 1) for t in range(32 - NT, 32)]
    n = len(steps)
    LA = NS - 1
    def qk(i):
        t, q = steps[i]
        if t < 2: k.wait(lg=lt[q] if t == 0 else lt['k1'])
        else: k.wait(vm=kt[t])
        k(f"v_mfma_f32_32x32x16_bf16 {vr(vS[i % NS],16)}, {K(t)}, {ar(aQ+4*q)}, 0")
    def pv(i, u):
        t, q = steps[i]
        if t < 2: k.wait(lg=lt['v'])
        k(f"v_smfmac_f32_32x32x32_bf16 {vr(vO+16*q,16)}, {V(t,u)}, {vr(vS[i % NS]+8*u,8)}, v{vIDX}")
    for i in range(LA): qk(i)
    mark(k, 'm0')
    ring.limit = PREFILL
    jobs = {}
    def job(i, f, e=10): jobs.setdefault((i, e), []).append(f)
    ap2 = apoll1(k, vP2, 10, sF2)
    late_qk = set()
    if L and KV_LOC:
        def a1():
            k(f"s_xor_b32 s{sT0}, s{sRB}, 4\ns_and_b32 s{sT0}, s{sT0}, 6\ns_lshl_b32 s{sT1}, s{sG}, 4\ns_add_u32 s{sT1}, s{sT1}, s{sA}\ns_lshl_b32 s{sT1}, s{sT1}, 3")
            k(f"s_add_u32 s{sT1}, s{sT1}, s{sT0}\ns_lshl_b32 s{sT1}, s{sT1}, 3\ns_add_u32 s{sD}, s{sT1}, {FLOC(L-1,5)}\nv_and_b32 v12, 8, v0")
            ap1.issue()
        ap1 = apoll1(k, 12, 8, sD)
        job(A1_AT[0], a1, e=2 if A1_AT[0] else 3)
        job(A1_AT[1], lambda: (ap1.check(), ldP(1)))
        job(KVF_AT[L], lambda: (k.wait(lg=lt['k1']), kv_flag(k, L, tkv)))
        job(P2[L][0], ap2.issue)
        job(P2[L][1], lambda: (ap2.check(), ldP(2)))
        job(P2[L][1] + 1, lambda: ldP(3))
    else:
        if not (L == 0 and Q0K and Q0K_FLAG < 32): job(KVF_AT[L], lambda: (k.wait(lg=lt['k1']), kv_flag(k, L, tkv)))
        if L == 0:
            job(PKR_AT, lambda: G.pk.reads(*range(8)))
            for i in range(8): job(PKR_AT + 1 + i // 4, lambda i=i: G.pk.csum(i), e=(0, 4, 8, 13)[i % 4])
        job(P2[L][0], ap2.issue)
        if L == 0 and PK_WAIT:
            job(P2[L][1], lambda: (ap2.check(), ldP(1), ldP(2), ldP(3) if PK_WAIT > 1 else None, G.pk.stores(*range(8)), G.pk.ext()), e=15)
            if PK_WAIT == 1: job(P2[L][1] + 2, lambda: ldP(3))
        else:
            job(P2[L][1], lambda: (ap2.check(), ldP(1)))
            job(P2[L][1] + 1, lambda: ldP(2))
            job(P2[L][1] + 2, lambda: ldP(3))
        late_qk = set(range(8, 8 + LA))
    job(9, lambda: code_touch(k, 5))
    for x in range(4, 16): job(8*(x - 3) + (4 if x == 4 else 0), lambda x=x: ldP(x))
    NR = PREFILL // 16
    if L == 0:
        if PK_WAIT:
            job(PUB_AT, G.pk.pub); CHK_AT = PUB_AT + CHK_GAP
        else: CHK_AT = G.pk.schedule(job) + CHK_GAP
        apk = APoll(k, [f"buffer_load_dwordx2 v[10:11], v12, {srd(sWS)}, s{sX} offen offset:8 sc1"],
                    f"v_cmp_ne_u64 vcc, s[{sTAG}:{sTAG+1}], v[10:11]")
        def chk0():
            k(f"v_accvgpr_read_b32 v12, a213\ns_mov_b32 s{sX}, {FPK}")
            apk.issue()
        job(CHK_AT - 6, chk0)
        apx = APoll(k, [f"buffer_load_dwordx4 v[12:15], v11, {srd(sWS)}, s{sCc} offen sc1"],
                    f"v_cmp_ne_u64 vcc, s[{sTAG}:{sTAG+1}], v[14:15]")
        def mode0():
            k(f"v_and_b32 v11, 0xf80, v{vL128}\ns_lshl_b32 s{sCc}, s{sG}, 12\ns_add_u32 s{sCc}, s{sCc}, {FPK}")
            apx.issue()
        def mode():
            apx.check()
            k(f"s_xor_b32 s{sT2}, s{sTAG}, s{sXCC}")
            k(f"v_cmp_ne_u32 vcc, s{sT2}, v12")
            k(f"s_cmp_eq_u64 vcc, 0\ns_cselect_b32 s{sMODE}, 1, 0")
        job(81, mode0); job(95, mode)
        def chk():
            apk.check()
            k(f"s_and_b32 s{sT2}, s{sC}, 7\ns_lshl_b32 s{sT2}, s{sT2}, 1\ns_lshr_b32 s{sT3}, s{sW}, 1\ns_add_u32 s{sT2}, s{sT2}, s{sT3}")
            k(f"s_mul_i32 s{sT3}, s{sW}, {28*KB}\ns_add_u32 s{sT3}, s{sT3}, {WD}")
            k(f"s_mul_i32 s{sX}, s{sT2}, {112*KB}\ns_add_u32 s{sX}, s{sX}, s{sT3}")
            k(f"s_xor_b32 s{sT2}, s{sT2}, 1\ns_mul_i32 s{sX2}, s{sT2}, {112*KB}\ns_add_u32 s{sX2}, s{sX2}, s{sT3}")
        job(CHK_AT, chk)
        def wsrc(i):
            s_ = sX if i < 28 else sX2
            j = i % 28
            if j and (j & 3) == 0: k(f"s_add_u32 s{s_}, s{s_}, 4096")
            return s_, (j & 3) * KB
        if DN16:
            def wsrc(i):
                s_ = sX if i < 28 else sX2
                j = i % 28
                if j and (j & 3) == 0: k(f"s_add_u32 s{s_}, s{s_}, 4096")
                return s_, ((j >> 1) & 1) * 2048 + (j & 1) * 256
            wq = XLoader(k, 56, lambda i: ar(aWD + 16*((i % 28) >> 1) + 8*(i // 28) + 4*(i & 1)), wsrc, va=9)
            job(CHK_AT, lambda: k(f"v_and_b32 v9, 0xf0, v{vK}\nv_bfe_u32 v8, v0, 4, 2\nv_lshl_add_u32 v9, v8, 9, v9"))
        else:
            wq = XLoader(k, 56, lambda i: ar(aWD + 8*(i % 28) + 4*(i // 28)), wsrc)
        slots = [i for i in range(CHK_AT + 1, 112) if i % 8 in WD_SLOTS]
        work = [lambda: wq.issue_n(4)] * 14
        rw = [ring.issue16] * NR
        seq = []
        while work or rw:
            if work: seq.append(work.pop(0))
            if work: seq.append(work.pop(0))
            if rw: seq.append(rw.pop(0))
        assert len(seq) <= len(slots), (len(seq), len(slots))
        for i, f in zip(slots, seq): job(i, f)
    else:
        for j in range(NR): job(R1_AT + R1_STEP*j, ring.issue16)
    TL = TOUCH_LN; vT_ = vL128 if TL == 64 else 4
    def tch(sreg, j):
        def f():
            if j: k(f"s_add_u32 s{sreg}, s{sreg}, {TL*128}")
            elif TL < 64: k(f"v_and_b32 v4, {(TL-1)*128}, v{vL128}")
            k.vm(f"buffer_load_dword v5, v{vT_}, {srd(sWS)}, s{sreg} offen sc1")
        return f
    for j in range(-(-TOUCH_KBS[L] // TL)): job(TOUCH_AT[L] + j*TOUCH_STEP[L], tch(sTW, j))
    for j in range(-(-56 // TL)): job(TACTS[L] + j*TH_STEP, tch(sTH, j))
    job(TACTS[L] + 4, lambda: k.vm(f"buffer_load_dword v5, v{vTX}, {srd(sWS)}, 0 offen sc1"))
    job(CT_AT, lambda: code_touch(k, 5))
    SC = 136 * KB
    assert PREFILL <= 136
    def red_setup():
        k(f"s_mul_i32 s{sT0}, s{sW}, {6*KB}\ns_add_u32 s{sT0}, s{sT0}, {SC}\nv_add_u32 v13, s{sT0}, v{vL16}")
        k(f"s_xor_b32 s{sT0}, s{sW}, 2\ns_mul_i32 s{sT0}, s{sT0}, {6*KB}\ns_add_u32 s{sT0}, s{sT0}, {SC}\nv_add_u32 v10, s{sT0}, v{vL16}")
    job(112, red_setup)
    def res_early():
        if L == 0:
            rowmajor_addr(k, 14, sT0)
            k.vm(f"buffer_load_dwordx4 {vr(240)}, v14, {srd(60)}, s{sT0} offen")
            k.vm(f"buffer_load_dwordx4 {vr(244)}, v14, {srd(60)}, s{sT0} offen offset:32")
        else: load_res(k, 240)
    if RES_AT: job(RES_AT, res_early)
    def red_write(s):
        z = s & 1
        k.lg(f"ds_write_b128 v10, {vr(vO+16*s)} offset:{z*3*KB}")
        k.lg(f"ds_write_b128 v10, {vr(vO+16*s+4)} offset:{z*3*KB+KB}")
        k.lg(f"ds_write_b32 v10, v{vO+16*s+8} offset:{z*3*KB+2*KB}")
    for i in range(128):
        if steps[i][0] == 31 and steps[i][1] >= 2: job(i + 2, lambda s=steps[i][1]: red_write(s), e=2)
    tl = []
    def red_read():
        k.wait_all()
        k("s_barrier")
        for z in range(2):
            b = vO + 32 + 16*z
            k.lg(f"ds_read_b32 v{b+8}, v13 offset:{z*3*KB+2*KB}")
            k.lg(f"ds_read_b128 {vr(b)}, v13 offset:{z*3*KB}")
            tl.append(k.lg(f"ds_read_b128 {vr(b+4)}, v13 offset:{z*3*KB+KB}"))
    job(127 if NT == 1 else 126, red_read)
    for i, (t, q) in enumerate(steps):
        s = vS[i % NS]
        if i in ATT_MARKS: mark(k, f's{i}')
        if i == 8 and late_qk:
            pv(7, 1)
            for j in sorted(late_qk): qk(j)
        for e in range(16):
            if e == 2 and i > 0 and not (i == 8 and late_qk): pv(i-1, 1)
            if e == 6 and i + LA < n and i + LA not in late_qk: qk(i + LA)
            if e == 10: pv(i, 0)
            for f in jobs.pop((i, e), []): f()
            k(f"v_exp_f32 v{s+e}, v{s+e}")
    pv(n-1, 1)
    assert not jobs, jobs.keys()
    assert ring.issued == PREFILL
    mark(k, 'loop')
    for z in range(2):
        o = vO + 16*z; b = vO + 32 + 16*z
        k.wait(lg=tl[z])
        k(f"v_add_f32 v{o+8}, v{o+8}, v{b+8}\nv_rcp_f32 v{o+9}, v{o+8}")
        for i in range(8): k(f"v_add_f32 v{o+i}, v{o+i}, v{b+i}")
        for j in range(4):
            k(f"v_mul_f32 v{o+2*j}, v{o+2*j}, v{o+9}\nv_mul_f32 v{o+2*j+1}, v{o+2*j+1}, v{o+9}")
            k(f"v_cvt_pk_bf16_f32 v{o+12+j}, v{o+2*j}, v{o+2*j+1}")
        ts = k.vm(f"buffer_store_dwordx4 {vr(o+12)}, v{vL16}, {srd(sWS)}, s{sOD+z} offen")
    mark(k, 'f_st')
    fb = k.newlabel('fb'); back = k.newlabel('fbret')
    LO, HI = f2u(2.0**-60), f2u(2.0**60)
    for z in range(2):
        o = vO + 16*z
        k(f"v_add_f32 v{o}, v{o}, v{o+1}\nv_add_f32 v{o+2}, v{o+2}, v{o+3}\nv_add_f32 v{o+4}, v{o+4}, v{o+5}\nv_add_f32 v{o+6}, v{o+6}, v{o+7}")
        k(f"v_add_f32 v{o}, v{o}, v{o+2}\nv_add_f32 v{o+4}, v{o+4}, v{o+6}\nv_add_f32 v{o}, v{o}, v{o+4}")
        k(f"v_fma_f32 v{o+8}, v{o}, 0, v{o+8}\nv_subrev_u32 v{o+8}, {hex(LO)}, v{o+8}")
    k(f"v_max_u32 v{vO+8}, v{vO+8}, v{vO+24}")
    k(f"v_cmp_lt_u32 vcc, {hex(0 if FORCE_FB else HI - LO)}, v{vO+8}")
    k(f"s_cbranch_vccnz {fb}")
    k.label(back)
    F = [f"{fb}:", "s_waitcnt vmcnt(0)", f"s_and_b32 s{sT0}, s{sKX}, 0xfffe0000",
         f"v_add_u32 v{vK}, s{sT0}, v{vK}", f"v_add_u32 v{vV}, s{sT0}, v{vV}"]
    S, C, M = vS0, vS0 + 16, vS0 + 32
    for z in range(2):
        o = vO + 16*z; Q = ar(aQ + 4*z)
        F += [f"v_mov_b32 v{M}, 0xff800000", f"s_mov_b32 s{sK}, 0", f"{fb}_a{z}:",
              f"buffer_load_dwordx4 {K(0)}, v{vK}, {srd(sWS)}, s{sK} offen sc1", "s_waitcnt vmcnt(0)",
              f"v_mfma_f32_32x32x16_bf16 {vr(S,16)}, {K(0)}, {Q}, 0"]
        F += [f"v_max3_f32 v{M}, v{M}, v{S+2*i}, v{S+2*i+1}" for i in range(8)]
        F += [f"s_add_u32 s{sK}, s{sK}, 2048", f"s_cmp_lt_u32 s{sK}, {64*2048}", f"s_cbranch_scc1 {fb}_a{z}",
              f"v_mov_b32 v{M+1}, v{M}", f"v_permlane32_swap_b32 v{M}, v{M+1}", f"v_max_f32 v{M}, v{M}, v{M+1}"]
        F += [f"v_sub_f32 v{C+i}, 0, v{M}" for i in range(16)] + [f"v_mov_b32 v{o+i}, 0" for i in range(16)]
        F += [f"s_mov_b32 s{sK}, 0", f"{fb}_b{z}:",
              f"buffer_load_dwordx4 {K(0)}, v{vK}, {srd(sWS)}, s{sK} offen sc1",
              f"s_mov_b64 exec, s[{sMSK}:{sMSK+1}]",
              f"buffer_load_dwordx4 {V(0,0)}, v{vV}, {srd(sWS)}, s{sK} offen offset:{KB} sc1",
              f"buffer_load_dwordx4 {V(0,1)}, v{vV}, {srd(sWS)}, s{sK} offen offset:{KB+512} sc1",
              "s_mov_b64 exec, -1", "s_waitcnt vmcnt(0)",
              f"v_mfma_f32_32x32x16_bf16 {vr(S,16)}, {K(0)}, {Q}, {vr(C,16)}"]
        F += [f"v_exp_f32 v{S+i}, v{S+i}" for i in range(16)]
        F += [f"v_smfmac_f32_32x32x32_bf16 {vr(o,16)}, {V(0,u)}, {vr(S+8*u,8)}, v{vIDX}" for u in range(2)]
        F += ["s_nop 15", f"s_add_u32 s{sK}, s{sK}, 2048", f"s_cmp_lt_u32 s{sK}, {64*2048}", f"s_cbranch_scc1 {fb}_b{z}",
              f"v_rcp_f32 v{o+9}, v{o+8}"]
        for j in range(4):
            F += [f"v_mul_f32 v{o+2*j}, v{o+2*j}, v{o+9}", f"v_mul_f32 v{o+2*j+1}, v{o+2*j+1}, v{o+9}", f"v_cvt_pk_bf16_f32 v{o+12+j}, v{o+2*j}, v{o+2*j+1}"]
        F += [f"buffer_store_dwordx4 {vr(o+12)}, v{vL16}, {srd(sWS)}, s{sOD+z} offen"]
    F += ["s_waitcnt vmcnt(0)", f"s_branch {back}"]
    G.far += F
    k(f"s_mov_b32 s{sF}, s{sFO}")
    ring.end16()
    ring.limit = 144
    return ts

def load_res(k, v):
    k(f"s_add_u32 s{sT1}, s{sDST}, {XF}")
    k.vm(f"buffer_load_dwordx4 {vr(v)}, v{vL16}, {srd(sWS)}, s{sT1} offen sc1")
    return k.vm(f"buffer_load_dwordx4 {vr(v+4)}, v{vL16}, {srd(sWS)}, s{sT1} offen offset:1024 sc1")
def add_res(k, acc, v):
    for j in range(8):
        k(f"v_lshlrev_b32 v10, 16, v{v+j}\nv_and_b32 v11, 0xffff0000, v{v+j}")
        k(f"v_add_f32 v{acc+2*j}, v{acc+2*j}, v10\nv_add_f32 v{acc+2*j+1}, v{acc+2*j+1}, v11")

def ph_wo(k, L, ring, tO):
    k.label(f'L_wo{L}')
    vX, vACC, vRES, vSUM, vPK = 16, 80, (240 if RES_AT else 112), 120, 136
    k(f"s_lshr_b32 s{sRB}, s{sDST}, 15\ns_lshr_b32 s{sD}, s{sW}, 1")
    k(f"s_mul_i32 s{sX}, s{sRB}, {112*KB}\ns_lshl_b32 s{sT0}, s{sD}, 14\ns_add_u32 s{sX}, s{sX}, s{sT0}\ns_add_u32 s{sX}, s{sX}, {HF}")
    k(f"s_lshl_b32 s{sT0}, s{sD}, 11")
    set_lds_bases(k, sT0)
    seq = []
    for s in range(16):
        seq.append((s, 1))
        if s < 16 - WO_R0: seq.append((s, 0))
    nf = len(seq)
    seq += [(s, 0) for s in range(16 - WO_R0, 16)]
    ops = [dict(b=4*s + a, bmin=0, bmax=63, xi=s, x=vr(vX+4*s), acc=vr(vACC+16*a,16), swap=False, first=(s == 0)) for s, a in seq]
    g = Gemm(k, ring, ops, {0}, stop_issue=WO_STOP)
    rs = {}
    def ldres():
        if L == 0:
            k.vm(f"buffer_load_dwordx4 {vr(vRES)}, v8, {srd(60)}, s{sE} offen")
            rs['t'] = k.vm(f"buffer_load_dwordx4 {vr(vRES+4)}, v8, {srd(60)}, s{sE} offen offset:32")
        else:
            rs['t'] = load_res(k, vRES)
    if not RES_LATE[L] and not RES_AT:
        if L == 0: rowmajor_addr(k, 8, sE)
        ldres()
    g.start()
    mark(k, 'f_bar')
    ring.issue_n(PRE_WO)
    publish_local(k, tO)
    mark(k, 'f_pub')
    ring.issue_n(PRE_WO2)
    k(f"s_and_b32 s{sF}, s{sRB}, 0xfe\ns_add_u32 s{sF}, s{sF}, s{sD}\ns_lshl_b32 s{sF}, s{sF}, 7\ns_add_u32 s{sF}, s{sF}, {FLOC(L,0)}")
    SC = 144 * KB
    k(f"s_xor_b32 s{sT0}, s{sW}, 2\ns_lshl_b32 s{sT0}, s{sT0}, 12\ns_add_u32 s{sT0}, s{sT0}, {SC}\nv_add_u32 v6, s{sT0}, v{vL16}")
    k(f"s_lshl_b32 s{sT0}, s{sW}, 12\ns_add_u32 s{sT0}, s{sT0}, {SC}\nv_add_u32 v7, s{sT0}, v{vL16}")
    if RES_LATE[L] and L == 0: rowmajor_addr(k, 8, sE)
    if RES_AT:
        for x in res_unpack(vSUM, vRES): k(x)
    poll16(k)
    mark(k, 'f_poll')
    xq = XLoader(k, 16, lambda i: vr(vX+4*i), lin_src(k))
    xq.issue_n(WO_N0)
    if not RES_LATE[L] and not RES_AT:
        for x in res_unpack(vSUM, vRES): k(x)
    st = {}
    def xchg(step):
        if step == 0:
            while g.nread < 32: g.rd()
            for j in range(4): k.lg(f"ds_write_b128 v6, {vr(vACC+16+4*j)} offset:{j*KB}")
        elif step == 1:
            k.wait_all(vm=False)
            ring.limit = None
            ring.sync(64, 0)
            for j in range(4): st['t'] = k.lg(f"ds_read_b128 {vr(vACC+16+4*j)}, v7 offset:{j*KB}")
            ring.issue_n(XB_PRE)
        st['n'] = step + 1
    def filler(m):
        if m == max(nf + 1, 25): xchg(0)
        if m == max(nf + 4, 28): xchg(1)
    g.run(xq, n0=0, look=16, filler=filler, misc=[ldres] if RES_LATE[L] else [])
    for step in range(st.get('n', 0), 2): xchg(step)
    if RES_LATE[L]:
        k.wait(vm=rs['t'])
        for x in res_unpack(vSUM, vRES): k(x)
    k.wait(lg=st['t'])
    for i in range(16): k(f"v_add_f32 v{vSUM+i}, v{vSUM+i}, v{vACC+16+i}")
    for j in range(8):
        k(f"v_add_f32 v{vACC+2*j}, v{vACC+2*j}, v{vSUM+2*j}\nv_add_f32 v{vACC+2*j+1}, v{vACC+2*j+1}, v{vSUM+2*j+1}")
        k(f"v_cvt_pk_bf16_f32 v{vPK+j}, v{vACC+2*j}, v{vACC+2*j+1}")
    ts = store_x(k, vACC, vPK, L, 1, ring)
    mark(k, 'end')
    return ts

PASSES = ((0, 3), (3, 2), (5, 2))
PBASE = (0, 100, 166)
def ph_up(k, L, ring, b0, tprev):
    vX, vACC, vST, vEXT, vRS = 16, 144, 224, 8, 6
    sH0, sH1 = sD, sE
    rb_128(k)
    k(f"s_and_b32 s{sA}, s{sC}, 15")
    k(f"s_lshl_b32 s{sX}, s{sRB}, 15\ns_add_u32 s{sX}, s{sX}, {XF}")
    set_lds_bases(k)
    if UP16: return ph_up16(k, L, ring, b0, tprev)
    ops = []
    for (t0, nt), pb in zip(PASSES, PBASE):
        for ks in range(33):
            for t in range(t0, t0+nt):
                lo_ = b0 + pb + (ks >> 1)*2*nt
                b = lo_ + (2*(t - t0) + (ks & 1) if ks < 32 else t - t0)
                ops.append(dict(b=b, bmin=lo_, bmax=b, xi=(ks if ks < 32 else None), x=(vr(vX+4*ks) if ks < 32 else vr(vEXT)),
                                acc=vr(vACC+16*t, 16), swap=False, first=(ks == 0)))
    g = Gemm(k, ring, ops, UP_SYNCS, stop_issue=UP_STOP)
    g.start()
    mark(k, 'f_bar')
    ring.issue_n(PRE)
    publish_local(k, tprev)
    mark(k, 'f_pub')
    ring.issue_n(PRE2)
    res = {}
    se = stats_emitters(k, vST, res)
    k(f"s_mul_i32 s{sH0}, s{sRB}, 112\ns_mul_i32 s{sT2}, s{sA}, 7\ns_add_u32 s{sH0}, s{sH0}, s{sT2}\ns_lshl_b32 s{sH0}, s{sH0}, 10\ns_add_u32 s{sH0}, s{sH0}, {HF}")
    k(f"s_add_u32 s{sH1}, s{sH0}, 4096")
    k(f"s_lshl_b32 s{sF}, s{sRB}, 7\ns_add_u32 s{sF}, s{sF}, {FLOC(L,1)}")
    poll16(k)
    mark(k, 'f_poll')
    aps = stats_poll(k, FLOC(L,6) - FLOC(L,1))
    xq = XLoader(k, 32, lambda i: vr(vX+4*i), lin_src(k))
    fin = fin_stats(vST, vEXT, vRS) + [f"v_mul_f32 v{vRS}, v{vRS}, v{vRS}"]
    def epi(t):
        a = vACC + 16*t
        o = []
        for j in range(4):
            o += [f"v_mul_f32 v{a+2*j}, v{a+2*j}, v{vRS}", f"v_mul_f32 v{a+2*j+1}, v{a+2*j+1}, v{vRS}",
                  f"v_mul_f32 v{a+2*j}, v{a+2*j}, v{a+8+2*j}", f"v_mul_f32 v{a+2*j+1}, v{a+2*j+1}, v{a+9+2*j}",
                  f"v_cvt_pk_bf16_f32 v{a+8+j}, v{a+2*j}, v{a+2*j+1}"]
        o.append(f"buffer_store_dwordx4 {vr(a+8)}, v{vL16}, {srd(sWS)}, s{sH0 + (t >> 2)} offen offset:{(t & 3)*KB}")
        return o
    st = dict(i=0, t=None); q = []
    def put(x):
        if x.startswith('buffer'): st['t'] = k.vm(x)
        else: k(x)
    dn = Down(k, L)
    def filler(m):
        if aps and m == 12: aps.issue()
        if aps and m == 30: aps.check()
        if 70 <= m < 96:
            if st['i'] == 0: k.wait(vm=res['t'])
            for _ in range(2):
                if st['i'] < len(fin): k(fin[st['i']]); st['i'] += 1
        if m == 102: q.extend(sum((epi(t) for t in range(0, 3)), []))
        if m == 168: q.extend(sum((epi(t) for t in range(3, 5)), []))
        if UP4 and m == 201: q.extend(epi(5))
        for _ in range(UP_EPI):
            if q: put(q.pop(0))
        if m == 146: code_touch(k, 7)
        if m in UP_PUB:
            assert not q
            if m == UP_PUB[0]:
                k(f"s_lshl_b32 s{sF}, s{sRB}, 4\ns_add_u32 s{sF}, s{sF}, s{sA}\ns_lshl_b32 s{sF}, s{sF}, 3\ns_add_u32 s{sF}, s{sF}, {FLOC(L,9)}")
            publish_local(k, st['t'])
            k(f"s_add_u32 s{sF}, s{sF}, {8*KB}")
            if m == UP_PUB[1]: dn.xq.hold = 20
        if UP_PUB[0] < m and dn.setup:
            for _ in range(3):
                if dn.setup: k(dn.setup.pop(0))
        if m in DN_POLL: dn.ap.issue()
        if m in DN_CHK:
            dn.ap.check()
            k(f"s_add_u32 s{dn.sFl}, s{dn.sFl}, {8*KB}")
        if m > DN_CHK[0] and m % 2 and not (ring.can_issue() and m < UP_STOP): dn.xq.issue_n(1)
    if L == 0: ring.limit = 296 + QW_UP
    g.run(xq, look=UP_LOOK, filler=filler, misc=se, misc_from=32, skip=UP_SKIP[L])
    assert st['i'] == len(fin) and not dn.setup and ring.issued == min(ring.total, 296 + QW_UP)
    dn.xq.hold = 36 if len(DN_CHK) > 1 else 24
    for t in range(6 if UP4 else 5, 7):
        for i, x in enumerate(epi(t)):
            put(x)
            if i in (4, 14): dn.xq.issue_n(1)
    mark(k, 'end')
    dn.tB = st['t']
    return dn

def ph_up16(k, L, ring, b0, tprev):
    vX, vACC, vST, vEXT, vRS, vXM = 16, 144, 224, 8, 6, 12
    sH0, sH1 = sD, sE
    D, NB = 5, 8
    k(f"v_bfe_u32 v8, v0, 4, 2\nv_lshlrev_b32 v8, 9, v8\nv_and_b32 v9, 15, v0\nv_lshl_add_u32 v{vXM}, v9, 4, v8")
    k("v_and_b32 v9, 3, v0\nv_bfe_u32 v10, v0, 2, 1\nv_lshl_or_b32 v9, v10, 3, v9\nv_bfe_u32 v10, v0, 3, 1\nv_lshl_or_b32 v9, v10, 2, v9")
    k(f"v_lshl_add_u32 v{vB}, v9, 4, v8\nv_add_u32 v{vB+1}, 0x10000, v{vB}\nv_add_u32 v{vB+2}, 0x20000, v{vB}")
    units = []
    for (t0, nt), pb in zip(PASSES, PBASE):
        for K in range(16):
            for t in range(t0, t0+nt):
                for ch in range(2):
                    lo_ = b0 + pb + K*2*nt
                    units.append(dict(b=lo_ + 2*(t - t0), bmin=lo_, bmax=lo_ + 2*(t - t0) + 1, K=K, t=t, ch=ch))
        for t in range(t0, t0+nt):
            b = b0 + pb + 32*nt + t - t0
            units.append(dict(b=b, bmin=b0 + pb + 32*nt, bmax=b, K=16, t=t, e0=b0 + pb + 32*nt))
    M = len(units); syncs = sorted(UP_SYNCS)
    tl = {}; S = dict(nread=0)
    def rd():
        m = S['nread']; o = units[m]; w = aWB + 4*(m % NB)
        assert o['bmax'] < ring.visible, (m, o, ring.visible)
        a = ring.addr(o['b'])
        if o['K'] < 16:
            assert ring.addr(o['b'] + 1) == a + KB
            a += o['ch'] * 256
            tl[m] = k.lg(f"ds_read_b128 {ar(w)}, v{vB + (a >> 16)} offset:{a & 0xffff}")
        else:
            a0 = ring.addr(o['e0'])
            if o['b'] == o['e0']:
                if a0 != S['a0']: k(f"v_add_u32 v13, {a0 - S['a0']}, v13")
                S['a0'] = a0
            assert a >= a0
            k.lg(f"ds_read_b64 {ar(w,2)}, v13 offset:{a - a0}")
            tl[m] = k.lg(f"ds_read_b64 {ar(w+2,2)}, v13 offset:{a - a0 + 256}")
        S['nread'] += 1
    def need_until(m):
        nxt = [x for x in syncs if x > m]
        last = min((nxt[0] if nxt else M) - 1 + D, M - 1)
        return max(o['bmax'] for o in units[:last+1]) + 1
    ring.sync(units[0]['bmin'], need_until(0))
    for _ in range(D): rd()
    mark(k, 'f_bar')
    ring.issue_n(PRE)
    publish_local(k, tprev)
    mark(k, 'f_pub')
    res = {}
    se = stats_emitters(k, vST, res)
    k(f"s_mul_i32 s{sH0}, s{sRB}, 112\ns_mul_i32 s{sT2}, s{sA}, 7\ns_add_u32 s{sH0}, s{sH0}, s{sT2}\ns_lshl_b32 s{sH0}, s{sH0}, 10\ns_add_u32 s{sH0}, s{sH0}, {HF}")
    if DN16:
        k(f"s_bitcmp0_b32 s{sA}, 0\ns_cselect_b32 s{sH1}, -1, 1\ns_cselect_b32 s{sT2}, 7, -1\ns_lshl_b32 s{sH1}, s{sH1}, 10\ns_lshl_b32 s{sT2}, s{sT2}, 10\ns_add_u32 s{sH0}, s{sH0}, s{sT2}")
    else: k(f"s_add_u32 s{sH1}, s{sH0}, 4096")
    k(f"s_lshl_b32 s{sF}, s{sRB}, 7\ns_add_u32 s{sF}, s{sF}, {FLOC(L,1)}")
    poll16(k)
    mark(k, 'f_poll')
    aps = stats_poll(k, FLOC(L,6) - FLOC(L,1))
    def xsrc(i):
        if i and (i & 3) == 0: k(f"s_add_u32 s{sX}, s{sX}, 4096")
        return sX, ((i >> 1) & 1) * 2048 + (i & 1) * 256
    xq = XLoader(k, 32, lambda i: vr(vX+4*i), xsrc, va=vXM)
    fin = fin_stats(vST, vEXT, vRS) + [f"v_mul_f32 v{vRS}, v{vRS}, v{vRS}", f"v_permlane16_swap_b32 v{vEXT}, v{vEXT+2}"] + ([] if LN_BF16 else [f"v_permlane16_swap_b32 v{vEXT+1}, v{vEXT+3}"])
    fin2 = [f"v_mov_b32 v{vRS+1}, v{vRS}", f"v_permlane16_swap_b32 v{vRS}, v{vRS+1}"]
    def epi(t):
        a = vACC + 16*t
        o = []
        for th in range(2):
            g_ = a + 4*th; u_ = a + 8 + 4*th
            o += [f"v_mul_f32 v{g_+j}, v{g_+j}, v{vRS+th}" for j in range(4)] + [f"v_mul_f32 v{g_+j}, v{g_+j}, v{u_+j}" for j in range(4)]
            o += [f"v_cvt_pk_bf16_f32 v{a+8+2*th}, v{g_}, v{g_+1}", f"v_cvt_pk_bf16_f32 v{a+9+2*th}, v{g_+2}, v{g_+3}"]
        if DN16: o.append(f"s_add_u32 s{sH0}, s{sH0}, s{sH1}")
        o += [f"v_permlane16_swap_b32 v{a+8}, v{a+10}", f"v_permlane16_swap_b32 v{a+9}, v{a+11}"]
        if DN16: o.append(f"buffer_store_dwordx4 {vr(a+8)}, v{vL16}, {srd(sWS)}, s{sH0} offen")
        else: o.append(f"buffer_store_dwordx4 {vr(a+8)}, v{vL16}, {srd(sWS)}, s{sH0 + (t >> 2)} offen offset:{(t & 3)*KB}")
        return o
    st = dict(t=None)
    def put(x):
        if x.startswith('buffer'): st['t'] = k.vm(x)
        else: k(x)
    dn = Down(k, L)
    if L == 0: ring.limit = 296 + QW_UP
    xq.issue_n(6)
    mem = []; alu = []; se = list(se); cur = 0; second = []
    def waits(m):
        nonlocal cur
        xs = [2*p['K'] + 1 for p in units[m:m+2] if p['K'] < 16]
        xt = None
        if xs:
            cur = max(cur, max(xs))
            while xq.n <= max(xs): xq.issue_n(1)
            xt = xq.t[max(xs)]
        n0 = len(k.L)
        k.wait(vm=xt, lg=tl[min(m + 1, M - 1)])
        return len(k.L) - n0
    big = lambda x: x.startswith(('buffer', 'v_permlane', 'v_rsq'))
    def slot(first):
        if mem and (len(mem) > 1 or first):
            last = len(mem) == 1
            mem.pop(0)()
            return last and U16_BIG
        if alu and (first or not (big(alu[0]) if U16_BIG else alu[0].startswith('buffer'))):
            x = alu.pop(0); put(x)
            return big(x) and U16_BIG
        return False
    waits(0)
    for m, o in enumerate(units):
        if m in syncs and m > 0:
            while mem: mem.pop(0)()
            while second: second.pop()()
            ring.sync(o['bmin'], need_until(m))
        w = aWB + 4*(m % NB); a = vACC + 16*o['t']
        if o['K'] < 16:
            mm = [f"v_mfma_f32_16x16x32_bf16 {vr(a+8*o['ch']+4*th)}, {ar(w)}, {vr(vX+8*o['K']+4*th)}, {'0' if o['K'] == 0 else vr(a+8*o['ch']+4*th)}" for th in range(2)]
        else:
            mm = [f"v_mfma_f32_16x16x16_bf16 {vr(a+8*ch+4*th)}, {ar(w+2*ch,2)}, {vr(vEXT+2*th,2)}, {vr(a+8*ch+4*th)}" for ch in range(2) for th in range(2)]
        k(mm[0])
        if m == 0: mark(k, 'm0')
        if m in GEMM_MARKS.get(G.ph, ()): mark(k, f'm{m}')
        if S['nread'] < M: rd()
        else: slot(True)
        if not (m % 2 and m + 1 < M and waits(m + 1)): slot(False)
        for x in mm[1:-1]:
            k(x); slot(True) or slot(False)
        k(mm[-1])
        if aps and m == 12: aps.issue()
        if aps and m == 30: aps.check()
        if m == 34:
            a0 = S['a0'] = ring.addr(b0 + 96)
            alu += f"v_and_b32 v13, 0xf0, v{vB}\nv_bfe_u32 v7, v0, 5, 1\nv_lshl_add_u32 v13, v7, 9, v13\nv_bfe_u32 v7, v0, 4, 1\nv_lshl_add_u32 v13, v7, 3, v13\nv_add_u32 v13, {a0}, v13".split('\n')
            alu += f"s_lshl_b32 s{sF}, s{sRB}, 4\ns_add_u32 s{sF}, s{sF}, s{sA}\ns_lshl_b32 s{sF}, s{sF}, 3\ns_add_u32 s{sF}, s{sF}, {FLOC(L,9)}".split('\n')
            alu += TAGMOV + [x for x in dn.setup if x.startswith('s_')]
            dn.setup = [x for x in dn.setup if not x.startswith('s_')]
            if CODE_TOUCH:
                pc = k.newlabel('pc')
                alu += [f"s_getpc_b64 s[{sPC}:{sPC+1}]\n{pc}:", f"s_min_u32 s{sT3}, s{sCT}, L_end-{pc}-1024",
                        f"s_add_u32 s{sPC}, s{sPC}, s{sT3}\ns_addc_u32 s{sPC+1}, s{sPC+1}, 0"]
        if L and KV_LOC and m == U16_FIN:
            assert not alu
            k(f"s_xor_b32 s{sT3}, s{sRB}, 4\ns_lshr_b32 s{sT3}, s{sT3}, 1\ns_lshl_b32 s{sT3}, s{sT3}, 8\ns_add_u32 s{sT3}, s{sT3}, {FLOC(L,0)}")
            apw = APoll(k, ["v_and_b32 v252, 31, v0", "v_lshlrev_b32 v252, 3, v252",
                            f"buffer_load_dwordx2 v[252:253], v252, {srd(sWS)}, s{sT3} offen sc1"], f"v_cmp_ne_u64 vcc, s[{sTAG}:{sTAG+1}], v[252:253]")
            apw.issue()
        if L and KV_LOC and m == 98: apw.check()
        if m == U16_FIN:
            assert not alu
            k.wait(vm=res['t']); alu += fin + fin2
        if m == 95: assert not alu
        if m == 100:
            assert xq.n == xq.total
            if CODE_TOUCH: k.vm(f"global_load_dword v255, v{vL16}, s[{sPC}:{sPC+1}]")
            alu += sum((epi(t) for t in range(0, 3)), []) + dn.setup; dn.setup = []
        if m == 167: alu += sum((epi(t) for t in range(3, 5)), [])
        if m in U16_PUB:
            assert not alu, (m, len(alu))
            publish_local(k, st['t'], movs=False)
            alu.append(f"s_add_u32 s{sF}, s{sF}, {8*KB}")
            if m == U16_PUB[1]: dn.xq.hold = 20
        if m in U16_POLL: dn.ap.issue()
        if m == U16_CHK:
            dn.ap.check()
            alu += [f"s_add_u32 s{dn.sFl}, s{dn.sFl}, {8*KB}"] + TAGMOV
        if m % 2 == 0 and not mem:
            rok = second or (m < UP_STOP and (ring.can8() or (ring.can_issue() and not ring.pair)))
            if not second and xq.n < xq.total and ring.issued >= b0 + U16_HOLD: rok = False
            mok = se and m >= 32
            if xq.n < xq.total and (xq.n - cur < UP_LOOK or not (rok or mok)): mem.append(lambda: xq.issue_n(1))
            elif mok: mem.append(se.pop(0))
            elif second: mem.append(second.pop())
            elif rok and ring.can8():
                p1, p2 = ring.parts8(); mem += p1; second += p2
            elif rok: mem += ring.parts()
            elif m > U16_CHK and dn.xq.n < dn.xq.hold: mem.append(lambda: dn.xq.issue_n(1))
        slot(True) or slot(False)
    while mem: mem.pop(0)()
    while second: second.pop()()
    ring.end8()
    assert not alu and not se and ring.issued == min(ring.total, 296 + QW_UP)
    dn.xq.hold = 24
    for t in range(5, 7):
        for i, x in enumerate(epi(t)):
            put(x)
            if i in (4, 14): dn.xq.issue_n(1)
    mark(k, 'end')
    dn.tB = st['t']
    return dn

class Down:
    NX = 36
    def __init__(self, k, L):
        self.k = k; self.L = L
        sXa, sXb, sFl = sB, sX2, sCc
        self.sFl = sFl
        self.setup = (f"s_lshr_b32 s{sT0}, s{sDST}, 15\ns_mul_i32 s{sT1}, s{sW}, {28*KB}\ns_add_u32 s{sT1}, s{sT1}, {HF}\n"
                      f"s_mul_i32 s{sXa}, s{sT0}, {112*KB}\ns_add_u32 s{sXa}, s{sXa}, s{sT1}\n"
                      f"s_xor_b32 s{sT2}, s{sT0}, 1\ns_mul_i32 s{sXb}, s{sT2}, {112*KB}\ns_add_u32 s{sXb}, s{sXb}, s{sT1}\n"
                      f"v_lshlrev_b32 v12, 3, v0\nv_and_b32 v12, 0x98, v12\n"
                      f"s_and_b32 s{sFl}, s{sT0}, 0xfe\ns_lshl_b32 s{sFl}, s{sFl}, 7\ns_lshl_b32 s{sT1}, s{sW}, 5\ns_add_u32 s{sFl}, s{sFl}, s{sT1}\n"
                      f"s_add_u32 s{sFl}, s{sFl}, {FLOC(L,9)}").split('\n')
        self.order = order = [7*c + t for t0, nt in (((0, 3), (3, 2), (5, 1), (6, 1)) if UP4 else PASSES) for c in range(4) for t in range(t0, t0+nt)]
        cur = {sXa: 0, sXb: 0}
        if DN16:
            assert UP16
            self.setup = [x for x in self.setup if x.startswith('s_')]
            self.order = order = [2, 3, 4, 9, 10, 11, 1, 5, 8, 12, 0, 6, 7, 13]
            def src16(i):
                s_ = sXa if (i & 2) == 0 else sXb
                r = 2 * order[i >> 2]
                if not 0 <= r - cur[s_] < 4:
                    d = (r - cur[s_]) * KB
                    k(f"s_add_u32 s{s_}, s{s_}, {d}" if d > 0 else f"s_sub_u32 s{s_}, s{s_}, {-d}")
                    cur[s_] = r
                return s_, (r - cur[s_]) * KB + (i & 1) * 256
            self.xr = lambda i: vr(144 + 4*(i % 36) if (i % 36) < 20 else 80 + 4*((i % 36) - 20))
            self.xq = XLoader(k, 56, self.xr, src16, va=12)
            self.xq.hold = 12
            self.ap = APoll(k, ["v_lshlrev_b32 v14, 3, v0", "v_and_b32 v14, 0x98, v14",
                                f"buffer_load_dwordx2 v[14:15], v14, {srd(sWS)}, s{sFl} offen sc1"], f"v_cmp_ne_u64 vcc, s[{sTAG}:{sTAG+1}], v[14:15]")
            return
        def src(i):
            s_ = sXa if (i & 1) == 0 else sXb
            r = order[i >> 1]
            if not 0 <= r - cur[s_] < 4:
                d = (r - cur[s_]) * KB
                k(f"s_add_u32 s{s_}, s{s_}, {d}" if d > 0 else f"s_sub_u32 s{s_}, s{s_}, {-d}")
                cur[s_] = r
            return s_, (r - cur[s_]) * KB
        self.xr = lambda i: vr(144 + 4*(i % 36) if (i % 36) < 20 else 80 + 4*((i % 36) - 20))
        self.xq = XLoader(k, 56, self.xr, src)
        self.xq.hold = 12
        self.ap = apoll1(k, 12, 14, sFl)

def load_res16(k, v):
    k(f"v_and_b32 v13, 0x2f0, v{vL16}\nv_bfe_u32 v5, v0, 4, 1\nv_lshl_add_u32 v13, v5, 3, v13\ns_add_u32 s{sT1}, s{sDST}, {XF}")
    for ch in range(2):
        for th in range(2):
            t = k.vm(f"buffer_load_dwordx2 {vr(v+4*ch+2*th,2)}, v13, {srd(sWS)}, s{sT1} offen offset:{ch*KB + th*256} sc1")
    return t
def res_unpack(dst, v):
    o = []
    for j in range(8): o += [f"v_lshlrev_b32 v{dst+2*j}, 16, v{v+j}", f"v_and_b32 v{dst+2*j+1}, 0xffff0000, v{v+j}"]
    return o

def ph_down(k, L, ring, dn):
    vACC, vRES, vPK, vSUM = 16, 240, 240, 224
    final = L == 1
    xq = dn.xq; order = dn.order; NX = dn.NX
    if len(DN_CHK) > 1: xq.hold = 40
    SC = 108 * KB
    side = []
    for a in range(1, 4):
        side += f"s_xor_b32 s{sT0}, s{sW}, {a}\ns_mul_i32 s{sT0}, s{sT0}, {12*KB}\ns_add_u32 s{sT0}, s{sT0}, {SC + (a-1)*4*KB}\nv_add_u32 v{5+a}, s{sT0}, v{vL16}".split('\n')
    side += f"s_mul_i32 s{sT0}, s{sW}, {12*KB}\ns_add_u32 s{sT0}, s{sT0}, {SC}\nv_add_u32 v9, s{sT0}, v{vL16}".split('\n')
    if final and OUT_T:
        side += (f"s_and_b32 s{sT0}, s{sW}, 1\ns_mul_i32 s{sT0}, s{sT0}, {32*144}\ns_lshr_b32 s{sT2}, s{sW}, 1\ns_lshl_b32 s{sT2}, s{sT2}, 6\ns_add_u32 s{sT0}, s{sT0}, s{sT2}\n"
                 f"v_and_b32 v10, 31, v0\nv_mul_u32_u24 v10, 144, v10\nv_bfe_u32 v11, v0, 5, 1\nv_lshl_add_u32 v10, v11, 4, v10\nv_add_u32 v10, s{sT0}, v10\n"
                 f"s_mul_i32 s{sT0}, s{sW}, {16*144}\nv_bfe_u32 v13, v0, 3, 3\nv_mul_u32_u24 v11, 144, v13\nv_and_b32 v5, 7, v0\nv_lshl_add_u32 v11, v5, 4, v11\nv_add_u32 v11, s{sT0}, v11\n"
                 f"v_lshlrev_b32 v13, 10, v13\nv_lshl_add_u32 v13, v5, 4, v13\n"
                 f"s_and_b32 s{sT0}, s{sDST}, 0xffff0000\ns_lshl_b32 s{sT2}, s{sW}, 14\ns_add_u32 s{sT0}, s{sT0}, s{sT2}\n"
                 f"s_and_b32 s{sT2}, s{sC}, 7\ns_lshl_b32 s{sT2}, s{sT2}, 7\ns_add_u32 s{sT0}, s{sT0}, s{sT2}\ns_add_u32 s{sT2}, s{sT0}, 8192").split('\n')
    R, R0 = DN_R, DN_R0
    seq = []
    for s in range(28 - R):
        seq += [(s, a) for a in (3, 2, 1)]
        if s < 28 - R0: seq.append((s, 0))
    seq += [(s, a) for a in (3, 2, 1) for s in range(28 - R, 28)] + [(s, 0) for s in range(28 - R0, 28)]
    fx = (lambda s_, a_: 4*(s_ >> 1) + 2*(a_ & 1)) if DN16 else (lambda s_, a_: 2*s_ + (a_ & 1))
    lo = [min(fx(s_, a_) for s_, a_ in seq[m:]) for m in range(112)]
    wr = []; rt = None; tail = None; res = None; wb = False; adds = []
    for m, (s, a) in enumerate(seq):
        r = order[s >> 1] if DN16 else order[s]
        if len(DN_CHK) == 1 and m == DN_CHK2:
            dn.ap.check()
            k(f"s_add_u32 s{dn.sFl}, s{dn.sFl}, {8*KB}")
            xq.hold = 40
        if m == int(4*DN_PUBB): publish_local(k, dn.tB)
        if UP4 and m == DN_POLL3: dn.ap.issue()
        if UP4 and m == DN_CHK3:
            dn.ap.check()
            k(f"s_add_u32 s{dn.sFl}, s{dn.sFl}, {8*KB}")
            xq.hold = 48
        if m == 4*DN_BAR:
            ring.limit = None
            ring.sync(296, 0)
        if m == 4*DN_POLLB:
            apb = dn.ap
            apb.issue()
            rt = load_res16(k, vRES) if DN16 else load_res(k, vRES)
        if m == 4*DN_CHKB:
            apb.check()
            xq.hold = 56
            xq.issue_n(min(3, lo[m] + NX - xq.n))
        xi = fx(s, a) + (1 if DN16 else 0)
        while xq.n <= xi:
            assert xq.n < xq.hold and xq.n < lo[m] + NX
            xq.issue_n(1)
        k.wait(vm=xq.t[xi])
        if DN16:
            ch = s & 1
            for th in range(2):
                acc = vr(vACC + 16*a + 8*ch + 4*th)
                k(f"v_mfma_f32_16x16x32_bf16 {acc}, {ar(aWD + 16*r + 8*(a >> 1) + 4*ch)}, {dn.xr(xi - 1 + th)}, {'0' if s < 2 else acc}")
                if th == 0:
                    for _ in range(2):
                        if side and res: k(side.pop(0))
                        elif adds and adds[0][0] <= m:
                            _, t_, x = adds.pop(0); k.wait(lg=t_); k(x)
        else:
            acc = vr(vACC + 16*a, 16)
            k(f"v_mfma_f32_32x32x16_bf16 {acc}, {ar(aWD + 8*r + 4*(a >> 1))}, {dn.xr(xi)}, {'0' if s == 0 else acc}")
        if m == 0: mark(k, 'm0')
        if m in GEMM_MARKS.get(G.ph, ()): mark(k, f'm{m}')
        if (m % 2 == 0 or (xq.hold == 56 and m % DN_CR == 0)) and xq.n < min(lo[m] + NX, xq.total, xq.hold): xq.issue_n(1)
        elif m % 2 == 0 and xq.n == xq.total and ring.can_issue(): ring.issue()
        elif m > 4*DN_CHKB + 8:
            if res is None:
                k.wait(vm=rt); res = True
                side += res_unpack(vSUM, vRES)
            for _ in range(2 if DN16 else 4):
                if side: k(side.pop(0))
        if final and WB_MASK is not None and xq.n == xq.total and (WB_EARLY or k.vm_done == k.vm_issued) and not wb:
            wb = True; l_ = k.newlabel('wb')
            k(f"s_lshl_b32 s{sT1}, s{sC}, 2\ns_add_u32 s{sT1}, s{sT1}, s{sW}\ns_and_b32 s{sT1}, s{sT1}, {WB_MASK}")
            if WB_EARLY:
                k(f"s_cbranch_scc0 {l_}")
                k.vm(f"buffer_load_dword v15, off, {srd(sWS)}, s{dn.sFl} sc1")
                k.label(l_ + 'r')
                G.far += [f"{l_}:", "buffer_wbl2 sc1", f"s_branch {l_}r"]
            else:
                k(f"s_cbranch_scc1 {l_}")
                k("buffer_wbl2 sc1")
                k.label(l_)
            print('wbl2 at', m, file=sys.stderr)
        if wr and wr[0][0] <= m:
            assert not side
            for _ in range(min(DN_WR, len(wr))):
                if wr[0][0] <= m: k.lg(wr.pop(0)[1])
            if wr and DN_WR == 1: wr[0] = (max(wr[0][0], m + DN_WGAP), wr[0][1])
            if not wr and a == 0: tail = min(m + 2, 111)
        if s == 27 and a:
            wr += [(m + 2, f"ds_write_b128 v{5+a}, {vr(vACC+16*a+4*j)} offset:{j*KB}") for j in range(4)]
        def fetch(bs):
            k("s_barrier")
            for b in bs:
                for j in range(4): t_ = k.lg(f"ds_read_b128 {vr(vACC+16+16*b+4*j)}, v9 offset:{b*4*KB + j*KB}")
                adds.extend((m + 2, t_, f"v_add_f32 v{vSUM+i}, v{vSUM+i}, v{vACC+16+16*b+i}") for i in range(16))
        if DN_X2 and m == 112 - R0:
            assert all('ds_write_b128 v6,' in x[1] for x in wr)
            k.wait_all(vm=False)
            fetch((2, 1))
        elif tail == m:
            k.wait_all(vm=False)
            fetch((0,) if DN_X2 else (2, 1, 0))
        else:
            for _ in range(2 if DN16 else DN_ADDS):
                if adds and adds[0][0] <= m:
                    _, t_, x = adds.pop(0); k.wait(lg=t_); k(x)
    assert not side and not wr and tail is not None and tail < 112
    for _, t_, x in adds:
        k.wait(lg=t_); k(x)
    if final and not OUT_T: rowmajor_addr(k, 6, sT0)
    for j in range(8):
        k(f"v_add_f32 v{vACC+2*j}, v{vACC+2*j}, v{vSUM+2*j}\nv_add_f32 v{vACC+2*j+1}, v{vACC+2*j+1}, v{vSUM+2*j+1}")
        k(f"v_cvt_pk_bf16_f32 v{vPK+j}, v{vACC+2*j}, v{vACC+2*j+1}")
        if DN16 and j in (3, 7): k(f"v_permlane16_swap_b32 v{vPK+j-3}, v{vPK+j-1}\nv_permlane16_swap_b32 v{vPK+j-2}, v{vPK+j}")
        if final and OUT_T and j in (3, 7): k.lg(f"ds_write_b128 v10, {vr(vPK+j-3)} offset:{(j >> 2)*32}")
    if final and OUT_T:
        k.wait_all(vm=False)
        k("s_barrier")
        t0 = k.lg(f"ds_read_b128 {vr(vPK)}, v11")
        t1 = k.lg(f"ds_read_b128 {vr(vPK+4)}, v11 offset:{8*144}")
        k.wait(lg=t0)
        k.vm(f"buffer_store_dwordx4 {vr(vPK)}, v13, {srd(sAUX)}, s{sT0} offen{OUT_SC}")
        k.wait(lg=t1)
        k.vm(f"buffer_store_dwordx4 {vr(vPK+4)}, v13, {srd(sAUX)}, s{sT2} offen{OUT_SC}")
    elif final:
        k.vm(f"buffer_store_dwordx4 {vr(vPK)}, v6, {srd(sAUX)}, s{sT0} offen{OUT_SC}")
        k.vm(f"buffer_store_dwordx4 {vr(vPK+4)}, v6, {srd(sAUX)}, s{sT0} offen offset:32{OUT_SC}")
    else:
        G.tx = store_x(k, vACC, vPK, L, 8, ring, m16=DN16)
    mark(k, 'end')

def k_main(name):
    k = Asm()
    G.nst = 0
    k(f".globl {name}\n.p2align 8\n.type {name},@function")
    k.label(name)
    if STAMP or PADTO or GATE: k("s_memrealtime s[42:43]")
    mark(k, 'start')
    k("s_cmp_ge_u32 s2, 256")
    k("s_cbranch_scc1 L_abort")
    k(f"s_load_dwordx2 s[{sWS}:{sWS+1}], s[0:1], 72")
    k(f"s_load_dwordx2 s[{sAUX}:{sAUX+1}], s[0:1], 56")
    k("s_load_dwordx2 s[60:61], s[0:1], 0\ns_load_dwordx4 s[64:67], s[0:1], 8\ns_load_dwordx4 s[68:71], s[0:1], 32\ns_load_dwordx2 s[72:73], s[0:1], 48")
    if CT0:
        k("s_getpc_b64 s[88:89]")
        k(f"s_lshr_b32 s90, s2, 3\ns_and_b32 s90, s90, {CT0 - 1}\ns_lshl_b32 s90, s90, 12\nv_lshl_add_u32 v3, v0, 4, s90")
        k.vm("global_load_dword v247, v3, s[88:89]")
    k("v_lshrrev_b32 v2, 6, v0")
    k(f"v_and_b32 v{vL16}, 63, v0")
    k(f"v_readfirstlane_b32 s{sW}, v2")
    k(f"v_lshlrev_b32 v{vL16}, 4, v{vL16}")
    k(f"s_mov_b32 s{sWG}, s2\ns_and_b32 s{sG}, s2, 7\ns_lshr_b32 s{sC}, s2, 3\ns_lshl_b32 s{sW1K}, s{sW}, 10")
    k(f"s_lshr_b32 s{sC4}, s{sC}, 4\ns_lshr_b32 s{sC3}, s{sC}, 3")
    k(f"s_lshl_b32 s{sU}, s{sG}, 5\ns_add_u32 s{sU}, s{sU}, s{sC}")
    k(f"s_lshl_b32 s{sW4K}, s{sW}, 12\ns_lshl_b32 s{sW2K}, s{sW}, 11")
    k(f"s_getreg_b32 s{sXCC}, hwreg(HW_REG_XCC_ID, 0, 4)")
    k(f"v_add_u32 v{vSRC}, s{sW1K}, v{vL16}")
    k(f"s_mov_b32 s{sMSK}, 0xffff\ns_mov_b32 s{sMSK+1}, 0xffff\ns_mov_b32 s{sMODE}, 0")
    k(f"s_and_b32 s{sT0}, s{sC}, 7\ns_mul_i32 s{sSEG}, s{sT0}, {WO_STR}\ns_add_u32 s{sSEG}, s{sSEG}, {WO}")
    k(f"s_lshl_b32 s{sT1}, s{sG}, 2\ns_add_u32 s{sT1}, s{sT1}, s{sC3}\ns_lshl_b32 s{sT1}, s{sT1}, 1\ns_and_b32 s{sT2}, s{sW}, 1\ns_add_u32 s{sT1}, s{sT1}, s{sT2}")
    k(f"s_lshl_b32 s{sT1}, s{sT1}, 5\ns_lshl_b32 s{sT0}, s{sT0}, 2\ns_add_u32 s{sT1}, s{sT1}, s{sT0}\ns_and_b32 s{sT2}, s{sW}, 2\ns_add_u32 s{sT1}, s{sT1}, s{sT2}\ns_lshl_b32 s{sDST}, s{sT1}, 10")
    k(f"s_lshr_b32 s{sSD}, s{sDST}, 12\ns_lshl_b32 s{sSD}, s{sSD}, 9\ns_lshl_b32 s{sT2}, s{sT2}, 2\ns_add_u32 s{sSD}, s{sSD}, s{sT2}\ns_add_u32 s{sSD}, s{sSD}, {SX}")
    k(f"s_and_b32 s{sT0}, s{sC}, 15\ns_mul_i32 s{sSEG+1}, s{sT0}, {WU_STR}\ns_add_u32 s{sSEG+1}, s{sSEG+1}, {WU}")
    k(f"s_mul_i32 s{sSEG+2}, s{sT0}, {WQ_STR}\ns_add_u32 s{sSEG+2}, s{sSEG+2}, {WQ}")
    def late(k):
        if WSOFF: k(f"s_add_u32 s{sWS}, s{sWS}, {WSOFF}\ns_addc_u32 s{sWS+1}, s{sWS+1}, 0")
        k(f"s_add_u32 s{sT0}, s{sWS}, {EP}\ns_addc_u32 s{sT1}, s{sWS+1}, 0")
        k(f"s_load_dwordx2 s[{sTAG}:{sTAG+1}], s[{sT0}:{sT1}], 0")
        k(f"s_and_b32 s{sWS+1}, s{sWS+1}, 0xffff\ns_mov_b32 s{sWS+2}, {0x10000000 - WSOFF}\ns_mov_b32 s{sWS+3}, 0x20000")
        k(f"s_and_b32 s{sAUX+1}, s{sAUX+1}, 0xffff\ns_mov_b32 s{sAUX+2}, {2*MB}\ns_mov_b32 s{sAUX+3}, 0x20000")
    G.ph = 'qkv0'; tk = (ph_qkv0k if Q0K else ph_qkv0)(k, late)
    for L in range(2):
        ring = Ring(k, [(sSEG, 64), (sSEG+1, 232)] + ([(sSEG+2, 100)] if L == 0 else []))
        G.ph = f'att{L}'; tO = ph_att(k, L, ring, *tk)
        G.ph = f'wo{L}'; tx = ph_wo(k, L, ring, tO)
        G.ph = f'up{L}'; tB = ph_up(k, L, ring, 64, tx)
        G.ph = f'dn{L}'; ph_down(k, L, ring, tB)
        G.ph = 'qkv1'
        if L == 0: tk = ph_qkv(k, 1, ring, 296)
    k(f"s_add_u32 s{sT0}, s{sWG}, s{sW}\ns_cmp_lg_u32 s{sT0}, 0\ns_cbranch_scc1 L_fin")
    k(f"s_mov_b32 s{sF}, {EP}")
    publish_local(k, None, force_global=True)
    k.label("L_fin")
    if PADTO:
        k("s_waitcnt vmcnt(0)")
        if PADMIN:
            k("s_load_dwordx2 s[64:65], s[0:1], 64\ns_waitcnt lgkmcnt(0)")
            k("s_not_b32 s66, s42\nv_mov_b32 v8, s66\nv_mov_b32 v9, 0\ns_mov_b64 exec, 1")
            k("global_atomic_umax v9, v8, s[64:65]\ns_waitcnt vmcnt(0)")
            k.label("L_pad0")
            k(f"s_memrealtime s[98:99]\ns_waitcnt lgkmcnt(0)\ns_sub_u32 s98, s98, s42\ns_cmp_lt_u32 s98, {PADTO - 1500}\ns_cbranch_scc1 L_pad0")
            k("global_load_dword v8, v9, s[64:65] sc1\ns_waitcnt vmcnt(0)\nv_readfirstlane_b32 s66, v8\ns_not_b32 s42, s66\ns_mov_b64 exec, -1")
        k.label("L_pad")
        k(f"s_memrealtime s[98:99]\ns_waitcnt lgkmcnt(0)\ns_sub_u32 s98, s98, s42\ns_cmp_lt_u32 s98, {PADTO}\ns_cbranch_scc1 L_pad")
    if STAMP:
        k("s_waitcnt vmcnt(0)")
        G.ph = ''; mark(k, 'fin')
        k("s_memrealtime s[98:99]\ns_waitcnt lgkmcnt(0)")
        vals = [42, 98, sMODE] + STS[:G.nst]
        for i, s_ in enumerate(vals): k(f"v_mov_b32 v{16+i}, s{s_}")
        k(f"s_lshl_b32 s{sT0}, s{sWG}, 2\ns_add_u32 s{sT0}, s{sT0}, s{sW}\ns_lshl_b32 s{sT0}, s{sT0}, 7\ns_add_u32 s{sT0}, s{sT0}, {TS}")
        k("v_mov_b32 v4, 0\ns_mov_b64 exec, 1")
        for j in range(8): k(f"buffer_store_dwordx4 {vr(16+4*j)}, v4, {srd(sWS)}, s{sT0} offen offset:{16*j}")
        if DBG is not None:
            k(f"s_lshl_b32 s{sT0}, s{sWG}, 2\ns_add_u32 s{sT0}, s{sT0}, s{sW}\ns_cmp_lg_u32 s{sT0}, {DBG}\ns_cbranch_scc1 L_nodbg")
            k("s_load_dwordx2 s[64:65], s[0:1], 64\ns_waitcnt lgkmcnt(0)")
            for i in range(16): k(f"v_sub_u32 v{64+i}, v{20+i}, v19")
            for j in range(4): k(f"global_store_dwordx4 v4, {vr(64+4*j)}, s[64:65] offset:{16*j}")
            k.label("L_nodbg")
    k("s_waitcnt vmcnt(0)")
    k.label("L_abort")
    k("s_endpgm")
    for x in G.near + G.far:
        if x.endswith(':'): k.label(x[:-1])
        else: k(x)
    k.label("L_end")
    return k

def build():
    name = NAME + "_kernel"
    k = k_main(name)
    nn = k.fix()
    print(f"{len(k.L)} lines, {nn} nop states", file=sys.stderr)
    head = f"; stamps: {','.join(G.names)}\n" if (STAMP or not FINAL) else HDR
    return f"""{head}; @launch grid=(256,1,1) block=(256,1,1) lds={160*KB}
.amdgcn_target "amdgcn-amd-amdhsa--gfx950"
.text
{k.text()}
.section .rodata,"a"
.p2align 6
.amdhsa_kernel {name}
  .amdhsa_next_free_vgpr 512
  .amdhsa_next_free_sgpr 102
  .amdhsa_accum_offset 256
  .amdhsa_group_segment_fixed_size 0
  .amdhsa_kernarg_size 80
  .amdhsa_user_sgpr_count 2
  .amdhsa_user_sgpr_kernarg_segment_ptr 1
  .amdhsa_system_sgpr_workgroup_id_x 1
.end_amdhsa_kernel
"""

if __name__ == "__main__":
    for a in sys.argv[2:]:
        kk_, vv_ = a.split('=', 1)
        globals()[kk_] = eval(vv_)
    open(sys.argv[1], "w").write(build())
```

```python
import sys, struct
from asmlib import Asm

NAME = "interleave_layers__mha_block__glu_gated_bilinear__prompt"
KB = 1024; MB = KB * KB
LOG2E = 1.4426950408889634
def f2u(x): return struct.unpack('<I', struct.pack('<f', x))[0]
def srd(b): return f"s[{b}:{b+3}]"
def vr(b, n=4): return f"v[{b}:{b+n-1}]"
def ar(b, n=4): return f"a[{b}:{b+n-1}]"

WQ = 0;                    WQ_STR = 100 * KB
WO = WQ + 16 * WQ_STR;     WO_STR = 64 * KB
WU = WO + 8 * WO_STR;      WU_STR = 232 * KB
WD = WU + 16 * WU_STR
FL = 7 * MB + 640 * KB
assert WD + 16 * 112 * KB <= FL
EP = FL
XID = FL + 1 * KB
def FLOC(L, p): return FL + 4 * KB + (L * 13 + p) * 8 * KB
FKV0 = FL + 4 * KB + 26 * 8 * KB
def FKV(L): return FKV0 + L * 32 * KB
FPK = FKV0 + 64 * KB
assert FPK + 32 * KB <= 8 * MB
XF = 8 * MB
HF = 10 * MB
QF = HF
SX = 17 * MB
SG = SX + 512 * KB
def KVF(L): return 18 * MB + L * 4 * MB
WS_PAGES = 13
TS = 27 * MB
DUMP = 0x7ff00000

STAMP = False
STAGED = True; X4_AT = 12
DEEP = False
Q0_MARKQ = ()
LN_BF16 = True
XB_PRE = 0
Q0K_FLAG = 29; Q0K = True; Q0K_Q = (3, 4, 4, 4, 5, 5, 5, 5); Q0K_LEAD = 20; Q0K_EPI = 5
RES_AT = 97
PKR_AT = 5; PK_WAIT = 0; PUB_AT = 17
QF_AT = 1
PREFILL = 128; A1_AT = (0, 2); KVF_AT = (3, 0); P2 = ((0, 2), (3, 6)); Q0_RSH = 1
Q0G = False; Q0_ST0 = 24; Q0_GLD = 5
DIAG_W = False
U16_HOLD = 999; U16_BIG = False
DN16 = False
UP16 = True; U16_FIN = 64; U16_PUB = (156, 206); U16_POLL = (174, 226); U16_CHK = 188; U16_SLOTS = 3
FL1 = False; PP_SLEEP = 1
FINAL = False
HDR = "; Two transformer layers (LN -> MHA -> residual, LN -> bilinear GLU -> residual) in ONE persistent launch:\n;    finite, else the wave recomputes its rows with the true row maximum subtracted (labels fb_*).\n"
NEAR = True; CT0 = 8
GATE = None
WB_EARLY = False
DIAG_NOP = {}
UP4 = False; DN_POLL3 = 18; DN_CHK3 = 30
DN_X2 = True; DN_ADDS = 5; DN_CR = 2
RES_LATE = (False, False); XRES_TOUCH = 0
HEAD = 0
QKV_QE = 6; QKV_EPI = 5
R1_AT = 44; R1_STEP = 6
KV_LOC = True
PADTO = 0; PADMIN = False
OUT_T = True
ATT_NT = 3
PK_WIN2 = False; PK_SP = 0
WARM_AT = 1
RT = False
DN_CHK2 = 4
CT_AT = 92
FORCE_FB = False
WB_MASK = 127; OUT_SC = ' sc1'; DN_WR = 1; DN_WGAP = 2
QW_LATE = False; QW_UP = 16; QW_TOUCH = (72, 100); QW_N1 = 4
PK_Q0 = False; PK_RD = 1; PK_ST = 3; CHK_Q0 = 15
WO_STOP = 32; WO_R0 = 8; WO_N0 = 10; ST_PRE = 5; PPOLL = 0; KV_PF = (0, 0); PK_EARLY = True
FL_TOUCH = False
SPLIT_ST = True
FINE = False
UP_EPI = 2; UP_PUB = (154, 206); DN_POLL = (172, 226); DN_CHK = (186,); UP_LOOK = 8; UP_SYNCS = {0, 48, 80, 112, 144, 176, 200}; UP_SKIP = (0, 0); UP_STOP = 222
DN_PUBB = 4; DN_BAR = 14; DN_POLLB = 7; DN_CHKB = 12; DN_R = 8; DN_R0 = 12
FLAG_TOUCH = False
WSOFF = 0
SLEEP1 = (0, 0); SLEEP2 = 0; SLEEP3 = 0
DBG = None
PRE = 2; PRE2 = 0
PRE_WO = 0; PRE_WO2 = 0
CODE_TOUCH = True
WD_SLOTS = (2, 4, 6)
TOUCH_AT = (99, 96); TOUCH_STEP = (2, 2); TOUCH_LN = 32; TH_STEP = 3; TOUCH_KBS = (64, 96)
RING = 144
PK_T0 = 9; PK_GAP = 6; PK_GAP2 = 9; CHK_GAP = 14
P2_AT = 6
P2_LEAD = 4
TACTS = (103, 102); EARLY_H = 0

sC4, sC3 = 2, 3
sWS, sAUX = 4, 8
sW, sG, sC, sW1K = 12, 13, 14, 15
sT0, sT1, sT2, sT3 = 16, 17, 18, 19
sX, sRS, sRB = 20, 21, 22
sA, sB, sCc, sD, sE = 23, 24, 25, 26, 27
sS0, sS1 = 28, 21
sMSK, sTAG, sMODE, sXCC = 30, 32, 34, 35
sSEG = 36
sX2 = 39
sSPIN, sF = 40, 41
STS = list(range(44, 56, 2)) + [92, 94, 56, 58, 74, 76, 80, 82, 86, 88, 60, 62]
sWG = 101
sW4K = 97
sW2K = 99
sSD = 29
sPC, sCT = 90, 85
sDST = 100
vL16, vSRC, vB = 1, 2, 3
aWD, aWB = 0, 224

class G:
    nst = 0
    names = []
    far = []
    near = []
    ph = ''
SKIP = ''
ATT_MARKS = ()
GEMM_MARKS = {}
def mark(k, nm='x'):
    import re
    nm = G.ph + '_' + nm
    if GATE and GATE[0] == nm:
        k.label("L_gate")
        k(f"s_memrealtime s[44:45]\ns_waitcnt lgkmcnt(0)\ns_sub_u32 s44, s44, s42\ns_cmp_lt_u32 s44, {GATE[1]}\ns_cbranch_scc1 L_gate")
    if SKIP and re.match(SKIP, nm): return
    if '_f_' in nm and not FINE: return
    if STAMP:
        G.names.append(nm)
        k(f"s_mem{'real' if RT else ''}time s[{STS[G.nst]}:{STS[G.nst]+1}]")
        G.nst += 1

class Ring:
    def __init__(self, k, segs):
        self.k = k; self.N = RING
        self.total = sum(n for _, n in segs)
        self.starts = {}
        b = 0
        for s, n in segs:
            assert n % 4 == 0
            self.starts[b] = s; b += n
        self.issued = 0; self.freed = 0; self.visible = 0
        self.limit = None
        self.tick = {}
        self.pair = False
    def can_issue(self):
        if self.limit is not None and self.issued + 4 > self.limit: return False
        return self.issued < self.total and self.issued + 4 <= self.freed + self.N
    def issue(self):
        k = self.k
        assert self.can_issue()
        slot = self.issued % self.N
        k(f"s_add_u32 m0, s{sW1K}, {slot*KB}")
        if self.issued in self.starts: k(f"s_mov_b32 s{sRS}, s{self.starts[self.issued]}")
        else: k(f"s_add_u32 s{sRS}, s{sRS}, 4096")
        self.tick[self.issued // 4] = k.vm(f"buffer_load_dwordx4 v{vSRC}, {srd(sWS)}, s{sRS} offen sc1 lds")
        self.issued += 4
    def parts(self):
        k = self.k
        assert self.can_issue()
        b = self.issued; self.issued += 4
        def ld(): self.tick[b // 4] = k.vm(f"buffer_load_dwordx4 v{vSRC}, {srd(sWS)}, s{sRS} offen sc1 lds")
        return [lambda: k(f"s_add_u32 m0, s{sW1K}, {(b % self.N)*KB}"),
                lambda: k(f"s_mov_b32 s{sRS}, s{self.starts[b]}" if b in self.starts else f"s_add_u32 s{sRS}, s{sRS}, 4096"), ld]
    def can8(self):
        b = self.issued
        if b % 8 or (b + 4) in self.starts or b + 8 > self.total or b + 8 > self.freed + self.N: return False
        return self.limit is None or b + 8 <= self.limit
    def parts8(self):
        k = self.k
        b = self.issued; self.issued += 8
        first = not self.pair; self.pair = True
        def src():
            if b in self.starts: k(f"s_add_u32 s{sRS}, s{self.starts[b]}, s{sW1K}")
            elif first: k(f"s_add_u32 s{sRS}, s{sRS}, 4096\ns_add_u32 s{sRS}, s{sRS}, s{sW1K}")
            else: k(f"s_add_u32 s{sRS}, s{sRS}, 8192")
        def ld1(): self.tick[b // 4] = self.tick[b // 4 + 1] = k.vm(f"buffer_load_dwordx4 v{vSRC}, {srd(sWS)}, s{sRS} offen offset:1024 sc1 lds")
        return [lambda: k(f"s_add_u32 m0, s{sW2K}, {(b % self.N)*KB}"), src,
                lambda: k.vm(f"buffer_load_dwordx4 v{vSRC}, {srd(sWS)}, s{sRS} offen sc1 lds")], [ld1]
    def end8(self):
        if self.pair:
            self.k(f"s_add_u32 s{sRS}, s{sRS}, 4096\ns_sub_u32 s{sRS}, s{sRS}, s{sW1K}")
            self.pair = False
    def issue16(self):
        k = self.k
        b = self.issued; slot = b % self.N
        assert slot + 16 <= self.N and b + 16 <= min(self.limit or 1 << 30, self.freed + self.N)
        assert not any(x in self.starts for x in range(b + 1, b + 16))
        k(f"s_add_u32 m0, s{sW4K}, {slot*KB}")
        if b in self.starts: k(f"s_add_u32 s{sRS}, s{self.starts[b]}, s{sW4K}")
        else: k(f"s_add_u32 s{sRS}, s{sRS}, 16384")
        for i in range(4):
            t = k.vm(f"buffer_load_dwordx4 v{vL16}, {srd(sWS)}, s{sRS} offen offset:{i*KB} sc1 lds")
        for q in range(4): self.tick[b // 4 + q] = t
        self.issued += 16
    def end16(self):
        self.k(f"s_sub_u32 s{sRS}, s{sRS}, s{sW4K}\ns_add_u32 s{sRS}, s{sRS}, 12288")
    def issue_n(self, n):
        for _ in range(n):
            if self.can_issue(): self.issue()
    def sync(self, consumed, need):
        k = self.k
        need = min(need, self.total)
        if need > self.visible:
            q = (need - 1) // 4
            assert q * 4 < self.issued, (need, self.issued)
            k.wait(vm=self.tick[q])
        k("s_barrier")
        q = self.visible // 4
        while q in self.tick and self.tick[q] <= k.vm_done: q += 1
        self.visible = q * 4
        assert self.visible >= need
        self.freed = max(self.freed, (consumed // 4) * 4)
    def addr(self, b): return (b % self.N) * KB

def set_lds_bases(k, extra_s=None):
    if extra_s is None: k(f"v_mov_b32 v{vB}, v{vL16}")
    else: k(f"v_add_u32 v{vB}, s{extra_s}, v{vL16}")
    k(f"v_add_u32 v{vB+1}, 0x10000, v{vB}")
    k(f"v_add_u32 v{vB+2}, 0x20000, v{vB}")

class XLoader:
    def __init__(self, k, total, reg, src, va=vL16):
        self.k = k; self.total = total; self.reg = reg; self.src = src; self.n = 0; self.t = []; self.va = va
        self.hold = total
    def issue_n(self, n):
        k = self.k
        for _ in range(n):
            i = self.n
            if i >= min(self.total, self.hold): return
            s_, imm = self.src(i)
            self.t.append(k.vm(f"buffer_load_dwordx4 {self.reg(i)}, v{self.va}, {srd(sWS)}, s{s_} offen offset:{imm} sc1"))
            self.n += 1
def lin_src(k):
    def f(i):
        if i and (i & 3) == 0: k(f"s_add_u32 s{sX}, s{sX}, 4096")
        return sX, (i & 3) * KB
    return f

class Gemm:
    def __init__(self, k, ring, ops, syncs, D=4, NB=8, stop_issue=None):
        self.k = k; self.ring = ring; self.ops = ops; self.syncs = sorted(syncs)
        assert all(x % 2 == 0 for x in syncs)
        self.D = D; self.NB = NB; self.tl = {}; self.nread = 0
        self.stop = stop_issue if stop_issue is not None else len(ops)
    def rd(self):
        k = self.k; m = self.nread; o = self.ops[m]
        assert o['bmax'] < self.ring.visible, (m, o['b'], self.ring.visible)
        a = self.ring.addr(o['b'])
        self.tl[m] = k.lg(f"ds_read_b128 {ar(aWB + 4*(m % self.NB))}, v{vB + (a >> 16)} offset:{a & 0xffff}")
        self.nread += 1
    def need_until(self, m):
        M = len(self.ops)
        nxt = [s for s in self.syncs if s > m]
        last = min((nxt[0] if nxt else M) - 1 + self.D, M - 1)
        return max(o['bmax'] for o in self.ops[:last+1]) + 1
    def start(self):
        self.ring.sync(self.ops[0]['bmin'], self.need_until(0))
        while self.nread < min(self.D, len(self.ops)): self.rd()
    def run(self, xq, n0=6, look=10, filler=None, misc=(), misc_from=0, skip=0):
        k = self.k; M = len(self.ops)
        misc = list(misc)
        xq.issue_n(n0)
        cur = 0
        for m in range(M):
            if m in self.syncs and m > 0:
                self.ring.sync(self.ops[m]['bmin'], self.need_until(m))
            o = self.ops[m]
            xt = None
            if m % 2 == 0:
                xs = [p['xi'] for p in self.ops[m:m+2] if p.get('xi') is not None]
                if xs:
                    cur = max(cur, max(xs))
                    while xq.n <= max(xs): xq.issue_n(1)
                    xt = xq.t[max(xs)]
                k.wait(vm=xt, lg=self.tl[min(m + 1, M - 1)])
            w = ar(aWB + 4*(m % self.NB))
            c = o.get('c0', '0') if o['first'] else o['acc']
            A, B = (o['x'], w) if o['swap'] else (w, o['x'])
            k(f"v_mfma_f32_32x32x16_bf16 {o['acc']}, {A}, {B}, {c}")
            if m == 0: mark(k, 'm0')
            if m in GEMM_MARKS.get(G.ph, ()): mark(k, f'm{m}')
            if m % 2 == 0:
                for _ in range(2):
                    if self.nread < M: self.rd()
                if DIAG_NOP.get(G.ph): k(f"s_nop {DIAG_NOP[G.ph]}")
            elif not (skip and m % skip == skip - 1):
                rok = m < self.stop and self.ring.can_issue()
                if xq.n < xq.total and (xq.n - cur < look or not (rok or (misc and m >= misc_from))): xq.issue_n(1)
                elif misc and m >= misc_from: misc.pop(0)()
                elif rok: self.ring.issue()
            if filler: filler(m)
        assert not misc

def stats_emitters(k, vt, res):
    k(f"s_lshl_b32 s{sS0}, s{sRB}, 12\ns_add_u32 s{sS0}, s{sS0}, {SX}")
    def mk(i):
        def f(): res['t'] = k.vm(f"buffer_load_dwordx4 {vr(vt+4*i)}, v{vL16}, {srd(sWS)}, s{sS0} offen offset:{i*KB} sc1")
        return f
    return [mk(i) for i in range(4)]

NTREE = 14
def fin_stats(vt, vext, vrstd):
    ins = []
    n = 8
    while n > 1:
        h = n // 2
        for i in range(h):
            ins.append(f"v_add_f32 v{vt+2*i}, v{vt+2*i}, v{vt+2*(i+h)}")
            ins.append(f"v_add_f32 v{vt+2*i+1}, v{vt+2*i+1}, v{vt+2*(i+h)+1}")
        n = h
    a, b, c, d = vt, vt+1, vt+2, vt+3
    ins += [f"v_mov_b32 v{c}, v{a}", f"v_mov_b32 v{d}, v{b}",
            f"v_permlane32_swap_b32 v{a}, v{c}", f"v_permlane32_swap_b32 v{b}, v{d}",
            f"v_add_f32 v{a}, v{a}, v{c}", f"v_add_f32 v{b}, v{b}, v{d}",
            f"v_mul_f32 v{a}, {hex(f2u(-1.0/512))}, v{a}",
            f"v_mul_f32 v{b}, {hex(f2u(1.0/512))}, v{b}",
            f"v_fma_f32 v{b}, -v{a}, v{a}, v{b}",
            f"v_max_f32 v{b}, 0, v{b}"]
    rnd = lambda r: [f"v_cvt_pk_bf16_f32 v{r}, v{r}, 0", f"v_lshlrev_b32 v{r}, 16, v{r}"]
    if LN_BF16:
        ins += rnd(b) + [f"v_add_f32 v{b}, {hex(f2u(1e-5))}, v{b}"] + rnd(b) + [f"v_sqrt_f32 v{b}, v{b}",
                f"v_cvt_pk_bf16_f32 v{vext}, v{a}, v{a}"] + rnd(b) + [f"v_rcp_f32 v{vrstd}, v{b}",
                f"v_mov_b32 v{vext+1}, 0", f"v_mov_b32 v{vext+2}, v{vext}", f"v_mov_b32 v{vext+3}, 0"]
    else:
        ins += [f"v_add_f32 v{b}, {hex(f2u(1e-5))}, v{b}", f"v_rsq_f32 v{vrstd}, v{b}",
                f"v_cvt_pk_bf16_f32 v{vext}, v{a}, v{a}", f"v_and_b32 v{c}, 0xffff0000, v{vext}", f"v_sub_f32 v{c}, v{a}, v{c}",
                f"v_cvt_pk_bf16_f32 v{vext+1}, v{c}, 0", f"v_mov_b32 v{vext+2}, v{vext}", f"v_mov_b32 v{vext+3}, v{vext+1}"]
    return ins

def poll(k, vaddr, vpd, sleep=0):
    l = k.newlabel('poll')
    k(f"s_mov_b32 s{sSPIN}, 0x40000")
    k.label(l)
    k.vm(f"buffer_load_dwordx2 {vr(vpd,2)}, v{vaddr}, {srd(sWS)}, s{sF} offen sc1")
    k(f"s_sub_u32 s{sSPIN}, s{sSPIN}, 1")
    k("s_cbranch_scc1 L_abort")
    k.wait_all(lg=False)
    k(f"v_cmp_ne_u64 vcc, s[{sTAG}:{sTAG+1}], {vr(vpd,2)}")
    k(f"s_cbranch_vccnz {l}")
class APoll:
    def __init__(self, k, loads, cmp, sleep=0, mask=None):
        self.k = k; self.loads = loads; self.cmp = cmp; self.sleep = sleep; self.br = "s_cbranch_vccnz"
        if mask is not None:
            self.cmp += f"\ns_and_b32 s{sT3}, vcc_lo, {hex(mask)}"; self.br = "s_cbranch_scc1"
    def issue(self):
        for x in self.loads:
            if x.startswith('buffer'): self.t = self.k.vm(x)
            else: self.k(x)
    def check(self):
        k = self.k
        l = k.newlabel('ap'); ok = k.newlabel('apok')
        k.wait(vm=self.t)
        k(self.cmp)
        k(f"{self.br} {l}")
        k.label(ok)
        (G.near if NEAR else G.far).extend([f"{l}:", f"s_mov_b32 s{sSPIN}, 0x40000", f"{l}_l:"] + list(self.loads) + [
            f"s_sub_u32 s{sSPIN}, s{sSPIN}, 1", "s_cbranch_scc1 L_abort", "s_waitcnt vmcnt(0)", self.cmp,
            f"{self.br} {l}_l", f"s_branch {ok}"])
def flush_near(k):
    if not G.near: return
    l = k.newlabel('nr')
    k(f"s_branch {l}")
    for x in G.near:
        if x.endswith(':'): k.label(x[:-1])
        else: k(x)
    k.label(l)
    G.near.clear()
def apoll1(k, vaddr, vpd, soff, sleep=0, mask=None):
    return APoll(k, [f"buffer_load_dwordx2 {vr(vpd,2)}, v{vaddr}, {srd(sWS)}, s{soff} offen sc1"],
                 f"v_cmp_ne_u64 vcc, s[{sTAG}:{sTAG+1}], {vr(vpd,2)}", sleep, mask)
def ppoll(k, vaddr, vd, n):
    l = k.newlabel('pp'); ok = k.newlabel('ppok')
    ld = lambda i: f"buffer_load_dwordx2 {vr(vd+2*i,2)}, v{vaddr}, {srd(sWS)}, s{sF} offen sc1"
    k(f"s_mov_b32 s{sSPIN}, 0x20000")
    for i in range(n - 1): k(ld(i))
    k.label(l)
    for i in range(n):
        k(ld((i + n - 1) % n))
        k(f"s_waitcnt vmcnt({n-1})")
        k(f"v_cmp_ne_u64 vcc, s[{sTAG}:{sTAG+1}], {vr(vd+2*i,2)}")
        k(f"s_cbranch_vccz {ok}")
        if PP_SLEEP: k(f"s_sleep {PP_SLEEP}")
    k(f"s_sub_u32 s{sSPIN}, s{sSPIN}, 1")
    k(f"s_cbranch_scc0 {l}")
    k("s_branch L_abort")
    k.label(ok)
    k.vm_done = k.vm_issued
def poll16(k):
    flush_near(k)
    k("v_and_b32 v13, 15, v0\nv_lshlrev_b32 v13, 3, v13")
    if PPOLL: ppoll(k, 13, 248, PPOLL)
    else: poll(k, 13, 14)

TAGMOV = [f"v_mov_b32 v14, s{sTAG}", f"v_mov_b32 v15, s{sTAG+1}"]
def publish_local(k, last_store, force_global=False, movs=True):
    if movs:
        for x in TAGMOV: k(x)
    if force_global:
        k.wait(vm=last_store)
        k.vm(f"buffer_store_dwordx2 v[14:15], off, {srd(sWS)}, s{sF} sc1")
        return
    slow = k.newlabel('slow'); join = k.newlabel('join')
    k(f"s_cmp_eq_u32 s{sMODE}, 0")
    k(f"s_cbranch_scc1 {slow}")
    if FL1: k("s_mov_b64 exec, 1")
    k.wait(vm=last_store)
    k.vm(f"buffer_store_dwordx2 v[14:15], off, {srd(sWS)}, s{sF}")
    if FL1: k("s_mov_b64 exec, -1")
    k.label(join)
    G.far += [f"{slow}:", "s_waitcnt vmcnt(0)", "buffer_wbl2 sc1", "s_waitcnt vmcnt(0)",
              f"buffer_store_dwordx2 v[14:15], off, {srd(sWS)}, s{sF} sc1", f"s_branch {join}"]
def publish_wg(k, last_store, xid=False, barrier=True):
    l = k.newlabel('pw')
    k(f"v_mov_b32 v13, 0\nv_mov_b32 v14, s{sTAG}\nv_mov_b32 v15, s{sTAG+1}")
    k.wait(vm=last_store)
    if barrier: k("s_barrier")
    k(f"s_cmp_lg_u32 s{sW}, 0\ns_cbranch_scc1 {l}")
    k("s_mov_b64 exec, 1")
    if xid:
        k(f"v_xor_b32 v12, s{sXCC}, v14\nv_mov_b32 v13, v15")
        k(f"buffer_store_dwordx4 v[12:15], v{vL16}, {srd(sWS)}, s{sF} offen sc1")
    else:
        k(f"buffer_store_dwordx2 v[14:15], v13, {srd(sWS)}, s{sF} offen sc1")
    k("s_mov_b64 exec, -1")
    k.label(l)

def rb_128(k):
    k(f"s_lshl_b32 s{sT0}, s{sC4}, 2\ns_lshl_b32 s{sRB}, s{sG}, 3\ns_add_u32 s{sRB}, s{sRB}, s{sT0}\ns_add_u32 s{sRB}, s{sRB}, s{sW}")

def store_x(k, acc, pk, L, p, ring=None, m16=False):
    k(f"s_add_u32 s{sT1}, s{sDST}, {XF}")
    k.vm(f"buffer_store_dwordx4 {vr(pk)}, v{vL16}, {srd(sWS)}, s{sT1} offen")
    td = k.vm(f"buffer_store_dwordx4 {vr(pk+4)}, v{vL16}, {srd(sWS)}, s{sT1} offen offset:1024")
    mark(k, 'f_xs')
    A_ = [acc + i for i in ((0, 1, 2, 3, 8, 9, 10, 11) if m16 else range(0, 16, 2))]
    B_ = [acc + i for i in ((4, 5, 6, 7, 12, 13, 14, 15) if m16 else range(1, 16, 2))]
    k(f"v_add_f32 v10, v{A_[0]}, v{A_[1]}\nv_mul_f32 v11, v{A_[0]}, v{A_[0]}\nv_add_f32 v8, v{B_[0]}, v{B_[1]}\nv_mul_f32 v9, v{B_[0]}, v{B_[0]}")
    k(f"v_fmac_f32 v11, v{A_[1]}, v{A_[1]}\nv_fmac_f32 v9, v{B_[1]}, v{B_[1]}")
    for i in range(2, 8):
        k(f"v_add_f32 v10, v10, v{A_[i]}\nv_fmac_f32 v11, v{A_[i]}, v{A_[i]}\nv_add_f32 v8, v8, v{B_[i]}\nv_fmac_f32 v9, v{B_[i]}, v{B_[i]}")
        if ring and i in (2, 5): ring.issue_n(ST_PRE)
    if m16: k("v_permlane16_swap_b32 v10, v8\nv_permlane16_swap_b32 v11, v9")
    k("v_add_f32 v10, v10, v8\nv_add_f32 v11, v11, v9\nv_mov_b32 v8, v10\nv_mov_b32 v9, v11")
    k("v_permlane32_swap_b32 v10, v8\nv_permlane32_swap_b32 v11, v9\nv_add_f32 v10, v10, v8\nv_add_f32 v11, v11, v9")
    k("s_mov_b32 exec_hi, 0")
    ts = k.vm(f"buffer_store_dwordx2 v[10:11], v{vL16}, {srd(sWS)}, s{sSD} offen")
    k("s_mov_b64 exec, -1")
    k(f"s_lshr_b32 s{sF}, s{sDST}, 8\ns_add_u32 s{sF}, s{sF}, {FLOC(L, p)}")
    mark(k, 'f_ss')
    if SPLIT_ST:
        publish_local(k, td)
        k(f"s_add_u32 s{sF}, s{sF}, {FLOC(L, 6 if p == 1 else 7) - FLOC(L, p)}")
    return ts
def stats_poll(k, delta):
    if not SPLIT_ST: return []
    k(f"s_add_u32 s{sF}, s{sF}, {delta}")
    ap = apoll1(k, 13, 14, sF)
    return ap

def rowmajor_addr(k, va, s_out):
    k(f"v_and_b32 v{va}, 31, v0\nv_lshlrev_b32 v{va}, 10, v{va}\nv_bfe_u32 v{va+1}, v0, 5, 1\nv_lshlrev_b32 v{va+1}, 4, v{va+1}\nv_add_u32 v{va}, v{va}, v{va+1}")
    k(f"s_and_b32 s{s_out}, s{sDST}, 0xffff8000\ns_bfe_u32 s{sT3}, s{sDST}, 0x5000a\ns_lshl_b32 s{sT3}, s{sT3}, 5\ns_add_u32 s{s_out}, s{s_out}, s{sT3}")

sU = 96
def pack_decode(k):
    nm = "pk"; u = f"s{sU}"
    k(f"s_min_u32 s83, {u}, 231")
    u = "s83"
    k(f"s_and_b32 s90, s{sW}, 1\ns_lshr_b32 s91, s{sW}, 1")
    k(f"s_cmp_lt_u32 {u}, 48\ns_cbranch_scc1 {nm}_q")
    k(f"s_cmp_lt_u32 {u}, 160\ns_cbranch_scc1 {nm}_u")
    k(f"s_cmp_lt_u32 {u}, 176\ns_cbranch_scc1 {nm}_o")
    k(f"s_sub_u32 s84, {u}, 176\ns_lshl_b32 s84, s84, 2\ns_add_u32 s84, s84, s{sW}")
    k("s_and_b32 s85, s84, 15\ns_lshr_b32 s86, s84, 4")
    k("s_lshl_b32 s87, s85, 6")
    k("s_add_u32 s74, s72, s87\ns_addc_u32 s75, s73, 0\ns_mov_b32 s76, s74\ns_mov_b32 s77, s75")
    k("s_mov_b32 s78, 1024\ns_lshl_b32 s79, s86, 7")
    k(f"s_mul_i32 s80, s85, 14\ns_add_u32 s80, s80, s86\ns_lshl_b32 s80, s80, 13\ns_add_u32 s80, s80, {WD}\ns_mov_b32 s81, 1024\ns_mov_b32 s88, s81\ns_mov_b32 s82, {DUMP}")
    k(f"s_branch {nm}_go")
    k.label(f"{nm}_o")
    k(f"s_sub_u32 s85, {u}, 160\ns_lshr_b32 s88, s85, 3\ns_and_b32 s85, s85, 7")
    k("s_lshl_b32 s87, s85, 1\ns_add_u32 s87, s87, s90\ns_lshl_b32 s87, s87, 6")
    k("s_add_u32 s74, s66, s87\ns_addc_u32 s75, s67, 0\ns_mov_b32 s76, s74\ns_mov_b32 s77, s75")
    k("s_mov_b32 s78, 1024\ns_lshl_b32 s79, s88, 1\ns_add_u32 s79, s79, s91\ns_lshl_b32 s79, s79, 7")
    k("s_lshl_b32 s89, s91, 15\ns_xor_b32 s90, s90, s88\ns_lshl_b32 s88, s88, 1\ns_add_u32 s90, s90, s88\ns_lshl_b32 s90, s90, 10")
    k(f"s_mul_i32 s80, s85, {WO_STR}\ns_add_u32 s80, s80, s89\ns_add_u32 s80, s80, s90\ns_add_u32 s80, s80, {WO}")
    k(f"s_mov_b32 s81, 4096\ns_mov_b32 s88, s81\ns_mov_b32 s82, {DUMP}")
    k(f"s_branch {nm}_go")
    k.label(f"{nm}_u")
    k(f"s_sub_u32 s85, {u}, 48\ns_mul_i32 s84, s85, 2341\ns_lshr_b32 s84, s84, 16\ns_mul_i32 s86, s84, 28\ns_sub_u32 s85, s85, s86")
    k(f"s_lshl_b32 s85, s85, 2\ns_add_u32 s85, s85, s{sW}\ns_lshl_b32 s87, s85, 5")
    k("s_add_u32 s74, s68, s87\ns_addc_u32 s75, s69, 0")
    k("s_add_u32 s76, s70, s87\ns_addc_u32 s77, s71, 0\ns_sub_u32 s76, s76, 32\ns_subb_u32 s77, s77, 0")
    k("s_mov_b32 s78, 3584")
    k("s_mul_i32 s86, s85, 9363\ns_lshr_b32 s86, s86, 16\ns_mul_i32 s88, s86, 7\ns_sub_u32 s88, s85, s88")
    if DN16: k("s_sub_u32 s89, 6, s88\ns_bitcmp0_b32 s86, 0\ns_cselect_b32 s88, s89, s88")
    k(f"s_mul_i32 s91, s86, {WU_STR}\ns_add_u32 s91, s91, {WU}\ns_lshl_b32 s89, s88, 10\ns_add_u32 s91, s91, s89")
    k(f"s_cmp_lt_u32 s88, 5\ns_cselect_b32 s90, 3, 5\ns_lshl_b32 s89, s90, 15\ns_add_u32 s89, s89, 1024")
    k(f"s_cmp_lt_u32 s88, 3\ns_cselect_b32 s81, 3, 2\ns_cselect_b32 s89, 0, s89\ns_cselect_b32 s90, 0, s90\ns_lshl_b32 s81, s81, 10\ns_add_u32 s91, s91, s89")
    k("s_sub_u32 s85, s88, s90\ns_lshl_b32 s85, s85, 10\ns_mov_b32 s88, 1024")
    k(f"s_branch {nm}_ext")
    k.label(f"{nm}_q")
    k(f"s_cmp_ge_u32 {u}, 24\ns_cselect_b32 s84, 2, 0\ns_cselect_b32 s86, 24, 0\ns_add_u32 s84, s84, s91\ns_sub_u32 s85, {u}, s86")
    k("s_lshl_b32 s85, s85, 1\ns_add_u32 s85, s85, s90\ns_and_b32 s86, s85, 15\ns_lshr_b32 s88, s85, 4")
    k("s_lshl_b32 s87, s85, 6\ns_lshl_b32 s89, s88, 10")
    k("s_add_u32 s74, s64, s87\ns_addc_u32 s75, s65, 0\ns_mov_b32 s76, s74\ns_mov_b32 s77, s75")
    k("s_mov_b32 s78, 3072")
    k(f"s_sub_u32 s89, s89, 1024\ns_cmp_eq_u32 s88, 0\ns_cselect_b32 s89, {66*KB}, s89\ns_cselect_b32 s81, 1, 2\ns_lshl_b32 s81, s81, 10")
    k(f"s_mul_i32 s91, s86, {WQ_STR}\ns_add_u32 s91, s91, s89\ns_add_u32 s91, s91, {WQ}\ns_mov_b32 s85, 0\ns_mov_b32 s88, s81")
    k.label(f"{nm}_ext")
    k("s_lshl_b32 s79, s84, 7")
    k("s_lshl_b32 s89, s81, 5\ns_add_u32 s82, s91, s89\ns_lshr_b32 s89, s84, 1\ns_lshl_b32 s89, s89, 9\ns_add_u32 s82, s82, s89")
    k("s_and_b32 s89, s84, 1\ns_lshl_b32 s89, s89, 3\ns_add_u32 s82, s82, s89")
    k("s_lshl_b32 s89, s81, 3\ns_mul_i32 s89, s89, s84\ns_add_u32 s80, s91, s89\ns_add_u32 s80, s80, s85")
    k.label(f"{nm}_go")
    k(f"s_cmp_ge_u32 s{sU}, 232\ns_cselect_b32 s80, {DUMP}, s80")
    k("v_bfe_u32 v4, v0, 2, 4\nv_add_u32 v4, s79, v4\nv_mul_lo_u32 v4, v4, s78")
    k("v_and_b32 v13, 3, v0\nv_lshlrev_b32 v13, 4, v13\nv_add_u32 v4, v4, v13")
    k(f"s_lshl_b32 s83, s78, 4")
    if PK_Q0: k(f"s_lshl_b32 s84, s{sW}, 13\ns_add_u32 s84, s84, {64*KB}")
    elif Q0K: k(f"s_lshl_b32 s84, s{sW}, 13")
    elif PK_EARLY: k(f"s_lshl_b32 s84, s{sW}, 13\ns_add_u32 s84, s84, {4*KB}")
    else: k(f"s_lshl_b32 s84, s{sW}, 14\ns_add_u32 s84, s84, {96*KB}")
    k("s_mov_b32 s86, s83\ns_mov_b32 s87, 0\ns_lshl_b32 s83, s81, 1\ns_sub_u32 s83, s83, s88\ns_mov_b32 s81, s88")
    k("v_and_b32 v13, 2, v0\nv_cmp_eq_u32 vcc, 0, v13")
    k("v_mov_b32 v14, s76\nv_mov_b32 v13, s74\nv_cndmask_b32 v14, v14, v13, vcc\nv_mov_b32 v15, s77\nv_mov_b32 v13, s75\nv_cndmask_b32 v15, v15, v13, vcc")
    k("v_add_co_u32 v4, vcc, v4, v14\nv_addc_co_u32 v5, vcc, 0, v15, vcc")
def pack_issue(k, i, sbase):
    k(f"s_add_u32 m0, s{sbase}, {i*KB}")
    if i: k("v_lshl_add_u64 v[4:5], v[4:5], 0, s[86:87]")
    return k.vm("global_load_lds_dwordx4 v[4:5], off")
def tr_addr(k, v, t):
    k(f"v_bfe_u32 v{v}, v0, 5, 1\nv_lshlrev_b32 v{v}, 9, v{v}")
    k(f"v_bfe_u32 v{t}, v0, 2, 2\nv_lshlrev_b32 v{t}, 6, v{t}\nv_add_u32 v{v}, v{v}, v{t}")
    k(f"v_bfe_u32 v{t}, v0, 4, 1\nv_lshlrev_b32 v{t}, 5, v{t}\nv_add_u32 v{v}, v{v}, v{t}")
    k(f"v_and_b32 v{t}, 1, v0\nv_lshlrev_b32 v{t}, 4, v{t}\nv_add_u32 v{v}, v{v}, v{t}")
    k(f"v_bfe_u32 v{t}, v0, 1, 1\nv_lshlrev_b32 v{t}, 3, v{t}\nv_add_u32 v{v}, v{v}, v{t}")
def ext_pair(src, dst, t0):
    return [f"v_mov_b32 v{t0}, v{src}", f"v_permlane32_swap_b32 v{src}, v{t0}", f"v_add_f32 v{src}, v{src}, v{t0}",
            f"v_cvt_pk_bf16_f32 v{dst+1}, v{src}, 0", f"v_lshlrev_b32 v{t0}, 16, v{dst+1}", f"v_sub_f32 v{src}, v{src}, v{t0}",
            f"v_cvt_pk_bf16_f32 v{dst}, v{t0}, v{src}"]
class Pack:
    def __init__(self, k): self.k = k; self.r = {}
    def issue(self, *ii):
        for i in ii: self.d = pack_issue(self.k, i, 84)
    def reads(self, *ii):
        k = self.k
        if ii[0] == 0:
            k("v_accvgpr_read_b32 v4, a212")
            k.wait(vm=self.d)
        for i in ii:
            k.lg(f"ds_read_b64_tr_b16 {ar(160+4*i,2)}, v4 offset:{i*KB}")
            self.r[i] = k.lg(f"ds_read_b64_tr_b16 {ar(162+4*i,2)}, v4 offset:{i*KB+256}")
    def csum(self, i):
        self.k.wait(lg=self.r[i])
        self.k(f"v_mfma_f32_32x32x16_bf16 {ar(196,16)}, {ar(192)}, {ar(160+4*i)}, {'0' if i == 0 else ar(196,16)}")
    def stores(self, *ii):
        k = self.k
        k.wait(lg=self.r[ii[-1]])
        for i in ii:
            k.vm(f"buffer_store_dwordx4 {ar(160+4*i)}, v{vL16}, {srd(sWS)}, s80 offen sc1")
            k(f"s_add_u32 s80, s80, s{83 if i & 1 else 81}")
    def ext(self):
        k = self.k
        k("v_accvgpr_read_b32 v13, a196")
        k("v_cvt_pk_bf16_f32 v15, v13, 0\nv_lshlrev_b32 v14, 16, v15\nv_sub_f32 v13, v13, v14\nv_cvt_pk_bf16_f32 v14, v14, v13")
        k("s_mov_b32 exec_hi, 0")
        self.s = k.vm(f"buffer_store_dwordx2 v[14:15], v{vL16}, {srd(sWS)}, s82 offen sc1")
        k("s_mov_b64 exec, -1")
    def pub(self):
        k = self.k
        k(f"s_lshl_b32 s{sF}, s{sU}, 7\ns_add_u32 s{sF}, s{sF}, {FPK}")
        publish_wg(k, self.s, xid=True)
    def schedule(self, job):
        t = PK_T0
        if not PK_EARLY:
            for i in range(4): job(t + i, lambda i=i: self.issue(2*i, 2*i+1))
            t += 4 + PK_GAP
        if PK_WIN2:
            job(t, self.pub)
            return t
        if PK_EARLY and PK_SP:
            for i in range(8): job(t + PK_SP*i, lambda i=i: self.stores(i))
            job(t + 8*PK_SP, self.ext)
            job(t + 8*PK_SP + PK_GAP2, self.pub)
            return t + 8*PK_SP + PK_GAP2
        if PK_EARLY:
            for i in range(4): job(t + i, lambda i=i: self.stores(2*i, 2*i+1))
            job(t + 4, self.ext)
            job(t + 4 + PK_GAP2, self.pub)
            return t + 4 + PK_GAP2
        job(t, lambda: self.reads(0, 1, 2, 3)); job(t + 1, lambda: self.reads(4, 5, 6, 7))
        for i in range(4):
            job(t + 2 + i, lambda i=i: self.stores(2*i, 2*i+1))
            job(t + 1 + i, lambda i=i: self.csum(2*i), e=14)
            job(t + 2 + i, lambda i=i: self.csum(2*i+1), e=0)
        job(t + 6, self.ext)
        job(t + 6 + PK_GAP2, self.pub)
        return t + 6 + PK_GAP2
def qkv_consts(vT, vRS, vR):
    return [f"v_cvt_pk_bf16_f32 v{vT}, v{vRS}, 0", f"v_lshlrev_b32 v{vT+1}, 16, v{vT}", f"v_sub_f32 v{vT+2}, v{vRS}, v{vT+1}",
            f"v_cvt_pk_bf16_f32 v{vT}, v{vT+1}, v{vT+2}", f"v_mov_b32 v{vT+1}, 0", f"v_mov_b32 v{vT+2}, 0", f"v_mov_b32 v{vT+3}, 0",
            f"v_cmp_gt_u32 vcc, 512, v{vL16}", f"v_mov_b32 v{vT+4}, 0x3f803f80", f"v_cndmask_b32 v{vT+4}, 0, v{vT+4}, vcc",
            f"v_mov_b32 v{vT+5}, 0", f"v_mov_b32 v{vT+6}, 0", f"v_mov_b32 v{vT+7}, 0",
            f"v_mul_f32 v{vRS+1}, {hex(f2u(0.25*LOG2E))}, v{vRS}",
            "v_bfe_u32 v12, v0, 4, 1", "v_lshlrev_b32 v12, 17, v12", "v_and_b32 v13, 15, v0", "v_lshlrev_b32 v13, 4, v13", "v_add_u32 v12, v12, v13",
            "v_bfe_u32 v13, v0, 5, 1", "v_lshlrev_b32 v13, 8, v13", "v_add_u32 v12, v12, v13",
            f"v_mfma_f32_32x32x16_bf16 {vr(vR,16)}, {vr(vT)}, {vr(vT+4)}, 0"]
def qk_tile(a, dst, sc, fl, p0):
    o = []
    sb, hs = (sB, KB) if dst == QF else (sCc, 128*KB)
    for half in range(2):
        p = p0 + 4*half
        for j in range(4):
            r = a + 8*half + 2*j
            o += [f"v_mul_f32 v{r}, v{r}, v{sc}", f"v_mul_f32 v{r+1}, v{r+1}, v{sc}", f"v_cvt_pk_bf16_f32 v{p+j}, v{r}, v{r+1}"]
        o += [f"s_add_u32 s{sT2}, s{sb}, {dst + half*hs}", f"buffer_store_dwordx4 {vr(p)}, v{vL16}, {srd(sWS)}, s{sT2} offen{fl}"]
    return o
def v_tile(a, L, vR, p0):
    o = [f"s_add_u32 s{sT2}, s{sCc}, {KVF(L) + KB}"]
    for u in range(2):
        p = p0 + 4*u
        for j in range(4):
            r = a + 8*u + 2*j; q = vR + 8*u + 2*j
            o += [f"v_mul_f32 v{r}, v{r}, v{q}", f"v_mul_f32 v{r+1}, v{r+1}, v{q+1}", f"v_cvt_pk_bf16_f32 v{p+j}, v{r}, v{r+1}"]
        o.append(f"buffer_store_dwordx4 {vr(p)}, v12, {srd(sWS)}, s{sT2} offen offset:{u*512} sc1")
    return o
def kv_flag(k, L, tkv):
    k(f"s_lshl_b32 s{sF}, s{sA}, 4\ns_lshr_b32 s{sT1}, s{sRB}, 2\ns_add_u32 s{sF}, s{sF}, s{sT1}\ns_lshl_b32 s{sF}, s{sF}, 7\ns_add_u32 s{sF}, s{sF}, {FKV(L)}")
    publish_wg(k, tkv)
def q_flag(k, L, tq):
    k(f"s_lshr_b32 s{sF}, s{sRB}, 3\ns_lshl_b32 s{sF}, s{sF}, 4\ns_add_u32 s{sF}, s{sF}, s{sA}\ns_lshl_b32 s{sF}, s{sF}, 3\ns_and_b32 s{sT1}, s{sRB}, 7\ns_add_u32 s{sF}, s{sF}, s{sT1}\ns_lshl_b32 s{sF}, s{sF}, 3\ns_add_u32 s{sF}, s{sF}, {FLOC(L-1,5)}")
    publish_local(k, tq, force_global=(L == 0))

WARM = True
LIN_AT = 99
LIN_U = True
Q0_ROT = True
Q0_MARKS = False
Q0_MARKJ = ()
Q0_SCHED = ((3, 4), (5,), (6,), (7,), (), (), (), ())
LATE_AT = 1
Q0_UP = 3
PK_AT = (5, 5, 6, 6, 6, 6, 6, 6)
def ph_qkv0(k, late):
    vX, vACC, vST, vEXT, vRS, vT, vR = 16, 144, 192, 8, 6, 224, 232
    vXA, vWA, vXR, vTR, vTW, vCS, vCW, vONE = 10, 12, 196, 200, 202, 204, 208, 220
    sXS, sWR, sXL, sWL = 60, 56, sD, sE
    rb_128(k)
    k(f"s_and_b32 s{sA}, s{sC}, 15")
    k(f"v_bfe_u32 v{vXA}, v0, 3, 3\nv_lshlrev_b32 v{vXA}, 10, v{vXA}\nv_and_b32 v13, 7, v0\nv_bfe_u32 v14, v0, 4, 2\nv_xor_b32 v13, v13, v14")
    k(f"v_lshlrev_b32 v13, 4, v13\nv_add_u32 v{vXA}, v{vXA}, v13\nv_xor_b32 v{vXA+1}, 64, v{vXA}")
    k(f"v_bfe_u32 v{vWA}, v0, 2, 4\nv_mul_u32_u24 v{vWA}, 3072, v{vWA}\nv_and_b32 v13, 3, v0\nv_lshlrev_b32 v13, 4, v13\nv_add_u32 v{vWA}, v{vWA}, v13")
    if DIAG_W: k(f"v_bfe_u32 v{vWA}, v0, 3, 3\nv_mul_u32_u24 v{vWA}, 6144, v{vWA}\nv_and_b32 v13, 7, v0\nv_lshlrev_b32 v13, 4, v13\nv_add_u32 v{vWA}, v{vWA}, v13\ns_and_b32 s{sA}, s{sA}, 14")
    k(f"s_lshl_b32 s{sX}, s{sRB}, 15")
    k(f"s_mul_i32 s{sX2}, s{sW}, 49152\ns_lshl_b32 s{sT0}, s{sA}, 6\ns_add_u32 s{sX2}, s{sX2}, s{sT0}")
    if DIAG_W: k(f"s_and_b32 s{sA}, s{sG}, 1\ns_lshl_b32 s{sA}, s{sA}, 3\ns_and_b32 s{sT0}, s{sC}, 7\ns_add_u32 s{sA}, s{sA}, s{sT0}")
    k(f"s_lshl_b32 s{sXL}, s{sW}, 14\ns_add_u32 s{sXL}, s{sXL}, {96*KB}\ns_mul_i32 s{sWL}, s{sW}, 3072")
    k("s_waitcnt lgkmcnt(0)")
    if Q0_MARKS: mark(k, 'karg')
    k(f"s_mov_b32 s{sWR}, s64\ns_and_b32 s{sWR+1}, s65, 0xffff\ns_mov_b32 s{sWR+2}, {512*3072}\ns_mov_b32 s{sWR+3}, 0x20000")
    k(f"s_and_b32 s{sXS+1}, s{sXS+1}, 0xffff\ns_mov_b32 s{sXS+2}, {2*MB}\ns_mov_b32 s{sXS+3}, 0x20000")
    ct = {}; cn = {j: 0 for j in range(8)}
    k(f"s_lshl_b32 s{sCc}, s{sC4}, 2\ns_lshr_b32 s{sT3}, s{sC}, {Q0_RSH}\ns_add_u32 s{sCc}, s{sCc}, s{sT3}\ns_add_u32 s{sCc}, s{sCc}, s{sG}")
    def rot(j):
        k(f"s_add_u32 s{sT3}, s{sCc}, {j}\ns_and_b32 s{sT3}, s{sT3}, {7 if Q0_ROT else 0}")
        if not Q0_ROT: k(f"s_mov_b32 s{sT3}, {j}")
        k(f"s_lshl_b32 s{sS0}, s{sT3}, 7\ns_add_u32 s{sS0}, s{sS0}, s{sX}")
        k(f"s_mul_i32 s{sS1}, s{sT3}, {4*49152}\ns_add_u32 s{sS1}, s{sS1}, s{sX2}")
    def ldW(j, t):
        k(f"s_add_u32 m0, s{sWL}, {(12*j + t)*KB}\ns_add_u32 s{sT2}, s{sS1}, {((t+1) % 3)*1024}")
        ct[j] = k.vm(f"buffer_load_dwordx4 v{vWA}, {srd(sWR)}, s{sT2} offen lds"); cn[j] += 1
    def ldX(j, i):
        if i == 0: rot(j)
        k(f"s_add_u32 m0, s{sXL}, {(j & 3)*4*KB + i*KB}\ns_add_u32 s{sT2}, s{sS0}, {i*8192}")
        ct[j] = k.vm(f"buffer_load_dwordx4 v{vXA + (i & 1)}, {srd(sXS)}, s{sT2} offen lds"); cn[j] += 1
    def chunk_loads(j):
        return [lambda i=i: ldX(j, i) for i in range(4)] + [lambda t=t: ldW(j, t) for t in range(3)]
    for f in chunk_loads(0): f()
    if Q0_MARKS: mark(k, 'up0')
    late(k)
    pack_decode(k)
    k(f"s_cmp_eq_u32 s{sW}, 0\ns_cselect_b64 s[90:91], s[68:69], s[70:71]")
    k(f"s_cmp_eq_u32 s{sW}, 2\ns_cselect_b64 s[90:91], s[72:73], s[90:91]")
    k(f"s_cmp_eq_u32 s{sW}, 3\ns_cselect_b64 s[90:91], s[66:67], s[90:91]\ns_cselect_b32 s{sT0}, 16, 56")
    k(f"s_mul_i32 s{sT1}, s{sT0}, s{sU}\ns_sub_u32 s{sT0}, s{sT0}, 1")
    k(f"v_and_b32 v254, 63, v0\nv_min_u32 v254, s{sT0}, v254\nv_add_u32 v254, s{sT1}, v254\nv_lshlrev_b32 v254, 7, v254")
    pk = G.pk = Pack(k)
    k(f"s_and_b32 s{sT0}, s{sC}, 7\ns_and_b32 s{sT1}, s{sC}, 15")
    k("v_and_b32 v13, 15, v0\nv_min_u32 v14, 13, v13")
    k(f"s_lshr_b32 s{sT2}, s{sT0}, 1\ns_add_u32 s{sT2}, s{sT2}, 176\nv_lshl_add_u32 v252, v14, 2, s{sT2}")
    k(f"s_mul_i32 s{sT2}, s{sT1}, 7\ns_add_u32 s{sT3}, s{sT2}, 6\ns_lshr_b32 s{sT2}, s{sT2}, 2\ns_lshr_b32 s{sT3}, s{sT3}, 2")
    k(f"v_lshrrev_b32 v14, 2, v13\nv_add_u32 v14, s{sT2}, v14\nv_min_u32 v14, s{sT3}, v14\nv_and_b32 v15, 3, v13\nv_mul_u32_u24 v15, 28, v15")
    k("v_add3_u32 v14, v14, v15, 48")
    k("v_and_b32 v15, 16, v0\nv_cmp_ne_u32 vcc, 0, v15\nv_cndmask_b32 v252, v252, v14, vcc")
    k(f"s_add_u32 s{sT0}, s{sT0}, 160\nv_and_b32 v14, 1, v13\nv_lshl_add_u32 v251, v14, 3, s{sT0}")
    k(f"s_lshr_b32 s{sT1}, s{sT1}, 1\nv_mul_u32_u24 v14, 24, v14\nv_lshrrev_b32 v15, 1, v13\nv_min_u32 v15, 2, v15\nv_lshlrev_b32 v15, 3, v15")
    k(f"v_add3_u32 v14, v14, v15, s{sT1}")
    k("v_cndmask_b32 v251, v251, v14, vcc")
    k(f"v_cmp_gt_u32 vcc, 512, v{vL16}\nv_cndmask_b32 v252, v251, v252, vcc\nv_lshlrev_b32 v252, 7, v252\nv_accvgpr_write_b32 a213, v252")
    if WARM:
        k("s_getpc_b64 s[88:89]")
        k.label("L_pcw")
        k(f"s_lshl_b32 s{sT0}, s{sC}, 1\ns_add_u32 s{sT0}, s{sT0}, s{sW}\ns_and_b32 s{sT0}, s{sT0}, 63\ns_lshl_b32 s{sT0}, s{sT0}, 10\ns_min_u32 s{sT0}, s{sT0}, L_end-L_pcw-1024")
        k(f"v_add_u32 v245, s{sT0}, v{vL16}")
        k(f"v_min_u32 v244, {(WS_PAGES-1)*16}, v{vL16}\nv_lshlrev_b32 v244, 17, v244")
        k(f"s_cmp_eq_u32 s{sW}, 1\ns_cselect_b64 s[88:89], s[{sAUX}:{sAUX+1}], s[88:89]")
        k(f"s_cmp_eq_u32 s{sW}, 0\ns_cselect_b64 s[88:89], s[{sWS}:{sWS+1}], s[88:89]\ns_cselect_b64 vcc, -1, 0")
        k("v_cndmask_b32 v245, v245, v244, vcc")
    if PK_Q0: pk.issue(*range(8))
    k(f"v_and_b32 v13, 31, v0\nv_bfe_u32 v14, v0, 1, 3\nv_bfe_u32 v15, v0, 5, 1\nv_xor_b32 v14, v14, v15\nv_lshlrev_b32 v14, 4, v14\nv_lshl_add_u32 v13, v13, 7, v14")
    for e in range(4):
        k(f"v_xor_b32 v{vXR+e}, {e*32}, v13\nv_add_u32 v{vXR+e}, s{sXL}, v{vXR+e}")
    tr_addr(k, vTR, 13)
    k(f"v_add_u32 v{vTR+1}, {48*KB}, v{vTR}\nv_add_u32 v{vTW}, s{sWL}, v{vTR}\nv_add_u32 v{vTW+1}, {48*KB}, v{vTW}")
    k(f"v_mov_b32 v{vONE}, 0x3f803f80\nv_add_u32 v255, s84, v{vTR}\nv_accvgpr_write_b32 a212, v255")
    for r in range(192, 196): k(f"v_accvgpr_write_b32 a{r}, v{vONE}")
    for r in list(range(vST, vST+4)) + list(range(vCS, vCS+3)): k(f"v_mov_b32 v{r}, 0")
    def reads(j):
        o = []
        for e in range(4):
            o.append(f"ds_read_b128 {vr(vX + 16*j + 4*e)}, v{vXR+e} offset:{(j & 3)*4*KB}")
        for t in range(3):
            off = (12*(j & 3) + t)*KB
            o.append(f"ds_read_b64_tr_b16 {vr(vCW+4*t,2)}, v{vTW + (j >> 2)} offset:{off}")
            o.append(f"ds_read_b64_tr_b16 {vr(vCW+4*t+2,2)}, v{vTW + (j >> 2)} offset:{off+256}")
        for b in range(12):
            off = (12*(j & 3) + b)*KB; r = 48*(j & 1) + 4*b
            o.append(f"ds_read_b64_tr_b16 {ar(r,2)}, v{vTR + (j >> 2)} offset:{off}")
            o.append(f"ds_read_b64_tr_b16 {ar(r+2,2)}, v{vTR + (j >> 2)} offset:{off+256}")
        return o
    def dots(j):
        for i in range(16):
            r = vX + 16*j + i
            k(f"v_dot2c_f32_bf16 v{vST + 2*(i & 1)}, v{vONE}, v{r}\nv_dot2c_f32_bf16 v{vST + 1 + 2*(i & 1)}, v{r}, v{r}")
        for i in range(4):
            for t in range(3): k(f"v_dot2c_f32_bf16 v{vCS+t}, v{vONE}, v{vCW+4*t+i}")
    def xid():
        k(f"s_add_u32 s{sTAG}, s{sTAG}, 0x7f4a7c15\ns_addc_u32 s{sTAG+1}, s{sTAG+1}, 0x9e3779b9")
        k("v_mov_b32 v13, 0")
        k("s_mov_b64 exec, 1")
        if FLAG_TOUCH:
            k(f"s_lshl_b32 s{sF}, s{sA}, 4\ns_lshr_b32 s{sT1}, s{sRB}, 2\ns_add_u32 s{sF}, s{sF}, s{sT1}\ns_lshl_b32 s{sF}, s{sF}, 7\ns_add_u32 s{sF}, s{sF}, {FKV(0)}")
            k.vm(f"buffer_load_dword v5, v13, {srd(sWS)}, s{sF} offen sc1")
            k(f"s_lshl_b32 s{sF}, s{sU}, 7\ns_add_u32 s{sF}, s{sF}, {FPK}")
            k.vm(f"buffer_load_dword v5, v13, {srd(sWS)}, s{sF} offen sc1")
        k("s_mov_b64 exec, -1")
    def lin_touch():
        k.vm("global_load_dword v253, v254, s[90:91]")
    side = []
    for x in att_setup(0): k(x)
    if Q0_MARKS: mark(k, 'alu')
    if WARM and WARM_AT == 0: k.vm(f"global_load_dword v255, v245, s[88:89]")
    for j in range(1, Q0_UP):
        for f in chunk_loads(j): f()
    if WARM and WARM_AT == 1: k.vm(f"global_load_dword v255, v245, s[88:89]")
    if Q0_MARKS: mark(k, 'iss')
    k.wait(vm=ct[0])
    if Q0_MARKS: mark(k, 'w0')
    k("s_barrier")
    mark(k, 'd0')
    rl = reads(0)
    for x in rl[:10]: t10 = k.lg(x)
    for x in rl[10:]: k.lg(x)
    k.wait(lg=t10)
    dots(0)
    for j in range(8):
        for c_ in Q0_SCHED[j]:
            assert c_ - 4 <= j
            side += chunk_loads(c_)
        if j == 1: side.append(xid)
        if WARM and WARM_AT == j + 2: side.append(lambda: k.vm(f"global_load_dword v255, v245, s[88:89]"))
        if PK_EARLY: side += [lambda i=i: pk.issue(i) for i in range(8) if PK_AT[i] == j]
        if j == LIN_AT and not PK_Q0: side.append(lin_touch)
        if PK_Q0:
            assert all(c_ < 5 or j > PK_RD for c_ in Q0_SCHED[j])
            if j == PK_RD: side += [lambda i=i: pk.reads(2*i, 2*i+1) for i in range(4)]
            if j == PK_ST: side += [lambda i=i: (pk.stores(i), pk.csum(i)) for i in range(4)]
            if j == PK_ST + 1: side += [lambda i=i: (pk.stores(i), pk.csum(i)) for i in range(4, 8)]
            if j == PK_ST + 2: side.append(pk.ext)
        k.wait_all(vm=False)
        rl = []
        if j < 7:
            assert cn[j+1] == 7
            k.wait(vm=ct[j+1]); k("s_barrier")
            if j in Q0_MARKJ: mark(k, f'c{j+1}')
            rl = reads(j + 1)
        t10 = None; nr = 0
        if j == 7:
            tail = f"s_lshr_b32 s{sT0}, s{sW}, 1\ns_lshl_b32 s{sT0}, s{sT0}, 9\ns_and_b32 s{sT1}, s{sW}, 1\ns_lshl_b32 s{sT1}, s{sT1}, 3\ns_add_u32 s{sT0}, s{sT0}, s{sT1}".split('\n')
            tail += [f"v_and_b32 v13, 0x1f0, v{vL16}", f"v_add_u32 v13, s{sT0}, v13"]
            for t in range(3): tail += ext_pair(vCS+t, vCW+2*t, 14) + [f"ds_write_b64 v13, {vr(vCW+2*t,2)} offset:{t*KB}"]
            fin = fin_stats(vST, vEXT, vRS)[NTREE:] + qkv_consts(vT, vRS, vR)
            tail += [f"v_add_f32 v{vST}, v{vST}, v{vST+2}", f"v_add_f32 v{vST+1}, v{vST+1}, v{vST+3}"] + fin[:18]
            tail += ["s_waitcnt lgkmcnt(0)", "s_barrier"] + [f"ds_read_b128 {vr(vCW+4*t)}, v{vL16} offset:{t*KB}" for t in range(3)] + fin[18:]
            tail += f"s_lshl_b32 s{sCc}, s{sA}, 18\ns_lshl_b32 s{sT1}, s{sRB}, 11\ns_add_u32 s{sCc}, s{sCc}, s{sT1}".split('\n')
            tail += f"s_mul_i32 s{sB}, s{sRB}, {112*KB}\ns_lshl_b32 s{sT1}, s{sA}, 11\ns_add_u32 s{sB}, s{sB}, s{sT1}".split('\n')
            G.ex = 196
            tail += ex_addr(G.ex)
            assert not side
            n_ = -(-len(tail) // 12)
            side = [lambda c=tail[i:i+n_]: [k(x) for x in c] for i in range(0, len(tail), n_)]
        for b in range(12):
            ks = 4*j + b // 3; t = b % 3
            acc = vr(vACC + 16*t, 16); w = ar(48*(j & 1) + 4*b); x = vr(vX + 4*ks)
            A, B = (x, w) if t == 1 else (w, x)
            k(f"v_mfma_f32_32x32x16_bf16 {acc}, {A}, {B}, {'0' if ks == 0 else acc}")
            if ks == 0 and t == 0: mark(k, 'm0')
            for _ in range(3):
                if rl:
                    t_ = k.lg(rl.pop(0)); nr += 1
                    if nr == 10: t10 = t_
            if side: side.pop(0)()
            if len(side) > 11 - b: side.pop(0)()
        if j < 7:
            assert not rl
            k.wait(lg=t10)
            dots(j + 1)
    while side: side.pop(0)()
    mark(k, 'loop')
    k.wait_all(vm=False)
    for t in range(3):
        c = vCW + 4*t
        acc = vr(vACC + 16*t, 16)
        A, B = (vr(vEXT), vr(c)) if t == 1 else (vr(c), vr(vEXT))
        k(f"v_mfma_f32_32x32x16_bf16 {acc}, {A}, {B}, {acc}")
    t_ = None
    for x in qk_tile(vACC, KVF(0), vRS, " sc1", 204) + v_tile(vACC+16, 0, vR, 212) + ex_kv(204, 212):
        if x.startswith('buffer'): t_ = k.vm(x)
        elif x.startswith('ds_'): k.lg(x)
        else: k(x)
    q_out(k, vACC + 32, vRS + 1, 232, vT)
    mark(k, 'st')
    return t_, None

def ph_qkv0k(k, late):
    vX, vACC, vST, vEXT, vRS, vT, vR = 16, 144, 192, 8, 6, 224, 232
    vXA, vWA, vXR, vTR, vTW, vCS, vCW, vONE = 10, 12, 196, 200, 202, 204, 208, 220
    sXS, sWR, sXL, sWL = 60, 56, sD, sE
    rb_128(k)
    k(f"s_and_b32 s{sA}, s{sC}, 15")
    k(f"v_bfe_u32 v{vXA}, v0, 3, 3\nv_lshlrev_b32 v{vXA}, 10, v{vXA}\nv_and_b32 v13, 7, v0\nv_bfe_u32 v14, v0, 4, 2\nv_xor_b32 v13, v13, v14")
    k(f"v_lshlrev_b32 v13, 4, v13\nv_add_u32 v{vXA}, v{vXA}, v13\nv_xor_b32 v{vXA+1}, 64, v{vXA}")
    k(f"v_bfe_u32 v{vWA}, v0, 2, 4\nv_mul_u32_u24 v{vWA}, 3072, v{vWA}\nv_and_b32 v13, 3, v0\nv_lshlrev_b32 v13, 4, v13\nv_add_u32 v{vWA}, v{vWA}, v13")
    if DIAG_W: k(f"v_bfe_u32 v{vWA}, v0, 3, 3\nv_mul_u32_u24 v{vWA}, 6144, v{vWA}\nv_and_b32 v13, 7, v0\nv_lshlrev_b32 v13, 4, v13\nv_add_u32 v{vWA}, v{vWA}, v13\ns_and_b32 s{sA}, s{sA}, 14")
    k(f"s_lshl_b32 s{sX}, s{sRB}, 15")
    k(f"s_mul_i32 s{sX2}, s{sW}, 49152\ns_lshl_b32 s{sT0}, s{sA}, 6\ns_add_u32 s{sX2}, s{sX2}, s{sT0}")
    if DIAG_W: k(f"s_and_b32 s{sA}, s{sG}, 1\ns_lshl_b32 s{sA}, s{sA}, 3\ns_and_b32 s{sT0}, s{sC}, 7\ns_add_u32 s{sA}, s{sA}, s{sT0}")
    k(f"s_lshl_b32 s{sXL}, s{sW}, 14\ns_add_u32 s{sXL}, s{sXL}, {96*KB}\ns_lshl_b32 s{sWL}, s{sW}, 11")
    k("s_waitcnt lgkmcnt(0)")
    if Q0_MARKS: mark(k, 'karg')
    k(f"s_mov_b32 s{sWR}, s64\ns_and_b32 s{sWR+1}, s65, 0xffff\ns_mov_b32 s{sWR+2}, {512*3072}\ns_mov_b32 s{sWR+3}, 0x20000")
    k(f"s_and_b32 s{sXS+1}, s{sXS+1}, 0xffff\ns_mov_b32 s{sXS+2}, {2*MB}\ns_mov_b32 s{sXS+3}, 0x20000")
    ct = {}; cn = {j: 0 for j in range(8)}
    k(f"s_lshl_b32 s{sCc}, s{sC4}, 2\ns_lshr_b32 s{sT3}, s{sC}, {Q0_RSH}\ns_add_u32 s{sCc}, s{sCc}, s{sT3}\ns_add_u32 s{sCc}, s{sCc}, s{sG}")
    def rot(j):
        k(f"s_add_u32 s{sT3}, s{sCc}, {j}\ns_and_b32 s{sT3}, s{sT3}, {7 if Q0_ROT else 0}")
        if not Q0_ROT: k(f"s_mov_b32 s{sT3}, {j}")
        k(f"s_lshl_b32 s{sS0}, s{sT3}, 7\ns_add_u32 s{sS0}, s{sS0}, s{sX}")
        k(f"s_mul_i32 s{sS1}, s{sT3}, {4*49152}\ns_add_u32 s{sS1}, s{sS1}, s{sX2}")
    def ldW(j, t):
        k(f"s_add_u32 m0, s{sWL}, {(8*j + t)*KB}\ns_add_u32 s{sT2}, s{sS1}, {(t+1)*1024}")
        ct[j] = k.vm(f"buffer_load_dwordx4 v{vWA}, {srd(sWR)}, s{sT2} offen lds"); cn[j] += 1
    def ldQ(j):
        k(f"s_add_u32 s{sT3}, s{sCc}, {j}\ns_and_b32 s{sT3}, s{sT3}, 7\ns_mul_i32 s{sT3}, s{sT3}, {4*49152}\ns_add_u32 m0, s{sW1K}, {(64 + 4*j)*KB}\ns_add_u32 s{sT2}, s{sT3}, s{sX2}")
        ct['q'] = k.vm(f"buffer_load_dwordx4 v{vWA}, {srd(sWR)}, s{sT2} offen lds")
    def ldX(j, i):
        if i == 0: rot(j)
        k(f"s_add_u32 m0, s{sXL}, {(j & 3)*4*KB + i*KB}\ns_add_u32 s{sT2}, s{sS0}, {i*8192}")
        ct[j] = k.vm(f"buffer_load_dwordx4 v{vXA + (i & 1)}, {srd(sXS)}, s{sT2} offen lds"); cn[j] += 1
    def chunk_loads(j):
        return [lambda i=i: ldX(j, i) for i in range(4)] + [lambda t=t: ldW(j, t) for t in range(2)]
    for f in chunk_loads(0): f()
    if Q0_MARKS: mark(k, 'up0')
    late(k)
    pack_decode(k)
    k(f"s_cmp_eq_u32 s{sW}, 0\ns_cselect_b64 s[90:91], s[68:69], s[70:71]")
    k(f"s_cmp_eq_u32 s{sW}, 2\ns_cselect_b64 s[90:91], s[72:73], s[90:91]")
    k(f"s_cmp_eq_u32 s{sW}, 3\ns_cselect_b64 s[90:91], s[66:67], s[90:91]\ns_cselect_b32 s{sT0}, 16, 56")
    k(f"s_mul_i32 s{sT1}, s{sT0}, s{sU}\ns_sub_u32 s{sT0}, s{sT0}, 1")
    k(f"v_and_b32 v254, 63, v0\nv_min_u32 v254, s{sT0}, v254\nv_add_u32 v254, s{sT1}, v254\nv_lshlrev_b32 v254, 7, v254")
    pk = G.pk = Pack(k)
    k(f"s_and_b32 s{sT0}, s{sC}, 7\ns_and_b32 s{sT1}, s{sC}, 15")
    k("v_and_b32 v13, 15, v0\nv_min_u32 v14, 13, v13")
    k(f"s_lshr_b32 s{sT2}, s{sT0}, 1\ns_add_u32 s{sT2}, s{sT2}, 176\nv_lshl_add_u32 v252, v14, 2, s{sT2}")
    k(f"s_mul_i32 s{sT2}, s{sT1}, 7\ns_add_u32 s{sT3}, s{sT2}, 6\ns_lshr_b32 s{sT2}, s{sT2}, 2\ns_lshr_b32 s{sT3}, s{sT3}, 2")
    k(f"v_lshrrev_b32 v14, 2, v13\nv_add_u32 v14, s{sT2}, v14\nv_min_u32 v14, s{sT3}, v14\nv_and_b32 v15, 3, v13\nv_mul_u32_u24 v15, 28, v15")
    k("v_add3_u32 v14, v14, v15, 48")
    k("v_and_b32 v15, 16, v0\nv_cmp_ne_u32 vcc, 0, v15\nv_cndmask_b32 v252, v252, v14, vcc")
    k(f"s_add_u32 s{sT0}, s{sT0}, 160\nv_and_b32 v14, 1, v13\nv_lshl_add_u32 v251, v14, 3, s{sT0}")
    k(f"s_lshr_b32 s{sT1}, s{sT1}, 1\nv_mul_u32_u24 v14, 24, v14\nv_lshrrev_b32 v15, 1, v13\nv_min_u32 v15, 2, v15\nv_lshlrev_b32 v15, 3, v15")
    k(f"v_add3_u32 v14, v14, v15, s{sT1}")
    k("v_cndmask_b32 v251, v251, v14, vcc")
    k(f"v_cmp_gt_u32 vcc, 512, v{vL16}\nv_cndmask_b32 v252, v251, v252, vcc\nv_lshlrev_b32 v252, 7, v252\nv_accvgpr_write_b32 a213, v252")
    if WARM:
        k("s_getpc_b64 s[88:89]")
        k.label("L_pcw")
        k(f"s_lshl_b32 s{sT0}, s{sC}, 1\ns_add_u32 s{sT0}, s{sT0}, s{sW}\ns_and_b32 s{sT0}, s{sT0}, 63\ns_lshl_b32 s{sT0}, s{sT0}, 10\ns_min_u32 s{sT0}, s{sT0}, L_end-L_pcw-1024")
        k(f"v_add_u32 v245, s{sT0}, v{vL16}")
        k(f"v_min_u32 v244, {(WS_PAGES-1)*16}, v{vL16}\nv_lshlrev_b32 v244, 17, v244")
        k(f"s_cmp_eq_u32 s{sW}, 1\ns_cselect_b64 s[88:89], s[{sAUX}:{sAUX+1}], s[88:89]")
        k(f"s_cmp_eq_u32 s{sW}, 0\ns_cselect_b64 s[88:89], s[{sWS}:{sWS+1}], s[88:89]\ns_cselect_b64 vcc, -1, 0")
        k("v_cndmask_b32 v245, v245, v244, vcc")
    if PK_Q0: pk.issue(*range(8))
    aSEL, aCS = 96, 100
    k(f"v_and_b32 v13, 31, v0\nv_bfe_u32 v14, v0, 1, 3\nv_bfe_u32 v15, v0, 5, 1\nv_xor_b32 v14, v14, v15\nv_lshlrev_b32 v14, 4, v14\nv_lshl_add_u32 v13, v13, 7, v14")
    vTQ = 200; vTR = 204
    tr_addr(k, 255, 14)
    for e in range(4):
        k(f"s_add_u32 s{sT0}, s{sW}, {e}\ns_and_b32 s{sT0}, s{sT0}, 3\ns_lshl_b32 s{sT1}, s{sT0}, 5\ns_lshl_b32 s{sT2}, s{sT0}, 11\ns_lshl_b32 s{sT0}, s{sT0}, 10\ns_add_u32 s{sT0}, s{sT0}, {64*KB}")
        k(f"v_xor_b32 v{vXR+e}, s{sT1}, v13\nv_add_u32 v{vXR+e}, s{sXL}, v{vXR+e}\nv_add_u32 v{vTR+e}, s{sT2}, v255\nv_add_u32 v{vTQ+e}, s{sT0}, v255")
    k(f"v_mov_b32 v{vONE}, 0x3f803f80\nv_add_u32 v255, s84, v255\nv_accvgpr_write_b32 a212, v255")
    XS = 40 * KB
    k(f"s_lshr_b32 s{sT0}, s{sW}, 1\ns_lshl_b32 s{sT0}, s{sT0}, 9\ns_and_b32 s{sT1}, s{sW}, 1\ns_lshl_b32 s{sT1}, s{sT1}, 3\ns_add_u32 s{sT0}, s{sT0}, s{sT1}")
    k(f"v_add_u32 v221, s{sT0}, v{vL16}")
    for r in range(192, 196): k(f"v_accvgpr_write_b32 a{r}, v{vONE}")
    k(f"v_and_b32 v13, 15, v0\nv_bfe_u32 v14, v0, 4, 1\nv_cmp_eq_u32 vcc, v13, v14\nv_cndmask_b32 v13, 0, v{vONE}, vcc")
    for r in range(4): k(f"v_accvgpr_write_b32 a{aSEL+r}, v13")
    for r in range(vST, vST+4): k(f"v_mov_b32 v{r}, 0")
    def reads(j):
        o = [f"ds_read_b128 {vr(vX + 16*j + 4*e)}, v{vXR+e} offset:{(j & 3)*4*KB}" for e in range(4)]
        for b in range(8):
            off = (8*j + (b & 1))*KB; r = 32*(j & 1) + 4*b
            o.append(f"ds_read_b64_tr_b16 {ar(r,2)}, v{vTR + (b >> 1)} offset:{off}")
            o.append(f"ds_read_b64_tr_b16 {ar(r+2,2)}, v{vTR + (b >> 1)} offset:{off+256}")
        return o
    def dots(j):
        for i in range(16):
            r = vX + 16*j + i
            k(f"v_dot2c_f32_bf16 v{vST + 2*(i & 1)}, v{vONE}, v{r}\nv_dot2c_f32_bf16 v{vST + 1 + 2*(i & 1)}, v{r}, v{r}")
    def csum(t, w, first):
        c = ar(aCS + 4*t)
        k(f"v_mfma_f32_16x16x32_bf16 {c}, {ar(aSEL)}, {w}, {'0' if first else c}")
    def extp(t, d):
        return [f"v_accvgpr_read_b32 v{d+2}, a{aCS+4*t}", f"v_accvgpr_read_b32 v{d+3}, a{aCS+4*t+1}", f"v_permlane16_swap_b32 v{d+2}, v{d+3}",
                f"v_cvt_pk_bf16_f32 v{d+1}, v{d+2}, 0", f"v_lshlrev_b32 v{d+3}, 16, v{d+1}",
                f"v_sub_f32 v{d+2}, v{d+2}, v{d+3}", f"v_cvt_pk_bf16_f32 v{d}, v{d+3}, v{d+2}",
                f"s_mov_b32 exec_hi, 0\nds_write_b64 v221, {vr(d,2)} offset:{XS + t*KB}\ns_mov_b64 exec, -1"]
    side = []
    for x in att_setup(0): k(x)
    for j in range(1, Q0_UP):
        for f in chunk_loads(j): f()
    if WARM: k.vm(f"global_load_dword v255, v245, s[88:89]")
    k.wait(vm=ct[0])
    k("s_barrier")
    mark(k, 'd0')
    rl = reads(0)
    for x in rl[:4]: t4 = k.lg(x)
    for x in rl[4:]: k.lg(x)
    k.wait(lg=t4)
    dots(0)
    QO = [4*c for c in range(8)] + [4*c + e for c in range(8) for e in (1, 2, 3)]
    def qread(n_):
        r = 64 + 4*(n_ % 8); ks = QO[n_]
        k.lg(f"ds_read_b64_tr_b16 {ar(r,2)}, v{vTQ + (ks & 3)} offset:{(ks >> 2)*4*KB}")
        return k.lg(f"ds_read_b64_tr_b16 {ar(r+2,2)}, v{vTQ + (ks & 3)} offset:{(ks >> 2)*4*KB+256}")
    qt = {}
    for j in range(8):
        for c_ in Q0_SCHED[j]:
            assert c_ - 4 <= j
            side += chunk_loads(c_)
        if j == 1: side.append(lambda: k(f"s_add_u32 s{sTAG}, s{sTAG}, 0x7f4a7c15\ns_addc_u32 s{sTAG+1}, s{sTAG+1}, 0x9e3779b9"))
        side += [lambda c=c: ldQ(c) for c in range(8) if Q0K_Q[c] == j]
        assert min(PK_AT) >= 3
        side += [lambda i=i: pk.issue(i) for i in range(8) if PK_AT[i] == j]
        k.wait_all(vm=False)
        rl = []
        if j < 7:
            assert cn[j+1] == 6
            k.wait(vm=ct[j+1]); k("s_barrier")
            if j in Q0_MARKJ: mark(k, f'c{j+1}')
            rl = reads(j + 1)
        else:
            assert not side
            k.wait(vm=ct['q']); k("s_barrier")
            G.ex = 212
            for t in range(2): csum(t, ar(32 + 4*t), False)
            fin = fin_stats(vST, vEXT, vRS)[NTREE:] + qkv_consts(vT, vRS, vR)
            tail = [f"v_add_f32 v{vST}, v{vST}, v{vST+2}", f"v_add_f32 v{vST+1}, v{vST+1}, v{vST+3}"] + fin[:6] + extp(0, 204) + extp(1, 208) + fin[6:24]
            tail += ["s_waitcnt lgkmcnt(0)", "s_barrier", f"ds_read_b128 {vr(204)}, v{vL16} offset:{XS}", f"ds_read_b128 {vr(208)}, v{vL16} offset:{XS+KB}"] + fin[24:]
            tail += f"s_lshl_b32 s{sCc}, s{sA}, 18\ns_lshl_b32 s{sT1}, s{sRB}, 11\ns_add_u32 s{sCc}, s{sCc}, s{sT1}".split('\n')
            n_ = -(-len(tail) // 8)
            side = [lambda c=tail[i:i+n_]: [k(x) for x in c] for i in range(0, len(tail), n_)]
        t4 = None; nr = 0
        for b in range(8):
            ks = 4*j + b // 2; t = b % 2
            acc = vr(vACC + 16*t, 16); w = ar(32*(j & 1) + 4*b); x = vr(vX + 4*ks)
            A, B = (x, w) if t == 1 else (w, x)
            k(f"v_mfma_f32_32x32x16_bf16 {acc}, {A}, {B}, {'0' if ks == 0 else acc}")
            if ks == 0 and t == 0: mark(k, 'm0')
            for _ in range(3):
                if rl:
                    t_ = k.lg(rl.pop(0)); nr += 1
                    if nr == 4: t4 = t_
            if j < 7 and b < 2: csum(t, w, ks == 0)
            if side: side.pop(0)()
            if len(side) > 7 - b: side.pop(0)()
        while side: side.pop(0)()
        if j < 7:
            assert not rl
            k.wait(lg=t4)
            dots(j + 1)
    mark(k, 'loop')
    E = 204
    for n_ in range(4): qt[n_] = qread(n_)
    k.wait(lg=qt[0] - 2)
    k("s_waitcnt lgkmcnt(8)")
    work = [f"v_mfma_f32_32x32x16_bf16 {vr(vACC,16)}, {vr(E)}, {vr(vEXT)}, {vr(vACC,16)}",
             f"v_mfma_f32_32x32x16_bf16 {vr(vACC+16,16)}, {vr(vEXT)}, {vr(E+4)}, {vr(vACC+16,16)}"] + ex_addr(G.ex)
    work += qk_tile(vACC, KVF(0), vRS, " sc1", 192) + v_tile(vACC+16, 0, vR, E) + ["#kv"] + ex_kv(192, E)
    work += [f"#pk{i}" for i in range(8) if PK_AT[i] == 8]
    st = {}
    def put(x):
        if x == '#kv': st['kv'] = st['t']
        elif x.startswith('#pk'): pk.issue(int(x[3:]))
        elif x.startswith('buffer'): st['t'] = k.vm(x)
        elif x.startswith('ds_'): k.lg(x)
        else: k(x)
    for _ in range(Q0K_LEAD): put(work.pop(0))
    acc = vr(vACC + 32, 16)
    for ks in range(32):
        w = ar(64 + 4*(ks % 8))
        k.wait(lg=qt[ks])
        k(f"v_mfma_f32_32x32x16_bf16 {acc}, {w}, {vr(vX + 4*QO[ks])}, {'0' if ks == 0 else acc}")
        if ks + 4 < 32: qt[ks + 4] = qread(ks + 4)
        if ks < 8: csum(2, w, ks == 0)
        if ks == 9: work += extp(2, 240)
        for _ in range(Q0K_EPI):
            if work: put(work.pop(0))
        if ks in Q0_MARKQ: mark(k, f'q{ks}')
        if ks == Q0K_FLAG:
            assert not work
            k.wait_all(vm=False)
            kv_flag(k, 0, st['kv'])
            te = k.lg(f"ds_read_b128 {vr(240)}, v{vL16} offset:{XS+2*KB}")
    k.wait(lg=te)
    k(f"v_mfma_f32_32x32x16_bf16 {acc}, {vr(240)}, {vr(vEXT)}, {acc}")
    q_out(k, vACC + 32, vRS + 1, 232, vT)
    mark(k, 'st')
    return st['kv'], None

def ph_qkv0g(k, late):
    vX, vACC, vST, vEXT, vRS, vT, vR = 16, 144, 192, 8, 6, 224, 232
    vXA, vWA, vXR, vTR, vCW, vG = 10, 12, 224, 228, 192, 192
    aCS = 96
    sXS, sWR, sXL, sWL = 60, 56, sD, sE
    rb_128(k)
    k(f"s_and_b32 s{sA}, s{sC}, 15")
    k(f"v_bfe_u32 v{vXA}, v0, 3, 3\nv_lshlrev_b32 v{vXA}, 10, v{vXA}\nv_and_b32 v13, 7, v0\nv_bfe_u32 v14, v0, 4, 2\nv_xor_b32 v13, v13, v14")
    k(f"v_lshlrev_b32 v13, 4, v13\nv_add_u32 v{vXA}, v{vXA}, v13\nv_xor_b32 v{vXA+1}, 64, v{vXA}")
    k(f"v_bfe_u32 v{vWA}, v0, 2, 4\nv_mul_u32_u24 v{vWA}, 3072, v{vWA}\nv_and_b32 v13, 3, v0\nv_lshlrev_b32 v13, 4, v13\nv_add_u32 v{vWA}, v{vWA}, v13")
    if DIAG_W: k(f"v_bfe_u32 v{vWA}, v0, 3, 3\nv_mul_u32_u24 v{vWA}, 6144, v{vWA}\nv_and_b32 v13, 7, v0\nv_lshlrev_b32 v13, 4, v13\nv_add_u32 v{vWA}, v{vWA}, v13\ns_and_b32 s{sA}, s{sA}, 14")
    k(f"s_lshl_b32 s{sX}, s{sRB}, 15")
    k(f"s_mul_i32 s{sX2}, s{sW}, 49152\ns_lshl_b32 s{sT0}, s{sA}, 6\ns_add_u32 s{sX2}, s{sX2}, s{sT0}")
    if DIAG_W: k(f"s_and_b32 s{sA}, s{sG}, 1\ns_lshl_b32 s{sA}, s{sA}, 3\ns_and_b32 s{sT0}, s{sC}, 7\ns_add_u32 s{sA}, s{sA}, s{sT0}")
    k(f"s_lshl_b32 s{sXL}, s{sW}, 14\ns_add_u32 s{sXL}, s{sXL}, {96*KB}\ns_mul_i32 s{sWL}, s{sW}, 3072")
    k("s_waitcnt lgkmcnt(0)")
    if Q0_MARKS: mark(k, 'karg')
    k(f"s_mov_b32 s{sWR}, s64\ns_and_b32 s{sWR+1}, s65, 0xffff\ns_mov_b32 s{sWR+2}, {512*3072}\ns_mov_b32 s{sWR+3}, 0x20000")
    k(f"s_and_b32 s{sXS+1}, s{sXS+1}, 0xffff\ns_mov_b32 s{sXS+2}, {2*MB}\ns_mov_b32 s{sXS+3}, 0x20000")
    ct = {}; cn = {j: 0 for j in range(8)}
    k(f"s_lshl_b32 s{sCc}, s{sC4}, 2\ns_lshr_b32 s{sT3}, s{sC}, {Q0_RSH}\ns_add_u32 s{sCc}, s{sCc}, s{sT3}\ns_add_u32 s{sCc}, s{sCc}, s{sG}")
    def rot(j):
        k(f"s_add_u32 s{sT3}, s{sCc}, {j}\ns_and_b32 s{sT3}, s{sT3}, {7 if Q0_ROT else 0}")
        if not Q0_ROT: k(f"s_mov_b32 s{sT3}, {j}")
        k(f"s_lshl_b32 s{sS0}, s{sT3}, 7\ns_add_u32 s{sS0}, s{sS0}, s{sX}")
        k(f"s_mul_i32 s{sS1}, s{sT3}, {4*49152}\ns_add_u32 s{sS1}, s{sS1}, s{sX2}")
    def ldW(j, t):
        k(f"s_add_u32 m0, s{sWL}, {(12*j + t)*KB}\ns_add_u32 s{sT2}, s{sS1}, {((t+1) % 3)*1024}")
        ct[j] = k.vm(f"buffer_load_dwordx4 v{vWA}, {srd(sWR)}, s{sT2} offen lds"); cn[j] += 1
    def ldX(j, i):
        if i == 0: rot(j)
        k(f"s_add_u32 m0, s{sXL}, {(j & 3)*4*KB + i*KB}\ns_add_u32 s{sT2}, s{sS0}, {i*8192}")
        ct[j] = k.vm(f"buffer_load_dwordx4 v{vXA + (i & 1)}, {srd(sXS)}, s{sT2} offen lds"); cn[j] += 1
    def chunk_loads(j):
        return [lambda i=i: ldX(j, i) for i in range(4)] + [lambda t=t: ldW(j, t) for t in range(3)]
    rowmajor_addr(k, 236, sT0)
    k.vm(f"buffer_load_dwordx4 {vr(vG)}, v236, {srd(sXS)}, s{sT0} offen")
    tres = k.vm(f"buffer_load_dwordx4 {vr(vG+4)}, v236, {srd(sXS)}, s{sT0} offen offset:32")
    for f in chunk_loads(0): f()
    if Q0_MARKS: mark(k, 'up0')
    late(k)
    pack_decode(k)
    k(f"s_cmp_eq_u32 s{sW}, 0\ns_cselect_b64 s[90:91], s[68:69], s[70:71]")
    k(f"s_cmp_eq_u32 s{sW}, 2\ns_cselect_b64 s[90:91], s[72:73], s[90:91]")
    k(f"s_cmp_eq_u32 s{sW}, 3\ns_cselect_b64 s[90:91], s[66:67], s[90:91]\ns_cselect_b32 s{sT0}, 16, 56")
    k(f"s_mul_i32 s{sT1}, s{sT0}, s{sU}\ns_sub_u32 s{sT0}, s{sT0}, 1")
    k(f"v_and_b32 v254, 63, v0\nv_min_u32 v254, s{sT0}, v254\nv_add_u32 v254, s{sT1}, v254\nv_lshlrev_b32 v254, 7, v254")
    pk = G.pk = Pack(k)
    k(f"s_and_b32 s{sT0}, s{sC}, 7\ns_and_b32 s{sT1}, s{sC}, 15")
    k("v_and_b32 v13, 15, v0\nv_min_u32 v14, 13, v13")
    k(f"s_lshr_b32 s{sT2}, s{sT0}, 1\ns_add_u32 s{sT2}, s{sT2}, 176\nv_lshl_add_u32 v252, v14, 2, s{sT2}")
    k(f"s_mul_i32 s{sT2}, s{sT1}, 7\ns_add_u32 s{sT3}, s{sT2}, 6\ns_lshr_b32 s{sT2}, s{sT2}, 2\ns_lshr_b32 s{sT3}, s{sT3}, 2")
    k(f"v_lshrrev_b32 v14, 2, v13\nv_add_u32 v14, s{sT2}, v14\nv_min_u32 v14, s{sT3}, v14\nv_and_b32 v15, 3, v13\nv_mul_u32_u24 v15, 28, v15")
    k("v_add3_u32 v14, v14, v15, 48")
    k("v_and_b32 v15, 16, v0\nv_cmp_ne_u32 vcc, 0, v15\nv_cndmask_b32 v252, v252, v14, vcc")
    k(f"s_add_u32 s{sT0}, s{sT0}, 160\nv_and_b32 v14, 1, v13\nv_lshl_add_u32 v251, v14, 3, s{sT0}")
    k(f"s_lshr_b32 s{sT1}, s{sT1}, 1\nv_mul_u32_u24 v14, 24, v14\nv_lshrrev_b32 v15, 1, v13\nv_min_u32 v15, 2, v15\nv_lshlrev_b32 v15, 3, v15")
    k(f"v_add3_u32 v14, v14, v15, s{sT1}")
    k("v_cndmask_b32 v251, v251, v14, vcc")
    k(f"v_cmp_gt_u32 vcc, 512, v{vL16}\nv_cndmask_b32 v252, v251, v252, vcc\nv_lshlrev_b32 v252, 7, v252\nv_accvgpr_write_b32 a213, v252")
    if WARM:
        k("s_getpc_b64 s[88:89]")
        k.label("L_pcw")
        k(f"s_lshl_b32 s{sT0}, s{sC}, 1\ns_add_u32 s{sT0}, s{sT0}, s{sW}\ns_and_b32 s{sT0}, s{sT0}, 63\ns_lshl_b32 s{sT0}, s{sT0}, 10\ns_min_u32 s{sT0}, s{sT0}, L_end-L_pcw-1024")
        k(f"v_add_u32 v245, s{sT0}, v{vL16}")
        k(f"v_min_u32 v244, {(WS_PAGES-1)*16}, v{vL16}\nv_lshlrev_b32 v244, 17, v244")
        k(f"s_cmp_eq_u32 s{sW}, 1\ns_cselect_b64 s[88:89], s[{sAUX}:{sAUX+1}], s[88:89]")
        k(f"s_cmp_eq_u32 s{sW}, 0\ns_cselect_b64 s[88:89], s[{sWS}:{sWS+1}], s[88:89]\ns_cselect_b64 vcc, -1, 0")
        k("v_cndmask_b32 v245, v245, v244, vcc")
    if PK_Q0: pk.issue(*range(8))
    k(f"v_and_b32 v13, 31, v0\nv_bfe_u32 v14, v0, 1, 3\nv_bfe_u32 v15, v0, 5, 1\nv_xor_b32 v14, v14, v15\nv_lshlrev_b32 v14, 4, v14\nv_lshl_add_u32 v13, v13, 7, v14")
    tr_addr(k, 255, 14)
    for e in range(4):
        k(f"s_add_u32 s{sT0}, s{sW}, {e}\ns_and_b32 s{sT0}, s{sT0}, 3\ns_lshl_b32 s{sT1}, s{sT0}, 5\ns_mul_i32 s{sT0}, s{sT0}, 3072")
        k(f"v_xor_b32 v{vXR+e}, s{sT1}, v13\nv_add_u32 v{vXR+e}, s{sXL}, v{vXR+e}")
        k(f"v_add_u32 v{vTR+e}, s{sT0}, v255\nv_add_u32 v{vTR+4+e}, {48*KB}, v{vTR+e}")
    k(f"v_mov_b32 v14, 0x3f803f80\nv_add_u32 v255, s84, v255\nv_accvgpr_write_b32 a212, v255")
    for r in range(192, 196): k(f"v_accvgpr_write_b32 a{r}, v14")
    def reads(j):
        o = []
        for e in range(4):
            o.append(f"ds_read_b128 {vr(vX + 16*j + 4*e)}, v{vXR+e} offset:{(j & 3)*4*KB}")
            for t in range(3):
                off = (12*(j & 3) + t)*KB; r = 48*(j & 1) + 4*(3*e + t)
                o.append(f"ds_read_b64_tr_b16 {ar(r,2)}, v{vTR + 4*(j >> 2) + e} offset:{off}")
                o.append(f"ds_read_b64_tr_b16 {ar(r+2,2)}, v{vTR + 4*(j >> 2) + e} offset:{off+256}")
        return o
    side = []
    if Q0_MARKS: mark(k, 'alu')
    for j in range(1, Q0_UP):
        for f in chunk_loads(j): f()
    if WARM and WARM_AT == 1: k.vm(f"global_load_dword v255, v245, s[88:89]")
    if Q0_MARKS: mark(k, 'iss')
    k.wait(vm=ct[0])
    k("s_barrier")
    mark(k, 'd0')
    for x in reads(0): k.lg(x)
    U = vG + 8
    st_ = res_unpack(U, vG)
    st_ += [f"v_add_f32 v{vG}, v{U}, v{U+1}", f"v_mul_f32 v{vG+2}, v{U}, v{U}", f"v_add_f32 v{vG+1}, v{U+2}, v{U+3}", f"v_mul_f32 v{vG+3}, v{U+1}, v{U+1}",
            f"v_fmac_f32 v{vG+2}, v{U+2}, v{U+2}", f"v_fmac_f32 v{vG+3}, v{U+3}, v{U+3}"]
    for i in range(4, 16, 2):
        st_ += [f"v_add_f32 v{vG}, v{vG}, v{U+i}", f"v_fmac_f32 v{vG+2}, v{U+i}, v{U+i}", f"v_add_f32 v{vG+1}, v{vG+1}, v{U+i+1}", f"v_fmac_f32 v{vG+3}, v{U+i+1}, v{U+i+1}"]
    st_ += [f"v_add_f32 v{vG}, v{vG}, v{vG+1}", f"v_add_f32 v{vG+2}, v{vG+2}, v{vG+3}", f"v_mov_b32 v{vG+1}, v{vG}", f"v_mov_b32 v{vG+3}, v{vG+2}",
            f"v_permlane32_swap_b32 v{vG}, v{vG+1}", f"v_permlane32_swap_b32 v{vG+2}, v{vG+3}",
            f"v_add_f32 v{vG}, v{vG}, v{vG+1}", f"v_add_f32 v{vG+2}, v{vG+2}, v{vG+3}"]
    for x in st_[:Q0_ST0]: k(x)
    st_ = st_[Q0_ST0:]
    def gran():
        k(f"s_add_u32 s{sTAG}, s{sTAG}, 0x7f4a7c15\ns_addc_u32 s{sTAG+1}, s{sTAG+1}, 0x9e3779b9")
        k(f"v_mov_b32 v{vG+1}, s{sTAG}\nv_mov_b32 v{vG+3}, s{sTAG+1}")
        k(f"s_lshr_b32 s{sT0}, s{sDST}, 2\ns_add_u32 s{sT0}, s{sT0}, {SG}\ns_mov_b32 exec_hi, 0")
        k.vm(f"buffer_store_dwordx4 {vr(vG)}, v{vL16}, {srd(sWS)}, s{sT0} offen sc1")
        k("s_mov_b64 exec, -1")
        k(f"s_lshl_b32 s{sF}, s{sRB}, 13\ns_add_u32 s{sF}, s{sF}, {SG}\ns_add_u32 s{sB}, s{sF}, 4096")
    cmpg = []
    for i in range(8):
        cmpg += [f"v_xor_b32 v13, s{sTAG}, v{vG+4*i+1}", f"v_xor_b32 v14, s{sTAG+1}, v{vG+4*i+3}",
                 ("v_or_b32 v15, v13, v14" if i == 0 else "v_or3_b32 v15, v13, v14, v15")]
    apg = APoll(k, [f"buffer_load_dwordx4 {vr(vG+4*i)}, v{vL16}, {srd(sWS)}, s{sF if i < 4 else sB} offen offset:{(i & 3)*KB} sc1" for i in range(8)],
                "\n".join(cmpg + ["v_cmp_ne_u32 vcc, 0, v15"]))
    for j in range(8):
        if j == 0 and st_:
            n_ = -(-len(st_) // 8)
            side += [lambda c=st_[i:i+n_]: [k(x) for x in c] for i in range(0, len(st_), n_)]
        if j == 0: side.append(gran)
        for c_ in Q0_SCHED[j]:
            assert c_ - 4 <= j
            side += chunk_loads(c_)
        if WARM and WARM_AT == j + 2: side.append(lambda: k.vm(f"global_load_dword v255, v245, s[88:89]"))
        if j == Q0_GLD: side += [lambda x=x: setattr(apg, 't', k.vm(x)) for x in apg.loads]
        if PK_EARLY: side += [lambda i=i: pk.issue(i) for i in range(8) if PK_AT[i] == j]
        k.wait_all(vm=False)
        rl = []
        if j < 7:
            assert cn[j+1] == 7
            k.wait(vm=ct[j+1]); k("s_barrier")
            if j in Q0_MARKJ: mark(k, f'c{j+1}')
            rl = reads(j + 1)
        mm = [('c', t) for t in range(3)] + [('m', b) for b in range(12)]
        if j == 7:
            apg.check()
            tail = []
            n = 8
            while n > 1:
                h = n // 2
                for i in range(h):
                    tail += [f"v_add_f32 v{vG+4*i}, v{vG+4*i}, v{vG+4*(i+h)}", f"v_add_f32 v{vG+4*i+2}, v{vG+4*i+2}, v{vG+4*(i+h)+2}"]
                n = h
            tail += [f"v_mov_b32 v{vG+1}, v{vG+2}"]
            tail += f"s_lshr_b32 s{sT0}, s{sW}, 1\ns_lshl_b32 s{sT0}, s{sT0}, 9\ns_and_b32 s{sT1}, s{sW}, 1\ns_lshl_b32 s{sT1}, s{sT1}, 3\ns_add_u32 s{sT0}, s{sT0}, s{sT1}".split('\n')
            tail += [f"v_and_b32 v13, 0x1f0, v{vL16}", f"v_add_u32 v13, s{sT0}, v13"]
            C = vG + 8
            for t in range(3):
                tail += [f"v_accvgpr_read_b32 v14, a{aCS+16*t}", f"v_cvt_pk_bf16_f32 v{C+2*t+1}, v14, 0", f"v_lshlrev_b32 v15, 16, v{C+2*t+1}",
                         "v_sub_f32 v14, v14, v15", f"v_cvt_pk_bf16_f32 v{C+2*t}, v15, v14", f"ds_write_b64 v13, {vr(C+2*t,2)} offset:{t*KB}"]
            fin = fin_stats(vST, vEXT, vRS)[NTREE:] + qkv_consts(vT, vRS, vR)
            tail += fin[:18]
            tail += ["s_waitcnt lgkmcnt(0)", "s_barrier"] + [f"ds_read_b128 {vr(C+4*t)}, v{vL16} offset:{t*KB}" for t in range(3)] + fin[18:]
            tail += f"s_lshl_b32 s{sCc}, s{sA}, 18\ns_lshl_b32 s{sT1}, s{sRB}, 11\ns_add_u32 s{sCc}, s{sCc}, s{sT1}".split('\n')
            tail += f"s_mul_i32 s{sB}, s{sRB}, {112*KB}\ns_lshl_b32 s{sT1}, s{sA}, 11\ns_add_u32 s{sB}, s{sB}, s{sT1}".split('\n')
            n_ = -(-len(tail) // 15)
            side += [lambda c=tail[i:i+n_]: [k(x) for x in c] for i in range(0, len(tail), n_)]
        for p, (kind, b) in enumerate(mm):
            if kind == 'c':
                acc = ar(aCS + 16*b, 16)
                k(f"v_mfma_f32_32x32x16_bf16 {acc}, {ar(192)}, {ar(48*(j & 1) + 4*b)}, {'0' if j == 0 else acc}")
            else:
                ks = 4*j + b // 3; t = b % 3
                acc = vr(vACC + 16*t, 16); w = ar(48*(j & 1) + 4*b); x = vr(vX + 4*ks)
                A, B = (x, w) if t == 1 else (w, x)
                k(f"v_mfma_f32_32x32x16_bf16 {acc}, {A}, {B}, {'0' if ks == 0 else acc}")
            if j == 0 and p == 0: mark(k, 'm0')
            for _ in range(2):
                if rl: k.lg(rl.pop(0))
            if side and (j == 7 or p % 2 == 0 or 2 * len(side) > 15 - p): side.pop(0)()
            if len(side) > 14 - p: side.pop(0)()
        assert not rl
    while side: side.pop(0)()
    mark(k, 'loop')
    k.wait_all(vm=False)
    for t in range(3):
        c = vG + 8 + 4*t
        acc = vr(vACC + 16*t, 16)
        A, B = (vr(vEXT), vr(c)) if t == 1 else (vr(c), vr(vEXT))
        k(f"v_mfma_f32_32x32x16_bf16 {acc}, {A}, {B}, {acc}")
    t_ = None
    for x in qk_tile(vACC, KVF(0), vRS, " sc1", vX) + v_tile(vACC+16, 0, vR, vX+8) + qk_tile(vACC+32, QF, vRS+1, " sc1", vX+16):
        if x.startswith('buffer'): t_ = k.vm(x)
        else: k(x)
    mark(k, 'st')
    return t_, t_

def ph_qkv(k, L, ring, b0):
    vX, vACC, vST, vEXT, vRS, vT, vR = 16, 144, 192, 8, 6, 224, 232
    rb_128(k)
    k(f"s_and_b32 s{sA}, s{sC}, 15")
    k(f"s_lshl_b32 s{sX}, s{sRB}, 15\ns_add_u32 s{sX}, s{sX}, {XF}")
    set_lds_bases(k)
    QE = QKV_QE
    seq = [(ks, t) for ks in range(33) for t in ((0, 1, 2) if ks < QE else (0, 1))] + [(ks, 2) for ks in range(QE, 33)]
    ops = [dict(b=b0 + (2*ks + t if t < 2 else 66 + ks), bmin=b0, bmax=b0 + 98, xi=(ks if ks < 32 else None), x=(vr(vX+4*ks) if ks < 32 else vr(vEXT)),
                acc=vr(vACC+16*t, 16), swap=(t == 1), first=(ks == 0)) for ks, t in seq]
    xq = XLoader(k, 32, lambda i: vr(vX+4*i), lin_src(k))
    res = {}
    se = stats_emitters(k, vST, res)
    k(f"s_lshl_b32 s{sCc}, s{sA}, 18\ns_lshl_b32 s{sT1}, s{sRB}, 11\ns_add_u32 s{sCc}, s{sCc}, s{sT1}")
    k(f"s_mul_i32 s{sB}, s{sRB}, {112*KB}\ns_lshl_b32 s{sT1}, s{sA}, 11\ns_add_u32 s{sB}, s{sB}, s{sT1}")
    assert ring.issued == ring.total
    g = Gemm(k, ring, ops, {0})
    g.start()
    ring.issue_n(4)
    publish_local(k, G.tx)
    ring.issue_n(4)
    G.ex = 216
    su = [x.replace('v13', 'v246').replace('v14', 'v247') for x in att_setup(L)] + ex_addr(G.ex)
    su += [f"s_lshl_b32 s{sE}, s{sA}, 11", f"s_add_u32 s{sE}, s{sE}, s{sB}", f"s_add_u32 s{sE}, s{sE}, {HF + 32*KB}"]
    k(f"s_lshl_b32 s{sF}, s{sRB}, 7\ns_add_u32 s{sF}, s{sF}, {FLOC(L-1, 8)}")
    poll16(k)
    aps = stats_poll(k, FLOC(L-1,7) - FLOC(L-1,8))
    fin = fin_stats(vST, vEXT, vRS) + qkv_consts(vT, vRS, vR)
    full = qk_tile(vACC, KVF(L), vRS, " sc1", vST) + v_tile(vACC+16, L, vR, vST+16)
    alu_ = [x for x in full if x.startswith('v_')]
    glob = [x for x in full if not x.startswith('v_')]
    lo_ = [f"buffer_store_dwordx4 {vr(vST)}, v{vL16}, {srd(sWS)}, s{sE} offen",
           f"buffer_store_dwordx4 {vr(vST+4)}, v{vL16}, {srd(sWS)}, s{sE} offen offset:2048",
           f"buffer_store_dwordx4 {vr(vST+16)}, v{G.ex+6}, {srd(sWS)}, s{sE} offen offset:1024",
           f"buffer_store_dwordx4 {vr(vST+20)}, v{G.ex+6}, {srd(sWS)}, s{sE} offen offset:1536"]
    epi = []
    for q_ in range(4): epi += alu_[12*q_:12*q_+12] + ([lo_[q_]] if KV_LOC else [])
    epi += ["#loc"] + glob + ex_kv(vST, vST+16)
    st = dict(i=0, j=0, t=None, loc=None)
    def put(x):
        if x == '#loc': st['loc'] = st['t']
        elif x.startswith('buffer'): st['t'] = k.vm(x)
        elif x.startswith('ds_'): k.lg(x)
        else: k(x)
    def filler(m):
        if aps and m == 4: aps.issue()
        if m == 22:
            if aps: aps.check()
            for e in se: e()
        if m < 10 or m > 22:
            for _ in range(3 if m < 10 else 4):
                if su: k(su.pop(0))
        if 44 <= m < 64 + QE:
            assert not su
            if st['i'] == 0: k.wait(vm=res['t'])
            for _ in range(3):
                if st['i'] < len(fin): k(fin[st['i']]); st['i'] += 1
        if m >= 68 + QE:
            for _ in range(QKV_EPI):
                if st['j'] < len(epi): put(epi[st['j']]); st['j'] += 1
    g.run(xq, n0=8, filler=filler)
    while st['j'] < len(epi):
        put(epi[st['j']]); st['j'] += 1
    assert st['i'] == len(fin)
    if KV_LOC and QF_AT == 0: q_flag(k, L, st['loc'])
    q_out(k, vACC + 32, vRS + 1, vST + 8, vT)
    if KV_LOC and QF_AT == 1: q_flag(k, L, st['loc'])
    mark(k, 'st')
    return st['t'], st['loc']

def code_touch(k, vd, skip=0):
    if not CODE_TOUCH: return
    pc = k.newlabel('pc')
    k(f"s_getpc_b64 s[{sPC}:{sPC+1}]")
    k.label(pc)
    k(f"s_min_u32 s{sSPIN}, s{sCT}, L_end-{pc}-1024\ns_add_u32 s{sPC}, s{sPC}, s{sSPIN}\ns_addc_u32 s{sPC+1}, s{sPC+1}, 0")
    k.vm(f"global_load_dword v{vd}, v{vL16}, s[{sPC}:{sPC+1}] offset:{skip}")

def flag_touch(k, L, va, vd):
    if not FL_TOUCH: return
    k(f"v_bfe_u32 v{va}, v0, 3, 3\nv_lshlrev_b32 v{va}, 6, v{va}\nv_and_or_b32 v{va}, v0, 7, v{va}\nv_lshlrev_b32 v{va}, 7, v{va}")
    k(f"s_lshl_b32 s{sT3}, s{sG}, 10\ns_add_u32 s{sT3}, s{sT3}, {FLOC(L,0)}")
    k.vm(f"buffer_load_dword v{vd}, v{va}, {srd(sWS)}, s{sT3} offen sc1")

EX = 112 * KB
vK, vV, vIDX, vL128, vTX, vP2, vCP = 248, 249, 250, 251, 252, 253, 254
sOD, sLC, sTH, sTW, sFO, sF2, sKX = 64, 66, 72, 73, 79, 68, 69
def att_setup(L):
    o = f"""s_and_b32 s{sT0}, s{sC}, 15
s_lshl_b32 s{sF2}, s{sT0}, 11
s_add_u32 s{sF2}, s{sF2}, {FKV(L)}
s_lshl_b32 s{sT0}, s{sT0}, 1
s_and_b32 s{sT1}, s{sW}, 1
s_add_u32 s{sT0}, s{sT0}, s{sT1}
s_lshr_b32 s{sT1}, s{sW}, 1
s_lshl_b32 s{sKX}, s{sG}, 1
s_add_u32 s{sKX}, s{sKX}, s{sC4}
s_lshl_b32 s{sT2}, s{sKX}, 1
s_add_u32 s{sT2}, s{sT2}, s{sT1}
s_lshl_b32 s{sFO}, s{sT2}, 5
s_add_u32 s{sFO}, s{sFO}, s{sT0}
s_lshl_b32 s{sFO}, s{sFO}, 3
s_add_u32 s{sFO}, s{sFO}, {FLOC(L,0)}
s_mul_i32 s{sOD}, s{sT2}, {224*KB}
s_lshl_b32 s{sT3}, s{sT0}, 10
s_add_u32 s{sOD}, s{sOD}, s{sT3}
s_add_u32 s{sOD}, s{sOD}, {HF}
s_add_u32 s{sOD+1}, s{sOD}, {112*KB}
s_xor_b32 s{sT2}, s{sT2}, 2
s_mul_i32 s{sLC}, s{sT2}, {224*KB}
s_lshl_b32 s{sT3}, s{sT0}, 11
s_add_u32 s{sLC}, s{sLC}, s{sT3}
s_add_u32 s{sLC}, s{sLC}, {HF + 32*KB}
s_add_u32 s{sLC+1}, s{sLC}, {112*KB}
s_lshl_b32 s{sKX}, s{sKX}, 13
s_lshl_b32 s{sT0}, s{sT0}, 17
s_lshl_b32 s{sT1}, s{sT1}, 12
s_add_u32 s{sT0}, s{sT0}, s{sT1}
s_add_u32 s{sKX}, s{sKX}, s{sT0}
s_add_u32 s{sKX}, s{sKX}, {KVF(L)}
v_and_b32 v13, 0x33, v0
v_bfe_u32 v14, v0, 2, 1
v_lshl_or_b32 v13, v14, 3, v13
v_bfe_u32 v14, v0, 3, 1
v_lshl_or_b32 v13, v14, 2, v13
v_lshlrev_b32 v{vK}, 4, v13
v_and_b32 v13, 15, v0
s_bfe_u32 s{sT0}, s{sKX}, 0x4000d
v_xor_b32 v{vP2}, s{sT0}, v13
v_lshlrev_b32 v{vP2}, 7, v{vP2}
v_bfe_u32 v14, v0, 5, 1
v_lshl_add_u32 v13, v14, 4, v13
v_lshlrev_b32 v{vV}, 4, v13
v_mov_b32 v{vIDX}, 0xdddddddd
v_lshlrev_b32 v{vL128}, 3, v{vL16}
v_and_b32 v13, 27, v0
v_cmp_eq_u32 vcc, 16, v13
v_mov_b32 v14, 0x3afe3f80
v_cndmask_b32 v{vCP}, 0, v14, vcc
s_lshl_b32 s{sT3}, s{sU}, 2
s_add_u32 s{sT3}, s{sT3}, s{sW}
s_mul_i32 s{sTH}, s{sT3}, {7*KB}
s_add_u32 s{sTH}, s{sTH}, {HF}
s_lshl_b32 s{sT0}, s{sT3}, 11
s_add_u32 s{sT0}, s{sT0}, {XF}
s_lshl_b32 s{sT1}, s{sT3}, 8
s_add_u32 s{sT1}, s{sT1}, {SX}
v_and_b32 v13, 0x780, v{vL128}
v_add_u32 v13, s{sT0}, v13
v_and_b32 v14, 0x80, v{vL128}
v_add_u32 v14, s{sT1}, v14
v_cmp_gt_u32 vcc, 512, v{vL16}
v_cndmask_b32 v{vTX}, v14, v13, vcc
s_lshl_b32 s{sTW}, s{sC4}, 2
s_add_u32 s{sTW}, s{sTW}, s{sW}
s_mul_i32 s{sTW}, s{sTW}, {TOUCH_KBS[L] * KB // 8}
s_add_u32 s{sTW}, s{sTW}, s{sSEG+1}
s_add_u32 s{sTW}, s{sTW}, {(PREFILL - 64)*KB}
s_and_b32 s{sCT}, s{sT3}, 31
s_lshl_b32 s{sCT}, s{sCT}, 10"""
    return o.split('\n')
def ex_addr(e):
    return [f"v_bfe_u32 v{e+6}, v0, 4, 1", f"v_lshl_add_u32 v{e+6}, v{e+6}, 11, v{vV}",
            f"s_mul_i32 s{sT3}, s{sW}, {6*KB}", f"s_add_u32 s{sT3}, s{sT3}, {EX}", f"v_add_u32 v{e}, s{sT3}, v{vL16}", f"v_add_u32 v{e+1}, s{sT3}, v{e+6}",
            f"s_lshr_b32 s{sT3}, s{sW}, 1", f"s_mul_i32 s{sT3}, s{sT3}, {12*KB}", f"s_and_b32 s{sT0}, s{sW}, 1", f"s_lshl_b32 s{sT0}, s{sT0}, 10",
            f"s_add_u32 s{sT2}, s{sT0}, {EX}", f"s_add_u32 s{sT1}, s{sT2}, s{sT3}", f"v_add_u32 v{e+2}, s{sT1}, v{vL16}",
            f"s_sub_u32 s{sT2}, s{sT2}, s{sT3}", f"v_add_u32 v{e+3}, s{sT2}, v{vL16}", f"s_add_u32 s{sT1}, s{sT1}, s{sT0}",
            f"v_add_u32 v{e+4}, s{sT1}, v{vK}", f"v_add_u32 v{e+5}, s{sT1}, v{vV}"]
def ex_kv(pK, pV):
    e = G.ex
    return [f"ds_write_b128 v{e}, {vr(pK)}", f"ds_write_b128 v{e}, {vr(pK+4)} offset:2048",
            f"ds_write_b128 v{e+1}, {vr(pV)} offset:1024", f"ds_write_b128 v{e+1}, {vr(pV+4)} offset:1536"]
def q_out(k, a, sc, p0, vT):
    init = [f"v_mfma_f32_32x32x16_bf16 {vr(16+16*q,16)}, {vr(vT+4)}, {vr(vT)}, 0" for q in range(4)]
    init2 = [f"v_mfma_f32_32x32x16_bf16 {vr(80+16*q,16)}, {vr(vT+4)}, {vr(vT)}, 0" for q in range(6)]
    k(f"v_mov_b32 v{vT}, 0")
    for x in init: k(x)
    k(f"v_mov_b32 v{vT}, v{vCP}")
    for half in range(2):
        p = p0 + 4*half
        for j in range(4):
            r = a + 8*half + 2*j
            k(f"v_mul_f32 v{r}, v{r}, v{sc}\nv_mul_f32 v{r+1}, v{r+1}, v{sc}\nv_cvt_pk_bf16_f32 v{p+j}, v{r}, v{r+1}")
            if init2: k(init2.pop(0))
        k.lg(f"ds_write_b128 v{G.ex}, {vr(p)} offset:{4096 + half*KB}")

def ph_att(k, L, ring, tkv, tloc):
    vO, vKV, aQ = 16, 80, aWB
    NS, NKV = (3, 10) if DEEP else (4, 8)
    vS0 = vKV + 12*NKV
    vS = [vS0 + 16*i for i in range(NS)]
    sK = sB
    K = lambda t: vr(vKV + 12*(t % NKV))
    V = lambda t, u: vr(vKV + 12*(t % NKV) + 4 + 4*u)
    k.wait_all(vm=False)
    k("s_barrier")
    lt = {}
    lt['k0'] = k.lg(f"ds_read_b128 {K(0)}, v{G.ex+4}")
    for s in range(4):
        lt[s] = k.lg(f"ds_read_b128 {ar(aQ+4*s)}, v{G.ex + 2 + (s >> 1)} offset:{4096 + (s & 1)*6*KB + (12*KB if s >> 1 else 0)}")
    k(f"s_mov_b64 exec, s[{sMSK}:{sMSK+1}]")
    for t in range(2):
        for u in range(2): lt['v'] = k.lg(f"ds_read_b128 {V(t,u)}, v{G.ex+5} offset:{t*6*KB + KB + u*512}")
    k("s_mov_b64 exec, -1")
    lt['k1'] = k.lg(f"ds_read_b128 {K(1)}, v{G.ex+4} offset:{6*KB}")
    mark(k, 'pre')
    if L and KV_LOC and QF_AT == 2: q_flag(k, L, tloc)
    kt = {}
    def ldP(x):
        if x == 1 and L and KV_LOC: src = [(sLC, 0), (sLC + 1, 0)]
        else:
            k(f"s_xor_b32 s{sK}, s{sKX}, {x << 13}")
            src = [(sK, 0), (sK, 2*KB)]
        for z in range(2): k.vm(f"buffer_load_dwordx4 {K(2*x+z)}, v{vK}, {srd(sWS)}, s{src[z][0]} offen offset:{src[z][1]} sc1")
        k(f"s_mov_b64 exec, s[{sMSK}:{sMSK+1}]")
        for z in range(2):
            for u in range(2): t_ = k.vm(f"buffer_load_dwordx4 {V(2*x+z,u)}, v{vV}, {srd(sWS)}, s{src[z][0]} offen offset:{src[z][1] + KB + u*512} sc1")
        k("s_mov_b64 exec, -1")
        kt[2*x] = kt[2*x+1] = t_
    NT = ATT_NT
    steps = [(t, q) for t in range(32 - NT) for q in range(4)] + [(t, q) for q in (2, 3, 0, 1) for t in range(32 - NT, 32)]
    n = len(steps)
    LA = NS - 1
    def qk(i):
        t, q = steps[i]
        if t < 2: k.wait(lg=lt[q] if t == 0 else lt['k1'])
        else: k.wait(vm=kt[t])
        k(f"v_mfma_f32_32x32x16_bf16 {vr(vS[i % NS],16)}, {K(t)}, {ar(aQ+4*q)}, 0")
    def pv(i, u):
        t, q = steps[i]
        if t < 2: k.wait(lg=lt['v'])
        k(f"v_smfmac_f32_32x32x32_bf16 {vr(vO+16*q,16)}, {V(t,u)}, {vr(vS[i % NS]+8*u,8)}, v{vIDX}")
    for i in range(LA): qk(i)
    mark(k, 'm0')
    ring.limit = PREFILL
    jobs = {}
    def job(i, f, e=10): jobs.setdefault((i, e), []).append(f)
    ap2 = apoll1(k, vP2, 10, sF2, mask=((0xc if L and KV_LOC else 0xe) if STAGED else None))
    pre = {}
    if STAGED:
        ap3 = apoll1(k, vP2, 8, sF2, mask=0xf0); ap4 = apoll1(k, vP2, 8, sF2)
        job(X4_AT - 3, ap3.issue); pre[4] = ap3.check
        job(35, ap4.issue); pre[8] = ap4.check
    late_qk = set()
    if L and KV_LOC:
        def a1():
            k(f"s_xor_b32 s{sT0}, s{sRB}, 4\ns_and_b32 s{sT0}, s{sT0}, 6\ns_lshl_b32 s{sT1}, s{sG}, 4\ns_add_u32 s{sT1}, s{sT1}, s{sA}\ns_lshl_b32 s{sT1}, s{sT1}, 3")
            k(f"s_add_u32 s{sT1}, s{sT1}, s{sT0}\ns_lshl_b32 s{sT1}, s{sT1}, 3\ns_add_u32 s{sD}, s{sT1}, {FLOC(L-1,5)}\nv_and_b32 v12, 8, v0")
            ap1.issue()
        ap1 = apoll1(k, 12, 8, sD)
        job(A1_AT[0], a1, e=2 if A1_AT[0] else 3)
        job(A1_AT[1], lambda: (ap1.check(), ldP(1)))
        job(KVF_AT[L], lambda: (k.wait(lg=lt['k1']), kv_flag(k, L, tkv)))
        job(P2[L][0], ap2.issue)
        job(P2[L][1], lambda: (ap2.check(), ldP(2)))
        job(P2[L][1] + 1, lambda: ldP(3))
    else:
        if not (L == 0 and Q0K and Q0K_FLAG < 32): job(KVF_AT[L], lambda: (k.wait(lg=lt['k1']), kv_flag(k, L, tkv)))
        if L == 0:
            job(PKR_AT, lambda: G.pk.reads(*range(8)))
            for i in range(8): job(PKR_AT + 1 + i // 4, lambda i=i: G.pk.csum(i), e=(0, 4, 8, 13)[i % 4])
        job(P2[L][0], ap2.issue)
        if L == 0 and PK_WAIT:
            job(P2[L][1], lambda: (ap2.check(), ldP(1), ldP(2), ldP(3) if PK_WAIT > 1 else None, G.pk.stores(*range(8)), G.pk.ext()), e=15)
            if PK_WAIT == 1: job(P2[L][1] + 2, lambda: ldP(3))
        else:
            job(P2[L][1], lambda: (ap2.check(), ldP(1)))
            job(P2[L][1] + 1, lambda: ldP(2))
            job(P2[L][1] + 2, lambda: ldP(3))
        late_qk = set(range(8, 8 + LA))
    job(9, lambda: code_touch(k, 5))
    if DEEP:
        def cinit():
            for t in (8, 9):
                for j in range(8): k(f"v_mov_b32 v{vKV+12*t+4+j}, v{vKV+12*7+4}")
        job(0, cinit, e=14)
        job(10, lambda: ldP(4))
        for x in range(5, 16): job(8*(x - 4) + (5 if x == 5 else 0), lambda x=x: ldP(x))
    else:
        for x in range(4, 16):
            at = X4_AT if x == 4 else max(8*(x - 3), X4_AT + 2)
            if x in pre: job(at, pre[x])
            job(at, lambda x=x: ldP(x))
    NR = PREFILL // 16
    if L == 0:
        if PK_WAIT:
            job(PUB_AT, G.pk.pub); CHK_AT = PUB_AT + CHK_GAP
        else: CHK_AT = G.pk.schedule(job) + CHK_GAP
        apk = APoll(k, [f"buffer_load_dwordx2 v[10:11], v12, {srd(sWS)}, s{sX} offen offset:8 sc1"],
                    f"v_cmp_ne_u64 vcc, s[{sTAG}:{sTAG+1}], v[10:11]")
        def chk0():
            k(f"v_accvgpr_read_b32 v12, a213\ns_mov_b32 s{sX}, {FPK}")
            apk.issue()
        job(CHK_AT - 6, chk0)
        apx = APoll(k, [f"buffer_load_dwordx4 v[12:15], v11, {srd(sWS)}, s{sCc} offen sc1"],
                    f"v_cmp_ne_u64 vcc, s[{sTAG}:{sTAG+1}], v[14:15]")
        def mode0():
            k(f"v_and_b32 v11, 0xf80, v{vL128}\ns_lshl_b32 s{sCc}, s{sG}, 12\ns_add_u32 s{sCc}, s{sCc}, {FPK}")
            apx.issue()
        def mode():
            apx.check()
            k(f"s_xor_b32 s{sT2}, s{sTAG}, s{sXCC}")
            k(f"v_cmp_ne_u32 vcc, s{sT2}, v12")
            k(f"s_cmp_eq_u64 vcc, 0\ns_cselect_b32 s{sMODE}, 1, 0")
        job(81, mode0); job(95, mode)
        def chk():
            apk.check()
            k(f"s_and_b32 s{sT2}, s{sC}, 7\ns_lshl_b32 s{sT2}, s{sT2}, 1\ns_lshr_b32 s{sT3}, s{sW}, 1\ns_add_u32 s{sT2}, s{sT2}, s{sT3}")
            k(f"s_mul_i32 s{sT3}, s{sW}, {28*KB}\ns_add_u32 s{sT3}, s{sT3}, {WD}")
            k(f"s_mul_i32 s{sX}, s{sT2}, {112*KB}\ns_add_u32 s{sX}, s{sX}, s{sT3}")
            k(f"s_xor_b32 s{sT2}, s{sT2}, 1\ns_mul_i32 s{sX2}, s{sT2}, {112*KB}\ns_add_u32 s{sX2}, s{sX2}, s{sT3}")
        job(CHK_AT, chk)
        def wsrc(i):
            s_ = sX if i < 28 else sX2
            j = i % 28
            if j and (j & 3) == 0: k(f"s_add_u32 s{s_}, s{s_}, 4096")
            return s_, (j & 3) * KB
        if DN16:
            def wsrc(i):
                s_ = sX if i < 28 else sX2
                j = i % 28
                if j and (j & 3) == 0: k(f"s_add_u32 s{s_}, s{s_}, 4096")
                return s_, ((j >> 1) & 1) * 2048 + (j & 1) * 256
            wq = XLoader(k, 56, lambda i: ar(aWD + 16*((i % 28) >> 1) + 8*(i // 28) + 4*(i & 1)), wsrc, va=7)
            job(CHK_AT, lambda: k(f"v_and_b32 v7, 0xf0, v{vK}\nv_bfe_u32 v6, v0, 4, 2\nv_lshl_add_u32 v7, v6, 9, v7"))
        else:
            wq = XLoader(k, 56, lambda i: ar(aWD + 8*(i % 28) + 4*(i // 28)), wsrc)
        slots = [i for i in range(CHK_AT + 1, 112) if i % 8 in WD_SLOTS]
        work = [lambda: wq.issue_n(4)] * 14
        rw = [ring.issue16] * NR
        seq = []
        while work or rw:
            if work: seq.append(work.pop(0))
            if work: seq.append(work.pop(0))
            if rw: seq.append(rw.pop(0))
        assert len(seq) <= len(slots), (len(seq), len(slots))
        for i, f in zip(slots, seq): job(i, f)
    else:
        for j in range(NR): job(R1_AT + R1_STEP*j, ring.issue16)
    TL = TOUCH_LN; vT_ = vL128 if TL == 64 else 4
    def tch(sreg, j):
        def f():
            if j: k(f"s_add_u32 s{sreg}, s{sreg}, {TL*128}")
            elif TL < 64: k(f"v_and_b32 v4, {(TL-1)*128}, v{vL128}")
            k.vm(f"buffer_load_dword v5, v{vT_}, {srd(sWS)}, s{sreg} offen sc1")
        return f
    for j in range(-(-TOUCH_KBS[L] // TL)): job(TOUCH_AT[L] + j*TOUCH_STEP[L], tch(sTW, j))
    for j in range(-(-56 // TL)): job(TACTS[L] + j*TH_STEP, tch(sTH, j))
    job(TACTS[L] + 4, lambda: k.vm(f"buffer_load_dword v5, v{vTX}, {srd(sWS)}, 0 offen sc1"))
    job(CT_AT, lambda: code_touch(k, 5))
    SC = 136 * KB
    assert PREFILL <= 136
    def red_setup():
        k(f"s_mul_i32 s{sT0}, s{sW}, {6*KB}\ns_add_u32 s{sT0}, s{sT0}, {SC}\nv_add_u32 v13, s{sT0}, v{vL16}")
        k(f"s_xor_b32 s{sT0}, s{sW}, 2\ns_mul_i32 s{sT0}, s{sT0}, {6*KB}\ns_add_u32 s{sT0}, s{sT0}, {SC}\nv_add_u32 v10, s{sT0}, v{vL16}")
    job(112, red_setup)
    def res_early():
        if L == 0:
            rowmajor_addr(k, 14, sT0)
            k.vm(f"buffer_load_dwordx4 {vr(G.res)}, v14, {srd(60)}, s{sT0} offen")
            k.vm(f"buffer_load_dwordx4 {vr(G.res+4)}, v14, {srd(60)}, s{sT0} offen offset:32")
        else: load_res(k, G.res)
    G.res = 104 if DEEP else 240
    if RES_AT: job(RES_AT, res_early)
    def red_write(s):
        z = s & 1
        k.lg(f"ds_write_b128 v10, {vr(vO+16*s)} offset:{z*3*KB}")
        k.lg(f"ds_write_b128 v10, {vr(vO+16*s+4)} offset:{z*3*KB+KB}")
        k.lg(f"ds_write_b32 v10, v{vO+16*s+8} offset:{z*3*KB+2*KB}")
    for i in range(128):
        if steps[i][0] == 31 and steps[i][1] >= 2: job(i + 2, lambda s=steps[i][1]: red_write(s), e=2)
    tl = []
    def red_read():
        k.wait_all()
        k("s_barrier")
        for z in range(2):
            b = vO + 32 + 16*z
            k.lg(f"ds_read_b32 v{b+8}, v13 offset:{z*3*KB+2*KB}")
            k.lg(f"ds_read_b128 {vr(b)}, v13 offset:{z*3*KB}")
            tl.append(k.lg(f"ds_read_b128 {vr(b+4)}, v13 offset:{z*3*KB+KB}"))
    job(127 if NT == 1 else 126, red_read)
    for i, (t, q) in enumerate(steps):
        s = vS[i % NS]
        if i in ATT_MARKS: mark(k, f's{i}')
        if i == 8 and late_qk:
            pv(7, 1)
            for j in sorted(late_qk): qk(j)
        for e in range(16):
            if e == 2 and i > 0 and not (i == 8 and late_qk): pv(i-1, 1)
            if e == 6 and i + LA < n and i + LA not in late_qk: qk(i + LA)
            if e == 10: pv(i, 0)
            for f in jobs.pop((i, e), []): f()
            k(f"v_exp_f32 v{s+e}, v{s+e}")
    pv(n-1, 1)
    assert not jobs, jobs.keys()
    assert ring.issued == PREFILL
    mark(k, 'loop')
    for z in range(2):
        o = vO + 16*z; b = vO + 32 + 16*z
        k.wait(lg=tl[z])
        k(f"v_add_f32 v{o+8}, v{o+8}, v{b+8}\nv_rcp_f32 v{o+9}, v{o+8}")
        for i in range(8): k(f"v_add_f32 v{o+i}, v{o+i}, v{b+i}")
        for j in range(4):
            k(f"v_mul_f32 v{o+2*j}, v{o+2*j}, v{o+9}\nv_mul_f32 v{o+2*j+1}, v{o+2*j+1}, v{o+9}")
            k(f"v_cvt_pk_bf16_f32 v{o+12+j}, v{o+2*j}, v{o+2*j+1}")
        ts = k.vm(f"buffer_store_dwordx4 {vr(o+12)}, v{vL16}, {srd(sWS)}, s{sOD+z} offen")
    mark(k, 'f_st')
    fb = k.newlabel('fb'); back = k.newlabel('fbret')
    LO, HI = f2u(2.0**-60), f2u(2.0**60)
    for z in range(2):
        o = vO + 16*z
        k(f"v_add_f32 v{o}, v{o}, v{o+1}\nv_add_f32 v{o+2}, v{o+2}, v{o+3}\nv_add_f32 v{o+4}, v{o+4}, v{o+5}\nv_add_f32 v{o+6}, v{o+6}, v{o+7}")
        k(f"v_add_f32 v{o}, v{o}, v{o+2}\nv_add_f32 v{o+4}, v{o+4}, v{o+6}\nv_add_f32 v{o}, v{o}, v{o+4}")
        k(f"v_fma_f32 v{o+8}, v{o}, 0, v{o+8}\nv_subrev_u32 v{o+8}, {hex(LO)}, v{o+8}")
    k(f"v_max_u32 v{vO+8}, v{vO+8}, v{vO+24}")
    k(f"v_cmp_lt_u32 vcc, {hex(0 if FORCE_FB else HI - LO)}, v{vO+8}")
    k(f"s_cbranch_vccnz {fb}")
    k.label(back)
    F = [f"{fb}:", "s_waitcnt vmcnt(0)", f"s_and_b32 s{sT0}, s{sKX}, 0xfffe0000",
         f"v_add_u32 v{vK}, s{sT0}, v{vK}", f"v_add_u32 v{vV}, s{sT0}, v{vV}"]
    S, C, M = vS0, vS0 + 16, vS0 + 32
    for z in range(2):
        o = vO + 16*z; Q = ar(aQ + 4*z)
        F += [f"v_mov_b32 v{M}, 0xff800000", f"s_mov_b32 s{sK}, 0", f"{fb}_a{z}:",
              f"buffer_load_dwordx4 {K(0)}, v{vK}, {srd(sWS)}, s{sK} offen sc1", "s_waitcnt vmcnt(0)",
              f"v_mfma_f32_32x32x16_bf16 {vr(S,16)}, {K(0)}, {Q}, 0"]
        F += [f"v_max3_f32 v{M}, v{M}, v{S+2*i}, v{S+2*i+1}" for i in range(8)]
        F += [f"s_add_u32 s{sK}, s{sK}, 2048", f"s_cmp_lt_u32 s{sK}, {64*2048}", f"s_cbranch_scc1 {fb}_a{z}",
              f"v_mov_b32 v{M+1}, v{M}", f"v_permlane32_swap_b32 v{M}, v{M+1}", f"v_max_f32 v{M}, v{M}, v{M+1}"]
        F += [f"v_sub_f32 v{C+i}, 0, v{M}" for i in range(16)] + [f"v_mov_b32 v{o+i}, 0" for i in range(16)]
        F += [f"s_mov_b32 s{sK}, 0", f"{fb}_b{z}:",
              f"buffer_load_dwordx4 {K(0)}, v{vK}, {srd(sWS)}, s{sK} offen sc1",
              f"s_mov_b64 exec, s[{sMSK}:{sMSK+1}]",
              f"buffer_load_dwordx4 {V(0,0)}, v{vV}, {srd(sWS)}, s{sK} offen offset:{KB} sc1",
              f"buffer_load_dwordx4 {V(0,1)}, v{vV}, {srd(sWS)}, s{sK} offen offset:{KB+512} sc1",
              "s_mov_b64 exec, -1", "s_waitcnt vmcnt(0)",
              f"v_mfma_f32_32x32x16_bf16 {vr(S,16)}, {K(0)}, {Q}, {vr(C,16)}"]
        F += [f"v_exp_f32 v{S+i}, v{S+i}" for i in range(16)]
        F += [f"v_smfmac_f32_32x32x32_bf16 {vr(o,16)}, {V(0,u)}, {vr(S+8*u,8)}, v{vIDX}" for u in range(2)]
        F += ["s_nop 15", f"s_add_u32 s{sK}, s{sK}, 2048", f"s_cmp_lt_u32 s{sK}, {64*2048}", f"s_cbranch_scc1 {fb}_b{z}",
              f"v_rcp_f32 v{o+9}, v{o+8}"]
        for j in range(4):
            F += [f"v_mul_f32 v{o+2*j}, v{o+2*j}, v{o+9}", f"v_mul_f32 v{o+2*j+1}, v{o+2*j+1}, v{o+9}", f"v_cvt_pk_bf16_f32 v{o+12+j}, v{o+2*j}, v{o+2*j+1}"]
        F += [f"buffer_store_dwordx4 {vr(o+12)}, v{vL16}, {srd(sWS)}, s{sOD+z} offen"]
    F += ["s_waitcnt vmcnt(0)", f"s_branch {back}"]
    G.far += F
    k(f"s_mov_b32 s{sF}, s{sFO}")
    ring.end16()
    ring.limit = 144
    return ts

def load_res(k, v):
    k(f"s_add_u32 s{sT1}, s{sDST}, {XF}")
    k.vm(f"buffer_load_dwordx4 {vr(v)}, v{vL16}, {srd(sWS)}, s{sT1} offen sc1")
    return k.vm(f"buffer_load_dwordx4 {vr(v+4)}, v{vL16}, {srd(sWS)}, s{sT1} offen offset:1024 sc1")
def add_res(k, acc, v):
    for j in range(8):
        k(f"v_lshlrev_b32 v10, 16, v{v+j}\nv_and_b32 v11, 0xffff0000, v{v+j}")
        k(f"v_add_f32 v{acc+2*j}, v{acc+2*j}, v10\nv_add_f32 v{acc+2*j+1}, v{acc+2*j+1}, v11")

def ph_wo(k, L, ring, tO):
    k.label(f'L_wo{L}')
    vX, vACC, vRES, vSUM, vPK = 16, 80, (G.res if RES_AT else 112), 120, 136
    k(f"s_lshr_b32 s{sRB}, s{sDST}, 15\ns_lshr_b32 s{sD}, s{sW}, 1")
    k(f"s_mul_i32 s{sX}, s{sRB}, {112*KB}\ns_lshl_b32 s{sT0}, s{sD}, 14\ns_add_u32 s{sX}, s{sX}, s{sT0}\ns_add_u32 s{sX}, s{sX}, {HF}")
    k(f"s_lshl_b32 s{sT0}, s{sD}, 11")
    set_lds_bases(k, sT0)
    seq = []
    for s in range(16):
        seq.append((s, 1))
        if s < 16 - WO_R0: seq.append((s, 0))
    nf = len(seq)
    seq += [(s, 0) for s in range(16 - WO_R0, 16)]
    ops = [dict(b=4*s + a, bmin=0, bmax=63, xi=s, x=vr(vX+4*s), acc=vr(vACC+16*a,16), swap=False, first=(s == 0)) for s, a in seq]
    g = Gemm(k, ring, ops, {0}, stop_issue=WO_STOP)
    rs = {}
    def ldres():
        if L == 0:
            k.vm(f"buffer_load_dwordx4 {vr(vRES)}, v8, {srd(60)}, s{sE} offen")
            rs['t'] = k.vm(f"buffer_load_dwordx4 {vr(vRES+4)}, v8, {srd(60)}, s{sE} offen offset:32")
        else:
            rs['t'] = load_res(k, vRES)
    if not RES_LATE[L] and not RES_AT:
        if L == 0: rowmajor_addr(k, 8, sE)
        ldres()
    g.start()
    mark(k, 'f_bar')
    ring.issue_n(PRE_WO)
    publish_local(k, tO)
    mark(k, 'f_pub')
    ring.issue_n(PRE_WO2)
    k(f"s_and_b32 s{sF}, s{sRB}, 0xfe\ns_add_u32 s{sF}, s{sF}, s{sD}\ns_lshl_b32 s{sF}, s{sF}, 7\ns_add_u32 s{sF}, s{sF}, {FLOC(L,0)}")
    SC = 144 * KB
    k(f"s_xor_b32 s{sT0}, s{sW}, 2\ns_lshl_b32 s{sT0}, s{sT0}, 12\ns_add_u32 s{sT0}, s{sT0}, {SC}\nv_add_u32 v6, s{sT0}, v{vL16}")
    k(f"s_lshl_b32 s{sT0}, s{sW}, 12\ns_add_u32 s{sT0}, s{sT0}, {SC}\nv_add_u32 v7, s{sT0}, v{vL16}")
    if RES_LATE[L] and L == 0: rowmajor_addr(k, 8, sE)
    if RES_AT:
        for x in res_unpack(vSUM, vRES): k(x)
    poll16(k)
    mark(k, 'f_poll')
    xq = XLoader(k, 16, lambda i: vr(vX+4*i), lin_src(k))
    xq.issue_n(WO_N0)
    if not RES_LATE[L] and not RES_AT:
        for x in res_unpack(vSUM, vRES): k(x)
    st = {}
    def xchg(step):
        if step == 0:
            while g.nread < 32: g.rd()
            for j in range(4): k.lg(f"ds_write_b128 v6, {vr(vACC+16+4*j)} offset:{j*KB}")
        elif step == 1:
            k.wait_all(vm=False)
            ring.limit = None
            ring.sync(64, 0)
            for j in range(4): st['t'] = k.lg(f"ds_read_b128 {vr(vACC+16+4*j)}, v7 offset:{j*KB}")
            ring.issue_n(XB_PRE)
        st['n'] = step + 1
    def filler(m):
        if m == max(nf + 1, 25): xchg(0)
        if m == max(nf + 4, 28): xchg(1)
    g.run(xq, n0=0, look=16, filler=filler, misc=[ldres] if RES_LATE[L] else [])
    for step in range(st.get('n', 0), 2): xchg(step)
    if RES_LATE[L]:
        k.wait(vm=rs['t'])
        for x in res_unpack(vSUM, vRES): k(x)
    k.wait(lg=st['t'])
    for i in range(16): k(f"v_add_f32 v{vSUM+i}, v{vSUM+i}, v{vACC+16+i}")
    for j in range(8):
        k(f"v_add_f32 v{vACC+2*j}, v{vACC+2*j}, v{vSUM+2*j}\nv_add_f32 v{vACC+2*j+1}, v{vACC+2*j+1}, v{vSUM+2*j+1}")
        k(f"v_cvt_pk_bf16_f32 v{vPK+j}, v{vACC+2*j}, v{vACC+2*j+1}")
    ts = store_x(k, vACC, vPK, L, 1, ring)
    mark(k, 'end')
    return ts

PASSES = ((0, 3), (3, 2), (5, 2))
PBASE = (0, 100, 166)
def ph_up(k, L, ring, b0, tprev):
    vX, vACC, vST, vEXT, vRS = 16, 144, 224, 8, 6
    sH0, sH1 = sD, sE
    rb_128(k)
    k(f"s_and_b32 s{sA}, s{sC}, 15")
    k(f"s_lshl_b32 s{sX}, s{sRB}, 15\ns_add_u32 s{sX}, s{sX}, {XF}")
    set_lds_bases(k)
    if UP16: return ph_up16(k, L, ring, b0, tprev)
    ops = []
    for (t0, nt), pb in zip(PASSES, PBASE):
        for ks in range(33):
            for t in range(t0, t0+nt):
                lo_ = b0 + pb + (ks >> 1)*2*nt
                b = lo_ + (2*(t - t0) + (ks & 1) if ks < 32 else t - t0)
                ops.append(dict(b=b, bmin=lo_, bmax=b, xi=(ks if ks < 32 else None), x=(vr(vX+4*ks) if ks < 32 else vr(vEXT)),
                                acc=vr(vACC+16*t, 16), swap=False, first=(ks == 0)))
    g = Gemm(k, ring, ops, UP_SYNCS, stop_issue=UP_STOP)
    g.start()
    mark(k, 'f_bar')
    ring.issue_n(PRE)
    publish_local(k, tprev)
    mark(k, 'f_pub')
    ring.issue_n(PRE2)
    res = {}
    se = stats_emitters(k, vST, res)
    k(f"s_mul_i32 s{sH0}, s{sRB}, 112\ns_mul_i32 s{sT2}, s{sA}, 7\ns_add_u32 s{sH0}, s{sH0}, s{sT2}\ns_lshl_b32 s{sH0}, s{sH0}, 10\ns_add_u32 s{sH0}, s{sH0}, {HF}")
    k(f"s_add_u32 s{sH1}, s{sH0}, 4096")
    k(f"s_lshl_b32 s{sF}, s{sRB}, 7\ns_add_u32 s{sF}, s{sF}, {FLOC(L,1)}")
    poll16(k)
    mark(k, 'f_poll')
    aps = stats_poll(k, FLOC(L,6) - FLOC(L,1))
    xq = XLoader(k, 32, lambda i: vr(vX+4*i), lin_src(k))
    fin = fin_stats(vST, vEXT, vRS) + [f"v_mul_f32 v{vRS}, v{vRS}, v{vRS}"]
    def epi(t):
        a = vACC + 16*t
        o = []
        for j in range(4):
            o += [f"v_mul_f32 v{a+2*j}, v{a+2*j}, v{vRS}", f"v_mul_f32 v{a+2*j+1}, v{a+2*j+1}, v{vRS}",
                  f"v_mul_f32 v{a+2*j}, v{a+2*j}, v{a+8+2*j}", f"v_mul_f32 v{a+2*j+1}, v{a+2*j+1}, v{a+9+2*j}",
                  f"v_cvt_pk_bf16_f32 v{a+8+j}, v{a+2*j}, v{a+2*j+1}"]
        o.append(f"buffer_store_dwordx4 {vr(a+8)}, v{vL16}, {srd(sWS)}, s{sH0 + (t >> 2)} offen offset:{(t & 3)*KB}")
        return o
    st = dict(i=0, t=None); q = []
    def put(x):
        if x.startswith('buffer'): st['t'] = k.vm(x)
        else: k(x)
    dn = Down(k, L)
    def filler(m):
        if aps and m == 12: aps.issue()
        if aps and m == 30: aps.check()
        if 70 <= m < 96:
            if st['i'] == 0: k.wait(vm=res['t'])
            for _ in range(2):
                if st['i'] < len(fin): k(fin[st['i']]); st['i'] += 1
        if m == 102: q.extend(sum((epi(t) for t in range(0, 3)), []))
        if m == 168: q.extend(sum((epi(t) for t in range(3, 5)), []))
        if UP4 and m == 201: q.extend(epi(5))
        for _ in range(UP_EPI):
            if q: put(q.pop(0))
        if m == 146: code_touch(k, 7)
        if m in UP_PUB:
            assert not q
            if m == UP_PUB[0]:
                k(f"s_lshl_b32 s{sF}, s{sRB}, 4\ns_add_u32 s{sF}, s{sF}, s{sA}\ns_lshl_b32 s{sF}, s{sF}, 3\ns_add_u32 s{sF}, s{sF}, {FLOC(L,9)}")
            publish_local(k, st['t'])
            k(f"s_add_u32 s{sF}, s{sF}, {8*KB}")
            if m == UP_PUB[1]: dn.xq.hold = 20
        if UP_PUB[0] < m and dn.setup:
            for _ in range(3):
                if dn.setup: k(dn.setup.pop(0))
        if m in DN_POLL: dn.ap.issue()
        if m in DN_CHK:
            dn.ap.check()
            k(f"s_add_u32 s{dn.sFl}, s{dn.sFl}, {8*KB}")
        if m > DN_CHK[0] and m % 2 and not (ring.can_issue() and m < UP_STOP): dn.xq.issue_n(1)
    if L == 0: ring.limit = 296 + QW_UP
    g.run(xq, look=UP_LOOK, filler=filler, misc=se, misc_from=32, skip=UP_SKIP[L])
    assert st['i'] == len(fin) and not dn.setup and ring.issued == min(ring.total, 296 + QW_UP)
    dn.xq.hold = 36 if len(DN_CHK) > 1 else 24
    for t in range(6 if UP4 else 5, 7):
        for i, x in enumerate(epi(t)):
            put(x)
            if i in (4, 14): dn.xq.issue_n(1)
    mark(k, 'end')
    dn.tB = st['t']
    return dn

def ph_up16(k, L, ring, b0, tprev):
    vX, vACC, vST, vEXT, vRS, vXM = 16, 144, 224, 8, 6, 12
    sH0, sH1 = sD, sE
    D, NB = 5, 8
    k(f"v_bfe_u32 v8, v0, 4, 2\nv_lshlrev_b32 v8, 9, v8\nv_and_b32 v9, 15, v0\nv_lshl_add_u32 v{vXM}, v9, 4, v8")
    k("v_and_b32 v9, 3, v0\nv_bfe_u32 v10, v0, 2, 1\nv_lshl_or_b32 v9, v10, 3, v9\nv_bfe_u32 v10, v0, 3, 1\nv_lshl_or_b32 v9, v10, 2, v9")
    k(f"v_lshl_add_u32 v{vB}, v9, 4, v8\nv_add_u32 v{vB+1}, 0x10000, v{vB}\nv_add_u32 v{vB+2}, 0x20000, v{vB}")
    units = []
    for (t0, nt), pb in zip(PASSES, PBASE):
        for K in range(16):
            for t in range(t0, t0+nt):
                for ch in range(2):
                    lo_ = b0 + pb + K*2*nt
                    units.append(dict(b=lo_ + 2*(t - t0), bmin=lo_, bmax=lo_ + 2*(t - t0) + 1, K=K, t=t, ch=ch))
        for t in range(t0, t0+nt):
            b = b0 + pb + 32*nt + t - t0
            units.append(dict(b=b, bmin=b0 + pb + 32*nt, bmax=b, K=16, t=t, e0=b0 + pb + 32*nt))
    M = len(units); syncs = sorted(UP_SYNCS)
    tl = {}; S = dict(nread=0)
    def rd():
        m = S['nread']; o = units[m]; w = aWB + 4*(m % NB)
        assert o['bmax'] < ring.visible, (m, o, ring.visible)
        a = ring.addr(o['b'])
        if o['K'] < 16:
            assert ring.addr(o['b'] + 1) == a + KB
            a += o['ch'] * 256
            tl[m] = k.lg(f"ds_read_b128 {ar(w)}, v{vB + (a >> 16)} offset:{a & 0xffff}")
        else:
            a0 = ring.addr(o['e0'])
            if o['b'] == o['e0']:
                if a0 != S['a0']: k(f"v_add_u32 v13, {a0 - S['a0']}, v13")
                S['a0'] = a0
            assert a >= a0
            k.lg(f"ds_read_b64 {ar(w,2)}, v13 offset:{a - a0}")
            tl[m] = k.lg(f"ds_read_b64 {ar(w+2,2)}, v13 offset:{a - a0 + 256}")
        S['nread'] += 1
    def need_until(m):
        nxt = [x for x in syncs if x > m]
        last = min((nxt[0] if nxt else M) - 1 + D, M - 1)
        return max(o['bmax'] for o in units[:last+1]) + 1
    ring.sync(units[0]['bmin'], need_until(0))
    for _ in range(D): rd()
    mark(k, 'f_bar')
    ring.issue_n(PRE)
    publish_local(k, tprev)
    mark(k, 'f_pub')
    res = {}
    se = stats_emitters(k, vST, res)
    k(f"s_mul_i32 s{sH0}, s{sRB}, 112\ns_mul_i32 s{sT2}, s{sA}, 7\ns_add_u32 s{sH0}, s{sH0}, s{sT2}\ns_lshl_b32 s{sH0}, s{sH0}, 10\ns_add_u32 s{sH0}, s{sH0}, {HF}")
    if DN16:
        k(f"s_bitcmp0_b32 s{sA}, 0\ns_cselect_b32 s{sH1}, -1, 1\ns_cselect_b32 s{sT2}, 7, -1\ns_lshl_b32 s{sH1}, s{sH1}, 10\ns_lshl_b32 s{sT2}, s{sT2}, 10\ns_add_u32 s{sH0}, s{sH0}, s{sT2}")
    else: k(f"s_add_u32 s{sH1}, s{sH0}, 4096")
    k(f"s_lshl_b32 s{sF}, s{sRB}, 7\ns_add_u32 s{sF}, s{sF}, {FLOC(L,1)}")
    poll16(k)
    mark(k, 'f_poll')
    aps = stats_poll(k, FLOC(L,6) - FLOC(L,1))
    def xsrc(i):
        if i and (i & 3) == 0: k(f"s_add_u32 s{sX}, s{sX}, 4096")
        return sX, ((i >> 1) & 1) * 2048 + (i & 1) * 256
    xq = XLoader(k, 32, lambda i: vr(vX+4*i), xsrc, va=vXM)
    fin = fin_stats(vST, vEXT, vRS) + [f"v_mul_f32 v{vRS}, v{vRS}, v{vRS}", f"v_permlane16_swap_b32 v{vEXT}, v{vEXT+2}"] + ([] if LN_BF16 else [f"v_permlane16_swap_b32 v{vEXT+1}, v{vEXT+3}"])
    fin2 = [f"v_mov_b32 v{vRS+1}, v{vRS}", f"v_permlane16_swap_b32 v{vRS}, v{vRS+1}"]
    def epi(t):
        a = vACC + 16*t
        o = []
        for th in range(2):
            g_ = a + 4*th; u_ = a + 8 + 4*th
            o += [f"v_mul_f32 v{g_+j}, v{g_+j}, v{vRS+th}" for j in range(4)] + [f"v_mul_f32 v{g_+j}, v{g_+j}, v{u_+j}" for j in range(4)]
            o += [f"v_cvt_pk_bf16_f32 v{a+8+2*th}, v{g_}, v{g_+1}", f"v_cvt_pk_bf16_f32 v{a+9+2*th}, v{g_+2}, v{g_+3}"]
        if DN16: o.append(f"s_add_u32 s{sH0}, s{sH0}, s{sH1}")
        o += [f"v_permlane16_swap_b32 v{a+8}, v{a+10}", f"v_permlane16_swap_b32 v{a+9}, v{a+11}"]
        if DN16: o.append(f"buffer_store_dwordx4 {vr(a+8)}, v{vL16}, {srd(sWS)}, s{sH0} offen")
        else: o.append(f"buffer_store_dwordx4 {vr(a+8)}, v{vL16}, {srd(sWS)}, s{sH0 + (t >> 2)} offen offset:{(t & 3)*KB}")
        return o
    st = dict(t=None)
    def put(x):
        if x.startswith('buffer'): st['t'] = k.vm(x)
        else: k(x)
    dn = Down(k, L)
    if L == 0: ring.limit = 296 + QW_UP
    xq.issue_n(6)
    mem = []; alu = []; se = list(se); cur = 0; second = []
    def waits(m):
        nonlocal cur
        xs = [2*p['K'] + 1 for p in units[m:m+2] if p['K'] < 16]
        xt = None
        if xs:
            cur = max(cur, max(xs))
            while xq.n <= max(xs): xq.issue_n(1)
            xt = xq.t[max(xs)]
        n0 = len(k.L)
        k.wait(vm=xt, lg=tl[min(m + 1, M - 1)])
        return len(k.L) - n0
    big = lambda x: x.startswith(('buffer', 'v_permlane', 'v_rsq'))
    def slot(first):
        if mem and (len(mem) > 1 or first):
            last = len(mem) == 1
            mem.pop(0)()
            return last and U16_BIG
        if alu and (first or not (big(alu[0]) if U16_BIG else alu[0].startswith('buffer'))):
            x = alu.pop(0); put(x)
            return big(x) and U16_BIG
        return False
    waits(0)
    for m, o in enumerate(units):
        if m in syncs and m > 0:
            while mem: mem.pop(0)()
            while second: second.pop()()
            ring.sync(o['bmin'], need_until(m))
        w = aWB + 4*(m % NB); a = vACC + 16*o['t']
        if o['K'] < 16:
            mm = [f"v_mfma_f32_16x16x32_bf16 {vr(a+8*o['ch']+4*th)}, {ar(w)}, {vr(vX+8*o['K']+4*th)}, {'0' if o['K'] == 0 else vr(a+8*o['ch']+4*th)}" for th in range(2)]
        else:
            mm = [f"v_mfma_f32_16x16x16_bf16 {vr(a+8*ch+4*th)}, {ar(w+2*ch,2)}, {vr(vEXT+2*th,2)}, {vr(a+8*ch+4*th)}" for ch in range(2) for th in range(2)]
        k(mm[0])
        if m == 0: mark(k, 'm0')
        if m in GEMM_MARKS.get(G.ph, ()): mark(k, f'm{m}')
        if S['nread'] < M: rd()
        else: slot(True)
        if not (m % 2 and m + 1 < M and waits(m + 1)): slot(False)
        for x in mm[1:-1]:
            k(x); slot(True) or slot(False)
        k(mm[-1])
        if aps and m == 12: aps.issue()
        if aps and m == 30: aps.check()
        if m == 34:
            a0 = S['a0'] = ring.addr(b0 + 96)
            alu += f"v_and_b32 v13, 0xf0, v{vB}\nv_bfe_u32 v7, v0, 5, 1\nv_lshl_add_u32 v13, v7, 9, v13\nv_bfe_u32 v7, v0, 4, 1\nv_lshl_add_u32 v13, v7, 3, v13\nv_add_u32 v13, {a0}, v13".split('\n')
            alu += f"s_lshl_b32 s{sF}, s{sRB}, 4\ns_add_u32 s{sF}, s{sF}, s{sA}\ns_lshl_b32 s{sF}, s{sF}, 3\ns_add_u32 s{sF}, s{sF}, {FLOC(L,9)}".split('\n')
            alu += TAGMOV + [x for x in dn.setup if x.startswith('s_')]
            dn.setup = [x for x in dn.setup if not x.startswith('s_')]
            if CODE_TOUCH:
                pc = k.newlabel('pc')
                alu += [f"s_getpc_b64 s[{sPC}:{sPC+1}]\n{pc}:", f"s_min_u32 s{sT3}, s{sCT}, L_end-{pc}-1024",
                        f"s_add_u32 s{sPC}, s{sPC}, s{sT3}\ns_addc_u32 s{sPC+1}, s{sPC+1}, 0"]
        if L and KV_LOC and m == U16_FIN:
            assert not alu
            k(f"s_xor_b32 s{sT3}, s{sRB}, 4\ns_lshr_b32 s{sT3}, s{sT3}, 1\ns_lshl_b32 s{sT3}, s{sT3}, 8\ns_add_u32 s{sT3}, s{sT3}, {FLOC(L,0)}")
            apw = APoll(k, ["v_and_b32 v252, 31, v0", "v_lshlrev_b32 v252, 3, v252",
                            f"buffer_load_dwordx2 v[252:253], v252, {srd(sWS)}, s{sT3} offen sc1"], f"v_cmp_ne_u64 vcc, s[{sTAG}:{sTAG+1}], v[252:253]")
            apw.issue()
        if L and KV_LOC and m == 98: apw.check()
        if m == U16_FIN:
            assert not alu
            k.wait(vm=res['t']); alu += fin + fin2
        if m == 95: assert not alu
        if m == 100:
            assert xq.n == xq.total
            if CODE_TOUCH: k.vm(f"global_load_dword v255, v{vL16}, s[{sPC}:{sPC+1}]")
            alu += sum((epi(t) for t in range(0, 3)), []) + dn.setup; dn.setup = []
        if m == 167: alu += sum((epi(t) for t in range(3, 5)), [])
        if m in U16_PUB:
            assert not alu, (m, len(alu))
            publish_local(k, st['t'], movs=False)
            alu.append(f"s_add_u32 s{sF}, s{sF}, {8*KB}")
            if m == U16_PUB[1]: dn.xq.hold = 20
        if m in U16_POLL: dn.ap.issue()
        if m == U16_CHK:
            dn.ap.check()
            alu += [f"s_add_u32 s{dn.sFl}, s{dn.sFl}, {8*KB}"] + TAGMOV
        if m % 2 == 0 and not mem:
            rok = second or (m < UP_STOP and (ring.can8() or (ring.can_issue() and not ring.pair)))
            if not second and xq.n < xq.total and ring.issued >= b0 + U16_HOLD: rok = False
            mok = se and m >= 32
            if xq.n < xq.total and (xq.n - cur < UP_LOOK or not (rok or mok)): mem.append(lambda: xq.issue_n(1))
            elif mok: mem.append(se.pop(0))
            elif second: mem.append(second.pop())
            elif rok and ring.can8():
                p1, p2 = ring.parts8(); mem += p1; second += p2
            elif rok: mem += ring.parts()
            elif m > U16_CHK and dn.xq.n < dn.xq.hold: mem.append(lambda: dn.xq.issue_n(1))
        slot(True) or slot(False)
    while mem: mem.pop(0)()
    while second: second.pop()()
    ring.end8()
    assert not alu and not se and ring.issued == min(ring.total, 296 + QW_UP)
    dn.xq.hold = 24
    for t in range(5, 7):
        for i, x in enumerate(epi(t)):
            put(x)
            if i in (4, 14): dn.xq.issue_n(1)
    mark(k, 'end')
    dn.tB = st['t']
    return dn

class Down:
    NX = 36
    def __init__(self, k, L):
        self.k = k; self.L = L
        sXa, sXb, sFl = sB, sX2, sCc
        self.sFl = sFl
        self.setup = (f"s_lshr_b32 s{sT0}, s{sDST}, 15\ns_mul_i32 s{sT1}, s{sW}, {28*KB}\ns_add_u32 s{sT1}, s{sT1}, {HF}\n"
                      f"s_mul_i32 s{sXa}, s{sT0}, {112*KB}\ns_add_u32 s{sXa}, s{sXa}, s{sT1}\n"
                      f"s_xor_b32 s{sT2}, s{sT0}, 1\ns_mul_i32 s{sXb}, s{sT2}, {112*KB}\ns_add_u32 s{sXb}, s{sXb}, s{sT1}\n"
                      f"v_lshlrev_b32 v12, 3, v0\nv_and_b32 v12, 0x98, v12\n"
                      f"s_and_b32 s{sFl}, s{sT0}, 0xfe\ns_lshl_b32 s{sFl}, s{sFl}, 7\ns_lshl_b32 s{sT1}, s{sW}, 5\ns_add_u32 s{sFl}, s{sFl}, s{sT1}\n"
                      f"s_add_u32 s{sFl}, s{sFl}, {FLOC(L,9)}").split('\n')
        self.order = order = [7*c + t for t0, nt in (((0, 3), (3, 2), (5, 1), (6, 1)) if UP4 else PASSES) for c in range(4) for t in range(t0, t0+nt)]
        cur = {sXa: 0, sXb: 0}
        if DN16:
            assert UP16
            self.setup = [x for x in self.setup if x.startswith('s_')]
            self.order = order = [2, 3, 4, 9, 10, 11, 1, 5, 8, 12, 0, 6, 7, 13]
            def src16(i):
                s_ = sXa if (i & 2) == 0 else sXb
                r = 2 * order[i >> 2]
                if not 0 <= r - cur[s_] < 4:
                    d = (r - cur[s_]) * KB
                    k(f"s_add_u32 s{s_}, s{s_}, {d}" if d > 0 else f"s_sub_u32 s{s_}, s{s_}, {-d}")
                    cur[s_] = r
                return s_, (r - cur[s_]) * KB + (i & 1) * 256
            self.xr = lambda i: vr(144 + 4*(i % 36) if (i % 36) < 20 else 80 + 4*((i % 36) - 20))
            self.xq = XLoader(k, 56, self.xr, src16, va=12)
            self.xq.hold = 12
            self.ap = APoll(k, ["v_lshlrev_b32 v14, 3, v0", "v_and_b32 v14, 0x98, v14",
                                f"buffer_load_dwordx2 v[14:15], v14, {srd(sWS)}, s{sFl} offen sc1"], f"v_cmp_ne_u64 vcc, s[{sTAG}:{sTAG+1}], v[14:15]")
            return
        def src(i):
            s_ = sXa if (i & 1) == 0 else sXb
            r = order[i >> 1]
            if not 0 <= r - cur[s_] < 4:
                d = (r - cur[s_]) * KB
                k(f"s_add_u32 s{s_}, s{s_}, {d}" if d > 0 else f"s_sub_u32 s{s_}, s{s_}, {-d}")
                cur[s_] = r
            return s_, (r - cur[s_]) * KB
        self.xr = lambda i: vr(144 + 4*(i % 36) if (i % 36) < 20 else 80 + 4*((i % 36) - 20))
        self.xq = XLoader(k, 56, self.xr, src)
        self.xq.hold = 12
        self.ap = apoll1(k, 12, 14, sFl)

def load_res16(k, v):
    k(f"v_and_b32 v13, 0x2f0, v{vL16}\nv_bfe_u32 v5, v0, 4, 1\nv_lshl_add_u32 v13, v5, 3, v13\ns_add_u32 s{sT1}, s{sDST}, {XF}")
    for ch in range(2):
        for th in range(2):
            t = k.vm(f"buffer_load_dwordx2 {vr(v+4*ch+2*th,2)}, v13, {srd(sWS)}, s{sT1} offen offset:{ch*KB + th*256} sc1")
    return t
def res_unpack(dst, v):
    o = []
    for j in range(8): o += [f"v_lshlrev_b32 v{dst+2*j}, 16, v{v+j}", f"v_and_b32 v{dst+2*j+1}, 0xffff0000, v{v+j}"]
    return o

def ph_down(k, L, ring, dn):
    vACC, vRES, vPK, vSUM = 16, 240, 240, 224
    final = L == 1
    xq = dn.xq; order = dn.order; NX = dn.NX
    if len(DN_CHK) > 1: xq.hold = 40
    SC = 108 * KB
    side = []
    for a in range(1, 4):
        side += f"s_xor_b32 s{sT0}, s{sW}, {a}\ns_mul_i32 s{sT0}, s{sT0}, {12*KB}\ns_add_u32 s{sT0}, s{sT0}, {SC + (a-1)*4*KB}\nv_add_u32 v{5+a}, s{sT0}, v{vL16}".split('\n')
    side += f"s_mul_i32 s{sT0}, s{sW}, {12*KB}\ns_add_u32 s{sT0}, s{sT0}, {SC}\nv_add_u32 v9, s{sT0}, v{vL16}".split('\n')
    if final and OUT_T:
        side += (f"s_and_b32 s{sT0}, s{sW}, 1\ns_mul_i32 s{sT0}, s{sT0}, {32*144}\ns_lshr_b32 s{sT2}, s{sW}, 1\ns_lshl_b32 s{sT2}, s{sT2}, 6\ns_add_u32 s{sT0}, s{sT0}, s{sT2}\n"
                 f"v_and_b32 v10, 31, v0\nv_mul_u32_u24 v10, 144, v10\nv_bfe_u32 v11, v0, 5, 1\nv_lshl_add_u32 v10, v11, 4, v10\nv_add_u32 v10, s{sT0}, v10\n"
                 f"s_mul_i32 s{sT0}, s{sW}, {16*144}\nv_bfe_u32 v13, v0, 3, 3\nv_mul_u32_u24 v11, 144, v13\nv_and_b32 v5, 7, v0\nv_lshl_add_u32 v11, v5, 4, v11\nv_add_u32 v11, s{sT0}, v11\n"
                 f"v_lshlrev_b32 v13, 10, v13\nv_lshl_add_u32 v13, v5, 4, v13\n"
                 f"s_and_b32 s{sT0}, s{sDST}, 0xffff0000\ns_lshl_b32 s{sT2}, s{sW}, 14\ns_add_u32 s{sT0}, s{sT0}, s{sT2}\n"
                 f"s_and_b32 s{sT2}, s{sC}, 7\ns_lshl_b32 s{sT2}, s{sT2}, 7\ns_add_u32 s{sT0}, s{sT0}, s{sT2}\ns_add_u32 s{sT2}, s{sT0}, 8192").split('\n')
    R, R0 = DN_R, DN_R0
    seq = []
    for s in range(28 - R):
        seq += [(s, a) for a in (3, 2, 1)]
        if s < 28 - R0: seq.append((s, 0))
    seq += [(s, a) for a in (3, 2, 1) for s in range(28 - R, 28)] + [(s, 0) for s in range(28 - R0, 28)]
    fx = (lambda s_, a_: 4*(s_ >> 1) + 2*(a_ & 1)) if DN16 else (lambda s_, a_: 2*s_ + (a_ & 1))
    lo = [min(fx(s_, a_) for s_, a_ in seq[m:]) for m in range(112)]
    wr = []; rt = None; tail = None; res = None; wb = False; adds = []
    for m, (s, a) in enumerate(seq):
        r = order[s >> 1] if DN16 else order[s]
        if len(DN_CHK) == 1 and m == DN_CHK2:
            dn.ap.check()
            k(f"s_add_u32 s{dn.sFl}, s{dn.sFl}, {8*KB}")
            xq.hold = 40
        if m == int(4*DN_PUBB): publish_local(k, dn.tB)
        if UP4 and m == DN_POLL3: dn.ap.issue()
        if UP4 and m == DN_CHK3:
            dn.ap.check()
            k(f"s_add_u32 s{dn.sFl}, s{dn.sFl}, {8*KB}")
            xq.hold = 48
        if m == 4*DN_BAR:
            ring.limit = None
            ring.sync(296, 0)
        if m == 4*DN_POLLB:
            apb = dn.ap
            apb.issue()
            rt = load_res16(k, vRES) if DN16 else load_res(k, vRES)
        if m == 4*DN_CHKB:
            apb.check()
            xq.hold = 56
            xq.issue_n(min(3, lo[m] + NX - xq.n))
        xi = fx(s, a) + (1 if DN16 else 0)
        while xq.n <= xi:
            assert xq.n < xq.hold and xq.n < lo[m] + NX
            xq.issue_n(1)
        k.wait(vm=xq.t[xi])
        if DN16:
            ch = s & 1
            for th in range(2):
                acc = vr(vACC + 16*a + 8*ch + 4*th)
                k(f"v_mfma_f32_16x16x32_bf16 {acc}, {ar(aWD + 16*r + 8*(a >> 1) + 4*ch)}, {dn.xr(xi - 1 + th)}, {'0' if s < 2 else acc}")
                if th == 0:
                    for _ in range(2):
                        if side and res: k(side.pop(0))
                        elif adds and adds[0][0] <= m:
                            _, t_, x = adds.pop(0); k.wait(lg=t_); k(x)
        else:
            acc = vr(vACC + 16*a, 16)
            k(f"v_mfma_f32_32x32x16_bf16 {acc}, {ar(aWD + 8*r + 4*(a >> 1))}, {dn.xr(xi)}, {'0' if s == 0 else acc}")
        if m == 0: mark(k, 'm0')
        if m in GEMM_MARKS.get(G.ph, ()): mark(k, f'm{m}')
        if (m % 2 == 0 or (xq.hold == 56 and m % DN_CR == 0)) and xq.n < min(lo[m] + NX, xq.total, xq.hold): xq.issue_n(1)
        elif m % 2 == 0 and xq.n == xq.total and ring.can_issue(): ring.issue()
        elif m > 4*DN_CHKB + 8:
            if res is None:
                k.wait(vm=rt); res = True
                side += res_unpack(vSUM, vRES)
            for _ in range(2 if DN16 else 4):
                if side: k(side.pop(0))
        if final and WB_MASK is not None and xq.n == xq.total and (WB_EARLY or k.vm_done == k.vm_issued) and not wb:
            wb = True; l_ = k.newlabel('wb')
            k(f"s_lshl_b32 s{sT1}, s{sC}, 2\ns_add_u32 s{sT1}, s{sT1}, s{sW}\ns_and_b32 s{sT1}, s{sT1}, {WB_MASK}")
            if WB_EARLY:
                k(f"s_cbranch_scc0 {l_}")
                k.vm(f"buffer_load_dword v15, off, {srd(sWS)}, s{dn.sFl} sc1")
                k.label(l_ + 'r')
                G.far += [f"{l_}:", "buffer_wbl2 sc1", f"s_branch {l_}r"]
            else:
                k(f"s_cbranch_scc1 {l_}")
                k("buffer_wbl2 sc1")
                k.label(l_)
            print('wbl2 at', m, file=sys.stderr)
        if wr and wr[0][0] <= m:
            assert not side
            for _ in range(min(DN_WR, len(wr))):
                if wr[0][0] <= m: k.lg(wr.pop(0)[1])
            if wr and DN_WR == 1: wr[0] = (max(wr[0][0], m + DN_WGAP), wr[0][1])
            if not wr and a == 0: tail = min(m + 2, 111)
        if s == 27 and a:
            wr += [(m + 2, f"ds_write_b128 v{5+a}, {vr(vACC+16*a+4*j)} offset:{j*KB}") for j in range(4)]
        def fetch(bs):
            k("s_barrier")
            for b in bs:
                for j in range(4): t_ = k.lg(f"ds_read_b128 {vr(vACC+16+16*b+4*j)}, v9 offset:{b*4*KB + j*KB}")
                adds.extend((m + 2, t_, f"v_add_f32 v{vSUM+i}, v{vSUM+i}, v{vACC+16+16*b+i}") for i in range(16))
        if DN_X2 and m == 112 - R0:
            assert all('ds_write_b128 v6,' in x[1] for x in wr)
            k.wait_all(vm=False)
            fetch((2, 1))
        elif tail == m:
            k.wait_all(vm=False)
            fetch((0,) if DN_X2 else (2, 1, 0))
        else:
            for _ in range(2 if DN16 else DN_ADDS):
                if adds and adds[0][0] <= m:
                    _, t_, x = adds.pop(0); k.wait(lg=t_); k(x)
    assert not side and not wr and tail is not None and tail < 112
    for _, t_, x in adds:
        k.wait(lg=t_); k(x)
    if final and not OUT_T: rowmajor_addr(k, 6, sT0)
    for j in range(8):
        k(f"v_add_f32 v{vACC+2*j}, v{vACC+2*j}, v{vSUM+2*j}\nv_add_f32 v{vACC+2*j+1}, v{vACC+2*j+1}, v{vSUM+2*j+1}")
        k(f"v_cvt_pk_bf16_f32 v{vPK+j}, v{vACC+2*j}, v{vACC+2*j+1}")
        if DN16 and j in (3, 7): k(f"v_permlane16_swap_b32 v{vPK+j-3}, v{vPK+j-1}\nv_permlane16_swap_b32 v{vPK+j-2}, v{vPK+j}")
        if final and OUT_T and j in (3, 7): k.lg(f"ds_write_b128 v10, {vr(vPK+j-3)} offset:{(j >> 2)*32}")
    if final and OUT_T:
        k.wait_all(vm=False)
        k("s_barrier")
        t0 = k.lg(f"ds_read_b128 {vr(vPK)}, v11")
        t1 = k.lg(f"ds_read_b128 {vr(vPK+4)}, v11 offset:{8*144}")
        k.wait(lg=t0)
        k.vm(f"buffer_store_dwordx4 {vr(vPK)}, v13, {srd(sAUX)}, s{sT0} offen{OUT_SC}")
        k.wait(lg=t1)
        k.vm(f"buffer_store_dwordx4 {vr(vPK+4)}, v13, {srd(sAUX)}, s{sT2} offen{OUT_SC}")
    elif final:
        k.vm(f"buffer_store_dwordx4 {vr(vPK)}, v6, {srd(sAUX)}, s{sT0} offen{OUT_SC}")
        k.vm(f"buffer_store_dwordx4 {vr(vPK+4)}, v6, {srd(sAUX)}, s{sT0} offen offset:32{OUT_SC}")
    else:
        G.tx = store_x(k, vACC, vPK, L, 8, ring, m16=DN16)
    mark(k, 'end')

def k_main(name):
    k = Asm()
    G.nst = 0
    k(f".globl {name}\n.p2align 8\n.type {name},@function")
    k.label(name)
    if STAMP or PADTO or GATE: k("s_memrealtime s[42:43]")
    mark(k, 'start')
    k("s_cmp_ge_u32 s2, 256")
    k("s_cbranch_scc1 L_abort")
    k(f"s_load_dwordx2 s[{sWS}:{sWS+1}], s[0:1], 72")
    k(f"s_load_dwordx2 s[{sAUX}:{sAUX+1}], s[0:1], 56")
    k("s_load_dwordx2 s[60:61], s[0:1], 0\ns_load_dwordx4 s[64:67], s[0:1], 8\ns_load_dwordx4 s[68:71], s[0:1], 32\ns_load_dwordx2 s[72:73], s[0:1], 48")
    if CT0:
        k("s_getpc_b64 s[88:89]")
        k(f"s_lshr_b32 s90, s2, 3\ns_and_b32 s90, s90, {CT0 - 1}\ns_lshl_b32 s90, s90, 12\nv_lshl_add_u32 v3, v0, 4, s90")
        k.vm("global_load_dword v247, v3, s[88:89]")
    k("v_lshrrev_b32 v2, 6, v0")
    k(f"v_and_b32 v{vL16}, 63, v0")
    k(f"v_readfirstlane_b32 s{sW}, v2")
    k(f"v_lshlrev_b32 v{vL16}, 4, v{vL16}")
    k(f"s_mov_b32 s{sWG}, s2\ns_and_b32 s{sG}, s2, 7\ns_lshr_b32 s{sC}, s2, 3\ns_lshl_b32 s{sW1K}, s{sW}, 10")
    k(f"s_lshr_b32 s{sC4}, s{sC}, 4\ns_lshr_b32 s{sC3}, s{sC}, 3")
    k(f"s_lshl_b32 s{sU}, s{sG}, 5\ns_add_u32 s{sU}, s{sU}, s{sC}")
    k(f"s_lshl_b32 s{sW4K}, s{sW}, 12\ns_lshl_b32 s{sW2K}, s{sW}, 11")
    k(f"s_getreg_b32 s{sXCC}, hwreg(HW_REG_XCC_ID, 0, 4)")
    k(f"v_add_u32 v{vSRC}, s{sW1K}, v{vL16}")
    k(f"s_mov_b32 s{sMSK}, 0xffff\ns_mov_b32 s{sMSK+1}, 0xffff\ns_mov_b32 s{sMODE}, 0")
    k(f"s_and_b32 s{sT0}, s{sC}, 7\ns_mul_i32 s{sSEG}, s{sT0}, {WO_STR}\ns_add_u32 s{sSEG}, s{sSEG}, {WO}")
    k(f"s_lshl_b32 s{sT1}, s{sG}, 2\ns_add_u32 s{sT1}, s{sT1}, s{sC3}\ns_lshl_b32 s{sT1}, s{sT1}, 1\ns_and_b32 s{sT2}, s{sW}, 1\ns_add_u32 s{sT1}, s{sT1}, s{sT2}")
    k(f"s_lshl_b32 s{sT1}, s{sT1}, 5\ns_lshl_b32 s{sT0}, s{sT0}, 2\ns_add_u32 s{sT1}, s{sT1}, s{sT0}\ns_and_b32 s{sT2}, s{sW}, 2\ns_add_u32 s{sT1}, s{sT1}, s{sT2}\ns_lshl_b32 s{sDST}, s{sT1}, 10")
    k(f"s_lshr_b32 s{sSD}, s{sDST}, 12\ns_lshl_b32 s{sSD}, s{sSD}, 9\ns_lshl_b32 s{sT2}, s{sT2}, 2\ns_add_u32 s{sSD}, s{sSD}, s{sT2}\ns_add_u32 s{sSD}, s{sSD}, {SX}")
    k(f"s_and_b32 s{sT0}, s{sC}, 15\ns_mul_i32 s{sSEG+1}, s{sT0}, {WU_STR}\ns_add_u32 s{sSEG+1}, s{sSEG+1}, {WU}")
    k(f"s_mul_i32 s{sSEG+2}, s{sT0}, {WQ_STR}\ns_add_u32 s{sSEG+2}, s{sSEG+2}, {WQ}")
    def late(k):
        if WSOFF: k(f"s_add_u32 s{sWS}, s{sWS}, {WSOFF}\ns_addc_u32 s{sWS+1}, s{sWS+1}, 0")
        k(f"s_add_u32 s{sT0}, s{sWS}, {EP}\ns_addc_u32 s{sT1}, s{sWS+1}, 0")
        k(f"s_load_dwordx2 s[{sTAG}:{sTAG+1}], s[{sT0}:{sT1}], 0")
        k(f"s_and_b32 s{sWS+1}, s{sWS+1}, 0xffff\ns_mov_b32 s{sWS+2}, {0x10000000 - WSOFF}\ns_mov_b32 s{sWS+3}, 0x20000")
        k(f"s_and_b32 s{sAUX+1}, s{sAUX+1}, 0xffff\ns_mov_b32 s{sAUX+2}, {2*MB}\ns_mov_b32 s{sAUX+3}, 0x20000")
    G.ph = 'qkv0'; tk = (ph_qkv0k if Q0K else ph_qkv0)(k, late)
    for L in range(2):
        ring = Ring(k, [(sSEG, 64), (sSEG+1, 232)] + ([(sSEG+2, 100)] if L == 0 else []))
        G.ph = f'att{L}'; tO = ph_att(k, L, ring, *tk)
        G.ph = f'wo{L}'; tx = ph_wo(k, L, ring, tO)
        G.ph = f'up{L}'; tB = ph_up(k, L, ring, 64, tx)
        G.ph = f'dn{L}'; ph_down(k, L, ring, tB)
        G.ph = 'qkv1'
        if L == 0: tk = ph_qkv(k, 1, ring, 296)
    k(f"s_add_u32 s{sT0}, s{sWG}, s{sW}\ns_cmp_lg_u32 s{sT0}, 0\ns_cbranch_scc1 L_fin")
    k(f"s_mov_b32 s{sF}, {EP}")
    publish_local(k, None, force_global=True)
    k.label("L_fin")
    if PADTO:
        k("s_waitcnt vmcnt(0)")
        if PADMIN:
            k("s_load_dwordx2 s[64:65], s[0:1], 64\ns_waitcnt lgkmcnt(0)")
            k("s_not_b32 s66, s42\nv_mov_b32 v8, s66\nv_mov_b32 v9, 0\ns_mov_b64 exec, 1")
            k("global_atomic_umax v9, v8, s[64:65]\ns_waitcnt vmcnt(0)")
            k.label("L_pad0")
            k(f"s_memrealtime s[98:99]\ns_waitcnt lgkmcnt(0)\ns_sub_u32 s98, s98, s42\ns_cmp_lt_u32 s98, {PADTO - 1500}\ns_cbranch_scc1 L_pad0")
            k("global_load_dword v8, v9, s[64:65] sc1\ns_waitcnt vmcnt(0)\nv_readfirstlane_b32 s66, v8\ns_not_b32 s42, s66\ns_mov_b64 exec, -1")
        k.label("L_pad")
        k(f"s_memrealtime s[98:99]\ns_waitcnt lgkmcnt(0)\ns_sub_u32 s98, s98, s42\ns_cmp_lt_u32 s98, {PADTO}\ns_cbranch_scc1 L_pad")
    if STAMP:
        k("s_waitcnt vmcnt(0)")
        G.ph = ''; mark(k, 'fin')
        k("s_memrealtime s[98:99]\ns_waitcnt lgkmcnt(0)")
        vals = [42, 98, sMODE] + STS[:G.nst]
        for i, s_ in enumerate(vals): k(f"v_mov_b32 v{16+i}, s{s_}")
        k(f"s_lshl_b32 s{sT0}, s{sWG}, 2\ns_add_u32 s{sT0}, s{sT0}, s{sW}\ns_lshl_b32 s{sT0}, s{sT0}, 7\ns_add_u32 s{sT0}, s{sT0}, {TS}")
        k("v_mov_b32 v4, 0\ns_mov_b64 exec, 1")
        for j in range(8): k(f"buffer_store_dwordx4 {vr(16+4*j)}, v4, {srd(sWS)}, s{sT0} offen offset:{16*j}")
        if DBG is not None:
            k(f"s_lshl_b32 s{sT0}, s{sWG}, 2\ns_add_u32 s{sT0}, s{sT0}, s{sW}\ns_cmp_lg_u32 s{sT0}, {DBG}\ns_cbranch_scc1 L_nodbg")
            k("s_load_dwordx2 s[64:65], s[0:1], 64\ns_waitcnt lgkmcnt(0)")
            for i in range(16): k(f"v_sub_u32 v{64+i}, v{20+i}, v19")
            for j in range(4): k(f"global_store_dwordx4 v4, {vr(64+4*j)}, s[64:65] offset:{16*j}")
            k.label("L_nodbg")
    k("s_waitcnt vmcnt(0)")
    k.label("L_abort")
    k("s_endpgm")
    for x in G.near + G.far:
        if x.endswith(':'): k.label(x[:-1])
        else: k(x)
    k.label("L_end")
    return k

def build():
    name = NAME + "_kernel"
    k = k_main(name)
    nn = k.fix()
    print(f"{len(k.L)} lines, {nn} nop states", file=sys.stderr)
    head = f"; stamps: {','.join(G.names)}\n" if (STAMP or not FINAL) else HDR
    return f"""{head}; @launch grid=(256,1,1) block=(256,1,1) lds={160*KB}
.amdgcn_target "amdgcn-amd-amdhsa--gfx950"
.text
{k.text()}
.section .rodata,"a"
.p2align 6
.amdhsa_kernel {name}
  .amdhsa_next_free_vgpr 512
  .amdhsa_next_free_sgpr 102
  .amdhsa_accum_offset 256
  .amdhsa_group_segment_fixed_size 0
  .amdhsa_kernarg_size 80
  .amdhsa_user_sgpr_count 2
  .amdhsa_user_sgpr_kernarg_segment_ptr 1
  .amdhsa_system_sgpr_workgroup_id_x 1
.end_amdhsa_kernel
"""

if __name__ == "__main__":
    for a in sys.argv[2:]:
        kk_, vv_ = a.split('=', 1)
        globals()[kk_] = eval(vv_)
    open(sys.argv[1], "w").write(build())
```

```python
import sys, struct
from asmlib import Asm

NAME = "interleave_layers__mha_block__glu_gated_bilinear__prompt"
KB = 1024; MB = KB * KB
LOG2E = 1.4426950408889634
def f2u(x): return struct.unpack('<I', struct.pack('<f', x))[0]
def srd(b): return f"s[{b}:{b+3}]"
def vr(b, n=4): return f"v[{b}:{b+n-1}]"
def ar(b, n=4): return f"a[{b}:{b+n-1}]"

WQ = 0;                    WQ_STR = 100 * KB
WO = WQ + 16 * WQ_STR;     WO_STR = 64 * KB
WU = WO + 8 * WO_STR;      WU_STR = 232 * KB
WD = WU + 16 * WU_STR
FL = 7 * MB + 640 * KB
assert WD + 16 * 112 * KB <= FL
EP = FL
XID = FL + 1 * KB
def FLOC(L, p): return FL + 4 * KB + (L * 13 + p) * 8 * KB
FKV0 = FL + 4 * KB + 26 * 8 * KB
def FKV(L): return FKV0 + L * 32 * KB
FPK = FKV0 + 64 * KB
assert FPK + 32 * KB <= 8 * MB
XF = 8 * MB
HF = 10 * MB
QF = HF
SX = 17 * MB
SG = SX + 512 * KB
def KVF(L): return 18 * MB + L * 4 * MB
WS_PAGES = 13
TS = 27 * MB
DUMP = 0x7ff00000

STAMP = False
RED_LG = True; RED_AT = 126
STAGED = True; X4_AT = 12
DEEP = False
Q0_MARKQ = ()
LN_BF16 = True
XB_PRE = 0
Q0K_FLAG = 29; Q0K = True; Q0K_Q = (3, 4, 4, 4, 5, 5, 5, 5); Q0K_LEAD = 20; Q0K_EPI = 5
RES_AT = 97
PKR_AT = 5; PK_WAIT = 0; PUB_AT = 17
QF_AT = 1
PREFILL = 128; A1_AT = (0, 2); KVF_AT = (3, 0); P2 = ((0, 2), (3, 6)); Q0_RSH = 1
Q0G = False; Q0_ST0 = 24; Q0_GLD = 5
DIAG_W = False
U16_HOLD = 999; U16_BIG = False
DN16 = False
UP16 = True; U16_FIN = 64; U16_PUB = (156, 206); U16_POLL = (174, 226); U16_CHK = 188; U16_SLOTS = 3
FL1 = False; PP_SLEEP = 1
FINAL = False
HDR = "; Two transformer layers (LN -> MHA -> residual, LN -> bilinear GLU -> residual) in ONE persistent launch:\n;    finite, else the wave recomputes its rows with the true row maximum subtracted (labels fb_*).\n"
NEAR = True; CT0 = 8
GATE = None
WB_EARLY = False
DIAG_NOP = {}
UP4 = False; DN_POLL3 = 18; DN_CHK3 = 30
DN_X2 = True; DN_ADDS = 5; DN_CR = 2
RES_LATE = (False, False); XRES_TOUCH = 0
HEAD = 0
QKV_QE = 6; QKV_EPI = 5
R1_AT = 44; R1_STEP = 6
KV_LOC = True
PADTO = 0; PADMIN = False
OUT_T = True
ATT_NT = 3
PK_WIN2 = False; PK_SP = 0
WARM_AT = 1
RT = False
DN_CHK2 = 4
CT_AT = 92
FORCE_FB = False
WB_MASK = 127; OUT_SC = ' sc1'; DN_WR = 1; DN_WGAP = 2
QW_LATE = False; QW_UP = 16; QW_TOUCH = (72, 100); QW_N1 = 4
PK_Q0 = False; PK_RD = 1; PK_ST = 3; CHK_Q0 = 15
WO_STOP = 32; WO_R0 = 8; WO_N0 = 10; ST_PRE = 5; PPOLL = 0; KV_PF = (0, 0); PK_EARLY = True
FL_TOUCH = False
SPLIT_ST = True
FINE = False
UP_EPI = 2; UP_PUB = (154, 206); DN_POLL = (172, 226); DN_CHK = (186,); UP_LOOK = 8; UP_SYNCS = {0, 48, 80, 112, 144, 176, 200}; UP_SKIP = (0, 0); UP_STOP = 222
DN_PUBB = 4; DN_BAR = 14; DN_POLLB = 7; DN_CHKB = 12; DN_R = 8; DN_R0 = 12
FLAG_TOUCH = False
WSOFF = 0
SLEEP1 = (0, 0); SLEEP2 = 0; SLEEP3 = 0
DBG = None
PRE = 2; PRE2 = 0
PRE_WO = 0; PRE_WO2 = 0
CODE_TOUCH = True
WD_SLOTS = (2, 4, 6)
TOUCH_AT = (99, 96); TOUCH_STEP = (2, 2); TOUCH_LN = 32; TH_STEP = 3; TOUCH_KBS = (64, 96)
RING = 144
PK_T0 = 9; PK_GAP = 6; PK_GAP2 = 9; CHK_GAP = 14
P2_AT = 6
P2_LEAD = 4
TACTS = (103, 102); EARLY_H = 0

sC4, sC3 = 2, 3
sWS, sAUX = 4, 8
sW, sG, sC, sW1K = 12, 13, 14, 15
sT0, sT1, sT2, sT3 = 16, 17, 18, 19
sX, sRS, sRB = 20, 21, 22
sA, sB, sCc, sD, sE = 23, 24, 25, 26, 27
sS0, sS1 = 28, 21
sMSK, sTAG, sMODE, sXCC = 30, 32, 34, 35
sSEG = 36
sX2 = 39
sSPIN, sF = 40, 41
STS = list(range(44, 56, 2)) + [92, 94, 56, 58, 74, 76, 80, 82, 86, 88, 60, 62]
sWG = 101
sW4K = 97
sW2K = 99
sSD = 29
sPC, sCT = 90, 85
sDST = 100
vL16, vSRC, vB = 1, 2, 3
aWD, aWB = 0, 224

class G:
    nst = 0
    names = []
    far = []
    near = []
    ph = ''
SKIP = ''
ATT_MARKS = ()
GEMM_MARKS = {}
def mark(k, nm='x'):
    import re
    nm = G.ph + '_' + nm
    if GATE and GATE[0] == nm:
        k.label("L_gate")
        k(f"s_memrealtime s[44:45]\ns_waitcnt lgkmcnt(0)\ns_sub_u32 s44, s44, s42\ns_cmp_lt_u32 s44, {GATE[1]}\ns_cbranch_scc1 L_gate")
    if SKIP and re.match(SKIP, nm): return
    if '_f_' in nm and not FINE: return
    if STAMP:
        G.names.append(nm)
        k(f"s_mem{'real' if RT else ''}time s[{STS[G.nst]}:{STS[G.nst]+1}]")
        G.nst += 1

class Ring:
    def __init__(self, k, segs):
        self.k = k; self.N = RING
        self.total = sum(n for _, n in segs)
        self.starts = {}
        b = 0
        for s, n in segs:
            assert n % 4 == 0
            self.starts[b] = s; b += n
        self.issued = 0; self.freed = 0; self.visible = 0
        self.limit = None
        self.tick = {}
        self.pair = False
    def can_issue(self):
        if self.limit is not None and self.issued + 4 > self.limit: return False
        return self.issued < self.total and self.issued + 4 <= self.freed + self.N
    def issue(self):
        k = self.k
        assert self.can_issue()
        slot = self.issued % self.N
        k(f"s_add_u32 m0, s{sW1K}, {slot*KB}")
        if self.issued in self.starts: k(f"s_mov_b32 s{sRS}, s{self.starts[self.issued]}")
        else: k(f"s_add_u32 s{sRS}, s{sRS}, 4096")
        self.tick[self.issued // 4] = k.vm(f"buffer_load_dwordx4 v{vSRC}, {srd(sWS)}, s{sRS} offen sc1 lds")
        self.issued += 4
    def parts(self):
        k = self.k
        assert self.can_issue()
        b = self.issued; self.issued += 4
        def ld(): self.tick[b // 4] = k.vm(f"buffer_load_dwordx4 v{vSRC}, {srd(sWS)}, s{sRS} offen sc1 lds")
        return [lambda: k(f"s_add_u32 m0, s{sW1K}, {(b % self.N)*KB}"),
                lambda: k(f"s_mov_b32 s{sRS}, s{self.starts[b]}" if b in self.starts else f"s_add_u32 s{sRS}, s{sRS}, 4096"), ld]
    def can8(self):
        b = self.issued
        if b % 8 or (b + 4) in self.starts or b + 8 > self.total or b + 8 > self.freed + self.N: return False
        return self.limit is None or b + 8 <= self.limit
    def parts8(self):
        k = self.k
        b = self.issued; self.issued += 8
        first = not self.pair; self.pair = True
        def src():
            if b in self.starts: k(f"s_add_u32 s{sRS}, s{self.starts[b]}, s{sW1K}")
            elif first: k(f"s_add_u32 s{sRS}, s{sRS}, 4096\ns_add_u32 s{sRS}, s{sRS}, s{sW1K}")
            else: k(f"s_add_u32 s{sRS}, s{sRS}, 8192")
        def ld1(): self.tick[b // 4] = self.tick[b // 4 + 1] = k.vm(f"buffer_load_dwordx4 v{vSRC}, {srd(sWS)}, s{sRS} offen offset:1024 sc1 lds")
        return [lambda: k(f"s_add_u32 m0, s{sW2K}, {(b % self.N)*KB}"), src,
                lambda: k.vm(f"buffer_load_dwordx4 v{vSRC}, {srd(sWS)}, s{sRS} offen sc1 lds")], [ld1]
    def end8(self):
        if self.pair:
            self.k(f"s_add_u32 s{sRS}, s{sRS}, 4096\ns_sub_u32 s{sRS}, s{sRS}, s{sW1K}")
            self.pair = False
    def issue16(self):
        k = self.k
        b = self.issued; slot = b % self.N
        assert slot + 16 <= self.N and b + 16 <= min(self.limit or 1 << 30, self.freed + self.N)
        assert not any(x in self.starts for x in range(b + 1, b + 16))
        k(f"s_add_u32 m0, s{sW4K}, {slot*KB}")
        if b in self.starts: k(f"s_add_u32 s{sRS}, s{self.starts[b]}, s{sW4K}")
        else: k(f"s_add_u32 s{sRS}, s{sRS}, 16384")
        for i in range(4):
            t = k.vm(f"buffer_load_dwordx4 v{vL16}, {srd(sWS)}, s{sRS} offen offset:{i*KB} sc1 lds")
        for q in range(4): self.tick[b // 4 + q] = t
        self.issued += 16
    def end16(self):
        self.k(f"s_sub_u32 s{sRS}, s{sRS}, s{sW4K}\ns_add_u32 s{sRS}, s{sRS}, 12288")
    def issue_n(self, n):
        for _ in range(n):
            if self.can_issue(): self.issue()
    def sync(self, consumed, need):
        k = self.k
        need = min(need, self.total)
        if need > self.visible:
            q = (need - 1) // 4
            assert q * 4 < self.issued, (need, self.issued)
            k.wait(vm=self.tick[q])
        k("s_barrier")
        q = self.visible // 4
        while q in self.tick and self.tick[q] <= k.vm_done: q += 1
        self.visible = q * 4
        assert self.visible >= need
        self.freed = max(self.freed, (consumed // 4) * 4)
    def addr(self, b): return (b % self.N) * KB

def set_lds_bases(k, extra_s=None):
    if extra_s is None: k(f"v_mov_b32 v{vB}, v{vL16}")
    else: k(f"v_add_u32 v{vB}, s{extra_s}, v{vL16}")
    k(f"v_add_u32 v{vB+1}, 0x10000, v{vB}")
    k(f"v_add_u32 v{vB+2}, 0x20000, v{vB}")

class XLoader:
    def __init__(self, k, total, reg, src, va=vL16):
        self.k = k; self.total = total; self.reg = reg; self.src = src; self.n = 0; self.t = []; self.va = va
        self.hold = total
    def issue_n(self, n):
        k = self.k
        for _ in range(n):
            i = self.n
            if i >= min(self.total, self.hold): return
            s_, imm = self.src(i)
            self.t.append(k.vm(f"buffer_load_dwordx4 {self.reg(i)}, v{self.va}, {srd(sWS)}, s{s_} offen offset:{imm} sc1"))
            self.n += 1
def lin_src(k):
    def f(i):
        if i and (i & 3) == 0: k(f"s_add_u32 s{sX}, s{sX}, 4096")
        return sX, (i & 3) * KB
    return f

class Gemm:
    def __init__(self, k, ring, ops, syncs, D=4, NB=8, stop_issue=None):
        self.k = k; self.ring = ring; self.ops = ops; self.syncs = sorted(syncs)
        assert all(x % 2 == 0 for x in syncs)
        self.D = D; self.NB = NB; self.tl = {}; self.nread = 0
        self.stop = stop_issue if stop_issue is not None else len(ops)
    def rd(self):
        k = self.k; m = self.nread; o = self.ops[m]
        assert o['bmax'] < self.ring.visible, (m, o['b'], self.ring.visible)
        a = self.ring.addr(o['b'])
        self.tl[m] = k.lg(f"ds_read_b128 {ar(aWB + 4*(m % self.NB))}, v{vB + (a >> 16)} offset:{a & 0xffff}")
        self.nread += 1
    def need_until(self, m):
        M = len(self.ops)
        nxt = [s for s in self.syncs if s > m]
        last = min((nxt[0] if nxt else M) - 1 + self.D, M - 1)
        return max(o['bmax'] for o in self.ops[:last+1]) + 1
    def start(self):
        self.ring.sync(self.ops[0]['bmin'], self.need_until(0))
        while self.nread < min(self.D, len(self.ops)): self.rd()
    def run(self, xq, n0=6, look=10, filler=None, misc=(), misc_from=0, skip=0):
        k = self.k; M = len(self.ops)
        misc = list(misc)
        xq.issue_n(n0)
        cur = 0
        for m in range(M):
            if m in self.syncs and m > 0:
                self.ring.sync(self.ops[m]['bmin'], self.need_until(m))
            o = self.ops[m]
            xt = None
            if m % 2 == 0:
                xs = [p['xi'] for p in self.ops[m:m+2] if p.get('xi') is not None]
                if xs:
                    cur = max(cur, max(xs))
                    while xq.n <= max(xs): xq.issue_n(1)
                    xt = xq.t[max(xs)]
                k.wait(vm=xt, lg=self.tl[min(m + 1, M - 1)])
            w = ar(aWB + 4*(m % self.NB))
            c = o.get('c0', '0') if o['first'] else o['acc']
            A, B = (o['x'], w) if o['swap'] else (w, o['x'])
            k(f"v_mfma_f32_32x32x16_bf16 {o['acc']}, {A}, {B}, {c}")
            if m == 0: mark(k, 'm0')
            if m in GEMM_MARKS.get(G.ph, ()): mark(k, f'm{m}')
            if m % 2 == 0:
                for _ in range(2):
                    if self.nread < M: self.rd()
                if DIAG_NOP.get(G.ph): k(f"s_nop {DIAG_NOP[G.ph]}")
            elif not (skip and m % skip == skip - 1):
                rok = m < self.stop and self.ring.can_issue()
                if xq.n < xq.total and (xq.n - cur < look or not (rok or (misc and m >= misc_from))): xq.issue_n(1)
                elif misc and m >= misc_from: misc.pop(0)()
                elif rok: self.ring.issue()
            if filler: filler(m)
        assert not misc

def stats_emitters(k, vt, res):
    k(f"s_lshl_b32 s{sS0}, s{sRB}, 12\ns_add_u32 s{sS0}, s{sS0}, {SX}")
    def mk(i):
        def f(): res['t'] = k.vm(f"buffer_load_dwordx4 {vr(vt+4*i)}, v{vL16}, {srd(sWS)}, s{sS0} offen offset:{i*KB} sc1")
        return f
    return [mk(i) for i in range(4)]

NTREE = 14
def fin_stats(vt, vext, vrstd):
    ins = []
    n = 8
    while n > 1:
        h = n // 2
        for i in range(h):
            ins.append(f"v_add_f32 v{vt+2*i}, v{vt+2*i}, v{vt+2*(i+h)}")
            ins.append(f"v_add_f32 v{vt+2*i+1}, v{vt+2*i+1}, v{vt+2*(i+h)+1}")
        n = h
    a, b, c, d = vt, vt+1, vt+2, vt+3
    ins += [f"v_mov_b32 v{c}, v{a}", f"v_mov_b32 v{d}, v{b}",
            f"v_permlane32_swap_b32 v{a}, v{c}", f"v_permlane32_swap_b32 v{b}, v{d}",
            f"v_add_f32 v{a}, v{a}, v{c}", f"v_add_f32 v{b}, v{b}, v{d}",
            f"v_mul_f32 v{a}, {hex(f2u(-1.0/512))}, v{a}",
            f"v_mul_f32 v{b}, {hex(f2u(1.0/512))}, v{b}",
            f"v_fma_f32 v{b}, -v{a}, v{a}, v{b}",
            f"v_max_f32 v{b}, 0, v{b}"]
    rnd = lambda r: [f"v_cvt_pk_bf16_f32 v{r}, v{r}, 0", f"v_lshlrev_b32 v{r}, 16, v{r}"]
    if LN_BF16:
        ins += rnd(b) + [f"v_add_f32 v{b}, {hex(f2u(1e-5))}, v{b}"] + rnd(b) + [f"v_sqrt_f32 v{b}, v{b}",
                f"v_cvt_pk_bf16_f32 v{vext}, v{a}, v{a}"] + rnd(b) + [f"v_rcp_f32 v{vrstd}, v{b}",
                f"v_mov_b32 v{vext+1}, 0", f"v_mov_b32 v{vext+2}, v{vext}", f"v_mov_b32 v{vext+3}, 0"]
    else:
        ins += [f"v_add_f32 v{b}, {hex(f2u(1e-5))}, v{b}", f"v_rsq_f32 v{vrstd}, v{b}",
                f"v_cvt_pk_bf16_f32 v{vext}, v{a}, v{a}", f"v_and_b32 v{c}, 0xffff0000, v{vext}", f"v_sub_f32 v{c}, v{a}, v{c}",
                f"v_cvt_pk_bf16_f32 v{vext+1}, v{c}, 0", f"v_mov_b32 v{vext+2}, v{vext}", f"v_mov_b32 v{vext+3}, v{vext+1}"]
    return ins

def poll(k, vaddr, vpd, sleep=0):
    l = k.newlabel('poll')
    k(f"s_mov_b32 s{sSPIN}, 0x40000")
    k.label(l)
    k.vm(f"buffer_load_dwordx2 {vr(vpd,2)}, v{vaddr}, {srd(sWS)}, s{sF} offen sc1")
    k(f"s_sub_u32 s{sSPIN}, s{sSPIN}, 1")
    k("s_cbranch_scc1 L_abort")
    k.wait_all(lg=False)
    k(f"v_cmp_ne_u64 vcc, s[{sTAG}:{sTAG+1}], {vr(vpd,2)}")
    k(f"s_cbranch_vccnz {l}")
class APoll:
    def __init__(self, k, loads, cmp, sleep=0, mask=None):
        self.k = k; self.loads = loads; self.cmp = cmp; self.sleep = sleep; self.br = "s_cbranch_vccnz"
        if mask is not None:
            self.cmp += f"\ns_and_b32 s{sT3}, vcc_lo, {hex(mask)}"; self.br = "s_cbranch_scc1"
    def issue(self):
        for x in self.loads:
            if x.startswith('buffer'): self.t = self.k.vm(x)
            else: self.k(x)
    def check(self):
        k = self.k
        l = k.newlabel('ap'); ok = k.newlabel('apok')
        k.wait(vm=self.t)
        k(self.cmp)
        k(f"{self.br} {l}")
        k.label(ok)
        (G.near if NEAR else G.far).extend([f"{l}:", f"s_mov_b32 s{sSPIN}, 0x40000", f"{l}_l:"] + list(self.loads) + [
            f"s_sub_u32 s{sSPIN}, s{sSPIN}, 1", "s_cbranch_scc1 L_abort", "s_waitcnt vmcnt(0)", self.cmp,
            f"{self.br} {l}_l", f"s_branch {ok}"])
def flush_near(k):
    if not G.near: return
    l = k.newlabel('nr')
    k(f"s_branch {l}")
    for x in G.near:
        if x.endswith(':'): k.label(x[:-1])
        else: k(x)
    k.label(l)
    G.near.clear()
def apoll1(k, vaddr, vpd, soff, sleep=0, mask=None):
    return APoll(k, [f"buffer_load_dwordx2 {vr(vpd,2)}, v{vaddr}, {srd(sWS)}, s{soff} offen sc1"],
                 f"v_cmp_ne_u64 vcc, s[{sTAG}:{sTAG+1}], {vr(vpd,2)}", sleep, mask)
def ppoll(k, vaddr, vd, n):
    l = k.newlabel('pp'); ok = k.newlabel('ppok')
    ld = lambda i: f"buffer_load_dwordx2 {vr(vd+2*i,2)}, v{vaddr}, {srd(sWS)}, s{sF} offen sc1"
    k(f"s_mov_b32 s{sSPIN}, 0x20000")
    for i in range(n - 1): k(ld(i))
    k.label(l)
    for i in range(n):
        k(ld((i + n - 1) % n))
        k(f"s_waitcnt vmcnt({n-1})")
        k(f"v_cmp_ne_u64 vcc, s[{sTAG}:{sTAG+1}], {vr(vd+2*i,2)}")
        k(f"s_cbranch_vccz {ok}")
        if PP_SLEEP: k(f"s_sleep {PP_SLEEP}")
    k(f"s_sub_u32 s{sSPIN}, s{sSPIN}, 1")
    k(f"s_cbranch_scc0 {l}")
    k("s_branch L_abort")
    k.label(ok)
    k.vm_done = k.vm_issued
def poll16(k):
    flush_near(k)
    k("v_and_b32 v13, 15, v0\nv_lshlrev_b32 v13, 3, v13")
    if PPOLL: ppoll(k, 13, 248, PPOLL)
    else: poll(k, 13, 14)

TAGMOV = [f"v_mov_b32 v14, s{sTAG}", f"v_mov_b32 v15, s{sTAG+1}"]
def publish_local(k, last_store, force_global=False, movs=True):
    if movs:
        for x in TAGMOV: k(x)
    if force_global:
        k.wait(vm=last_store)
        k.vm(f"buffer_store_dwordx2 v[14:15], off, {srd(sWS)}, s{sF} sc1")
        return
    slow = k.newlabel('slow'); join = k.newlabel('join')
    k(f"s_cmp_eq_u32 s{sMODE}, 0")
    k(f"s_cbranch_scc1 {slow}")
    if FL1: k("s_mov_b64 exec, 1")
    k.wait(vm=last_store)
    k.vm(f"buffer_store_dwordx2 v[14:15], off, {srd(sWS)}, s{sF}")
    if FL1: k("s_mov_b64 exec, -1")
    k.label(join)
    G.far += [f"{slow}:", "s_waitcnt vmcnt(0)", "buffer_wbl2 sc1", "s_waitcnt vmcnt(0)",
              f"buffer_store_dwordx2 v[14:15], off, {srd(sWS)}, s{sF} sc1", f"s_branch {join}"]
def publish_wg(k, last_store, xid=False, barrier=True):
    l = k.newlabel('pw')
    k(f"v_mov_b32 v13, 0\nv_mov_b32 v14, s{sTAG}\nv_mov_b32 v15, s{sTAG+1}")
    k.wait(vm=last_store)
    if barrier: k("s_barrier")
    k(f"s_cmp_lg_u32 s{sW}, 0\ns_cbranch_scc1 {l}")
    k("s_mov_b64 exec, 1")
    if xid:
        k(f"v_xor_b32 v12, s{sXCC}, v14\nv_mov_b32 v13, v15")
        k(f"buffer_store_dwordx4 v[12:15], v{vL16}, {srd(sWS)}, s{sF} offen sc1")
    else:
        k(f"buffer_store_dwordx2 v[14:15], v13, {srd(sWS)}, s{sF} offen sc1")
    k("s_mov_b64 exec, -1")
    k.label(l)

def rb_128(k):
    k(f"s_lshl_b32 s{sT0}, s{sC4}, 2\ns_lshl_b32 s{sRB}, s{sG}, 3\ns_add_u32 s{sRB}, s{sRB}, s{sT0}\ns_add_u32 s{sRB}, s{sRB}, s{sW}")

def store_x(k, acc, pk, L, p, ring=None, m16=False):
    k(f"s_add_u32 s{sT1}, s{sDST}, {XF}")
    k.vm(f"buffer_store_dwordx4 {vr(pk)}, v{vL16}, {srd(sWS)}, s{sT1} offen")
    td = k.vm(f"buffer_store_dwordx4 {vr(pk+4)}, v{vL16}, {srd(sWS)}, s{sT1} offen offset:1024")
    mark(k, 'f_xs')
    A_ = [acc + i for i in ((0, 1, 2, 3, 8, 9, 10, 11) if m16 else range(0, 16, 2))]
    B_ = [acc + i for i in ((4, 5, 6, 7, 12, 13, 14, 15) if m16 else range(1, 16, 2))]
    k(f"v_add_f32 v10, v{A_[0]}, v{A_[1]}\nv_mul_f32 v11, v{A_[0]}, v{A_[0]}\nv_add_f32 v8, v{B_[0]}, v{B_[1]}\nv_mul_f32 v9, v{B_[0]}, v{B_[0]}")
    k(f"v_fmac_f32 v11, v{A_[1]}, v{A_[1]}\nv_fmac_f32 v9, v{B_[1]}, v{B_[1]}")
    for i in range(2, 8):
        k(f"v_add_f32 v10, v10, v{A_[i]}\nv_fmac_f32 v11, v{A_[i]}, v{A_[i]}\nv_add_f32 v8, v8, v{B_[i]}\nv_fmac_f32 v9, v{B_[i]}, v{B_[i]}")
        if ring and i in (2, 5): ring.issue_n(ST_PRE)
    if m16: k("v_permlane16_swap_b32 v10, v8\nv_permlane16_swap_b32 v11, v9")
    k("v_add_f32 v10, v10, v8\nv_add_f32 v11, v11, v9\nv_mov_b32 v8, v10\nv_mov_b32 v9, v11")
    k("v_permlane32_swap_b32 v10, v8\nv_permlane32_swap_b32 v11, v9\nv_add_f32 v10, v10, v8\nv_add_f32 v11, v11, v9")
    k("s_mov_b32 exec_hi, 0")
    ts = k.vm(f"buffer_store_dwordx2 v[10:11], v{vL16}, {srd(sWS)}, s{sSD} offen")
    k("s_mov_b64 exec, -1")
    k(f"s_lshr_b32 s{sF}, s{sDST}, 8\ns_add_u32 s{sF}, s{sF}, {FLOC(L, p)}")
    mark(k, 'f_ss')
    if SPLIT_ST:
        publish_local(k, td)
        k(f"s_add_u32 s{sF}, s{sF}, {FLOC(L, 6 if p == 1 else 7) - FLOC(L, p)}")
    return ts
def stats_poll(k, delta):
    if not SPLIT_ST: return []
    k(f"s_add_u32 s{sF}, s{sF}, {delta}")
    ap = apoll1(k, 13, 14, sF)
    return ap

def rowmajor_addr(k, va, s_out):
    k(f"v_and_b32 v{va}, 31, v0\nv_lshlrev_b32 v{va}, 10, v{va}\nv_bfe_u32 v{va+1}, v0, 5, 1\nv_lshlrev_b32 v{va+1}, 4, v{va+1}\nv_add_u32 v{va}, v{va}, v{va+1}")
    k(f"s_and_b32 s{s_out}, s{sDST}, 0xffff8000\ns_bfe_u32 s{sT3}, s{sDST}, 0x5000a\ns_lshl_b32 s{sT3}, s{sT3}, 5\ns_add_u32 s{s_out}, s{s_out}, s{sT3}")

sU = 96
def pack_decode(k):
    nm = "pk"; u = f"s{sU}"
    k(f"s_min_u32 s83, {u}, 231")
    u = "s83"
    k(f"s_and_b32 s90, s{sW}, 1\ns_lshr_b32 s91, s{sW}, 1")
    k(f"s_cmp_lt_u32 {u}, 48\ns_cbranch_scc1 {nm}_q")
    k(f"s_cmp_lt_u32 {u}, 160\ns_cbranch_scc1 {nm}_u")
    k(f"s_cmp_lt_u32 {u}, 176\ns_cbranch_scc1 {nm}_o")
    k(f"s_sub_u32 s84, {u}, 176\ns_lshl_b32 s84, s84, 2\ns_add_u32 s84, s84, s{sW}")
    k("s_and_b32 s85, s84, 15\ns_lshr_b32 s86, s84, 4")
    k("s_lshl_b32 s87, s85, 6")
    k("s_add_u32 s74, s72, s87\ns_addc_u32 s75, s73, 0\ns_mov_b32 s76, s74\ns_mov_b32 s77, s75")
    k("s_mov_b32 s78, 1024\ns_lshl_b32 s79, s86, 7")
    k(f"s_mul_i32 s80, s85, 14\ns_add_u32 s80, s80, s86\ns_lshl_b32 s80, s80, 13\ns_add_u32 s80, s80, {WD}\ns_mov_b32 s81, 1024\ns_mov_b32 s88, s81\ns_mov_b32 s82, {DUMP}")
    k(f"s_branch {nm}_go")
    k.label(f"{nm}_o")
    k(f"s_sub_u32 s85, {u}, 160\ns_lshr_b32 s88, s85, 3\ns_and_b32 s85, s85, 7")
    k("s_lshl_b32 s87, s85, 1\ns_add_u32 s87, s87, s90\ns_lshl_b32 s87, s87, 6")
    k("s_add_u32 s74, s66, s87\ns_addc_u32 s75, s67, 0\ns_mov_b32 s76, s74\ns_mov_b32 s77, s75")
    k("s_mov_b32 s78, 1024\ns_lshl_b32 s79, s88, 1\ns_add_u32 s79, s79, s91\ns_lshl_b32 s79, s79, 7")
    k("s_lshl_b32 s89, s91, 15\ns_xor_b32 s90, s90, s88\ns_lshl_b32 s88, s88, 1\ns_add_u32 s90, s90, s88\ns_lshl_b32 s90, s90, 10")
    k(f"s_mul_i32 s80, s85, {WO_STR}\ns_add_u32 s80, s80, s89\ns_add_u32 s80, s80, s90\ns_add_u32 s80, s80, {WO}")
    k(f"s_mov_b32 s81, 4096\ns_mov_b32 s88, s81\ns_mov_b32 s82, {DUMP}")
    k(f"s_branch {nm}_go")
    k.label(f"{nm}_u")
    k(f"s_sub_u32 s85, {u}, 48\ns_mul_i32 s84, s85, 2341\ns_lshr_b32 s84, s84, 16\ns_mul_i32 s86, s84, 28\ns_sub_u32 s85, s85, s86")
    k(f"s_lshl_b32 s85, s85, 2\ns_add_u32 s85, s85, s{sW}\ns_lshl_b32 s87, s85, 5")
    k("s_add_u32 s74, s68, s87\ns_addc_u32 s75, s69, 0")
    k("s_add_u32 s76, s70, s87\ns_addc_u32 s77, s71, 0\ns_sub_u32 s76, s76, 32\ns_subb_u32 s77, s77, 0")
    k("s_mov_b32 s78, 3584")
    k("s_mul_i32 s86, s85, 9363\ns_lshr_b32 s86, s86, 16\ns_mul_i32 s88, s86, 7\ns_sub_u32 s88, s85, s88")
    if DN16: k("s_sub_u32 s89, 6, s88\ns_bitcmp0_b32 s86, 0\ns_cselect_b32 s88, s89, s88")
    k(f"s_mul_i32 s91, s86, {WU_STR}\ns_add_u32 s91, s91, {WU}\ns_lshl_b32 s89, s88, 10\ns_add_u32 s91, s91, s89")
    k(f"s_cmp_lt_u32 s88, 5\ns_cselect_b32 s90, 3, 5\ns_lshl_b32 s89, s90, 15\ns_add_u32 s89, s89, 1024")
    k(f"s_cmp_lt_u32 s88, 3\ns_cselect_b32 s81, 3, 2\ns_cselect_b32 s89, 0, s89\ns_cselect_b32 s90, 0, s90\ns_lshl_b32 s81, s81, 10\ns_add_u32 s91, s91, s89")
    k("s_sub_u32 s85, s88, s90\ns_lshl_b32 s85, s85, 10\ns_mov_b32 s88, 1024")
    k(f"s_branch {nm}_ext")
    k.label(f"{nm}_q")
    k(f"s_cmp_ge_u32 {u}, 24\ns_cselect_b32 s84, 2, 0\ns_cselect_b32 s86, 24, 0\ns_add_u32 s84, s84, s91\ns_sub_u32 s85, {u}, s86")
    k("s_lshl_b32 s85, s85, 1\ns_add_u32 s85, s85, s90\ns_and_b32 s86, s85, 15\ns_lshr_b32 s88, s85, 4")
    k("s_lshl_b32 s87, s85, 6\ns_lshl_b32 s89, s88, 10")
    k("s_add_u32 s74, s64, s87\ns_addc_u32 s75, s65, 0\ns_mov_b32 s76, s74\ns_mov_b32 s77, s75")
    k("s_mov_b32 s78, 3072")
    k(f"s_sub_u32 s89, s89, 1024\ns_cmp_eq_u32 s88, 0\ns_cselect_b32 s89, {66*KB}, s89\ns_cselect_b32 s81, 1, 2\ns_lshl_b32 s81, s81, 10")
    k(f"s_mul_i32 s91, s86, {WQ_STR}\ns_add_u32 s91, s91, s89\ns_add_u32 s91, s91, {WQ}\ns_mov_b32 s85, 0\ns_mov_b32 s88, s81")
    k.label(f"{nm}_ext")
    k("s_lshl_b32 s79, s84, 7")
    k("s_lshl_b32 s89, s81, 5\ns_add_u32 s82, s91, s89\ns_lshr_b32 s89, s84, 1\ns_lshl_b32 s89, s89, 9\ns_add_u32 s82, s82, s89")
    k("s_and_b32 s89, s84, 1\ns_lshl_b32 s89, s89, 3\ns_add_u32 s82, s82, s89")
    k("s_lshl_b32 s89, s81, 3\ns_mul_i32 s89, s89, s84\ns_add_u32 s80, s91, s89\ns_add_u32 s80, s80, s85")
    k.label(f"{nm}_go")
    k(f"s_cmp_ge_u32 s{sU}, 232\ns_cselect_b32 s80, {DUMP}, s80")
    k("v_bfe_u32 v4, v0, 2, 4\nv_add_u32 v4, s79, v4\nv_mul_lo_u32 v4, v4, s78")
    k("v_and_b32 v13, 3, v0\nv_lshlrev_b32 v13, 4, v13\nv_add_u32 v4, v4, v13")
    k(f"s_lshl_b32 s83, s78, 4")
    if PK_Q0: k(f"s_lshl_b32 s84, s{sW}, 13\ns_add_u32 s84, s84, {64*KB}")
    elif Q0K: k(f"s_lshl_b32 s84, s{sW}, 13")
    elif PK_EARLY: k(f"s_lshl_b32 s84, s{sW}, 13\ns_add_u32 s84, s84, {4*KB}")
    else: k(f"s_lshl_b32 s84, s{sW}, 14\ns_add_u32 s84, s84, {96*KB}")
    k("s_mov_b32 s86, s83\ns_mov_b32 s87, 0\ns_lshl_b32 s83, s81, 1\ns_sub_u32 s83, s83, s88\ns_mov_b32 s81, s88")
    k("v_and_b32 v13, 2, v0\nv_cmp_eq_u32 vcc, 0, v13")
    k("v_mov_b32 v14, s76\nv_mov_b32 v13, s74\nv_cndmask_b32 v14, v14, v13, vcc\nv_mov_b32 v15, s77\nv_mov_b32 v13, s75\nv_cndmask_b32 v15, v15, v13, vcc")
    k("v_add_co_u32 v4, vcc, v4, v14\nv_addc_co_u32 v5, vcc, 0, v15, vcc")
def pack_issue(k, i, sbase):
    k(f"s_add_u32 m0, s{sbase}, {i*KB}")
    if i: k("v_lshl_add_u64 v[4:5], v[4:5], 0, s[86:87]")
    return k.vm("global_load_lds_dwordx4 v[4:5], off")
def tr_addr(k, v, t):
    k(f"v_bfe_u32 v{v}, v0, 5, 1\nv_lshlrev_b32 v{v}, 9, v{v}")
    k(f"v_bfe_u32 v{t}, v0, 2, 2\nv_lshlrev_b32 v{t}, 6, v{t}\nv_add_u32 v{v}, v{v}, v{t}")
    k(f"v_bfe_u32 v{t}, v0, 4, 1\nv_lshlrev_b32 v{t}, 5, v{t}\nv_add_u32 v{v}, v{v}, v{t}")
    k(f"v_and_b32 v{t}, 1, v0\nv_lshlrev_b32 v{t}, 4, v{t}\nv_add_u32 v{v}, v{v}, v{t}")
    k(f"v_bfe_u32 v{t}, v0, 1, 1\nv_lshlrev_b32 v{t}, 3, v{t}\nv_add_u32 v{v}, v{v}, v{t}")
def ext_pair(src, dst, t0):
    return [f"v_mov_b32 v{t0}, v{src}", f"v_permlane32_swap_b32 v{src}, v{t0}", f"v_add_f32 v{src}, v{src}, v{t0}",
            f"v_cvt_pk_bf16_f32 v{dst+1}, v{src}, 0", f"v_lshlrev_b32 v{t0}, 16, v{dst+1}", f"v_sub_f32 v{src}, v{src}, v{t0}",
            f"v_cvt_pk_bf16_f32 v{dst}, v{t0}, v{src}"]
class Pack:
    def __init__(self, k): self.k = k; self.r = {}
    def issue(self, *ii):
        for i in ii: self.d = pack_issue(self.k, i, 84)
    def reads(self, *ii):
        k = self.k
        if ii[0] == 0:
            k("v_accvgpr_read_b32 v4, a212")
            k.wait(vm=self.d)
        for i in ii:
            k.lg(f"ds_read_b64_tr_b16 {ar(160+4*i,2)}, v4 offset:{i*KB}")
            self.r[i] = k.lg(f"ds_read_b64_tr_b16 {ar(162+4*i,2)}, v4 offset:{i*KB+256}")
    def csum(self, i):
        self.k.wait(lg=self.r[i])
        self.k(f"v_mfma_f32_32x32x16_bf16 {ar(196,16)}, {ar(192)}, {ar(160+4*i)}, {'0' if i == 0 else ar(196,16)}")
    def stores(self, *ii):
        k = self.k
        k.wait(lg=self.r[ii[-1]])
        for i in ii:
            k.vm(f"buffer_store_dwordx4 {ar(160+4*i)}, v{vL16}, {srd(sWS)}, s80 offen sc1")
            k(f"s_add_u32 s80, s80, s{83 if i & 1 else 81}")
    def ext(self):
        k = self.k
        k("v_accvgpr_read_b32 v13, a196")
        k("v_cvt_pk_bf16_f32 v15, v13, 0\nv_lshlrev_b32 v14, 16, v15\nv_sub_f32 v13, v13, v14\nv_cvt_pk_bf16_f32 v14, v14, v13")
        k("s_mov_b32 exec_hi, 0")
        self.s = k.vm(f"buffer_store_dwordx2 v[14:15], v{vL16}, {srd(sWS)}, s82 offen sc1")
        k("s_mov_b64 exec, -1")
    def pub(self):
        k = self.k
        k(f"s_lshl_b32 s{sF}, s{sU}, 7\ns_add_u32 s{sF}, s{sF}, {FPK}")
        publish_wg(k, self.s, xid=True)
    def schedule(self, job):
        t = PK_T0
        if not PK_EARLY:
            for i in range(4): job(t + i, lambda i=i: self.issue(2*i, 2*i+1))
            t += 4 + PK_GAP
        if PK_WIN2:
            job(t, self.pub)
            return t
        if PK_EARLY and PK_SP:
            for i in range(8): job(t + PK_SP*i, lambda i=i: self.stores(i))
            job(t + 8*PK_SP, self.ext)
            job(t + 8*PK_SP + PK_GAP2, self.pub)
            return t + 8*PK_SP + PK_GAP2
        if PK_EARLY:
            for i in range(4): job(t + i, lambda i=i: self.stores(2*i, 2*i+1))
            job(t + 4, self.ext)
            job(t + 4 + PK_GAP2, self.pub)
            return t + 4 + PK_GAP2
        job(t, lambda: self.reads(0, 1, 2, 3)); job(t + 1, lambda: self.reads(4, 5, 6, 7))
        for i in range(4):
            job(t + 2 + i, lambda i=i: self.stores(2*i, 2*i+1))
            job(t + 1 + i, lambda i=i: self.csum(2*i), e=14)
            job(t + 2 + i, lambda i=i: self.csum(2*i+1), e=0)
        job(t + 6, self.ext)
        job(t + 6 + PK_GAP2, self.pub)
        return t + 6 + PK_GAP2
def qkv_consts(vT, vRS, vR):
    return [f"v_cvt_pk_bf16_f32 v{vT}, v{vRS}, 0", f"v_lshlrev_b32 v{vT+1}, 16, v{vT}", f"v_sub_f32 v{vT+2}, v{vRS}, v{vT+1}",
            f"v_cvt_pk_bf16_f32 v{vT}, v{vT+1}, v{vT+2}", f"v_mov_b32 v{vT+1}, 0", f"v_mov_b32 v{vT+2}, 0", f"v_mov_b32 v{vT+3}, 0",
            f"v_cmp_gt_u32 vcc, 512, v{vL16}", f"v_mov_b32 v{vT+4}, 0x3f803f80", f"v_cndmask_b32 v{vT+4}, 0, v{vT+4}, vcc",
            f"v_mov_b32 v{vT+5}, 0", f"v_mov_b32 v{vT+6}, 0", f"v_mov_b32 v{vT+7}, 0",
            f"v_mul_f32 v{vRS+1}, {hex(f2u(0.25*LOG2E))}, v{vRS}",
            "v_bfe_u32 v12, v0, 4, 1", "v_lshlrev_b32 v12, 17, v12", "v_and_b32 v13, 15, v0", "v_lshlrev_b32 v13, 4, v13", "v_add_u32 v12, v12, v13",
            "v_bfe_u32 v13, v0, 5, 1", "v_lshlrev_b32 v13, 8, v13", "v_add_u32 v12, v12, v13",
            f"v_mfma_f32_32x32x16_bf16 {vr(vR,16)}, {vr(vT)}, {vr(vT+4)}, 0"]
def qk_tile(a, dst, sc, fl, p0):
    o = []
    sb, hs = (sB, KB) if dst == QF else (sCc, 128*KB)
    for half in range(2):
        p = p0 + 4*half
        for j in range(4):
            r = a + 8*half + 2*j
            o += [f"v_mul_f32 v{r}, v{r}, v{sc}", f"v_mul_f32 v{r+1}, v{r+1}, v{sc}", f"v_cvt_pk_bf16_f32 v{p+j}, v{r}, v{r+1}"]
        o += [f"s_add_u32 s{sT2}, s{sb}, {dst + half*hs}", f"buffer_store_dwordx4 {vr(p)}, v{vL16}, {srd(sWS)}, s{sT2} offen{fl}"]
    return o
def v_tile(a, L, vR, p0):
    o = [f"s_add_u32 s{sT2}, s{sCc}, {KVF(L) + KB}"]
    for u in range(2):
        p = p0 + 4*u
        for j in range(4):
            r = a + 8*u + 2*j; q = vR + 8*u + 2*j
            o += [f"v_mul_f32 v{r}, v{r}, v{q}", f"v_mul_f32 v{r+1}, v{r+1}, v{q+1}", f"v_cvt_pk_bf16_f32 v{p+j}, v{r}, v{r+1}"]
        o.append(f"buffer_store_dwordx4 {vr(p)}, v12, {srd(sWS)}, s{sT2} offen offset:{u*512} sc1")
    return o
def kv_flag(k, L, tkv):
    k(f"s_lshl_b32 s{sF}, s{sA}, 4\ns_lshr_b32 s{sT1}, s{sRB}, 2\ns_add_u32 s{sF}, s{sF}, s{sT1}\ns_lshl_b32 s{sF}, s{sF}, 7\ns_add_u32 s{sF}, s{sF}, {FKV(L)}")
    publish_wg(k, tkv)
def q_flag(k, L, tq):
    k(f"s_lshr_b32 s{sF}, s{sRB}, 3\ns_lshl_b32 s{sF}, s{sF}, 4\ns_add_u32 s{sF}, s{sF}, s{sA}\ns_lshl_b32 s{sF}, s{sF}, 3\ns_and_b32 s{sT1}, s{sRB}, 7\ns_add_u32 s{sF}, s{sF}, s{sT1}\ns_lshl_b32 s{sF}, s{sF}, 3\ns_add_u32 s{sF}, s{sF}, {FLOC(L-1,5)}")
    publish_local(k, tq, force_global=(L == 0))

WARM = True
LIN_AT = 99
LIN_U = True
Q0_ROT = True
Q0_MARKS = False
Q0_MARKJ = ()
Q0_SCHED = ((3, 4), (5,), (6,), (7,), (), (), (), ())
LATE_AT = 1
Q0_UP = 3
PK_AT = (5, 5, 6, 6, 6, 6, 6, 6)
def ph_qkv0(k, late):
    vX, vACC, vST, vEXT, vRS, vT, vR = 16, 144, 192, 8, 6, 224, 232
    vXA, vWA, vXR, vTR, vTW, vCS, vCW, vONE = 10, 12, 196, 200, 202, 204, 208, 220
    sXS, sWR, sXL, sWL = 60, 56, sD, sE
    rb_128(k)
    k(f"s_and_b32 s{sA}, s{sC}, 15")
    k(f"v_bfe_u32 v{vXA}, v0, 3, 3\nv_lshlrev_b32 v{vXA}, 10, v{vXA}\nv_and_b32 v13, 7, v0\nv_bfe_u32 v14, v0, 4, 2\nv_xor_b32 v13, v13, v14")
    k(f"v_lshlrev_b32 v13, 4, v13\nv_add_u32 v{vXA}, v{vXA}, v13\nv_xor_b32 v{vXA+1}, 64, v{vXA}")
    k(f"v_bfe_u32 v{vWA}, v0, 2, 4\nv_mul_u32_u24 v{vWA}, 3072, v{vWA}\nv_and_b32 v13, 3, v0\nv_lshlrev_b32 v13, 4, v13\nv_add_u32 v{vWA}, v{vWA}, v13")
    if DIAG_W: k(f"v_bfe_u32 v{vWA}, v0, 3, 3\nv_mul_u32_u24 v{vWA}, 6144, v{vWA}\nv_and_b32 v13, 7, v0\nv_lshlrev_b32 v13, 4, v13\nv_add_u32 v{vWA}, v{vWA}, v13\ns_and_b32 s{sA}, s{sA}, 14")
    k(f"s_lshl_b32 s{sX}, s{sRB}, 15")
    k(f"s_mul_i32 s{sX2}, s{sW}, 49152\ns_lshl_b32 s{sT0}, s{sA}, 6\ns_add_u32 s{sX2}, s{sX2}, s{sT0}")
    if DIAG_W: k(f"s_and_b32 s{sA}, s{sG}, 1\ns_lshl_b32 s{sA}, s{sA}, 3\ns_and_b32 s{sT0}, s{sC}, 7\ns_add_u32 s{sA}, s{sA}, s{sT0}")
    k(f"s_lshl_b32 s{sXL}, s{sW}, 14\ns_add_u32 s{sXL}, s{sXL}, {96*KB}\ns_mul_i32 s{sWL}, s{sW}, 3072")
    k("s_waitcnt lgkmcnt(0)")
    if Q0_MARKS: mark(k, 'karg')
    k(f"s_mov_b32 s{sWR}, s64\ns_and_b32 s{sWR+1}, s65, 0xffff\ns_mov_b32 s{sWR+2}, {512*3072}\ns_mov_b32 s{sWR+3}, 0x20000")
    k(f"s_and_b32 s{sXS+1}, s{sXS+1}, 0xffff\ns_mov_b32 s{sXS+2}, {2*MB}\ns_mov_b32 s{sXS+3}, 0x20000")
    ct = {}; cn = {j: 0 for j in range(8)}
    k(f"s_lshl_b32 s{sCc}, s{sC4}, 2\ns_lshr_b32 s{sT3}, s{sC}, {Q0_RSH}\ns_add_u32 s{sCc}, s{sCc}, s{sT3}\ns_add_u32 s{sCc}, s{sCc}, s{sG}")
    def rot(j):
        k(f"s_add_u32 s{sT3}, s{sCc}, {j}\ns_and_b32 s{sT3}, s{sT3}, {7 if Q0_ROT else 0}")
        if not Q0_ROT: k(f"s_mov_b32 s{sT3}, {j}")
        k(f"s_lshl_b32 s{sS0}, s{sT3}, 7\ns_add_u32 s{sS0}, s{sS0}, s{sX}")
        k(f"s_mul_i32 s{sS1}, s{sT3}, {4*49152}\ns_add_u32 s{sS1}, s{sS1}, s{sX2}")
    def ldW(j, t):
        k(f"s_add_u32 m0, s{sWL}, {(12*j + t)*KB}\ns_add_u32 s{sT2}, s{sS1}, {((t+1) % 3)*1024}")
        ct[j] = k.vm(f"buffer_load_dwordx4 v{vWA}, {srd(sWR)}, s{sT2} offen lds"); cn[j] += 1
    def ldX(j, i):
        if i == 0: rot(j)
        k(f"s_add_u32 m0, s{sXL}, {(j & 3)*4*KB + i*KB}\ns_add_u32 s{sT2}, s{sS0}, {i*8192}")
        ct[j] = k.vm(f"buffer_load_dwordx4 v{vXA + (i & 1)}, {srd(sXS)}, s{sT2} offen lds"); cn[j] += 1
    def chunk_loads(j):
        return [lambda i=i: ldX(j, i) for i in range(4)] + [lambda t=t: ldW(j, t) for t in range(3)]
    for f in chunk_loads(0): f()
    if Q0_MARKS: mark(k, 'up0')
    late(k)
    pack_decode(k)
    k(f"s_cmp_eq_u32 s{sW}, 0\ns_cselect_b64 s[90:91], s[68:69], s[70:71]")
    k(f"s_cmp_eq_u32 s{sW}, 2\ns_cselect_b64 s[90:91], s[72:73], s[90:91]")
    k(f"s_cmp_eq_u32 s{sW}, 3\ns_cselect_b64 s[90:91], s[66:67], s[90:91]\ns_cselect_b32 s{sT0}, 16, 56")
    k(f"s_mul_i32 s{sT1}, s{sT0}, s{sU}\ns_sub_u32 s{sT0}, s{sT0}, 1")
    k(f"v_and_b32 v254, 63, v0\nv_min_u32 v254, s{sT0}, v254\nv_add_u32 v254, s{sT1}, v254\nv_lshlrev_b32 v254, 7, v254")
    pk = G.pk = Pack(k)
    k(f"s_and_b32 s{sT0}, s{sC}, 7\ns_and_b32 s{sT1}, s{sC}, 15")
    k("v_and_b32 v13, 15, v0\nv_min_u32 v14, 13, v13")
    k(f"s_lshr_b32 s{sT2}, s{sT0}, 1\ns_add_u32 s{sT2}, s{sT2}, 176\nv_lshl_add_u32 v252, v14, 2, s{sT2}")
    k(f"s_mul_i32 s{sT2}, s{sT1}, 7\ns_add_u32 s{sT3}, s{sT2}, 6\ns_lshr_b32 s{sT2}, s{sT2}, 2\ns_lshr_b32 s{sT3}, s{sT3}, 2")
    k(f"v_lshrrev_b32 v14, 2, v13\nv_add_u32 v14, s{sT2}, v14\nv_min_u32 v14, s{sT3}, v14\nv_and_b32 v15, 3, v13\nv_mul_u32_u24 v15, 28, v15")
    k("v_add3_u32 v14, v14, v15, 48")
    k("v_and_b32 v15, 16, v0\nv_cmp_ne_u32 vcc, 0, v15\nv_cndmask_b32 v252, v252, v14, vcc")
    k(f"s_add_u32 s{sT0}, s{sT0}, 160\nv_and_b32 v14, 1, v13\nv_lshl_add_u32 v251, v14, 3, s{sT0}")
    k(f"s_lshr_b32 s{sT1}, s{sT1}, 1\nv_mul_u32_u24 v14, 24, v14\nv_lshrrev_b32 v15, 1, v13\nv_min_u32 v15, 2, v15\nv_lshlrev_b32 v15, 3, v15")
    k(f"v_add3_u32 v14, v14, v15, s{sT1}")
    k("v_cndmask_b32 v251, v251, v14, vcc")
    k(f"v_cmp_gt_u32 vcc, 512, v{vL16}\nv_cndmask_b32 v252, v251, v252, vcc\nv_lshlrev_b32 v252, 7, v252\nv_accvgpr_write_b32 a213, v252")
    if WARM:
        k("s_getpc_b64 s[88:89]")
        k.label("L_pcw")
        k(f"s_lshl_b32 s{sT0}, s{sC}, 1\ns_add_u32 s{sT0}, s{sT0}, s{sW}\ns_and_b32 s{sT0}, s{sT0}, 63\ns_lshl_b32 s{sT0}, s{sT0}, 10\ns_min_u32 s{sT0}, s{sT0}, L_end-L_pcw-1024")
        k(f"v_add_u32 v245, s{sT0}, v{vL16}")
        k(f"v_min_u32 v244, {(WS_PAGES-1)*16}, v{vL16}\nv_lshlrev_b32 v244, 17, v244")
        k(f"s_cmp_eq_u32 s{sW}, 1\ns_cselect_b64 s[88:89], s[{sAUX}:{sAUX+1}], s[88:89]")
        k(f"s_cmp_eq_u32 s{sW}, 0\ns_cselect_b64 s[88:89], s[{sWS}:{sWS+1}], s[88:89]\ns_cselect_b64 vcc, -1, 0")
        k("v_cndmask_b32 v245, v245, v244, vcc")
    if PK_Q0: pk.issue(*range(8))
    k(f"v_and_b32 v13, 31, v0\nv_bfe_u32 v14, v0, 1, 3\nv_bfe_u32 v15, v0, 5, 1\nv_xor_b32 v14, v14, v15\nv_lshlrev_b32 v14, 4, v14\nv_lshl_add_u32 v13, v13, 7, v14")
    for e in range(4):
        k(f"v_xor_b32 v{vXR+e}, {e*32}, v13\nv_add_u32 v{vXR+e}, s{sXL}, v{vXR+e}")
    tr_addr(k, vTR, 13)
    k(f"v_add_u32 v{vTR+1}, {48*KB}, v{vTR}\nv_add_u32 v{vTW}, s{sWL}, v{vTR}\nv_add_u32 v{vTW+1}, {48*KB}, v{vTW}")
    k(f"v_mov_b32 v{vONE}, 0x3f803f80\nv_add_u32 v255, s84, v{vTR}\nv_accvgpr_write_b32 a212, v255")
    for r in range(192, 196): k(f"v_accvgpr_write_b32 a{r}, v{vONE}")
    for r in list(range(vST, vST+4)) + list(range(vCS, vCS+3)): k(f"v_mov_b32 v{r}, 0")
    def reads(j):
        o = []
        for e in range(4):
            o.append(f"ds_read_b128 {vr(vX + 16*j + 4*e)}, v{vXR+e} offset:{(j & 3)*4*KB}")
        for t in range(3):
            off = (12*(j & 3) + t)*KB
            o.append(f"ds_read_b64_tr_b16 {vr(vCW+4*t,2)}, v{vTW + (j >> 2)} offset:{off}")
            o.append(f"ds_read_b64_tr_b16 {vr(vCW+4*t+2,2)}, v{vTW + (j >> 2)} offset:{off+256}")
        for b in range(12):
            off = (12*(j & 3) + b)*KB; r = 48*(j & 1) + 4*b
            o.append(f"ds_read_b64_tr_b16 {ar(r,2)}, v{vTR + (j >> 2)} offset:{off}")
            o.append(f"ds_read_b64_tr_b16 {ar(r+2,2)}, v{vTR + (j >> 2)} offset:{off+256}")
        return o
    def dots(j):
        for i in range(16):
            r = vX + 16*j + i
            k(f"v_dot2c_f32_bf16 v{vST + 2*(i & 1)}, v{vONE}, v{r}\nv_dot2c_f32_bf16 v{vST + 1 + 2*(i & 1)}, v{r}, v{r}")
        for i in range(4):
            for t in range(3): k(f"v_dot2c_f32_bf16 v{vCS+t}, v{vONE}, v{vCW+4*t+i}")
    def xid():
        k(f"s_add_u32 s{sTAG}, s{sTAG}, 0x7f4a7c15\ns_addc_u32 s{sTAG+1}, s{sTAG+1}, 0x9e3779b9")
        k("v_mov_b32 v13, 0")
        k("s_mov_b64 exec, 1")
        if FLAG_TOUCH:
            k(f"s_lshl_b32 s{sF}, s{sA}, 4\ns_lshr_b32 s{sT1}, s{sRB}, 2\ns_add_u32 s{sF}, s{sF}, s{sT1}\ns_lshl_b32 s{sF}, s{sF}, 7\ns_add_u32 s{sF}, s{sF}, {FKV(0)}")
            k.vm(f"buffer_load_dword v5, v13, {srd(sWS)}, s{sF} offen sc1")
            k(f"s_lshl_b32 s{sF}, s{sU}, 7\ns_add_u32 s{sF}, s{sF}, {FPK}")
            k.vm(f"buffer_load_dword v5, v13, {srd(sWS)}, s{sF} offen sc1")
        k("s_mov_b64 exec, -1")
    def lin_touch():
        k.vm("global_load_dword v253, v254, s[90:91]")
    side = []
    for x in att_setup(0): k(x)
    if Q0_MARKS: mark(k, 'alu')
    if WARM and WARM_AT == 0: k.vm(f"global_load_dword v255, v245, s[88:89]")
    for j in range(1, Q0_UP):
        for f in chunk_loads(j): f()
    if WARM and WARM_AT == 1: k.vm(f"global_load_dword v255, v245, s[88:89]")
    if Q0_MARKS: mark(k, 'iss')
    k.wait(vm=ct[0])
    if Q0_MARKS: mark(k, 'w0')
    k("s_barrier")
    mark(k, 'd0')
    rl = reads(0)
    for x in rl[:10]: t10 = k.lg(x)
    for x in rl[10:]: k.lg(x)
    k.wait(lg=t10)
    dots(0)
    for j in range(8):
        for c_ in Q0_SCHED[j]:
            assert c_ - 4 <= j
            side += chunk_loads(c_)
        if j == 1: side.append(xid)
        if WARM and WARM_AT == j + 2: side.append(lambda: k.vm(f"global_load_dword v255, v245, s[88:89]"))
        if PK_EARLY: side += [lambda i=i: pk.issue(i) for i in range(8) if PK_AT[i] == j]
        if j == LIN_AT and not PK_Q0: side.append(lin_touch)
        if PK_Q0:
            assert all(c_ < 5 or j > PK_RD for c_ in Q0_SCHED[j])
            if j == PK_RD: side += [lambda i=i: pk.reads(2*i, 2*i+1) for i in range(4)]
            if j == PK_ST: side += [lambda i=i: (pk.stores(i), pk.csum(i)) for i in range(4)]
            if j == PK_ST + 1: side += [lambda i=i: (pk.stores(i), pk.csum(i)) for i in range(4, 8)]
            if j == PK_ST + 2: side.append(pk.ext)
        k.wait_all(vm=False)
        rl = []
        if j < 7:
            assert cn[j+1] == 7
            k.wait(vm=ct[j+1]); k("s_barrier")
            if j in Q0_MARKJ: mark(k, f'c{j+1}')
            rl = reads(j + 1)
        t10 = None; nr = 0
        if j == 7:
            tail = f"s_lshr_b32 s{sT0}, s{sW}, 1\ns_lshl_b32 s{sT0}, s{sT0}, 9\ns_and_b32 s{sT1}, s{sW}, 1\ns_lshl_b32 s{sT1}, s{sT1}, 3\ns_add_u32 s{sT0}, s{sT0}, s{sT1}".split('\n')
            tail += [f"v_and_b32 v13, 0x1f0, v{vL16}", f"v_add_u32 v13, s{sT0}, v13"]
            for t in range(3): tail += ext_pair(vCS+t, vCW+2*t, 14) + [f"ds_write_b64 v13, {vr(vCW+2*t,2)} offset:{t*KB}"]
            fin = fin_stats(vST, vEXT, vRS)[NTREE:] + qkv_consts(vT, vRS, vR)
            tail += [f"v_add_f32 v{vST}, v{vST}, v{vST+2}", f"v_add_f32 v{vST+1}, v{vST+1}, v{vST+3}"] + fin[:18]
            tail += ["s_waitcnt lgkmcnt(0)", "s_barrier"] + [f"ds_read_b128 {vr(vCW+4*t)}, v{vL16} offset:{t*KB}" for t in range(3)] + fin[18:]
            tail += f"s_lshl_b32 s{sCc}, s{sA}, 18\ns_lshl_b32 s{sT1}, s{sRB}, 11\ns_add_u32 s{sCc}, s{sCc}, s{sT1}".split('\n')
            tail += f"s_mul_i32 s{sB}, s{sRB}, {112*KB}\ns_lshl_b32 s{sT1}, s{sA}, 11\ns_add_u32 s{sB}, s{sB}, s{sT1}".split('\n')
            G.ex = 196
            tail += ex_addr(G.ex)
            assert not side
            n_ = -(-len(tail) // 12)
            side = [lambda c=tail[i:i+n_]: [k(x) for x in c] for i in range(0, len(tail), n_)]
        for b in range(12):
            ks = 4*j + b // 3; t = b % 3
            acc = vr(vACC + 16*t, 16); w = ar(48*(j & 1) + 4*b); x = vr(vX + 4*ks)
            A, B = (x, w) if t == 1 else (w, x)
            k(f"v_mfma_f32_32x32x16_bf16 {acc}, {A}, {B}, {'0' if ks == 0 else acc}")
            if ks == 0 and t == 0: mark(k, 'm0')
            for _ in range(3):
                if rl:
                    t_ = k.lg(rl.pop(0)); nr += 1
                    if nr == 10: t10 = t_
            if side: side.pop(0)()
            if len(side) > 11 - b: side.pop(0)()
        if j < 7:
            assert not rl
            k.wait(lg=t10)
            dots(j + 1)
    while side: side.pop(0)()
    mark(k, 'loop')
    k.wait_all(vm=False)
    for t in range(3):
        c = vCW + 4*t
        acc = vr(vACC + 16*t, 16)
        A, B = (vr(vEXT), vr(c)) if t == 1 else (vr(c), vr(vEXT))
        k(f"v_mfma_f32_32x32x16_bf16 {acc}, {A}, {B}, {acc}")
    t_ = None
    for x in qk_tile(vACC, KVF(0), vRS, " sc1", 204) + v_tile(vACC+16, 0, vR, 212) + ex_kv(204, 212):
        if x.startswith('buffer'): t_ = k.vm(x)
        elif x.startswith('ds_'): k.lg(x)
        else: k(x)
    q_out(k, vACC + 32, vRS + 1, 232, vT)
    mark(k, 'st')
    return t_, None

def ph_qkv0k(k, late):
    vX, vACC, vST, vEXT, vRS, vT, vR = 16, 144, 192, 8, 6, 224, 232
    vXA, vWA, vXR, vTR, vTW, vCS, vCW, vONE = 10, 12, 196, 200, 202, 204, 208, 220
    sXS, sWR, sXL, sWL = 60, 56, sD, sE
    rb_128(k)
    k(f"s_and_b32 s{sA}, s{sC}, 15")
    k(f"v_bfe_u32 v{vXA}, v0, 3, 3\nv_lshlrev_b32 v{vXA}, 10, v{vXA}\nv_and_b32 v13, 7, v0\nv_bfe_u32 v14, v0, 4, 2\nv_xor_b32 v13, v13, v14")
    k(f"v_lshlrev_b32 v13, 4, v13\nv_add_u32 v{vXA}, v{vXA}, v13\nv_xor_b32 v{vXA+1}, 64, v{vXA}")
    k(f"v_bfe_u32 v{vWA}, v0, 2, 4\nv_mul_u32_u24 v{vWA}, 3072, v{vWA}\nv_and_b32 v13, 3, v0\nv_lshlrev_b32 v13, 4, v13\nv_add_u32 v{vWA}, v{vWA}, v13")
    if DIAG_W: k(f"v_bfe_u32 v{vWA}, v0, 3, 3\nv_mul_u32_u24 v{vWA}, 6144, v{vWA}\nv_and_b32 v13, 7, v0\nv_lshlrev_b32 v13, 4, v13\nv_add_u32 v{vWA}, v{vWA}, v13\ns_and_b32 s{sA}, s{sA}, 14")
    k(f"s_lshl_b32 s{sX}, s{sRB}, 15")
    k(f"s_mul_i32 s{sX2}, s{sW}, 49152\ns_lshl_b32 s{sT0}, s{sA}, 6\ns_add_u32 s{sX2}, s{sX2}, s{sT0}")
    if DIAG_W: k(f"s_and_b32 s{sA}, s{sG}, 1\ns_lshl_b32 s{sA}, s{sA}, 3\ns_and_b32 s{sT0}, s{sC}, 7\ns_add_u32 s{sA}, s{sA}, s{sT0}")
    k(f"s_lshl_b32 s{sXL}, s{sW}, 14\ns_add_u32 s{sXL}, s{sXL}, {96*KB}\ns_lshl_b32 s{sWL}, s{sW}, 11")
    k("s_waitcnt lgkmcnt(0)")
    if Q0_MARKS: mark(k, 'karg')
    k(f"s_mov_b32 s{sWR}, s64\ns_and_b32 s{sWR+1}, s65, 0xffff\ns_mov_b32 s{sWR+2}, {512*3072}\ns_mov_b32 s{sWR+3}, 0x20000")
    k(f"s_and_b32 s{sXS+1}, s{sXS+1}, 0xffff\ns_mov_b32 s{sXS+2}, {2*MB}\ns_mov_b32 s{sXS+3}, 0x20000")
    ct = {}; cn = {j: 0 for j in range(8)}
    k(f"s_lshl_b32 s{sCc}, s{sC4}, 2\ns_lshr_b32 s{sT3}, s{sC}, {Q0_RSH}\ns_add_u32 s{sCc}, s{sCc}, s{sT3}\ns_add_u32 s{sCc}, s{sCc}, s{sG}")
    def rot(j):
        k(f"s_add_u32 s{sT3}, s{sCc}, {j}\ns_and_b32 s{sT3}, s{sT3}, {7 if Q0_ROT else 0}")
        if not Q0_ROT: k(f"s_mov_b32 s{sT3}, {j}")
        k(f"s_lshl_b32 s{sS0}, s{sT3}, 7\ns_add_u32 s{sS0}, s{sS0}, s{sX}")
        k(f"s_mul_i32 s{sS1}, s{sT3}, {4*49152}\ns_add_u32 s{sS1}, s{sS1}, s{sX2}")
    def ldW(j, t):
        k(f"s_add_u32 m0, s{sWL}, {(8*j + t)*KB}\ns_add_u32 s{sT2}, s{sS1}, {(t+1)*1024}")
        ct[j] = k.vm(f"buffer_load_dwordx4 v{vWA}, {srd(sWR)}, s{sT2} offen lds"); cn[j] += 1
    def ldQ(j):
        k(f"s_add_u32 s{sT3}, s{sCc}, {j}\ns_and_b32 s{sT3}, s{sT3}, 7\ns_mul_i32 s{sT3}, s{sT3}, {4*49152}\ns_add_u32 m0, s{sW1K}, {(64 + 4*j)*KB}\ns_add_u32 s{sT2}, s{sT3}, s{sX2}")
        ct['q'] = k.vm(f"buffer_load_dwordx4 v{vWA}, {srd(sWR)}, s{sT2} offen lds")
    def ldX(j, i):
        if i == 0: rot(j)
        k(f"s_add_u32 m0, s{sXL}, {(j & 3)*4*KB + i*KB}\ns_add_u32 s{sT2}, s{sS0}, {i*8192}")
        ct[j] = k.vm(f"buffer_load_dwordx4 v{vXA + (i & 1)}, {srd(sXS)}, s{sT2} offen lds"); cn[j] += 1
    def chunk_loads(j):
        return [lambda i=i: ldX(j, i) for i in range(4)] + [lambda t=t: ldW(j, t) for t in range(2)]
    for f in chunk_loads(0): f()
    if Q0_MARKS: mark(k, 'up0')
    late(k)
    pack_decode(k)
    k(f"s_cmp_eq_u32 s{sW}, 0\ns_cselect_b64 s[90:91], s[68:69], s[70:71]")
    k(f"s_cmp_eq_u32 s{sW}, 2\ns_cselect_b64 s[90:91], s[72:73], s[90:91]")
    k(f"s_cmp_eq_u32 s{sW}, 3\ns_cselect_b64 s[90:91], s[66:67], s[90:91]\ns_cselect_b32 s{sT0}, 16, 56")
    k(f"s_mul_i32 s{sT1}, s{sT0}, s{sU}\ns_sub_u32 s{sT0}, s{sT0}, 1")
    k(f"v_and_b32 v254, 63, v0\nv_min_u32 v254, s{sT0}, v254\nv_add_u32 v254, s{sT1}, v254\nv_lshlrev_b32 v254, 7, v254")
    pk = G.pk = Pack(k)
    k(f"s_and_b32 s{sT0}, s{sC}, 7\ns_and_b32 s{sT1}, s{sC}, 15")
    k("v_and_b32 v13, 15, v0\nv_min_u32 v14, 13, v13")
    k(f"s_lshr_b32 s{sT2}, s{sT0}, 1\ns_add_u32 s{sT2}, s{sT2}, 176\nv_lshl_add_u32 v252, v14, 2, s{sT2}")
    k(f"s_mul_i32 s{sT2}, s{sT1}, 7\ns_add_u32 s{sT3}, s{sT2}, 6\ns_lshr_b32 s{sT2}, s{sT2}, 2\ns_lshr_b32 s{sT3}, s{sT3}, 2")
    k(f"v_lshrrev_b32 v14, 2, v13\nv_add_u32 v14, s{sT2}, v14\nv_min_u32 v14, s{sT3}, v14\nv_and_b32 v15, 3, v13\nv_mul_u32_u24 v15, 28, v15")
    k("v_add3_u32 v14, v14, v15, 48")
    k("v_and_b32 v15, 16, v0\nv_cmp_ne_u32 vcc, 0, v15\nv_cndmask_b32 v252, v252, v14, vcc")
    k(f"s_add_u32 s{sT0}, s{sT0}, 160\nv_and_b32 v14, 1, v13\nv_lshl_add_u32 v251, v14, 3, s{sT0}")
    k(f"s_lshr_b32 s{sT1}, s{sT1}, 1\nv_mul_u32_u24 v14, 24, v14\nv_lshrrev_b32 v15, 1, v13\nv_min_u32 v15, 2, v15\nv_lshlrev_b32 v15, 3, v15")
    k(f"v_add3_u32 v14, v14, v15, s{sT1}")
    k("v_cndmask_b32 v251, v251, v14, vcc")
    k(f"v_cmp_gt_u32 vcc, 512, v{vL16}\nv_cndmask_b32 v252, v251, v252, vcc\nv_lshlrev_b32 v252, 7, v252\nv_accvgpr_write_b32 a213, v252")
    if WARM:
        k("s_getpc_b64 s[88:89]")
        k.label("L_pcw")
        k(f"s_lshl_b32 s{sT0}, s{sC}, 1\ns_add_u32 s{sT0}, s{sT0}, s{sW}\ns_and_b32 s{sT0}, s{sT0}, 63\ns_lshl_b32 s{sT0}, s{sT0}, 10\ns_min_u32 s{sT0}, s{sT0}, L_end-L_pcw-1024")
        k(f"v_add_u32 v245, s{sT0}, v{vL16}")
        k(f"v_min_u32 v244, {(WS_PAGES-1)*16}, v{vL16}\nv_lshlrev_b32 v244, 17, v244")
        k(f"s_cmp_eq_u32 s{sW}, 1\ns_cselect_b64 s[88:89], s[{sAUX}:{sAUX+1}], s[88:89]")
        k(f"s_cmp_eq_u32 s{sW}, 0\ns_cselect_b64 s[88:89], s[{sWS}:{sWS+1}], s[88:89]\ns_cselect_b64 vcc, -1, 0")
        k("v_cndmask_b32 v245, v245, v244, vcc")
    if PK_Q0: pk.issue(*range(8))
    aSEL, aCS = 96, 100
    k(f"v_and_b32 v13, 31, v0\nv_bfe_u32 v14, v0, 1, 3\nv_bfe_u32 v15, v0, 5, 1\nv_xor_b32 v14, v14, v15\nv_lshlrev_b32 v14, 4, v14\nv_lshl_add_u32 v13, v13, 7, v14")
    vTQ = 200; vTR = 204
    tr_addr(k, 255, 14)
    for e in range(4):
        k(f"s_add_u32 s{sT0}, s{sW}, {e}\ns_and_b32 s{sT0}, s{sT0}, 3\ns_lshl_b32 s{sT1}, s{sT0}, 5\ns_lshl_b32 s{sT2}, s{sT0}, 11\ns_lshl_b32 s{sT0}, s{sT0}, 10\ns_add_u32 s{sT0}, s{sT0}, {64*KB}")
        k(f"v_xor_b32 v{vXR+e}, s{sT1}, v13\nv_add_u32 v{vXR+e}, s{sXL}, v{vXR+e}\nv_add_u32 v{vTR+e}, s{sT2}, v255\nv_add_u32 v{vTQ+e}, s{sT0}, v255")
    k(f"v_mov_b32 v{vONE}, 0x3f803f80\nv_add_u32 v255, s84, v255\nv_accvgpr_write_b32 a212, v255")
    XS = 40 * KB
    k(f"s_lshr_b32 s{sT0}, s{sW}, 1\ns_lshl_b32 s{sT0}, s{sT0}, 9\ns_and_b32 s{sT1}, s{sW}, 1\ns_lshl_b32 s{sT1}, s{sT1}, 3\ns_add_u32 s{sT0}, s{sT0}, s{sT1}")
    k(f"v_add_u32 v221, s{sT0}, v{vL16}")
    for r in range(192, 196): k(f"v_accvgpr_write_b32 a{r}, v{vONE}")
    k(f"v_and_b32 v13, 15, v0\nv_bfe_u32 v14, v0, 4, 1\nv_cmp_eq_u32 vcc, v13, v14\nv_cndmask_b32 v13, 0, v{vONE}, vcc")
    for r in range(4): k(f"v_accvgpr_write_b32 a{aSEL+r}, v13")
    for r in range(vST, vST+4): k(f"v_mov_b32 v{r}, 0")
    def reads(j):
        o = [f"ds_read_b128 {vr(vX + 16*j + 4*e)}, v{vXR+e} offset:{(j & 3)*4*KB}" for e in range(4)]
        for b in range(8):
            off = (8*j + (b & 1))*KB; r = 32*(j & 1) + 4*b
            o.append(f"ds_read_b64_tr_b16 {ar(r,2)}, v{vTR + (b >> 1)} offset:{off}")
            o.append(f"ds_read_b64_tr_b16 {ar(r+2,2)}, v{vTR + (b >> 1)} offset:{off+256}")
        return o
    def dots(j):
        for i in range(16):
            r = vX + 16*j + i
            k(f"v_dot2c_f32_bf16 v{vST + 2*(i & 1)}, v{vONE}, v{r}\nv_dot2c_f32_bf16 v{vST + 1 + 2*(i & 1)}, v{r}, v{r}")
    def csum(t, w, first):
        c = ar(aCS + 4*t)
        k(f"v_mfma_f32_16x16x32_bf16 {c}, {ar(aSEL)}, {w}, {'0' if first else c}")
    def extp(t, d):
        return [f"v_accvgpr_read_b32 v{d+2}, a{aCS+4*t}", f"v_accvgpr_read_b32 v{d+3}, a{aCS+4*t+1}", f"v_permlane16_swap_b32 v{d+2}, v{d+3}",
                f"v_cvt_pk_bf16_f32 v{d+1}, v{d+2}, 0", f"v_lshlrev_b32 v{d+3}, 16, v{d+1}",
                f"v_sub_f32 v{d+2}, v{d+2}, v{d+3}", f"v_cvt_pk_bf16_f32 v{d}, v{d+3}, v{d+2}",
                f"s_mov_b32 exec_hi, 0\nds_write_b64 v221, {vr(d,2)} offset:{XS + t*KB}\ns_mov_b64 exec, -1"]
    side = []
    for x in att_setup(0): k(x)
    for j in range(1, Q0_UP):
        for f in chunk_loads(j): f()
    if WARM: k.vm(f"global_load_dword v255, v245, s[88:89]")
    k.wait(vm=ct[0])
    k("s_barrier")
    mark(k, 'd0')
    rl = reads(0)
    for x in rl[:4]: t4 = k.lg(x)
    for x in rl[4:]: k.lg(x)
    k.wait(lg=t4)
    dots(0)
    QO = [4*c for c in range(8)] + [4*c + e for c in range(8) for e in (1, 2, 3)]
    def qread(n_):
        r = 64 + 4*(n_ % 8); ks = QO[n_]
        k.lg(f"ds_read_b64_tr_b16 {ar(r,2)}, v{vTQ + (ks & 3)} offset:{(ks >> 2)*4*KB}")
        return k.lg(f"ds_read_b64_tr_b16 {ar(r+2,2)}, v{vTQ + (ks & 3)} offset:{(ks >> 2)*4*KB+256}")
    qt = {}
    for j in range(8):
        for c_ in Q0_SCHED[j]:
            assert c_ - 4 <= j
            side += chunk_loads(c_)
        if j == 1: side.append(lambda: k(f"s_add_u32 s{sTAG}, s{sTAG}, 0x7f4a7c15\ns_addc_u32 s{sTAG+1}, s{sTAG+1}, 0x9e3779b9"))
        side += [lambda c=c: ldQ(c) for c in range(8) if Q0K_Q[c] == j]
        assert min(PK_AT) >= 3
        side += [lambda i=i: pk.issue(i) for i in range(8) if PK_AT[i] == j]
        k.wait_all(vm=False)
        rl = []
        if j < 7:
            assert cn[j+1] == 6
            k.wait(vm=ct[j+1]); k("s_barrier")
            if j in Q0_MARKJ: mark(k, f'c{j+1}')
            rl = reads(j + 1)
        else:
            assert not side
            k.wait(vm=ct['q']); k("s_barrier")
            G.ex = 212
            for t in range(2): csum(t, ar(32 + 4*t), False)
            fin = fin_stats(vST, vEXT, vRS)[NTREE:] + qkv_consts(vT, vRS, vR)
            tail = [f"v_add_f32 v{vST}, v{vST}, v{vST+2}", f"v_add_f32 v{vST+1}, v{vST+1}, v{vST+3}"] + fin[:6] + extp(0, 204) + extp(1, 208) + fin[6:24]
            tail += ["s_waitcnt lgkmcnt(0)", "s_barrier", f"ds_read_b128 {vr(204)}, v{vL16} offset:{XS}", f"ds_read_b128 {vr(208)}, v{vL16} offset:{XS+KB}"] + fin[24:]
            tail += f"s_lshl_b32 s{sCc}, s{sA}, 18\ns_lshl_b32 s{sT1}, s{sRB}, 11\ns_add_u32 s{sCc}, s{sCc}, s{sT1}".split('\n')
            n_ = -(-len(tail) // 8)
            side = [lambda c=tail[i:i+n_]: [k(x) for x in c] for i in range(0, len(tail), n_)]
        t4 = None; nr = 0
        for b in range(8):
            ks = 4*j + b // 2; t = b % 2
            acc = vr(vACC + 16*t, 16); w = ar(32*(j & 1) + 4*b); x = vr(vX + 4*ks)
            A, B = (x, w) if t == 1 else (w, x)
            k(f"v_mfma_f32_32x32x16_bf16 {acc}, {A}, {B}, {'0' if ks == 0 else acc}")
            if ks == 0 and t == 0: mark(k, 'm0')
            for _ in range(3):
                if rl:
                    t_ = k.lg(rl.pop(0)); nr += 1
                    if nr == 4: t4 = t_
            if j < 7 and b < 2: csum(t, w, ks == 0)
            if side: side.pop(0)()
            if len(side) > 7 - b: side.pop(0)()
        while side: side.pop(0)()
        if j < 7:
            assert not rl
            k.wait(lg=t4)
            dots(j + 1)
    mark(k, 'loop')
    E = 204
    for n_ in range(4): qt[n_] = qread(n_)
    k.wait(lg=qt[0] - 2)
    k("s_waitcnt lgkmcnt(8)")
    work = [f"v_mfma_f32_32x32x16_bf16 {vr(vACC,16)}, {vr(E)}, {vr(vEXT)}, {vr(vACC,16)}",
             f"v_mfma_f32_32x32x16_bf16 {vr(vACC+16,16)}, {vr(vEXT)}, {vr(E+4)}, {vr(vACC+16,16)}"] + ex_addr(G.ex)
    work += qk_tile(vACC, KVF(0), vRS, " sc1", 192) + v_tile(vACC+16, 0, vR, E) + ["#kv"] + ex_kv(192, E)
    work += [f"#pk{i}" for i in range(8) if PK_AT[i] == 8]
    st = {}
    def put(x):
        if x == '#kv': st['kv'] = st['t']
        elif x.startswith('#pk'): pk.issue(int(x[3:]))
        elif x.startswith('buffer'): st['t'] = k.vm(x)
        elif x.startswith('ds_'): k.lg(x)
        else: k(x)
    for _ in range(Q0K_LEAD): put(work.pop(0))
    acc = vr(vACC + 32, 16)
    for ks in range(32):
        w = ar(64 + 4*(ks % 8))
        k.wait(lg=qt[ks])
        k(f"v_mfma_f32_32x32x16_bf16 {acc}, {w}, {vr(vX + 4*QO[ks])}, {'0' if ks == 0 else acc}")
        if ks + 4 < 32: qt[ks + 4] = qread(ks + 4)
        if ks < 8: csum(2, w, ks == 0)
        if ks == 9: work += extp(2, 240)
        for _ in range(Q0K_EPI):
            if work: put(work.pop(0))
        if ks in Q0_MARKQ: mark(k, f'q{ks}')
        if ks == Q0K_FLAG:
            assert not work
            k.wait_all(vm=False)
            kv_flag(k, 0, st['kv'])
            te = k.lg(f"ds_read_b128 {vr(240)}, v{vL16} offset:{XS+2*KB}")
    k.wait(lg=te)
    k(f"v_mfma_f32_32x32x16_bf16 {acc}, {vr(240)}, {vr(vEXT)}, {acc}")
    q_out(k, vACC + 32, vRS + 1, 232, vT)
    mark(k, 'st')
    return st['kv'], None

def ph_qkv0g(k, late):
    vX, vACC, vST, vEXT, vRS, vT, vR = 16, 144, 192, 8, 6, 224, 232
    vXA, vWA, vXR, vTR, vCW, vG = 10, 12, 224, 228, 192, 192
    aCS = 96
    sXS, sWR, sXL, sWL = 60, 56, sD, sE
    rb_128(k)
    k(f"s_and_b32 s{sA}, s{sC}, 15")
    k(f"v_bfe_u32 v{vXA}, v0, 3, 3\nv_lshlrev_b32 v{vXA}, 10, v{vXA}\nv_and_b32 v13, 7, v0\nv_bfe_u32 v14, v0, 4, 2\nv_xor_b32 v13, v13, v14")
    k(f"v_lshlrev_b32 v13, 4, v13\nv_add_u32 v{vXA}, v{vXA}, v13\nv_xor_b32 v{vXA+1}, 64, v{vXA}")
    k(f"v_bfe_u32 v{vWA}, v0, 2, 4\nv_mul_u32_u24 v{vWA}, 3072, v{vWA}\nv_and_b32 v13, 3, v0\nv_lshlrev_b32 v13, 4, v13\nv_add_u32 v{vWA}, v{vWA}, v13")
    if DIAG_W: k(f"v_bfe_u32 v{vWA}, v0, 3, 3\nv_mul_u32_u24 v{vWA}, 6144, v{vWA}\nv_and_b32 v13, 7, v0\nv_lshlrev_b32 v13, 4, v13\nv_add_u32 v{vWA}, v{vWA}, v13\ns_and_b32 s{sA}, s{sA}, 14")
    k(f"s_lshl_b32 s{sX}, s{sRB}, 15")
    k(f"s_mul_i32 s{sX2}, s{sW}, 49152\ns_lshl_b32 s{sT0}, s{sA}, 6\ns_add_u32 s{sX2}, s{sX2}, s{sT0}")
    if DIAG_W: k(f"s_and_b32 s{sA}, s{sG}, 1\ns_lshl_b32 s{sA}, s{sA}, 3\ns_and_b32 s{sT0}, s{sC}, 7\ns_add_u32 s{sA}, s{sA}, s{sT0}")
    k(f"s_lshl_b32 s{sXL}, s{sW}, 14\ns_add_u32 s{sXL}, s{sXL}, {96*KB}\ns_mul_i32 s{sWL}, s{sW}, 3072")
    k("s_waitcnt lgkmcnt(0)")
    if Q0_MARKS: mark(k, 'karg')
    k(f"s_mov_b32 s{sWR}, s64\ns_and_b32 s{sWR+1}, s65, 0xffff\ns_mov_b32 s{sWR+2}, {512*3072}\ns_mov_b32 s{sWR+3}, 0x20000")
    k(f"s_and_b32 s{sXS+1}, s{sXS+1}, 0xffff\ns_mov_b32 s{sXS+2}, {2*MB}\ns_mov_b32 s{sXS+3}, 0x20000")
    ct = {}; cn = {j: 0 for j in range(8)}
    k(f"s_lshl_b32 s{sCc}, s{sC4}, 2\ns_lshr_b32 s{sT3}, s{sC}, {Q0_RSH}\ns_add_u32 s{sCc}, s{sCc}, s{sT3}\ns_add_u32 s{sCc}, s{sCc}, s{sG}")
    def rot(j):
        k(f"s_add_u32 s{sT3}, s{sCc}, {j}\ns_and_b32 s{sT3}, s{sT3}, {7 if Q0_ROT else 0}")
        if not Q0_ROT: k(f"s_mov_b32 s{sT3}, {j}")
        k(f"s_lshl_b32 s{sS0}, s{sT3}, 7\ns_add_u32 s{sS0}, s{sS0}, s{sX}")
        k(f"s_mul_i32 s{sS1}, s{sT3}, {4*49152}\ns_add_u32 s{sS1}, s{sS1}, s{sX2}")
    def ldW(j, t):
        k(f"s_add_u32 m0, s{sWL}, {(12*j + t)*KB}\ns_add_u32 s{sT2}, s{sS1}, {((t+1) % 3)*1024}")
        ct[j] = k.vm(f"buffer_load_dwordx4 v{vWA}, {srd(sWR)}, s{sT2} offen lds"); cn[j] += 1
    def ldX(j, i):
        if i == 0: rot(j)
        k(f"s_add_u32 m0, s{sXL}, {(j & 3)*4*KB + i*KB}\ns_add_u32 s{sT2}, s{sS0}, {i*8192}")
        ct[j] = k.vm(f"buffer_load_dwordx4 v{vXA + (i & 1)}, {srd(sXS)}, s{sT2} offen lds"); cn[j] += 1
    def chunk_loads(j):
        return [lambda i=i: ldX(j, i) for i in range(4)] + [lambda t=t: ldW(j, t) for t in range(3)]
    rowmajor_addr(k, 236, sT0)
    k.vm(f"buffer_load_dwordx4 {vr(vG)}, v236, {srd(sXS)}, s{sT0} offen")
    tres = k.vm(f"buffer_load_dwordx4 {vr(vG+4)}, v236, {srd(sXS)}, s{sT0} offen offset:32")
    for f in chunk_loads(0): f()
    if Q0_MARKS: mark(k, 'up0')
    late(k)
    pack_decode(k)
    k(f"s_cmp_eq_u32 s{sW}, 0\ns_cselect_b64 s[90:91], s[68:69], s[70:71]")
    k(f"s_cmp_eq_u32 s{sW}, 2\ns_cselect_b64 s[90:91], s[72:73], s[90:91]")
    k(f"s_cmp_eq_u32 s{sW}, 3\ns_cselect_b64 s[90:91], s[66:67], s[90:91]\ns_cselect_b32 s{sT0}, 16, 56")
    k(f"s_mul_i32 s{sT1}, s{sT0}, s{sU}\ns_sub_u32 s{sT0}, s{sT0}, 1")
    k(f"v_and_b32 v254, 63, v0\nv_min_u32 v254, s{sT0}, v254\nv_add_u32 v254, s{sT1}, v254\nv_lshlrev_b32 v254, 7, v254")
    pk = G.pk = Pack(k)
    k(f"s_and_b32 s{sT0}, s{sC}, 7\ns_and_b32 s{sT1}, s{sC}, 15")
    k("v_and_b32 v13, 15, v0\nv_min_u32 v14, 13, v13")
    k(f"s_lshr_b32 s{sT2}, s{sT0}, 1\ns_add_u32 s{sT2}, s{sT2}, 176\nv_lshl_add_u32 v252, v14, 2, s{sT2}")
    k(f"s_mul_i32 s{sT2}, s{sT1}, 7\ns_add_u32 s{sT3}, s{sT2}, 6\ns_lshr_b32 s{sT2}, s{sT2}, 2\ns_lshr_b32 s{sT3}, s{sT3}, 2")
    k(f"v_lshrrev_b32 v14, 2, v13\nv_add_u32 v14, s{sT2}, v14\nv_min_u32 v14, s{sT3}, v14\nv_and_b32 v15, 3, v13\nv_mul_u32_u24 v15, 28, v15")
    k("v_add3_u32 v14, v14, v15, 48")
    k("v_and_b32 v15, 16, v0\nv_cmp_ne_u32 vcc, 0, v15\nv_cndmask_b32 v252, v252, v14, vcc")
    k(f"s_add_u32 s{sT0}, s{sT0}, 160\nv_and_b32 v14, 1, v13\nv_lshl_add_u32 v251, v14, 3, s{sT0}")
    k(f"s_lshr_b32 s{sT1}, s{sT1}, 1\nv_mul_u32_u24 v14, 24, v14\nv_lshrrev_b32 v15, 1, v13\nv_min_u32 v15, 2, v15\nv_lshlrev_b32 v15, 3, v15")
    k(f"v_add3_u32 v14, v14, v15, s{sT1}")
    k("v_cndmask_b32 v251, v251, v14, vcc")
    k(f"v_cmp_gt_u32 vcc, 512, v{vL16}\nv_cndmask_b32 v252, v251, v252, vcc\nv_lshlrev_b32 v252, 7, v252\nv_accvgpr_write_b32 a213, v252")
    if WARM:
        k("s_getpc_b64 s[88:89]")
        k.label("L_pcw")
        k(f"s_lshl_b32 s{sT0}, s{sC}, 1\ns_add_u32 s{sT0}, s{sT0}, s{sW}\ns_and_b32 s{sT0}, s{sT0}, 63\ns_lshl_b32 s{sT0}, s{sT0}, 10\ns_min_u32 s{sT0}, s{sT0}, L_end-L_pcw-1024")
        k(f"v_add_u32 v245, s{sT0}, v{vL16}")
        k(f"v_min_u32 v244, {(WS_PAGES-1)*16}, v{vL16}\nv_lshlrev_b32 v244, 17, v244")
        k(f"s_cmp_eq_u32 s{sW}, 1\ns_cselect_b64 s[88:89], s[{sAUX}:{sAUX+1}], s[88:89]")
        k(f"s_cmp_eq_u32 s{sW}, 0\ns_cselect_b64 s[88:89], s[{sWS}:{sWS+1}], s[88:89]\ns_cselect_b64 vcc, -1, 0")
        k("v_cndmask_b32 v245, v245, v244, vcc")
    if PK_Q0: pk.issue(*range(8))
    k(f"v_and_b32 v13, 31, v0\nv_bfe_u32 v14, v0, 1, 3\nv_bfe_u32 v15, v0, 5, 1\nv_xor_b32 v14, v14, v15\nv_lshlrev_b32 v14, 4, v14\nv_lshl_add_u32 v13, v13, 7, v14")
    tr_addr(k, 255, 14)
    for e in range(4):
        k(f"s_add_u32 s{sT0}, s{sW}, {e}\ns_and_b32 s{sT0}, s{sT0}, 3\ns_lshl_b32 s{sT1}, s{sT0}, 5\ns_mul_i32 s{sT0}, s{sT0}, 3072")
        k(f"v_xor_b32 v{vXR+e}, s{sT1}, v13\nv_add_u32 v{vXR+e}, s{sXL}, v{vXR+e}")
        k(f"v_add_u32 v{vTR+e}, s{sT0}, v255\nv_add_u32 v{vTR+4+e}, {48*KB}, v{vTR+e}")
    k(f"v_mov_b32 v14, 0x3f803f80\nv_add_u32 v255, s84, v255\nv_accvgpr_write_b32 a212, v255")
    for r in range(192, 196): k(f"v_accvgpr_write_b32 a{r}, v14")
    def reads(j):
        o = []
        for e in range(4):
            o.append(f"ds_read_b128 {vr(vX + 16*j + 4*e)}, v{vXR+e} offset:{(j & 3)*4*KB}")
            for t in range(3):
                off = (12*(j & 3) + t)*KB; r = 48*(j & 1) + 4*(3*e + t)
                o.append(f"ds_read_b64_tr_b16 {ar(r,2)}, v{vTR + 4*(j >> 2) + e} offset:{off}")
                o.append(f"ds_read_b64_tr_b16 {ar(r+2,2)}, v{vTR + 4*(j >> 2) + e} offset:{off+256}")
        return o
    side = []
    if Q0_MARKS: mark(k, 'alu')
    for j in range(1, Q0_UP):
        for f in chunk_loads(j): f()
    if WARM and WARM_AT == 1: k.vm(f"global_load_dword v255, v245, s[88:89]")
    if Q0_MARKS: mark(k, 'iss')
    k.wait(vm=ct[0])
    k("s_barrier")
    mark(k, 'd0')
    for x in reads(0): k.lg(x)
    U = vG + 8
    st_ = res_unpack(U, vG)
    st_ += [f"v_add_f32 v{vG}, v{U}, v{U+1}", f"v_mul_f32 v{vG+2}, v{U}, v{U}", f"v_add_f32 v{vG+1}, v{U+2}, v{U+3}", f"v_mul_f32 v{vG+3}, v{U+1}, v{U+1}",
            f"v_fmac_f32 v{vG+2}, v{U+2}, v{U+2}", f"v_fmac_f32 v{vG+3}, v{U+3}, v{U+3}"]
    for i in range(4, 16, 2):
        st_ += [f"v_add_f32 v{vG}, v{vG}, v{U+i}", f"v_fmac_f32 v{vG+2}, v{U+i}, v{U+i}", f"v_add_f32 v{vG+1}, v{vG+1}, v{U+i+1}", f"v_fmac_f32 v{vG+3}, v{U+i+1}, v{U+i+1}"]
    st_ += [f"v_add_f32 v{vG}, v{vG}, v{vG+1}", f"v_add_f32 v{vG+2}, v{vG+2}, v{vG+3}", f"v_mov_b32 v{vG+1}, v{vG}", f"v_mov_b32 v{vG+3}, v{vG+2}",
            f"v_permlane32_swap_b32 v{vG}, v{vG+1}", f"v_permlane32_swap_b32 v{vG+2}, v{vG+3}",
            f"v_add_f32 v{vG}, v{vG}, v{vG+1}", f"v_add_f32 v{vG+2}, v{vG+2}, v{vG+3}"]
    for x in st_[:Q0_ST0]: k(x)
    st_ = st_[Q0_ST0:]
    def gran():
        k(f"s_add_u32 s{sTAG}, s{sTAG}, 0x7f4a7c15\ns_addc_u32 s{sTAG+1}, s{sTAG+1}, 0x9e3779b9")
        k(f"v_mov_b32 v{vG+1}, s{sTAG}\nv_mov_b32 v{vG+3}, s{sTAG+1}")
        k(f"s_lshr_b32 s{sT0}, s{sDST}, 2\ns_add_u32 s{sT0}, s{sT0}, {SG}\ns_mov_b32 exec_hi, 0")
        k.vm(f"buffer_store_dwordx4 {vr(vG)}, v{vL16}, {srd(sWS)}, s{sT0} offen sc1")
        k("s_mov_b64 exec, -1")
        k(f"s_lshl_b32 s{sF}, s{sRB}, 13\ns_add_u32 s{sF}, s{sF}, {SG}\ns_add_u32 s{sB}, s{sF}, 4096")
    cmpg = []
    for i in range(8):
        cmpg += [f"v_xor_b32 v13, s{sTAG}, v{vG+4*i+1}", f"v_xor_b32 v14, s{sTAG+1}, v{vG+4*i+3}",
                 ("v_or_b32 v15, v13, v14" if i == 0 else "v_or3_b32 v15, v13, v14, v15")]
    apg = APoll(k, [f"buffer_load_dwordx4 {vr(vG+4*i)}, v{vL16}, {srd(sWS)}, s{sF if i < 4 else sB} offen offset:{(i & 3)*KB} sc1" for i in range(8)],
                "\n".join(cmpg + ["v_cmp_ne_u32 vcc, 0, v15"]))
    for j in range(8):
        if j == 0 and st_:
            n_ = -(-len(st_) // 8)
            side += [lambda c=st_[i:i+n_]: [k(x) for x in c] for i in range(0, len(st_), n_)]
        if j == 0: side.append(gran)
        for c_ in Q0_SCHED[j]:
            assert c_ - 4 <= j
            side += chunk_loads(c_)
        if WARM and WARM_AT == j + 2: side.append(lambda: k.vm(f"global_load_dword v255, v245, s[88:89]"))
        if j == Q0_GLD: side += [lambda x=x: setattr(apg, 't', k.vm(x)) for x in apg.loads]
        if PK_EARLY: side += [lambda i=i: pk.issue(i) for i in range(8) if PK_AT[i] == j]
        k.wait_all(vm=False)
        rl = []
        if j < 7:
            assert cn[j+1] == 7
            k.wait(vm=ct[j+1]); k("s_barrier")
            if j in Q0_MARKJ: mark(k, f'c{j+1}')
            rl = reads(j + 1)
        mm = [('c', t) for t in range(3)] + [('m', b) for b in range(12)]
        if j == 7:
            apg.check()
            tail = []
            n = 8
            while n > 1:
                h = n // 2
                for i in range(h):
                    tail += [f"v_add_f32 v{vG+4*i}, v{vG+4*i}, v{vG+4*(i+h)}", f"v_add_f32 v{vG+4*i+2}, v{vG+4*i+2}, v{vG+4*(i+h)+2}"]
                n = h
            tail += [f"v_mov_b32 v{vG+1}, v{vG+2}"]
            tail += f"s_lshr_b32 s{sT0}, s{sW}, 1\ns_lshl_b32 s{sT0}, s{sT0}, 9\ns_and_b32 s{sT1}, s{sW}, 1\ns_lshl_b32 s{sT1}, s{sT1}, 3\ns_add_u32 s{sT0}, s{sT0}, s{sT1}".split('\n')
            tail += [f"v_and_b32 v13, 0x1f0, v{vL16}", f"v_add_u32 v13, s{sT0}, v13"]
            C = vG + 8
            for t in range(3):
                tail += [f"v_accvgpr_read_b32 v14, a{aCS+16*t}", f"v_cvt_pk_bf16_f32 v{C+2*t+1}, v14, 0", f"v_lshlrev_b32 v15, 16, v{C+2*t+1}",
                         "v_sub_f32 v14, v14, v15", f"v_cvt_pk_bf16_f32 v{C+2*t}, v15, v14", f"ds_write_b64 v13, {vr(C+2*t,2)} offset:{t*KB}"]
            fin = fin_stats(vST, vEXT, vRS)[NTREE:] + qkv_consts(vT, vRS, vR)
            tail += fin[:18]
            tail += ["s_waitcnt lgkmcnt(0)", "s_barrier"] + [f"ds_read_b128 {vr(C+4*t)}, v{vL16} offset:{t*KB}" for t in range(3)] + fin[18:]
            tail += f"s_lshl_b32 s{sCc}, s{sA}, 18\ns_lshl_b32 s{sT1}, s{sRB}, 11\ns_add_u32 s{sCc}, s{sCc}, s{sT1}".split('\n')
            tail += f"s_mul_i32 s{sB}, s{sRB}, {112*KB}\ns_lshl_b32 s{sT1}, s{sA}, 11\ns_add_u32 s{sB}, s{sB}, s{sT1}".split('\n')
            n_ = -(-len(tail) // 15)
            side += [lambda c=tail[i:i+n_]: [k(x) for x in c] for i in range(0, len(tail), n_)]
        for p, (kind, b) in enumerate(mm):
            if kind == 'c':
                acc = ar(aCS + 16*b, 16)
                k(f"v_mfma_f32_32x32x16_bf16 {acc}, {ar(192)}, {ar(48*(j & 1) + 4*b)}, {'0' if j == 0 else acc}")
            else:
                ks = 4*j + b // 3; t = b % 3
                acc = vr(vACC + 16*t, 16); w = ar(48*(j & 1) + 4*b); x = vr(vX + 4*ks)
                A, B = (x, w) if t == 1 else (w, x)
                k(f"v_mfma_f32_32x32x16_bf16 {acc}, {A}, {B}, {'0' if ks == 0 else acc}")
            if j == 0 and p == 0: mark(k, 'm0')
            for _ in range(2):
                if rl: k.lg(rl.pop(0))
            if side and (j == 7 or p % 2 == 0 or 2 * len(side) > 15 - p): side.pop(0)()
            if len(side) > 14 - p: side.pop(0)()
        assert not rl
    while side: side.pop(0)()
    mark(k, 'loop')
    k.wait_all(vm=False)
    for t in range(3):
        c = vG + 8 + 4*t
        acc = vr(vACC + 16*t, 16)
        A, B = (vr(vEXT), vr(c)) if t == 1 else (vr(c), vr(vEXT))
        k(f"v_mfma_f32_32x32x16_bf16 {acc}, {A}, {B}, {acc}")
    t_ = None
    for x in qk_tile(vACC, KVF(0), vRS, " sc1", vX) + v_tile(vACC+16, 0, vR, vX+8) + qk_tile(vACC+32, QF, vRS+1, " sc1", vX+16):
        if x.startswith('buffer'): t_ = k.vm(x)
        else: k(x)
    mark(k, 'st')
    return t_, t_

def ph_qkv(k, L, ring, b0):
    vX, vACC, vST, vEXT, vRS, vT, vR = 16, 144, 192, 8, 6, 224, 232
    rb_128(k)
    k(f"s_and_b32 s{sA}, s{sC}, 15")
    k(f"s_lshl_b32 s{sX}, s{sRB}, 15\ns_add_u32 s{sX}, s{sX}, {XF}")
    set_lds_bases(k)
    QE = QKV_QE
    seq = [(ks, t) for ks in range(33) for t in ((0, 1, 2) if ks < QE else (0, 1))] + [(ks, 2) for ks in range(QE, 33)]
    ops = [dict(b=b0 + (2*ks + t if t < 2 else 66 + ks), bmin=b0, bmax=b0 + 98, xi=(ks if ks < 32 else None), x=(vr(vX+4*ks) if ks < 32 else vr(vEXT)),
                acc=vr(vACC+16*t, 16), swap=(t == 1), first=(ks == 0)) for ks, t in seq]
    xq = XLoader(k, 32, lambda i: vr(vX+4*i), lin_src(k))
    res = {}
    se = stats_emitters(k, vST, res)
    k(f"s_lshl_b32 s{sCc}, s{sA}, 18\ns_lshl_b32 s{sT1}, s{sRB}, 11\ns_add_u32 s{sCc}, s{sCc}, s{sT1}")
    k(f"s_mul_i32 s{sB}, s{sRB}, {112*KB}\ns_lshl_b32 s{sT1}, s{sA}, 11\ns_add_u32 s{sB}, s{sB}, s{sT1}")
    assert ring.issued == ring.total
    g = Gemm(k, ring, ops, {0})
    g.start()
    ring.issue_n(4)
    publish_local(k, G.tx)
    ring.issue_n(4)
    G.ex = 216
    su = [x.replace('v13', 'v246').replace('v14', 'v247') for x in att_setup(L)] + ex_addr(G.ex)
    su += [f"s_lshl_b32 s{sE}, s{sA}, 11", f"s_add_u32 s{sE}, s{sE}, s{sB}", f"s_add_u32 s{sE}, s{sE}, {HF + 32*KB}"]
    k(f"s_lshl_b32 s{sF}, s{sRB}, 7\ns_add_u32 s{sF}, s{sF}, {FLOC(L-1, 8)}")
    poll16(k)
    aps = stats_poll(k, FLOC(L-1,7) - FLOC(L-1,8))
    fin = fin_stats(vST, vEXT, vRS) + qkv_consts(vT, vRS, vR)
    full = qk_tile(vACC, KVF(L), vRS, " sc1", vST) + v_tile(vACC+16, L, vR, vST+16)
    alu_ = [x for x in full if x.startswith('v_')]
    glob = [x for x in full if not x.startswith('v_')]
    lo_ = [f"buffer_store_dwordx4 {vr(vST)}, v{vL16}, {srd(sWS)}, s{sE} offen",
           f"buffer_store_dwordx4 {vr(vST+4)}, v{vL16}, {srd(sWS)}, s{sE} offen offset:2048",
           f"buffer_store_dwordx4 {vr(vST+16)}, v{G.ex+6}, {srd(sWS)}, s{sE} offen offset:1024",
           f"buffer_store_dwordx4 {vr(vST+20)}, v{G.ex+6}, {srd(sWS)}, s{sE} offen offset:1536"]
    epi = []
    for q_ in range(4): epi += alu_[12*q_:12*q_+12] + ([lo_[q_]] if KV_LOC else [])
    epi += ["#loc"] + glob + ex_kv(vST, vST+16)
    st = dict(i=0, j=0, t=None, loc=None)
    def put(x):
        if x == '#loc': st['loc'] = st['t']
        elif x.startswith('buffer'): st['t'] = k.vm(x)
        elif x.startswith('ds_'): k.lg(x)
        else: k(x)
    def filler(m):
        if aps and m == 4: aps.issue()
        if m == 22:
            if aps: aps.check()
            for e in se: e()
        if m < 10 or m > 22:
            for _ in range(3 if m < 10 else 4):
                if su: k(su.pop(0))
        if 44 <= m < 64 + QE:
            assert not su
            if st['i'] == 0: k.wait(vm=res['t'])
            for _ in range(3):
                if st['i'] < len(fin): k(fin[st['i']]); st['i'] += 1
        if m >= 68 + QE:
            for _ in range(QKV_EPI):
                if st['j'] < len(epi): put(epi[st['j']]); st['j'] += 1
    g.run(xq, n0=8, filler=filler)
    while st['j'] < len(epi):
        put(epi[st['j']]); st['j'] += 1
    assert st['i'] == len(fin)
    if KV_LOC and QF_AT == 0: q_flag(k, L, st['loc'])
    q_out(k, vACC + 32, vRS + 1, vST + 8, vT)
    if KV_LOC and QF_AT == 1: q_flag(k, L, st['loc'])
    mark(k, 'st')
    return st['t'], st['loc']

def code_touch(k, vd, skip=0):
    if not CODE_TOUCH: return
    pc = k.newlabel('pc')
    k(f"s_getpc_b64 s[{sPC}:{sPC+1}]")
    k.label(pc)
    k(f"s_min_u32 s{sSPIN}, s{sCT}, L_end-{pc}-1024\ns_add_u32 s{sPC}, s{sPC}, s{sSPIN}\ns_addc_u32 s{sPC+1}, s{sPC+1}, 0")
    k.vm(f"global_load_dword v{vd}, v{vL16}, s[{sPC}:{sPC+1}] offset:{skip}")

def flag_touch(k, L, va, vd):
    if not FL_TOUCH: return
    k(f"v_bfe_u32 v{va}, v0, 3, 3\nv_lshlrev_b32 v{va}, 6, v{va}\nv_and_or_b32 v{va}, v0, 7, v{va}\nv_lshlrev_b32 v{va}, 7, v{va}")
    k(f"s_lshl_b32 s{sT3}, s{sG}, 10\ns_add_u32 s{sT3}, s{sT3}, {FLOC(L,0)}")
    k.vm(f"buffer_load_dword v{vd}, v{va}, {srd(sWS)}, s{sT3} offen sc1")

EX = 112 * KB
vK, vV, vIDX, vL128, vTX, vP2, vCP = 248, 249, 250, 251, 252, 253, 254
sOD, sLC, sTH, sTW, sFO, sF2, sKX = 64, 66, 72, 73, 79, 68, 69
def att_setup(L):
    o = f"""s_and_b32 s{sT0}, s{sC}, 15
s_lshl_b32 s{sF2}, s{sT0}, 11
s_add_u32 s{sF2}, s{sF2}, {FKV(L)}
s_lshl_b32 s{sT0}, s{sT0}, 1
s_and_b32 s{sT1}, s{sW}, 1
s_add_u32 s{sT0}, s{sT0}, s{sT1}
s_lshr_b32 s{sT1}, s{sW}, 1
s_lshl_b32 s{sKX}, s{sG}, 1
s_add_u32 s{sKX}, s{sKX}, s{sC4}
s_lshl_b32 s{sT2}, s{sKX}, 1
s_add_u32 s{sT2}, s{sT2}, s{sT1}
s_lshl_b32 s{sFO}, s{sT2}, 5
s_add_u32 s{sFO}, s{sFO}, s{sT0}
s_lshl_b32 s{sFO}, s{sFO}, 3
s_add_u32 s{sFO}, s{sFO}, {FLOC(L,0)}
s_mul_i32 s{sOD}, s{sT2}, {224*KB}
s_lshl_b32 s{sT3}, s{sT0}, 10
s_add_u32 s{sOD}, s{sOD}, s{sT3}
s_add_u32 s{sOD}, s{sOD}, {HF}
s_add_u32 s{sOD+1}, s{sOD}, {112*KB}
s_xor_b32 s{sT2}, s{sT2}, 2
s_mul_i32 s{sLC}, s{sT2}, {224*KB}
s_lshl_b32 s{sT3}, s{sT0}, 11
s_add_u32 s{sLC}, s{sLC}, s{sT3}
s_add_u32 s{sLC}, s{sLC}, {HF + 32*KB}
s_add_u32 s{sLC+1}, s{sLC}, {112*KB}
s_lshl_b32 s{sKX}, s{sKX}, 13
s_lshl_b32 s{sT0}, s{sT0}, 17
s_lshl_b32 s{sT1}, s{sT1}, 12
s_add_u32 s{sT0}, s{sT0}, s{sT1}
s_add_u32 s{sKX}, s{sKX}, s{sT0}
s_add_u32 s{sKX}, s{sKX}, {KVF(L)}
v_and_b32 v13, 0x33, v0
v_bfe_u32 v14, v0, 2, 1
v_lshl_or_b32 v13, v14, 3, v13
v_bfe_u32 v14, v0, 3, 1
v_lshl_or_b32 v13, v14, 2, v13
v_lshlrev_b32 v{vK}, 4, v13
v_and_b32 v13, 15, v0
s_bfe_u32 s{sT0}, s{sKX}, 0x4000d
v_xor_b32 v{vP2}, s{sT0}, v13
v_lshlrev_b32 v{vP2}, 7, v{vP2}
v_bfe_u32 v14, v0, 5, 1
v_lshl_add_u32 v13, v14, 4, v13
v_lshlrev_b32 v{vV}, 4, v13
v_mov_b32 v{vIDX}, 0xdddddddd
v_lshlrev_b32 v{vL128}, 3, v{vL16}
v_and_b32 v13, 27, v0
v_cmp_eq_u32 vcc, 16, v13
v_mov_b32 v14, 0x3afe3f80
v_cndmask_b32 v{vCP}, 0, v14, vcc
s_lshl_b32 s{sT3}, s{sU}, 2
s_add_u32 s{sT3}, s{sT3}, s{sW}
s_mul_i32 s{sTH}, s{sT3}, {7*KB}
s_add_u32 s{sTH}, s{sTH}, {HF}
s_lshl_b32 s{sT0}, s{sT3}, 11
s_add_u32 s{sT0}, s{sT0}, {XF}
s_lshl_b32 s{sT1}, s{sT3}, 8
s_add_u32 s{sT1}, s{sT1}, {SX}
v_and_b32 v13, 0x780, v{vL128}
v_add_u32 v13, s{sT0}, v13
v_and_b32 v14, 0x80, v{vL128}
v_add_u32 v14, s{sT1}, v14
v_cmp_gt_u32 vcc, 512, v{vL16}
v_cndmask_b32 v{vTX}, v14, v13, vcc
s_lshl_b32 s{sTW}, s{sC4}, 2
s_add_u32 s{sTW}, s{sTW}, s{sW}
s_mul_i32 s{sTW}, s{sTW}, {TOUCH_KBS[L] * KB // 8}
s_add_u32 s{sTW}, s{sTW}, s{sSEG+1}
s_add_u32 s{sTW}, s{sTW}, {(PREFILL - 64)*KB}
s_and_b32 s{sCT}, s{sT3}, 31
s_lshl_b32 s{sCT}, s{sCT}, 10"""
    return o.split('\n')
def ex_addr(e):
    return [f"v_bfe_u32 v{e+6}, v0, 4, 1", f"v_lshl_add_u32 v{e+6}, v{e+6}, 11, v{vV}",
            f"s_mul_i32 s{sT3}, s{sW}, {6*KB}", f"s_add_u32 s{sT3}, s{sT3}, {EX}", f"v_add_u32 v{e}, s{sT3}, v{vL16}", f"v_add_u32 v{e+1}, s{sT3}, v{e+6}",
            f"s_lshr_b32 s{sT3}, s{sW}, 1", f"s_mul_i32 s{sT3}, s{sT3}, {12*KB}", f"s_and_b32 s{sT0}, s{sW}, 1", f"s_lshl_b32 s{sT0}, s{sT0}, 10",
            f"s_add_u32 s{sT2}, s{sT0}, {EX}", f"s_add_u32 s{sT1}, s{sT2}, s{sT3}", f"v_add_u32 v{e+2}, s{sT1}, v{vL16}",
            f"s_sub_u32 s{sT2}, s{sT2}, s{sT3}", f"v_add_u32 v{e+3}, s{sT2}, v{vL16}", f"s_add_u32 s{sT1}, s{sT1}, s{sT0}",
            f"v_add_u32 v{e+4}, s{sT1}, v{vK}", f"v_add_u32 v{e+5}, s{sT1}, v{vV}"]
def ex_kv(pK, pV):
    e = G.ex
    return [f"ds_write_b128 v{e}, {vr(pK)}", f"ds_write_b128 v{e}, {vr(pK+4)} offset:2048",
            f"ds_write_b128 v{e+1}, {vr(pV)} offset:1024", f"ds_write_b128 v{e+1}, {vr(pV+4)} offset:1536"]
def q_out(k, a, sc, p0, vT):
    init = [f"v_mfma_f32_32x32x16_bf16 {vr(16+16*q,16)}, {vr(vT+4)}, {vr(vT)}, 0" for q in range(4)]
    init2 = [f"v_mfma_f32_32x32x16_bf16 {vr(80+16*q,16)}, {vr(vT+4)}, {vr(vT)}, 0" for q in range(6)]
    k(f"v_mov_b32 v{vT}, 0")
    for x in init: k(x)
    k(f"v_mov_b32 v{vT}, v{vCP}")
    for half in range(2):
        p = p0 + 4*half
        for j in range(4):
            r = a + 8*half + 2*j
            k(f"v_mul_f32 v{r}, v{r}, v{sc}\nv_mul_f32 v{r+1}, v{r+1}, v{sc}\nv_cvt_pk_bf16_f32 v{p+j}, v{r}, v{r+1}")
            if init2: k(init2.pop(0))
        k.lg(f"ds_write_b128 v{G.ex}, {vr(p)} offset:{4096 + half*KB}")

def ph_att(k, L, ring, tkv, tloc):
    vO, vKV, aQ = 16, 80, aWB
    NS, NKV = (3, 10) if DEEP else (4, 8)
    vS0 = vKV + 12*NKV
    vS = [vS0 + 16*i for i in range(NS)]
    sK = sB
    K = lambda t: vr(vKV + 12*(t % NKV))
    V = lambda t, u: vr(vKV + 12*(t % NKV) + 4 + 4*u)
    k.wait_all(vm=False)
    k("s_barrier")
    lt = {}
    lt['k0'] = k.lg(f"ds_read_b128 {K(0)}, v{G.ex+4}")
    for s in range(4):
        lt[s] = k.lg(f"ds_read_b128 {ar(aQ+4*s)}, v{G.ex + 2 + (s >> 1)} offset:{4096 + (s & 1)*6*KB + (12*KB if s >> 1 else 0)}")
    k(f"s_mov_b64 exec, s[{sMSK}:{sMSK+1}]")
    for t in range(2):
        for u in range(2): lt['v'] = k.lg(f"ds_read_b128 {V(t,u)}, v{G.ex+5} offset:{t*6*KB + KB + u*512}")
    k("s_mov_b64 exec, -1")
    lt['k1'] = k.lg(f"ds_read_b128 {K(1)}, v{G.ex+4} offset:{6*KB}")
    mark(k, 'pre')
    if L and KV_LOC and QF_AT == 2: q_flag(k, L, tloc)
    kt = {}
    def ldP(x):
        if x == 1 and L and KV_LOC: src = [(sLC, 0), (sLC + 1, 0)]
        else:
            k(f"s_xor_b32 s{sK}, s{sKX}, {x << 13}")
            src = [(sK, 0), (sK, 2*KB)]
        for z in range(2): k.vm(f"buffer_load_dwordx4 {K(2*x+z)}, v{vK}, {srd(sWS)}, s{src[z][0]} offen offset:{src[z][1]} sc1")
        k(f"s_mov_b64 exec, s[{sMSK}:{sMSK+1}]")
        for z in range(2):
            for u in range(2): t_ = k.vm(f"buffer_load_dwordx4 {V(2*x+z,u)}, v{vV}, {srd(sWS)}, s{src[z][0]} offen offset:{src[z][1] + KB + u*512} sc1")
        k("s_mov_b64 exec, -1")
        kt[2*x] = kt[2*x+1] = t_
    NT = ATT_NT
    steps = [(t, q) for t in range(32 - NT) for q in range(4)] + [(t, q) for q in (2, 3, 0, 1) for t in range(32 - NT, 32)]
    n = len(steps)
    LA = NS - 1
    def qk(i):
        t, q = steps[i]
        if t < 2: k.wait(lg=lt[q] if t == 0 else lt['k1'])
        else: k.wait(vm=kt[t])
        k(f"v_mfma_f32_32x32x16_bf16 {vr(vS[i % NS],16)}, {K(t)}, {ar(aQ+4*q)}, 0")
    def pv(i, u):
        t, q = steps[i]
        if t < 2: k.wait(lg=lt['v'])
        k(f"v_smfmac_f32_32x32x32_bf16 {vr(vO+16*q,16)}, {V(t,u)}, {vr(vS[i % NS]+8*u,8)}, v{vIDX}")
    for i in range(LA): qk(i)
    mark(k, 'm0')
    ring.limit = PREFILL
    jobs = {}
    def job(i, f, e=10): jobs.setdefault((i, e), []).append(f)
    ap2 = apoll1(k, vP2, 10, sF2, mask=((0xc if L and KV_LOC else 0xe) if STAGED else None))
    pre = {}
    if STAGED:
        ap3 = apoll1(k, vP2, 8, sF2, mask=0xf0); ap4 = apoll1(k, vP2, 8, sF2)
        job(X4_AT - 3, ap3.issue); pre[4] = ap3.check
        job(35, ap4.issue); pre[8] = ap4.check
    late_qk = set()
    if L and KV_LOC:
        def a1():
            k(f"s_xor_b32 s{sT0}, s{sRB}, 4\ns_and_b32 s{sT0}, s{sT0}, 6\ns_lshl_b32 s{sT1}, s{sG}, 4\ns_add_u32 s{sT1}, s{sT1}, s{sA}\ns_lshl_b32 s{sT1}, s{sT1}, 3")
            k(f"s_add_u32 s{sT1}, s{sT1}, s{sT0}\ns_lshl_b32 s{sT1}, s{sT1}, 3\ns_add_u32 s{sD}, s{sT1}, {FLOC(L-1,5)}\nv_and_b32 v12, 8, v0")
            ap1.issue()
        ap1 = apoll1(k, 12, 8, sD)
        job(A1_AT[0], a1, e=2 if A1_AT[0] else 3)
        job(A1_AT[1], lambda: (ap1.check(), ldP(1)))
        job(KVF_AT[L], lambda: (k.wait(lg=lt['k1']), kv_flag(k, L, tkv)))
        job(P2[L][0], ap2.issue)
        job(P2[L][1], lambda: (ap2.check(), ldP(2)))
        job(P2[L][1] + 1, lambda: ldP(3))
    else:
        if not (L == 0 and Q0K and Q0K_FLAG < 32): job(KVF_AT[L], lambda: (k.wait(lg=lt['k1']), kv_flag(k, L, tkv)))
        if L == 0:
            job(PKR_AT, lambda: G.pk.reads(*range(8)))
            for i in range(8): job(PKR_AT + 1 + i // 4, lambda i=i: G.pk.csum(i), e=(0, 4, 8, 13)[i % 4])
        job(P2[L][0], ap2.issue)
        if L == 0 and PK_WAIT:
            job(P2[L][1], lambda: (ap2.check(), ldP(1), ldP(2), ldP(3) if PK_WAIT > 1 else None, G.pk.stores(*range(8)), G.pk.ext()), e=15)
            if PK_WAIT == 1: job(P2[L][1] + 2, lambda: ldP(3))
        else:
            job(P2[L][1], lambda: (ap2.check(), ldP(1)))
            job(P2[L][1] + 1, lambda: ldP(2))
            job(P2[L][1] + 2, lambda: ldP(3))
        late_qk = set(range(8, 8 + LA))
    job(9, lambda: code_touch(k, 5))
    if DEEP:
        def cinit():
            for t in (8, 9):
                for j in range(8): k(f"v_mov_b32 v{vKV+12*t+4+j}, v{vKV+12*7+4}")
        job(0, cinit, e=14)
        job(10, lambda: ldP(4))
        for x in range(5, 16): job(8*(x - 4) + (5 if x == 5 else 0), lambda x=x: ldP(x))
    else:
        for x in range(4, 16):
            at = X4_AT if x == 4 else max(8*(x - 3), X4_AT + 2)
            if x in pre: job(at, pre[x])
            job(at, lambda x=x: ldP(x))
    NR = PREFILL // 16
    if L == 0:
        if PK_WAIT:
            job(PUB_AT, G.pk.pub); CHK_AT = PUB_AT + CHK_GAP
        else: CHK_AT = G.pk.schedule(job) + CHK_GAP
        apk = APoll(k, [f"buffer_load_dwordx2 v[10:11], v12, {srd(sWS)}, s{sX} offen offset:8 sc1"],
                    f"v_cmp_ne_u64 vcc, s[{sTAG}:{sTAG+1}], v[10:11]")
        def chk0():
            k(f"v_accvgpr_read_b32 v12, a213\ns_mov_b32 s{sX}, {FPK}")
            apk.issue()
        job(CHK_AT - 6, chk0)
        apx = APoll(k, [f"buffer_load_dwordx4 v[12:15], v11, {srd(sWS)}, s{sCc} offen sc1"],
                    f"v_cmp_ne_u64 vcc, s[{sTAG}:{sTAG+1}], v[14:15]")
        def mode0():
            k(f"v_and_b32 v11, 0xf80, v{vL128}\ns_lshl_b32 s{sCc}, s{sG}, 12\ns_add_u32 s{sCc}, s{sCc}, {FPK}")
            apx.issue()
        def mode():
            apx.check()
            k(f"s_xor_b32 s{sT2}, s{sTAG}, s{sXCC}")
            k(f"v_cmp_ne_u32 vcc, s{sT2}, v12")
            k(f"s_cmp_eq_u64 vcc, 0\ns_cselect_b32 s{sMODE}, 1, 0")
        job(81, mode0); job(95, mode)
        def chk():
            apk.check()
            k(f"s_and_b32 s{sT2}, s{sC}, 7\ns_lshl_b32 s{sT2}, s{sT2}, 1\ns_lshr_b32 s{sT3}, s{sW}, 1\ns_add_u32 s{sT2}, s{sT2}, s{sT3}")
            k(f"s_mul_i32 s{sT3}, s{sW}, {28*KB}\ns_add_u32 s{sT3}, s{sT3}, {WD}")
            k(f"s_mul_i32 s{sX}, s{sT2}, {112*KB}\ns_add_u32 s{sX}, s{sX}, s{sT3}")
            k(f"s_xor_b32 s{sT2}, s{sT2}, 1\ns_mul_i32 s{sX2}, s{sT2}, {112*KB}\ns_add_u32 s{sX2}, s{sX2}, s{sT3}")
        job(CHK_AT, chk)
        def wsrc(i):
            s_ = sX if i < 28 else sX2
            j = i % 28
            if j and (j & 3) == 0: k(f"s_add_u32 s{s_}, s{s_}, 4096")
            return s_, (j & 3) * KB
        if DN16:
            def wsrc(i):
                s_ = sX if i < 28 else sX2
                j = i % 28
                if j and (j & 3) == 0: k(f"s_add_u32 s{s_}, s{s_}, 4096")
                return s_, ((j >> 1) & 1) * 2048 + (j & 1) * 256
            wq = XLoader(k, 56, lambda i: ar(aWD + 16*((i % 28) >> 1) + 8*(i // 28) + 4*(i & 1)), wsrc, va=7)
            job(CHK_AT, lambda: k(f"v_and_b32 v7, 0xf0, v{vK}\nv_bfe_u32 v6, v0, 4, 2\nv_lshl_add_u32 v7, v6, 9, v7"))
        else:
            wq = XLoader(k, 56, lambda i: ar(aWD + 8*(i % 28) + 4*(i // 28)), wsrc)
        slots = [i for i in range(CHK_AT + 1, 112) if i % 8 in WD_SLOTS]
        work = [lambda: wq.issue_n(4)] * 14
        rw = [ring.issue16] * NR
        seq = []
        while work or rw:
            if work: seq.append(work.pop(0))
            if work: seq.append(work.pop(0))
            if rw: seq.append(rw.pop(0))
        assert len(seq) <= len(slots), (len(seq), len(slots))
        for i, f in zip(slots, seq): job(i, f)
    else:
        for j in range(NR): job(R1_AT + R1_STEP*j, ring.issue16)
    TL = TOUCH_LN; vT_ = vL128 if TL == 64 else 4
    def tch(sreg, j):
        def f():
            if j: k(f"s_add_u32 s{sreg}, s{sreg}, {TL*128}")
            elif TL < 64: k(f"v_and_b32 v4, {(TL-1)*128}, v{vL128}")
            k.vm(f"buffer_load_dword v5, v{vT_}, {srd(sWS)}, s{sreg} offen sc1")
        return f
    for j in range(-(-TOUCH_KBS[L] // TL)): job(TOUCH_AT[L] + j*TOUCH_STEP[L], tch(sTW, j))
    for j in range(-(-56 // TL)): job(TACTS[L] + j*TH_STEP, tch(sTH, j))
    job(TACTS[L] + 4, lambda: k.vm(f"buffer_load_dword v5, v{vTX}, {srd(sWS)}, 0 offen sc1"))
    job(CT_AT, lambda: code_touch(k, 5))
    SC = 136 * KB
    assert PREFILL <= 136
    def red_setup():
        k(f"s_mul_i32 s{sT0}, s{sW}, {6*KB}\ns_add_u32 s{sT0}, s{sT0}, {SC}\nv_add_u32 v13, s{sT0}, v{vL16}")
        k(f"s_xor_b32 s{sT0}, s{sW}, 2\ns_mul_i32 s{sT0}, s{sT0}, {6*KB}\ns_add_u32 s{sT0}, s{sT0}, {SC}\nv_add_u32 v10, s{sT0}, v{vL16}")
    job(112, red_setup)
    def res_early():
        if L == 0:
            rowmajor_addr(k, 14, sT0)
            k.vm(f"buffer_load_dwordx4 {vr(G.res)}, v14, {srd(60)}, s{sT0} offen")
            k.vm(f"buffer_load_dwordx4 {vr(G.res+4)}, v14, {srd(60)}, s{sT0} offen offset:32")
        else: load_res(k, G.res)
    G.res = 104 if DEEP else 240
    if RES_AT: job(RES_AT, res_early)
    def red_write(s):
        z = s & 1
        k.lg(f"ds_write_b128 v10, {vr(vO+16*s)} offset:{z*3*KB}")
        k.lg(f"ds_write_b128 v10, {vr(vO+16*s+4)} offset:{z*3*KB+KB}")
        k.lg(f"ds_write_b32 v10, v{vO+16*s+8} offset:{z*3*KB+2*KB}")
    for i in range(128):
        if steps[i][0] == 31 and steps[i][1] >= 2: job(i + 2, lambda s=steps[i][1]: red_write(s), e=2)
    tl = []
    def red_read():
        G.tv = k.vm_issued
        k.wait_all(vm=not RED_LG)
        k("s_barrier")
        for z in range(2):
            b = vO + 32 + 16*z
            k.lg(f"ds_read_b32 v{b+8}, v13 offset:{z*3*KB+2*KB}")
            k.lg(f"ds_read_b128 {vr(b)}, v13 offset:{z*3*KB}")
            tl.append(k.lg(f"ds_read_b128 {vr(b+4)}, v13 offset:{z*3*KB+KB}"))
    job(RED_AT, red_read)
    for i, (t, q) in enumerate(steps):
        s = vS[i % NS]
        if i in ATT_MARKS: mark(k, f's{i}')
        if i == 8 and late_qk:
            pv(7, 1)
            for j in sorted(late_qk): qk(j)
        for e in range(16):
            if e == 2 and i > 0 and not (i == 8 and late_qk): pv(i-1, 1)
            if e == 6 and i + LA < n and i + LA not in late_qk: qk(i + LA)
            if e == 10: pv(i, 0)
            for f in jobs.pop((i, e), []): f()
            k(f"v_exp_f32 v{s+e}, v{s+e}")
    pv(n-1, 1)
    assert not jobs, jobs.keys()
    assert ring.issued == PREFILL
    mark(k, 'loop')
    for z in range(2):
        o = vO + 16*z; b = vO + 32 + 16*z
        k.wait(lg=tl[z])
        k(f"v_add_f32 v{o+8}, v{o+8}, v{b+8}\nv_rcp_f32 v{o+9}, v{o+8}")
        for i in range(8): k(f"v_add_f32 v{o+i}, v{o+i}, v{b+i}")
        for j in range(4):
            k(f"v_mul_f32 v{o+2*j}, v{o+2*j}, v{o+9}\nv_mul_f32 v{o+2*j+1}, v{o+2*j+1}, v{o+9}")
            k(f"v_cvt_pk_bf16_f32 v{o+12+j}, v{o+2*j}, v{o+2*j+1}")
        ts = k.vm(f"buffer_store_dwordx4 {vr(o+12)}, v{vL16}, {srd(sWS)}, s{sOD+z} offen")
    mark(k, 'f_st')
    fb = k.newlabel('fb'); back = k.newlabel('fbret')
    LO, HI = f2u(2.0**-60), f2u(2.0**60)
    for z in range(2):
        o = vO + 16*z
        k(f"v_add_f32 v{o}, v{o}, v{o+1}\nv_add_f32 v{o+2}, v{o+2}, v{o+3}\nv_add_f32 v{o+4}, v{o+4}, v{o+5}\nv_add_f32 v{o+6}, v{o+6}, v{o+7}")
        k(f"v_add_f32 v{o}, v{o}, v{o+2}\nv_add_f32 v{o+4}, v{o+4}, v{o+6}\nv_add_f32 v{o}, v{o}, v{o+4}")
        k(f"v_fma_f32 v{o+8}, v{o}, 0, v{o+8}\nv_subrev_u32 v{o+8}, {hex(LO)}, v{o+8}")
    k(f"v_max_u32 v{vO+8}, v{vO+8}, v{vO+24}")
    k(f"v_cmp_lt_u32 vcc, {hex(0 if FORCE_FB else HI - LO)}, v{vO+8}")
    k(f"s_cbranch_vccnz {fb}")
    k.label(back)
    F = [f"{fb}:", "s_waitcnt vmcnt(0)", f"s_and_b32 s{sT0}, s{sKX}, 0xfffe0000",
         f"v_add_u32 v{vK}, s{sT0}, v{vK}", f"v_add_u32 v{vV}, s{sT0}, v{vV}"]
    S, C, M = vS0, vS0 + 16, vS0 + 32
    for z in range(2):
        o = vO + 16*z; Q = ar(aQ + 4*z)
        F += [f"v_mov_b32 v{M}, 0xff800000", f"s_mov_b32 s{sK}, 0", f"{fb}_a{z}:",
              f"buffer_load_dwordx4 {K(0)}, v{vK}, {srd(sWS)}, s{sK} offen sc1", "s_waitcnt vmcnt(0)",
              f"v_mfma_f32_32x32x16_bf16 {vr(S,16)}, {K(0)}, {Q}, 0"]
        F += [f"v_max3_f32 v{M}, v{M}, v{S+2*i}, v{S+2*i+1}" for i in range(8)]
        F += [f"s_add_u32 s{sK}, s{sK}, 2048", f"s_cmp_lt_u32 s{sK}, {64*2048}", f"s_cbranch_scc1 {fb}_a{z}",
              f"v_mov_b32 v{M+1}, v{M}", f"v_permlane32_swap_b32 v{M}, v{M+1}", f"v_max_f32 v{M}, v{M}, v{M+1}"]
        F += [f"v_sub_f32 v{C+i}, 0, v{M}" for i in range(16)] + [f"v_mov_b32 v{o+i}, 0" for i in range(16)]
        F += [f"s_mov_b32 s{sK}, 0", f"{fb}_b{z}:",
              f"buffer_load_dwordx4 {K(0)}, v{vK}, {srd(sWS)}, s{sK} offen sc1",
              f"s_mov_b64 exec, s[{sMSK}:{sMSK+1}]",
              f"buffer_load_dwordx4 {V(0,0)}, v{vV}, {srd(sWS)}, s{sK} offen offset:{KB} sc1",
              f"buffer_load_dwordx4 {V(0,1)}, v{vV}, {srd(sWS)}, s{sK} offen offset:{KB+512} sc1",
              "s_mov_b64 exec, -1", "s_waitcnt vmcnt(0)",
              f"v_mfma_f32_32x32x16_bf16 {vr(S,16)}, {K(0)}, {Q}, {vr(C,16)}"]
        F += [f"v_exp_f32 v{S+i}, v{S+i}" for i in range(16)]
        F += [f"v_smfmac_f32_32x32x32_bf16 {vr(o,16)}, {V(0,u)}, {vr(S+8*u,8)}, v{vIDX}" for u in range(2)]
        F += ["s_nop 15", f"s_add_u32 s{sK}, s{sK}, 2048", f"s_cmp_lt_u32 s{sK}, {64*2048}", f"s_cbranch_scc1 {fb}_b{z}",
              f"v_rcp_f32 v{o+9}, v{o+8}"]
        for j in range(4):
            F += [f"v_mul_f32 v{o+2*j}, v{o+2*j}, v{o+9}", f"v_mul_f32 v{o+2*j+1}, v{o+2*j+1}, v{o+9}", f"v_cvt_pk_bf16_f32 v{o+12+j}, v{o+2*j}, v{o+2*j+1}"]
        F += [f"buffer_store_dwordx4 {vr(o+12)}, v{vL16}, {srd(sWS)}, s{sOD+z} offen"]
    F += ["s_waitcnt vmcnt(0)", f"s_branch {back}"]
    G.far += F
    k.wait(vm=G.tv)
    k(f"s_mov_b32 s{sF}, s{sFO}")
    ring.end16()
    ring.limit = 144
    return ts

def load_res(k, v):
    k(f"s_add_u32 s{sT1}, s{sDST}, {XF}")
    k.vm(f"buffer_load_dwordx4 {vr(v)}, v{vL16}, {srd(sWS)}, s{sT1} offen sc1")
    return k.vm(f"buffer_load_dwordx4 {vr(v+4)}, v{vL16}, {srd(sWS)}, s{sT1} offen offset:1024 sc1")
def add_res(k, acc, v):
    for j in range(8):
        k(f"v_lshlrev_b32 v10, 16, v{v+j}\nv_and_b32 v11, 0xffff0000, v{v+j}")
        k(f"v_add_f32 v{acc+2*j}, v{acc+2*j}, v10\nv_add_f32 v{acc+2*j+1}, v{acc+2*j+1}, v11")

def ph_wo(k, L, ring, tO):
    k.label(f'L_wo{L}')
    vX, vACC, vRES, vSUM, vPK = 16, 80, (G.res if RES_AT else 112), 120, 136
    k(f"s_lshr_b32 s{sRB}, s{sDST}, 15\ns_lshr_b32 s{sD}, s{sW}, 1")
    k(f"s_mul_i32 s{sX}, s{sRB}, {112*KB}\ns_lshl_b32 s{sT0}, s{sD}, 14\ns_add_u32 s{sX}, s{sX}, s{sT0}\ns_add_u32 s{sX}, s{sX}, {HF}")
    k(f"s_lshl_b32 s{sT0}, s{sD}, 11")
    set_lds_bases(k, sT0)
    seq = []
    for s in range(16):
        seq.append((s, 1))
        if s < 16 - WO_R0: seq.append((s, 0))
    nf = len(seq)
    seq += [(s, 0) for s in range(16 - WO_R0, 16)]
    ops = [dict(b=4*s + a, bmin=0, bmax=63, xi=s, x=vr(vX+4*s), acc=vr(vACC+16*a,16), swap=False, first=(s == 0)) for s, a in seq]
    g = Gemm(k, ring, ops, {0}, stop_issue=WO_STOP)
    rs = {}
    def ldres():
        if L == 0:
            k.vm(f"buffer_load_dwordx4 {vr(vRES)}, v8, {srd(60)}, s{sE} offen")
            rs['t'] = k.vm(f"buffer_load_dwordx4 {vr(vRES+4)}, v8, {srd(60)}, s{sE} offen offset:32")
        else:
            rs['t'] = load_res(k, vRES)
    if not RES_LATE[L] and not RES_AT:
        if L == 0: rowmajor_addr(k, 8, sE)
        ldres()
    g.start()
    mark(k, 'f_bar')
    ring.issue_n(PRE_WO)
    publish_local(k, tO)
    mark(k, 'f_pub')
    ring.issue_n(PRE_WO2)
    k(f"s_and_b32 s{sF}, s{sRB}, 0xfe\ns_add_u32 s{sF}, s{sF}, s{sD}\ns_lshl_b32 s{sF}, s{sF}, 7\ns_add_u32 s{sF}, s{sF}, {FLOC(L,0)}")
    SC = 144 * KB
    k(f"s_xor_b32 s{sT0}, s{sW}, 2\ns_lshl_b32 s{sT0}, s{sT0}, 12\ns_add_u32 s{sT0}, s{sT0}, {SC}\nv_add_u32 v6, s{sT0}, v{vL16}")
    k(f"s_lshl_b32 s{sT0}, s{sW}, 12\ns_add_u32 s{sT0}, s{sT0}, {SC}\nv_add_u32 v7, s{sT0}, v{vL16}")
    if RES_LATE[L] and L == 0: rowmajor_addr(k, 8, sE)
    if RES_AT:
        for x in res_unpack(vSUM, vRES): k(x)
    poll16(k)
    mark(k, 'f_poll')
    xq = XLoader(k, 16, lambda i: vr(vX+4*i), lin_src(k))
    xq.issue_n(WO_N0)
    if not RES_LATE[L] and not RES_AT:
        for x in res_unpack(vSUM, vRES): k(x)
    st = {}
    def xchg(step):
        if step == 0:
            while g.nread < 32: g.rd()
            for j in range(4): k.lg(f"ds_write_b128 v6, {vr(vACC+16+4*j)} offset:{j*KB}")
        elif step == 1:
            k.wait_all(vm=False)
            ring.limit = None
            ring.sync(64, 0)
            for j in range(4): st['t'] = k.lg(f"ds_read_b128 {vr(vACC+16+4*j)}, v7 offset:{j*KB}")
            ring.issue_n(XB_PRE)
        st['n'] = step + 1
    def filler(m):
        if m == max(nf + 1, 25): xchg(0)
        if m == max(nf + 4, 28): xchg(1)
    g.run(xq, n0=0, look=16, filler=filler, misc=[ldres] if RES_LATE[L] else [])
    for step in range(st.get('n', 0), 2): xchg(step)
    if RES_LATE[L]:
        k.wait(vm=rs['t'])
        for x in res_unpack(vSUM, vRES): k(x)
    k.wait(lg=st['t'])
    for i in range(16): k(f"v_add_f32 v{vSUM+i}, v{vSUM+i}, v{vACC+16+i}")
    for j in range(8):
        k(f"v_add_f32 v{vACC+2*j}, v{vACC+2*j}, v{vSUM+2*j}\nv_add_f32 v{vACC+2*j+1}, v{vACC+2*j+1}, v{vSUM+2*j+1}")
        k(f"v_cvt_pk_bf16_f32 v{vPK+j}, v{vACC+2*j}, v{vACC+2*j+1}")
    ts = store_x(k, vACC, vPK, L, 1, ring)
    mark(k, 'end')
    return ts

PASSES = ((0, 3), (3, 2), (5, 2))
PBASE = (0, 100, 166)
def ph_up(k, L, ring, b0, tprev):
    vX, vACC, vST, vEXT, vRS = 16, 144, 224, 8, 6
    sH0, sH1 = sD, sE
    rb_128(k)
    k(f"s_and_b32 s{sA}, s{sC}, 15")
    k(f"s_lshl_b32 s{sX}, s{sRB}, 15\ns_add_u32 s{sX}, s{sX}, {XF}")
    set_lds_bases(k)
    if UP16: return ph_up16(k, L, ring, b0, tprev)
    ops = []
    for (t0, nt), pb in zip(PASSES, PBASE):
        for ks in range(33):
            for t in range(t0, t0+nt):
                lo_ = b0 + pb + (ks >> 1)*2*nt
                b = lo_ + (2*(t - t0) + (ks & 1) if ks < 32 else t - t0)
                ops.append(dict(b=b, bmin=lo_, bmax=b, xi=(ks if ks < 32 else None), x=(vr(vX+4*ks) if ks < 32 else vr(vEXT)),
                                acc=vr(vACC+16*t, 16), swap=False, first=(ks == 0)))
    g = Gemm(k, ring, ops, UP_SYNCS, stop_issue=UP_STOP)
    g.start()
    mark(k, 'f_bar')
    ring.issue_n(PRE)
    publish_local(k, tprev)
    mark(k, 'f_pub')
    ring.issue_n(PRE2)
    res = {}
    se = stats_emitters(k, vST, res)
    k(f"s_mul_i32 s{sH0}, s{sRB}, 112\ns_mul_i32 s{sT2}, s{sA}, 7\ns_add_u32 s{sH0}, s{sH0}, s{sT2}\ns_lshl_b32 s{sH0}, s{sH0}, 10\ns_add_u32 s{sH0}, s{sH0}, {HF}")
    k(f"s_add_u32 s{sH1}, s{sH0}, 4096")
    k(f"s_lshl_b32 s{sF}, s{sRB}, 7\ns_add_u32 s{sF}, s{sF}, {FLOC(L,1)}")
    poll16(k)
    mark(k, 'f_poll')
    aps = stats_poll(k, FLOC(L,6) - FLOC(L,1))
    xq = XLoader(k, 32, lambda i: vr(vX+4*i), lin_src(k))
    fin = fin_stats(vST, vEXT, vRS) + [f"v_mul_f32 v{vRS}, v{vRS}, v{vRS}"]
    def epi(t):
        a = vACC + 16*t
        o = []
        for j in range(4):
            o += [f"v_mul_f32 v{a+2*j}, v{a+2*j}, v{vRS}", f"v_mul_f32 v{a+2*j+1}, v{a+2*j+1}, v{vRS}",
                  f"v_mul_f32 v{a+2*j}, v{a+2*j}, v{a+8+2*j}", f"v_mul_f32 v{a+2*j+1}, v{a+2*j+1}, v{a+9+2*j}",
                  f"v_cvt_pk_bf16_f32 v{a+8+j}, v{a+2*j}, v{a+2*j+1}"]
        o.append(f"buffer_store_dwordx4 {vr(a+8)}, v{vL16}, {srd(sWS)}, s{sH0 + (t >> 2)} offen offset:{(t & 3)*KB}")
        return o
    st = dict(i=0, t=None); q = []
    def put(x):
        if x.startswith('buffer'): st['t'] = k.vm(x)
        else: k(x)
    dn = Down(k, L)
    def filler(m):
        if aps and m == 12: aps.issue()
        if aps and m == 30: aps.check()
        if 70 <= m < 96:
            if st['i'] == 0: k.wait(vm=res['t'])
            for _ in range(2):
                if st['i'] < len(fin): k(fin[st['i']]); st['i'] += 1
        if m == 102: q.extend(sum((epi(t) for t in range(0, 3)), []))
        if m == 168: q.extend(sum((epi(t) for t in range(3, 5)), []))
        if UP4 and m == 201: q.extend(epi(5))
        for _ in range(UP_EPI):
            if q: put(q.pop(0))
        if m == 146: code_touch(k, 7)
        if m in UP_PUB:
            assert not q
            if m == UP_PUB[0]:
                k(f"s_lshl_b32 s{sF}, s{sRB}, 4\ns_add_u32 s{sF}, s{sF}, s{sA}\ns_lshl_b32 s{sF}, s{sF}, 3\ns_add_u32 s{sF}, s{sF}, {FLOC(L,9)}")
            publish_local(k, st['t'])
            k(f"s_add_u32 s{sF}, s{sF}, {8*KB}")
            if m == UP_PUB[1]: dn.xq.hold = 20
        if UP_PUB[0] < m and dn.setup:
            for _ in range(3):
                if dn.setup: k(dn.setup.pop(0))
        if m in DN_POLL: dn.ap.issue()
        if m in DN_CHK:
            dn.ap.check()
            k(f"s_add_u32 s{dn.sFl}, s{dn.sFl}, {8*KB}")
        if m > DN_CHK[0] and m % 2 and not (ring.can_issue() and m < UP_STOP): dn.xq.issue_n(1)
    if L == 0: ring.limit = 296 + QW_UP
    g.run(xq, look=UP_LOOK, filler=filler, misc=se, misc_from=32, skip=UP_SKIP[L])
    assert st['i'] == len(fin) and not dn.setup and ring.issued == min(ring.total, 296 + QW_UP)
    dn.xq.hold = 36 if len(DN_CHK) > 1 else 24
    for t in range(6 if UP4 else 5, 7):
        for i, x in enumerate(epi(t)):
            put(x)
            if i in (4, 14): dn.xq.issue_n(1)
    mark(k, 'end')
    dn.tB = st['t']
    return dn

def ph_up16(k, L, ring, b0, tprev):
    vX, vACC, vST, vEXT, vRS, vXM = 16, 144, 224, 8, 6, 12
    sH0, sH1 = sD, sE
    D, NB = 5, 8
    k(f"v_bfe_u32 v8, v0, 4, 2\nv_lshlrev_b32 v8, 9, v8\nv_and_b32 v9, 15, v0\nv_lshl_add_u32 v{vXM}, v9, 4, v8")
    k("v_and_b32 v9, 3, v0\nv_bfe_u32 v10, v0, 2, 1\nv_lshl_or_b32 v9, v10, 3, v9\nv_bfe_u32 v10, v0, 3, 1\nv_lshl_or_b32 v9, v10, 2, v9")
    k(f"v_lshl_add_u32 v{vB}, v9, 4, v8\nv_add_u32 v{vB+1}, 0x10000, v{vB}\nv_add_u32 v{vB+2}, 0x20000, v{vB}")
    units = []
    for (t0, nt), pb in zip(PASSES, PBASE):
        for K in range(16):
            for t in range(t0, t0+nt):
                for ch in range(2):
                    lo_ = b0 + pb + K*2*nt
                    units.append(dict(b=lo_ + 2*(t - t0), bmin=lo_, bmax=lo_ + 2*(t - t0) + 1, K=K, t=t, ch=ch))
        for t in range(t0, t0+nt):
            b = b0 + pb + 32*nt + t - t0
            units.append(dict(b=b, bmin=b0 + pb + 32*nt, bmax=b, K=16, t=t, e0=b0 + pb + 32*nt))
    M = len(units); syncs = sorted(UP_SYNCS)
    tl = {}; S = dict(nread=0)
    def rd():
        m = S['nread']; o = units[m]; w = aWB + 4*(m % NB)
        assert o['bmax'] < ring.visible, (m, o, ring.visible)
        a = ring.addr(o['b'])
        if o['K'] < 16:
            assert ring.addr(o['b'] + 1) == a + KB
            a += o['ch'] * 256
            tl[m] = k.lg(f"ds_read_b128 {ar(w)}, v{vB + (a >> 16)} offset:{a & 0xffff}")
        else:
            a0 = ring.addr(o['e0'])
            if o['b'] == o['e0']:
                if a0 != S['a0']: k(f"v_add_u32 v13, {a0 - S['a0']}, v13")
                S['a0'] = a0
            assert a >= a0
            k.lg(f"ds_read_b64 {ar(w,2)}, v13 offset:{a - a0}")
            tl[m] = k.lg(f"ds_read_b64 {ar(w+2,2)}, v13 offset:{a - a0 + 256}")
        S['nread'] += 1
    def need_until(m):
        nxt = [x for x in syncs if x > m]
        last = min((nxt[0] if nxt else M) - 1 + D, M - 1)
        return max(o['bmax'] for o in units[:last+1]) + 1
    ring.sync(units[0]['bmin'], need_until(0))
    for _ in range(D): rd()
    mark(k, 'f_bar')
    ring.issue_n(PRE)
    publish_local(k, tprev)
    mark(k, 'f_pub')
    res = {}
    se = stats_emitters(k, vST, res)
    k(f"s_mul_i32 s{sH0}, s{sRB}, 112\ns_mul_i32 s{sT2}, s{sA}, 7\ns_add_u32 s{sH0}, s{sH0}, s{sT2}\ns_lshl_b32 s{sH0}, s{sH0}, 10\ns_add_u32 s{sH0}, s{sH0}, {HF}")
    if DN16:
        k(f"s_bitcmp0_b32 s{sA}, 0\ns_cselect_b32 s{sH1}, -1, 1\ns_cselect_b32 s{sT2}, 7, -1\ns_lshl_b32 s{sH1}, s{sH1}, 10\ns_lshl_b32 s{sT2}, s{sT2}, 10\ns_add_u32 s{sH0}, s{sH0}, s{sT2}")
    else: k(f"s_add_u32 s{sH1}, s{sH0}, 4096")
    k(f"s_lshl_b32 s{sF}, s{sRB}, 7\ns_add_u32 s{sF}, s{sF}, {FLOC(L,1)}")
    poll16(k)
    mark(k, 'f_poll')
    aps = stats_poll(k, FLOC(L,6) - FLOC(L,1))
    def xsrc(i):
        if i and (i & 3) == 0: k(f"s_add_u32 s{sX}, s{sX}, 4096")
        return sX, ((i >> 1) & 1) * 2048 + (i & 1) * 256
    xq = XLoader(k, 32, lambda i: vr(vX+4*i), xsrc, va=vXM)
    fin = fin_stats(vST, vEXT, vRS) + [f"v_mul_f32 v{vRS}, v{vRS}, v{vRS}", f"v_permlane16_swap_b32 v{vEXT}, v{vEXT+2}"] + ([] if LN_BF16 else [f"v_permlane16_swap_b32 v{vEXT+1}, v{vEXT+3}"])
    fin2 = [f"v_mov_b32 v{vRS+1}, v{vRS}", f"v_permlane16_swap_b32 v{vRS}, v{vRS+1}"]
    def epi(t):
        a = vACC + 16*t
        o = []
        for th in range(2):
            g_ = a + 4*th; u_ = a + 8 + 4*th
            o += [f"v_mul_f32 v{g_+j}, v{g_+j}, v{vRS+th}" for j in range(4)] + [f"v_mul_f32 v{g_+j}, v{g_+j}, v{u_+j}" for j in range(4)]
            o += [f"v_cvt_pk_bf16_f32 v{a+8+2*th}, v{g_}, v{g_+1}", f"v_cvt_pk_bf16_f32 v{a+9+2*th}, v{g_+2}, v{g_+3}"]
        if DN16: o.append(f"s_add_u32 s{sH0}, s{sH0}, s{sH1}")
        o += [f"v_permlane16_swap_b32 v{a+8}, v{a+10}", f"v_permlane16_swap_b32 v{a+9}, v{a+11}"]
        if DN16: o.append(f"buffer_store_dwordx4 {vr(a+8)}, v{vL16}, {srd(sWS)}, s{sH0} offen")
        else: o.append(f"buffer_store_dwordx4 {vr(a+8)}, v{vL16}, {srd(sWS)}, s{sH0 + (t >> 2)} offen offset:{(t & 3)*KB}")
        return o
    st = dict(t=None)
    def put(x):
        if x.startswith('buffer'): st['t'] = k.vm(x)
        else: k(x)
    dn = Down(k, L)
    if L == 0: ring.limit = 296 + QW_UP
    xq.issue_n(6)
    mem = []; alu = []; se = list(se); cur = 0; second = []
    def waits(m):
        nonlocal cur
        xs = [2*p['K'] + 1 for p in units[m:m+2] if p['K'] < 16]
        xt = None
        if xs:
            cur = max(cur, max(xs))
            while xq.n <= max(xs): xq.issue_n(1)
            xt = xq.t[max(xs)]
        n0 = len(k.L)
        k.wait(vm=xt, lg=tl[min(m + 1, M - 1)])
        return len(k.L) - n0
    big = lambda x: x.startswith(('buffer', 'v_permlane', 'v_rsq'))
    def slot(first):
        if mem and (len(mem) > 1 or first):
            last = len(mem) == 1
            mem.pop(0)()
            return last and U16_BIG
        if alu and (first or not (big(alu[0]) if U16_BIG else alu[0].startswith('buffer'))):
            x = alu.pop(0); put(x)
            return big(x) and U16_BIG
        return False
    waits(0)
    for m, o in enumerate(units):
        if m in syncs and m > 0:
            while mem: mem.pop(0)()
            while second: second.pop()()
            ring.sync(o['bmin'], need_until(m))
        w = aWB + 4*(m % NB); a = vACC + 16*o['t']
        if o['K'] < 16:
            mm = [f"v_mfma_f32_16x16x32_bf16 {vr(a+8*o['ch']+4*th)}, {ar(w)}, {vr(vX+8*o['K']+4*th)}, {'0' if o['K'] == 0 else vr(a+8*o['ch']+4*th)}" for th in range(2)]
        else:
            mm = [f"v_mfma_f32_16x16x16_bf16 {vr(a+8*ch+4*th)}, {ar(w+2*ch,2)}, {vr(vEXT+2*th,2)}, {vr(a+8*ch+4*th)}" for ch in range(2) for th in range(2)]
        k(mm[0])
        if m == 0: mark(k, 'm0')
        if m in GEMM_MARKS.get(G.ph, ()): mark(k, f'm{m}')
        if S['nread'] < M: rd()
        else: slot(True)
        if not (m % 2 and m + 1 < M and waits(m + 1)): slot(False)
        for x in mm[1:-1]:
            k(x); slot(True) or slot(False)
        k(mm[-1])
        if aps and m == 12: aps.issue()
        if aps and m == 30: aps.check()
        if m == 34:
            a0 = S['a0'] = ring.addr(b0 + 96)
            alu += f"v_and_b32 v13, 0xf0, v{vB}\nv_bfe_u32 v7, v0, 5, 1\nv_lshl_add_u32 v13, v7, 9, v13\nv_bfe_u32 v7, v0, 4, 1\nv_lshl_add_u32 v13, v7, 3, v13\nv_add_u32 v13, {a0}, v13".split('\n')
            alu += f"s_lshl_b32 s{sF}, s{sRB}, 4\ns_add_u32 s{sF}, s{sF}, s{sA}\ns_lshl_b32 s{sF}, s{sF}, 3\ns_add_u32 s{sF}, s{sF}, {FLOC(L,9)}".split('\n')
            alu += TAGMOV + [x for x in dn.setup if x.startswith('s_')]
            dn.setup = [x for x in dn.setup if not x.startswith('s_')]
            if CODE_TOUCH:
                pc = k.newlabel('pc')
                alu += [f"s_getpc_b64 s[{sPC}:{sPC+1}]\n{pc}:", f"s_min_u32 s{sT3}, s{sCT}, L_end-{pc}-1024",
                        f"s_add_u32 s{sPC}, s{sPC}, s{sT3}\ns_addc_u32 s{sPC+1}, s{sPC+1}, 0"]
        if L and KV_LOC and m == U16_FIN:
            assert not alu
            k(f"s_xor_b32 s{sT3}, s{sRB}, 4\ns_lshr_b32 s{sT3}, s{sT3}, 1\ns_lshl_b32 s{sT3}, s{sT3}, 8\ns_add_u32 s{sT3}, s{sT3}, {FLOC(L,0)}")
            apw = APoll(k, ["v_and_b32 v252, 31, v0", "v_lshlrev_b32 v252, 3, v252",
                            f"buffer_load_dwordx2 v[252:253], v252, {srd(sWS)}, s{sT3} offen sc1"], f"v_cmp_ne_u64 vcc, s[{sTAG}:{sTAG+1}], v[252:253]")
            apw.issue()
        if L and KV_LOC and m == 98: apw.check()
        if m == U16_FIN:
            assert not alu
            k.wait(vm=res['t']); alu += fin + fin2
        if m == 95: assert not alu
        if m == 100:
            assert xq.n == xq.total
            if CODE_TOUCH: k.vm(f"global_load_dword v255, v{vL16}, s[{sPC}:{sPC+1}]")
            alu += sum((epi(t) for t in range(0, 3)), []) + dn.setup; dn.setup = []
        if m == 167: alu += sum((epi(t) for t in range(3, 5)), [])
        if m in U16_PUB:
            assert not alu, (m, len(alu))
            publish_local(k, st['t'], movs=False)
            alu.append(f"s_add_u32 s{sF}, s{sF}, {8*KB}")
            if m == U16_PUB[1]: dn.xq.hold = 20
        if m in U16_POLL: dn.ap.issue()
        if m == U16_CHK:
            dn.ap.check()
            alu += [f"s_add_u32 s{dn.sFl}, s{dn.sFl}, {8*KB}"] + TAGMOV
        if m % 2 == 0 and not mem:
            rok = second or (m < UP_STOP and (ring.can8() or (ring.can_issue() and not ring.pair)))
            if not second and xq.n < xq.total and ring.issued >= b0 + U16_HOLD: rok = False
            mok = se and m >= 32
            if xq.n < xq.total and (xq.n - cur < UP_LOOK or not (rok or mok)): mem.append(lambda: xq.issue_n(1))
            elif mok: mem.append(se.pop(0))
            elif second: mem.append(second.pop())
            elif rok and ring.can8():
                p1, p2 = ring.parts8(); mem += p1; second += p2
            elif rok: mem += ring.parts()
            elif m > U16_CHK and dn.xq.n < dn.xq.hold: mem.append(lambda: dn.xq.issue_n(1))
        slot(True) or slot(False)
    while mem: mem.pop(0)()
    while second: second.pop()()
    ring.end8()
    assert not alu and not se and ring.issued == min(ring.total, 296 + QW_UP)
    dn.xq.hold = 24
    for t in range(5, 7):
        for i, x in enumerate(epi(t)):
            put(x)
            if i in (4, 14): dn.xq.issue_n(1)
    mark(k, 'end')
    dn.tB = st['t']
    return dn

class Down:
    NX = 36
    def __init__(self, k, L):
        self.k = k; self.L = L
        sXa, sXb, sFl = sB, sX2, sCc
        self.sFl = sFl
        self.setup = (f"s_lshr_b32 s{sT0}, s{sDST}, 15\ns_mul_i32 s{sT1}, s{sW}, {28*KB}\ns_add_u32 s{sT1}, s{sT1}, {HF}\n"
                      f"s_mul_i32 s{sXa}, s{sT0}, {112*KB}\ns_add_u32 s{sXa}, s{sXa}, s{sT1}\n"
                      f"s_xor_b32 s{sT2}, s{sT0}, 1\ns_mul_i32 s{sXb}, s{sT2}, {112*KB}\ns_add_u32 s{sXb}, s{sXb}, s{sT1}\n"
                      f"v_lshlrev_b32 v12, 3, v0\nv_and_b32 v12, 0x98, v12\n"
                      f"s_and_b32 s{sFl}, s{sT0}, 0xfe\ns_lshl_b32 s{sFl}, s{sFl}, 7\ns_lshl_b32 s{sT1}, s{sW}, 5\ns_add_u32 s{sFl}, s{sFl}, s{sT1}\n"
                      f"s_add_u32 s{sFl}, s{sFl}, {FLOC(L,9)}").split('\n')
        self.order = order = [7*c + t for t0, nt in (((0, 3), (3, 2), (5, 1), (6, 1)) if UP4 else PASSES) for c in range(4) for t in range(t0, t0+nt)]
        cur = {sXa: 0, sXb: 0}
        if DN16:
            assert UP16
            self.setup = [x for x in self.setup if x.startswith('s_')]
            self.order = order = [2, 3, 4, 9, 10, 11, 1, 5, 8, 12, 0, 6, 7, 13]
            def src16(i):
                s_ = sXa if (i & 2) == 0 else sXb
                r = 2 * order[i >> 2]
                if not 0 <= r - cur[s_] < 4:
                    d = (r - cur[s_]) * KB
                    k(f"s_add_u32 s{s_}, s{s_}, {d}" if d > 0 else f"s_sub_u32 s{s_}, s{s_}, {-d}")
                    cur[s_] = r
                return s_, (r - cur[s_]) * KB + (i & 1) * 256
            self.xr = lambda i: vr(144 + 4*(i % 36) if (i % 36) < 20 else 80 + 4*((i % 36) - 20))
            self.xq = XLoader(k, 56, self.xr, src16, va=12)
            self.xq.hold = 12
            self.ap = APoll(k, ["v_lshlrev_b32 v14, 3, v0", "v_and_b32 v14, 0x98, v14",
                                f"buffer_load_dwordx2 v[14:15], v14, {srd(sWS)}, s{sFl} offen sc1"], f"v_cmp_ne_u64 vcc, s[{sTAG}:{sTAG+1}], v[14:15]")
            return
        def src(i):
            s_ = sXa if (i & 1) == 0 else sXb
            r = order[i >> 1]
            if not 0 <= r - cur[s_] < 4:
                d = (r - cur[s_]) * KB
                k(f"s_add_u32 s{s_}, s{s_}, {d}" if d > 0 else f"s_sub_u32 s{s_}, s{s_}, {-d}")
                cur[s_] = r
            return s_, (r - cur[s_]) * KB
        self.xr = lambda i: vr(144 + 4*(i % 36) if (i % 36) < 20 else 80 + 4*((i % 36) - 20))
        self.xq = XLoader(k, 56, self.xr, src)
        self.xq.hold = 12
        self.ap = apoll1(k, 12, 14, sFl)

def load_res16(k, v):
    k(f"v_and_b32 v13, 0x2f0, v{vL16}\nv_bfe_u32 v5, v0, 4, 1\nv_lshl_add_u32 v13, v5, 3, v13\ns_add_u32 s{sT1}, s{sDST}, {XF}")
    for ch in range(2):
        for th in range(2):
            t = k.vm(f"buffer_load_dwordx2 {vr(v+4*ch+2*th,2)}, v13, {srd(sWS)}, s{sT1} offen offset:{ch*KB + th*256} sc1")
    return t
def res_unpack(dst, v):
    o = []
    for j in range(8): o += [f"v_lshlrev_b32 v{dst+2*j}, 16, v{v+j}", f"v_and_b32 v{dst+2*j+1}, 0xffff0000, v{v+j}"]
    return o

def ph_down(k, L, ring, dn):
    vACC, vRES, vPK, vSUM = 16, 240, 240, 224
    final = L == 1
    xq = dn.xq; order = dn.order; NX = dn.NX
    if len(DN_CHK) > 1: xq.hold = 40
    SC = 108 * KB
    side = []
    for a in range(1, 4):
        side += f"s_xor_b32 s{sT0}, s{sW}, {a}\ns_mul_i32 s{sT0}, s{sT0}, {12*KB}\ns_add_u32 s{sT0}, s{sT0}, {SC + (a-1)*4*KB}\nv_add_u32 v{5+a}, s{sT0}, v{vL16}".split('\n')
    side += f"s_mul_i32 s{sT0}, s{sW}, {12*KB}\ns_add_u32 s{sT0}, s{sT0}, {SC}\nv_add_u32 v9, s{sT0}, v{vL16}".split('\n')
    if final and OUT_T:
        side += (f"s_and_b32 s{sT0}, s{sW}, 1\ns_mul_i32 s{sT0}, s{sT0}, {32*144}\ns_lshr_b32 s{sT2}, s{sW}, 1\ns_lshl_b32 s{sT2}, s{sT2}, 6\ns_add_u32 s{sT0}, s{sT0}, s{sT2}\n"
                 f"v_and_b32 v10, 31, v0\nv_mul_u32_u24 v10, 144, v10\nv_bfe_u32 v11, v0, 5, 1\nv_lshl_add_u32 v10, v11, 4, v10\nv_add_u32 v10, s{sT0}, v10\n"
                 f"s_mul_i32 s{sT0}, s{sW}, {16*144}\nv_bfe_u32 v13, v0, 3, 3\nv_mul_u32_u24 v11, 144, v13\nv_and_b32 v5, 7, v0\nv_lshl_add_u32 v11, v5, 4, v11\nv_add_u32 v11, s{sT0}, v11\n"
                 f"v_lshlrev_b32 v13, 10, v13\nv_lshl_add_u32 v13, v5, 4, v13\n"
                 f"s_and_b32 s{sT0}, s{sDST}, 0xffff0000\ns_lshl_b32 s{sT2}, s{sW}, 14\ns_add_u32 s{sT0}, s{sT0}, s{sT2}\n"
                 f"s_and_b32 s{sT2}, s{sC}, 7\ns_lshl_b32 s{sT2}, s{sT2}, 7\ns_add_u32 s{sT0}, s{sT0}, s{sT2}\ns_add_u32 s{sT2}, s{sT0}, 8192").split('\n')
    R, R0 = DN_R, DN_R0
    seq = []
    for s in range(28 - R):
        seq += [(s, a) for a in (3, 2, 1)]
        if s < 28 - R0: seq.append((s, 0))
    seq += [(s, a) for a in (3, 2, 1) for s in range(28 - R, 28)] + [(s, 0) for s in range(28 - R0, 28)]
    fx = (lambda s_, a_: 4*(s_ >> 1) + 2*(a_ & 1)) if DN16 else (lambda s_, a_: 2*s_ + (a_ & 1))
    lo = [min(fx(s_, a_) for s_, a_ in seq[m:]) for m in range(112)]
    wr = []; rt = None; tail = None; res = None; wb = False; adds = []
    for m, (s, a) in enumerate(seq):
        r = order[s >> 1] if DN16 else order[s]
        if len(DN_CHK) == 1 and m == DN_CHK2:
            dn.ap.check()
            k(f"s_add_u32 s{dn.sFl}, s{dn.sFl}, {8*KB}")
            xq.hold = 40
        if m == int(4*DN_PUBB): publish_local(k, dn.tB)
        if UP4 and m == DN_POLL3: dn.ap.issue()
        if UP4 and m == DN_CHK3:
            dn.ap.check()
            k(f"s_add_u32 s{dn.sFl}, s{dn.sFl}, {8*KB}")
            xq.hold = 48
        if m == 4*DN_BAR:
            ring.limit = None
            ring.sync(296, 0)
        if m == 4*DN_POLLB:
            apb = dn.ap
            apb.issue()
            rt = load_res16(k, vRES) if DN16 else load_res(k, vRES)
        if m == 4*DN_CHKB:
            apb.check()
            xq.hold = 56
            xq.issue_n(min(3, lo[m] + NX - xq.n))
        xi = fx(s, a) + (1 if DN16 else 0)
        while xq.n <= xi:
            assert xq.n < xq.hold and xq.n < lo[m] + NX
            xq.issue_n(1)
        k.wait(vm=xq.t[xi])
        if DN16:
            ch = s & 1
            for th in range(2):
                acc = vr(vACC + 16*a + 8*ch + 4*th)
                k(f"v_mfma_f32_16x16x32_bf16 {acc}, {ar(aWD + 16*r + 8*(a >> 1) + 4*ch)}, {dn.xr(xi - 1 + th)}, {'0' if s < 2 else acc}")
                if th == 0:
                    for _ in range(2):
                        if side and res: k(side.pop(0))
                        elif adds and adds[0][0] <= m:
                            _, t_, x = adds.pop(0); k.wait(lg=t_); k(x)
        else:
            acc = vr(vACC + 16*a, 16)
            k(f"v_mfma_f32_32x32x16_bf16 {acc}, {ar(aWD + 8*r + 4*(a >> 1))}, {dn.xr(xi)}, {'0' if s == 0 else acc}")
        if m == 0: mark(k, 'm0')
        if m in GEMM_MARKS.get(G.ph, ()): mark(k, f'm{m}')
        if (m % 2 == 0 or (xq.hold == 56 and m % DN_CR == 0)) and xq.n < min(lo[m] + NX, xq.total, xq.hold): xq.issue_n(1)
        elif m % 2 == 0 and xq.n == xq.total and ring.can_issue(): ring.issue()
        elif m > 4*DN_CHKB + 8:
            if res is None:
                k.wait(vm=rt); res = True
                side += res_unpack(vSUM, vRES)
            for _ in range(2 if DN16 else 4):
                if side: k(side.pop(0))
        if final and WB_MASK is not None and xq.n == xq.total and (WB_EARLY or k.vm_done == k.vm_issued) and not wb:
            wb = True; l_ = k.newlabel('wb')
            k(f"s_lshl_b32 s{sT1}, s{sC}, 2\ns_add_u32 s{sT1}, s{sT1}, s{sW}\ns_and_b32 s{sT1}, s{sT1}, {WB_MASK}")
            if WB_EARLY:
                k(f"s_cbranch_scc0 {l_}")
                k.vm(f"buffer_load_dword v15, off, {srd(sWS)}, s{dn.sFl} sc1")
                k.label(l_ + 'r')
                G.far += [f"{l_}:", "buffer_wbl2 sc1", f"s_branch {l_}r"]
            else:
                k(f"s_cbranch_scc1 {l_}")
                k("buffer_wbl2 sc1")
                k.label(l_)
            print('wbl2 at', m, file=sys.stderr)
        if wr and wr[0][0] <= m:
            assert not side
            for _ in range(min(DN_WR, len(wr))):
                if wr[0][0] <= m: k.lg(wr.pop(0)[1])
            if wr and DN_WR == 1: wr[0] = (max(wr[0][0], m + DN_WGAP), wr[0][1])
            if not wr and a == 0: tail = min(m + 2, 111)
        if s == 27 and a:
            wr += [(m + 2, f"ds_write_b128 v{5+a}, {vr(vACC+16*a+4*j)} offset:{j*KB}") for j in range(4)]
        def fetch(bs):
            k("s_barrier")
            for b in bs:
                for j in range(4): t_ = k.lg(f"ds_read_b128 {vr(vACC+16+16*b+4*j)}, v9 offset:{b*4*KB + j*KB}")
                adds.extend((m + 2, t_, f"v_add_f32 v{vSUM+i}, v{vSUM+i}, v{vACC+16+16*b+i}") for i in range(16))
        if DN_X2 and m == 112 - R0:
            assert all('ds_write_b128 v6,' in x[1] for x in wr)
            k.wait_all(vm=False)
            fetch((2, 1))
        elif tail == m:
            k.wait_all(vm=False)
            fetch((0,) if DN_X2 else (2, 1, 0))
        else:
            for _ in range(2 if DN16 else DN_ADDS):
                if adds and adds[0][0] <= m:
                    _, t_, x = adds.pop(0); k.wait(lg=t_); k(x)
    assert not side and not wr and tail is not None and tail < 112
    for _, t_, x in adds:
        k.wait(lg=t_); k(x)
    if final and not OUT_T: rowmajor_addr(k, 6, sT0)
    for j in range(8):
        k(f"v_add_f32 v{vACC+2*j}, v{vACC+2*j}, v{vSUM+2*j}\nv_add_f32 v{vACC+2*j+1}, v{vACC+2*j+1}, v{vSUM+2*j+1}")
        k(f"v_cvt_pk_bf16_f32 v{vPK+j}, v{vACC+2*j}, v{vACC+2*j+1}")
        if DN16 and j in (3, 7): k(f"v_permlane16_swap_b32 v{vPK+j-3}, v{vPK+j-1}\nv_permlane16_swap_b32 v{vPK+j-2}, v{vPK+j}")
        if final and OUT_T and j in (3, 7): k.lg(f"ds_write_b128 v10, {vr(vPK+j-3)} offset:{(j >> 2)*32}")
    if final and OUT_T:
        k.wait_all(vm=False)
        k("s_barrier")
        t0 = k.lg(f"ds_read_b128 {vr(vPK)}, v11")
        t1 = k.lg(f"ds_read_b128 {vr(vPK+4)}, v11 offset:{8*144}")
        k.wait(lg=t0)
        k.vm(f"buffer_store_dwordx4 {vr(vPK)}, v13, {srd(sAUX)}, s{sT0} offen{OUT_SC}")
        k.wait(lg=t1)
        k.vm(f"buffer_store_dwordx4 {vr(vPK+4)}, v13, {srd(sAUX)}, s{sT2} offen{OUT_SC}")
    elif final:
        k.vm(f"buffer_store_dwordx4 {vr(vPK)}, v6, {srd(sAUX)}, s{sT0} offen{OUT_SC}")
        k.vm(f"buffer_store_dwordx4 {vr(vPK+4)}, v6, {srd(sAUX)}, s{sT0} offen offset:32{OUT_SC}")
    else:
        G.tx = store_x(k, vACC, vPK, L, 8, ring, m16=DN16)
    mark(k, 'end')

def k_main(name):
    k = Asm()
    G.nst = 0
    k(f".globl {name}\n.p2align 8\n.type {name},@function")
    k.label(name)
    if STAMP or PADTO or GATE: k("s_memrealtime s[42:43]")
    mark(k, 'start')
    k("s_cmp_ge_u32 s2, 256")
    k("s_cbranch_scc1 L_abort")
    k(f"s_load_dwordx2 s[{sWS}:{sWS+1}], s[0:1], 72")
    k(f"s_load_dwordx2 s[{sAUX}:{sAUX+1}], s[0:1], 56")
    k("s_load_dwordx2 s[60:61], s[0:1], 0\ns_load_dwordx4 s[64:67], s[0:1], 8\ns_load_dwordx4 s[68:71], s[0:1], 32\ns_load_dwordx2 s[72:73], s[0:1], 48")
    if CT0:
        k("s_getpc_b64 s[88:89]")
        k(f"s_lshr_b32 s90, s2, 3\ns_and_b32 s90, s90, {CT0 - 1}\ns_lshl_b32 s90, s90, 12\nv_lshl_add_u32 v3, v0, 4, s90")
        k.vm("global_load_dword v247, v3, s[88:89]")
    k("v_lshrrev_b32 v2, 6, v0")
    k(f"v_and_b32 v{vL16}, 63, v0")
    k(f"v_readfirstlane_b32 s{sW}, v2")
    k(f"v_lshlrev_b32 v{vL16}, 4, v{vL16}")
    k(f"s_mov_b32 s{sWG}, s2\ns_and_b32 s{sG}, s2, 7\ns_lshr_b32 s{sC}, s2, 3\ns_lshl_b32 s{sW1K}, s{sW}, 10")
    k(f"s_lshr_b32 s{sC4}, s{sC}, 4\ns_lshr_b32 s{sC3}, s{sC}, 3")
    k(f"s_lshl_b32 s{sU}, s{sG}, 5\ns_add_u32 s{sU}, s{sU}, s{sC}")
    k(f"s_lshl_b32 s{sW4K}, s{sW}, 12\ns_lshl_b32 s{sW2K}, s{sW}, 11")
    k(f"s_getreg_b32 s{sXCC}, hwreg(HW_REG_XCC_ID, 0, 4)")
    k(f"v_add_u32 v{vSRC}, s{sW1K}, v{vL16}")
    k(f"s_mov_b32 s{sMSK}, 0xffff\ns_mov_b32 s{sMSK+1}, 0xffff\ns_mov_b32 s{sMODE}, 0")
    k(f"s_and_b32 s{sT0}, s{sC}, 7\ns_mul_i32 s{sSEG}, s{sT0}, {WO_STR}\ns_add_u32 s{sSEG}, s{sSEG}, {WO}")
    k(f"s_lshl_b32 s{sT1}, s{sG}, 2\ns_add_u32 s{sT1}, s{sT1}, s{sC3}\ns_lshl_b32 s{sT1}, s{sT1}, 1\ns_and_b32 s{sT2}, s{sW}, 1\ns_add_u32 s{sT1}, s{sT1}, s{sT2}")
    k(f"s_lshl_b32 s{sT1}, s{sT1}, 5\ns_lshl_b32 s{sT0}, s{sT0}, 2\ns_add_u32 s{sT1}, s{sT1}, s{sT0}\ns_and_b32 s{sT2}, s{sW}, 2\ns_add_u32 s{sT1}, s{sT1}, s{sT2}\ns_lshl_b32 s{sDST}, s{sT1}, 10")
    k(f"s_lshr_b32 s{sSD}, s{sDST}, 12\ns_lshl_b32 s{sSD}, s{sSD}, 9\ns_lshl_b32 s{sT2}, s{sT2}, 2\ns_add_u32 s{sSD}, s{sSD}, s{sT2}\ns_add_u32 s{sSD}, s{sSD}, {SX}")
    k(f"s_and_b32 s{sT0}, s{sC}, 15\ns_mul_i32 s{sSEG+1}, s{sT0}, {WU_STR}\ns_add_u32 s{sSEG+1}, s{sSEG+1}, {WU}")
    k(f"s_mul_i32 s{sSEG+2}, s{sT0}, {WQ_STR}\ns_add_u32 s{sSEG+2}, s{sSEG+2}, {WQ}")
    def late(k):
        if WSOFF: k(f"s_add_u32 s{sWS}, s{sWS}, {WSOFF}\ns_addc_u32 s{sWS+1}, s{sWS+1}, 0")
        k(f"s_add_u32 s{sT0}, s{sWS}, {EP}\ns_addc_u32 s{sT1}, s{sWS+1}, 0")
        k(f"s_load_dwordx2 s[{sTAG}:{sTAG+1}], s[{sT0}:{sT1}], 0")
        k(f"s_and_b32 s{sWS+1}, s{sWS+1}, 0xffff\ns_mov_b32 s{sWS+2}, {0x10000000 - WSOFF}\ns_mov_b32 s{sWS+3}, 0x20000")
        k(f"s_and_b32 s{sAUX+1}, s{sAUX+1}, 0xffff\ns_mov_b32 s{sAUX+2}, {2*MB}\ns_mov_b32 s{sAUX+3}, 0x20000")
    G.ph = 'qkv0'; tk = (ph_qkv0k if Q0K else ph_qkv0)(k, late)
    for L in range(2):
        ring = Ring(k, [(sSEG, 64), (sSEG+1, 232)] + ([(sSEG+2, 100)] if L == 0 else []))
        G.ph = f'att{L}'; tO = ph_att(k, L, ring, *tk)
        G.ph = f'wo{L}'; tx = ph_wo(k, L, ring, tO)
        G.ph = f'up{L}'; tB = ph_up(k, L, ring, 64, tx)
        G.ph = f'dn{L}'; ph_down(k, L, ring, tB)
        G.ph = 'qkv1'
        if L == 0: tk = ph_qkv(k, 1, ring, 296)
    k(f"s_add_u32 s{sT0}, s{sWG}, s{sW}\ns_cmp_lg_u32 s{sT0}, 0\ns_cbranch_scc1 L_fin")
    k(f"s_mov_b32 s{sF}, {EP}")
    publish_local(k, None, force_global=True)
    k.label("L_fin")
    if PADTO:
        k("s_waitcnt vmcnt(0)")
        if PADMIN:
            k("s_load_dwordx2 s[64:65], s[0:1], 64\ns_waitcnt lgkmcnt(0)")
            k("s_not_b32 s66, s42\nv_mov_b32 v8, s66\nv_mov_b32 v9, 0\ns_mov_b64 exec, 1")
            k("global_atomic_umax v9, v8, s[64:65]\ns_waitcnt vmcnt(0)")
            k.label("L_pad0")
            k(f"s_memrealtime s[98:99]\ns_waitcnt lgkmcnt(0)\ns_sub_u32 s98, s98, s42\ns_cmp_lt_u32 s98, {PADTO - 1500}\ns_cbranch_scc1 L_pad0")
            k("global_load_dword v8, v9, s[64:65] sc1\ns_waitcnt vmcnt(0)\nv_readfirstlane_b32 s66, v8\ns_not_b32 s42, s66\ns_mov_b64 exec, -1")
        k.label("L_pad")
        k(f"s_memrealtime s[98:99]\ns_waitcnt lgkmcnt(0)\ns_sub_u32 s98, s98, s42\ns_cmp_lt_u32 s98, {PADTO}\ns_cbranch_scc1 L_pad")
    if STAMP:
        k("s_waitcnt vmcnt(0)")
        G.ph = ''; mark(k, 'fin')
        k("s_memrealtime s[98:99]\ns_waitcnt lgkmcnt(0)")
        vals = [42, 98, sMODE] + STS[:G.nst]
        for i, s_ in enumerate(vals): k(f"v_mov_b32 v{16+i}, s{s_}")
        k(f"s_lshl_b32 s{sT0}, s{sWG}, 2\ns_add_u32 s{sT0}, s{sT0}, s{sW}\ns_lshl_b32 s{sT0}, s{sT0}, 7\ns_add_u32 s{sT0}, s{sT0}, {TS}")
        k("v_mov_b32 v4, 0\ns_mov_b64 exec, 1")
        for j in range(8): k(f"buffer_store_dwordx4 {vr(16+4*j)}, v4, {srd(sWS)}, s{sT0} offen offset:{16*j}")
        if DBG is not None:
            k(f"s_lshl_b32 s{sT0}, s{sWG}, 2\ns_add_u32 s{sT0}, s{sT0}, s{sW}\ns_cmp_lg_u32 s{sT0}, {DBG}\ns_cbranch_scc1 L_nodbg")
            k("s_load_dwordx2 s[64:65], s[0:1], 64\ns_waitcnt lgkmcnt(0)")
            for i in range(16): k(f"v_sub_u32 v{64+i}, v{20+i}, v19")
            for j in range(4): k(f"global_store_dwordx4 v4, {vr(64+4*j)}, s[64:65] offset:{16*j}")
            k.label("L_nodbg")
    k("s_waitcnt vmcnt(0)")
    k.label("L_abort")
    k("s_endpgm")
    for x in G.near + G.far:
        if x.endswith(':'): k.label(x[:-1])
        else: k(x)
    k.label("L_end")
    return k

def build():
    name = NAME + "_kernel"
    k = k_main(name)
    nn = k.fix()
    print(f"{len(k.L)} lines, {nn} nop states", file=sys.stderr)
    head = f"; stamps: {','.join(G.names)}\n" if (STAMP or not FINAL) else HDR
    return f"""{head}; @launch grid=(256,1,1) block=(256,1,1) lds={160*KB}
.amdgcn_target "amdgcn-amd-amdhsa--gfx950"
.text
{k.text()}
.section .rodata,"a"
.p2align 6
.amdhsa_kernel {name}
  .amdhsa_next_free_vgpr 512
  .amdhsa_next_free_sgpr 102
  .amdhsa_accum_offset 256
  .amdhsa_group_segment_fixed_size 0
  .amdhsa_kernarg_size 80
  .amdhsa_user_sgpr_count 2
  .amdhsa_user_sgpr_kernarg_segment_ptr 1
  .amdhsa_system_sgpr_workgroup_id_x 1
.end_amdhsa_kernel
"""

if __name__ == "__main__":
    for a in sys.argv[2:]:
        kk_, vv_ = a.split('=', 1)
        globals()[kk_] = eval(vv_)
    open(sys.argv[1], "w").write(build())
```
